```python
import torch

def _softmax(x, axis=-1):
    return torch.softmax(x, dim=axis)
def _gelu(x):
    return torch.nn.functional.gelu(x, approximate="tanh")
def _silu(x):
    return torch.nn.functional.silu(x)
def _sigmoid(x):
    return torch.sigmoid(x)
def _layernorm(x, axis=-1, eps=1e-5):
    m = x.mean(dim=axis, keepdim=True)
    v = x.var(dim=axis, keepdim=True, unbiased=False)
    return (x - m) / torch.sqrt(v + eps)
def _scatter_add(tgt, idx, src, axis=0):
    return tgt.clone().index_add_(axis, idx, src)
def _segment_sum(src, seg, n):
    out = torch.zeros((n,) + src.shape[1:], dtype=src.dtype)
    return out.index_add_(0, seg, src)
def _pad(x, pw):
    flat = tuple(v for pair in reversed(pw) for v in pair)
    return torch.nn.functional.pad(x, flat)

kernel_name = 'recurrent_scan__ssm_conv_h3__geglu_ffn__prompt'

def setup_inputs():

    _w = (lambda a: (lambda t: t.to(torch.bfloat16) if t.is_floating_point() else t)(torch.as_tensor(a)))
    def _A_setup():
        B, S, D = 1, 2048, 512
        ks = 4
        return {
            "q": _w((lambda *s: torch.randn(*s, dtype=torch.bfloat16) * 0.05)(B, S, D)),
            "k": _w((lambda *s: torch.randn(*s, dtype=torch.bfloat16) * 0.2)(B, S, D)),
            "v": _w((lambda *s: torch.randn(*s, dtype=torch.bfloat16) * 0.2)(B, S, D)),
            "shift_k": _w((lambda *s: torch.randn(*s, dtype=torch.bfloat16) * 0.2)(D, ks) * 0.5),
            "ssm_k": _w((lambda *s: torch.randn(*s, dtype=torch.bfloat16) * 0.2)(D, S) * (1.0 / S ** 0.5)),
            "ssm_D": _w((lambda *s: torch.randn(*s, dtype=torch.bfloat16) * 0.2)(D)),
        }
    _A_in = _A_setup()

    def _B_setup():
        B, S, D, F = 1, 2048, 512, 1792
        return {
            "x": _w((lambda *s: torch.randn(*s, dtype=torch.bfloat16) * 0.05)(B, S, D)),
            "w_gate": _w((lambda *s: torch.randn(*s, dtype=torch.bfloat16) * 0.1)(D, F)),
            "w_up": _w((lambda *s: torch.randn(*s, dtype=torch.bfloat16) * 0.1)(D, F)),
            "w_down": _w((lambda *s: torch.randn(*s, dtype=torch.bfloat16) * 0.1)(F, D)),
        }
    _B_in = _B_setup()

    return {
        "A_q": _A_in["q"],
        "A_k": _A_in["k"],
        "A_v": _A_in["v"],
        "A_shift_k": _A_in["shift_k"],
        "A_ssm_k": _A_in["ssm_k"],
        "A_ssm_D": _A_in["ssm_D"],
        "B_x": _B_in["x"],
        "B_w_gate": _B_in["w_gate"],
        "B_w_up": _B_in["w_up"],
        "B_w_down": _B_in["w_down"],
    }

def reference(A_q, A_k, A_v, A_shift_k, A_ssm_k, A_ssm_D, B_x, B_w_gate, B_w_up, B_w_down):
    def _A_ref(q, k, v, shift_k, ssm_k, ssm_D):
        B, S, D = q.shape
        ks = shift_k.shape[-1]
        k_pad = _pad(k, ((0, 0), (ks - 1, 0), (0, 0)))
        k_shift = torch.zeros_like(k)
        for t in range(ks):
            k_shift = k_shift + k_pad[:, t:t + S, :] * shift_k[:, ks - 1 - t][None, None, :]
        kv = k_shift * v
        L = 2 * S
        kv_pad = _pad(kv, ((0, 0), (0, S), (0, 0)))
        kf_pad = _pad(ssm_k, ((0, 0), (0, S)))
        kv_f = (lambda x, axes=(-2,-1): torch.fft.rfft2(x.float(), dim=axes))(kv_pad[:, None, :, :], axes=(1, 2))
        kf_f = (lambda x, axes=(-2,-1): torch.fft.rfft2(x.float(), dim=axes))(kf_pad[:, None, :], axes=(1, 2))
        kf_f = (lambda x, *d: x.permute(*d))(kf_f, 1, 2, 0)
        y_f = kv_f * kf_f[None, :, :, :]
        y = (lambda x, s, axes=(-2,-1): torch.fft.irfft2(x, s=s, dim=axes).to(torch.bfloat16))(y_f, (1, L), axes=(1, 2))[:, 0, :S, :]
        y = y + kv * ssm_D[None, None, :]
        return q * y

    def _B_ref(x, w_gate, w_up, w_down):
        return (_gelu(x @ w_gate) * (x @ w_up)) @ w_down

    x = A_q
    xn = _layernorm(x, axis=-1)
    s = _A_ref(xn, A_k, A_v, A_shift_k, A_ssm_k, A_ssm_D)
    g = _silu(_B_ref(xn, B_w_gate, B_w_up, B_w_down))
    return x + s * g
```

```python
NAME = "recurrent_scan__ssm_conv_h3__geglu_ffn__prompt"

HEADER_COMMENT = """; Kernarg layout for this problem (104 bytes, ptrs only, base s[0:1]):
"""

class Asm:
    def __init__(self):
        self.lines = []
        self.kernels = []
        self.launches = []
        self._lbl = 0
    def __call__(self, s):
        for l in s.strip("\n").split("\n"):
            self.lines.append("    " + l.strip() if not l.strip().endswith(":") else l.strip())
    def label(self, base="L"):
        self._lbl += 1
        return f"{base}_{self._lbl}"
    def begin_kernel(self, name):
        self.lines.append(f".globl {name}")
        self.lines.append(".p2align 8")
        self.lines.append(f".type {name},@function")
        self.lines.append(f"{name}:")
    def end_kernel(self, name, vgpr, sgpr=102, accum=None):
        if accum is None:
            accum = min(256, (vgpr + 3) // 4 * 4)
        self.kernels.append((name, vgpr, sgpr, accum))
    def launch(self, name, grid, block, lds):
        self.launches.append((name, grid, block, lds))
    def text(self):
        out = [HEADER_COMMENT.rstrip("\n")]
        for name, g, b, lds in self.launches:
            out.append(f"; @launch kernel={name} grid=({g},1,1) block=({b},1,1) lds={lds}")
        out.append('.amdgcn_target "amdgcn-amd-amdhsa--gfx950"')
        out.append(".text")
        out += self.lines
        out.append('.section .rodata,"a"')
        for name, vgpr, sgpr, accum in self.kernels:
            out.append(".p2align 6")
            out.append(f".amdhsa_kernel {name}")
            out.append(f"  .amdhsa_next_free_vgpr {vgpr}")
            out.append(f"  .amdhsa_next_free_sgpr {sgpr}")
            out.append(f"  .amdhsa_accum_offset {accum}")
            out.append("  .amdhsa_group_segment_fixed_size 0")
            out.append("  .amdhsa_kernarg_size 104")
            out.append("  .amdhsa_user_sgpr_count 2")
            out.append("  .amdhsa_user_sgpr_kernarg_segment_ptr 1")
            out.append("  .amdhsa_system_sgpr_workgroup_id_x 1")
            out.append(".end_amdhsa_kernel")
        return "\n".join(out) + "\n"
```

```python
import re
from asmlib import HEADER_COMMENT, NAME

class I:
    __slots__ = ("text", "vm", "lg", "wvm", "wlg")
    def __init__(self, text=None, vm=None, lg=None, wvm=None, wlg=None):
        self.text, self.vm, self.lg, self.wvm, self.wlg = text, vm, lg, wvm, wlg

def vr(a, n=1):
    return f"v{a}" if n == 1 else f"v[{a}:{a+n-1}]"
def sr(a, n=1):
    return f"s{a}" if n == 1 else f"s[{a}:{a+n-1}]"

_REG = re.compile(r"^(v|s)(\d+)$|^(v|s)\[(\d+):(\d+)\]$")
def regs(op):
    op = op.strip().lstrip("-").strip("|")
    if op in ("vcc",): return {("s", 106), ("s", 107)}
    if op == "vcc_lo": return {("s", 106)}
    if op == "vcc_hi": return {("s", 107)}
    if op == "m0": return {("s", 124)}
    if op == "exec": return {("s", 126), ("s", 127)}
    m = _REG.match(op)
    if not m: return set()
    if m.group(1): return {(m.group(1), int(m.group(2)))}
    return {(m.group(3), i) for i in range(int(m.group(4)), int(m.group(5)) + 1)}

TRANS = ("v_exp_f32", "v_log_f32", "v_rcp_f32", "v_rsq_f32", "v_sqrt_f32", "v_sin_f32", "v_cos_f32")

class Dec:
    def __init__(self, line):
        t = line.split(";")[0].strip()
        self.t = t
        parts = t.split(None, 1)
        self.mn = mn = parts[0]
        rest = parts[1] if len(parts) > 1 else ""
        toks = [x.strip() for x in rest.split(",")]
        last = toks[-1].split() if toks and toks[-1] else []
        self.mods = last[1:]
        if last: toks[-1] = last[0]
        self.ops = ops = toks
        R = lambda i: regs(ops[i]) if i < len(ops) else set()
        U = lambda a, b=None: set().union(*[regs(o) for o in ops[a:b]]) if ops[a:b] else set()
        self.cls = "other"; self.dst = set(); self.src = set(); self.ws = 1
        self.a = self.b = self.c = set(); self.passes = 0; self.wide = set(); self.dma = False
        if mn == "s_nop":
            self.cls = "nop"; self.ws = int(ops[0]) + 1
        elif mn.startswith("v_mfma"):
            self.cls = "mfma"; self.dst = R(0); self.a, self.b, self.c = R(1), R(2), R(3)
            self.src = self.a | self.b | self.c
            self.passes = 8 if "32x32x16" in mn else 4
        elif mn.startswith("v_"):
            self.cls = "valu"
            if mn.startswith("v_permlane"):
                self.dst = R(0) | R(1); self.src = R(0) | R(1)
            elif mn.startswith(("v_add_co", "v_sub_co", "v_addc_co", "v_subb_co")):
                self.dst = R(0) | R(1); self.src = U(2)
            else:
                self.dst = R(0); self.src = U(1)
                if mn.startswith(("v_fmac", "v_mac", "v_dot2c", "v_pk_fmac")): self.src |= R(0)
                if mn.startswith("v_cndmask") and len(ops) == 3: self.src |= regs("vcc")
            self.dpp = any(m.startswith(("quad_perm", "row_", "wave_")) for m in self.mods)
        elif mn.startswith("ds_"):
            self.cls = "ds"
            if mn.startswith("ds_read") or "rtn" in mn or "permute" in mn or "swizzle" in mn:
                self.dst = R(0); self.src = U(1)
            else:
                self.src = U(0)
        elif mn.startswith(("buffer_", "global_")):
            self.cls = "vmem"
            if "lds" in self.mods:
                self.src = U(0); self.dma = True
            elif "load" in mn:
                self.dst = R(0); self.src = U(1)
            else:
                self.src = U(0)
                if "x4" in mn or "x3" in mn:
                    self.wide = R(0) if mn.startswith("buffer_") else R(1)
                if "atomic" in mn and "sc0" in self.mods: self.dst = R(0)
        elif mn.startswith("s_"):
            self.cls = "salu"
            if mn.startswith(("s_cmp", "s_waitcnt", "s_barrier", "s_branch", "s_cbranch", "s_sleep", "s_endpgm", "s_setprio", "s_bitcmp")):
                self.src = U(0)
            else:
                self.dst = R(0); self.src = U(1)

def need(p, c):
    n = 0
    vd = {r for r in p.dst if r[0] == "v"}
    sd = {r for r in p.dst if r[0] == "s"}
    if p.cls == "valu":
        if c.cls == "mfma" and vd & c.src: n = max(n, 2)
        if c.cls == "valu":
            if c.mn.startswith(("v_readfirstlane", "v_readlane")) and vd & c.src: n = max(n, 1)
            if (c.mn.startswith("v_permlane") or c.dpp) and vd & c.src: n = max(n, 2)
            if sd & c.src: n = max(n, 4 if c.mn.startswith(("v_readlane", "v_writelane")) else 2)
            if p.mn.startswith(TRANS) and vd & c.src: n = max(n, 1)
        if c.cls == "vmem" and sd & c.src: n = max(n, 5)
        if c.cls in ("vmem", "ds") and p.mn.startswith(TRANS) and vd & c.src: n = max(n, 1)
    if p.cls == "mfma":
        big = 12 if p.passes == 8 else 8
        if c.cls == "mfma":
            if p.dst & (c.a | c.b): n = max(n, big)
            if p.dst & c.c and not (p.dst == c.c and p.passes == c.passes): n = max(n, big - 2)
            if p.dst & c.dst and not (p.dst == c.c and p.passes == c.passes): n = max(n, big - 2)
        elif c.cls in ("valu", "vmem", "ds"):
            if p.dst & (c.src | c.dst): n = max(n, big)
            if c.cls == "valu" and p.c & c.dst: n = max(n, 7 if p.passes == 8 else 3)
    if p.cls == "salu" and ("s", 124) in p.dst and c.cls == "vmem" and c.dma: n = max(n, 1)
    if p.cls == "vmem" and p.wide and p.wide & c.dst: n = max(n, 2 if c.cls in ("valu", "mfma") else 1)
    return n

def pad(lines):
    out = []; hist = []
    added = 0
    for ln in lines:
        s = ln.strip()
        if not s or s.startswith((";", ".")) or s.endswith(":"):
            out.append(ln); continue
        d = Dec(s)
        dist = 0; req = 0
        for p in reversed(hist):
            r = need(p, d) - dist
            req = max(req, r)
            dist += p.ws
            if dist >= 12: break
        if req > 0:
            nop = f"    s_nop {req-1}"
            out.append(nop); hist.append(Dec(nop)); added += req
        out.append(ln); hist.append(d)
        hist = hist[-16:]
    return out, added

class Em:
    def __init__(self):
        self.lines = []; self.vq = []; self.lq = []; self._l = 0
    def label(self, b="L"):
        self._l += 1; return f"{b}_{self._l}"
    def raw(self, s):
        for l in s.strip("\n").split("\n"):
            l = l.strip()
            if l: self.lines.append(l if l.endswith(":") else "    " + l)
    def _n(self, q, tag):
        tags = tag if isinstance(tag, (list, tuple, set)) else [tag]
        idx = max([i for i, t in enumerate(q) if t in tags], default=-1)
        return idx
    def __call__(self, x, **kw):
        if isinstance(x, (list, tuple)):
            for y in x: self(y)
            return
        if isinstance(x, str):
            if kw: x = I(x, **kw)
            else:
                self.raw(x); return
        w = []
        if x.wvm is not None:
            i = len(self.vq) - 1 if x.wvm == "*" else self._n(self.vq, x.wvm)
            if i >= 0 or x.wvm == "*":
                n = len(self.vq) - 1 - i; assert n <= 63, n
                w.append(f"vmcnt({n})"); self.vq = self.vq[i + 1:]
        if x.wlg is not None:
            i = len(self.lq) - 1 if x.wlg == "*" else self._n(self.lq, x.wlg)
            if i >= 0 or x.wlg == "*":
                n = min(15, len(self.lq) - 1 - i)
                w.append(f"lgkmcnt({n})"); self.lq = self.lq[len(self.lq) - n:] if n else []
        if w: self.raw("s_waitcnt " + " ".join(w))
        if x.text: self.raw(x.text)
        if x.vm is not None: self.vq.append(x.vm)
        if x.lg is not None: self.lq.append(x.lg)
    def wvm(self, tag): self(I(wvm=tag))
    def wlg(self, tag): self(I(wlg=tag))
    def text(self, grid, block, lds, vgpr=256, sgpr=102):
        body, added = pad(self.lines)
        self.nops = added
        k = NAME + "_kernel"
        out = [HEADER_COMMENT.rstrip("\n"),
               f"; @launch grid=({grid},1,1) block=({block},1,1) lds={lds}",
               '.amdgcn_target "amdgcn-amd-amdhsa--gfx950"', ".text", f".globl {k}", ".p2align 8",
               f".type {k},@function", f"{k}:"] + body + [
               '.section .rodata,"a"', ".p2align 6", f".amdhsa_kernel {k}",
               f"  .amdhsa_next_free_vgpr {vgpr}", f"  .amdhsa_next_free_sgpr {sgpr}",
               f"  .amdhsa_accum_offset {min(256, (vgpr + 3) // 4 * 4)}",
               "  .amdhsa_group_segment_fixed_size 0", "  .amdhsa_kernarg_size 104",
               "  .amdhsa_user_sgpr_count 2", "  .amdhsa_user_sgpr_kernarg_segment_ptr 1",
               "  .amdhsa_system_sgpr_workgroup_id_x 1", ".end_amdhsa_kernel"]
        return "\n".join(out) + "\n"

def mix(main, fill, lead=0):
    out = list(fill[:lead]); fill = list(fill[lead:])
    n = len(main); k = 0
    for i, m in enumerate(main):
        out.append(m)
        e = (len(fill) * (i + 1) + n - 1) // n
        out += fill[k:e]; k = e
    return out
```

```python
import sys
from em import *

WS_EPOCH, WS_FKV, WS_FY, WS_FH = 0, 256, 4096, 16384
WS_KV, WS_YT, WS_H, WS_PROF = 1 << 20, 5 << 20, 8 << 20, 16 << 20
SX, SWG, SWU, SWD, SWS, SOUT, SH, SK, SV, SDBG, SSH, SD = 8, 12, 16, 20, 24, 28, 32, 36, 40, 44, 48, 52
sW, sRB, sCB, sRT2, sCT2, sROT, sWR, sWC, sEP = 3, 56, 57, 58, 59, 60, 61, 62, 63
sXB, sWB, sT0, sT1 = 4, 5, 6, 7
sWDB, sS0, sOK, sISG, sCNT, sT2, sT3, sM0X, sE = 64, 65, 66, 67, 68, 69, 70, 71, 72
sPROF = 76
STAGE = 49152
L_RS, L_CS, L_STAT = 33280, 37376, 38400
L_R = (39424, 49152)
L_S2, L_S0, L_S1 = 65536, 98304, 131072
ACC, FR = 32, 96
def WDF(ks): return 240 - 16 * ks
vX0, vX1, vW0, vW1, vWD = 1, 2, 3, 4, 5
vXB, vWP, vWQ = 6, 10, 14
vS1, vS2, vCS, vT = (18, 20), (19, 21), 22, 23
vTB, vL16 = 27, 31
vHEAD, vD, vFL, vEP = 1, 2, 3, 4
vR, vXT = 6, 14
SPIN = 0x4000
KC = 2 * 0.7978845608028654 * 1.4426950408889634
import struct
def fx(f): return "0x%08x" % struct.unpack("<I", struct.pack("<f", f))[0]

def gen(stop=None, prof=False):
    a = Em()
    stamps = []
    def stamp(name):
        if prof:
            i = len(stamps); assert i < 13
            a(f"s_memrealtime {sr(sPROF + 2 * i, 2)}"); stamps.append(name)
    END = "L_end"
    a(f"""
    s_cmp_ge_u32 s2, 256
    s_cbranch_scc1 {END}
    """)
    a(f"""
    s_load_dwordx16 s[64:79], s[0:1], 0
    s_load_dwordx8 s[80:87], s[0:1], 64
    s_load_dwordx2 s[88:89], s[0:1], 96
    v_lshrrev_b32 v1, 6, v0
    v_and_b32 v0, 63, v0
    v_readfirstlane_b32 s{sW}, v1
    s_and_b32 s90, s2, 7
    s_lshr_b32 s91, s2, 3
    s_and_b32 s92, s90, 1
    s_lshr_b32 s93, s90, 1
    s_and_b32 s94, s91, 3
    s_lshr_b32 s95, s91, 2
    s_lshl_b32 s{sRB}, s93, 2
    s_add_u32 s{sRB}, s{sRB}, s94
    s_lshl_b32 s{sRT2}, s{sRB}, 1
    s_add_u32 s{sRT2}, s{sRT2}, s92
    s_add_u32 s{sCT2}, s95, 7
    s_and_b32 s{sCT2}, s{sCT2}, 7
    s_mul_i32 s{sCB}, s92, 7
    s_add_u32 s{sCB}, s{sCB}, s{sCT2}
    s_lshl_b32 s{sROT}, s94, 1
    s_add_u32 s{sROT}, s{sROT}, s95
    s_and_b32 s96, s93, 1
    s_add_u32 s{sROT}, s{sROT}, s96
    s_and_b32 s{sWR}, s{sW}, 1
    s_lshr_b32 s{sWC}, s{sW}, 1
    s_lshl_b32 s{sXB}, s{sRB}, 17
    s_lshl_b32 s96, s{sW}, 14
    s_add_u32 s{sXB}, s{sXB}, s96
    s_mul_i32 s{sWB}, s{sW}, 28672
    s_lshl_b32 s96, s{sCB}, 8
    s_add_u32 s{sWB}, s{sWB}, s96
    """)
    for s, n in ((SX, 1 << 21), (SWG, 1835008), (SWU, 1835008), (SWD, 1835008), (SWS, 1 << 25), (SOUT, 1 << 21),
                 (SH, 4096), (SK, 1 << 21), (SV, 1 << 21), (SDBG, 256), (SSH, 4096), (SD, 1024)):
        a(f"s_mov_b32 s{s+2}, {n}")
        a(f"s_mov_b32 s{s+3}, 0x20000")
    a(f"""
    v_lshrrev_b32 v20, 3, v0
    v_lshrrev_b32 v21, 4, v0
    v_and_b32 v22, 7, v0
    v_xor_b32 v23, v22, v21
    v_lshlrev_b32 v23, 4, v23
    v_lshl_add_u32 v{vX0}, v20, 10, v23
    v_xor_b32 v{vX1}, 64, v{vX0}
    v_add_u32 v{vX1}, 7168, v{vX1}
    v_bfe_u32 v24, v0, 2, 2
    v_and_b32 v25, 3, v0
    v_xor_b32 v23, v24, v21
    v_lshlrev_b32 v23, 6, v23
    v_lshl_add_u32 v23, v25, 4, v23
    v_mul_u32_u24 v{vW0}, 3584, v21
    v_add_u32 v{vW0}, v{vW0}, v23
    v_add_u32 v{vW1}, 13312, v{vW0}
    v_lshlrev_b32 v23, 1, v21
    v_xor_b32 v23, v22, v23
    v_lshlrev_b32 v23, 4, v23
    v_lshl_add_u32 v{vWD}, v20, 10, v23
    v_lshlrev_b32 v{vL16}, 4, v0
    s_waitcnt lgkmcnt(0)
    s_mov_b64 {sr(SX,2)}, s[64:65]
    s_mov_b64 {sr(SWG,2)}, s[78:79]
    s_mov_b64 {sr(SWU,2)}, s[80:81]
    s_mov_b64 {sr(SK,2)}, s[66:67]
    s_mov_b64 {sr(SV,2)}, s[68:69]
    s_mov_b64 {sr(SSH,2)}, s[70:71]
    s_mov_b64 {sr(SD,2)}, s[74:75]
    s_mov_b64 {sr(SWD,2)}, s[82:83]
    s_mov_b64 {sr(SOUT,2)}, s[84:85]
    s_mov_b64 {sr(SDBG,2)}, s[86:87]
    s_mov_b64 {sr(SWS,2)}, s[88:89]
    s_lshl_b32 s96, s2, 1
    s_lshr_b32 s97, s{sW}, 2
    s_add_u32 s96, s96, s97
    s_lshl_b32 s96, s96, 12
    s_add_u32 s{SH}, s72, s96
    s_addc_u32 s{SH+1}, s73, 0
    s_mov_b32 s{sE}, s92
    s_lshl_b32 s{sM0X}, s{sW}, 11
    s_mul_i32 s{sWDB}, s{sW}, 229376
    s_lshl_b32 s96, s{sCT2}, 7
    s_add_u32 s{sWDB}, s{sWDB}, s96
    s_lshl_b32 s{sS0}, s{sW}, 12
    s_mov_b32 s{sOK}, 0
    s_mov_b32 s{sISG}, s95
    s_lshl_b32 s{sT2}, s90, 2
    s_add_u32 s{sT2}, s{sT2}, s94
    """)
    stamp("start")

    def chunk_dma(c):
        st = (c % 3) * STAGE
        return [
            [f"s_add_u32 s{sT0}, s{sROT}, {c}", f"s_and_b32 s{sT0}, s{sT0}, 7",
             f"s_mul_i32 s{sT1}, s{sT0}, 229376", f"s_add_u32 s{sT1}, s{sT1}, s{sWB}",
             f"s_lshl_b32 s{sT0}, s{sT0}, 7", f"s_add_u32 m0, s{sM0X}, {st}", f"s_add_u32 s{sT0}, s{sT0}, s{sXB}",
             I(f"buffer_load_dwordx4 v{vX0}, {sr(SX,4)}, s{sT0} offen lds", vm=f"c{c}")],
            I(f"buffer_load_dwordx4 v{vX1}, {sr(SX,4)}, s{sT0} offen offset:1024 lds", vm=f"c{c}"),
            [f"s_add_u32 m0, s{sM0X}, {st + 16384}",
             I(f"buffer_load_dwordx4 v{vW0}, {sr(SWG,4)}, s{sT1} offen lds", vm=f"c{c}")],
            I(f"buffer_load_dwordx4 v{vW1}, {sr(SWG,4)}, s{sT1} offen offset:1024 lds", vm=f"c{c}"),
            [f"s_add_u32 m0, s{sM0X}, {st + 32768}",
             I(f"buffer_load_dwordx4 v{vW0}, {sr(SWU,4)}, s{sT1} offen lds", vm=f"c{c}")],
            I(f"buffer_load_dwordx4 v{vW1}, {sr(SWU,4)}, s{sT1} offen offset:1024 lds", vm=f"c{c}"),
        ]
    def wd_dma(ks, slot):
        out = []
        for i in range(4):
            g = [f"s_add_u32 m0, s{sS0}, {slot}"] if i == 0 else []
            g.append(f"s_add_u32 s{sT3}, s{sWDB}, {ks * 32768 + i * 7168}")
            off = f" offset:{1024 * i}" if i else ""
            g.append(I(f"buffer_load_dwordx4 v{vWD}, {sr(SWD,4)}, s{sT3} offen{off} lds", vm=f"wd{ks}"))
            out.append(g)
        return out
    def wd_read(ks, imm):
        return [I(f"ds_read_b64_tr_b16 {vr(WDF(ks) + 4 * mt + 2 * h, 2)}, v{vTB + mt} offset:{imm + 1024 * h}", lg=f"wr{ks}")
                for mt in range(4) for h in range(2)]
    def tb_setup(t0):
        out = f"""
        v_lshrrev_b32 v{t0}, 5, v0
        v_bfe_u32 v{t0+1}, v0, 4, 1
        v_bfe_u32 v{t0+2}, v0, 2, 2
        v_lshlrev_b32 v{t0}, 4, v{t0}
        v_lshl_add_u32 v{t0}, v{t0+1}, 2, v{t0}
        v_add_u32 v{t0}, v{t0}, v{t0+2}
        v_lshlrev_b32 v{t0}, 7, v{t0}
        v_lshrrev_b32 v{t0+2}, 1, v{t0+2}
        v_lshl_add_u32 v{t0+1}, v{t0+1}, 1, v{t0+2}
        v_lshl_add_u32 v{t0}, v{t0+1}, 5, v{t0}
        v_and_b32 v{t0+2}, 3, v0
        v_lshl_add_u32 v{t0}, v{t0+2}, 3, v{t0}
        s_add_u32 s{sT0}, s{sS0}, {L_S0}
        v_add_u32 v{vTB}, s{sT0}, v{t0}
        v_xor_b32 v{vTB+1}, 32, v{vTB}
        v_xor_b32 v{vTB+2}, 64, v{vTB}
        v_xor_b32 v{vTB+3}, 96, v{vTB}
        """
        return out
    def c_dma(tmp):
        return [
            [f"s_and_b32 s{sT0}, s{sW}, 3", f"s_mul_i32 s{sT1}, s{sW}, 4160", f"s_lshl_b32 s{sT0}, s{sT0}, 2",
             f"s_add_u32 m0, s{sT1}, 64", f"s_add_u32 s{sT1}, s{sT0}, 4",
             I(f"buffer_load_dwordx4 v{vL16}, {sr(SH,4)}, s{sT1} offen lds", vm="cc")],
            I(f"buffer_load_dwordx4 v{vL16}, {sr(SH,4)}, s{sT1} offen offset:1024 lds", vm="cc"),
            I(f"buffer_load_dwordx4 v{vL16}, {sr(SH,4)}, s{sT1} offen offset:2048 lds", vm="cc"),
            I(f"buffer_load_dwordx4 v{vL16}, {sr(SH,4)}, s{sT1} offen offset:3072 lds", vm="cc"),
            [f"s_sub_u32 s{sT0}, s{sT0}, 60", f"v_and_b32 v{tmp}, 15, v0", f"v_lshl_add_u32 v{tmp}, v{tmp}, 2, s{sT0}",
             I(f"buffer_load_dword v{vHEAD}, v{tmp}, {sr(SH,4)}, 0 offen", vm="cc")],
            [f"s_lshl_b32 s{sT0}, s2, 2",
             I(f"buffer_load_dword v{vD}, off, {sr(SD,4)}, s{sT0}", vm="cc")],
        ]
    def kvflag_load(tmp, tag):
        return [f"s_lshr_b32 s{sT0}, s2, 5", f"s_lshl_b32 s{sT0}, s{sT0}, 7", f"v_and_b32 v{tmp}, 31, v0",
                f"v_lshlrev_b32 v{tmp}, 2, v{tmp}",
                I(f"buffer_load_dword v{vFL}, v{tmp}, {sr(SWS,4)}, s{sT0} offen offset:{WS_FKV} sc1", vm=tag),
                I(f"buffer_load_dword v{vEP}, off, {sr(SDBG,4)}, 0 sc1", vm=tag)]
    def kvflag_check():
        return f"""
        v_cmp_ne_u32 vcc, v{vFL}, v{vEP}
        v_cmp_eq_u32 s[{sT0}:{sT1}], 0, v{vEP}
        v_readfirstlane_b32 s{sEP}, v{vEP}
        s_or_b64 vcc, vcc, s[{sT0}:{sT1}]
        """
    def r_load(tag):
        return [f"s_lshl_b32 s{sT0}, s2, 14", f"s_add_u32 s{sT0}, s{sT0}, s{sM0X}", f"s_add_u32 s{sT0}, s{sT0}, {WS_KV}",
                I(f"buffer_load_dwordx4 {vr(vR,4)}, v{vL16}, {sr(SWS,4)}, s{sT0} offen sc1", vm=tag),
                I(f"buffer_load_dwordx4 {vr(vR+4,4)}, v{vL16}, {sr(SWS,4)}, s{sT0} offen offset:1024 sc1", vm=tag)]
    def out_off(v, t):
        return f"""
        s_lshl_b32 s{sT0}, s{sRT2}, 16
        s_lshl_b32 s{sT1}, s{sWC}, 14
        s_add_u32 s{sT0}, s{sT0}, s{sT1}
        s_lshl_b32 s{sT1}, s{sCT2}, 7
        s_add_u32 s{sT0}, s{sT0}, s{sT1}
        s_lshl_b32 s{sT1}, s{sWR}, 6
        s_add_u32 s{sT0}, s{sT0}, s{sT1}
        v_and_b32 v{v}, 15, v0
        v_and_b32 v{t}, 48, v0
        v_lshl_add_u32 v{v}, v{v}, 10, v{t}
        v_add_u32 v{v}, s{sT0}, v{v}
        """
    def stats_math(s1, s2, m, s, t):
        return f"""
        v_mul_f32 v{m}, {fx(1/512)}, v{s1}
        v_mul_f32 v{t}, v{m}, v{m}
        v_fma_f32 v{t}, v{s2}, {fx(1/512)}, -v{t}
        v_max_f32 v{t}, 0, v{t}
        v_cvt_pk_bf16_f32 v{t}, v{t}, v{m}
        v_and_b32 v{m}, 0xffff0000, v{t}
        v_lshlrev_b32 v{t}, 16, v{t}
        v_add_f32 v{t}, {fx(1e-5)}, v{t}
        v_cvt_pk_bf16_f32 v{t}, v{t}, v{t}
        v_lshlrev_b32 v{t}, 16, v{t}
        v_sqrt_f32 v{t}, v{t}
        v_cvt_pk_bf16_f32 v{t}, v{t}, v{t}
        v_lshlrev_b32 v{s}, 16, v{t}
        """.replace(f"v_fma_f32 v{t}, v{s2}, {fx(1/512)}, -v{t}",
                    f"v_mul_f32 v{s}, {fx(1/512)}, v{s2}\nv_sub_f32 v{t}, v{s}, v{t}")

    AUX = "L_aux"; JOIN = "L_join"
    a(f"s_cmp_eq_u32 s{sISG}, 0\ns_cbranch_scc1 {AUX}")
    for c in range(3): a(chunk_dma(c))
    a(f"""
    v_and_b32 v20, 31, v0
    v_lshrrev_b32 v21, 5, v0
    v_bfe_u32 v22, v0, 1, 3
    v_xor_b32 v22, v22, v21
    v_lshlrev_b32 v22, 4, v22
    v_lshl_add_u32 v22, v20, 7, v22
    s_lshl_b32 s{sT0}, s{sWR}, 13
    v_add_u32 v22, s{sT0}, v22
    v_bfe_u32 v23, v0, 2, 2
    v_lshl_add_u32 v24, v21, 3, v23
    v_lshlrev_b32 v24, 8, v24
    v_xor_b32 v23, s{sWC}, v23
    v_lshl_add_u32 v24, v23, 6, v24
    v_bfe_u32 v23, v0, 4, 1
    v_lshl_add_u32 v24, v23, 5, v24
    v_and_b32 v23, 3, v0
    v_lshl_add_u32 v24, v23, 3, v24
    """)
    for j in range(4):
        a(f"""
        s_add_u32 s{sT0}, s{sWC}, {j}
        s_and_b32 s{sT0}, s{sT0}, 3
        s_lshl_b32 s{sT1}, s{sT0}, 5
        v_xor_b32 v{vXB+j}, s{sT1}, v22
        s_lshl_b32 s{sT0}, s{sT0}, 12
        s_lshl_b32 s{sT1}, s{sWR}, 14
        s_add_u32 s{sT3}, s{sT0}, s{sT1}
        s_add_u32 s{sT3}, s{sT3}, 16384
        v_add_u32 v{vWP+j}, s{sT3}, v24
        s_sub_u32 s{sT3}, s{sT0}, s{sT1}
        s_add_u32 s{sT3}, s{sT3}, 32768
        v_add_u32 v{vWQ+j}, s{sT3}, v24
        """)
    a(tb_setup(20))
    for r in (18, 19, 20, 21, 22): a(f"v_mov_b32 v{r}, 0")

    def F(j): return FR + 16 * j
    def reads(s):
        c, j = divmod(s, 4)
        im = STAGE if c % 3 == 1 else 0
        f = F(j); t = f"r{s}"
        return [I(f"ds_read_b64_tr_b16 {vr(f,2)}, v{vWP+j} offset:{im}", lg=t),
                I(f"ds_read_b64_tr_b16 {vr(f+2,2)}, v{vWP+j} offset:{im+1024}", lg=t),
                I(f"ds_read_b128 {vr(f+8,4)}, v{vXB+j} offset:{im}", lg=t),
                I(f"ds_read_b64_tr_b16 {vr(f+4,2)}, v{vWQ+j} offset:{im}", lg=t),
                I(f"ds_read_b64_tr_b16 {vr(f+6,2)}, v{vWQ+j} offset:{im+1024}", lg=t),
                I(f"ds_read_b128 {vr(f+12,4)}, v{vXB+j} offset:{im+4096}", lg=t)]
    def mfmas(s):
        f = F(s % 4); out = []
        for nt in range(2):
            for m in range(2):
                d = ACC + 32 * m + 16 * nt
                c = "0" if s == 0 else vr(d, 16)
                out.append(f"v_mfma_f32_32x32x16_bf16 {vr(d,16)}, {vr(f+4*m,4)}, {vr(f+8+4*nt,4)}, {c}")
        return out
    def colsum(s):
        f = F(s % 4); out = []
        for d in range(4):
            out += [f"v_lshlrev_b32 v{vT}, 16, v{f+d}", f"v_and_b32 v{vT+1}, 0xffff0000, v{f+d}",
                    f"v_add_f32 v{vCS}, v{vCS}, v{vT}", f"v_add_f32 v{vCS}, v{vCS}, v{vT+1}"]
        return out
    def rowstat():
        out = []
        for d in range(8):
            nt = d // 4; x = FR + 8 + d
            out += [f"v_lshlrev_b32 v{vT+2}, 16, v{x}", f"v_and_b32 v{vT+3}, 0xffff0000, v{x}",
                    f"v_add_f32 v{vS1[nt]}, v{vS1[nt]}, v{vT+2}", f"v_fmac_f32 v{vS2[nt]}, v{vT+2}, v{vT+2}",
                    f"v_add_f32 v{vS1[nt]}, v{vS1[nt]}, v{vT+3}", f"v_fmac_f32 v{vS2[nt]}, v{vT+3}, v{vT+3}"]
        return out
    RS = rowstat()
    for s in range(33):
        c, j = divmod(s, 4)
        fill = []
        if j == 0 and s < 32:
            a(I(wvm=f"c{c}", wlg="*" if s else None))
            a("s_barrier")
            if c in (1, 4, 7): stamp(f"B{c}")
            if 1 <= c <= 5: fill += chunk_dma(c + 2)
            if c == 6: fill += wd_dma(0, L_S0) + wd_dma(1, L_S1)
            if c == 7: fill += [kvflag_load(vHEAD, "kf")] + c_dma(vD)
        if s < 32: a(reads(s))
        if s == 0: continue
        p = s - 1
        va = colsum(p)
        if p % 4 < 3: va = [x for pr in zip(va, RS[16 * (p % 4):16 * (p % 4) + 16]) for x in pr]
        if j == 3 and (c + 1) % 3 == 2: va += [f"v_add_u32 v{r}, {2*STAGE}, v{r}" for r in range(vXB, vXB + 12)]
        if j == 3 and c % 3 == 2: va += [f"v_subrev_u32 v{r}, {2*STAGE}, v{r}" for r in range(vXB, vXB + 12)]
        if s == 30:
            fill += [I(wvm="wd1")] + wd_read(0, 0) + wd_read(1, 32768)
        if s == 31:
            fill += [I(wlg="wr1")] + wd_dma(2, L_S0) + wd_dma(3, L_S1)
        if s == 32:
            va += f"""
            v_permlane32_swap_b32 v{vS1[0]}, v{vS1[1]}
            v_permlane32_swap_b32 v{vS2[0]}, v{vS2[1]}
            v_mov_b32 v{vT}, v{vCS}
            s_lshl_b32 s{sT0}, s{sWR}, 11
            s_lshl_b32 s{sT1}, s{sWC}, 3
            s_add_u32 s{sT0}, s{sT0}, s{sT1}
            v_add_f32 v{vS1[0]}, v{vS1[0]}, v{vS1[1]}
            v_add_f32 v{vS2[0]}, v{vS2[0]}, v{vS2[1]}
            v_permlane32_swap_b32 v{vT}, v{vCS}
            v_lshl_add_u32 v{vT+1}, v0, 5, s{sT0}
            s_lshl_b32 s{sT0}, s{sWR}, 9
            s_lshl_b32 s{sT1}, s{sWC}, 7
            s_add_u32 s{sT0}, s{sT0}, s{sT1}
            v_and_b32 v{vT+2}, 31, v0
            v_add_f32 v{vCS}, v{vCS}, v{vT}
            v_lshl_add_u32 v{vT+2}, v{vT+2}, 2, s{sT0}
            """.strip().split("\n")
            va += [I(f"ds_write_b64 v{vT+1}, {vr(vS1[0],2)} offset:{L_RS}", lg="st"),
                   I(f"ds_write_b32 v{vT+2}, v{vCS} offset:{L_CS}", lg="st")]
        a(I(wlg=f"r{p}"))
        merged = mix(va, fill) if fill else va
        a(mix(mfmas(p), merged))
    a(I(wlg="*"))
    a("s_barrier")
    stamp("B8")
    CSG, CSU, TM = FR, FR + 16, FR + 32
    a(f"""
    s_lshl_b32 s{sT0}, s{sWR}, 11
    v_lshl_add_u32 v{TM+8}, v0, 5, s{sT0}
    v_lshrrev_b32 v{TM+9}, 5, v0
    s_lshl_b32 s{sT0}, s{sWC}, 7
    v_lshl_add_u32 v{TM+9}, v{TM+9}, 4, s{sT0}
    """)
    a(I(f"ds_read_b128 {vr(TM,4)}, v{TM+8} offset:{L_RS}", lg="rs"))
    a(I(f"ds_read_b128 {vr(TM+4,4)}, v{TM+8} offset:{L_RS+16}", lg="rs"))
    for q in range(4):
        a(I(f"ds_read_b128 {vr(CSG+4*q,4)}, v{TM+9} offset:{L_CS+32*q}", lg="cs"))
        a(I(f"ds_read_b128 {vr(CSU+4*q,4)}, v{TM+9} offset:{L_CS+512+32*q}", lg="cs"))
    a(wd_dma(4, L_S2))
    a(I(wvm="kf"))
    a(kvflag_check())
    a(f"s_cselect_b32 s{sOK}, 0, 1")
    a(r_load("R"))
    a(out_off(TM + 10, TM + 11))
    a(I(f"buffer_load_dwordx4 {vr(vXT,4)}, v{TM+10}, {sr(SX,4)}, 0 offen", vm="R"))
    a(I(wlg="rs"))
    NM, AP, BP, SS, vHO = (18, 19), (20, 21), (22, 23), (24, 25), 26
    a(f"""
    v_add_f32 v{TM}, v{TM}, v{TM+2}
    v_add_f32 v{TM+1}, v{TM+1}, v{TM+3}
    v_add_f32 v{TM+4}, v{TM+4}, v{TM+6}
    v_add_f32 v{TM+5}, v{TM+5}, v{TM+7}
    v_add_f32 v{TM}, v{TM}, v{TM+4}
    v_add_f32 v{TM+1}, v{TM+1}, v{TM+5}
    """)
    a(stats_math(TM, TM + 1, TM + 2, TM + 3, TM + 4))
    a(f"""
    v_rcp_f32 v{TM+4}, v{TM+3}
    v_lshlrev_b32 v{TM+8}, 3, v0
    s_xor_b32 s{sT0}, s{sWR}, s{sE}
    s_or_b32 s{sT0}, s{sT0}, s{sWC}
    s_cbranch_scc1 L_nostat
    ds_write_b64 v{TM+8}, {vr(TM+2,2)} offset:{L_STAT}
    L_nostat:
    v_mul_f32 v{NM[0]}, -1.0, v{TM+2}
    v_mul_f32 v{SS[0]}, v{TM+3}, v{TM+3}
    v_mul_f32 v{AP[0]}, {fx(-KC)}, v{TM+4}
    v_mul_f32 v{TM+5}, v{TM+4}, v{TM+4}
    v_mul_f32 v{TM+5}, {fx(0.044715)}, v{TM+5}
    v_mul_f32 v{BP[0]}, v{AP[0]}, v{TM+5}
    v_mov_b32 v{NM[1]}, v{NM[0]}
    v_mov_b32 v{SS[1]}, v{SS[0]}
    v_mov_b32 v{AP[1]}, v{AP[0]}
    v_mov_b32 v{BP[1]}, v{BP[0]}
    v_bfe_u32 v{TM+8}, v0, 4, 1
    v_mul_u32_u24 v{TM+8}, 57344, v{TM+8}
    v_permlane32_swap_b32 v{NM[0]}, v{NM[1]}
    v_permlane32_swap_b32 v{SS[0]}, v{SS[1]}
    v_permlane32_swap_b32 v{AP[0]}, v{AP[1]}
    v_permlane32_swap_b32 v{BP[0]}, v{BP[1]}
    v_and_b32 v{TM+9}, 15, v0
    v_lshl_add_u32 v{TM+8}, v{TM+9}, 4, v{TM+8}
    v_lshrrev_b32 v{TM+9}, 5, v0
    v_lshl_add_u32 v{vHO}, v{TM+9}, 8, v{TM+8}
    s_lshl_b32 s{sT0}, s{sRB}, 1
    s_add_u32 s{sT0}, s{sT0}, s{sWR}
    s_lshl_b32 s{sT2}, s{sCB}, 2
    s_add_u32 s{sT2}, s{sT2}, s{sWC}
    s_mul_i32 s{sXB}, s{sT0}, {4*56*1024}
    s_lshl_b32 s{sT1}, s{sT2}, 10
    s_add_u32 s{sXB}, s{sXB}, s{sT1}
    s_add_u32 s{sXB}, s{sXB}, {WS_H}
    s_add_u32 s{sWB}, s{sXB}, {2*56*1024}
    s_lshl_b32 s{sT0}, s{sT0}, 8
    s_lshl_b32 s{sT2}, s{sT2}, 2
    s_add_u32 s{sT2}, s{sT2}, s{sT0}
    """)
    a(I(wlg="*"))
    def epi(G, U, nt, rr):
        o = []
        t = {r: TM + i for i, r in enumerate(rr)}
        o += [f"v_fmac_f32 v{G+r}, v{NM[nt]}, v{CSG+r}" for r in rr]
        o += [f"v_mul_f32 v{t[r]}, v{G+r}, v{G+r}" for r in rr]
        o += [f"v_fma_f32 v{t[r]}, v{t[r]}, v{BP[nt]}, v{AP[nt]}" for r in rr]
        o += [f"v_mul_f32 v{t[r]}, v{t[r]}, v{G+r}" for r in rr]
        o += [f"v_exp_f32 v{t[r]}, v{t[r]}" for r in rr]
        o += [f"v_fmac_f32 v{U+r}, v{NM[nt]}, v{CSU+r}" for r in rr]
        o += [f"v_fma_f32 v{t[r]}, v{t[r]}, v{SS[nt]}, v{SS[nt]}" for r in rr]
        o += [f"v_rcp_f32 v{t[r]}, v{t[r]}" for r in rr]
        o += [f"v_mul_f32 v{U+r}, v{U+r}, v{G+r}" for r in rr]
        o += [f"v_mul_f32 v{U+r}, v{U+r}, v{t[r]}" for r in rr]
        return o
    vq0, lq0 = list(a.vq), list(a.lq)
    a(f"s_cmp_eq_u32 s{sWR}, 1\ns_cbranch_scc1 L_epi1")
    for ver in range(2):
        a.vq, a.lq = list(vq0), list(lq0)
        if ver: a("L_epi1:")
        for nt in range(2):
            G = ACC + 32 * ver + 16 * nt; U = ACC + 32 * (1 - ver) + 16 * nt
            for h in range(2):
                seq = epi(G, U, nt, range(8 * h, 8 * h + 4)) + epi(G, U, nt, range(8 * h + 4, 8 * h + 8))
                pk = TM + 8 + 4 * h
                seq += [f"v_cvt_pk_bf16_f32 v{pk+i}, v{U+8*h+2*i}, v{U+8*h+2*i+1}" for i in range(4)]
                fill = []
                if nt == 0 and h == 1: fill = [I(wvm="wd3")] + wd_read(2, 0) + wd_read(3, 32768)
                if nt == 1 and h == 0: fill = [I(wlg="wr3")] + wd_dma(5, L_S0) + wd_dma(6, L_S1)
                a(mix(seq, fill))
                so = sXB if nt == 0 else sWB
                a(I(f"buffer_store_dwordx4 {vr(pk,4)}, v{vHO}, {sr(SWS,4)}, s{so} offen offset:{512*h} sc1", vm="hs"))
        a(f"s_branch {JOIN}")
    vq_join = list(a.vq)

    a(f"{AUX}:")
    a.vq, a.lq = [], []
    KR, VR_, SHR, XS = 32, 80, 116, 144
    U0 = 176
    a(f"""
    s_and_b32 s90, s{sT2}, 7
    s_lshr_b32 s91, s{sT2}, 3
    s_lshl_b32 s92, s91, 9
    s_lshl_b32 s93, s{sW}, 6
    s_add_u32 s92, s92, s93
    s_lshl_b32 s93, s92, 10
    s_lshl_b32 s94, s90, 7
    s_add_u32 s93, s93, s94
    s_sub_u32 s93, s93, 4096
    v_lshlrev_b32 v23, 4, v22
    v_lshl_add_u32 v6, v20, 13, v23
    v_add_u32 v6, s93, v6
    v_add_u32 v7, 4096, v6
    v_add_u32 v8, 8192, v6
    v_lshlrev_b32 v9, 6, v22
    s_lshl_b32 s94, s90, 9
    """)
    a(I(f"buffer_load_dword v10, off, {sr(SWS,4)}, 0 offset:{WS_EPOCH} sc1", vm="ep"))
    for i in range(4):
        a(I(f"buffer_load_dwordx4 {vr(SHR+4*i,4)}, v9, {sr(SSH,4)}, s94 offen offset:{16*i}", vm="kv"))
    for i in range(12):
        a(I(f"buffer_load_dwordx4 {vr(KR+4*i,4)}, v{6+i//4}, {sr(SK,4)}, 0 offen offset:{1024*(i%4)}", vm="kv"))
    for i in range(9):
        a(I(f"buffer_load_dwordx4 {vr(VR_+4*i,4)}, v{6+(i+3)//4}, {sr(SV,4)}, 0 offen offset:{1024*((i+3)%4)}", vm="kv"))
    a(I(wvm="ep"))
    a(f"""
    s_or_b32 s{sT0}, s2, s{sW}
    s_cbranch_scc1 L_noep
    v_add_u32 v10, 1, v10
    v_max_u32 v10, 1, v10
    buffer_store_dword v10, off, {sr(SDBG,4)}, 0 sc1
    buffer_store_dword v10, off, {sr(SWS,4)}, 0 offset:{WS_EPOCH} sc1
    L_noep:
    """)
    a(wd_dma(0, L_S0) + wd_dma(1, L_S1) + wd_dma(4, L_S2) + c_dma(vD))
    a(f"""
    s_lshl_b32 s{sT0}, s{sRT2}, 16
    s_lshl_b32 s{sT1}, s{sW}, 13
    s_add_u32 s{sT0}, s{sT0}, s{sT1}
    v_lshl_add_u32 v11, v20, 10, v23
    """)
    for i in range(8):
        a(I(f"buffer_load_dwordx4 {vr(XS+4*i,4)}, v11, {sr(SX,4)}, s{sT0} offen offset:{128*i}", vm="xs"))
    a(out_off(12, 13))
    a(I(f"buffer_load_dwordx4 {vr(vXT,4)}, v12, {sr(SX,4)}, 0 offen", vm="xs"))
    a(f"""
    v_lshlrev_b32 v12, 16, v22
    v_lshlrev_b32 v13, 4, v20
    v_sub_u32 v12, v12, v13
    v_add_u32 v12, 112, v12
    v_add_u32 v13, 4096, v12
    s_lshl_b32 s93, s90, 19
    s_lshl_b32 s94, s92, 1
    s_sub_u32 s93, s93, s94
    s_add_u32 s93, s93, {WS_KV + 3968}
    """)
    a(tb_setup(24))
    a(I(wvm="kv"))
    uk, uv, us, uu = U0, U0 + 12, U0 + 21, U0 + 25
    for ch in range(8):
        d, hi = divmod(ch, 2)
        un = (lambda dst, src: f"v_and_b32 v{dst}, 0xffff0000, v{src}") if hi else (lambda dst, src: f"v_lshlrev_b32 v{dst}, 16, v{src}")
        sh = SHR + 4 * d + 2 * hi
        a(f"v_lshlrev_b32 v{us}, 16, v{sh}\nv_and_b32 v{us+1}, 0xffff0000, v{sh}")
        a(f"v_lshlrev_b32 v{us+2}, 16, v{sh+1}\nv_and_b32 v{us+3}, 0xffff0000, v{sh+1}")
        for i in range(12): a(un(uk + i, KR + 4 * i + d))
        for i in range(9): a(un(uv + i, VR_ + 4 * i + d))
        for i in range(9): a(f"v_mul_f32 v{uu+i}, v{uk+i}, v{us+3}")
        for j in (2, 1, 0):
            for i in range(9): a(f"v_fmac_f32 v{uu+i}, v{uk+3+i-j}, v{us+j}")
        for i in range(9): a(f"v_mul_f32 v{uu+i}, v{uu+i}, v{uv+i}")
        pk = 212 + 8 * (ch & 1)
        for e in range(4):
            a(f"v_cvt_pk_bf16_f32 v{pk+e}, v{uu+7-2*e}, v{uu+6-2*e}")
            a(f"v_cvt_pk_bf16_f32 v{pk+4+e}, v{uu+8-2*e}, v{uu+7-2*e}")
        a(I(f"buffer_store_dwordx4 {vr(pk,4)}, v12, {sr(SWS,4)}, s93 offen sc1", vm="ks"))
        a(I(f"buffer_store_dwordx4 {vr(pk+4,4)}, v13, {sr(SWS,4)}, s93 offen sc1", vm="ks"))
        if ch < 7: a("s_add_u32 s93, s93, 8192")
    a("v_mov_b32 v32, 0\nv_mov_b32 v33, 0")
    for d in range(32):
        a(f"""
        v_lshlrev_b32 v34, 16, v{XS+d}
        v_and_b32 v35, 0xffff0000, v{XS+d}
        v_add_f32 v32, v32, v34
        v_fmac_f32 v33, v34, v34
        v_add_f32 v32, v32, v35
        v_fmac_f32 v33, v35, v35
        """)
    for dpp in ("quad_perm:[1,0,3,2]", "quad_perm:[2,3,0,1]", "row_half_mirror"):
        a(f"v_add_f32_dpp v32, v32, v32 {dpp} row_mask:0xf bank_mask:0xf")
        a(f"v_add_f32_dpp v33, v33, v33 {dpp} row_mask:0xf bank_mask:0xf")
    a(stats_math(32, 33, 36, 37, 38))
    a(f"""
    s_lshl_b32 s{sT0}, s{sW}, 6
    v_and_b32 v38, 56, v0
    v_add_u32 v38, s{sT0}, v38
    ds_write_b64 v38, v[36:37] offset:{L_STAT}
    s_mov_b32 s{sCNT}, {SPIN}
    L_eploop:
    buffer_load_dword v{vEP}, off, {sr(SDBG,4)}, 0 sc1
    s_waitcnt vmcnt(0)
    v_readfirstlane_b32 s{sEP}, v{vEP}
    s_cmp_lg_u32 s{sEP}, 0
    s_cbranch_scc1 L_epok
    s_sleep 1
    s_sub_u32 s{sCNT}, s{sCNT}, 1
    s_cbranch_scc0 L_eploop
    L_epok:
    s_lshl_b32 s93, s90, 7
    s_lshl_b32 s94, s91, 5
    s_add_u32 s93, s93, s94
    s_lshl_b32 s94, s{sW}, 2
    s_add_u32 s93, s93, s94
    buffer_store_dword v{vEP}, off, {sr(SWS,4)}, s93 offset:{WS_FKV} sc1
    """)
    a.vq = []
    a(wd_read(0, 0) + wd_read(1, 32768) + [I(wlg="*")] + wd_dma(2, L_S0) + wd_dma(3, L_S1))
    a([I(wvm="*")] + wd_read(2, 0) + wd_read(3, 32768) + [I(wlg="*")] + wd_dma(5, L_S0) + wd_dma(6, L_S1))

    a(f"{JOIN}:")
    a.vq, a.lq = list(vq_join), []
    stamp("join")
    a(f"""
    s_cmp_eq_u32 s{sOK}, 1
    s_cbranch_scc1 L_kvok
    s_mov_b32 s{sCNT}, {SPIN}
    L_kvloop:
    """)
    sv = a.vq; a.vq = []
    a(kvflag_load(32, "kf")); a(I(wvm="*"))
    a(kvflag_check())
    a(f"""
    s_cbranch_scc0 L_kvgot
    s_sleep 1
    s_sub_u32 s{sCNT}, s{sCNT}, 1
    s_cbranch_scc0 L_kvloop
    L_kvgot:
    """)
    a(r_load("R")); a(I(wvm="*"))
    a("L_kvok:")
    a.vq = sv
    CA, AF, BF = 32, 64, 96
    vRA, vRB, vZ = 18, 19, 112
    a(f"""
    s_lshr_b32 s{sT0}, s{sW}, 2
    s_mul_i32 s90, s{sT0}, {L_R[1]-L_R[0]}
    s_add_u32 s90, s90, {L_R[0]}
    s_bfe_u32 s{sT1}, s{sW}, 0x10001
    s_mul_i32 s{sT1}, s{sT1}, 4576
    s_add_u32 s{sT1}, s{sT1}, s90
    v_min_u32 v21, 27, v0
    v_lshl_add_u32 v21, v21, 4, s{sT1}
    s_lshl_b32 s{sT3}, s{sWR}, 11
    s_add_u32 s{sT1}, s{sT1}, s{sT3}
    v_add_u32 v20, s{sT1}, v{vL16}
    s_mul_i32 s{sT1}, s{sW}, 4160
    v_and_b32 v22, 15, v0
    v_lshl_add_u32 v23, v22, 2, s{sT1}
    v_mov_b32 v{vZ}, 0
    v_mov_b32 v{vZ+1}, 0
    v_mov_b32 v{vZ+2}, 0
    v_mov_b32 v{vZ+3}, 0
    """)
    a(I(wvm="R"))
    a(f"""
    ds_write_b128 v20, {vr(vR,4)}
    ds_write_b128 v20, {vr(vR+4,4)} offset:1024
    ds_write_b32 v23, v{vHEAD}
    ds_write_b128 v21, {vr(vZ,4)} offset:4096
    s_and_b32 s91, s{sW}, 3
    s_lshl_b32 s92, s91, 7
    v_and_b32 v24, 1, v0
    v_mul_u32_u24 v24, 4576, v24
    v_bfe_u32 v25, v0, 1, 3
    v_sub_u32 v25, 7, v25
    v_lshl_add_u32 v24, v25, 6, v24
    v_and_b32 v25, 48, v0
    v_add_u32 v24, v24, v25
    s_add_u32 s{sT1}, s90, s92
    v_add_u32 v{vRA}, s{sT1}, v24
    v_and_b32 v24, 3, v0
    v_mul_u32_u24 v24, 4160, v24
    v_bfe_u32 v26, v0, 2, 2
    v_lshl_add_u32 v24, v26, 4, v24
    v_add_u32 v24, v24, v25
    s_mul_i32 s{sT1}, s{sT0}, 16640
    s_add_u32 s{sT1}, s{sT1}, s92
    v_add_u32 v{vRB}, s{sT1}, v24
    s_waitcnt lgkmcnt(0)
    s_barrier
    """)
    stamp("c1")
    def aslot(rr, i): return AF + 4 * (i if rr == 0 else 7 - i)
    def aread(rr, i): return I(f"ds_read_b128 {vr(aslot(rr,i),4)}, v{vRA} offset:{64*(56-8*i+rr)}", lg=f"a{rr}{i}")
    order = [(0, p) for p in range(8)] + [(1, p) for p in range(7, -1, -1)]
    def bread(k):
        rr, p = order[k]
        return I(f"ds_read_b128 {vr(BF+4*(k%4),4)}, v{vRB} offset:{64*(8*p+rr)}", lg=f"b{k}")
    a(bread(0))
    for i in range(8): a(aread(0, i))
    a(bread(1)); a(bread(2))
    vST, vU = 20, 6
    for k, (rr, p) in enumerate(order):
        seq = []
        for j in range(p, 8):
            c = "0" if k == 0 else vr(CA + 4 * j, 4)
            seq.append(I(f"v_mfma_f32_16x16x32_bf16 {vr(CA+4*j,4)}, {vr(aslot(rr,j-p),4)}, {vr(BF+4*(k%4),4)}, {c}",
                         wlg=[f"a{rr}{j-p}", f"b{k}"]))
        a(seq)
        if k + 3 < 16: a(bread(k + 3))
        if rr == 0: a(aread(1, p))
        if k == 2:
            a(f"""
            s_lshl_b32 s{sT1}, s{sWC}, 7
            v_lshl_add_u32 v24, v22, 3, s{sT1}
            s_lshl_b32 s{sT1}, s91, 10
            s_sub_u32 s{sT1}, s90, s{sT1}
            s_add_u32 s{sT1}, s{sT1}, {4576 + 4080}
            v_sub_u32 v25, s{sT1}, v{vL16}
            """)
            a(I(f"ds_read_b64 {vr(vST,2)}, v24 offset:{L_STAT}", lg="su"))
            a(I(f"ds_read_b128 {vr(vU,4)}, v25", lg="su"))
        if k == 8:
            a(I(wvm="*"))
            a(f"""
            s_cmp_eq_u32 s{sISG}, 0
            s_cbranch_scc1 L_nohf
            v_mov_b32 v24, s{sEP}
            s_add_u32 s{sT2}, s{sT2}, {WS_FH}
            buffer_store_dword v24, off, {sr(SWS,4)}, s{sT2} sc1
            L_nohf:
            """)
            stamp("hflag")
        if k in (9, 10): a(wd_read(k - 4, 32768 * (k - 9)))
        if k == 11: a([f"v_subrev_u32 v{vTB+m}, 32768, v{vTB+m}" for m in range(4)])
        if k == 12: a(wd_read(4, 0))
    a(f"""
    v_lshrrev_b32 v24, 4, v0
    v_xor_b32 v24, v0, v24
    s_add_u32 s{sT1}, s{sS0}, {L_S2}
    v_lshl_add_u32 v24, v24, 4, s{sT1}
    v_bfe_u32 v25, v0, 3, 2
    v_and_b32 v26, 3, v0
    v_lshlrev_b32 v26, 6, v26
    v_lshl_add_u32 v26, v25, 8, v26
    v_bfe_u32 v23, v0, 2, 1
    v_lshl_add_u32 v26, v23, 3, v26
    v_lshrrev_b32 v23, 5, v0
    v_lshl_add_u32 v26, v23, 10, v26
    v_lshl_add_u32 v26, v25, 4, v26
    s_lshl_b32 s{sT1}, s{sT0}, 14
    s_lshl_b32 s{sT3}, s{sWR}, 11
    s_add_u32 s{sT1}, s{sT1}, s{sT3}
    s_bfe_u32 s{sT3}, s{sW}, 0x10001
    s_lshl_b32 s{sT3}, s{sT3}, 15
    s_add_u32 s{sT1}, s{sT1}, s{sT3}
    s_add_u32 s{sT1}, s{sT1}, {L_S2}
    v_add_u32 v10, s{sT1}, v26
    v_xor_b32 v11, 16, v10
    v_xor_b32 v12, 32, v10
    v_xor_b32 v13, 48, v10
    """)
    a(I(wlg="*"))
    for j in range(8):
        a(f"ds_write_b128 v24, {vr(CA+4*j,4)} offset:{(j>>2)*32768+(j&3)*1024}")
    a(f"""
    s_mul_i32 s{sT1}, s{sW}, 28
    s_lshl_b32 s{sT3}, s{sRT2}, 8
    s_add_u32 s93, s{sT1}, s{sT3}
    s_add_u32 s93, s93, {WS_FH}
    v_min_u32 v23, 6, v0
    v_lshlrev_b32 v23, 2, v23
    """)
    a(I(f"buffer_load_dword v{vFL}, v23, {sr(SWS,4)}, s93 offen sc1", vm="hf"))
    a("s_waitcnt lgkmcnt(0)\ns_barrier")
    stamp("c3")
    PR = 64
    for k in range(4):
        for i in range(4):
            a(I(f"ds_read_b64 {vr(PR+8*k+2*i,2)}, v{10+i} offset:{4096*k}", lg=f"p{k}"))
    a(f"""
    s_lshl_b32 s{sT1}, s{sT0}, 4
    s_sub_u32 s{sT1}, 16, s{sT1}
    v_lshlrev_b32 v{vD}, s{sT1}, v{vD}
    v_and_b32 v{vD}, 0xffff0000, v{vD}
    """)
    for e in range(4):
        a(f"v_and_b32 v{CA+6-2*e}, 0xffff0000, v{vU+e}\nv_lshlrev_b32 v{CA+7-2*e}, 16, v{vU+e}")
    a(I(wlg="p0"))
    for e in range(8): a(f"v_fma_f32 v{CA+e}, v{CA+e}, v{vD}, v{PR+e}")
    for k in range(1, 4):
        a(I(wlg=f"p{k}"))
        if k == 3: a("s_barrier")
        for e in range(8): a(f"v_add_f32 v{CA+e}, v{CA+e}, v{PR+8*k+e}")
    for e in range(4): a(f"v_cvt_pk_bf16_f32 v{CA+8+e}, v{CA+2*e}, v{CA+2*e+1}")
    a(f"""
    s_lshl_b32 s{sT1}, s2, 13
    s_lshl_b32 s{sT3}, s{sW}, 10
    s_add_u32 s{sT1}, s{sT1}, s{sT3}
    s_add_u32 s{sT1}, s{sT1}, {WS_YT}
    """)
    a(I(f"buffer_store_dwordx4 {vr(CA+8,4)}, v{vL16}, {sr(SWS,4)}, s{sT1} offen sc1", vm="ys"))
    a(I(wvm="hf"))
    a(f"""
    v_cmp_ne_u32 vcc, s{sEP}, v{vFL}
    s_cmp_eq_u64 vcc, 0
    s_cbranch_scc1 L_hok
    s_mov_b32 s{sCNT}, {SPIN}
    L_hloop:
    buffer_load_dword v{vFL}, v23, {sr(SWS,4)}, s93 offen sc1
    s_waitcnt vmcnt(0)
    v_cmp_ne_u32 vcc, s{sEP}, v{vFL}
    s_cmp_eq_u64 vcc, 0
    s_cbranch_scc1 L_hok
    s_sub_u32 s{sCNT}, s{sCNT}, 1
    s_cbranch_scc0 L_hloop
    L_hok:
    """)
    stamp("hok")
    HB, ZA, NS = 64, 32, 20
    a(f"""
    s_mul_i32 s94, s{sRT2}, {4*56*1024}
    s_mul_i32 s{sT1}, s{sW}, 7168
    s_add_u32 s94, s94, s{sT1}
    s_add_u32 s94, s94, {WS_H}
    """)
    def hload(n):
        qd, ks = divmod(n, 7)
        o = qd * 57344 + (ks & ~3) * 1024
        g = [f"s_add_u32 s95, s94, {o}"] if ks in (0, 4) or n == NS else []
        g.append(I(f"buffer_load_dwordx4 {vr(HB+4*(n%NS),4)}, v{vL16}, {sr(SWS,4)}, s95 offen offset:{(ks&3)*1024} sc1", vm=f"h{n}"))
        return g
    for n in range(NS): a(hload(n))
    vZW, vZR, vYA, vYF, vOO = 10, 11, 12, 13, 18
    a(f"""
    v_lshrrev_b32 v24, 4, v0
    v_xor_b32 v25, v24, v22
    v_lshlrev_b32 v25, 4, v25
    v_lshl_add_u32 v25, v22, 8, v25
    s_lshl_b32 s{sT1}, s{sW}, 14
    v_add_u32 v{vZW}, s{sT1}, v25
    s_lshl_b32 s{sT1}, s{sWR}, 3
    v_lshl_add_u32 v25, v24, 1, s{sT1}
    v_xor_b32 v25, v25, v22
    v_lshlrev_b32 v25, 4, v25
    v_lshl_add_u32 v25, v22, 8, v25
    s_lshl_b32 s{sT1}, s{sWC}, 12
    v_add_u32 v{vZR}, s{sT1}, v25
    v_lshrrev_b32 v25, 1, v0
    v_and_b32 v26, 1, v0
    v_lshlrev_b32 v26, 4, v26
    v_lshl_add_u32 v{vYA}, v25, 12, v26
    v_and_b32 v25, 31, v0
    v_lshlrev_b32 v{vYF}, 2, v25
    s_lshl_b32 s96, s{sCT2}, 1
    s_add_u32 s96, s96, s{sWR}
    s_lshl_b32 s97, s96, 17
    s_lshl_b32 s{sT1}, s{sRT2}, 7
    s_add_u32 s97, s97, s{sT1}
    s_lshl_b32 s{sT1}, s{sWC}, 5
    s_add_u32 s97, s97, s{sT1}
    s_add_u32 s97, s97, {WS_YT}
    s_lshl_b32 s96, s96, 7
    s_lshr_b32 s{sT1}, s{sRT2}, 3
    s_lshl_b32 s{sT1}, s{sT1}, 11
    s_add_u32 s96, s96, s{sT1}
    s_add_u32 s96, s96, {WS_FY}
    s_lshl_b32 s92, s91, 11
    s_lshl_b32 s{sT1}, s2, 3
    s_add_u32 s92, s92, s{sT1}
    s_lshl_b32 s{sT1}, s{sT0}, 2
    s_add_u32 s92, s92, s{sT1}
    s_add_u32 s92, s92, {WS_FY}
    v_mov_b32 v24, s{sEP}
    """)
    a(out_off(vOO, 25))
    if prof: a(f"s_mov_b64 s[74:75], s[96:97]")
    sYF, sYA = (74, 75) if prof else (96, 97)
    def zwrite(qd):
        return [[f"v_xor_b32 v19, {64*mt}, v{vZW}",
                 I(f"ds_write_b128 v19, {vr(ZA+16*(qd&1)+4*mt,4)} offset:{4096*qd}", lg="zw")] for mt in range(4)]
    for n in range(28):
        qd, ks = divmod(n, 7)
        a(I(wvm=f"h{n}"))
        if n == 0:
            a(I(f"buffer_store_dword v24, off, {sr(SWS,4)}, s92 sc1", vm="yf"))
        seq = []
        for mt in range(4):
            d = ZA + 16 * (qd & 1) + 4 * mt
            c = "0" if ks == 0 else vr(d, 4)
            seq.append(f"v_mfma_f32_16x16x32_bf16 {vr(d,4)}, {vr(WDF(ks)+4*mt,4)}, {vr(HB+4*(n%NS),4)}, {c}")
        fill = []
        if qd >= 1 and ks == 2: fill = zwrite(qd - 1)
        a(mix(seq, fill))
        if n + NS < 28: a(hload(n + NS))
        if n == 13: a(I(f"buffer_load_dword v{vFL}, v{vYF}, {sr(SWS,4)}, s{sYF} offen sc1", vm="yp"))
    a(zwrite(3))
    stamp("g2")
    a(I(wvm="yp"))
    a(f"""
    v_cmp_ne_u32 vcc, s{sEP}, v{vFL}
    s_cmp_eq_u64 vcc, 0
    s_cbranch_scc1 L_yok
    s_mov_b32 s{sCNT}, {SPIN}
    L_yloop:
    buffer_load_dword v{vFL}, v{vYF}, {sr(SWS,4)}, s{sYF} offen sc1
    s_waitcnt vmcnt(0)
    v_cmp_ne_u32 vcc, s{sEP}, v{vFL}
    s_cmp_eq_u64 vcc, 0
    s_cbranch_scc1 L_yok
    s_sub_u32 s{sCNT}, s{sCNT}, 1
    s_cbranch_scc0 L_yloop
    L_yok:
    """)
    a(I(f"buffer_load_dwordx4 {vr(vU,4)}, v{vYA}, {sr(SWS,4)}, s{sYA} offen sc1", vm="yl"))
    XF, XN = 32, 40
    a(f"""
    v_rcp_f32 v{vST+1}, v{vST+1}
    s_add_u32 s{sT1}, s{sS0}, {L_S1}
    v_add_u32 v24, s{sT1}, v{vL16}
    v_lshrrev_b32 v25, 4, v0
    v_lshlrev_b32 v25, 8, v25
    v_lshl_add_u32 v25, v22, 3, v25
    v_add_u32 v25, s{sT1}, v25
    v_xor_b32 v19, 16, v{vZR}
    """)
    a(I(wlg="*"))
    a("s_barrier")
    stamp("bf")
    ZR = 64
    for k in range(8):
        base = (vZR, 19)
        if k == 4: a(f"v_add_u32 v{vZR}, 65536, v{vZR}\nv_add_u32 v19, 65536, v19")
        for h in range(2):
            a(I(f"ds_read_b128 {vr(ZR+8*k+4*h,4)}, v{base[h]} offset:{16384*(k&3)}", lg=f"z{k}"))
    for e in range(4):
        a(f"v_lshlrev_b32 v{XF+2*e}, 16, v{vXT+e}\nv_and_b32 v{XF+2*e+1}, 0xffff0000, v{vXT+e}")
    for e in range(8): a(f"v_sub_f32 v{XN+e}, v{XF+e}, v{vST}")
    for e in range(8): a(f"v_mul_f32 v{XN+e}, v{XN+e}, v{vST+1}")
    a(I(wvm="yl"))
    a(I(f"ds_write_b128 v24, {vr(vU,4)}", lg="yw"))
    a(I(f"ds_read_b64_tr_b16 {vr(vU,2)}, v25", lg="yr"))
    a(I(f"ds_read_b64_tr_b16 {vr(vU+2,2)}, v25 offset:128", lg="yr"))
    for k in range(1, 8):
        a(I(wlg=f"z{k}"))
        for e in range(8): a(f"v_add_f32 v{ZR+e}, v{ZR+e}, v{ZR+8*k+e}")
    T = 48
    for e in range(8): a(f"v_mul_f32 v{T+e}, {fx(-1.4426950408889634)}, v{ZR+e}")
    for e in range(8): a(f"v_exp_f32 v{T+e}, v{T+e}")
    a(I(wlg="yr"))
    for e in range(4):
        a(f"v_lshlrev_b32 v{T+8+2*e}, 16, v{vU+e}\nv_and_b32 v{T+9+2*e}, 0xffff0000, v{vU+e}")
    for e in range(8): a(f"v_add_f32 v{T+e}, 1.0, v{T+e}")
    for e in range(8): a(f"v_rcp_f32 v{T+e}, v{T+e}")
    for e in range(8): a(f"v_mul_f32 v{XN+e}, v{XN+e}, v{T+8+e}")
    for e in range(8): a(f"v_mul_f32 v{XN+e}, v{XN+e}, v{ZR+e}")
    for e in range(8): a(f"v_fmac_f32 v{XF+e}, v{XN+e}, v{T+e}")
    for e in range(4): a(f"v_cvt_pk_bf16_f32 v{T+e}, v{XF+2*e}, v{XF+2*e+1}")
    a(f"buffer_store_dwordx4 {vr(T,4)}, v{vOO}, {sr(SOUT,4)}, 0 offen")
    if prof:
        stamp("end")
        a(f"""
        s_waitcnt lgkmcnt(0)
        s_lshl_b32 s{sT0}, s2, 3
        s_add_u32 s{sT0}, s{sT0}, s{sW}
        s_lshl_b32 s{sT0}, s{sT0}, 6
        s_add_u32 s{sT0}, s{sT0}, {WS_PROF}
        """)
        for i in range(len(stamps)):
            a(f"v_mov_b32 v1, s{sPROF+2*i}")
            a(f"buffer_store_dword v1, off, {sr(SWS,4)}, s{sT0} offset:{4*i}")
    a(f"{END}:\ns_endpgm")
    txt = a.text(256, 512, 163840)
    return txt, stamps, a.nops

if __name__ == "__main__":
    txt, st, nops = gen(prof=len(sys.argv) > 2)
    open(sys.argv[1], "w").write(txt)
    print("lines", txt.count("\n"), "nops", nops, st)
```

```python
import re
from asmlib import HEADER_COMMENT, NAME

class I:
    __slots__ = ("text", "vm", "lg", "wvm", "wlg")
    def __init__(self, text=None, vm=None, lg=None, wvm=None, wlg=None):
        self.text, self.vm, self.lg, self.wvm, self.wlg = text, vm, lg, wvm, wlg

def vr(a, n=1):
    return f"v{a}" if n == 1 else f"v[{a}:{a+n-1}]"
def sr(a, n=1):
    return f"s{a}" if n == 1 else f"s[{a}:{a+n-1}]"

_REG = re.compile(r"^(v|s)(\d+)$|^(v|s)\[(\d+):(\d+)\]$")
def regs(op):
    op = op.strip().lstrip("-").strip("|")
    if op in ("vcc",): return {("s", 106), ("s", 107)}
    if op == "vcc_lo": return {("s", 106)}
    if op == "vcc_hi": return {("s", 107)}
    if op == "m0": return {("s", 124)}
    if op == "exec": return {("s", 126), ("s", 127)}
    m = _REG.match(op)
    if not m: return set()
    if m.group(1): return {(m.group(1), int(m.group(2)))}
    return {(m.group(3), i) for i in range(int(m.group(4)), int(m.group(5)) + 1)}

TRANS = ("v_exp_f32", "v_log_f32", "v_rcp_f32", "v_rsq_f32", "v_sqrt_f32", "v_sin_f32", "v_cos_f32")

class Dec:
    def __init__(self, line):
        t = line.split(";")[0].strip()
        self.t = t
        parts = t.split(None, 1)
        self.mn = mn = parts[0]
        rest = parts[1] if len(parts) > 1 else ""
        br = re.findall(r"\w+:\[[^\]]*\]", rest)
        rest = re.sub(r"\w+:\[[^\]]*\]", "", rest)
        toks = [x.strip() for x in rest.split(",")]
        last = toks[-1].split() if toks and toks[-1] else []
        self.mods = last[1:] + br
        if last: toks[-1] = last[0]
        self.ops = ops = toks
        R = lambda i: regs(ops[i]) if i < len(ops) else set()
        U = lambda a, b=None: set().union(*[regs(o) for o in ops[a:b]]) if ops[a:b] else set()
        self.cls = "other"; self.dst = set(); self.src = set(); self.ws = 1
        self.a = self.b = self.c = set(); self.passes = 0; self.wide = set(); self.dma = False
        if mn == "s_nop":
            self.cls = "nop"; self.ws = int(ops[0]) + 1
        elif mn.startswith("v_mfma"):
            self.cls = "mfma"; self.dst = R(0); self.a, self.b, self.c = R(1), R(2), R(3)
            self.src = self.a | self.b | self.c
            self.passes = 8 if "32x32x16" in mn else 4
        elif mn.startswith("v_"):
            self.cls = "valu"
            if mn.startswith("v_permlane"):
                self.dst = R(0) | R(1); self.src = R(0) | R(1)
            elif mn.startswith(("v_add_co", "v_sub_co", "v_addc_co", "v_subb_co")):
                self.dst = R(0) | R(1); self.src = U(2)
            else:
                self.dst = R(0); self.src = U(1)
                if mn.startswith(("v_fmac", "v_mac", "v_dot2c", "v_pk_fmac")): self.src |= R(0)
                if mn.startswith("v_cndmask") and len(ops) == 3: self.src |= regs("vcc")
            self.dpp = any(m.startswith(("quad_perm", "row_", "wave_")) for m in self.mods)
        elif mn.startswith("ds_"):
            self.cls = "ds"
            if mn.startswith("ds_read") or "rtn" in mn or "permute" in mn or "swizzle" in mn:
                self.dst = R(0); self.src = U(1)
            else:
                self.src = U(0)
        elif mn.startswith(("buffer_", "global_")):
            self.cls = "vmem"
            if "lds" in self.mods:
                self.src = U(0); self.dma = True
            elif "load" in mn:
                self.dst = R(0); self.src = U(1)
            else:
                self.src = U(0)
                if "x4" in mn or "x3" in mn:
                    self.wide = R(0) if mn.startswith("buffer_") else R(1)
                if "atomic" in mn and "sc0" in self.mods: self.dst = R(0)
        elif mn.startswith("s_"):
            self.cls = "salu"
            if mn.startswith(("s_cmp", "s_waitcnt", "s_barrier", "s_branch", "s_cbranch", "s_sleep", "s_endpgm", "s_setprio", "s_bitcmp")):
                self.src = U(0)
            else:
                self.dst = R(0); self.src = U(1)

def need(p, c):
    n = 0
    vd = {r for r in p.dst if r[0] == "v"}
    sd = {r for r in p.dst if r[0] == "s"}
    if p.cls == "valu":
        if c.cls == "mfma" and vd & c.src: n = max(n, 2)
        if c.cls == "valu":
            if c.mn.startswith(("v_readfirstlane", "v_readlane")) and vd & c.src: n = max(n, 1)
            if (c.mn.startswith("v_permlane") or c.dpp) and vd & c.src: n = max(n, 2)
            if sd & c.src: n = max(n, 4 if c.mn.startswith(("v_readlane", "v_writelane")) else 2)
            if p.mn.startswith(TRANS) and vd & c.src: n = max(n, 1)
        if p.mn.startswith("v_dot") and c.cls in ("valu", "vmem", "ds", "mfma"):
            if c.mn == p.mn:
                if vd & (c.src - c.dst): n = max(n, 3)
            elif vd & (c.src | c.dst): n = max(n, 3)
        if c.cls == "vmem" and sd & c.src: n = max(n, 5)
        if c.cls in ("vmem", "ds") and p.mn.startswith(TRANS) and vd & c.src: n = max(n, 1)
    if p.cls == "mfma":
        big = 12 if p.passes == 8 else 8
        if c.cls == "mfma":
            if p.dst & (c.a | c.b): n = max(n, big)
            if p.dst & c.c and not (p.dst == c.c and p.passes == c.passes): n = max(n, big - 2)
            if p.dst & c.dst and not (p.dst == c.c and p.passes == c.passes): n = max(n, big - 2)
        elif c.cls in ("valu", "vmem", "ds"):
            if p.dst & (c.src | c.dst): n = max(n, big)
            if c.cls == "valu" and p.c & c.dst: n = max(n, 7 if p.passes == 8 else 3)
    if p.cls == "salu" and ("s", 124) in p.dst and c.cls == "vmem" and c.dma: n = max(n, 1)
    if p.cls == "vmem" and p.wide and p.wide & c.dst: n = max(n, 2 if c.cls in ("valu", "mfma") else 1)
    return n

def pad(lines):
    out = []; hist = []
    added = 0
    for ln in lines:
        s = ln.strip()
        if not s or s.startswith((";", ".")) or s.endswith(":"):
            out.append(ln); continue
        d = Dec(s)
        dist = 0; req = 0
        for p in reversed(hist):
            r = need(p, d) - dist
            req = max(req, r)
            dist += p.ws
            if dist >= 12: break
        if req > 0:
            nop = f"    s_nop {req-1}"
            out.append(nop); hist.append(Dec(nop)); added += req
        out.append(ln); hist.append(d)
        hist = hist[-16:]
    return out, added

class Em:
    def __init__(self):
        self.lines = []; self.vq = []; self.lq = []; self._l = 0
    def label(self, b="L"):
        self._l += 1; return f"{b}_{self._l}"
    def raw(self, s):
        for l in s.strip("\n").split("\n"):
            l = l.strip()
            if l: self.lines.append(l if l.endswith(":") else "    " + l)
    def _n(self, q, tag):
        tags = tag if isinstance(tag, (list, tuple, set)) else [tag]
        idx = max([i for i, t in enumerate(q) if (any(u in tags for u in t) if isinstance(t, tuple) else t in tags)], default=-1)
        return idx
    def __call__(self, x, **kw):
        if isinstance(x, (list, tuple)):
            for y in x: self(y)
            return
        if isinstance(x, str):
            if kw: x = I(x, **kw)
            else:
                self.raw(x); return
        w = []
        if x.wvm is not None:
            i = len(self.vq) - 1 if x.wvm == "*" else self._n(self.vq, x.wvm)
            if i >= 0 or x.wvm == "*":
                n = len(self.vq) - 1 - i; assert n <= 63, n
                w.append(f"vmcnt({n})"); self.vq = self.vq[i + 1:]
        if x.wlg is not None:
            i = len(self.lq) - 1 if x.wlg == "*" else self._n(self.lq, x.wlg)
            if i >= 0 or x.wlg == "*":
                n = min(15, len(self.lq) - 1 - i)
                w.append(f"lgkmcnt({n})"); self.lq = self.lq[len(self.lq) - n:] if n else []
        if w: self.raw("s_waitcnt " + " ".join(w))
        if x.text: self.raw(x.text)
        if x.vm is not None: self.vq.append(x.vm)
        if x.lg is not None: self.lq.append(x.lg)
    def wvm(self, tag): self(I(wvm=tag))
    def wlg(self, tag): self(I(wlg=tag))
    def text(self, grid, block, lds, vgpr=256, sgpr=102, post=None):
        body, added = pad(self.lines)
        if post: body = post(body)
        self.nops = added
        k = NAME + "_kernel"
        out = [HEADER_COMMENT.rstrip("\n"),
               f"; @launch grid=({grid},1,1) block=({block},1,1) lds={lds}",
               '.amdgcn_target "amdgcn-amd-amdhsa--gfx950"', ".text", f".globl {k}", ".p2align 8",
               f".type {k},@function", f"{k}:"] + body + [
               '.section .rodata,"a"', ".p2align 6", f".amdhsa_kernel {k}",
               f"  .amdhsa_next_free_vgpr {vgpr}", f"  .amdhsa_next_free_sgpr {sgpr}",
               f"  .amdhsa_accum_offset {min(256, (vgpr + 3) // 4 * 4)}",
               "  .amdhsa_group_segment_fixed_size 0", "  .amdhsa_kernarg_size 104",
               "  .amdhsa_user_sgpr_count 2", "  .amdhsa_user_sgpr_kernarg_segment_ptr 1",
               "  .amdhsa_system_sgpr_workgroup_id_x 1", ".end_amdhsa_kernel"]
        return "\n".join(out) + "\n"

def mix(main, fill, lead=0):
    out = list(fill[:lead]); fill = list(fill[lead:])
    n = len(main); k = 0
    for i, m in enumerate(main):
        out.append(m)
        e = (len(fill) * (i + 1) + n - 1) // n
        out += fill[k:e]; k = e
    return out
```

```python
import sys
from em import *

WS_EPOCH, WS_FY, WS_FH, WS_FKV, WS_RS, WS_CS = 0, 4096, 16384, 32768, 65536, 131072
WS_KV, WS_YT, WS_H, WS_PROF = 1 << 20, 5 << 20, 8 << 20, 16 << 20
SX, SWG, SWU, SWD, SWS, SOUT, SH, SK, SV, SSH, SD = 8, 12, 16, 20, 24, 28, 32, 36, 40, 48, 52
sW, sRB, sCB, sRT2, sCT2, sROT, sWR, sWC, sEP = 3, 56, 57, 58, 59, 60, 61, 62, 63
sXB, sWB, sT0, sT1 = 4, 5, 6, 7
sWDB, sS0, sOK, sISG, sCNT, sT2, sT3, sM0X, sE, sKS, sKF = 64, 65, 66, 67, 68, 69, 70, 71, 72, 44, 45
PROFS = [74, 76, 78, 80, 82, 84, 86, 88, 98, 100, 36, 38, 40, 42, 48, 50]
STAGE = 49152
L_R = (39424, 49152)
L_S2, L_S0, L_S1 = 65536, 98304, 131072
L_K, L_V = 98304, 98304 + 9216
ACC, FR = 32, 96
def WDF(ks): return 240 - 16 * ks
vX0, vX1, vW0, vW1, vWD = 1, 2, 3, 4, 5
vXB, vWB, vEP = 6, 14, 17
vTB, vL16 = 27, 31
vHEAD, vD, vFL = 1, 2, 3
vEA, vEB, vR = 128, 132, 136
vXT = 14
vKA, vKS, vSHK, KRAW, KU = 18, 19, 20, 144, 160
SPIN = 0x4000
KC = 2 * 0.7978845608028654 * 1.4426950408889634
import struct
def fx(f): return "0x%08x" % struct.unpack("<I", struct.pack("<f", f))[0]

def gen(prof=False, opt=()):
    a = Em()
    stamps = []
    def stamp(name, slot=None):
        if prof and (name not in ("hflag", "c3", "g2", "bf", "c1") or "allb" not in opt):
            if slot is None:
                slot = len(stamps); stamps.append(name)
            a(f"{'s_memtime' if 'cyc' in opt else 's_memrealtime'} {sr(PROFS[slot], 2)}")
    END = "L_end"
    sPF = 46
    a(f"""
    s_cmp_ge_u32 s2, 256
    s_cbranch_scc1 {END}
    s_load_dwordx16 s[64:79], s[0:1], 0
    s_load_dwordx8 s[80:87], s[0:1], 64
    s_load_dwordx2 s[88:89], s[0:1], 96
    v_lshrrev_b32 v1, 6, v0
    v_and_b32 v0, 63, v0
    v_readfirstlane_b32 s{sW}, v1
    s_and_b32 s90, s2, 7
    s_lshr_b32 s91, s2, 3
    s_and_b32 s92, s90, 1
    s_lshr_b32 s93, s90, 1
    s_and_b32 s94, s91, 3
    s_lshr_b32 s95, s91, 2
    s_lshl_b32 s{sRB}, s93, 2
    s_add_u32 s{sRB}, s{sRB}, s94
    s_lshl_b32 s{sRT2}, s{sRB}, 1
    s_add_u32 s{sRT2}, s{sRT2}, s92
    s_add_u32 s{sCT2}, s95, 7
    s_and_b32 s{sCT2}, s{sCT2}, 7
    s_mul_i32 s{sCB}, s92, 7
    s_add_u32 s{sCB}, s{sCB}, s{sCT2}
    """)
    if "rot0" in opt: a(f"s_mov_b32 s{sROT}, 0")
    elif "rotx" in opt: a(f"s_mov_b32 s{sROT}, s90")
    elif "rotx2" in opt: a(f"s_lshl_b32 s{sROT}, s93, 1")
    else: a(f"""
    s_lshl_b32 s{sROT}, s94, 1
    s_add_u32 s{sROT}, s{sROT}, s95
    s_and_b32 s96, s93, 1
    s_add_u32 s{sROT}, s{sROT}, s96
    """)
    a(f"""
    s_and_b32 s{sWR}, s{sW}, 1
    s_lshr_b32 s{sWC}, s{sW}, 1
    s_lshl_b32 s{sXB}, s{sRB}, 17
    s_lshl_b32 s96, s{sW}, 14
    s_add_u32 s{sXB}, s{sXB}, s96
    s_mul_i32 s{sWB}, s{sW}, 28672
    s_lshl_b32 s96, s{sCB}, 8
    s_add_u32 s{sWB}, s{sWB}, s96
    s_mul_i32 s{sPF}, s94, 7
    s_add_u32 s{sPF}, s{sPF}, s{sW}
    s_lshl_b32 s{sPF}, s{sPF}, 16
    s_lshl_b32 s96, s{sCT2}, 7
    s_add_u32 s{sPF}, s{sPF}, s96
    """)
    for s, n in ((SX, 1 << 21), (SWG, 1835008), (SWU, 1835008), (SWD, 1835008), (SWS, 1 << 25), (SOUT, 1 << 21),
                 (SH, 4096), (SK, 1 << 21), (SV, 1 << 21), (SSH, 4096), (SD, 1024)):
        a(f"s_mov_b32 s{s+2}, {n}")
        a(f"s_mov_b32 s{s+3}, 0x20000")
    a(f"""
    v_lshrrev_b32 v20, 3, v0
    v_lshrrev_b32 v21, 4, v0
    v_and_b32 v22, 7, v0
    v_xor_b32 v23, v22, v21
    v_lshlrev_b32 v23, 4, v23
    v_lshl_add_u32 v{vX0}, v20, 10, v23
    v_xor_b32 v{vX1}, 64, v{vX0}
    v_add_u32 v{vX1}, 7168, v{vX1}
    v_bfe_u32 v24, v0, 2, 2
    v_and_b32 v25, 3, v0
    v_xor_b32 v23, v24, v21
    v_lshlrev_b32 v23, 6, v23
    v_lshl_add_u32 v23, v25, 4, v23
    v_mul_u32_u24 v{vW0}, 3584, v21
    v_add_u32 v{vW0}, v{vW0}, v23
    v_add_u32 v{vW1}, 13312, v{vW0}
    v_lshlrev_b32 v23, 1, v21
    v_xor_b32 v23, v22, v23
    v_lshlrev_b32 v23, 4, v23
    v_lshl_add_u32 v{vWD}, v20, 10, v23
    v_lshlrev_b32 v{vL16}, 4, v0
    v_lshlrev_b32 v23, 4, v22
    v_lshl_add_u32 v26, v20, 10, v23
    v_and_b32 v6, 15, v0
    v_lshlrev_b32 v7, 3, v6
    s_lshl_b32 s{sT0}, s91, 16
    s_lshl_b32 s96, s90, 7
    s_add_u32 s{sT0}, s{sT0}, s96
    s_lshl_b32 s96, s{sW}, 13
    s_add_u32 s{sT1}, s{sT0}, s96
    s_and_b32 s96, s{sW}, 3
    s_lshl_b32 s97, s90, 2
    s_add_u32 s97, s97, s96
    s_lshl_b32 s47, s97, 7
    s_lshl_b32 s{sKS}, s97, 17
    s_lshl_b32 s{sKF}, s97, 8
    s_lshl_b32 s96, s91, 1
    s_lshr_b32 s97, s{sW}, 2
    s_add_u32 s96, s96, s97
    s_lshl_b32 s97, s96, 6
    s_sub_u32 s{sKS}, s{sKS}, s97
    s_add_u32 s{sKS}, s{sKS}, {WS_KV + 4032}
    s_lshl_b32 s96, s96, 2
    s_add_u32 s{sKF}, s{sKF}, s96
    s_add_u32 s{sKF}, s{sKF}, {WS_FKV}
    s_mul_i32 s96, s{sW}, 9216
    s_add_u32 m0, s96, {L_K}
    s_waitcnt lgkmcnt(0)
    s_mov_b64 {sr(SK,2)}, s[66:67]
    s_mov_b64 {sr(SV,2)}, s[68:69]
    s_mov_b64 {sr(SWS,2)}, s[88:89]
    s_mov_b64 {sr(SSH,2)}, s[70:71]
    s_mov_b64 {sr(SX,2)}, s[64:65]
    s_mov_b64 {sr(SWG,2)}, s[78:79]
    s_mov_b64 {sr(SWU,2)}, s[80:81]
    s_cmp_gt_u32 s{sW}, 1
    s_cbranch_scc1 L_halo_done
    s_cmp_eq_u32 s91, 0
    s_cbranch_scc1 L_halo_zero
    s_sub_u32 s{sT0}, s{sT0}, 8192
    s_cmp_eq_u32 s{sW}, 0
    s_cbranch_scc1 L_halo_k
    buffer_load_dwordx4 v26, {sr(SV,4)}, s{sT0} offen lds
    s_branch L_halo_done
    L_halo_k:
    buffer_load_dwordx4 v26, {sr(SK,4)}, s{sT0} offen lds
    s_branch L_halo_done
    L_halo_zero:
    v_mov_b32 v8, 0
    v_mov_b32 v9, 0
    v_mov_b32 v10, 0
    v_mov_b32 v11, 0
    v_add_u32 v12, m0, v{vL16}
    ds_write_b128 v12, v[8:11]
    L_halo_done:
    s_lshl_b32 s96, s{sW}, 10
    s_add_u32 m0, s96, {L_K + 1024}
    """)
    a(I(f"buffer_load_dwordx4 v26, {sr(SK,4)}, s{sT1} offen lds", vm="kv"))
    a(f"s_add_u32 m0, s96, {L_V + 1024}")
    a(I(f"buffer_load_dwordx4 v26, {sr(SV,4)}, s{sT1} offen lds", vm="kv"))
    a(I(f"buffer_load_dword v{vEP}, off, {sr(SWS,4)}, 0 offset:{WS_EPOCH} sc1", vm="kv"))
    a(I(f"buffer_load_dwordx2 {vr(vSHK,2)}, v7, {sr(SSH,4)}, s47 offen", vm="kv"))
    a(f"""
    s_mov_b64 {sr(SD,2)}, s[74:75]
    s_mov_b64 {sr(SWD,2)}, s[82:83]
    s_mov_b64 {sr(SOUT,2)}, s[84:85]
    s_lshl_b32 s96, s2, 1
    s_lshr_b32 s97, s{sW}, 2
    s_add_u32 s96, s96, s97
    s_lshl_b32 s96, s96, 12
    s_add_u32 s{SH}, s72, s96
    s_addc_u32 s{SH+1}, s73, 0
    s_mov_b32 s{sE}, s92
    s_lshl_b32 s{sM0X}, s{sW}, 11
    s_mul_i32 s{sWDB}, s{sW}, 229376
    s_lshl_b32 s96, s{sCT2}, 7
    s_add_u32 s{sWDB}, s{sWDB}, s96
    s_lshl_b32 s{sS0}, s{sW}, 12
    s_mov_b32 s{sOK}, 0
    s_mov_b32 s{sISG}, s95
    """)
    stamp("start")

    def chunk_dma(c):
        st = (c % 3) * STAGE
        return [
            [f"s_add_u32 s{sT0}, s{sROT}, {c}", f"s_and_b32 s{sT0}, s{sT0}, 7",
             f"s_mul_i32 s{sT1}, s{sT0}, 229376", f"s_add_u32 s{sT1}, s{sT1}, s{sWB}",
             f"s_lshl_b32 s{sT0}, s{sT0}, 7", f"s_add_u32 m0, s{sM0X}, {st}", f"s_add_u32 s{sT0}, s{sT0}, s{sXB}",
             I(f"buffer_load_dwordx4 v{vX0}, {sr(SX,4)}, s{sT0} offen lds", vm=f"c{c}")],
            I(f"buffer_load_dwordx4 v{vX1}, {sr(SX,4)}, s{sT0} offen offset:1024 lds", vm=f"c{c}"),
            [f"s_add_u32 m0, s{sM0X}, {st + 16384}",
             I(f"buffer_load_dwordx4 v{vW0}, {sr(SWG,4)}, s{sT1} offen lds", vm=f"c{c}")],
            I(f"buffer_load_dwordx4 v{vW1}, {sr(SWG,4)}, s{sT1} offen offset:1024 lds", vm=f"c{c}"),
            [f"s_add_u32 m0, s{sM0X}, {st + 32768}",
             I(f"buffer_load_dwordx4 v{vW0}, {sr(SWU,4)}, s{sT1} offen lds", vm=f"c{c}")],
            I(f"buffer_load_dwordx4 v{vW1}, {sr(SWU,4)}, s{sT1} offen offset:1024 lds", vm=f"c{c}"),
        ]
    def wd_dma(ks, slot):
        out = []
        for i in range(4):
            g = [f"s_add_u32 m0, s{sS0}, {slot}"] if i == 0 else []
            g.append(f"s_add_u32 s{sT3}, s{sWDB}, {ks * 32768 + i * 7168}")
            off = f" offset:{1024 * i}" if i else ""
            g.append(I(f"buffer_load_dwordx4 v{vWD}, {sr(SWD,4)}, s{sT3} offen{off} lds", vm=f"wd{ks}"))
            out.append(g)
        return out
    def wd_read(ks, imm):
        return [I(f"ds_read_b64_tr_b16 {vr(WDF(ks) + 4 * mt + 2 * h, 2)}, v{vTB + mt} offset:{imm + 1024 * h}", lg=f"wr{ks}")
                for mt in range(4) for h in range(2)]
    def tb_setup(t0):
        return f"""
        v_lshrrev_b32 v{t0}, 5, v0
        v_bfe_u32 v{t0+1}, v0, 4, 1
        v_bfe_u32 v{t0+2}, v0, 2, 2
        v_lshlrev_b32 v{t0}, 4, v{t0}
        v_lshl_add_u32 v{t0}, v{t0+1}, 2, v{t0}
        v_add_u32 v{t0}, v{t0}, v{t0+2}
        v_lshlrev_b32 v{t0}, 7, v{t0}
        v_lshrrev_b32 v{t0+2}, 1, v{t0+2}
        v_lshl_add_u32 v{t0+1}, v{t0+1}, 1, v{t0+2}
        v_lshl_add_u32 v{t0}, v{t0+1}, 5, v{t0}
        v_and_b32 v{t0+2}, 3, v0
        v_lshl_add_u32 v{t0}, v{t0+2}, 3, v{t0}
        s_add_u32 s{sT0}, s{sS0}, {L_S0}
        v_add_u32 v{vTB}, s{sT0}, v{t0}
        v_xor_b32 v{vTB+1}, 32, v{vTB}
        v_xor_b32 v{vTB+2}, 64, v{vTB}
        v_xor_b32 v{vTB+3}, 96, v{vTB}
        """
    def kv_setup(t0):
        return f"""
        v_lshrrev_b32 v{t0}, 4, v0
        v_bfe_u32 v{t0+1}, v0, 2, 2
        v_lshl_add_u32 v{t0+1}, v{t0}, 3, v{t0+1}
        v_and_b32 v{t0+2}, 3, v0
        v_lshlrev_b32 v{t0+2}, 3, v{t0+2}
        v_lshl_add_u32 v{t0+1}, v{t0+1}, 7, v{t0+2}
        s_lshr_b32 s{sT0}, s{sW}, 2
        s_lshl_b32 s{sT0}, s{sT0}, 12
        s_and_b32 s{sT1}, s{sW}, 3
        s_lshl_b32 s{sT1}, s{sT1}, 5
        s_add_u32 s{sT0}, s{sT0}, s{sT1}
        s_add_u32 s{sT0}, s{sT0}, {L_K + 512}
        v_add_u32 v{vKA}, s{sT0}, v{t0+1}
        v_and_b32 v{t0+1}, 15, v0
        v_sub_u32 v{t0}, 3, v{t0}
        v_lshlrev_b32 v{t0}, 4, v{t0}
        v_lshl_add_u32 v{vKS}, v{t0+1}, 13, v{t0}
        """
    def kv_read():
        return [I(f"ds_read_b64_tr_b16 {vr(KRAW + 6 * m + 2 * q, 2)}, v{vKA} offset:{9216 * m + 512 * q}", lg="kr")
                for m in range(2) for q in range(3)]
    def kv_math():
        uk, uv, us, uu, pk = KU, KU + 12, KU + 21, KU + 25, KU + 36
        un = lambda dst, src, hi: f"v_and_b32 v{dst}, 0xffff0000, v{src}" if hi else f"v_lshlrev_b32 v{dst}, 16, v{src}"
        o = [f"v_add_u32 v{vEP}, 1, v{vEP}", f"v_max_u32 v{vEP}, 1, v{vEP}"]
        o += [un(us + j, vSHK + j // 2, j & 1) for j in range(4)]
        o += [f"v_readfirstlane_b32 s{sEP}, v{vEP}"]
        o += [un(uk + i, KRAW + i // 2, i & 1) for i in range(12)]
        o += [f"v_mul_f32 v{uu+i}, v{uk+i}, v{us+3}" for i in range(9)]
        o += [un(uv + i, KRAW + 6 + (i + 3) // 2, (i + 3) & 1) for i in range(9)]
        for j in (2, 1, 0):
            o += [f"v_fmac_f32 v{uu+i}, v{uk+3+i-j}, v{us+j}" for i in range(9)]
        o += [f"v_mul_f32 v{uu+i}, v{uu+i}, v{uv+i}" for i in range(9)]
        o += [f"v_cvt_pk_bf16_f32 v{pk+e}, v{uu+7-2*e}, v{uu+6-2*e}" for e in range(4)]
        o += [f"v_cvt_pk_bf16_f32 v{pk+4+e}, v{uu+8-2*e}, v{uu+7-2*e}" for e in range(4)]
        o += [I(f"buffer_store_dwordx4 {vr(pk,4)}, v{vKS}, {sr(SWS,4)}, s{sKS} offen sc1", vm="ks"),
              [f"s_add_u32 s{sKS}, s{sKS}, 4096",
               I(f"buffer_store_dwordx4 {vr(pk+4,4)}, v{vKS}, {sr(SWS,4)}, s{sKS} offen sc1", vm="ks")]]
        return o
    def kv_flag():
        return I(f"buffer_store_dword v{vEP}, off, {sr(SWS,4)}, s{sKF} sc1", wvm="ks", vm="kfs")
    def c_dma(tmp):
        return [
            [f"s_and_b32 s{sT0}, s{sW}, 3", f"s_mul_i32 s{sT1}, s{sW}, 4160", f"s_lshl_b32 s{sT0}, s{sT0}, 2",
             f"s_add_u32 m0, s{sT1}, 64", f"s_add_u32 s{sT1}, s{sT0}, 4",
             I(f"buffer_load_dwordx4 v{vL16}, {sr(SH,4)}, s{sT1} offen lds", vm="cc")],
            I(f"buffer_load_dwordx4 v{vL16}, {sr(SH,4)}, s{sT1} offen offset:1024 lds", vm="cc"),
            I(f"buffer_load_dwordx4 v{vL16}, {sr(SH,4)}, s{sT1} offen offset:2048 lds", vm="cc"),
            I(f"buffer_load_dwordx4 v{vL16}, {sr(SH,4)}, s{sT1} offen offset:3072 lds", vm="cc"),
            [f"s_sub_u32 s{sT0}, s{sT0}, 60", f"v_and_b32 v{tmp}, 15, v0", f"v_lshl_add_u32 v{tmp}, v{tmp}, 2, s{sT0}",
             I(f"buffer_load_dword v{vHEAD}, v{tmp}, {sr(SH,4)}, 0 offen", vm="cc")],
            [f"s_lshl_b32 s{sT0}, s2, 2",
             I(f"buffer_load_dword v{vD}, off, {sr(SD,4)}, s{sT0}", vm="cc")],
        ]
    def kvflag_load(tmp, tag):
        return [f"s_lshr_b32 s{sT0}, s2, 3", f"s_lshl_b32 s{sT0}, s{sT0}, 8", f"s_add_u32 s{sT0}, s{sT0}, {WS_FKV}",
                f"v_lshlrev_b32 v{tmp}, 2, v0",
                I(f"buffer_load_dword v{vFL}, v{tmp}, {sr(SWS,4)}, s{sT0} offen sc1", vm=tag)]
    def kvflag_check():
        return [f"v_cmp_ne_u32 vcc, s{sEP}, v{vFL}", "s_cmp_lg_u64 vcc, 0"]
    def r_load(tag):
        return [f"s_lshl_b32 s{sT0}, s2, 14", f"s_add_u32 s{sT0}, s{sT0}, s{sM0X}", f"s_add_u32 s{sT0}, s{sT0}, {WS_KV}",
                I(f"buffer_load_dwordx4 {vr(vR,4)}, v{vL16}, {sr(SWS,4)}, s{sT0} offen sc1", vm=tag),
                I(f"buffer_load_dwordx4 {vr(vR+4,4)}, v{vL16}, {sr(SWS,4)}, s{sT0} offen offset:1024 sc1", vm=tag)]
    def out_off(v, t):
        return f"""
        s_lshl_b32 s{sT3}, s{sRT2}, 16
        s_lshl_b32 s{sT1}, s{sWC}, 14
        s_add_u32 s{sT3}, s{sT3}, s{sT1}
        s_lshl_b32 s{sT1}, s{sCT2}, 7
        s_add_u32 s{sT3}, s{sT3}, s{sT1}
        s_lshl_b32 s{sT1}, s{sWR}, 6
        s_add_u32 s{sT3}, s{sT3}, s{sT1}
        v_and_b32 v{v}, 15, v0
        v_and_b32 v{t}, 48, v0
        v_lshl_add_u32 v{v}, v{v}, 10, v{t}
        v_add_u32 v{v}, s{sT3}, v{v}
        """
    def stats_math(s1, s2, m, s, t):
        return f"""
        v_mul_f32 v{m}, {fx(1/512)}, v{s1}
        v_mul_f32 v{t}, v{m}, v{m}
        v_mul_f32 v{s}, {fx(1/512)}, v{s2}
        v_sub_f32 v{t}, v{s}, v{t}
        v_max_f32 v{t}, 0, v{t}
        v_cvt_pk_bf16_f32 v{t}, v{t}, v{m}
        v_and_b32 v{m}, 0xffff0000, v{t}
        v_lshlrev_b32 v{t}, 16, v{t}
        v_add_f32 v{t}, {fx(1e-5)}, v{t}
        v_cvt_pk_bf16_f32 v{t}, v{t}, v{t}
        v_lshlrev_b32 v{t}, 16, v{t}
        v_sqrt_f32 v{t}, v{t}
        v_cvt_pk_bf16_f32 v{t}, v{t}, v{t}
        v_lshlrev_b32 v{s}, 16, v{t}
        """

    AUX = "L_aux"; JOIN = "L_join"
    vq_pro = list(a.vq)
    a(f"s_cmp_eq_u32 s{sISG}, 0\ns_cbranch_scc1 {AUX}")
    a(chunk_dma(0))
    a("s_barrier")
    a(chunk_dma(1))
    a(f"""
    v_and_b32 v24, 31, v0
    v_lshrrev_b32 v25, 5, v0
    v_bfe_u32 v22, v0, 1, 3
    v_xor_b32 v22, v22, v25
    v_lshlrev_b32 v22, 4, v22
    v_lshl_add_u32 v22, v24, 7, v22
    s_lshl_b32 s{sT0}, s{sWR}, 13
    v_add_u32 v{vXB}, s{sT0}, v22
    v_xor_b32 v{vXB+1}, 32, v{vXB}
    v_xor_b32 v{vXB+2}, 64, v{vXB}
    v_xor_b32 v{vXB+3}, 96, v{vXB}
    v_add_u32 v{vXB+4}, {2*STAGE}, v{vXB}
    v_add_u32 v{vXB+5}, {2*STAGE}, v{vXB+1}
    v_add_u32 v{vXB+6}, {2*STAGE}, v{vXB+2}
    v_add_u32 v{vXB+7}, {2*STAGE}, v{vXB+3}
    v_bfe_u32 v23, v0, 2, 2
    v_lshl_add_u32 v24, v25, 3, v23
    v_lshlrev_b32 v24, 8, v24
    v_xor_b32 v23, s{sWC}, v23
    v_lshl_add_u32 v24, v23, 6, v24
    v_bfe_u32 v23, v0, 4, 1
    v_lshl_add_u32 v24, v23, 5, v24
    v_and_b32 v23, 3, v0
    v_lshl_add_u32 v24, v23, 3, v24
    v_add_u32 v{vWB}, 16384, v24
    v_add_u32 v{vWB+1}, {STAGE+16384}, v24
    v_add_u32 v{vWB+2}, {2*STAGE+16384}, v24
    """)
    a(tb_setup(22))
    a(kv_setup(22))
    a(I(wvm="kv", wlg="*"))
    a("s_barrier")
    stamp("K0")
    a(kv_read())
    KM = kv_math()
    if "kvpre" in opt:
        a(I(wlg="kr")); a(KM); KM = []

    def F(s): return FR + 16 * (s & 1)
    def reads(s):
        c, j = divmod(s, 4)
        st = c % 3
        xb = vXB + j + (4 if st == 2 else 0); im = STAGE if st == 1 else 0
        wb = vWB + st; wo = 4096 * j
        f = F(s); t = f"r{s}"
        return [I(f"ds_read_b64_tr_b16 {vr(f,2)}, v{wb} offset:{wo}", lg=t),
                I(f"ds_read_b64_tr_b16 {vr(f+2,2)}, v{wb} offset:{wo+1024}", lg=t),
                I(f"ds_read_b128 {vr(f+8,4)}, v{xb} offset:{im}", lg=t),
                I(f"ds_read_b64_tr_b16 {vr(f+4,2)}, v{wb} offset:{wo+16384}", lg=t),
                I(f"ds_read_b64_tr_b16 {vr(f+6,2)}, v{wb} offset:{wo+17408}", lg=t),
                I(f"ds_read_b128 {vr(f+12,4)}, v{xb} offset:{im+4096}", lg=t)]
    def mfmas(A, B, first=False):
        out = []
        for nt in range(2):
            for m in range(2):
                d = ACC + 32 * m + 16 * nt
                out.append(f"v_mfma_f32_32x32x16_bf16 {vr(d,16)}, {vr(A[m],4)}, {vr(B[nt],4)}, {'0' if first else vr(d,16)}")
        return out
    EQ, EB1 = 144, 148
    def ext_load():
        return [I(f"buffer_load_dwordx4 {vr(vEA,4)}, v4, {sr(SWS,4)}, s{sXB} offen sc1", vm="ex"),
                I(f"buffer_load_dwordx4 {vr(vEB,4)}, v{vL16}, {sr(SWS,4)}, s{sWB} offen sc1", vm="ex")]
    ext_check = [f"v_cmp_ne_u32 vcc, s{sEP}, v{vEA+3}", f"v_cmp_ne_u32 s[{sT0}:{sT1}], s{sEP}, v{vEB+3}",
                 f"s_or_b64 vcc, vcc, s[{sT0}:{sT1}]"]
    AP, BP, SS, vHO, TM = 18, 20, 22, 26, FR
    for s in range(33):
        c, j = divmod(s, 4)
        fill = []
        if j == 0 and s < 32:
            a(I(wvm=f"c{c}", wlg="*"))
            a("s_barrier")
            if c in (0, 4) or "allb" in opt: stamp(f"B{c}")
        if c <= 5: fill += chunk_dma(c + 2)[(0, 2, 3, 5)[j]:(2, 3, 5, 6)[j]]
        if s < 32: a(reads(s))
        if s == 0:
            a(fill); continue
        p = s - 1
        if p < 7 and KM: fill = mix(KM[len(KM) * p // 7:len(KM) * (p + 1) // 7], fill)
        if s == 9 and "nopf" not in opt:
            fill += [[f"v_lshlrev_b32 v24, 10, v0", I(f"buffer_load_dword v25, v24, {sr(SWD,4)}, s{sPF} offen", vm="pf")]]
        if s == 11 and "nopf" not in opt:
            fill += [[f"v_and_b32 v24, 7, v0", "v_lshlrev_b32 v24, 7, v24", f"s_and_b32 s{sT3}, s{sW}, 3", f"s_lshl_b32 s{sT3}, s{sT3}, 10",
                      I(f"buffer_load_dword v25, v24, {sr(SH,4)}, s{sT3} offen", vm="pf")]]
        if s == 17: fill += [kv_flag()]
        if s == 24: fill += [kvflag_load(24, "kf")]
        if c == 6: fill += (wd_dma(0, L_S0) + wd_dma(1, L_S1))[2 * j:2 * j + 2]
        if s == 27:
            fill += [f"""
            v_and_b32 v24, 31, v0
            v_lshrrev_b32 v25, 5, v0
            v_mul_u32_u24 v25, 28672, v25
            v_lshl_add_u32 v4, v24, 4, v25
            s_lshl_b32 s{sT0}, s{sCB}, 2
            s_add_u32 s{sT2}, s{sT0}, s{sWC}
            s_lshl_b32 s{sXB}, s{sT2}, 9
            s_add_u32 s{sXB}, s{sXB}, {WS_CS}
            s_lshl_b32 s{sT0}, s{sRB}, 1
            s_add_u32 s{sROT}, s{sT0}, s{sWR}
            s_lshl_b32 s{sWB}, s{sROT}, 10
            s_add_u32 s{sWB}, s{sWB}, {WS_RS}
            """]
        if s == 28:
            fill += ext_load() + [[I(wvm="kf")] + kvflag_check() + [f"s_cselect_b32 s{sOK}, 0, 1"] + r_load("R")]
        if s == 29: fill += c_dma(24)[:4] + [f"v_mov_b32 v{r}, 0" for r in (EQ, EQ + 1, EQ + 2, EQ + 3, EB1 + 3)]
        if s == 30: fill += c_dma(24)[4:] + [I(wvm="wd1")] + wd_read(0, 0) + wd_read(1, 32768)
        if s == 31: fill += [I(wlg="wr1")] + wd_dma(2, L_S0) + wd_dma(3, L_S1)
        if s == 32:
            a(I(wvm="ex"))
            a(ext_check)
            a(f"""
            s_cbranch_scc0 L_exok
            s_mov_b32 s{sCNT}, {SPIN}
            L_exloop:
            """)
            sv = list(a.vq); a(ext_load()); a(I(wvm="*")); a.vq = sv
            a(ext_check)
            a(f"""
            s_cbranch_scc0 L_exok
            s_sub_u32 s{sCNT}, s{sCNT}, 1
            s_cbranch_scc0 L_exloop
            L_exok:
            """)
            fill += f"""
            v_mov_b32 v{EB1}, v{vEB}
            v_mov_b32 v{EB1+1}, v{vEB+1}
            v_mov_b32 v{EB1+2}, v{vEB+2}
            v_mov_b32 v{vEA+3}, 0
            v_mov_b32 v{vEB+3}, 0
            v_permlane32_swap_b32 v{vEA}, v{EQ}
            v_permlane32_swap_b32 v{vEA+1}, v{EQ+1}
            v_permlane32_swap_b32 v{vEB}, v{EB1}
            v_permlane32_swap_b32 v{vEB+1}, v{EB1+1}
            v_permlane32_swap_b32 v{vEB+2}, v{EB1+2}
            """.strip().split("\n")
        a(I(wlg=f"r{p}"))
        f = F(p)
        a(mix(mfmas((f, f + 4), (f + 8, f + 12), p == 0), fill))
    fill = []
    for nt, sv_ in enumerate((vEB + 2, EB1 + 2)):
        fill += [f"v_rcp_f32 v{TM+nt}, v{sv_}", f"v_mul_f32 v{SS+nt}, v{sv_}, v{sv_}"]
    for nt in range(2):
        fill += [f"v_mul_f32 v{AP+nt}, {fx(-KC)}, v{TM+nt}", f"v_mul_f32 v{TM+nt}, v{TM+nt}, v{TM+nt}",
                 f"v_mul_f32 v{TM+nt}, {fx(0.044715)}, v{TM+nt}", f"v_mul_f32 v{BP+nt}, v{AP+nt}, v{TM+nt}"]
    fill += f"""
    v_bfe_u32 v{TM+8}, v0, 4, 1
    v_mul_u32_u24 v{TM+8}, 57344, v{TM+8}
    v_and_b32 v{TM+9}, 15, v0
    v_lshl_add_u32 v{TM+8}, v{TM+9}, 4, v{TM+8}
    v_lshrrev_b32 v{TM+9}, 5, v0
    v_lshl_add_u32 v{vHO}, v{TM+9}, 8, v{TM+8}
    s_mul_i32 s{sXB}, s{sROT}, {4*56*1024}
    s_lshl_b32 s{sT1}, s{sT2}, 10
    s_add_u32 s{sXB}, s{sXB}, s{sT1}
    s_add_u32 s{sXB}, s{sXB}, {WS_H}
    s_add_u32 s{sWB}, s{sXB}, {2*56*1024}
    s_lshl_b32 s{sT0}, s{sROT}, 8
    s_lshl_b32 s{sT2}, s{sT2}, 2
    s_add_u32 s{sT2}, s{sT2}, s{sT0}
    """.strip().split("\n")
    a(mix(mfmas((vEA, EQ), (vEB, EB1)), fill))
    a("s_barrier")
    stamp("B8")
    a(wd_dma(4, L_S2))
    def epi(G, U, nt, rr, pk):
        o = []
        t = {r: TM + 2 * i for i, r in enumerate(rr)}
        P = lambda x: vr(x, 2)
        s2 = f"op_sel:[0,{nt},{nt}] op_sel_hi:[1,{nt},{nt}]"
        if "nopk" in opt:
            e = [(r, i) for r in rr for i in range(2)]
            o += [f"v_mul_f32 v{t[r]+i}, v{G+r+i}, v{G+r+i}" for r, i in e]
            o += [f"v_fma_f32 v{t[r]+i}, v{t[r]+i}, v{BP+nt}, v{AP+nt}" for r, i in e]
            o += [f"v_mul_f32 v{t[r]+i}, v{t[r]+i}, v{G+r+i}" for r, i in e]
            o += [f"v_exp_f32 v{t[r]+i}, v{t[r]+i}" for r, i in e]
            o += [f"v_mul_f32 v{U+r+i}, v{U+r+i}, v{G+r+i}" for r, i in e]
            o += [f"v_fma_f32 v{t[r]+i}, v{t[r]+i}, v{SS+nt}, v{SS+nt}" for r, i in e]
            o += [f"v_rcp_f32 v{t[r]+i}, v{t[r]+i}" for r, i in e]
            o += [f"v_mul_f32 v{U+r+i}, v{U+r+i}, v{t[r]+i}" for r, i in e]
        else:
            o += [f"v_pk_mul_f32 {P(t[r])}, {P(G+r)}, {P(G+r)}" for r in rr]
            o += [f"v_pk_fma_f32 {P(t[r])}, {P(t[r])}, {P(BP)}, {P(AP)} {s2}" for r in rr]
            o += [f"v_pk_mul_f32 {P(t[r])}, {P(t[r])}, {P(G+r)}" for r in rr]
            o += mix([f"v_exp_f32 v{t[r]+i}, v{t[r]+i}" for r in rr for i in range(2)],
                     [f"v_pk_mul_f32 {P(U+r)}, {P(U+r)}, {P(G+r)}" for r in rr])
            o += [f"v_pk_fma_f32 {P(t[r])}, {P(t[r])}, {P(SS)}, {P(SS)} {s2}" for r in rr]
            o += [f"v_rcp_f32 v{t[r]+i}, v{t[r]+i}" for r in rr for i in range(2)]
            o += [f"v_pk_mul_f32 {P(U+r)}, {P(U+r)}, {P(t[r])}" for r in rr]
        o += [f"v_cvt_pk_bf16_f32 v{pk+i}, v{U+r}, v{U+r+1}" for i, r in enumerate(rr)]
        return o
    for nt in range(2):
        G = ACC + 16 * nt; U = ACC + 32 + 16 * nt
        for h in range(2):
            pk = TM + 8 + 4 * h
            seq = epi(G, U, nt, range(8 * h, 8 * h + 8, 2), pk)
            fill = []
            if nt == 1 and h == 0: fill = [I(wvm="wd3")] + wd_read(2, 0) + wd_read(3, 32768)
            if nt == 1 and h == 1: fill = [I(wlg="wr3")] + wd_dma(5, L_S0) + wd_dma(6, L_S1)
            a(mix(seq, fill))
            so = sXB if nt == 0 else sWB
            a(I(f"buffer_store_dwordx4 {vr(pk,4)}, v{vHO}, {sr(SWS,4)}, s{so} offen offset:{512*h} sc1", vm="hs"))
    a(f"s_branch {JOIN}")
    vq_join = list(a.vq)

    a(f"{AUX}:")
    a.vq, a.lq = list(vq_pro), []
    XS, WR_, CSA = 32, 64, 128
    a(f"""
    s_lshl_b32 s{sT0}, s{sRT2}, 16
    s_lshl_b32 s{sT1}, s{sW}, 13
    s_add_u32 s{sT0}, s{sT0}, s{sT1}
    """)
    for i in range(8):
        a(I(f"buffer_load_dwordx4 {vr(XS+4*i,4)}, v26, {sr(SX,4)}, s{sT0} offen offset:{128*i}", vm="xs"))
    a(f"""
    v_lshrrev_b32 v8, 4, v0
    v_mul_u32_u24 v8, 3584, v8
    v_lshl_add_u32 v8, v6, 4, v8
    s_cmp_ge_u32 s{sRB}, 7
    s_cselect_b32 s90, 7, 0
    s_sub_u32 s91, s{sRB}, s90
    s_mul_i32 s93, s{sE}, 7
    s_add_u32 s91, s91, s93
    s_mul_i32 s93, s{sW}, 229376
    s_lshl_b32 s94, s91, 8
    s_add_u32 s93, s93, s94
    s_cmp_ge_u32 s{sRB}, 14
    s_cselect_b32 s93, 0x40000000, s93
    s_cmp_eq_u32 s90, 0
    s_cbranch_scc1 L_csg
    """)
    sv = list(a.vq)
    for m, srd in ((1, SWU), (0, SWG)):
        a.vq = list(sv)
        if m == 0: a("L_csg:")
        for i in range(16):
            a(I(f"buffer_load_dwordx4 {vr(WR_+4*i,4)}, v8, {sr(srd,4)}, s93 offen", vm=f"w{i}"))
            if i < 15: a("s_add_u32 s93, s93, 14336")
        if m == 1: a("s_branch L_csld")
    a("L_csld:")
    a(tb_setup(22))
    a(kv_setup(22))
    a(I(wvm="kv", wlg="*"))
    a("s_barrier")
    stamp("K0", 1)
    a(kv_read()); a(I(wlg="kr")); a(kv_math())
    a(wd_dma(1, L_S1) + wd_dma(4, L_S2))
    a("v_mov_b32 v136, 0\nv_mov_b32 v137, 0")
    a(I(wvm="xs"))
    for d in range(32):
        a(f"""
        v_lshlrev_b32 v138, 16, v{XS+d}
        v_and_b32 v139, 0xffff0000, v{XS+d}
        v_add_f32 v136, v136, v138
        v_fmac_f32 v137, v138, v138
        v_add_f32 v136, v136, v139
        v_fmac_f32 v137, v139, v139
        """)
    for dpp in ("quad_perm:[1,0,3,2]", "quad_perm:[2,3,0,1]", "row_half_mirror"):
        a(f"v_add_f32_dpp v136, v136, v136 {dpp} row_mask:0xf bank_mask:0xf")
        a(f"v_add_f32_dpp v137, v137, v137 {dpp} row_mask:0xf bank_mask:0xf")
    a(stats_math(136, 137, 138, 34, 139))
    a(f"""
    v_xor_b32 v138, 0x80000000, v138
    v_lshrrev_b32 v33, 16, v138
    v_or_b32 v32, v138, v33
    v_mov_b32 v35, v{vEP}
    v_lshlrev_b32 v139, 1, v0
    s_lshl_b32 s{sT0}, s{sRT2}, 10
    s_lshl_b32 s{sT1}, s{sW}, 7
    s_add_u32 s{sT0}, s{sT0}, s{sT1}
    s_add_u32 s{sT0}, s{sT0}, {WS_RS}
    s_mov_b32 exec_lo, 0x01010101
    s_mov_b32 exec_hi, 0x01010101
    """)
    a(I(f"buffer_store_dwordx4 v[32:35], v139, {sr(SWS,4)}, s{sT0} offen sc1", vm="rs"))
    a("s_mov_b64 exec, -1")
    stamp("rs", 2)
    a(f"s_cmp_ge_u32 s{sRB}, 14\ns_cbranch_scc1 L_nocs")
    for i in range(16):
        a(I(wvm=f"w{i}"))
        for d in range(4):
            x = WR_ + 4 * i + d
            t = 136 + 2 * (d & 1) if i else CSA + 2 * d
            a(f"v_lshlrev_b32 v{t}, 16, v{x}\nv_and_b32 v{t+1}, 0xffff0000, v{x}")
            if i: a(f"v_pk_add_f32 {vr(CSA+2*d,2)}, {vr(CSA+2*d,2)}, {vr(t,2)}")
    a(f"""
    v_lshl_add_u32 v136, v0, 5, s{sM0X}
    ds_write_b128 v136, {vr(CSA,4)}
    ds_write_b128 v136, {vr(CSA+4,4)} offset:16
    v_lshrrev_b32 v137, 4, v0
    v_and_b32 v138, 15, v0
    v_lshlrev_b32 v137, 12, v137
    v_lshl_add_u32 v137, v138, 2, v137
    s_lshl_b32 s{sT0}, s{sW}, 6
    v_add_u32 v137, s{sT0}, v137
    s_waitcnt lgkmcnt(0)
    s_barrier
    """)
    for i in range(8): a(f"ds_read_b32 v{40+i}, v137 offset:{512*i}")
    a(f"""
    s_mul_i32 s90, s90, 4096
    s_lshl_b32 s91, s91, 11
    s_add_u32 s90, s90, s91
    s_lshl_b32 s91, s{sW}, 8
    s_add_u32 s90, s90, s91
    s_add_u32 s90, s90, {WS_CS}
    v_mov_b32 v34, 0
    s_waitcnt lgkmcnt(0)
    v_add_f32 v40, v40, v41
    v_add_f32 v42, v42, v43
    v_add_f32 v44, v44, v45
    v_add_f32 v46, v46, v47
    v_add_f32 v40, v40, v42
    v_add_f32 v44, v44, v46
    v_add_f32 v40, v40, v44
    v_mov_b32 v41, v40
    v_permlane16_swap_b32 v40, v41
    v_add_f32 v40, v40, v41
    v_mov_b32 v41, v40
    v_permlane32_swap_b32 v40, v41
    v_add_f32 v40, v40, v41
    v_cvt_pk_bf16_f32 v41, v40, v40
    v_lshlrev_b32 v41, 16, v41
    v_sub_f32 v42, v40, v41
    v_cvt_pk_bf16_f32 v32, v40, v42
    v_and_b32 v41, 0xffff0000, v32
    v_sub_f32 v42, v42, v41
    v_cvt_pk_bf16_f32 v33, v42, v34
    s_mov_b64 exec, 0xffff
    buffer_store_dwordx4 v[32:35], v{vL16}, {sr(SWS,4)}, s90 offen sc1
    s_mov_b64 exec, -1
    L_nocs:
    """)
    stamp("cs", 3)
    a(kv_flag())
    a("s_barrier")
    a(wd_dma(0, L_S0) + c_dma(24))
    a([I(wvm="*")] + wd_read(0, 0) + wd_read(1, 32768) + [I(wlg="*")] + wd_dma(2, L_S0) + wd_dma(3, L_S1))
    a([I(wvm="*")] + wd_read(2, 0) + wd_read(3, 32768) + [I(wlg="*")] + wd_dma(5, L_S0) + wd_dma(6, L_S1))
    stamp("wd", 4)
    a(f"""
    s_cmp_lg_u32 s2, 0
    s_cbranch_scc1 {JOIN}
    s_lshl_b32 s90, s{sW}, 10
    s_add_u32 s90, s90, {WS_FKV}
    s_mov_b32 s{sCNT}, {SPIN}
    L_eploop:
    buffer_load_dwordx4 v[32:35], v{vL16}, {sr(SWS,4)}, s90 offen sc1
    s_waitcnt vmcnt(0)
    v_xor_b32 v32, s{sEP}, v32
    v_xor_b32 v33, s{sEP}, v33
    v_xor_b32 v34, s{sEP}, v34
    v_xor_b32 v35, s{sEP}, v35
    v_or3_b32 v32, v32, v33, v34
    v_or_b32 v32, v32, v35
    v_cmp_ne_u32 vcc, 0, v32
    s_cmp_eq_u64 vcc, 0
    s_cbranch_scc1 L_epok
    s_sub_u32 s{sCNT}, s{sCNT}, 1
    s_cbranch_scc0 L_eploop
    L_epok:
    s_barrier
    s_cmp_lg_u32 s{sW}, 0
    s_cbranch_scc1 {JOIN}
    buffer_store_dword v{vEP}, off, {sr(SWS,4)}, 0 offset:{WS_EPOCH} sc1
    """)

    a(f"{JOIN}:")
    a.vq, a.lq = list(vq_join), []
    stamp("join")
    a(f"""
    s_cmp_eq_u32 s{sOK}, 1
    s_cbranch_scc1 L_kvok
    s_mov_b32 s{sCNT}, {SPIN}
    L_kvloop:
    """)
    sv = a.vq; a.vq = []
    a(kvflag_load(32, "kf")); a(I(wvm="*"))
    a(kvflag_check())
    a(f"""
    s_cbranch_scc0 L_kvgot
    s_sub_u32 s{sCNT}, s{sCNT}, 1
    s_cbranch_scc0 L_kvloop
    L_kvgot:
    """)
    a(r_load("R")); a(I(wvm="*"))
    a("L_kvok:")
    a.vq = sv
    CA, AF, BF = 32, 64, 96
    vRA, vRB, vZ = 18, 19, 112
    a(f"""
    s_lshr_b32 s{sT0}, s{sW}, 2
    s_mul_i32 s90, s{sT0}, {L_R[1]-L_R[0]}
    s_add_u32 s90, s90, {L_R[0]}
    s_bfe_u32 s{sT1}, s{sW}, 0x10001
    s_mul_i32 s{sT1}, s{sT1}, 4576
    s_add_u32 s{sT1}, s{sT1}, s90
    v_min_u32 v21, 27, v0
    v_lshl_add_u32 v21, v21, 4, s{sT1}
    s_lshl_b32 s{sT3}, s{sWR}, 11
    s_add_u32 s{sT1}, s{sT1}, s{sT3}
    v_add_u32 v20, s{sT1}, v{vL16}
    s_mul_i32 s{sT1}, s{sW}, 4160
    v_and_b32 v22, 15, v0
    v_lshl_add_u32 v23, v22, 2, s{sT1}
    v_mov_b32 v{vZ}, 0
    v_mov_b32 v{vZ+1}, 0
    v_mov_b32 v{vZ+2}, 0
    v_mov_b32 v{vZ+3}, 0
    """)
    a(I(wvm="R"))
    a(f"""
    ds_write_b128 v20, {vr(vR,4)}
    ds_write_b128 v20, {vr(vR+4,4)} offset:1024
    ds_write_b32 v23, v{vHEAD}
    ds_write_b128 v21, {vr(vZ,4)} offset:4096
    s_and_b32 s91, s{sW}, 3
    s_lshl_b32 s92, s91, 7
    v_and_b32 v24, 1, v0
    v_mul_u32_u24 v24, 4576, v24
    v_bfe_u32 v25, v0, 1, 3
    v_sub_u32 v25, 7, v25
    v_lshl_add_u32 v24, v25, 6, v24
    v_and_b32 v25, 48, v0
    v_add_u32 v24, v24, v25
    s_add_u32 s{sT1}, s90, s92
    v_add_u32 v{vRA}, s{sT1}, v24
    v_and_b32 v24, 3, v0
    v_mul_u32_u24 v24, 4160, v24
    v_bfe_u32 v26, v0, 2, 2
    v_lshl_add_u32 v24, v26, 4, v24
    v_add_u32 v24, v24, v25
    s_mul_i32 s{sT1}, s{sT0}, 16640
    s_add_u32 s{sT1}, s{sT1}, s92
    v_add_u32 v{vRB}, s{sT1}, v24
    s_waitcnt lgkmcnt(0)
    s_barrier
    """)
    stamp("c1")
    def aslot(rr, i): return AF + 4 * (i if rr == 0 else 7 - i)
    def aread(rr, i): return I(f"ds_read_b128 {vr(aslot(rr,i),4)}, v{vRA} offset:{64*(56-8*i+rr)}", lg=f"a{rr}{i}")
    order = [(0, p) for p in range(8)] + [(1, p) for p in range(7, -1, -1)]
    def bread(k):
        rr, p = order[k]
        return I(f"ds_read_b128 {vr(BF+4*(k%4),4)}, v{vRB} offset:{64*(8*p+rr)}", lg=f"b{k}")
    a(bread(0))
    for i in range(8): a(aread(0, i))
    a(bread(1)); a(bread(2))
    vST, vU, vOO, vREC = 20, 6, 4, 116
    for k, (rr, p) in enumerate(order):
        seq = []
        for j in range(p, 8):
            c = "0" if k == 0 else vr(CA + 4 * j, 4)
            seq.append(I(f"v_mfma_f32_16x16x32_bf16 {vr(CA+4*j,4)}, {vr(aslot(rr,j-p),4)}, {vr(BF+4*(k%4),4)}, {c}",
                         wlg=[f"a{rr}{j-p}", f"b{k}"]))
        a(seq)
        if k + 3 < 16: a(bread(k + 3))
        if rr == 0: a(aread(1, p))
        if k == 2:
            a(f"""
            s_lshl_b32 s{sT1}, s91, 10
            s_sub_u32 s{sT1}, s90, s{sT1}
            s_add_u32 s{sT1}, s{sT1}, {4576 + 4080}
            v_sub_u32 v25, s{sT1}, v{vL16}
            """)
            a(I(f"ds_read_b128 {vr(vU,4)}, v25", lg="su"))
        if k == 3:
            a(out_off(vOO, 24))
            a(I(f"buffer_load_dwordx4 {vr(vXT,4)}, v{vOO}, {sr(SX,4)}, 0 offen", vm="xt"))
            a(f"""
            s_lshl_b32 s{sT1}, s{sRT2}, 10
            s_lshl_b32 s{sT3}, s{sWC}, 8
            s_add_u32 s{sT1}, s{sT1}, s{sT3}
            s_add_u32 s{sT1}, s{sT1}, {WS_RS}
            v_lshlrev_b32 v24, 4, v22
            """)
            a(I(f"buffer_load_dwordx4 {vr(vREC,4)}, v24, {sr(SWS,4)}, s{sT1} offen sc1", vm="xt"))
        if k == 8:
            a(I(wvm="hs"))
            a(f"""
            s_cmp_eq_u32 s{sISG}, 0
            s_cbranch_scc1 L_nohf
            v_mov_b32 v24, s{sEP}
            s_add_u32 s{sT2}, s{sT2}, {WS_FH}
            buffer_store_dword v24, off, {sr(SWS,4)}, s{sT2} sc1
            L_nohf:
            """)
            stamp("hflag")
        if k in (9, 10): a(wd_read(k - 4, 32768 * (k - 9)))
        if k == 11: a([f"v_subrev_u32 v{vTB+m}, 32768, v{vTB+m}" for m in range(4)])
        if k == 12: a(wd_read(4, 0))
    a(f"""
    v_lshrrev_b32 v24, 4, v0
    v_xor_b32 v24, v0, v24
    s_add_u32 s{sT1}, s{sS0}, {L_S2}
    v_lshl_add_u32 v24, v24, 4, s{sT1}
    v_bfe_u32 v25, v0, 3, 2
    v_and_b32 v26, 3, v0
    v_lshlrev_b32 v26, 6, v26
    v_lshl_add_u32 v26, v25, 8, v26
    v_bfe_u32 v23, v0, 2, 1
    v_lshl_add_u32 v26, v23, 3, v26
    v_lshrrev_b32 v23, 5, v0
    v_lshl_add_u32 v26, v23, 10, v26
    v_lshl_add_u32 v26, v25, 4, v26
    s_lshl_b32 s{sT1}, s{sT0}, 14
    s_lshl_b32 s{sT3}, s{sWR}, 11
    s_add_u32 s{sT1}, s{sT1}, s{sT3}
    s_bfe_u32 s{sT3}, s{sW}, 0x10001
    s_lshl_b32 s{sT3}, s{sT3}, 15
    s_add_u32 s{sT1}, s{sT1}, s{sT3}
    s_add_u32 s{sT1}, s{sT1}, {L_S2}
    v_add_u32 v10, s{sT1}, v26
    v_xor_b32 v11, 16, v10
    v_xor_b32 v12, 32, v10
    v_xor_b32 v13, 48, v10
    """)
    a(I(wlg="*"))
    for j in range(8):
        a(f"ds_write_b128 v24, {vr(CA+4*j,4)} offset:{(j>>2)*32768+(j&3)*1024}")
    a(f"""
    s_mul_i32 s{sT1}, s{sW}, 28
    s_lshl_b32 s{sT3}, s{sRT2}, 8
    s_add_u32 s93, s{sT1}, s{sT3}
    s_add_u32 s93, s93, {WS_FH}
    v_min_u32 v23, 6, v0
    v_lshlrev_b32 v23, 2, v23
    """)
    a(I(f"buffer_load_dword v{vFL}, v23, {sr(SWS,4)}, s93 offen sc1", vm="hf"))
    a("s_waitcnt lgkmcnt(0)\ns_barrier")
    stamp("c3")
    PR = 64
    for k in range(4):
        for i in range(4):
            a(I(f"ds_read_b64 {vr(PR+8*k+2*i,2)}, v{10+i} offset:{4096*k}", lg=f"p{k}"))
    a(f"""
    s_lshl_b32 s{sT1}, s{sT0}, 4
    s_sub_u32 s{sT1}, 16, s{sT1}
    v_lshlrev_b32 v{vD}, s{sT1}, v{vD}
    v_and_b32 v{vD}, 0xffff0000, v{vD}
    """)
    for e in range(4):
        a(f"v_and_b32 v{CA+6-2*e}, 0xffff0000, v{vU+e}\nv_lshlrev_b32 v{CA+7-2*e}, 16, v{vU+e}")
    a(I(wlg="p0"))
    for e in range(8): a(f"v_fma_f32 v{CA+e}, v{CA+e}, v{vD}, v{PR+e}")
    for k in range(1, 4):
        a(I(wlg=f"p{k}"))
        if k == 3: a("s_barrier")
        for e in range(8): a(f"v_add_f32 v{CA+e}, v{CA+e}, v{PR+8*k+e}")
    for e in range(4): a(f"v_cvt_pk_bf16_f32 v{CA+8+e}, v{CA+2*e}, v{CA+2*e+1}")
    a(f"""
    s_lshl_b32 s{sT1}, s2, 13
    s_lshl_b32 s{sT3}, s{sW}, 10
    s_add_u32 s{sT1}, s{sT1}, s{sT3}
    s_add_u32 s{sT1}, s{sT1}, {WS_YT}
    """)
    a(I(f"buffer_store_dwordx4 {vr(CA+8,4)}, v{vL16}, {sr(SWS,4)}, s{sT1} offen sc1", vm="ys"))
    a(I(wvm="hf"))
    a(f"""
    v_and_b32 v{vST}, 0xffff0000, v{vREC}
    v_rcp_f32 v{vST+1}, v{vREC+2}
    v_cmp_ne_u32 vcc, s{sEP}, v{vFL}
    s_cmp_eq_u64 vcc, 0
    s_cbranch_scc1 L_hok
    s_mov_b32 s{sCNT}, {SPIN}
    L_hloop:
    buffer_load_dword v{vFL}, v23, {sr(SWS,4)}, s93 offen sc1
    s_waitcnt vmcnt(0)
    v_cmp_ne_u32 vcc, s{sEP}, v{vFL}
    s_cmp_eq_u64 vcc, 0
    s_cbranch_scc1 L_hok
    s_sub_u32 s{sCNT}, s{sCNT}, 1
    s_cbranch_scc0 L_hloop
    L_hok:
    """)
    stamp("hok")
    HB, ZA, NS = 64, 32, 20
    a(f"""
    s_mul_i32 s94, s{sRT2}, {4*56*1024}
    s_mul_i32 s{sT1}, s{sW}, 7168
    s_add_u32 s94, s94, s{sT1}
    s_add_u32 s94, s94, {WS_H}
    """)
    def hload(n):
        qd, ks = divmod(n, 7)
        o = qd * 57344 + (ks & ~3) * 1024
        g = [f"s_add_u32 s95, s94, {o}"] if ks in (0, 4) or n == NS else []
        g.append(I(f"buffer_load_dwordx4 {vr(HB+4*(n%NS),4)}, v{vL16}, {sr(SWS,4)}, s95 offen offset:{(ks&3)*1024} sc1", vm=f"h{n}"))
        return g
    for n in range(NS): a(hload(n))
    vZW, vZR, vYA, vYF = 10, 11, 12, 13
    a(f"""
    v_lshrrev_b32 v24, 4, v0
    v_xor_b32 v25, v24, v22
    v_lshlrev_b32 v25, 4, v25
    v_lshl_add_u32 v25, v22, 8, v25
    s_lshl_b32 s{sT1}, s{sW}, 14
    v_add_u32 v{vZW}, s{sT1}, v25
    s_lshl_b32 s{sT1}, s{sWR}, 3
    v_lshl_add_u32 v25, v24, 1, s{sT1}
    v_xor_b32 v25, v25, v22
    v_lshlrev_b32 v25, 4, v25
    v_lshl_add_u32 v25, v22, 8, v25
    s_lshl_b32 s{sT1}, s{sWC}, 12
    v_add_u32 v{vZR}, s{sT1}, v25
    v_lshrrev_b32 v25, 1, v0
    v_and_b32 v26, 1, v0
    v_lshlrev_b32 v26, 4, v26
    v_lshl_add_u32 v{vYA}, v25, 12, v26
    v_and_b32 v25, 31, v0
    v_lshlrev_b32 v{vYF}, 2, v25
    s_lshl_b32 s96, s{sCT2}, 1
    s_add_u32 s96, s96, s{sWR}
    s_lshl_b32 s97, s96, 17
    s_lshl_b32 s{sT1}, s{sRT2}, 7
    s_add_u32 s97, s97, s{sT1}
    s_lshl_b32 s{sT1}, s{sWC}, 5
    s_add_u32 s97, s97, s{sT1}
    s_add_u32 s97, s97, {WS_YT}
    s_lshl_b32 s96, s96, 7
    s_lshr_b32 s{sT1}, s{sRT2}, 3
    s_lshl_b32 s{sT1}, s{sT1}, 11
    s_add_u32 s96, s96, s{sT1}
    s_add_u32 s96, s96, {WS_FY}
    s_lshl_b32 s92, s91, 11
    s_lshl_b32 s{sT1}, s2, 3
    s_add_u32 s92, s92, s{sT1}
    s_lshl_b32 s{sT1}, s{sT0}, 2
    s_add_u32 s92, s92, s{sT1}
    s_add_u32 s92, s92, {WS_FY}
    v_mov_b32 v24, s{sEP}
    """)
    sYF, sYA = 96, 97
    def zwrite(qd):
        return [[f"v_xor_b32 v19, {64*mt}, v{vZW}",
                 I(f"ds_write_b128 v19, {vr(ZA+16*(qd&1)+4*mt,4)} offset:{4096*qd}", lg="zw")] for mt in range(4)]
    for n in range(28):
        qd, ks = divmod(n, 7)
        a(I(wvm=f"h{n}"))
        if n == 0:
            a(I(f"buffer_store_dword v24, off, {sr(SWS,4)}, s92 sc1", vm="yf"))
        seq = []
        for mt in range(4):
            d = ZA + 16 * (qd & 1) + 4 * mt
            c = "0" if ks == 0 else vr(d, 4)
            seq.append(f"v_mfma_f32_16x16x32_bf16 {vr(d,4)}, {vr(WDF(ks)+4*mt,4)}, {vr(HB+4*(n%NS),4)}, {c}")
        fill = []
        if qd >= 1 and ks == 2: fill = zwrite(qd - 1)
        a(mix(seq, fill))
        if n + NS < 28: a(hload(n + NS))
        if n == 13: a(I(f"buffer_load_dword v{vFL}, v{vYF}, {sr(SWS,4)}, s{sYF} offen sc1", vm="yp"))
    a(zwrite(3))
    stamp("g2")
    a(I(wvm="yp"))
    a(f"""
    v_cmp_ne_u32 vcc, s{sEP}, v{vFL}
    s_cmp_eq_u64 vcc, 0
    s_cbranch_scc1 L_yok
    s_mov_b32 s{sCNT}, {SPIN}
    L_yloop:
    buffer_load_dword v{vFL}, v{vYF}, {sr(SWS,4)}, s{sYF} offen sc1
    s_waitcnt vmcnt(0)
    v_cmp_ne_u32 vcc, s{sEP}, v{vFL}
    s_cmp_eq_u64 vcc, 0
    s_cbranch_scc1 L_yok
    s_sub_u32 s{sCNT}, s{sCNT}, 1
    s_cbranch_scc0 L_yloop
    L_yok:
    """)
    a(I(f"buffer_load_dwordx4 {vr(vU,4)}, v{vYA}, {sr(SWS,4)}, s{sYA} offen sc1", vm="yl"))
    XF, XN = 32, 40
    a(f"""
    s_add_u32 s{sT1}, s{sS0}, {L_S1}
    v_add_u32 v24, s{sT1}, v{vL16}
    v_lshrrev_b32 v25, 4, v0
    v_lshlrev_b32 v25, 8, v25
    v_lshl_add_u32 v25, v22, 3, v25
    v_add_u32 v25, s{sT1}, v25
    v_xor_b32 v19, 16, v{vZR}
    """)
    a(I(wlg="*"))
    a("s_barrier")
    stamp("bf")
    ZR = 64
    for k in range(8):
        base = (vZR, 19)
        if k == 4: a(f"v_add_u32 v{vZR}, 65536, v{vZR}\nv_add_u32 v19, 65536, v19")
        for h in range(2):
            a(I(f"ds_read_b128 {vr(ZR+8*k+4*h,4)}, v{base[h]} offset:{16384*(k&3)}", lg=f"z{k}"))
    for e in range(4):
        a(f"v_lshlrev_b32 v{XF+2*e}, 16, v{vXT+e}\nv_and_b32 v{XF+2*e+1}, 0xffff0000, v{vXT+e}")
    for e in range(8): a(f"v_add_f32 v{XN+e}, v{XF+e}, v{vST}")
    for e in range(8): a(f"v_mul_f32 v{XN+e}, v{XN+e}, v{vST+1}")
    a(I(wvm="yl"))
    a(I(f"ds_write_b128 v24, {vr(vU,4)}", lg="yw"))
    a(I(f"ds_read_b64_tr_b16 {vr(vU,2)}, v25", lg="yr"))
    a(I(f"ds_read_b64_tr_b16 {vr(vU+2,2)}, v25 offset:128", lg="yr"))
    for k in range(1, 8):
        a(I(wlg=f"z{k}"))
        for e in range(8): a(f"v_add_f32 v{ZR+e}, v{ZR+e}, v{ZR+8*k+e}")
    T = 48
    for e in range(8): a(f"v_mul_f32 v{T+e}, {fx(-1.4426950408889634)}, v{ZR+e}")
    for e in range(8): a(f"v_exp_f32 v{T+e}, v{T+e}")
    a(I(wlg="yr"))
    for e in range(4):
        a(f"v_lshlrev_b32 v{T+8+2*e}, 16, v{vU+e}\nv_and_b32 v{T+9+2*e}, 0xffff0000, v{vU+e}")
    for e in range(8): a(f"v_add_f32 v{T+e}, 1.0, v{T+e}")
    for e in range(8): a(f"v_rcp_f32 v{T+e}, v{T+e}")
    for e in range(8): a(f"v_mul_f32 v{XN+e}, v{XN+e}, v{T+8+e}")
    for e in range(8): a(f"v_mul_f32 v{XN+e}, v{XN+e}, v{ZR+e}")
    for e in range(8): a(f"v_fmac_f32 v{XF+e}, v{XN+e}, v{T+e}")
    for e in range(4): a(f"v_cvt_pk_bf16_f32 v{T+e}, v{XF+2*e}, v{XF+2*e+1}")
    a(f"buffer_store_dwordx4 {vr(T,4)}, v{vOO}, {sr(SOUT,4)}, 0 offen")
    if prof:
        stamp("end")
        a(f"""
        s_waitcnt lgkmcnt(0)
        s_lshl_b32 s{sT0}, s2, 3
        s_add_u32 s{sT0}, s{sT0}, s{sW}
        s_lshl_b32 s{sT0}, s{sT0}, 6
        s_add_u32 s{sT0}, s{sT0}, {WS_PROF}
        """)
        for i in range(len(stamps)):
            a(f"v_mov_b32 v1, s{PROFS[i]}")
            a(f"buffer_store_dword v1, off, {sr(SWS,4)}, s{sT0} offset:{4*i}")
    a(f"{END}:\ns_endpgm")
    txt = a.text(256, 512, 163840)
    return txt, stamps, a.nops

if __name__ == "__main__":
    txt, st, nops = gen(prof="prof" in sys.argv, opt=sys.argv[2:])
    open(sys.argv[1], "w").write(txt)
    print("lines", txt.count("\n"), "nops", nops, st)
    if st: open(sys.argv[1] + ".stamps", "w").write(" ".join(st))
```

```python
import sys, struct
from em import *

WS_EPOCH, WS_FKV, WS_RS, WS_CS, WS_FH, WS_FY = 0, 4096, 32768, 65536, 196608, 229376
WS_KV, WS_WT, WS_YT, WS_H, WS_PROF = 1 << 20, 3 << 20, 5 << 20, 8 << 20, 16 << 20
SX, SWG, SWU, SWD, SWS, SOUT, SH, SK, SV, SSH = 8, 12, 16, 20, 24, 28, 32, 36, 40, 44
sW, sXB, sWB, sT0, sT1 = 3, 4, 5, 6, 7
(sRT2, sCT2, sKEY, sWR, sWC, sTAG, sM0X, sOK, sISG, sCNT, sT2, sT3, sCSM, sCP, sRBL, sXCD, sCB, sD,
 sMO, _m1, _m2, _m3, sHI, sRB) = range(48, 72)
sA, sB, sC, sE = 98, 99, 100, 101
PROFS = list(range(72, 98, 2))
STAGE = 49152
L_WP = 147456
L_CV, CVCH = 98304, 12864
L_Z = (65536, 131072, 0, 32768)
L_Y = 98304
ACC, FR = 32, 96
def WDF(i): return 144 + 4 * i
vX0, vX1, vW0, vW1, vL16 = 1, 2, 3, 4, 5
vXB, vWB, vTAG = 6, 14, 17
vHE, vHP, vHO_ = 128, 132, 134
SPIN = 0x4000
KC = 2 * 0.7978845608028654 * 1.4426950408889634
def fx(f): return "0x%08x" % struct.unpack("<I", struct.pack("<f", f))[0]
def L(s): return [x.strip() for x in s.strip().split("\n") if x.strip()]

def gen(prof=False, opt=()):
    a = Em()
    def oi(k, d): return int(([o[len(k):] for o in opt if o.startswith(k)] + [d])[0])
    stamps = []
    def oi(k, d): return int(([o[len(k):] for o in opt if o.startswith(k)] + [d])[0])
    def stamp(name, slot=None):
        sel = [o[3:].split(",") for o in opt if o.startswith("st=")]
        dflt = "start,B0,B4,B8,join,c1,c3,hok,g2,bf,end".split(",")
        if not prof or (slot is None and name not in (sel[0] if sel else dflt)): return
        if slot is None:
            slot = len(stamps); stamps.append(name)
        a(f"{'s_memtime' if 'cyc' in opt else 's_memrealtime'} {sr(PROFS[slot], 2)}")
    def spin(name, load, check):
        if "nochk" in opt: return [f"L_{name}_ok:"]
        return ([f"s_mov_b32 s{sCNT}, {SPIN}", f"L_{name}_loop:"] + load + ["s_waitcnt vmcnt(0)"] + check +
                [f"s_cbranch_scc0 L_{name}_ok", f"s_sub_u32 s{sCNT}, s{sCNT}, 1", f"s_cbranch_scc0 L_{name}_loop",
                 f"L_{name}_ok:"])
    def one(txt, vm=None, wvm=None):
        if "all" in opt: return [I(txt, vm=vm, wvm=wvm)]
        return [I("s_mov_b64 exec, 1", wvm=wvm), I(txt, vm=vm), "s_mov_b64 exec, -1"]
    def ne(v): return [f"v_cmp_ne_u32 vcc, s{sTAG}, v{v}", "s_cmp_lg_u64 vcc, 0"]
    END, AUX, JOIN = "L_end", "L_aux", "L_join"
    a(f"""
    s_cmp_ge_u32 s2, 256
    s_cbranch_scc1 {END}
    s_load_dwordx16 s[72:87], s[0:1], 0
    s_load_dwordx8 s[88:95], s[0:1], 64
    s_load_dwordx2 s[96:97], s[0:1], 96
    v_lshrrev_b32 v1, 6, v0
    v_and_b32 v0, 63, v0
    v_readfirstlane_b32 s{sW}, v1
    s_and_b32 s{sXCD}, s2, 7
    s_lshr_b32 s{sCP}, s2, 3
    s_and_b32 s{sE}, s{sXCD}, 1
    s_lshr_b32 s{sA}, s{sXCD}, 1
    s_and_b32 s{sRBL}, s{sCP}, 3
    s_lshr_b32 s{sISG}, s{sCP}, 2
    s_lshl_b32 s{sRB}, s{sA}, 2
    s_add_u32 s{sRB}, s{sRB}, s{sRBL}
    s_lshl_b32 s{sRT2}, s{sRB}, 1
    s_add_u32 s{sRT2}, s{sRT2}, s{sE}
    s_add_u32 s{sCT2}, s{sISG}, 7
    s_and_b32 s{sCT2}, s{sCT2}, 7
    s_mul_i32 s{sCB}, s{sE}, 7
    s_add_u32 s{sCB}, s{sCB}, s{sCT2}
    s_xor_b32 s{sKEY}, s{sRBL}, s{sISG}
    s_and_b32 s{sKEY}, s{sKEY}, 3
    s_lshl_b32 s{sB}, s{sA}, 2
    s_and_b32 s{sB}, s{sB}, 4
    s_or_b32 s{sKEY}, s{sKEY}, s{sB}
    s_lshl_b32 s{sB}, s{sXCD}, 5
    s_add_u32 s{sCP}, s{sCP}, s{sB}
    s_and_b32 s{sWR}, s{sW}, 1
    s_lshr_b32 s{sWC}, s{sW}, 1
    s_lshr_b32 s{sB}, s{sW}, 2
    s_and_b32 s{sC}, s{sW}, 3
    s_lshl_b32 s{sXB}, s{sRB}, 17
    s_lshl_b32 s{sT0}, s{sB}, 16
    s_add_u32 s{sXB}, s{sXB}, s{sT0}
    s_lshl_b32 s{sT0}, s{sC}, 10
    s_add_u32 s{sXB}, s{sXB}, s{sT0}
    s_mul_i32 s{sWB}, s{sW}, 28672
    s_lshl_b32 s{sT0}, s{sCB}, 8
    s_add_u32 s{sWB}, s{sWB}, s{sT0}
    s_lshl_b32 s{sM0X}, s{sW}, 11
    s_and_b32 s{sT0}, s{sKEY}, 1
    s_and_b32 s{sT1}, s{sA}, 2
    s_or_b32 s{sT0}, s{sT0}, s{sT1}
    s_add_u32 s{sCSM}, s{sWR}, 1
    s_cmp_eq_u32 s{sT0}, s{sWC}
    s_cselect_b32 s{sCSM}, s{sCSM}, 0
    s_lshr_b32 s{sHI}, s{sCT2}, 2
    s_mov_b32 s{sOK}, 0
    """)
    for s, n in ((SX, 1 << 21), (SWG, 1835008), (SWU, 1835008), (SWD, 1835008), (SWS, 1 << 25), (SOUT, 1 << 21),
                 (SH, 4096), (SK, 1 << 21), (SV, 1 << 21), (SSH, 4096)):
        a(f"s_mov_b32 s{s+2}, {n}")
        a(f"s_mov_b32 s{s+3}, 0x20000")
    a(f"""
    v_lshrrev_b32 v20, 3, v0
    v_lshrrev_b32 v21, 4, v0
    v_and_b32 v22, 7, v0
    v_xor_b32 v23, v22, v21
    v_lshlrev_b32 v23, 4, v23
    v_lshl_add_u32 v{vX0}, v20, 12, v23
    v_xor_b32 v{vX1}, 64, v{vX0}
    v_add_u32 v{vX1}, 31744, v{vX1}
    v_bfe_u32 v24, v0, 2, 2
    v_and_b32 v25, 3, v0
    v_xor_b32 v23, v24, v21
    v_lshlrev_b32 v23, 6, v23
    v_lshl_add_u32 v23, v25, 4, v23
    v_mul_u32_u24 v{vW0}, 3584, v21
    v_add_u32 v{vW0}, v{vW0}, v23
    v_add_u32 v{vW1}, 13312, v{vW0}
    v_lshlrev_b32 v{vL16}, 4, v0
    s_lshl_b32 s{sT2}, s{sCP}, 1
    s_add_u32 s{sT2}, s{sT2}, s{sB}
    s_lshl_b32 s{sT2}, s{sT2}, 12
    s_lshl_b32 s{sT3}, s{sCP}, 2
    s_waitcnt lgkmcnt(0)
    s_mov_b64 {sr(SX,2)}, s[72:73]
    s_mov_b64 {sr(SWG,2)}, s[86:87]
    s_mov_b64 {sr(SWU,2)}, s[88:89]
    s_mov_b64 {sr(SK,2)}, s[74:75]
    s_mov_b64 {sr(SV,2)}, s[76:77]
    s_mov_b64 {sr(SWS,2)}, s[96:97]
    s_mov_b64 {sr(SSH,2)}, s[78:79]
    s_mov_b64 {sr(SWD,2)}, s[90:91]
    s_mov_b64 {sr(SOUT,2)}, s[92:93]
    s_add_u32 s{SH}, s80, s{sT2}
    s_addc_u32 s{SH+1}, s81, 0
    s_load_dword s{sD}, s[82:83], s{sT3}
    """)
    if prof: a("s_nop 4")
    stamp("start")

    def chunk_dma(c):
        st = (c % 3) * STAGE
        return [
            [f"s_xor_b32 s{sT0}, s{sKEY}, {c}",
             f"s_mul_i32 s{sT1}, s{sT0}, 229376", f"s_add_u32 s{sT1}, s{sT1}, s{sWB}",
             f"s_lshl_b32 s{sT0}, s{sT0}, 7", f"s_add_u32 m0, s{sM0X}, {st}", f"s_add_u32 s{sT0}, s{sT0}, s{sXB}",
             I(f"buffer_load_dwordx4 v{vX0}, {sr(SX,4)}, s{sT0} offen lds", vm=f"c{c}")],
            I(f"buffer_load_dwordx4 v{vX1}, {sr(SX,4)}, s{sT0} offen offset:1024 lds", vm=f"c{c}"),
            [f"s_add_u32 m0, s{sM0X}, {st + 16384}",
             I(f"buffer_load_dwordx4 v{vW0}, {sr(SWG,4)}, s{sT1} offen lds", vm=f"c{c}")],
            I(f"buffer_load_dwordx4 v{vW1}, {sr(SWG,4)}, s{sT1} offen offset:1024 lds", vm=f"c{c}"),
            [f"s_add_u32 m0, s{sM0X}, {st + 32768}",
             I(f"buffer_load_dwordx4 v{vW0}, {sr(SWU,4)}, s{sT1} offen lds", vm=f"c{c}")],
            I(f"buffer_load_dwordx4 v{vW1}, {sr(SWU,4)}, s{sT1} offen offset:1024 lds", vm=f"c{c}"),
        ]
    XR, S1, S2 = 200, 204, 205
    def row_load():
        return [I(f"buffer_load_dword v{vTAG}, off, {sr(SWS,4)}, 0 offset:{WS_EPOCH} sc1", vm="ep"),
                [f"s_lshl_b32 s{sA}, s{sRT2}, 3", f"s_add_u32 s{sA}, s{sA}, s{sISG}", f"s_lshl_b32 s{sA}, s{sA}, 3",
                 f"s_add_u32 s{sA}, s{sA}, s{sW}", f"s_lshl_b32 s{sT2}, s{sA}, 10",
                 I(f"buffer_load_dwordx4 {vr(XR,4)}, v{vL16}, {sr(SX,4)}, s{sT2} offen", vm="ep")]]
    tag_math = L(f"""
        v_add_u32 v{vTAG}, 1, v{vTAG}
        v_and_b32 v{vTAG}, 0x0fff3fff, v{vTAG}
        v_or_b32 v{vTAG}, 0x20000000, v{vTAG}
        s_mov_b32 s{sB}, 0x3f803f80
        v_readfirstlane_b32 s{sTAG}, v{vTAG}
        """)
    def row_math():
        o = []
        for d in range(4):
            o += [f"v_dot2_f32_bf16 v{S1}, v{XR+d}, s{sB}, {'0' if d == 0 else f'v{S1}'}",
                  f"v_dot2_f32_bf16 v{S2}, v{XR+d}, v{XR+d}, {'0' if d == 0 else f'v{S2}'}"]
        o += [f"v_mov_b32 v{XR+1}, v{vTAG}", f"v_permlane32_swap_b32 v{S1}, v{S2}", f"v_add_f32 v{S1}, v{S1}, v{S2}"]
        o += [f"v_add_f32_dpp v{S1}, v{S1}, v{S1} {d} row_mask:0xf bank_mask:0xf"
              for d in ("quad_perm:[1,0,3,2]", "quad_perm:[2,3,0,1]", "row_half_mirror", "row_mirror")]
        o += [f"v_add_f32_dpp v{S1}, v{S1}, v{S1} row_bcast:15 row_mask:0xa bank_mask:0xf"]
        o += L(f"""
        v_mul_f32 v{S1}, {fx(1/512)}, v{S1}
        v_readlane_b32 s{sB}, v{S1}, 31
        v_readlane_b32 s{sC}, v{S1}, 63
        v_mul_f32 v{S1}, s{sB}, s{sB}
        v_sub_f32 v{S1}, s{sC}, v{S1}
        v_max_f32 v{S1}, 0, v{S1}
        v_cvt_pk_bf16_f32 v{S1}, v{S1}, v{S1}
        v_lshlrev_b32 v{S1}, 16, v{S1}
        v_add_f32 v{S1}, {fx(1e-5)}, v{S1}
        v_cvt_pk_bf16_f32 v{S1}, v{S1}, v{S1}
        v_lshlrev_b32 v{S1}, 16, v{S1}
        v_sqrt_f32 v{S1}, v{S1}
        s_lshl_b32 s{sA}, s{sA}, 3
        v_cvt_pk_bf16_f32 v{XR}, v{S1}, -s{sB}
        s_add_u32 s{sA}, s{sA}, {WS_RS}
        """)
        if "nors" not in opt: o += [one(f"buffer_store_dwordx2 {vr(XR,2)}, off, {sr(SWS,4)}, s{sA} sc1", vm="rs", wvm="wps")]
        return o
    def h_load(t):
        return [[f"s_and_b32 s{sT2}, s{sW}, 3", f"s_lshl_b32 s{sT2}, s{sT2}, 10",
                 I(f"buffer_load_dwordx4 {vr(vHE,4)}, v{vL16}, {sr(SH,4)}, s{sT2} offen", vm="hl")],
                [f"s_and_b32 s{sT2}, s{sW}, 3", f"s_lshl_b32 s{sT2}, s{sT2}, 10",
                 f"s_sub_u32 s{sT2}, s{sT2}, 4", f"v_add_u32 v{t}, s{sT2}, v{vL16}",
                 I(f"buffer_load_dword v{vHP}, v{t}, {sr(SH,4)}, 0 offen", vm="hl")]]
    vZ4 = 140
    h_math = ([I(f"v_alignbit_b32 v{vHO_}, v{vHE}, v{vHP}, 16", wvm="hl")] +
              [f"v_alignbit_b32 v{vHO_+d}, v{vHE+d}, v{vHE+d-1}, 16" for d in range(1, 4)] +
              [f"v_mov_b32 v{vZ4+d}, 0" for d in range(4)] + [L(f"""
        s_lshr_b32 s{sT2}, s{sW}, 2
        s_mul_i32 s{sT2}, s{sT2}, {CVCH}
        s_add_u32 s{sT2}, s{sT2}, {L_CV}
        v_min_u32 v{vHP+1}, 35, v0
        v_lshlrev_b32 v{vHP+1}, 4, v{vHP+1}
        v_lshrrev_b32 v{vHP}, 5, v0
        v_lshl_add_u32 v{vHP+1}, v{vHP}, 12, v{vHP+1}
        v_add_u32 v{vHP+1}, s{sT2}, v{vHP+1}
        s_and_b32 s{sT3}, s{sW}, 3
        s_lshl_b32 s{sT3}, s{sT3}, 10
        s_add_u32 s{sT2}, s{sT2}, s{sT3}
        v_add_u32 v{vHP}, s{sT2}, v{vL16}
        """)])
    h_write = [I(f"ds_write_b128 v{vHP}, {vr(vHE,4)} offset:4608", lg="hw"),
               I(f"ds_write_b128 v{vHP}, {vr(vHO_,4)} offset:{4608+4160}", lg="hw"),
               I(f"ds_write_b128 v{vHP+1}, {vr(vZ4,4)} offset:4096", lg="hw")]
    vFL, vFA = 18, 19
    def wf_addr_(sE, vFA, vFL): return L(f"""
        s_lshl_b32 s{sT2}, s{sCT2}, 3
        s_add_u32 s{sT2}, s{sT2}, s{sW}
        s_and_b32 s{sE}, s{sCT2}, 6
        s_lshl_b32 s{sE}, s{sE}, 1
        s_add_u32 s{sE}, s{sE}, s{sWC}
        s_lshl_b32 s{sE}, s{sE}, 1
        s_and_b32 s{sT3}, s{sCT2}, 1
        s_add_u32 s{sE}, s{sE}, s{sT3}
        s_lshl_b32 s{sE}, s{sE}, 4
        s_add_u32 s{sE}, s{sE}, s{sWR}
        s_lshl_b32 s{sE}, s{sE}, 5
        s_add_u32 s{sE}, s{sE}, {WS_RS + 64 + 4}
        s_mul_i32 s{sT2}, s{sT2}, 28672
        s_mul_i32 s{sT3}, s{sHI}, 12288
        s_add_u32 s{sT2}, s{sT2}, s{sT3}
        s_add_u32 s{sT2}, s{sT2}, {WS_WT}
        s_lshl_b32 s{sT3}, s{sRBL}, 10
        s_add_u32 s{sMO}, s{sT2}, s{sT3}
        s_xor_b32 s{sMO+1}, s{sMO}, 1024
        s_xor_b32 s{sMO+2}, s{sMO}, 2048
        s_xor_b32 s{sMO+3}, s{sMO}, 3072
        v_min_u32 v{vFA}, 27, v0
        v_and_b32 v{vFL}, 28, v{vFA}
        v_add_u32 v{vFA}, v{vFA}, v{vFL}
        v_lshlrev_b32 v{vFA}, 3, v{vFA}
        """)
    wf_addr = wf_addr_(sE, vFA, vFL)
    wf_ld = f"buffer_load_dword v{vFL}, v{vFA}, {sr(SWS,4)}, s{sE} offen sc1"
    def wd_loads():
        o = []
        for i in range(28):
            ks, mt = divmod(i, 4)
            g = []
            if i == 16:
                g += [f"s_mul_i32 s{sT3}, s{sHI}, 28672"] + [f"s_sub_u32 s{sMO+m}, s{sMO+m}, s{sT3}" for m in range(4)]
            g += [f"s_add_u32 s{sT3}, s{sMO+mt}, {4096*ks}",
                  I(f"buffer_load_dwordx4 {vr(WDF(i),4)}, v{vL16}, {sr(SWS,4)}, s{sT3} offen sc1", vm=f"wd{ks}")]
            o.append(g)
        return o
    vKA, vKL = 29, 30
    kf_addr = [f"v_and_b32 v{vKA}, 31, v0", f"v_lshlrev_b32 v{vKA}, 2, v{vKA}", f"s_lshl_b32 s{sC}, s{sXCD}, 7",
               f"s_add_u32 s{sC}, s{sC}, {WS_FKV}"]
    kf_ld = f"buffer_load_dword v{vKL}, v{vKA}, {sr(SWS,4)}, s{sC} offen sc1"
    def r_dma(t):
        return L(f"""
        s_lshr_b32 s{sT2}, s{sW}, 2
        s_mul_i32 s{sT3}, s{sT2}, {CVCH - 4096}
        s_lshl_b32 s{sT2}, s{sT2}, 4
        v_lshl_add_u32 v{t}, v0, 5, s{sT2}
        s_lshl_b32 s{sT2}, s{sW}, 10
        s_add_u32 s{sT3}, s{sT3}, s{sT2}
        s_add_u32 m0, s{sT3}, {L_CV}
        s_and_b32 s{sT2}, s{sM0X}, 0x1800
        s_lshl_b32 s{sT3}, s{sCP}, 13
        s_add_u32 s{sT2}, s{sT2}, s{sT3}
        s_add_u32 s{sT2}, s{sT2}, {WS_KV}
        """) + [I(f"buffer_load_dwordx4 v{t}, {sr(SWS,4)}, s{sT2} offen sc1 lds", vm="R")]

    WL = wd_loads()
    wsched = {17: 1, 18: 1, 19: 1, 21: 1, 22: 1, 23: 1, 24: 1, 25: 2, 26: 2, 27: 2, 29: 1, 30: 2, 31: 2}
    wsched = {k: n for k, n in wsched.items() if k >= oi("pw", 22) + 3}
    wepi = [int(x) for x in str(oi("we", 3320)).zfill(4)]
    NPRE = sum(wsched.values()) + sum(wepi)
    vq_pro = list(a.vq)
    a(f"s_cmp_eq_u32 s{sISG}, 0\ns_cbranch_scc1 {AUX}")
    if "nogemm" in opt: a(f"s_branch {END}")
    a(chunk_dma(0))
    WP, vWPA, vWPS, vWPL, CSA, CS1 = 208, 212, 213, 214, 240, 236
    sWPS, sWPF, sWPM = SSH, SSH + 1, SSH + 3
    a(f"""
    v_and_b32 v23, 3, v20
    v_lshrrev_b32 v26, 5, v0
    v_lshl_add_u32 v23, v26, 3, v23
    v_lshlrev_b32 v26, 4, v22
    v_lshl_add_u32 v{vWPL}, v23, 10, v26
    s_mov_b32 s{sE}, s{sXCD}
    s_lshl_b32 s{sT2}, s{sRBL}, 1
    s_add_u32 s{sT2}, s{sT2}, s{sB}
    s_mul_i32 s{sT3}, s{sT2}, 7
    s_add_u32 s{sT3}, s{sT3}, s{sCT2}
    s_mul_i32 s{sWPS}, s{sE}, 56
    s_add_u32 s{sWPS}, s{sWPS}, s{sT3}
    s_lshl_b32 s{sWPS}, s{sWPS}, 12
    s_lshl_b32 s{sT1}, s{sC}, 8
    s_add_u32 s{sWPS}, s{sWPS}, s{sT1}
    s_add_u32 s{sWPS}, s{sWPS}, {WS_WT}
    s_lshl_b32 s{sT3}, s{sT3}, 15
    s_lshl_b32 s{sT1}, s{sWR}, 12
    s_add_u32 s{sT3}, s{sT3}, s{sT1}
    s_lshl_b32 s{sT1}, s{sWC}, 14
    s_and_b32 s{sT1}, s{sT1}, 0x4000
    s_add_u32 s{sT3}, s{sT3}, s{sT1}
    s_lshl_b32 s{sT1}, s{sE}, 7
    s_add_u32 s{sWPF}, s{sT3}, s{sT1}
    s_lshl_b32 s{sT2}, s{sW}, 10
    s_add_u32 s{sWPM}, s{sT2}, {L_WP}
    s_barrier
    """)
    wp_load = [f"s_mov_b32 m0, s{sWPM}", I(f"buffer_load_dwordx4 v{vWPL}, {sr(SWD,4)}, s{sWPF} offen lds", vm="wpl")]
    SWL, SWR, SRS, SPW, SHL, SPF, SRL = oi("wl", 4), oi("wr", 12), oi("rs", 17), oi("pw", 22), oi("hl", 13), oi("pf", 0), oi("rl", -1)
    SKF, SRD = oi("kf", 24), oi("rd", 29)
    if SWL < 0: a(wp_load)
    if oi("pm", 1) == 1:
        sel = f"""
        s_cmp_lg_u32 s{sW}, 7
        s_cbranch_scc1 L_nopf
        s_add_u32 s{sT3}, s{sISG}, 3
        s_cmp_gt_u32 s{sISG}, 4
        s_cselect_b32 s{sT3}, s{sISG}, s{sT3}
        """
        pick = f"s_cmp_gt_u32 s{sISG}, 4"
    else:
        sel = f"""
        s_cmp_lt_u32 s{sW}, 6
        s_cbranch_scc1 L_nopf
        s_mov_b32 s{sT3}, s{sISG}
        """
        pick = f"s_cmp_eq_u32 s{sW}, 6"
    pf_load = L(sel + f"""
        s_lshl_b32 s{sT2}, s{sRBL}, 3
        s_add_u32 s{sT2}, s{sT2}, s{sT3}
        s_lshl_b32 s{sT2}, s{sT2}, 16
        s_xor_b32 s{sT3}, s{sXCD}, s{sT3}
        s_lshl_b32 s{sT3}, s{sT3}, 7
        s_add_u32 s{sT2}, s{sT2}, s{sT3}
        v_lshlrev_b32 v{WDF(0)}, 10, v0
        {pick}
        s_cbranch_scc1 L_pfk
        buffer_load_dword v{WDF(0)}, v{WDF(0)}, {sr(SV,4)}, s{sT2} offen
        s_branch L_nopf
        L_pfk:
        buffer_load_dword v{WDF(0)}, v{WDF(0)}, {sr(SK,4)}, s{sT2} offen
        L_nopf:
        """)
    a(f"""
    v_lshlrev_b32 v23, 7, v24
    v_lshl_add_u32 v23, v21, 5, v23
    v_lshl_add_u32 v23, v25, 3, v23
    v_add_u32 v{vWPA}, s{sWPM}, v23
    """)
    a(row_load())
    a(chunk_dma(1))
    if SPF < 0 and "nopf" not in opt: a(pf_load)
    a(f"""
    v_and_b32 v23, 15, v0
    v_lshlrev_b32 v23, 4, v23
    v_lshl_add_u32 v{vWPS}, v21, 10, v23
    v_and_b32 v24, 31, v0
    v_lshrrev_b32 v25, 5, v0
    v_bfe_u32 v22, v0, 1, 3
    v_xor_b32 v22, v22, v25
    v_lshlrev_b32 v22, 4, v22
    v_lshl_add_u32 v22, v24, 7, v22
    s_lshl_b32 s{sT0}, s{sWR}, 13
    v_add_u32 v{vXB}, s{sT0}, v22
    v_xor_b32 v{vXB+1}, 32, v{vXB}
    v_xor_b32 v{vXB+2}, 64, v{vXB}
    v_xor_b32 v{vXB+3}, 96, v{vXB}
    v_add_u32 v{vXB+4}, {2*STAGE}, v{vXB}
    v_add_u32 v{vXB+5}, {2*STAGE}, v{vXB+1}
    v_add_u32 v{vXB+6}, {2*STAGE}, v{vXB+2}
    v_add_u32 v{vXB+7}, {2*STAGE}, v{vXB+3}
    v_bfe_u32 v23, v0, 2, 2
    v_lshl_add_u32 v24, v25, 3, v23
    v_lshlrev_b32 v24, 8, v24
    v_xor_b32 v23, s{sWC}, v23
    v_lshl_add_u32 v24, v23, 6, v24
    v_bfe_u32 v23, v0, 4, 1
    v_lshl_add_u32 v24, v23, 5, v24
    v_and_b32 v23, 3, v0
    v_lshl_add_u32 v24, v23, 3, v24
    v_add_u32 v{vWB}, 16384, v24
    v_add_u32 v{vWB+1}, {STAGE+16384}, v24
    v_add_u32 v{vWB+2}, {2*STAGE+16384}, v24
    v_mov_b32 v{CS1}, 0x3f803f80
    v_mov_b32 v{CS1+1}, 0x3f803f80
    v_mov_b32 v{CS1+2}, 0x3f803f80
    v_mov_b32 v{CS1+3}, 0x3f803f80
    """)
    stamp("K0")

    def F(s): return FR + 16 * (s & 1)
    def reads(s):
        c, j = divmod(s, 4)
        st = c % 3
        xb = vXB + j + (4 if st == 2 else 0); im = STAGE if st == 1 else 0
        wb = vWB + st; wo = 4096 * j
        f = F(s); t = f"r{s}"
        return [I(f"ds_read_b64_tr_b16 {vr(f,2)}, v{wb} offset:{wo}", lg=t),
                I(f"ds_read_b64_tr_b16 {vr(f+2,2)}, v{wb} offset:{wo+1024}", lg=t),
                I(f"ds_read_b128 {vr(f+8,4)}, v{xb} offset:{im}", lg=t),
                I(f"ds_read_b64_tr_b16 {vr(f+4,2)}, v{wb} offset:{wo+16384}", lg=t),
                I(f"ds_read_b64_tr_b16 {vr(f+6,2)}, v{wb} offset:{wo+17408}", lg=t),
                I(f"ds_read_b128 {vr(f+12,4)}, v{xb} offset:{im+4096}", lg=t)]
    def mfmas(A, B, first=False):
        out = []
        for nt in range(2):
            for m in range(2):
                d = ACC + 32 * m + 16 * nt
                out.append(f"v_mfma_f32_32x32x16_bf16 {vr(d,16)}, {vr(A[m],4)}, {vr(B[nt],4)}, {'0' if first else vr(d,16)}")
        return out
    def cs_mfma(p):
        o = []
        for m in range(2):
            o += [f"s_bitcmp1_b32 s{sCSM}, {m}", f"s_cbranch_scc0 L_cs{p}_{m}",
                  f"v_mfma_f32_32x32x16_bf16 {vr(CSA,16)}, {vr(CS1,4)}, {vr(F(p)+4*m,4)}, {'0' if p == 0 else vr(CSA,16)}",
                  f"L_cs{p}_{m}:"]
        return o
    sCSB = SSH + 2
    cs_store = [L(f"""
        s_lshl_b32 s{sCSB}, s{sCB}, 2
        s_add_u32 s{sCSB}, s{sCSB}, s{sWC}
        s_lshl_b32 s{sCSB}, s{sCSB}, 10
        s_add_u32 s{sCSB}, s{sCSB}, {WS_CS}
        s_cmp_eq_u32 s{sCSM}, {'s%d' % sCSM if "nocs" in opt else 0}
        s_cbranch_scc1 L_nocs
        v_cvt_pk_bf16_f32 v{CSA+1}, v{CSA}, v{CSA}
        s_mul_i32 s{sT2}, s{sWR}, 57344
        v_lshlrev_b32 v{CSA+1}, 16, v{CSA+1}
        s_lshr_b32 s{sT3}, s{sKEY}, 1
        v_sub_f32 v{CSA+1}, v{CSA}, v{CSA+1}
        s_lshl_b32 s{sT3}, s{sT3}, 3
        v_cvt_pk_bf16_f32 v{CSA}, v{CSA}, v{CSA+1}
        s_add_u32 s{sT2}, s{sT2}, s{sT3}
        v_mov_b32 v{CSA+1}, v{vTAG}
        s_add_u32 s{sT2}, s{sT2}, s{sCSB}
        v_lshlrev_b32 v{CSA+2}, 5, v0
        s_mov_b32 exec_hi, 0
        buffer_store_dwordx2 {vr(CSA,2)}, v{CSA+2}, {sr(SWS,4)}, s{sT2} offen sc1
        s_mov_b32 exec_hi, -1
        L_nocs:
        """)]
    EG, EU, ER, EB0, EB1 = 128, 132, 20, 136, 140
    ex_addr = L(f"""
        v_and_b32 v24, 31, v0
        v_lshrrev_b32 v25, 5, v0
        v_lshlrev_b32 v25, 4, v25
        v_lshl_add_u32 v{vX0}, v24, 5, v25
        v_and_b32 v24, 15, v0
        v_lshrrev_b32 v25, 4, v0
        v_lshlrev_b32 v25, 3, v25
        v_lshl_add_u32 v{vX1}, v24, 5, v25
        s_lshl_b32 s{sKEY}, s{sRB}, 1
        s_add_u32 s{sKEY}, s{sKEY}, s{sWR}
        s_lshl_b32 s{sWB}, s{sKEY}, 9
        s_add_u32 s{sWB}, s{sWB}, {WS_RS}
        s_add_u32 s{sXB}, s{sCSB}, 57344
        """)
    ex_ld = [f"buffer_load_dwordx4 {vr(EG,4)}, v{vX0}, {sr(SWS,4)}, s{sCSB} offen sc1",
             f"buffer_load_dwordx4 {vr(EU,4)}, v{vX0}, {sr(SWS,4)}, s{sXB} offen sc1",
             f"buffer_load_dwordx2 {vr(ER,2)}, v{vX1}, {sr(SWS,4)}, s{sWB} offen sc1"]
    ex_check = L(f"""
        v_min3_u32 v24, v{EG+1}, v{EG+3}, v{ER+1}
        v_max3_u32 v25, v{EG+1}, v{EG+3}, v{ER+1}
        v_min3_u32 v24, v24, v{EU+1}, v{EU+3}
        v_max3_u32 v25, v25, v{EU+1}, v{EU+3}
        v_cmp_ne_u32 vcc, s{sTAG}, v24
        v_cmp_ne_u32 s[{sT0}:{sT1}], s{sTAG}, v25
        s_or_b64 vcc, vcc, s[{sT0}:{sT1}]
        """)
    AP, BP, SS, vHO, TM = 22, 24, 26, 28, FR
    RM = row_math()
    def part(lst, i, n): return lst[len(lst) * i // n:len(lst) * (i + 1) // n]
    wi = 0
    for s in range(33):
        c, j = divmod(s, 4)
        fill = []; pre = []
        if j == 0 and s < 32:
            a(I(wvm=f"c{c}", wlg="*"))
            a("s_barrier")
            stamp(f"B{c}")
        if s == SWL: pre += [wp_load]
        if s == SPF and "nopf" not in opt: pre += [pf_load]
        if s == SPW: pre += [I(wf_ld, vm="fw")]
        if s == SKF: pre += [I(kf_ld, vm="kf")]
        if s == 28: pre += [I(x, vm="ex") for x in ex_ld]
        if c <= 5: fill += chunk_dma(c + 2)[(0, 2, 3, 5)[j]:(2, 3, 5, 6)[j]]
        if s < 32: a(reads(s))
        if s == 0:
            a(pre + fill); continue
        p = s - 1
        v = []
        if s in (SHL, SHL + 2): fill += [h_load(24)[(s - SHL) >> 1]]
        if s == 4: v += tag_math
        if s == SWR:
            fill += [I(f"ds_read_b64_tr_b16 {vr(WP,2)}, v{vWPA}", lg="wp", wvm="wpl"),
                     I(f"ds_read_b64_tr_b16 {vr(WP+2,2)}, v{vWPA} offset:512", lg="wp")]
        if s == SWR + 1: fill += [I(f"buffer_store_dwordx4 {vr(WP,4)}, v{vWPS}, {sr(SWS,4)}, s{sWPS} offen sc1", vm="wps", wlg="wp")]
        if 5 <= s <= 9: v += part(RM[:-1], s - 5, 5)
        if s == SRS: fill += [RM[-1]]
        if s == 10: v += cs_store
        if s == 11: v += [wf_addr]
        if 21 <= s <= 23: v += part(h_math, s - 21, 3)
        if s == SPW + 3: pre += [[I(wvm="fw")] + ne(vFL) + ["s_cbranch_scc0 L_fw_ok"] + spin("fw", [wf_ld], ne(vFL))]
        if s == 19: v += kf_addr
        if s in (24, 25, 26): v += [h_write[s - 24]]
        if s == 27: v += ex_addr
        if s == SRD: fill = [[I(wvm="kf")] + ne(vKL) + [f"s_cselect_b32 s{sOK}, 0, 1"] + r_dma(oi("rt", 24))] + fill
        if s == 30: v += [f"v_mov_b32 v{r}, 0" for r in (EB0 + 1, EB0 + 3, EB1 + 1, EB1 + 3)] + [f"s_mov_b32 s{sB}, 0x03020302"]
        n = wsched.get(s, 0); fill += WL[wi:wi + n]; wi += n
        if s == 32:
            a(I(wvm="ex"))
            a(ex_check + ["s_cbranch_scc0 L_ex_ok"] + spin("ex", ex_ld, ex_check))
            v += L(f"""
            v_mov_b32 v{ER+1}, v{ER}
            v_permlane32_swap_b32 v{ER}, v{ER+1}
            v_perm_b32 v{EB0}, v{ER}, v{ER}, s{sB}
            v_perm_b32 v{EB0+2}, v{ER}, v{ER}, s{sB}
            v_perm_b32 v{EB1}, v{ER+1}, v{ER+1}, s{sB}
            v_perm_b32 v{EB1+2}, v{ER+1}, v{ER+1}, s{sB}
            v_lshlrev_b32 v{ER}, 16, v{ER}
            v_lshlrev_b32 v{ER+1}, 16, v{ER+1}
            """)
        fill = pre + (mix(v, fill) if len(v) >= len(fill) else mix(fill, v)) if (v and fill) else pre + v + fill
        a(I(wlg=f"r{p}"))
        f = F(p)
        a(mix(mfmas((f, f + 4), (f + 8, f + 12), p == 0), fill))
        if p < 8 and "nocs" not in opt: a(cs_mfma(p))
        stamp(f"s{s}")
    fill = []
    EO = oi("eo", 2)
    cA, cB, cS = ([lambda nt, b=b: b + nt for b in (AP, BP, SS)] if EO == 0 else
                  [lambda nt, b=b: FR + 16 + 6 * nt + b for b in (0, 2, 4)])
    for nt in range(2):
        fill += [f"v_rcp_f32 v{TM+nt}, v{ER+nt}", f"v_mul_f32 v{cS(nt)}, v{ER+nt}, v{ER+nt}"]
        if EO == 2: fill += [f"v_mul_f32 v{cS(nt)+1}, v{ER+nt}, v{ER+nt}"]
    for nt in range(2):
        fill += [f"v_mul_f32 v{cA(nt)}, {fx(-KC)}, v{TM+nt}"]
        if EO == 2: fill += [f"v_mul_f32 v{cA(nt)+1}, {fx(-KC)}, v{TM+nt}"]
        fill += [f"v_mul_f32 v{TM+nt}, v{TM+nt}, v{TM+nt}",
                 f"v_mul_f32 v{TM+nt}, {fx(0.044715)}, v{TM+nt}", f"v_mul_f32 v{cB(nt)}, v{cA(nt)}, v{TM+nt}"]
        if EO == 2: fill += [f"v_mul_f32 v{cB(nt)+1}, v{cA(nt)}, v{TM+nt}"]
    sHF = SK
    fill += L(f"""
    v_bfe_u32 v{TM+8}, v0, 4, 1
    v_mul_u32_u24 v{TM+8}, 57344, v{TM+8}
    v_and_b32 v{TM+9}, 15, v0
    v_lshl_add_u32 v{TM+8}, v{TM+9}, 4, v{TM+8}
    v_lshrrev_b32 v{TM+9}, 5, v0
    v_lshl_add_u32 v{vHO}, v{TM+9}, 8, v{TM+8}
    s_mul_i32 s{sXB}, s{sKEY}, {4*56*1024}
    s_add_u32 s{sXB}, s{sXB}, s{sCSB}
    s_add_u32 s{sXB}, s{sXB}, {WS_H - WS_CS}
    s_add_u32 s{sWB}, s{sXB}, {2*56*1024}
    s_sub_u32 s{sHF}, s{sCSB}, {WS_CS}
    s_lshr_b32 s{sHF}, s{sHF}, 8
    s_mul_i32 s{sT0}, s{sHF}, 37
    s_lshr_b32 s{sT0}, s{sT0}, 10
    s_mul_i32 s{sT0}, s{sT0}, 100
    s_add_u32 s{sHF}, s{sHF}, s{sT0}
    s_lshl_b32 s{sT0}, s{sKEY}, 10
    s_add_u32 s{sHF}, s{sHF}, s{sT0}
    s_add_u32 s{sHF}, s{sHF}, {WS_FH}
    """)
    a(mix(mfmas((EG, EU), (EB0, EB1)), fill))
    stamp("B8")
    def epi(G, U, nt, rr, pk):
        o = []
        t = {r: TM + 2 * i for i, r in enumerate(rr)}
        P = lambda x: vr(x, 2)
        s2 = (f"op_sel:[0,{nt},{nt}] op_sel_hi:[1,{nt},{nt}]", "op_sel_hi:[1,0,0]", "")[EO]
        AP, BP, SS = [f(nt) & ~1 for f in (cA, cB, cS)]
        o += [f"v_pk_mul_f32 {P(t[r])}, {P(G+r)}, {P(G+r)}" for r in rr]
        o += [f"v_pk_fma_f32 {P(t[r])}, {P(t[r])}, {P(BP)}, {P(AP)} {s2}" for r in rr]
        o += [f"v_pk_mul_f32 {P(t[r])}, {P(t[r])}, {P(G+r)}" for r in rr]
        o += mix([f"v_exp_f32 v{t[r]+i}, v{t[r]+i}" for r in rr for i in range(2)],
                 [f"v_pk_mul_f32 {P(U+r)}, {P(U+r)}, {P(G+r)}" for r in rr])
        o += [f"v_pk_fma_f32 {P(t[r])}, {P(t[r])}, {P(SS)}, {P(SS)} {s2}" for r in rr]
        o += [f"v_rcp_f32 v{t[r]+i}, v{t[r]+i}" for r in rr for i in range(2)]
        o += [f"v_pk_mul_f32 {P(U+r)}, {P(U+r)}, {P(t[r])}" for r in rr]
        o += [f"v_cvt_pk_bf16_f32 v{pk+i}, v{U+r}, v{U+r+1}" for i, r in enumerate(rr)]
        return o
    for nt in range(2):
        G = ACC + 16 * nt; U = ACC + 32 + 16 * nt
        for h in range(2):
            pk = TM + 8 + 4 * h
            seq = epi(G, U, nt, range(8 * h, 8 * h + 8, 2), pk)
            n = wepi[2 * nt + h]
            a(mix(seq, WL[wi:wi + n])); wi += n
            so = sXB if nt == 0 else sWB
            a(I(f"buffer_store_dwordx4 {vr(pk,4)}, v{vHO}, {sr(SWS,4)}, s{so} offen offset:{512*h} sc1", vm="hs"))
            stamp(f"e{2*nt+h}")
    assert wi == NPRE
    a(f"s_branch {JOIN}")
    vq_join = list(a.vq)

    a(f"{AUX}:")
    if "noaux" in opt: a(f"s_branch {END}")
    a.vq, a.lq = list(vq_pro), []
    vKa, vKb, TP, vT, vKS, KR, KT = 1, 2, 32, 6, 10, 48, 96
    sKO, sKL = sXB, sWB
    a(row_load())
    a(f"""
    s_xor_b32 s{sCB}, s{sXCD}, s{sW}
    v_and_b32 v23, 1, v21
    v_lshlrev_b32 v23, 1, v23
    v_xor_b32 v23, v22, v23
    v_lshlrev_b32 v23, 4, v23
    v_lshl_add_u32 v{vKa}, v20, 10, v23
    {f"v_lshlrev_b32 v{vKa}, 4, v0" if "kvlin" in opt else ""}
    v_xor_b32 v{vKb}, 64, v{vKa}
    s_lshl_b32 s{sKO}, s{sRBL}, 3
    s_add_u32 s{sKO}, s{sKO}, s{sW}
    s_mov_b32 s{sKEY}, s{sKO}
    s_lshl_b32 s{sKO}, s{sKO}, 16
    s_lshl_b32 s{sT0}, s{sCB}, {13 if "kvlin" in opt else 7}
    s_add_u32 s{sKO}, s{sKO}, s{sT0}
    s_mul_i32 s{sKL}, s{sW}, 17408
    s_mov_b32 m0, s{sKL}
    s_cmp_eq_u32 s{sKEY}, 0
    s_cbranch_scc1 L_halo0
    s_sub_u32 s{sT0}, s{sKO}, 8192
    buffer_load_dwordx4 v{vKa}, {sr(SK,4)}, s{sT0} offen lds
    s_branch L_halo1
    L_halo0:
    v_mov_b32 v40, 0
    v_mov_b32 v41, 0
    v_mov_b32 v42, 0
    v_mov_b32 v43, 0
    ds_write_b128 v{vL16}, v[40:43]
    L_halo1:
    """)
    def kv_ld(m, b, tag):
        lb = (1 + b) if m == 0 else (9 + b)
        par = (lb & 1) if m == 0 else (b & 1)
        return [f"s_add_u32 m0, s{sKL}, {1024*lb}", f"s_add_u32 s{sT0}, s{sKO}, {(1024 if 'kvlin' in opt else 8192)*b}",
                I(f"buffer_load_dwordx4 v{vKb if par else vKa}, {sr(SV if m else SK,4)}, s{sT0} offen lds", vm=tag)]
    for b in range(4): a(kv_ld(0, b, "k0")); a(kv_ld(1, b, "k0"))
    a(f"""
    v_and_b32 v23, 15, v0
    v_lshlrev_b32 v26, 3, v23
    s_lshl_b32 s{sT1}, s{sCB}, 9
    """)
    for cg in range(4):
        a(I(f"buffer_load_dwordx2 {vr(TP+2*cg,2)}, v26, {sr(SSH,4)}, s{sT1} offen offset:{128*cg}", vm="k0"))
    for b in range(4, 8): a(kv_ld(0, b, "k1")); a(kv_ld(1, b, "k1"))
    a(h_load(27))
    stamp("iss", 4)
    a(f"""
    v_lshlrev_b32 v26, 7, v24
    v_lshl_add_u32 v26, v21, 10, v26
    v_lshl_add_u32 v26, v25, 3, v26
    v_lshrrev_b32 v27, 1, v24
    v_lshl_add_u32 v26, v27, 5, v26
    v_and_b32 v27, 1, v21
    v_lshl_add_u32 v26, v27, 6, v26
    v_add_u32 v{vT}, s{sKL}, v26
    v_xor_b32 v{vT+1}, 32, v{vT}
    v_xor_b32 v{vT+2}, 64, v{vT}
    v_xor_b32 v{vT+3}, 96, v{vT}
    v_lshrrev_b32 v26, 1, v23
    v_lshlrev_b32 v26, 13, v26
    v_and_b32 v27, 1, v0
    v_lshl_add_u32 v26, v27, 4, v26
    v_sub_u32 v27, 3, v21
    v_lshl_add_u32 v{vKS}, v27, 5, v26
    s_lshl_b32 s{sKO}, s{sCB}, 18
    s_lshl_b32 s{sT0}, s{sKEY}, 8
    s_sub_u32 s{sKO}, s{sKO}, s{sT0}
    s_add_u32 s{sKO}, s{sKO}, {WS_KV + 8192 - 256}
    """)
    a(I(wvm="ep")); a(tag_math); a(row_math())
    stamp("rs", 1)
    def kv_read(hh, cg):
        r = KR + 10 * cg; t = f"kr{cg}"
        return [I(f"ds_read_b64_tr_b16 {vr(r,2)}, v{vT+cg} offset:{4096*hh+512}", lg=t),
                I(f"ds_read_b64_tr_b16 {vr(r+2,2)}, v{vT+(cg^2)} offset:{4096*hh+1024}", lg=t),
                I(f"ds_read_b64_tr_b16 {vr(r+4,2)}, v{vT+(cg^2)} offset:{4096*hh+1536}", lg=t),
                I(f"ds_read_b64_tr_b16 {vr(r+6,2)}, v{vT+cg} offset:{4096*hh+9216}", lg=t),
                I(f"ds_read_b64_tr_b16 {vr(r+8,2)}, v{vT+cg} offset:{4096*hh+9728}", lg=t)]
    def kv_math(hh, cg):
        r = KR + 10 * cg; q, u, w, pk = KT, KT + 8, KT + 16, KT + 24 + 4 * (cg & 1)
        o = [I(wlg=f"kr{cg}")]
        o += [f"v_alignbit_b32 v{q+i}, v{r+i}, v{r+i-1}, 16" for i in range(1, 6)]
        src = lambda t, back: (r if t & 1 else q) + 2 + t // 2 - back
        for t in (1, 3, 5, 7, 0, 2, 4, 6): o += [f"v_dot2_f32_bf16 v{u+t}, v{src(t,0)}, v{TP+2*cg}, 0"]
        for t in (1, 3, 5, 7, 0, 2, 4, 6): o += [f"v_dot2_f32_bf16 v{u+t}, v{src(t,1)}, v{TP+2*cg+1}, v{u+t}"]
        o += [f"v_and_b32 v{w+t}, 0xffff0000, v{r+6+t//2}" if t & 1 else f"v_lshlrev_b32 v{w+t}, 16, v{r+6+t//2}" for t in range(8)]
        o += [f"v_mul_f32 v{u+t}, v{u+t}, v{w+t}" for t in range(8)]
        o += [f"v_cvt_pk_bf16_f32 v{pk+e}, v{u+7-2*e}, v{u+6-2*e}" for e in range(4)]
        o += [f"s_add_u32 s{sT0}, s{sKO}, {65536*cg}",
              I(f"buffer_store_dwordx4 {vr(pk,4)}, v{vKS}, {sr(SWS,4)}, s{sT0} offen offset:{128*(1-hh)} sc1", vm="ks")]
        return o
    for hh in range(2):
        a(I(wvm=f"k{hh}", wlg="*"))
        stamp("kin", 5 + 2 * hh)
        for cg in range(4): a(kv_read(hh, cg))
        if hh == 0:
            for d in range(8): a(f"v_alignbit_b32 v{TP+d}, v{TP+d}, v{TP+d}, 16")
        for cg in range(4): a(kv_math(hh, cg))
        stamp("km", 6 + 2 * hh)
    a(h_math); a(wf_addr)
    a(f"""
    s_lshl_b32 s{sT0}, s{sCB}, 5
    s_add_u32 s{sT0}, s{sT0}, s{sKEY}
    s_lshl_b32 s{sT0}, s{sT0}, 2
    s_add_u32 s{sT0}, s{sT0}, {WS_FKV}
    """)
    a(f"v_lshlrev_b32 v26, 10, v0")
    a([I("s_mov_b64 exec, 3", wvm="*"), f"buffer_store_dword v{vTAG}, v26, {sr(SWS,4)}, s{sT0} offen sc1", "s_mov_b64 exec, -1"])
    stamp("kvf", 2)
    a("s_barrier")
    a(h_write)
    a(kf_addr); a(f"s_add_u32 s{sC}, s{sC}, 1024")
    stamp("wd", 3)

    a(f"{JOIN}:")
    a.vq, a.lq = list(vq_join), []
    stamp("join")
    a(f"s_cmp_eq_u32 s{sOK}, 1\ns_cbranch_scc1 L_kvok")
    a(spin("kv", [kf_ld], ne(vKL)))
    sv = list(a.vq); a(r_dma(24)); a(I(wvm="*")); a.vq = sv
    a("L_kvok:")
    CA, AF, BF = 32, 64, 128
    vRU, vRH, vPW, vPR, vZW, vZR, vYA, vYR, vOO = 2, 3, 4, 10, 11, 12, 13, 14, 30
    vXF, XN, vRC = 20, 22, 6
    vXF = 1
    sCH, sWQ, sCVB, sRHO = SV, SV + 1, SV + 2, SV + 3
    sOQ = SSH
    a(f"""
    s_lshr_b32 s{sCH}, s{sW}, 2
    s_and_b32 s{sWQ}, s{sW}, 3
    s_mul_i32 s{sCVB}, s{sCH}, {CVCH}
    s_add_u32 s{sCVB}, s{sCVB}, {L_CV}
    s_lshl_b32 s{sT0}, s{sWQ}, 7
    s_add_u32 s{sT0}, s{sT0}, s{sCVB}
    s_add_u32 s{sT1}, s{sT0}, 480
    v_and_b32 v15, 15, v0
    v_and_b32 v16, 48, v0
    v_lshlrev_b32 v31, 5, v15
    v_sub_u32 v31, v16, v31
    v_add_u32 v{vRU}, s{sT1}, v31
    s_add_u32 s{sT1}, s{sT0}, {4608 - 28 + 4160 + 3072}
    v_and_b32 v31, 1, v0
    v_mul_u32_u24 v31, 4160, v31
    v_sub_u32 v31, v16, v31
    v_bfe_u32 v{vRH}, v0, 1, 3
    v_lshl_add_u32 v31, v{vRH}, 2, v31
    v_add_u32 v{vRH}, s{sT1}, v31
    """)
    a(I(wvm="R", wlg="*"))
    a("s_barrier")
    stamp("c1")
    order = [(0, p) for p in range(7, -1, -1)] + [(1, p) for p in range(8)]
    def uread(rr, d): return I(f"ds_read_b128 {vr(AF+32*rr+4*d,4)}, v{vRU} offset:{512*(7-d)+64*rr}", lg=f"a{rr}{d}")
    def hread(k):
        rr, p = order[k]; o = 128 * (p & 1) + 16 * rr; b = BF + 4 * (k % 4)
        g = []
        if rr == 0 and p in (5, 3, 1): g += [f"v_subrev_u32 v{vRH}, 1024, v{vRH}"]
        if rr == 1 and p in (2, 4, 6): g += [f"v_add_u32 v{vRH}, 1024, v{vRH}"]
        return g + [I(f"ds_read2_b32 {vr(b,2)}, v{vRH} offset0:{o} offset1:{o+1}", lg=f"b{k}"),
                    I(f"ds_read2_b32 {vr(b+2,2)}, v{vRH} offset0:{o+2} offset1:{o+3}", lg=f"b{k}")]
    for k in range(3): a(hread(k)); a(uread(0, k))
    for d in range(3, 8): a(uread(0, d))
    XV = (1, 18 + 2, 21, 31)
    XV = (6, 7, 8, 9); RC = (XN + 1, XN + 3, XN + 5, XN + 7)
    fin_addr = L(f"""
        s_and_b32 s{sRHO}, s{sCT2}, 3
        s_lshl_b32 s{sT0}, s{sRT2}, 16
        s_lshl_b32 s{sT1}, s{sCT2}, 7
        s_add_u32 s{sT0}, s{sT0}, s{sT1}
        s_lshl_b32 s{sT1}, s{sW}, 13
        s_add_u32 s{sT0}, s{sT0}, s{sT1}
        s_lshl_b32 s{sT1}, s{sRHO}, 10
        s_add_u32 s{sOQ}, s{sT0}, s{sT1}
        s_xor_b32 s{sOQ+1}, s{sOQ}, 1024
        s_xor_b32 s{sOQ+2}, s{sOQ}, 2048
        s_xor_b32 s{sOQ+3}, s{sOQ}, 3072
        v_and_b32 v31, 31, v0
        v_lshlrev_b32 v31, 2, v31
        v_and_b32 v1, 32, v0
        v_lshl_add_u32 v{vOO}, v1, 7, v31
        """)
    fin_ld = []
    for qd in range(4):
        fin_ld += [I(f"buffer_load_dword v{XV[qd]}, v{vOO}, {sr(SX,4)}, s{sOQ+qd} offen", vm="xt"),
                   [f"s_lshr_b32 s{sT0}, s{sOQ+qd}, 10", f"s_lshl_b32 s{sT0}, s{sT0}, 3", f"s_add_u32 s{sT0}, s{sT0}, {WS_RS}",
                    I(f"buffer_load_dword v{RC[qd]}, v1, {sr(SWS,4)}, s{sT0} offen sc1", vm="xt")]]
    xn_math = [I(wvm="xt")]
    for qd in range(4):
        x0, x1 = XN + 2 * qd, XN + 2 * qd + 1
        xn_math += L(f"""
        v_lshlrev_b32 v20, 16, v{x1}
        v_and_b32 v21, 0xffff0000, v{x1}
        v_rcp_f32 v20, v20
        v_lshlrev_b32 v{x0}, 16, v{XV[qd]}
        v_and_b32 v{x1}, 0xffff0000, v{XV[qd]}
        v_add_f32 v{x0}, v{x0}, v21
        v_add_f32 v{x1}, v{x1}, v21
        v_mul_f32 v{x0}, v{x0}, v20
        v_mul_f32 v{x1}, v{x1}, v20
        """)
    p_addr = L(f"""
        v_bfe_u32 v20, v0, 1, 2
        v_bfe_u32 v21, v0, 3, 1
        v_xor_b32 v20, v20, v21
        v_lshlrev_b32 v20, 4, v20
        v_xor_b32 v20, v20, v16
        v_lshl_add_u32 v20, v15, 6, v20
        s_lshl_b32 s{sT0}, s{sW}, 13
        v_add_u32 v{vPW}, s{sT0}, v20
        v_bfe_u32 v20, v0, 2, 2
        v_bfe_u32 v21, v0, 4, 1
        v_xor_b32 v20, v20, v21
        v_lshlrev_b32 v20, 4, v20
        v_lshlrev_b32 v21, 5, v0
        v_xor_b32 v20, v20, v21
        s_lshl_b32 s{sT0}, s{sCH}, 15
        s_lshl_b32 s{sT1}, s{sWQ}, 11
        s_add_u32 s{sT0}, s{sT0}, s{sT1}
        v_add_u32 v{vPR}, s{sT0}, v20
        s_lshl_b32 s{sT0}, s{sW}, 7
        s_lshl_b32 s{sE}, s{sRT2}, 10
        s_add_u32 s{sE}, s{sE}, s{sT0}
        s_add_u32 s{sE}, s{sE}, {WS_FH}
        v_min_u32 v{vFA}, 6, v0
        v_lshlrev_b32 v{vFA}, 2, v{vFA}
        """)
    hf_ld = wf_ld
    def pwrite(j): return I(f"ds_write_b128 v{vPW}, {vr(CA+4*j,4)} offset:{1024*j}", lg="pw")
    KHF, KHL = oi("khf", 5), oi("khl", 10)
    for k, (rr, p) in enumerate(order):
        seq = []
        for j in range(p, 8):
            c = "0" if (rr == 0 and j == p) else vr(CA + 4 * j, 4)
            seq.append(I(f"v_mfma_f32_16x16x32_bf16 {vr(CA+4*j,4)}, {vr(BF+4*(k%4),4)}, {vr(AF+32*rr+4*(j-p),4)}, {c}",
                         wlg=[f"a{rr}{j-p}", f"b{k}"]))
        fill = []
        if k == 1: fill += [fin_addr]
        if 1 <= k <= 6: fill += part(WL[NPRE:], k - 1, 6)
        if k in (3, 4): fill += fin_ld[4 * (k - 3):4 * (k - 3) + 4]
        if 4 <= k <= 7: fill += [uread(1, 2 * (k - 4)), uread(1, 2 * (k - 4) + 1)]
        if k in (6, 7): fill += part(p_addr, k - 6, 2)
        if 8 <= k <= 11: fill += part(xn_math, k - 8, 4)
        if k >= 9: fill = fill[:2] + [pwrite(p - 1)] + fill[2:]
        if k == KHF:
            fill += [[I(wvm="hs"), f"s_cmp_eq_u32 s{sISG}, 0", "s_cbranch_scc1 L_nohf",
                      one(f"buffer_store_dword v{vTAG}, off, {sr(SWS,4)}, s{sHF} sc1"), "L_nohf:"]]
        if k == KHL: fill += [I(hf_ld, vm="hf")]
        a(mix(seq, fill))
        if k + 3 < 16: a(hread(k + 3))
        if k == KHF: stamp("hflag")
        stamp(f"k{k}")
    HB, ZA, NS = 64, 32, 16
    sH1, sH2, sHQ = sXB, sWB, sKEY
    def hload(n):
        qd, ks = divmod(n, 7)
        g = []
        if ks == 0:
            g += [f"s_xor_b32 s{sT3}, s{sRHO}, {qd}", f"s_mul_i32 s{sT3}, s{sT3}, 57344", f"s_add_u32 s{sH1}, s{sHQ}, s{sT3}",
                  f"s_sub_u32 s{sH2}, s{sH1}, s{sRB}"]
        g.append(I(f"buffer_load_dwordx4 {vr(HB+4*(n%NS),4)}, v{vL16}, {sr(SWS,4)}, s{sH1 if ks < 4 else sH2} offen offset:{(ks&3)*1024} sc1", vm=f"h{n}"))
        return g
    NE = oi("ne", 8)
    sYS = sCB
    a(f"""
    s_mul_i32 s{sHQ}, s{sRT2}, {4*56*1024}
    s_mul_i32 s{sT1}, s{sW}, 7168
    s_add_u32 s{sHQ}, s{sHQ}, s{sT1}
    s_mul_i32 s{sT1}, s{sHI}, 3072
    s_add_u32 s{sHQ}, s{sHQ}, s{sT1}
    s_add_u32 s{sHQ}, s{sHQ}, {WS_H}
    s_mul_i32 s{sRB}, s{sHI}, 7168
    s_sub_u32 s{sRB}, s{sRB}, 4096
    s_lshl_b32 s{sT1}, s{sWQ}, 10
    s_sub_u32 s{sT1}, s{sCVB}, s{sT1}
    s_add_u32 s{sT1}, s{sT1}, 4080
    v_sub_u32 v20, s{sT1}, v{vL16}
    v_xor_b32 v21, 16, v{vPR}
    """)
    a(pwrite(7))
    a(I(wvm="hf")); a(ne(vFL))
    a(f"s_cselect_b32 s{sOK}, 0, 1\ns_cbranch_scc1 L_hlate")
    for n in range(NE): a(hload(n))
    a("L_hlate:")
    a(I(wlg="*"))
    a("s_barrier")
    stamp("c3")
    PR, vU, YA = 32, 128, 132
    a(I(f"ds_read_b128 {vr(vU,4)}, v20", lg="su"))
    for k in range(4):
        a(I(f"ds_read_b128 {vr(PR+8*k,4)}, v{vPR} offset:{8192*k}", lg=f"p{k}"))
        a(I(f"ds_read_b128 {vr(PR+8*k+4,4)}, v21 offset:{8192*k}", lg=f"p{k}"))
    a(f"""
    s_lshl_b32 s{sT1}, s{sCH}, 4
    s_lshr_b32 s{sD}, s{sD}, s{sT1}
    s_lshl_b32 s{sD}, s{sD}, 16
    s_lshl_b32 s{sT1}, s{sCP}, 13
    s_lshl_b32 s{sT3}, s{sW}, 10
    s_add_u32 s{sT1}, s{sT1}, s{sT3}
    s_add_u32 s{sT1}, s{sT1}, {WS_YT}
    s_lshl_b32 s{sYS}, s{sWQ}, 9
    s_lshl_b32 s{sT3}, s{sCP}, 1
    s_add_u32 s{sYS}, s{sYS}, s{sT3}
    s_add_u32 s{sYS}, s{sYS}, s{sCH}
    s_lshl_b32 s{sT3}, s{sYS}, 7
    s_and_b32 s{sT3}, s{sT3}, 0x380
    v_xor_b32 v31, s{sT3}, v{vL16}
    s_lshr_b32 s{sT3}, s{sT3}, 5
    s_lshr_b32 s{sYS}, s{sYS}, 3
    s_lshl_b32 s{sYS}, s{sYS}, 7
    s_add_u32 s{sYS}, s{sYS}, s{sT3}
    s_add_u32 s{sYS}, s{sYS}, {WS_FY}
    """)
    a(I(wlg="su"))
    for e in range(4):
        a(f"v_and_b32 v{YA+6-2*e}, 0xffff0000, v{vU+e}\nv_lshlrev_b32 v{YA+7-2*e}, 16, v{vU+e}")
    a(I(wlg="p0"))
    for e in range(8): a(f"v_fma_f32 v{YA+e}, v{YA+e}, s{sD}, v{PR+e}")
    a(I(wlg="p2"))
    for e in range(0, 8, 2): a(f"v_pk_add_f32 {vr(PR+8+e,2)}, {vr(PR+8+e,2)}, {vr(PR+16+e,2)}")
    a(I(wlg="p3"))
    for e in range(0, 8, 2): a(f"v_pk_add_f32 {vr(YA+e,2)}, {vr(YA+e,2)}, {vr(PR+24+e,2)}")
    for e in range(0, 8, 2): a(f"v_pk_add_f32 {vr(YA+e,2)}, {vr(YA+e,2)}, {vr(PR+8+e,2)}")
    for e in range(4): a(f"v_cvt_pk_bf16_f32 v{vU+e}, v{YA+2*e}, v{YA+2*e+1}")
    a(I(f"buffer_store_dwordx4 {vr(vU,4)}, v31, {sr(SWS,4)}, s{sT1} offen sc1", vm="ys"))
    yf_st = f"buffer_store_dword v{vTAG}, off, {sr(SWS,4)}, s{sYS} sc1"
    sv = list(a.vq)
    a(f"s_cmp_lg_u32 s{sISG}, 0\ns_cbranch_scc1 L_naux")
    vKA2, vKL2 = 140, 141
    ld2 = f"buffer_load_dword v{vKL2}, v{vKA2}, {sr(SWS,4)}, s{sC} offen sc1"
    a(wf_addr_(sC, vKA2, vKL2))
    a(one(yf_st, wvm="*"))
    a(spin("fwa", [ld2], ne(vKL2)))
    a(WL)
    a(f"""
    v_lshlrev_b32 v{vKA2}, 3, v0
    s_lshl_b32 s{sC}, s{sRT2}, 9
    s_add_u32 s{sC}, s{sC}, {WS_RS + 4}
    """)
    a(spin("rsa", [ld2], ne(vKL2)))
    a(fin_ld); a(xn_math)
    a(f"""
    s_cmp_lg_u32 s2, 0
    s_cbranch_scc1 L_naux
    s_add_u32 s{sT0}, s{sM0X}, {WS_RS}
    """)
    a(spin("ep", [f"buffer_load_dwordx4 v[32:35], v{vL16}, {sr(SWS,4)}, s{sT0} offen sc1",
                  f"buffer_load_dwordx4 v[36:39], v{vL16}, {sr(SWS,4)}, s{sT0} offen offset:1024 sc1"],
           [f"v_xor_b32 v{r}, s{sTAG}, v{r}" for r in (33, 35, 37, 39)] +
           ["v_or3_b32 v33, v33, v35, v37", "v_or_b32 v33, v33, v39", "v_cmp_ne_u32 vcc, 0, v33", "s_cmp_lg_u64 vcc, 0"]))
    a(f"""
    s_barrier
    s_cmp_lg_u32 s{sW}, 0
    s_cbranch_scc1 L_naux
    """)
    a(one(f"buffer_store_dword v{vTAG}, off, {sr(SWS,4)}, 0 offset:{WS_EPOCH} sc1"))
    a("L_naux:")
    a.vq = sv
    a(f"s_cmp_eq_u32 s{sOK}, 1\ns_cbranch_scc1 L_hgo")
    a(spin("hf", [hf_ld], ne(vFL)))
    sv = list(a.vq)
    for n in range(NE): a(hload(n))
    a.vq = sv
    a(one(yf_st))
    a("L_hgo:")
    stamp("hok")
    for n in range(NE, NS): a(hload(n))
    sYA, sYF, sSEL = sMO, sE, SK
    a(f"""
    v_lshrrev_b32 v20, 4, v0
    s_lshl_b32 s{sT1}, s{sRBL}, 2
    v_xor_b32 v21, v20, v15
    v_xor_b32 v21, s{sT1}, v21
    v_lshlrev_b32 v21, 4, v21
    v_lshl_add_u32 v21, v15, 8, v21
    s_lshl_b32 s{sT1}, s{sW}, 12
    v_add_u32 v{vZW}, s{sT1}, v21
    s_lshl_b32 s{sT1}, s{sW}, 1
    v_lshrrev_b32 v1, 5, v0
    v_add_u32 v21, s{sT1}, v1
    v_bfe_u32 v31, v0, 1, 4
    v_xor_b32 v31, v31, v21
    v_lshlrev_b32 v31, 4, v31
    v_lshl_add_u32 v31, v21, 8, v31
    v_and_b32 v21, 1, v0
    v_lshl_add_u32 v{vZR}, v21, 3, v31
    s_lshl_b32 s{sT1}, s{sWR}, 2
    v_and_b32 v21, 7, v0
    v_xor_b32 v20, v20, v21
    v_xor_b32 v20, s{sT1}, v20
    v_lshlrev_b32 v20, 4, v20
    v_lshrrev_b32 v31, 3, v0
    v_lshl_add_u32 v20, v31, 12, v20
    s_and_b32 s{sT1}, s{sRT2}, 7
    v_xor_b32 v31, s{sT1}, v31
    v_lshl_add_u32 v{vYA}, v31, 7, v20
    v_lshlrev_b32 v{vFA}, 2, v21
    v_xor_b32 v21, s{sW}, v21
    v_lshlrev_b32 v21, 4, v21
    v_lshl_add_u32 v21, v1, 3, v21
    v_and_b32 v31, 31, v0
    v_lshl_add_u32 v21, v31, 8, v21
    v_add_u32 v{vYR}, {L_Y}, v21
    s_lshl_b32 s{sT1}, s{sCT2}, 3
    s_add_u32 s{sT1}, s{sT1}, s{sW}
    s_lshl_b32 s{sYA}, s{sT1}, 15
    s_and_b32 s{sT0}, s{sRT2}, 24
    s_lshl_b32 s{sT0}, s{sT0}, 7
    s_add_u32 s{sYA}, s{sYA}, s{sT0}
    s_add_u32 s{sYA}, s{sYA}, {WS_YT}
    s_lshl_b32 s{sYF}, s{sT1}, 7
    s_lshr_b32 s{sT0}, s{sRT2}, 3
    s_lshl_b32 s{sT0}, s{sT0}, 13
    s_add_u32 s{sYF}, s{sYF}, s{sT0}
    s_add_u32 s{sYF}, s{sYF}, {WS_FY}
    s_mul_i32 s{sSEL}, s{sRHO}, 0x02020000
    s_add_u32 s{sSEL}, s{sSEL}, 0x01000c0c
    s_xor_b32 s{sSEL+1}, s{sSEL}, 0x02020000
    s_xor_b32 s{sSEL+2}, s{sSEL}, 0x04040000
    s_xor_b32 s{sSEL+3}, s{sSEL}, 0x06060000
    s_lshl_b32 s{sT0}, s{sW}, 10
    s_add_u32 m0, s{sT0}, {L_Y}
    """)
    ZT = 128
    def zwrite(qd):
        hi, lo = L_Z[qd] & ~0xffff, L_Z[qd] & 0xffff
        return [[f"v_xor_b32 v20, {hi + 64*mt}, v{vZW}",
                 I(f"ds_write_b128 v20, {vr(ZA+16*(qd&1)+4*mt,4)} offset:{lo}", lg="zw")] for mt in range(4)]
    def zread(qd):
        hi, lo = L_Z[qd] & ~0xffff, L_Z[qd] & 0xffff
        return [f"v_add_u32 v21, {hi}, v{vZR}"] + [
            I(f"ds_read_b64 {vr(ZT+2*k,2)}, v21 offset:{lo+4096*k}", lg=f"z{k}") for k in range(8)]
    def zmath(qd):
        o = []
        for st_ in (1, 2, 4):
            for k in range(0, 8, 2 * st_):
                for e in range(2):
                    o.append(I(f"v_add_f32 v{ZT+2*k+e}, v{ZT+2*k+e}, v{ZT+2*(k+st_)+e}", wlg=f"z{k+1}" if st_ == 1 else None))
        x = XN + 2 * qd
        o += [f"v_mul_f32 v{ZT+2+e}, {fx(-1.4426950408889634)}, v{ZT+e}" for e in range(2)]
        o += [f"v_exp_f32 v{ZT+2+e}, v{ZT+2+e}" for e in range(2)]
        o += [f"v_mul_f32 v{x+e}, v{x+e}, v{ZT+e}" for e in range(2)]
        o += [f"v_add_f32 v{ZT+2+e}, 1.0, v{ZT+2+e}" for e in range(2)]
        o += [f"v_rcp_f32 v{ZT+2+e}, v{ZT+2+e}" for e in range(2)]
        o += [f"v_mul_f32 v{x+e}, v{x+e}, v{ZT+2+e}" for e in range(2)]
        return o
    NYF, NYP, NYC = oi("nyf", 8), oi("nyp", 16), oi("nyc", 21)
    for n in range(28):
        qd, ks = divmod(n, 7)
        a(I(wvm=[f"h{n}", f"wd{ks}"]))
        if n == NYF: a(one(yf_st, wvm="ys", vm="yf"))
        if qd >= 1 and ks == 3:
            a(I(wlg="*")); a("s_barrier")
        seq = []
        for mt in range(4):
            d = ZA + 16 * (qd & 1) + 4 * mt
            c = "0" if ks == 0 else vr(d, 4)
            seq.append(f"v_mfma_f32_16x16x32_bf16 {vr(d,4)}, {vr(WDF(4*ks+mt),4)}, {vr(HB+4*(n%NS),4)}, {c}")
        fill = []
        if qd >= 1 and ks == 1: fill = zwrite(qd - 1)
        if qd >= 1 and ks == 3: fill = zread(qd - 1)
        if qd >= 1 and ks >= 4: fill = part(zmath(qd - 1), ks - 4, 3)
        if n == NYC:
            fill = [[I(wvm="yp")] + ne(vFL) + ["s_cbranch_scc0 L_yf_ok"] + spin("yf", [wf_ld], ne(vFL)) +
                    [I(f"buffer_load_dwordx4 v{vYA}, {sr(SWS,4)}, s{sYA} offen sc1 lds", vm="yl")]] + fill
        a(mix(seq, fill))
        if n + NS < 28: a(hload(n + NS))
        if n == NYP: a(I(wf_ld, vm="yp"))
        stamp(f"n{n}")
    a(zwrite(3))
    stamp("g2")
    XF = 64
    for qd in range(4):
        a(f"v_lshlrev_b32 v{XF+2*qd}, 16, v{XV[qd]}\nv_and_b32 v{XF+2*qd+1}, 0xffff0000, v{XV[qd]}")
    a(I(wvm="yl", wlg="*"))
    a("s_barrier")
    stamp("bf")
    YR, YF = 72, 76
    a(zread(3))
    a(I(f"ds_read_b64 {vr(YR,2)}, v{vYR}", lg="yr"))
    a(I(f"ds_read_b64 {vr(YR+2,2)}, v{vYR} offset:128", lg="yr"))
    def finish(qd):
        return [f"v_perm_b32 v{YF+2*qd}, v{YR+1}, v{YR}, s{sSEL+qd}", f"v_perm_b32 v{YF+2*qd+1}, v{YR+3}, v{YR+2}, s{sSEL+qd}",
                f"v_fmac_f32 v{XF+2*qd}, v{XN+2*qd}, v{YF+2*qd}", f"v_fmac_f32 v{XF+2*qd+1}, v{XN+2*qd+1}, v{YF+2*qd+1}",
                f"v_cvt_pk_bf16_f32 v{XF+2*qd}, v{XF+2*qd}, v{XF+2*qd+1}",
                f"buffer_store_dword v{XF+2*qd}, v{vOO}, {sr(SOUT,4)}, s{sOQ+qd} offen"]
    zm = zmath(3)
    a(zm[:8]); a(I(wlg="yr"))
    a(mix(zm[8:], finish(0) + finish(1) + finish(2)))
    a(finish(3))
    if prof:
        stamp("end")
        a(f"""
        s_waitcnt lgkmcnt(0)
        s_lshl_b32 s{sT0}, s2, 3
        s_add_u32 s{sT0}, s{sT0}, s{sW}
        s_lshl_b32 s{sT0}, s{sT0}, 6
        s_add_u32 s{sT0}, s{sT0}, {WS_PROF}
        """)
        for i in range(len(stamps)):
            a(f"v_mov_b32 v1, s{PROFS[i]}")
            a(f"buffer_store_dword v1, off, {sr(SWS,4)}, s{sT0} offset:{4*i}")
    a(f"{END}:\ns_endpgm")
    txt = a.text(256, 512, 163840)
    return txt, stamps, a.nops

if __name__ == "__main__":
    txt, st, nops = gen(prof="prof" in sys.argv, opt=sys.argv[2:])
    open(sys.argv[1], "w").write(txt)
    print("lines", txt.count("\n"), "nops", nops, st)
    if st: open(sys.argv[1] + ".stamps", "w").write(" ".join(st))
```

```python
import sys, struct
from em import *

WS_EPOCH, WS_FKV, WS_RS, WS_CS, WS_FH, WS_FY = 0, 4096, 32768, 65536, 196608, 229376
WS_KV, WS_WT, WS_YT, WS_H, WS_PROF = 1 << 20, 3 << 20, 5 << 20, 8 << 20, 16 << 20
SX, SWG, SWU, SWD, SWS, SOUT, SH, SK, SV, SSH = 8, 12, 16, 20, 24, 28, 32, 36, 40, 44
sW, sXB, sWB, sT0, sT1 = 3, 4, 5, 6, 7
(sRT2, sCT2, sKEY, sWR, sWC, sTAG, sM0X, sOK, sISG, sCNT, sT2, sT3, sCSM, sCP, sRBL, sXCD, sCB, sD,
 sMO, _m1, _m2, _m3, sHI, sRB) = range(48, 72)
sA, sB, sC, sE = 98, 99, 100, 101
PROFS = list(range(72, 98, 2))
STAGE = 49152
L_WP = 147456
L_CV, CVCH = 98304, 12864
L_Z = (65536, 131072, 0, 32768)
L_Y = 98304
ACC, FR = 32, 96
def WDF(i): return 144 + 4 * i
vX0, vX1, vW0, vW1, vL16 = 1, 2, 3, 4, 5
vXB, vWB, vTAG = 6, 14, 17
vHE, vHP, vHO_ = 128, 132, 134
SPIN = 0x4000
KC = 2 * 0.7978845608028654 * 1.4426950408889634
def fx(f): return "0x%08x" % struct.unpack("<I", struct.pack("<f", f))[0]
def L(s): return [x.strip() for x in s.strip().split("\n") if x.strip()]

def gen(prof=False, opt=()):
    a = Em()
    def oi(k, d): return int(([o[len(k):] for o in opt if o.startswith(k)] + [d])[0])
    stamps = []
    def oi(k, d): return int(([o[len(k):] for o in opt if o.startswith(k)] + [d])[0])
    def stamp(name, slot=None):
        sel = [o[3:].split(",") for o in opt if o.startswith("st=")]
        dflt = "start,B0,B4,B8,join,c1,c3,hok,g2,bf,end".split(",")
        if not prof or (slot is None and name not in (sel[0] if sel else dflt)): return
        if slot is None:
            slot = len(stamps); stamps.append(name)
        a(f"{'s_memtime' if 'cyc' in opt else 's_memrealtime'} {sr(PROFS[slot], 2)}")
    def spin(name, load, check):
        if "nochk" in opt: return [f"L_{name}_ok:"]
        return ([f"s_mov_b32 s{sCNT}, {SPIN}", f"L_{name}_loop:"] + load + ["s_waitcnt vmcnt(0)"] + check +
                [f"s_cbranch_scc0 L_{name}_ok", f"s_sub_u32 s{sCNT}, s{sCNT}, 1", f"s_cbranch_scc0 L_{name}_loop",
                 f"L_{name}_ok:"])
    def one(txt, vm=None, wvm=None):
        if "all" in opt: return [I(txt, vm=vm, wvm=wvm)]
        return [I("s_mov_b64 exec, 1", wvm=wvm), I(txt, vm=vm), "s_mov_b64 exec, -1"]
    def ne(v): return [f"v_cmp_ne_u32 vcc, s{sTAG}, v{v}", "s_cmp_lg_u64 vcc, 0"]
    END, AUX, JOIN = "L_end", "L_aux", "L_join"
    KM = oi("km", 3)
    a(f"""
    s_cmp_ge_u32 s2, 256
    s_cbranch_scc1 {END}
    s_load_dwordx16 s[72:87], s[0:1], 0
    s_load_dwordx8 s[88:95], s[0:1], 64
    s_load_dwordx2 s[96:97], s[0:1], 96
    v_lshrrev_b32 v1, 6, v0
    v_and_b32 v0, 63, v0
    v_readfirstlane_b32 s{sW}, v1
    s_and_b32 s{sXCD}, s2, 7
    s_lshr_b32 s{sCP}, s2, 3
    s_and_b32 s{sE}, s{sXCD}, 1
    s_lshr_b32 s{sA}, s{sXCD}, 1
    s_and_b32 s{sRBL}, s{sCP}, 3
    s_lshr_b32 s{sISG}, s{sCP}, 2
    s_lshl_b32 s{sRB}, s{sA}, 2
    s_add_u32 s{sRB}, s{sRB}, s{sRBL}
    s_lshl_b32 s{sRT2}, s{sRB}, 1
    s_add_u32 s{sRT2}, s{sRT2}, s{sE}
    s_add_u32 s{sCT2}, s{sISG}, 7
    s_and_b32 s{sCT2}, s{sCT2}, 7
    s_mul_i32 s{sCB}, s{sE}, 7
    s_add_u32 s{sCB}, s{sCB}, s{sCT2}
    s_xor_b32 s{sKEY}, s{sRBL}, s{sISG}
    s_and_b32 s{sKEY}, s{sKEY}, {KM}
    s_lshl_b32 s{sB}, s{sA}, {2 if KM == 3 else 1}
    s_and_b32 s{sB}, s{sB}, {4 if KM == 3 else 6}
    s_or_b32 s{sKEY}, s{sKEY}, s{sB}
    s_lshl_b32 s{sB}, s{sXCD}, 5
    s_add_u32 s{sCP}, s{sCP}, s{sB}
    s_and_b32 s{sWR}, s{sW}, 1
    s_lshr_b32 s{sWC}, s{sW}, 1
    s_lshr_b32 s{sB}, s{sW}, 2
    s_and_b32 s{sC}, s{sW}, 3
    s_lshl_b32 s{sXB}, s{sRB}, 17
    s_lshl_b32 s{sT0}, s{sB}, 16
    s_add_u32 s{sXB}, s{sXB}, s{sT0}
    s_lshl_b32 s{sT0}, s{sC}, 10
    s_add_u32 s{sXB}, s{sXB}, s{sT0}
    s_mul_i32 s{sWB}, s{sW}, 28672
    s_lshl_b32 s{sT0}, s{sCB}, 8
    s_add_u32 s{sWB}, s{sWB}, s{sT0}
    s_lshl_b32 s{sM0X}, s{sW}, 11
    s_and_b32 s{sT0}, s{sKEY}, 1
    s_and_b32 s{sT1}, s{sA}, 2
    s_or_b32 s{sT0}, s{sT0}, s{sT1}
    {f"s_mov_b32 s{sT0}, s{sRBL}" if KM != 3 else ""}
    s_add_u32 s{sCSM}, s{sWR}, 1
    s_cmp_eq_u32 s{sT0}, s{sWC}
    s_cselect_b32 s{sCSM}, s{sCSM}, 0
    s_lshr_b32 s{sHI}, s{sCT2}, 2
    s_mov_b32 s{sOK}, 0
    """)
    for s, n in ((SX, 1 << 21), (SWG, 1835008), (SWU, 1835008), (SWD, 1835008), (SWS, 1 << 25), (SOUT, 1 << 21),
                 (SH, 4096), (SK, 1 << 21), (SV, 1 << 21), (SSH, 4096)):
        a(f"s_mov_b32 s{s+2}, {n}")
        a(f"s_mov_b32 s{s+3}, 0x20000")
    a(f"""
    v_lshrrev_b32 v20, 3, v0
    v_lshrrev_b32 v21, 4, v0
    v_and_b32 v22, 7, v0
    v_xor_b32 v23, v22, v21
    v_lshlrev_b32 v23, 4, v23
    v_lshl_add_u32 v{vX0}, v20, 12, v23
    v_xor_b32 v{vX1}, 64, v{vX0}
    v_add_u32 v{vX1}, 31744, v{vX1}
    v_bfe_u32 v24, v0, 2, 2
    v_and_b32 v25, 3, v0
    v_xor_b32 v23, v24, v21
    v_lshlrev_b32 v23, 6, v23
    v_lshl_add_u32 v23, v25, 4, v23
    v_mul_u32_u24 v{vW0}, 3584, v21
    v_add_u32 v{vW0}, v{vW0}, v23
    v_add_u32 v{vW1}, 13312, v{vW0}
    v_lshlrev_b32 v{vL16}, 4, v0
    s_lshl_b32 s{sT2}, s{sCP}, 1
    s_add_u32 s{sT2}, s{sT2}, s{sB}
    s_lshl_b32 s{sT2}, s{sT2}, 12
    s_lshl_b32 s{sT3}, s{sCP}, 2
    s_waitcnt lgkmcnt(0)
    s_mov_b64 {sr(SX,2)}, s[72:73]
    s_mov_b64 {sr(SWG,2)}, s[86:87]
    s_mov_b64 {sr(SWU,2)}, s[88:89]
    s_mov_b64 {sr(SK,2)}, s[74:75]
    s_mov_b64 {sr(SV,2)}, s[76:77]
    s_mov_b64 {sr(SWS,2)}, s[96:97]
    s_mov_b64 {sr(SSH,2)}, s[78:79]
    s_mov_b64 {sr(SWD,2)}, s[90:91]
    s_mov_b64 {sr(SOUT,2)}, s[92:93]
    s_add_u32 s{SH}, s80, s{sT2}
    s_addc_u32 s{SH+1}, s81, 0
    s_load_dword s{sD}, s[82:83], s{sT3}
    """)
    if prof: a("s_nop 4")
    stamp("start")

    def chunk_dma(c):
        st = (c % 3) * STAGE
        return [
            [f"s_xor_b32 s{sT0}, s{sKEY}, {c}",
             f"s_mul_i32 s{sT1}, s{sT0}, 229376", f"s_add_u32 s{sT1}, s{sT1}, s{sWB}",
             f"s_lshl_b32 s{sT0}, s{sT0}, 7", f"s_add_u32 m0, s{sM0X}, {st}", f"s_add_u32 s{sT0}, s{sT0}, s{sXB}",
             I(f"buffer_load_dwordx4 v{vX0}, {sr(SX,4)}, s{sT0} offen lds", vm=f"c{c}")],
            I(f"buffer_load_dwordx4 v{vX1}, {sr(SX,4)}, s{sT0} offen offset:1024 lds", vm=f"c{c}"),
            [f"s_add_u32 m0, s{sM0X}, {st + 16384}",
             I(f"buffer_load_dwordx4 v{vW0}, {sr(SWG,4)}, s{sT1} offen lds", vm=f"c{c}")],
            I(f"buffer_load_dwordx4 v{vW1}, {sr(SWG,4)}, s{sT1} offen offset:1024 lds", vm=f"c{c}"),
            [f"s_add_u32 m0, s{sM0X}, {st + 32768}",
             I(f"buffer_load_dwordx4 v{vW0}, {sr(SWU,4)}, s{sT1} offen lds", vm=f"c{c}")],
            I(f"buffer_load_dwordx4 v{vW1}, {sr(SWU,4)}, s{sT1} offen offset:1024 lds", vm=f"c{c}"),
        ]
    XR, S1, S2 = 200, 204, 205
    def row_load():
        return [I(f"buffer_load_dword v{vTAG}, off, {sr(SWS,4)}, 0 offset:{WS_EPOCH} sc1", vm="ep"),
                [f"s_lshl_b32 s{sA}, s{sRT2}, 3", f"s_add_u32 s{sA}, s{sA}, s{sISG}", f"s_lshl_b32 s{sA}, s{sA}, 3",
                 f"s_add_u32 s{sA}, s{sA}, s{sW}", f"s_lshl_b32 s{sT2}, s{sA}, 10",
                 I(f"buffer_load_dwordx4 {vr(XR,4)}, v{vL16}, {sr(SX,4)}, s{sT2} offen", vm="ep")]]
    tag_math = L(f"""
        v_add_u32 v{vTAG}, 1, v{vTAG}
        v_and_b32 v{vTAG}, 0x0fff3fff, v{vTAG}
        v_or_b32 v{vTAG}, 0x20000000, v{vTAG}
        s_mov_b32 s{sB}, 0x3f803f80
        v_readfirstlane_b32 s{sTAG}, v{vTAG}
        """)
    def row_math():
        o = []
        for d in range(4):
            o += [f"v_dot2_f32_bf16 v{S1}, v{XR+d}, s{sB}, {'0' if d == 0 else f'v{S1}'}",
                  f"v_dot2_f32_bf16 v{S2}, v{XR+d}, v{XR+d}, {'0' if d == 0 else f'v{S2}'}"]
        o += [f"v_mov_b32 v{XR+1}, v{vTAG}", f"v_permlane32_swap_b32 v{S1}, v{S2}", f"v_add_f32 v{S1}, v{S1}, v{S2}"]
        o += [f"v_add_f32_dpp v{S1}, v{S1}, v{S1} {d} row_mask:0xf bank_mask:0xf"
              for d in ("quad_perm:[1,0,3,2]", "quad_perm:[2,3,0,1]", "row_half_mirror", "row_mirror")]
        o += [f"v_add_f32_dpp v{S1}, v{S1}, v{S1} row_bcast:15 row_mask:0xa bank_mask:0xf"]
        o += L(f"""
        v_mul_f32 v{S1}, {fx(1/512)}, v{S1}
        v_readlane_b32 s{sB}, v{S1}, 31
        v_readlane_b32 s{sC}, v{S1}, 63
        v_mul_f32 v{S1}, s{sB}, s{sB}
        v_sub_f32 v{S1}, s{sC}, v{S1}
        v_max_f32 v{S1}, 0, v{S1}
        v_cvt_pk_bf16_f32 v{S1}, v{S1}, v{S1}
        v_lshlrev_b32 v{S1}, 16, v{S1}
        v_add_f32 v{S1}, {fx(1e-5)}, v{S1}
        v_cvt_pk_bf16_f32 v{S1}, v{S1}, v{S1}
        v_lshlrev_b32 v{S1}, 16, v{S1}
        v_sqrt_f32 v{S1}, v{S1}
        s_lshl_b32 s{sA}, s{sA}, 3
        v_cvt_pk_bf16_f32 v{XR}, v{S1}, -s{sB}
        s_add_u32 s{sA}, s{sA}, {WS_RS}
        """)
        if "nors" not in opt: o += [one(f"buffer_store_dwordx2 {vr(XR,2)}, off, {sr(SWS,4)}, s{sA} sc1", vm="rs", wvm="wps")]
        return o
    def h_load(t):
        return [[f"s_and_b32 s{sT2}, s{sW}, 3", f"s_lshl_b32 s{sT2}, s{sT2}, 10",
                 I(f"buffer_load_dwordx4 {vr(vHE,4)}, v{vL16}, {sr(SH,4)}, s{sT2} offen", vm="hl")],
                [f"s_and_b32 s{sT2}, s{sW}, 3", f"s_lshl_b32 s{sT2}, s{sT2}, 10",
                 f"s_sub_u32 s{sT2}, s{sT2}, 4", f"v_add_u32 v{t}, s{sT2}, v{vL16}",
                 I(f"buffer_load_dword v{vHP}, v{t}, {sr(SH,4)}, 0 offen", vm="hl")]]
    vZ4 = 140
    h_math = ([I(f"v_alignbit_b32 v{vHO_}, v{vHE}, v{vHP}, 16", wvm="hl")] +
              [f"v_alignbit_b32 v{vHO_+d}, v{vHE+d}, v{vHE+d-1}, 16" for d in range(1, 4)] +
              [f"v_mov_b32 v{vZ4+d}, 0" for d in range(4)] + [L(f"""
        s_lshr_b32 s{sT2}, s{sW}, 2
        s_mul_i32 s{sT2}, s{sT2}, {CVCH}
        s_add_u32 s{sT2}, s{sT2}, {L_CV}
        v_min_u32 v{vHP+1}, 35, v0
        v_lshlrev_b32 v{vHP+1}, 4, v{vHP+1}
        v_lshrrev_b32 v{vHP}, 5, v0
        v_lshl_add_u32 v{vHP+1}, v{vHP}, 12, v{vHP+1}
        v_add_u32 v{vHP+1}, s{sT2}, v{vHP+1}
        s_and_b32 s{sT3}, s{sW}, 3
        s_lshl_b32 s{sT3}, s{sT3}, 10
        s_add_u32 s{sT2}, s{sT2}, s{sT3}
        v_add_u32 v{vHP}, s{sT2}, v{vL16}
        """)])
    h_write = [I(f"ds_write_b128 v{vHP}, {vr(vHE,4)} offset:4608", lg="hw"),
               I(f"ds_write_b128 v{vHP}, {vr(vHO_,4)} offset:{4608+4160}", lg="hw"),
               I(f"ds_write_b128 v{vHP+1}, {vr(vZ4,4)} offset:4096", lg="hw")]
    vFL, vFA = 18, 19
    def wf_addr_(sE, vFA, vFL): return L(f"""
        s_lshl_b32 s{sT2}, s{sCT2}, 3
        s_add_u32 s{sT2}, s{sT2}, s{sW}
        s_and_b32 s{sE}, s{sCT2}, 6
        s_lshl_b32 s{sE}, s{sE}, 1
        s_add_u32 s{sE}, s{sE}, s{sWC}
        s_lshl_b32 s{sE}, s{sE}, 1
        s_and_b32 s{sT3}, s{sCT2}, 1
        s_add_u32 s{sE}, s{sE}, s{sT3}
        s_lshl_b32 s{sE}, s{sE}, 4
        s_add_u32 s{sE}, s{sE}, s{sWR}
        s_lshl_b32 s{sE}, s{sE}, 5
        s_add_u32 s{sE}, s{sE}, {WS_RS + 64 + 4}
        s_mul_i32 s{sT2}, s{sT2}, 28672
        s_mul_i32 s{sT3}, s{sHI}, 12288
        s_add_u32 s{sT2}, s{sT2}, s{sT3}
        s_add_u32 s{sT2}, s{sT2}, {WS_WT}
        s_lshl_b32 s{sT3}, s{sRBL}, 10
        s_add_u32 s{sMO}, s{sT2}, s{sT3}
        s_xor_b32 s{sMO+1}, s{sMO}, 1024
        s_xor_b32 s{sMO+2}, s{sMO}, 2048
        s_xor_b32 s{sMO+3}, s{sMO}, 3072
        v_min_u32 v{vFA}, 27, v0
        v_and_b32 v{vFL}, 28, v{vFA}
        v_add_u32 v{vFA}, v{vFA}, v{vFL}
        v_lshlrev_b32 v{vFA}, 3, v{vFA}
        """)
    wf_addr = wf_addr_(sE, vFA, vFL)
    wf_ld = f"buffer_load_dword v{vFL}, v{vFA}, {sr(SWS,4)}, s{sE} offen sc1"
    def wd_loads():
        o = []
        for i in range(28):
            ks, mt = divmod(i, 4)
            g = []
            if i == 16:
                g += [f"s_mul_i32 s{sT3}, s{sHI}, 28672"] + [f"s_sub_u32 s{sMO+m}, s{sMO+m}, s{sT3}" for m in range(4)]
            g += [f"s_add_u32 s{sT3}, s{sMO+mt}, {4096*ks}",
                  I(f"buffer_load_dwordx4 {vr(WDF(i),4)}, v{vL16}, {sr(SWS,4)}, s{sT3} offen sc1", vm=f"wd{ks}")]
            o.append(g)
        return o
    vKA, vKL = 29, 30
    kf_addr = [f"v_and_b32 v{vKA}, 31, v0", f"v_lshlrev_b32 v{vKA}, 2, v{vKA}", f"s_lshl_b32 s{sC}, s{sXCD}, 7",
               f"s_add_u32 s{sC}, s{sC}, {WS_FKV}"]
    kf_ld = f"buffer_load_dword v{vKL}, v{vKA}, {sr(SWS,4)}, s{sC} offen sc1"
    def r_dma(t):
        return L(f"""
        s_lshr_b32 s{sT2}, s{sW}, 2
        s_mul_i32 s{sT3}, s{sT2}, {CVCH - 4096}
        s_lshl_b32 s{sT2}, s{sT2}, 4
        v_lshl_add_u32 v{t}, v0, 5, s{sT2}
        s_lshl_b32 s{sT2}, s{sW}, 10
        s_add_u32 s{sT3}, s{sT3}, s{sT2}
        s_add_u32 m0, s{sT3}, {L_CV}
        s_and_b32 s{sT2}, s{sM0X}, 0x1800
        s_lshl_b32 s{sT3}, s{sCP}, 13
        s_add_u32 s{sT2}, s{sT2}, s{sT3}
        s_add_u32 s{sT2}, s{sT2}, {WS_KV}
        """) + [I(f"buffer_load_dwordx4 v{t}, {sr(SWS,4)}, s{sT2} offen sc1 lds", vm="R")]

    WL = wd_loads()
    wsched = {17: 1, 18: 1, 19: 1, 21: 1, 22: 1, 23: 1, 24: 1, 25: 2, 26: 2, 27: 2, 29: 1, 30: 2, 31: 2}
    wsched = {k: n for k, n in wsched.items() if k >= oi("pw", 22) + 3}
    wepi = [int(x) for x in str(oi("we", 3320)).zfill(4)]
    NPRE = sum(wsched.values()) + sum(wepi)
    vq_pro = list(a.vq)
    a(f"s_cmp_eq_u32 s{sISG}, 0\ns_cbranch_scc1 {AUX}")
    if "nogemm" in opt: a(f"s_branch {END}")
    a(chunk_dma(0))
    WP, vWPA, vWPS, vWPL, CSA, CS1 = 208, 212, 213, 214, 240, 236
    sWPS, sWPF, sWPM = SSH, SSH + 1, SSH + 3
    a(f"""
    v_and_b32 v23, 3, v20
    v_lshrrev_b32 v26, 5, v0
    v_lshl_add_u32 v23, v26, 3, v23
    v_lshlrev_b32 v26, 4, v22
    v_lshl_add_u32 v{vWPL}, v23, 10, v26
    s_mov_b32 s{sE}, s{sXCD}
    s_lshl_b32 s{sT2}, s{sRBL}, 1
    s_add_u32 s{sT2}, s{sT2}, s{sB}
    s_mul_i32 s{sT3}, s{sT2}, 7
    s_add_u32 s{sT3}, s{sT3}, s{sCT2}
    s_mul_i32 s{sWPS}, s{sE}, 56
    s_add_u32 s{sWPS}, s{sWPS}, s{sT3}
    s_lshl_b32 s{sWPS}, s{sWPS}, 12
    s_lshl_b32 s{sT1}, s{sC}, 8
    s_add_u32 s{sWPS}, s{sWPS}, s{sT1}
    s_add_u32 s{sWPS}, s{sWPS}, {WS_WT}
    s_lshl_b32 s{sT3}, s{sT3}, 15
    s_lshl_b32 s{sT1}, s{sWR}, 12
    s_add_u32 s{sT3}, s{sT3}, s{sT1}
    s_lshl_b32 s{sT1}, s{sWC}, 14
    s_and_b32 s{sT1}, s{sT1}, 0x4000
    s_add_u32 s{sT3}, s{sT3}, s{sT1}
    s_lshl_b32 s{sT1}, s{sE}, 7
    s_add_u32 s{sWPF}, s{sT3}, s{sT1}
    s_lshl_b32 s{sT2}, s{sW}, 10
    s_add_u32 s{sWPM}, s{sT2}, {L_WP}
    s_barrier
    """)
    wp_load = [f"s_mov_b32 m0, s{sWPM}", I(f"buffer_load_dwordx4 v{vWPL}, {sr(SWD,4)}, s{sWPF} offen lds", vm="wpl")]
    SWL, SWR, SRS, SPW, SHL, SPF, SRL = oi("wl", 4), oi("wr", 12), oi("rs", 17), oi("pw", 22), oi("hl", 13), oi("pf", 0), oi("rl", -1)
    SKF, SRD = oi("kf", 24), oi("rd", 29)
    if SWL < 0: a(wp_load)
    if oi("pm", 1) == 1:
        sel = f"""
        s_cmp_lg_u32 s{sW}, 7
        s_cbranch_scc1 L_nopf
        s_add_u32 s{sT3}, s{sISG}, 3
        s_cmp_gt_u32 s{sISG}, 4
        s_cselect_b32 s{sT3}, s{sISG}, s{sT3}
        """
        pick = f"s_cmp_gt_u32 s{sISG}, 4"
    else:
        sel = f"""
        s_cmp_lt_u32 s{sW}, 6
        s_cbranch_scc1 L_nopf
        s_mov_b32 s{sT3}, s{sISG}
        """
        pick = f"s_cmp_eq_u32 s{sW}, 6"
    pf_load = L(sel + f"""
        s_lshl_b32 s{sT2}, s{sRBL}, 3
        s_add_u32 s{sT2}, s{sT2}, s{sT3}
        s_lshl_b32 s{sT2}, s{sT2}, 16
        s_xor_b32 s{sT3}, s{sXCD}, s{sT3}
        s_lshl_b32 s{sT3}, s{sT3}, 7
        s_add_u32 s{sT2}, s{sT2}, s{sT3}
        v_lshlrev_b32 v{WDF(0)}, 10, v0
        {pick}
        s_cbranch_scc1 L_pfk
        buffer_load_dword v{WDF(0)}, v{WDF(0)}, {sr(SV,4)}, s{sT2} offen
        s_branch L_nopf
        L_pfk:
        buffer_load_dword v{WDF(0)}, v{WDF(0)}, {sr(SK,4)}, s{sT2} offen
        L_nopf:
        """)
    a(f"""
    v_lshlrev_b32 v23, 7, v24
    v_lshl_add_u32 v23, v21, 5, v23
    v_lshl_add_u32 v23, v25, 3, v23
    v_add_u32 v{vWPA}, s{sWPM}, v23
    """)
    C1E = oi("c1e", 6)
    if "rowl" not in opt: a(row_load())
    a(chunk_dma(1)[:C1E])
    if SPF < 0 and "nopf" not in opt: a(pf_load)
    a(f"""
    v_and_b32 v23, 15, v0
    v_lshlrev_b32 v23, 4, v23
    v_lshl_add_u32 v{vWPS}, v21, 10, v23
    v_and_b32 v24, 31, v0
    v_lshrrev_b32 v25, 5, v0
    v_bfe_u32 v22, v0, 1, 3
    v_xor_b32 v22, v22, v25
    v_lshlrev_b32 v22, 4, v22
    v_lshl_add_u32 v22, v24, 7, v22
    s_lshl_b32 s{sT0}, s{sWR}, 13
    v_add_u32 v{vXB}, s{sT0}, v22
    v_xor_b32 v{vXB+1}, 32, v{vXB}
    v_xor_b32 v{vXB+2}, 64, v{vXB}
    v_xor_b32 v{vXB+3}, 96, v{vXB}
    v_add_u32 v{vXB+4}, {2*STAGE}, v{vXB}
    v_add_u32 v{vXB+5}, {2*STAGE}, v{vXB+1}
    v_add_u32 v{vXB+6}, {2*STAGE}, v{vXB+2}
    v_add_u32 v{vXB+7}, {2*STAGE}, v{vXB+3}
    v_bfe_u32 v23, v0, 2, 2
    v_lshl_add_u32 v24, v25, 3, v23
    v_lshlrev_b32 v24, 8, v24
    v_xor_b32 v23, s{sWC}, v23
    v_lshl_add_u32 v24, v23, 6, v24
    v_bfe_u32 v23, v0, 4, 1
    v_lshl_add_u32 v24, v23, 5, v24
    v_and_b32 v23, 3, v0
    v_lshl_add_u32 v24, v23, 3, v24
    v_add_u32 v{vWB}, 16384, v24
    v_add_u32 v{vWB+1}, {STAGE+16384}, v24
    v_add_u32 v{vWB+2}, {2*STAGE+16384}, v24
    v_mov_b32 v{CS1}, 0x3f803f80
    v_mov_b32 v{CS1+1}, 0x3f803f80
    v_mov_b32 v{CS1+2}, 0x3f803f80
    v_mov_b32 v{CS1+3}, 0x3f803f80
    """)
    stamp("K0")

    def F(s): return FR + 16 * (s & 1)
    def reads(s):
        c, j = divmod(s, 4)
        st = c % 3
        xb = vXB + j + (4 if st == 2 else 0); im = STAGE if st == 1 else 0
        wb = vWB + st; wo = 4096 * j
        f = F(s); t = f"r{s}"
        return [I(f"ds_read_b64_tr_b16 {vr(f,2)}, v{wb} offset:{wo}", lg=t),
                I(f"ds_read_b64_tr_b16 {vr(f+2,2)}, v{wb} offset:{wo+1024}", lg=t),
                I(f"ds_read_b128 {vr(f+8,4)}, v{xb} offset:{im}", lg=t),
                I(f"ds_read_b64_tr_b16 {vr(f+4,2)}, v{wb} offset:{wo+16384}", lg=t),
                I(f"ds_read_b64_tr_b16 {vr(f+6,2)}, v{wb} offset:{wo+17408}", lg=t),
                I(f"ds_read_b128 {vr(f+12,4)}, v{xb} offset:{im+4096}", lg=t)]
    def mfmas(A, B, first=False):
        out = []
        for nt in range(2):
            for m in range(2):
                d = ACC + 32 * m + 16 * nt
                out.append(f"v_mfma_f32_32x32x16_bf16 {vr(d,16)}, {vr(A[m],4)}, {vr(B[nt],4)}, {'0' if first else vr(d,16)}")
        return out
    def cs_mfma(p):
        o = []
        for m in range(2):
            o += [f"s_bitcmp1_b32 s{sCSM}, {m}", f"s_cbranch_scc0 L_cs{p}_{m}",
                  f"v_mfma_f32_32x32x16_bf16 {vr(CSA,16)}, {vr(CS1,4)}, {vr(F(p)+4*m,4)}, {'0' if p == 0 else vr(CSA,16)}",
                  f"L_cs{p}_{m}:"]
        return o
    sCSB = SSH + 2
    cs_store = [L(f"""
        s_lshl_b32 s{sCSB}, s{sCB}, 2
        s_add_u32 s{sCSB}, s{sCSB}, s{sWC}
        s_lshl_b32 s{sCSB}, s{sCSB}, 10
        s_add_u32 s{sCSB}, s{sCSB}, {WS_CS}
        s_cmp_eq_u32 s{sCSM}, {'s%d' % sCSM if "nocs" in opt else 0}
        s_cbranch_scc1 L_nocs
        v_cvt_pk_bf16_f32 v{CSA+1}, v{CSA}, v{CSA}
        s_mul_i32 s{sT2}, s{sWR}, 57344
        v_lshlrev_b32 v{CSA+1}, 16, v{CSA+1}
        s_lshr_b32 s{sT3}, s{sKEY}, 1
        v_sub_f32 v{CSA+1}, v{CSA}, v{CSA+1}
        s_lshl_b32 s{sT3}, s{sT3}, 3
        v_cvt_pk_bf16_f32 v{CSA}, v{CSA}, v{CSA+1}
        s_add_u32 s{sT2}, s{sT2}, s{sT3}
        v_mov_b32 v{CSA+1}, v{vTAG}
        s_add_u32 s{sT2}, s{sT2}, s{sCSB}
        v_lshlrev_b32 v{CSA+2}, 5, v0
        s_mov_b32 exec_hi, 0
        buffer_store_dwordx2 {vr(CSA,2)}, v{CSA+2}, {sr(SWS,4)}, s{sT2} offen sc1
        s_mov_b32 exec_hi, -1
        L_nocs:
        """)]
    EG, EU, ER, EB0, EB1 = 128, 132, 20, 136, 140
    ex_addr = L(f"""
        v_and_b32 v24, 31, v0
        v_lshrrev_b32 v25, 5, v0
        v_lshlrev_b32 v25, 4, v25
        v_lshl_add_u32 v{vX0}, v24, 5, v25
        v_and_b32 v24, 15, v0
        v_lshrrev_b32 v25, 4, v0
        v_lshlrev_b32 v25, 3, v25
        v_lshl_add_u32 v{vX1}, v24, 5, v25
        s_lshl_b32 s{sKEY}, s{sRB}, 1
        s_add_u32 s{sKEY}, s{sKEY}, s{sWR}
        s_lshl_b32 s{sWB}, s{sKEY}, 9
        s_add_u32 s{sWB}, s{sWB}, {WS_RS}
        s_add_u32 s{sXB}, s{sCSB}, 57344
        """)
    ex_ld = [f"buffer_load_dwordx4 {vr(EG,4)}, v{vX0}, {sr(SWS,4)}, s{sCSB} offen sc1",
             f"buffer_load_dwordx4 {vr(EU,4)}, v{vX0}, {sr(SWS,4)}, s{sXB} offen sc1",
             f"buffer_load_dwordx2 {vr(ER,2)}, v{vX1}, {sr(SWS,4)}, s{sWB} offen sc1"]
    ex_check = L(f"""
        v_min3_u32 v24, v{EG+1}, v{EG+3}, v{ER+1}
        v_max3_u32 v25, v{EG+1}, v{EG+3}, v{ER+1}
        v_min3_u32 v24, v24, v{EU+1}, v{EU+3}
        v_max3_u32 v25, v25, v{EU+1}, v{EU+3}
        v_cmp_ne_u32 vcc, s{sTAG}, v24
        v_cmp_ne_u32 s[{sT0}:{sT1}], s{sTAG}, v25
        s_or_b64 vcc, vcc, s[{sT0}:{sT1}]
        """)
    AP, BP, SS, vHO, TM = 22, 24, 26, 28, FR
    RM = row_math()
    def part(lst, i, n): return lst[len(lst) * i // n:len(lst) * (i + 1) // n]
    wi = 0
    for s in range(33):
        c, j = divmod(s, 4)
        fill = []; pre = []
        if j == 0 and s < 32:
            a(I(wvm=f"c{c}", wlg="*"))
            a("s_barrier")
            stamp(f"B{c}")
        if s == SWL: pre += [wp_load]
        if s == SPF and "nopf" not in opt: pre += [pf_load]
        if s == SPW: pre += [I(wf_ld, vm="fw")]
        if s == SKF: pre += [I(kf_ld, vm="kf")]
        if s == 28: pre += [I(x, vm="ex") for x in ex_ld]
        if s == 0:
            assert C1E in (0, 2, 4, 6)
            if 0 < C1E < 6: fill += [chunk_dma(1)[0][:4]]
            fill += chunk_dma(1)[C1E:]
            if "rowl" in opt: fill += row_load()
        if c == 0 and C1E < 6: fill += chunk_dma(2)[(0, 0, 2, 4)[j]:(0, 2, 4, 6)[j]]
        elif c <= 5: fill += chunk_dma(c + 2)[(0, 2, 3, 5)[j]:(2, 3, 5, 6)[j]]
        if s < 32: a(reads(s))
        if s == 0:
            a(pre + fill); continue
        p = s - 1
        v = []
        if s in (SHL, SHL + 2): fill += [h_load(24)[(s - SHL) >> 1]]
        if s == 4: v += [I(tag_math[0], wvm="ep")] + tag_math[1:]
        if s == SWR:
            fill += [I(f"ds_read_b64_tr_b16 {vr(WP,2)}, v{vWPA}", lg="wp", wvm="wpl"),
                     I(f"ds_read_b64_tr_b16 {vr(WP+2,2)}, v{vWPA} offset:512", lg="wp")]
        if s == SWR + 1: fill += [I(f"buffer_store_dwordx4 {vr(WP,4)}, v{vWPS}, {sr(SWS,4)}, s{sWPS} offen sc1", vm="wps", wlg="wp")]
        if 5 <= s <= 9: v += part(RM[:-1], s - 5, 5)
        if s == SRS: fill += [RM[-1]]
        if s == 10: v += cs_store
        if s == 11: v += [wf_addr]
        if 21 <= s <= 23: v += part(h_math, s - 21, 3)
        if s == SPW + 3: pre += [[I(wvm="fw")] + ne(vFL) + ["s_cbranch_scc0 L_fw_ok"] + spin("fw", [wf_ld], ne(vFL))]
        if s == 19: v += kf_addr
        if s in (24, 25, 26): v += [h_write[s - 24]]
        if s == 27: v += ex_addr
        if s == SRD: fill = [[I(wvm="kf")] + ne(vKL) + [f"s_cselect_b32 s{sOK}, 0, 1"] + r_dma(oi("rt", 24))] + fill
        if s == 30: v += [f"v_mov_b32 v{r}, 0" for r in (EB0 + 1, EB0 + 3, EB1 + 1, EB1 + 3)] + [f"s_mov_b32 s{sB}, 0x03020302"]
        n = wsched.get(s, 0); fill += WL[wi:wi + n]; wi += n
        if s == 32:
            a(I(wvm="ex"))
            a(ex_check + ["s_cbranch_scc0 L_ex_ok"] + spin("ex", ex_ld, ex_check))
            v += L(f"""
            v_mov_b32 v{ER+1}, v{ER}
            v_permlane32_swap_b32 v{ER}, v{ER+1}
            v_perm_b32 v{EB0}, v{ER}, v{ER}, s{sB}
            v_perm_b32 v{EB0+2}, v{ER}, v{ER}, s{sB}
            v_perm_b32 v{EB1}, v{ER+1}, v{ER+1}, s{sB}
            v_perm_b32 v{EB1+2}, v{ER+1}, v{ER+1}, s{sB}
            v_lshlrev_b32 v{ER}, 16, v{ER}
            v_lshlrev_b32 v{ER+1}, 16, v{ER+1}
            """)
        fill = pre + (mix(v, fill) if len(v) >= len(fill) else mix(fill, v)) if (v and fill) else pre + v + fill
        a(I(wlg=f"r{p}"))
        f = F(p)
        a(mix(mfmas((f, f + 4), (f + 8, f + 12), p == 0), fill))
        if p < 8 and "nocs" not in opt: a(cs_mfma(p))
        stamp(f"s{s}")
    fill = []
    EO = oi("eo", 2)
    cA, cB, cS = ([lambda nt, b=b: b + nt for b in (AP, BP, SS)] if EO == 0 else
                  [lambda nt, b=b: FR + 16 + 6 * nt + b for b in (0, 2, 4)])
    for nt in range(2):
        fill += [f"v_rcp_f32 v{TM+nt}, v{ER+nt}", f"v_mul_f32 v{cS(nt)}, v{ER+nt}, v{ER+nt}"]
        if EO == 2: fill += [f"v_mul_f32 v{cS(nt)+1}, v{ER+nt}, v{ER+nt}"]
    for nt in range(2):
        fill += [f"v_mul_f32 v{cA(nt)}, {fx(-KC)}, v{TM+nt}"]
        if EO == 2: fill += [f"v_mul_f32 v{cA(nt)+1}, {fx(-KC)}, v{TM+nt}"]
        fill += [f"v_mul_f32 v{TM+nt}, v{TM+nt}, v{TM+nt}",
                 f"v_mul_f32 v{TM+nt}, {fx(0.044715)}, v{TM+nt}", f"v_mul_f32 v{cB(nt)}, v{cA(nt)}, v{TM+nt}"]
        if EO == 2: fill += [f"v_mul_f32 v{cB(nt)+1}, v{cA(nt)}, v{TM+nt}"]
    sHF = SK
    fill += L(f"""
    v_bfe_u32 v{TM+8}, v0, 4, 1
    v_mul_u32_u24 v{TM+8}, 57344, v{TM+8}
    v_and_b32 v{TM+9}, 15, v0
    v_lshl_add_u32 v{TM+8}, v{TM+9}, 4, v{TM+8}
    v_lshrrev_b32 v{TM+9}, 5, v0
    v_lshl_add_u32 v{vHO}, v{TM+9}, 8, v{TM+8}
    s_mul_i32 s{sXB}, s{sKEY}, {4*56*1024}
    s_add_u32 s{sXB}, s{sXB}, s{sCSB}
    s_add_u32 s{sXB}, s{sXB}, {WS_H - WS_CS}
    s_add_u32 s{sWB}, s{sXB}, {2*56*1024}
    s_sub_u32 s{sHF}, s{sCSB}, {WS_CS}
    s_lshr_b32 s{sHF}, s{sHF}, 8
    s_mul_i32 s{sT0}, s{sHF}, 37
    s_lshr_b32 s{sT0}, s{sT0}, 10
    s_mul_i32 s{sT0}, s{sT0}, 100
    s_add_u32 s{sHF}, s{sHF}, s{sT0}
    s_lshl_b32 s{sT0}, s{sKEY}, 10
    s_add_u32 s{sHF}, s{sHF}, s{sT0}
    s_add_u32 s{sHF}, s{sHF}, {WS_FH}
    """)
    a(mix(mfmas((EG, EU), (EB0, EB1)), fill))
    stamp("B8")
    def epi(G, U, nt, rr, pk):
        o = []
        t = {r: TM + 2 * i for i, r in enumerate(rr)}
        P = lambda x: vr(x, 2)
        s2 = (f"op_sel:[0,{nt},{nt}] op_sel_hi:[1,{nt},{nt}]", "op_sel_hi:[1,0,0]", "")[EO]
        AP, BP, SS = [f(nt) & ~1 for f in (cA, cB, cS)]
        o += [f"v_pk_mul_f32 {P(t[r])}, {P(G+r)}, {P(G+r)}" for r in rr]
        o += [f"v_pk_fma_f32 {P(t[r])}, {P(t[r])}, {P(BP)}, {P(AP)} {s2}" for r in rr]
        o += [f"v_pk_mul_f32 {P(t[r])}, {P(t[r])}, {P(G+r)}" for r in rr]
        o += mix([f"v_exp_f32 v{t[r]+i}, v{t[r]+i}" for r in rr for i in range(2)],
                 [f"v_pk_mul_f32 {P(U+r)}, {P(U+r)}, {P(G+r)}" for r in rr])
        o += [f"v_pk_fma_f32 {P(t[r])}, {P(t[r])}, {P(SS)}, {P(SS)} {s2}" for r in rr]
        o += [f"v_rcp_f32 v{t[r]+i}, v{t[r]+i}" for r in rr for i in range(2)]
        o += [f"v_pk_mul_f32 {P(U+r)}, {P(U+r)}, {P(t[r])}" for r in rr]
        o += [f"v_cvt_pk_bf16_f32 v{pk+i}, v{U+r}, v{U+r+1}" for i, r in enumerate(rr)]
        return o
    for nt in range(2):
        G = ACC + 16 * nt; U = ACC + 32 + 16 * nt
        for h in range(2):
            pk = TM + 8 + 4 * h
            seq = epi(G, U, nt, range(8 * h, 8 * h + 8, 2), pk)
            n = wepi[2 * nt + h]
            a(mix(seq, WL[wi:wi + n])); wi += n
            so = sXB if nt == 0 else sWB
            a(I(f"buffer_store_dwordx4 {vr(pk,4)}, v{vHO}, {sr(SWS,4)}, s{so} offen offset:{512*h} sc1", vm="hs"))
            stamp(f"e{2*nt+h}")
    assert wi == NPRE
    a(f"s_branch {JOIN}")
    vq_join = list(a.vq)

    a(f"{AUX}:")
    if "noaux" in opt: a(f"s_branch {END}")
    a.vq, a.lq = list(vq_pro), []
    vKa, vKb, TP, vT, vKS, KR, KT = 1, 2, 32, 6, 10, 48, 96
    sKO, sKL = sXB, sWB
    a(row_load())
    a(f"""
    s_xor_b32 s{sCB}, s{sXCD}, s{sW}
    v_and_b32 v23, 1, v21
    v_lshlrev_b32 v23, 1, v23
    v_xor_b32 v23, v22, v23
    v_lshlrev_b32 v23, 4, v23
    v_lshl_add_u32 v{vKa}, v20, 10, v23
    {f"v_lshlrev_b32 v{vKa}, 4, v0" if "kvlin" in opt else ""}
    v_xor_b32 v{vKb}, 64, v{vKa}
    s_lshl_b32 s{sKO}, s{sRBL}, 3
    s_add_u32 s{sKO}, s{sKO}, s{sW}
    s_mov_b32 s{sKEY}, s{sKO}
    s_lshl_b32 s{sKO}, s{sKO}, 16
    s_lshl_b32 s{sT0}, s{sCB}, {13 if "kvlin" in opt else 7}
    s_add_u32 s{sKO}, s{sKO}, s{sT0}
    s_mul_i32 s{sKL}, s{sW}, 17408
    s_mov_b32 m0, s{sKL}
    s_cmp_eq_u32 s{sKEY}, 0
    s_cbranch_scc1 L_halo0
    s_sub_u32 s{sT0}, s{sKO}, 8192
    buffer_load_dwordx4 v{vKa}, {sr(SK,4)}, s{sT0} offen lds
    s_branch L_halo1
    L_halo0:
    v_mov_b32 v40, 0
    v_mov_b32 v41, 0
    v_mov_b32 v42, 0
    v_mov_b32 v43, 0
    ds_write_b128 v{vL16}, v[40:43]
    L_halo1:
    """)
    def kv_ld(m, b, tag):
        lb = (1 + b) if m == 0 else (9 + b)
        par = (lb & 1) if m == 0 else (b & 1)
        return [f"s_add_u32 m0, s{sKL}, {1024*lb}", f"s_add_u32 s{sT0}, s{sKO}, {(1024 if 'kvlin' in opt else 8192)*b}",
                I(f"buffer_load_dwordx4 v{vKb if par else vKa}, {sr(SV if m else SK,4)}, s{sT0} offen lds", vm=tag)]
    for b in range(4): a(kv_ld(0, b, "k0")); a(kv_ld(1, b, "k0"))
    a(f"""
    v_and_b32 v23, 15, v0
    v_lshlrev_b32 v26, 3, v23
    s_lshl_b32 s{sT1}, s{sCB}, 9
    """)
    for cg in range(4):
        a(I(f"buffer_load_dwordx2 {vr(TP+2*cg,2)}, v26, {sr(SSH,4)}, s{sT1} offen offset:{128*cg}", vm="k0"))
    for b in range(4, 8): a(kv_ld(0, b, "k1")); a(kv_ld(1, b, "k1"))
    a(h_load(27))
    stamp("iss", 4)
    a(f"""
    v_lshlrev_b32 v26, 7, v24
    v_lshl_add_u32 v26, v21, 10, v26
    v_lshl_add_u32 v26, v25, 3, v26
    v_lshrrev_b32 v27, 1, v24
    v_lshl_add_u32 v26, v27, 5, v26
    v_and_b32 v27, 1, v21
    v_lshl_add_u32 v26, v27, 6, v26
    v_add_u32 v{vT}, s{sKL}, v26
    v_xor_b32 v{vT+1}, 32, v{vT}
    v_xor_b32 v{vT+2}, 64, v{vT}
    v_xor_b32 v{vT+3}, 96, v{vT}
    v_lshrrev_b32 v26, 1, v23
    v_lshlrev_b32 v26, 13, v26
    v_and_b32 v27, 1, v0
    v_lshl_add_u32 v26, v27, 4, v26
    v_sub_u32 v27, 3, v21
    v_lshl_add_u32 v{vKS}, v27, 5, v26
    s_lshl_b32 s{sKO}, s{sCB}, 18
    s_lshl_b32 s{sT0}, s{sKEY}, 8
    s_sub_u32 s{sKO}, s{sKO}, s{sT0}
    s_add_u32 s{sKO}, s{sKO}, {WS_KV + 8192 - 256}
    """)
    a(I(wvm="ep")); a(tag_math); a(row_math())
    stamp("rs", 1)
    def kv_read(hh, cg):
        r = KR + 10 * cg; t = f"kr{cg}"
        return [I(f"ds_read_b64_tr_b16 {vr(r,2)}, v{vT+cg} offset:{4096*hh+512}", lg=t),
                I(f"ds_read_b64_tr_b16 {vr(r+2,2)}, v{vT+(cg^2)} offset:{4096*hh+1024}", lg=t),
                I(f"ds_read_b64_tr_b16 {vr(r+4,2)}, v{vT+(cg^2)} offset:{4096*hh+1536}", lg=t),
                I(f"ds_read_b64_tr_b16 {vr(r+6,2)}, v{vT+cg} offset:{4096*hh+9216}", lg=t),
                I(f"ds_read_b64_tr_b16 {vr(r+8,2)}, v{vT+cg} offset:{4096*hh+9728}", lg=t)]
    def kv_math(hh, cg):
        r = KR + 10 * cg; q, u, w, pk = KT, KT + 8, KT + 16, KT + 24 + 4 * (cg & 1)
        o = [I(wlg=f"kr{cg}")]
        o += [f"v_alignbit_b32 v{q+i}, v{r+i}, v{r+i-1}, 16" for i in range(1, 6)]
        src = lambda t, back: (r if t & 1 else q) + 2 + t // 2 - back
        for t in (1, 3, 5, 7, 0, 2, 4, 6): o += [f"v_dot2_f32_bf16 v{u+t}, v{src(t,0)}, v{TP+2*cg}, 0"]
        for t in (1, 3, 5, 7, 0, 2, 4, 6): o += [f"v_dot2_f32_bf16 v{u+t}, v{src(t,1)}, v{TP+2*cg+1}, v{u+t}"]
        o += [f"v_and_b32 v{w+t}, 0xffff0000, v{r+6+t//2}" if t & 1 else f"v_lshlrev_b32 v{w+t}, 16, v{r+6+t//2}" for t in range(8)]
        o += [f"v_mul_f32 v{u+t}, v{u+t}, v{w+t}" for t in range(8)]
        o += [f"v_cvt_pk_bf16_f32 v{pk+e}, v{u+7-2*e}, v{u+6-2*e}" for e in range(4)]
        o += [f"s_add_u32 s{sT0}, s{sKO}, {65536*cg}",
              I(f"buffer_store_dwordx4 {vr(pk,4)}, v{vKS}, {sr(SWS,4)}, s{sT0} offen offset:{128*(1-hh)} sc1", vm="ks")]
        return o
    for hh in range(2):
        a(I(wvm=f"k{hh}", wlg="*"))
        stamp("kin", 5 + 2 * hh)
        for cg in range(4): a(kv_read(hh, cg))
        if hh == 0:
            for d in range(8): a(f"v_alignbit_b32 v{TP+d}, v{TP+d}, v{TP+d}, 16")
        for cg in range(4): a(kv_math(hh, cg))
        stamp("km", 6 + 2 * hh)
    a(h_math); a(wf_addr)
    vKA2, vKL2 = 27, 28
    ld2 = f"buffer_load_dword v{vKL2}, v{vKA2}, {sr(SWS,4)}, s{sA} offen sc1"
    a(f"""
    s_lshl_b32 s{sT0}, s{sCB}, 5
    s_add_u32 s{sT0}, s{sT0}, s{sKEY}
    s_lshl_b32 s{sT0}, s{sT0}, 2
    s_add_u32 s{sT0}, s{sT0}, {WS_FKV}
    v_lshlrev_b32 v26, 10, v0
    v_lshlrev_b32 v{vKA2}, 3, v0
    s_lshl_b32 s{sA}, s{sRT2}, 9
    s_add_u32 s{sA}, s{sA}, {WS_RS + 4}
    """)
    a([I("s_mov_b64 exec, 3", wvm="*"), f"buffer_store_dword v{vTAG}, v26, {sr(SWS,4)}, s{sT0} offen sc1", "s_mov_b64 exec, -1"])
    stamp("kvf", 2)
    ck2 = [f"v_xor_b32 v{vFL}, s{sTAG}, v{vFL}", f"v_xor_b32 v{vKL2}, s{sTAG}, v{vKL2}", f"v_or_b32 v{vFL}, v{vFL}, v{vKL2}",
           f"v_cmp_ne_u32 vcc, 0, v{vFL}", "s_cmp_lg_u64 vcc, 0"]
    a("s_barrier")
    a(h_write)
    a(kf_addr); a(f"s_add_u32 s{sC}, s{sC}, 1024")
    stamp("wd", 3)
    a(spin("fwa", [wf_ld, ld2], ck2))
    a(f"""
    s_cmp_lg_u32 s2, 0
    s_cbranch_scc1 L_ep_ok
    s_add_u32 s{sT0}, s{sM0X}, {WS_RS}
    """)
    a(spin("ep", [f"buffer_load_dwordx4 v[32:35], v{vL16}, {sr(SWS,4)}, s{sT0} offen sc1",
                  f"buffer_load_dwordx4 v[36:39], v{vL16}, {sr(SWS,4)}, s{sT0} offen offset:1024 sc1"],
           [f"v_xor_b32 v{r}, s{sTAG}, v{r}" for r in (33, 35, 37, 39)] +
           ["v_or3_b32 v33, v33, v35, v37", "v_or_b32 v33, v33, v39", "v_cmp_ne_u32 vcc, 0, v33", "s_cmp_lg_u64 vcc, 0"]))
    NA = oi("na", 8)
    a(WL[:NA])
    a(spin("kva", [kf_ld], ne(vKL)))
    a.vq = []
    a(r_dma(24)); a(WL[NA:NPRE]); a(I(wvm="R"))
    a(f"s_branch L_kvok")

    a(f"{JOIN}:")
    a.vq, a.lq = list(vq_join), []
    stamp("join")
    a(f"s_cmp_eq_u32 s{sOK}, 1\ns_cbranch_scc1 L_kvok")
    a(spin("kv", [kf_ld], ne(vKL)))
    sv = list(a.vq); a(r_dma(24)); a(I(wvm="*")); a.vq = sv
    a("L_kvok:")
    CA, AF, BF = 32, 64, 128
    vRU, vRH, vPW, vPR, vZW, vZR, vYA, vYR, vOO = 2, 3, 4, 10, 11, 12, 13, 14, 30
    vXF, XN, vRC = 20, 22, 6
    vXF = 1
    sCH, sWQ, sCVB, sRHO = SV, SV + 1, SV + 2, SV + 3
    sOQ = SSH
    a(f"""
    s_lshr_b32 s{sCH}, s{sW}, 2
    s_and_b32 s{sWQ}, s{sW}, 3
    s_mul_i32 s{sCVB}, s{sCH}, {CVCH}
    s_add_u32 s{sCVB}, s{sCVB}, {L_CV}
    s_lshl_b32 s{sT0}, s{sWQ}, 7
    s_add_u32 s{sT0}, s{sT0}, s{sCVB}
    s_add_u32 s{sT1}, s{sT0}, 480
    v_and_b32 v15, 15, v0
    v_and_b32 v16, 48, v0
    v_lshlrev_b32 v31, 5, v15
    v_sub_u32 v31, v16, v31
    v_add_u32 v{vRU}, s{sT1}, v31
    s_add_u32 s{sT1}, s{sT0}, {4608 - 28 + 4160 + 3072}
    v_and_b32 v31, 1, v0
    v_mul_u32_u24 v31, 4160, v31
    v_sub_u32 v31, v16, v31
    v_bfe_u32 v{vRH}, v0, 1, 3
    v_lshl_add_u32 v31, v{vRH}, 2, v31
    v_add_u32 v{vRH}, s{sT1}, v31
    """)
    KHF, KHL = oi("khf", 5), oi("khl", 10)
    hf_st = [I(wvm="hs"), f"s_cmp_eq_u32 s{sISG}, 0", "s_cbranch_scc1 L_nohf",
             one(f"buffer_store_dword v{vTAG}, off, {sr(SWS,4)}, s{sHF} sc1"), "L_nohf:"]
    hf_st = [hf_st[1], hf_st[2], hf_st[0]] + hf_st[3:]
    if KHF < 0: a(hf_st); stamp("hflag")
    a(f"s_cmp_eq_u32 s{sISG}, 0\ns_cbranch_scc1 L_nowr")
    a(I(wvm="R"))
    a("L_nowr:")
    a(I(wlg="*"))
    a("s_barrier")
    stamp("c1")
    a(f"s_or_b32 s{sT0}, s2, s{sW}\ns_cbranch_scc1 L_noep")
    a(one(f"buffer_store_dword v{vTAG}, off, {sr(SWS,4)}, 0 offset:{WS_EPOCH} sc1"))
    a("L_noep:")
    order = [(0, p) for p in range(7, -1, -1)] + [(1, p) for p in range(8)]
    def uread(rr, d): return I(f"ds_read_b128 {vr(AF+32*rr+4*d,4)}, v{vRU} offset:{512*(7-d)+64*rr}", lg=f"a{rr}{d}")
    def hread(k):
        rr, p = order[k]; o = 128 * (p & 1) + 16 * rr; b = BF + 4 * (k % 4)
        g = []
        if rr == 0 and p in (5, 3, 1): g += [f"v_subrev_u32 v{vRH}, 1024, v{vRH}"]
        if rr == 1 and p in (2, 4, 6): g += [f"v_add_u32 v{vRH}, 1024, v{vRH}"]
        return g + [I(f"ds_read2_b32 {vr(b,2)}, v{vRH} offset0:{o} offset1:{o+1}", lg=f"b{k}"),
                    I(f"ds_read2_b32 {vr(b+2,2)}, v{vRH} offset0:{o+2} offset1:{o+3}", lg=f"b{k}")]
    for k in range(3): a(hread(k)); a(uread(0, k))
    for d in range(3, 8): a(uread(0, d))
    XV = (1, 18 + 2, 21, 31)
    XV = (6, 7, 8, 9); RC = (XN + 1, XN + 3, XN + 5, XN + 7)
    fin_addr = L(f"""
        s_and_b32 s{sRHO}, s{sCT2}, 3
        s_lshl_b32 s{sT0}, s{sRT2}, 16
        s_lshl_b32 s{sT1}, s{sCT2}, 7
        s_add_u32 s{sT0}, s{sT0}, s{sT1}
        s_lshl_b32 s{sT1}, s{sW}, 13
        s_add_u32 s{sT0}, s{sT0}, s{sT1}
        s_lshl_b32 s{sT1}, s{sRHO}, 10
        s_add_u32 s{sOQ}, s{sT0}, s{sT1}
        s_xor_b32 s{sOQ+1}, s{sOQ}, 1024
        s_xor_b32 s{sOQ+2}, s{sOQ}, 2048
        s_xor_b32 s{sOQ+3}, s{sOQ}, 3072
        v_and_b32 v31, 31, v0
        v_lshlrev_b32 v31, 2, v31
        v_and_b32 v1, 32, v0
        v_lshl_add_u32 v{vOO}, v1, 7, v31
        """)
    fin_ld = []
    for qd in range(4):
        fin_ld += [I(f"buffer_load_dword v{XV[qd]}, v{vOO}, {sr(SX,4)}, s{sOQ+qd} offen", vm="xt"),
                   [f"s_lshr_b32 s{sT0}, s{sOQ+qd}, 10", f"s_lshl_b32 s{sT0}, s{sT0}, 3", f"s_add_u32 s{sT0}, s{sT0}, {WS_RS}",
                    I(f"buffer_load_dword v{RC[qd]}, v1, {sr(SWS,4)}, s{sT0} offen sc1", vm="xt")]]
    xn_math = [I(wvm="xt")]
    for qd in range(4):
        x0, x1 = XN + 2 * qd, XN + 2 * qd + 1
        xn_math += L(f"""
        v_lshlrev_b32 v20, 16, v{x1}
        v_and_b32 v21, 0xffff0000, v{x1}
        v_rcp_f32 v20, v20
        v_lshlrev_b32 v{x0}, 16, v{XV[qd]}
        v_and_b32 v{x1}, 0xffff0000, v{XV[qd]}
        v_add_f32 v{x0}, v{x0}, v21
        v_add_f32 v{x1}, v{x1}, v21
        v_mul_f32 v{x0}, v{x0}, v20
        v_mul_f32 v{x1}, v{x1}, v20
        """)
    p_addr = L(f"""
        v_bfe_u32 v20, v0, 1, 2
        v_bfe_u32 v21, v0, 3, 1
        v_xor_b32 v20, v20, v21
        v_lshlrev_b32 v20, 4, v20
        v_xor_b32 v20, v20, v16
        v_lshl_add_u32 v20, v15, 6, v20
        s_lshl_b32 s{sT0}, s{sW}, 13
        v_add_u32 v{vPW}, s{sT0}, v20
        v_bfe_u32 v20, v0, 2, 2
        v_bfe_u32 v21, v0, 4, 1
        v_xor_b32 v20, v20, v21
        v_lshlrev_b32 v20, 4, v20
        v_lshlrev_b32 v21, 5, v0
        v_xor_b32 v20, v20, v21
        s_lshl_b32 s{sT0}, s{sCH}, 15
        s_lshl_b32 s{sT1}, s{sWQ}, 11
        s_add_u32 s{sT0}, s{sT0}, s{sT1}
        v_add_u32 v{vPR}, s{sT0}, v20
        s_lshl_b32 s{sT0}, s{sW}, 7
        s_lshl_b32 s{sE}, s{sRT2}, 10
        s_add_u32 s{sE}, s{sE}, s{sT0}
        s_add_u32 s{sE}, s{sE}, {WS_FH}
        v_min_u32 v{vFA}, 6, v0
        v_lshlrev_b32 v{vFA}, 2, v{vFA}
        """)
    hf_ld = wf_ld
    def pwrite(j): return I(f"ds_write_b128 v{vPW}, {vr(CA+4*j,4)} offset:{1024*j}", lg="pw")
    for k, (rr, p) in enumerate(order):
        seq = []
        for j in range(p, 8):
            c = "0" if (rr == 0 and j == p) else vr(CA + 4 * j, 4)
            seq.append(I(f"v_mfma_f32_16x16x32_bf16 {vr(CA+4*j,4)}, {vr(BF+4*(k%4),4)}, {vr(AF+32*rr+4*(j-p),4)}, {c}",
                         wlg=[f"a{rr}{j-p}", f"b{k}"]))
        fill = []
        if k == 1: fill += [fin_addr]
        if 1 <= k <= 6: fill += part(WL[NPRE:], k - 1, 6)
        if k in (3, 4): fill += fin_ld[4 * (k - 3):4 * (k - 3) + 4]
        if 4 <= k <= 7: fill += [uread(1, 2 * (k - 4)), uread(1, 2 * (k - 4) + 1)]
        if k in (6, 7): fill += part(p_addr, k - 6, 2)
        if 8 <= k <= 11: fill += part(xn_math, k - 8, 4)
        if k >= 9: fill = fill[:2] + [pwrite(p - 1)] + fill[2:]
        if k == KHF:
            fill += [hf_st]
        if k == KHL: fill += [I(hf_ld, vm="hf")]
        a(mix(seq, fill))
        if k + 3 < 16: a(hread(k + 3))
        if k == KHF: stamp("hflag")
        stamp(f"k{k}")
    HB, ZA, NS = 64, 32, 16
    sH1, sH2, sHQ = sXB, sWB, sKEY
    def hload(n):
        qd, ks = divmod(n, 7)
        g = []
        if ks == 0:
            g += [f"s_xor_b32 s{sT3}, s{sRHO}, {qd}", f"s_mul_i32 s{sT3}, s{sT3}, 57344", f"s_add_u32 s{sH1}, s{sHQ}, s{sT3}",
                  f"s_sub_u32 s{sH2}, s{sH1}, s{sRB}"]
        g.append(I(f"buffer_load_dwordx4 {vr(HB+4*(n%NS),4)}, v{vL16}, {sr(SWS,4)}, s{sH1 if ks < 4 else sH2} offen offset:{(ks&3)*1024} sc1", vm=f"h{n}"))
        return g
    NE = oi("ne", 8)
    sYS = sCB
    a(f"""
    s_mul_i32 s{sHQ}, s{sRT2}, {4*56*1024}
    s_mul_i32 s{sT1}, s{sW}, 7168
    s_add_u32 s{sHQ}, s{sHQ}, s{sT1}
    s_mul_i32 s{sT1}, s{sHI}, 3072
    s_add_u32 s{sHQ}, s{sHQ}, s{sT1}
    s_add_u32 s{sHQ}, s{sHQ}, {WS_H}
    s_mul_i32 s{sRB}, s{sHI}, 7168
    s_sub_u32 s{sRB}, s{sRB}, 4096
    s_lshl_b32 s{sT1}, s{sWQ}, 10
    s_sub_u32 s{sT1}, s{sCVB}, s{sT1}
    s_add_u32 s{sT1}, s{sT1}, 4080
    v_sub_u32 v20, s{sT1}, v{vL16}
    v_xor_b32 v21, 16, v{vPR}
    """)
    a(pwrite(7))
    a(I(wvm="hf")); a(ne(vFL))
    a(f"s_cselect_b32 s{sOK}, 0, 1\ns_cbranch_scc1 L_hlate")
    for n in range(NE): a(hload(n))
    a("L_hlate:")
    a(I(wlg="*"))
    a("s_barrier")
    stamp("c3")
    PR, vU, YA = 32, 128, 132
    a(I(f"ds_read_b128 {vr(vU,4)}, v20", lg="su"))
    for k in range(4):
        a(I(f"ds_read_b128 {vr(PR+8*k,4)}, v{vPR} offset:{8192*k}", lg=f"p{k}"))
        a(I(f"ds_read_b128 {vr(PR+8*k+4,4)}, v21 offset:{8192*k}", lg=f"p{k}"))
    a(f"""
    s_lshl_b32 s{sT1}, s{sCH}, 4
    s_lshr_b32 s{sD}, s{sD}, s{sT1}
    s_lshl_b32 s{sD}, s{sD}, 16
    s_lshl_b32 s{sT1}, s{sCP}, 13
    s_lshl_b32 s{sT3}, s{sW}, 10
    s_add_u32 s{sT1}, s{sT1}, s{sT3}
    s_add_u32 s{sT1}, s{sT1}, {WS_YT}
    s_lshl_b32 s{sYS}, s{sWQ}, 9
    s_lshl_b32 s{sT3}, s{sCP}, 1
    s_add_u32 s{sYS}, s{sYS}, s{sT3}
    s_add_u32 s{sYS}, s{sYS}, s{sCH}
    s_lshl_b32 s{sT3}, s{sYS}, 7
    s_and_b32 s{sT3}, s{sT3}, 0x380
    v_xor_b32 v31, s{sT3}, v{vL16}
    s_lshr_b32 s{sT3}, s{sT3}, 5
    s_lshr_b32 s{sYS}, s{sYS}, 3
    s_lshl_b32 s{sYS}, s{sYS}, 7
    s_add_u32 s{sYS}, s{sYS}, s{sT3}
    s_add_u32 s{sYS}, s{sYS}, {WS_FY}
    """)
    a(I(wlg="su"))
    for e in range(4):
        a(f"v_and_b32 v{YA+6-2*e}, 0xffff0000, v{vU+e}\nv_lshlrev_b32 v{YA+7-2*e}, 16, v{vU+e}")
    a(I(wlg="p0"))
    for e in range(8): a(f"v_fma_f32 v{YA+e}, v{YA+e}, s{sD}, v{PR+e}")
    a(I(wlg="p2"))
    for e in range(0, 8, 2): a(f"v_pk_add_f32 {vr(PR+8+e,2)}, {vr(PR+8+e,2)}, {vr(PR+16+e,2)}")
    a(I(wlg="p3"))
    for e in range(0, 8, 2): a(f"v_pk_add_f32 {vr(YA+e,2)}, {vr(YA+e,2)}, {vr(PR+24+e,2)}")
    for e in range(0, 8, 2): a(f"v_pk_add_f32 {vr(YA+e,2)}, {vr(YA+e,2)}, {vr(PR+8+e,2)}")
    for e in range(4): a(f"v_cvt_pk_bf16_f32 v{vU+e}, v{YA+2*e}, v{YA+2*e+1}")
    a(I(f"buffer_store_dwordx4 {vr(vU,4)}, v31, {sr(SWS,4)}, s{sT1} offen sc1", vm="ys"))
    yf_st = f"buffer_store_dword v{vTAG}, off, {sr(SWS,4)}, s{sYS} sc1"
    a(f"s_cmp_eq_u32 s{sOK}, 1\ns_cbranch_scc1 L_hgo")
    a(spin("hf", [hf_ld], ne(vFL)))
    sv = list(a.vq)
    for n in range(NE): a(hload(n))
    a.vq = sv
    a(one(yf_st))
    a("L_hgo:")
    stamp("hok")
    for n in range(NE, NS): a(hload(n))
    sYA, sYF, sSEL = sMO, sE, SK
    a(f"""
    v_lshrrev_b32 v20, 4, v0
    s_lshl_b32 s{sT1}, s{sRBL}, 2
    v_xor_b32 v21, v20, v15
    v_xor_b32 v21, s{sT1}, v21
    v_lshlrev_b32 v21, 4, v21
    v_lshl_add_u32 v21, v15, 8, v21
    s_lshl_b32 s{sT1}, s{sW}, 12
    v_add_u32 v{vZW}, s{sT1}, v21
    s_lshl_b32 s{sT1}, s{sW}, 1
    v_lshrrev_b32 v1, 5, v0
    v_add_u32 v21, s{sT1}, v1
    v_bfe_u32 v31, v0, 1, 4
    v_xor_b32 v31, v31, v21
    v_lshlrev_b32 v31, 4, v31
    v_lshl_add_u32 v31, v21, 8, v31
    v_and_b32 v21, 1, v0
    v_lshl_add_u32 v{vZR}, v21, 3, v31
    s_lshl_b32 s{sT1}, s{sWR}, 2
    v_and_b32 v21, 7, v0
    v_xor_b32 v20, v20, v21
    v_xor_b32 v20, s{sT1}, v20
    v_lshlrev_b32 v20, 4, v20
    v_lshrrev_b32 v31, 3, v0
    v_lshl_add_u32 v20, v31, 12, v20
    s_and_b32 s{sT1}, s{sRT2}, 7
    v_xor_b32 v31, s{sT1}, v31
    v_lshl_add_u32 v{vYA}, v31, 7, v20
    v_lshlrev_b32 v{vFA}, 2, v21
    v_xor_b32 v21, s{sW}, v21
    v_lshlrev_b32 v21, 4, v21
    v_lshl_add_u32 v21, v1, 3, v21
    v_and_b32 v31, 31, v0
    v_lshl_add_u32 v21, v31, 8, v21
    v_add_u32 v{vYR}, {L_Y}, v21
    s_lshl_b32 s{sT1}, s{sCT2}, 3
    s_add_u32 s{sT1}, s{sT1}, s{sW}
    s_lshl_b32 s{sYA}, s{sT1}, 15
    s_and_b32 s{sT0}, s{sRT2}, 24
    s_lshl_b32 s{sT0}, s{sT0}, 7
    s_add_u32 s{sYA}, s{sYA}, s{sT0}
    s_add_u32 s{sYA}, s{sYA}, {WS_YT}
    s_lshl_b32 s{sYF}, s{sT1}, 7
    s_lshr_b32 s{sT0}, s{sRT2}, 3
    s_lshl_b32 s{sT0}, s{sT0}, 13
    s_add_u32 s{sYF}, s{sYF}, s{sT0}
    s_add_u32 s{sYF}, s{sYF}, {WS_FY}
    s_mul_i32 s{sSEL}, s{sRHO}, 0x02020000
    s_add_u32 s{sSEL}, s{sSEL}, 0x01000c0c
    s_xor_b32 s{sSEL+1}, s{sSEL}, 0x02020000
    s_xor_b32 s{sSEL+2}, s{sSEL}, 0x04040000
    s_xor_b32 s{sSEL+3}, s{sSEL}, 0x06060000
    s_lshl_b32 s{sT0}, s{sW}, 10
    s_add_u32 m0, s{sT0}, {L_Y}
    """)
    ZT = 128
    def zwrite(qd):
        hi, lo = L_Z[qd] & ~0xffff, L_Z[qd] & 0xffff
        return [[f"v_xor_b32 v20, {hi + 64*mt}, v{vZW}",
                 I(f"ds_write_b128 v20, {vr(ZA+16*(qd&1)+4*mt,4)} offset:{lo}", lg="zw")] for mt in range(4)]
    def zread(qd):
        hi, lo = L_Z[qd] & ~0xffff, L_Z[qd] & 0xffff
        return [f"v_add_u32 v21, {hi}, v{vZR}"] + [
            I(f"ds_read_b64 {vr(ZT+2*k,2)}, v21 offset:{lo+4096*k}", lg=f"z{k}") for k in range(8)]
    def zmath(qd):
        o = []
        for st_ in (1, 2, 4):
            for k in range(0, 8, 2 * st_):
                for e in range(2):
                    o.append(I(f"v_add_f32 v{ZT+2*k+e}, v{ZT+2*k+e}, v{ZT+2*(k+st_)+e}", wlg=f"z{k+1}" if st_ == 1 else None))
        x = XN + 2 * qd
        o += [f"v_mul_f32 v{ZT+2+e}, {fx(-1.4426950408889634)}, v{ZT+e}" for e in range(2)]
        o += [f"v_exp_f32 v{ZT+2+e}, v{ZT+2+e}" for e in range(2)]
        o += [f"v_mul_f32 v{x+e}, v{x+e}, v{ZT+e}" for e in range(2)]
        o += [f"v_add_f32 v{ZT+2+e}, 1.0, v{ZT+2+e}" for e in range(2)]
        o += [f"v_rcp_f32 v{ZT+2+e}, v{ZT+2+e}" for e in range(2)]
        o += [f"v_mul_f32 v{x+e}, v{x+e}, v{ZT+2+e}" for e in range(2)]
        return o
    NYF, NYP, NYC = oi("nyf", 8), oi("nyp", 16), oi("nyc", 21)
    for n in range(28):
        qd, ks = divmod(n, 7)
        a(I(wvm=[f"h{n}", f"wd{ks}"]))
        if n == NYF: a(one(yf_st, wvm="ys", vm="yf"))
        if qd >= 1 and ks == 3:
            a(I(wlg="*")); a("s_barrier")
        seq = []
        for mt in range(4):
            d = ZA + 16 * (qd & 1) + 4 * mt
            c = "0" if ks == 0 else vr(d, 4)
            seq.append(f"v_mfma_f32_16x16x32_bf16 {vr(d,4)}, {vr(WDF(4*ks+mt),4)}, {vr(HB+4*(n%NS),4)}, {c}")
        fill = []
        if qd >= 1 and ks == 1: fill = zwrite(qd - 1)
        if qd >= 1 and ks == 3: fill = zread(qd - 1)
        if qd >= 1 and ks >= 4: fill = part(zmath(qd - 1), ks - 4, 3)
        if n == NYC:
            fill = [[I(wvm="yp")] + ne(vFL) + ["s_cbranch_scc0 L_yf_ok"] + spin("yf", [wf_ld], ne(vFL)) +
                    [I(f"buffer_load_dwordx4 v{vYA}, {sr(SWS,4)}, s{sYA} offen sc1 lds", vm="yl")]] + fill
        a(mix(seq, fill))
        if n + NS < 28: a(hload(n + NS))
        if n == NYP: a(I(wf_ld, vm="yp"))
        stamp(f"n{n}")
    a(zwrite(3))
    stamp("g2")
    XF = 64
    for qd in range(4):
        a(f"v_lshlrev_b32 v{XF+2*qd}, 16, v{XV[qd]}\nv_and_b32 v{XF+2*qd+1}, 0xffff0000, v{XV[qd]}")
    a(I(wvm="yl", wlg="*"))
    a("s_barrier")
    stamp("bf")
    YR, YF = 72, 76
    a(zread(3))
    a(I(f"ds_read_b64 {vr(YR,2)}, v{vYR}", lg="yr"))
    a(I(f"ds_read_b64 {vr(YR+2,2)}, v{vYR} offset:128", lg="yr"))
    def finish(qd):
        return [f"v_perm_b32 v{YF+2*qd}, v{YR+1}, v{YR}, s{sSEL+qd}", f"v_perm_b32 v{YF+2*qd+1}, v{YR+3}, v{YR+2}, s{sSEL+qd}",
                f"v_fmac_f32 v{XF+2*qd}, v{XN+2*qd}, v{YF+2*qd}", f"v_fmac_f32 v{XF+2*qd+1}, v{XN+2*qd+1}, v{YF+2*qd+1}",
                f"v_cvt_pk_bf16_f32 v{XF+2*qd}, v{XF+2*qd}, v{XF+2*qd+1}",
                f"buffer_store_dword v{XF+2*qd}, v{vOO}, {sr(SOUT,4)}, s{sOQ+qd} offen"]
    zm = zmath(3)
    a(zm[:8]); a(I(wlg="yr"))
    a(mix(zm[8:], finish(0) + finish(1) + finish(2)))
    a(finish(3))
    if prof:
        stamp("end")
        a(f"""
        s_waitcnt lgkmcnt(0)
        s_lshl_b32 s{sT0}, s2, 3
        s_add_u32 s{sT0}, s{sT0}, s{sW}
        s_lshl_b32 s{sT0}, s{sT0}, 6
        s_add_u32 s{sT0}, s{sT0}, {WS_PROF}
        """)
        for i in range(len(stamps)):
            a(f"v_mov_b32 v1, s{PROFS[i]}")
            a(f"buffer_store_dword v1, off, {sr(SWS,4)}, s{sT0} offset:{4*i}")
    a(f"{END}:\ns_endpgm")
    txt = a.text(256, 512, 163840)
    return txt, stamps, a.nops

if __name__ == "__main__":
    txt, st, nops = gen(prof="prof" in sys.argv, opt=sys.argv[2:])
    open(sys.argv[1], "w").write(txt)
    print("lines", txt.count("\n"), "nops", nops, st)
    if st: open(sys.argv[1] + ".stamps", "w").write(" ".join(st))
```

```python
import sys, struct
from em import *

WS_EPOCH, WS_FKV, WS_RS, WS_CS, WS_FH, WS_FY = 0, 4096, 32768, 65536, 196608, 229376
WS_KV, WS_WT, WS_YT, WS_H, WS_PROF = 1 << 20, 3 << 20, 5 << 20, 8 << 20, 16 << 20
SX, SWG, SWU, SWD, SWS, SOUT, SH, SK, SV, SSH = 8, 12, 16, 20, 24, 28, 32, 36, 40, 44
sW, sXB, sWB, sT0, sT1 = 3, 4, 5, 6, 7
(sRT2, sCT2, sKEY, sWR, sWC, sTAG, sM0X, sOK, sISG, sCNT, sT2, sT3, sCSM, sCP, sRBL, sXCD, sCB, sD,
 sMO, _m1, _m2, _m3, sHI, sRB) = range(48, 72)
sA, sB, sC, sE = 98, 99, 100, 101
PROFS = list(range(72, 98, 2))
STAGE = 49152
L_WP = 147456
L_CV, CVCH = 98304, 12864
L_Z = (65536, 131072, 0, 32768)
L_Y = 98304
ACC, FR = 32, 96
def WDF(i): return 144 + 4 * i
vX0, vX1, vW0, vW1, vL16 = 1, 2, 3, 4, 5
vXB, vWB, vTAG = 6, 14, 17
vHE, vHP, vHO_ = 128, 132, 134
SPIN = 0x4000
KC = 2 * 0.7978845608028654 * 1.4426950408889634
def fx(f): return "0x%08x" % struct.unpack("<I", struct.pack("<f", f))[0]
def L(s): return [x.strip() for x in s.strip().split("\n") if x.strip()]

def gen(prof=False, opt=()):
    a = Em()
    def oi(k, d): return int(([o[len(k):] for o in opt if o.startswith(k)] + [d])[0])
    stamps = []
    def oi(k, d): return int(([o[len(k):] for o in opt if o.startswith(k)] + [d])[0])
    def stamp(name, slot=None):
        sel = [o[3:].split(",") for o in opt if o.startswith("st=")]
        dflt = "start,B0,B4,B8,join,c1,c3,hok,g2,bf,end".split(",")
        if not prof or (slot is None and name not in (sel[0] if sel else dflt)): return
        if slot is None:
            slot = len(stamps); stamps.append(name)
        a(f"{'s_memtime' if 'cyc' in opt else 's_memrealtime'} {sr(PROFS[slot], 2)}")
    def spin(name, load, check):
        if "nochk" in opt: return [f"L_{name}_ok:"]
        return ([f"s_mov_b32 s{sCNT}, {SPIN}", f"L_{name}_loop:"] + load + ["s_waitcnt vmcnt(0)"] + check +
                [f"s_cbranch_scc0 L_{name}_ok", f"s_sub_u32 s{sCNT}, s{sCNT}, 1", f"s_cbranch_scc0 L_{name}_loop",
                 f"L_{name}_ok:"])
    def one(txt, vm=None, wvm=None):
        if "all" in opt: return [I(txt, vm=vm, wvm=wvm)]
        return [I("s_mov_b64 exec, 1", wvm=wvm), I(txt, vm=vm), "s_mov_b64 exec, -1"]
    def ne(v): return [f"v_cmp_ne_u32 vcc, s{sTAG}, v{v}", "s_cmp_lg_u64 vcc, 0"]
    END, AUX, JOIN = "L_end", "L_aux", "L_join"
    KM = oi("km", 3)
    a(f"""
    s_cmp_ge_u32 s2, 256
    s_cbranch_scc1 {END}
    s_load_dwordx16 s[72:87], s[0:1], 0
    s_load_dwordx8 s[88:95], s[0:1], 64
    s_load_dwordx2 s[96:97], s[0:1], 96
    v_lshrrev_b32 v1, 6, v0
    v_and_b32 v0, 63, v0
    v_readfirstlane_b32 s{sW}, v1
    s_and_b32 s{sXCD}, s2, 7
    s_lshr_b32 s{sCP}, s2, 3
    s_and_b32 s{sE}, s{sXCD}, 1
    s_lshr_b32 s{sA}, s{sXCD}, 1
    s_and_b32 s{sRBL}, s{sCP}, 3
    s_lshr_b32 s{sISG}, s{sCP}, 2
    s_lshl_b32 s{sRB}, s{sA}, 2
    s_add_u32 s{sRB}, s{sRB}, s{sRBL}
    s_lshl_b32 s{sRT2}, s{sRB}, 1
    s_add_u32 s{sRT2}, s{sRT2}, s{sE}
    s_add_u32 s{sCT2}, s{sISG}, 7
    s_and_b32 s{sCT2}, s{sCT2}, 7
    s_mul_i32 s{sCB}, s{sE}, 7
    s_add_u32 s{sCB}, s{sCB}, s{sCT2}
    s_xor_b32 s{sKEY}, s{sRBL}, s{sISG}
    s_and_b32 s{sKEY}, s{sKEY}, {KM}
    s_lshl_b32 s{sB}, s{sA}, {2 if KM == 3 else 1}
    s_and_b32 s{sB}, s{sB}, {4 if KM == 3 else 6}
    s_or_b32 s{sKEY}, s{sKEY}, s{sB}
    s_lshl_b32 s{sB}, s{sXCD}, 5
    s_add_u32 s{sCP}, s{sCP}, s{sB}
    s_and_b32 s{sWR}, s{sW}, 1
    s_lshr_b32 s{sWC}, s{sW}, 1
    s_lshr_b32 s{sB}, s{sW}, 2
    s_and_b32 s{sC}, s{sW}, 3
    s_lshl_b32 s{sXB}, s{sRB}, 17
    s_lshl_b32 s{sT0}, s{sB}, 16
    s_add_u32 s{sXB}, s{sXB}, s{sT0}
    s_lshl_b32 s{sT0}, s{sC}, 10
    s_add_u32 s{sXB}, s{sXB}, s{sT0}
    s_mul_i32 s{sWB}, s{sW}, 28672
    s_lshl_b32 s{sT0}, s{sCB}, 8
    s_add_u32 s{sWB}, s{sWB}, s{sT0}
    s_lshl_b32 s{sM0X}, s{sW}, 11
    s_and_b32 s{sT0}, s{sKEY}, 1
    s_and_b32 s{sT1}, s{sA}, 2
    s_or_b32 s{sT0}, s{sT0}, s{sT1}
    {f"s_mov_b32 s{sT0}, s{sRBL}" if KM != 3 else ""}
    s_add_u32 s{sCSM}, s{sWR}, 1
    s_cmp_eq_u32 s{sT0}, s{sWC}
    s_cselect_b32 s{sCSM}, s{sCSM}, 0
    s_lshr_b32 s{sHI}, s{sCT2}, 2
    s_mov_b32 s{sOK}, 0
    """)
    for s, n in ((SX, 1 << 21), (SWG, 1835008), (SWU, 1835008), (SWD, 1835008), (SWS, 1 << 25), (SOUT, 1 << 21),
                 (SH, 4096), (SK, 1 << 21), (SV, 1 << 21), (SSH, 4096)):
        a(f"s_mov_b32 s{s+2}, {n}")
        a(f"s_mov_b32 s{s+3}, 0x20000")
    a(f"""
    v_lshrrev_b32 v20, 3, v0
    v_lshrrev_b32 v21, 4, v0
    v_and_b32 v22, 7, v0
    v_xor_b32 v23, v22, v21
    v_lshlrev_b32 v23, 4, v23
    v_lshl_add_u32 v{vX0}, v20, 12, v23
    v_xor_b32 v{vX1}, 64, v{vX0}
    v_add_u32 v{vX1}, 31744, v{vX1}
    v_bfe_u32 v24, v0, 2, 2
    v_and_b32 v25, 3, v0
    v_xor_b32 v23, v24, v21
    v_lshlrev_b32 v23, 6, v23
    v_lshl_add_u32 v23, v25, 4, v23
    v_mul_u32_u24 v{vW0}, 3584, v21
    v_add_u32 v{vW0}, v{vW0}, v23
    v_add_u32 v{vW1}, 13312, v{vW0}
    v_lshlrev_b32 v{vL16}, 4, v0
    s_lshl_b32 s{sT2}, s{sCP}, 1
    s_add_u32 s{sT2}, s{sT2}, s{sB}
    s_lshl_b32 s{sT2}, s{sT2}, 12
    s_lshl_b32 s{sT3}, s{sCP}, 2
    s_waitcnt lgkmcnt(0)
    s_mov_b64 {sr(SX,2)}, s[72:73]
    s_mov_b64 {sr(SWG,2)}, s[86:87]
    s_mov_b64 {sr(SWU,2)}, s[88:89]
    s_mov_b64 {sr(SK,2)}, s[74:75]
    s_mov_b64 {sr(SV,2)}, s[76:77]
    s_mov_b64 {sr(SWS,2)}, s[96:97]
    s_mov_b64 {sr(SSH,2)}, s[78:79]
    s_mov_b64 {sr(SWD,2)}, s[90:91]
    s_mov_b64 {sr(SOUT,2)}, s[92:93]
    s_add_u32 s{SH}, s80, s{sT2}
    s_addc_u32 s{SH+1}, s81, 0
    s_load_dword s{sD}, s[82:83], s{sT3}
    """)
    if prof: a("s_nop 4")
    stamp("start")

    NTX = " nt" if "ntx" in opt else ""
    NTW = " nt" if "ntw" in opt else ""
    NTK = " nt" if "ntk" in opt else ""
    NTH = " nt" if "nth" in opt else ""
    def chunk_dma(c):
        st = (c % 3) * STAGE
        return [
            [f"s_xor_b32 s{sT0}, s{sKEY}, {c}",
             f"s_mul_i32 s{sT1}, s{sT0}, 229376", f"s_add_u32 s{sT1}, s{sT1}, s{sWB}",
             f"s_lshl_b32 s{sT0}, s{sT0}, 7", f"s_add_u32 m0, s{sM0X}, {st}", f"s_add_u32 s{sT0}, s{sT0}, s{sXB}",
             I(f"buffer_load_dwordx4 v{vX0}, {sr(SX,4)}, s{sT0} offen{NTX} lds", vm=f"c{c}")],
            I(f"buffer_load_dwordx4 v{vX1}, {sr(SX,4)}, s{sT0} offen offset:1024{NTX} lds", vm=f"c{c}"),
            [f"s_add_u32 m0, s{sM0X}, {st + 16384}",
             I(f"buffer_load_dwordx4 v{vW0}, {sr(SWG,4)}, s{sT1} offen{NTW} lds", vm=f"c{c}")],
            I(f"buffer_load_dwordx4 v{vW1}, {sr(SWG,4)}, s{sT1} offen offset:1024{NTW} lds", vm=f"c{c}"),
            [f"s_add_u32 m0, s{sM0X}, {st + 32768}",
             I(f"buffer_load_dwordx4 v{vW0}, {sr(SWU,4)}, s{sT1} offen{NTW} lds", vm=f"c{c}")],
            I(f"buffer_load_dwordx4 v{vW1}, {sr(SWU,4)}, s{sT1} offen offset:1024{NTW} lds", vm=f"c{c}"),
        ]
    XR, S1, S2 = 200, 204, 205
    def row_load():
        return [I(f"buffer_load_dword v{vTAG}, off, {sr(SWS,4)}, 0 offset:{WS_EPOCH} sc1", vm="ep"),
                [f"s_lshl_b32 s{sA}, s{sRT2}, 3", f"s_add_u32 s{sA}, s{sA}, s{sISG}", f"s_lshl_b32 s{sA}, s{sA}, 3",
                 f"s_add_u32 s{sA}, s{sA}, s{sW}", f"s_lshl_b32 s{sT2}, s{sA}, 10",
                 I(f"buffer_load_dwordx4 {vr(XR,4)}, v{vL16}, {sr(SX,4)}, s{sT2} offen", vm="ep")]]
    tag_math = L(f"""
        v_add_u32 v{vTAG}, 1, v{vTAG}
        v_and_b32 v{vTAG}, 0x0fff3fff, v{vTAG}
        v_or_b32 v{vTAG}, 0x20000000, v{vTAG}
        s_mov_b32 s{sB}, 0x3f803f80
        v_readfirstlane_b32 s{sTAG}, v{vTAG}
        """)
    def row_math():
        o = []
        for d in range(4):
            o += [f"v_dot2_f32_bf16 v{S1}, v{XR+d}, s{sB}, {'0' if d == 0 else f'v{S1}'}",
                  f"v_dot2_f32_bf16 v{S2}, v{XR+d}, v{XR+d}, {'0' if d == 0 else f'v{S2}'}"]
        o += [f"v_mov_b32 v{XR+1}, v{vTAG}", f"v_permlane32_swap_b32 v{S1}, v{S2}", f"v_add_f32 v{S1}, v{S1}, v{S2}"]
        o += [f"v_add_f32_dpp v{S1}, v{S1}, v{S1} {d} row_mask:0xf bank_mask:0xf"
              for d in ("quad_perm:[1,0,3,2]", "quad_perm:[2,3,0,1]", "row_half_mirror", "row_mirror")]
        o += [f"v_add_f32_dpp v{S1}, v{S1}, v{S1} row_bcast:15 row_mask:0xa bank_mask:0xf"]
        o += L(f"""
        v_mul_f32 v{S1}, {fx(1/512)}, v{S1}
        v_readlane_b32 s{sB}, v{S1}, 31
        v_readlane_b32 s{sC}, v{S1}, 63
        v_mul_f32 v{S1}, s{sB}, s{sB}
        v_sub_f32 v{S1}, s{sC}, v{S1}
        v_max_f32 v{S1}, 0, v{S1}
        v_cvt_pk_bf16_f32 v{S1}, v{S1}, v{S1}
        v_lshlrev_b32 v{S1}, 16, v{S1}
        v_add_f32 v{S1}, {fx(1e-5)}, v{S1}
        v_cvt_pk_bf16_f32 v{S1}, v{S1}, v{S1}
        v_lshlrev_b32 v{S1}, 16, v{S1}
        v_sqrt_f32 v{S1}, v{S1}
        s_lshl_b32 s{sA}, s{sA}, 3
        v_cvt_pk_bf16_f32 v{XR}, v{S1}, -s{sB}
        s_add_u32 s{sA}, s{sA}, {WS_RS}
        """)
        if "nors" not in opt: o += [one(f"buffer_store_dwordx2 {vr(XR,2)}, off, {sr(SWS,4)}, s{sA} sc1", vm="rs", wvm="wps")]
        return o
    def h_load(t):
        return [[f"s_and_b32 s{sT2}, s{sW}, 3", f"s_lshl_b32 s{sT2}, s{sT2}, 10",
                 I(f"buffer_load_dwordx4 {vr(vHE,4)}, v{vL16}, {sr(SH,4)}, s{sT2} offen", vm="hl")],
                [f"s_and_b32 s{sT2}, s{sW}, 3", f"s_lshl_b32 s{sT2}, s{sT2}, 10",
                 f"s_sub_u32 s{sT2}, s{sT2}, 4", f"v_add_u32 v{t}, s{sT2}, v{vL16}",
                 I(f"buffer_load_dword v{vHP}, v{t}, {sr(SH,4)}, 0 offen", vm="hl")]]
    vZ4 = 140
    h_math = ([I(f"v_alignbit_b32 v{vHO_}, v{vHE}, v{vHP}, 16", wvm="hl")] +
              [f"v_alignbit_b32 v{vHO_+d}, v{vHE+d}, v{vHE+d-1}, 16" for d in range(1, 4)] +
              [f"v_mov_b32 v{vZ4+d}, 0" for d in range(4)] + [L(f"""
        s_lshr_b32 s{sT2}, s{sW}, 2
        s_mul_i32 s{sT2}, s{sT2}, {CVCH}
        s_add_u32 s{sT2}, s{sT2}, {L_CV}
        v_min_u32 v{vHP+1}, 35, v0
        v_lshlrev_b32 v{vHP+1}, 4, v{vHP+1}
        v_lshrrev_b32 v{vHP}, 5, v0
        v_lshl_add_u32 v{vHP+1}, v{vHP}, 12, v{vHP+1}
        v_add_u32 v{vHP+1}, s{sT2}, v{vHP+1}
        s_and_b32 s{sT3}, s{sW}, 3
        s_lshl_b32 s{sT3}, s{sT3}, 10
        s_add_u32 s{sT2}, s{sT2}, s{sT3}
        v_add_u32 v{vHP}, s{sT2}, v{vL16}
        """)])
    h_write = [I(f"ds_write_b128 v{vHP}, {vr(vHE,4)} offset:4608", lg="hw"),
               I(f"ds_write_b128 v{vHP}, {vr(vHO_,4)} offset:{4608+4160}", lg="hw"),
               I(f"ds_write_b128 v{vHP+1}, {vr(vZ4,4)} offset:4096", lg="hw")]
    vFL, vFA = 18, 19
    def wf_addr_(sE, vFA, vFL): return L(f"""
        s_lshl_b32 s{sT2}, s{sCT2}, 3
        s_add_u32 s{sT2}, s{sT2}, s{sW}
        s_and_b32 s{sE}, s{sCT2}, 6
        s_lshl_b32 s{sE}, s{sE}, 1
        s_add_u32 s{sE}, s{sE}, s{sWC}
        s_lshl_b32 s{sE}, s{sE}, 1
        s_and_b32 s{sT3}, s{sCT2}, 1
        s_add_u32 s{sE}, s{sE}, s{sT3}
        s_lshl_b32 s{sE}, s{sE}, 4
        s_add_u32 s{sE}, s{sE}, s{sWR}
        s_lshl_b32 s{sE}, s{sE}, 5
        s_add_u32 s{sE}, s{sE}, {WS_RS + 64 + 4}
        s_mul_i32 s{sT2}, s{sT2}, 28672
        s_mul_i32 s{sT3}, s{sHI}, 12288
        s_add_u32 s{sT2}, s{sT2}, s{sT3}
        s_add_u32 s{sT2}, s{sT2}, {WS_WT}
        s_lshl_b32 s{sT3}, s{sRBL}, 10
        s_add_u32 s{sMO}, s{sT2}, s{sT3}
        s_xor_b32 s{sMO+1}, s{sMO}, 1024
        s_xor_b32 s{sMO+2}, s{sMO}, 2048
        s_xor_b32 s{sMO+3}, s{sMO}, 3072
        v_min_u32 v{vFA}, 27, v0
        v_and_b32 v{vFL}, 28, v{vFA}
        v_add_u32 v{vFA}, v{vFA}, v{vFL}
        v_lshlrev_b32 v{vFA}, 3, v{vFA}
        """)
    wf_addr = wf_addr_(sE, vFA, vFL)
    wf_ld = f"buffer_load_dword v{vFL}, v{vFA}, {sr(SWS,4)}, s{sE} offen sc1"
    def wd_loads():
        o = []
        for i in range(28):
            ks, mt = divmod(i, 4)
            g = []
            if i == 16:
                g += [f"s_mul_i32 s{sT3}, s{sHI}, 28672"] + [f"s_sub_u32 s{sMO+m}, s{sMO+m}, s{sT3}" for m in range(4)]
            g += [f"s_add_u32 s{sT3}, s{sMO+mt}, {4096*ks}",
                  I(f"buffer_load_dwordx4 {vr(WDF(i),4)}, v{vL16}, {sr(SWS,4)}, s{sT3} offen sc1", vm=f"wd{ks}")]
            o.append(g)
        return o
    vKA, vKL = 29, 30
    kf_addr = [f"v_and_b32 v{vKA}, 31, v0", f"v_lshlrev_b32 v{vKA}, 2, v{vKA}", f"s_lshl_b32 s{sC}, s{sXCD}, 7",
               f"s_add_u32 s{sC}, s{sC}, {WS_FKV}"]
    kf_ld = f"buffer_load_dword v{vKL}, v{vKA}, {sr(SWS,4)}, s{sC} offen sc1"
    def r_dma(t):
        return L(f"""
        s_lshr_b32 s{sT2}, s{sW}, 2
        s_mul_i32 s{sT3}, s{sT2}, {CVCH - 4096}
        s_lshl_b32 s{sT2}, s{sT2}, 4
        v_lshl_add_u32 v{t}, v0, 5, s{sT2}
        s_lshl_b32 s{sT2}, s{sW}, 10
        s_add_u32 s{sT3}, s{sT3}, s{sT2}
        s_add_u32 m0, s{sT3}, {L_CV}
        s_and_b32 s{sT2}, s{sM0X}, 0x1800
        s_lshl_b32 s{sT3}, s{sCP}, 13
        s_add_u32 s{sT2}, s{sT2}, s{sT3}
        s_add_u32 s{sT2}, s{sT2}, {WS_KV}
        """) + [I(f"buffer_load_dwordx4 v{t}, {sr(SWS,4)}, s{sT2} offen sc1 lds", vm="R")]

    WL = wd_loads()
    wsched = {17: 1, 18: 1, 19: 1, 21: 1, 22: 1, 23: 1, 24: 1, 25: 2, 26: 2, 27: 2, 29: 1, 30: 2, 31: 2}
    wsched = {k: n for k, n in wsched.items() if k >= oi("pw", 22) + 3}
    wepi = [int(x) for x in str(oi("we", 3320)).zfill(4)]
    NPRE = sum(wsched.values()) + sum(wepi)
    vq_pro = list(a.vq)
    a(f"s_cmp_eq_u32 s{sISG}, 0\ns_cbranch_scc1 {AUX}")
    if "nogemm" in opt: a(f"s_branch {END}")
    a(chunk_dma(0))
    WP, vWPA, vWPS, vWPL, CSA, CS1 = 208, 212, 213, 214, 240, 236
    sWPS, sWPF, sWPM = SSH, SSH + 1, SSH + 3
    a(f"""
    v_and_b32 v23, 3, v20
    v_lshrrev_b32 v26, 5, v0
    v_lshl_add_u32 v23, v26, 3, v23
    v_lshlrev_b32 v26, 4, v22
    v_lshl_add_u32 v{vWPL}, v23, 10, v26
    s_mov_b32 s{sE}, s{sXCD}
    s_lshl_b32 s{sT2}, s{sRBL}, 1
    s_add_u32 s{sT2}, s{sT2}, s{sB}
    s_mul_i32 s{sT3}, s{sT2}, 7
    s_add_u32 s{sT3}, s{sT3}, s{sCT2}
    s_mul_i32 s{sWPS}, s{sE}, 56
    s_add_u32 s{sWPS}, s{sWPS}, s{sT3}
    s_lshl_b32 s{sWPS}, s{sWPS}, 12
    s_lshl_b32 s{sT1}, s{sC}, 8
    s_add_u32 s{sWPS}, s{sWPS}, s{sT1}
    s_add_u32 s{sWPS}, s{sWPS}, {WS_WT}
    s_lshl_b32 s{sT3}, s{sT3}, 15
    s_lshl_b32 s{sT1}, s{sWR}, 12
    s_add_u32 s{sT3}, s{sT3}, s{sT1}
    s_lshl_b32 s{sT1}, s{sWC}, 14
    s_and_b32 s{sT1}, s{sT1}, 0x4000
    s_add_u32 s{sT3}, s{sT3}, s{sT1}
    s_lshl_b32 s{sT1}, s{sE}, 7
    s_add_u32 s{sWPF}, s{sT3}, s{sT1}
    s_lshl_b32 s{sT2}, s{sW}, 10
    s_add_u32 s{sWPM}, s{sT2}, {L_WP}
    s_barrier
    """)
    wp_load = [f"s_mov_b32 m0, s{sWPM}", I(f"buffer_load_dwordx4 v{vWPL}, {sr(SWD,4)}, s{sWPF} offen{NTH} lds", vm="wpl")]
    SWL, SWR, SRS, SPW, SHL, SPF, SRL = oi("wl", 4), oi("wr", 12), oi("rs", 17), oi("pw", 22), oi("hl", 13), oi("pf", 0), oi("rl", -1)
    SKF, SRD = oi("kf", 24), oi("rd", 29)
    if SWL < 0: a(wp_load)
    if oi("pm", 1) == 1:
        sel = f"""
        s_cmp_lg_u32 s{sW}, 7
        s_cbranch_scc1 L_nopf
        s_add_u32 s{sT3}, s{sISG}, 3
        s_cmp_gt_u32 s{sISG}, 4
        s_cselect_b32 s{sT3}, s{sISG}, s{sT3}
        """
        pick = f"s_cmp_gt_u32 s{sISG}, 4"
    else:
        sel = f"""
        s_cmp_lt_u32 s{sW}, 6
        s_cbranch_scc1 L_nopf
        s_mov_b32 s{sT3}, s{sISG}
        """
        pick = f"s_cmp_eq_u32 s{sW}, 6"
    pf_load = L(sel + f"""
        s_lshl_b32 s{sT2}, s{sRBL}, 3
        s_add_u32 s{sT2}, s{sT2}, s{sT3}
        s_lshl_b32 s{sT2}, s{sT2}, 16
        s_xor_b32 s{sT3}, s{sXCD}, s{sT3}
        s_lshl_b32 s{sT3}, s{sT3}, 7
        s_add_u32 s{sT2}, s{sT2}, s{sT3}
        v_lshlrev_b32 v{WDF(0)}, 10, v0
        {pick}
        s_cbranch_scc1 L_pfk
        buffer_load_dword v{WDF(0)}, v{WDF(0)}, {sr(SV,4)}, s{sT2} offen
        s_branch L_nopf
        L_pfk:
        buffer_load_dword v{WDF(0)}, v{WDF(0)}, {sr(SK,4)}, s{sT2} offen
        L_nopf:
        """)
    a(f"""
    v_lshlrev_b32 v23, 7, v24
    v_lshl_add_u32 v23, v21, 5, v23
    v_lshl_add_u32 v23, v25, 3, v23
    v_add_u32 v{vWPA}, s{sWPM}, v23
    """)
    C1E = oi("c1e", 6)
    if "rowl" not in opt: a(row_load())
    a(chunk_dma(1)[:C1E])
    if SPF < 0 and "nopf" not in opt: a(pf_load)
    a(f"""
    v_and_b32 v23, 15, v0
    v_lshlrev_b32 v23, 4, v23
    v_lshl_add_u32 v{vWPS}, v21, 10, v23
    v_and_b32 v24, 31, v0
    v_lshrrev_b32 v25, 5, v0
    v_bfe_u32 v22, v0, 1, 3
    v_xor_b32 v22, v22, v25
    v_lshlrev_b32 v22, 4, v22
    v_lshl_add_u32 v22, v24, 7, v22
    s_lshl_b32 s{sT0}, s{sWR}, 13
    v_add_u32 v{vXB}, s{sT0}, v22
    v_xor_b32 v{vXB+1}, 32, v{vXB}
    v_xor_b32 v{vXB+2}, 64, v{vXB}
    v_xor_b32 v{vXB+3}, 96, v{vXB}
    v_add_u32 v{vXB+4}, {2*STAGE}, v{vXB}
    v_add_u32 v{vXB+5}, {2*STAGE}, v{vXB+1}
    v_add_u32 v{vXB+6}, {2*STAGE}, v{vXB+2}
    v_add_u32 v{vXB+7}, {2*STAGE}, v{vXB+3}
    v_bfe_u32 v23, v0, 2, 2
    v_lshl_add_u32 v24, v25, 3, v23
    v_lshlrev_b32 v24, 8, v24
    v_xor_b32 v23, s{sWC}, v23
    v_lshl_add_u32 v24, v23, 6, v24
    v_bfe_u32 v23, v0, 4, 1
    v_lshl_add_u32 v24, v23, 5, v24
    v_and_b32 v23, 3, v0
    v_lshl_add_u32 v24, v23, 3, v24
    v_add_u32 v{vWB}, 16384, v24
    v_add_u32 v{vWB+1}, {STAGE+16384}, v24
    v_add_u32 v{vWB+2}, {2*STAGE+16384}, v24
    v_mov_b32 v{CS1}, 0x3f803f80
    v_mov_b32 v{CS1+1}, 0x3f803f80
    v_mov_b32 v{CS1+2}, 0x3f803f80
    v_mov_b32 v{CS1+3}, 0x3f803f80
    """)
    stamp("K0")
    if "dmaonly" in opt:
        DD = oi("dd", 2)
        if C1E < 6: a(chunk_dma(1)[0][:4]); a(chunk_dma(1)[C1E:])
        for c in range(2, DD): a(chunk_dma(c))
        for c in range(8):
            a(I(wvm=f"c{c}"))
            if "dnb" not in opt: a("s_barrier")
            stamp(f"B{c}")
            if c + DD < 8: a(chunk_dma(c + DD))
        a("s_branch L_prof")
        opt = [o for o in opt if not o.startswith("st=")] + ["st=end"]

    def F(s): return FR + 16 * (s & 1)
    def reads(s):
        c, j = divmod(s, 4)
        st = c % 3
        xb = vXB + j + (4 if st == 2 else 0); im = STAGE if st == 1 else 0
        wb = vWB + st; wo = 4096 * j
        f = F(s); t = f"r{s}"
        return [I(f"ds_read_b64_tr_b16 {vr(f,2)}, v{wb} offset:{wo}", lg=t),
                I(f"ds_read_b64_tr_b16 {vr(f+2,2)}, v{wb} offset:{wo+1024}", lg=t),
                I(f"ds_read_b128 {vr(f+8,4)}, v{xb} offset:{im}", lg=t),
                I(f"ds_read_b64_tr_b16 {vr(f+4,2)}, v{wb} offset:{wo+16384}", lg=t),
                I(f"ds_read_b64_tr_b16 {vr(f+6,2)}, v{wb} offset:{wo+17408}", lg=t),
                I(f"ds_read_b128 {vr(f+12,4)}, v{xb} offset:{im+4096}", lg=t)]
    def mfmas(A, B, first=False):
        out = []
        for nt in range(2):
            for m in range(2):
                d = ACC + 32 * m + 16 * nt
                out.append(f"v_mfma_f32_32x32x16_bf16 {vr(d,16)}, {vr(A[m],4)}, {vr(B[nt],4)}, {'0' if first else vr(d,16)}")
        return out
    def cs_mfma(p):
        o = []
        for m in range(2):
            o += [f"s_bitcmp1_b32 s{sCSM}, {m}", f"s_cbranch_scc0 L_cs{p}_{m}",
                  f"v_mfma_f32_32x32x16_bf16 {vr(CSA,16)}, {vr(CS1,4)}, {vr(F(p)+4*m,4)}, {'0' if p == 0 else vr(CSA,16)}",
                  f"L_cs{p}_{m}:"]
        return o
    sCSB = SSH + 2
    cs_store = [L(f"""
        s_lshl_b32 s{sCSB}, s{sCB}, 2
        s_add_u32 s{sCSB}, s{sCSB}, s{sWC}
        s_lshl_b32 s{sCSB}, s{sCSB}, 10
        s_add_u32 s{sCSB}, s{sCSB}, {WS_CS}
        s_cmp_eq_u32 s{sCSM}, {'s%d' % sCSM if "nocs" in opt else 0}
        s_cbranch_scc1 L_nocs
        v_cvt_pk_bf16_f32 v{CSA+1}, v{CSA}, v{CSA}
        s_mul_i32 s{sT2}, s{sWR}, 57344
        v_lshlrev_b32 v{CSA+1}, 16, v{CSA+1}
        s_lshr_b32 s{sT3}, s{sKEY}, 1
        v_sub_f32 v{CSA+1}, v{CSA}, v{CSA+1}
        s_lshl_b32 s{sT3}, s{sT3}, 3
        v_cvt_pk_bf16_f32 v{CSA}, v{CSA}, v{CSA+1}
        s_add_u32 s{sT2}, s{sT2}, s{sT3}
        v_mov_b32 v{CSA+1}, v{vTAG}
        s_add_u32 s{sT2}, s{sT2}, s{sCSB}
        v_lshlrev_b32 v{CSA+2}, 5, v0
        s_mov_b32 exec_hi, 0
        buffer_store_dwordx2 {vr(CSA,2)}, v{CSA+2}, {sr(SWS,4)}, s{sT2} offen sc1
        s_mov_b32 exec_hi, -1
        L_nocs:
        """)]
    EG, EU, ER, EB0, EB1 = 128, 132, 20, 136, 140
    ex_addr = L(f"""
        v_and_b32 v24, 31, v0
        v_lshrrev_b32 v25, 5, v0
        v_lshlrev_b32 v25, 4, v25
        v_lshl_add_u32 v{vX0}, v24, 5, v25
        v_and_b32 v24, 15, v0
        v_lshrrev_b32 v25, 4, v0
        v_lshlrev_b32 v25, 3, v25
        v_lshl_add_u32 v{vX1}, v24, 5, v25
        s_lshl_b32 s{sKEY}, s{sRB}, 1
        s_add_u32 s{sKEY}, s{sKEY}, s{sWR}
        s_lshl_b32 s{sWB}, s{sKEY}, 9
        s_add_u32 s{sWB}, s{sWB}, {WS_RS}
        s_add_u32 s{sXB}, s{sCSB}, 57344
        """)
    ex_ld = [f"buffer_load_dwordx4 {vr(EG,4)}, v{vX0}, {sr(SWS,4)}, s{sCSB} offen sc1",
             f"buffer_load_dwordx4 {vr(EU,4)}, v{vX0}, {sr(SWS,4)}, s{sXB} offen sc1",
             f"buffer_load_dwordx2 {vr(ER,2)}, v{vX1}, {sr(SWS,4)}, s{sWB} offen sc1"]
    ex_check = L(f"""
        v_min3_u32 v24, v{EG+1}, v{EG+3}, v{ER+1}
        v_max3_u32 v25, v{EG+1}, v{EG+3}, v{ER+1}
        v_min3_u32 v24, v24, v{EU+1}, v{EU+3}
        v_max3_u32 v25, v25, v{EU+1}, v{EU+3}
        v_cmp_ne_u32 vcc, s{sTAG}, v24
        v_cmp_ne_u32 s[{sT0}:{sT1}], s{sTAG}, v25
        s_or_b64 vcc, vcc, s[{sT0}:{sT1}]
        """)
    AP, BP, SS, vHO, TM = 22, 24, 26, 28, FR
    RM = row_math()
    def part(lst, i, n): return lst[len(lst) * i // n:len(lst) * (i + 1) // n]
    wi = 0
    for s in range(33):
        c, j = divmod(s, 4)
        fill = []; pre = []
        if j == 0 and s < 32:
            a(I(wvm=f"c{c}", wlg="*"))
            a("s_barrier")
            stamp(f"B{c}")
        if s == SWL: pre += [wp_load]
        if s == SPF and "nopf" not in opt: pre += [pf_load]
        if s == SPW: pre += [I(wf_ld, vm="fw")]
        if s == SKF: pre += [I(kf_ld, vm="kf")]
        if s == 28: pre += [I(x, vm="ex") for x in ex_ld]
        if s == 0:
            assert C1E in (0, 2, 4, 6)
            if 0 < C1E < 6: fill += [chunk_dma(1)[0][:4]]
            fill += chunk_dma(1)[C1E:]
            if "rowl" in opt: fill += row_load()
        if c == 0 and C1E < 6: fill += chunk_dma(2)[(0, 0, 2, 4)[j]:(0, 2, 4, 6)[j]]
        elif c <= 5: fill += chunk_dma(c + 2)[(0, 2, 3, 5)[j]:(2, 3, 5, 6)[j]]
        if s < 32: a(reads(s))
        if s == 0:
            a(pre + fill); continue
        p = s - 1
        v = []
        if s in (SHL, SHL + 2): fill += [h_load(24)[(s - SHL) >> 1]]
        if s == 4: v += [I(tag_math[0], wvm="ep")] + tag_math[1:]
        if s == SWR:
            fill += [I(f"ds_read_b64_tr_b16 {vr(WP,2)}, v{vWPA}", lg="wp", wvm="wpl"),
                     I(f"ds_read_b64_tr_b16 {vr(WP+2,2)}, v{vWPA} offset:512", lg="wp")]
        if s == SWR + 1: fill += [I(f"buffer_store_dwordx4 {vr(WP,4)}, v{vWPS}, {sr(SWS,4)}, s{sWPS} offen sc1", vm="wps", wlg="wp")]
        if 5 <= s <= 9: v += part(RM[:-1], s - 5, 5)
        if s == SRS: fill += [RM[-1]]
        if s == 10: v += cs_store
        if s == 11: v += [wf_addr]
        if 21 <= s <= 23: v += part(h_math, s - 21, 3)
        if s == SPW + 3: pre += [[I(wvm="fw")] + ne(vFL) + ["s_cbranch_scc0 L_fw_ok"] + spin("fw", [wf_ld], ne(vFL))]
        if s == 19: v += kf_addr
        if s in (24, 25, 26): v += [h_write[s - 24]]
        if s == 27: v += ex_addr
        if s == SRD: fill = [[I(wvm="kf")] + ne(vKL) + [f"s_cselect_b32 s{sOK}, 0, 1"] + r_dma(oi("rt", 24))] + fill
        if s == 30: v += [f"v_mov_b32 v{r}, 0" for r in (EB0 + 1, EB0 + 3, EB1 + 1, EB1 + 3)] + [f"s_mov_b32 s{sB}, 0x03020302"]
        n = wsched.get(s, 0); fill += WL[wi:wi + n]; wi += n
        if s == 32:
            a(I(wvm="ex"))
            a(ex_check + ["s_cbranch_scc0 L_ex_ok"] + spin("ex", ex_ld, ex_check))
            v += L(f"""
            v_mov_b32 v{ER+1}, v{ER}
            v_permlane32_swap_b32 v{ER}, v{ER+1}
            v_perm_b32 v{EB0}, v{ER}, v{ER}, s{sB}
            v_perm_b32 v{EB0+2}, v{ER}, v{ER}, s{sB}
            v_perm_b32 v{EB1}, v{ER+1}, v{ER+1}, s{sB}
            v_perm_b32 v{EB1+2}, v{ER+1}, v{ER+1}, s{sB}
            v_lshlrev_b32 v{ER}, 16, v{ER}
            v_lshlrev_b32 v{ER+1}, 16, v{ER+1}
            """)
        fill = pre + (mix(v, fill) if len(v) >= len(fill) else mix(fill, v)) if (v and fill) else pre + v + fill
        a(I(wlg=f"r{p}"))
        f = F(p)
        a(mix(mfmas((f, f + 4), (f + 8, f + 12), p == 0), fill))
        if p < 8 and "nocs" not in opt: a(cs_mfma(p))
        stamp(f"s{s}")
    fill = []
    EO = oi("eo", 2)
    cA, cB, cS = ([lambda nt, b=b: b + nt for b in (AP, BP, SS)] if EO == 0 else
                  [lambda nt, b=b: FR + 16 + 6 * nt + b for b in (0, 2, 4)])
    for nt in range(2):
        fill += [f"v_rcp_f32 v{TM+nt}, v{ER+nt}", f"v_mul_f32 v{cS(nt)}, v{ER+nt}, v{ER+nt}"]
        if EO == 2: fill += [f"v_mul_f32 v{cS(nt)+1}, v{ER+nt}, v{ER+nt}"]
    for nt in range(2):
        fill += [f"v_mul_f32 v{cA(nt)}, {fx(-KC)}, v{TM+nt}"]
        if EO == 2: fill += [f"v_mul_f32 v{cA(nt)+1}, {fx(-KC)}, v{TM+nt}"]
        fill += [f"v_mul_f32 v{TM+nt}, v{TM+nt}, v{TM+nt}",
                 f"v_mul_f32 v{TM+nt}, {fx(0.044715)}, v{TM+nt}", f"v_mul_f32 v{cB(nt)}, v{cA(nt)}, v{TM+nt}"]
        if EO == 2: fill += [f"v_mul_f32 v{cB(nt)+1}, v{cA(nt)}, v{TM+nt}"]
    sHF = SK
    fill += L(f"""
    v_bfe_u32 v{TM+8}, v0, 4, 1
    v_mul_u32_u24 v{TM+8}, 57344, v{TM+8}
    v_and_b32 v{TM+9}, 15, v0
    v_lshl_add_u32 v{TM+8}, v{TM+9}, 4, v{TM+8}
    v_lshrrev_b32 v{TM+9}, 5, v0
    v_lshl_add_u32 v{vHO}, v{TM+9}, 8, v{TM+8}
    s_mul_i32 s{sXB}, s{sKEY}, {4*56*1024}
    s_add_u32 s{sXB}, s{sXB}, s{sCSB}
    s_add_u32 s{sXB}, s{sXB}, {WS_H - WS_CS}
    s_add_u32 s{sWB}, s{sXB}, {2*56*1024}
    s_sub_u32 s{sHF}, s{sCSB}, {WS_CS}
    s_lshr_b32 s{sHF}, s{sHF}, 8
    s_mul_i32 s{sT0}, s{sHF}, 37
    s_lshr_b32 s{sT0}, s{sT0}, 10
    s_mul_i32 s{sT0}, s{sT0}, 100
    s_add_u32 s{sHF}, s{sHF}, s{sT0}
    s_lshl_b32 s{sT0}, s{sKEY}, 10
    s_add_u32 s{sHF}, s{sHF}, s{sT0}
    s_add_u32 s{sHF}, s{sHF}, {WS_FH}
    """)
    a(mix(mfmas((EG, EU), (EB0, EB1)), fill))
    stamp("B8")
    def epi(G, U, nt, rr, pk):
        o = []
        t = {r: TM + 2 * i for i, r in enumerate(rr)}
        P = lambda x: vr(x, 2)
        s2 = (f"op_sel:[0,{nt},{nt}] op_sel_hi:[1,{nt},{nt}]", "op_sel_hi:[1,0,0]", "")[EO]
        AP, BP, SS = [f(nt) & ~1 for f in (cA, cB, cS)]
        o += [f"v_pk_mul_f32 {P(t[r])}, {P(G+r)}, {P(G+r)}" for r in rr]
        o += [f"v_pk_fma_f32 {P(t[r])}, {P(t[r])}, {P(BP)}, {P(AP)} {s2}" for r in rr]
        o += [f"v_pk_mul_f32 {P(t[r])}, {P(t[r])}, {P(G+r)}" for r in rr]
        o += mix([f"v_exp_f32 v{t[r]+i}, v{t[r]+i}" for r in rr for i in range(2)],
                 [f"v_pk_mul_f32 {P(U+r)}, {P(U+r)}, {P(G+r)}" for r in rr])
        o += [f"v_pk_fma_f32 {P(t[r])}, {P(t[r])}, {P(SS)}, {P(SS)} {s2}" for r in rr]
        o += [f"v_rcp_f32 v{t[r]+i}, v{t[r]+i}" for r in rr for i in range(2)]
        o += [f"v_pk_mul_f32 {P(U+r)}, {P(U+r)}, {P(t[r])}" for r in rr]
        o += [f"v_cvt_pk_bf16_f32 v{pk+i}, v{U+r}, v{U+r+1}" for i, r in enumerate(rr)]
        return o
    for nt in range(2):
        G = ACC + 16 * nt; U = ACC + 32 + 16 * nt
        for h in range(2):
            pk = TM + 8 + 4 * h
            seq = epi(G, U, nt, range(8 * h, 8 * h + 8, 2), pk)
            n = wepi[2 * nt + h]
            a(mix(seq, WL[wi:wi + n])); wi += n
            so = sXB if nt == 0 else sWB
            a(I(f"buffer_store_dwordx4 {vr(pk,4)}, v{vHO}, {sr(SWS,4)}, s{so} offen offset:{512*h} sc1", vm="hs"))
            stamp(f"e{2*nt+h}")
    assert wi == NPRE
    a(f"s_branch {JOIN}")
    vq_join = list(a.vq)

    a(f"{AUX}:")
    if "noaux" in opt: a(f"s_branch {END}")
    a.vq, a.lq = list(vq_pro), []
    vKa, vKb, TP, vT, vKS, KR, KT = 1, 2, 32, 6, 10, 48, 96
    sKO, sKL = sXB, sWB
    a(row_load())
    a(f"""
    s_xor_b32 s{sCB}, s{sXCD}, s{sW}
    v_and_b32 v23, 1, v21
    v_lshlrev_b32 v23, 1, v23
    v_xor_b32 v23, v22, v23
    v_lshlrev_b32 v23, 4, v23
    v_lshl_add_u32 v{vKa}, v20, 10, v23
    {f"v_lshlrev_b32 v{vKa}, 4, v0" if "kvlin" in opt else ""}
    v_xor_b32 v{vKb}, 64, v{vKa}
    s_lshl_b32 s{sKO}, s{sRBL}, 3
    s_add_u32 s{sKO}, s{sKO}, s{sW}
    s_mov_b32 s{sKEY}, s{sKO}
    s_lshl_b32 s{sKO}, s{sKO}, 16
    s_lshl_b32 s{sT0}, s{sCB}, {13 if "kvlin" in opt else 7}
    s_add_u32 s{sKO}, s{sKO}, s{sT0}
    s_mul_i32 s{sKL}, s{sW}, 17408
    s_mov_b32 m0, s{sKL}
    s_cmp_eq_u32 s{sKEY}, 0
    s_cbranch_scc1 L_halo0
    s_sub_u32 s{sT0}, s{sKO}, 8192
    buffer_load_dwordx4 v{vKa}, {sr(SK,4)}, s{sT0} offen lds
    s_branch L_halo1
    L_halo0:
    v_mov_b32 v40, 0
    v_mov_b32 v41, 0
    v_mov_b32 v42, 0
    v_mov_b32 v43, 0
    ds_write_b128 v{vL16}, v[40:43]
    L_halo1:
    """)
    def kv_ld(m, b, tag):
        lb = (1 + b) if m == 0 else (9 + b)
        par = (lb & 1) if m == 0 else (b & 1)
        return [f"s_add_u32 m0, s{sKL}, {1024*lb}", f"s_add_u32 s{sT0}, s{sKO}, {(1024 if 'kvlin' in opt else 8192)*b}",
                I(f"buffer_load_dwordx4 v{vKb if par else vKa}, {sr(SV if m else SK,4)}, s{sT0} offen{NTK} lds", vm=tag)]
    for b in range(4): a(kv_ld(0, b, "k0")); a(kv_ld(1, b, "k0"))
    a(f"""
    v_and_b32 v23, 15, v0
    v_lshlrev_b32 v26, 3, v23
    s_lshl_b32 s{sT1}, s{sCB}, 9
    """)
    for cg in range(4):
        a(I(f"buffer_load_dwordx2 {vr(TP+2*cg,2)}, v26, {sr(SSH,4)}, s{sT1} offen offset:{128*cg}", vm="k0"))
    for b in range(4, 8): a(kv_ld(0, b, "k1")); a(kv_ld(1, b, "k1"))
    a(h_load(27))
    stamp("iss", 4)
    a(f"""
    v_lshlrev_b32 v26, 7, v24
    v_lshl_add_u32 v26, v21, 10, v26
    v_lshl_add_u32 v26, v25, 3, v26
    v_lshrrev_b32 v27, 1, v24
    v_lshl_add_u32 v26, v27, 5, v26
    v_and_b32 v27, 1, v21
    v_lshl_add_u32 v26, v27, 6, v26
    v_add_u32 v{vT}, s{sKL}, v26
    v_xor_b32 v{vT+1}, 32, v{vT}
    v_xor_b32 v{vT+2}, 64, v{vT}
    v_xor_b32 v{vT+3}, 96, v{vT}
    v_lshrrev_b32 v26, 1, v23
    v_lshlrev_b32 v26, 13, v26
    v_and_b32 v27, 1, v0
    v_lshl_add_u32 v26, v27, 4, v26
    v_sub_u32 v27, 3, v21
    v_lshl_add_u32 v{vKS}, v27, 5, v26
    s_lshl_b32 s{sKO}, s{sCB}, 18
    s_lshl_b32 s{sT0}, s{sKEY}, 8
    s_sub_u32 s{sKO}, s{sKO}, s{sT0}
    s_add_u32 s{sKO}, s{sKO}, {WS_KV + 8192 - 256}
    """)
    a(I(wvm="ep")); a(tag_math); a(row_math())
    stamp("rs", 1)
    def kv_read(hh, cg):
        r = KR + 10 * cg; t = f"kr{cg}"
        return [I(f"ds_read_b64_tr_b16 {vr(r,2)}, v{vT+cg} offset:{4096*hh+512}", lg=t),
                I(f"ds_read_b64_tr_b16 {vr(r+2,2)}, v{vT+(cg^2)} offset:{4096*hh+1024}", lg=t),
                I(f"ds_read_b64_tr_b16 {vr(r+4,2)}, v{vT+(cg^2)} offset:{4096*hh+1536}", lg=t),
                I(f"ds_read_b64_tr_b16 {vr(r+6,2)}, v{vT+cg} offset:{4096*hh+9216}", lg=t),
                I(f"ds_read_b64_tr_b16 {vr(r+8,2)}, v{vT+cg} offset:{4096*hh+9728}", lg=t)]
    def kv_math(hh, cg):
        r = KR + 10 * cg; q, u, w, pk = KT, KT + 8, KT + 16, KT + 24 + 4 * (cg & 1)
        o = [I(wlg=f"kr{cg}")]
        o += [f"v_alignbit_b32 v{q+i}, v{r+i}, v{r+i-1}, 16" for i in range(1, 6)]
        src = lambda t, back: (r if t & 1 else q) + 2 + t // 2 - back
        for t in (1, 3, 5, 7, 0, 2, 4, 6): o += [f"v_dot2_f32_bf16 v{u+t}, v{src(t,0)}, v{TP+2*cg}, 0"]
        for t in (1, 3, 5, 7, 0, 2, 4, 6): o += [f"v_dot2_f32_bf16 v{u+t}, v{src(t,1)}, v{TP+2*cg+1}, v{u+t}"]
        o += [f"v_and_b32 v{w+t}, 0xffff0000, v{r+6+t//2}" if t & 1 else f"v_lshlrev_b32 v{w+t}, 16, v{r+6+t//2}" for t in range(8)]
        o += [f"v_mul_f32 v{u+t}, v{u+t}, v{w+t}" for t in range(8)]
        o += [f"v_cvt_pk_bf16_f32 v{pk+e}, v{u+7-2*e}, v{u+6-2*e}" for e in range(4)]
        o += [f"s_add_u32 s{sT0}, s{sKO}, {65536*cg}",
              I(f"buffer_store_dwordx4 {vr(pk,4)}, v{vKS}, {sr(SWS,4)}, s{sT0} offen offset:{128*(1-hh)} sc1", vm="ks")]
        return o
    for hh in range(2):
        a(I(wvm=f"k{hh}", wlg="*"))
        stamp("kin", 5 + 2 * hh)
        for cg in range(4): a(kv_read(hh, cg))
        if hh == 0:
            for d in range(8): a(f"v_alignbit_b32 v{TP+d}, v{TP+d}, v{TP+d}, 16")
        for cg in range(4): a(kv_math(hh, cg))
        stamp("km", 6 + 2 * hh)
    a(h_math); a(wf_addr)
    vKA2, vKL2 = 27, 28
    ld2 = f"buffer_load_dword v{vKL2}, v{vKA2}, {sr(SWS,4)}, s{sA} offen sc1"
    a(f"""
    s_lshl_b32 s{sT0}, s{sCB}, 5
    s_add_u32 s{sT0}, s{sT0}, s{sKEY}
    s_lshl_b32 s{sT0}, s{sT0}, 2
    s_add_u32 s{sT0}, s{sT0}, {WS_FKV}
    v_lshlrev_b32 v26, 10, v0
    v_lshlrev_b32 v{vKA2}, 3, v0
    s_lshl_b32 s{sA}, s{sRT2}, 9
    s_add_u32 s{sA}, s{sA}, {WS_RS + 4}
    """)
    a([I("s_mov_b64 exec, 3", wvm="*"), f"buffer_store_dword v{vTAG}, v26, {sr(SWS,4)}, s{sT0} offen sc1", "s_mov_b64 exec, -1"])
    stamp("kvf", 2)
    if "dmaonly" in opt: a("s_branch L_prof")
    ck2 = [f"v_xor_b32 v{vFL}, s{sTAG}, v{vFL}", f"v_xor_b32 v{vKL2}, s{sTAG}, v{vKL2}", f"v_or_b32 v{vFL}, v{vFL}, v{vKL2}",
           f"v_cmp_ne_u32 vcc, 0, v{vFL}", "s_cmp_lg_u64 vcc, 0"]
    a("s_barrier")
    a(h_write)
    a(kf_addr); a(f"s_add_u32 s{sC}, s{sC}, 1024")
    stamp("wd", 3)
    a(spin("fwa", [wf_ld, ld2], ck2))
    a(f"""
    s_cmp_lg_u32 s2, 0
    s_cbranch_scc1 L_ep_ok
    s_add_u32 s{sT0}, s{sM0X}, {WS_RS}
    """)
    a(spin("ep", [f"buffer_load_dwordx4 v[32:35], v{vL16}, {sr(SWS,4)}, s{sT0} offen sc1",
                  f"buffer_load_dwordx4 v[36:39], v{vL16}, {sr(SWS,4)}, s{sT0} offen offset:1024 sc1"],
           [f"v_xor_b32 v{r}, s{sTAG}, v{r}" for r in (33, 35, 37, 39)] +
           ["v_or3_b32 v33, v33, v35, v37", "v_or_b32 v33, v33, v39", "v_cmp_ne_u32 vcc, 0, v33", "s_cmp_lg_u64 vcc, 0"]))
    NA = oi("na", 8)
    a(WL[:NA])
    a(spin("kva", [kf_ld], ne(vKL)))
    a.vq = []
    a(r_dma(24)); a(WL[NA:NPRE]); a(I(wvm="R"))
    a(f"s_branch L_kvok")

    a(f"{JOIN}:")
    a.vq, a.lq = list(vq_join), []
    stamp("join")
    a(f"s_cmp_eq_u32 s{sOK}, 1\ns_cbranch_scc1 L_kvok")
    a(spin("kv", [kf_ld], ne(vKL)))
    sv = list(a.vq); a(r_dma(24)); a(I(wvm="*")); a.vq = sv
    a("L_kvok:")
    CA, AF, BF = 32, 64, 128
    vRU, vRH, vPW, vPR, vZW, vZR, vYA, vYR, vOO = 2, 3, 4, 10, 11, 12, 13, 14, 30
    vXF, XN, vRC = 20, 22, 6
    vXF = 1
    sCH, sWQ, sCVB, sRHO = SV, SV + 1, SV + 2, SV + 3
    sOQ = SSH
    a(f"""
    s_lshr_b32 s{sCH}, s{sW}, 2
    s_and_b32 s{sWQ}, s{sW}, 3
    s_mul_i32 s{sCVB}, s{sCH}, {CVCH}
    s_add_u32 s{sCVB}, s{sCVB}, {L_CV}
    s_lshl_b32 s{sT0}, s{sWQ}, 7
    s_add_u32 s{sT0}, s{sT0}, s{sCVB}
    s_add_u32 s{sT1}, s{sT0}, 480
    v_and_b32 v15, 15, v0
    v_and_b32 v16, 48, v0
    v_lshlrev_b32 v31, 5, v15
    v_sub_u32 v31, v16, v31
    v_add_u32 v{vRU}, s{sT1}, v31
    s_add_u32 s{sT1}, s{sT0}, {4608 - 28 + 4160 + 3072}
    v_and_b32 v31, 1, v0
    v_mul_u32_u24 v31, 4160, v31
    v_sub_u32 v31, v16, v31
    v_bfe_u32 v{vRH}, v0, 1, 3
    v_lshl_add_u32 v31, v{vRH}, 2, v31
    v_add_u32 v{vRH}, s{sT1}, v31
    """)
    KHF, KHL = oi("khf", 5), oi("khl", 10)
    hf_st = [I(wvm="hs"), f"s_cmp_eq_u32 s{sISG}, 0", "s_cbranch_scc1 L_nohf",
             one(f"buffer_store_dword v{vTAG}, off, {sr(SWS,4)}, s{sHF} sc1"), "L_nohf:"]
    hf_st = [hf_st[1], hf_st[2], hf_st[0]] + hf_st[3:]
    if KHF < 0: a(hf_st); stamp("hflag")
    a(f"s_cmp_eq_u32 s{sISG}, 0\ns_cbranch_scc1 L_nowr")
    a(I(wvm="R"))
    a("L_nowr:")
    a(I(wlg="*"))
    a("s_barrier")
    stamp("c1")
    a(f"s_or_b32 s{sT0}, s2, s{sW}\ns_cbranch_scc1 L_noep")
    a(one(f"buffer_store_dword v{vTAG}, off, {sr(SWS,4)}, 0 offset:{WS_EPOCH} sc1"))
    a("L_noep:")
    order = [(0, p) for p in range(7, -1, -1)] + [(1, p) for p in range(8)]
    def uread(rr, d): return I(f"ds_read_b128 {vr(AF+32*rr+4*d,4)}, v{vRU} offset:{512*(7-d)+64*rr}", lg=f"a{rr}{d}")
    def hread(k):
        rr, p = order[k]; o = 128 * (p & 1) + 16 * rr; b = BF + 4 * (k % 4)
        g = []
        if rr == 0 and p in (5, 3, 1): g += [f"v_subrev_u32 v{vRH}, 1024, v{vRH}"]
        if rr == 1 and p in (2, 4, 6): g += [f"v_add_u32 v{vRH}, 1024, v{vRH}"]
        return g + [I(f"ds_read2_b32 {vr(b,2)}, v{vRH} offset0:{o} offset1:{o+1}", lg=f"b{k}"),
                    I(f"ds_read2_b32 {vr(b+2,2)}, v{vRH} offset0:{o+2} offset1:{o+3}", lg=f"b{k}")]
    for k in range(3): a(hread(k)); a(uread(0, k))
    for d in range(3, 8): a(uread(0, d))
    XV = (1, 18 + 2, 21, 31)
    XV = (6, 7, 8, 9); RC = (XN + 1, XN + 3, XN + 5, XN + 7)
    fin_addr = L(f"""
        s_and_b32 s{sRHO}, s{sCT2}, 3
        s_lshl_b32 s{sT0}, s{sRT2}, 16
        s_lshl_b32 s{sT1}, s{sCT2}, 7
        s_add_u32 s{sT0}, s{sT0}, s{sT1}
        s_lshl_b32 s{sT1}, s{sW}, 13
        s_add_u32 s{sT0}, s{sT0}, s{sT1}
        s_lshl_b32 s{sT1}, s{sRHO}, 10
        s_add_u32 s{sOQ}, s{sT0}, s{sT1}
        s_xor_b32 s{sOQ+1}, s{sOQ}, 1024
        s_xor_b32 s{sOQ+2}, s{sOQ}, 2048
        s_xor_b32 s{sOQ+3}, s{sOQ}, 3072
        v_and_b32 v31, 31, v0
        v_lshlrev_b32 v31, 2, v31
        v_and_b32 v1, 32, v0
        v_lshl_add_u32 v{vOO}, v1, 7, v31
        """)
    fin_ld = []
    for qd in range(4):
        fin_ld += [I(f"buffer_load_dword v{XV[qd]}, v{vOO}, {sr(SX,4)}, s{sOQ+qd} offen", vm="xt"),
                   [f"s_lshr_b32 s{sT0}, s{sOQ+qd}, 10", f"s_lshl_b32 s{sT0}, s{sT0}, 3", f"s_add_u32 s{sT0}, s{sT0}, {WS_RS}",
                    I(f"buffer_load_dword v{RC[qd]}, v1, {sr(SWS,4)}, s{sT0} offen sc1", vm="xt")]]
    xn_math = [I(wvm="xt")]
    for qd in range(4):
        x0, x1 = XN + 2 * qd, XN + 2 * qd + 1
        xn_math += L(f"""
        v_lshlrev_b32 v20, 16, v{x1}
        v_and_b32 v21, 0xffff0000, v{x1}
        v_rcp_f32 v20, v20
        v_lshlrev_b32 v{x0}, 16, v{XV[qd]}
        v_and_b32 v{x1}, 0xffff0000, v{XV[qd]}
        v_add_f32 v{x0}, v{x0}, v21
        v_add_f32 v{x1}, v{x1}, v21
        v_mul_f32 v{x0}, v{x0}, v20
        v_mul_f32 v{x1}, v{x1}, v20
        """)
    p_addr = L(f"""
        v_bfe_u32 v20, v0, 1, 2
        v_bfe_u32 v21, v0, 3, 1
        v_xor_b32 v20, v20, v21
        v_lshlrev_b32 v20, 4, v20
        v_xor_b32 v20, v20, v16
        v_lshl_add_u32 v20, v15, 6, v20
        s_lshl_b32 s{sT0}, s{sW}, 13
        v_add_u32 v{vPW}, s{sT0}, v20
        v_bfe_u32 v20, v0, 2, 2
        v_bfe_u32 v21, v0, 4, 1
        v_xor_b32 v20, v20, v21
        v_lshlrev_b32 v20, 4, v20
        v_lshlrev_b32 v21, 5, v0
        v_xor_b32 v20, v20, v21
        s_lshl_b32 s{sT0}, s{sCH}, 15
        s_lshl_b32 s{sT1}, s{sWQ}, 11
        s_add_u32 s{sT0}, s{sT0}, s{sT1}
        v_add_u32 v{vPR}, s{sT0}, v20
        s_lshl_b32 s{sT0}, s{sW}, 7
        s_lshl_b32 s{sE}, s{sRT2}, 10
        s_add_u32 s{sE}, s{sE}, s{sT0}
        s_add_u32 s{sE}, s{sE}, {WS_FH}
        v_min_u32 v{vFA}, 6, v0
        v_lshlrev_b32 v{vFA}, 2, v{vFA}
        """)
    hf_ld = wf_ld
    def pwrite(j): return I(f"ds_write_b128 v{vPW}, {vr(CA+4*j,4)} offset:{1024*j}", lg="pw")
    for k, (rr, p) in enumerate(order):
        seq = []
        for j in range(p, 8):
            c = "0" if (rr == 0 and j == p) else vr(CA + 4 * j, 4)
            seq.append(I(f"v_mfma_f32_16x16x32_bf16 {vr(CA+4*j,4)}, {vr(BF+4*(k%4),4)}, {vr(AF+32*rr+4*(j-p),4)}, {c}",
                         wlg=[f"a{rr}{j-p}", f"b{k}"]))
        fill = []
        if k == 1: fill += [fin_addr]
        if 1 <= k <= 6: fill += part(WL[NPRE:], k - 1, 6)
        if k in (3, 4): fill += fin_ld[4 * (k - 3):4 * (k - 3) + 4]
        if 4 <= k <= 7: fill += [uread(1, 2 * (k - 4)), uread(1, 2 * (k - 4) + 1)]
        if k in (6, 7): fill += part(p_addr, k - 6, 2)
        if 8 <= k <= 11: fill += part(xn_math, k - 8, 4)
        if k >= 9: fill = fill[:2] + [pwrite(p - 1)] + fill[2:]
        if k == KHF:
            fill += [hf_st]
        if k == KHL: fill += [I(hf_ld, vm="hf")]
        a(mix(seq, fill))
        if k + 3 < 16: a(hread(k + 3))
        if k == KHF: stamp("hflag")
        stamp(f"k{k}")
    HB, ZA, NS = 64, 32, 16
    sH1, sH2, sHQ = sXB, sWB, sKEY
    def hload(n):
        qd, ks = divmod(n, 7)
        g = []
        if ks == 0:
            g += [f"s_xor_b32 s{sT3}, s{sRHO}, {qd}", f"s_mul_i32 s{sT3}, s{sT3}, 57344", f"s_add_u32 s{sH1}, s{sHQ}, s{sT3}",
                  f"s_sub_u32 s{sH2}, s{sH1}, s{sRB}"]
        g.append(I(f"buffer_load_dwordx4 {vr(HB+4*(n%NS),4)}, v{vL16}, {sr(SWS,4)}, s{sH1 if ks < 4 else sH2} offen offset:{(ks&3)*1024} sc1", vm=f"h{n}"))
        return g
    NE = oi("ne", 8)
    sYS = sCB
    a(f"""
    s_mul_i32 s{sHQ}, s{sRT2}, {4*56*1024}
    s_mul_i32 s{sT1}, s{sW}, 7168
    s_add_u32 s{sHQ}, s{sHQ}, s{sT1}
    s_mul_i32 s{sT1}, s{sHI}, 3072
    s_add_u32 s{sHQ}, s{sHQ}, s{sT1}
    s_add_u32 s{sHQ}, s{sHQ}, {WS_H}
    s_mul_i32 s{sRB}, s{sHI}, 7168
    s_sub_u32 s{sRB}, s{sRB}, 4096
    s_lshl_b32 s{sT1}, s{sWQ}, 10
    s_sub_u32 s{sT1}, s{sCVB}, s{sT1}
    s_add_u32 s{sT1}, s{sT1}, 4080
    v_sub_u32 v20, s{sT1}, v{vL16}
    v_xor_b32 v21, 16, v{vPR}
    """)
    a(pwrite(7))
    a(I(wvm="hf")); a(ne(vFL))
    a(f"s_cselect_b32 s{sOK}, 0, 1\ns_cbranch_scc1 L_hlate")
    for n in range(NE): a(hload(n))
    a("L_hlate:")
    a(I(wlg="*"))
    a("s_barrier")
    stamp("c3")
    PR, vU, YA = 32, 128, 132
    a(I(f"ds_read_b128 {vr(vU,4)}, v20", lg="su"))
    for k in range(4):
        a(I(f"ds_read_b128 {vr(PR+8*k,4)}, v{vPR} offset:{8192*k}", lg=f"p{k}"))
        a(I(f"ds_read_b128 {vr(PR+8*k+4,4)}, v21 offset:{8192*k}", lg=f"p{k}"))
    a(f"""
    s_lshl_b32 s{sT1}, s{sCH}, 4
    s_lshr_b32 s{sD}, s{sD}, s{sT1}
    s_lshl_b32 s{sD}, s{sD}, 16
    s_lshl_b32 s{sT1}, s{sCP}, 13
    s_lshl_b32 s{sT3}, s{sW}, 10
    s_add_u32 s{sT1}, s{sT1}, s{sT3}
    s_add_u32 s{sT1}, s{sT1}, {WS_YT}
    s_lshl_b32 s{sYS}, s{sWQ}, 9
    s_lshl_b32 s{sT3}, s{sCP}, 1
    s_add_u32 s{sYS}, s{sYS}, s{sT3}
    s_add_u32 s{sYS}, s{sYS}, s{sCH}
    s_lshl_b32 s{sT3}, s{sYS}, 7
    s_and_b32 s{sT3}, s{sT3}, 0x380
    v_xor_b32 v31, s{sT3}, v{vL16}
    s_lshr_b32 s{sT3}, s{sT3}, 5
    s_lshr_b32 s{sYS}, s{sYS}, 3
    s_lshl_b32 s{sYS}, s{sYS}, 7
    s_add_u32 s{sYS}, s{sYS}, s{sT3}
    s_add_u32 s{sYS}, s{sYS}, {WS_FY}
    """)
    a(I(wlg="su"))
    for e in range(4):
        a(f"v_and_b32 v{YA+6-2*e}, 0xffff0000, v{vU+e}\nv_lshlrev_b32 v{YA+7-2*e}, 16, v{vU+e}")
    a(I(wlg="p0"))
    for e in range(8): a(f"v_fma_f32 v{YA+e}, v{YA+e}, s{sD}, v{PR+e}")
    a(I(wlg="p2"))
    for e in range(0, 8, 2): a(f"v_pk_add_f32 {vr(PR+8+e,2)}, {vr(PR+8+e,2)}, {vr(PR+16+e,2)}")
    a(I(wlg="p3"))
    for e in range(0, 8, 2): a(f"v_pk_add_f32 {vr(YA+e,2)}, {vr(YA+e,2)}, {vr(PR+24+e,2)}")
    for e in range(0, 8, 2): a(f"v_pk_add_f32 {vr(YA+e,2)}, {vr(YA+e,2)}, {vr(PR+8+e,2)}")
    for e in range(4): a(f"v_cvt_pk_bf16_f32 v{vU+e}, v{YA+2*e}, v{YA+2*e+1}")
    a(I(f"buffer_store_dwordx4 {vr(vU,4)}, v31, {sr(SWS,4)}, s{sT1} offen sc1", vm="ys"))
    yf_st = f"buffer_store_dword v{vTAG}, off, {sr(SWS,4)}, s{sYS} sc1"
    a(f"s_cmp_eq_u32 s{sOK}, 1\ns_cbranch_scc1 L_hgo")
    a(spin("hf", [hf_ld], ne(vFL)))
    sv = list(a.vq)
    for n in range(NE): a(hload(n))
    a.vq = sv
    a(one(yf_st))
    a("L_hgo:")
    stamp("hok")
    for n in range(NE, NS): a(hload(n))
    sYA, sYF, sSEL = sMO, sE, SK
    a(f"""
    v_lshrrev_b32 v20, 4, v0
    s_lshl_b32 s{sT1}, s{sRBL}, 2
    v_xor_b32 v21, v20, v15
    v_xor_b32 v21, s{sT1}, v21
    v_lshlrev_b32 v21, 4, v21
    v_lshl_add_u32 v21, v15, 8, v21
    s_lshl_b32 s{sT1}, s{sW}, 12
    v_add_u32 v{vZW}, s{sT1}, v21
    s_lshl_b32 s{sT1}, s{sW}, 1
    v_lshrrev_b32 v1, 5, v0
    v_add_u32 v21, s{sT1}, v1
    v_bfe_u32 v31, v0, 1, 4
    v_xor_b32 v31, v31, v21
    v_lshlrev_b32 v31, 4, v31
    v_lshl_add_u32 v31, v21, 8, v31
    v_and_b32 v21, 1, v0
    v_lshl_add_u32 v{vZR}, v21, 3, v31
    s_lshl_b32 s{sT1}, s{sWR}, 2
    v_and_b32 v21, 7, v0
    v_xor_b32 v20, v20, v21
    v_xor_b32 v20, s{sT1}, v20
    v_lshlrev_b32 v20, 4, v20
    v_lshrrev_b32 v31, 3, v0
    v_lshl_add_u32 v20, v31, 12, v20
    s_and_b32 s{sT1}, s{sRT2}, 7
    v_xor_b32 v31, s{sT1}, v31
    v_lshl_add_u32 v{vYA}, v31, 7, v20
    v_lshlrev_b32 v{vFA}, 2, v21
    v_xor_b32 v21, s{sW}, v21
    v_lshlrev_b32 v21, 4, v21
    v_lshl_add_u32 v21, v1, 3, v21
    v_and_b32 v31, 31, v0
    v_lshl_add_u32 v21, v31, 8, v21
    v_add_u32 v{vYR}, {L_Y}, v21
    s_lshl_b32 s{sT1}, s{sCT2}, 3
    s_add_u32 s{sT1}, s{sT1}, s{sW}
    s_lshl_b32 s{sYA}, s{sT1}, 15
    s_and_b32 s{sT0}, s{sRT2}, 24
    s_lshl_b32 s{sT0}, s{sT0}, 7
    s_add_u32 s{sYA}, s{sYA}, s{sT0}
    s_add_u32 s{sYA}, s{sYA}, {WS_YT}
    s_lshl_b32 s{sYF}, s{sT1}, 7
    s_lshr_b32 s{sT0}, s{sRT2}, 3
    s_lshl_b32 s{sT0}, s{sT0}, 13
    s_add_u32 s{sYF}, s{sYF}, s{sT0}
    s_add_u32 s{sYF}, s{sYF}, {WS_FY}
    s_mul_i32 s{sSEL}, s{sRHO}, 0x02020000
    s_add_u32 s{sSEL}, s{sSEL}, 0x01000c0c
    s_xor_b32 s{sSEL+1}, s{sSEL}, 0x02020000
    s_xor_b32 s{sSEL+2}, s{sSEL}, 0x04040000
    s_xor_b32 s{sSEL+3}, s{sSEL}, 0x06060000
    s_lshl_b32 s{sT0}, s{sW}, 10
    s_add_u32 m0, s{sT0}, {L_Y}
    """)
    ZT = 128
    def zwrite(qd):
        hi, lo = L_Z[qd] & ~0xffff, L_Z[qd] & 0xffff
        return [[f"v_xor_b32 v20, {hi + 64*mt}, v{vZW}",
                 I(f"ds_write_b128 v20, {vr(ZA+16*(qd&1)+4*mt,4)} offset:{lo}", lg="zw")] for mt in range(4)]
    def zread(qd):
        hi, lo = L_Z[qd] & ~0xffff, L_Z[qd] & 0xffff
        return [f"v_add_u32 v21, {hi}, v{vZR}"] + [
            I(f"ds_read_b64 {vr(ZT+2*k,2)}, v21 offset:{lo+4096*k}", lg=f"z{k}") for k in range(8)]
    def zmath(qd):
        o = []
        for st_ in (1, 2, 4):
            for k in range(0, 8, 2 * st_):
                for e in range(2):
                    o.append(I(f"v_add_f32 v{ZT+2*k+e}, v{ZT+2*k+e}, v{ZT+2*(k+st_)+e}", wlg=f"z{k+1}" if st_ == 1 else None))
        x = XN + 2 * qd
        o += [f"v_mul_f32 v{ZT+2+e}, {fx(-1.4426950408889634)}, v{ZT+e}" for e in range(2)]
        o += [f"v_exp_f32 v{ZT+2+e}, v{ZT+2+e}" for e in range(2)]
        o += [f"v_mul_f32 v{x+e}, v{x+e}, v{ZT+e}" for e in range(2)]
        o += [f"v_add_f32 v{ZT+2+e}, 1.0, v{ZT+2+e}" for e in range(2)]
        o += [f"v_rcp_f32 v{ZT+2+e}, v{ZT+2+e}" for e in range(2)]
        o += [f"v_mul_f32 v{x+e}, v{x+e}, v{ZT+2+e}" for e in range(2)]
        return o
    NYF, NYP, NYC = oi("nyf", 8), oi("nyp", 16), oi("nyc", 21)
    for n in range(28):
        qd, ks = divmod(n, 7)
        a(I(wvm=[f"h{n}", f"wd{ks}"]))
        if n == NYF: a(one(yf_st, wvm="ys", vm="yf"))
        if qd >= 1 and ks == 3:
            a(I(wlg="*")); a("s_barrier")
        seq = []
        for mt in range(4):
            d = ZA + 16 * (qd & 1) + 4 * mt
            c = "0" if ks == 0 else vr(d, 4)
            seq.append(f"v_mfma_f32_16x16x32_bf16 {vr(d,4)}, {vr(WDF(4*ks+mt),4)}, {vr(HB+4*(n%NS),4)}, {c}")
        fill = []
        if qd >= 1 and ks == 1: fill = zwrite(qd - 1)
        if qd >= 1 and ks == 3: fill = zread(qd - 1)
        if qd >= 1 and ks >= 4: fill = part(zmath(qd - 1), ks - 4, 3)
        if n == NYC:
            fill = [[I(wvm="yp")] + ne(vFL) + ["s_cbranch_scc0 L_yf_ok"] + spin("yf", [wf_ld], ne(vFL)) +
                    [I(f"buffer_load_dwordx4 v{vYA}, {sr(SWS,4)}, s{sYA} offen sc1 lds", vm="yl")]] + fill
        a(mix(seq, fill))
        if n + NS < 28: a(hload(n + NS))
        if n == NYP: a(I(wf_ld, vm="yp"))
        stamp(f"n{n}")
    a(zwrite(3))
    stamp("g2")
    XF = 64
    for qd in range(4):
        a(f"v_lshlrev_b32 v{XF+2*qd}, 16, v{XV[qd]}\nv_and_b32 v{XF+2*qd+1}, 0xffff0000, v{XV[qd]}")
    a(I(wvm="yl", wlg="*"))
    a("s_barrier")
    stamp("bf")
    YR, YF = 72, 76
    a(zread(3))
    a(I(f"ds_read_b64 {vr(YR,2)}, v{vYR}", lg="yr"))
    a(I(f"ds_read_b64 {vr(YR+2,2)}, v{vYR} offset:128", lg="yr"))
    def finish(qd):
        return [f"v_perm_b32 v{YF+2*qd}, v{YR+1}, v{YR}, s{sSEL+qd}", f"v_perm_b32 v{YF+2*qd+1}, v{YR+3}, v{YR+2}, s{sSEL+qd}",
                f"v_fmac_f32 v{XF+2*qd}, v{XN+2*qd}, v{YF+2*qd}", f"v_fmac_f32 v{XF+2*qd+1}, v{XN+2*qd+1}, v{YF+2*qd+1}",
                f"v_cvt_pk_bf16_f32 v{XF+2*qd}, v{XF+2*qd}, v{XF+2*qd+1}",
                f"buffer_store_dword v{XF+2*qd}, v{vOO}, {sr(SOUT,4)}, s{sOQ+qd} offen"]
    zm = zmath(3)
    a(zm[:8]); a(I(wlg="yr"))
    a(mix(zm[8:], finish(0) + finish(1) + finish(2)))
    a(finish(3))
    if prof:
        a("L_prof:")
        stamp("end")
        a(f"""
        s_waitcnt lgkmcnt(0)
        s_lshl_b32 s{sT0}, s2, 3
        s_add_u32 s{sT0}, s{sT0}, s{sW}
        s_lshl_b32 s{sT0}, s{sT0}, 6
        s_add_u32 s{sT0}, s{sT0}, {WS_PROF}
        """)
        for i in range(len(stamps)):
            a(f"v_mov_b32 v1, s{PROFS[i]}")
            a(f"buffer_store_dword v1, off, {sr(SWS,4)}, s{sT0} offset:{4*i}")
    a(f"{END}:\ns_endpgm")
    txt = a.text(256, 512, 163840)
    return txt, stamps, a.nops

if __name__ == "__main__":
    txt, st, nops = gen(prof="prof" in sys.argv, opt=sys.argv[2:])
    open(sys.argv[1], "w").write(txt)
    print("lines", txt.count("\n"), "nops", nops, st)
    if st: open(sys.argv[1] + ".stamps", "w").write(" ".join(st))
```

```python
import sys, struct
from em import *

WS_EPOCH, WS_FKV, WS_RS, WS_CS, WS_FH, WS_FY = 0, 4096, 32768, 65536, 262144, 524288
WS_KV, WS_WT, WS_YT, WS_H, WS_PROF = 1 << 20, 3 << 20, 5 << 20, 8 << 20, 16 << 20
SX, SWG, SWU, SWD, SWS, SOUT, SH, SK, SV, SSH = 8, 12, 16, 20, 24, 28, 32, 36, 40, 44
sW, sXB, sWB, sT0, sT1 = 3, 4, 5, 6, 7
(sRT2, sCT2, sKEY, sWR, sWC, sTAG, sM0X, sOK, sISG, sCNT, sT2, sT3, sCSM, sCP, sRBL, sXCD, sCB, sD,
 sMO, _m1, _m2, _m3, sHI, sRB) = range(48, 72)
sA, sB, sC, sE = 98, 99, 100, 101
PROFS = list(range(72, 98, 2))
STAGE = 49152
L_WP = 147456
L_CV, CVCH = 98304, 12864
L_Z = (65536, 131072, 0, 32768)
L_Y = 98304
ACC, FR = 32, 96
def WDF(i): return 144 + 4 * i
vX0, vX1, vW0, vW1, vL16 = 1, 2, 3, 4, 5
vXB, vWB, vTAG = 6, 14, 17
vHE, vHP, vHO_ = 128, 132, 134
SPIN = 0x4000
KC = 2 * 0.7978845608028654 * 1.4426950408889634
def fx(f): return "0x%08x" % struct.unpack("<I", struct.pack("<f", f))[0]
def L(s): return [x.strip() for x in s.strip().split("\n") if x.strip()]

def gen(prof=False, opt=()):
    a = Em()
    def oi(k, d): return int(([o[len(k):] for o in opt if o.startswith(k)] + [d])[0])
    stamps = []
    def oi(k, d): return int(([o[len(k):] for o in opt if o.startswith(k)] + [d])[0])
    def stamp(name, slot=None):
        sel = [o[3:].split(",") for o in opt if o.startswith("st=")]
        dflt = "start,B0,B4,B8,join,c1,c3,hok,g2,bf,end".split(",")
        if not prof or (slot is None and name not in (sel[0] if sel else dflt)): return
        if slot is None:
            slot = len(stamps); stamps.append(name)
        a(f"{'s_memtime' if 'cyc' in opt else 's_memrealtime'} {sr(PROFS[slot], 2)}")
    def spin(name, load, check):
        if "nochk" in opt: return [f"L_{name}_ok:"]
        return ([f"s_mov_b32 s{sCNT}, {SPIN}", f"L_{name}_loop:"] + load + ["s_waitcnt vmcnt(0)"] + check +
                [f"s_cbranch_scc0 L_{name}_ok", f"s_sub_u32 s{sCNT}, s{sCNT}, 1", f"s_cbranch_scc0 L_{name}_loop",
                 f"L_{name}_ok:"])
    def one(txt, vm=None, wvm=None):
        if "all" in opt: return [I(txt, vm=vm, wvm=wvm)]
        return [I("s_mov_b64 exec, 1", wvm=wvm), I(txt, vm=vm), "s_mov_b64 exec, -1"]
    FS = oi("fs", 7)
    def line(so, vm=None, wvm=None):
        if "fp" in opt: return one(f"buffer_store_dword v{vTAG}, off, {sr(SWS,4)}, s{so} offset:4 sc1", vm=vm, wvm=wvm)
        return [I(f"s_mov_b64 exec, {(1 << (1 << (FS - 4))) - 1}", wvm=wvm),
                I(f"buffer_store_dwordx4 {vr(vTAG-1,4)}, v{vL16}, {sr(SWS,4)}, s{so} offen sc1", vm=vm), "s_mov_b64 exec, -1"]
    def ne(v): return [f"v_cmp_ne_u32 vcc, s{sTAG}, v{v}", "s_cmp_lg_u64 vcc, 0"]
    def ap(txt, nl, key, vm=None):
        if key not in opt and "apa" not in opt: return [I(txt, vm=vm)]
        d = txt.split()[1].rstrip(",")
        t = I(txt.replace("buffer_load_dword", "buffer_atomic_or").replace("sc1", "sc0 sc1"), vm=vm)
        if nl == 64: return [f"v_mov_b32 {d}, 0", t]
        m = [f"s_mov_b32 exec_hi, 0"] if nl == 32 else [f"s_mov_b64 exec, {(1 << nl) - 1}"]
        return [f"v_mov_b32 {d}, s{sTAG}"] + m + [f"v_mov_b32 {d}, 0", t, "s_mov_b64 exec, -1"]
    END, AUX, JOIN = "L_end", "L_aux", "L_join"
    KM = oi("km", 3)
    a(f"""
    s_cmp_ge_u32 s2, 256
    s_cbranch_scc1 {END}
    s_load_dwordx16 s[72:87], s[0:1], 0
    s_load_dwordx8 s[88:95], s[0:1], 64
    s_load_dwordx2 s[96:97], s[0:1], 96
    v_lshrrev_b32 v1, 6, v0
    v_and_b32 v0, 63, v0
    v_readfirstlane_b32 s{sW}, v1
    s_and_b32 s{sXCD}, s2, 7
    s_lshr_b32 s{sCP}, s2, 3
    s_and_b32 s{sE}, s{sXCD}, 1
    s_lshr_b32 s{sA}, s{sXCD}, 1
    s_and_b32 s{sRBL}, s{sCP}, 3
    s_lshr_b32 s{sISG}, s{sCP}, 2
    s_lshl_b32 s{sRB}, s{sA}, 2
    s_add_u32 s{sRB}, s{sRB}, s{sRBL}
    s_lshl_b32 s{sRT2}, s{sRB}, 1
    s_add_u32 s{sRT2}, s{sRT2}, s{sE}
    s_add_u32 s{sCT2}, s{sISG}, 7
    s_and_b32 s{sCT2}, s{sCT2}, 7
    s_mul_i32 s{sCB}, s{sE}, 7
    s_add_u32 s{sCB}, s{sCB}, s{sCT2}
    s_xor_b32 s{sKEY}, s{sRBL}, s{sISG}
    s_and_b32 s{sKEY}, s{sKEY}, {KM}
    s_lshl_b32 s{sB}, s{sA}, {2 if KM == 3 else 1}
    s_and_b32 s{sB}, s{sB}, {4 if KM == 3 else 6}
    s_or_b32 s{sKEY}, s{sKEY}, s{sB}
    s_lshl_b32 s{sB}, s{sXCD}, 5
    s_add_u32 s{sCP}, s{sCP}, s{sB}
    s_and_b32 s{sWR}, s{sW}, 1
    s_lshr_b32 s{sWC}, s{sW}, 1
    s_lshr_b32 s{sB}, s{sW}, 2
    s_and_b32 s{sC}, s{sW}, 3
    s_lshl_b32 s{sXB}, s{sRB}, 17
    s_lshl_b32 s{sT0}, s{sB}, 16
    s_add_u32 s{sXB}, s{sXB}, s{sT0}
    s_lshl_b32 s{sT0}, s{sC}, 10
    s_add_u32 s{sXB}, s{sXB}, s{sT0}
    s_mul_i32 s{sWB}, s{sW}, 28672
    s_lshl_b32 s{sT0}, s{sCB}, 8
    s_add_u32 s{sWB}, s{sWB}, s{sT0}
    s_lshl_b32 s{sM0X}, s{sW}, 11
    s_and_b32 s{sT0}, s{sKEY}, 1
    s_and_b32 s{sT1}, s{sA}, 2
    s_or_b32 s{sT0}, s{sT0}, s{sT1}
    {f"s_mov_b32 s{sT0}, s{sRBL}" if KM != 3 else ""}
    s_add_u32 s{sCSM}, s{sWR}, 1
    s_cmp_eq_u32 s{sT0}, s{sWC}
    s_cselect_b32 s{sCSM}, s{sCSM}, 0
    s_lshr_b32 s{sHI}, s{sCT2}, 2
    s_mov_b32 s{sOK}, 0
    """)
    for s, n in ((SX, 1 << 21), (SWG, 1835008), (SWU, 1835008), (SWD, 1835008), (SWS, 1 << 25), (SOUT, 1 << 21),
                 (SH, 4096), (SK, 1 << 21), (SV, 1 << 21), (SSH, 4096)):
        a(f"s_mov_b32 s{s+2}, {n}")
        a(f"s_mov_b32 s{s+3}, 0x20000")
    a(f"""
    v_lshrrev_b32 v20, 3, v0
    v_lshrrev_b32 v21, 4, v0
    v_and_b32 v22, 7, v0
    v_xor_b32 v23, v22, v21
    v_lshlrev_b32 v23, 4, v23
    v_lshl_add_u32 v{vX0}, v20, 12, v23
    v_xor_b32 v{vX1}, 64, v{vX0}
    v_add_u32 v{vX1}, 31744, v{vX1}
    v_bfe_u32 v24, v0, 2, 2
    v_and_b32 v25, 3, v0
    v_xor_b32 v23, v24, v21
    v_lshlrev_b32 v23, 6, v23
    v_lshl_add_u32 v23, v25, 4, v23
    v_mul_u32_u24 v{vW0}, 3584, v21
    v_add_u32 v{vW0}, v{vW0}, v23
    v_add_u32 v{vW1}, 13312, v{vW0}
    v_lshlrev_b32 v{vL16}, 4, v0
    s_lshl_b32 s{sT2}, s{sCP}, 1
    s_add_u32 s{sT2}, s{sT2}, s{sB}
    s_lshl_b32 s{sT2}, s{sT2}, 12
    s_lshl_b32 s{sT3}, s{sCP}, 2
    s_waitcnt lgkmcnt(0)
    s_mov_b64 {sr(SX,2)}, s[72:73]
    s_mov_b64 {sr(SWG,2)}, s[86:87]
    s_mov_b64 {sr(SWU,2)}, s[88:89]
    s_mov_b64 {sr(SK,2)}, s[74:75]
    s_mov_b64 {sr(SV,2)}, s[76:77]
    {f"s_add_u32 s{SWS}, s96, {oi('wo', 0) << 20}" if oi('wo', 0) else f"s_mov_b64 {sr(SWS,2)}, s[96:97]"}
    {f"s_addc_u32 s{SWS+1}, s97, 0" if oi('wo', 0) else ""}
    s_mov_b64 {sr(SSH,2)}, s[78:79]
    s_mov_b64 {sr(SWD,2)}, s[90:91]
    s_mov_b64 {sr(SOUT,2)}, s[92:93]
    s_add_u32 s{SH}, s80, s{sT2}
    s_addc_u32 s{SH+1}, s81, 0
    s_load_dword s{sD}, s[82:83], s{sT3}
    """)
    if prof: a("s_nop 4")
    stamp("start")

    NTX = " nt" if "ntx" in opt else ""
    NTW = " nt" if "ntw" in opt else ""
    NTK = " nt" if "ntk" in opt else ""
    NTH = " nt" if "nth" in opt else ""
    def chunk_dma(c):
        st = (c % 3) * STAGE
        return [
            [f"s_xor_b32 s{sT0}, s{sKEY}, {c}",
             f"s_mul_i32 s{sT1}, s{sT0}, 229376", f"s_add_u32 s{sT1}, s{sT1}, s{sWB}",
             f"s_lshl_b32 s{sT0}, s{sT0}, 7", f"s_add_u32 m0, s{sM0X}, {st}", f"s_add_u32 s{sT0}, s{sT0}, s{sXB}",
             I(f"buffer_load_dwordx4 v{vX0}, {sr(SX,4)}, s{sT0} offen{NTX} lds", vm=f"c{c}")],
            I(f"buffer_load_dwordx4 v{vX1}, {sr(SX,4)}, s{sT0} offen offset:1024{NTX} lds", vm=f"c{c}"),
            [f"s_add_u32 m0, s{sM0X}, {st + 16384}",
             I(f"buffer_load_dwordx4 v{vW0}, {sr(SWG,4)}, s{sT1} offen{NTW} lds", vm=f"c{c}")],
            I(f"buffer_load_dwordx4 v{vW1}, {sr(SWG,4)}, s{sT1} offen offset:1024{NTW} lds", vm=f"c{c}"),
            [f"s_add_u32 m0, s{sM0X}, {st + 32768}",
             I(f"buffer_load_dwordx4 v{vW0}, {sr(SWU,4)}, s{sT1} offen{NTW} lds", vm=f"c{c}")],
            I(f"buffer_load_dwordx4 v{vW1}, {sr(SWU,4)}, s{sT1} offen offset:1024{NTW} lds", vm=f"c{c}"),
        ]
    XR, S1, S2 = 200, 204, 205
    def row_load():
        return [I(f"buffer_load_dword v{vTAG}, off, {sr(SWS,4)}, 0 offset:{WS_EPOCH} sc1", vm="ep"),
                [f"s_lshl_b32 s{sA}, s{sRT2}, 3", f"s_add_u32 s{sA}, s{sA}, s{sISG}", f"s_lshl_b32 s{sA}, s{sA}, 3",
                 f"s_add_u32 s{sA}, s{sA}, s{sW}", f"s_lshl_b32 s{sT2}, s{sA}, 10",
                 I(f"buffer_load_dwordx4 {vr(XR,4)}, v{vL16}, {sr(SX,4)}, s{sT2} offen", vm="ep")]]
    tag_math = L(f"""
        v_add_u32 v{vTAG}, 1, v{vTAG}
        v_and_b32 v{vTAG}, 0x0fff3fff, v{vTAG}
        v_or_b32 v{vTAG}, 0x20000000, v{vTAG}
        s_mov_b32 s{sB}, 0x3f803f80
        v_readfirstlane_b32 s{sTAG}, v{vTAG}
        """)
    def row_math():
        o = []
        for d in range(4):
            o += [f"v_dot2_f32_bf16 v{S1}, v{XR+d}, s{sB}, {'0' if d == 0 else f'v{S1}'}",
                  f"v_dot2_f32_bf16 v{S2}, v{XR+d}, v{XR+d}, {'0' if d == 0 else f'v{S2}'}"]
        o += [f"v_mov_b32 v{XR+1}, v{vTAG}", f"v_permlane32_swap_b32 v{S1}, v{S2}", f"v_add_f32 v{S1}, v{S1}, v{S2}"]
        o += [f"v_add_f32_dpp v{S1}, v{S1}, v{S1} {d} row_mask:0xf bank_mask:0xf"
              for d in ("quad_perm:[1,0,3,2]", "quad_perm:[2,3,0,1]", "row_half_mirror", "row_mirror")]
        o += [f"v_add_f32_dpp v{S1}, v{S1}, v{S1} row_bcast:15 row_mask:0xa bank_mask:0xf"]
        o += L(f"""
        v_mul_f32 v{S1}, {fx(1/512)}, v{S1}
        v_readlane_b32 s{sB}, v{S1}, 31
        v_readlane_b32 s{sC}, v{S1}, 63
        v_mul_f32 v{S1}, s{sB}, s{sB}
        v_sub_f32 v{S1}, s{sC}, v{S1}
        v_max_f32 v{S1}, 0, v{S1}
        v_cvt_pk_bf16_f32 v{S1}, v{S1}, v{S1}
        v_lshlrev_b32 v{S1}, 16, v{S1}
        v_add_f32 v{S1}, {fx(1e-5)}, v{S1}
        v_cvt_pk_bf16_f32 v{S1}, v{S1}, v{S1}
        v_lshlrev_b32 v{S1}, 16, v{S1}
        v_sqrt_f32 v{S1}, v{S1}
        s_lshl_b32 s{sA}, s{sA}, 3
        v_cvt_pk_bf16_f32 v{XR}, v{S1}, -s{sB}
        s_add_u32 s{sA}, s{sA}, {WS_RS}
        """)
        if "nors" not in opt: o += [one(f"buffer_store_dwordx2 {vr(XR,2)}, off, {sr(SWS,4)}, s{sA} sc1", vm="rs", wvm="wps")]
        return o
    def h_load(t):
        return [[f"s_and_b32 s{sT2}, s{sW}, 3", f"s_lshl_b32 s{sT2}, s{sT2}, 10",
                 I(f"buffer_load_dwordx4 {vr(vHE,4)}, v{vL16}, {sr(SH,4)}, s{sT2} offen", vm="hl")],
                [f"s_and_b32 s{sT2}, s{sW}, 3", f"s_lshl_b32 s{sT2}, s{sT2}, 10",
                 f"s_sub_u32 s{sT2}, s{sT2}, 4", f"v_add_u32 v{t}, s{sT2}, v{vL16}",
                 I(f"buffer_load_dword v{vHP}, v{t}, {sr(SH,4)}, 0 offen", vm="hl")]]
    vZ4 = 140
    h_math = ([I(f"v_alignbit_b32 v{vHO_}, v{vHE}, v{vHP}, 16", wvm="hl")] +
              [f"v_alignbit_b32 v{vHO_+d}, v{vHE+d}, v{vHE+d-1}, 16" for d in range(1, 4)] +
              [f"v_mov_b32 v{vZ4+d}, 0" for d in range(4)] + [L(f"""
        s_lshr_b32 s{sT2}, s{sW}, 2
        s_mul_i32 s{sT2}, s{sT2}, {CVCH}
        s_add_u32 s{sT2}, s{sT2}, {L_CV}
        v_min_u32 v{vHP+1}, 35, v0
        v_lshlrev_b32 v{vHP+1}, 4, v{vHP+1}
        v_lshrrev_b32 v{vHP}, 5, v0
        v_lshl_add_u32 v{vHP+1}, v{vHP}, 12, v{vHP+1}
        v_add_u32 v{vHP+1}, s{sT2}, v{vHP+1}
        s_and_b32 s{sT3}, s{sW}, 3
        s_lshl_b32 s{sT3}, s{sT3}, 10
        s_add_u32 s{sT2}, s{sT2}, s{sT3}
        v_add_u32 v{vHP}, s{sT2}, v{vL16}
        """)])
    h_write = [I(f"ds_write_b128 v{vHP}, {vr(vHE,4)} offset:4608", lg="hw"),
               I(f"ds_write_b128 v{vHP}, {vr(vHO_,4)} offset:{4608+4160}", lg="hw"),
               I(f"ds_write_b128 v{vHP+1}, {vr(vZ4,4)} offset:4096", lg="hw")]
    vFL, vFA = 18, 19
    def wf_addr_(sE, vFA, vFL): return L(f"""
        s_lshl_b32 s{sT2}, s{sCT2}, 3
        s_add_u32 s{sT2}, s{sT2}, s{sW}
        s_and_b32 s{sE}, s{sCT2}, 6
        s_lshl_b32 s{sE}, s{sE}, 1
        s_add_u32 s{sE}, s{sE}, s{sWC}
        s_lshl_b32 s{sE}, s{sE}, 1
        s_and_b32 s{sT3}, s{sCT2}, 1
        s_add_u32 s{sE}, s{sE}, s{sT3}
        s_lshl_b32 s{sE}, s{sE}, 4
        s_add_u32 s{sE}, s{sE}, s{sWR}
        s_lshl_b32 s{sE}, s{sE}, 5
        s_add_u32 s{sE}, s{sE}, {WS_RS + 64 + 4}
        s_mul_i32 s{sT2}, s{sT2}, 28672
        s_mul_i32 s{sT3}, s{sHI}, 12288
        s_add_u32 s{sT2}, s{sT2}, s{sT3}
        s_add_u32 s{sT2}, s{sT2}, {WS_WT}
        s_lshl_b32 s{sT3}, s{sRBL}, 10
        s_add_u32 s{sMO}, s{sT2}, s{sT3}
        s_xor_b32 s{sMO+1}, s{sMO}, 1024
        s_xor_b32 s{sMO+2}, s{sMO}, 2048
        s_xor_b32 s{sMO+3}, s{sMO}, 3072
        v_min_u32 v{vFA}, 27, v0
        v_and_b32 v{vFL}, 28, v{vFA}
        v_add_u32 v{vFA}, v{vFA}, v{vFL}
        v_lshlrev_b32 v{vFA}, 3, v{vFA}
        """)
    wf_addr = wf_addr_(sE, vFA, vFL)
    wf_ld = f"buffer_load_dword v{vFL}, v{vFA}, {sr(SWS,4)}, s{sE} offen sc1"
    def wd_loads():
        o = []
        for i in range(28):
            ks, mt = divmod(i, 4)
            g = []
            if i == 16:
                g += [f"s_mul_i32 s{sT3}, s{sHI}, 28672"] + [f"s_sub_u32 s{sMO+m}, s{sMO+m}, s{sT3}" for m in range(4)]
            g += [f"s_add_u32 s{sT3}, s{sMO+mt}, {4096*ks}",
                  I(f"buffer_load_dwordx4 {vr(WDF(i),4)}, v{vL16}, {sr(SWS,4)}, s{sT3} offen sc1", vm=f"wd{ks}")]
            o.append(g)
        return o
    vKA, vKL = 29, 30
    kf_addr = [f"v_and_b32 v{vKA}, 31, v0", f"v_lshlrev_b32 v{vKA}, 2, v{vKA}", f"s_lshl_b32 s{sC}, s{sXCD}, 7",
               f"s_add_u32 s{sC}, s{sC}, {WS_FKV}"]
    kf_ld = f"buffer_load_dword v{vKL}, v{vKA}, {sr(SWS,4)}, s{sC} offen sc1"
    def r_dma(t):
        return L(f"""
        s_lshr_b32 s{sT2}, s{sW}, 2
        s_mul_i32 s{sT3}, s{sT2}, {CVCH - 4096}
        s_lshl_b32 s{sT2}, s{sT2}, 4
        v_lshl_add_u32 v{t}, v0, 5, s{sT2}
        s_lshl_b32 s{sT2}, s{sW}, 10
        s_add_u32 s{sT3}, s{sT3}, s{sT2}
        s_add_u32 m0, s{sT3}, {L_CV}
        s_and_b32 s{sT2}, s{sM0X}, 0x1800
        s_lshl_b32 s{sT3}, s{sCP}, 13
        s_add_u32 s{sT2}, s{sT2}, s{sT3}
        s_add_u32 s{sT2}, s{sT2}, {WS_KV}
        """) + [I(f"buffer_load_dwordx4 v{t}, {sr(SWS,4)}, s{sT2} offen sc1 lds", vm="R")]

    WL = wd_loads()
    wsched = {17: 1, 18: 1, 19: 1, 21: 1, 22: 1, 23: 1, 24: 1, 25: 2, 26: 2, 27: 2, 29: 1, 30: 2, 31: 2}
    wsched = {k: n for k, n in wsched.items() if k >= oi("pw", 20) + 3}
    for o in opt:
        if o.startswith("ws="): wsched = {32 - len(o[3:]) + i: int(ch) for i, ch in enumerate(o[3:])}
    assert min(k for k, n in wsched.items() if n) >= oi("pw", 20) + oi("pd", 3)
    wepi = [int(x) for x in str(oi("we", 3320)).zfill(4)]
    NPRE = sum(wsched.values()) + sum(wepi)
    vq_pro = list(a.vq)
    a(f"s_cmp_eq_u32 s{sISG}, 0\ns_cbranch_scc1 {AUX}")
    if "nogemm" in opt: a(f"s_branch {END}")
    a(chunk_dma(0))
    WP, vWPA, vWPS, vWPL, CSA, CS1 = 208, 212, 213, 214, 240, 236
    sWPS, sWPF, sWPM = SSH, SSH + 1, SSH + 3
    a(f"""
    v_and_b32 v23, 3, v20
    v_lshrrev_b32 v26, 5, v0
    v_lshl_add_u32 v23, v26, 3, v23
    v_lshlrev_b32 v26, 4, v22
    v_lshl_add_u32 v{vWPL}, v23, 10, v26
    s_mov_b32 s{sE}, s{sXCD}
    s_lshl_b32 s{sT2}, s{sRBL}, 1
    s_add_u32 s{sT2}, s{sT2}, s{sB}
    s_mul_i32 s{sT3}, s{sT2}, 7
    s_add_u32 s{sT3}, s{sT3}, s{sCT2}
    s_mul_i32 s{sWPS}, s{sE}, 56
    s_add_u32 s{sWPS}, s{sWPS}, s{sT3}
    s_lshl_b32 s{sWPS}, s{sWPS}, 12
    s_lshl_b32 s{sT1}, s{sC}, 8
    s_add_u32 s{sWPS}, s{sWPS}, s{sT1}
    s_add_u32 s{sWPS}, s{sWPS}, {WS_WT}
    s_lshl_b32 s{sT3}, s{sT3}, 15
    s_lshl_b32 s{sT1}, s{sWR}, 12
    s_add_u32 s{sT3}, s{sT3}, s{sT1}
    s_lshl_b32 s{sT1}, s{sWC}, 14
    s_and_b32 s{sT1}, s{sT1}, 0x4000
    s_add_u32 s{sT3}, s{sT3}, s{sT1}
    s_lshl_b32 s{sT1}, s{sE}, 7
    s_add_u32 s{sWPF}, s{sT3}, s{sT1}
    s_lshl_b32 s{sT2}, s{sW}, 10
    s_add_u32 s{sWPM}, s{sT2}, {L_WP}
    s_barrier
    """)
    wp_load = [f"s_mov_b32 m0, s{sWPM}", I(f"buffer_load_dwordx4 v{vWPL}, {sr(SWD,4)}, s{sWPF} offen{NTH} lds", vm="wpl")]
    SWL, SWR, SRS, SPW, SHL, SPF, SRL = oi("wl", -1), oi("wr", 4), oi("rs", 11), oi("pw", 20), oi("hl", 9), oi("pf", 0), oi("rl", -1)
    SKF, SRD = oi("kf", 28), oi("rd", 32)
    if SWL < 0: a(wp_load)
    a(f"""
    v_lshlrev_b32 v23, 7, v24
    v_lshl_add_u32 v23, v21, 5, v23
    v_lshl_add_u32 v23, v25, 3, v23
    v_add_u32 v{vWPA}, s{sWPM}, v23
    """)
    C1E = oi("c1e", 2)
    if "rowl" not in opt: a(row_load())
    a(chunk_dma(1)[:C1E])
    a(f"""
    v_and_b32 v23, 15, v0
    v_lshlrev_b32 v23, 4, v23
    v_lshl_add_u32 v{vWPS}, v21, 10, v23
    v_and_b32 v24, 31, v0
    v_lshrrev_b32 v25, 5, v0
    v_bfe_u32 v22, v0, 1, 3
    v_xor_b32 v22, v22, v25
    v_lshlrev_b32 v22, 4, v22
    v_lshl_add_u32 v22, v24, 7, v22
    s_lshl_b32 s{sT0}, s{sWR}, 13
    v_add_u32 v{vXB}, s{sT0}, v22
    v_xor_b32 v{vXB+1}, 32, v{vXB}
    v_xor_b32 v{vXB+2}, 64, v{vXB}
    v_xor_b32 v{vXB+3}, 96, v{vXB}
    v_add_u32 v{vXB+4}, {2*STAGE}, v{vXB}
    v_add_u32 v{vXB+5}, {2*STAGE}, v{vXB+1}
    v_add_u32 v{vXB+6}, {2*STAGE}, v{vXB+2}
    v_add_u32 v{vXB+7}, {2*STAGE}, v{vXB+3}
    v_bfe_u32 v23, v0, 2, 2
    v_lshl_add_u32 v24, v25, 3, v23
    v_lshlrev_b32 v24, 8, v24
    v_xor_b32 v23, s{sWC}, v23
    v_lshl_add_u32 v24, v23, 6, v24
    v_bfe_u32 v23, v0, 4, 1
    v_lshl_add_u32 v24, v23, 5, v24
    v_and_b32 v23, 3, v0
    v_lshl_add_u32 v24, v23, 3, v24
    v_add_u32 v{vWB}, 16384, v24
    v_add_u32 v{vWB+1}, {STAGE+16384}, v24
    v_add_u32 v{vWB+2}, {2*STAGE+16384}, v24
    v_mov_b32 v{CS1}, 0x3f803f80
    v_mov_b32 v{CS1+1}, 0x3f803f80
    v_mov_b32 v{CS1+2}, 0x3f803f80
    v_mov_b32 v{CS1+3}, 0x3f803f80
    """)
    stamp("K0")
    if "dmaonly" in opt:
        DD = oi("dd", 2)
        if C1E < 6: a(chunk_dma(1)[0][:4]); a(chunk_dma(1)[C1E:])
        for c in range(2, DD): a(chunk_dma(c))
        for c in range(8):
            a(I(wvm=f"c{c}"))
            if "dnb" not in opt: a("s_barrier")
            stamp(f"B{c}")
            if c + DD < 8: a(chunk_dma(c + DD))
        a("s_branch L_prof")
        opt = [o for o in opt if not o.startswith("st=")] + ["st=end"]

    def F(s): return FR + 16 * (s & 1)
    def reads(s):
        c, j = divmod(s, 4)
        st = c % 3
        xb = vXB + j + (4 if st == 2 else 0); im = STAGE if st == 1 else 0
        wb = vWB + st; wo = 4096 * j
        f = F(s); t = f"r{s}"
        return [I(f"ds_read_b64_tr_b16 {vr(f,2)}, v{wb} offset:{wo}", lg=t),
                I(f"ds_read_b64_tr_b16 {vr(f+2,2)}, v{wb} offset:{wo+1024}", lg=t),
                I(f"ds_read_b128 {vr(f+8,4)}, v{xb} offset:{im}", lg=t),
                I(f"ds_read_b64_tr_b16 {vr(f+4,2)}, v{wb} offset:{wo+16384}", lg=t),
                I(f"ds_read_b64_tr_b16 {vr(f+6,2)}, v{wb} offset:{wo+17408}", lg=t),
                I(f"ds_read_b128 {vr(f+12,4)}, v{xb} offset:{im+4096}", lg=t)]
    def mfmas(A, B, first=False):
        out = []
        for nt in range(2):
            for m in range(2):
                d = ACC + 32 * m + 16 * nt
                out.append(f"v_mfma_f32_32x32x16_bf16 {vr(d,16)}, {vr(A[m],4)}, {vr(B[nt],4)}, {'0' if first else vr(d,16)}")
        return out
    def cs_mfma(p):
        o = []
        for m in range(2):
            o += [f"s_bitcmp1_b32 s{sCSM}, {m}", f"s_cbranch_scc0 L_cs{p}_{m}",
                  f"v_mfma_f32_32x32x16_bf16 {vr(CSA,16)}, {vr(CS1,4)}, {vr(F(p)+4*m,4)}, {'0' if p == 0 else vr(CSA,16)}",
                  f"L_cs{p}_{m}:"]
        return o
    sCSB = SSH + 2
    cs_store = [L(f"""
        s_lshl_b32 s{sCSB}, s{sCB}, 2
        s_add_u32 s{sCSB}, s{sCSB}, s{sWC}
        s_lshl_b32 s{sCSB}, s{sCSB}, 10
        s_add_u32 s{sCSB}, s{sCSB}, {WS_CS}
        s_cmp_eq_u32 s{sCSM}, {'s%d' % sCSM if "nocs" in opt else 0}
        s_cbranch_scc1 L_nocs
        v_cvt_pk_bf16_f32 v{CSA+1}, v{CSA}, v{CSA}
        s_mul_i32 s{sT2}, s{sWR}, 57344
        v_lshlrev_b32 v{CSA+1}, 16, v{CSA+1}
        s_lshr_b32 s{sT3}, s{sKEY}, 1
        v_sub_f32 v{CSA+1}, v{CSA}, v{CSA+1}
        s_lshl_b32 s{sT3}, s{sT3}, 3
        v_cvt_pk_bf16_f32 v{CSA}, v{CSA}, v{CSA+1}
        s_add_u32 s{sT2}, s{sT2}, s{sT3}
        v_mov_b32 v{CSA+1}, v{vTAG}
        s_add_u32 s{sT2}, s{sT2}, s{sCSB}
        v_lshlrev_b32 v{CSA+2}, 5, v0
        s_mov_b32 exec_hi, 0
        buffer_store_dwordx2 {vr(CSA,2)}, v{CSA+2}, {sr(SWS,4)}, s{sT2} offen sc1
        s_mov_b32 exec_hi, -1
        L_nocs:
        """)]
    EG, EU, ER, EB0, EB1 = 128, 132, 20, 136, 140
    ex_addr = L(f"""
        v_and_b32 v24, 31, v0
        v_lshrrev_b32 v25, 5, v0
        v_lshlrev_b32 v25, 4, v25
        v_lshl_add_u32 v{vX0}, v24, 5, v25
        v_and_b32 v24, 15, v0
        v_lshrrev_b32 v25, 4, v0
        v_lshlrev_b32 v25, 3, v25
        v_lshl_add_u32 v{vX1}, v24, 5, v25
        s_lshl_b32 s{sKEY}, s{sRB}, 1
        s_add_u32 s{sKEY}, s{sKEY}, s{sWR}
        s_lshl_b32 s{sWB}, s{sKEY}, 9
        s_add_u32 s{sWB}, s{sWB}, {WS_RS}
        s_add_u32 s{sXB}, s{sCSB}, 57344
        """)
    ex_ld = [f"buffer_load_dwordx4 {vr(EG,4)}, v{vX0}, {sr(SWS,4)}, s{sCSB} offen sc1",
             f"buffer_load_dwordx4 {vr(EU,4)}, v{vX0}, {sr(SWS,4)}, s{sXB} offen sc1",
             f"buffer_load_dwordx2 {vr(ER,2)}, v{vX1}, {sr(SWS,4)}, s{sWB} offen sc1"]
    ex_check = L(f"""
        v_min3_u32 v24, v{EG+1}, v{EG+3}, v{ER+1}
        v_max3_u32 v25, v{EG+1}, v{EG+3}, v{ER+1}
        v_min3_u32 v24, v24, v{EU+1}, v{EU+3}
        v_max3_u32 v25, v25, v{EU+1}, v{EU+3}
        v_cmp_ne_u32 vcc, s{sTAG}, v24
        v_cmp_ne_u32 s[{sT0}:{sT1}], s{sTAG}, v25
        s_or_b64 vcc, vcc, s[{sT0}:{sT1}]
        """)
    AP, BP, SS, vHO, TM = 22, 24, 26, 28, FR
    RM = row_math()
    def part(lst, i, n): return lst[len(lst) * i // n:len(lst) * (i + 1) // n]
    wi = 0
    for s in range(33):
        c, j = divmod(s, 4)
        fill = []; pre = []
        if j == 0 and s < 32:
            a(I(wvm=f"c{c}", wlg="*"))
            a("s_barrier")
            stamp(f"B{c}")
        if s == SWL: pre += [wp_load]
        if s == SPW: pre += [ap(wf_ld, 28, "apw", "fw")]
        if s == SKF: pre += [ap(kf_ld, 32, "apk", "kf")]
        if s == 28: pre += [I(x, vm="ex") for x in ex_ld]
        if s == 0:
            assert C1E in (0, 2, 4, 6)
            if 0 < C1E < 6: fill += [chunk_dma(1)[0][:4]]
            fill += chunk_dma(1)[C1E:]
            if "rowl" in opt: fill += row_load()
        if c == 0 and C1E < 6: fill += chunk_dma(2)[(0, 0, 2, 4)[j]:(0, 2, 4, 6)[j]]
        elif c <= 5: fill += chunk_dma(c + 2)[(0, 2, 3, 5)[j]:(2, 3, 5, 6)[j]]
        if s < 32: a(reads(s))
        wp_rd = [I(f"ds_read_b64_tr_b16 {vr(WP,2)}, v{vWPA}", lg="wp", wvm="wpl"),
                 I(f"ds_read_b64_tr_b16 {vr(WP+2,2)}, v{vWPA} offset:512", lg="wp")]
        wp_st = I(f"buffer_store_dwordx4 {vr(WP,4)}, v{vWPS}, {sr(SWS,4)}, s{sWPS} offen sc1", vm="wps", wlg="wp")
        if s == 0:
            a(pre + fill + (wp_rd if SWR == 0 else [])); continue
        p = s - 1
        v = []
        if s in (SHL, SHL + 2): fill += [h_load(24)[(s - SHL) >> 1]]
        if s == oi("tg", 4): v += [I(tag_math[0], wvm="ep")] + tag_math[1:]
        if s == SWR: fill += wp_rd
        if s == SWR + 1: fill = [wp_st] + fill if SWR == 0 else fill + [wp_st]
        RM0, RMN = oi("rm", 5), oi("rn", 5)
        if RM0 <= s < RM0 + RMN: v += part(RM[:-1], s - RM0, RMN)
        if s == SRS: fill = [RM[-1]] + fill if "rsf" in opt else fill + [RM[-1]]
        if s == 10: v += cs_store
        if s == 11: v += [wf_addr]
        if 21 <= s <= 23: v += part(h_math, s - 21, 3)
        if s == SPW + oi("pd", 3): pre += [[I(wvm="fw")] + ne(vFL) + ["s_cbranch_scc0 L_fw_ok"] + spin("fw", ap(wf_ld, 28, "apw"), ne(vFL))]
        if s == 19: v += kf_addr
        if s in (24, 25, 26): v += [h_write[s - 24]]
        if s == 27: v += ex_addr
        if s == SRD: fill = [[I(wvm="kf")] + ne(vKL) + [f"s_cselect_b32 s{sOK}, 0, 1"] +
                             ([f"s_cselect_b64 vcc, 0, -1"] + r_dma(24)[:-1] + ["s_mov_b64 exec, vcc", r_dma(24)[-1], "s_mov_b64 exec, -1"] if "mskr" in opt else r_dma(oi("rt", 24)))] + fill
        if s == 30: v += [f"v_mov_b32 v{r}, 0" for r in (EB0 + 1, EB0 + 3, EB1 + 1, EB1 + 3)] + [f"s_mov_b32 s{sB}, 0x03020302"]
        n = wsched.get(s, 0); fill += WL[wi:wi + n]; wi += n
        if s == 32:
            a(I(wvm="ex"))
            a(ex_check + ["s_cbranch_scc0 L_ex_ok"] + spin("ex", ex_ld, ex_check))
            v += L(f"""
            v_mov_b32 v{ER+1}, v{ER}
            v_permlane32_swap_b32 v{ER}, v{ER+1}
            v_perm_b32 v{EB0}, v{ER}, v{ER}, s{sB}
            v_perm_b32 v{EB0+2}, v{ER}, v{ER}, s{sB}
            v_perm_b32 v{EB1}, v{ER+1}, v{ER+1}, s{sB}
            v_perm_b32 v{EB1+2}, v{ER+1}, v{ER+1}, s{sB}
            v_lshlrev_b32 v{ER}, 16, v{ER}
            v_lshlrev_b32 v{ER+1}, 16, v{ER+1}
            """)
        fill = pre + (mix(v, fill) if len(v) >= len(fill) else mix(fill, v)) if (v and fill) else pre + v + fill
        a(I(wlg=f"r{p}"))
        f = F(p)
        a(mix(mfmas((f, f + 4), (f + 8, f + 12), p == 0), fill))
        if p < 8 and "nocs" not in opt: a(cs_mfma(p))
        stamp(f"s{s}")
    fill = []
    EO = oi("eo", 2)
    cA, cB, cS = ([lambda nt, b=b: b + nt for b in (AP, BP, SS)] if EO == 0 else
                  [lambda nt, b=b: FR + 16 + 6 * nt + b for b in (0, 2, 4)])
    for nt in range(2):
        fill += [f"v_rcp_f32 v{TM+nt}, v{ER+nt}", f"v_mul_f32 v{cS(nt)}, v{ER+nt}, v{ER+nt}"]
        if EO == 2: fill += [f"v_mul_f32 v{cS(nt)+1}, v{ER+nt}, v{ER+nt}"]
    for nt in range(2):
        fill += [f"v_mul_f32 v{cA(nt)}, {fx(-KC)}, v{TM+nt}"]
        if EO == 2: fill += [f"v_mul_f32 v{cA(nt)+1}, {fx(-KC)}, v{TM+nt}"]
        fill += [f"v_mul_f32 v{TM+nt}, v{TM+nt}, v{TM+nt}",
                 f"v_mul_f32 v{TM+nt}, {fx(0.044715)}, v{TM+nt}", f"v_mul_f32 v{cB(nt)}, v{cA(nt)}, v{TM+nt}"]
        if EO == 2: fill += [f"v_mul_f32 v{cB(nt)+1}, v{cA(nt)}, v{TM+nt}"]
    sHF = SK
    fill += L(f"""
    v_bfe_u32 v{TM+8}, v0, 4, 1
    v_mul_u32_u24 v{TM+8}, 57344, v{TM+8}
    v_and_b32 v{TM+9}, 15, v0
    v_lshl_add_u32 v{TM+8}, v{TM+9}, 4, v{TM+8}
    v_lshrrev_b32 v{TM+9}, 5, v0
    v_lshl_add_u32 v{vHO}, v{TM+9}, 8, v{TM+8}
    s_mul_i32 s{sXB}, s{sKEY}, {4*56*1024}
    s_add_u32 s{sXB}, s{sXB}, s{sCSB}
    s_add_u32 s{sXB}, s{sXB}, {WS_H - WS_CS}
    s_add_u32 s{sWB}, s{sXB}, {2*56*1024}
    s_sub_u32 s{sHF}, s{sCSB}, {WS_CS}
    s_lshr_b32 s{sHF}, s{sHF}, {10 - FS}
    s_mul_i32 s{sT0}, s{sKEY}, {56 << FS}
    s_add_u32 s{sHF}, s{sHF}, s{sT0}
    s_add_u32 s{sHF}, s{sHF}, {WS_FH}
    """)
    a(mix(mfmas((EG, EU), (EB0, EB1)), fill))
    stamp("B8")
    def epi(G, U, nt, rr, pk):
        o = []
        t = {r: TM + 2 * i for i, r in enumerate(rr)}
        P = lambda x: vr(x, 2)
        s2 = (f"op_sel:[0,{nt},{nt}] op_sel_hi:[1,{nt},{nt}]", "op_sel_hi:[1,0,0]", "")[EO]
        AP, BP, SS = [f(nt) & ~1 for f in (cA, cB, cS)]
        o += [f"v_pk_mul_f32 {P(t[r])}, {P(G+r)}, {P(G+r)}" for r in rr]
        o += [f"v_pk_fma_f32 {P(t[r])}, {P(t[r])}, {P(BP)}, {P(AP)} {s2}" for r in rr]
        o += [f"v_pk_mul_f32 {P(t[r])}, {P(t[r])}, {P(G+r)}" for r in rr]
        o += mix([f"v_exp_f32 v{t[r]+i}, v{t[r]+i}" for r in rr for i in range(2)],
                 [f"v_pk_mul_f32 {P(U+r)}, {P(U+r)}, {P(G+r)}" for r in rr])
        o += [f"v_pk_fma_f32 {P(t[r])}, {P(t[r])}, {P(SS)}, {P(SS)} {s2}" for r in rr]
        o += [f"v_rcp_f32 v{t[r]+i}, v{t[r]+i}" for r in rr for i in range(2)]
        o += [f"v_pk_mul_f32 {P(U+r)}, {P(U+r)}, {P(t[r])}" for r in rr]
        o += [f"v_cvt_pk_bf16_f32 v{pk+i}, v{U+r}, v{U+r+1}" for i, r in enumerate(rr)]
        return o
    HSP = ("sc1", "sc0 sc1", "sc1 nt", "sc0 sc1 nt", "", "nt")[oi("hsp", 0)]
    for nt in range(2):
        G = ACC + 16 * nt; U = ACC + 32 + 16 * nt
        for h in range(2):
            pk = TM + 8 + 4 * h
            seq = epi(G, U, nt, range(8 * h, 8 * h + 8, 2), pk)
            n = wepi[2 * nt + h]
            a(mix(seq, WL[wi:wi + n])); wi += n
            so = sXB if nt == 0 else sWB
            a(I(f"buffer_store_dwordx4 {vr(pk,4)}, v{vHO}, {sr(SWS,4)}, s{so} offen offset:{512*h} {HSP}", vm="hs"))
            stamp(f"e{2*nt+h}")
    assert wi == NPRE
    a(f"s_branch {JOIN}")
    vq_join = list(a.vq)

    a(f"{AUX}:")
    if "noaux" in opt: a(f"s_branch {END}")
    a.vq, a.lq = list(vq_pro), []
    vKa, vKb, TP, vT, vKS, KR, KT = 1, 2, 32, 6, 10, 48, 96
    sKO, sKL = sXB, sWB
    a(row_load())
    a(f"""
    s_xor_b32 s{sCB}, s{sXCD}, s{sW}
    v_and_b32 v23, 1, v21
    v_lshlrev_b32 v23, 1, v23
    v_xor_b32 v23, v22, v23
    v_lshlrev_b32 v23, 4, v23
    v_lshl_add_u32 v{vKa}, v20, 10, v23
    {f"v_lshlrev_b32 v{vKa}, 4, v0" if "kvlin" in opt else ""}
    v_xor_b32 v{vKb}, 64, v{vKa}
    s_lshl_b32 s{sKO}, s{sRBL}, 3
    s_add_u32 s{sKO}, s{sKO}, s{sW}
    s_mov_b32 s{sKEY}, s{sKO}
    s_lshl_b32 s{sKO}, s{sKO}, 16
    s_lshl_b32 s{sT0}, s{sCB}, {13 if "kvlin" in opt else 7}
    s_add_u32 s{sKO}, s{sKO}, s{sT0}
    s_mul_i32 s{sKL}, s{sW}, 17408
    s_mov_b32 m0, s{sKL}
    s_cmp_eq_u32 s{sKEY}, 0
    s_cbranch_scc1 L_halo0
    s_sub_u32 s{sT0}, s{sKO}, 8192
    buffer_load_dwordx4 v{vKa}, {sr(SK,4)}, s{sT0} offen lds
    s_branch L_halo1
    L_halo0:
    v_mov_b32 v40, 0
    v_mov_b32 v41, 0
    v_mov_b32 v42, 0
    v_mov_b32 v43, 0
    ds_write_b128 v{vL16}, v[40:43]
    L_halo1:
    """)
    def kv_ld(m, b, tag):
        lb = (1 + b) if m == 0 else (9 + b)
        par = (lb & 1) if m == 0 else (b & 1)
        return [f"s_add_u32 m0, s{sKL}, {1024*lb}", f"s_add_u32 s{sT0}, s{sKO}, {(1024 if 'kvlin' in opt else 8192)*b}",
                I(f"buffer_load_dwordx4 v{vKb if par else vKa}, {sr(SV if m else SK,4)}, s{sT0} offen{NTK} lds", vm=tag)]
    for b in range(4): a(kv_ld(0, b, "k0")); a(kv_ld(1, b, "k0"))
    a(f"""
    v_and_b32 v23, 15, v0
    v_lshlrev_b32 v26, 3, v23
    s_lshl_b32 s{sT1}, s{sCB}, 9
    """)
    for cg in range(4):
        a(I(f"buffer_load_dwordx2 {vr(TP+2*cg,2)}, v26, {sr(SSH,4)}, s{sT1} offen offset:{128*cg}", vm="k0"))
    for b in range(4, 8): a(kv_ld(0, b, "k1")); a(kv_ld(1, b, "k1"))
    a(h_load(27))
    stamp("iss", 4)
    a(f"""
    v_lshlrev_b32 v26, 7, v24
    v_lshl_add_u32 v26, v21, 10, v26
    v_lshl_add_u32 v26, v25, 3, v26
    v_lshrrev_b32 v27, 1, v24
    v_lshl_add_u32 v26, v27, 5, v26
    v_and_b32 v27, 1, v21
    v_lshl_add_u32 v26, v27, 6, v26
    v_add_u32 v{vT}, s{sKL}, v26
    v_xor_b32 v{vT+1}, 32, v{vT}
    v_xor_b32 v{vT+2}, 64, v{vT}
    v_xor_b32 v{vT+3}, 96, v{vT}
    v_lshrrev_b32 v26, 1, v23
    v_lshlrev_b32 v26, 13, v26
    v_and_b32 v27, 1, v0
    v_lshl_add_u32 v26, v27, 4, v26
    v_sub_u32 v27, 3, v21
    v_lshl_add_u32 v{vKS}, v27, 5, v26
    s_lshl_b32 s{sKO}, s{sCB}, 18
    s_lshl_b32 s{sT0}, s{sKEY}, 8
    s_sub_u32 s{sKO}, s{sKO}, s{sT0}
    s_add_u32 s{sKO}, s{sKO}, {WS_KV + 8192 - 256}
    """)
    a(I(wvm="ep")); a(tag_math); a(row_math())
    stamp("rs", 1)
    def kv_read(hh, cg):
        r = KR + 10 * cg; t = f"kr{cg}"
        return [I(f"ds_read_b64_tr_b16 {vr(r,2)}, v{vT+cg} offset:{4096*hh+512}", lg=t),
                I(f"ds_read_b64_tr_b16 {vr(r+2,2)}, v{vT+(cg^2)} offset:{4096*hh+1024}", lg=t),
                I(f"ds_read_b64_tr_b16 {vr(r+4,2)}, v{vT+(cg^2)} offset:{4096*hh+1536}", lg=t),
                I(f"ds_read_b64_tr_b16 {vr(r+6,2)}, v{vT+cg} offset:{4096*hh+9216}", lg=t),
                I(f"ds_read_b64_tr_b16 {vr(r+8,2)}, v{vT+cg} offset:{4096*hh+9728}", lg=t)]
    def kv_math(hh, cg):
        r = KR + 10 * cg; q, u, w, pk = KT, KT + 8, KT + 16, KT + 24 + 4 * (cg & 1)
        o = [I(wlg=f"kr{cg}")]
        o += [f"v_alignbit_b32 v{q+i}, v{r+i}, v{r+i-1}, 16" for i in range(1, 6)]
        src = lambda t, back: (r if t & 1 else q) + 2 + t // 2 - back
        for t in (1, 3, 5, 7, 0, 2, 4, 6): o += [f"v_dot2_f32_bf16 v{u+t}, v{src(t,0)}, v{TP+2*cg}, 0"]
        for t in (1, 3, 5, 7, 0, 2, 4, 6): o += [f"v_dot2_f32_bf16 v{u+t}, v{src(t,1)}, v{TP+2*cg+1}, v{u+t}"]
        o += [f"v_and_b32 v{w+t}, 0xffff0000, v{r+6+t//2}" if t & 1 else f"v_lshlrev_b32 v{w+t}, 16, v{r+6+t//2}" for t in range(8)]
        o += [f"v_mul_f32 v{u+t}, v{u+t}, v{w+t}" for t in range(8)]
        o += [f"v_cvt_pk_bf16_f32 v{pk+e}, v{u+7-2*e}, v{u+6-2*e}" for e in range(4)]
        o += [f"s_add_u32 s{sT0}, s{sKO}, {65536*cg}",
              I(f"buffer_store_dwordx4 {vr(pk,4)}, v{vKS}, {sr(SWS,4)}, s{sT0} offen offset:{128*(1-hh)} sc1", vm="ks")]
        return o
    for hh in range(2):
        a(I(wvm=f"k{hh}", wlg="*"))
        stamp("kin", 5 + 2 * hh)
        for cg in range(4): a(kv_read(hh, cg))
        if hh == 0:
            for d in range(8): a(f"v_alignbit_b32 v{TP+d}, v{TP+d}, v{TP+d}, 16")
        for cg in range(4): a(kv_math(hh, cg))
        stamp("km", 6 + 2 * hh)
    a(h_math); a(wf_addr)
    vKA2, vKL2 = 27, 28
    ld2 = f"buffer_load_dword v{vKL2}, v{vKA2}, {sr(SWS,4)}, s{sA} offen sc1"
    a(f"""
    s_lshl_b32 s{sT0}, s{sCB}, 5
    s_add_u32 s{sT0}, s{sT0}, s{sKEY}
    s_lshl_b32 s{sT0}, s{sT0}, 2
    s_add_u32 s{sT0}, s{sT0}, {WS_FKV}
    v_lshlrev_b32 v26, 10, v0
    v_lshlrev_b32 v{vKA2}, 3, v0
    s_lshl_b32 s{sA}, s{sRT2}, 9
    s_add_u32 s{sA}, s{sA}, {WS_RS + 4}
    """)
    a([I("s_mov_b64 exec, 3", wvm="*"), f"buffer_store_dword v{vTAG}, v26, {sr(SWS,4)}, s{sT0} offen sc1", "s_mov_b64 exec, -1"])
    stamp("kvf", 2)
    if "dmaonly" in opt: a("s_branch L_prof")
    ck2 = [f"v_xor_b32 v{vFL}, s{sTAG}, v{vFL}", f"v_xor_b32 v{vKL2}, s{sTAG}, v{vKL2}", f"v_or_b32 v{vFL}, v{vFL}, v{vKL2}",
           f"v_cmp_ne_u32 vcc, 0, v{vFL}", "s_cmp_lg_u64 vcc, 0"]
    a("s_barrier")
    a(h_write)
    a(kf_addr); a(f"s_add_u32 s{sC}, s{sC}, 1024")
    stamp("wd", 3)
    a(spin("fwa", ap(wf_ld, 28, "apx") + ap(ld2, 64, "apx"), ck2))
    a(f"""
    s_cmp_lg_u32 s2, 0
    s_cbranch_scc1 L_ep_ok
    s_add_u32 s{sT0}, s{sM0X}, {WS_RS}
    """)
    a(spin("ep", [f"buffer_load_dwordx4 v[32:35], v{vL16}, {sr(SWS,4)}, s{sT0} offen sc1",
                  f"buffer_load_dwordx4 v[36:39], v{vL16}, {sr(SWS,4)}, s{sT0} offen offset:1024 sc1"],
           [f"v_xor_b32 v{r}, s{sTAG}, v{r}" for r in (33, 35, 37, 39)] +
           ["v_or3_b32 v33, v33, v35, v37", "v_or_b32 v33, v33, v39", "v_cmp_ne_u32 vcc, 0, v33", "s_cmp_lg_u64 vcc, 0"]))
    NA = oi("na", 8)
    a(WL[:NA])
    a(spin("kva", ap(kf_ld, 32, "apx"), ne(vKL)))
    a.vq = []
    a(r_dma(24)); a(WL[NA:NPRE]); a(I(wvm="R"))
    a(f"s_branch L_kvok")

    a(f"{JOIN}:")
    a.vq, a.lq = list(vq_join), []
    stamp("join")
    okv = ("s%d" % sOK) if "nocv" in opt else "1"
    a(f"s_cmp_eq_u32 s{sOK}, {okv}\ns_cbranch_scc1 L_kvok")
    a(spin("kv", ap(kf_ld, 32, "apk"), ne(vKL)))
    sv = list(a.vq); a(r_dma(24)); a(I(wvm="*")); a.vq = sv
    a("L_kvok:")
    CA, AF, BF = 32, 64, 128
    vRU, vRH, vPW, vPR, vZW, vZR, vYA, vYR, vOO = 2, 3, 4, 10, 11, 12, 13, 14, 30
    vXF, XN, vRC = 20, 22, 6
    vXF = 1
    sCH, sWQ, sCVB, sRHO = SV, SV + 1, SV + 2, SV + 3
    sOQ = SSH
    a(f"""
    s_lshr_b32 s{sCH}, s{sW}, 2
    s_and_b32 s{sWQ}, s{sW}, 3
    s_mul_i32 s{sCVB}, s{sCH}, {CVCH}
    s_add_u32 s{sCVB}, s{sCVB}, {L_CV}
    s_lshl_b32 s{sT0}, s{sWQ}, 7
    s_add_u32 s{sT0}, s{sT0}, s{sCVB}
    s_add_u32 s{sT1}, s{sT0}, 480
    v_and_b32 v15, 15, v0
    v_and_b32 v16, 48, v0
    v_lshlrev_b32 v31, 5, v15
    v_sub_u32 v31, v16, v31
    v_add_u32 v{vRU}, s{sT1}, v31
    s_add_u32 s{sT1}, s{sT0}, {4608 - 28 + 4160 + 3072}
    v_and_b32 v31, 1, v0
    v_mul_u32_u24 v31, 4160, v31
    v_sub_u32 v31, v16, v31
    v_bfe_u32 v{vRH}, v0, 1, 3
    v_lshl_add_u32 v31, v{vRH}, 2, v31
    v_add_u32 v{vRH}, s{sT1}, v31
    """)
    KHF = oi("hf", 5)
    hf_st = [f"s_cmp_eq_u32 s{sISG}, 0", "s_cbranch_scc1 L_nohf", I(wvm="hs"),
             line(sHF), "L_nohf:"]
    if KHF < 0: a(hf_st); stamp("hflag")
    a(f"s_cmp_eq_u32 s{sISG}, 0\ns_cbranch_scc1 L_nowr")
    a(I(wvm="R"))
    a("L_nowr:")
    a(I(wlg="*"))
    if "noc1" not in opt: a("s_barrier")
    stamp("c1")
    a(f"s_or_b32 s{sT0}, s2, s{sW}\ns_cbranch_scc1 L_noep")
    a(one(f"buffer_store_dword v{vTAG}, off, {sr(SWS,4)}, 0 offset:{WS_EPOCH} sc1"))
    a("L_noep:")
    order = [(0, p) for p in range(7, -1, -1)] + [(1, p) for p in range(8)]
    def uread(rr, d): return I(f"ds_read_b128 {vr(AF+32*rr+4*d,4)}, v{vRU} offset:{512*(7-d)+64*rr}", lg=f"a{rr}{d}")
    def hread(k):
        rr, p = order[k]; o = 128 * (p & 1) + 16 * rr; b = BF + 4 * (k % 4)
        g = []
        if rr == 0 and p in (5, 3, 1): g += [f"v_subrev_u32 v{vRH}, 1024, v{vRH}"]
        if rr == 1 and p in (2, 4, 6): g += [f"v_add_u32 v{vRH}, 1024, v{vRH}"]
        return g + [I(f"ds_read2_b32 {vr(b,2)}, v{vRH} offset0:{o} offset1:{o+1}", lg=f"b{k}"),
                    I(f"ds_read2_b32 {vr(b+2,2)}, v{vRH} offset0:{o+2} offset1:{o+3}", lg=f"b{k}")]
    for k in range(3): a(hread(k)); a(uread(0, k))
    for d in range(3, 8): a(uread(0, d))
    XV = (1, 18 + 2, 21, 31)
    XV = (6, 7, 8, 9); RC = (XN + 1, XN + 3, XN + 5, XN + 7)
    fin_addr = L(f"""
        s_and_b32 s{sRHO}, s{sCT2}, 3
        s_lshl_b32 s{sT0}, s{sRT2}, 16
        s_lshl_b32 s{sT1}, s{sCT2}, 7
        s_add_u32 s{sT0}, s{sT0}, s{sT1}
        s_lshl_b32 s{sT1}, s{sW}, 13
        s_add_u32 s{sT0}, s{sT0}, s{sT1}
        s_lshl_b32 s{sT1}, s{sRHO}, 10
        s_add_u32 s{sOQ}, s{sT0}, s{sT1}
        s_xor_b32 s{sOQ+1}, s{sOQ}, 1024
        s_xor_b32 s{sOQ+2}, s{sOQ}, 2048
        s_xor_b32 s{sOQ+3}, s{sOQ}, 3072
        v_and_b32 v31, 31, v0
        v_lshlrev_b32 v31, 2, v31
        v_and_b32 v1, 32, v0
        v_lshl_add_u32 v{vOO}, v1, 7, v31
        """)
    fin_ld = []
    for qd in range(4):
        fin_ld += [I(f"buffer_load_dword v{XV[qd]}, v{vOO}, {sr(SX,4)}, s{sOQ+qd} offen", vm="xt"),
                   [f"s_lshr_b32 s{sT0}, s{sOQ+qd}, 10", f"s_lshl_b32 s{sT0}, s{sT0}, 3", f"s_add_u32 s{sT0}, s{sT0}, {WS_RS}",
                    I(f"buffer_load_dword v{RC[qd]}, v1, {sr(SWS,4)}, s{sT0} offen sc1", vm="xt")]]
    xn_math = [I(wvm="xt")]
    for qd in range(4):
        x0, x1 = XN + 2 * qd, XN + 2 * qd + 1
        xn_math += L(f"""
        v_lshlrev_b32 v20, 16, v{x1}
        v_and_b32 v21, 0xffff0000, v{x1}
        v_rcp_f32 v20, v20
        v_lshlrev_b32 v{x0}, 16, v{XV[qd]}
        v_and_b32 v{x1}, 0xffff0000, v{XV[qd]}
        v_add_f32 v{x0}, v{x0}, v21
        v_add_f32 v{x1}, v{x1}, v21
        v_mul_f32 v{x0}, v{x0}, v20
        v_mul_f32 v{x1}, v{x1}, v20
        """)
    p_addr = L(f"""
        v_bfe_u32 v20, v0, 1, 2
        v_bfe_u32 v21, v0, 3, 1
        v_xor_b32 v20, v20, v21
        v_lshlrev_b32 v20, 4, v20
        v_xor_b32 v20, v20, v16
        v_lshl_add_u32 v20, v15, 6, v20
        s_lshl_b32 s{sT0}, s{sW}, 13
        v_add_u32 v{vPW}, s{sT0}, v20
        v_bfe_u32 v20, v0, 2, 2
        v_bfe_u32 v21, v0, 4, 1
        v_xor_b32 v20, v20, v21
        v_lshlrev_b32 v20, 4, v20
        v_lshlrev_b32 v21, 5, v0
        v_xor_b32 v20, v20, v21
        s_lshl_b32 s{sT0}, s{sCH}, 15
        s_lshl_b32 s{sT1}, s{sWQ}, 11
        s_add_u32 s{sT0}, s{sT0}, s{sT1}
        v_add_u32 v{vPR}, s{sT0}, v20
        """)
    HB, ZA, NS = 64, 32, 16
    sH1, sH2, sHQ = sXB, sWB, sKEY
    def HR(n): return HB + 4 * (n % NS if n % NS < 8 else 23 - n % NS)
    sMK = sA
    def hload(n, mask=False):
        qd, ks = divmod(n, 7)
        g = []
        if ks == 0:
            g += [f"s_xor_b32 s{sT3}, s{sRHO}, {qd}", f"s_mul_i32 s{sT3}, s{sT3}, 57344", f"s_add_u32 s{sH1}, s{sHQ}, s{sT3}",
                  f"s_sub_u32 s{sH2}, s{sH1}, s{sRB}"]
        t = I(f"buffer_load_dwordx4 {vr(HR(n),4)}, v{vL16}, {sr(SWS,4)}, s{sH1 if ks < 4 else sH2} offen offset:{(ks&3)*1024} sc1", vm=f"h{n}")
        return g + ([f"s_mov_b64 exec, {sr(sMK,2)}", t, "s_mov_b64 exec, -1"] if mask and "nomask" not in opt else [t])
    def again(n1):
        sv = list(a.vq)
        for n in range(n1): a(hload(n))
        a.vq = sv
    h_addr = L(f"""
        s_mul_i32 s{sHQ}, s{sRT2}, {4*56*1024}
        s_mul_i32 s{sT1}, s{sW}, 7168
        s_add_u32 s{sHQ}, s{sHQ}, s{sT1}
        s_mul_i32 s{sT1}, s{sHI}, 3072
        s_add_u32 s{sHQ}, s{sHQ}, s{sT1}
        s_add_u32 s{sHQ}, s{sHQ}, {WS_H}
        s_mul_i32 s{sRB}, s{sHI}, 7168
        s_sub_u32 s{sRB}, s{sRB}, 4096
        s_lshl_b32 s{sE}, s{sRT2}, 3
        s_add_u32 s{sE}, s{sE}, s{sW}
        s_mul_i32 s{sE}, s{sE}, {7 << FS}
        s_add_u32 s{sE}, s{sE}, {WS_FH + 4}
        v_min_u32 v{vFA}, 6, v0
        v_lshlrev_b32 v{vFA}, {FS}, v{vFA}
        """)
    KH, KR_, KA, KB = oi("kh", 8), oi("kq", 3), oi("ka", 6), oi("kb", 11)
    assert 8 <= KH <= 15 and KA < KH <= KB and KHF < KH
    PM = [o[3:].replace("_", " ") for o in opt if o.startswith("pm=")]
    def poll(at, vm=None):
        if not at:
            t = wf_ld.replace("sc1", PM[0]) if PM else wf_ld
            return [I(t, vm=vm)]
        return [f"v_mov_b32 v{vFL}, 0", "s_mov_b64 exec, 0xff",
                I(f"buffer_atomic_or v{vFL}, v{vFA}, {sr(SWS,4)}, s{sE} offen sc0 sc1", vm=vm), "s_mov_b64 exec, -1"]
    def ne8(at): return [f"v_cmp_ne_u32 vcc, s{sTAG}, v{vFL}", "s_and_b32 vcc_lo, vcc_lo, 0xff"] if at else ne(vFL)
    AH, AY = "aph" in opt or "apa" in opt, "apy" in opt or "apa" in opt
    hf_ld = poll(AH)
    hn = 0
    def pwrite(j): return I(f"ds_write_b128 v{vPW}, {vr(CA+4*j,4)} offset:{1024*j}", lg="pw")
    sYS = sCB
    if "nocv" in opt:
        a(fin_addr); a(h_addr)
        if "wtf" in opt: a(WL[NPRE:]); a(fin_ld)
        a(hf_st)
        if "bar2" in opt: a("s_barrier")
        if "wtf" not in opt: a(WL[NPRE:]); a(fin_ld)
        stamp("k1")
        a(xn_math)
        if "blind" not in opt: a(spin("hf0", [f"s_sleep {oi('sl', 0)}", hf_ld], ne8(AH)))
        stamp("k11")
        a.vq = []
        for n in range(NS): a(hload(n))
        a(f"s_mov_b32 s{sMK}, -1")
        a(I(wlg="*"))
        stamp("c3")
    else:
        for k, (rr, p) in enumerate(order):
            seq = []
            for j in range(p, 8):
                c = "0" if (rr == 0 and j == p) else vr(CA + 4 * j, 4)
                seq.append(I(f"v_mfma_f32_16x16x32_bf16 {vr(CA+4*j,4)}, {vr(BF+4*(k%4),4)}, {vr(AF+32*rr+4*(j-p),4)}, {c}",
                             wlg=[f"a{rr}{j-p}", f"b{k}"]))
            fill = []
            if k == 1: fill += [fin_addr]
            if 1 <= k <= 6: fill += part(WL[NPRE:], k - 1, 6)
            if k in (3, 4): fill += fin_ld[4 * (k - 3):4 * (k - 3) + 4]
            if 4 <= k <= 7: fill += [uread(1, 2 * (k - 4)), uread(1, 2 * (k - 4) + 1)]
            if k in (6, 7): fill += part(p_addr, k - 6, 2)
            if 8 <= k <= 11: fill += part(xn_math, k - 8, 4)
            if k >= 9: fill = fill[:2] + [pwrite(p - 1)] + fill[2:]
            if k == 2: fill += [h_addr]
            if k == KHF: fill += [hf_st]
            if k == KA: fill += [poll(AH, "hf")]
            if k == KH: a([I(wvm="hf")] + ne8(AH) + [f"s_cselect_b64 {sr(sMK,2)}, 0, -1"])
            if k == KB: fill += [[f"s_cmp_lg_u32 s{sMK}, 0", "s_cbranch_scc1 L_nof2", hf_ld, "L_nof2:"]]
            if k >= KH:
                e = min(hn + KR_, k); hl = [hload(n, True) for n in range(hn, e)]; hn = max(hn, e)
                fill = mix(fill, hl) if len(fill) >= len(hl) else mix(hl, fill)
            a(mix(seq, fill))
            if k + 3 < 16: a(hread(k + 3))
            stamp(f"k{k}")
        a(f"""
        s_lshl_b32 s{sT1}, s{sWQ}, 10
        s_sub_u32 s{sT1}, s{sCVB}, s{sT1}
        s_add_u32 s{sT1}, s{sT1}, 4080
        v_sub_u32 v20, s{sT1}, v{vL16}
        v_xor_b32 v21, 16, v{vPR}
        """)
        a(pwrite(7))
        for n in range(hn, NS): a(hload(n, True))
        a([f"s_cmp_lg_u32 s{sMK}, 0", "s_cbranch_scc1 L_hlate", "s_waitcnt vmcnt(0)"] + ne8(AH) +
          [f"s_cselect_b32 s{sMK}, 0, -1", "s_cbranch_scc1 L_hlate"])
        again(NS)
        a("L_hlate:")
        sYS = sCB
        a(I(wlg="*"))
        a("s_barrier")
        stamp("c3")
        PR, vU, YA = 32, 128, 132
        a(I(f"ds_read_b128 {vr(vU,4)}, v20", lg="su"))
        for k in range(4):
            a(I(f"ds_read_b128 {vr(PR+8*k,4)}, v{vPR} offset:{8192*k}", lg=f"p{k}"))
            a(I(f"ds_read_b128 {vr(PR+8*k+4,4)}, v21 offset:{8192*k}", lg=f"p{k}"))
        a(f"""
        s_lshl_b32 s{sT1}, s{sCH}, 4
        s_lshr_b32 s{sD}, s{sD}, s{sT1}
        s_lshl_b32 s{sD}, s{sD}, 16
        s_lshl_b32 s{sT1}, s{sCP}, 13
        s_lshl_b32 s{sT3}, s{sW}, 10
        s_add_u32 s{sT1}, s{sT1}, s{sT3}
        s_add_u32 s{sT1}, s{sT1}, {WS_YT}
        s_lshl_b32 s{sYS}, s{sWQ}, 9
        s_lshl_b32 s{sT3}, s{sCP}, 1
        s_add_u32 s{sYS}, s{sYS}, s{sT3}
        s_add_u32 s{sYS}, s{sYS}, s{sCH}
        s_lshl_b32 s{sT3}, s{sYS}, 7
        s_and_b32 s{sT3}, s{sT3}, 0x380
        v_xor_b32 v31, s{sT3}, v{vL16}
        s_lshl_b32 s{sYS}, s{sYS}, {FS}
        s_add_u32 s{sYS}, s{sYS}, {WS_FY}
        """)
        a(I(wlg="su"))
        for e in range(4):
            a(f"v_and_b32 v{YA+6-2*e}, 0xffff0000, v{vU+e}\nv_lshlrev_b32 v{YA+7-2*e}, 16, v{vU+e}")
        a(I(wlg="p0"))
        for e in range(8): a(f"v_fma_f32 v{YA+e}, v{YA+e}, s{sD}, v{PR+e}")
        a(I(wlg="p2"))
        for e in range(0, 8, 2): a(f"v_pk_add_f32 {vr(PR+8+e,2)}, {vr(PR+8+e,2)}, {vr(PR+16+e,2)}")
        a(I(wlg="p3"))
        for e in range(0, 8, 2): a(f"v_pk_add_f32 {vr(YA+e,2)}, {vr(YA+e,2)}, {vr(PR+24+e,2)}")
        for e in range(0, 8, 2): a(f"v_pk_add_f32 {vr(YA+e,2)}, {vr(YA+e,2)}, {vr(PR+8+e,2)}")
        for e in range(4): a(f"v_cvt_pk_bf16_f32 v{vU+e}, v{YA+2*e}, v{YA+2*e+1}")
        a(I(f"buffer_store_dwordx4 {vr(vU,4)}, v31, {sr(SWS,4)}, s{sT1} offen sc1", vm="ys"))
    stamp("ys")
    a(f"s_cmp_lg_u32 s{sMK}, 0\ns_cbranch_scc1 L_hgo")
    a(spin("hf", [hf_ld], ne8(AH)))
    again(NS)
    a(line(sYS))
    a("L_hgo:")
    stamp("hok")
    sYA, sYF, sSEL = sMO, sE, SK
    g2_addr = L(f"""
    v_lshrrev_b32 v20, 4, v0
    s_lshl_b32 s{sT1}, s{sRBL}, 2
    v_xor_b32 v21, v20, v15
    v_xor_b32 v21, s{sT1}, v21
    v_lshlrev_b32 v21, 4, v21
    v_lshl_add_u32 v21, v15, 8, v21
    s_lshl_b32 s{sT1}, s{sW}, 12
    v_add_u32 v{vZW}, s{sT1}, v21
    s_lshl_b32 s{sT1}, s{sW}, 1
    v_lshrrev_b32 v1, 5, v0
    v_add_u32 v21, s{sT1}, v1
    v_bfe_u32 v31, v0, 1, 4
    v_xor_b32 v31, v31, v21
    v_lshlrev_b32 v31, 4, v31
    v_lshl_add_u32 v31, v21, 8, v31
    v_and_b32 v21, 1, v0
    v_lshl_add_u32 v{vZR}, v21, 3, v31
    s_lshl_b32 s{sT1}, s{sWR}, 2
    v_and_b32 v21, 7, v0
    v_xor_b32 v20, v20, v21
    v_xor_b32 v20, s{sT1}, v20
    v_lshlrev_b32 v20, 4, v20
    v_lshrrev_b32 v31, 3, v0
    v_lshl_add_u32 v20, v31, 12, v20
    s_and_b32 s{sT1}, s{sRT2}, 7
    v_xor_b32 v31, s{sT1}, v31
    v_lshl_add_u32 v{vYA}, v31, 7, v20
    v_lshlrev_b32 v{vFA}, {FS}, v21
    v_xor_b32 v21, s{sW}, v21
    v_lshlrev_b32 v21, 4, v21
    v_lshl_add_u32 v21, v1, 3, v21
    v_and_b32 v31, 31, v0
    v_lshl_add_u32 v21, v31, 8, v21
    v_add_u32 v{vYR}, {L_Y}, v21
    s_lshl_b32 s{sT1}, s{sCT2}, 3
    s_add_u32 s{sT1}, s{sT1}, s{sW}
    s_lshl_b32 s{sYA}, s{sT1}, 15
    s_and_b32 s{sT0}, s{sRT2}, 24
    s_lshl_b32 s{sT0}, s{sT0}, 7
    s_add_u32 s{sYA}, s{sYA}, s{sT0}
    s_add_u32 s{sYA}, s{sYA}, {WS_YT}
    s_lshl_b32 s{sYF}, s{sT1}, {FS + 3}
    s_lshr_b32 s{sT0}, s{sRT2}, 3
    s_lshl_b32 s{sT0}, s{sT0}, {FS + 9}
    s_add_u32 s{sYF}, s{sYF}, s{sT0}
    s_add_u32 s{sYF}, s{sYF}, {WS_FY + 4}
    s_mul_i32 s{sSEL}, s{sRHO}, 0x02020000
    s_add_u32 s{sSEL}, s{sSEL}, 0x01000c0c
    s_xor_b32 s{sSEL+1}, s{sSEL}, 0x02020000
    s_xor_b32 s{sSEL+2}, s{sSEL}, 0x04040000
    s_xor_b32 s{sSEL+3}, s{sSEL}, 0x06060000
    s_lshl_b32 s{sT0}, s{sW}, 10
    s_add_u32 m0, s{sT0}, {L_Y}
    """)
    ZT = 128
    def zwrite(qd):
        hi, lo = L_Z[qd] & ~0xffff, L_Z[qd] & 0xffff
        return [[f"v_xor_b32 v20, {hi + 64*mt}, v{vZW}",
                 I(f"ds_write_b128 v20, {vr(ZA+16*(qd&1)+4*mt,4)} offset:{lo}", lg="zw")] for mt in range(4)]
    def zread(qd):
        hi, lo = L_Z[qd] & ~0xffff, L_Z[qd] & 0xffff
        return [f"v_add_u32 v21, {hi}, v{vZR}"] + [
            I(f"ds_read_b64 {vr(ZT+2*k,2)}, v21 offset:{lo+4096*k}", lg=f"z{k}") for k in range(8)]
    def zmath(qd):
        o = []
        for st_ in (1, 2, 4):
            for k in range(0, 8, 2 * st_):
                for e in range(2):
                    o.append(I(f"v_add_f32 v{ZT+2*k+e}, v{ZT+2*k+e}, v{ZT+2*(k+st_)+e}", wlg=f"z{k+1}" if st_ == 1 else None))
        x = XN + 2 * qd
        o += [f"v_mul_f32 v{ZT+2+e}, {fx(-1.4426950408889634)}, v{ZT+e}" for e in range(2)]
        o += [f"v_exp_f32 v{ZT+2+e}, v{ZT+2+e}" for e in range(2)]
        o += [f"v_mul_f32 v{x+e}, v{x+e}, v{ZT+e}" for e in range(2)]
        o += [f"v_add_f32 v{ZT+2+e}, 1.0, v{ZT+2+e}" for e in range(2)]
        o += [f"v_rcp_f32 v{ZT+2+e}, v{ZT+2+e}" for e in range(2)]
        o += [f"v_mul_f32 v{x+e}, v{x+e}, v{ZT+2+e}" for e in range(2)]
        return o
    NYF, NYP, NYC = oi("nyf", 8), oi("nyp", 16), oi("nyc", 21)
    y_ld = f"buffer_load_dwordx4 v{vYA}, {sr(SWS,4)}, s{sYA} offen sc1 lds"
    for n in range(28):
        qd, ks = divmod(n, 7)
        a(I(wvm=[f"h{n}", f"wd{ks}"]))
        if n == NYF and "nocv" not in opt: a(line(sYS, wvm="ys", vm="yf"))
        if qd >= 1 and ks == 3:
            a(I(wlg="*"))
            if "nozb" not in opt: a("s_barrier")
        seq = []
        for mt in range(4):
            d = ZA + 16 * (qd & 1) + 4 * mt
            c = "0" if ks == 0 else vr(d, 4)
            seq.append(f"v_mfma_f32_16x16x32_bf16 {vr(d,4)}, {vr(WDF(4*ks+mt),4)}, {vr(HR(n),4)}, {c}")
        fill = []
        if qd >= 1 and ks == 1: fill = zwrite(qd - 1)
        if qd >= 1 and ks == 3: fill = zread(qd - 1)
        if qd >= 1 and ks >= 4: fill = part(zmath(qd - 1), ks - 4, 3)
        if n < 6: fill = part(g2_addr, n, 6)
        if n == NYC and "nocv" not in opt:
            fill = [[I(wvm="yp")] + ne8(AY) + [f"s_cselect_b32 s{sMK}, 0, -1", "s_cbranch_scc1 L_ylate", y_ld, "L_ylate:"]] + fill
        a(mix(seq, fill))
        if n + NS < 28: a(hload(n + NS))
        if n == NYP and "nocv" not in opt: a(poll(AY, "yp"))
        stamp(f"n{n}")
    a(zwrite(3))
    stamp("g2")
    XF = 64
    for qd in range(4):
        a(f"v_lshlrev_b32 v{XF+2*qd}, 16, v{XV[qd]}\nv_and_b32 v{XF+2*qd+1}, 0xffff0000, v{XV[qd]}")
    a(f"s_cmp_lg_u32 s{sMK}, 0\ns_cbranch_scc1 L_ygo")
    a(spin("yf", poll(AY), ne8(AY)) + [y_ld, "L_ygo:"])
    stamp("yok")
    a(I(wvm="*", wlg="*"))
    a("s_barrier")
    stamp("bf")
    YR, YF = 72, 76
    a(zread(3))
    a(I(f"ds_read_b64 {vr(YR,2)}, v{vYR}", lg="yr"))
    a(I(f"ds_read_b64 {vr(YR+2,2)}, v{vYR} offset:128", lg="yr"))
    def finish(qd):
        return [f"v_perm_b32 v{YF+2*qd}, v{YR+1}, v{YR}, s{sSEL+qd}", f"v_perm_b32 v{YF+2*qd+1}, v{YR+3}, v{YR+2}, s{sSEL+qd}",
                f"v_fmac_f32 v{XF+2*qd}, v{XN+2*qd}, v{YF+2*qd}", f"v_fmac_f32 v{XF+2*qd+1}, v{XN+2*qd+1}, v{YF+2*qd+1}",
                f"v_cvt_pk_bf16_f32 v{XF+2*qd}, v{XF+2*qd}, v{XF+2*qd+1}",
                f"buffer_store_dword v{XF+2*qd}, v{vOO}, {sr(SOUT,4)}, s{sOQ+qd} offen sc0 sc1"]
    zm = zmath(3)
    a(zm[:8]); a(I(wlg="yr"))
    a(mix(zm[8:], finish(0) + finish(1) + finish(2)))
    a(finish(3))
    if prof:
        a("L_prof:")
        stamp("end")
        a(f"""
        s_waitcnt lgkmcnt(0)
        s_lshl_b32 s{sT0}, s2, 3
        s_add_u32 s{sT0}, s{sT0}, s{sW}
        s_lshl_b32 s{sT0}, s{sT0}, 6
        s_add_u32 s{sT0}, s{sT0}, {WS_PROF}
        """)
        for i in range(len(stamps)):
            a(f"v_mov_b32 v1, s{PROFS[i]}")
            a(f"buffer_store_dword v1, off, {sr(SWS,4)}, s{sT0} offset:{4*i}")
    a(f"{END}:\ns_endpgm")
    txt = a.text(256, 512, 163840)
    return txt, stamps, a.nops

if __name__ == "__main__":
    txt, st, nops = gen(prof="prof" in sys.argv, opt=sys.argv[2:])
    open(sys.argv[1], "w").write(txt)
    print("lines", txt.count("\n"), "nops", nops, st)
    if st: open(sys.argv[1] + ".stamps", "w").write(" ".join(st))
```

```python
import sys, struct
from em import *

WS_EPOCH, WS_FKV, WS_RS, WS_CS, WS_FH, WS_FY = 0, 4096, 32768, 65536, 262144, 524288
WS_KV, WS_WT, WS_YT, WS_H, WS_PROF = 1 << 20, 3 << 20, 5 << 20, 8 << 20, 16 << 20
SX, SWG, SWU, SWD, SWS, SOUT, SH, SK, SV, SSH = 8, 12, 16, 20, 24, 28, 32, 36, 40, 44
sW, sXB, sWB, sT0, sT1 = 3, 4, 5, 6, 7
(sRT2, sCT2, sKEY, sWR, sWC, sTAG, sM0X, sOK, sISG, sCNT, sT2, sT3, sCSM, sCP, sRBL, sXCD, sCB, sD,
 sMO, _m1, _m2, _m3, sHI, sRB) = range(48, 72)
sA, sB, sC, sE = 98, 99, 100, 101
PROFS = list(range(72, 98, 2))
STAGE = 49152
L_WP = 147456
L_CV, CVCH = 98304, 12864
L_Z = (65536, 131072, 0, 32768)
L_Y, L_CNT = L_CV + 4608, L_CV + 4096
ACC, FR = 32, 96
def WDF(i): return 144 + 4 * i
vX0, vX1, vW0, vW1, vL16 = 1, 2, 3, 4, 5
vXB, vWB, vTAG = 6, 14, 17
vHE, vHP, vHO_ = 128, 132, 134
SPIN = 0x4000
KC = 2 * 0.7978845608028654 * 1.4426950408889634
def fx(f): return "0x%08x" % struct.unpack("<I", struct.pack("<f", f))[0]
def L(s): return [x.strip() for x in s.strip().split("\n") if x.strip()]

def gen(prof=False, opt=()):
    a = Em()
    def oi(k, d): return int(([o[len(k):] for o in opt if o.startswith(k)] + [d])[0])
    stamps = []
    def oi(k, d): return int(([o[len(k):] for o in opt if o.startswith(k)] + [d])[0])
    def stamp(name, slot=None):
        sel = [o[3:].split(",") for o in opt if o.startswith("st=")]
        dflt = "start,B0,B4,B8,join,c1,c3,hok,g2,bf,end".split(",")
        if not prof or (slot is None and name not in (sel[0] if sel else dflt)): return
        own = slot is None
        if "both" in opt and not own: return
        if slot is None:
            slot = len(stamps); stamps.append(name)
        a(f"{'s_memtime' if 'cyc' in opt else 's_memrealtime'} {sr(PROFS[slot], 2)}")
        if "both" in opt and own:
            stamps.append(name + "c"); a(f"s_memtime {sr(PROFS[slot + 1], 2)}")
    def spin(name, load, check):
        if "nochk" in opt: return [f"L_{name}_ok:"]
        return ([f"s_mov_b32 s{sCNT}, {SPIN}", f"L_{name}_loop:"] + load + ["s_waitcnt vmcnt(0)"] + check +
                [f"s_cbranch_scc0 L_{name}_ok", f"s_sub_u32 s{sCNT}, s{sCNT}, 1", f"s_cbranch_scc0 L_{name}_loop",
                 f"L_{name}_ok:"])
    def one(txt, vm=None, wvm=None):
        if "all" in opt: return [I(txt, vm=vm, wvm=wvm)]
        return [I("s_mov_b64 exec, 1", wvm=wvm), I(txt, vm=vm), "s_mov_b64 exec, -1"]
    FS = oi("fs", 7)
    def line(so, vm=None, wvm=None):
        if "fp" in opt: return one(f"buffer_store_dword v{vTAG}, off, {sr(SWS,4)}, s{so} offset:4 sc1", vm=vm, wvm=wvm)
        return [I(f"s_mov_b64 exec, {(1 << (1 << (FS - 4))) - 1}", wvm=wvm),
                I(f"buffer_store_dwordx4 {vr(vTAG-1,4)}, v{vL16}, {sr(SWS,4)}, s{so} offen sc1", vm=vm), "s_mov_b64 exec, -1"]
    def ne(v): return [f"v_cmp_ne_u32 vcc, s{sTAG}, v{v}", "s_cmp_lg_u64 vcc, 0"]
    def ap(txt, nl, key, vm=None):
        if key not in opt and "apa" not in opt: return [I(txt, vm=vm)]
        d = txt.split()[1].rstrip(",")
        t = I(txt.replace("buffer_load_dword", "buffer_atomic_or").replace("sc1", "sc0 sc1"), vm=vm)
        if nl == 64: return [f"v_mov_b32 {d}, 0", t]
        m = [f"s_mov_b32 exec_hi, 0"] if nl == 32 else [f"s_mov_b64 exec, {(1 << nl) - 1}"]
        return [f"v_mov_b32 {d}, s{sTAG}"] + m + [f"v_mov_b32 {d}, 0", t, "s_mov_b64 exec, -1"]
    END, AUX, JOIN = "L_end", "L_aux", "L_join"
    KM = oi("km", 3)
    a(f"""
    s_cmp_ge_u32 s2, 256
    s_cbranch_scc1 {END}
    s_load_dwordx16 s[72:87], s[0:1], 0
    s_load_dwordx8 s[88:95], s[0:1], 64
    s_load_dwordx2 s[96:97], s[0:1], 96
    v_lshrrev_b32 v1, 6, v0
    v_and_b32 v0, 63, v0
    v_readfirstlane_b32 s{sW}, v1
    s_and_b32 s{sXCD}, s2, 7
    s_lshr_b32 s{sCP}, s2, 3
    s_and_b32 s{sE}, s{sXCD}, 1
    s_lshr_b32 s{sA}, s{sXCD}, 1
    s_and_b32 s{sRBL}, s{sCP}, 3
    s_lshr_b32 s{sISG}, s{sCP}, 2
    s_lshl_b32 s{sRB}, s{sA}, 2
    s_add_u32 s{sRB}, s{sRB}, s{sRBL}
    s_lshl_b32 s{sRT2}, s{sRB}, 1
    s_add_u32 s{sRT2}, s{sRT2}, s{sE}
    s_add_u32 s{sCT2}, s{sISG}, 7
    s_and_b32 s{sCT2}, s{sCT2}, 7
    s_mul_i32 s{sCB}, s{sE}, 7
    s_add_u32 s{sCB}, s{sCB}, s{sCT2}
    s_xor_b32 s{sKEY}, s{sRBL}, s{sISG}
    s_and_b32 s{sKEY}, s{sKEY}, {KM}
    s_lshl_b32 s{sB}, s{sA}, {2 if KM == 3 else 1}
    s_and_b32 s{sB}, s{sB}, {4 if KM == 3 else 6}
    s_or_b32 s{sKEY}, s{sKEY}, s{sB}
    s_lshl_b32 s{sB}, s{sXCD}, 5
    s_add_u32 s{sCP}, s{sCP}, s{sB}
    s_and_b32 s{sWR}, s{sW}, 1
    s_lshr_b32 s{sWC}, s{sW}, 1
    s_lshr_b32 s{sB}, s{sW}, 2
    s_and_b32 s{sC}, s{sW}, 3
    s_lshl_b32 s{sXB}, s{sRB}, 17
    s_lshl_b32 s{sT0}, s{sB}, 16
    s_add_u32 s{sXB}, s{sXB}, s{sT0}
    s_lshl_b32 s{sT0}, s{sC}, 10
    s_add_u32 s{sXB}, s{sXB}, s{sT0}
    s_mul_i32 s{sWB}, s{sW}, 28672
    s_lshl_b32 s{sT0}, s{sCB}, 8
    s_add_u32 s{sWB}, s{sWB}, s{sT0}
    s_lshl_b32 s{sM0X}, s{sW}, 11
    s_and_b32 s{sT0}, s{sKEY}, 1
    s_and_b32 s{sT1}, s{sA}, 2
    s_or_b32 s{sT0}, s{sT0}, s{sT1}
    {f"s_mov_b32 s{sT0}, s{sRBL}" if KM != 3 else ""}
    s_add_u32 s{sCSM}, s{sWR}, 1
    s_cmp_eq_u32 s{sT0}, s{sWC}
    s_cselect_b32 s{sCSM}, s{sCSM}, 0
    s_lshr_b32 s{sHI}, s{sCT2}, 2
    s_mov_b32 s{sOK}, 0
    """)
    for s, n in ((SX, 1 << 21), (SWG, 1835008), (SWU, 1835008), (SWD, 1835008), (SWS, 1 << 25), (SOUT, 1 << 21),
                 (SH, 4096), (SK, 1 << 21), (SV, 1 << 21), (SSH, 4096)):
        a(f"s_mov_b32 s{s+2}, {n}")
        a(f"s_mov_b32 s{s+3}, 0x20000")
    a(f"""
    v_lshrrev_b32 v20, 3, v0
    v_lshrrev_b32 v21, 4, v0
    v_and_b32 v22, 7, v0
    v_xor_b32 v23, v22, v21
    v_lshlrev_b32 v23, 4, v23
    v_lshl_add_u32 v{vX0}, v20, 12, v23
    v_xor_b32 v{vX1}, 64, v{vX0}
    v_add_u32 v{vX1}, 31744, v{vX1}
    v_bfe_u32 v24, v0, 2, 2
    v_and_b32 v25, 3, v0
    v_xor_b32 v23, v24, v21
    v_lshlrev_b32 v23, 6, v23
    v_lshl_add_u32 v23, v25, 4, v23
    v_mul_u32_u24 v{vW0}, 3584, v21
    v_add_u32 v{vW0}, v{vW0}, v23
    v_add_u32 v{vW1}, 13312, v{vW0}
    v_lshlrev_b32 v{vL16}, 4, v0
    s_lshl_b32 s{sT2}, s{sCP}, 1
    s_add_u32 s{sT2}, s{sT2}, s{sB}
    s_lshl_b32 s{sT2}, s{sT2}, 12
    s_lshl_b32 s{sT3}, s{sCP}, 2
    s_waitcnt lgkmcnt(0)
    s_mov_b64 {sr(SX,2)}, s[72:73]
    s_mov_b64 {sr(SWG,2)}, s[86:87]
    s_mov_b64 {sr(SWU,2)}, s[88:89]
    s_mov_b64 {sr(SK,2)}, s[74:75]
    s_mov_b64 {sr(SV,2)}, s[76:77]
    {f"s_add_u32 s{SWS}, s96, {oi('wo', 0) << 20}" if oi('wo', 0) else f"s_mov_b64 {sr(SWS,2)}, s[96:97]"}
    {f"s_addc_u32 s{SWS+1}, s97, 0" if oi('wo', 0) else ""}
    s_mov_b64 {sr(SSH,2)}, s[78:79]
    s_mov_b64 {sr(SWD,2)}, s[90:91]
    s_mov_b64 {sr(SOUT,2)}, s[92:93]
    s_add_u32 s{SH}, s80, s{sT2}
    s_addc_u32 s{SH+1}, s81, 0
    s_load_dword s{sD}, s[82:83], s{sT3}
    """)
    if prof: a("s_nop 4")
    stamp("start")

    NTX = " nt" if "ntx" in opt else ""
    NTW = " nt" if "ntw" in opt else ""
    NTK = " nt" if "ntk" in opt else ""
    NTH = " nt" if "nth" in opt else ""
    def chunk_dma(c):
        st = (c % 3) * STAGE
        return [
            [f"s_xor_b32 s{sT0}, s{sKEY}, {c}",
             f"s_mul_i32 s{sT1}, s{sT0}, 229376", f"s_add_u32 s{sT1}, s{sT1}, s{sWB}",
             f"s_lshl_b32 s{sT0}, s{sT0}, 7", f"s_add_u32 m0, s{sM0X}, {st}", f"s_add_u32 s{sT0}, s{sT0}, s{sXB}",
             I(f"buffer_load_dwordx4 v{vX0}, {sr(SX,4)}, s{sT0} offen{NTX} lds", vm=f"c{c}")],
            I(f"buffer_load_dwordx4 v{vX1}, {sr(SX,4)}, s{sT0} offen offset:1024{NTX} lds", vm=f"c{c}"),
            [f"s_add_u32 m0, s{sM0X}, {st + 16384}",
             I(f"buffer_load_dwordx4 v{vW0}, {sr(SWG,4)}, s{sT1} offen{NTW} lds", vm=f"c{c}")],
            I(f"buffer_load_dwordx4 v{vW1}, {sr(SWG,4)}, s{sT1} offen offset:1024{NTW} lds", vm=f"c{c}"),
            [f"s_add_u32 m0, s{sM0X}, {st + 32768}",
             I(f"buffer_load_dwordx4 v{vW0}, {sr(SWU,4)}, s{sT1} offen{NTW} lds", vm=f"c{c}")],
            I(f"buffer_load_dwordx4 v{vW1}, {sr(SWU,4)}, s{sT1} offen offset:1024{NTW} lds", vm=f"c{c}"),
        ]
    XR, S1, S2 = 200, 204, 205
    def row_load():
        return [I(f"buffer_load_dword v{vTAG}, off, {sr(SWS,4)}, 0 offset:{WS_EPOCH} sc1", vm="ep"),
                [f"s_lshl_b32 s{sA}, s{sRT2}, 3", f"s_add_u32 s{sA}, s{sA}, s{sISG}", f"s_lshl_b32 s{sA}, s{sA}, 3",
                 f"s_add_u32 s{sA}, s{sA}, s{sW}", f"s_lshl_b32 s{sT2}, s{sA}, 10",
                 I(f"buffer_load_dwordx4 {vr(XR,4)}, v{vL16}, {sr(SX,4)}, s{sT2} offen", vm="ep")]]
    tag_math = L(f"""
        v_add_u32 v{vTAG}, 1, v{vTAG}
        v_and_b32 v{vTAG}, 0x0fff3fff, v{vTAG}
        v_or_b32 v{vTAG}, 0x20000000, v{vTAG}
        s_mov_b32 s{sB}, 0x3f803f80
        v_readfirstlane_b32 s{sTAG}, v{vTAG}
        """)
    def row_math():
        o = []
        for d in range(4):
            o += [f"v_dot2_f32_bf16 v{S1}, v{XR+d}, s{sB}, {'0' if d == 0 else f'v{S1}'}",
                  f"v_dot2_f32_bf16 v{S2}, v{XR+d}, v{XR+d}, {'0' if d == 0 else f'v{S2}'}"]
        o += [f"v_mov_b32 v{XR+1}, v{vTAG}", f"v_permlane32_swap_b32 v{S1}, v{S2}", f"v_add_f32 v{S1}, v{S1}, v{S2}"]
        o += [f"v_add_f32_dpp v{S1}, v{S1}, v{S1} {d} row_mask:0xf bank_mask:0xf"
              for d in ("quad_perm:[1,0,3,2]", "quad_perm:[2,3,0,1]", "row_half_mirror", "row_mirror")]
        o += [f"v_add_f32_dpp v{S1}, v{S1}, v{S1} row_bcast:15 row_mask:0xa bank_mask:0xf"]
        o += L(f"""
        v_mul_f32 v{S1}, {fx(1/512)}, v{S1}
        v_readlane_b32 s{sB}, v{S1}, 31
        v_readlane_b32 s{sC}, v{S1}, 63
        v_mul_f32 v{S1}, s{sB}, s{sB}
        v_sub_f32 v{S1}, s{sC}, v{S1}
        v_max_f32 v{S1}, 0, v{S1}
        v_cvt_pk_bf16_f32 v{S1}, v{S1}, v{S1}
        v_lshlrev_b32 v{S1}, 16, v{S1}
        v_add_f32 v{S1}, {fx(1e-5)}, v{S1}
        v_cvt_pk_bf16_f32 v{S1}, v{S1}, v{S1}
        v_lshlrev_b32 v{S1}, 16, v{S1}
        v_sqrt_f32 v{S1}, v{S1}
        s_lshl_b32 s{sA}, s{sA}, 3
        v_cvt_pk_bf16_f32 v{XR}, v{S1}, -s{sB}
        s_add_u32 s{sA}, s{sA}, {WS_RS}
        """)
        if "nors" not in opt: o += [one(f"buffer_store_dwordx2 {vr(XR,2)}, off, {sr(SWS,4)}, s{sA} sc1", vm="rs", wvm="wps")]
        return o
    def h_load(t):
        return [[f"s_and_b32 s{sT2}, s{sW}, 3", f"s_lshl_b32 s{sT2}, s{sT2}, 10",
                 I(f"buffer_load_dwordx4 {vr(vHE,4)}, v{vL16}, {sr(SH,4)}, s{sT2} offen", vm="hl")],
                [f"s_and_b32 s{sT2}, s{sW}, 3", f"s_lshl_b32 s{sT2}, s{sT2}, 10",
                 f"s_sub_u32 s{sT2}, s{sT2}, 4", f"v_add_u32 v{t}, s{sT2}, v{vL16}",
                 I(f"buffer_load_dword v{vHP}, v{t}, {sr(SH,4)}, 0 offen", vm="hl")]]
    vZ4 = 140
    h_math = ([I(f"v_alignbit_b32 v{vHO_}, v{vHE}, v{vHP}, 16", wvm="hl")] +
              [f"v_alignbit_b32 v{vHO_+d}, v{vHE+d}, v{vHE+d-1}, 16" for d in range(1, 4)] +
              [f"v_mov_b32 v{vZ4+d}, 0" for d in range(4)] + [L(f"""
        s_lshr_b32 s{sT2}, s{sW}, 2
        s_mul_i32 s{sT2}, s{sT2}, {CVCH}
        s_add_u32 s{sT2}, s{sT2}, {L_CV}
        v_min_u32 v{vHP+1}, 35, v0
        v_lshlrev_b32 v{vHP+1}, 4, v{vHP+1}
        v_lshrrev_b32 v{vHP}, 5, v0
        v_lshl_add_u32 v{vHP+1}, v{vHP}, 12, v{vHP+1}
        v_add_u32 v{vHP+1}, s{sT2}, v{vHP+1}
        s_and_b32 s{sT3}, s{sW}, 3
        s_lshl_b32 s{sT3}, s{sT3}, 10
        s_add_u32 s{sT2}, s{sT2}, s{sT3}
        v_add_u32 v{vHP}, s{sT2}, v{vL16}
        """)])
    h_write = [I(f"ds_write_b128 v{vHP}, {vr(vHE,4)} offset:4608", lg="hw"),
               I(f"ds_write_b128 v{vHP}, {vr(vHO_,4)} offset:{4608+4160}", lg="hw"),
               I(f"ds_write_b128 v{vHP+1}, {vr(vZ4,4)} offset:4096", lg="hw")]
    vFL, vFA = 18, 19
    def wf_addr_(sE, vFA, vFL): return L(f"""
        s_lshl_b32 s{sT2}, s{sCT2}, 3
        s_add_u32 s{sT2}, s{sT2}, s{sW}
        s_and_b32 s{sE}, s{sCT2}, 6
        s_lshl_b32 s{sE}, s{sE}, 1
        s_add_u32 s{sE}, s{sE}, s{sWC}
        s_lshl_b32 s{sE}, s{sE}, 1
        s_and_b32 s{sT3}, s{sCT2}, 1
        s_add_u32 s{sE}, s{sE}, s{sT3}
        s_lshl_b32 s{sE}, s{sE}, 4
        s_add_u32 s{sE}, s{sE}, s{sWR}
        s_lshl_b32 s{sE}, s{sE}, 5
        s_add_u32 s{sE}, s{sE}, {WS_RS + 64 + 4}
        s_mul_i32 s{sT2}, s{sT2}, 28672
        s_mul_i32 s{sT3}, s{sHI}, 12288
        s_add_u32 s{sT2}, s{sT2}, s{sT3}
        s_add_u32 s{sT2}, s{sT2}, {WS_WT}
        s_lshl_b32 s{sT3}, s{sRBL}, 10
        s_add_u32 s{sMO}, s{sT2}, s{sT3}
        s_xor_b32 s{sMO+1}, s{sMO}, 1024
        s_xor_b32 s{sMO+2}, s{sMO}, 2048
        s_xor_b32 s{sMO+3}, s{sMO}, 3072
        v_min_u32 v{vFA}, 27, v0
        v_and_b32 v{vFL}, 28, v{vFA}
        v_add_u32 v{vFA}, v{vFA}, v{vFL}
        v_lshlrev_b32 v{vFA}, 3, v{vFA}
        """)
    wf_addr = wf_addr_(sE, vFA, vFL)
    wf_ld = f"buffer_load_dword v{vFL}, v{vFA}, {sr(SWS,4)}, s{sE} offen sc1"
    def wd_loads():
        o = []
        for i in range(28):
            ks, mt = divmod(i, 4)
            g = []
            if i == 16:
                g += [f"s_mul_i32 s{sT3}, s{sHI}, 28672"] + [f"s_sub_u32 s{sMO+m}, s{sMO+m}, s{sT3}" for m in range(4)]
            g += [f"s_add_u32 s{sT3}, s{sMO+mt}, {4096*ks}",
                  I(f"buffer_load_dwordx4 {vr(WDF(i),4)}, v{vL16}, {sr(SWS,4)}, s{sT3} offen sc1" if i < oi("wx", 99) else
                    f"buffer_load_dword {vr(WDF(i),1)}, off, {sr(SWS,4)}, s{sT3} sc1", vm=f"wd{ks}")]
            o.append(g)
        return o
    vKA, vKL = 29, 30
    kf_addr = [f"v_and_b32 v{vKA}, 31, v0", f"v_lshlrev_b32 v{vKA}, 2, v{vKA}", f"s_lshl_b32 s{sC}, s{sXCD}, 7",
               f"s_add_u32 s{sC}, s{sC}, {WS_FKV}"]
    kf_ld = f"buffer_load_dword v{vKL}, v{vKA}, {sr(SWS,4)}, s{sC} offen sc1"
    def r_dma(t):
        return L(f"""
        s_lshr_b32 s{sT2}, s{sW}, 2
        s_mul_i32 s{sT3}, s{sT2}, {CVCH - 4096}
        s_lshl_b32 s{sT2}, s{sT2}, 4
        v_lshl_add_u32 v{t}, v0, 5, s{sT2}
        s_lshl_b32 s{sT2}, s{sW}, 10
        s_add_u32 s{sT3}, s{sT3}, s{sT2}
        s_add_u32 m0, s{sT3}, {L_CV}
        s_and_b32 s{sT2}, s{sM0X}, 0x1800
        s_lshl_b32 s{sT3}, s{sCP}, 13
        s_add_u32 s{sT2}, s{sT2}, s{sT3}
        s_add_u32 s{sT2}, s{sT2}, {WS_KV}
        """) + [I(f"buffer_load_dwordx4 v{t}, {sr(SWS,4)}, s{sT2} offen sc1 lds", vm="R")]

    WL = wd_loads()
    wsched = {17: 1, 18: 1, 19: 1, 21: 1, 22: 1, 23: 1, 24: 1, 25: 2, 26: 2, 27: 2, 29: 1, 30: 2, 31: 2}
    wsched = {k: n for k, n in wsched.items() if k >= oi("pw", 20) + 3}
    for o in opt:
        if o.startswith("ws="): wsched = {32 - len(o[3:]) + i: int(ch) for i, ch in enumerate(o[3:])}
    assert min(k for k, n in wsched.items() if n) >= oi("pw", 20) + oi("pd", 3)
    wepi = [int(x) for x in str(oi("we", 3320)).zfill(4)]
    NPRE = sum(wsched.values()) + sum(wepi)
    vq_pro = list(a.vq)
    a(f"s_cmp_eq_u32 s{sISG}, 0\ns_cbranch_scc1 {AUX}")
    if "nogemm" in opt: a(f"s_branch {END}")
    a(chunk_dma(0))
    WP, vWPA, vWPS, vWPL, CSA, CS1 = 208, 212, 213, 214, 240, 236
    sWPS, sWPF, sWPM = SSH, SSH + 1, SSH + 3
    a(f"""
    v_and_b32 v23, 3, v20
    v_lshrrev_b32 v26, 5, v0
    v_lshl_add_u32 v23, v26, 3, v23
    v_lshlrev_b32 v26, 4, v22
    v_lshl_add_u32 v{vWPL}, v23, 10, v26
    s_mov_b32 s{sE}, s{sXCD}
    s_lshl_b32 s{sT2}, s{sRBL}, 1
    s_add_u32 s{sT2}, s{sT2}, s{sB}
    s_mul_i32 s{sT3}, s{sT2}, 7
    s_add_u32 s{sT3}, s{sT3}, s{sCT2}
    s_mul_i32 s{sWPS}, s{sE}, 56
    s_add_u32 s{sWPS}, s{sWPS}, s{sT3}
    s_lshl_b32 s{sWPS}, s{sWPS}, 12
    s_lshl_b32 s{sT1}, s{sC}, 8
    s_add_u32 s{sWPS}, s{sWPS}, s{sT1}
    s_add_u32 s{sWPS}, s{sWPS}, {WS_WT}
    s_lshl_b32 s{sT3}, s{sT3}, 15
    s_lshl_b32 s{sT1}, s{sWR}, 12
    s_add_u32 s{sT3}, s{sT3}, s{sT1}
    s_lshl_b32 s{sT1}, s{sWC}, 14
    s_and_b32 s{sT1}, s{sT1}, 0x4000
    s_add_u32 s{sT3}, s{sT3}, s{sT1}
    s_lshl_b32 s{sT1}, s{sE}, 7
    s_add_u32 s{sWPF}, s{sT3}, s{sT1}
    s_lshl_b32 s{sT2}, s{sW}, 10
    s_add_u32 s{sWPM}, s{sT2}, {L_WP}
    s_barrier
    """)
    wp_load = [f"s_mov_b32 m0, s{sWPM}", I(f"buffer_load_dwordx4 v{vWPL}, {sr(SWD,4)}, s{sWPF} offen{NTH} lds", vm="wpl")]
    SWL, SWR, SRS, SPW, SHL, SPF, SRL = oi("wl", -1), oi("wr", 4), oi("rs", 11), oi("pw", 20), oi("hl", 9), oi("pf", 0), oi("rl", -1)
    SKF, SRD = oi("kf", 28), oi("rd", 32)
    if SWL < 0: a(wp_load)
    a(f"""
    v_lshlrev_b32 v23, 7, v24
    v_lshl_add_u32 v23, v21, 5, v23
    v_lshl_add_u32 v23, v25, 3, v23
    v_add_u32 v{vWPA}, s{sWPM}, v23
    """)
    C1E = oi("c1e", 2)
    if "rowl" not in opt: a(row_load())
    a(chunk_dma(1)[:C1E])
    a(f"""
    v_and_b32 v23, 15, v0
    v_lshlrev_b32 v23, 4, v23
    v_lshl_add_u32 v{vWPS}, v21, 10, v23
    v_and_b32 v24, 31, v0
    v_lshrrev_b32 v25, 5, v0
    v_bfe_u32 v22, v0, 1, 3
    v_xor_b32 v22, v22, v25
    v_lshlrev_b32 v22, 4, v22
    v_lshl_add_u32 v22, v24, 7, v22
    s_lshl_b32 s{sT0}, s{sWR}, 13
    v_add_u32 v{vXB}, s{sT0}, v22
    v_xor_b32 v{vXB+1}, 32, v{vXB}
    v_xor_b32 v{vXB+2}, 64, v{vXB}
    v_xor_b32 v{vXB+3}, 96, v{vXB}
    v_add_u32 v{vXB+4}, {2*STAGE}, v{vXB}
    v_add_u32 v{vXB+5}, {2*STAGE}, v{vXB+1}
    v_add_u32 v{vXB+6}, {2*STAGE}, v{vXB+2}
    v_add_u32 v{vXB+7}, {2*STAGE}, v{vXB+3}
    v_bfe_u32 v23, v0, 2, 2
    v_lshl_add_u32 v24, v25, 3, v23
    v_lshlrev_b32 v24, 8, v24
    v_xor_b32 v23, s{sWC}, v23
    v_lshl_add_u32 v24, v23, 6, v24
    v_bfe_u32 v23, v0, 4, 1
    v_lshl_add_u32 v24, v23, 5, v24
    v_and_b32 v23, 3, v0
    v_lshl_add_u32 v24, v23, 3, v24
    v_add_u32 v{vWB}, 16384, v24
    v_add_u32 v{vWB+1}, {STAGE+16384}, v24
    v_add_u32 v{vWB+2}, {2*STAGE+16384}, v24
    v_mov_b32 v{CS1}, 0x3f803f80
    v_mov_b32 v{CS1+1}, 0x3f803f80
    v_mov_b32 v{CS1+2}, 0x3f803f80
    v_mov_b32 v{CS1+3}, 0x3f803f80
    """)
    stamp("K0")
    if "dmaonly" in opt:
        DD = oi("dd", 2)
        if C1E < 6: a(chunk_dma(1)[0][:4]); a(chunk_dma(1)[C1E:])
        for c in range(2, DD): a(chunk_dma(c))
        for c in range(8):
            a(I(wvm=f"c{c}"))
            if "dnb" not in opt: a("s_barrier")
            stamp(f"B{c}")
            if c + DD < 8: a(chunk_dma(c + DD))
        a("s_branch L_prof")
        opt = [o for o in opt if not o.startswith("st=")] + ["st=end"]

    def F(s): return FR + 16 * (s & 1)
    def reads(s):
        c, j = divmod(s, 4)
        st = c % 3
        xb = vXB + j + (4 if st == 2 else 0); im = STAGE if st == 1 else 0
        wb = vWB + st; wo = 4096 * j
        f = F(s); t = f"r{s}"
        return [I(f"ds_read_b64_tr_b16 {vr(f,2)}, v{wb} offset:{wo}", lg=t),
                I(f"ds_read_b64_tr_b16 {vr(f+2,2)}, v{wb} offset:{wo+1024}", lg=t),
                I(f"ds_read_b128 {vr(f+8,4)}, v{xb} offset:{im}", lg=t),
                I(f"ds_read_b64_tr_b16 {vr(f+4,2)}, v{wb} offset:{wo+16384}", lg=t),
                I(f"ds_read_b64_tr_b16 {vr(f+6,2)}, v{wb} offset:{wo+17408}", lg=t),
                I(f"ds_read_b128 {vr(f+12,4)}, v{xb} offset:{im+4096}", lg=t)]
    def mfmas(A, B, first=False, par=0):
        out = []
        for nt in range(2):
            for m in range(2):
                d = ACC + 32 * m + 16 * nt
                if "m16x" in opt:
                    for h in range(2):
                        e = d + 8 * (par & 1) + 4 * h
                        out.append(f"v_mfma_f32_16x16x32_bf16 {vr(e,4)}, {vr(A[m ^ h],4)}, {vr(B[nt],4)}, {'0' if par < 2 else vr(e,4)}")
                    continue
                out.append(f"v_mfma_f32_32x32x16_bf16 {vr(d,16)}, {vr(A[m],4)}, {vr(B[nt],4)}, {'0' if first else vr(d,16)}")
        return out
    def cs_mfma(p):
        o = []
        for m in range(2):
            o += [f"s_bitcmp1_b32 s{sCSM}, {m}", f"s_cbranch_scc0 L_cs{p}_{m}",
                  f"v_mfma_f32_32x32x16_bf16 {vr(CSA,16)}, {vr(CS1,4)}, {vr(F(p)+4*m,4)}, {'0' if p == 0 else vr(CSA,16)}",
                  f"L_cs{p}_{m}:"]
        return o
    sCSB = SSH + 2
    cs_store = [L(f"""
        s_lshl_b32 s{sCSB}, s{sCB}, 2
        s_add_u32 s{sCSB}, s{sCSB}, s{sWC}
        s_lshl_b32 s{sCSB}, s{sCSB}, 10
        s_add_u32 s{sCSB}, s{sCSB}, {WS_CS}
        s_cmp_eq_u32 s{sCSM}, {'s%d' % sCSM if "nocs" in opt else 0}
        s_cbranch_scc1 L_nocs
        v_cvt_pk_bf16_f32 v{CSA+1}, v{CSA}, v{CSA}
        s_mul_i32 s{sT2}, s{sWR}, 57344
        v_lshlrev_b32 v{CSA+1}, 16, v{CSA+1}
        s_lshr_b32 s{sT3}, s{sKEY}, 1
        v_sub_f32 v{CSA+1}, v{CSA}, v{CSA+1}
        s_lshl_b32 s{sT3}, s{sT3}, 3
        v_cvt_pk_bf16_f32 v{CSA}, v{CSA}, v{CSA+1}
        s_add_u32 s{sT2}, s{sT2}, s{sT3}
        v_mov_b32 v{CSA+1}, v{vTAG}
        s_add_u32 s{sT2}, s{sT2}, s{sCSB}
        v_lshlrev_b32 v{CSA+2}, 5, v0
        s_mov_b32 exec_hi, 0
        buffer_store_dwordx2 {vr(CSA,2)}, v{CSA+2}, {sr(SWS,4)}, s{sT2} offen sc1
        s_mov_b32 exec_hi, -1
        L_nocs:
        """)]
    EG, EU, ER, EB0, EB1 = 128, 132, 20, 136, 140
    ex_addr = L(f"""
        v_and_b32 v24, 31, v0
        v_lshrrev_b32 v25, 5, v0
        v_lshlrev_b32 v25, 4, v25
        v_lshl_add_u32 v{vX0}, v24, 5, v25
        v_and_b32 v24, 15, v0
        v_lshrrev_b32 v25, 4, v0
        v_lshlrev_b32 v25, 3, v25
        v_lshl_add_u32 v{vX1}, v24, 5, v25
        s_lshl_b32 s{sKEY}, s{sRB}, 1
        s_add_u32 s{sKEY}, s{sKEY}, s{sWR}
        s_lshl_b32 s{sWB}, s{sKEY}, 9
        s_add_u32 s{sWB}, s{sWB}, {WS_RS}
        s_add_u32 s{sXB}, s{sCSB}, 57344
        """)
    ex_ld = [f"buffer_load_dwordx4 {vr(EG,4)}, v{vX0}, {sr(SWS,4)}, s{sCSB} offen sc1",
             f"buffer_load_dwordx4 {vr(EU,4)}, v{vX0}, {sr(SWS,4)}, s{sXB} offen sc1",
             f"buffer_load_dwordx2 {vr(ER,2)}, v{vX1}, {sr(SWS,4)}, s{sWB} offen sc1"]
    ex_check = L(f"""
        v_min3_u32 v24, v{EG+1}, v{EG+3}, v{ER+1}
        v_max3_u32 v25, v{EG+1}, v{EG+3}, v{ER+1}
        v_min3_u32 v24, v24, v{EU+1}, v{EU+3}
        v_max3_u32 v25, v25, v{EU+1}, v{EU+3}
        v_cmp_ne_u32 vcc, s{sTAG}, v24
        v_cmp_ne_u32 s[{sT0}:{sT1}], s{sTAG}, v25
        s_or_b64 vcc, vcc, s[{sT0}:{sT1}]
        """)
    AP, BP, SS, vHO, TM = 22, 24, 26, 28, FR
    RM = row_math()
    def part(lst, i, n): return lst[len(lst) * i // n:len(lst) * (i + 1) // n]
    wi = 0
    for s in range(33):
        c, j = divmod(s, 4)
        fill = []; pre = []
        if j == 0 and s < 32:
            a(I(wvm=f"c{c}", wlg="*"))
            a("s_barrier")
            stamp(f"B{c}")
        if s == SWL: pre += [wp_load]
        if s == SPW: pre += [ap(wf_ld, 28, "apw", "fw")]
        if s == SKF: pre += [ap(kf_ld, 32, "apk", "kf")]
        if s == 28: pre += [I(x, vm="ex") for x in ex_ld]
        if s == 0:
            assert C1E in (0, 2, 4, 6)
            if 0 < C1E < 6: fill += [chunk_dma(1)[0][:4]]
            fill += chunk_dma(1)[C1E:]
            if "rowl" in opt: fill += row_load()
        if c == 0 and C1E < 6: fill += chunk_dma(2)[(0, 0, 2, 4)[j]:(0, 2, 4, 6)[j]]
        elif c <= 5: fill += chunk_dma(c + 2)[(0, 2, 3, 5)[j]:(2, 3, 5, 6)[j]]
        if s < 32: a(reads(s))
        wp_rd = [I(f"ds_read_b64_tr_b16 {vr(WP,2)}, v{vWPA}", lg="wp", wvm="wpl"),
                 I(f"ds_read_b64_tr_b16 {vr(WP+2,2)}, v{vWPA} offset:512", lg="wp")]
        wp_st = I(f"buffer_store_dwordx4 {vr(WP,4)}, v{vWPS}, {sr(SWS,4)}, s{sWPS} offen sc1", vm="wps", wlg="wp")
        if s == 0:
            a(pre + fill + (wp_rd if SWR == 0 else [])); continue
        p = s - 1
        v = []
        if s in (SHL, SHL + 2): fill += [h_load(24)[(s - SHL) >> 1]]
        if s == oi("tg", 4): v += [I(tag_math[0], wvm="ep")] + tag_math[1:]
        if s == SWR: fill += wp_rd
        if s == SWR + 1: fill = [wp_st] + fill if SWR == 0 else fill + [wp_st]
        RM0, RMN = oi("rm", 5), oi("rn", 5)
        if RM0 <= s < RM0 + RMN: v += part(RM[:-1], s - RM0, RMN)
        if s == SRS: fill = [RM[-1]] + fill if "rsf" in opt else fill + [RM[-1]]
        if s == 10: v += cs_store
        if s == 11: v += [wf_addr]
        if 21 <= s <= 23: v += part(h_math, s - 21, 3)
        if s == SPW + oi("pd", 3): pre += [[I(wvm="fw")] + ne(vFL) + ["s_cbranch_scc0 L_fw_ok"] + spin("fw", ap(wf_ld, 28, "apw"), ne(vFL))]
        if s == 19: v += kf_addr
        if s in (24, 25, 26): v += [h_write[s - 24]]
        if s == 27: v += ex_addr
        if s == SRD: fill = [[I(wvm="kf")] + ne(vKL) + [f"s_cselect_b32 s{sOK}, 0, 1"] +
                             ([f"s_cselect_b64 vcc, 0, -1"] + r_dma(24)[:-1] + ["s_mov_b64 exec, vcc", r_dma(24)[-1], "s_mov_b64 exec, -1"] if "mskr" in opt else r_dma(oi("rt", 24)))] + fill
        if s == 30: v += [f"v_mov_b32 v{r}, 0" for r in (EB0 + 1, EB0 + 3, EB1 + 1, EB1 + 3)] + [f"s_mov_b32 s{sB}, 0x03020302"]
        n = wsched.get(s, 0); fill += WL[wi:wi + n]; wi += n
        if s == 32:
            a(I(wvm="ex"))
            a(ex_check + ["s_cbranch_scc0 L_ex_ok"] + spin("ex", ex_ld, ex_check))
            v += L(f"""
            v_mov_b32 v{ER+1}, v{ER}
            v_permlane32_swap_b32 v{ER}, v{ER+1}
            v_perm_b32 v{EB0}, v{ER}, v{ER}, s{sB}
            v_perm_b32 v{EB0+2}, v{ER}, v{ER}, s{sB}
            v_perm_b32 v{EB1}, v{ER+1}, v{ER+1}, s{sB}
            v_perm_b32 v{EB1+2}, v{ER+1}, v{ER+1}, s{sB}
            v_lshlrev_b32 v{ER}, 16, v{ER}
            v_lshlrev_b32 v{ER+1}, 16, v{ER+1}
            """)
        fill = pre + (mix(v, fill) if len(v) >= len(fill) else mix(fill, v)) if (v and fill) else pre + v + fill
        a(I(wlg=f"r{p}"))
        f = F(p)
        a(mix(mfmas((f, f + 4), (f + 8, f + 12), p == 0, p), fill))
        if p < 8 and "nocs" not in opt: a(cs_mfma(p))
        stamp(f"s{s}")
    fill = []
    EO = oi("eo", 2)
    cA, cB, cS = ([lambda nt, b=b: b + nt for b in (AP, BP, SS)] if EO == 0 else
                  [lambda nt, b=b: FR + 16 + 6 * nt + b for b in (0, 2, 4)])
    for nt in range(2):
        fill += [f"v_rcp_f32 v{TM+nt}, v{ER+nt}", f"v_mul_f32 v{cS(nt)}, v{ER+nt}, v{ER+nt}"]
        if EO == 2: fill += [f"v_mul_f32 v{cS(nt)+1}, v{ER+nt}, v{ER+nt}"]
    for nt in range(2):
        fill += [f"v_mul_f32 v{cA(nt)}, {fx(-KC)}, v{TM+nt}"]
        if EO == 2: fill += [f"v_mul_f32 v{cA(nt)+1}, {fx(-KC)}, v{TM+nt}"]
        fill += [f"v_mul_f32 v{TM+nt}, v{TM+nt}, v{TM+nt}",
                 f"v_mul_f32 v{TM+nt}, {fx(0.044715)}, v{TM+nt}", f"v_mul_f32 v{cB(nt)}, v{cA(nt)}, v{TM+nt}"]
        if EO == 2: fill += [f"v_mul_f32 v{cB(nt)+1}, v{cA(nt)}, v{TM+nt}"]
    sHF = SK
    fill += L(f"""
    v_bfe_u32 v{TM+8}, v0, 4, 1
    v_mul_u32_u24 v{TM+8}, 57344, v{TM+8}
    v_and_b32 v{TM+9}, 15, v0
    v_lshl_add_u32 v{TM+8}, v{TM+9}, 4, v{TM+8}
    v_lshrrev_b32 v{TM+9}, 5, v0
    v_lshl_add_u32 v{vHO}, v{TM+9}, 8, v{TM+8}
    s_mul_i32 s{sXB}, s{sKEY}, {4*56*1024}
    s_add_u32 s{sXB}, s{sXB}, s{sCSB}
    s_add_u32 s{sXB}, s{sXB}, {WS_H - WS_CS}
    s_add_u32 s{sWB}, s{sXB}, {2*56*1024}
    s_sub_u32 s{sHF}, s{sCSB}, {WS_CS}
    s_lshr_b32 s{sHF}, s{sHF}, {10 - FS}
    s_mul_i32 s{sT0}, s{sKEY}, {56 << FS}
    s_add_u32 s{sHF}, s{sHF}, s{sT0}
    s_add_u32 s{sHF}, s{sHF}, {WS_FH}
    """)
    a(mix(mfmas((EG, EU), (EB0, EB1), False, 2), fill))
    stamp("B8")
    def epi(G, U, nt, rr, pk, plain=False):
        o = []
        t = {r: TM + 2 * i for i, r in enumerate(rr)}
        P = lambda x: vr(x, 2)
        s2 = (f"op_sel:[0,{nt},{nt}] op_sel_hi:[1,{nt},{nt}]", "op_sel_hi:[1,0,0]", "")[EO]
        AP, BP, SS = [f(nt) & ~1 for f in (cA, cB, cS)]
        if plain:
            e = [(t[r] + i, G + r + i, U + r + i) for r in rr for i in range(2)]
            o += [f"v_mul_f32 v{x}, v{g}, v{g}" for x, g, u in e]
            o += [f"v_fma_f32 v{x}, v{x}, v{BP}, v{AP}" for x, g, u in e]
            o += [f"v_mul_f32 v{x}, v{x}, v{g}" for x, g, u in e]
            o += mix([f"v_exp_f32 v{x}, v{x}" for x, g, u in e], [f"v_mul_f32 v{u}, v{u}, v{g}" for x, g, u in e])
            o += [f"v_fma_f32 v{x}, v{x}, v{SS}, v{SS}" for x, g, u in e]
            o += [f"v_rcp_f32 v{x}, v{x}" for x, g, u in e]
            o += [f"v_mul_f32 v{u}, v{u}, v{x}" for x, g, u in e]
            o += [f"v_cvt_pk_bf16_f32 v{pk+i}, v{U+r}, v{U+r+1}" for i, r in enumerate(rr)]
            return o
        o += [f"v_pk_mul_f32 {P(t[r])}, {P(G+r)}, {P(G+r)}" for r in rr]
        o += [f"v_pk_fma_f32 {P(t[r])}, {P(t[r])}, {P(BP)}, {P(AP)} {s2}" for r in rr]
        o += [f"v_pk_mul_f32 {P(t[r])}, {P(t[r])}, {P(G+r)}" for r in rr]
        o += mix([f"v_exp_f32 v{t[r]+i}, v{t[r]+i}" for r in rr for i in range(2)],
                 [f"v_pk_mul_f32 {P(U+r)}, {P(U+r)}, {P(G+r)}" for r in rr])
        o += [f"v_pk_fma_f32 {P(t[r])}, {P(t[r])}, {P(SS)}, {P(SS)} {s2}" for r in rr]
        o += [f"v_rcp_f32 v{t[r]+i}, v{t[r]+i}" for r in rr for i in range(2)]
        o += [f"v_pk_mul_f32 {P(U+r)}, {P(U+r)}, {P(t[r])}" for r in rr]
        o += [f"v_cvt_pk_bf16_f32 v{pk+i}, v{U+r}, v{U+r+1}" for i, r in enumerate(rr)]
        return o
    HSP = ("sc1", "sc0 sc1", "sc1 nt", "sc0 sc1 nt", "", "nt")[oi("hsp", 0)]
    for nt in range(2):
        G = ACC + 16 * nt; U = ACC + 32 + 16 * nt
        for h in range(2):
            pk = TM + 8 + 4 * h
            seq = epi(G, U, nt, range(8 * h, 8 * h + 8, 2), pk, 2 * nt + h < oi('npl', 0))
            n = wepi[2 * nt + h]
            a(mix(seq, WL[wi:wi + n])); wi += n
            so = sXB if nt == 0 else sWB
            a(I(f"buffer_store_dwordx4 {vr(pk,4)}, v{vHO}, {sr(SWS,4)}, s{so} offen offset:{512*h} {HSP}", vm="hs"))
            stamp(f"e{2*nt+h}")
    assert wi == NPRE
    a(f"s_branch {JOIN}")
    vq_join = list(a.vq)

    a(f"{AUX}:")
    if "noaux" in opt: a(f"s_branch {END}")
    a.vq, a.lq = list(vq_pro), []
    vKa, vKb, TP, vT, vKS, KR, KT = 1, 2, 32, 6, 10, 48, 96
    sKO, sKL = sXB, sWB
    a(row_load())
    a(f"""
    s_xor_b32 s{sCB}, s{sXCD}, s{sW}
    v_and_b32 v23, 1, v21
    v_lshlrev_b32 v23, 1, v23
    v_xor_b32 v23, v22, v23
    v_lshlrev_b32 v23, 4, v23
    v_lshl_add_u32 v{vKa}, v20, 10, v23
    {f"v_lshlrev_b32 v{vKa}, 4, v0" if "kvlin" in opt else ""}
    v_xor_b32 v{vKb}, 64, v{vKa}
    s_lshl_b32 s{sKO}, s{sRBL}, 3
    s_add_u32 s{sKO}, s{sKO}, s{sW}
    s_mov_b32 s{sKEY}, s{sKO}
    s_lshl_b32 s{sKO}, s{sKO}, 16
    s_lshl_b32 s{sT0}, s{sCB}, {13 if "kvlin" in opt else 7}
    s_add_u32 s{sKO}, s{sKO}, s{sT0}
    s_mul_i32 s{sKL}, s{sW}, 17408
    s_mov_b32 m0, s{sKL}
    s_cmp_eq_u32 s{sKEY}, 0
    s_cbranch_scc1 L_halo0
    s_sub_u32 s{sT0}, s{sKO}, 8192
    buffer_load_dwordx4 v{vKa}, {sr(SK,4)}, s{sT0} offen lds
    s_branch L_halo1
    L_halo0:
    v_mov_b32 v40, 0
    v_mov_b32 v41, 0
    v_mov_b32 v42, 0
    v_mov_b32 v43, 0
    ds_write_b128 v{vL16}, v[40:43]
    L_halo1:
    """)
    def kv_ld(m, b, tag):
        lb = (1 + b) if m == 0 else (9 + b)
        par = (lb & 1) if m == 0 else (b & 1)
        return [f"s_add_u32 m0, s{sKL}, {1024*lb}", f"s_add_u32 s{sT0}, s{sKO}, {(1024 if 'kvlin' in opt else 8192)*b}",
                I(f"buffer_load_dwordx4 v{vKb if par else vKa}, {sr(SV if m else SK,4)}, s{sT0} offen{NTK} lds", vm=tag)]
    for b in range(4): a(kv_ld(0, b, "k0")); a(kv_ld(1, b, "k0"))
    a(f"""
    v_and_b32 v23, 15, v0
    v_lshlrev_b32 v26, 3, v23
    s_lshl_b32 s{sT1}, s{sCB}, 9
    """)
    for cg in range(4):
        a(I(f"buffer_load_dwordx2 {vr(TP+2*cg,2)}, v26, {sr(SSH,4)}, s{sT1} offen offset:{128*cg}", vm="k0"))
    for b in range(4, 8): a(kv_ld(0, b, "k1")); a(kv_ld(1, b, "k1"))
    a(h_load(27))
    stamp("iss", 4)
    a(f"""
    v_lshlrev_b32 v26, 7, v24
    v_lshl_add_u32 v26, v21, 10, v26
    v_lshl_add_u32 v26, v25, 3, v26
    v_lshrrev_b32 v27, 1, v24
    v_lshl_add_u32 v26, v27, 5, v26
    v_and_b32 v27, 1, v21
    v_lshl_add_u32 v26, v27, 6, v26
    v_add_u32 v{vT}, s{sKL}, v26
    v_xor_b32 v{vT+1}, 32, v{vT}
    v_xor_b32 v{vT+2}, 64, v{vT}
    v_xor_b32 v{vT+3}, 96, v{vT}
    v_lshrrev_b32 v26, 1, v23
    v_lshlrev_b32 v26, 13, v26
    v_and_b32 v27, 1, v0
    v_lshl_add_u32 v26, v27, 4, v26
    v_sub_u32 v27, 3, v21
    v_lshl_add_u32 v{vKS}, v27, 5, v26
    s_lshl_b32 s{sKO}, s{sCB}, 18
    s_lshl_b32 s{sT0}, s{sKEY}, 8
    s_sub_u32 s{sKO}, s{sKO}, s{sT0}
    s_add_u32 s{sKO}, s{sKO}, {WS_KV + 8192 - 256}
    """)
    a(I(wvm="ep")); a(tag_math); a(row_math())
    stamp("rs", 1)
    def kv_read(hh, cg):
        r = KR + 10 * cg; t = f"kr{cg}"
        return [I(f"ds_read_b64_tr_b16 {vr(r,2)}, v{vT+cg} offset:{4096*hh+512}", lg=t),
                I(f"ds_read_b64_tr_b16 {vr(r+2,2)}, v{vT+(cg^2)} offset:{4096*hh+1024}", lg=t),
                I(f"ds_read_b64_tr_b16 {vr(r+4,2)}, v{vT+(cg^2)} offset:{4096*hh+1536}", lg=t),
                I(f"ds_read_b64_tr_b16 {vr(r+6,2)}, v{vT+cg} offset:{4096*hh+9216}", lg=t),
                I(f"ds_read_b64_tr_b16 {vr(r+8,2)}, v{vT+cg} offset:{4096*hh+9728}", lg=t)]
    def kv_math(hh, cg):
        r = KR + 10 * cg; q, u, w, pk = KT, KT + 8, KT + 16, KT + 24 + 4 * (cg & 1)
        o = [I(wlg=f"kr{cg}")]
        o += [f"v_alignbit_b32 v{q+i}, v{r+i}, v{r+i-1}, 16" for i in range(1, 6)]
        src = lambda t, back: (r if t & 1 else q) + 2 + t // 2 - back
        for t in (1, 3, 5, 7, 0, 2, 4, 6): o += [f"v_dot2_f32_bf16 v{u+t}, v{src(t,0)}, v{TP+2*cg}, 0"]
        for t in (1, 3, 5, 7, 0, 2, 4, 6): o += [f"v_dot2_f32_bf16 v{u+t}, v{src(t,1)}, v{TP+2*cg+1}, v{u+t}"]
        o += [f"v_and_b32 v{w+t}, 0xffff0000, v{r+6+t//2}" if t & 1 else f"v_lshlrev_b32 v{w+t}, 16, v{r+6+t//2}" for t in range(8)]
        o += [f"v_mul_f32 v{u+t}, v{u+t}, v{w+t}" for t in range(8)]
        o += [f"v_cvt_pk_bf16_f32 v{pk+e}, v{u+7-2*e}, v{u+6-2*e}" for e in range(4)]
        o += [f"s_add_u32 s{sT0}, s{sKO}, {65536*cg}",
              I(f"buffer_store_dwordx4 {vr(pk,4)}, v{vKS}, {sr(SWS,4)}, s{sT0} offen offset:{128*(1-hh)} sc1", vm="ks")]
        return o
    for hh in range(2):
        a(I(wvm=f"k{hh}", wlg="*"))
        stamp("kin", 5 + 2 * hh)
        for cg in range(4): a(kv_read(hh, cg))
        if hh == 0:
            for d in range(8): a(f"v_alignbit_b32 v{TP+d}, v{TP+d}, v{TP+d}, 16")
        for cg in range(4): a(kv_math(hh, cg))
        stamp("km", 6 + 2 * hh)
    a(h_math); a(wf_addr)
    vKA2, vKL2 = 27, 28
    ld2 = f"buffer_load_dword v{vKL2}, v{vKA2}, {sr(SWS,4)}, s{sA} offen sc1"
    a(f"""
    s_lshl_b32 s{sT0}, s{sCB}, 5
    s_add_u32 s{sT0}, s{sT0}, s{sKEY}
    s_lshl_b32 s{sT0}, s{sT0}, 2
    s_add_u32 s{sT0}, s{sT0}, {WS_FKV}
    v_lshlrev_b32 v26, 10, v0
    v_lshlrev_b32 v{vKA2}, 3, v0
    s_lshl_b32 s{sA}, s{sRT2}, 9
    s_add_u32 s{sA}, s{sA}, {WS_RS + 4}
    """)
    a([I("s_mov_b64 exec, 3", wvm="*"), f"buffer_store_dword v{vTAG}, v26, {sr(SWS,4)}, s{sT0} offen sc1", "s_mov_b64 exec, -1"])
    stamp("kvf", 2)
    if "dmaonly" in opt: a("s_branch L_prof")
    ck2 = [f"v_xor_b32 v{vFL}, s{sTAG}, v{vFL}", f"v_xor_b32 v{vKL2}, s{sTAG}, v{vKL2}", f"v_or_b32 v{vFL}, v{vFL}, v{vKL2}",
           f"v_cmp_ne_u32 vcc, 0, v{vFL}", "s_cmp_lg_u64 vcc, 0"]
    a("s_barrier")
    a(h_write)
    a(kf_addr); a(f"s_add_u32 s{sC}, s{sC}, 1024")
    stamp("wd", 3)
    a(spin("fwa", ap(wf_ld, 28, "apx") + ap(ld2, 64, "apx"), ck2))
    a(f"""
    s_cmp_lg_u32 s2, 0
    s_cbranch_scc1 L_ep_ok
    s_add_u32 s{sT0}, s{sM0X}, {WS_RS}
    """)
    a(spin("ep", [f"buffer_load_dwordx4 v[32:35], v{vL16}, {sr(SWS,4)}, s{sT0} offen sc1",
                  f"buffer_load_dwordx4 v[36:39], v{vL16}, {sr(SWS,4)}, s{sT0} offen offset:1024 sc1"],
           [f"v_xor_b32 v{r}, s{sTAG}, v{r}" for r in (33, 35, 37, 39)] +
           ["v_or3_b32 v33, v33, v35, v37", "v_or_b32 v33, v33, v39", "v_cmp_ne_u32 vcc, 0, v33", "s_cmp_lg_u64 vcc, 0"]))
    NA = oi("na", 8)
    a(WL[:NA])
    a(spin("kva", ap(kf_ld, 32, "apx"), ne(vKL)))
    a.vq = []
    a(r_dma(24)); a(WL[NA:NPRE]); a(I(wvm="R"))
    a(f"s_branch L_kvok")

    a(f"{JOIN}:")
    a.vq, a.lq = list(vq_join), []
    stamp("join")
    okv = ("s%d" % sOK) if "nocv" in opt else "1"
    a(f"s_cmp_eq_u32 s{sOK}, {okv}\ns_cbranch_scc1 L_kvok")
    a(spin("kv", ap(kf_ld, 32, "apk"), ne(vKL)))
    sv = list(a.vq); a(r_dma(24)); a(I(wvm="*")); a.vq = sv
    a("L_kvok:")
    CA, AF, BF = 32, 64, 128
    vRU, vRH, vPW, vPR, vZW, vZR, vYA, vYR, vOO = 2, 3, 4, 10, 11, 12, 13, 14, 30
    vXF, XN, vRC = 20, 22, 6
    vXF = 1
    sCH, sWQ, sCVB, sRHO = SV, SV + 1, SV + 2, SV + 3
    sOQ = SSH
    a(f"""
    s_lshr_b32 s{sCH}, s{sW}, 2
    s_and_b32 s{sWQ}, s{sW}, 3
    s_mul_i32 s{sCVB}, s{sCH}, {CVCH}
    s_add_u32 s{sCVB}, s{sCVB}, {L_CV}
    s_lshl_b32 s{sT0}, s{sWQ}, 7
    s_add_u32 s{sT0}, s{sT0}, s{sCVB}
    s_add_u32 s{sT1}, s{sT0}, 480
    v_and_b32 v15, 15, v0
    v_and_b32 v16, 48, v0
    v_lshlrev_b32 v31, 5, v15
    v_sub_u32 v31, v16, v31
    v_add_u32 v{vRU}, s{sT1}, v31
    s_add_u32 s{sT1}, s{sT0}, {4608 - 28 + 4160 + 3072}
    v_and_b32 v31, 1, v0
    v_mul_u32_u24 v31, 4160, v31
    v_sub_u32 v31, v16, v31
    v_bfe_u32 v{vRH}, v0, 1, 3
    v_lshl_add_u32 v31, v{vRH}, 2, v31
    v_add_u32 v{vRH}, s{sT1}, v31
    """)
    KHF = oi("hf", 5)
    hf_st = [f"s_cmp_eq_u32 s{sISG}, 0", "s_cbranch_scc1 L_nohf", I(wvm="hs"),
             line(sHF), "L_nohf:"]
    if KHF < 0: a(hf_st); stamp("hflag")
    a(f"s_cmp_eq_u32 s{sISG}, 0\ns_cbranch_scc1 L_nowr")
    a(I(wvm="R"))
    a("L_nowr:")
    a(I(wlg="*"))
    if "noc1" not in opt: a("s_barrier")
    stamp("c1")
    a(f"s_or_b32 s{sT0}, s2, s{sW}\ns_cbranch_scc1 L_noep")
    a(one(f"buffer_store_dword v{vTAG}, off, {sr(SWS,4)}, 0 offset:{WS_EPOCH} sc1"))
    a("L_noep:")
    order = [(0, p) for p in range(7, -1, -1)] + [(1, p) for p in range(8)]
    def uread(rr, d): return I(f"ds_read_b128 {vr(AF+32*rr+4*d,4)}, v{vRU} offset:{512*(7-d)+64*rr}", lg=f"a{rr}{d}")
    def hread(k):
        rr, p = order[k]; o = 128 * (p & 1) + 16 * rr; b = BF + 4 * (k % 4)
        g = []
        if rr == 0 and p in (5, 3, 1): g += [f"v_subrev_u32 v{vRH}, 1024, v{vRH}"]
        if rr == 1 and p in (2, 4, 6): g += [f"v_add_u32 v{vRH}, 1024, v{vRH}"]
        return g + [I(f"ds_read2_b32 {vr(b,2)}, v{vRH} offset0:{o} offset1:{o+1}", lg=f"b{k}"),
                    I(f"ds_read2_b32 {vr(b+2,2)}, v{vRH} offset0:{o+2} offset1:{o+3}", lg=f"b{k}")]
    def os_(k): return ([o[len(k):] for o in opt if o.startswith(k)] + [""])[0]
    PC, PG = os_("pc="), os_("pg=")
    if PC: a(f"s_setprio {PC[0]}")
    for k in range(3): a(hread(k)); a(uread(0, k))
    for d in range(3, 8): a(uread(0, d))
    XV = 6
    fin_addr = L(f"""
        s_and_b32 s{sRHO}, s{sCT2}, 3
        s_lshl_b32 s{sT0}, s{sRT2}, 3
        s_add_u32 s{sT0}, s{sT0}, s{sW}
        s_lshl_b32 s{sOQ}, s{sT0}, 13
        s_lshl_b32 s{sT1}, s{sCT2}, 7
        s_add_u32 s{sOQ}, s{sOQ}, s{sT1}
        s_lshl_b32 s{sT0}, s{sT0}, 6
        s_add_u32 s{sOQ+1}, s{sT0}, {WS_RS}
        v_and_b32 v31, 3, v0
        v_lshrrev_b32 v1, 5, v0
        v_lshl_add_u32 v31, v1, 2, v31
        v_and_b32 v{vOO}, 28, v0
        v_lshlrev_b32 v{vOO}, 2, v{vOO}
        v_lshl_add_u32 v{vOO}, v31, 10, v{vOO}
        v_lshlrev_b32 v1, 3, v31
        """)
    fin_ld = [I(f"buffer_load_dwordx4 {vr(XV,4)}, v{vOO}, {sr(SX,4)}, s{sOQ} offen", vm="xt"),
              I(f"buffer_load_dword v{XN+7}, v1, {sr(SWS,4)}, s{sOQ+1} offen sc1", vm="xt")]
    def unpack(d, x): return [f"v_and_b32 v{d+e}, 0xffff0000, v{x+e//2}" if e & 1 else f"v_lshlrev_b32 v{d+e}, 16, v{x+e//2}" for e in range(8)]
    xn_math = ([I(f"v_lshlrev_b32 v20, 16, v{XN+7}", wvm="xt"), f"v_and_b32 v21, 0xffff0000, v{XN+7}", "v_rcp_f32 v20, v20"] +
               unpack(XN, XV) + [f"v_add_f32 v{XN+e}, v{XN+e}, v21" for e in range(8)] +
               [f"v_mul_f32 v{XN+e}, v{XN+e}, v20" for e in range(8)])
    p_addr = L(f"""
        v_bfe_u32 v20, v0, 1, 2
        v_bfe_u32 v21, v0, 3, 1
        v_xor_b32 v20, v20, v21
        v_lshlrev_b32 v20, 4, v20
        v_xor_b32 v20, v20, v16
        v_lshl_add_u32 v20, v15, 6, v20
        s_lshl_b32 s{sT0}, s{sW}, 13
        v_add_u32 v{vPW}, s{sT0}, v20
        v_bfe_u32 v20, v0, 2, 2
        v_bfe_u32 v21, v0, 4, 1
        v_xor_b32 v20, v20, v21
        v_lshlrev_b32 v20, 4, v20
        v_lshlrev_b32 v21, 5, v0
        v_xor_b32 v20, v20, v21
        s_lshl_b32 s{sT0}, s{sCH}, 15
        s_lshl_b32 s{sT1}, s{sWQ}, 11
        s_add_u32 s{sT0}, s{sT0}, s{sT1}
        v_add_u32 v{vPR}, s{sT0}, v20
        """)
    HB, ZA, NS = 64, 32, 16
    sH1, sH2, sHQ = sXB, sWB, sKEY
    def HR(n): return HB + 4 * (n % NS if n % NS < 8 else 23 - n % NS)
    sMK = sA
    def hload(n, mask=False):
        qd, ks = divmod(n, 7)
        g = []
        if ks == 0:
            g += [f"s_xor_b32 s{sT3}, s{sRHO}, {qd}", f"s_mul_i32 s{sT3}, s{sT3}, 57344", f"s_add_u32 s{sH1}, s{sHQ}, s{sT3}",
                  f"s_sub_u32 s{sH2}, s{sH1}, s{sRB}"]
        t = I(f"buffer_load_dwordx4 {vr(HR(n),4)}, v{vL16}, {sr(SWS,4)}, s{sH1 if ks < 4 else sH2} offen offset:{(ks&3)*1024} sc1", vm=f"h{n}")
        if "hx2" in opt: return g + [f"s_mov_b64 exec, {sr(sMK,2)}" if mask else "s_nop 0", "s_mov_b32 exec_hi, 0", t, "s_mov_b64 exec, -1"]
        if "hx1" in opt: t = I(t.text.replace("dwordx4 " + vr(HR(n),4), "dword " + vr(HR(n),1)).replace(f"v{vL16},", "v15,"), vm=f"h{n}")
        return g + ([f"s_mov_b64 exec, {sr(sMK,2)}", t, "s_mov_b64 exec, -1"] if mask and "nomask" not in opt else [t])
    def again(n1):
        sv = list(a.vq)
        for n in range(n1): a(hload(n))
        a.vq = sv
    h_addr = L(f"""
        s_mul_i32 s{sHQ}, s{sRT2}, {4*56*1024}
        s_mul_i32 s{sT1}, s{sW}, 7168
        s_add_u32 s{sHQ}, s{sHQ}, s{sT1}
        s_mul_i32 s{sT1}, s{sHI}, 3072
        s_add_u32 s{sHQ}, s{sHQ}, s{sT1}
        s_add_u32 s{sHQ}, s{sHQ}, {WS_H}
        s_mul_i32 s{sRB}, s{sHI}, 7168
        s_sub_u32 s{sRB}, s{sRB}, 4096
        s_lshl_b32 s{sE}, s{sRT2}, 3
        s_add_u32 s{sE}, s{sE}, s{sW}
        s_mul_i32 s{sE}, s{sE}, {7 << FS}
        s_add_u32 s{sE}, s{sE}, {WS_FH + 4}
        v_min_u32 v{vFA}, 6, v0
        v_lshlrev_b32 v{vFA}, {FS}, v{vFA}
        """)
    KH, KR_, KA, KB = oi("kh", 8), oi("kq", 3), oi("ka", 6), oi("kb", 11)
    assert 8 <= KH <= 15 and KA < KH <= KB and KHF < KH
    PM = [o[3:].replace("_", " ") for o in opt if o.startswith("pm=")]
    def poll(at, vm=None):
        if not at:
            t = wf_ld.replace("sc1", PM[0]) if PM else wf_ld
            return [I(t, vm=vm)]
        return [f"v_mov_b32 v{vFL}, 0", "s_mov_b64 exec, 0xff",
                I(f"buffer_atomic_or v{vFL}, v{vFA}, {sr(SWS,4)}, s{sE} offen sc0 sc1", vm=vm), "s_mov_b64 exec, -1"]
    def ne8(at): return [f"v_cmp_ne_u32 vcc, s{sTAG}, v{vFL}", "s_and_b32 vcc_lo, vcc_lo, 0xff"] if at else ne(vFL)
    AH, AY = "aph" in opt or "apa" in opt, "apy" in opt or "apa" in opt
    hf_ld = poll(AH)
    hn = 0
    def pwrite(j): return I(f"ds_write_b128 v{vPW}, {vr(CA+4*j,4)} offset:{1024*j}", lg="pw")
    sYS = sCB
    if "nocv" in opt:
        a(fin_addr); a(h_addr)
        if "wtf" in opt: a(WL[NPRE:]); a(fin_ld)
        a(hf_st)
        if "bar2" in opt: a("s_barrier")
        if "wtf" not in opt: a(WL[NPRE:]); a(fin_ld)
        stamp("k1")
        a(xn_math)
        if "blind" not in opt: a(spin("hf0", [f"s_sleep {oi('sl', 0)}", hf_ld], ne8(AH)))
        stamp("k11")
        a.vq = []
        for n in range(NS): a(hload(n))
        a(f"s_mov_b32 s{sMK}, -1")
        a(I(wlg="*"))
        stamp("c3")
    else:
        for k, (rr, p) in enumerate(order):
            seq = []
            for j in range(p, 8):
                c = "0" if (rr == 0 and j == p) else vr(CA + 4 * j, 4)
                seq.append(I(f"v_mfma_f32_16x16x32_bf16 {vr(CA+4*j,4)}, {vr(BF+4*(k%4),4)}, {vr(AF+32*rr+4*(j-p),4)}, {c}",
                             wlg=[f"a{rr}{j-p}", f"b{k}"]))
            fill = []
            if k == 1: fill += [fin_addr]
            if 1 <= k <= 6: fill += part(WL[NPRE:], k - 1, 6)
            if k == 3: fill += fin_ld
            if 4 <= k <= 7: fill += [uread(1, 2 * (k - 4)), uread(1, 2 * (k - 4) + 1)]
            if k in (6, 7): fill += part(p_addr, k - 6, 2)
            if 8 <= k <= 11: fill += part(xn_math, k - 8, 4)
            if k >= 9: fill = fill[:2] + [pwrite(p - 1)] + fill[2:]
            if k == 2: fill += [h_addr]
            if k == KHF: fill += [hf_st]
            if k == KA: fill += [poll(AH, "hf")]
            if k == KH: a([I(wvm="hf")] + ne8(AH) + [f"s_cselect_b64 {sr(sMK,2)}, 0, -1"])
            if k == KB: fill += [[f"s_cmp_lg_u32 s{sMK}, 0", "s_cbranch_scc1 L_nof2", hf_ld, "L_nof2:"]]
            if k >= KH:
                e = min(hn + KR_, k); hl = [hload(n, True) for n in range(hn, e)]; hn = max(hn, e)
                fill = mix(fill, hl) if len(fill) >= len(hl) else mix(hl, fill)
            a(mix(seq, fill))
            if k + 3 < 16: a(hread(k + 3))
            if PC and PC[k + 1] != PC[k]: a(f"s_setprio {PC[k + 1]}")
            stamp(f"k{k}")
        a(f"""
        s_lshl_b32 s{sT1}, s{sWQ}, 10
        s_sub_u32 s{sT1}, s{sCVB}, s{sT1}
        s_add_u32 s{sT1}, s{sT1}, 4080
        v_sub_u32 v20, s{sT1}, v{vL16}
        v_xor_b32 v21, 16, v{vPR}
        """)
        a(pwrite(7))
        for n in range(hn, NS): a(hload(n, True))
        a([f"s_cmp_lg_u32 s{sMK}, 0", "s_cbranch_scc1 L_hlate", "s_waitcnt vmcnt(0)"] + ne8(AH) +
          [f"s_cselect_b32 s{sMK}, 0, -1", "s_cbranch_scc1 L_hlate"])
        again(NS)
        a("L_hlate:")
        sYS = sCB
        a(I(wlg="*"))
        a("s_barrier")
        stamp("c3")
        if "py" in opt: a("s_setprio 3")
        PR, vU, YA = 32, 128, 132
        a(I(f"ds_read_b128 {vr(vU,4)}, v20", lg="su"))
        for k in range(4):
            a(I(f"ds_read_b128 {vr(PR+8*k,4)}, v{vPR} offset:{8192*k}", lg=f"p{k}"))
            a(I(f"ds_read_b128 {vr(PR+8*k+4,4)}, v21 offset:{8192*k}", lg=f"p{k}"))
        a(f"""
        s_lshl_b32 s{sT1}, s{sCH}, 4
        s_lshr_b32 s{sD}, s{sD}, s{sT1}
        s_lshl_b32 s{sD}, s{sD}, 16
        s_lshl_b32 s{sT1}, s{sCP}, 13
        s_lshl_b32 s{sT3}, s{sW}, 10
        s_add_u32 s{sT1}, s{sT1}, s{sT3}
        s_add_u32 s{sT1}, s{sT1}, {WS_YT}
        s_lshl_b32 s{sYS}, s{sWQ}, 9
        s_lshl_b32 s{sT3}, s{sCP}, 1
        s_add_u32 s{sYS}, s{sYS}, s{sT3}
        s_add_u32 s{sYS}, s{sYS}, s{sCH}
        s_lshl_b32 s{sT3}, s{sYS}, 7
        s_and_b32 s{sT3}, s{sT3}, 0x380
        v_xor_b32 v31, s{sT3}, v{vL16}
        s_lshl_b32 s{sYS}, s{sYS}, {FS}
        s_add_u32 s{sYS}, s{sYS}, {WS_FY}
        """)
        stamp("y0")
        a(I(wlg="su"))
        stamp("y1")
        for e in range(4):
            a(f"v_and_b32 v{YA+6-2*e}, 0xffff0000, v{vU+e}\nv_lshlrev_b32 v{YA+7-2*e}, 16, v{vU+e}")
        a(I(wlg="p0"))
        for e in range(8): a(f"v_fma_f32 v{YA+e}, v{YA+e}, s{sD}, v{PR+e}")
        a(I(wlg="p2"))
        def add8(d, x):
            if "ynp" in opt:
                for e in range(8): a(f"v_add_f32 v{d+e}, v{d+e}, v{x+e}")
            else:
                for e in range(0, 8, 2): a(f"v_pk_add_f32 {vr(d+e,2)}, {vr(d+e,2)}, {vr(x+e,2)}")
        add8(PR + 8, PR + 16)
        a(I(wlg="p3"))
        stamp("y2")
        a(f"s_lshl_b32 s{sT3}, s{sW}, 2\ns_add_u32 s{sT3}, s{sT3}, {L_CNT}\nv_mov_b32 v20, s{sT3}")
        a(I(f"ds_write_b32 v20, v{vTAG}", lg="cw"))
        add8(YA, PR + 24)
        add8(YA, PR + 8)
        for e in range(4): a(f"v_cvt_pk_bf16_f32 v{vU+e}, v{YA+2*e}, v{YA+2*e+1}")
        stamp("y3")
        a(I(f"buffer_store_dwordx4 {vr(vU,4)}, v31, {sr(SWS,4)}, s{sT1} offen sc1", vm="ys"))
    stamp("ys")
    if PG or "py" in opt: a(f"s_setprio {PG[0] if PG else 0}")
    a(f"s_cmp_lg_u32 s{sMK}, 0\ns_cbranch_scc1 L_hgo")
    a(spin("hf", [hf_ld], ne8(AH)))
    again(NS)
    a(line(sYS))
    a("L_hgo:")
    stamp("hok")
    sYA, sYF, sSEL = sMO, sE, SK
    g2_addr = L(f"""
    v_lshrrev_b32 v20, 4, v0
    s_lshl_b32 s{sT1}, s{sRBL}, 2
    v_xor_b32 v21, v20, v15
    v_xor_b32 v21, s{sT1}, v21
    v_lshlrev_b32 v21, 4, v21
    v_lshl_add_u32 v21, v15, 8, v21
    s_lshl_b32 s{sT1}, s{sW}, 12
    v_add_u32 v{vZW}, s{sT1}, v21
    s_lshl_b32 s{sT1}, s{sW}, 1
    v_lshrrev_b32 v1, 5, v0
    v_add_u32 v21, s{sT1}, v1
    v_and_b32 v20, 3, v0
    v_xor_b32 v31, s{sRHO}, v20
    v_lshrrev_b32 v{vZR}, 1, v0
    v_and_b32 v{vZR}, 14, v{vZR}
    v_xor_b32 v{vZR}, v{vZR}, v21
    v_xor_b32 v{vZR}, v{vZR}, v31
    v_lshlrev_b32 v{vZR}, 4, v{vZR}
    v_lshl_add_u32 v{vZR}, v21, 8, v{vZR}
    s_mov_b32 s{sT1}, {sum((L_Z[q] >> 15) << (8 * q) for q in range(4))}
    v_lshlrev_b32 v31, 3, v31
    v_bfe_u32 v31, s{sT1}, v31, 8
    v_lshl_add_u32 v{vZR}, v31, 15, v{vZR}
    v_bfe_u32 v31, v0, 4, 1
    v_lshl_add_u32 v20, v31, 2, v20
    v_xor_b32 v21, s{sW}, v20
    v_lshlrev_b32 v21, 4, v21
    v_lshl_add_u32 v21, v1, 3, v21
    v_lshl_add_u32 v21, v20, 10, v21
    v_bfe_u32 v31, v0, 2, 2
    v_lshl_add_u32 v21, v31, 7, v21
    v_add_u32 v{vYR}, {L_Y}, v21
    v_and_b32 v21, 7, v0
    v_xor_b32 v20, s{sW}, v21
    v_lshlrev_b32 v20, 4, v20
    v_lshrrev_b32 v31, 3, v0
    v_lshl_add_u32 v20, v31, 12, v20
    s_and_b32 s{sT1}, s{sRT2}, 7
    v_xor_b32 v31, s{sT1}, v31
    v_lshl_add_u32 v{vYA}, v31, 7, v20
    v_lshlrev_b32 v{vFA}, {FS}, v21
    v_lshlrev_b32 v1, 2, v21
    v_add_u32 v1, {L_CNT}, v1
    s_lshl_b32 s{sT1}, s{sCT2}, 3
    s_add_u32 s{sT1}, s{sT1}, s{sW}
    s_lshl_b32 s{sYA}, s{sT1}, 15
    s_and_b32 s{sT0}, s{sRT2}, 24
    s_lshl_b32 s{sT0}, s{sT0}, 7
    s_add_u32 s{sYA}, s{sYA}, s{sT0}
    s_add_u32 s{sYA}, s{sYA}, {WS_YT}
    s_lshl_b32 s{sYF}, s{sT1}, {FS + 3}
    s_lshr_b32 s{sT0}, s{sRT2}, 3
    s_lshl_b32 s{sT0}, s{sT0}, {FS + 9}
    s_add_u32 s{sYF}, s{sYF}, s{sT0}
    s_add_u32 s{sYF}, s{sYF}, {WS_FY + 4}
    s_mov_b32 s{sSEL}, {fx(-1.4426950408889634)}
    s_mov_b32 s{sSEL+1}, s{sSEL}
    s_mov_b32 s{sSEL+2}, 1.0
    s_mov_b32 s{sSEL+3}, 1.0
    s_lshl_b32 s{sT0}, s{sW}, 10
    s_add_u32 m0, s{sT0}, {L_Y}
    """)
    ZT, XF, YR, YF = 64, 128, 136, 32
    def zwrite(qd):
        hi, lo = L_Z[qd] & ~0xffff, L_Z[qd] & 0xffff
        return [[f"v_xor_b32 v20, {hi + 64*mt + 16*qd}, v{vZW}",
                 I(f"ds_write_b128 v20, {vr(ZA+16*(qd&1)+4*mt,4)} offset:{lo}", lg="zw")] for mt in range(4)]
    NYF, NYP, NYC = oi("nyf", 8), oi("nyp", 16), oi("nyc", 21)
    NG, ZS = oi("ng", 6), oi("zs", 1)
    y_ld = f"buffer_load_dwordx4 v{vYA}, {sr(SWS,4)}, s{sYA} offen sc1 lds"
    cn_ld = "ds_read_b32 v31, v1"
    cn_ck = ["v_cmp_eq_u32 vcc, 0, v31", "s_cmp_lg_u64 vcc, 0", "s_cbranch_scc0 L_cn_ok"]
    assert NYF < 12
    for n in range(28):
        qd, ks = divmod(n, 7)
        a(I(wvm=[f"h{n}", f"wd{ks}"]))
        if n == NYF: a(line(sYS, wvm="ys", vm="yf"))
        if n == 22:
            a([I(wlg="cn")] + cn_ck + [f"s_mov_b32 s{sCNT}, {SPIN}", "L_cn_loop:", cn_ld, "s_waitcnt lgkmcnt(0)"] + cn_ck +
              [f"s_sub_u32 s{sCNT}, s{sCNT}, 1", "s_cbranch_scc0 L_cn_loop", "L_cn_ok:"])
        if ks == 0 and qd >= 2: a(I(wlg="zw"))
        seq = []
        for mt in range(4):
            d = ZA + 16 * (qd & 1) + 4 * mt
            c = "0" if ks == 0 else vr(d, 4)
            seq.append(f"v_mfma_f32_16x16x32_bf16 {vr(d,4)}, {vr(WDF(4*ks+mt),4)}, {vr(HR(n),4)}, {c}")
        fill = []
        if qd >= 1 and 1 <= ks <= ZS: fill = part(zwrite(qd - 1), ks - 1, ZS)
        if n < NG: fill = part(g2_addr, n, NG)
        if n == 20: fill += [I(cn_ld, lg="cn")]
        if n in (12, 13): fill += part(unpack(XF, XV), n - 12, 2)
        if n == 27: fill += [f"v_xor_b32 v21, 16, v{vZR}"]
        if n == NYC:
            fill = [[I(wvm="yp")] + ne8(AY) + [f"s_cselect_b32 s{sMK}, 0, -1", "s_cbranch_scc1 L_ylate", y_ld, "L_ylate:"]] + fill
        a(mix(seq, fill))
        if n + NS < 28: a(hload(n + NS))
        if n == NYP: a(poll(AY, "yp"))
        if PG and PG[n + 1] != PG[n]: a(f"s_setprio {PG[n + 1]}")
        stamp(f"n{n}")
    a(zwrite(3))
    stamp("g2")
    a(f"s_cmp_lg_u32 s{sMK}, 0\ns_cbranch_scc1 L_ygo")
    a(spin("yf", poll(AY), ne8(AY)) + [y_ld, "L_ygo:"])
    stamp("yok")
    a(I(wvm="*", wlg="*"))
    a("s_barrier")
    stamp("bf")
    P2 = lambda x: vr(x, 2)
    a(I(f"ds_read_b64_tr_b16 {P2(YR)}, v{vYR}", lg="yr"))
    a(I(f"ds_read_b64_tr_b16 {P2(YR+2)}, v{vYR} offset:512", lg="yr"))
    def zread(k): return [I(f"ds_read_b128 {vr(ZT+8*k+4*h,4)}, v{21 if h else vZR} offset:{4096*k}", lg=f"z{k}") for h in range(2)]
    for k in range(6): a(zread(k))
    a(I(wlg="yr")); a(unpack(YF, YR))
    a(zread(6)); a(zread(7))
    for e in range(0, 8, 2): a(f"v_pk_mul_f32 {P2(XN+e)}, {P2(XN+e)}, {P2(YF+e)}")
    stamp("f0")
    for k in range(1, 8):
        a(I(wlg=f"z{k}"))
        for e in range(0, 8, 2): a(f"v_pk_add_f32 {P2(ZT+e)}, {P2(ZT+e)}, {P2(ZT+8*k+e)}")
    stamp("f1")
    for e in range(0, 8, 2): a(f"v_pk_mul_f32 {P2(YF+e)}, {P2(ZT+e)}, {sr(sSEL,2)}")
    a(mix([f"v_exp_f32 v{YF+e}, v{YF+e}" for e in range(8)],
          [f"v_pk_mul_f32 {P2(XN+e)}, {P2(XN+e)}, {P2(ZT+e)}" for e in range(0, 8, 2)]))
    for e in range(0, 8, 2): a(f"v_pk_add_f32 {P2(YF+e)}, {P2(YF+e)}, {sr(sSEL+2,2)}")
    for e in range(8): a(f"v_rcp_f32 v{YF+e}, v{YF+e}")
    for e in range(0, 8, 2): a(f"v_pk_fma_f32 {P2(XF+e)}, {P2(XN+e)}, {P2(YF+e)}, {P2(XF+e)}")
    for e in range(4): a(f"v_cvt_pk_bf16_f32 v{YR+e}, v{XF+2*e}, v{XF+2*e+1}")
    stamp("f2")
    a(f"buffer_store_dwordx4 {vr(YR,4)}, v{vOO}, {sr(SOUT,4)}, s{sOQ} offen sc0 sc1")
    if prof:
        a("L_prof:")
        stamp("end")
        a(f"""
        s_waitcnt lgkmcnt(0)
        s_lshl_b32 s{sT0}, s2, 3
        s_add_u32 s{sT0}, s{sT0}, s{sW}
        s_lshl_b32 s{sT0}, s{sT0}, 6
        s_add_u32 s{sT0}, s{sT0}, {WS_PROF}
        """)
        for i in range(len(stamps)):
            a(f"v_mov_b32 v1, s{PROFS[i]}")
            a(f"buffer_store_dword v1, off, {sr(SWS,4)}, s{sT0} offset:{4*i}")
    a(f"{END}:\ns_endpgm")
    txt = a.text(256, 512, 163840)
    return txt, stamps, a.nops

if __name__ == "__main__":
    txt, st, nops = gen(prof="prof" in sys.argv, opt=sys.argv[2:])
    open(sys.argv[1], "w").write(txt)
    print("lines", txt.count("\n"), "nops", nops, st)
    if st: open(sys.argv[1] + ".stamps", "w").write(" ".join(st))
```

```python
import sys, struct, re
from em import *

WS_EPOCH, WS_FKV, WS_RS, WS_CS, WS_FH, WS_FY = 0, 4096, 32768, 65536, 262144, 524288
WS_KV, WS_WT, WS_YT, WS_H, WS_PROF = 1 << 20, 3 << 20, 5 << 20, 8 << 20, 16 << 20
SX, SWG, SWU, SWD, SWS, SOUT, SH, SK, SV, SSH = 8, 12, 16, 20, 24, 28, 32, 36, 40, 44
sW, sXB, sWB, sT0, sT1 = 3, 4, 5, 6, 7
(sRT2, sCT2, sKEY, sWR, sWC, sTAG, sM0X, sOK, sISG, sCNT, sT2, sT3, sCSM, sCP, sRBL, sXCD, sCB, sD,
 sMO, _m1, _m2, _m3, sHI, sRB) = range(48, 72)
sA, sB, sC, sE = 98, 99, 100, 101
PROFS = list(range(72, 98, 2))
STAGE = 49152
L_WP = 147456
L_CV, CVCH = 98304, 12864
L_Z = (65536, 131072, 0, 32768)
L_Y, L_CNT = L_CV + 4608, L_CV + 4096
ACC, FR = 32, 96
def WDF(i): return 144 + 4 * i
vX0, vX1, vW0, vW1, vL16 = 1, 2, 3, 4, 5
vXB, vWB, vTAG = 6, 14, 17
SPIN = 0x4000
KC = 2 * 0.7978845608028654 * 1.4426950408889634
def fx(f): return "0x%08x" % struct.unpack("<I", struct.pack("<f", f))[0]
def L(s): return [x.strip() for x in s.strip().split("\n") if x.strip()]

def gen(prof=False, opt=()):
    a = Em()
    def oi(k, d): return int(([o[len(k):] for o in opt if o.startswith(k)] + [d])[0])
    stamps = []
    def oi(k, d): return int(([o[len(k):] for o in opt if o.startswith(k)] + [d])[0])
    def stamp(name, slot=None):
        sel = [o[3:].split(",") for o in opt if o.startswith("st=")]
        dflt = "start,B0,B4,B8,join,c1,c3,hok,g2,bf,end".split(",")
        if not prof or (slot is None and name not in (sel[0] if sel else dflt)): return
        own = slot is None
        if "both" in opt and not own: return
        if slot is None:
            if name not in stamps: stamps.append(name)
            slot = stamps.index(name)
        a(f"{'s_memtime' if 'cyc' in opt else 's_memrealtime'} {sr(PROFS[slot], 2)}")
        if "both" in opt and own:
            stamps.append(name + "c"); a(f"s_memtime {sr(PROFS[slot + 1], 2)}")
    def spin(name, load, check):
        if "nochk" in opt: return [f"L_{name}_ok:"]
        return ([f"s_mov_b32 s{sCNT}, {SPIN}", f"L_{name}_loop:"] + load + ["s_waitcnt vmcnt(0)"] + check +
                [f"s_cbranch_scc0 L_{name}_ok", f"s_sub_u32 s{sCNT}, s{sCNT}, 1", f"s_cbranch_scc0 L_{name}_loop",
                 f"L_{name}_ok:"])
    def one(txt, vm=None, wvm=None):
        if "all" in opt: return [I(txt, vm=vm, wvm=wvm)]
        return [I("s_mov_b64 exec, 1", wvm=wvm), I(txt, vm=vm), "s_mov_b64 exec, -1"]
    FS = oi("fs", 7)
    def line(so, vm=None, wvm=None):
        if "fp" in opt: return one(f"buffer_store_dword v{vTAG}, off, {sr(SWS,4)}, s{so} offset:4 sc1", vm=vm, wvm=wvm)
        return [I(f"s_mov_b64 exec, {(1 << (1 << (FS - 4))) - 1}", wvm=wvm),
                I(f"buffer_store_dwordx4 {vr(vTAG-1,4)}, v{vL16}, {sr(SWS,4)}, s{so} offen sc1", vm=vm), "s_mov_b64 exec, -1"]
    def ne(v): return [f"v_cmp_ne_u32 vcc, s{sTAG}, v{v}", "s_cmp_lg_u64 vcc, 0"]
    def ap(txt, nl, key, vm=None):
        if key not in opt and "apa" not in opt: return [I(txt, vm=vm)]
        d = txt.split()[1].rstrip(",")
        t = I(txt.replace("buffer_load_dword", "buffer_atomic_or").replace("sc1", "sc0 sc1"), vm=vm)
        if nl == 64: return [f"v_mov_b32 {d}, 0", t]
        m = [f"s_mov_b32 exec_hi, 0"] if nl == 32 else [f"s_mov_b64 exec, {(1 << nl) - 1}"]
        return [f"v_mov_b32 {d}, s{sTAG}"] + m + [f"v_mov_b32 {d}, 0", t, "s_mov_b64 exec, -1"]
    END, AUX, JOIN = "L_end", "L_aux", "L_join"
    vHE, vHP, vHO_ = (228, 232, 234) if "hr" in opt else (128, 132, 134)
    KM = oi("km", 3)
    a(f"""
    s_cmp_ge_u32 s2, 256
    s_cbranch_scc1 {END}
    s_load_dwordx16 s[72:87], s[0:1], 0
    s_load_dwordx8 s[88:95], s[0:1], 64
    s_load_dwordx2 s[96:97], s[0:1], 96
    v_lshrrev_b32 v1, 6, v0
    v_and_b32 v0, 63, v0
    v_readfirstlane_b32 s{sW}, v1
    s_and_b32 s{sXCD}, s2, 7
    s_lshr_b32 s{sCP}, s2, 3
    s_and_b32 s{sE}, s{sXCD}, 1
    s_lshr_b32 s{sA}, s{sXCD}, 1
    s_and_b32 s{sRBL}, s{sCP}, 3
    s_lshr_b32 s{sISG}, s{sCP}, 2
    s_lshl_b32 s{sRB}, s{sA}, 2
    s_add_u32 s{sRB}, s{sRB}, s{sRBL}
    s_lshl_b32 s{sRT2}, s{sRB}, 1
    s_add_u32 s{sRT2}, s{sRT2}, s{sE}
    s_add_u32 s{sCT2}, s{sISG}, 7
    s_and_b32 s{sCT2}, s{sCT2}, 7
    s_mul_i32 s{sCB}, s{sE}, 7
    s_add_u32 s{sCB}, s{sCB}, s{sCT2}
    s_xor_b32 s{sKEY}, s{sRBL}, s{sISG}
    s_and_b32 s{sKEY}, s{sKEY}, {KM}
    s_lshl_b32 s{sB}, s{sA}, {2 if KM == 3 else 1}
    s_and_b32 s{sB}, s{sB}, {4 if KM == 3 else 6}
    s_or_b32 s{sKEY}, s{sKEY}, s{sB}
    s_lshl_b32 s{sB}, s{sXCD}, 5
    s_add_u32 s{sCP}, s{sCP}, s{sB}
    s_and_b32 s{sWR}, s{sW}, 1
    s_lshr_b32 s{sWC}, s{sW}, 1
    s_lshr_b32 s{sB}, s{sW}, 2
    s_and_b32 s{sC}, s{sW}, 3
    s_lshl_b32 s{sXB}, s{sRB}, 17
    s_lshl_b32 s{sT0}, s{sB}, 16
    s_add_u32 s{sXB}, s{sXB}, s{sT0}
    s_lshl_b32 s{sT0}, s{sC}, 10
    s_add_u32 s{sXB}, s{sXB}, s{sT0}
    s_mul_i32 s{sWB}, s{sW}, 28672
    s_lshl_b32 s{sT0}, s{sCB}, 8
    s_add_u32 s{sWB}, s{sWB}, s{sT0}
    s_lshl_b32 s{sM0X}, s{sW}, 11
    s_and_b32 s{sT0}, s{sKEY}, 1
    s_and_b32 s{sT1}, s{sA}, 2
    s_or_b32 s{sT0}, s{sT0}, s{sT1}
    {f"s_mov_b32 s{sT0}, s{sRBL}" if KM != 3 else ""}
    s_add_u32 s{sCSM}, s{sWR}, 1
    s_cmp_eq_u32 s{sT0}, s{sWC}
    s_cselect_b32 s{sCSM}, s{sCSM}, 0
    s_lshr_b32 s{sHI}, s{sCT2}, 2
    s_mov_b32 s{sOK}, 0
    """)
    for s, n in ((SX, 1 << 21), (SWG, 1835008), (SWU, 1835008), (SWD, 1835008), (SWS, 1 << 25), (SOUT, 1 << 21),
                 (SH, 4096), (SK, 1 << 21), (SV, 1 << 21), (SSH, 4096)):
        a(f"s_mov_b32 s{s+2}, {n}")
        a(f"s_mov_b32 s{s+3}, 0x20000")
    a(f"""
    v_lshrrev_b32 v20, 3, v0
    v_lshrrev_b32 v21, 4, v0
    v_and_b32 v22, 7, v0
    v_xor_b32 v23, v22, v21
    v_lshlrev_b32 v23, 4, v23
    v_lshl_add_u32 v{vX0}, v20, 12, v23
    v_xor_b32 v{vX1}, 64, v{vX0}
    v_add_u32 v{vX1}, 31744, v{vX1}
    v_bfe_u32 v24, v0, 2, 2
    v_and_b32 v25, 3, v0
    v_xor_b32 v23, v24, v21
    v_lshlrev_b32 v23, 6, v23
    v_lshl_add_u32 v23, v25, 4, v23
    v_mul_u32_u24 v{vW0}, 3584, v21
    v_add_u32 v{vW0}, v{vW0}, v23
    v_add_u32 v{vW1}, 13312, v{vW0}
    v_lshlrev_b32 v{vL16}, 4, v0
    s_lshl_b32 s{sT2}, s{sCP}, 1
    s_add_u32 s{sT2}, s{sT2}, s{sB}
    s_lshl_b32 s{sT2}, s{sT2}, 12
    s_lshl_b32 s{sT3}, s{sCP}, 2
    s_waitcnt lgkmcnt(0)
    s_mov_b64 {sr(SX,2)}, s[72:73]
    s_mov_b64 {sr(SWG,2)}, s[86:87]
    s_mov_b64 {sr(SWU,2)}, s[88:89]
    s_mov_b64 {sr(SK,2)}, s[74:75]
    s_mov_b64 {sr(SV,2)}, s[76:77]
    {f"s_add_u32 s{SWS}, s96, {oi('wo', 0) << 20}" if oi('wo', 0) else f"s_mov_b64 {sr(SWS,2)}, s[96:97]"}
    {f"s_addc_u32 s{SWS+1}, s97, 0" if oi('wo', 0) else ""}
    s_mov_b64 {sr(SSH,2)}, s[78:79]
    s_mov_b64 {sr(SWD,2)}, s[90:91]
    s_mov_b64 {sr(SOUT,2)}, s[92:93]
    s_add_u32 s{SH}, s80, s{sT2}
    s_addc_u32 s{SH+1}, s81, 0
    s_load_dword s{sD}, s[82:83], s{sT3}
    """)
    if prof: a("s_nop 4")
    stamp("start")

    NTX = " nt" if "ntx" in opt else ""
    NTW = " nt" if "ntw" in opt else ""
    NTK = " nt" if "ntk" in opt else ""
    NTH = " nt" if "nth" in opt else ""
    NTE = " nt" if "nte" in opt else ""
    NTF = " nt" if "ntf" in opt else ""
    for o in opt:
        if o.startswith("cp="): NTX = NTW = " " + o[3:].replace("_", " ")
        if o.startswith("ck="): NTK = " " + o[3:].replace("_", " ")
    def chunk_dma(c):
        st = (c % 3) * STAGE
        return [
            [f"s_xor_b32 s{sT0}, s{sKEY}, {c}",
             f"s_mul_i32 s{sT1}, s{sT0}, 229376", f"s_add_u32 s{sT1}, s{sT1}, s{sWB}",
             f"s_lshl_b32 s{sT0}, s{sT0}, 7", f"s_add_u32 m0, s{sM0X}, {st}", f"s_add_u32 s{sT0}, s{sT0}, s{sXB}",
             I(f"buffer_load_dwordx4 v{vX0}, {sr(SX,4)}, s{sT0} offen{NTX} lds", vm=f"c{c}")],
            I(f"buffer_load_dwordx4 v{vX1}, {sr(SX,4)}, s{sT0} offen offset:1024{NTX} lds", vm=f"c{c}"),
            [f"s_add_u32 m0, s{sM0X}, {st + 16384}",
             I(f"buffer_load_dwordx4 v{vW0}, {sr(SWG,4)}, s{sT1} offen{NTW} lds", vm=f"c{c}")],
            I(f"buffer_load_dwordx4 v{vW1}, {sr(SWG,4)}, s{sT1} offen offset:1024{NTW} lds", vm=f"c{c}"),
            [f"s_add_u32 m0, s{sM0X}, {st + 32768}",
             I(f"buffer_load_dwordx4 v{vW0}, {sr(SWU,4)}, s{sT1} offen{NTW} lds", vm=f"c{c}")],
            I(f"buffer_load_dwordx4 v{vW1}, {sr(SWU,4)}, s{sT1} offen offset:1024{NTW} lds", vm=f"c{c}"),
        ]
    XR, S1, S2 = 200, 204, 205
    def row_load():
        return [I(f"buffer_load_dword v{vTAG}, off, {sr(SWS,4)}, 0 offset:{WS_EPOCH} sc1", vm="ep"),
                [f"s_lshl_b32 s{sA}, s{sRT2}, 3", f"s_add_u32 s{sA}, s{sA}, s{sISG}", f"s_lshl_b32 s{sA}, s{sA}, 3",
                 f"s_add_u32 s{sA}, s{sA}, s{sW}", f"s_lshl_b32 s{sT2}, s{sA}, 10",
                 I(f"buffer_load_dwordx4 {vr(XR,4)}, v{vL16}, {sr(SX,4)}, s{sT2} offen", vm="ep")]]
    tag_math = L(f"""
        v_add_u32 v{vTAG}, 1, v{vTAG}
        v_and_b32 v{vTAG}, 0x0fff3fff, v{vTAG}
        v_or_b32 v{vTAG}, 0x20000000, v{vTAG}
        s_mov_b32 s{sB}, 0x3f803f80
        v_readfirstlane_b32 s{sTAG}, v{vTAG}
        """)
    def row_math():
        o = []
        for d in range(4):
            o += [f"v_dot2_f32_bf16 v{S1}, v{XR+d}, s{sB}, {'0' if d == 0 else f'v{S1}'}",
                  f"v_dot2_f32_bf16 v{S2}, v{XR+d}, v{XR+d}, {'0' if d == 0 else f'v{S2}'}"]
        o += [f"v_mov_b32 v{XR+1}, v{vTAG}", f"v_permlane32_swap_b32 v{S1}, v{S2}", f"v_add_f32 v{S1}, v{S1}, v{S2}"]
        o += [f"v_add_f32_dpp v{S1}, v{S1}, v{S1} {d} row_mask:0xf bank_mask:0xf"
              for d in ("quad_perm:[1,0,3,2]", "quad_perm:[2,3,0,1]", "row_half_mirror", "row_mirror")]
        o += [f"v_add_f32_dpp v{S1}, v{S1}, v{S1} row_bcast:15 row_mask:0xa bank_mask:0xf"]
        o += L(f"""
        v_mul_f32 v{S1}, {fx(1/512)}, v{S1}
        v_readlane_b32 s{sB}, v{S1}, 31
        v_readlane_b32 s{sC}, v{S1}, 63
        v_mul_f32 v{S1}, s{sB}, s{sB}
        v_sub_f32 v{S1}, s{sC}, v{S1}
        v_max_f32 v{S1}, 0, v{S1}
        v_cvt_pk_bf16_f32 v{S1}, v{S1}, v{S1}
        v_lshlrev_b32 v{S1}, 16, v{S1}
        v_add_f32 v{S1}, {fx(1e-5)}, v{S1}
        v_cvt_pk_bf16_f32 v{S1}, v{S1}, v{S1}
        v_lshlrev_b32 v{S1}, 16, v{S1}
        v_sqrt_f32 v{S1}, v{S1}
        s_lshl_b32 s{sA}, s{sA}, 3
        v_cvt_pk_bf16_f32 v{XR}, v{S1}, -s{sB}
        s_add_u32 s{sA}, s{sA}, {WS_RS}
        """)
        if "nors" not in opt: o += [one(f"buffer_store_dwordx2 {vr(XR,2)}, off, {sr(SWS,4)}, s{sA} sc1", vm="rs", wvm="wps")]
        return o
    def h_load(t):
        return [[f"s_and_b32 s{sT2}, s{sW}, 3", f"s_lshl_b32 s{sT2}, s{sT2}, 10",
                 I(f"buffer_load_dwordx4 {vr(vHE,4)}, v{vL16}, {sr(SH,4)}, s{sT2} offen{NTE}", vm="hl")],
                [f"s_and_b32 s{sT2}, s{sW}, 3", f"s_lshl_b32 s{sT2}, s{sT2}, 10",
                 f"s_sub_u32 s{sT2}, s{sT2}, 4", f"v_add_u32 v{t}, s{sT2}, v{vL16}",
                 I(f"buffer_load_dword v{vHP}, v{t}, {sr(SH,4)}, 0 offen{NTF}", vm="hl")]]
    vZ4 = vHE + 12
    h_math = ([I(f"v_alignbit_b32 v{vHO_}, v{vHE}, v{vHP}, 16", wvm="hl")] +
              [f"v_alignbit_b32 v{vHO_+d}, v{vHE+d}, v{vHE+d-1}, 16" for d in range(1, 4)] +
              [f"v_mov_b32 v{vZ4+d}, 0" for d in range(4)] + [L(f"""
        s_lshr_b32 s{sT2}, s{sW}, 2
        s_mul_i32 s{sT2}, s{sT2}, {CVCH}
        s_add_u32 s{sT2}, s{sT2}, {L_CV}
        v_min_u32 v{vHP+1}, 35, v0
        v_lshlrev_b32 v{vHP+1}, 4, v{vHP+1}
        v_lshrrev_b32 v{vHP}, 5, v0
        v_lshl_add_u32 v{vHP+1}, v{vHP}, 12, v{vHP+1}
        v_add_u32 v{vHP+1}, s{sT2}, v{vHP+1}
        s_and_b32 s{sT3}, s{sW}, 3
        s_lshl_b32 s{sT3}, s{sT3}, 10
        s_add_u32 s{sT2}, s{sT2}, s{sT3}
        v_add_u32 v{vHP}, s{sT2}, v{vL16}
        """)])
    h_write = [I(f"ds_write_b128 v{vHP}, {vr(vHE,4)} offset:4608", lg="hw"),
               I(f"ds_write_b128 v{vHP}, {vr(vHO_,4)} offset:{4608+4160}", lg="hw"),
               I(f"ds_write_b128 v{vHP+1}, {vr(vZ4,4)} offset:4096", lg="hw")]
    vFL, vFA = 18, 19
    def wf_addr_(sE, vFA, vFL): return L(f"""
        s_lshl_b32 s{sT2}, s{sCT2}, 3
        s_add_u32 s{sT2}, s{sT2}, s{sW}
        s_and_b32 s{sE}, s{sCT2}, 6
        s_lshl_b32 s{sE}, s{sE}, 1
        s_add_u32 s{sE}, s{sE}, s{sWC}
        s_lshl_b32 s{sE}, s{sE}, 1
        s_and_b32 s{sT3}, s{sCT2}, 1
        s_add_u32 s{sE}, s{sE}, s{sT3}
        s_lshl_b32 s{sE}, s{sE}, 4
        s_add_u32 s{sE}, s{sE}, s{sWR}
        s_lshl_b32 s{sE}, s{sE}, 5
        s_add_u32 s{sE}, s{sE}, {WS_RS + 64 + 4 + (16384 if oi("rl", -1) >= 0 else 0)}
        s_mul_i32 s{sT2}, s{sT2}, 28672
        s_mul_i32 s{sT3}, s{sHI}, 12288
        s_add_u32 s{sT2}, s{sT2}, s{sT3}
        s_add_u32 s{sT2}, s{sT2}, {WS_WT}
        s_lshl_b32 s{sT3}, s{sRBL}, 10
        s_add_u32 s{sMO}, s{sT2}, s{sT3}
        s_xor_b32 s{sMO+1}, s{sMO}, 1024
        s_xor_b32 s{sMO+2}, s{sMO}, 2048
        s_xor_b32 s{sMO+3}, s{sMO}, 3072
        v_min_u32 v{vFA}, 27, v0
        v_and_b32 v{vFL}, 28, v{vFA}
        v_add_u32 v{vFA}, v{vFA}, v{vFL}
        v_lshlrev_b32 v{vFA}, 3, v{vFA}
        """)
    wf_addr = wf_addr_(sE, vFA, vFL)
    wf_ld = f"buffer_load_dword v{vFL}, v{vFA}, {sr(SWS,4)}, s{sE} offen sc1"
    def wd_loads():
        o = []
        for i in range(28):
            ks, mt = divmod(i, 4)
            g = []
            if i == 16:
                g += [f"s_mul_i32 s{sT3}, s{sHI}, 28672"] + [f"s_sub_u32 s{sMO+m}, s{sMO+m}, s{sT3}" for m in range(4)]
            g += [f"s_add_u32 s{sT3}, s{sMO+mt}, {4096*ks}",
                  I(f"buffer_load_dwordx4 {vr(WDF(i),4)}, v{vL16}, {sr(SWS,4)}, s{sT3} offen sc1" if i < oi("wx", 99) else
                    f"buffer_load_dword {vr(WDF(i),1)}, off, {sr(SWS,4)}, s{sT3} sc1", vm=f"wd{ks}")]
            o.append(g)
        return o
    vKA, vKL = 29, 30
    kf_addr = [f"v_and_b32 v{vKA}, 31, v0", f"v_lshlrev_b32 v{vKA}, 2, v{vKA}", f"s_lshl_b32 s{sC}, s{sXCD}, 7",
               f"s_add_u32 s{sC}, s{sC}, {WS_FKV}"]
    kf_ld = f"buffer_load_dword v{vKL}, v{vKA}, {sr(SWS,4)}, s{sC} offen sc1"
    def r_dma(t):
        return L(f"""
        s_lshr_b32 s{sT2}, s{sW}, 2
        s_mul_i32 s{sT3}, s{sT2}, {CVCH - 4096}
        s_lshl_b32 s{sT2}, s{sT2}, 4
        v_lshl_add_u32 v{t}, v0, 5, s{sT2}
        s_lshl_b32 s{sT2}, s{sW}, 10
        s_add_u32 s{sT3}, s{sT3}, s{sT2}
        s_add_u32 m0, s{sT3}, {L_CV}
        s_and_b32 s{sT2}, s{sM0X}, 0x1800
        s_lshl_b32 s{sT3}, s{sCP}, 13
        s_add_u32 s{sT2}, s{sT2}, s{sT3}
        s_add_u32 s{sT2}, s{sT2}, {WS_KV}
        """) + [I(f"buffer_load_dwordx4 v{t}, {sr(SWS,4)}, s{sT2} offen sc1 lds", vm="R")]

    WL = wd_loads()
    wsched = {17: 1, 18: 1, 19: 1, 21: 1, 22: 1, 23: 1, 24: 1, 25: 2, 26: 2, 27: 2, 29: 1, 30: 2, 31: 2}
    wsched = {k: n for k, n in wsched.items() if k >= oi("pw", 20) + 3}
    for o in opt:
        if o.startswith("ws="): wsched = {32 - len(o[3:]) + i: int(ch) for i, ch in enumerate(o[3:])}
    assert min(k for k, n in wsched.items() if n) >= oi("pw", 20) + oi("pd", 3)
    wepi = [int(x) for x in str(oi("we", 3320)).zfill(4)]
    NPRE = sum(wsched.values()) + sum(wepi)
    vq_pro = list(a.vq)
    a(f"s_cmp_eq_u32 s{sISG}, 0\ns_cbranch_scc1 {AUX}")
    if "nogemm" in opt: a(f"s_branch {END}")
    SP, SPS = oi("sp", 0), oi("ss", 64)
    h_pre = [f"s_and_b32 s{sT2}, s{sW}, 3", f"s_lshl_b32 s{sT2}, s{sT2}, 10"] + [
        f"s_buffer_load_dword s{sCNT}, {sr(SH,4)}, s{sT2} offset:{o}" for o in range(0, 1024, SPS)]
    if SP == 1: a(h_pre)
    a(chunk_dma(0))
    if SP == 2: a(h_pre)
    WP, vWPA, vWPS, vWPL, CSA, CS1 = 208, 212, 213, 214, 240, 236
    sWPS, sWPF, sWPM = SSH, SSH + 1, SSH + 3
    a(f"""
    v_and_b32 v23, 3, v20
    v_lshrrev_b32 v26, 5, v0
    v_lshl_add_u32 v23, v26, 3, v23
    v_lshlrev_b32 v26, 4, v22
    v_lshl_add_u32 v{vWPL}, v23, 10, v26
    s_mov_b32 s{sE}, s{sXCD}
    s_lshl_b32 s{sT2}, s{sRBL}, 1
    s_add_u32 s{sT2}, s{sT2}, s{sB}
    s_mul_i32 s{sT3}, s{sT2}, 7
    s_add_u32 s{sT3}, s{sT3}, s{sCT2}
    s_mul_i32 s{sWPS}, s{sE}, 56
    s_add_u32 s{sWPS}, s{sWPS}, s{sT3}
    s_lshl_b32 s{sWPS}, s{sWPS}, 12
    s_lshl_b32 s{sT1}, s{sC}, 8
    s_add_u32 s{sWPS}, s{sWPS}, s{sT1}
    s_add_u32 s{sWPS}, s{sWPS}, {WS_WT}
    s_lshl_b32 s{sT3}, s{sT3}, 15
    s_lshl_b32 s{sT1}, s{sWR}, 12
    s_add_u32 s{sT3}, s{sT3}, s{sT1}
    s_lshl_b32 s{sT1}, s{sWC}, 14
    s_and_b32 s{sT1}, s{sT1}, 0x4000
    s_add_u32 s{sT3}, s{sT3}, s{sT1}
    s_lshl_b32 s{sT1}, s{sE}, 7
    s_add_u32 s{sWPF}, s{sT3}, s{sT1}
    s_lshl_b32 s{sT2}, s{sW}, 10
    s_add_u32 s{sWPM}, s{sT2}, {L_WP}
    s_barrier
    """)
    wp_load = [f"s_mov_b32 m0, s{sWPM}", I(f"buffer_load_dwordx4 v{vWPL}, {sr(SWD,4)}, s{sWPF} offen{NTH} lds", vm="wpl")]
    SWL, SWR, SRS, SPW, SHL, SPF, SRL = oi("wl", -1), oi("wr", 4), oi("rs", 11), oi("pw", 20), oi("hl", 9), oi("pf", 0), oi("rl", -1)
    SKF, SRD = oi("kf", 28), oi("rd", 32)
    if SWL < 0: a(wp_load)
    a(f"""
    v_lshlrev_b32 v23, 7, v24
    v_lshl_add_u32 v23, v21, 5, v23
    v_lshl_add_u32 v23, v25, 3, v23
    v_add_u32 v{vWPA}, s{sWPM}, v23
    """)
    C1E = oi("c1e", 2)
    if SRL >= 0: a(row_load()[0]); a(row_load()[1][:4])
    elif "rowl" not in opt: a(row_load())
    if SHL == -3: a(h_load(27))
    a(chunk_dma(1)[:C1E])
    if SHL == -4: a(h_load(27))
    if "th" in opt: a(I(f"buffer_load_dword v{vHP}, off, {sr(SH,4)}, 0", vm="th"))
    a(f"""
    v_and_b32 v23, 15, v0
    v_lshlrev_b32 v23, 4, v23
    v_lshl_add_u32 v{vWPS}, v21, 10, v23
    v_and_b32 v24, 31, v0
    v_lshrrev_b32 v25, 5, v0
    v_bfe_u32 v22, v0, 1, 3
    v_xor_b32 v22, v22, v25
    v_lshlrev_b32 v22, 4, v22
    v_lshl_add_u32 v22, v24, 7, v22
    s_lshl_b32 s{sT0}, s{sWR}, 13
    v_add_u32 v{vXB}, s{sT0}, v22
    v_xor_b32 v{vXB+1}, 32, v{vXB}
    v_xor_b32 v{vXB+2}, 64, v{vXB}
    v_xor_b32 v{vXB+3}, 96, v{vXB}
    v_add_u32 v{vXB+4}, {2*STAGE}, v{vXB}
    v_add_u32 v{vXB+5}, {2*STAGE}, v{vXB+1}
    v_add_u32 v{vXB+6}, {2*STAGE}, v{vXB+2}
    v_add_u32 v{vXB+7}, {2*STAGE}, v{vXB+3}
    v_bfe_u32 v23, v0, 2, 2
    v_lshl_add_u32 v24, v25, 3, v23
    v_lshlrev_b32 v24, 8, v24
    v_xor_b32 v23, s{sWC}, v23
    v_lshl_add_u32 v24, v23, 6, v24
    v_bfe_u32 v23, v0, 4, 1
    v_lshl_add_u32 v24, v23, 5, v24
    v_and_b32 v23, 3, v0
    v_lshl_add_u32 v24, v23, 3, v24
    v_add_u32 v{vWB}, 16384, v24
    v_add_u32 v{vWB+1}, {STAGE+16384}, v24
    v_add_u32 v{vWB+2}, {2*STAGE+16384}, v24
    v_mov_b32 v{CS1}, 0x3f803f80
    v_mov_b32 v{CS1+1}, 0x3f803f80
    v_mov_b32 v{CS1+2}, 0x3f803f80
    v_mov_b32 v{CS1+3}, 0x3f803f80
    """)
    stamp("K0")
    if "dmaonly" in opt:
        DD = oi("dd", 2)
        if C1E < 6: a(chunk_dma(1)[0][:4]); a(chunk_dma(1)[C1E:])
        for c in range(2, DD): a(chunk_dma(c))
        for c in range(8):
            a(I(wvm=f"c{c}"))
            if "dnb" not in opt: a("s_barrier")
            stamp(f"B{c}")
            if c + DD < 8: a(chunk_dma(c + DD))
        a("s_branch L_prof")
        opt = [o for o in opt if not o.startswith("st=")] + ["st=end"]

    def F(s): return FR + 16 * (s & 1)
    def reads(s):
        c, j = divmod(s, 4)
        st = c % 3
        xb = vXB + j + (4 if st == 2 else 0); im = STAGE if st == 1 else 0
        wb = vWB + st; wo = 4096 * j
        f = F(s); t = f"r{s}"
        return [I(f"ds_read_b64_tr_b16 {vr(f,2)}, v{wb} offset:{wo}", lg=t),
                I(f"ds_read_b64_tr_b16 {vr(f+2,2)}, v{wb} offset:{wo+1024}", lg=t),
                I(f"ds_read_b128 {vr(f+8,4)}, v{xb} offset:{im}", lg=t),
                I(f"ds_read_b64_tr_b16 {vr(f+4,2)}, v{wb} offset:{wo+16384}", lg=t),
                I(f"ds_read_b64_tr_b16 {vr(f+6,2)}, v{wb} offset:{wo+17408}", lg=t),
                I(f"ds_read_b128 {vr(f+12,4)}, v{xb} offset:{im+4096}", lg=t)]
    def mfmas(A, B, first=False, par=0):
        out = []
        for nt in range(2):
            for m in range(2):
                d = ACC + 32 * m + 16 * nt
                if "m16x" in opt:
                    for h in range(2):
                        e = d + 8 * (par & 1) + 4 * h
                        out.append(f"v_mfma_f32_16x16x32_bf16 {vr(e,4)}, {vr(A[m ^ h],4)}, {vr(B[nt],4)}, {'0' if par < 2 else vr(e,4)}")
                    continue
                out.append(f"v_mfma_f32_32x32x16_bf16 {vr(d,16)}, {vr(A[m],4)}, {vr(B[nt],4)}, {'0' if first else vr(d,16)}")
        if "snk" in opt: out = [out[0], out[1], out[3], out[2]]
        if "snb" in opt: out = [out[0], out[2], out[3], out[1]]
        if "sna" in opt: out = [out[0], out[2], out[1], out[3]]
        return out
    def cs_mfma(p):
        o = []
        for m in range(2):
            o += [f"s_bitcmp1_b32 s{sCSM}, {m}", f"s_cbranch_scc0 L_cs{p}_{m}",
                  f"v_mfma_f32_32x32x16_bf16 {vr(CSA,16)}, {vr(CS1,4)}, {vr(F(p)+4*m,4)}, {'0' if p == 0 else vr(CSA,16)}",
                  f"L_cs{p}_{m}:"]
        return o
    sCSB = SSH + 2
    cs_store = [L(f"""
        s_lshl_b32 s{sCSB}, s{sCB}, 2
        s_add_u32 s{sCSB}, s{sCSB}, s{sWC}
        s_lshl_b32 s{sCSB}, s{sCSB}, 10
        s_add_u32 s{sCSB}, s{sCSB}, {WS_CS}
        s_cmp_eq_u32 s{sCSM}, {'s%d' % sCSM if "nocs" in opt else 0}
        s_cbranch_scc1 L_nocs
        v_cvt_pk_bf16_f32 v{CSA+1}, v{CSA}, v{CSA}
        s_mul_i32 s{sT2}, s{sWR}, 57344
        v_lshlrev_b32 v{CSA+1}, 16, v{CSA+1}
        s_lshr_b32 s{sT3}, s{sKEY}, 1
        v_sub_f32 v{CSA+1}, v{CSA}, v{CSA+1}
        s_lshl_b32 s{sT3}, s{sT3}, 3
        v_cvt_pk_bf16_f32 v{CSA}, v{CSA}, v{CSA+1}
        s_add_u32 s{sT2}, s{sT2}, s{sT3}
        v_mov_b32 v{CSA+1}, v{vTAG}
        s_add_u32 s{sT2}, s{sT2}, s{sCSB}
        v_lshlrev_b32 v{CSA+2}, 5, v0
        s_mov_b32 exec_hi, 0
        buffer_store_dwordx2 {vr(CSA,2)}, v{CSA+2}, {sr(SWS,4)}, s{sT2} offen sc1
        s_mov_b32 exec_hi, -1
        L_nocs:
        """)]
    EG, EU, ER, EB0, EB1 = 128, 132, 20, 136, 140
    ex_addr = L(f"""
        v_and_b32 v24, 31, v0
        v_lshrrev_b32 v25, 5, v0
        v_lshlrev_b32 v25, 4, v25
        v_lshl_add_u32 v{vX0}, v24, 5, v25
        v_and_b32 v24, 15, v0
        v_lshrrev_b32 v25, 4, v0
        v_lshlrev_b32 v25, 3, v25
        v_lshl_add_u32 v{vX1}, v24, 5, v25
        s_lshl_b32 s{sKEY}, s{sRB}, 1
        s_add_u32 s{sKEY}, s{sKEY}, s{sWR}
        s_lshl_b32 s{sWB}, s{sKEY}, 9
        s_add_u32 s{sWB}, s{sWB}, {WS_RS}
        s_add_u32 s{sXB}, s{sCSB}, 57344
        """)
    ex_ld = [f"buffer_load_dwordx4 {vr(EG,4)}, v{vX0}, {sr(SWS,4)}, s{sCSB} offen sc1",
             f"buffer_load_dwordx4 {vr(EU,4)}, v{vX0}, {sr(SWS,4)}, s{sXB} offen sc1",
             f"buffer_load_dwordx2 {vr(ER,2)}, v{vX1}, {sr(SWS,4)}, s{sWB} offen sc1"]
    ex_check = L(f"""
        v_min3_u32 v24, v{EG+1}, v{EG+3}, v{ER+1}
        v_max3_u32 v25, v{EG+1}, v{EG+3}, v{ER+1}
        v_min3_u32 v24, v24, v{EU+1}, v{EU+3}
        v_max3_u32 v25, v25, v{EU+1}, v{EU+3}
        v_cmp_ne_u32 vcc, s{sTAG}, v24
        v_cmp_ne_u32 s[{sT0}:{sT1}], s{sTAG}, v25
        s_or_b64 vcc, vcc, s[{sT0}:{sT1}]
        """)
    AP, BP, SS, vHO, TM = 22, 24, 26, 28, FR
    RM = row_math()
    def part(lst, i, n): return lst[len(lst) * i // n:len(lst) * (i + 1) // n]
    def os_(k, d=""): return ([o[len(k):] for o in opt if o.startswith(k)] + [d])[0]
    W = [0]
    def cum(t): return [sum(int(x) for x in t[:i]) for i in range(5)]
    def step(s, role):
        wi = W[0]
        c, j = divmod(s, 4)
        fill = []; pre = []; post = []
        if j == 0 and s < 32:
            a(I(wvm=f"c{c}", wlg="*"))
            a("s_barrier")
            stamp(f"B{c}")
            PR_ = os_(f"Rq{role}=")
            if PR_ and (c == 0 or PR_[c] != PR_[c - 1]): a(f"s_setprio {PR_[c]}")
            if "g1only" in opt and s == 20: a("s_waitcnt vmcnt(0)\ns_branch L_prof")
        DR = os_("drop=")
        if s == SWL: pre += [wp_load]
        if s == SPW: pre += [ap(wf_ld, 28, "apw", "fw")]
        if s == SKF: pre += [ap(kf_ld, 32, "apk", "kf")]
        if s == 28: pre += [I(x, vm="ex") for x in ex_ld]
        if s == 0:
            assert C1E in (0, 2, 4, 6)
            if 0 < C1E < 6: fill += [chunk_dma(1)[0][:4]]
            fill += chunk_dma(1)[C1E:]
            if "rowl" in opt: fill += row_load()
            if SHL == -5: fill += h_load(27)
        if c <= 5:
            cu = cum(os_(f"Re{role}=", "0222") if c == 0 and C1E < 6 else os_(f"Rd{role}{c}=", os_(f"Rd{role}=", "2121")))
            assert cu[4] == 6
            g = chunk_dma(c + 2)[cu[j]:cu[j + 1]]
            pm = os_(f"Rm{role}=", "0000")[j]
            hp = os_(f"Rp{role}=", "0")
            if hp[0] != "0" and g:
                if pm == "0" and s: g = [[f"s_setprio {hp[0]}", x, "s_setprio 0"] for x in g]
                else: g = [f"s_setprio {hp[0]}"] + g + ["s_setprio 0"]
            if s == 0 or pm == "0": fill += g
            elif pm == "1": pre += g
            else: post += g
        IL = os_("il=", "")
        RD = reads(s) if s < 32 else []
        if IL:
            for x, t in zip(RD, "aaabbc"): x.lg += t
        if not IL or s == 0: a(RD)
        wp_rd = [I(f"ds_read_b64_tr_b16 {vr(WP,2)}, v{vWPA}", lg="wp", wvm="wpl"),
                 I(f"ds_read_b64_tr_b16 {vr(WP+2,2)}, v{vWPA} offset:512", lg="wp")]
        wp_st = I(f"buffer_store_dwordx4 {vr(WP,4)}, v{vWPS}, {sr(SWS,4)}, s{sWPS} offen sc1", vm="wps", wlg="wp")
        if s == 0:
            a(pre + fill + (wp_rd if SWR == 0 else [])); return
        p = s - 1
        v = []
        if s in (SHL, SHL + oi("hd", 2)) and "h" not in DR: fill += [h_load(31)[(s - SHL) // oi("hd", 2)]]
        if s == oi("tg", 4) and "t" not in DR: v += [I(tag_math[0], wvm="ep")] + tag_math[1:]
        if s == SWR and "w" not in DR: fill += wp_rd
        if s == SWR + 1 and "w" not in DR: fill = [wp_st] + fill if SWR == 0 else fill + [wp_st]
        RM0, RMN = oi("rm", 5), oi("rn", 5)
        if s == SRL:
            x = row_load()[1][4:]; x[-1].vm = "xr"; fill += [x]
        if SRL >= 0 and s == RM0: v += [I(f"s_mov_b32 s{sB}, 0x3f803f80", wvm="xr")]
        if SRL >= 0 and s == oi("wf", 11):
            fill += [[f"s_lshl_b32 s{sT2}, s{sA}, 3", f"s_add_u32 s{sT2}, s{sT2}, {WS_RS + 16384}"] +
                     one(f"buffer_store_dword v{vTAG}, off, {sr(SWS,4)}, s{sT2} offset:4 sc1", vm="wf", wvm="wps")]
        if RM0 <= s < RM0 + RMN and "t" not in DR: v += part(RM[:-1], s - RM0, RMN)
        if s == SRS and "r" not in DR: fill = [RM[-1]] + fill if "rsf" in opt else fill + [RM[-1]]
        if s == 10 and "c" not in DR: v += cs_store
        if s == 11 and "a" not in DR: v += [wf_addr]
        HM, HW = oi("hm", 21), oi("hw", 24)
        if HM <= s <= HM + 2: v += part(h_math, s - HM, 3)
        if s == SPW + oi("pd", 3): pre += [[I(wvm="fw")] + ne(vFL) + ["s_cbranch_scc0 L_fw_ok"] + spin("fw", ap(wf_ld, 28, "apw"), ne(vFL))]
        if s == 19: v += kf_addr
        if HW <= s <= HW + 2: v += [h_write[s - HW]]
        if s == 27: v += ex_addr
        if s == SRD: fill = [[I(wvm="kf")] + ne(vKL) + [f"s_cselect_b32 s{sOK}, 0, 1"] +
                             ([f"s_cselect_b64 vcc, 0, -1"] + r_dma(24)[:-1] + ["s_mov_b64 exec, vcc", r_dma(24)[-1], "s_mov_b64 exec, -1"] if "mskr" in opt else r_dma(oi("rt", 24)))] + fill
        if s == 30: v += [f"v_mov_b32 v{r}, 0" for r in (EB0 + 1, EB0 + 3, EB1 + 1, EB1 + 3)] + [f"s_mov_b32 s{sB}, 0x03020302"]
        n = wsched.get(s, 0); fill += WL[wi:wi + n]; W[0] += n
        if s == 32:
            a(I(wvm="ex"))
            a(ex_check + ["s_cbranch_scc0 L_ex_ok"] + spin("ex", ex_ld, ex_check))
            v += L(f"""
            v_mov_b32 v{ER+1}, v{ER}
            v_permlane32_swap_b32 v{ER}, v{ER+1}
            v_perm_b32 v{EB0}, v{ER}, v{ER}, s{sB}
            v_perm_b32 v{EB0+2}, v{ER}, v{ER}, s{sB}
            v_perm_b32 v{EB1}, v{ER+1}, v{ER+1}, s{sB}
            v_perm_b32 v{EB1+2}, v{ER+1}, v{ER+1}, s{sB}
            v_lshlrev_b32 v{ER}, 16, v{ER}
            v_lshlrev_b32 v{ER+1}, 16, v{ER+1}
            """)
        hd = []
        if c <= 5 and os_(f"Rm{role}=", "0000")[j] == "1": hd, pre = pre, []
        fill = pre + (mix(v, fill) if len(v) >= len(fill) else mix(fill, v)) if (v and fill) else pre + v + fill
        a(hd)
        f = F(p)
        MM = mfmas((f, f + 4), (f + 8, f + 12), p == 0, p)
        if IL:
            nm = len(MM)
            cu2 = lambda t: [sum(int(x) for x in t[:i]) for i in range(nm + 1)]
            rc = cu2(IL[:nm]); fc = cu2(IL[nm:2 * nm])
            assert rc[nm] == 6
            for i in range(nm):
                a(I(MM[i], wlg=f"r{p}" + ("abcc" if nm == 4 else "abbbcccc")[i]))
                a(RD[rc[i]:rc[i + 1]])
                a(fill[(len(fill) * fc[i] + fc[nm] // 2) // fc[nm]:(len(fill) * fc[i + 1] + fc[nm] // 2) // fc[nm]])
        else:
            a(I(wlg=f"r{p}"))
            a(mix(MM, fill))
        if p < 8 and "nocs" not in opt and "c" not in DR: a(cs_mfma(p))
        a(post)
        stamp(f"s{s}")
    if "split" in opt:
        a(f"s_cmp_lt_u32 s{sW}, 4\ns_cbranch_scc0 L_g1y")
        sv = (list(a.vq), list(a.lq), W[0])
        for s in range(24): step(s, "o")
        a(I(wvm="c6", wlg="*"))
        a("s_branch L_g1m")
        vo = list(a.vq)
        a("L_g1y:")
        a.vq, a.lq, W[0] = sv
        i0 = len(a.lines)
        for s in range(24): step(s, "y")
        a(I(wvm="c6", wlg="*"))
        defs = [x[:-1] for x in a.lines[i0:] if x.endswith(":")]
        for i in range(i0, len(a.lines)):
            for d in defs: a.lines[i] = re.sub(rf"\b{d}\b", d + "_y", a.lines[i])
        a("L_g1m:")
        a.vq = [tuple(set(vo + a.vq))]
        for s in range(24, 33): step(s, "o")
    else:
        for s in range(33): step(s, "o")
    wi = W[0]
    fill = []
    EO = oi("eo", 2)
    cA, cB, cS = ([lambda nt, b=b: b + nt for b in (AP, BP, SS)] if EO == 0 else
                  [lambda nt, b=b: FR + 16 + 6 * nt + b for b in (0, 2, 4)])
    for nt in range(2):
        fill += [f"v_rcp_f32 v{TM+nt}, v{ER+nt}", f"v_mul_f32 v{cS(nt)}, v{ER+nt}, v{ER+nt}"]
        if EO == 2: fill += [f"v_mul_f32 v{cS(nt)+1}, v{ER+nt}, v{ER+nt}"]
    for nt in range(2):
        fill += [f"v_mul_f32 v{cA(nt)}, {fx(-KC)}, v{TM+nt}"]
        if EO == 2: fill += [f"v_mul_f32 v{cA(nt)+1}, {fx(-KC)}, v{TM+nt}"]
        fill += [f"v_mul_f32 v{TM+nt}, v{TM+nt}, v{TM+nt}",
                 f"v_mul_f32 v{TM+nt}, {fx(0.044715)}, v{TM+nt}", f"v_mul_f32 v{cB(nt)}, v{cA(nt)}, v{TM+nt}"]
        if EO == 2: fill += [f"v_mul_f32 v{cB(nt)+1}, v{cA(nt)}, v{TM+nt}"]
    sHF = SK
    fill += L(f"""
    v_bfe_u32 v{TM+8}, v0, 4, 1
    v_mul_u32_u24 v{TM+8}, 57344, v{TM+8}
    v_and_b32 v{TM+9}, 15, v0
    v_lshl_add_u32 v{TM+8}, v{TM+9}, 4, v{TM+8}
    v_lshrrev_b32 v{TM+9}, 5, v0
    v_lshl_add_u32 v{vHO}, v{TM+9}, 8, v{TM+8}
    s_mul_i32 s{sXB}, s{sKEY}, {4*56*1024}
    s_add_u32 s{sXB}, s{sXB}, s{sCSB}
    s_add_u32 s{sXB}, s{sXB}, {WS_H - WS_CS}
    s_add_u32 s{sWB}, s{sXB}, {2*56*1024}
    s_sub_u32 s{sHF}, s{sCSB}, {WS_CS}
    s_lshr_b32 s{sHF}, s{sHF}, {10 - FS}
    s_mul_i32 s{sT0}, s{sKEY}, {56 << FS}
    s_add_u32 s{sHF}, s{sHF}, s{sT0}
    s_add_u32 s{sHF}, s{sHF}, {WS_FH}
    """)
    a(mix(mfmas((EG, EU), (EB0, EB1), False, 2), fill))
    stamp("B8")
    def epi(G, U, nt, rr, pk, plain=False):
        o = []
        t = {r: TM + 2 * i for i, r in enumerate(rr)}
        P = lambda x: vr(x, 2)
        s2 = (f"op_sel:[0,{nt},{nt}] op_sel_hi:[1,{nt},{nt}]", "op_sel_hi:[1,0,0]", "")[EO]
        AP, BP, SS = [f(nt) & ~1 for f in (cA, cB, cS)]
        if plain:
            e = [(t[r] + i, G + r + i, U + r + i) for r in rr for i in range(2)]
            o += [f"v_mul_f32 v{x}, v{g}, v{g}" for x, g, u in e]
            o += [f"v_fma_f32 v{x}, v{x}, v{BP}, v{AP}" for x, g, u in e]
            o += [f"v_mul_f32 v{x}, v{x}, v{g}" for x, g, u in e]
            o += mix([f"v_exp_f32 v{x}, v{x}" for x, g, u in e], [f"v_mul_f32 v{u}, v{u}, v{g}" for x, g, u in e])
            o += [f"v_fma_f32 v{x}, v{x}, v{SS}, v{SS}" for x, g, u in e]
            o += [f"v_rcp_f32 v{x}, v{x}" for x, g, u in e]
            o += [f"v_mul_f32 v{u}, v{u}, v{x}" for x, g, u in e]
            o += [f"v_cvt_pk_bf16_f32 v{pk+i}, v{U+r}, v{U+r+1}" for i, r in enumerate(rr)]
            return o
        o += [f"v_pk_mul_f32 {P(t[r])}, {P(G+r)}, {P(G+r)}" for r in rr]
        o += [f"v_pk_fma_f32 {P(t[r])}, {P(t[r])}, {P(BP)}, {P(AP)} {s2}" for r in rr]
        o += [f"v_pk_mul_f32 {P(t[r])}, {P(t[r])}, {P(G+r)}" for r in rr]
        o += mix([f"v_exp_f32 v{t[r]+i}, v{t[r]+i}" for r in rr for i in range(2)],
                 [f"v_pk_mul_f32 {P(U+r)}, {P(U+r)}, {P(G+r)}" for r in rr])
        o += [f"v_pk_fma_f32 {P(t[r])}, {P(t[r])}, {P(SS)}, {P(SS)} {s2}" for r in rr]
        o += [f"v_rcp_f32 v{t[r]+i}, v{t[r]+i}" for r in rr for i in range(2)]
        o += [f"v_pk_mul_f32 {P(U+r)}, {P(U+r)}, {P(t[r])}" for r in rr]
        o += [f"v_cvt_pk_bf16_f32 v{pk+i}, v{U+r}, v{U+r+1}" for i, r in enumerate(rr)]
        return o
    HSP = ("sc1", "sc0 sc1", "sc1 nt", "sc0 sc1 nt", "", "nt")[oi("hsp", 0)]
    for nt in range(2):
        G = ACC + 16 * nt; U = ACC + 32 + 16 * nt
        for h in range(2):
            pk = TM + 8 + 4 * h
            seq = epi(G, U, nt, range(8 * h, 8 * h + 8, 2), pk, 2 * nt + h < oi('npl', 0))
            n = wepi[2 * nt + h]
            ex = WL[wi:wi + n]; wi += n
            q = 33 + 2 * nt + h
            if oi("hm", 21) == q: ex = ex + h_math
            if oi("hw", 24) == q: ex = ex + h_write
            a(mix(seq, ex))
            so = sXB if nt == 0 else sWB
            a(I(f"buffer_store_dwordx4 {vr(pk,4)}, v{vHO}, {sr(SWS,4)}, s{so} offen offset:{512*h} {HSP}", vm="hs"))
            stamp(f"e{2*nt+h}")
    assert wi == NPRE
    a(f"s_branch {JOIN}")
    vq_join = list(a.vq)

    a(f"{AUX}:")
    if "noaux" in opt: a(f"s_branch {END}")
    a.vq, a.lq = list(vq_pro), []
    vKa, vKb, TP, vT, vKS, KR, KT = 1, 2, 32, 6, 10, 48, 96
    sKO, sKL = sXB, sWB
    a(row_load())
    AXL = oi("axl", 0)
    if AXL & 2: a(h_load(27))
    if AXL & 1: a(I(wvm="ep")); a(tag_math); a(row_math())
    if AXL & 4: a(I(wvm="*"))
    if oi("asl", 0): a(f"s_sleep {oi('asl', 0)}")
    a(f"""
    s_xor_b32 s{sCB}, s{sXCD}, s{sW}
    v_and_b32 v23, 1, v21
    v_lshlrev_b32 v23, 1, v23
    v_xor_b32 v23, v22, v23
    v_lshlrev_b32 v23, 4, v23
    v_lshl_add_u32 v{vKa}, v20, 10, v23
    {f"v_lshlrev_b32 v{vKa}, 4, v0" if "kvlin" in opt else ""}
    v_xor_b32 v{vKb}, 64, v{vKa}
    s_lshl_b32 s{sKO}, s{sRBL}, 3
    s_add_u32 s{sKO}, s{sKO}, s{sW}
    s_mov_b32 s{sKEY}, s{sKO}
    s_lshl_b32 s{sKO}, s{sKO}, 16
    s_lshl_b32 s{sT0}, s{sCB}, {13 if "kvlin" in opt else 7}
    s_add_u32 s{sKO}, s{sKO}, s{sT0}
    s_mul_i32 s{sKL}, s{sW}, 17408
    s_mov_b32 m0, s{sKL}
    s_cmp_eq_u32 s{sKEY}, 0
    s_cbranch_scc1 L_halo0
    s_sub_u32 s{sT0}, s{sKO}, 8192
    buffer_load_dwordx4 v{vKa}, {sr(SK,4)}, s{sT0} offen lds
    s_branch L_halo1
    L_halo0:
    v_mov_b32 v40, 0
    v_mov_b32 v41, 0
    v_mov_b32 v42, 0
    v_mov_b32 v43, 0
    ds_write_b128 v{vL16}, v[40:43]
    L_halo1:
    """)
    def kv_ld(m, b, tag):
        lb = (1 + b) if m == 0 else (9 + b)
        par = (lb & 1) if m == 0 else (b & 1)
        return [f"s_add_u32 m0, s{sKL}, {1024*lb}", f"s_add_u32 s{sT0}, s{sKO}, {(1024 if 'kvlin' in opt else 8192)*b}",
                I(f"buffer_load_dwordx4 v{vKb if par else vKa}, {sr(SV if m else SK,4)}, s{sT0} offen{NTK} lds", vm=tag)]
    for b in range(4): a(kv_ld(0, b, "k0")); a(kv_ld(1, b, "k0"))
    a(f"""
    v_and_b32 v23, 15, v0
    v_lshlrev_b32 v26, 3, v23
    s_lshl_b32 s{sT1}, s{sCB}, 9
    """)
    for cg in range(4):
        a(I(f"buffer_load_dwordx2 {vr(TP+2*cg,2)}, v26, {sr(SSH,4)}, s{sT1} offen offset:{128*cg}", vm="k0"))
    for b in range(4, 8): a(kv_ld(0, b, "k1")); a(kv_ld(1, b, "k1"))
    if not AXL & 2: a(h_load(27))
    stamp("iss", 4)
    a(f"""
    v_lshlrev_b32 v26, 7, v24
    v_lshl_add_u32 v26, v21, 10, v26
    v_lshl_add_u32 v26, v25, 3, v26
    v_lshrrev_b32 v27, 1, v24
    v_lshl_add_u32 v26, v27, 5, v26
    v_and_b32 v27, 1, v21
    v_lshl_add_u32 v26, v27, 6, v26
    v_add_u32 v{vT}, s{sKL}, v26
    v_xor_b32 v{vT+1}, 32, v{vT}
    v_xor_b32 v{vT+2}, 64, v{vT}
    v_xor_b32 v{vT+3}, 96, v{vT}
    v_lshrrev_b32 v26, 1, v23
    v_lshlrev_b32 v26, 13, v26
    v_and_b32 v27, 1, v0
    v_lshl_add_u32 v26, v27, 4, v26
    v_sub_u32 v27, 3, v21
    v_lshl_add_u32 v{vKS}, v27, 5, v26
    s_lshl_b32 s{sKO}, s{sCB}, 18
    s_lshl_b32 s{sT0}, s{sKEY}, 8
    s_sub_u32 s{sKO}, s{sKO}, s{sT0}
    s_add_u32 s{sKO}, s{sKO}, {WS_KV + 8192 - 256}
    """)
    if not AXL & 1: a(I(wvm="ep")); a(tag_math); a(row_math())
    stamp("rs", 1)
    def kv_read(hh, cg):
        r = KR + 10 * cg; t = f"kr{cg}"
        return [I(f"ds_read_b64_tr_b16 {vr(r,2)}, v{vT+cg} offset:{4096*hh+512}", lg=t),
                I(f"ds_read_b64_tr_b16 {vr(r+2,2)}, v{vT+(cg^2)} offset:{4096*hh+1024}", lg=t),
                I(f"ds_read_b64_tr_b16 {vr(r+4,2)}, v{vT+(cg^2)} offset:{4096*hh+1536}", lg=t),
                I(f"ds_read_b64_tr_b16 {vr(r+6,2)}, v{vT+cg} offset:{4096*hh+9216}", lg=t),
                I(f"ds_read_b64_tr_b16 {vr(r+8,2)}, v{vT+cg} offset:{4096*hh+9728}", lg=t)]
    def kv_math(hh, cg):
        r = KR + 10 * cg; q, u, w, pk = KT, KT + 8, KT + 16, KT + 24 + 4 * (cg & 1)
        o = [I(wlg=f"kr{cg}")]
        o += [f"v_alignbit_b32 v{q+i}, v{r+i}, v{r+i-1}, 16" for i in range(1, 6)]
        src = lambda t, back: (r if t & 1 else q) + 2 + t // 2 - back
        for t in (1, 3, 5, 7, 0, 2, 4, 6): o += [f"v_dot2_f32_bf16 v{u+t}, v{src(t,0)}, v{TP+2*cg}, 0"]
        for t in (1, 3, 5, 7, 0, 2, 4, 6): o += [f"v_dot2_f32_bf16 v{u+t}, v{src(t,1)}, v{TP+2*cg+1}, v{u+t}"]
        o += [f"v_and_b32 v{w+t}, 0xffff0000, v{r+6+t//2}" if t & 1 else f"v_lshlrev_b32 v{w+t}, 16, v{r+6+t//2}" for t in range(8)]
        o += [f"v_mul_f32 v{u+t}, v{u+t}, v{w+t}" for t in range(8)]
        o += [f"v_cvt_pk_bf16_f32 v{pk+e}, v{u+7-2*e}, v{u+6-2*e}" for e in range(4)]
        o += [f"s_add_u32 s{sT0}, s{sKO}, {65536*cg}",
              I(f"buffer_store_dwordx4 {vr(pk,4)}, v{vKS}, {sr(SWS,4)}, s{sT0} offen offset:{128*(1-hh)} sc1", vm="ks")]
        return o
    for hh in range(2):
        a(I(wvm=f"k{hh}", wlg="*"))
        stamp("kin", 5 + 2 * hh)
        for cg in range(4): a(kv_read(hh, cg))
        if hh == 0:
            for d in range(8): a(f"v_alignbit_b32 v{TP+d}, v{TP+d}, v{TP+d}, 16")
        for cg in range(4): a(kv_math(hh, cg))
        stamp("km", 6 + 2 * hh)
    a(h_math); a(wf_addr)
    vKA2, vKL2 = 27, 28
    ld2 = f"buffer_load_dword v{vKL2}, v{vKA2}, {sr(SWS,4)}, s{sA} offen sc1"
    a(f"""
    s_lshl_b32 s{sT0}, s{sCB}, 5
    s_add_u32 s{sT0}, s{sT0}, s{sKEY}
    s_lshl_b32 s{sT0}, s{sT0}, 2
    s_add_u32 s{sT0}, s{sT0}, {WS_FKV}
    v_lshlrev_b32 v26, 10, v0
    v_lshlrev_b32 v{vKA2}, 3, v0
    s_lshl_b32 s{sA}, s{sRT2}, 9
    s_add_u32 s{sA}, s{sA}, {WS_RS + 4}
    """)
    a([I("s_mov_b64 exec, 3", wvm="*"), f"buffer_store_dword v{vTAG}, v26, {sr(SWS,4)}, s{sT0} offen sc1", "s_mov_b64 exec, -1"])
    stamp("kvf", 2)
    if "dmaonly" in opt or "g1only" in opt: a("s_branch L_prof")
    ck2 = [f"v_xor_b32 v{vFL}, s{sTAG}, v{vFL}", f"v_xor_b32 v{vKL2}, s{sTAG}, v{vKL2}", f"v_or_b32 v{vFL}, v{vFL}, v{vKL2}",
           f"v_cmp_ne_u32 vcc, 0, v{vFL}", "s_cmp_lg_u64 vcc, 0"]
    a("s_barrier")
    a(h_write)
    a(kf_addr); a(f"s_add_u32 s{sC}, s{sC}, 1024")
    stamp("wd", 3)
    a(spin("fwa", ap(wf_ld, 28, "apx") + ap(ld2, 64, "apx"), ck2))
    a(f"""
    s_cmp_lg_u32 s2, 0
    s_cbranch_scc1 L_ep_ok
    s_add_u32 s{sT0}, s{sM0X}, {WS_RS}
    """)
    a(spin("ep", [f"buffer_load_dwordx4 v[32:35], v{vL16}, {sr(SWS,4)}, s{sT0} offen sc1",
                  f"buffer_load_dwordx4 v[36:39], v{vL16}, {sr(SWS,4)}, s{sT0} offen offset:1024 sc1"],
           [f"v_xor_b32 v{r}, s{sTAG}, v{r}" for r in (33, 35, 37, 39)] +
           ["v_or3_b32 v33, v33, v35, v37", "v_or_b32 v33, v33, v39", "v_cmp_ne_u32 vcc, 0, v33", "s_cmp_lg_u64 vcc, 0"]))
    NA = oi("na", 8)
    a(WL[:NA])
    a(spin("kva", ap(kf_ld, 32, "apx"), ne(vKL)))
    a.vq = []
    a(r_dma(24)); a(WL[NA:NPRE]); a(I(wvm="R"))
    a(f"s_branch L_kvok")

    a(f"{JOIN}:")
    a.vq, a.lq = list(vq_join), []
    stamp("join")
    okv = ("s%d" % sOK) if "nocv" in opt else "1"
    a(f"s_cmp_eq_u32 s{sOK}, {okv}\ns_cbranch_scc1 L_kvok")
    a(spin("kv", ap(kf_ld, 32, "apk"), ne(vKL)))
    sv = list(a.vq); a(r_dma(24)); a(I(wvm="*")); a.vq = sv
    a("L_kvok:")
    CA, AF, BF = 32, 64, 128
    vRU, vRH, vPW, vPR, vZW, vZR, vYA, vYR, vOO = 2, 3, 4, 10, 11, 12, 13, 14, 30
    vXF, XN, vRC = 20, 22, 6
    vXF = 1
    sCH, sWQ, sCVB, sRHO = SV, SV + 1, SV + 2, SV + 3
    sOQ = SSH
    a(f"""
    s_lshr_b32 s{sCH}, s{sW}, 2
    s_and_b32 s{sWQ}, s{sW}, 3
    s_mul_i32 s{sCVB}, s{sCH}, {CVCH}
    s_add_u32 s{sCVB}, s{sCVB}, {L_CV}
    s_lshl_b32 s{sT0}, s{sWQ}, 7
    s_add_u32 s{sT0}, s{sT0}, s{sCVB}
    s_add_u32 s{sT1}, s{sT0}, 480
    v_and_b32 v15, 15, v0
    v_and_b32 v16, 48, v0
    v_lshlrev_b32 v31, 5, v15
    v_sub_u32 v31, v16, v31
    v_add_u32 v{vRU}, s{sT1}, v31
    s_add_u32 s{sT1}, s{sT0}, {4608 - 28 + 4160 + 3072}
    v_and_b32 v31, 1, v0
    v_mul_u32_u24 v31, 4160, v31
    v_sub_u32 v31, v16, v31
    v_bfe_u32 v{vRH}, v0, 1, 3
    v_lshl_add_u32 v31, v{vRH}, 2, v31
    v_add_u32 v{vRH}, s{sT1}, v31
    """)
    KHF = oi("hf", 5)
    hf_st = [f"s_cmp_eq_u32 s{sISG}, 0", "s_cbranch_scc1 L_nohf", I(wvm="hs"),
             line(sHF), "L_nohf:"]
    if KHF < 0: a(hf_st); stamp("hflag")
    a(f"s_cmp_eq_u32 s{sISG}, 0\ns_cbranch_scc1 L_nowr")
    a(I(wvm="R"))
    a("L_nowr:")
    a(I(wlg="*"))
    if "noc1" not in opt: a("s_barrier")
    stamp("c1")
    a(f"s_or_b32 s{sT0}, s2, s{sW}\ns_cbranch_scc1 L_noep")
    a(one(f"buffer_store_dword v{vTAG}, off, {sr(SWS,4)}, 0 offset:{WS_EPOCH} sc1"))
    a("L_noep:")
    order = [(0, p) for p in range(7, -1, -1)] + [(1, p) for p in range(8)]
    def uread(rr, d): return I(f"ds_read_b128 {vr(AF+32*rr+4*d,4)}, v{vRU} offset:{512*(7-d)+64*rr}", lg=f"a{rr}{d}")
    def hread(k):
        rr, p = order[k]; o = 128 * (p & 1) + 16 * rr; b = BF + 4 * (k % 4)
        g = []
        if rr == 0 and p in (5, 3, 1): g += [f"v_subrev_u32 v{vRH}, 1024, v{vRH}"]
        if rr == 1 and p in (2, 4, 6): g += [f"v_add_u32 v{vRH}, 1024, v{vRH}"]
        return g + [I(f"ds_read2_b32 {vr(b,2)}, v{vRH} offset0:{o} offset1:{o+1}", lg=f"b{k}"),
                    I(f"ds_read2_b32 {vr(b+2,2)}, v{vRH} offset0:{o+2} offset1:{o+3}", lg=f"b{k}")]
    PC, PG = os_("pc="), os_("pg=")
    if PC: a(f"s_setprio {PC[0]}")
    for k in range(3): a(hread(k)); a(uread(0, k))
    for d in range(3, 8): a(uread(0, d))
    XV = 6
    fin_addr = L(f"""
        s_and_b32 s{sRHO}, s{sCT2}, 3
        s_lshl_b32 s{sT0}, s{sRT2}, 3
        s_add_u32 s{sT0}, s{sT0}, s{sW}
        s_lshl_b32 s{sOQ}, s{sT0}, 13
        s_lshl_b32 s{sT1}, s{sCT2}, 7
        s_add_u32 s{sOQ}, s{sOQ}, s{sT1}
        s_lshl_b32 s{sT0}, s{sT0}, 6
        s_add_u32 s{sOQ+1}, s{sT0}, {WS_RS}
        v_and_b32 v31, 3, v0
        v_lshrrev_b32 v1, 5, v0
        v_lshl_add_u32 v31, v1, 2, v31
        v_and_b32 v{vOO}, 28, v0
        v_lshlrev_b32 v{vOO}, 2, v{vOO}
        v_lshl_add_u32 v{vOO}, v31, 10, v{vOO}
        v_lshlrev_b32 v1, 3, v31
        """)
    fin_ld = [I(f"buffer_load_dwordx4 {vr(XV,4)}, v{vOO}, {sr(SX,4)}, s{sOQ} offen", vm="xt"),
              I(f"buffer_load_dword v{XN+7}, v1, {sr(SWS,4)}, s{sOQ+1} offen sc1", vm="xt")]
    if "to" in opt: fin_ld = [I(f"buffer_load_dword v{XN+6}, off, {sr(SOUT,4)}, s{sOQ}", vm="xt")] + fin_ld
    def unpack(d, x): return [f"v_and_b32 v{d+e}, 0xffff0000, v{x+e//2}" if e & 1 else f"v_lshlrev_b32 v{d+e}, 16, v{x+e//2}" for e in range(8)]
    xn_math = ([I(f"v_lshlrev_b32 v20, 16, v{XN+7}", wvm="xt"), f"v_and_b32 v21, 0xffff0000, v{XN+7}", "v_rcp_f32 v20, v20"] +
               unpack(XN, XV) + [f"v_add_f32 v{XN+e}, v{XN+e}, v21" for e in range(8)] +
               [f"v_mul_f32 v{XN+e}, v{XN+e}, v20" for e in range(8)])
    p_addr = L(f"""
        v_bfe_u32 v20, v0, 1, 2
        v_bfe_u32 v21, v0, 3, 1
        v_xor_b32 v20, v20, v21
        v_lshlrev_b32 v20, 4, v20
        v_xor_b32 v20, v20, v16
        v_lshl_add_u32 v20, v15, 6, v20
        s_lshl_b32 s{sT0}, s{sW}, 13
        v_add_u32 v{vPW}, s{sT0}, v20
        v_bfe_u32 v20, v0, 2, 2
        v_bfe_u32 v21, v0, 4, 1
        v_xor_b32 v20, v20, v21
        v_lshlrev_b32 v20, 4, v20
        v_lshlrev_b32 v21, 5, v0
        v_xor_b32 v20, v20, v21
        s_lshl_b32 s{sT0}, s{sCH}, 15
        s_lshl_b32 s{sT1}, s{sWQ}, 11
        s_add_u32 s{sT0}, s{sT0}, s{sT1}
        v_add_u32 v{vPR}, s{sT0}, v20
        """)
    HB, ZA, NS = 64, 32, 16
    sH1, sH2, sHQ = sXB, sWB, sKEY
    def HR(n): return HB + 4 * (n % NS if n % NS < 8 else 23 - n % NS)
    sMK = sA
    def hload(n, mask=False):
        qd, ks = divmod(n, 7)
        g = []
        if ks == 0:
            g += [f"s_xor_b32 s{sT3}, s{sRHO}, {qd}", f"s_mul_i32 s{sT3}, s{sT3}, 57344", f"s_add_u32 s{sH1}, s{sHQ}, s{sT3}",
                  f"s_sub_u32 s{sH2}, s{sH1}, s{sRB}"]
        t = I(f"buffer_load_dwordx4 {vr(HR(n),4)}, v{vL16}, {sr(SWS,4)}, s{sH1 if ks < 4 else sH2} offen offset:{(ks&3)*1024} sc1", vm=f"h{n}")
        if "hx2" in opt: return g + [f"s_mov_b64 exec, {sr(sMK,2)}" if mask else "s_nop 0", "s_mov_b32 exec_hi, 0", t, "s_mov_b64 exec, -1"]
        if "hx1" in opt: t = I(t.text.replace("dwordx4 " + vr(HR(n),4), "dword " + vr(HR(n),1)).replace(f"v{vL16},", "v15,"), vm=f"h{n}")
        return g + ([f"s_mov_b64 exec, {sr(sMK,2)}", t, "s_mov_b64 exec, -1"] if mask and "nomask" not in opt else [t])
    def again(n1):
        sv = list(a.vq)
        for n in range(n1): a(hload(n))
        a.vq = sv
    h_addr = L(f"""
        s_mul_i32 s{sHQ}, s{sRT2}, {4*56*1024}
        s_mul_i32 s{sT1}, s{sW}, 7168
        s_add_u32 s{sHQ}, s{sHQ}, s{sT1}
        s_mul_i32 s{sT1}, s{sHI}, 3072
        s_add_u32 s{sHQ}, s{sHQ}, s{sT1}
        s_add_u32 s{sHQ}, s{sHQ}, {WS_H}
        s_mul_i32 s{sRB}, s{sHI}, 7168
        s_sub_u32 s{sRB}, s{sRB}, 4096
        s_lshl_b32 s{sE}, s{sRT2}, 3
        s_add_u32 s{sE}, s{sE}, s{sW}
        s_mul_i32 s{sE}, s{sE}, {7 << FS}
        s_add_u32 s{sE}, s{sE}, {WS_FH + 4}
        v_min_u32 v{vFA}, 6, v0
        v_lshlrev_b32 v{vFA}, {FS}, v{vFA}
        """)
    KH, KR_, KA, KB = oi("kh", 8), oi("kq", 3), oi("ka", 6), oi("kb", 11)
    assert 8 <= KH <= 15 and KA < KH <= KB and KHF < KH
    PM = [o[3:].replace("_", " ") for o in opt if o.startswith("pm=")]
    def poll(at, vm=None):
        if not at:
            t = wf_ld.replace("sc1", PM[0]) if PM else wf_ld
            return [I(t, vm=vm)]
        return [f"v_mov_b32 v{vFL}, 0", "s_mov_b64 exec, 0xff",
                I(f"buffer_atomic_or v{vFL}, v{vFA}, {sr(SWS,4)}, s{sE} offen sc0 sc1", vm=vm), "s_mov_b64 exec, -1"]
    def ne8(at): return [f"v_cmp_ne_u32 vcc, s{sTAG}, v{vFL}", "s_and_b32 vcc_lo, vcc_lo, 0xff"] if at else ne(vFL)
    AH, AY = "aph" in opt or "apa" in opt, "apy" in opt or "apa" in opt
    hf_ld = poll(AH)
    hn = 0
    def pwrite(j): return I(f"ds_write_b128 v{vPW}, {vr(CA+4*j,4)} offset:{1024*j}", lg="pw")
    sYS = sCB
    if "nocv" in opt:
        a(fin_addr); a(h_addr)
        if "wtf" in opt: a(WL[NPRE:]); a(fin_ld)
        a(hf_st)
        if "bar2" in opt: a("s_barrier")
        if "wtf" not in opt: a(WL[NPRE:]); a(fin_ld)
        stamp("k1")
        a(xn_math)
        if "blind" not in opt: a(spin("hf0", [f"s_sleep {oi('sl', 0)}", hf_ld], ne8(AH)))
        stamp("k11")
        a.vq = []
        for n in range(NS): a(hload(n))
        a(f"s_mov_b32 s{sMK}, -1")
        a(I(wlg="*"))
        stamp("c3")
    else:
        for k, (rr, p) in enumerate(order):
            seq = []
            for j in range(p, 8):
                c = "0" if (rr == 0 and j == p) else vr(CA + 4 * j, 4)
                seq.append(I(f"v_mfma_f32_16x16x32_bf16 {vr(CA+4*j,4)}, {vr(BF+4*(k%4),4)}, {vr(AF+32*rr+4*(j-p),4)}, {c}",
                             wlg=[f"a{rr}{j-p}", f"b{k}"]))
            fill = []
            if k == 1: fill += [fin_addr]
            if 1 <= k <= 6: fill += part(WL[NPRE:], k - 1, 6)
            if k == 3: fill += fin_ld
            if 4 <= k <= 7: fill += [uread(1, 2 * (k - 4)), uread(1, 2 * (k - 4) + 1)]
            if k in (6, 7): fill += part(p_addr, k - 6, 2)
            if 8 <= k <= 11: fill += part(xn_math, k - 8, 4)
            if k >= 9: fill = fill[:2] + [pwrite(p - 1)] + fill[2:]
            if k == 2: fill += [h_addr]
            if k == KHF: fill += [hf_st]
            if k == KA: fill += [poll(AH, "hf")]
            if k == KH: a([I(wvm="hf")] + ne8(AH) + [f"s_cselect_b64 {sr(sMK,2)}, 0, -1"])
            if k == KB: fill += [[f"s_cmp_lg_u32 s{sMK}, 0", "s_cbranch_scc1 L_nof2", hf_ld, "L_nof2:"]]
            if k >= KH:
                e = min(hn + KR_, k); hl = [hload(n, True) for n in range(hn, e)]; hn = max(hn, e)
                fill = mix(fill, hl) if len(fill) >= len(hl) else mix(hl, fill)
            a(mix(seq, fill))
            if k + 3 < 16: a(hread(k + 3))
            if PC and PC[k + 1] != PC[k]: a(f"s_setprio {PC[k + 1]}")
            stamp(f"k{k}")
        a(f"""
        s_lshl_b32 s{sT1}, s{sWQ}, 10
        s_sub_u32 s{sT1}, s{sCVB}, s{sT1}
        s_add_u32 s{sT1}, s{sT1}, 4080
        v_sub_u32 v20, s{sT1}, v{vL16}
        v_xor_b32 v21, 16, v{vPR}
        """)
        a(pwrite(7))
        for n in range(hn, NS): a(hload(n, True))
        a([f"s_cmp_lg_u32 s{sMK}, 0", "s_cbranch_scc1 L_hlate", "s_waitcnt vmcnt(0)"] + ne8(AH) +
          [f"s_cselect_b32 s{sMK}, 0, -1", "s_cbranch_scc1 L_hlate"])
        again(NS)
        a("L_hlate:")
        sYS = sCB
        a(I(wlg="*"))
        a("s_barrier")
        stamp("c3")
        if "py" in opt: a("s_setprio 3")
        PR, vU, YA = 32, 128, 132
        a(I(f"ds_read_b128 {vr(vU,4)}, v20", lg="su"))
        for k in range(4):
            a(I(f"ds_read_b128 {vr(PR+8*k,4)}, v{vPR} offset:{8192*k}", lg=f"p{k}"))
            a(I(f"ds_read_b128 {vr(PR+8*k+4,4)}, v21 offset:{8192*k}", lg=f"p{k}"))
        a(f"""
        s_lshl_b32 s{sT1}, s{sCH}, 4
        s_lshr_b32 s{sD}, s{sD}, s{sT1}
        s_lshl_b32 s{sD}, s{sD}, 16
        s_lshl_b32 s{sT1}, s{sCP}, 13
        s_lshl_b32 s{sT3}, s{sW}, 10
        s_add_u32 s{sT1}, s{sT1}, s{sT3}
        s_add_u32 s{sT1}, s{sT1}, {WS_YT}
        s_lshl_b32 s{sYS}, s{sWQ}, 9
        s_lshl_b32 s{sT3}, s{sCP}, 1
        s_add_u32 s{sYS}, s{sYS}, s{sT3}
        s_add_u32 s{sYS}, s{sYS}, s{sCH}
        s_lshl_b32 s{sT3}, s{sYS}, 7
        s_and_b32 s{sT3}, s{sT3}, 0x380
        v_xor_b32 v31, s{sT3}, v{vL16}
        s_lshl_b32 s{sYS}, s{sYS}, {FS}
        s_add_u32 s{sYS}, s{sYS}, {WS_FY}
        """)
        stamp("y0")
        a(I(wlg="su"))
        stamp("y1")
        for e in range(4):
            a(f"v_and_b32 v{YA+6-2*e}, 0xffff0000, v{vU+e}\nv_lshlrev_b32 v{YA+7-2*e}, 16, v{vU+e}")
        a(I(wlg="p0"))
        for e in range(8): a(f"v_fma_f32 v{YA+e}, v{YA+e}, s{sD}, v{PR+e}")
        a(I(wlg="p2"))
        def add8(d, x):
            if "ynp" in opt:
                for e in range(8): a(f"v_add_f32 v{d+e}, v{d+e}, v{x+e}")
            else:
                for e in range(0, 8, 2): a(f"v_pk_add_f32 {vr(d+e,2)}, {vr(d+e,2)}, {vr(x+e,2)}")
        add8(PR + 8, PR + 16)
        a(I(wlg="p3"))
        stamp("y2")
        a(f"s_lshl_b32 s{sT3}, s{sW}, 2\ns_add_u32 s{sT3}, s{sT3}, {L_CNT}\nv_mov_b32 v20, s{sT3}")
        a(I(f"ds_write_b32 v20, v{vTAG}", lg="cw"))
        add8(YA, PR + 24)
        add8(YA, PR + 8)
        for e in range(4): a(f"v_cvt_pk_bf16_f32 v{vU+e}, v{YA+2*e}, v{YA+2*e+1}")
        stamp("y3")
        a(I(f"buffer_store_dwordx4 {vr(vU,4)}, v31, {sr(SWS,4)}, s{sT1} offen sc1", vm="ys"))
    stamp("ys")
    if PG or "py" in opt: a(f"s_setprio {PG[0] if PG else 0}")
    a(f"s_cmp_lg_u32 s{sMK}, 0\ns_cbranch_scc1 L_hgo")
    a(spin("hf", [hf_ld], ne8(AH)))
    again(NS)
    a(line(sYS))
    a("L_hgo:")
    stamp("hok")
    sYA, sYF, sSEL = sMO, sE, SK
    g2_addr = L(f"""
    v_lshrrev_b32 v20, 4, v0
    s_lshl_b32 s{sT1}, s{sRBL}, 2
    v_xor_b32 v21, v20, v15
    v_xor_b32 v21, s{sT1}, v21
    v_lshlrev_b32 v21, 4, v21
    v_lshl_add_u32 v21, v15, 8, v21
    s_lshl_b32 s{sT1}, s{sW}, 12
    v_add_u32 v{vZW}, s{sT1}, v21
    s_lshl_b32 s{sT1}, s{sW}, 1
    v_lshrrev_b32 v1, 5, v0
    v_add_u32 v21, s{sT1}, v1
    v_and_b32 v20, 3, v0
    v_xor_b32 v31, s{sRHO}, v20
    v_lshrrev_b32 v{vZR}, 1, v0
    v_and_b32 v{vZR}, 14, v{vZR}
    v_xor_b32 v{vZR}, v{vZR}, v21
    v_xor_b32 v{vZR}, v{vZR}, v31
    v_lshlrev_b32 v{vZR}, 4, v{vZR}
    v_lshl_add_u32 v{vZR}, v21, 8, v{vZR}
    s_mov_b32 s{sT1}, {sum((L_Z[q] >> 15) << (8 * q) for q in range(4))}
    v_lshlrev_b32 v31, 3, v31
    v_bfe_u32 v31, s{sT1}, v31, 8
    v_lshl_add_u32 v{vZR}, v31, 15, v{vZR}
    v_bfe_u32 v31, v0, 4, 1
    v_lshl_add_u32 v20, v31, 2, v20
    v_xor_b32 v21, s{sW}, v20
    v_lshlrev_b32 v21, 4, v21
    v_lshl_add_u32 v21, v1, 3, v21
    v_lshl_add_u32 v21, v20, 10, v21
    v_bfe_u32 v31, v0, 2, 2
    v_lshl_add_u32 v21, v31, 7, v21
    v_add_u32 v{vYR}, {L_Y}, v21
    v_and_b32 v21, 7, v0
    v_xor_b32 v20, s{sW}, v21
    v_lshlrev_b32 v20, 4, v20
    v_lshrrev_b32 v31, 3, v0
    v_lshl_add_u32 v20, v31, 12, v20
    s_and_b32 s{sT1}, s{sRT2}, 7
    v_xor_b32 v31, s{sT1}, v31
    v_lshl_add_u32 v{vYA}, v31, 7, v20
    v_lshlrev_b32 v{vFA}, {FS}, v21
    v_lshlrev_b32 v1, 2, v21
    v_add_u32 v1, {L_CNT}, v1
    s_lshl_b32 s{sT1}, s{sCT2}, 3
    s_add_u32 s{sT1}, s{sT1}, s{sW}
    s_lshl_b32 s{sYA}, s{sT1}, 15
    s_and_b32 s{sT0}, s{sRT2}, 24
    s_lshl_b32 s{sT0}, s{sT0}, 7
    s_add_u32 s{sYA}, s{sYA}, s{sT0}
    s_add_u32 s{sYA}, s{sYA}, {WS_YT}
    s_lshl_b32 s{sYF}, s{sT1}, {FS + 3}
    s_lshr_b32 s{sT0}, s{sRT2}, 3
    s_lshl_b32 s{sT0}, s{sT0}, {FS + 9}
    s_add_u32 s{sYF}, s{sYF}, s{sT0}
    s_add_u32 s{sYF}, s{sYF}, {WS_FY + 4}
    s_mov_b32 s{sSEL}, {fx(-1.4426950408889634)}
    s_mov_b32 s{sSEL+1}, s{sSEL}
    s_mov_b32 s{sSEL+2}, 1.0
    s_mov_b32 s{sSEL+3}, 1.0
    s_lshl_b32 s{sT0}, s{sW}, 10
    s_add_u32 m0, s{sT0}, {L_Y}
    """)
    ZT, XF, YR, YF = 64, 128, 136, 32
    def zwrite(qd):
        hi, lo = L_Z[qd] & ~0xffff, L_Z[qd] & 0xffff
        return [[f"v_xor_b32 v20, {hi + 64*mt + 16*qd}, v{vZW}",
                 I(f"ds_write_b128 v20, {vr(ZA+16*(qd&1)+4*mt,4)} offset:{lo}", lg="zw")] for mt in range(4)]
    NYF, NYP, NYC = oi("nyf", 8), oi("nyp", 16), oi("nyc", 21)
    NG, ZS = oi("ng", 6), oi("zs", 1)
    y_ld = f"buffer_load_dwordx4 v{vYA}, {sr(SWS,4)}, s{sYA} offen sc1 lds"
    cn_ld = "ds_read_b32 v31, v1"
    cn_ck = ["v_cmp_eq_u32 vcc, 0, v31", "s_cmp_lg_u64 vcc, 0", "s_cbranch_scc0 L_cn_ok"]
    assert NYF < 12
    for n in range(28):
        qd, ks = divmod(n, 7)
        a(I(wvm=[f"h{n}", f"wd{ks}"]))
        if n == NYF: a(line(sYS, wvm="ys", vm="yf"))
        if n == 22:
            a([I(wlg="cn")] + cn_ck + [f"s_mov_b32 s{sCNT}, {SPIN}", "L_cn_loop:", cn_ld, "s_waitcnt lgkmcnt(0)"] + cn_ck +
              [f"s_sub_u32 s{sCNT}, s{sCNT}, 1", "s_cbranch_scc0 L_cn_loop", "L_cn_ok:"])
        if ks == 0 and qd >= 2: a(I(wlg="zw"))
        seq = []
        for mt in range(4):
            d = ZA + 16 * (qd & 1) + 4 * mt
            c = "0" if ks == 0 else vr(d, 4)
            seq.append(f"v_mfma_f32_16x16x32_bf16 {vr(d,4)}, {vr(WDF(4*ks+mt),4)}, {vr(HR(n),4)}, {c}")
        fill = []
        if qd >= 1 and 1 <= ks <= ZS: fill = part(zwrite(qd - 1), ks - 1, ZS)
        if n < NG: fill = part(g2_addr, n, NG)
        if n == 20: fill += [I(cn_ld, lg="cn")]
        if n in (12, 13): fill += part(unpack(XF, XV), n - 12, 2)
        if n == 27: fill += [f"v_xor_b32 v21, 16, v{vZR}"]
        if n == NYC:
            fill = [[I(wvm="yp")] + ne8(AY) + [f"s_cselect_b32 s{sMK}, 0, -1", "s_cbranch_scc1 L_ylate", y_ld, "L_ylate:"]] + fill
        a(mix(seq, fill))
        if n + NS < 28: a(hload(n + NS))
        if n == NYP: a(poll(AY, "yp"))
        if PG and PG[n + 1] != PG[n]: a(f"s_setprio {PG[n + 1]}")
        stamp(f"n{n}")
    a(zwrite(3))
    stamp("g2")
    a(f"s_cmp_lg_u32 s{sMK}, 0\ns_cbranch_scc1 L_ygo")
    a(spin("yf", poll(AY), ne8(AY)) + [y_ld, "L_ygo:"])
    stamp("yok")
    a(I(wvm="*", wlg="*"))
    a("s_barrier")
    stamp("bf")
    P2 = lambda x: vr(x, 2)
    a(I(f"ds_read_b64_tr_b16 {P2(YR)}, v{vYR}", lg="yr"))
    a(I(f"ds_read_b64_tr_b16 {P2(YR+2)}, v{vYR} offset:512", lg="yr"))
    def zread(k): return [I(f"ds_read_b128 {vr(ZT+8*k+4*h,4)}, v{21 if h else vZR} offset:{4096*k}", lg=f"z{k}") for h in range(2)]
    for k in range(6): a(zread(k))
    a(I(wlg="yr")); a(unpack(YF, YR))
    a(zread(6)); a(zread(7))
    for e in range(0, 8, 2): a(f"v_pk_mul_f32 {P2(XN+e)}, {P2(XN+e)}, {P2(YF+e)}")
    stamp("f0")
    for k in range(1, 8):
        a(I(wlg=f"z{k}"))
        for e in range(0, 8, 2): a(f"v_pk_add_f32 {P2(ZT+e)}, {P2(ZT+e)}, {P2(ZT+8*k+e)}")
    stamp("f1")
    for e in range(0, 8, 2): a(f"v_pk_mul_f32 {P2(YF+e)}, {P2(ZT+e)}, {sr(sSEL,2)}")
    a(mix([f"v_exp_f32 v{YF+e}, v{YF+e}" for e in range(8)],
          [f"v_pk_mul_f32 {P2(XN+e)}, {P2(XN+e)}, {P2(ZT+e)}" for e in range(0, 8, 2)]))
    for e in range(0, 8, 2): a(f"v_pk_add_f32 {P2(YF+e)}, {P2(YF+e)}, {sr(sSEL+2,2)}")
    for e in range(8): a(f"v_rcp_f32 v{YF+e}, v{YF+e}")
    for e in range(0, 8, 2): a(f"v_pk_fma_f32 {P2(XF+e)}, {P2(XN+e)}, {P2(YF+e)}, {P2(XF+e)}")
    for e in range(4): a(f"v_cvt_pk_bf16_f32 v{YR+e}, v{XF+2*e}, v{XF+2*e+1}")
    stamp("f2")
    a(f"buffer_store_dwordx4 {vr(YR,4)}, v{vOO}, {sr(SOUT,4)}, s{sOQ} offen sc0 sc1")
    if prof:
        stamp("st")
        if "endw" in opt: a("s_waitcnt vmcnt(0)")
        a("L_prof:")
        stamp("end")
        a(f"""
        s_waitcnt lgkmcnt(0)
        s_lshl_b32 s{sT0}, s2, 3
        s_add_u32 s{sT0}, s{sT0}, s{sW}
        s_lshl_b32 s{sT0}, s{sT0}, 6
        s_add_u32 s{sT0}, s{sT0}, {WS_PROF}
        """)
        for i in range(len(stamps)):
            a(f"v_mov_b32 v1, s{PROFS[i]}")
            a(f"buffer_store_dword v1, off, {sr(SWS,4)}, s{sT0} offset:{4*i}")
    a(f"{END}:\ns_endpgm")
    txt = a.text(256, 512, 163840)
    return txt, stamps, a.nops

if __name__ == "__main__":
    txt, st, nops = gen(prof="prof" in sys.argv, opt=sys.argv[2:])
    open(sys.argv[1], "w").write(txt)
    print("lines", txt.count("\n"), "nops", nops, st)
    if st: open(sys.argv[1] + ".stamps", "w").write(" ".join(st))
```

```python
import sys, struct, re
from em import *

WS_EPOCH, WS_FKV, WS_RS, WS_CS, WS_FH, WS_FY = 0, 4096, 32768, 65536, 262144, 524288
WS_KV, WS_WT, WS_YT, WS_H, WS_PROF = 1 << 20, 3 << 20, 5 << 20, 8 << 20, 16 << 20
SX, SWG, SWU, SWD, SWS, SOUT, SH, SK, SV, SSH = 8, 12, 16, 20, 24, 28, 32, 36, 40, 44
sW, sXB, sWB, sT0, sT1 = 3, 4, 5, 6, 7
(sRT2, sCT2, sKEY, sWR, sWC, sTAG, sM0X, sOK, sISG, sCNT, sT2, sT3, sCSM, sCP, sRBL, sXCD, sCB, sD,
 sMO, _m1, _m2, _m3, sHI, sRB) = range(48, 72)
sA, sB, sC, sE = 98, 99, 100, 101
PROFS = list(range(72, 98, 2))
STAGE = 49152
L_WP = 147456
L_CV, CVCH = 98304, 12864
L_Z = (65536, 131072, 0, 32768)
L_Y, L_CNT = L_CV + 4608, L_CV + 4096
ACC, FR = 32, 96
def WDF(i): return 144 + 4 * i
vX0, vX1, vW0, vW1, vL16 = 1, 2, 3, 4, 5
vXB, vWB, vTAG = 6, 14, 17
SPIN = 0x4000
KC = 2 * 0.7978845608028654 * 1.4426950408889634
def fx(f): return "0x%08x" % struct.unpack("<I", struct.pack("<f", f))[0]
def L(s): return [x.strip() for x in s.strip().split("\n") if x.strip()]

def gen(prof=False, opt=()):
    a = Em()
    def oi(k, d): return int(([o[len(k):] for o in opt if o.startswith(k)] + [d])[0])
    stamps = []
    def oi(k, d): return int(([o[len(k):] for o in opt if o.startswith(k)] + [d])[0])
    def stamp(name, slot=None):
        sel = [o[3:].split(",") for o in opt if o.startswith("st=")]
        dflt = "start,B0,B4,B8,join,c1,c3,hok,g2,bf,end".split(",")
        if not prof or (slot is None and name not in (sel[0] if sel else dflt)): return
        own = slot is None
        if "both" in opt and not own: return
        if slot is None:
            if name not in stamps: stamps.append(name)
            slot = stamps.index(name)
        a(f"{'s_memtime' if 'cyc' in opt else 's_memrealtime'} {sr(PROFS[slot], 2)}")
        if "both" in opt and own:
            stamps.append(name + "c"); a(f"s_memtime {sr(PROFS[slot + 1], 2)}")
    def spin(name, load, check):
        if "nochk" in opt: return [f"L_{name}_ok:"]
        return ([f"s_mov_b32 s{sCNT}, {SPIN}", f"L_{name}_loop:"] + load + ["s_waitcnt vmcnt(0)"] + check +
                [f"s_cbranch_scc0 L_{name}_ok", f"s_sub_u32 s{sCNT}, s{sCNT}, 1", f"s_cbranch_scc0 L_{name}_loop",
                 f"L_{name}_ok:"])
    def one(txt, vm=None, wvm=None):
        if "all" in opt: return [I(txt, vm=vm, wvm=wvm)]
        return [I("s_mov_b64 exec, 1", wvm=wvm), I(txt, vm=vm), "s_mov_b64 exec, -1"]
    FS = oi("fs", 7)
    def line(so, vm=None, wvm=None):
        if "fp" in opt: return one(f"buffer_store_dword v{vTAG}, off, {sr(SWS,4)}, s{so} offset:4 sc1", vm=vm, wvm=wvm)
        return [I(f"s_mov_b64 exec, {(1 << (1 << (FS - 4))) - 1}", wvm=wvm),
                I(f"buffer_store_dwordx4 {vr(vTAG-1,4)}, v{vL16}, {sr(SWS,4)}, s{so} offen sc1", vm=vm), "s_mov_b64 exec, -1"]
    def ne(v): return [f"v_cmp_ne_u32 vcc, s{sTAG}, v{v}", "s_cmp_lg_u64 vcc, 0"]
    def ap(txt, nl, key, vm=None):
        if key not in opt and "apa" not in opt: return [I(txt, vm=vm)]
        d = txt.split()[1].rstrip(",")
        t = I(txt.replace("buffer_load_dword", "buffer_atomic_or").replace("sc1", "sc0 sc1"), vm=vm)
        if nl == 64: return [f"v_mov_b32 {d}, 0", t]
        m = [f"s_mov_b32 exec_hi, 0"] if nl == 32 else [f"s_mov_b64 exec, {(1 << nl) - 1}"]
        return [f"v_mov_b32 {d}, s{sTAG}"] + m + [f"v_mov_b32 {d}, 0", t, "s_mov_b64 exec, -1"]
    END, AUX, JOIN = "L_end", "L_aux", "L_join"
    vHE, vHP, vHO_ = (228, 232, 234) if "hr" in opt else (128, 132, 134)
    KM = oi("km", 3)
    a(f"""
    s_cmp_ge_u32 s2, 256
    s_cbranch_scc1 {END}
    s_load_dwordx16 s[72:87], s[0:1], 0
    s_load_dwordx8 s[88:95], s[0:1], 64
    s_load_dwordx2 s[96:97], s[0:1], 96
    v_lshrrev_b32 v1, 6, v0
    v_and_b32 v0, 63, v0
    v_readfirstlane_b32 s{sW}, v1
    s_and_b32 s{sXCD}, s2, 7
    s_lshr_b32 s{sCP}, s2, 3
    s_and_b32 s{sE}, s{sXCD}, 1
    s_lshr_b32 s{sA}, s{sXCD}, 1
    s_and_b32 s{sRBL}, s{sCP}, 3
    s_lshr_b32 s{sISG}, s{sCP}, 2
    s_lshl_b32 s{sRB}, s{sA}, 2
    s_add_u32 s{sRB}, s{sRB}, s{sRBL}
    s_lshl_b32 s{sRT2}, s{sRB}, 1
    s_add_u32 s{sRT2}, s{sRT2}, s{sE}
    s_add_u32 s{sCT2}, s{sISG}, 7
    s_and_b32 s{sCT2}, s{sCT2}, 7
    s_mul_i32 s{sCB}, s{sE}, 7
    s_add_u32 s{sCB}, s{sCB}, s{sCT2}
    s_xor_b32 s{sKEY}, s{sRBL}, s{sISG}
    s_and_b32 s{sKEY}, s{sKEY}, {KM}
    s_lshl_b32 s{sB}, s{sA}, {2 if KM == 3 else 1}
    s_and_b32 s{sB}, s{sB}, {4 if KM == 3 else 6}
    s_or_b32 s{sKEY}, s{sKEY}, s{sB}
    s_lshl_b32 s{sB}, s{sXCD}, 5
    s_add_u32 s{sCP}, s{sCP}, s{sB}
    s_and_b32 s{sWR}, s{sW}, 1
    s_lshr_b32 s{sWC}, s{sW}, 1
    s_lshr_b32 s{sB}, s{sW}, 2
    s_and_b32 s{sC}, s{sW}, 3
    s_lshl_b32 s{sXB}, s{sRB}, 17
    s_lshl_b32 s{sT0}, s{sB}, 16
    s_add_u32 s{sXB}, s{sXB}, s{sT0}
    s_lshl_b32 s{sT0}, s{sC}, 10
    s_add_u32 s{sXB}, s{sXB}, s{sT0}
    s_mul_i32 s{sWB}, s{sW}, 28672
    s_lshl_b32 s{sT0}, s{sCB}, 8
    s_add_u32 s{sWB}, s{sWB}, s{sT0}
    s_lshl_b32 s{sM0X}, s{sW}, 11
    s_and_b32 s{sT0}, s{sKEY}, 1
    s_and_b32 s{sT1}, s{sA}, 2
    s_or_b32 s{sT0}, s{sT0}, s{sT1}
    {f"s_mov_b32 s{sT0}, s{sRBL}" if KM != 3 else ""}
    s_add_u32 s{sCSM}, s{sWR}, 1
    s_cmp_eq_u32 s{sT0}, s{sWC}
    s_cselect_b32 s{sCSM}, s{sCSM}, 0
    s_lshr_b32 s{sHI}, s{sCT2}, 2
    s_mov_b32 s{sOK}, 0
    """)
    for s, n in ((SX, 1 << 21), (SWG, 1835008), (SWU, 1835008), (SWD, 1835008), (SWS, 1 << 25), (SOUT, 1 << 21),
                 (SH, 4096), (SK, 1 << 21), (SV, 1 << 21), (SSH, 4096)):
        a(f"s_mov_b32 s{s+2}, {n}")
        a(f"s_mov_b32 s{s+3}, 0x20000")
    a(f"""
    v_lshrrev_b32 v20, 3, v0
    v_lshrrev_b32 v21, 4, v0
    v_and_b32 v22, 7, v0
    v_xor_b32 v23, v22, v21
    v_lshlrev_b32 v23, 4, v23
    v_lshl_add_u32 v{vX0}, v20, 12, v23
    v_xor_b32 v{vX1}, 64, v{vX0}
    v_add_u32 v{vX1}, 31744, v{vX1}
    v_bfe_u32 v24, v0, 2, 2
    v_and_b32 v25, 3, v0
    v_xor_b32 v23, v24, v21
    v_lshlrev_b32 v23, 6, v23
    v_lshl_add_u32 v23, v25, 4, v23
    v_mul_u32_u24 v{vW0}, 3584, v21
    v_add_u32 v{vW0}, v{vW0}, v23
    v_add_u32 v{vW1}, 13312, v{vW0}
    v_lshlrev_b32 v{vL16}, 4, v0
    s_lshl_b32 s{sT2}, s{sCP}, 1
    s_add_u32 s{sT2}, s{sT2}, s{sB}
    s_lshl_b32 s{sT2}, s{sT2}, 12
    s_lshl_b32 s{sT3}, s{sCP}, 2
    s_waitcnt lgkmcnt(0)
    s_mov_b64 {sr(SX,2)}, s[72:73]
    s_mov_b64 {sr(SWG,2)}, s[86:87]
    s_mov_b64 {sr(SWU,2)}, s[88:89]
    s_mov_b64 {sr(SK,2)}, s[74:75]
    s_mov_b64 {sr(SV,2)}, s[76:77]
    {f"s_add_u32 s{SWS}, s96, {oi('wo', 0) << 20}" if oi('wo', 0) else f"s_mov_b64 {sr(SWS,2)}, s[96:97]"}
    {f"s_addc_u32 s{SWS+1}, s97, 0" if oi('wo', 0) else ""}
    s_mov_b64 {sr(SSH,2)}, s[78:79]
    s_mov_b64 {sr(SWD,2)}, s[90:91]
    s_mov_b64 {sr(SOUT,2)}, s[92:93]
    s_add_u32 s{SH}, s80, s{sT2}
    s_addc_u32 s{SH+1}, s81, 0
    s_load_dword s{sD}, s[82:83], s{sT3}
    """)
    if prof: a("s_nop 4")
    stamp("start")

    NTX = " nt" if "ntx" in opt else ""
    NTW = " nt" if "ntw" in opt else ""
    NTK = " nt" if "ntk" in opt else ""
    NTH = " nt" if "nth" in opt else ""
    NTE = " nt" if "nte" in opt else ""
    NTF = " nt" if "ntf" in opt else ""
    for o in opt:
        if o.startswith("cp="): NTX = NTW = " " + o[3:].replace("_", " ")
        if o.startswith("ck="): NTK = " " + o[3:].replace("_", " ")
    def chunk_dma(c):
        st = (c % 3) * STAGE
        return [
            [f"s_xor_b32 s{sT0}, s{sKEY}, {c}",
             f"s_mul_i32 s{sT1}, s{sT0}, 229376", f"s_add_u32 s{sT1}, s{sT1}, s{sWB}",
             f"s_lshl_b32 s{sT0}, s{sT0}, 7", f"s_add_u32 m0, s{sM0X}, {st}", f"s_add_u32 s{sT0}, s{sT0}, s{sXB}",
             I(f"buffer_load_dwordx4 v{vX0}, {sr(SX,4)}, s{sT0} offen{NTX} lds", vm=f"c{c}")],
            I(f"buffer_load_dwordx4 v{vX1}, {sr(SX,4)}, s{sT0} offen offset:1024{NTX} lds", vm=f"c{c}"),
            [f"s_add_u32 m0, s{sM0X}, {st + 16384}",
             I(f"buffer_load_dwordx4 v{vW0}, {sr(SWG,4)}, s{sT1} offen{NTW} lds", vm=f"c{c}")],
            I(f"buffer_load_dwordx4 v{vW1}, {sr(SWG,4)}, s{sT1} offen offset:1024{NTW} lds", vm=f"c{c}"),
            [f"s_add_u32 m0, s{sM0X}, {st + 32768}",
             I(f"buffer_load_dwordx4 v{vW0}, {sr(SWU,4)}, s{sT1} offen{NTW} lds", vm=f"c{c}")],
            I(f"buffer_load_dwordx4 v{vW1}, {sr(SWU,4)}, s{sT1} offen offset:1024{NTW} lds", vm=f"c{c}"),
        ]
    XR, S1, S2 = 200, 204, 205
    def row_load():
        return [I(f"buffer_load_dword v{vTAG}, off, {sr(SWS,4)}, 0 offset:{WS_EPOCH} sc1", vm="ep"),
                [f"s_lshl_b32 s{sA}, s{sRT2}, 3", f"s_add_u32 s{sA}, s{sA}, s{sISG}", f"s_lshl_b32 s{sA}, s{sA}, 3",
                 f"s_add_u32 s{sA}, s{sA}, s{sW}", f"s_lshl_b32 s{sT2}, s{sA}, 10",
                 I(f"buffer_load_dwordx4 {vr(XR,4)}, v{vL16}, {sr(SX,4)}, s{sT2} offen", vm="ep")]]
    tag_math = L(f"""
        v_add_u32 v{vTAG}, 1, v{vTAG}
        v_and_b32 v{vTAG}, 0x0fff3fff, v{vTAG}
        v_or_b32 v{vTAG}, 0x20000000, v{vTAG}
        s_mov_b32 s{sB}, 0x3f803f80
        v_readfirstlane_b32 s{sTAG}, v{vTAG}
        """)
    def row_math():
        o = []
        for d in range(4):
            o += [f"v_dot2_f32_bf16 v{S1}, v{XR+d}, s{sB}, {'0' if d == 0 else f'v{S1}'}",
                  f"v_dot2_f32_bf16 v{S2}, v{XR+d}, v{XR+d}, {'0' if d == 0 else f'v{S2}'}"]
        o += [f"v_mov_b32 v{XR+1}, v{vTAG}", f"v_permlane32_swap_b32 v{S1}, v{S2}", f"v_add_f32 v{S1}, v{S1}, v{S2}"]
        o += [f"v_add_f32_dpp v{S1}, v{S1}, v{S1} {d} row_mask:0xf bank_mask:0xf"
              for d in ("quad_perm:[1,0,3,2]", "quad_perm:[2,3,0,1]", "row_half_mirror", "row_mirror")]
        o += [f"v_add_f32_dpp v{S1}, v{S1}, v{S1} row_bcast:15 row_mask:0xa bank_mask:0xf"]
        o += L(f"""
        v_mul_f32 v{S1}, {fx(1/512)}, v{S1}
        v_readlane_b32 s{sB}, v{S1}, 31
        v_readlane_b32 s{sC}, v{S1}, 63
        v_mul_f32 v{S1}, s{sB}, s{sB}
        v_sub_f32 v{S1}, s{sC}, v{S1}
        v_max_f32 v{S1}, 0, v{S1}
        v_cvt_pk_bf16_f32 v{S1}, v{S1}, v{S1}
        v_lshlrev_b32 v{S1}, 16, v{S1}
        v_add_f32 v{S1}, {fx(1e-5)}, v{S1}
        v_cvt_pk_bf16_f32 v{S1}, v{S1}, v{S1}
        v_lshlrev_b32 v{S1}, 16, v{S1}
        v_sqrt_f32 v{S1}, v{S1}
        s_lshl_b32 s{sA}, s{sA}, 3
        v_cvt_pk_bf16_f32 v{XR}, v{S1}, -s{sB}
        s_add_u32 s{sA}, s{sA}, {WS_RS}
        """)
        if "nors" not in opt: o += [one(f"buffer_store_dwordx2 {vr(XR,2)}, off, {sr(SWS,4)}, s{sA} sc1", vm="rs", wvm="wps")]
        return o
    def h_load(t):
        return [[f"s_and_b32 s{sT2}, s{sW}, 3", f"s_lshl_b32 s{sT2}, s{sT2}, 10",
                 I(f"buffer_load_dwordx4 {vr(vHE,4)}, v{vL16}, {sr(SH,4)}, s{sT2} offen{NTE}", vm="hl")],
                [f"s_and_b32 s{sT2}, s{sW}, 3", f"s_lshl_b32 s{sT2}, s{sT2}, 10",
                 f"s_sub_u32 s{sT2}, s{sT2}, 4", f"v_add_u32 v{t}, s{sT2}, v{vL16}",
                 I(f"buffer_load_dword v{vHP}, v{t}, {sr(SH,4)}, 0 offen{NTF}", vm="hl")]]
    vZ4 = vHE + 12
    h_math = ([I(f"v_alignbit_b32 v{vHO_}, v{vHE}, v{vHP}, 16", wvm="hl")] +
              [f"v_alignbit_b32 v{vHO_+d}, v{vHE+d}, v{vHE+d-1}, 16" for d in range(1, 4)] +
              [f"v_mov_b32 v{vZ4+d}, 0" for d in range(4)] + [L(f"""
        s_lshr_b32 s{sT2}, s{sW}, 2
        s_mul_i32 s{sT2}, s{sT2}, {CVCH}
        s_add_u32 s{sT2}, s{sT2}, {L_CV}
        v_min_u32 v{vHP+1}, 35, v0
        v_lshlrev_b32 v{vHP+1}, 4, v{vHP+1}
        v_lshrrev_b32 v{vHP}, 5, v0
        v_lshl_add_u32 v{vHP+1}, v{vHP}, 12, v{vHP+1}
        v_add_u32 v{vHP+1}, s{sT2}, v{vHP+1}
        s_and_b32 s{sT3}, s{sW}, 3
        s_lshl_b32 s{sT3}, s{sT3}, 10
        s_add_u32 s{sT2}, s{sT2}, s{sT3}
        v_add_u32 v{vHP}, s{sT2}, v{vL16}
        """)])
    h_write = [I(f"ds_write_b128 v{vHP}, {vr(vHE,4)} offset:4608", lg="hw"),
               I(f"ds_write_b128 v{vHP}, {vr(vHO_,4)} offset:{4608+4160}", lg="hw"),
               I(f"ds_write_b128 v{vHP+1}, {vr(vZ4,4)} offset:4096", lg="hw")]
    vFL, vFA = 18, 19
    def wf_addr_(sE, vFA, vFL): return L(f"""
        s_lshl_b32 s{sT2}, s{sCT2}, 3
        s_add_u32 s{sT2}, s{sT2}, s{sW}
        s_and_b32 s{sE}, s{sCT2}, 6
        s_lshl_b32 s{sE}, s{sE}, 1
        s_add_u32 s{sE}, s{sE}, s{sWC}
        s_lshl_b32 s{sE}, s{sE}, 1
        s_and_b32 s{sT3}, s{sCT2}, 1
        s_add_u32 s{sE}, s{sE}, s{sT3}
        s_lshl_b32 s{sE}, s{sE}, 4
        s_add_u32 s{sE}, s{sE}, s{sWR}
        s_lshl_b32 s{sE}, s{sE}, 5
        s_add_u32 s{sE}, s{sE}, {WS_RS + 64 + 4 + (16384 if oi("rl", -1) >= 0 else 0)}
        s_mul_i32 s{sT2}, s{sT2}, 28672
        s_mul_i32 s{sT3}, s{sHI}, 12288
        s_add_u32 s{sT2}, s{sT2}, s{sT3}
        s_add_u32 s{sT2}, s{sT2}, {WS_WT}
        s_lshl_b32 s{sT3}, s{sRBL}, 10
        s_add_u32 s{sMO}, s{sT2}, s{sT3}
        s_xor_b32 s{sMO+1}, s{sMO}, 1024
        s_xor_b32 s{sMO+2}, s{sMO}, 2048
        s_xor_b32 s{sMO+3}, s{sMO}, 3072
        v_min_u32 v{vFA}, 27, v0
        v_and_b32 v{vFL}, 28, v{vFA}
        v_add_u32 v{vFA}, v{vFA}, v{vFL}
        v_lshlrev_b32 v{vFA}, 3, v{vFA}
        """)
    wf_addr = wf_addr_(sE, vFA, vFL)
    wf_ld = f"buffer_load_dword v{vFL}, v{vFA}, {sr(SWS,4)}, s{sE} offen sc1"
    def wd_loads():
        o = []
        for i in range(28):
            ks, mt = divmod(i, 4)
            g = []
            if i == 16:
                g += [f"s_mul_i32 s{sT3}, s{sHI}, 28672"] + [f"s_sub_u32 s{sMO+m}, s{sMO+m}, s{sT3}" for m in range(4)]
            g += [f"s_add_u32 s{sT3}, s{sMO+mt}, {4096*ks}",
                  I(f"buffer_load_dwordx4 {vr(WDF(i),4)}, v{vL16}, {sr(SWS,4)}, s{sT3} offen sc1" if i < oi("wx", 99) else
                    f"buffer_load_dword {vr(WDF(i),1)}, off, {sr(SWS,4)}, s{sT3} sc1", vm=f"wd{ks}")]
            o.append(g)
        return o
    vKA, vKL = 29, 30
    kf_addr = [f"v_and_b32 v{vKA}, 31, v0", f"v_lshlrev_b32 v{vKA}, 2, v{vKA}", f"s_lshl_b32 s{sC}, s{sXCD}, 7",
               f"s_add_u32 s{sC}, s{sC}, {WS_FKV}"]
    kf_ld = f"buffer_load_dword v{vKL}, v{vKA}, {sr(SWS,4)}, s{sC} offen sc1"
    def r_dma(t):
        return L(f"""
        s_lshr_b32 s{sT2}, s{sW}, 2
        s_mul_i32 s{sT3}, s{sT2}, {CVCH - 4096}
        s_lshl_b32 s{sT2}, s{sT2}, 4
        v_lshl_add_u32 v{t}, v0, 5, s{sT2}
        s_lshl_b32 s{sT2}, s{sW}, 10
        s_add_u32 s{sT3}, s{sT3}, s{sT2}
        s_add_u32 m0, s{sT3}, {L_CV}
        s_and_b32 s{sT2}, s{sM0X}, 0x1800
        s_lshl_b32 s{sT3}, s{sCP}, 13
        s_add_u32 s{sT2}, s{sT2}, s{sT3}
        s_add_u32 s{sT2}, s{sT2}, {WS_KV}
        """) + [I(f"buffer_load_dwordx4 v{t}, {sr(SWS,4)}, s{sT2} offen sc1 lds", vm="R")]

    WL = wd_loads()
    wsched = {17: 1, 18: 1, 19: 1, 21: 1, 22: 1, 23: 1, 24: 1, 25: 2, 26: 2, 27: 2, 29: 1, 30: 2, 31: 2}
    wsched = {k: n for k, n in wsched.items() if k >= oi("pw", 20) + 3}
    for o in opt:
        if o.startswith("ws="): wsched = {32 - len(o[3:]) + i: int(ch) for i, ch in enumerate(o[3:])}
    assert min(k for k, n in wsched.items() if n) >= oi("pw", 20) + oi("pd", 3)
    wepi = [int(x) for x in str(oi("we", 3320)).zfill(4)]
    NPRE = sum(wsched.values()) + sum(wepi)
    vq_pro = list(a.vq)
    a(f"s_cmp_eq_u32 s{sISG}, 0\ns_cbranch_scc1 {AUX}")
    if "nogemm" in opt: a(f"s_branch {END}")
    SP, SPS = oi("sp", 0), oi("ss", 64)
    h_pre = [f"s_and_b32 s{sT2}, s{sW}, 3", f"s_lshl_b32 s{sT2}, s{sT2}, 10"] + [
        f"s_buffer_load_dword s{sCNT}, {sr(SH,4)}, s{sT2} offset:{o}" for o in range(0, 1024, SPS)]
    if SP == 1: a(h_pre)
    a(chunk_dma(0))
    if SP == 2: a(h_pre)
    WP, vWPA, vWPS, vWPL, CSA, CS1 = 208, 212, 213, 214, 240, 236
    sWPS, sWPF, sWPM = SSH, SSH + 1, SSH + 3
    a(f"""
    v_and_b32 v23, 3, v20
    v_lshrrev_b32 v26, 5, v0
    v_lshl_add_u32 v23, v26, 3, v23
    v_lshlrev_b32 v26, 4, v22
    v_lshl_add_u32 v{vWPL}, v23, 10, v26
    s_mov_b32 s{sE}, s{sXCD}
    s_lshl_b32 s{sT2}, s{sRBL}, 1
    s_add_u32 s{sT2}, s{sT2}, s{sB}
    s_mul_i32 s{sT3}, s{sT2}, 7
    s_add_u32 s{sT3}, s{sT3}, s{sCT2}
    s_mul_i32 s{sWPS}, s{sE}, 56
    s_add_u32 s{sWPS}, s{sWPS}, s{sT3}
    s_lshl_b32 s{sWPS}, s{sWPS}, 12
    s_lshl_b32 s{sT1}, s{sC}, 8
    s_add_u32 s{sWPS}, s{sWPS}, s{sT1}
    s_add_u32 s{sWPS}, s{sWPS}, {WS_WT}
    s_lshl_b32 s{sT3}, s{sT3}, 15
    s_lshl_b32 s{sT1}, s{sWR}, 12
    s_add_u32 s{sT3}, s{sT3}, s{sT1}
    s_lshl_b32 s{sT1}, s{sWC}, 14
    s_and_b32 s{sT1}, s{sT1}, 0x4000
    s_add_u32 s{sT3}, s{sT3}, s{sT1}
    s_lshl_b32 s{sT1}, s{sE}, 7
    s_add_u32 s{sWPF}, s{sT3}, s{sT1}
    s_lshl_b32 s{sT2}, s{sW}, 10
    s_add_u32 s{sWPM}, s{sT2}, {L_WP}
    s_barrier
    """)
    wp_load = [f"s_mov_b32 m0, s{sWPM}", I(f"buffer_load_dwordx4 v{vWPL}, {sr(SWD,4)}, s{sWPF} offen{NTH} lds", vm="wpl")]
    SWL, SWR, SRS, SPW, SHL, SPF, SRL = oi("wl", -1), oi("wr", 4), oi("rs", 11), oi("pw", 20), oi("hl", 9), oi("pf", 0), oi("rl", -1)
    SKF, SRD = oi("kf", 28), oi("rd", 32)
    if SWL < 0: a(wp_load)
    a(f"""
    v_lshlrev_b32 v23, 7, v24
    v_lshl_add_u32 v23, v21, 5, v23
    v_lshl_add_u32 v23, v25, 3, v23
    v_add_u32 v{vWPA}, s{sWPM}, v23
    """)
    C1E = oi("c1e", 2)
    if SRL >= 0: a(row_load()[0]); a(row_load()[1][:4])
    elif "rowl" not in opt: a(row_load())
    if SHL == -3: a(h_load(27))
    a(chunk_dma(1)[:C1E])
    if SHL == -4: a(h_load(27))
    if "th" in opt: a(I(f"buffer_load_dword v{vHP}, off, {sr(SH,4)}, 0", vm="th"))
    a(f"""
    v_and_b32 v23, 15, v0
    v_lshlrev_b32 v23, 4, v23
    v_lshl_add_u32 v{vWPS}, v21, 10, v23
    v_and_b32 v24, 31, v0
    v_lshrrev_b32 v25, 5, v0
    v_bfe_u32 v22, v0, 1, 3
    v_xor_b32 v22, v22, v25
    v_lshlrev_b32 v22, 4, v22
    v_lshl_add_u32 v22, v24, 7, v22
    s_lshl_b32 s{sT0}, s{sWR}, 13
    v_add_u32 v{vXB}, s{sT0}, v22
    v_xor_b32 v{vXB+1}, 32, v{vXB}
    v_xor_b32 v{vXB+2}, 64, v{vXB}
    v_xor_b32 v{vXB+3}, 96, v{vXB}
    v_add_u32 v{vXB+4}, {2*STAGE}, v{vXB}
    v_add_u32 v{vXB+5}, {2*STAGE}, v{vXB+1}
    v_add_u32 v{vXB+6}, {2*STAGE}, v{vXB+2}
    v_add_u32 v{vXB+7}, {2*STAGE}, v{vXB+3}
    v_bfe_u32 v23, v0, 2, 2
    v_lshl_add_u32 v24, v25, 3, v23
    v_lshlrev_b32 v24, 8, v24
    v_xor_b32 v23, s{sWC}, v23
    v_lshl_add_u32 v24, v23, 6, v24
    v_bfe_u32 v23, v0, 4, 1
    v_lshl_add_u32 v24, v23, 5, v24
    v_and_b32 v23, 3, v0
    v_lshl_add_u32 v24, v23, 3, v24
    v_add_u32 v{vWB}, 16384, v24
    v_add_u32 v{vWB+1}, {STAGE+16384}, v24
    v_add_u32 v{vWB+2}, {2*STAGE+16384}, v24
    v_mov_b32 v{CS1}, 0x3f803f80
    v_mov_b32 v{CS1+1}, 0x3f803f80
    v_mov_b32 v{CS1+2}, 0x3f803f80
    v_mov_b32 v{CS1+3}, 0x3f803f80
    """)
    stamp("K0")
    if "dmaonly" in opt:
        DD = oi("dd", 2)
        if C1E < 6: a(chunk_dma(1)[0][:4]); a(chunk_dma(1)[C1E:])
        for c in range(2, DD): a(chunk_dma(c))
        for c in range(8):
            a(I(wvm=f"c{c}"))
            if "dnb" not in opt: a("s_barrier")
            stamp(f"B{c}")
            if c + DD < 8: a(chunk_dma(c + DD))
        a("s_branch L_prof")
        opt = [o for o in opt if not o.startswith("st=")] + ["st=end"]

    def F(s): return FR + 16 * (s & 1)
    def reads(s):
        c, j = divmod(s, 4)
        st = c % 3
        xb = vXB + j + (4 if st == 2 else 0); im = STAGE if st == 1 else 0
        wb = vWB + st; wo = 4096 * j
        f = F(s); t = f"r{s}"
        return [I(f"ds_read_b64_tr_b16 {vr(f,2)}, v{wb} offset:{wo}", lg=t),
                I(f"ds_read_b64_tr_b16 {vr(f+2,2)}, v{wb} offset:{wo+1024}", lg=t),
                I(f"ds_read_b128 {vr(f+8,4)}, v{xb} offset:{im}", lg=t),
                I(f"ds_read_b64_tr_b16 {vr(f+4,2)}, v{wb} offset:{wo+16384}", lg=t),
                I(f"ds_read_b64_tr_b16 {vr(f+6,2)}, v{wb} offset:{wo+17408}", lg=t),
                I(f"ds_read_b128 {vr(f+12,4)}, v{xb} offset:{im+4096}", lg=t)]
    def mfmas(A, B, first=False, par=0):
        out = []
        for nt in range(2):
            for m in range(2):
                d = ACC + 32 * m + 16 * nt
                if "m16x" in opt:
                    for h in range(2):
                        e = d + 8 * (par & 1) + 4 * h
                        out.append(f"v_mfma_f32_16x16x32_bf16 {vr(e,4)}, {vr(A[m ^ h],4)}, {vr(B[nt],4)}, {'0' if par < 2 else vr(e,4)}")
                    continue
                out.append(f"v_mfma_f32_32x32x16_bf16 {vr(d,16)}, {vr(A[m],4)}, {vr(B[nt],4)}, {'0' if first else vr(d,16)}")
        if "snk" in opt: out = [out[0], out[1], out[3], out[2]]
        if "snb" in opt: out = [out[0], out[2], out[3], out[1]]
        if "sna" in opt: out = [out[0], out[2], out[1], out[3]]
        return out
    def cs_mfma(p):
        o = []
        for m in range(2):
            o += [f"s_bitcmp1_b32 s{sCSM}, {m}", f"s_cbranch_scc0 L_cs{p}_{m}",
                  f"v_mfma_f32_32x32x16_bf16 {vr(CSA,16)}, {vr(CS1,4)}, {vr(F(p)+4*m,4)}, {'0' if p == 0 else vr(CSA,16)}",
                  f"L_cs{p}_{m}:"]
        return o
    sCSB = SSH + 2
    cs_store = [L(f"""
        s_lshl_b32 s{sCSB}, s{sCB}, 2
        s_add_u32 s{sCSB}, s{sCSB}, s{sWC}
        s_lshl_b32 s{sCSB}, s{sCSB}, 10
        s_add_u32 s{sCSB}, s{sCSB}, {WS_CS}
        s_cmp_eq_u32 s{sCSM}, {'s%d' % sCSM if "nocs" in opt else 0}
        s_cbranch_scc1 L_nocs
        v_cvt_pk_bf16_f32 v{CSA+1}, v{CSA}, v{CSA}
        s_mul_i32 s{sT2}, s{sWR}, 57344
        v_lshlrev_b32 v{CSA+1}, 16, v{CSA+1}
        s_lshr_b32 s{sT3}, s{sKEY}, 1
        v_sub_f32 v{CSA+1}, v{CSA}, v{CSA+1}
        s_lshl_b32 s{sT3}, s{sT3}, 3
        v_cvt_pk_bf16_f32 v{CSA}, v{CSA}, v{CSA+1}
        s_add_u32 s{sT2}, s{sT2}, s{sT3}
        v_mov_b32 v{CSA+1}, v{vTAG}
        s_add_u32 s{sT2}, s{sT2}, s{sCSB}
        v_lshlrev_b32 v{CSA+2}, 5, v0
        s_mov_b32 exec_hi, 0
        buffer_store_dwordx2 {vr(CSA,2)}, v{CSA+2}, {sr(SWS,4)}, s{sT2} offen sc1
        s_mov_b32 exec_hi, -1
        L_nocs:
        """)]
    EG, EU, ER, EB0, EB1 = 128, 132, 20, 136, 140
    ex_addr = L(f"""
        v_and_b32 v24, 31, v0
        v_lshrrev_b32 v25, 5, v0
        v_lshlrev_b32 v25, 4, v25
        v_lshl_add_u32 v{vX0}, v24, 5, v25
        v_and_b32 v24, 15, v0
        v_lshrrev_b32 v25, 4, v0
        v_lshlrev_b32 v25, 3, v25
        v_lshl_add_u32 v{vX1}, v24, 5, v25
        s_lshl_b32 s{sKEY}, s{sRB}, 1
        s_add_u32 s{sKEY}, s{sKEY}, s{sWR}
        s_lshl_b32 s{sWB}, s{sKEY}, 9
        s_add_u32 s{sWB}, s{sWB}, {WS_RS}
        s_add_u32 s{sXB}, s{sCSB}, 57344
        """)
    ex_ld = [f"buffer_load_dwordx4 {vr(EG,4)}, v{vX0}, {sr(SWS,4)}, s{sCSB} offen sc1",
             f"buffer_load_dwordx4 {vr(EU,4)}, v{vX0}, {sr(SWS,4)}, s{sXB} offen sc1",
             f"buffer_load_dwordx2 {vr(ER,2)}, v{vX1}, {sr(SWS,4)}, s{sWB} offen sc1"]
    ex_check = L(f"""
        v_min3_u32 v24, v{EG+1}, v{EG+3}, v{ER+1}
        v_max3_u32 v25, v{EG+1}, v{EG+3}, v{ER+1}
        v_min3_u32 v24, v24, v{EU+1}, v{EU+3}
        v_max3_u32 v25, v25, v{EU+1}, v{EU+3}
        v_cmp_ne_u32 vcc, s{sTAG}, v24
        v_cmp_ne_u32 s[{sT0}:{sT1}], s{sTAG}, v25
        s_or_b64 vcc, vcc, s[{sT0}:{sT1}]
        """)
    AP, BP, SS, vHO, TM = 22, 24, 26, 28, FR
    RM = row_math()
    def part(lst, i, n): return lst[len(lst) * i // n:len(lst) * (i + 1) // n]
    def os_(k, d=""): return ([o[len(k):] for o in opt if o.startswith(k)] + [d])[0]
    W = [0]
    def cum(t): return [sum(int(x) for x in t[:i]) for i in range(5)]
    def step(s, role):
        wi = W[0]
        c, j = divmod(s, 4)
        fill = []; pre = []; post = []
        if j == 0 and s < 32:
            a(I(wvm=f"c{c}", wlg="*"))
            a("s_barrier")
            stamp(f"B{c}")
            PR_ = os_(f"Rq{role}=")
            if PR_ and (c == 0 or PR_[c] != PR_[c - 1]): a(f"s_setprio {PR_[c]}")
            if "g1only" in opt and s == 20: a("s_waitcnt vmcnt(0)\ns_branch L_prof")
        DR = os_("drop=")
        if s == SWL: pre += [wp_load]
        if s == SPW: pre += [ap(wf_ld, 28, "apw", "fw")]
        if s == SKF: pre += [ap(kf_ld, 32, "apk", "kf")]
        if s == 28: pre += [I(x, vm="ex") for x in ex_ld]
        if s == 0:
            assert C1E in (0, 2, 4, 6)
            if 0 < C1E < 6: fill += [chunk_dma(1)[0][:4]]
            fill += chunk_dma(1)[C1E:]
            if "rowl" in opt: fill += row_load()
            if SHL == -5: fill += h_load(27)
        if c <= 5:
            cu = cum(os_(f"Re{role}=", "0222") if c == 0 and C1E < 6 else os_(f"Rd{role}{c}=", os_(f"Rd{role}=", "2121")))
            assert cu[4] == 6
            g = chunk_dma(c + 2)[cu[j]:cu[j + 1]]
            pm = os_(f"Rm{role}=", "0000")[j]
            hp = os_(f"Rp{role}=", "0")
            if hp[0] != "0" and g:
                if pm == "0" and s: g = [[f"s_setprio {hp[0]}", x, "s_setprio 0"] for x in g]
                else: g = [f"s_setprio {hp[0]}"] + g + ["s_setprio 0"]
            if s == 0 or pm == "0": fill += g
            elif pm == "1": pre += g
            else: post += g
        IL = os_("il=", "")
        RD = reads(s) if s < 32 else []
        if IL:
            for x, t in zip(RD, "aaabbc"): x.lg += t
        if not IL or s == 0: a(RD)
        wp_rd = [I(f"ds_read_b64_tr_b16 {vr(WP,2)}, v{vWPA}", lg="wp", wvm="wpl"),
                 I(f"ds_read_b64_tr_b16 {vr(WP+2,2)}, v{vWPA} offset:512", lg="wp")]
        wp_st = I(f"buffer_store_dwordx4 {vr(WP,4)}, v{vWPS}, {sr(SWS,4)}, s{sWPS} offen sc1", vm="wps", wlg="wp")
        if s == 0:
            a(pre + fill + (wp_rd if SWR == 0 else [])); return
        p = s - 1
        v = []
        if s in (SHL, SHL + oi("hd", 2)) and "h" not in DR: fill += [h_load(31)[(s - SHL) // oi("hd", 2)]]
        if s == oi("tg", 4) and "t" not in DR: v += [I(tag_math[0], wvm="ep")] + tag_math[1:]
        if s == SWR and "w" not in DR: fill += wp_rd
        if s == SWR + 1 and "w" not in DR: fill = [wp_st] + fill if SWR == 0 else fill + [wp_st]
        RM0, RMN = oi("rm", 5), oi("rn", 5)
        if s == SRL:
            x = row_load()[1][4:]; x[-1].vm = "xr"; fill += [x]
        if SRL >= 0 and s == RM0: v += [I(f"s_mov_b32 s{sB}, 0x3f803f80", wvm="xr")]
        if SRL >= 0 and s == oi("wf", 11):
            fill += [[f"s_lshl_b32 s{sT2}, s{sA}, 3", f"s_add_u32 s{sT2}, s{sT2}, {WS_RS + 16384}"] +
                     one(f"buffer_store_dword v{vTAG}, off, {sr(SWS,4)}, s{sT2} offset:4 sc1", vm="wf", wvm="wps")]
        if RM0 <= s < RM0 + RMN and "t" not in DR: v += part(RM[:-1], s - RM0, RMN)
        if s == SRS and "r" not in DR: fill = [RM[-1]] + fill if "rsf" in opt else fill + [RM[-1]]
        if s == 10 and "c" not in DR: v += cs_store
        if s == 11 and "a" not in DR: v += [wf_addr]
        HM, HW = oi("hm", 21), oi("hw", 24)
        if HM <= s <= HM + 2: v += part(h_math, s - HM, 3)
        if s == SPW + oi("pd", 3): pre += [[I(wvm="fw")] + ne(vFL) + ["s_cbranch_scc0 L_fw_ok"] + spin("fw", ap(wf_ld, 28, "apw"), ne(vFL))]
        if s == 19: v += kf_addr
        if HW <= s <= HW + 2: v += [h_write[s - HW]]
        if s == 27: v += ex_addr
        if s == SRD: fill = [[I(wvm="kf")] + ne(vKL) + [f"s_cselect_b32 s{sOK}, 0, 1"] +
                             ([f"s_cselect_b64 vcc, 0, -1"] + r_dma(24)[:-1] + ["s_mov_b64 exec, vcc", r_dma(24)[-1], "s_mov_b64 exec, -1"] if "mskr" in opt else r_dma(oi("rt", 24)))] + fill
        if s == 30: v += [f"v_mov_b32 v{r}, 0" for r in (EB0 + 1, EB0 + 3, EB1 + 1, EB1 + 3)] + [f"s_mov_b32 s{sB}, 0x03020302"]
        n = wsched.get(s, 0); fill += WL[wi:wi + n]; W[0] += n
        if s == 32:
            a(I(wvm="ex"))
            a(ex_check + ["s_cbranch_scc0 L_ex_ok"] + spin("ex", ex_ld, ex_check))
            v += L(f"""
            v_mov_b32 v{ER+1}, v{ER}
            v_permlane32_swap_b32 v{ER}, v{ER+1}
            v_perm_b32 v{EB0}, v{ER}, v{ER}, s{sB}
            v_perm_b32 v{EB0+2}, v{ER}, v{ER}, s{sB}
            v_perm_b32 v{EB1}, v{ER+1}, v{ER+1}, s{sB}
            v_perm_b32 v{EB1+2}, v{ER+1}, v{ER+1}, s{sB}
            v_lshlrev_b32 v{ER}, 16, v{ER}
            v_lshlrev_b32 v{ER+1}, 16, v{ER+1}
            """)
        hd = []
        if c <= 5 and os_(f"Rm{role}=", "0000")[j] == "1": hd, pre = pre, []
        fill = pre + (mix(v, fill) if len(v) >= len(fill) else mix(fill, v)) if (v and fill) else pre + v + fill
        a(hd)
        f = F(p)
        MM = mfmas((f, f + 4), (f + 8, f + 12), p == 0, p)
        if IL:
            nm = len(MM)
            cu2 = lambda t: [sum(int(x) for x in t[:i]) for i in range(nm + 1)]
            rc = cu2(IL[:nm]); fc = cu2(IL[nm:2 * nm])
            assert rc[nm] == 6
            for i in range(nm):
                a(I(MM[i], wlg=f"r{p}" + ("abcc" if nm == 4 else "abbbcccc")[i]))
                a(RD[rc[i]:rc[i + 1]])
                a(fill[(len(fill) * fc[i] + fc[nm] // 2) // fc[nm]:(len(fill) * fc[i + 1] + fc[nm] // 2) // fc[nm]])
        else:
            a(I(wlg=f"r{p}"))
            a(mix(MM, fill))
        if p < 8 and "nocs" not in opt and "c" not in DR: a(cs_mfma(p))
        a(post)
        stamp(f"s{s}")
    if "split" in opt:
        a(f"s_cmp_lt_u32 s{sW}, 4\ns_cbranch_scc0 L_g1y")
        sv = (list(a.vq), list(a.lq), W[0])
        for s in range(24): step(s, "o")
        a(I(wvm="c6", wlg="*"))
        a("s_branch L_g1m")
        vo = list(a.vq)
        a("L_g1y:")
        a.vq, a.lq, W[0] = sv
        i0 = len(a.lines)
        for s in range(24): step(s, "y")
        a(I(wvm="c6", wlg="*"))
        defs = [x[:-1] for x in a.lines[i0:] if x.endswith(":")]
        for i in range(i0, len(a.lines)):
            for d in defs: a.lines[i] = re.sub(rf"\b{d}\b", d + "_y", a.lines[i])
        a("L_g1m:")
        a.vq = [tuple(set(vo + a.vq))]
        for s in range(24, 33): step(s, "o")
    else:
        for s in range(33): step(s, "o")
    wi = W[0]
    fill = []
    EO = oi("eo", 2)
    cA, cB, cS = ([lambda nt, b=b: b + nt for b in (AP, BP, SS)] if EO == 0 else
                  [lambda nt, b=b: FR + 16 + 6 * nt + b for b in (0, 2, 4)])
    for nt in range(2):
        fill += [f"v_rcp_f32 v{TM+nt}, v{ER+nt}", f"v_mul_f32 v{cS(nt)}, v{ER+nt}, v{ER+nt}"]
        if EO == 2: fill += [f"v_mul_f32 v{cS(nt)+1}, v{ER+nt}, v{ER+nt}"]
    for nt in range(2):
        fill += [f"v_mul_f32 v{cA(nt)}, {fx(-KC)}, v{TM+nt}"]
        if EO == 2: fill += [f"v_mul_f32 v{cA(nt)+1}, {fx(-KC)}, v{TM+nt}"]
        fill += [f"v_mul_f32 v{TM+nt}, v{TM+nt}, v{TM+nt}",
                 f"v_mul_f32 v{TM+nt}, {fx(0.044715)}, v{TM+nt}", f"v_mul_f32 v{cB(nt)}, v{cA(nt)}, v{TM+nt}"]
        if EO == 2: fill += [f"v_mul_f32 v{cB(nt)+1}, v{cA(nt)}, v{TM+nt}"]
    sHF = SK
    fill += L(f"""
    v_bfe_u32 v{TM+8}, v0, 4, 1
    v_mul_u32_u24 v{TM+8}, 57344, v{TM+8}
    v_and_b32 v{TM+9}, 15, v0
    v_lshl_add_u32 v{TM+8}, v{TM+9}, 4, v{TM+8}
    v_lshrrev_b32 v{TM+9}, 5, v0
    v_lshl_add_u32 v{vHO}, v{TM+9}, 8, v{TM+8}
    s_mul_i32 s{sXB}, s{sKEY}, {4*56*1024}
    s_add_u32 s{sXB}, s{sXB}, s{sCSB}
    s_add_u32 s{sXB}, s{sXB}, {WS_H - WS_CS}
    s_add_u32 s{sWB}, s{sXB}, {2*56*1024}
    s_sub_u32 s{sHF}, s{sCSB}, {WS_CS}
    s_lshr_b32 s{sHF}, s{sHF}, {10 - FS}
    s_mul_i32 s{sT0}, s{sKEY}, {56 << FS}
    s_add_u32 s{sHF}, s{sHF}, s{sT0}
    s_add_u32 s{sHF}, s{sHF}, {WS_FH}
    """)
    a(mix(mfmas((EG, EU), (EB0, EB1), False, 2), fill))
    stamp("B8")
    def epi(G, U, nt, rr, pk, plain=False):
        o = []
        t = {r: TM + 2 * i for i, r in enumerate(rr)}
        P = lambda x: vr(x, 2)
        s2 = (f"op_sel:[0,{nt},{nt}] op_sel_hi:[1,{nt},{nt}]", "op_sel_hi:[1,0,0]", "")[EO]
        AP, BP, SS = [f(nt) & ~1 for f in (cA, cB, cS)]
        if plain:
            e = [(t[r] + i, G + r + i, U + r + i) for r in rr for i in range(2)]
            o += [f"v_mul_f32 v{x}, v{g}, v{g}" for x, g, u in e]
            o += [f"v_fma_f32 v{x}, v{x}, v{BP}, v{AP}" for x, g, u in e]
            o += [f"v_mul_f32 v{x}, v{x}, v{g}" for x, g, u in e]
            o += mix([f"v_exp_f32 v{x}, v{x}" for x, g, u in e], [f"v_mul_f32 v{u}, v{u}, v{g}" for x, g, u in e])
            o += [f"v_fma_f32 v{x}, v{x}, v{SS}, v{SS}" for x, g, u in e]
            o += [f"v_rcp_f32 v{x}, v{x}" for x, g, u in e]
            o += [f"v_mul_f32 v{u}, v{u}, v{x}" for x, g, u in e]
            o += [f"v_cvt_pk_bf16_f32 v{pk+i}, v{U+r}, v{U+r+1}" for i, r in enumerate(rr)]
            return o
        o += [f"v_pk_mul_f32 {P(t[r])}, {P(G+r)}, {P(G+r)}" for r in rr]
        o += [f"v_pk_fma_f32 {P(t[r])}, {P(t[r])}, {P(BP)}, {P(AP)} {s2}" for r in rr]
        o += [f"v_pk_mul_f32 {P(t[r])}, {P(t[r])}, {P(G+r)}" for r in rr]
        o += mix([f"v_exp_f32 v{t[r]+i}, v{t[r]+i}" for r in rr for i in range(2)],
                 [f"v_pk_mul_f32 {P(U+r)}, {P(U+r)}, {P(G+r)}" for r in rr])
        o += [f"v_pk_fma_f32 {P(t[r])}, {P(t[r])}, {P(SS)}, {P(SS)} {s2}" for r in rr]
        o += [f"v_rcp_f32 v{t[r]+i}, v{t[r]+i}" for r in rr for i in range(2)]
        o += [f"v_pk_mul_f32 {P(U+r)}, {P(U+r)}, {P(t[r])}" for r in rr]
        o += [f"v_cvt_pk_bf16_f32 v{pk+i}, v{U+r}, v{U+r+1}" for i, r in enumerate(rr)]
        return o
    HSP = ("sc1", "sc0 sc1", "sc1 nt", "sc0 sc1 nt", "", "nt")[oi("hsp", 0)]
    for nt in range(2):
        G = ACC + 16 * nt; U = ACC + 32 + 16 * nt
        for h in range(2):
            pk = TM + 8 + 4 * h
            seq = epi(G, U, nt, range(8 * h, 8 * h + 8, 2), pk, 2 * nt + h < oi('npl', 0))
            n = wepi[2 * nt + h]
            ex = WL[wi:wi + n]; wi += n
            q = 33 + 2 * nt + h
            if oi("hm", 21) == q: ex = ex + h_math
            if oi("hw", 24) == q: ex = ex + h_write
            a(mix(seq, ex))
            so = sXB if nt == 0 else sWB
            a(I(f"buffer_store_dwordx4 {vr(pk,4)}, v{vHO}, {sr(SWS,4)}, s{so} offen offset:{512*h} {HSP}", vm="hs"))
            stamp(f"e{2*nt+h}")
    assert wi == NPRE
    a(f"s_branch {JOIN}")
    vq_join = list(a.vq)

    a(f"{AUX}:")
    if "noaux" in opt: a(f"s_branch {END}")
    a.vq, a.lq = list(vq_pro), []
    vKa, vKb, TP, vT, vKS, KR, KT = 1, 2, 32, 6, 10, 48, 96
    sKO, sKL = sXB, sWB
    a(row_load())
    AXL = oi("axl", 0)
    if AXL & 2: a(h_load(27))
    if AXL & 1: a(I(wvm="ep")); a(tag_math); a(row_math())
    if AXL & 4: a(I(wvm="*"))
    if oi("asl", 0): a(f"s_sleep {oi('asl', 0)}")
    a(f"""
    s_xor_b32 s{sCB}, s{sXCD}, s{sW}
    v_and_b32 v23, 1, v21
    v_lshlrev_b32 v23, 1, v23
    v_xor_b32 v23, v22, v23
    v_lshlrev_b32 v23, 4, v23
    v_lshl_add_u32 v{vKa}, v20, 10, v23
    {f"v_lshlrev_b32 v{vKa}, 4, v0" if "kvlin" in opt else ""}
    v_xor_b32 v{vKb}, 64, v{vKa}
    s_lshl_b32 s{sKO}, s{sRBL}, 3
    s_add_u32 s{sKO}, s{sKO}, s{sW}
    s_mov_b32 s{sKEY}, s{sKO}
    s_lshl_b32 s{sKO}, s{sKO}, 16
    s_lshl_b32 s{sT0}, s{sCB}, {13 if "kvlin" in opt else 7}
    s_add_u32 s{sKO}, s{sKO}, s{sT0}
    s_mul_i32 s{sKL}, s{sW}, 17408
    s_mov_b32 m0, s{sKL}
    s_cmp_eq_u32 s{sKEY}, 0
    s_cbranch_scc1 L_halo0
    s_sub_u32 s{sT0}, s{sKO}, 8192
    buffer_load_dwordx4 v{vKa}, {sr(SK,4)}, s{sT0} offen lds
    s_branch L_halo1
    L_halo0:
    v_mov_b32 v40, 0
    v_mov_b32 v41, 0
    v_mov_b32 v42, 0
    v_mov_b32 v43, 0
    ds_write_b128 v{vL16}, v[40:43]
    L_halo1:
    """)
    def kv_ld(m, b, tag):
        lb = (1 + b) if m == 0 else (9 + b)
        par = (lb & 1) if m == 0 else (b & 1)
        return [f"s_add_u32 m0, s{sKL}, {1024*lb}", f"s_add_u32 s{sT0}, s{sKO}, {(1024 if 'kvlin' in opt else 8192)*b}",
                I(f"buffer_load_dwordx4 v{vKb if par else vKa}, {sr(SV if m else SK,4)}, s{sT0} offen{NTK} lds", vm=tag)]
    for b in range(4): a(kv_ld(0, b, "k0")); a(kv_ld(1, b, "k0"))
    a(f"""
    v_and_b32 v23, 15, v0
    v_lshlrev_b32 v26, 3, v23
    s_lshl_b32 s{sT1}, s{sCB}, 9
    """)
    for cg in range(4):
        a(I(f"buffer_load_dwordx2 {vr(TP+2*cg,2)}, v26, {sr(SSH,4)}, s{sT1} offen offset:{128*cg}", vm="k0"))
    for b in range(4, 8): a(kv_ld(0, b, "k1")); a(kv_ld(1, b, "k1"))
    if not AXL & 2: a(h_load(27))
    stamp("iss", 4)
    a(f"""
    v_lshlrev_b32 v26, 7, v24
    v_lshl_add_u32 v26, v21, 10, v26
    v_lshl_add_u32 v26, v25, 3, v26
    v_lshrrev_b32 v27, 1, v24
    v_lshl_add_u32 v26, v27, 5, v26
    v_and_b32 v27, 1, v21
    v_lshl_add_u32 v26, v27, 6, v26
    v_add_u32 v{vT}, s{sKL}, v26
    v_xor_b32 v{vT+1}, 32, v{vT}
    v_xor_b32 v{vT+2}, 64, v{vT}
    v_xor_b32 v{vT+3}, 96, v{vT}
    v_lshrrev_b32 v26, 1, v23
    v_lshlrev_b32 v26, 13, v26
    v_and_b32 v27, 1, v0
    v_lshl_add_u32 v26, v27, 4, v26
    v_sub_u32 v27, 3, v21
    v_lshl_add_u32 v{vKS}, v27, 5, v26
    s_lshl_b32 s{sKO}, s{sCB}, 18
    s_lshl_b32 s{sT0}, s{sKEY}, 8
    s_sub_u32 s{sKO}, s{sKO}, s{sT0}
    s_add_u32 s{sKO}, s{sKO}, {WS_KV + 8192 - 256}
    """)
    if not AXL & 1: a(I(wvm="ep")); a(tag_math); a(row_math())
    stamp("rs", 1)
    def kv_read(hh, cg):
        r = KR + 10 * cg; t = f"kr{cg}"
        return [I(f"ds_read_b64_tr_b16 {vr(r,2)}, v{vT+cg} offset:{4096*hh+512}", lg=t),
                I(f"ds_read_b64_tr_b16 {vr(r+2,2)}, v{vT+(cg^2)} offset:{4096*hh+1024}", lg=t),
                I(f"ds_read_b64_tr_b16 {vr(r+4,2)}, v{vT+(cg^2)} offset:{4096*hh+1536}", lg=t),
                I(f"ds_read_b64_tr_b16 {vr(r+6,2)}, v{vT+cg} offset:{4096*hh+9216}", lg=t),
                I(f"ds_read_b64_tr_b16 {vr(r+8,2)}, v{vT+cg} offset:{4096*hh+9728}", lg=t)]
    def kv_math(hh, cg):
        r = KR + 10 * cg; q, u, w, pk = KT, KT + 8, KT + 16, KT + 24 + 4 * (cg & 1)
        o = [I(wlg=f"kr{cg}")]
        o += [f"v_alignbit_b32 v{q+i}, v{r+i}, v{r+i-1}, 16" for i in range(1, 6)]
        src = lambda t, back: (r if t & 1 else q) + 2 + t // 2 - back
        for t in (1, 3, 5, 7, 0, 2, 4, 6): o += [f"v_dot2_f32_bf16 v{u+t}, v{src(t,0)}, v{TP+2*cg}, 0"]
        for t in (1, 3, 5, 7, 0, 2, 4, 6): o += [f"v_dot2_f32_bf16 v{u+t}, v{src(t,1)}, v{TP+2*cg+1}, v{u+t}"]
        o += [f"v_and_b32 v{w+t}, 0xffff0000, v{r+6+t//2}" if t & 1 else f"v_lshlrev_b32 v{w+t}, 16, v{r+6+t//2}" for t in range(8)]
        o += [f"v_mul_f32 v{u+t}, v{u+t}, v{w+t}" for t in range(8)]
        o += [f"v_cvt_pk_bf16_f32 v{pk+e}, v{u+7-2*e}, v{u+6-2*e}" for e in range(4)]
        o += [f"s_add_u32 s{sT0}, s{sKO}, {65536*cg}",
              I(f"buffer_store_dwordx4 {vr(pk,4)}, v{vKS}, {sr(SWS,4)}, s{sT0} offen offset:{128*(1-hh)} sc1", vm="ks")]
        return o
    for hh in range(2):
        a(I(wvm=f"k{hh}", wlg="*"))
        stamp("kin", 5 + 2 * hh)
        for cg in range(4): a(kv_read(hh, cg))
        if hh == 0:
            for d in range(8): a(f"v_alignbit_b32 v{TP+d}, v{TP+d}, v{TP+d}, 16")
        for cg in range(4): a(kv_math(hh, cg))
        stamp("km", 6 + 2 * hh)
    a(h_math); a(wf_addr)
    vKA2, vKL2 = 27, 28
    ld2 = f"buffer_load_dword v{vKL2}, v{vKA2}, {sr(SWS,4)}, s{sA} offen sc1"
    a(f"""
    s_lshl_b32 s{sT0}, s{sCB}, 5
    s_add_u32 s{sT0}, s{sT0}, s{sKEY}
    s_lshl_b32 s{sT0}, s{sT0}, 2
    s_add_u32 s{sT0}, s{sT0}, {WS_FKV}
    v_lshlrev_b32 v26, 10, v0
    v_lshlrev_b32 v{vKA2}, 3, v0
    s_lshl_b32 s{sA}, s{sRT2}, 9
    s_add_u32 s{sA}, s{sA}, {WS_RS + 4}
    """)
    a([I("s_mov_b64 exec, 3", wvm="*"), f"buffer_store_dword v{vTAG}, v26, {sr(SWS,4)}, s{sT0} offen sc1", "s_mov_b64 exec, -1"])
    stamp("kvf", 2)
    if "dmaonly" in opt or "g1only" in opt: a("s_branch L_prof")
    ck2 = [f"v_xor_b32 v{vFL}, s{sTAG}, v{vFL}", f"v_xor_b32 v{vKL2}, s{sTAG}, v{vKL2}", f"v_or_b32 v{vFL}, v{vFL}, v{vKL2}",
           f"v_cmp_ne_u32 vcc, 0, v{vFL}", "s_cmp_lg_u64 vcc, 0"]
    a("s_barrier")
    a(h_write)
    a(kf_addr); a(f"s_add_u32 s{sC}, s{sC}, 1024")
    stamp("wd", 3)
    a(spin("fwa", ap(wf_ld, 28, "apx") + ap(ld2, 64, "apx"), ck2))
    a(f"""
    s_cmp_lg_u32 s2, 0
    s_cbranch_scc1 L_ep_ok
    s_add_u32 s{sT0}, s{sM0X}, {WS_RS}
    """)
    a(spin("ep", [f"buffer_load_dwordx4 v[32:35], v{vL16}, {sr(SWS,4)}, s{sT0} offen sc1",
                  f"buffer_load_dwordx4 v[36:39], v{vL16}, {sr(SWS,4)}, s{sT0} offen offset:1024 sc1"],
           [f"v_xor_b32 v{r}, s{sTAG}, v{r}" for r in (33, 35, 37, 39)] +
           ["v_or3_b32 v33, v33, v35, v37", "v_or_b32 v33, v33, v39", "v_cmp_ne_u32 vcc, 0, v33", "s_cmp_lg_u64 vcc, 0"]))
    NA = oi("na", 8)
    a(WL[:NA])
    a(spin("kva", ap(kf_ld, 32, "apx"), ne(vKL)))
    a.vq = []
    a(r_dma(24)); a(WL[NA:NPRE]); a(I(wvm="R"))
    a(f"s_branch L_kvok")

    a(f"{JOIN}:")
    a.vq, a.lq = list(vq_join), []
    stamp("join")
    okv = ("s%d" % sOK) if "nocv" in opt else "1"
    a(f"s_cmp_eq_u32 s{sOK}, {okv}\ns_cbranch_scc1 L_kvok")
    a(spin("kv", ap(kf_ld, 32, "apk"), ne(vKL)))
    sv = list(a.vq); a(r_dma(24)); a(I(wvm="*")); a.vq = sv
    a("L_kvok:")
    CA, AF, BF = 32, 64, 128
    vRU, vRH, vPW, vPR, vZW, vZR, vYA, vYR, vOO = 2, 3, 4, 10, 11, 12, 13, 14, 30
    vXF, XN, vRC = 20, 22, 6
    vXF = 1
    sCH, sWQ, sCVB, sRHO = SV, SV + 1, SV + 2, SV + 3
    sOQ = SSH
    a(f"""
    s_lshr_b32 s{sCH}, s{sW}, 2
    s_and_b32 s{sWQ}, s{sW}, 3
    s_mul_i32 s{sCVB}, s{sCH}, {CVCH}
    s_add_u32 s{sCVB}, s{sCVB}, {L_CV}
    s_lshl_b32 s{sT0}, s{sWQ}, 7
    s_add_u32 s{sT0}, s{sT0}, s{sCVB}
    s_add_u32 s{sT1}, s{sT0}, 480
    v_and_b32 v15, 15, v0
    v_and_b32 v16, 48, v0
    v_lshlrev_b32 v31, 5, v15
    v_sub_u32 v31, v16, v31
    v_add_u32 v{vRU}, s{sT1}, v31
    s_add_u32 s{sT1}, s{sT0}, {4608 - 28 + 4160 + 3072}
    v_and_b32 v31, 1, v0
    v_mul_u32_u24 v31, 4160, v31
    v_sub_u32 v31, v16, v31
    v_bfe_u32 v{vRH}, v0, 1, 3
    v_lshl_add_u32 v31, v{vRH}, 2, v31
    v_add_u32 v{vRH}, s{sT1}, v31
    """)
    KHF = oi("hf", 5)
    hf_st = [f"s_cmp_eq_u32 s{sISG}, 0", "s_cbranch_scc1 L_nohf", I(wvm="hs"),
             line(sHF), "L_nohf:"]
    if KHF < 0: a(hf_st); stamp("hflag")
    a(f"s_cmp_eq_u32 s{sISG}, 0\ns_cbranch_scc1 L_nowr")
    a(I(wvm="R"))
    a("L_nowr:")
    a(I(wlg="*"))
    if "noc1" not in opt: a("s_barrier")
    stamp("c1")
    a(f"s_or_b32 s{sT0}, s2, s{sW}\ns_cbranch_scc1 L_noep")
    a(one(f"buffer_store_dword v{vTAG}, off, {sr(SWS,4)}, 0 offset:{WS_EPOCH} sc1"))
    a("L_noep:")
    order = [(0, p) for p in range(7, -1, -1)] + [(1, p) for p in range(8)]
    def uread(rr, d): return I(f"ds_read_b128 {vr(AF+32*rr+4*d,4)}, v{vRU} offset:{512*(7-d)+64*rr}", lg=f"a{rr}{d}")
    def hread(k):
        rr, p = order[k]; o = 128 * (p & 1) + 16 * rr; b = BF + 4 * (k % 4)
        g = []
        if rr == 0 and p in (5, 3, 1): g += [f"v_subrev_u32 v{vRH}, 1024, v{vRH}"]
        if rr == 1 and p in (2, 4, 6): g += [f"v_add_u32 v{vRH}, 1024, v{vRH}"]
        return g + [I(f"ds_read2_b32 {vr(b,2)}, v{vRH} offset0:{o} offset1:{o+1}", lg=f"b{k}"),
                    I(f"ds_read2_b32 {vr(b+2,2)}, v{vRH} offset0:{o+2} offset1:{o+3}", lg=f"b{k}")]
    PC, PG = os_("pc="), os_("pg=")
    if PC: a(f"s_setprio {PC[0]}")
    for k in range(3): a(hread(k)); a(uread(0, k))
    for d in range(3, 8): a(uread(0, d))
    XV = 6
    fin_addr = L(f"""
        s_and_b32 s{sRHO}, s{sCT2}, 3
        s_lshl_b32 s{sT0}, s{sRT2}, 3
        s_add_u32 s{sT0}, s{sT0}, s{sW}
        s_lshl_b32 s{sOQ}, s{sT0}, 13
        s_lshl_b32 s{sT1}, s{sCT2}, 7
        s_add_u32 s{sOQ}, s{sOQ}, s{sT1}
        s_lshl_b32 s{sT0}, s{sT0}, 6
        s_add_u32 s{sOQ+1}, s{sT0}, {WS_RS}
        v_and_b32 v31, 3, v0
        v_lshrrev_b32 v1, 5, v0
        v_lshl_add_u32 v31, v1, 2, v31
        v_and_b32 v{vOO}, 28, v0
        v_lshlrev_b32 v{vOO}, 2, v{vOO}
        v_lshl_add_u32 v{vOO}, v31, 10, v{vOO}
        v_lshlrev_b32 v1, 3, v31
        """)
    fin_ld = [I(f"buffer_load_dwordx4 {vr(XV,4)}, v{vOO}, {sr(SX,4)}, s{sOQ} offen", vm="xt"),
              I(f"buffer_load_dword v{XN+7}, v1, {sr(SWS,4)}, s{sOQ+1} offen sc1", vm="xt")]
    if "to" in opt: fin_ld = [I(f"buffer_load_dword v{XN+6}, off, {sr(SOUT,4)}, s{sOQ}", vm="xt")] + fin_ld
    def unpack(d, x): return [f"v_and_b32 v{d+e}, 0xffff0000, v{x+e//2}" if e & 1 else f"v_lshlrev_b32 v{d+e}, 16, v{x+e//2}" for e in range(8)]
    xn_math = ([I(f"v_lshlrev_b32 v20, 16, v{XN+7}", wvm="xt"), f"v_and_b32 v21, 0xffff0000, v{XN+7}", "v_rcp_f32 v20, v20"] +
               unpack(XN, XV) + [f"v_add_f32 v{XN+e}, v{XN+e}, v21" for e in range(8)] +
               [f"v_mul_f32 v{XN+e}, v{XN+e}, v20" for e in range(8)])
    p_addr = L(f"""
        v_bfe_u32 v20, v0, 1, 2
        v_bfe_u32 v21, v0, 3, 1
        v_xor_b32 v20, v20, v21
        v_lshlrev_b32 v20, 4, v20
        v_xor_b32 v20, v20, v16
        v_lshl_add_u32 v20, v15, 6, v20
        s_lshl_b32 s{sT0}, s{sW}, 13
        v_add_u32 v{vPW}, s{sT0}, v20
        v_bfe_u32 v20, v0, 2, 2
        v_bfe_u32 v21, v0, 4, 1
        v_xor_b32 v20, v20, v21
        v_lshlrev_b32 v20, 4, v20
        v_lshlrev_b32 v21, 5, v0
        v_xor_b32 v20, v20, v21
        s_lshl_b32 s{sT0}, s{sCH}, 15
        s_lshl_b32 s{sT1}, s{sWQ}, 11
        s_add_u32 s{sT0}, s{sT0}, s{sT1}
        v_add_u32 v{vPR}, s{sT0}, v20
        """)
    HB, ZA, NS = 64, 32, 16
    sH1, sH2, sHQ = sXB, sWB, sKEY
    def HR(n): return HB + 4 * (n % NS if n % NS < 8 else 23 - n % NS)
    sMK = sA
    def hload(n, mask=False):
        qd, ks = divmod(n, 7)
        g = []
        if ks == 0:
            g += [f"s_xor_b32 s{sT3}, s{sRHO}, {qd}", f"s_mul_i32 s{sT3}, s{sT3}, 57344", f"s_add_u32 s{sH1}, s{sHQ}, s{sT3}",
                  f"s_sub_u32 s{sH2}, s{sH1}, s{sRB}"]
        t = I(f"buffer_load_dwordx4 {vr(HR(n),4)}, v{vL16}, {sr(SWS,4)}, s{sH1 if ks < 4 else sH2} offen offset:{(ks&3)*1024} sc1", vm=f"h{n}")
        if "hx2" in opt: return g + [f"s_mov_b64 exec, {sr(sMK,2)}" if mask else "s_nop 0", "s_mov_b32 exec_hi, 0", t, "s_mov_b64 exec, -1"]
        if "hx1" in opt: t = I(t.text.replace("dwordx4 " + vr(HR(n),4), "dword " + vr(HR(n),1)).replace(f"v{vL16},", "v15,"), vm=f"h{n}")
        return g + ([f"s_mov_b64 exec, {sr(sMK,2)}", t, "s_mov_b64 exec, -1"] if mask and "nomask" not in opt else [t])
    def again(n1):
        sv = list(a.vq)
        for n in range(n1): a(hload(n))
        a.vq = sv
    h_addr = L(f"""
        s_mul_i32 s{sHQ}, s{sRT2}, {4*56*1024}
        s_mul_i32 s{sT1}, s{sW}, 7168
        s_add_u32 s{sHQ}, s{sHQ}, s{sT1}
        s_mul_i32 s{sT1}, s{sHI}, 3072
        s_add_u32 s{sHQ}, s{sHQ}, s{sT1}
        s_add_u32 s{sHQ}, s{sHQ}, {WS_H}
        s_mul_i32 s{sRB}, s{sHI}, 7168
        s_sub_u32 s{sRB}, s{sRB}, 4096
        s_lshl_b32 s{sE}, s{sRT2}, 3
        s_add_u32 s{sE}, s{sE}, s{sW}
        s_mul_i32 s{sE}, s{sE}, {7 << FS}
        s_add_u32 s{sE}, s{sE}, {WS_FH + 4}
        v_min_u32 v{vFA}, 6, v0
        v_lshlrev_b32 v{vFA}, {FS}, v{vFA}
        """)
    KH, KR_, KA, KB = oi("kh", 8), oi("kq", 3), oi("ka", 6), oi("kb", 11)
    assert 8 <= KH <= 15 and KA < KH <= KB and KHF < KH
    PM = [o[3:].replace("_", " ") for o in opt if o.startswith("pm=")]
    def poll(at, vm=None):
        if not at:
            t = wf_ld.replace("sc1", PM[0]) if PM else wf_ld
            return [I(t, vm=vm)]
        return [f"v_mov_b32 v{vFL}, 0", "s_mov_b64 exec, 0xff",
                I(f"buffer_atomic_or v{vFL}, v{vFA}, {sr(SWS,4)}, s{sE} offen sc0 sc1", vm=vm), "s_mov_b64 exec, -1"]
    def ne8(at): return [f"v_cmp_ne_u32 vcc, s{sTAG}, v{vFL}", "s_and_b32 vcc_lo, vcc_lo, 0xff"] if at else ne(vFL)
    AH, AY = "aph" in opt or "apa" in opt, "apy" in opt or "apa" in opt
    hf_ld = poll(AH)
    hn = 0
    def pwrite(j): return I(f"ds_write_b128 v{vPW}, {vr(CA+4*j,4)} offset:{1024*j}", lg="pw")
    sYS = sCB
    if "nocv" in opt:
        a(fin_addr); a(h_addr)
        if "wtf" in opt: a(WL[NPRE:]); a(fin_ld)
        a(hf_st)
        if "bar2" in opt: a("s_barrier")
        if "wtf" not in opt: a(WL[NPRE:]); a(fin_ld)
        stamp("k1")
        a(xn_math)
        if "blind" not in opt: a(spin("hf0", [f"s_sleep {oi('sl', 0)}", hf_ld], ne8(AH)))
        stamp("k11")
        a.vq = []
        for n in range(NS): a(hload(n))
        a(f"s_mov_b32 s{sMK}, -1")
        a(I(wlg="*"))
        stamp("c3")
    else:
        for k, (rr, p) in enumerate(order):
            seq = []
            for j in range(p, 8):
                c = "0" if (rr == 0 and j == p) else vr(CA + 4 * j, 4)
                seq.append(I(f"v_mfma_f32_16x16x32_bf16 {vr(CA+4*j,4)}, {vr(BF+4*(k%4),4)}, {vr(AF+32*rr+4*(j-p),4)}, {c}",
                             wlg=[f"a{rr}{j-p}", f"b{k}"]))
            fill = []
            if k == 1: fill += [fin_addr]
            if 1 <= k <= 6: fill += part(WL[NPRE:], k - 1, 6)
            if k == 3: fill += fin_ld
            if 4 <= k <= 7: fill += [uread(1, 2 * (k - 4)), uread(1, 2 * (k - 4) + 1)]
            if k in (6, 7): fill += part(p_addr, k - 6, 2)
            if 8 <= k <= 11: fill += part(xn_math, k - 8, 4)
            if k >= 9: fill = fill[:2] + [pwrite(p - 1)] + fill[2:]
            if k == 2: fill += [h_addr]
            if k == KHF: fill += [hf_st]
            if k == KA: fill += [poll(AH, "hf")]
            if k == KH: a([I(wvm="hf")] + ne8(AH) + [f"s_cselect_b64 {sr(sMK,2)}, 0, -1"])
            if k == KB: fill += [[f"s_cmp_lg_u32 s{sMK}, 0", "s_cbranch_scc1 L_nof2", hf_ld, "L_nof2:"]]
            if k >= KH:
                e = min(hn + KR_, k); hl = [hload(n, True) for n in range(hn, e)]; hn = max(hn, e)
                fill = mix(fill, hl) if len(fill) >= len(hl) else mix(hl, fill)
            a(mix(seq, fill))
            if k + 3 < 16: a(hread(k + 3))
            if PC and PC[k + 1] != PC[k]: a(f"s_setprio {PC[k + 1]}")
            stamp(f"k{k}")
        a(f"""
        s_lshl_b32 s{sT1}, s{sWQ}, 10
        s_sub_u32 s{sT1}, s{sCVB}, s{sT1}
        s_add_u32 s{sT1}, s{sT1}, 4080
        v_sub_u32 v20, s{sT1}, v{vL16}
        v_xor_b32 v21, 16, v{vPR}
        """)
        a(pwrite(7))
        for n in range(hn, NS): a(hload(n, True))
        a([f"s_cmp_lg_u32 s{sMK}, 0", "s_cbranch_scc1 L_hlate", "s_waitcnt vmcnt(0)"] + ne8(AH) +
          [f"s_cselect_b32 s{sMK}, 0, -1", "s_cbranch_scc1 L_hlate"])
        again(NS)
        a("L_hlate:")
        sYS = sCB
        a(I(wlg="*"))
        a("s_barrier")
        stamp("c3")
        if "py" in opt: a("s_setprio 3")
        PR, vU, YA = 32, 128, 132
        a(I(f"ds_read_b128 {vr(vU,4)}, v20", lg="su"))
        for k in range(4):
            a(I(f"ds_read_b128 {vr(PR+8*k,4)}, v{vPR} offset:{8192*k}", lg=f"p{k}"))
            a(I(f"ds_read_b128 {vr(PR+8*k+4,4)}, v21 offset:{8192*k}", lg=f"p{k}"))
        a(f"""
        s_lshl_b32 s{sT1}, s{sCH}, 4
        s_lshr_b32 s{sD}, s{sD}, s{sT1}
        s_lshl_b32 s{sD}, s{sD}, 16
        s_lshl_b32 s{sT1}, s{sCP}, 13
        s_lshl_b32 s{sT3}, s{sW}, 10
        s_add_u32 s{sT1}, s{sT1}, s{sT3}
        s_add_u32 s{sT1}, s{sT1}, {WS_YT}
        s_lshl_b32 s{sYS}, s{sWQ}, 9
        s_lshl_b32 s{sT3}, s{sCP}, 1
        s_add_u32 s{sYS}, s{sYS}, s{sT3}
        s_add_u32 s{sYS}, s{sYS}, s{sCH}
        s_lshl_b32 s{sT3}, s{sYS}, 7
        s_and_b32 s{sT3}, s{sT3}, 0x380
        v_xor_b32 v31, s{sT3}, v{vL16}
        s_lshl_b32 s{sYS}, s{sYS}, {FS}
        s_add_u32 s{sYS}, s{sYS}, {WS_FY}
        """)
        stamp("y0")
        a(I(wlg="su"))
        stamp("y1")
        for e in range(4):
            a(f"v_and_b32 v{YA+6-2*e}, 0xffff0000, v{vU+e}\nv_lshlrev_b32 v{YA+7-2*e}, 16, v{vU+e}")
        a(I(wlg="p0"))
        for e in range(8): a(f"v_fma_f32 v{YA+e}, v{YA+e}, s{sD}, v{PR+e}")
        a(I(wlg="p2"))
        def add8(d, x):
            if "ynp" in opt:
                for e in range(8): a(f"v_add_f32 v{d+e}, v{d+e}, v{x+e}")
            else:
                for e in range(0, 8, 2): a(f"v_pk_add_f32 {vr(d+e,2)}, {vr(d+e,2)}, {vr(x+e,2)}")
        add8(PR + 8, PR + 16)
        a(I(wlg="p3"))
        stamp("y2")
        a(f"s_lshl_b32 s{sT3}, s{sW}, 2\ns_add_u32 s{sT3}, s{sT3}, {L_CNT}\nv_mov_b32 v20, s{sT3}")
        a(I(f"ds_write_b32 v20, v{vTAG}", lg="cw"))
        add8(YA, PR + 24)
        add8(YA, PR + 8)
        for e in range(4): a(f"v_cvt_pk_bf16_f32 v{vU+e}, v{YA+2*e}, v{YA+2*e+1}")
        stamp("y3")
        a(I(f"buffer_store_dwordx4 {vr(vU,4)}, v31, {sr(SWS,4)}, s{sT1} offen sc1", vm="ys"))
    stamp("ys")
    if PG or "py" in opt: a(f"s_setprio {PG[0] if PG else 0}")
    a(f"s_cmp_lg_u32 s{sMK}, 0\ns_cbranch_scc1 L_hgo")
    a(spin("hf", [hf_ld], ne8(AH)))
    again(NS)
    a(line(sYS))
    a("L_hgo:")
    stamp("hok")
    sYA, sYF, sSEL = sMO, sE, SK
    g2_addr = L(f"""
    v_lshrrev_b32 v20, 4, v0
    s_lshl_b32 s{sT1}, s{sRBL}, 2
    v_xor_b32 v21, v20, v15
    v_xor_b32 v21, s{sT1}, v21
    v_lshlrev_b32 v21, 4, v21
    v_lshl_add_u32 v21, v15, 8, v21
    s_lshl_b32 s{sT1}, s{sW}, 12
    v_add_u32 v{vZW}, s{sT1}, v21
    s_lshl_b32 s{sT1}, s{sW}, 1
    v_lshrrev_b32 v1, 5, v0
    v_add_u32 v21, s{sT1}, v1
    v_and_b32 v20, 3, v0
    v_xor_b32 v31, s{sRHO}, v20
    v_lshrrev_b32 v{vZR}, 1, v0
    v_and_b32 v{vZR}, 14, v{vZR}
    v_xor_b32 v{vZR}, v{vZR}, v21
    v_xor_b32 v{vZR}, v{vZR}, v31
    v_lshlrev_b32 v{vZR}, 4, v{vZR}
    v_lshl_add_u32 v{vZR}, v21, 8, v{vZR}
    s_mov_b32 s{sT1}, {sum((L_Z[q] >> 15) << (8 * q) for q in range(4))}
    v_lshlrev_b32 v31, 3, v31
    v_bfe_u32 v31, s{sT1}, v31, 8
    v_lshl_add_u32 v{vZR}, v31, 15, v{vZR}
    v_bfe_u32 v31, v0, 4, 1
    v_lshl_add_u32 v20, v31, 2, v20
    v_xor_b32 v21, s{sW}, v20
    v_lshlrev_b32 v21, 4, v21
    v_lshl_add_u32 v21, v1, 3, v21
    v_lshl_add_u32 v21, v20, 10, v21
    v_bfe_u32 v31, v0, 2, 2
    v_lshl_add_u32 v21, v31, 7, v21
    v_add_u32 v{vYR}, {L_Y}, v21
    v_and_b32 v21, 7, v0
    v_xor_b32 v20, s{sW}, v21
    v_lshlrev_b32 v20, 4, v20
    v_lshrrev_b32 v31, 3, v0
    v_lshl_add_u32 v20, v31, 12, v20
    s_and_b32 s{sT1}, s{sRT2}, 7
    v_xor_b32 v31, s{sT1}, v31
    v_lshl_add_u32 v{vYA}, v31, 7, v20
    v_lshlrev_b32 v{vFA}, {FS}, v21
    v_lshlrev_b32 v1, 2, v21
    v_add_u32 v1, {L_CNT}, v1
    s_lshl_b32 s{sT1}, s{sCT2}, 3
    s_add_u32 s{sT1}, s{sT1}, s{sW}
    s_lshl_b32 s{sYA}, s{sT1}, 15
    s_and_b32 s{sT0}, s{sRT2}, 24
    s_lshl_b32 s{sT0}, s{sT0}, 7
    s_add_u32 s{sYA}, s{sYA}, s{sT0}
    s_add_u32 s{sYA}, s{sYA}, {WS_YT}
    s_lshl_b32 s{sYF}, s{sT1}, {FS + 3}
    s_lshr_b32 s{sT0}, s{sRT2}, 3
    s_lshl_b32 s{sT0}, s{sT0}, {FS + 9}
    s_add_u32 s{sYF}, s{sYF}, s{sT0}
    s_add_u32 s{sYF}, s{sYF}, {WS_FY + 4}
    s_mov_b32 s{sSEL}, {fx(-1.4426950408889634)}
    s_mov_b32 s{sSEL+1}, s{sSEL}
    s_mov_b32 s{sSEL+2}, 1.0
    s_mov_b32 s{sSEL+3}, 1.0
    s_lshl_b32 s{sT0}, s{sW}, 10
    s_add_u32 m0, s{sT0}, {L_Y}
    """)
    ZT, XF, YR, YF = 64, 128, 136, 32
    def zwrite(qd):
        hi, lo = L_Z[qd] & ~0xffff, L_Z[qd] & 0xffff
        return [[f"v_xor_b32 v20, {hi + 64*mt + 16*qd}, v{vZW}",
                 I(f"ds_write_b128 v20, {vr(ZA+16*(qd&1)+4*mt,4)} offset:{lo}", lg="zw")] for mt in range(4)]
    NYF, NYP, NYC = oi("nyf", 8), oi("nyp", 16), oi("nyc", 21)
    NG, ZS = oi("ng", 6), oi("zs", 1)
    y_ld = f"buffer_load_dwordx4 v{vYA}, {sr(SWS,4)}, s{sYA} offen sc1 lds"
    cn_ld = "ds_read_b32 v31, v1"
    cn_ck = ["v_cmp_eq_u32 vcc, 0, v31", "s_cmp_lg_u64 vcc, 0", "s_cbranch_scc0 L_cn_ok"]
    assert NYF < 12
    for n in range(28):
        qd, ks = divmod(n, 7)
        a(I(wvm=[f"h{n}", f"wd{ks}"]))
        if n == NYF: a(line(sYS, wvm="ys", vm="yf"))
        if n == 22:
            a([I(wlg="cn")] + cn_ck + [f"s_mov_b32 s{sCNT}, {SPIN}", "L_cn_loop:", cn_ld, "s_waitcnt lgkmcnt(0)"] + cn_ck +
              [f"s_sub_u32 s{sCNT}, s{sCNT}, 1", "s_cbranch_scc0 L_cn_loop", "L_cn_ok:"])
        if ks == 0 and qd >= 2: a(I(wlg="zw"))
        seq = []
        for mt in range(4):
            d = ZA + 16 * (qd & 1) + 4 * mt
            c = "0" if ks == 0 else vr(d, 4)
            seq.append(f"v_mfma_f32_16x16x32_bf16 {vr(d,4)}, {vr(WDF(4*ks+mt),4)}, {vr(HR(n),4)}, {c}")
        fill = []
        if qd >= 1 and 1 <= ks <= ZS: fill = part(zwrite(qd - 1), ks - 1, ZS)
        if n < NG: fill = part(g2_addr, n, NG)
        if n == 20: fill += [I(cn_ld, lg="cn")]
        if n in (12, 13): fill += part(unpack(XF, XV), n - 12, 2)
        if n == 27: fill += [f"v_xor_b32 v21, 16, v{vZR}"]
        if n == NYC:
            fill = [[I(wvm="yp")] + ne8(AY) + [f"s_cselect_b32 s{sMK}, 0, -1", "s_cbranch_scc1 L_ylate", y_ld, "L_ylate:"]] + fill
        a(mix(seq, fill))
        if n + NS < 28: a(hload(n + NS))
        if n == NYP: a(poll(AY, "yp"))
        if PG and PG[n + 1] != PG[n]: a(f"s_setprio {PG[n + 1]}")
        stamp(f"n{n}")
    a(zwrite(3))
    stamp("g2")
    a(f"s_cmp_lg_u32 s{sMK}, 0\ns_cbranch_scc1 L_ygo")
    a(spin("yf", poll(AY), ne8(AY)) + [y_ld, "L_ygo:"])
    stamp("yok")
    a(I(wvm="*", wlg="*"))
    a("s_barrier")
    stamp("bf")
    P2 = lambda x: vr(x, 2)
    a(I(f"ds_read_b64_tr_b16 {P2(YR)}, v{vYR}", lg="yr"))
    a(I(f"ds_read_b64_tr_b16 {P2(YR+2)}, v{vYR} offset:512", lg="yr"))
    def zread(k): return [I(f"ds_read_b128 {vr(ZT+8*k+4*h,4)}, v{21 if h else vZR} offset:{4096*k}", lg=f"z{k}") for h in range(2)]
    for k in range(6): a(zread(k))
    a(I(wlg="yr")); a(unpack(YF, YR))
    a(zread(6)); a(zread(7))
    for e in range(0, 8, 2): a(f"v_pk_mul_f32 {P2(XN+e)}, {P2(XN+e)}, {P2(YF+e)}")
    stamp("f0")
    for k in range(1, 8):
        a(I(wlg=f"z{k}"))
        for e in range(0, 8, 2): a(f"v_pk_add_f32 {P2(ZT+e)}, {P2(ZT+e)}, {P2(ZT+8*k+e)}")
    stamp("f1")
    for e in range(0, 8, 2): a(f"v_pk_mul_f32 {P2(YF+e)}, {P2(ZT+e)}, {sr(sSEL,2)}")
    a(mix([f"v_exp_f32 v{YF+e}, v{YF+e}" for e in range(8)],
          [f"v_pk_mul_f32 {P2(XN+e)}, {P2(XN+e)}, {P2(ZT+e)}" for e in range(0, 8, 2)]))
    for e in range(0, 8, 2): a(f"v_pk_add_f32 {P2(YF+e)}, {P2(YF+e)}, {sr(sSEL+2,2)}")
    for e in range(8): a(f"v_rcp_f32 v{YF+e}, v{YF+e}")
    for e in range(0, 8, 2): a(f"v_pk_fma_f32 {P2(XF+e)}, {P2(XN+e)}, {P2(YF+e)}, {P2(XF+e)}")
    for e in range(4): a(f"v_cvt_pk_bf16_f32 v{YR+e}, v{XF+2*e}, v{XF+2*e+1}")
    stamp("f2")
    a(f"buffer_store_dwordx4 {vr(YR,4)}, v{vOO}, {sr(SOUT,4)}, s{sOQ} offen sc0 sc1")
    if prof:
        stamp("st")
        if "endw" in opt: a("s_waitcnt vmcnt(0)")
        a("L_prof:")
        stamp("end")
        a(f"""
        s_waitcnt lgkmcnt(0)
        s_lshl_b32 s{sT0}, s2, 3
        s_add_u32 s{sT0}, s{sT0}, s{sW}
        s_lshl_b32 s{sT0}, s{sT0}, 6
        s_add_u32 s{sT0}, s{sT0}, {WS_PROF}
        """)
        if "dbg" in opt:
            n = len(stamps)
            a(f"s_load_dwordx2 {sr(SX,2)}, s[0:1], 88\ns_mov_b32 s{SX+2}, 256\ns_waitcnt lgkmcnt(0)\ns_mov_b64 exec, 1")
            a(f"s_not_b32 s{sT1}, s{PROFS[0]}\nv_mov_b32 v1, s{sT1}\nbuffer_atomic_umax v1, off, {sr(SX,4)}, 0")
            a(f"v_mov_b32 v2, s{PROFS[n-1]}\nbuffer_atomic_umax v2, off, {sr(SX,4)}, 0 offset:60")
            a(f"s_cmp_lt_u32 s2, 32\ns_cbranch_scc1 {END}")
            for i in range(n):
                if "avg" in opt:
                    a(f"s_sub_u32 s{sT1}, s{PROFS[i]}, s{PROFS[0]}\nv_mov_b32 v{3+i}, s{sT1}\nbuffer_atomic_add v{3+i}, off, {sr(SX,4)}, 0 offset:{4+4*i}")
                else:
                    a(f"v_mov_b32 v{3+i}, s{PROFS[i]}\nbuffer_atomic_umax v{3+i}, off, {sr(SX,4)}, 0 offset:{4+4*i}")
            a(f"s_branch {END}")
        for i in range(len(stamps)):
            a(f"v_mov_b32 v1, s{PROFS[i]}")
            a(f"buffer_store_dword v1, off, {sr(SWS,4)}, s{sT0} offset:{4*i}")
    a(f"{END}:\ns_endpgm")
    txt = a.text(256, 512, 163840)
    return txt, stamps, a.nops

if __name__ == "__main__":
    txt, st, nops = gen(prof="prof" in sys.argv, opt=sys.argv[2:])
    open(sys.argv[1], "w").write(txt)
    print("lines", txt.count("\n"), "nops", nops, st)
    if st: open(sys.argv[1] + ".stamps", "w").write(" ".join(st))
```

```python
import sys, struct, re
from em import *

WS_EPOCH, WS_FKV, WS_RS, WS_CS, WS_FH, WS_FY = 0, 4096, 32768, 65536, 262144, 524288
WS_KV, WS_WT, WS_YT, WS_H, WS_PROF = 1 << 20, 3 << 20, 5 << 20, 8 << 20, 16 << 20
SX, SWG, SWU, SWD, SWS, SOUT, SH, SK, SV, SSH = 8, 12, 16, 20, 24, 28, 32, 36, 40, 44
sW, sXB, sWB, sT0, sT1 = 3, 4, 5, 6, 7
(sRT2, sCT2, sKEY, sWR, sWC, sTAG, sM0X, sOK, sISG, sCNT, sT2, sT3, sCSM, sCP, sRBL, sXCD, sCB, sD,
 sMO, _m1, _m2, _m3, sHI, sRB) = range(48, 72)
sA, sB, sC, sE = 98, 99, 100, 101
PROFS = list(range(72, 98, 2))
STAGE = 49152
L_WP = 147456
L_CV, CVCH = 98304, 12864
L_Z = (65536, 131072, 0, 32768)
L_Y, L_CNT = L_CV + 4608, L_CV + 4096
ACC, FR = 32, 96
def WDF(i): return 144 + 4 * i
vX0, vX1, vW0, vW1, vL16 = 1, 2, 3, 4, 5
vXB, vWB, vTAG = 6, 14, 17
SPIN = 0x4000
KC = 2 * 0.7978845608028654 * 1.4426950408889634
def fx(f): return "0x%08x" % struct.unpack("<I", struct.pack("<f", f))[0]
def L(s): return [x.strip() for x in s.strip().split("\n") if x.strip()]

def gen(prof=False, opt=()):
    a = Em()
    def oi(k, d): return int(([o[len(k):] for o in opt if o.startswith(k)] + [d])[0])
    stamps = []
    def oi(k, d): return int(([o[len(k):] for o in opt if o.startswith(k)] + [d])[0])
    def stamp(name, slot=None):
        sel = [o[3:].split(",") for o in opt if o.startswith("st=")]
        dflt = "start,B0,B4,B8,join,c1,c3,hok,g2,bf,end".split(",")
        if not prof or (slot is None and name not in (sel[0] if sel else dflt)): return
        own = slot is None
        if ("both" in opt or "noas" in opt) and not own: return
        if slot is None:
            if name not in stamps: stamps.append(name)
            slot = stamps.index(name)
        a(f"{'s_memtime' if 'cyc' in opt else 's_memrealtime'} {sr(PROFS[slot], 2)}")
        if "both" in opt and own:
            stamps.append(name + "c"); a(f"s_memtime {sr(PROFS[slot + 1], 2)}")
    def spin(name, load, check):
        if "nochk" in opt: return [f"L_{name}_ok:"]
        return ([f"s_mov_b32 s{sCNT}, {SPIN}", f"L_{name}_loop:"] + load + ["s_waitcnt vmcnt(0)"] + check +
                [f"s_cbranch_scc0 L_{name}_ok", f"s_sub_u32 s{sCNT}, s{sCNT}, 1", f"s_cbranch_scc0 L_{name}_loop",
                 f"L_{name}_ok:"])
    def one(txt, vm=None, wvm=None):
        if "all" in opt: return [I(txt, vm=vm, wvm=wvm)]
        return [I("s_mov_b64 exec, 1", wvm=wvm), I(txt, vm=vm), "s_mov_b64 exec, -1"]
    FS = oi("fs", 7)
    def line(so, vm=None, wvm=None):
        if "fp" in opt: return one(f"buffer_store_dword v{vTAG}, off, {sr(SWS,4)}, s{so} offset:4 sc1", vm=vm, wvm=wvm)
        return [I(f"s_mov_b64 exec, {(1 << (1 << (FS - 4))) - 1}", wvm=wvm),
                I(f"buffer_store_dwordx4 {vr(vTAG-1,4)}, v{vL16}, {sr(SWS,4)}, s{so} offen sc1", vm=vm), "s_mov_b64 exec, -1"]
    def ne(v): return [f"v_cmp_ne_u32 vcc, s{sTAG}, v{v}", "s_cmp_lg_u64 vcc, 0"]
    def ap(txt, nl, key, vm=None):
        if key not in opt and "apa" not in opt: return [I(txt, vm=vm)]
        d = txt.split()[1].rstrip(",")
        t = I(txt.replace("buffer_load_dword", "buffer_atomic_or").replace("sc1", "sc0 sc1"), vm=vm)
        if nl == 64: return [f"v_mov_b32 {d}, 0", t]
        m = [f"s_mov_b32 exec_hi, 0"] if nl == 32 else [f"s_mov_b64 exec, {(1 << nl) - 1}"]
        return [f"v_mov_b32 {d}, s{sTAG}"] + m + [f"v_mov_b32 {d}, 0", t, "s_mov_b64 exec, -1"]
    END, AUX, JOIN = "L_end", "L_aux", "L_join"
    vHE, vHP, vHO_ = (228, 232, 234) if "hr" in opt else (128, 132, 134)
    KM = oi("km", 3)
    a(f"""
    s_cmp_ge_u32 s2, 256
    s_cbranch_scc1 {END}
    s_load_dwordx16 s[72:87], s[0:1], 0
    s_load_dwordx8 s[88:95], s[0:1], 64
    s_load_dwordx2 s[96:97], s[0:1], 96
    v_lshrrev_b32 v1, 6, v0
    v_and_b32 v0, 63, v0
    v_readfirstlane_b32 s{sW}, v1
    s_and_b32 s{sXCD}, s2, 7
    s_lshr_b32 s{sCP}, s2, 3
    s_and_b32 s{sE}, s{sXCD}, 1
    s_lshr_b32 s{sA}, s{sXCD}, 1
    s_and_b32 s{sRBL}, s{sCP}, 3
    s_lshr_b32 s{sISG}, s{sCP}, 2
    s_lshl_b32 s{sRB}, s{sA}, 2
    s_add_u32 s{sRB}, s{sRB}, s{sRBL}
    s_lshl_b32 s{sRT2}, s{sRB}, 1
    s_add_u32 s{sRT2}, s{sRT2}, s{sE}
    s_add_u32 s{sCT2}, s{sISG}, 7
    s_and_b32 s{sCT2}, s{sCT2}, 7
    s_mul_i32 s{sCB}, s{sE}, 7
    s_add_u32 s{sCB}, s{sCB}, s{sCT2}
    s_xor_b32 s{sKEY}, s{sRBL}, s{sISG}
    s_and_b32 s{sKEY}, s{sKEY}, {KM}
    s_lshl_b32 s{sB}, s{sA}, {2 if KM == 3 else 1}
    s_and_b32 s{sB}, s{sB}, {4 if KM == 3 else 6}
    s_or_b32 s{sKEY}, s{sKEY}, s{sB}
    s_lshl_b32 s{sB}, s{sXCD}, 5
    s_add_u32 s{sCP}, s{sCP}, s{sB}
    s_and_b32 s{sWR}, s{sW}, 1
    s_lshr_b32 s{sWC}, s{sW}, 1
    s_lshr_b32 s{sB}, s{sW}, 2
    s_and_b32 s{sC}, s{sW}, 3
    s_lshl_b32 s{sXB}, s{sRB}, 17
    s_lshl_b32 s{sT0}, s{sB}, 16
    s_add_u32 s{sXB}, s{sXB}, s{sT0}
    s_lshl_b32 s{sT0}, s{sC}, 10
    s_add_u32 s{sXB}, s{sXB}, s{sT0}
    s_mul_i32 s{sWB}, s{sW}, 28672
    s_lshl_b32 s{sT0}, s{sCB}, 8
    s_add_u32 s{sWB}, s{sWB}, s{sT0}
    s_lshl_b32 s{sM0X}, s{sW}, 11
    s_and_b32 s{sT0}, s{sKEY}, 1
    s_and_b32 s{sT1}, s{sA}, 2
    s_or_b32 s{sT0}, s{sT0}, s{sT1}
    {f"s_mov_b32 s{sT0}, s{sRBL}" if KM != 3 else ""}
    s_add_u32 s{sCSM}, s{sWR}, 1
    s_cmp_eq_u32 s{sT0}, s{sWC}
    s_cselect_b32 s{sCSM}, s{sCSM}, 0
    s_lshr_b32 s{sHI}, s{sCT2}, 2
    s_mov_b32 s{sOK}, 0
    """)
    for s, n in ((SX, 1 << 21), (SWG, 1835008), (SWU, 1835008), (SWD, 1835008), (SWS, 1 << 25), (SOUT, 1 << 21),
                 (SH, 4096), (SK, 1 << 21), (SV, 1 << 21), (SSH, 4096)):
        a(f"s_mov_b32 s{s+2}, {n}")
        a(f"s_mov_b32 s{s+3}, 0x20000")
    a(f"""
    v_lshrrev_b32 v20, 3, v0
    v_lshrrev_b32 v21, 4, v0
    v_and_b32 v22, 7, v0
    v_xor_b32 v23, v22, v21
    v_lshlrev_b32 v23, 4, v23
    v_lshl_add_u32 v{vX0}, v20, 12, v23
    v_xor_b32 v{vX1}, 64, v{vX0}
    v_add_u32 v{vX1}, 31744, v{vX1}
    v_bfe_u32 v24, v0, 2, 2
    v_and_b32 v25, 3, v0
    v_xor_b32 v23, v24, v21
    v_lshlrev_b32 v23, 6, v23
    v_lshl_add_u32 v23, v25, 4, v23
    v_mul_u32_u24 v{vW0}, 3584, v21
    v_add_u32 v{vW0}, v{vW0}, v23
    v_add_u32 v{vW1}, 13312, v{vW0}
    v_lshlrev_b32 v{vL16}, 4, v0
    s_lshl_b32 s{sT2}, s{sCP}, 1
    s_add_u32 s{sT2}, s{sT2}, s{sB}
    s_lshl_b32 s{sT2}, s{sT2}, 12
    s_lshl_b32 s{sT3}, s{sCP}, 2
    s_waitcnt lgkmcnt(0)
    s_mov_b64 {sr(SX,2)}, s[72:73]
    s_mov_b64 {sr(SWG,2)}, s[86:87]
    s_mov_b64 {sr(SWU,2)}, s[88:89]
    s_mov_b64 {sr(SK,2)}, s[74:75]
    s_mov_b64 {sr(SV,2)}, s[76:77]
    {f"s_add_u32 s{SWS}, s96, {oi('wo', 0) << 20}" if oi('wo', 0) else f"s_mov_b64 {sr(SWS,2)}, s[96:97]"}
    {f"s_addc_u32 s{SWS+1}, s97, 0" if oi('wo', 0) else ""}
    s_mov_b64 {sr(SSH,2)}, s[78:79]
    s_mov_b64 {sr(SWD,2)}, s[90:91]
    s_mov_b64 {sr(SOUT,2)}, s[92:93]
    s_add_u32 s{SH}, s80, s{sT2}
    s_addc_u32 s{SH+1}, s81, 0
    s_load_dword s{sD}, s[82:83], s{sT3}
    """)
    if prof: a("s_nop 4")
    stamp("start")

    NTX = " nt" if "ntx" in opt else ""
    NTW = " nt" if "ntw" in opt else ""
    NTK = " nt" if "ntk" in opt else ""
    NTH = " nt" if "nth" in opt else ""
    NTE = " nt" if "nte" in opt else ""
    NTF = " nt" if "ntf" in opt else ""
    for o in opt:
        if o.startswith("cp="): NTX = NTW = " " + o[3:].replace("_", " ")
        if o.startswith("ck="): NTK = " " + o[3:].replace("_", " ")
    def chunk_dma(c):
        st = (c % 3) * STAGE
        return [
            [f"s_xor_b32 s{sT0}, s{sKEY}, {c}",
             f"s_mul_i32 s{sT1}, s{sT0}, 229376", f"s_add_u32 s{sT1}, s{sT1}, s{sWB}",
             f"s_lshl_b32 s{sT0}, s{sT0}, 7", f"s_add_u32 m0, s{sM0X}, {st}", f"s_add_u32 s{sT0}, s{sT0}, s{sXB}",
             I(f"buffer_load_dwordx4 v{vX0}, {sr(SX,4)}, s{sT0} offen{NTX} lds", vm=f"c{c}")],
            I(f"buffer_load_dwordx4 v{vX1}, {sr(SX,4)}, s{sT0} offen offset:1024{NTX} lds", vm=f"c{c}"),
            [f"s_add_u32 m0, s{sM0X}, {st + 16384}",
             I(f"buffer_load_dwordx4 v{vW0}, {sr(SWG,4)}, s{sT1} offen{NTW} lds", vm=f"c{c}")],
            I(f"buffer_load_dwordx4 v{vW1}, {sr(SWG,4)}, s{sT1} offen offset:1024{NTW} lds", vm=f"c{c}"),
            [f"s_add_u32 m0, s{sM0X}, {st + 32768}",
             I(f"buffer_load_dwordx4 v{vW0}, {sr(SWU,4)}, s{sT1} offen{NTW} lds", vm=f"c{c}")],
            I(f"buffer_load_dwordx4 v{vW1}, {sr(SWU,4)}, s{sT1} offen offset:1024{NTW} lds", vm=f"c{c}"),
        ]
    XR, S1, S2 = 200, 204, 205
    def row_load():
        return [I(f"buffer_load_dword v{vTAG}, off, {sr(SWS,4)}, 0 offset:{WS_EPOCH} sc1", vm="ep"),
                [f"s_lshl_b32 s{sA}, s{sRT2}, 3", f"s_add_u32 s{sA}, s{sA}, s{sISG}", f"s_lshl_b32 s{sA}, s{sA}, 3",
                 f"s_add_u32 s{sA}, s{sA}, s{sW}", f"s_lshl_b32 s{sT2}, s{sA}, 10",
                 I(f"buffer_load_dwordx4 {vr(XR,4)}, v{vL16}, {sr(SX,4)}, s{sT2} offen", vm="ep")]]
    tag_math = L(f"""
        v_add_u32 v{vTAG}, 1, v{vTAG}
        v_and_b32 v{vTAG}, 0x0fff3fff, v{vTAG}
        v_or_b32 v{vTAG}, 0x20000000, v{vTAG}
        s_mov_b32 s{sB}, 0x3f803f80
        v_readfirstlane_b32 s{sTAG}, v{vTAG}
        """)
    def row_math():
        o = []
        for d in range(4):
            o += [f"v_dot2_f32_bf16 v{S1}, v{XR+d}, s{sB}, {'0' if d == 0 else f'v{S1}'}",
                  f"v_dot2_f32_bf16 v{S2}, v{XR+d}, v{XR+d}, {'0' if d == 0 else f'v{S2}'}"]
        o += [f"v_mov_b32 v{XR+1}, v{vTAG}", f"v_permlane32_swap_b32 v{S1}, v{S2}", f"v_add_f32 v{S1}, v{S1}, v{S2}"]
        o += [f"v_add_f32_dpp v{S1}, v{S1}, v{S1} {d} row_mask:0xf bank_mask:0xf"
              for d in ("quad_perm:[1,0,3,2]", "quad_perm:[2,3,0,1]", "row_half_mirror", "row_mirror")]
        o += [f"v_add_f32_dpp v{S1}, v{S1}, v{S1} row_bcast:15 row_mask:0xa bank_mask:0xf"]
        o += L(f"""
        v_mul_f32 v{S1}, {fx(1/512)}, v{S1}
        v_readlane_b32 s{sB}, v{S1}, 31
        v_readlane_b32 s{sC}, v{S1}, 63
        v_mul_f32 v{S1}, s{sB}, s{sB}
        v_sub_f32 v{S1}, s{sC}, v{S1}
        v_max_f32 v{S1}, 0, v{S1}
        v_cvt_pk_bf16_f32 v{S1}, v{S1}, v{S1}
        v_lshlrev_b32 v{S1}, 16, v{S1}
        v_add_f32 v{S1}, {fx(1e-5)}, v{S1}
        v_cvt_pk_bf16_f32 v{S1}, v{S1}, v{S1}
        v_lshlrev_b32 v{S1}, 16, v{S1}
        v_sqrt_f32 v{S1}, v{S1}
        s_lshl_b32 s{sA}, s{sA}, 3
        v_cvt_pk_bf16_f32 v{XR}, v{S1}, -s{sB}
        s_add_u32 s{sA}, s{sA}, {WS_RS}
        """)
        if "nors" not in opt: o += [one(f"buffer_store_dwordx2 {vr(XR,2)}, off, {sr(SWS,4)}, s{sA} sc1", vm="rs", wvm="wps")]
        return o
    def h_load(t):
        return [[f"s_and_b32 s{sT2}, s{sW}, 3", f"s_lshl_b32 s{sT2}, s{sT2}, 10",
                 I(f"buffer_load_dwordx4 {vr(vHE,4)}, v{vL16}, {sr(SH,4)}, s{sT2} offen{NTE}", vm="hl")],
                [f"s_and_b32 s{sT2}, s{sW}, 3", f"s_lshl_b32 s{sT2}, s{sT2}, 10",
                 f"s_sub_u32 s{sT2}, s{sT2}, 4", f"v_add_u32 v{t}, s{sT2}, v{vL16}",
                 I(f"buffer_load_dword v{vHP}, v{t}, {sr(SH,4)}, 0 offen{NTF}", vm="hl")]]
    vZ4 = vHE + 12
    h_math = ([I(f"v_alignbit_b32 v{vHO_}, v{vHE}, v{vHP}, 16", wvm="hl")] +
              [f"v_alignbit_b32 v{vHO_+d}, v{vHE+d}, v{vHE+d-1}, 16" for d in range(1, 4)] +
              [f"v_mov_b32 v{vZ4+d}, 0" for d in range(4)] + [L(f"""
        s_lshr_b32 s{sT2}, s{sW}, 2
        s_mul_i32 s{sT2}, s{sT2}, {CVCH}
        s_add_u32 s{sT2}, s{sT2}, {L_CV}
        v_min_u32 v{vHP+1}, 35, v0
        v_lshlrev_b32 v{vHP+1}, 4, v{vHP+1}
        v_lshrrev_b32 v{vHP}, 5, v0
        v_lshl_add_u32 v{vHP+1}, v{vHP}, 12, v{vHP+1}
        v_add_u32 v{vHP+1}, s{sT2}, v{vHP+1}
        s_and_b32 s{sT3}, s{sW}, 3
        s_lshl_b32 s{sT3}, s{sT3}, 10
        s_add_u32 s{sT2}, s{sT2}, s{sT3}
        v_add_u32 v{vHP}, s{sT2}, v{vL16}
        """)])
    h_write = [I(f"ds_write_b128 v{vHP}, {vr(vHE,4)} offset:4608", lg="hw"),
               I(f"ds_write_b128 v{vHP}, {vr(vHO_,4)} offset:{4608+4160}", lg="hw"),
               I(f"ds_write_b128 v{vHP+1}, {vr(vZ4,4)} offset:4096", lg="hw")]
    vFL, vFA = 18, 19
    def wf_addr_(sE, vFA, vFL): return L(f"""
        s_lshl_b32 s{sT2}, s{sCT2}, 3
        s_add_u32 s{sT2}, s{sT2}, s{sW}
        s_and_b32 s{sE}, s{sCT2}, 6
        s_lshl_b32 s{sE}, s{sE}, 1
        s_add_u32 s{sE}, s{sE}, s{sWC}
        s_lshl_b32 s{sE}, s{sE}, 1
        s_and_b32 s{sT3}, s{sCT2}, 1
        s_add_u32 s{sE}, s{sE}, s{sT3}
        s_lshl_b32 s{sE}, s{sE}, 4
        s_add_u32 s{sE}, s{sE}, s{sWR}
        s_lshl_b32 s{sE}, s{sE}, 5
        s_add_u32 s{sE}, s{sE}, {WS_RS + 64 + 4 + (16384 if oi("rl", -1) >= 0 else 0)}
        s_mul_i32 s{sT2}, s{sT2}, 28672
        s_mul_i32 s{sT3}, s{sHI}, 12288
        s_add_u32 s{sT2}, s{sT2}, s{sT3}
        s_add_u32 s{sT2}, s{sT2}, {WS_WT}
        s_lshl_b32 s{sT3}, s{sRBL}, 10
        s_add_u32 s{sMO}, s{sT2}, s{sT3}
        s_xor_b32 s{sMO+1}, s{sMO}, 1024
        s_xor_b32 s{sMO+2}, s{sMO}, 2048
        s_xor_b32 s{sMO+3}, s{sMO}, 3072
        v_min_u32 v{vFA}, 27, v0
        v_and_b32 v{vFL}, 28, v{vFA}
        v_add_u32 v{vFA}, v{vFA}, v{vFL}
        v_lshlrev_b32 v{vFA}, 3, v{vFA}
        """)
    wf_addr = wf_addr_(sE, vFA, vFL)
    wf_ld = f"buffer_load_dword v{vFL}, v{vFA}, {sr(SWS,4)}, s{sE} offen sc1"
    def wd_loads():
        o = []
        for i in range(28):
            ks, mt = divmod(i, 4)
            g = []
            if i == 16:
                g += [f"s_mul_i32 s{sT3}, s{sHI}, 28672"] + [f"s_sub_u32 s{sMO+m}, s{sMO+m}, s{sT3}" for m in range(4)]
            g += [f"s_add_u32 s{sT3}, s{sMO+mt}, {4096*ks}",
                  I(f"buffer_load_dwordx4 {vr(WDF(i),4)}, v{vL16}, {sr(SWS,4)}, s{sT3} offen sc1" if i < oi("wx", 99) else
                    f"buffer_load_dword {vr(WDF(i),1)}, off, {sr(SWS,4)}, s{sT3} sc1", vm=f"wd{ks}")]
            o.append(g)
        return o
    vKA, vKL = 29, 30
    kf_addr = [f"v_and_b32 v{vKA}, 31, v0", f"v_lshlrev_b32 v{vKA}, 2, v{vKA}", f"s_lshl_b32 s{sC}, s{sXCD}, 7",
               f"s_add_u32 s{sC}, s{sC}, {WS_FKV}"]
    kf_ld = f"buffer_load_dword v{vKL}, v{vKA}, {sr(SWS,4)}, s{sC} offen sc1"
    def r_dma(t):
        return L(f"""
        s_lshr_b32 s{sT2}, s{sW}, 2
        s_mul_i32 s{sT3}, s{sT2}, {CVCH - 4096}
        s_lshl_b32 s{sT2}, s{sT2}, 4
        v_lshl_add_u32 v{t}, v0, 5, s{sT2}
        s_lshl_b32 s{sT2}, s{sW}, 10
        s_add_u32 s{sT3}, s{sT3}, s{sT2}
        s_add_u32 m0, s{sT3}, {L_CV}
        s_and_b32 s{sT2}, s{sM0X}, 0x1800
        s_lshl_b32 s{sT3}, s{sCP}, 13
        s_add_u32 s{sT2}, s{sT2}, s{sT3}
        s_add_u32 s{sT2}, s{sT2}, {WS_KV}
        """) + [I(f"buffer_load_dwordx4 v{t}, {sr(SWS,4)}, s{sT2} offen sc1 lds", vm="R")]

    WL = wd_loads()
    wsched = {17: 1, 18: 1, 19: 1, 21: 1, 22: 1, 23: 1, 24: 1, 25: 2, 26: 2, 27: 2, 29: 1, 30: 2, 31: 2}
    wsched = {k: n for k, n in wsched.items() if k >= oi("pw", 20) + 3}
    for o in opt:
        if o.startswith("ws="): wsched = {32 - len(o[3:]) + i: int(ch) for i, ch in enumerate(o[3:])}
    assert min(k for k, n in wsched.items() if n) >= oi("pw", 20) + oi("pd", 3)
    wepi = [int(x) for x in str(oi("we", 3320)).zfill(4)]
    NPRE = sum(wsched.values()) + sum(wepi)
    vq_pro = list(a.vq)
    a(f"s_cmp_eq_u32 s{sISG}, 0\ns_cbranch_scc1 {AUX}")
    if "nogemm" in opt: a(f"s_branch {END}")
    SP, SPS = oi("sp", 0), oi("ss", 64)
    h_pre = [f"s_and_b32 s{sT2}, s{sW}, 3", f"s_lshl_b32 s{sT2}, s{sT2}, 10"] + [
        f"s_buffer_load_dword s{sCNT}, {sr(SH,4)}, s{sT2} offset:{o}" for o in range(0, 1024, SPS)]
    if SP == 1: a(h_pre)
    a(chunk_dma(0))
    if SP == 2: a(h_pre)
    WP, vWPA, vWPS, vWPL, CSA, CS1 = 208, 212, 213, 214, 240, 236
    sWPS, sWPF, sWPM = SSH, SSH + 1, SSH + 3
    a(f"""
    v_and_b32 v23, 3, v20
    v_lshrrev_b32 v26, 5, v0
    v_lshl_add_u32 v23, v26, 3, v23
    v_lshlrev_b32 v26, 4, v22
    v_lshl_add_u32 v{vWPL}, v23, 10, v26
    s_mov_b32 s{sE}, s{sXCD}
    s_lshl_b32 s{sT2}, s{sRBL}, 1
    s_add_u32 s{sT2}, s{sT2}, s{sB}
    s_mul_i32 s{sT3}, s{sT2}, 7
    s_add_u32 s{sT3}, s{sT3}, s{sCT2}
    s_mul_i32 s{sWPS}, s{sE}, 56
    s_add_u32 s{sWPS}, s{sWPS}, s{sT3}
    s_lshl_b32 s{sWPS}, s{sWPS}, 12
    s_lshl_b32 s{sT1}, s{sC}, 8
    s_add_u32 s{sWPS}, s{sWPS}, s{sT1}
    s_add_u32 s{sWPS}, s{sWPS}, {WS_WT}
    s_lshl_b32 s{sT3}, s{sT3}, 15
    s_lshl_b32 s{sT1}, s{sWR}, 12
    s_add_u32 s{sT3}, s{sT3}, s{sT1}
    s_lshl_b32 s{sT1}, s{sWC}, 14
    s_and_b32 s{sT1}, s{sT1}, 0x4000
    s_add_u32 s{sT3}, s{sT3}, s{sT1}
    s_lshl_b32 s{sT1}, s{sE}, 7
    s_add_u32 s{sWPF}, s{sT3}, s{sT1}
    s_lshl_b32 s{sT2}, s{sW}, 10
    s_add_u32 s{sWPM}, s{sT2}, {L_WP}
    s_barrier
    """)
    wp_load = [f"s_mov_b32 m0, s{sWPM}", I(f"buffer_load_dwordx4 v{vWPL}, {sr(SWD,4)}, s{sWPF} offen{NTH} lds", vm="wpl")]
    SWL, SWR, SRS, SPW, SHL, SPF, SRL = oi("wl", -1), oi("wr", 4), oi("rs", 11), oi("pw", 20), oi("hl", 9), oi("pf", 0), oi("rl", -1)
    SKF, SRD = oi("kf", 28), oi("rd", 32)
    if SWL < 0: a(wp_load)
    a(f"""
    v_lshlrev_b32 v23, 7, v24
    v_lshl_add_u32 v23, v21, 5, v23
    v_lshl_add_u32 v23, v25, 3, v23
    v_add_u32 v{vWPA}, s{sWPM}, v23
    """)
    C1E = oi("c1e", 2)
    if SRL >= 0: a(row_load()[0]); a(row_load()[1][:4])
    elif "rowl" not in opt: a(row_load())
    if SHL == -3: a(h_load(27))
    a(chunk_dma(1)[:C1E])
    if SHL == -4: a(h_load(27))
    if "th" in opt: a(I(f"buffer_load_dword v{vHP}, off, {sr(SH,4)}, 0", vm="th"))
    a(f"""
    v_and_b32 v23, 15, v0
    v_lshlrev_b32 v23, 4, v23
    v_lshl_add_u32 v{vWPS}, v21, 10, v23
    v_and_b32 v24, 31, v0
    v_lshrrev_b32 v25, 5, v0
    v_bfe_u32 v22, v0, 1, 3
    v_xor_b32 v22, v22, v25
    v_lshlrev_b32 v22, 4, v22
    v_lshl_add_u32 v22, v24, 7, v22
    s_lshl_b32 s{sT0}, s{sWR}, 13
    v_add_u32 v{vXB}, s{sT0}, v22
    v_xor_b32 v{vXB+1}, 32, v{vXB}
    v_xor_b32 v{vXB+2}, 64, v{vXB}
    v_xor_b32 v{vXB+3}, 96, v{vXB}
    v_add_u32 v{vXB+4}, {2*STAGE}, v{vXB}
    v_add_u32 v{vXB+5}, {2*STAGE}, v{vXB+1}
    v_add_u32 v{vXB+6}, {2*STAGE}, v{vXB+2}
    v_add_u32 v{vXB+7}, {2*STAGE}, v{vXB+3}
    v_bfe_u32 v23, v0, 2, 2
    v_lshl_add_u32 v24, v25, 3, v23
    v_lshlrev_b32 v24, 8, v24
    v_xor_b32 v23, s{sWC}, v23
    v_lshl_add_u32 v24, v23, 6, v24
    v_bfe_u32 v23, v0, 4, 1
    v_lshl_add_u32 v24, v23, 5, v24
    v_and_b32 v23, 3, v0
    v_lshl_add_u32 v24, v23, 3, v24
    v_add_u32 v{vWB}, 16384, v24
    v_add_u32 v{vWB+1}, {STAGE+16384}, v24
    v_add_u32 v{vWB+2}, {2*STAGE+16384}, v24
    v_mov_b32 v{CS1}, 0x3f803f80
    v_mov_b32 v{CS1+1}, 0x3f803f80
    v_mov_b32 v{CS1+2}, 0x3f803f80
    v_mov_b32 v{CS1+3}, 0x3f803f80
    """)
    stamp("K0")
    if "dmaonly" in opt:
        DD = oi("dd", 2)
        if C1E < 6: a(chunk_dma(1)[0][:4]); a(chunk_dma(1)[C1E:])
        for c in range(2, DD): a(chunk_dma(c))
        for c in range(8):
            a(I(wvm=f"c{c}"))
            if "dnb" not in opt: a("s_barrier")
            stamp(f"B{c}")
            if c + DD < 8: a(chunk_dma(c + DD))
        a("s_branch L_prof")
        opt = [o for o in opt if not o.startswith("st=")] + ["st=end"]

    def F(s): return FR + 16 * (s & 1)
    def reads(s):
        c, j = divmod(s, 4)
        st = c % 3
        xb = vXB + j + (4 if st == 2 else 0); im = STAGE if st == 1 else 0
        wb = vWB + st; wo = 4096 * j
        f = F(s); t = f"r{s}"
        return [I(f"ds_read_b64_tr_b16 {vr(f,2)}, v{wb} offset:{wo}", lg=t),
                I(f"ds_read_b64_tr_b16 {vr(f+2,2)}, v{wb} offset:{wo+1024}", lg=t),
                I(f"ds_read_b128 {vr(f+8,4)}, v{xb} offset:{im}", lg=t),
                I(f"ds_read_b64_tr_b16 {vr(f+4,2)}, v{wb} offset:{wo+16384}", lg=t),
                I(f"ds_read_b64_tr_b16 {vr(f+6,2)}, v{wb} offset:{wo+17408}", lg=t),
                I(f"ds_read_b128 {vr(f+12,4)}, v{xb} offset:{im+4096}", lg=t)]
    def mfmas(A, B, first=False, par=0):
        out = []
        for nt in range(2):
            for m in range(2):
                d = ACC + 32 * m + 16 * nt
                if "m16x" in opt:
                    for h in range(2):
                        e = d + 8 * (par & 1) + 4 * h
                        out.append(f"v_mfma_f32_16x16x32_bf16 {vr(e,4)}, {vr(A[m ^ h],4)}, {vr(B[nt],4)}, {'0' if par < 2 else vr(e,4)}")
                    continue
                out.append(f"v_mfma_f32_32x32x16_bf16 {vr(d,16)}, {vr(A[m],4)}, {vr(B[nt],4)}, {'0' if first else vr(d,16)}")
        if "snk" in opt: out = [out[0], out[1], out[3], out[2]]
        if "snb" in opt: out = [out[0], out[2], out[3], out[1]]
        if "sna" in opt: out = [out[0], out[2], out[1], out[3]]
        return out
    def cs_mfma(p):
        o = []
        for m in range(2):
            o += [f"s_bitcmp1_b32 s{sCSM}, {m}", f"s_cbranch_scc0 L_cs{p}_{m}",
                  f"v_mfma_f32_32x32x16_bf16 {vr(CSA,16)}, {vr(CS1,4)}, {vr(F(p)+4*m,4)}, {'0' if p == 0 else vr(CSA,16)}",
                  f"L_cs{p}_{m}:"]
        return o
    sCSB = SSH + 2
    cs_store = [L(f"""
        s_lshl_b32 s{sCSB}, s{sCB}, 2
        s_add_u32 s{sCSB}, s{sCSB}, s{sWC}
        s_lshl_b32 s{sCSB}, s{sCSB}, 10
        s_add_u32 s{sCSB}, s{sCSB}, {WS_CS}
        s_cmp_eq_u32 s{sCSM}, {'s%d' % sCSM if "nocs" in opt else 0}
        s_cbranch_scc1 L_nocs
        v_cvt_pk_bf16_f32 v{CSA+1}, v{CSA}, v{CSA}
        s_mul_i32 s{sT2}, s{sWR}, 57344
        v_lshlrev_b32 v{CSA+1}, 16, v{CSA+1}
        s_lshr_b32 s{sT3}, s{sKEY}, 1
        v_sub_f32 v{CSA+1}, v{CSA}, v{CSA+1}
        s_lshl_b32 s{sT3}, s{sT3}, 3
        v_cvt_pk_bf16_f32 v{CSA}, v{CSA}, v{CSA+1}
        s_add_u32 s{sT2}, s{sT2}, s{sT3}
        v_mov_b32 v{CSA+1}, v{vTAG}
        s_add_u32 s{sT2}, s{sT2}, s{sCSB}
        v_lshlrev_b32 v{CSA+2}, 5, v0
        s_mov_b32 exec_hi, 0
        buffer_store_dwordx2 {vr(CSA,2)}, v{CSA+2}, {sr(SWS,4)}, s{sT2} offen sc1
        s_mov_b32 exec_hi, -1
        L_nocs:
        """)]
    EG, EU, ER, EB0, EB1 = 128, 132, 20, 136, 140
    ex_addr = L(f"""
        v_and_b32 v24, 31, v0
        v_lshrrev_b32 v25, 5, v0
        v_lshlrev_b32 v25, 4, v25
        v_lshl_add_u32 v{vX0}, v24, 5, v25
        v_and_b32 v24, 15, v0
        v_lshrrev_b32 v25, 4, v0
        v_lshlrev_b32 v25, 3, v25
        v_lshl_add_u32 v{vX1}, v24, 5, v25
        s_lshl_b32 s{sKEY}, s{sRB}, 1
        s_add_u32 s{sKEY}, s{sKEY}, s{sWR}
        s_lshl_b32 s{sWB}, s{sKEY}, 9
        s_add_u32 s{sWB}, s{sWB}, {WS_RS}
        s_add_u32 s{sXB}, s{sCSB}, 57344
        """)
    ex_ld = [f"buffer_load_dwordx4 {vr(EG,4)}, v{vX0}, {sr(SWS,4)}, s{sCSB} offen sc1",
             f"buffer_load_dwordx4 {vr(EU,4)}, v{vX0}, {sr(SWS,4)}, s{sXB} offen sc1",
             f"buffer_load_dwordx2 {vr(ER,2)}, v{vX1}, {sr(SWS,4)}, s{sWB} offen sc1"]
    ex_check = L(f"""
        v_min3_u32 v24, v{EG+1}, v{EG+3}, v{ER+1}
        v_max3_u32 v25, v{EG+1}, v{EG+3}, v{ER+1}
        v_min3_u32 v24, v24, v{EU+1}, v{EU+3}
        v_max3_u32 v25, v25, v{EU+1}, v{EU+3}
        v_cmp_ne_u32 vcc, s{sTAG}, v24
        v_cmp_ne_u32 s[{sT0}:{sT1}], s{sTAG}, v25
        s_or_b64 vcc, vcc, s[{sT0}:{sT1}]
        """)
    AP, BP, SS, vHO, TM = 22, 24, 26, 28, FR
    RM = row_math()
    def part(lst, i, n): return lst[len(lst) * i // n:len(lst) * (i + 1) // n]
    def os_(k, d=""): return ([o[len(k):] for o in opt if o.startswith(k)] + [d])[0]
    W = [0]
    def cum(t): return [sum(int(x) for x in t[:i]) for i in range(5)]
    def step(s, role):
        wi = W[0]
        c, j = divmod(s, 4)
        fill = []; pre = []; post = []
        if j == 0 and s < 32:
            a(I(wvm=f"c{c}", wlg="*"))
            a("s_barrier")
            stamp(f"B{c}")
            PR_ = os_(f"Rq{role}=")
            if PR_ and (c == 0 or PR_[c] != PR_[c - 1]): a(f"s_setprio {PR_[c]}")
            if "g1only" in opt and s == 20: a("s_waitcnt vmcnt(0)\ns_branch L_prof")
        DR = os_("drop=")
        if s == SWL: pre += [wp_load]
        if s == SPW: pre += [ap(wf_ld, 28, "apw", "fw")]
        if s == SKF: pre += [ap(kf_ld, 32, "apk", "kf")]
        if s == 28: pre += [I(x, vm="ex") for x in ex_ld]
        if s == 0:
            assert C1E in (0, 2, 4, 6)
            if 0 < C1E < 6: fill += [chunk_dma(1)[0][:4]]
            fill += chunk_dma(1)[C1E:]
            if "rowl" in opt: fill += row_load()
            if SHL == -5: fill += h_load(27)
        if c <= 5:
            cu = cum(os_(f"Re{role}=", "0222") if c == 0 and C1E < 6 else os_(f"Rd{role}{c}=", os_(f"Rd{role}=", "2121")))
            assert cu[4] == 6
            g = chunk_dma(c + 2)[cu[j]:cu[j + 1]]
            pm = os_(f"Rm{role}=", "0000")[j]
            hp = os_(f"Rp{role}=", "0")
            if hp[0] != "0" and g:
                if pm == "0" and s: g = [[f"s_setprio {hp[0]}", x, "s_setprio 0"] for x in g]
                else: g = [f"s_setprio {hp[0]}"] + g + ["s_setprio 0"]
            if s == 0 or pm == "0": fill += g
            elif pm == "1": pre += g
            else: post += g
        IL = os_("il=", "")
        RD = reads(s) if s < 32 else []
        if IL:
            for x, t in zip(RD, "aaabbc"): x.lg += t
        if not IL or s == 0: a(RD)
        wp_rd = [I(f"ds_read_b64_tr_b16 {vr(WP,2)}, v{vWPA}", lg="wp", wvm="wpl"),
                 I(f"ds_read_b64_tr_b16 {vr(WP+2,2)}, v{vWPA} offset:512", lg="wp")]
        wp_st = I(f"buffer_store_dwordx4 {vr(WP,4)}, v{vWPS}, {sr(SWS,4)}, s{sWPS} offen sc1", vm="wps", wlg="wp")
        if s == 0:
            a(pre + fill + (wp_rd if SWR == 0 else [])); return
        p = s - 1
        v = []
        if s in (SHL, SHL + oi("hd", 2)) and "h" not in DR:
            g = h_load(31)[(s - SHL) // oi("hd", 2)]
            if "hx" in opt: g[-1].text = g[-1].text.replace(sr(SH, 4), sr(SX, 4))
            if not (("1" in DR and s == SHL) or ("2" in DR and s != SHL)): fill += [g]
        if s == oi("tg", 4) and "t" not in DR: v += [I(tag_math[0], wvm="ep")] + tag_math[1:]
        if s == SWR and "w" not in DR: fill += wp_rd
        if s == SWR + 1 and "w" not in DR: fill = [wp_st] + fill if SWR == 0 else fill + [wp_st]
        RM0, RMN = oi("rm", 5), oi("rn", 5)
        if s == SRL:
            x = row_load()[1][4:]; x[-1].vm = "xr"; fill += [x]
        if SRL >= 0 and s == RM0: v += [I(f"s_mov_b32 s{sB}, 0x3f803f80", wvm="xr")]
        if SRL >= 0 and s == oi("wf", 11):
            fill += [[f"s_lshl_b32 s{sT2}, s{sA}, 3", f"s_add_u32 s{sT2}, s{sT2}, {WS_RS + 16384}"] +
                     one(f"buffer_store_dword v{vTAG}, off, {sr(SWS,4)}, s{sT2} offset:4 sc1", vm="wf", wvm="wps")]
        if RM0 <= s < RM0 + RMN and "t" not in DR: v += part(RM[:-1], s - RM0, RMN)
        if s == SRS and "r" not in DR: fill = [RM[-1]] + fill if "rsf" in opt else fill + [RM[-1]]
        if s == 10 and "c" not in DR: v += cs_store
        if s == 11 and "a" not in DR: v += [wf_addr]
        HM, HW = oi("hm", 21), oi("hw", 24)
        if HM <= s <= HM + 2: v += part(h_math, s - HM, 3)
        if s == SPW + oi("pd", 3): pre += [[I(wvm="fw")] + ne(vFL) + ["s_cbranch_scc0 L_fw_ok"] + spin("fw", ap(wf_ld, 28, "apw"), ne(vFL))]
        if s == 19: v += kf_addr
        if HW <= s <= HW + 2: v += [h_write[s - HW]]
        if s == 27: v += ex_addr
        if s == SRD: fill = [[I(wvm="kf")] + ne(vKL) + [f"s_cselect_b32 s{sOK}, 0, 1"] +
                             ([f"s_cselect_b64 vcc, 0, -1"] + r_dma(24)[:-1] + ["s_mov_b64 exec, vcc", r_dma(24)[-1], "s_mov_b64 exec, -1"] if "mskr" in opt else r_dma(oi("rt", 24)))] + fill
        if s == 30: v += [f"v_mov_b32 v{r}, 0" for r in (EB0 + 1, EB0 + 3, EB1 + 1, EB1 + 3)] + [f"s_mov_b32 s{sB}, 0x03020302"]
        n = wsched.get(s, 0); fill += WL[wi:wi + n]; W[0] += n
        if s == 32:
            a(I(wvm="ex"))
            a(ex_check + ["s_cbranch_scc0 L_ex_ok"] + spin("ex", ex_ld, ex_check))
            v += L(f"""
            v_mov_b32 v{ER+1}, v{ER}
            v_permlane32_swap_b32 v{ER}, v{ER+1}
            v_perm_b32 v{EB0}, v{ER}, v{ER}, s{sB}
            v_perm_b32 v{EB0+2}, v{ER}, v{ER}, s{sB}
            v_perm_b32 v{EB1}, v{ER+1}, v{ER+1}, s{sB}
            v_perm_b32 v{EB1+2}, v{ER+1}, v{ER+1}, s{sB}
            v_lshlrev_b32 v{ER}, 16, v{ER}
            v_lshlrev_b32 v{ER+1}, 16, v{ER+1}
            """)
        hd = []
        if c <= 5 and os_(f"Rm{role}=", "0000")[j] == "1": hd, pre = pre, []
        fill = pre + (mix(v, fill) if len(v) >= len(fill) else mix(fill, v)) if (v and fill) else pre + v + fill
        a(hd)
        f = F(p)
        MM = mfmas((f, f + 4), (f + 8, f + 12), p == 0, p)
        if IL:
            nm = len(MM)
            cu2 = lambda t: [sum(int(x) for x in t[:i]) for i in range(nm + 1)]
            rc = cu2(IL[:nm]); fc = cu2(IL[nm:2 * nm])
            assert rc[nm] == 6
            for i in range(nm):
                a(I(MM[i], wlg=f"r{p}" + ("abcc" if nm == 4 else "abbbcccc")[i]))
                a(RD[rc[i]:rc[i + 1]])
                a(fill[(len(fill) * fc[i] + fc[nm] // 2) // fc[nm]:(len(fill) * fc[i + 1] + fc[nm] // 2) // fc[nm]])
        else:
            a(I(wlg=f"r{p}"))
            a(mix(MM, fill))
        if p < 8 and "nocs" not in opt and "c" not in DR: a(cs_mfma(p))
        a(post)
        stamp(f"s{s}")
    if "split" in opt:
        a(f"s_cmp_lt_u32 s{sW}, 4\ns_cbranch_scc0 L_g1y")
        sv = (list(a.vq), list(a.lq), W[0])
        for s in range(24): step(s, "o")
        a(I(wvm="c6", wlg="*"))
        a("s_branch L_g1m")
        vo = list(a.vq)
        a("L_g1y:")
        a.vq, a.lq, W[0] = sv
        i0 = len(a.lines)
        for s in range(24): step(s, "y")
        a(I(wvm="c6", wlg="*"))
        defs = [x[:-1] for x in a.lines[i0:] if x.endswith(":")]
        for i in range(i0, len(a.lines)):
            for d in defs: a.lines[i] = re.sub(rf"\b{d}\b", d + "_y", a.lines[i])
        a("L_g1m:")
        a.vq = [tuple(set(vo + a.vq))]
        for s in range(24, 33): step(s, "o")
    else:
        for s in range(33): step(s, "o")
    wi = W[0]
    fill = []
    EO = oi("eo", 2)
    cA, cB, cS = ([lambda nt, b=b: b + nt for b in (AP, BP, SS)] if EO == 0 else
                  [lambda nt, b=b: FR + 16 + 6 * nt + b for b in (0, 2, 4)])
    for nt in range(2):
        fill += [f"v_rcp_f32 v{TM+nt}, v{ER+nt}", f"v_mul_f32 v{cS(nt)}, v{ER+nt}, v{ER+nt}"]
        if EO == 2: fill += [f"v_mul_f32 v{cS(nt)+1}, v{ER+nt}, v{ER+nt}"]
    for nt in range(2):
        fill += [f"v_mul_f32 v{cA(nt)}, {fx(-KC)}, v{TM+nt}"]
        if EO == 2: fill += [f"v_mul_f32 v{cA(nt)+1}, {fx(-KC)}, v{TM+nt}"]
        fill += [f"v_mul_f32 v{TM+nt}, v{TM+nt}, v{TM+nt}",
                 f"v_mul_f32 v{TM+nt}, {fx(0.044715)}, v{TM+nt}", f"v_mul_f32 v{cB(nt)}, v{cA(nt)}, v{TM+nt}"]
        if EO == 2: fill += [f"v_mul_f32 v{cB(nt)+1}, v{cA(nt)}, v{TM+nt}"]
    sHF = SK
    fill += L(f"""
    v_bfe_u32 v{TM+8}, v0, 4, 1
    v_mul_u32_u24 v{TM+8}, 57344, v{TM+8}
    v_and_b32 v{TM+9}, 15, v0
    v_lshl_add_u32 v{TM+8}, v{TM+9}, 4, v{TM+8}
    v_lshrrev_b32 v{TM+9}, 5, v0
    v_lshl_add_u32 v{vHO}, v{TM+9}, 8, v{TM+8}
    s_mul_i32 s{sXB}, s{sKEY}, {4*56*1024}
    s_add_u32 s{sXB}, s{sXB}, s{sCSB}
    s_add_u32 s{sXB}, s{sXB}, {WS_H - WS_CS}
    s_add_u32 s{sWB}, s{sXB}, {2*56*1024}
    s_sub_u32 s{sHF}, s{sCSB}, {WS_CS}
    s_lshr_b32 s{sHF}, s{sHF}, {10 - FS}
    s_mul_i32 s{sT0}, s{sKEY}, {56 << FS}
    s_add_u32 s{sHF}, s{sHF}, s{sT0}
    s_add_u32 s{sHF}, s{sHF}, {WS_FH}
    """)
    a(mix(mfmas((EG, EU), (EB0, EB1), False, 2), fill))
    stamp("B8")
    def epi(G, U, nt, rr, pk, plain=False):
        o = []
        t = {r: TM + 2 * i for i, r in enumerate(rr)}
        P = lambda x: vr(x, 2)
        s2 = (f"op_sel:[0,{nt},{nt}] op_sel_hi:[1,{nt},{nt}]", "op_sel_hi:[1,0,0]", "")[EO]
        AP, BP, SS = [f(nt) & ~1 for f in (cA, cB, cS)]
        if plain:
            e = [(t[r] + i, G + r + i, U + r + i) for r in rr for i in range(2)]
            o += [f"v_mul_f32 v{x}, v{g}, v{g}" for x, g, u in e]
            o += [f"v_fma_f32 v{x}, v{x}, v{BP}, v{AP}" for x, g, u in e]
            o += [f"v_mul_f32 v{x}, v{x}, v{g}" for x, g, u in e]
            o += mix([f"v_exp_f32 v{x}, v{x}" for x, g, u in e], [f"v_mul_f32 v{u}, v{u}, v{g}" for x, g, u in e])
            o += [f"v_fma_f32 v{x}, v{x}, v{SS}, v{SS}" for x, g, u in e]
            o += [f"v_rcp_f32 v{x}, v{x}" for x, g, u in e]
            o += [f"v_mul_f32 v{u}, v{u}, v{x}" for x, g, u in e]
            o += [f"v_cvt_pk_bf16_f32 v{pk+i}, v{U+r}, v{U+r+1}" for i, r in enumerate(rr)]
            return o
        o += [f"v_pk_mul_f32 {P(t[r])}, {P(G+r)}, {P(G+r)}" for r in rr]
        o += [f"v_pk_fma_f32 {P(t[r])}, {P(t[r])}, {P(BP)}, {P(AP)} {s2}" for r in rr]
        o += [f"v_pk_mul_f32 {P(t[r])}, {P(t[r])}, {P(G+r)}" for r in rr]
        o += mix([f"v_exp_f32 v{t[r]+i}, v{t[r]+i}" for r in rr for i in range(2)],
                 [f"v_pk_mul_f32 {P(U+r)}, {P(U+r)}, {P(G+r)}" for r in rr])
        o += [f"v_pk_fma_f32 {P(t[r])}, {P(t[r])}, {P(SS)}, {P(SS)} {s2}" for r in rr]
        o += [f"v_rcp_f32 v{t[r]+i}, v{t[r]+i}" for r in rr for i in range(2)]
        o += [f"v_pk_mul_f32 {P(U+r)}, {P(U+r)}, {P(t[r])}" for r in rr]
        o += [f"v_cvt_pk_bf16_f32 v{pk+i}, v{U+r}, v{U+r+1}" for i, r in enumerate(rr)]
        return o
    HSP = ("sc1", "sc0 sc1", "sc1 nt", "sc0 sc1 nt", "", "nt")[oi("hsp", 0)]
    for nt in range(2):
        G = ACC + 16 * nt; U = ACC + 32 + 16 * nt
        for h in range(2):
            pk = TM + 8 + 4 * h
            seq = epi(G, U, nt, range(8 * h, 8 * h + 8, 2), pk, 2 * nt + h < oi('npl', 0))
            n = wepi[2 * nt + h]
            ex = WL[wi:wi + n]; wi += n
            q = 33 + 2 * nt + h
            if oi("hm", 21) == q: ex = ex + h_math
            if oi("hw", 24) == q: ex = ex + h_write
            a(mix(seq, ex))
            so = sXB if nt == 0 else sWB
            a(I(f"buffer_store_dwordx4 {vr(pk,4)}, v{vHO}, {sr(SWS,4)}, s{so} offen offset:{512*h} {HSP}", vm="hs"))
            stamp(f"e{2*nt+h}")
    assert wi == NPRE
    a(f"s_branch {JOIN}")
    vq_join = list(a.vq)

    a(f"{AUX}:")
    if "noaux" in opt: a(f"s_branch {END}")
    a.vq, a.lq = list(vq_pro), []
    vKa, vKb, TP, vT, vKS, KR, KT = 1, 2, 32, 6, 10, 48, 96
    sKO, sKL = sXB, sWB
    a(row_load())
    AXL = oi("axl", 0)
    if AXL & 2: a(h_load(27))
    if AXL & 1: a(I(wvm="ep")); a(tag_math); a(row_math())
    if AXL & 4: a(I(wvm="*"))
    if oi("asl", 0): a(f"s_sleep {oi('asl', 0)}")
    a(f"""
    s_xor_b32 s{sCB}, s{sXCD}, s{sW}
    v_and_b32 v23, 1, v21
    v_lshlrev_b32 v23, 1, v23
    v_xor_b32 v23, v22, v23
    v_lshlrev_b32 v23, 4, v23
    v_lshl_add_u32 v{vKa}, v20, 10, v23
    {f"v_lshlrev_b32 v{vKa}, 4, v0" if "kvlin" in opt else ""}
    v_xor_b32 v{vKb}, 64, v{vKa}
    s_lshl_b32 s{sKO}, s{sRBL}, 3
    s_add_u32 s{sKO}, s{sKO}, s{sW}
    s_mov_b32 s{sKEY}, s{sKO}
    s_lshl_b32 s{sKO}, s{sKO}, 16
    s_lshl_b32 s{sT0}, s{sCB}, {13 if "kvlin" in opt else 7}
    s_add_u32 s{sKO}, s{sKO}, s{sT0}
    s_mul_i32 s{sKL}, s{sW}, 17408
    s_mov_b32 m0, s{sKL}
    s_cmp_eq_u32 s{sKEY}, 0
    s_cbranch_scc1 L_halo0
    s_sub_u32 s{sT0}, s{sKO}, 8192
    buffer_load_dwordx4 v{vKa}, {sr(SK,4)}, s{sT0} offen lds
    s_branch L_halo1
    L_halo0:
    v_mov_b32 v40, 0
    v_mov_b32 v41, 0
    v_mov_b32 v42, 0
    v_mov_b32 v43, 0
    ds_write_b128 v{vL16}, v[40:43]
    L_halo1:
    """)
    def kv_ld(m, b, tag):
        lb = (1 + b) if m == 0 else (9 + b)
        par = (lb & 1) if m == 0 else (b & 1)
        return [f"s_add_u32 m0, s{sKL}, {1024*lb}", f"s_add_u32 s{sT0}, s{sKO}, {(1024 if 'kvlin' in opt else 8192)*b}",
                I(f"buffer_load_dwordx4 v{vKb if par else vKa}, {sr(SV if m else SK,4)}, s{sT0} offen{NTK} lds", vm=tag)]
    for b in range(4): a(kv_ld(0, b, "k0")); a(kv_ld(1, b, "k0"))
    a(f"""
    v_and_b32 v23, 15, v0
    v_lshlrev_b32 v26, 3, v23
    s_lshl_b32 s{sT1}, s{sCB}, 9
    """)
    for cg in range(4):
        a(I(f"buffer_load_dwordx2 {vr(TP+2*cg,2)}, v26, {sr(SSH,4)}, s{sT1} offen offset:{128*cg}", vm="k0"))
    for b in range(4, 8): a(kv_ld(0, b, "k1")); a(kv_ld(1, b, "k1"))
    if not AXL & 2: a(h_load(27))
    stamp("iss", 4)
    a(f"""
    v_lshlrev_b32 v26, 7, v24
    v_lshl_add_u32 v26, v21, 10, v26
    v_lshl_add_u32 v26, v25, 3, v26
    v_lshrrev_b32 v27, 1, v24
    v_lshl_add_u32 v26, v27, 5, v26
    v_and_b32 v27, 1, v21
    v_lshl_add_u32 v26, v27, 6, v26
    v_add_u32 v{vT}, s{sKL}, v26
    v_xor_b32 v{vT+1}, 32, v{vT}
    v_xor_b32 v{vT+2}, 64, v{vT}
    v_xor_b32 v{vT+3}, 96, v{vT}
    v_lshrrev_b32 v26, 1, v23
    v_lshlrev_b32 v26, 13, v26
    v_and_b32 v27, 1, v0
    v_lshl_add_u32 v26, v27, 4, v26
    v_sub_u32 v27, 3, v21
    v_lshl_add_u32 v{vKS}, v27, 5, v26
    s_lshl_b32 s{sKO}, s{sCB}, 18
    s_lshl_b32 s{sT0}, s{sKEY}, 8
    s_sub_u32 s{sKO}, s{sKO}, s{sT0}
    s_add_u32 s{sKO}, s{sKO}, {WS_KV + 8192 - 256}
    """)
    if not AXL & 1: a(I(wvm="ep")); a(tag_math); a(row_math())
    stamp("rs", 1)
    def kv_read(hh, cg):
        r = KR + 10 * cg; t = f"kr{cg}"
        return [I(f"ds_read_b64_tr_b16 {vr(r,2)}, v{vT+cg} offset:{4096*hh+512}", lg=t),
                I(f"ds_read_b64_tr_b16 {vr(r+2,2)}, v{vT+(cg^2)} offset:{4096*hh+1024}", lg=t),
                I(f"ds_read_b64_tr_b16 {vr(r+4,2)}, v{vT+(cg^2)} offset:{4096*hh+1536}", lg=t),
                I(f"ds_read_b64_tr_b16 {vr(r+6,2)}, v{vT+cg} offset:{4096*hh+9216}", lg=t),
                I(f"ds_read_b64_tr_b16 {vr(r+8,2)}, v{vT+cg} offset:{4096*hh+9728}", lg=t)]
    def kv_math(hh, cg):
        r = KR + 10 * cg; q, u, w, pk = KT, KT + 8, KT + 16, KT + 24 + 4 * (cg & 1)
        o = [I(wlg=f"kr{cg}")]
        o += [f"v_alignbit_b32 v{q+i}, v{r+i}, v{r+i-1}, 16" for i in range(1, 6)]
        src = lambda t, back: (r if t & 1 else q) + 2 + t // 2 - back
        for t in (1, 3, 5, 7, 0, 2, 4, 6): o += [f"v_dot2_f32_bf16 v{u+t}, v{src(t,0)}, v{TP+2*cg}, 0"]
        for t in (1, 3, 5, 7, 0, 2, 4, 6): o += [f"v_dot2_f32_bf16 v{u+t}, v{src(t,1)}, v{TP+2*cg+1}, v{u+t}"]
        o += [f"v_and_b32 v{w+t}, 0xffff0000, v{r+6+t//2}" if t & 1 else f"v_lshlrev_b32 v{w+t}, 16, v{r+6+t//2}" for t in range(8)]
        o += [f"v_mul_f32 v{u+t}, v{u+t}, v{w+t}" for t in range(8)]
        o += [f"v_cvt_pk_bf16_f32 v{pk+e}, v{u+7-2*e}, v{u+6-2*e}" for e in range(4)]
        o += [f"s_add_u32 s{sT0}, s{sKO}, {65536*cg}",
              I(f"buffer_store_dwordx4 {vr(pk,4)}, v{vKS}, {sr(SWS,4)}, s{sT0} offen offset:{128*(1-hh)} sc1", vm="ks")]
        return o
    for hh in range(2):
        a(I(wvm=f"k{hh}", wlg="*"))
        stamp("kin", 5 + 2 * hh)
        for cg in range(4): a(kv_read(hh, cg))
        if hh == 0:
            for d in range(8): a(f"v_alignbit_b32 v{TP+d}, v{TP+d}, v{TP+d}, 16")
        for cg in range(4): a(kv_math(hh, cg))
        stamp("km", 6 + 2 * hh)
    a(h_math); a(wf_addr)
    vKA2, vKL2 = 27, 28
    ld2 = f"buffer_load_dword v{vKL2}, v{vKA2}, {sr(SWS,4)}, s{sA} offen sc1"
    a(f"""
    s_lshl_b32 s{sT0}, s{sCB}, 5
    s_add_u32 s{sT0}, s{sT0}, s{sKEY}
    s_lshl_b32 s{sT0}, s{sT0}, 2
    s_add_u32 s{sT0}, s{sT0}, {WS_FKV}
    v_lshlrev_b32 v26, 10, v0
    v_lshlrev_b32 v{vKA2}, 3, v0
    s_lshl_b32 s{sA}, s{sRT2}, 9
    s_add_u32 s{sA}, s{sA}, {WS_RS + 4}
    """)
    a([I("s_mov_b64 exec, 3", wvm="*"), f"buffer_store_dword v{vTAG}, v26, {sr(SWS,4)}, s{sT0} offen sc1", "s_mov_b64 exec, -1"])
    stamp("kvf", 2)
    if "dmaonly" in opt or "g1only" in opt: a("s_branch L_prof")
    ck2 = [f"v_xor_b32 v{vFL}, s{sTAG}, v{vFL}", f"v_xor_b32 v{vKL2}, s{sTAG}, v{vKL2}", f"v_or_b32 v{vFL}, v{vFL}, v{vKL2}",
           f"v_cmp_ne_u32 vcc, 0, v{vFL}", "s_cmp_lg_u64 vcc, 0"]
    a("s_barrier")
    a(h_write)
    a(kf_addr); a(f"s_add_u32 s{sC}, s{sC}, 1024")
    stamp("wd", 3)
    a(spin("fwa", ap(wf_ld, 28, "apx") + ap(ld2, 64, "apx"), ck2))
    a(f"""
    s_cmp_lg_u32 s2, 0
    s_cbranch_scc1 L_ep_ok
    s_add_u32 s{sT0}, s{sM0X}, {WS_RS}
    """)
    a(spin("ep", [f"buffer_load_dwordx4 v[32:35], v{vL16}, {sr(SWS,4)}, s{sT0} offen sc1",
                  f"buffer_load_dwordx4 v[36:39], v{vL16}, {sr(SWS,4)}, s{sT0} offen offset:1024 sc1"],
           [f"v_xor_b32 v{r}, s{sTAG}, v{r}" for r in (33, 35, 37, 39)] +
           ["v_or3_b32 v33, v33, v35, v37", "v_or_b32 v33, v33, v39", "v_cmp_ne_u32 vcc, 0, v33", "s_cmp_lg_u64 vcc, 0"]))
    NA = oi("na", 8)
    a(WL[:NA])
    a(spin("kva", ap(kf_ld, 32, "apx"), ne(vKL)))
    a.vq = []
    a(r_dma(24)); a(WL[NA:NPRE]); a(I(wvm="R"))
    a(f"s_branch L_kvok")

    a(f"{JOIN}:")
    a.vq, a.lq = list(vq_join), []
    stamp("join")
    okv = ("s%d" % sOK) if "nocv" in opt else "1"
    a(f"s_cmp_eq_u32 s{sOK}, {okv}\ns_cbranch_scc1 L_kvok")
    a(spin("kv", ap(kf_ld, 32, "apk"), ne(vKL)))
    sv = list(a.vq); a(r_dma(24)); a(I(wvm="*")); a.vq = sv
    a("L_kvok:")
    CA, AF, BF = 32, 64, 128
    vRU, vRH, vPW, vPR, vZW, vZR, vYA, vYR, vOO = 2, 3, 4, 10, 11, 12, 13, 14, 30
    vXF, XN, vRC = 20, 22, 6
    vXF = 1
    sCH, sWQ, sCVB, sRHO = SV, SV + 1, SV + 2, SV + 3
    sOQ = SSH
    a(f"""
    s_lshr_b32 s{sCH}, s{sW}, 2
    s_and_b32 s{sWQ}, s{sW}, 3
    s_mul_i32 s{sCVB}, s{sCH}, {CVCH}
    s_add_u32 s{sCVB}, s{sCVB}, {L_CV}
    s_lshl_b32 s{sT0}, s{sWQ}, 7
    s_add_u32 s{sT0}, s{sT0}, s{sCVB}
    s_add_u32 s{sT1}, s{sT0}, 480
    v_and_b32 v15, 15, v0
    v_and_b32 v16, 48, v0
    v_lshlrev_b32 v31, 5, v15
    v_sub_u32 v31, v16, v31
    v_add_u32 v{vRU}, s{sT1}, v31
    s_add_u32 s{sT1}, s{sT0}, {4608 - 28 + 4160 + 3072}
    v_and_b32 v31, 1, v0
    v_mul_u32_u24 v31, 4160, v31
    v_sub_u32 v31, v16, v31
    v_bfe_u32 v{vRH}, v0, 1, 3
    v_lshl_add_u32 v31, v{vRH}, 2, v31
    v_add_u32 v{vRH}, s{sT1}, v31
    """)
    KHF = oi("hf", 5)
    hf_st = [f"s_cmp_eq_u32 s{sISG}, 0", "s_cbranch_scc1 L_nohf", I(wvm="hs"),
             line(sHF), "L_nohf:"]
    HP = oi("hp", 0)
    if HP:
        pre = [f"s_xor_b32 s{sT0}, s{sXCD}, s{sWR}", f"s_bitcmp1_b32 s{sT0}, 0", "s_cbranch_scc1 L_nohf"]
        if HP == 1:
            pre += ["v_lshrrev_b32 v13, 4, v0", "v_mul_u32_u24 v13, 57344, v13", "v_lshl_add_u32 v13, v15, 6, v13",
                    f"buffer_load_dword v14, v13, {sr(SWS,4)}, s{sXB} offen sc1"]
        if HP == 2:
            pre += ["v_lshrrev_b32 v13, 3, v0", "v_mul_u32_u24 v13, 57344, v13", "v_and_b32 v14, 7, v0", "v_lshl_add_u32 v13, v14, 7, v13",
                    "s_mov_b32 exec_hi, 0", f"buffer_load_dword v14, v13, {sr(SWS,4)}, s{sXB} offen sc1", "s_mov_b32 exec_hi, -1"]
        hf_st = hf_st[:-1] + pre + hf_st[-1:]
    if KHF < 0: a(hf_st); stamp("hflag")
    AM = oi("am", 0)
    a(f"s_cmp_eq_u32 s{sISG}, 0")
    if AM: a(f"s_cselect_b32 s{sOK}, 0, 0xff")
    a("s_cbranch_scc1 L_nowr")
    a(I(wvm="R"))
    a("L_nowr:")
    a(I(wlg="*"))
    if "noc1" not in opt: a("s_barrier")
    stamp("c1")
    a(f"s_or_b32 s{sT0}, s2, s{sW}\ns_cbranch_scc1 L_noep")
    a(one(f"buffer_store_dword v{vTAG}, off, {sr(SWS,4)}, 0 offset:{WS_EPOCH} sc1"))
    a("L_noep:")
    order = [(0, p) for p in range(7, -1, -1)] + [(1, p) for p in range(8)]
    def uread(rr, d): return I(f"ds_read_b128 {vr(AF+32*rr+4*d,4)}, v{vRU} offset:{512*(7-d)+64*rr}", lg=f"a{rr}{d}")
    def hread(k):
        rr, p = order[k]; o = 128 * (p & 1) + 16 * rr; b = BF + 4 * (k % 4)
        g = []
        if rr == 0 and p in (5, 3, 1): g += [f"v_subrev_u32 v{vRH}, 1024, v{vRH}"]
        if rr == 1 and p in (2, 4, 6): g += [f"v_add_u32 v{vRH}, 1024, v{vRH}"]
        return g + [I(f"ds_read2_b32 {vr(b,2)}, v{vRH} offset0:{o} offset1:{o+1}", lg=f"b{k}"),
                    I(f"ds_read2_b32 {vr(b+2,2)}, v{vRH} offset0:{o+2} offset1:{o+3}", lg=f"b{k}")]
    PC, PG = os_("pc="), os_("pg=")
    if PC: a(f"s_setprio {PC[0]}")
    for k in range(3): a(hread(k)); a(uread(0, k))
    for d in range(3, 8): a(uread(0, d))
    XV = 6
    fin_addr = L(f"""
        s_and_b32 s{sRHO}, s{sCT2}, 3
        s_lshl_b32 s{sT0}, s{sRT2}, 3
        s_add_u32 s{sT0}, s{sT0}, s{sW}
        s_lshl_b32 s{sOQ}, s{sT0}, 13
        s_lshl_b32 s{sT1}, s{sCT2}, 7
        s_add_u32 s{sOQ}, s{sOQ}, s{sT1}
        s_lshl_b32 s{sT0}, s{sT0}, 6
        s_add_u32 s{sOQ+1}, s{sT0}, {WS_RS}
        v_and_b32 v31, 3, v0
        v_lshrrev_b32 v1, 5, v0
        v_lshl_add_u32 v31, v1, 2, v31
        v_and_b32 v{vOO}, 28, v0
        v_lshlrev_b32 v{vOO}, 2, v{vOO}
        v_lshl_add_u32 v{vOO}, v31, 10, v{vOO}
        v_lshlrev_b32 v1, 3, v31
        """)
    fin_ld = [I(f"buffer_load_dwordx4 {vr(XV,4)}, v{vOO}, {sr(SX,4)}, s{sOQ} offen", vm="xt"),
              I(f"buffer_load_dword v{XN+7}, v1, {sr(SWS,4)}, s{sOQ+1} offen sc1", vm="xt")]
    if "to" in opt: fin_ld = [I(f"buffer_load_dword v{XN+6}, off, {sr(SOUT,4)}, s{sOQ}", vm="xt")] + fin_ld
    def unpack(d, x): return [f"v_and_b32 v{d+e}, 0xffff0000, v{x+e//2}" if e & 1 else f"v_lshlrev_b32 v{d+e}, 16, v{x+e//2}" for e in range(8)]
    xn_math = ([I(f"v_lshlrev_b32 v20, 16, v{XN+7}", wvm="xt"), f"v_and_b32 v21, 0xffff0000, v{XN+7}", "v_rcp_f32 v20, v20"] +
               unpack(XN, XV) + [f"v_add_f32 v{XN+e}, v{XN+e}, v21" for e in range(8)] +
               [f"v_mul_f32 v{XN+e}, v{XN+e}, v20" for e in range(8)])
    p_addr = L(f"""
        v_bfe_u32 v20, v0, 1, 2
        v_bfe_u32 v21, v0, 3, 1
        v_xor_b32 v20, v20, v21
        v_lshlrev_b32 v20, 4, v20
        v_xor_b32 v20, v20, v16
        v_lshl_add_u32 v20, v15, 6, v20
        s_lshl_b32 s{sT0}, s{sW}, 13
        v_add_u32 v{vPW}, s{sT0}, v20
        v_bfe_u32 v20, v0, 2, 2
        v_bfe_u32 v21, v0, 4, 1
        v_xor_b32 v20, v20, v21
        v_lshlrev_b32 v20, 4, v20
        v_lshlrev_b32 v21, 5, v0
        v_xor_b32 v20, v20, v21
        s_lshl_b32 s{sT0}, s{sCH}, 15
        s_lshl_b32 s{sT1}, s{sWQ}, 11
        s_add_u32 s{sT0}, s{sT0}, s{sT1}
        v_add_u32 v{vPR}, s{sT0}, v20
        """)
    HB, ZA, NS = 64, 32, 16
    sH1, sH2, sHQ = sXB, sWB, sKEY
    def HR(n): return HB + 4 * (n % NS if n % NS < 8 else 23 - n % NS)
    sMK = sA
    def hload(n, mask=False):
        qd, ks = divmod(n, 7)
        g = []
        if ks == 0:
            g += [f"s_xor_b32 s{sT3}, s{sRHO}, {qd}", f"s_mul_i32 s{sT3}, s{sT3}, 57344", f"s_add_u32 s{sH1}, s{sHQ}, s{sT3}",
                  f"s_sub_u32 s{sH2}, s{sH1}, s{sRB}"]
        t = I(f"buffer_load_dwordx4 {vr(HR(n),4)}, v{vL16}, {sr(SWS,4)}, s{sH1 if ks < 4 else sH2} offen offset:{(ks&3)*1024} sc1", vm=f"h{n}")
        if "hx2" in opt: return g + [f"s_mov_b64 exec, {sr(sMK,2)}" if mask else "s_nop 0", "s_mov_b32 exec_hi, 0", t, "s_mov_b64 exec, -1"]
        if "hx1" in opt: t = I(t.text.replace("dwordx4 " + vr(HR(n),4), "dword " + vr(HR(n),1)).replace(f"v{vL16},", "v15,"), vm=f"h{n}")
        return g + ([f"s_mov_b64 exec, {sr(sMK,2)}", t, "s_mov_b64 exec, -1"] if mask and "nomask" not in opt else [t])
    def again(n1):
        sv = list(a.vq)
        for n in range(n1): a(hload(n))
        a.vq = sv
    h_addr = L(f"""
        s_mul_i32 s{sHQ}, s{sRT2}, {4*56*1024}
        s_mul_i32 s{sT1}, s{sW}, 7168
        s_add_u32 s{sHQ}, s{sHQ}, s{sT1}
        s_mul_i32 s{sT1}, s{sHI}, 3072
        s_add_u32 s{sHQ}, s{sHQ}, s{sT1}
        s_add_u32 s{sHQ}, s{sHQ}, {WS_H}
        s_mul_i32 s{sRB}, s{sHI}, 7168
        s_sub_u32 s{sRB}, s{sRB}, 4096
        s_lshl_b32 s{sE}, s{sRT2}, 3
        s_add_u32 s{sE}, s{sE}, s{sW}
        s_mul_i32 s{sE}, s{sE}, {7 << FS}
        s_add_u32 s{sE}, s{sE}, {WS_FH + 4}
        v_min_u32 v{vFA}, 6, v0
        v_lshlrev_b32 v{vFA}, {FS}, v{vFA}
        """)
    KH, KR_, KA, KB = oi("kh", 8), oi("kq", 3), oi("ka", 6), oi("kb", 11)
    assert 8 <= KH <= 15 and KA < KH <= KB and KHF < KH
    PM = [o[3:].replace("_", " ") for o in opt if o.startswith("pm=")]
    def poll(at, vm=None, am=False):
        if not at:
            t = wf_ld.replace("sc1", PM[0]) if PM else wf_ld
            return [I(t, vm=vm)]
        return [f"v_mov_b32 v{vFL}, 0"] + ([f"s_mov_b32 exec_lo, s{sOK}", "s_mov_b32 exec_hi, 0"] if am else ["s_mov_b64 exec, 0xff"]) + [
                I(f"buffer_atomic_or v{vFL}, v{vFA}, {sr(SWS,4)}, s{sE} offen sc0 sc1", vm=vm), "s_mov_b64 exec, -1"]
    def ne8(at): return [f"v_cmp_ne_u32 vcc, s{sTAG}, v{vFL}", "s_and_b32 vcc_lo, vcc_lo, 0xff"] if at else ne(vFL)
    AH, AY = "aph" in opt or "apa" in opt, "apy" in opt or "apa" in opt
    hf_ld = poll(AH)
    hn = 0
    NB = oi("nb", NS); YL = [int(x) for x in os_("yl=", "0000")]; NY = NB + sum(YL); GQ = oi("gq", 2)
    assert NY <= NS
    def yl(i):
        for n in range(NB + sum(YL[:i]), NB + sum(YL[:i + 1])): a(hload(n, True))
    def pwrite(j): return I(f"ds_write_b128 v{vPW}, {vr(CA+4*j,4)} offset:{1024*j}", lg="pw")
    sYS = sCB
    if "nocv" in opt:
        a(fin_addr); a(h_addr)
        if "wtf" in opt: a(WL[NPRE:]); a(fin_ld)
        a(hf_st)
        if "bar2" in opt: a("s_barrier")
        if "wtf" not in opt: a(WL[NPRE:]); a(fin_ld)
        stamp("k1")
        a(xn_math)
        if "blind" not in opt: a(spin("hf0", [f"s_sleep {oi('sl', 0)}", hf_ld], ne8(AH)))
        stamp("k11")
        a.vq = []
        for n in range(NS): a(hload(n))
        a(f"s_mov_b32 s{sMK}, -1")
        a(I(wlg="*"))
        stamp("c3")
    else:
        for k, (rr, p) in enumerate(order):
            seq = []
            for j in range(p, 8):
                c = "0" if (rr == 0 and j == p) else vr(CA + 4 * j, 4)
                seq.append(I(f"v_mfma_f32_16x16x32_bf16 {vr(CA+4*j,4)}, {vr(BF+4*(k%4),4)}, {vr(AF+32*rr+4*(j-p),4)}, {c}",
                             wlg=[f"a{rr}{j-p}", f"b{k}"]))
            fill = []
            if k == 1: fill += [fin_addr]
            WK = os_("wk=")
            if WK:
                assert sum(int(x) for x in WK) == 28 - NPRE
                w0 = NPRE + sum(int(x) for x in WK[:k]); fill += WL[w0:w0 + int((WK + "0" * 16)[k])]
            elif 1 <= k <= 6: fill += part(WL[NPRE:], k - 1, 6)
            if k == oi("kx", 3): fill += fin_ld
            if 4 <= k <= 7: fill += [uread(1, 2 * (k - 4)), uread(1, 2 * (k - 4) + 1)]
            if k in (6, 7): fill += part(p_addr, k - 6, 2)
            if 8 <= k <= 11 and "xg" not in opt: fill += part(xn_math, k - 8, 4)
            if k >= 9: fill = fill[:2] + [pwrite(p - 1)] + fill[2:]
            if k == 2: fill += [h_addr]
            if k == KHF and "hb" not in opt: fill += [hf_st]
            if k == KA and "hb" not in opt: fill += [poll(AH, "hf", AM & 1)]
            if k == KH and "hb" in opt: a(f"s_mov_b64 {sr(sMK,2)}, -1")
            elif k == KH: a([I(wvm="hf")] + ne8(AH) + [f"s_cselect_b64 {sr(sMK,2)}, 0, -1"])
            if k == KB: fill += [[f"s_cmp_lg_u32 s{sMK}, 0", "s_cbranch_scc1 L_nof2", poll(AH, None, AM & 2), "L_nof2:"]]
            if k >= KH:
                e = min(hn + KR_, k, NB); hl = [hload(n, True) for n in range(hn, e)]; hn = max(hn, e)
                fill = mix(fill, hl) if len(fill) >= len(hl) else mix(hl, fill)
            a(mix(seq, fill))
            if k + 3 < 16: a(hread(k + 3))
            if PC and PC[k + 1] != PC[k]: a(f"s_setprio {PC[k + 1]}")
            stamp(f"k{k}")
        a(f"""
        s_lshl_b32 s{sT1}, s{sWQ}, 10
        s_sub_u32 s{sT1}, s{sCVB}, s{sT1}
        s_add_u32 s{sT1}, s{sT1}, 4080
        v_sub_u32 v20, s{sT1}, v{vL16}
        v_xor_b32 v21, 16, v{vPR}
        """)
        a(pwrite(7))
        for n in range(hn, NB): a(hload(n, True))
        a([f"s_cmp_lg_u32 s{sMK}, 0", "s_cbranch_scc1 L_hlate", "s_waitcnt vmcnt(0)"] + ne8(AH) +
          [f"s_cselect_b64 {sr(sMK,2)}, 0, -1", "s_cbranch_scc1 L_hlate"])
        again(NB)
        a("L_hlate:")
        sYS = sCB
        a(I(wlg="*"))
        a("s_barrier")
        stamp("c3")
        if "py" in opt: a("s_setprio 3")
        PR, vU, YA = 32, 128, 132
        a(I(f"ds_read_b128 {vr(vU,4)}, v20", lg="su"))
        for k in range(4):
            a(I(f"ds_read_b128 {vr(PR+8*k,4)}, v{vPR} offset:{8192*k}", lg=f"p{k}"))
            a(I(f"ds_read_b128 {vr(PR+8*k+4,4)}, v21 offset:{8192*k}", lg=f"p{k}"))
        a(f"""
        s_lshl_b32 s{sT1}, s{sCH}, 4
        s_lshr_b32 s{sD}, s{sD}, s{sT1}
        s_lshl_b32 s{sD}, s{sD}, 16
        s_lshl_b32 s{sT1}, s{sCP}, 13
        s_lshl_b32 s{sT3}, s{sW}, 10
        s_add_u32 s{sT1}, s{sT1}, s{sT3}
        s_add_u32 s{sT1}, s{sT1}, {WS_YT}
        s_lshl_b32 s{sYS}, s{sWQ}, 9
        s_lshl_b32 s{sT3}, s{sCP}, 1
        s_add_u32 s{sYS}, s{sYS}, s{sT3}
        s_add_u32 s{sYS}, s{sYS}, s{sCH}
        s_lshl_b32 s{sT3}, s{sYS}, 7
        s_and_b32 s{sT3}, s{sT3}, 0x380
        v_xor_b32 v31, s{sT3}, v{vL16}
        s_lshl_b32 s{sYS}, s{sYS}, {FS}
        s_add_u32 s{sYS}, s{sYS}, {WS_FY}
        """)
        yl(0)
        stamp("y0")
        a(I(wlg="su"))
        stamp("y1")
        for e in range(4):
            a(f"v_and_b32 v{YA+6-2*e}, 0xffff0000, v{vU+e}\nv_lshlrev_b32 v{YA+7-2*e}, 16, v{vU+e}")
        yl(1)
        a(I(wlg="p0"))
        for e in range(8): a(f"v_fma_f32 v{YA+e}, v{YA+e}, s{sD}, v{PR+e}")
        yl(2)
        a(I(wlg="p2"))
        def add8(d, x):
            if "ynp" in opt:
                for e in range(8): a(f"v_add_f32 v{d+e}, v{d+e}, v{x+e}")
            else:
                for e in range(0, 8, 2): a(f"v_pk_add_f32 {vr(d+e,2)}, {vr(d+e,2)}, {vr(x+e,2)}")
        add8(PR + 8, PR + 16)
        yl(3)
        a(I(wlg="p3"))
        stamp("y2")
        a(f"s_lshl_b32 s{sT3}, s{sW}, 2\ns_add_u32 s{sT3}, s{sT3}, {L_CNT}\nv_mov_b32 v20, s{sT3}")
        a(I(f"ds_write_b32 v20, v{vTAG}", lg="cw"))
        add8(YA, PR + 24)
        add8(YA, PR + 8)
        for e in range(4): a(f"v_cvt_pk_bf16_f32 v{vU+e}, v{YA+2*e}, v{YA+2*e+1}")
        stamp("y3")
        a(I(f"buffer_store_dwordx4 {vr(vU,4)}, v31, {sr(SWS,4)}, s{sT1} offen sc1", vm="ys"))
    stamp("ys")
    if PG or "py" in opt: a(f"s_setprio {PG[0] if PG else 0}")
    a(f"s_cmp_lg_u32 s{sMK}, 0\ns_cbranch_scc1 L_hgo")
    a(spin("hf", [hf_ld], ne8(AH)))
    stamp("hsp")
    again(NY)
    hn = NY
    a(line(sYS))
    a("L_hgo:")
    stamp("hok")
    sYA, sYF, sSEL = sMO, sE, SK
    YO = "yo" in opt
    sYW = sMO + 1 if YO else sW
    g2_addr = L(f"""
    v_lshrrev_b32 v20, 4, v0
    s_lshl_b32 s{sT1}, s{sRBL}, 2
    v_xor_b32 v21, v20, v15
    v_xor_b32 v21, s{sT1}, v21
    v_lshlrev_b32 v21, 4, v21
    v_lshl_add_u32 v21, v15, 8, v21
    s_lshl_b32 s{sT1}, s{sW}, 12
    v_add_u32 v{vZW}, s{sT1}, v21
    s_lshl_b32 s{sT1}, s{sW}, 1
    v_lshrrev_b32 v1, 5, v0
    v_add_u32 v21, s{sT1}, v1
    v_and_b32 v20, 3, v0
    v_xor_b32 v31, s{sRHO}, v20
    v_lshrrev_b32 v{vZR}, 1, v0
    v_and_b32 v{vZR}, 14, v{vZR}
    v_xor_b32 v{vZR}, v{vZR}, v21
    v_xor_b32 v{vZR}, v{vZR}, v31
    v_lshlrev_b32 v{vZR}, 4, v{vZR}
    v_lshl_add_u32 v{vZR}, v21, 8, v{vZR}
    s_mov_b32 s{sT1}, {sum((L_Z[q] >> 15) << (8 * q) for q in range(4))}
    v_lshlrev_b32 v31, 3, v31
    v_bfe_u32 v31, s{sT1}, v31, 8
    v_lshl_add_u32 v{vZR}, v31, 15, v{vZR}
    v_bfe_u32 v31, v0, 4, 1
    v_lshl_add_u32 v20, v31, 2, v20
    v_xor_b32 v21, s{sW}, v20
    v_lshlrev_b32 v21, 4, v21
    v_lshl_add_u32 v21, v1, 3, v21
    v_lshl_add_u32 v21, v20, 10, v21
    v_bfe_u32 v31, v0, 2, 2
    v_lshl_add_u32 v21, v31, 7, v21
    v_add_u32 v{vYR}, {L_Y}, v21
    v_and_b32 v21, 7, v0
    {f"s_lshl_b32 s{sYW}, s{sW}, 1" if YO else ""}
    v_xor_b32 v20, s{sYW}, v21
    v_lshlrev_b32 v20, 4, v20
    v_lshrrev_b32 v31, 3, v0
    v_lshl_add_u32 v20, v31, 12, v20
    s_and_b32 s{sT1}, s{sRT2}, 7
    v_xor_b32 v31, s{sT1}, v31
    v_lshl_add_u32 v{vYA}, v31, 7, v20
    v_lshlrev_b32 v{vFA}, {FS}, v{15 if YO else 21}
    v_lshlrev_b32 v1, 2, v21
    v_add_u32 v1, {L_CNT}, v1
    s_lshl_b32 s{sT1}, s{sCT2}, 3
    s_add_u32 s{sT1}, s{sT1}, s{sYW}
    s_lshl_b32 s{sYA}, s{sT1}, 15
    s_and_b32 s{sT0}, s{sRT2}, 24
    s_lshl_b32 s{sT0}, s{sT0}, 7
    s_add_u32 s{sYA}, s{sYA}, s{sT0}
    s_add_u32 s{sYA}, s{sYA}, {WS_YT}
    s_lshl_b32 s{sYF}, s{sT1}, {FS + 3}
    s_lshr_b32 s{sT0}, s{sRT2}, 3
    s_lshl_b32 s{sT0}, s{sT0}, {FS + 9}
    s_add_u32 s{sYF}, s{sYF}, s{sT0}
    s_add_u32 s{sYF}, s{sYF}, {WS_FY + 4}
    s_mov_b32 s{sSEL}, {fx(-1.4426950408889634)}
    s_mov_b32 s{sSEL+1}, s{sSEL}
    s_mov_b32 s{sSEL+2}, 1.0
    s_mov_b32 s{sSEL+3}, 1.0
    s_lshl_b32 s{sT0}, s{sYW}, 10
    s_add_u32 m0, s{sT0}, {L_Y}
    """)
    ZT, XF, YR, YF = 64, 128, 136, 32
    def zwrite(qd):
        hi, lo = L_Z[qd] & ~0xffff, L_Z[qd] & 0xffff
        return [[f"v_xor_b32 v20, {hi + 64*mt + 16*qd}, v{vZW}",
                 I(f"ds_write_b128 v20, {vr(ZA+16*(qd&1)+4*mt,4)} offset:{lo}", lg="zw")] for mt in range(4)]
    xn_g = ([f"v_lshlrev_b32 v16, 16, v{XN+7}", f"v_and_b32 v4, 0xffff0000, v{XN+7}", "v_rcp_f32 v16, v16"] +
            [f"v_add_f32 v{XN+e}, v{XF+e}, v4" for e in range(8)] + [f"v_mul_f32 v{XN+e}, v{XN+e}, v16" for e in range(8)])
    NYF, NYP, NYC = oi("nyf", 8), oi("nyp", 16), oi("nyc", 21)
    NG, ZS = oi("ng", 6), oi("zs", 1)
    y_ld = f"buffer_load_dwordx4 v{vYA}, {sr(SWS,4)}, s{sYA} offen sc1 lds"
    if YO:
        y_ld = [y_ld, f"v_xor_b32 v{vFL}, 16, v{vYA}", "s_add_u32 m0, m0, 1024", f"s_add_u32 s{sYA}, s{sYA}, 32768",
                y_ld.replace(f"v{vYA},", f"v{vFL},")]
    def wide(x): return [[y.replace("0xff", "0xffff") if isinstance(y, str) else y for y in x]] if YO else x
    cn_ld = "ds_read_b32 v31, v1"
    cn_ck = ["v_cmp_eq_u32 vcc, 0, v31", "s_cmp_lg_u64 vcc, 0", "s_cbranch_scc0 L_cn_ok"]
    for n in range(28):
        qd, ks = divmod(n, 7)
        a(I(wvm=[f"h{n}", f"wd{ks}"]))
        if n == NYF: a(line(sYS, wvm="ys", vm="yf"))
        if n == 22:
            a([I(wlg="cn")] + cn_ck + [f"s_mov_b32 s{sCNT}, {SPIN}", "L_cn_loop:", cn_ld, "s_waitcnt lgkmcnt(0)"] + cn_ck +
              [f"s_sub_u32 s{sCNT}, s{sCNT}, 1", "s_cbranch_scc0 L_cn_loop", "L_cn_ok:"])
        if ks == 0 and qd >= 2: a(I(wlg="zw"))
        seq = []
        for mt in range(4):
            d = ZA + 16 * (qd & 1) + 4 * mt
            c = "0" if ks == 0 else vr(d, 4)
            seq.append(f"v_mfma_f32_16x16x32_bf16 {vr(d,4)}, {vr(WDF(4*ks+mt),4)}, {vr(HR(n),4)}, {c}")
        fill = []
        if qd >= 1 and 1 <= ks <= ZS: fill = part(zwrite(qd - 1), ks - 1, ZS)
        if n < NG: fill = part(g2_addr, n, NG)
        if n == 20: fill += [I(cn_ld, lg="cn")]
        if n in (12, 13): fill += part(unpack(XF, XV), n - 12, 2)
        if "xg" in opt and n in (17, 18, 19, 24, 25, 26): fill += part(xn_g, (17, 18, 19, 24, 25, 26).index(n), 6)
        if n == 27: fill += [f"v_xor_b32 v21, 16, v{vZR}"]
        if n == NYC and "yb" in opt: fill = [[f"s_mov_b32 s{sMK}, -1", I(y_ld, vm="yl")]] + fill
        elif n == NYC and YO:
            fill = [[f"s_cmp_ge_u32 s{sW}, 4", f"s_cselect_b32 s{sMK}, -1, 0", "s_cbranch_scc1 L_ylate", "s_waitcnt vmcnt(0)"] + wide(ne8(AY)) +
                    [f"s_cselect_b32 s{sMK}, 0, -1", "s_cbranch_scc1 L_ylate", y_ld, "L_ylate:"]] + fill
        elif n == NYC:
            fill = [[I(wvm="yp")] + ne8(AY) + [f"s_cselect_b32 s{sMK}, 0, -1", "s_cbranch_scc1 L_ylate", y_ld, "L_ylate:"]] + fill
        a(mix(seq, fill))
        GS = os_("gs=")
        e = min(28, n + 1 + NS, hn + (int(GS[n % len(GS)]) if GS else GQ))
        for m in range(hn, e): a(hload(m))
        hn = e
        assert hn > min(n + 1, 27) or n == 27
        if n == NYP and YO: a([I(wvm="*"), f"s_cmp_ge_u32 s{sW}, 4", "s_cbranch_scc1 L_nyp", wide(poll(AY)), "L_nyp:"])
        elif n == NYP and "yb" not in opt: a(poll(AY, "yp"))
        if PG and PG[n + 1] != PG[n]: a(f"s_setprio {PG[n + 1]}")
        stamp(f"n{n}")
    a(zwrite(3))
    stamp("g2")
    a(f"s_cmp_lg_u32 s{sMK}, 0\ns_cbranch_scc1 L_ygo")
    a(spin("yf", wide(poll(AY)), wide(ne8(AY))) + [y_ld, "L_ygo:"])
    stamp("yok")
    a(I(wvm="*", wlg="*"))
    a("s_barrier")
    stamp("bf")
    P2 = lambda x: vr(x, 2)
    a(I(f"ds_read_b64_tr_b16 {P2(YR)}, v{vYR}", lg="yr"))
    a(I(f"ds_read_b64_tr_b16 {P2(YR+2)}, v{vYR} offset:512", lg="yr"))
    def zread(k): return [I(f"ds_read_b128 {vr(ZT+8*k+4*h,4)}, v{21 if h else vZR} offset:{4096*k}", lg=f"z{k}") for h in range(2)]
    for k in range(6): a(zread(k))
    a(I(wlg="yr")); a(unpack(YF, YR))
    a(zread(6)); a(zread(7))
    for e in range(0, 8, 2): a(f"v_pk_mul_f32 {P2(XN+e)}, {P2(XN+e)}, {P2(YF+e)}")
    stamp("f0")
    for k in range(1, 8):
        a(I(wlg=f"z{k}"))
        for e in range(0, 8, 2): a(f"v_pk_add_f32 {P2(ZT+e)}, {P2(ZT+e)}, {P2(ZT+8*k+e)}")
    stamp("f1")
    for e in range(0, 8, 2): a(f"v_pk_mul_f32 {P2(YF+e)}, {P2(ZT+e)}, {sr(sSEL,2)}")
    a(mix([f"v_exp_f32 v{YF+e}, v{YF+e}" for e in range(8)],
          [f"v_pk_mul_f32 {P2(XN+e)}, {P2(XN+e)}, {P2(ZT+e)}" for e in range(0, 8, 2)]))
    for e in range(0, 8, 2): a(f"v_pk_add_f32 {P2(YF+e)}, {P2(YF+e)}, {sr(sSEL+2,2)}")
    for e in range(8): a(f"v_rcp_f32 v{YF+e}, v{YF+e}")
    for e in range(0, 8, 2): a(f"v_pk_fma_f32 {P2(XF+e)}, {P2(XN+e)}, {P2(YF+e)}, {P2(XF+e)}")
    for e in range(4): a(f"v_cvt_pk_bf16_f32 v{YR+e}, v{XF+2*e}, v{XF+2*e+1}")
    stamp("f2")
    a(f"buffer_store_dwordx4 {vr(YR,4)}, v{vOO}, {sr(SOUT,4)}, s{sOQ} offen sc0 sc1")
    if prof:
        stamp("st")
        if "endw" in opt: a("s_waitcnt vmcnt(0)")
        a("L_prof:")
        stamp("end")
        a(f"""
        s_waitcnt lgkmcnt(0)
        s_lshl_b32 s{sT0}, s2, 3
        s_add_u32 s{sT0}, s{sT0}, s{sW}
        s_lshl_b32 s{sT0}, s{sT0}, 6
        s_add_u32 s{sT0}, s{sT0}, {WS_PROF}
        """)
        if "dbg" in opt:
            n = len(stamps)
            a(f"s_load_dwordx2 {sr(SX,2)}, s[0:1], 88\ns_mov_b32 s{SX+2}, 256\ns_waitcnt lgkmcnt(0)\ns_mov_b64 exec, 1")
            a(f"s_not_b32 s{sT1}, s{PROFS[0]}\nv_mov_b32 v1, s{sT1}\nbuffer_atomic_umax v1, off, {sr(SX,4)}, 0")
            a(f"v_mov_b32 v2, s{PROFS[n-1]}\nbuffer_atomic_umax v2, off, {sr(SX,4)}, 0 offset:60")
            a(f"s_cmp_lt_u32 s2, 32\ns_cbranch_scc1 {END}")
            for i in range(n):
                if "avg" in opt:
                    a(f"s_sub_u32 s{sT1}, s{PROFS[i]}, s{PROFS[0]}\nv_mov_b32 v{3+i}, s{sT1}\nbuffer_atomic_add v{3+i}, off, {sr(SX,4)}, 0 offset:{4+4*i}")
                else:
                    a(f"v_mov_b32 v{3+i}, s{PROFS[i]}\nbuffer_atomic_umax v{3+i}, off, {sr(SX,4)}, 0 offset:{4+4*i}")
            a(f"s_branch {END}")
        for i in range(len(stamps)):
            a(f"v_mov_b32 v1, s{PROFS[i]}")
            a(f"buffer_store_dword v1, off, {sr(SWS,4)}, s{sT0} offset:{4*i}")
    a(f"{END}:\ns_endpgm")
    def post(b):
        import al
        if oi("al", -1) >= 0:
            b, st = al.align(b, oi("al", 0)); print(st)
        if "sh4" in opt: b = ["    s_nop 0"] + b
        print("misplaced", al.stat(b))
        return b
    txt = a.text(256, 512, 163840, post=post)
    return txt, stamps, a.nops

if __name__ == "__main__":
    txt, st, nops = gen(prof="prof" in sys.argv, opt=sys.argv[2:])
    open(sys.argv[1], "w").write(txt)
    print("lines", txt.count("\n"), "nops", nops, st)
    if st: open(sys.argv[1] + ".stamps", "w").write(" ".join(st))
```

```python
import sys, struct, re
from em import *

WS_EPOCH, WS_FKV, WS_RS, WS_CS, WS_FH, WS_FY = 0, 4096, 32768, 65536, 262144, 524288
WS_KV, WS_WT, WS_YT, WS_H, WS_PROF = 1 << 20, 3 << 20, 5 << 20, 8 << 20, 16 << 20
SX, SWG, SWU, SWD, SWS, SOUT, SH, SK, SV, SSH = 8, 12, 16, 20, 24, 28, 32, 36, 40, 44
sW, sXB, sWB, sT0, sT1 = 3, 4, 5, 6, 7
(sRT2, sCT2, sKEY, sWR, sWC, sTAG, sM0X, sOK, sISG, sCNT, sT2, sT3, sCSM, sCP, sRBL, sXCD, sCB, sD,
 sMO, _m1, _m2, _m3, sHI, sRB) = range(48, 72)
sA, sB, sC, sE = 98, 99, 100, 101
PROFS = list(range(72, 98, 2))
STAGE = 49152
L_WP = 147456
L_CV, CVCH = 98304, 12864
L_Z = (65536, 131072, 0, 32768)
L_Y, L_CNT = L_CV + 4608, L_CV + 4096
ACC, FR = 32, 96
def WDF(i): return 144 + 4 * i
vX0, vX1, vW0, vW1, vL16 = 1, 2, 3, 4, 5
vXB, vWB, vTAG = 6, 14, 17
SPIN = 0x4000
ESH = 24
KC = 2 * 0.7978845608028654 * 1.4426950408889634
def fx(f): return "0x%08x" % struct.unpack("<I", struct.pack("<f", f))[0]
def L(s): return [x.strip() for x in s.strip().split("\n") if x.strip()]

def gen(prof=False, opt=()):
    a = Em()
    def oi(k, d): return int(([o[len(k):] for o in opt if re.fullmatch(k + r"-?\d+", o)] + [d])[0])
    stamps = []
    def oi(k, d): return int(([o[len(k):] for o in opt if re.fullmatch(k + r"-?\d+", o)] + [d])[0])
    def stamp(name, slot=None):
        sel = [o[3:].split(",") for o in opt if o.startswith("st=")]
        dflt = "start,B0,B4,B8,join,c1,c3,hok,g2,bf,end".split(",")
        if not prof or (slot is None and name not in (sel[0] if sel else dflt)): return
        own = slot is None
        if ("both" in opt or "noas" in opt) and not own: return
        if slot is None:
            if name not in stamps: stamps.append(name)
            slot = stamps.index(name)
        a(f"{'s_memtime' if 'cyc' in opt else 's_memrealtime'} {sr(PROFS[slot], 2)}")
        if "both" in opt and own:
            stamps.append(name + "c"); a(f"s_memtime {sr(PROFS[slot + 1], 2)}")
    def spin(name, load, check):
        if "nochk" in opt: return [f"L_{name}_ok:"]
        return ([f"s_mov_b32 s{sCNT}, {SPIN}", f"L_{name}_loop:"] + load + ["s_waitcnt vmcnt(0)"] + check +
                [f"s_cbranch_scc0 L_{name}_ok", f"s_sub_u32 s{sCNT}, s{sCNT}, 1", f"s_cbranch_scc0 L_{name}_loop",
                 f"L_{name}_ok:"])
    def one(txt, vm=None, wvm=None):
        if "all" in opt: return [I(txt, vm=vm, wvm=wvm)]
        return [I("s_mov_b64 exec, 1", wvm=wvm), I(txt, vm=vm), "s_mov_b64 exec, -1"]
    FS = oi("fs", 7)
    def line(so, vm=None, wvm=None):
        if "fp" in opt: return one(f"buffer_store_dword v{vTAG}, off, {sr(SWS,4)}, s{so} offset:4 sc1", vm=vm, wvm=wvm)
        return [I(f"s_mov_b64 exec, {(1 << (1 << (FS - 4))) - 1}", wvm=wvm),
                I(f"buffer_store_dwordx4 {vr(vTAG-1,4)}, v{vL16}, {sr(SWS,4)}, s{so} offen sc1", vm=vm), "s_mov_b64 exec, -1"]
    def ne(v): return [f"v_cmp_ne_u32 vcc, s{sTAG}, v{v}", "s_cmp_lg_u64 vcc, 0"]
    def ap(txt, nl, key, vm=None):
        if key not in opt and "apa" not in opt: return [I(txt, vm=vm)]
        d = txt.split()[1].rstrip(",")
        t = I(txt.replace("buffer_load_dword", "buffer_atomic_or").replace("sc1", "sc0 sc1"), vm=vm)
        if nl == 64: return [f"v_mov_b32 {d}, 0", t]
        m = [f"s_mov_b32 exec_hi, 0"] if nl == 32 else [f"s_mov_b64 exec, {(1 << nl) - 1}"]
        return [f"v_mov_b32 {d}, s{sTAG}"] + m + [f"v_mov_b32 {d}, 0", t, "s_mov_b64 exec, -1"]
    END, AUX, JOIN = "L_end", "L_aux", "L_join"
    vHE, vHP, vHO_ = (228, 232, 234) if "hr" in opt else (128, 132, 134)
    KM = oi("km", 3)
    a(f"""
    s_cmp_ge_u32 s2, 256
    s_cbranch_scc1 {END}
    s_load_dwordx16 s[72:87], s[0:1], 0
    s_load_dwordx8 s[88:95], s[0:1], 64
    s_load_dwordx2 s[96:97], s[0:1], 96
    v_lshrrev_b32 v1, 6, v0
    v_and_b32 v0, 63, v0
    v_readfirstlane_b32 s{sW}, v1
    s_and_b32 s{sXCD}, s2, 7
    s_lshr_b32 s{sCP}, s2, 3
    s_and_b32 s{sE}, s{sXCD}, 1
    s_lshr_b32 s{sA}, s{sXCD}, 1
    s_and_b32 s{sRBL}, s{sCP}, 3
    s_lshr_b32 s{sISG}, s{sCP}, 2
    s_lshl_b32 s{sRB}, s{sA}, 2
    s_add_u32 s{sRB}, s{sRB}, s{sRBL}
    s_lshl_b32 s{sRT2}, s{sRB}, 1
    s_add_u32 s{sRT2}, s{sRT2}, s{sE}
    s_add_u32 s{sCT2}, s{sISG}, 7
    s_and_b32 s{sCT2}, s{sCT2}, 7
    s_mul_i32 s{sCB}, s{sE}, 7
    s_add_u32 s{sCB}, s{sCB}, s{sCT2}
    s_xor_b32 s{sKEY}, s{sRBL}, s{sISG}
    s_and_b32 s{sKEY}, s{sKEY}, {KM}
    s_lshl_b32 s{sB}, s{sA}, {2 if KM == 3 else 1}
    s_and_b32 s{sB}, s{sB}, {4 if KM == 3 else 6}
    s_or_b32 s{sKEY}, s{sKEY}, s{sB}
    s_lshl_b32 s{sB}, s{sXCD}, 5
    s_add_u32 s{sCP}, s{sCP}, s{sB}
    s_and_b32 s{sWR}, s{sW}, 1
    s_lshr_b32 s{sWC}, s{sW}, 1
    s_lshr_b32 s{sB}, s{sW}, 2
    s_and_b32 s{sC}, s{sW}, 3
    s_lshl_b32 s{sXB}, s{sRB}, 17
    s_lshl_b32 s{sT0}, s{sB}, 16
    s_add_u32 s{sXB}, s{sXB}, s{sT0}
    s_lshl_b32 s{sT0}, s{sC}, 10
    s_add_u32 s{sXB}, s{sXB}, s{sT0}
    s_mul_i32 s{sWB}, s{sW}, 28672
    s_lshl_b32 s{sT0}, s{sCB}, 8
    s_add_u32 s{sWB}, s{sWB}, s{sT0}
    s_lshl_b32 s{sM0X}, s{sW}, 11
    s_and_b32 s{sT0}, s{sKEY}, 1
    s_and_b32 s{sT1}, s{sA}, 2
    s_or_b32 s{sT0}, s{sT0}, s{sT1}
    {f"s_mov_b32 s{sT0}, s{sRBL}" if KM != 3 else ""}
    s_add_u32 s{sCSM}, s{sWR}, 1
    s_cmp_eq_u32 s{sT0}, s{sWC}
    s_cselect_b32 s{sCSM}, s{sCSM}, 0
    s_lshr_b32 s{sHI}, s{sCT2}, 2
    s_mov_b32 s{sOK}, 0
    """)
    for s, n in ((SX, 1 << 21), (SWG, 1835008), (SWU, 1835008), (SWD, 1835008), (SWS, 1 << 25), (SOUT, 1 << 21),
                 (SH, 4096), (SK, 1 << 21), (SV, 1 << 21), (SSH, 4096)):
        a(f"s_mov_b32 s{s+2}, {n}")
        a(f"s_mov_b32 s{s+3}, 0x20000")
    a(f"""
    v_lshrrev_b32 v20, 3, v0
    v_lshrrev_b32 v21, 4, v0
    v_and_b32 v22, 7, v0
    v_xor_b32 v23, v22, v21
    v_lshlrev_b32 v23, 4, v23
    v_lshl_add_u32 v{vX0}, v20, 12, v23
    v_xor_b32 v{vX1}, 64, v{vX0}
    v_add_u32 v{vX1}, 31744, v{vX1}
    v_bfe_u32 v24, v0, 2, 2
    v_and_b32 v25, 3, v0
    v_xor_b32 v23, v24, v21
    v_lshlrev_b32 v23, 6, v23
    v_lshl_add_u32 v23, v25, 4, v23
    v_mul_u32_u24 v{vW0}, 3584, v21
    v_add_u32 v{vW0}, v{vW0}, v23
    v_add_u32 v{vW1}, 13312, v{vW0}
    v_lshlrev_b32 v{vL16}, 4, v0
    s_lshl_b32 s{sT2}, s{sCP}, 1
    s_add_u32 s{sT2}, s{sT2}, s{sB}
    s_lshl_b32 s{sT2}, s{sT2}, 12
    s_lshl_b32 s{sT3}, s{sCP}, 2
    s_waitcnt lgkmcnt(0)
    s_mov_b64 {sr(SX,2)}, s[72:73]
    s_mov_b64 {sr(SWG,2)}, s[86:87]
    s_mov_b64 {sr(SWU,2)}, s[88:89]
    s_mov_b64 {sr(SK,2)}, s[74:75]
    s_mov_b64 {sr(SV,2)}, s[76:77]
    {f"s_add_u32 s{SWS}, s96, {oi('wo', 0) << 20}" if oi('wo', 0) else f"s_mov_b64 {sr(SWS,2)}, s[96:97]"}
    {f"s_addc_u32 s{SWS+1}, s97, 0" if oi('wo', 0) else ""}
    s_mov_b64 {sr(SSH,2)}, s[78:79]
    s_mov_b64 {sr(SWD,2)}, s[90:91]
    s_mov_b64 {sr(SOUT,2)}, s[92:93]
    s_add_u32 s{SH}, s80, s{sT2}
    s_addc_u32 s{SH+1}, s81, 0
    s_load_dword s{sD}, s[82:83], s{sT3}
    """)
    H1 = "h1" in opt
    if H1: a(f"""
    s_lshl_b32 s{sT3}, s{sC}, 10
    s_max_u32 s{sT3}, s{sT3}, 4
    s_add_u32 s{sT2}, s{sT2}, s{sT3}
    s_sub_u32 s{sT2}, s{sT2}, 4
    s_load_dword s{sOK}, s[80:81], s{sT2}
    """)
    if prof: a("s_nop 4")
    stamp("start")

    NTX = " nt" if "ntx" in opt else ""
    NTW = " nt" if "ntw" in opt else ""
    NTK = " nt" if "ntk" in opt else ""
    NTH = " nt" if "nth" in opt else ""
    NTE = " nt" if "nte" in opt else ""
    NTF = " nt" if "ntf" in opt else ""
    for o in opt:
        if o.startswith("cp="): NTX = NTW = " " + o[3:].replace("_", " ")
        if o.startswith("ck="): NTK = " " + o[3:].replace("_", " ")
    NTX0, NTW0 = NTX, NTW
    def chunk_dma(c):
        st = (c % 3) * STAGE
        NTX = [" " + o.split("=")[0][2:].replace("_", " ") for o in opt if re.match(r"Nx\w+=", o) and str(c) in o.split("=")[1]] + [NTX0]
        NTW = [" " + o.split("=")[0][2:].replace("_", " ") for o in opt if re.match(r"Nw\w+=", o) and str(c) in o.split("=")[1]] + [NTW0]
        NTX, NTW = NTX[0], NTW[0]
        return [
            [f"s_xor_b32 s{sT0}, s{sKEY}, {c}",
             f"s_mul_i32 s{sT1}, s{sT0}, 229376", f"s_add_u32 s{sT1}, s{sT1}, s{sWB}",
             f"s_lshl_b32 s{sT0}, s{sT0}, 7", f"s_add_u32 m0, s{sM0X}, {st}", f"s_add_u32 s{sT0}, s{sT0}, s{sXB}",
             I(f"buffer_load_dwordx4 v{vX0}, {sr(SX,4)}, s{sT0} offen{NTX} lds", vm=f"c{c}")],
            I(f"buffer_load_dwordx4 v{vX1}, {sr(SX,4)}, s{sT0} offen offset:1024{NTX} lds", vm=f"c{c}"),
            [f"s_add_u32 m0, s{sM0X}, {st + 16384}",
             I(f"buffer_load_dwordx4 v{vW0}, {sr(SWG,4)}, s{sT1} offen{NTW} lds", vm=f"c{c}")],
            I(f"buffer_load_dwordx4 v{vW1}, {sr(SWG,4)}, s{sT1} offen offset:1024{NTW} lds", vm=f"c{c}"),
            [f"s_add_u32 m0, s{sM0X}, {st + 32768}",
             I(f"buffer_load_dwordx4 v{vW0}, {sr(SWU,4)}, s{sT1} offen{NTW} lds", vm=f"c{c}")],
            I(f"buffer_load_dwordx4 v{vW1}, {sr(SWU,4)}, s{sT1} offen offset:1024{NTW} lds", vm=f"c{c}"),
        ]
    def prefetch(c):
        g = oi("pg", 7); sh = 7 - g; t = 150
        o = L(f"""
        v_lshrrev_b32 v{t}, {sh}, v0
        v_lshlrev_b32 v{t}, 12, v{t}
        v_lshrrev_b32 v{t+1}, {sh + 1}, v0
        v_mul_u32_u24 v{t+1}, 3584, v{t+1}
        v_and_b32 v{t+2}, {(2 << sh) - 1}, v0
        v_lshl_add_u32 v{t+1}, v{t+2}, {g}, v{t+1}
        """)
        if sh: o += [f"v_and_b32 v{t+2}, {(1 << sh) - 1}, v0", f"v_lshl_add_u32 v{t}, v{t+2}, {g}, v{t}"]
        o += L(f"""
        s_xor_b32 s{sT2}, s{sKEY}, {c}
        s_mul_i32 s{sT3}, s{sT2}, 229376
        s_add_u32 s{sT3}, s{sT3}, s{sWB}
        s_lshl_b32 s{sT2}, s{sT2}, 7
        s_add_u32 s{sT2}, s{sT2}, s{sXB}
        s_mov_b32 exec_hi, 0
        """)
        if not sh: o += ["s_mov_b32 exec_lo, 0xffff"]
        PW = os0("pv=", "gux")
        if "g" in PW: o += [I(f"buffer_load_dword v{t+2}, v{t+1}, {sr(SWG,4)}, s{sT3} offen", vm="pf")]
        if "u" in PW: o += [I(f"buffer_load_dword v{t+3}, v{t+1}, {sr(SWU,4)}, s{sT3} offen", vm="pf")]
        if "x" in PW: o += [I(f"buffer_load_dword v{t+4}, v{t}, {sr(SX,4)}, s{sT2} offen", vm="pf")]
        return o + ["s_mov_b64 exec, -1"]
    def os0(k, d=""): return ([o[len(k):] for o in opt if o.startswith(k)] + [d])[0]
    PF = os0("pf=")
    XR, S1, S2 = 200, 204, 205
    def row_load():
        return [I(f"buffer_load_dword v{vTAG}, off, {sr(SWS,4)}, 0 offset:{WS_EPOCH} sc1", vm="ep"),
                [f"s_lshl_b32 s{sA}, s{sRT2}, 3", f"s_add_u32 s{sA}, s{sA}, s{sISG}", f"s_lshl_b32 s{sA}, s{sA}, 3",
                 f"s_add_u32 s{sA}, s{sA}, s{sW}", f"s_lshl_b32 s{sT2}, s{sA}, 10",
                 I(f"buffer_load_dwordx4 {vr(XR,4)}, v{vL16}, {sr(SX,4)}, s{sT2} offen" + (" nt" if "ntr" in opt else ""), vm="ep")]]
    tag_math = L(f"""
        v_add_u32 v{vTAG}, 1, v{vTAG}
        v_and_b32 v{vTAG}, 0x0fff3fff, v{vTAG}
        v_or_b32 v{vTAG}, 0x20000000, v{vTAG}
        s_mov_b32 s{sB}, 0x3f803f80
        v_readfirstlane_b32 s{sTAG}, v{vTAG}
        """)
    def row_math():
        o = []
        for d in range(4):
            o += [f"v_dot2_f32_bf16 v{S1}, v{XR+d}, s{sB}, {'0' if d == 0 else f'v{S1}'}",
                  f"v_dot2_f32_bf16 v{S2}, v{XR+d}, v{XR+d}, {'0' if d == 0 else f'v{S2}'}"]
        o += [f"v_mov_b32 v{XR+1}, v{vTAG}", f"v_permlane32_swap_b32 v{S1}, v{S2}", f"v_add_f32 v{S1}, v{S1}, v{S2}"]
        o += [f"v_add_f32_dpp v{S1}, v{S1}, v{S1} {d} row_mask:0xf bank_mask:0xf"
              for d in ("quad_perm:[1,0,3,2]", "quad_perm:[2,3,0,1]", "row_half_mirror", "row_mirror")]
        o += [f"v_add_f32_dpp v{S1}, v{S1}, v{S1} row_bcast:15 row_mask:0xa bank_mask:0xf"]
        o += L(f"""
        v_mul_f32 v{S1}, {fx(1/512)}, v{S1}
        v_readlane_b32 s{sB}, v{S1}, 31
        v_readlane_b32 s{sC}, v{S1}, 63
        v_mul_f32 v{S1}, s{sB}, s{sB}
        v_sub_f32 v{S1}, s{sC}, v{S1}
        v_max_f32 v{S1}, 0, v{S1}
        v_cvt_pk_bf16_f32 v{S1}, v{S1}, v{S1}
        v_lshlrev_b32 v{S1}, 16, v{S1}
        v_add_f32 v{S1}, {fx(1e-5)}, v{S1}
        v_cvt_pk_bf16_f32 v{S1}, v{S1}, v{S1}
        v_lshlrev_b32 v{S1}, 16, v{S1}
        v_sqrt_f32 v{S1}, v{S1}
        s_lshl_b32 s{sA}, s{sA}, 3
        v_cvt_pk_bf16_f32 v{XR}, v{S1}, -s{sB}
        s_add_u32 s{sA}, s{sA}, {WS_RS}
        """)
        if "nors" not in opt: o += [one(f"buffer_store_dwordx2 {vr(XR,2)}, off, {sr(SWS,4)}, s{sA} sc1", vm="rs", wvm="wps")]
        return o
    def h_load(t):
        return [[f"s_and_b32 s{sT2}, s{sW}, 3", f"s_lshl_b32 s{sT2}, s{sT2}, 10",
                 I(f"buffer_load_dwordx4 {vr(vHE,4)}, v{vL16}, {sr(SH,4)}, s{sT2} offen{NTE}", vm="hl")],
                [f"s_and_b32 s{sT2}, s{sW}, 3", f"s_lshl_b32 s{sT2}, s{sT2}, 10",
                 f"s_sub_u32 s{sT2}, s{sT2}, 4", f"v_add_u32 v{t}, s{sT2}, v{vL16}",
                 I(f"buffer_load_dword v{vHP}, v{t}, {sr(SH,4)}, 0 offen{NTF}", vm="hl")]][:1 if H1 else 2]
    vZ4 = vHE + 12
    h_al = [f"v_alignbit_b32 v{vHO_+d}, v{vHE+d}, v{vHE+d-1 if d else vHP}, 16" for d in range(4)]
    h_z = [f"v_mov_b32 v{vZ4+d}, 0" for d in range(4)]
    h_math = (([[f"s_and_b32 s{sT2}, s{sW}, 3", f"s_cselect_b32 s{sT2}, s{sOK}, 0", f"v_mov_b32 v{vHP}, s{sT2}"], I(h_al[1], wvm="hl")] + h_al[2:] +
               [f"v_mov_b32_dpp v{vHP}, v{vHE+3} wave_shr:1 row_mask:0xf bank_mask:0xf"] + h_z + h_al[:1]
               if H1 else [I(h_al[0], wvm="hl")] + h_al[1:] + h_z) + [L(f"""
        s_lshr_b32 s{sT2}, s{sW}, 2
        s_mul_i32 s{sT2}, s{sT2}, {CVCH}
        s_add_u32 s{sT2}, s{sT2}, {L_CV}
        v_min_u32 v{vHP+1}, 35, v0
        v_lshlrev_b32 v{vHP+1}, 4, v{vHP+1}
        v_lshrrev_b32 v{vHP}, 5, v0
        v_lshl_add_u32 v{vHP+1}, v{vHP}, 12, v{vHP+1}
        v_add_u32 v{vHP+1}, s{sT2}, v{vHP+1}
        s_and_b32 s{sT3}, s{sW}, 3
        s_lshl_b32 s{sT3}, s{sT3}, 10
        s_add_u32 s{sT2}, s{sT2}, s{sT3}
        v_add_u32 v{vHP}, s{sT2}, v{vL16}
        """)])
    h_write = [I(f"ds_write_b128 v{vHP}, {vr(vHE,4)} offset:4608", lg="hw"),
               I(f"ds_write_b128 v{vHP}, {vr(vHO_,4)} offset:{4608+4160}", lg="hw"),
               I(f"ds_write_b128 v{vHP+1}, {vr(vZ4,4)} offset:4096", lg="hw")]
    vFL, vFA = 18, 19
    def wf_addr_(sE, vFA, vFL): return L(f"""
        s_lshl_b32 s{sT2}, s{sCT2}, 3
        s_add_u32 s{sT2}, s{sT2}, s{sW}
        s_and_b32 s{sE}, s{sCT2}, 6
        s_lshl_b32 s{sE}, s{sE}, 1
        s_add_u32 s{sE}, s{sE}, s{sWC}
        s_lshl_b32 s{sE}, s{sE}, 1
        s_and_b32 s{sT3}, s{sCT2}, 1
        s_add_u32 s{sE}, s{sE}, s{sT3}
        s_lshl_b32 s{sE}, s{sE}, 4
        s_add_u32 s{sE}, s{sE}, s{sWR}
        s_lshl_b32 s{sE}, s{sE}, 5
        s_add_u32 s{sE}, s{sE}, {WS_RS + 64 + 4 + (16384 if oi("rl", -1) >= 0 else 0)}
        s_mul_i32 s{sT2}, s{sT2}, 28672
        s_mul_i32 s{sT3}, s{sHI}, 12288
        s_add_u32 s{sT2}, s{sT2}, s{sT3}
        s_add_u32 s{sT2}, s{sT2}, {WS_WT}
        s_lshl_b32 s{sT3}, s{sRBL}, 10
        s_add_u32 s{sMO}, s{sT2}, s{sT3}
        s_xor_b32 s{sMO+1}, s{sMO}, 1024
        s_xor_b32 s{sMO+2}, s{sMO}, 2048
        s_xor_b32 s{sMO+3}, s{sMO}, 3072
        v_min_u32 v{vFA}, 27, v0
        v_and_b32 v{vFL}, 28, v{vFA}
        v_add_u32 v{vFA}, v{vFA}, v{vFL}
        v_lshlrev_b32 v{vFA}, 3, v{vFA}
        """)
    wf_addr = wf_addr_(sE, vFA, vFL)
    wf_ld = f"buffer_load_dword v{vFL}, v{vFA}, {sr(SWS,4)}, s{sE} offen sc1"
    def wd_loads():
        o = []
        for i in range(28):
            ks, mt = divmod(i, 4)
            g = []
            if i == 16:
                g += [f"s_mul_i32 s{sT3}, s{sHI}, 28672"] + [f"s_sub_u32 s{sMO+m}, s{sMO+m}, s{sT3}" for m in range(4)]
            g += [f"s_add_u32 s{sT3}, s{sMO+mt}, {4096*ks}",
                  I(f"buffer_load_dwordx4 {vr(WDF(i),4)}, v{vL16}, {sr(SWS,4)}, s{sT3} offen sc1" if i < oi("wx", 99) else
                    f"buffer_load_dword {vr(WDF(i),1)}, off, {sr(SWS,4)}, s{sT3} sc1", vm=f"wd{ks}")]
            o.append(g)
        return o
    vKA, vKL = 29, 30
    kf_addr = [f"v_and_b32 v{vKA}, 31, v0", f"v_lshlrev_b32 v{vKA}, 2, v{vKA}", f"s_lshl_b32 s{sC}, s{sXCD}, 7",
               f"s_add_u32 s{sC}, s{sC}, {WS_FKV}"]
    kf_ld = f"buffer_load_dword v{vKL}, v{vKA}, {sr(SWS,4)}, s{sC} offen sc1"
    def r_dma(t):
        return L(f"""
        s_lshr_b32 s{sT2}, s{sW}, 2
        s_mul_i32 s{sT3}, s{sT2}, {CVCH - 4096}
        s_lshl_b32 s{sT2}, s{sT2}, 4
        v_lshl_add_u32 v{t}, v0, 5, s{sT2}
        s_lshl_b32 s{sT2}, s{sW}, 10
        s_add_u32 s{sT3}, s{sT3}, s{sT2}
        s_add_u32 m0, s{sT3}, {L_CV}
        s_and_b32 s{sT2}, s{sM0X}, 0x1800
        s_lshl_b32 s{sT3}, s{sCP}, 13
        s_add_u32 s{sT2}, s{sT2}, s{sT3}
        s_add_u32 s{sT2}, s{sT2}, {WS_KV}
        """) + [I(f"buffer_load_dwordx4 v{t}, {sr(SWS,4)}, s{sT2} offen sc1 lds", vm="R")]

    WL = wd_loads()
    wsched = {17: 1, 18: 1, 19: 1, 21: 1, 22: 1, 23: 1, 24: 1, 25: 2, 26: 2, 27: 2, 29: 1, 30: 2, 31: 2}
    wsched = {k: n for k, n in wsched.items() if k >= oi("pw", 20) + 3}
    for o in opt:
        if o.startswith("ws="): wsched = {32 - len(o[3:]) + i: int(ch) for i, ch in enumerate(o[3:])}
    assert min(k for k, n in wsched.items() if n) >= oi("pw", 20) + oi("pd", 3)
    wepi = [int(x) for x in str(oi("we", 3320)).zfill(4)]
    NPRE = sum(wsched.values()) + sum(wepi)
    vq_pro = list(a.vq)
    a(f"s_cmp_eq_u32 s{sISG}, 0\ns_cbranch_scc1 {AUX}")
    if "nogemm" in opt: a(f"s_branch {END}")
    SP, SPS = oi("sp", 0), oi("ss", 64)
    h_pre = [f"s_and_b32 s{sT2}, s{sW}, 3", f"s_lshl_b32 s{sT2}, s{sT2}, 10"] + [
        f"s_buffer_load_dword s{sCNT}, {sr(SH,4)}, s{sT2} offset:{o}" for o in range(0, 1024, SPS)]
    if SP == 1: a(h_pre)
    TF = os0("tf=")
    def touch():
        o = ["s_mov_b64 exec, 1"]
        if "d" in TF: o += [f"s_mul_i32 s{sT2}, s{sCB}, 131072", I(f"buffer_load_dword v160, off, {sr(SWD,4)}, s{sT2}", vm="tf")]
        if "h" in TF: o += [I(f"buffer_load_dword v161, off, {sr(SH,4)}, 0", vm="tf")]
        if "e" in TF: o += [I(f"buffer_load_dword v162, off, {sr(SWS,4)}, 0 offset:128 sc1", vm="tf")]
        if "w" in TF: o += [f"s_mov_b32 s{sT2}, {WS_WT - 128}", I(f"buffer_load_dword v163, off, {sr(SWS,4)}, s{sT2} sc1", vm="tf"),
                            f"s_mov_b32 s{sT2}, {WS_YT - 128}", I(f"buffer_load_dword v164, off, {sr(SWS,4)}, s{sT2} sc1", vm="tf")]
        o += ["s_mov_b64 exec, -1"]
        if "0" in TF: return [f"s_cmp_lg_u32 s{sW}, 0", "s_cbranch_scc1 L_notf"] + [x.text if isinstance(x, I) else x for x in o] + ["L_notf:"]
        return o
    if "B" in TF: a(touch())
    a(chunk_dma(0))
    if "A" in TF: a(touch())
    if PF == "a": a(prefetch(4))
    if SP == 2: a(h_pre)
    WP, vWPA, vWPS, vWPL, CSA, CS1 = 208, 212, 213, 214, 240, 236
    sWPS, sWPF, sWPM = SSH, SSH + 1, SSH + 3
    a(f"""
    v_and_b32 v23, 3, v20
    v_lshrrev_b32 v26, 5, v0
    v_lshl_add_u32 v23, v26, 3, v23
    v_lshlrev_b32 v26, 4, v22
    v_lshl_add_u32 v{vWPL}, v23, 10, v26
    s_mov_b32 s{sE}, s{sXCD}
    s_lshl_b32 s{sT2}, s{sRBL}, 1
    s_add_u32 s{sT2}, s{sT2}, s{sB}
    s_mul_i32 s{sT3}, s{sT2}, 7
    s_add_u32 s{sT3}, s{sT3}, s{sCT2}
    s_mul_i32 s{sWPS}, s{sE}, 56
    s_add_u32 s{sWPS}, s{sWPS}, s{sT3}
    s_lshl_b32 s{sWPS}, s{sWPS}, 12
    s_lshl_b32 s{sT1}, s{sC}, 8
    s_add_u32 s{sWPS}, s{sWPS}, s{sT1}
    s_add_u32 s{sWPS}, s{sWPS}, {WS_WT}
    s_lshl_b32 s{sT3}, s{sT3}, 15
    s_lshl_b32 s{sT1}, s{sWR}, 12
    s_add_u32 s{sT3}, s{sT3}, s{sT1}
    s_lshl_b32 s{sT1}, s{sWC}, 14
    s_and_b32 s{sT1}, s{sT1}, 0x4000
    s_add_u32 s{sT3}, s{sT3}, s{sT1}
    s_lshl_b32 s{sT1}, s{sE}, 7
    s_add_u32 s{sWPF}, s{sT3}, s{sT1}
    s_lshl_b32 s{sT2}, s{sW}, 10
    s_add_u32 s{sWPM}, s{sT2}, {L_WP}
    s_barrier
    """)
    wp_load = [f"s_mov_b32 m0, s{sWPM}", I(f"buffer_load_dwordx4 v{vWPL}, {sr(SWD,4)}, s{sWPF} offen{NTH} lds", vm="wpl")]
    SWL, SWR, SRS, SPW, SHL, SPF, SRL = oi("wl", -1), oi("wr", 4), oi("rs", 11), oi("pw", 20), oi("hl", 9), oi("pf", 0), oi("rl", -1)
    SKF, SRD = oi("kf", 28), oi("rd", 32)
    XE = oi("xe", 28)
    assert XE >= 27 or ("hr" in opt and XE >= 22)
    BI = "bi" in opt
    if SWL < 0: a(wp_load)
    a(f"""
    v_lshlrev_b32 v23, 7, v24
    v_lshl_add_u32 v23, v21, 5, v23
    v_lshl_add_u32 v23, v25, 3, v23
    v_add_u32 v{vWPA}, s{sWPM}, v23
    """)
    C1E = oi("c1e", 2)
    if SRL >= 0: a(row_load()[0]); a(row_load()[1][:4])
    elif "rowl" not in opt: a(row_load())
    if SHL == -3: a(h_load(27))
    if PF == "b": a(prefetch(4))
    a(chunk_dma(1)[:C1E])
    if PF == "c": a(prefetch(4))
    if SHL == -4: a(h_load(27))
    if "th" in opt: a(I(f"buffer_load_dword v{vHP}, off, {sr(SH,4)}, 0", vm="th"))
    a(f"""
    v_and_b32 v23, 15, v0
    v_lshlrev_b32 v23, 4, v23
    v_lshl_add_u32 v{vWPS}, v21, 10, v23
    v_and_b32 v24, 31, v0
    v_lshrrev_b32 v25, 5, v0
    v_bfe_u32 v22, v0, 1, 3
    v_xor_b32 v22, v22, v25
    v_lshlrev_b32 v22, 4, v22
    v_lshl_add_u32 v22, v24, 7, v22
    s_lshl_b32 s{sT0}, s{sWR}, 13
    v_add_u32 v{vXB}, s{sT0}, v22
    v_xor_b32 v{vXB+1}, 32, v{vXB}
    v_xor_b32 v{vXB+2}, 64, v{vXB}
    v_xor_b32 v{vXB+3}, 96, v{vXB}
    v_add_u32 v{vXB+4}, {2*STAGE}, v{vXB}
    v_add_u32 v{vXB+5}, {2*STAGE}, v{vXB+1}
    v_add_u32 v{vXB+6}, {2*STAGE}, v{vXB+2}
    v_add_u32 v{vXB+7}, {2*STAGE}, v{vXB+3}
    v_bfe_u32 v23, v0, 2, 2
    v_lshl_add_u32 v24, v25, 3, v23
    v_lshlrev_b32 v24, 8, v24
    v_xor_b32 v23, s{sWC}, v23
    v_lshl_add_u32 v24, v23, 6, v24
    v_bfe_u32 v23, v0, 4, 1
    v_lshl_add_u32 v24, v23, 5, v24
    v_and_b32 v23, 3, v0
    v_lshl_add_u32 v24, v23, 3, v24
    v_add_u32 v{vWB}, 16384, v24
    v_add_u32 v{vWB+1}, {STAGE+16384}, v24
    v_add_u32 v{vWB+2}, {2*STAGE+16384}, v24
    """)
    if "cs16" in opt:
        a(f"""
        v_lshrrev_b32 v23, 2, v0
        v_xor_b32 v23, v23, v21
        v_and_b32 v23, 1, v23
        v_add_u32 v23, -1, v23
        """)
        for d in range(4): a(f"v_and_b32 v{CS1+d}, 0x3f803f80, v23")
    else:
        for d in range(4): a(f"v_mov_b32 v{CS1+d}, 0x3f803f80")
    if "csb" in opt: a(f"s_cmp_lg_u32 s{sCSM}, 0\ns_cselect_b64 vcc, -1, 0")
    stamp("K0")
    if "dmaonly" in opt:
        DD = oi("dd", 2)
        if C1E < 6: a(chunk_dma(1)[0][:4]); a(chunk_dma(1)[C1E:])
        for c in range(2, DD): a(chunk_dma(c))
        for c in range(8):
            a(I(wvm=f"c{c}"))
            if "dnb" not in opt: a("s_barrier")
            stamp(f"B{c}")
            if c + DD < 8: a(chunk_dma(c + DD))
        a("s_branch L_prof")
        opt = [o for o in opt if not o.startswith("st=")] + ["st=end"]

    def F(s): return FR + 16 * (s & 1)
    def reads(s):
        c, j = divmod(s, 4)
        st = c % 3
        xb = vXB + j + (4 if st == 2 else 0); im = STAGE if st == 1 else 0
        wb = vWB + st; wo = 4096 * j
        f = F(s); t = f"r{s}"
        return [I(f"ds_read_b64_tr_b16 {vr(f,2)}, v{wb} offset:{wo}", lg=t),
                I(f"ds_read_b64_tr_b16 {vr(f+2,2)}, v{wb} offset:{wo+1024}", lg=t),
                I(f"ds_read_b128 {vr(f+8,4)}, v{xb} offset:{im}", lg=t),
                I(f"ds_read_b64_tr_b16 {vr(f+4,2)}, v{wb} offset:{wo+16384}", lg=t),
                I(f"ds_read_b64_tr_b16 {vr(f+6,2)}, v{wb} offset:{wo+17408}", lg=t),
                I(f"ds_read_b128 {vr(f+12,4)}, v{xb} offset:{im+4096}", lg=t)]
    def mfmas(A, B, first=False, par=0):
        out = []
        for nt in range(2):
            for m in range(2):
                d = ACC + 32 * m + 16 * nt
                if "m16x" in opt:
                    for h in range(2):
                        e = d + 8 * (par & 1) + 4 * h
                        out.append(f"v_mfma_f32_16x16x32_bf16 {vr(e,4)}, {vr(A[m ^ h],4)}, {vr(B[nt],4)}, {'0' if par < 2 else vr(e,4)}")
                    continue
                out.append(f"v_mfma_f32_32x32x16_bf16 {vr(d,16)}, {vr(A[m],4)}, {vr(B[nt],4)}, {'0' if first else vr(d,16)}")
        if "snk" in opt: out = [out[0], out[1], out[3], out[2]]
        if "snb" in opt: out = [out[0], out[2], out[3], out[1]]
        if "sna" in opt: out = [out[0], out[2], out[1], out[3]]
        return out
    def cs_mfma(p):
        o = []
        sh, n = ("16x16x32", 4) if "cs16" in opt else ("32x32x16", 16)
        mm = [f"v_mfma_f32_{sh}_bf16 {vr(CSA,n)}, {vr(CS1,4)}, {vr(F(p)+4*m,4)}, {'0' if p == 0 else vr(CSA,n)}" for m in range(2)]
        if "csb" in opt:
            return [f"s_cbranch_vccz L_cs{p}_1", f"s_bitcmp1_b32 s{sCSM}, 0", f"s_cbranch_scc0 L_cs{p}_0", mm[0], f"s_branch L_cs{p}_1",
                    f"L_cs{p}_0:", mm[1], f"L_cs{p}_1:"]
        if "cs16" in opt:
            for m in range(2): o += [f"s_bitcmp1_b32 s{sCSM}, {m}", f"s_cbranch_scc0 L_cs{p}_{m}", mm[m], f"L_cs{p}_{m}:"]
            return o
        for m in range(2):
            o += [f"s_bitcmp1_b32 s{sCSM}, {m}", f"s_cbranch_scc0 L_cs{p}_{m}",
                  f"v_mfma_f32_32x32x16_bf16 {vr(CSA,16)}, {vr(CS1,4)}, {vr(F(p)+4*m,4)}, {'0' if p == 0 else vr(CSA,16)}",
                  f"L_cs{p}_{m}:"]
        return o
    sCSB = SSH + 2
    cs_store = [L(f"""
        s_lshl_b32 s{sCSB}, s{sCB}, 2
        s_add_u32 s{sCSB}, s{sCSB}, s{sWC}
        s_lshl_b32 s{sCSB}, s{sCSB}, 10
        s_add_u32 s{sCSB}, s{sCSB}, {WS_CS}
        s_cmp_eq_u32 s{sCSM}, {'s%d' % sCSM if "nocs" in opt else 0}
        s_cbranch_scc1 L_nocs
        v_cvt_pk_bf16_f32 v{CSA+1}, v{CSA}, v{CSA}
        s_mul_i32 s{sT2}, s{sWR}, 57344
        v_lshlrev_b32 v{CSA+1}, 16, v{CSA+1}
        s_lshr_b32 s{sT3}, s{sKEY}, 1
        v_sub_f32 v{CSA+1}, v{CSA}, v{CSA+1}
        s_lshl_b32 s{sT3}, s{sT3}, 3
        v_cvt_pk_bf16_f32 v{CSA}, v{CSA}, v{CSA+1}
        s_add_u32 s{sT2}, s{sT2}, s{sT3}
        v_mov_b32 v{CSA+1}, v{vTAG}
        s_add_u32 s{sT2}, s{sT2}, s{sCSB}
        v_lshlrev_b32 v{CSA+2}, 5, v0
        s_mov_b32 exec_hi, 0
        buffer_store_dwordx2 {vr(CSA,2)}, v{CSA+2}, {sr(SWS,4)}, s{sT2} offen sc1
        s_mov_b32 exec_hi, -1
        L_nocs:
        """)]
    EG, EU, ER, EB0, EB1 = 128, 132, 20, 136, 140
    ex_addr = L(f"""
        v_and_b32 v24, 31, v0
        v_lshrrev_b32 v25, 5, v0
        v_lshlrev_b32 v25, 4, v25
        v_lshl_add_u32 v{vX0}, v24, 5, v25
        v_and_b32 v24, 15, v0
        v_lshrrev_b32 v25, 4, v0
        v_lshlrev_b32 v25, 3, v25
        v_lshl_add_u32 v{vX1}, v24, 5, v25
        s_lshl_b32 s{sKEY}, s{sRB}, 1
        s_add_u32 s{sKEY}, s{sKEY}, s{sWR}
        s_lshl_b32 s{sWB}, s{sKEY}, 9
        s_add_u32 s{sWB}, s{sWB}, {WS_RS}
        s_add_u32 s{sXB}, s{sCSB}, 57344
        """)
    ex_ld = [f"buffer_load_dwordx4 {vr(EG,4)}, v{vX0}, {sr(SWS,4)}, s{sCSB} offen sc1",
             f"buffer_load_dwordx4 {vr(EU,4)}, v{vX0}, {sr(SWS,4)}, s{sXB} offen sc1",
             f"buffer_load_dwordx2 {vr(ER,2)}, v{vX1}, {sr(SWS,4)}, s{sWB} offen sc1"]
    ex_check = L(f"""
        v_min3_u32 v24, v{EG+1}, v{EG+3}, v{ER+1}
        v_max3_u32 v25, v{EG+1}, v{EG+3}, v{ER+1}
        v_min3_u32 v24, v24, v{EU+1}, v{EU+3}
        v_max3_u32 v25, v25, v{EU+1}, v{EU+3}
        v_cmp_ne_u32 vcc, s{sTAG}, v24
        v_cmp_ne_u32 s[{sT0}:{sT1}], s{sTAG}, v25
        s_or_b64 vcc, vcc, s[{sT0}:{sT1}]
        """)
    AP, BP, SS, vHO, TM = 22, 24, 26, 28, FR
    RM = row_math()
    def part(lst, i, n): return lst[len(lst) * i // n:len(lst) * (i + 1) // n]
    def os_(k, d=""): return ([o[len(k):] for o in opt if o.startswith(k)] + [d])[0]
    W = [0]
    def cum(t): return [sum(int(x) for x in t[:i]) for i in range(5)]
    def step(s, role):
        wi = W[0]
        c, j = divmod(s, 4)
        fill = []; pre = []; post = []
        if j == 0 and s < 32:
            a(I(wvm=f"c{c}", wlg="*"))
            a("s_barrier")
            stamp(f"B{c}")
            PR_ = os_(f"Rq{role}=")
            if PR_ and (c == 0 or PR_[c] != PR_[c - 1]): a(f"s_setprio {PR_[c]}")
            if "g1only" in opt and s == 20: a("s_waitcnt vmcnt(0)\ns_branch L_prof")
        DR = os_("drop=")
        if s == SWL: pre += [wp_load]
        if s == SPW: pre += [ap(wf_ld, 28, "apw", "fw")]
        if s == SKF: pre += [ap(kf_ld, 32, "apk", "kf")]
        if s == XE: pre += [I(x, vm="ex") for x in ex_ld]
        if s == 0:
            assert C1E in (0, 2, 4, 6)
            if 0 < C1E < 6: fill += [chunk_dma(1)[0][:4]]
            fill += chunk_dma(1)[C1E:]
            if "rowl" in opt: fill += row_load()
            if SHL == -5: fill += h_load(27)
        if c <= 5:
            cu = cum(os_(f"Re{role}=", "0222") if c == 0 and C1E < 6 else os_(f"Rd{role}{c}=", os_(f"Rd{role}=", "2121")))
            assert cu[4] == 6
            g = chunk_dma(c + 2)[cu[j]:cu[j + 1]]
            pm = os_(f"Rm{role}{c}=", os_(f"Rm{role}=", "0000"))[j]
            hp = os_(f"Rp{role}=", "0")
            if hp[0] != "0" and g:
                if pm == "0" and s: g = [[f"s_setprio {hp[0]}", x, "s_setprio 0"] for x in g]
                else: g = [f"s_setprio {hp[0]}"] + g + ["s_setprio 0"]
            if s == 0 or pm == "0": fill += g
            elif pm == "1": pre += g
            else: post += g
        if PF == str(s): fill += [prefetch(4)]
        IL = os_("il=", "")
        RD = reads(s) if s < 32 else []
        if IL:
            for x, t in zip(RD, "aaabbc"): x.lg += t
        if not IL or s == 0: a(RD)
        wp_rd = [I(f"ds_read_b64_tr_b16 {vr(WP,2)}, v{vWPA}", lg="wp", wvm="wpl"),
                 I(f"ds_read_b64_tr_b16 {vr(WP+2,2)}, v{vWPA} offset:512", lg="wp")]
        wp_st = I(f"buffer_store_dwordx4 {vr(WP,4)}, v{vWPS}, {sr(SWS,4)}, s{sWPS} offen sc1", vm="wps", wlg="wp")
        if s == 0:
            a(pre + fill + (wp_rd if SWR == 0 else [])); return
        p = s - 1
        v = []
        if s in (SHL, SHL + oi("hd", 2))[:1 if H1 else 2] and "h" not in DR:
            g = h_load(31)[(s - SHL) // oi("hd", 2)]
            if "hx" in opt: g[-1].text = g[-1].text.replace(sr(SH, 4), sr(SX, 4))
            if not (("1" in DR and s == SHL) or ("2" in DR and s != SHL)): fill += [g]
        if s == oi("tg", 4) and "t" not in DR: v += [I(tag_math[0], wvm="ep")] + tag_math[1:]
        if s == SWR and "w" not in DR: fill += wp_rd
        if s == SWR + 1 and "w" not in DR: fill = [wp_st] + fill if SWR == 0 else fill + [wp_st]
        RM0, RMN = oi("rm", 5), oi("rn", 5)
        if s == SRL:
            x = row_load()[1][4:]; x[-1].vm = "xr"; fill += [x]
        if SRL >= 0 and s == RM0: v += [I(f"s_mov_b32 s{sB}, 0x3f803f80", wvm="xr")]
        if SRL >= 0 and s == oi("wf", 11):
            fill += [[f"s_lshl_b32 s{sT2}, s{sA}, 3", f"s_add_u32 s{sT2}, s{sT2}, {WS_RS + 16384}"] +
                     one(f"buffer_store_dword v{vTAG}, off, {sr(SWS,4)}, s{sT2} offset:4 sc1", vm="wf", wvm="wps")]
        if RM0 <= s < RM0 + RMN and "t" not in DR: v += part(RM[:-1], s - RM0, RMN)
        if s == SRS and "r" not in DR: fill = [RM[-1]] + fill if "rsf" in opt else fill + [RM[-1]]
        if s == oi("cst", 10) and "c" not in DR: v += cs_store
        if s == 11 and "a" not in DR: v += [wf_addr]
        HM, HW = oi("hm", 21), oi("hw", 24)
        if HM <= s <= HM + 2: v += part(h_math, s - HM, 3)
        if s == SPW + oi("pd", 3): pre += [[I(wvm="fw")] + ne(vFL) + ["s_cbranch_scc0 L_fw_ok"] + spin("fw", ap(wf_ld, 28, "apw"), ne(vFL))]
        if s == 19: v += kf_addr
        if HW <= s <= HW + 2: v += [h_write[s - HW]]
        if s == XE - 1: v += ex_addr
        if s == SRD: fill = [[I(wvm="kf")] + ne(vKL) + [f"s_cselect_b32 s{sOK}, 0, 1"] +
                             ([f"s_cselect_b64 vcc, 0, -1"] + r_dma(24)[:-1] + ["s_mov_b64 exec, vcc", r_dma(24)[-1], "s_mov_b64 exec, -1"] if "mskr" in opt else r_dma(oi("rt", 24)))] + fill
        if s == 30: v += [f"v_mov_b32 v{r}, 0" for r in (EB0 + 1, EB0 + 3, EB1 + 1, EB1 + 3)] + [f"s_mov_b32 s{sB}, 0x03020302"]
        n = wsched.get(s, 0); fill += WL[wi:wi + n]; W[0] += n
        if s == 32:
            a(I(wvm="ex"))
            a(ex_check + ["s_cbranch_scc0 L_ex_ok"] + spin("ex", ex_ld, ex_check))
            v += L(f"""
            v_mov_b32 v{ER+1}, v{ER}
            v_permlane32_swap_b32 v{ER}, v{ER+1}
            v_perm_b32 v{EB0}, v{ER}, v{ER}, s{sB}
            v_perm_b32 v{EB0+2}, v{ER}, v{ER}, s{sB}
            v_perm_b32 v{EB1}, v{ER+1}, v{ER+1}, s{sB}
            v_perm_b32 v{EB1+2}, v{ER+1}, v{ER+1}, s{sB}
            v_lshlrev_b32 v{ER}, 16, v{ER}
            v_lshlrev_b32 v{ER+1}, 16, v{ER+1}
            """)
        hd = []
        if c <= 5 and os_(f"Rm{role}{c}=", os_(f"Rm{role}=", "0000"))[j] == "1": hd, pre = pre, []
        fill = pre + (mix(v, fill) if len(v) >= len(fill) else mix(fill, v)) if (v and fill) else pre + v + fill
        a(hd)
        f = F(p)
        MM = mfmas((f, f + 4), (f + 8, f + 12), p == 0, p)
        if IL:
            nm = len(MM)
            cu2 = lambda t: [sum(int(x) for x in t[:i]) for i in range(nm + 1)]
            rc = cu2(IL[:nm]); fc = cu2(IL[nm:2 * nm])
            assert rc[nm] == 6
            for i in range(nm):
                a(I(MM[i], wlg=f"r{p}" + ("abcc" if nm == 4 else "abbbcccc")[i]))
                a(RD[rc[i]:rc[i + 1]])
                a(fill[(len(fill) * fc[i] + fc[nm] // 2) // fc[nm]:(len(fill) * fc[i + 1] + fc[nm] // 2) // fc[nm]])
        else:
            a(I(wlg=f"r{p}"))
            a(mix(MM, fill))
        if p < 8 and "nocs" not in opt and "c" not in DR: a(cs_mfma(p))
        a(post)
        stamp(f"s{s}")
    if "split" in opt:
        a(f"s_cmp_lt_u32 s{sW}, 4\ns_cbranch_scc0 L_g1y")
        sv = (list(a.vq), list(a.lq), W[0])
        for s in range(24): step(s, "o")
        a(I(wvm="c6", wlg="*"))
        a("s_branch L_g1m")
        vo = list(a.vq)
        a("L_g1y:")
        a.vq, a.lq, W[0] = sv
        i0 = len(a.lines)
        for s in range(24): step(s, "y")
        a(I(wvm="c6", wlg="*"))
        defs = [x[:-1] for x in a.lines[i0:] if x.endswith(":")]
        for i in range(i0, len(a.lines)):
            for d in defs: a.lines[i] = re.sub(rf"\b{d}\b", d + "_y", a.lines[i])
        a("L_g1m:")
        a.vq = [tuple(set(vo + a.vq))]
        for s in range(24, 33): step(s, "o")
    else:
        for s in range(33): step(s, "o")
    wi = W[0]
    fill = []
    EO = oi("eo", 2)
    cA, cB, cS = ([lambda nt, b=b: b + nt for b in (AP, BP, SS)] if EO == 0 else
                  [lambda nt, b=b: FR + 16 + 6 * nt + b for b in (0, 2, 4)])
    for nt in range(2):
        if BI:
            fill += [f"v_rcp_f32 v{TM+nt}, v{ER+nt}"] + [f"v_mov_b32 v{cS(nt)+i}, {fx((-float(ESH), 2.0 ** -ESH)[nt])}" for i in range(2)]
            continue
        fill += [f"v_rcp_f32 v{TM+nt}, v{ER+nt}", f"v_mul_f32 v{cS(nt)}, v{ER+nt}, v{ER+nt}"]
        if EO == 2: fill += [f"v_mul_f32 v{cS(nt)+1}, v{ER+nt}, v{ER+nt}"]
    for nt in range(2):
        fill += [f"v_mul_f32 v{cA(nt)}, {fx(-KC)}, v{TM+nt}"]
        if EO == 2: fill += [f"v_mul_f32 v{cA(nt)+1}, {fx(-KC)}, v{TM+nt}"]
        fill += [f"v_mul_f32 v{TM+nt}, v{TM+nt}, v{TM+nt}",
                 f"v_mul_f32 v{TM+nt}, {fx(0.044715)}, v{TM+nt}", f"v_mul_f32 v{cB(nt)}, v{cA(nt)}, v{TM+nt}"]
        if EO == 2: fill += [f"v_mul_f32 v{cB(nt)+1}, v{cA(nt)}, v{TM+nt}"]
    sHF = SK
    fill += L(f"""
    v_bfe_u32 v{TM+8}, v0, 4, 1
    v_mul_u32_u24 v{TM+8}, 57344, v{TM+8}
    v_and_b32 v{TM+9}, 15, v0
    v_lshl_add_u32 v{TM+8}, v{TM+9}, 4, v{TM+8}
    v_lshrrev_b32 v{TM+9}, 5, v0
    v_lshl_add_u32 v{vHO}, v{TM+9}, 8, v{TM+8}
    s_mul_i32 s{sXB}, s{sKEY}, {4*56*1024}
    s_add_u32 s{sXB}, s{sXB}, s{sCSB}
    s_add_u32 s{sXB}, s{sXB}, {WS_H - WS_CS}
    s_add_u32 s{sWB}, s{sXB}, {2*56*1024}
    s_sub_u32 s{sHF}, s{sCSB}, {WS_CS}
    s_lshr_b32 s{sHF}, s{sHF}, {10 - FS}
    s_mul_i32 s{sT0}, s{sKEY}, {56 << FS}
    s_add_u32 s{sHF}, s{sHF}, s{sT0}
    s_add_u32 s{sHF}, s{sHF}, {WS_FH}
    """)
    a(mix(mfmas((EG, EU), (EB0, EB1), False, 2), fill))
    stamp("B8")
    if oi("pe", 0): a(f"s_setprio {oi('pe', 0)}")
    def epi(G, U, nt, rr, pk, plain=False):
        o = []
        t = {r: TM + 2 * i for i, r in enumerate(rr)}
        P = lambda x: vr(x, 2)
        s2 = (f"op_sel:[0,{nt},{nt}] op_sel_hi:[1,{nt},{nt}]", "op_sel_hi:[1,0,0]", "")[EO]
        AP, BP, SS = [f(nt) & ~1 for f in (cA, cB, cS)]
        if plain:
            e = [(t[r] + i, G + r + i, U + r + i) for r in rr for i in range(2)]
            o += [f"v_mul_f32 v{x}, v{g}, v{g}" for x, g, u in e]
            o += [f"v_fma_f32 v{x}, v{x}, v{BP}, v{AP}" for x, g, u in e]
            o += [f"v_mul_f32 v{x}, v{x}, v{g}" for x, g, u in e]
            o += mix([f"v_exp_f32 v{x}, v{x}" for x, g, u in e], [f"v_mul_f32 v{u}, v{u}, v{g}" for x, g, u in e])
            o += [f"v_fma_f32 v{x}, v{x}, v{SS}, v{SS}" for x, g, u in e]
            o += [f"v_rcp_f32 v{x}, v{x}" for x, g, u in e]
            o += [f"v_mul_f32 v{u}, v{u}, v{x}" for x, g, u in e]
            o += [f"v_cvt_pk_bf16_f32 v{pk+i}, v{U+r}, v{U+r+1}" for i, r in enumerate(rr)]
            return o
        o += [f"v_pk_mul_f32 {P(t[r])}, {P(G+r)}, {P(G+r)}" for r in rr]
        o += [f"v_pk_fma_f32 {P(t[r])}, {P(t[r])}, {P(BP)}, {P(AP)} {s2}" for r in rr]
        if BI:
            rr = list(rr); bt = [(rr[0], rr[1]), (rr[2], rr[3])]
            o += [f"v_pk_fma_f32 {P(t[r])}, {P(t[r])}, {P(G+r)}, {P(cS(0))}" for r in rr]
            ex = [f"v_exp_f32 v{t[r]+i}, v{t[r]+i} clamp" for r in rr for i in range(2)]
            ug = [f"v_pk_mul_f32 {P(U+r)}, {P(U+r)}, {P(G+r)}" for r in rr]
            ad = [f"v_pk_add_f32 {P(t[r])}, {P(t[r])}, {P(cS(1))}" for r in rr]
            M = [f"v_pk_mul_f32 {P(G+q)}, {P(t[p])}, {P(t[q])}" for p, q in bt]
            m = [f"v_mul_f32 v{G+p}, v{G+q}, v{G+q+1}" for p, q in bt]
            rc = [f"v_rcp_f32 v{G+p}, v{G+p}" for p, q in bt]
            cr = [f"v_pk_mul_f32 {P(U+x)}, {P(U+x)}, {P(t[y])}" for p, q in bt for x, y in ((p, q), (q, p))]
            N = [f"v_pk_mul_f32 {P(G+q)}, {P(G+q)}, {P(G+p)} op_sel:[1,0] op_sel_hi:[0,0]" for p, q in bt]
            fi = [f"v_pk_mul_f32 {P(U+x)}, {P(U+x)}, {P(G+q)}" for p, q in bt for x in (p, q)]
            cv = [f"v_cvt_pk_bf16_f32 v{pk+i}, v{U+r}, v{U+r+1}" for i, r in enumerate(rr)]
            o += [ex[0], ug[0], ex[1], ug[1], ex[2], ug[2], ex[3], ad[0], ex[4], ad[1], ug[3], ex[5], M[0], ex[6], m[0], ad[2],
                  ex[7], cr[0], rc[0], ad[3], cr[1], M[1], N[0], m[1], cr[2], rc[1], fi[0], fi[1], cr[3], N[1], cv[0], cv[1],
                  fi[2], fi[3], cv[2], cv[3]]
            return o
        o += [f"v_pk_mul_f32 {P(t[r])}, {P(t[r])}, {P(G+r)}" for r in rr]
        o += mix([f"v_exp_f32 v{t[r]+i}, v{t[r]+i}" for r in rr for i in range(2)],
                 [f"v_pk_mul_f32 {P(U+r)}, {P(U+r)}, {P(G+r)}" for r in rr])
        o += [f"v_pk_fma_f32 {P(t[r])}, {P(t[r])}, {P(SS)}, {P(SS)} {s2}" for r in rr]
        o += [f"v_rcp_f32 v{t[r]+i}, v{t[r]+i}" for r in rr for i in range(2)]
        o += [f"v_pk_mul_f32 {P(U+r)}, {P(U+r)}, {P(t[r])}" for r in rr]
        o += [f"v_cvt_pk_bf16_f32 v{pk+i}, v{U+r}, v{U+r+1}" for i, r in enumerate(rr)]
        return o
    HSP = ("sc1", "sc0 sc1", "sc1 nt", "sc0 sc1 nt", "", "nt")[oi("hsp", 0)]
    for nt in range(2):
        G = ACC + 16 * nt; U = ACC + 32 + 16 * nt
        for h in range(2):
            pk = TM + 8 + 4 * h
            seq = epi(G, U, nt, range(8 * h, 8 * h + 8, 2), pk, 2 * nt + h < oi('npl', 0))
            n = wepi[2 * nt + h]
            ex = WL[wi:wi + n]; wi += n
            q = 33 + 2 * nt + h
            if oi("hm", 21) == q: ex = ex + h_math
            if oi("hw", 24) == q: ex = ex + h_write
            if SRD == q: ex = ex + [[I(wvm="kf")] + ne(vKL) + [f"s_cselect_b32 s{sOK}, 0, 1"] + r_dma(24)]
            if SRD == q + 10: ex = [[I(wvm="kf")] + ne(vKL) + [f"s_cselect_b32 s{sOK}, 0, 1"] + r_dma(24)] + ex
            a(mix(seq, ex))
            so = sXB if nt == 0 else sWB
            a(I(f"buffer_store_dwordx4 {vr(pk,4)}, v{vHO}, {sr(SWS,4)}, s{so} offen offset:{512*h} {HSP}", vm="hs"))
            stamp(f"e{2*nt+h}")
    assert wi == NPRE
    a(f"s_branch {JOIN}")
    vq_join = list(a.vq)

    a(f"{AUX}:")
    if "noaux" in opt: a(f"s_branch {END}")
    a.vq, a.lq = list(vq_pro), []
    vKa, vKb, TP, vT, vKS, KR, KT = 1, 2, 32, 6, 10, 48, 96
    sKO, sKL = sXB, sWB
    a(row_load())
    AXL = oi("axl", 0)
    if AXL & 2: a(h_load(27))
    if AXL & 1: a(I(wvm="ep")); a(tag_math); a(row_math())
    if AXL & 4: a(I(wvm="*"))
    if oi("asl", 0): a(f"s_sleep {oi('asl', 0)}")
    a(f"""
    s_xor_b32 s{sCB}, s{sXCD}, s{sW}
    v_and_b32 v23, 1, v21
    v_lshlrev_b32 v23, 1, v23
    v_xor_b32 v23, v22, v23
    v_lshlrev_b32 v23, 4, v23
    v_lshl_add_u32 v{vKa}, v20, 10, v23
    {f"v_lshlrev_b32 v{vKa}, 4, v0" if "kvlin" in opt else ""}
    v_xor_b32 v{vKb}, 64, v{vKa}
    s_lshl_b32 s{sKO}, s{sRBL}, 3
    s_add_u32 s{sKO}, s{sKO}, s{sW}
    s_mov_b32 s{sKEY}, s{sKO}
    s_lshl_b32 s{sKO}, s{sKO}, 16
    s_lshl_b32 s{sT0}, s{sCB}, {13 if "kvlin" in opt else 7}
    s_add_u32 s{sKO}, s{sKO}, s{sT0}
    s_mul_i32 s{sKL}, s{sW}, 17408
    s_mov_b32 m0, s{sKL}
    s_cmp_eq_u32 s{sKEY}, 0
    s_cbranch_scc1 L_halo0
    s_sub_u32 s{sT0}, s{sKO}, 8192
    buffer_load_dwordx4 v{vKa}, {sr(SK,4)}, s{sT0} offen lds
    s_branch L_halo1
    L_halo0:
    v_mov_b32 v40, 0
    v_mov_b32 v41, 0
    v_mov_b32 v42, 0
    v_mov_b32 v43, 0
    ds_write_b128 v{vL16}, v[40:43]
    L_halo1:
    """)
    def kv_ld(m, b, tag):
        lb = (1 + b) if m == 0 else (9 + b)
        par = (lb & 1) if m == 0 else (b & 1)
        return [f"s_add_u32 m0, s{sKL}, {1024*lb}", f"s_add_u32 s{sT0}, s{sKO}, {(1024 if 'kvlin' in opt else 8192)*b}",
                I(f"buffer_load_dwordx4 v{vKb if par else vKa}, {sr(SV if m else SK,4)}, s{sT0} offen{NTK} lds", vm=tag)]
    for b in range(4): a(kv_ld(0, b, "k0")); a(kv_ld(1, b, "k0"))
    a(f"""
    v_and_b32 v23, 15, v0
    v_lshlrev_b32 v26, 3, v23
    s_lshl_b32 s{sT1}, s{sCB}, 9
    """)
    for cg in range(4):
        a(I(f"buffer_load_dwordx2 {vr(TP+2*cg,2)}, v26, {sr(SSH,4)}, s{sT1} offen offset:{128*cg}", vm="k0"))
    for b in range(4, 8): a(kv_ld(0, b, "k1")); a(kv_ld(1, b, "k1"))
    if not AXL & 2: a(h_load(27))
    stamp("iss", 4)
    a(f"""
    v_lshlrev_b32 v26, 7, v24
    v_lshl_add_u32 v26, v21, 10, v26
    v_lshl_add_u32 v26, v25, 3, v26
    v_lshrrev_b32 v27, 1, v24
    v_lshl_add_u32 v26, v27, 5, v26
    v_and_b32 v27, 1, v21
    v_lshl_add_u32 v26, v27, 6, v26
    v_add_u32 v{vT}, s{sKL}, v26
    v_xor_b32 v{vT+1}, 32, v{vT}
    v_xor_b32 v{vT+2}, 64, v{vT}
    v_xor_b32 v{vT+3}, 96, v{vT}
    v_lshrrev_b32 v26, 1, v23
    v_lshlrev_b32 v26, 13, v26
    v_and_b32 v27, 1, v0
    v_lshl_add_u32 v26, v27, 4, v26
    v_sub_u32 v27, 3, v21
    v_lshl_add_u32 v{vKS}, v27, 5, v26
    s_lshl_b32 s{sKO}, s{sCB}, 18
    s_lshl_b32 s{sT0}, s{sKEY}, 8
    s_sub_u32 s{sKO}, s{sKO}, s{sT0}
    s_add_u32 s{sKO}, s{sKO}, {WS_KV + 8192 - 256}
    """)
    if not AXL & 1: a(I(wvm="ep")); a(tag_math); a(row_math())
    stamp("rs", 1)
    def kv_read(hh, cg):
        r = KR + 10 * cg; t = f"kr{cg}"
        return [I(f"ds_read_b64_tr_b16 {vr(r,2)}, v{vT+cg} offset:{4096*hh+512}", lg=t),
                I(f"ds_read_b64_tr_b16 {vr(r+2,2)}, v{vT+(cg^2)} offset:{4096*hh+1024}", lg=t),
                I(f"ds_read_b64_tr_b16 {vr(r+4,2)}, v{vT+(cg^2)} offset:{4096*hh+1536}", lg=t),
                I(f"ds_read_b64_tr_b16 {vr(r+6,2)}, v{vT+cg} offset:{4096*hh+9216}", lg=t),
                I(f"ds_read_b64_tr_b16 {vr(r+8,2)}, v{vT+cg} offset:{4096*hh+9728}", lg=t)]
    def kv_math(hh, cg):
        r = KR + 10 * cg; q, u, w, pk = KT, KT + 8, KT + 16, KT + 24 + 4 * (cg & 1)
        o = [I(wlg=f"kr{cg}")]
        o += [f"v_alignbit_b32 v{q+i}, v{r+i}, v{r+i-1}, 16" for i in range(1, 6)]
        src = lambda t, back: (r if t & 1 else q) + 2 + t // 2 - back
        for t in (1, 3, 5, 7, 0, 2, 4, 6): o += [f"v_dot2_f32_bf16 v{u+t}, v{src(t,0)}, v{TP+2*cg}, 0"]
        for t in (1, 3, 5, 7, 0, 2, 4, 6): o += [f"v_dot2_f32_bf16 v{u+t}, v{src(t,1)}, v{TP+2*cg+1}, v{u+t}"]
        o += [f"v_and_b32 v{w+t}, 0xffff0000, v{r+6+t//2}" if t & 1 else f"v_lshlrev_b32 v{w+t}, 16, v{r+6+t//2}" for t in range(8)]
        o += [f"v_mul_f32 v{u+t}, v{u+t}, v{w+t}" for t in range(8)]
        o += [f"v_cvt_pk_bf16_f32 v{pk+e}, v{u+7-2*e}, v{u+6-2*e}" for e in range(4)]
        o += [f"s_add_u32 s{sT0}, s{sKO}, {65536*cg}",
              I(f"buffer_store_dwordx4 {vr(pk,4)}, v{vKS}, {sr(SWS,4)}, s{sT0} offen offset:{128*(1-hh)} sc1", vm="ks")]
        return o
    for hh in range(2):
        a(I(wvm=f"k{hh}", wlg="*"))
        stamp("kin", 5 + 2 * hh)
        for cg in range(4): a(kv_read(hh, cg))
        if hh == 0:
            for d in range(8): a(f"v_alignbit_b32 v{TP+d}, v{TP+d}, v{TP+d}, 16")
        for cg in range(4): a(kv_math(hh, cg))
        stamp("km", 6 + 2 * hh)
    a(h_math); a(wf_addr)
    vKA2, vKL2 = 27, 28
    ld2 = f"buffer_load_dword v{vKL2}, v{vKA2}, {sr(SWS,4)}, s{sA} offen sc1"
    a(f"""
    s_lshl_b32 s{sT0}, s{sCB}, 5
    s_add_u32 s{sT0}, s{sT0}, s{sKEY}
    s_lshl_b32 s{sT0}, s{sT0}, 2
    s_add_u32 s{sT0}, s{sT0}, {WS_FKV}
    v_lshlrev_b32 v26, 10, v0
    v_lshlrev_b32 v{vKA2}, 3, v0
    s_lshl_b32 s{sA}, s{sRT2}, 9
    s_add_u32 s{sA}, s{sA}, {WS_RS + 4}
    """)
    a([I("s_mov_b64 exec, 3", wvm="*"), f"buffer_store_dword v{vTAG}, v26, {sr(SWS,4)}, s{sT0} offen sc1", "s_mov_b64 exec, -1"])
    stamp("kvf", 2)
    if "dmaonly" in opt or "g1only" in opt: a("s_branch L_prof")
    ck2 = [f"v_xor_b32 v{vFL}, s{sTAG}, v{vFL}", f"v_xor_b32 v{vKL2}, s{sTAG}, v{vKL2}", f"v_or_b32 v{vFL}, v{vFL}, v{vKL2}",
           f"v_cmp_ne_u32 vcc, 0, v{vFL}", "s_cmp_lg_u64 vcc, 0"]
    a("s_barrier")
    a(h_write)
    a(kf_addr); a(f"s_add_u32 s{sC}, s{sC}, 1024")
    stamp("wd", 3)
    a(spin("fwa", ap(wf_ld, 28, "apx") + ap(ld2, 64, "apx"), ck2))
    a(f"""
    s_cmp_lg_u32 s2, 0
    s_cbranch_scc1 L_ep_ok
    s_add_u32 s{sT0}, s{sM0X}, {WS_RS}
    """)
    a(spin("ep", [f"buffer_load_dwordx4 v[32:35], v{vL16}, {sr(SWS,4)}, s{sT0} offen sc1",
                  f"buffer_load_dwordx4 v[36:39], v{vL16}, {sr(SWS,4)}, s{sT0} offen offset:1024 sc1"],
           [f"v_xor_b32 v{r}, s{sTAG}, v{r}" for r in (33, 35, 37, 39)] +
           ["v_or3_b32 v33, v33, v35, v37", "v_or_b32 v33, v33, v39", "v_cmp_ne_u32 vcc, 0, v33", "s_cmp_lg_u64 vcc, 0"]))
    NA = oi("na", 8)
    a(WL[:NA])
    a(spin("kva", ap(kf_ld, 32, "apx"), ne(vKL)))
    a.vq = []
    a(r_dma(24)); a(WL[NA:NPRE]); a(I(wvm="R"))
    a(f"s_branch L_kvok")

    a(f"{JOIN}:")
    a.vq, a.lq = list(vq_join), []
    stamp("join")
    if oi("pe", 0): a("s_setprio 0")
    okv = ("s%d" % sOK) if "nocv" in opt else "1"
    a(f"s_cmp_eq_u32 s{sOK}, {okv}\ns_cbranch_scc1 L_kvok")
    a(spin("kv", ap(kf_ld, 32, "apk"), ne(vKL)))
    sv = list(a.vq); a(r_dma(24)); a(I(wvm="*")); a.vq = sv
    a("L_kvok:")
    CA, AF, BF = 32, 64, 128
    vRU, vRH, vPW, vPR, vZW, vZR, vYA, vYR, vOO = 2, 3, 4, 10, 11, 12, 13, 14, 30
    vXF, XN, vRC = 20, 22, 6
    vXF = 1
    sCH, sWQ, sCVB, sRHO = SV, SV + 1, SV + 2, SV + 3
    sOQ = SSH
    a(f"""
    s_lshr_b32 s{sCH}, s{sW}, 2
    s_and_b32 s{sWQ}, s{sW}, 3
    s_mul_i32 s{sCVB}, s{sCH}, {CVCH}
    s_add_u32 s{sCVB}, s{sCVB}, {L_CV}
    s_lshl_b32 s{sT0}, s{sWQ}, 7
    s_add_u32 s{sT0}, s{sT0}, s{sCVB}
    s_add_u32 s{sT1}, s{sT0}, 480
    v_and_b32 v15, 15, v0
    v_and_b32 v16, 48, v0
    v_lshlrev_b32 v31, 5, v15
    v_sub_u32 v31, v16, v31
    v_add_u32 v{vRU}, s{sT1}, v31
    s_add_u32 s{sT1}, s{sT0}, {4608 - 28 + 4160 + 3072}
    v_and_b32 v31, 1, v0
    v_mul_u32_u24 v31, 4160, v31
    v_sub_u32 v31, v16, v31
    v_bfe_u32 v{vRH}, v0, 1, 3
    v_lshl_add_u32 v31, v{vRH}, 2, v31
    v_add_u32 v{vRH}, s{sT1}, v31
    """)
    KHF = oi("hf", 5)
    hf_st = [f"s_cmp_eq_u32 s{sISG}, 0", "s_cbranch_scc1 L_nohf", I(wvm="hs"),
             line(sHF), "L_nohf:"]
    HP = oi("hp", 0)
    if HP:
        pre = [f"s_xor_b32 s{sT0}, s{sXCD}, s{sWR}", f"s_bitcmp1_b32 s{sT0}, 0", "s_cbranch_scc1 L_nohf"]
        if HP == 1:
            pre += ["v_lshrrev_b32 v13, 4, v0", "v_mul_u32_u24 v13, 57344, v13", "v_lshl_add_u32 v13, v15, 6, v13",
                    f"buffer_load_dword v14, v13, {sr(SWS,4)}, s{sXB} offen sc1"]
        if HP == 2:
            pre += ["v_lshrrev_b32 v13, 3, v0", "v_mul_u32_u24 v13, 57344, v13", "v_and_b32 v14, 7, v0", "v_lshl_add_u32 v13, v14, 7, v13",
                    "s_mov_b32 exec_hi, 0", f"buffer_load_dword v14, v13, {sr(SWS,4)}, s{sXB} offen sc1", "s_mov_b32 exec_hi, -1"]
        hf_st = hf_st[:-1] + pre + hf_st[-1:]
    if KHF < 0: a(hf_st); stamp("hflag")
    AM = oi("am", 0)
    a(f"s_cmp_eq_u32 s{sISG}, 0")
    if AM: a(f"s_cselect_b32 s{sOK}, 0, 0xff")
    a("s_cbranch_scc1 L_nowr")
    a(I(wvm="R"))
    a("L_nowr:")
    a(I(wlg="*"))
    if "noc1" not in opt: a("s_barrier")
    stamp("c1")
    a(f"s_or_b32 s{sT0}, s2, s{sW}\ns_cbranch_scc1 L_noep")
    a(one(f"buffer_store_dword v{vTAG}, off, {sr(SWS,4)}, 0 offset:{WS_EPOCH} sc1"))
    a("L_noep:")
    order = [(0, p) for p in range(7, -1, -1)] + [(1, p) for p in range(8)]
    def uread(rr, d): return I(f"ds_read_b128 {vr(AF+32*rr+4*d,4)}, v{vRU} offset:{512*(7-d)+64*rr}", lg=f"a{rr}{d}")
    def hread(k):
        rr, p = order[k]; o = 128 * (p & 1) + 16 * rr; b = BF + 4 * (k % 4)
        g = []
        if rr == 0 and p in (5, 3, 1): g += [f"v_subrev_u32 v{vRH}, 1024, v{vRH}"]
        if rr == 1 and p in (2, 4, 6): g += [f"v_add_u32 v{vRH}, 1024, v{vRH}"]
        return g + [I(f"ds_read2_b32 {vr(b,2)}, v{vRH} offset0:{o} offset1:{o+1}", lg=f"b{k}"),
                    I(f"ds_read2_b32 {vr(b+2,2)}, v{vRH} offset0:{o+2} offset1:{o+3}", lg=f"b{k}")]
    PC, PG = os_("pc="), os_("pg=")
    if PC: a(f"s_setprio {PC[0]}")
    for k in range(3): a(hread(k)); a(uread(0, k))
    for d in range(3, 8): a(uread(0, d))
    XV = 6
    fin_addr = L(f"""
        s_and_b32 s{sRHO}, s{sCT2}, 3
        s_lshl_b32 s{sT0}, s{sRT2}, 3
        s_add_u32 s{sT0}, s{sT0}, s{sW}
        s_lshl_b32 s{sOQ}, s{sT0}, 13
        s_lshl_b32 s{sT1}, s{sCT2}, 7
        s_add_u32 s{sOQ}, s{sOQ}, s{sT1}
        s_lshl_b32 s{sT0}, s{sT0}, 6
        s_add_u32 s{sOQ+1}, s{sT0}, {WS_RS}
        v_and_b32 v31, 3, v0
        v_lshrrev_b32 v1, 5, v0
        v_lshl_add_u32 v31, v1, 2, v31
        v_and_b32 v{vOO}, 28, v0
        v_lshlrev_b32 v{vOO}, 2, v{vOO}
        v_lshl_add_u32 v{vOO}, v31, 10, v{vOO}
        v_lshlrev_b32 v1, 3, v31
        """)
    fin_ld = [I(f"buffer_load_dwordx4 {vr(XV,4)}, v{vOO}, {sr(SX,4)}, s{sOQ} offen", vm="xt"),
              I(f"buffer_load_dword v{XN+7}, v1, {sr(SWS,4)}, s{sOQ+1} offen sc1", vm="xt")]
    if "to" in opt: fin_ld = [I(f"buffer_load_dword v{XN+6}, off, {sr(SOUT,4)}, s{sOQ}", vm="xt")] + fin_ld
    vZS = 2
    def zsc(r):
        if not BI: return []
        return [f"v_mul_f32 v{vZS}, {fx(2.0 ** -ESH)}, v{r}", f"v_mul_f32 v{vZS}, v{vZS}, v{r}", f"v_mul_f32 v{r}, v{vZS}, v{r}",
                f"v_mul_f32 v{vZS}, {fx(-1.4426950408889634)}, v{vZS}"]
    def unpack(d, x): return [f"v_and_b32 v{d+e}, 0xffff0000, v{x+e//2}" if e & 1 else f"v_lshlrev_b32 v{d+e}, 16, v{x+e//2}" for e in range(8)]
    xn_math = ([I(f"v_lshlrev_b32 v20, 16, v{XN+7}", wvm="xt"), f"v_and_b32 v21, 0xffff0000, v{XN+7}", "v_rcp_f32 v20, v20"] +
               unpack(XN, XV) + [f"v_add_f32 v{XN+e}, v{XN+e}, v21" for e in range(8)] + zsc(20) +
               [f"v_mul_f32 v{XN+e}, v{XN+e}, v20" for e in range(8)])
    p_addr = L(f"""
        v_bfe_u32 v20, v0, 1, 2
        v_bfe_u32 v21, v0, 3, 1
        v_xor_b32 v20, v20, v21
        v_lshlrev_b32 v20, 4, v20
        v_xor_b32 v20, v20, v16
        v_lshl_add_u32 v20, v15, 6, v20
        s_lshl_b32 s{sT0}, s{sW}, 13
        v_add_u32 v{vPW}, s{sT0}, v20
        v_bfe_u32 v20, v0, 2, 2
        v_bfe_u32 v21, v0, 4, 1
        v_xor_b32 v20, v20, v21
        v_lshlrev_b32 v20, 4, v20
        v_lshlrev_b32 v21, 5, v0
        v_xor_b32 v20, v20, v21
        s_lshl_b32 s{sT0}, s{sCH}, 15
        s_lshl_b32 s{sT1}, s{sWQ}, 11
        s_add_u32 s{sT0}, s{sT0}, s{sT1}
        v_add_u32 v{vPR}, s{sT0}, v20
        """)
    HB, ZA, NS = 64, 32, 16
    sH1, sH2, sHQ = sXB, sWB, sKEY
    def HR(n): return HB + 4 * (n % NS if n % NS < 8 else 23 - n % NS)
    sMK = sA
    def hload(n, mask=False):
        qd, ks = divmod(n, 7)
        g = []
        if ks == 0:
            g += [f"s_xor_b32 s{sT3}, s{sRHO}, {qd}", f"s_mul_i32 s{sT3}, s{sT3}, 57344", f"s_add_u32 s{sH1}, s{sHQ}, s{sT3}",
                  f"s_sub_u32 s{sH2}, s{sH1}, s{sRB}"]
        t = I(f"buffer_load_dwordx4 {vr(HR(n),4)}, v{vL16}, {sr(SWS,4)}, s{sH1 if ks < 4 else sH2} offen offset:{(ks&3)*1024} sc1", vm=f"h{n}")
        if "hx2" in opt: return g + [f"s_mov_b64 exec, {sr(sMK,2)}" if mask else "s_nop 0", "s_mov_b32 exec_hi, 0", t, "s_mov_b64 exec, -1"]
        if "hx1" in opt: t = I(t.text.replace("dwordx4 " + vr(HR(n),4), "dword " + vr(HR(n),1)).replace(f"v{vL16},", "v15,"), vm=f"h{n}")
        return g + ([f"s_mov_b64 exec, {sr(sMK,2)}", t, "s_mov_b64 exec, -1"] if mask and "nomask" not in opt else [t])
    def again(n1):
        sv = list(a.vq)
        for n in range(n1): a(hload(n))
        a.vq = sv
    h_addr = L(f"""
        s_mul_i32 s{sHQ}, s{sRT2}, {4*56*1024}
        s_mul_i32 s{sT1}, s{sW}, 7168
        s_add_u32 s{sHQ}, s{sHQ}, s{sT1}
        s_mul_i32 s{sT1}, s{sHI}, 3072
        s_add_u32 s{sHQ}, s{sHQ}, s{sT1}
        s_add_u32 s{sHQ}, s{sHQ}, {WS_H}
        s_mul_i32 s{sRB}, s{sHI}, 7168
        s_sub_u32 s{sRB}, s{sRB}, 4096
        s_lshl_b32 s{sE}, s{sRT2}, 3
        s_add_u32 s{sE}, s{sE}, s{sW}
        s_mul_i32 s{sE}, s{sE}, {7 << FS}
        s_add_u32 s{sE}, s{sE}, {WS_FH + 4}
        v_min_u32 v{vFA}, 6, v0
        v_lshlrev_b32 v{vFA}, {FS}, v{vFA}
        """)
    KH, KR_, KA, KB = oi("kh", 8), oi("kq", 3), oi("ka", 6), oi("kb", 11)
    assert 8 <= KH <= 15 and KA < KH <= KB and KHF < KH
    PM = [o[3:].replace("_", " ") for o in opt if o.startswith("pm=")]
    def poll(at, vm=None, am=False):
        if not at:
            t = wf_ld.replace("sc1", PM[0]) if PM else wf_ld
            return [I(t, vm=vm)]
        return [f"v_mov_b32 v{vFL}, 0"] + ([f"s_mov_b32 exec_lo, s{sOK}", "s_mov_b32 exec_hi, 0"] if am else ["s_mov_b64 exec, 0xff"]) + [
                I(f"buffer_atomic_or v{vFL}, v{vFA}, {sr(SWS,4)}, s{sE} offen sc0 sc1", vm=vm), "s_mov_b64 exec, -1"]
    def ne8(at): return [f"v_cmp_ne_u32 vcc, s{sTAG}, v{vFL}", "s_and_b32 vcc_lo, vcc_lo, 0xff"] if at else ne(vFL)
    AH, AY = "aph" in opt or "apa" in opt, "apy" in opt or "apa" in opt
    hf_ld = poll(AH)
    hn = 0
    NB = oi("nb", NS); YL = [int(x) for x in os_("yl=", "0000")]; NY = NB + sum(YL); GQ = oi("gq", 2)
    assert NY <= NS
    def yl(i):
        for n in range(NB + sum(YL[:i]), NB + sum(YL[:i + 1])): a(hload(n, True))
    def pwrite(j): return I(f"ds_write_b128 v{vPW}, {vr(CA+4*j,4)} offset:{1024*j}", lg="pw")
    sYS = sCB
    if "nocv" in opt:
        a(fin_addr); a(h_addr)
        if "wtf" in opt: a(WL[NPRE:]); a(fin_ld)
        a(hf_st)
        if "bar2" in opt: a("s_barrier")
        if "wtf" not in opt: a(WL[NPRE:]); a(fin_ld)
        stamp("k1")
        a(xn_math)
        if "blind" not in opt: a(spin("hf0", [f"s_sleep {oi('sl', 0)}", hf_ld], ne8(AH)))
        stamp("k11")
        a.vq = []
        for n in range(NS): a(hload(n))
        a(f"s_mov_b32 s{sMK}, -1")
        a(I(wlg="*"))
        stamp("c3")
    else:
        for k, (rr, p) in enumerate(order):
            seq = []
            for j in range(p, 8):
                c = "0" if (rr == 0 and j == p) else vr(CA + 4 * j, 4)
                seq.append(I(f"v_mfma_f32_16x16x32_bf16 {vr(CA+4*j,4)}, {vr(BF+4*(k%4),4)}, {vr(AF+32*rr+4*(j-p),4)}, {c}",
                             wlg=[f"a{rr}{j-p}", f"b{k}"]))
            fill = []
            if k == 1: fill += [fin_addr]
            WK = os_("wk=")
            if WK:
                assert sum(int(x) for x in WK) == 28 - NPRE
                w0 = NPRE + sum(int(x) for x in WK[:k]); fill += WL[w0:w0 + int((WK + "0" * 16)[k])]
            elif 1 <= k <= 6: fill += part(WL[NPRE:], k - 1, 6)
            if k == oi("kx", 3): fill += fin_ld
            if 4 <= k <= 7: fill += [uread(1, 2 * (k - 4)), uread(1, 2 * (k - 4) + 1)]
            if k in (6, 7): fill += part(p_addr, k - 6, 2)
            if 8 <= k <= 11 and "xg" not in opt: fill += part(xn_math, k - 8, 4)
            if k >= 9: fill = fill[:2] + [pwrite(p - 1)] + fill[2:]
            if k == 2: fill += [h_addr]
            if k == KHF and "hb" not in opt: fill += [hf_st]
            if k == KA and "hb" not in opt: fill += [poll(AH, "hf", AM & 1)]
            if k == KH and "hb" in opt: a(f"s_mov_b64 {sr(sMK,2)}, -1")
            elif k == KH: a([I(wvm="hf")] + ne8(AH) + [f"s_cselect_b64 {sr(sMK,2)}, 0, -1"])
            if k == KB: fill += [[f"s_cmp_lg_u32 s{sMK}, 0", "s_cbranch_scc1 L_nof2", poll(AH, None, AM & 2), "L_nof2:"]]
            if k >= KH:
                e = min(hn + KR_, k, NB); hl = [hload(n, True) for n in range(hn, e)]; hn = max(hn, e)
                fill = mix(fill, hl) if len(fill) >= len(hl) else mix(hl, fill)
            a(mix(seq, fill))
            if k + 3 < 16: a(hread(k + 3))
            if PC and PC[k + 1] != PC[k]: a(f"s_setprio {PC[k + 1]}")
            stamp(f"k{k}")
        a(f"""
        s_lshl_b32 s{sT1}, s{sWQ}, 10
        s_sub_u32 s{sT1}, s{sCVB}, s{sT1}
        s_add_u32 s{sT1}, s{sT1}, 4080
        v_sub_u32 v20, s{sT1}, v{vL16}
        v_xor_b32 v21, 16, v{vPR}
        """)
        a(pwrite(7))
        for n in range(hn, NB): a(hload(n, True))
        a([f"s_cmp_lg_u32 s{sMK}, 0", "s_cbranch_scc1 L_hlate", "s_waitcnt vmcnt(0)"] + ne8(AH) +
          [f"s_cselect_b64 {sr(sMK,2)}, 0, -1", "s_cbranch_scc1 L_hlate"])
        again(NB)
        a("L_hlate:")
        sYS = sCB
        a(I(wlg="*"))
        a("s_barrier")
        stamp("c3")
        if "py" in opt: a("s_setprio 3")
        PR, vU, YA = 32, 128, 132
        a(I(f"ds_read_b128 {vr(vU,4)}, v20", lg="su"))
        for k in range(4):
            a(I(f"ds_read_b128 {vr(PR+8*k,4)}, v{vPR} offset:{8192*k}", lg=f"p{k}"))
            a(I(f"ds_read_b128 {vr(PR+8*k+4,4)}, v21 offset:{8192*k}", lg=f"p{k}"))
        a(f"""
        s_lshl_b32 s{sT1}, s{sCH}, 4
        s_lshr_b32 s{sD}, s{sD}, s{sT1}
        s_lshl_b32 s{sD}, s{sD}, 16
        s_lshl_b32 s{sT1}, s{sCP}, 13
        s_lshl_b32 s{sT3}, s{sW}, 10
        s_add_u32 s{sT1}, s{sT1}, s{sT3}
        s_add_u32 s{sT1}, s{sT1}, {WS_YT}
        s_lshl_b32 s{sYS}, s{sWQ}, 9
        s_lshl_b32 s{sT3}, s{sCP}, 1
        s_add_u32 s{sYS}, s{sYS}, s{sT3}
        s_add_u32 s{sYS}, s{sYS}, s{sCH}
        s_lshl_b32 s{sT3}, s{sYS}, 7
        s_and_b32 s{sT3}, s{sT3}, 0x380
        v_xor_b32 v31, s{sT3}, v{vL16}
        s_lshl_b32 s{sYS}, s{sYS}, {FS}
        s_add_u32 s{sYS}, s{sYS}, {WS_FY}
        """)
        yl(0)
        stamp("y0")
        a(I(wlg="su"))
        stamp("y1")
        for e in range(4):
            a(f"v_and_b32 v{YA+6-2*e}, 0xffff0000, v{vU+e}\nv_lshlrev_b32 v{YA+7-2*e}, 16, v{vU+e}")
        yl(1)
        a(I(wlg="p0"))
        for e in range(8): a(f"v_fma_f32 v{YA+e}, v{YA+e}, s{sD}, v{PR+e}")
        yl(2)
        a(I(wlg="p2"))
        def add8(d, x):
            if "ynp" in opt:
                for e in range(8): a(f"v_add_f32 v{d+e}, v{d+e}, v{x+e}")
            else:
                for e in range(0, 8, 2): a(f"v_pk_add_f32 {vr(d+e,2)}, {vr(d+e,2)}, {vr(x+e,2)}")
        add8(PR + 8, PR + 16)
        yl(3)
        a(I(wlg="p3"))
        stamp("y2")
        a(f"s_lshl_b32 s{sT3}, s{sW}, 2\ns_add_u32 s{sT3}, s{sT3}, {L_CNT}\nv_mov_b32 v20, s{sT3}")
        a(I(f"ds_write_b32 v20, v{vTAG}", lg="cw"))
        add8(YA, PR + 24)
        add8(YA, PR + 8)
        for e in range(4): a(f"v_cvt_pk_bf16_f32 v{vU+e}, v{YA+2*e}, v{YA+2*e+1}")
        stamp("y3")
        a(I(f"buffer_store_dwordx4 {vr(vU,4)}, v31, {sr(SWS,4)}, s{sT1} offen sc1", vm="ys"))
    stamp("ys")
    if PG or "py" in opt: a(f"s_setprio {PG[0] if PG else 0}")
    a(f"s_cmp_lg_u32 s{sMK}, 0\ns_cbranch_scc1 L_hgo")
    a(spin("hf", [hf_ld], ne8(AH)))
    stamp("hsp")
    again(NY)
    hn = NY
    a(line(sYS))
    a("L_hgo:")
    stamp("hok")
    sYA, sYF, sSEL = sMO, sE, SK
    YO = "yo" in opt
    sYW = sMO + 1 if YO else sW
    g2_addr = L(f"""
    v_lshrrev_b32 v20, 4, v0
    s_lshl_b32 s{sT1}, s{sRBL}, 2
    v_xor_b32 v21, v20, v15
    v_xor_b32 v21, s{sT1}, v21
    v_lshlrev_b32 v21, 4, v21
    v_lshl_add_u32 v21, v15, 8, v21
    s_lshl_b32 s{sT1}, s{sW}, 12
    v_add_u32 v{vZW}, s{sT1}, v21
    s_lshl_b32 s{sT1}, s{sW}, 1
    v_lshrrev_b32 v1, 5, v0
    v_add_u32 v21, s{sT1}, v1
    v_and_b32 v20, 3, v0
    v_xor_b32 v31, s{sRHO}, v20
    v_lshrrev_b32 v{vZR}, 1, v0
    v_and_b32 v{vZR}, 14, v{vZR}
    v_xor_b32 v{vZR}, v{vZR}, v21
    v_xor_b32 v{vZR}, v{vZR}, v31
    v_lshlrev_b32 v{vZR}, 4, v{vZR}
    v_lshl_add_u32 v{vZR}, v21, 8, v{vZR}
    s_mov_b32 s{sT1}, {sum((L_Z[q] >> 15) << (8 * q) for q in range(4))}
    v_lshlrev_b32 v31, 3, v31
    v_bfe_u32 v31, s{sT1}, v31, 8
    v_lshl_add_u32 v{vZR}, v31, 15, v{vZR}
    v_bfe_u32 v31, v0, 4, 1
    v_lshl_add_u32 v20, v31, 2, v20
    v_xor_b32 v21, s{sW}, v20
    v_lshlrev_b32 v21, 4, v21
    v_lshl_add_u32 v21, v1, 3, v21
    v_lshl_add_u32 v21, v20, 10, v21
    v_bfe_u32 v31, v0, 2, 2
    v_lshl_add_u32 v21, v31, 7, v21
    v_add_u32 v{vYR}, {L_Y}, v21
    v_and_b32 v21, 7, v0
    {f"s_lshl_b32 s{sYW}, s{sW}, 1" if YO else ""}
    v_xor_b32 v20, s{sYW}, v21
    v_lshlrev_b32 v20, 4, v20
    v_lshrrev_b32 v31, 3, v0
    v_lshl_add_u32 v20, v31, 12, v20
    s_and_b32 s{sT1}, s{sRT2}, 7
    v_xor_b32 v31, s{sT1}, v31
    v_lshl_add_u32 v{vYA}, v31, 7, v20
    v_lshlrev_b32 v{vFA}, {FS}, v{15 if YO else 21}
    v_lshlrev_b32 v1, 2, v21
    v_add_u32 v1, {L_CNT}, v1
    s_lshl_b32 s{sT1}, s{sCT2}, 3
    s_add_u32 s{sT1}, s{sT1}, s{sYW}
    s_lshl_b32 s{sYA}, s{sT1}, 15
    s_and_b32 s{sT0}, s{sRT2}, 24
    s_lshl_b32 s{sT0}, s{sT0}, 7
    s_add_u32 s{sYA}, s{sYA}, s{sT0}
    s_add_u32 s{sYA}, s{sYA}, {WS_YT}
    s_lshl_b32 s{sYF}, s{sT1}, {FS + 3}
    s_lshr_b32 s{sT0}, s{sRT2}, 3
    s_lshl_b32 s{sT0}, s{sT0}, {FS + 9}
    s_add_u32 s{sYF}, s{sYF}, s{sT0}
    s_add_u32 s{sYF}, s{sYF}, {WS_FY + 4}
    s_mov_b32 s{sSEL}, {fx(-1.4426950408889634)}
    s_mov_b32 s{sSEL+1}, s{sSEL}
    s_mov_b32 s{sSEL+2}, 1.0
    s_mov_b32 s{sSEL+3}, 1.0
    s_lshl_b32 s{sT0}, s{sYW}, 10
    s_add_u32 m0, s{sT0}, {L_Y}
    """)
    ZT, XF, YR, YF = 64, 128, 136, 32
    def zwrite(qd):
        hi, lo = L_Z[qd] & ~0xffff, L_Z[qd] & 0xffff
        return [[f"v_xor_b32 v20, {hi + 64*mt + 16*qd}, v{vZW}",
                 I(f"ds_write_b128 v20, {vr(ZA+16*(qd&1)+4*mt,4)} offset:{lo}", lg="zw")] for mt in range(4)]
    xn_g = ([f"v_lshlrev_b32 v16, 16, v{XN+7}", f"v_and_b32 v4, 0xffff0000, v{XN+7}", "v_rcp_f32 v16, v16"] +
            [f"v_add_f32 v{XN+e}, v{XF+e}, v4" for e in range(8)] + zsc(16) + [f"v_mul_f32 v{XN+e}, v{XN+e}, v16" for e in range(8)])
    NYF, NYP, NYC = oi("nyf", 8), oi("nyp", 16), oi("nyc", 21)
    NG, ZS = oi("ng", 6), oi("zs", 1)
    y_ld = f"buffer_load_dwordx4 v{vYA}, {sr(SWS,4)}, s{sYA} offen sc1 lds"
    if YO:
        y_ld = [y_ld, f"v_xor_b32 v{vFL}, 16, v{vYA}", "s_add_u32 m0, m0, 1024", f"s_add_u32 s{sYA}, s{sYA}, 32768",
                y_ld.replace(f"v{vYA},", f"v{vFL},")]
    def wide(x): return [[y.replace("0xff", "0xffff") if isinstance(y, str) else y for y in x]] if YO else x
    cn_ld = "ds_read_b32 v31, v1"
    cn_ck = ["v_cmp_eq_u32 vcc, 0, v31", "s_cmp_lg_u64 vcc, 0", "s_cbranch_scc0 L_cn_ok"]
    for n in range(28):
        qd, ks = divmod(n, 7)
        a(I(wvm=[f"h{n}", f"wd{ks}"]))
        if n == NYF: a(line(sYS, wvm="ys", vm="yf"))
        if n == 22:
            a([I(wlg="cn")] + cn_ck + [f"s_mov_b32 s{sCNT}, {SPIN}", "L_cn_loop:", cn_ld, "s_waitcnt lgkmcnt(0)"] + cn_ck +
              [f"s_sub_u32 s{sCNT}, s{sCNT}, 1", "s_cbranch_scc0 L_cn_loop", "L_cn_ok:"])
        if ks == 0 and qd >= 2: a(I(wlg="zw"))
        seq = []
        for mt in range(4):
            d = ZA + 16 * (qd & 1) + 4 * mt
            c = "0" if ks == 0 else vr(d, 4)
            seq.append(f"v_mfma_f32_16x16x32_bf16 {vr(d,4)}, {vr(WDF(4*ks+mt),4)}, {vr(HR(n),4)}, {c}")
        fill = []
        if qd >= 1 and 1 <= ks <= ZS: fill = part(zwrite(qd - 1), ks - 1, ZS)
        if n < NG: fill = part(g2_addr, n, NG)
        if n == 20: fill += [I(cn_ld, lg="cn")]
        if n in (12, 13): fill += part(unpack(XF, XV), n - 12, 2)
        if "xg" in opt and n in (17, 18, 19, 24, 25, 26): fill += part(xn_g, (17, 18, 19, 24, 25, 26).index(n), 6)
        if n == 27: fill += [f"v_xor_b32 v21, 16, v{vZR}"]
        if n == NYC and "yb" in opt: fill = [[f"s_mov_b32 s{sMK}, -1", I(y_ld, vm="yl")]] + fill
        elif n == NYC and YO:
            fill = [[f"s_cmp_ge_u32 s{sW}, 4", f"s_cselect_b32 s{sMK}, -1, 0", "s_cbranch_scc1 L_ylate", "s_waitcnt vmcnt(0)"] + wide(ne8(AY)) +
                    [f"s_cselect_b32 s{sMK}, 0, -1", "s_cbranch_scc1 L_ylate", y_ld, "L_ylate:"]] + fill
        elif n == NYC:
            fill = [[I(wvm="yp")] + ne8(AY) + [f"s_cselect_b32 s{sMK}, 0, -1", "s_cbranch_scc1 L_ylate", y_ld, "L_ylate:"]] + fill
        a(mix(seq, fill))
        GS = os_("gs=")
        e = min(28, n + 1 + NS, hn + (int(GS[n % len(GS)]) if GS else GQ))
        for m in range(hn, e): a(hload(m))
        hn = e
        assert hn > min(n + 1, 27) or n == 27
        if n == NYP and YO: a([I(wvm="*"), f"s_cmp_ge_u32 s{sW}, 4", "s_cbranch_scc1 L_nyp", wide(poll(AY)), "L_nyp:"])
        elif n == NYP and "yb" not in opt: a(poll(AY, "yp"))
        if PG and PG[n + 1] != PG[n]: a(f"s_setprio {PG[n + 1]}")
        stamp(f"n{n}")
    a(zwrite(3))
    stamp("g2")
    a(f"s_cmp_lg_u32 s{sMK}, 0\ns_cbranch_scc1 L_ygo")
    a(spin("yf", wide(poll(AY)), wide(ne8(AY))) + [y_ld, "L_ygo:"])
    stamp("yok")
    a(I(wvm="*", wlg="*"))
    a("s_barrier")
    stamp("bf")
    P2 = lambda x: vr(x, 2)
    a(I(f"ds_read_b64_tr_b16 {P2(YR)}, v{vYR}", lg="yr"))
    a(I(f"ds_read_b64_tr_b16 {P2(YR+2)}, v{vYR} offset:512", lg="yr"))
    def zread(k): return [I(f"ds_read_b128 {vr(ZT+8*k+4*h,4)}, v{21 if h else vZR} offset:{4096*k}", lg=f"z{k}") for h in range(2)]
    for k in range(6): a(zread(k))
    a(I(wlg="yr")); a(unpack(YF, YR))
    a(zread(6)); a(zread(7))
    for e in range(0, 8, 2): a(f"v_pk_mul_f32 {P2(XN+e)}, {P2(XN+e)}, {P2(YF+e)}")
    stamp("f0")
    for k in range(1, 8):
        a(I(wlg=f"z{k}"))
        for e in range(0, 8, 2): a(f"v_pk_add_f32 {P2(ZT+e)}, {P2(ZT+e)}, {P2(ZT+8*k+e)}")
    stamp("f1")
    for e in range(0, 8, 2): a(f"v_pk_mul_f32 {P2(YF+e)}, {P2(ZT+e)}, " + (f"{P2(vZS)} op_sel_hi:[1,0]" if BI else sr(sSEL,2)))
    a(mix([f"v_exp_f32 v{YF+e}, v{YF+e}" for e in range(8)],
          [f"v_pk_mul_f32 {P2(XN+e)}, {P2(XN+e)}, {P2(ZT+e)}" for e in range(0, 8, 2)]))
    for e in range(0, 8, 2): a(f"v_pk_add_f32 {P2(YF+e)}, {P2(YF+e)}, {sr(sSEL+2,2)}")
    for e in range(8): a(f"v_rcp_f32 v{YF+e}, v{YF+e}")
    for e in range(0, 8, 2): a(f"v_pk_fma_f32 {P2(XF+e)}, {P2(XN+e)}, {P2(YF+e)}, {P2(XF+e)}")
    for e in range(4): a(f"v_cvt_pk_bf16_f32 v{YR+e}, v{XF+2*e}, v{XF+2*e+1}")
    stamp("f2")
    a(f"buffer_store_dwordx4 {vr(YR,4)}, v{vOO}, {sr(SOUT,4)}, s{sOQ} offen sc0 sc1")
    if prof:
        stamp("st")
        if "endw" in opt: a("s_waitcnt vmcnt(0)")
        a("L_prof:")
        stamp("end")
        a(f"""
        s_waitcnt lgkmcnt(0)
        s_lshl_b32 s{sT0}, s2, 3
        s_add_u32 s{sT0}, s{sT0}, s{sW}
        s_lshl_b32 s{sT0}, s{sT0}, 6
        s_add_u32 s{sT0}, s{sT0}, {WS_PROF}
        """)
        if "dbg" in opt:
            n = len(stamps)
            a(f"s_load_dwordx2 {sr(SX,2)}, s[0:1], 88\ns_mov_b32 s{SX+2}, 256\ns_waitcnt lgkmcnt(0)\ns_mov_b64 exec, 1")
            a(f"s_not_b32 s{sT1}, s{PROFS[0]}\nv_mov_b32 v1, s{sT1}\nbuffer_atomic_umax v1, off, {sr(SX,4)}, 0")
            a(f"v_mov_b32 v2, s{PROFS[n-1]}\nbuffer_atomic_umax v2, off, {sr(SX,4)}, 0 offset:60")
            a(f"s_cmp_lt_u32 s2, 32\ns_cbranch_scc1 {END}")
            for i in range(n):
                if "avg" in opt:
                    a(f"s_sub_u32 s{sT1}, s{PROFS[i]}, s{PROFS[0]}\nv_mov_b32 v{3+i}, s{sT1}\nbuffer_atomic_add v{3+i}, off, {sr(SX,4)}, 0 offset:{4+4*i}")
                else:
                    a(f"v_mov_b32 v{3+i}, s{PROFS[i]}\nbuffer_atomic_umax v{3+i}, off, {sr(SX,4)}, 0 offset:{4+4*i}")
            a(f"s_branch {END}")
        for i in range(len(stamps)):
            a(f"v_mov_b32 v1, s{PROFS[i]}")
            a(f"buffer_store_dword v1, off, {sr(SWS,4)}, s{sT0} offset:{4*i}")
    a(f"{END}:\ns_endpgm")
    def post(b):
        import al
        if oi("al", -1) >= 0:
            b, st = al.align(b, oi("al", 0)); print(st)
        if "sh4" in opt: b = ["    s_nop 0"] + b
        print("misplaced", al.stat(b))
        return b
    txt = a.text(256, 512, 163840, post=post)
    return txt, stamps, a.nops

if __name__ == "__main__":
    txt, st, nops = gen(prof="prof" in sys.argv, opt=sys.argv[2:])
    open(sys.argv[1], "w").write(txt)
    print("lines", txt.count("\n"), "nops", nops, st)
    if st: open(sys.argv[1] + ".stamps", "w").write(" ".join(st))
```

```python
import sys, struct, re
from em import *

WS_EPOCH, WS_FKV, WS_RS, WS_CS, WS_FH, WS_FY = 0, 4096, 32768, 65536, 262144, 524288
WS_KV, WS_WT, WS_YT, WS_H, WS_PROF = 1 << 20, 3 << 20, 5 << 20, 8 << 20, 16 << 20
SX, SWG, SWU, SWD, SWS, SOUT, SH, SK, SV, SSH = 8, 12, 16, 20, 24, 28, 32, 36, 40, 44
sW, sXB, sWB, sT0, sT1 = 3, 4, 5, 6, 7
(sRT2, sCT2, sKEY, sWR, sWC, sTAG, sM0X, sOK, sISG, sCNT, sT2, sT3, sCSM, sCP, sRBL, sXCD, sCB, sD,
 sMO, _m1, _m2, _m3, sHI, sRB) = range(48, 72)
sA, sB, sC, sE = 98, 99, 100, 101
PROFS = list(range(72, 98, 2))
STAGE = 49152
L_WP = 147456
L_CV, CVCH = 98304, 12864
L_Z = (65536, 131072, 0, 32768)
L_Y, L_CNT = L_CV + 4608, L_CV + 4096
ACC, FR = 32, 96
def WDF(i): return 144 + 4 * i
vX0, vX1, vW0, vW1, vL16 = 1, 2, 3, 4, 5
vXB, vWB, vTAG = 6, 14, 17
SPIN = 0x4000
ESH = 24
KC = 2 * 0.7978845608028654 * 1.4426950408889634
def fx(f): return "0x%08x" % struct.unpack("<I", struct.pack("<f", f))[0]
def L(s): return [x.strip() for x in s.strip().split("\n") if x.strip()]

def gen(prof=False, opt=()):
    a = Em()
    def oi(k, d): return int(([o[len(k):] for o in opt if re.fullmatch(k + r"-?\d+", o)] + [d])[0])
    stamps = []
    def oi(k, d): return int(([o[len(k):] for o in opt if re.fullmatch(k + r"-?\d+", o)] + [d])[0])
    def stamp(name, slot=None):
        sel = [o[3:].split(",") for o in opt if o.startswith("st=")]
        dflt = "start,B0,B4,B8,join,c1,c3,hok,g2,bf,end".split(",")
        if not prof or (slot is None and name not in (sel[0] if sel else dflt)): return
        own = slot is None
        if ("both" in opt or "noas" in opt) and not own: return
        if slot is None:
            if name not in stamps: stamps.append(name)
            slot = stamps.index(name)
        a(f"{'s_memtime' if 'cyc' in opt else 's_memrealtime'} {sr(PROFS[slot], 2)}")
        if "both" in opt and own:
            stamps.append(name + "c"); a(f"s_memtime {sr(PROFS[slot + 1], 2)}")
    def spin(name, load, check):
        if "nochk" in opt: return [f"L_{name}_ok:"]
        cn = [f"s_add_u32 s{PROFS[stamps.index('n_' + name)]}, s{PROFS[stamps.index('n_' + name)]}, 1"] if "n_" + name in stamps else []
        return ([f"s_mov_b32 s{sCNT}, {SPIN}", f"L_{name}_loop:"] + cn + load + ["s_waitcnt vmcnt(0)"] + check +
                [f"s_cbranch_scc0 L_{name}_ok", f"s_sub_u32 s{sCNT}, s{sCNT}, 1", f"s_cbranch_scc0 L_{name}_loop",
                 f"L_{name}_ok:"])
    def one(txt, vm=None, wvm=None):
        if "all" in opt: return [I(txt, vm=vm, wvm=wvm)]
        return [I("s_mov_b64 exec, 1", wvm=wvm), I(txt, vm=vm), "s_mov_b64 exec, -1"]
    FS = oi("fs", 7)
    def line(so, vm=None, wvm=None):
        if "fp" in opt: return one(f"buffer_store_dword v{vTAG}, off, {sr(SWS,4)}, s{so} offset:4 sc1", vm=vm, wvm=wvm)
        return [I(f"s_mov_b64 exec, {(1 << (1 << (FS - 4))) - 1}", wvm=wvm),
                I(f"buffer_store_dwordx4 {vr(vTAG-1,4)}, v{vL16}, {sr(SWS,4)}, s{so} offen sc1", vm=vm), "s_mov_b64 exec, -1"]
    def ne(v): return [f"v_cmp_ne_u32 vcc, s{sTAG}, v{v}", "s_cmp_lg_u64 vcc, 0"]
    def ap(txt, nl, key, vm=None):
        if key not in opt and "apa" not in opt: return [I(txt, vm=vm)]
        d = txt.split()[1].rstrip(",")
        t = I(txt.replace("buffer_load_dword", "buffer_atomic_or").replace("sc1", "sc0 sc1"), vm=vm)
        if nl == 64: return [f"v_mov_b32 {d}, 0", t]
        m = [f"s_mov_b32 exec_hi, 0"] if nl == 32 else [f"s_mov_b64 exec, {(1 << nl) - 1}"]
        return [f"v_mov_b32 {d}, s{sTAG}"] + m + [f"v_mov_b32 {d}, 0", t, "s_mov_b64 exec, -1"]
    END, AUX, JOIN = "L_end", "L_aux", "L_join"
    vHE, vHP, vHO_ = (228, 232, 234) if "hr" in opt else (128, 132, 134)
    KM = oi("km", 3)
    a(f"""
    s_cmp_ge_u32 s2, 256
    s_cbranch_scc1 {END}
    s_load_dwordx16 s[72:87], s[0:1], 0
    s_load_dwordx8 s[88:95], s[0:1], 64
    s_load_dwordx2 s[96:97], s[0:1], 96
    v_lshrrev_b32 v1, 6, v0
    v_and_b32 v0, 63, v0
    v_readfirstlane_b32 s{sW}, v1
    s_and_b32 s{sXCD}, s2, 7
    s_lshr_b32 s{sCP}, s2, 3
    s_and_b32 s{sE}, s{sXCD}, 1
    s_lshr_b32 s{sA}, s{sXCD}, 1
    s_and_b32 s{sRBL}, s{sCP}, 3
    s_lshr_b32 s{sISG}, s{sCP}, 2
    s_lshl_b32 s{sRB}, s{sA}, 2
    s_add_u32 s{sRB}, s{sRB}, s{sRBL}
    s_lshl_b32 s{sRT2}, s{sRB}, 1
    s_add_u32 s{sRT2}, s{sRT2}, s{sE}
    s_add_u32 s{sCT2}, s{sISG}, 7
    s_and_b32 s{sCT2}, s{sCT2}, 7
    s_mul_i32 s{sCB}, s{sE}, 7
    s_add_u32 s{sCB}, s{sCB}, s{sCT2}
    s_xor_b32 s{sKEY}, s{sRBL}, s{sISG}
    s_and_b32 s{sKEY}, s{sKEY}, {KM}
    s_lshl_b32 s{sB}, s{sA}, {2 if KM == 3 else 1}
    s_and_b32 s{sB}, s{sB}, {4 if KM == 3 else 6}
    s_or_b32 s{sKEY}, s{sKEY}, s{sB}
    s_lshl_b32 s{sB}, s{sXCD}, 5
    s_add_u32 s{sCP}, s{sCP}, s{sB}
    s_and_b32 s{sWR}, s{sW}, 1
    s_lshr_b32 s{sWC}, s{sW}, 1
    s_lshr_b32 s{sB}, s{sW}, 2
    s_and_b32 s{sC}, s{sW}, 3
    s_lshl_b32 s{sXB}, s{sRB}, 17
    s_lshl_b32 s{sT0}, s{sB}, 16
    s_add_u32 s{sXB}, s{sXB}, s{sT0}
    s_lshl_b32 s{sT0}, s{sC}, 10
    s_add_u32 s{sXB}, s{sXB}, s{sT0}
    s_mul_i32 s{sWB}, s{sW}, 28672
    s_lshl_b32 s{sT0}, s{sCB}, 8
    s_add_u32 s{sWB}, s{sWB}, s{sT0}
    s_lshl_b32 s{sM0X}, s{sW}, 11
    s_and_b32 s{sT0}, s{sKEY}, 1
    s_and_b32 s{sT1}, s{sA}, 2
    s_or_b32 s{sT0}, s{sT0}, s{sT1}
    {f"s_mov_b32 s{sT0}, s{sRBL}" if KM != 3 else ""}
    s_add_u32 s{sCSM}, s{sWR}, 1
    s_cmp_eq_u32 s{sT0}, s{sWC}
    s_cselect_b32 s{sCSM}, s{sCSM}, 0
    s_lshr_b32 s{sHI}, s{sCT2}, 2
    s_mov_b32 s{sOK}, 0
    """)
    for s, n in ((SX, 1 << 21), (SWG, 1835008), (SWU, 1835008), (SWD, 1835008), (SWS, 1 << 25), (SOUT, 1 << 21),
                 (SH, 4096), (SK, 1 << 21), (SV, 1 << 21), (SSH, 4096)):
        a(f"s_mov_b32 s{s+2}, {n}")
        a(f"s_mov_b32 s{s+3}, 0x20000")
    a(f"""
    v_lshrrev_b32 v20, 3, v0
    v_lshrrev_b32 v21, 4, v0
    v_and_b32 v22, 7, v0
    v_xor_b32 v23, v22, v21
    v_lshlrev_b32 v23, 4, v23
    v_lshl_add_u32 v{vX0}, v20, 12, v23
    v_xor_b32 v{vX1}, 64, v{vX0}
    v_add_u32 v{vX1}, 31744, v{vX1}
    v_bfe_u32 v24, v0, 2, 2
    v_and_b32 v25, 3, v0
    v_xor_b32 v23, v24, v21
    v_lshlrev_b32 v23, 6, v23
    v_lshl_add_u32 v23, v25, 4, v23
    v_mul_u32_u24 v{vW0}, 3584, v21
    v_add_u32 v{vW0}, v{vW0}, v23
    v_add_u32 v{vW1}, 13312, v{vW0}
    v_lshlrev_b32 v{vL16}, 4, v0
    s_lshl_b32 s{sT2}, s{sCP}, 1
    s_add_u32 s{sT2}, s{sT2}, s{sB}
    s_lshl_b32 s{sT2}, s{sT2}, 12
    s_lshl_b32 s{sT3}, s{sCP}, 2
    s_waitcnt lgkmcnt(0)
    s_mov_b64 {sr(SX,2)}, s[72:73]
    s_mov_b64 {sr(SWG,2)}, s[86:87]
    s_mov_b64 {sr(SWU,2)}, s[88:89]
    s_mov_b64 {sr(SK,2)}, s[74:75]
    s_mov_b64 {sr(SV,2)}, s[76:77]
    {f"s_add_u32 s{SWS}, s96, {oi('wo', 0) << 20}" if oi('wo', 0) else f"s_mov_b64 {sr(SWS,2)}, s[96:97]"}
    {f"s_addc_u32 s{SWS+1}, s97, 0" if oi('wo', 0) else ""}
    s_mov_b64 {sr(SSH,2)}, s[78:79]
    s_mov_b64 {sr(SWD,2)}, s[90:91]
    s_mov_b64 {sr(SOUT,2)}, s[92:93]
    s_add_u32 s{SH}, s80, s{sT2}
    s_addc_u32 s{SH+1}, s81, 0
    s_load_dword s{sD}, s[82:83], s{sT3}
    """)
    H1 = "h1" in opt
    if H1: a(f"""
    s_lshl_b32 s{sT3}, s{sC}, 10
    s_max_u32 s{sT3}, s{sT3}, 4
    s_add_u32 s{sT2}, s{sT2}, s{sT3}
    s_sub_u32 s{sT2}, s{sT2}, 4
    s_load_dword s{sOK}, s[80:81], s{sT2}
    """)
    if prof: a("s_nop 4")
    stamp("start")
    SCN = ([o[3:].split(",") for o in opt if o.startswith("sc=")] + [[]])[0] if prof else []
    stamps += ["n_" + x for x in SCN]
    sc_init = [f"s_mov_b32 s{PROFS[1 + i]}, 0" for i in range(len(SCN))]

    NTX = " nt" if "ntx" in opt else ""
    NTW = " nt" if "ntw" in opt else ""
    NTK = " nt" if "ntk" in opt else ""
    NTH = " nt" if "nth" in opt else ""
    NTE = " nt" if "nte" in opt else ""
    NTF = " nt" if "ntf" in opt else ""
    for o in opt:
        if o.startswith("cp="): NTX = NTW = " " + o[3:].replace("_", " ")
        if o.startswith("ck="): NTK = " " + o[3:].replace("_", " ")
    NTX0, NTW0 = NTX, NTW
    def chunk_dma(c):
        st = (c % 3) * STAGE
        NTX = [" " + o.split("=")[0][2:].replace("_", " ") for o in opt if re.match(r"Nx\w+=", o) and str(c) in o.split("=")[1]] + [NTX0]
        NTW = [" " + o.split("=")[0][2:].replace("_", " ") for o in opt if re.match(r"Nw\w+=", o) and str(c) in o.split("=")[1]] + [NTW0]
        NTX, NTW = NTX[0], NTW[0]
        return [
            [f"s_xor_b32 s{sT0}, s{sKEY}, {c}",
             f"s_mul_i32 s{sT1}, s{sT0}, 229376", f"s_add_u32 s{sT1}, s{sT1}, s{sWB}",
             f"s_lshl_b32 s{sT0}, s{sT0}, 7", f"s_add_u32 m0, s{sM0X}, {st}", f"s_add_u32 s{sT0}, s{sT0}, s{sXB}",
             I(f"buffer_load_dwordx4 v{vX0}, {sr(SX,4)}, s{sT0} offen{NTX} lds", vm=f"c{c}")],
            I(f"buffer_load_dwordx4 v{vX1}, {sr(SX,4)}, s{sT0} offen offset:1024{NTX} lds", vm=f"c{c}"),
            [f"s_add_u32 m0, s{sM0X}, {st + 16384}",
             I(f"buffer_load_dwordx4 v{vW0}, {sr(SWG,4)}, s{sT1} offen{NTW} lds", vm=f"c{c}")],
            I(f"buffer_load_dwordx4 v{vW1}, {sr(SWG,4)}, s{sT1} offen offset:1024{NTW} lds", vm=f"c{c}"),
            [f"s_add_u32 m0, s{sM0X}, {st + 32768}",
             I(f"buffer_load_dwordx4 v{vW0}, {sr(SWU,4)}, s{sT1} offen{NTW} lds", vm=f"c{c}")],
            I(f"buffer_load_dwordx4 v{vW1}, {sr(SWU,4)}, s{sT1} offen offset:1024{NTW} lds", vm=f"c{c}"),
        ]
    def prefetch(c):
        g = oi("pg", 7); sh = 7 - g; t = 150
        o = L(f"""
        v_lshrrev_b32 v{t}, {sh}, v0
        v_lshlrev_b32 v{t}, 12, v{t}
        v_lshrrev_b32 v{t+1}, {sh + 1}, v0
        v_mul_u32_u24 v{t+1}, 3584, v{t+1}
        v_and_b32 v{t+2}, {(2 << sh) - 1}, v0
        v_lshl_add_u32 v{t+1}, v{t+2}, {g}, v{t+1}
        """)
        if sh: o += [f"v_and_b32 v{t+2}, {(1 << sh) - 1}, v0", f"v_lshl_add_u32 v{t}, v{t+2}, {g}, v{t}"]
        o += L(f"""
        s_xor_b32 s{sT2}, s{sKEY}, {c}
        s_mul_i32 s{sT3}, s{sT2}, 229376
        s_add_u32 s{sT3}, s{sT3}, s{sWB}
        s_lshl_b32 s{sT2}, s{sT2}, 7
        s_add_u32 s{sT2}, s{sT2}, s{sXB}
        s_mov_b32 exec_hi, 0
        """)
        if not sh: o += ["s_mov_b32 exec_lo, 0xffff"]
        PW = os0("pv=", "gux")
        if "g" in PW: o += [I(f"buffer_load_dword v{t+2}, v{t+1}, {sr(SWG,4)}, s{sT3} offen", vm="pf")]
        if "u" in PW: o += [I(f"buffer_load_dword v{t+3}, v{t+1}, {sr(SWU,4)}, s{sT3} offen", vm="pf")]
        if "x" in PW: o += [I(f"buffer_load_dword v{t+4}, v{t}, {sr(SX,4)}, s{sT2} offen", vm="pf")]
        return o + ["s_mov_b64 exec, -1"]
    def os0(k, d=""): return ([o[len(k):] for o in opt if o.startswith(k)] + [d])[0]
    PF = os0("pf=")
    XR, S1, S2 = 200, 204, 205
    def row_load():
        return [I(f"buffer_load_dword v{vTAG}, off, {sr(SWS,4)}, 0 offset:{WS_EPOCH} sc1", vm="ep"),
                [f"s_lshl_b32 s{sA}, s{sRT2}, 3", f"s_add_u32 s{sA}, s{sA}, s{sISG}", f"s_lshl_b32 s{sA}, s{sA}, 3",
                 f"s_add_u32 s{sA}, s{sA}, s{sW}", f"s_lshl_b32 s{sT2}, s{sA}, 10",
                 I(f"buffer_load_dwordx4 {vr(XR,4)}, v{vL16}, {sr(SX,4)}, s{sT2} offen" + (" nt" if "ntr" in opt else ""), vm="ep")]]
    tag_math = L(f"""
        v_add_u32 v{vTAG}, 1, v{vTAG}
        v_and_b32 v{vTAG}, 0x0fff3fff, v{vTAG}
        v_or_b32 v{vTAG}, 0x20000000, v{vTAG}
        s_mov_b32 s{sB}, 0x3f803f80
        v_readfirstlane_b32 s{sTAG}, v{vTAG}
        """)
    def row_math():
        o = []
        for d in range(4):
            o += [f"v_dot2_f32_bf16 v{S1}, v{XR+d}, s{sB}, {'0' if d == 0 else f'v{S1}'}",
                  f"v_dot2_f32_bf16 v{S2}, v{XR+d}, v{XR+d}, {'0' if d == 0 else f'v{S2}'}"]
        o += [f"v_mov_b32 v{XR+1}, v{vTAG}", f"v_permlane32_swap_b32 v{S1}, v{S2}", f"v_add_f32 v{S1}, v{S1}, v{S2}"]
        o += [f"v_add_f32_dpp v{S1}, v{S1}, v{S1} {d} row_mask:0xf bank_mask:0xf"
              for d in ("quad_perm:[1,0,3,2]", "quad_perm:[2,3,0,1]", "row_half_mirror", "row_mirror")]
        o += [f"v_add_f32_dpp v{S1}, v{S1}, v{S1} row_bcast:15 row_mask:0xa bank_mask:0xf"]
        o += L(f"""
        v_mul_f32 v{S1}, {fx(1/512)}, v{S1}
        v_readlane_b32 s{sB}, v{S1}, 31
        v_readlane_b32 s{sC}, v{S1}, 63
        v_mul_f32 v{S1}, s{sB}, s{sB}
        v_sub_f32 v{S1}, s{sC}, v{S1}
        v_max_f32 v{S1}, 0, v{S1}
        v_cvt_pk_bf16_f32 v{S1}, v{S1}, v{S1}
        v_lshlrev_b32 v{S1}, 16, v{S1}
        v_add_f32 v{S1}, {fx(1e-5)}, v{S1}
        v_cvt_pk_bf16_f32 v{S1}, v{S1}, v{S1}
        v_lshlrev_b32 v{S1}, 16, v{S1}
        v_sqrt_f32 v{S1}, v{S1}
        s_lshl_b32 s{sA}, s{sA}, 3
        v_cvt_pk_bf16_f32 v{XR}, v{S1}, -s{sB}
        s_add_u32 s{sA}, s{sA}, {WS_RS}
        """)
        if "nors" not in opt: o += [one(f"buffer_store_dwordx2 {vr(XR,2)}, off, {sr(SWS,4)}, s{sA} sc1", vm="rs", wvm="wps")]
        return o
    def h_load(t):
        return [[f"s_and_b32 s{sT2}, s{sW}, 3", f"s_lshl_b32 s{sT2}, s{sT2}, 10",
                 I(f"buffer_load_dwordx4 {vr(vHE,4)}, v{vL16}, {sr(SH,4)}, s{sT2} offen{NTE}", vm="hl")],
                [f"s_and_b32 s{sT2}, s{sW}, 3", f"s_lshl_b32 s{sT2}, s{sT2}, 10",
                 f"s_sub_u32 s{sT2}, s{sT2}, 4", f"v_add_u32 v{t}, s{sT2}, v{vL16}",
                 I(f"buffer_load_dword v{vHP}, v{t}, {sr(SH,4)}, 0 offen{NTF}", vm="hl")]][:1 if H1 else 2]
    vZ4 = vHE + 12
    h_al = [f"v_alignbit_b32 v{vHO_+d}, v{vHE+d}, v{vHE+d-1 if d else vHP}, 16" for d in range(4)]
    h_z = [f"v_mov_b32 v{vZ4+d}, 0" for d in range(4)]
    h_math = (([[f"s_and_b32 s{sT2}, s{sW}, 3", f"s_cselect_b32 s{sT2}, s{sOK}, 0", f"v_mov_b32 v{vHP}, s{sT2}"], I(h_al[1], wvm="hl")] + h_al[2:] +
               [f"v_mov_b32_dpp v{vHP}, v{vHE+3} wave_shr:1 row_mask:0xf bank_mask:0xf"] + h_z + h_al[:1]
               if H1 else [I(h_al[0], wvm="hl")] + h_al[1:] + h_z) + [L(f"""
        s_lshr_b32 s{sT2}, s{sW}, 2
        s_mul_i32 s{sT2}, s{sT2}, {CVCH}
        s_add_u32 s{sT2}, s{sT2}, {L_CV}
        v_min_u32 v{vHP+1}, 35, v0
        v_lshlrev_b32 v{vHP+1}, 4, v{vHP+1}
        v_lshrrev_b32 v{vHP}, 5, v0
        v_lshl_add_u32 v{vHP+1}, v{vHP}, 12, v{vHP+1}
        v_add_u32 v{vHP+1}, s{sT2}, v{vHP+1}
        s_and_b32 s{sT3}, s{sW}, 3
        s_lshl_b32 s{sT3}, s{sT3}, 10
        s_add_u32 s{sT2}, s{sT2}, s{sT3}
        v_add_u32 v{vHP}, s{sT2}, v{vL16}
        """)])
    h_write = [I(f"ds_write_b128 v{vHP}, {vr(vHE,4)} offset:4608", lg="hw"),
               I(f"ds_write_b128 v{vHP}, {vr(vHO_,4)} offset:{4608+4160}", lg="hw"),
               I(f"ds_write_b128 v{vHP+1}, {vr(vZ4,4)} offset:4096", lg="hw")]
    vFL, vFA = 18, 19
    def wf_addr_(sE, vFA, vFL): return L(f"""
        s_lshl_b32 s{sT2}, s{sCT2}, 3
        s_add_u32 s{sT2}, s{sT2}, s{sW}
        s_and_b32 s{sE}, s{sCT2}, 6
        s_lshl_b32 s{sE}, s{sE}, 1
        s_add_u32 s{sE}, s{sE}, s{sWC}
        s_lshl_b32 s{sE}, s{sE}, 1
        s_and_b32 s{sT3}, s{sCT2}, 1
        s_add_u32 s{sE}, s{sE}, s{sT3}
        s_lshl_b32 s{sE}, s{sE}, 4
        s_add_u32 s{sE}, s{sE}, s{sWR}
        s_lshl_b32 s{sE}, s{sE}, 5
        s_add_u32 s{sE}, s{sE}, {WS_RS + 64 + 4 + (16384 if oi("rl", -1) >= 0 else 0)}
        s_mul_i32 s{sT2}, s{sT2}, 28672
        s_mul_i32 s{sT3}, s{sHI}, 12288
        s_add_u32 s{sT2}, s{sT2}, s{sT3}
        s_add_u32 s{sT2}, s{sT2}, {WS_WT}
        s_lshl_b32 s{sT3}, s{sRBL}, 10
        s_add_u32 s{sMO}, s{sT2}, s{sT3}
        s_xor_b32 s{sMO+1}, s{sMO}, 1024
        s_xor_b32 s{sMO+2}, s{sMO}, 2048
        s_xor_b32 s{sMO+3}, s{sMO}, 3072
        v_min_u32 v{vFA}, 27, v0
        v_and_b32 v{vFL}, 28, v{vFA}
        v_add_u32 v{vFA}, v{vFA}, v{vFL}
        v_lshlrev_b32 v{vFA}, 3, v{vFA}
        """)
    wf_addr = wf_addr_(sE, vFA, vFL)
    wf_ld = f"buffer_load_dword v{vFL}, v{vFA}, {sr(SWS,4)}, s{sE} offen sc1"
    def wd_loads():
        o = []
        for i in range(28):
            ks, mt = divmod(i, 4)
            g = []
            if i == 16:
                g += [f"s_mul_i32 s{sT3}, s{sHI}, 28672"] + [f"s_sub_u32 s{sMO+m}, s{sMO+m}, s{sT3}" for m in range(4)]
            g += [f"s_add_u32 s{sT3}, s{sMO+mt}, {4096*ks}",
                  I(f"buffer_load_dwordx4 {vr(WDF(i),4)}, v{vL16}, {sr(SWS,4)}, s{sT3} offen sc1" if i < oi("wx", 99) else
                    f"buffer_load_dword {vr(WDF(i),1)}, off, {sr(SWS,4)}, s{sT3} sc1", vm=f"wd{ks}")]
            o.append(g)
        return o
    vKA, vKL = 29, 30
    kf_addr = [f"v_and_b32 v{vKA}, 31, v0", f"v_lshlrev_b32 v{vKA}, 2, v{vKA}", f"s_lshl_b32 s{sC}, s{sXCD}, 7",
               f"s_add_u32 s{sC}, s{sC}, {WS_FKV}"]
    kf_ld = f"buffer_load_dword v{vKL}, v{vKA}, {sr(SWS,4)}, s{sC} offen sc1"
    def r_dma(t):
        return L(f"""
        s_lshr_b32 s{sT2}, s{sW}, 2
        s_mul_i32 s{sT3}, s{sT2}, {CVCH - 4096}
        s_lshl_b32 s{sT2}, s{sT2}, 4
        v_lshl_add_u32 v{t}, v0, 5, s{sT2}
        s_lshl_b32 s{sT2}, s{sW}, 10
        s_add_u32 s{sT3}, s{sT3}, s{sT2}
        s_add_u32 m0, s{sT3}, {L_CV}
        s_and_b32 s{sT2}, s{sM0X}, 0x1800
        s_lshl_b32 s{sT3}, s{sCP}, 13
        s_add_u32 s{sT2}, s{sT2}, s{sT3}
        s_add_u32 s{sT2}, s{sT2}, {WS_KV}
        """) + [I(f"buffer_load_dwordx4 v{t}, {sr(SWS,4)}, s{sT2} offen sc1 lds", vm="R")]

    WL = wd_loads()
    wsched = {17: 1, 18: 1, 19: 1, 21: 1, 22: 1, 23: 1, 24: 1, 25: 2, 26: 2, 27: 2, 29: 1, 30: 2, 31: 2}
    wsched = {k: n for k, n in wsched.items() if k >= oi("pw", 20) + 3}
    for o in opt:
        if o.startswith("ws="): wsched = {32 - len(o[3:]) + i: int(ch) for i, ch in enumerate(o[3:])}
    assert min(k for k, n in wsched.items() if n) >= oi("pw", 20) + oi("pd", 3)
    wepi = [int(x) for x in str(oi("we", 3320)).zfill(4)]
    NPRE = sum(wsched.values()) + sum(wepi)
    vq_pro = list(a.vq)
    a(f"s_cmp_eq_u32 s{sISG}, 0\ns_cbranch_scc1 {AUX}")
    if "nogemm" in opt: a(f"s_branch {END}")
    SP, SPS = oi("sp", 0), oi("ss", 64)
    h_pre = [f"s_and_b32 s{sT2}, s{sW}, 3", f"s_lshl_b32 s{sT2}, s{sT2}, 10"] + [
        f"s_buffer_load_dword s{sCNT}, {sr(SH,4)}, s{sT2} offset:{o}" for o in range(0, 1024, SPS)]
    if SP == 1: a(h_pre)
    TF = os0("tf=")
    def touch():
        o = ["s_mov_b64 exec, 1"]
        if "d" in TF: o += [f"s_mul_i32 s{sT2}, s{sCB}, 131072", I(f"buffer_load_dword v160, off, {sr(SWD,4)}, s{sT2}", vm="tf")]
        if "h" in TF: o += [I(f"buffer_load_dword v161, off, {sr(SH,4)}, 0", vm="tf")]
        if "e" in TF: o += [I(f"buffer_load_dword v162, off, {sr(SWS,4)}, 0 offset:128 sc1", vm="tf")]
        if "w" in TF: o += [f"s_mov_b32 s{sT2}, {WS_WT - 128}", I(f"buffer_load_dword v163, off, {sr(SWS,4)}, s{sT2} sc1", vm="tf"),
                            f"s_mov_b32 s{sT2}, {WS_YT - 128}", I(f"buffer_load_dword v164, off, {sr(SWS,4)}, s{sT2} sc1", vm="tf")]
        o += ["s_mov_b64 exec, -1"]
        if "0" in TF: return [f"s_cmp_lg_u32 s{sW}, 0", "s_cbranch_scc1 L_notf"] + [x.text if isinstance(x, I) else x for x in o] + ["L_notf:"]
        return o
    if "B" in TF: a(touch())
    a(chunk_dma(0))
    if "A" in TF: a(touch())
    if PF == "a": a(prefetch(4))
    if SP == 2: a(h_pre)
    WP, vWPA, vWPS, vWPL, CSA, CS1 = 208, 212, 213, 214, 240, 236
    sWPS, sWPF, sWPM = SSH, SSH + 1, SSH + 3
    a(f"""
    v_and_b32 v23, 3, v20
    v_lshrrev_b32 v26, 5, v0
    v_lshl_add_u32 v23, v26, 3, v23
    v_lshlrev_b32 v26, 4, v22
    v_lshl_add_u32 v{vWPL}, v23, 10, v26
    s_mov_b32 s{sE}, s{sXCD}
    s_lshl_b32 s{sT2}, s{sRBL}, 1
    s_add_u32 s{sT2}, s{sT2}, s{sB}
    s_mul_i32 s{sT3}, s{sT2}, 7
    s_add_u32 s{sT3}, s{sT3}, s{sCT2}
    s_mul_i32 s{sWPS}, s{sE}, 56
    s_add_u32 s{sWPS}, s{sWPS}, s{sT3}
    s_lshl_b32 s{sWPS}, s{sWPS}, 12
    s_lshl_b32 s{sT1}, s{sC}, 8
    s_add_u32 s{sWPS}, s{sWPS}, s{sT1}
    s_add_u32 s{sWPS}, s{sWPS}, {WS_WT}
    s_lshl_b32 s{sT3}, s{sT3}, 15
    s_lshl_b32 s{sT1}, s{sWR}, 12
    s_add_u32 s{sT3}, s{sT3}, s{sT1}
    s_lshl_b32 s{sT1}, s{sWC}, 14
    s_and_b32 s{sT1}, s{sT1}, 0x4000
    s_add_u32 s{sT3}, s{sT3}, s{sT1}
    s_lshl_b32 s{sT1}, s{sE}, 7
    s_add_u32 s{sWPF}, s{sT3}, s{sT1}
    s_lshl_b32 s{sT2}, s{sW}, 10
    s_add_u32 s{sWPM}, s{sT2}, {L_WP}
    s_barrier
    """)
    wp_load = [f"s_mov_b32 m0, s{sWPM}", I(f"buffer_load_dwordx4 v{vWPL}, {sr(SWD,4)}, s{sWPF} offen{NTH} lds", vm="wpl")]
    SWL, SWR, SRS, SPW, SHL, SPF, SRL = oi("wl", -1), oi("wr", 4), oi("rs", 11), oi("pw", 20), oi("hl", 9), oi("pf", 0), oi("rl", -1)
    SKF, SRD = oi("kf", 28), oi("rd", 32)
    XE = oi("xe", 28)
    assert XE >= 27 or ("hr" in opt and XE >= 22)
    BI = "bi" in opt
    if SWL < 0: a(wp_load)
    a(f"""
    v_lshlrev_b32 v23, 7, v24
    v_lshl_add_u32 v23, v21, 5, v23
    v_lshl_add_u32 v23, v25, 3, v23
    v_add_u32 v{vWPA}, s{sWPM}, v23
    """)
    C1E = oi("c1e", 2)
    if SRL >= 0: a(row_load()[0]); a(row_load()[1][:4])
    elif "rowl" not in opt: a(row_load())
    if SHL == -3: a(h_load(27))
    if PF == "b": a(prefetch(4))
    a(chunk_dma(1)[:C1E])
    if PF == "c": a(prefetch(4))
    if SHL == -4: a(h_load(27))
    if "th" in opt: a(I(f"buffer_load_dword v{vHP}, off, {sr(SH,4)}, 0", vm="th"))
    a(f"""
    v_and_b32 v23, 15, v0
    v_lshlrev_b32 v23, 4, v23
    v_lshl_add_u32 v{vWPS}, v21, 10, v23
    v_and_b32 v24, 31, v0
    v_lshrrev_b32 v25, 5, v0
    v_bfe_u32 v22, v0, 1, 3
    v_xor_b32 v22, v22, v25
    v_lshlrev_b32 v22, 4, v22
    v_lshl_add_u32 v22, v24, 7, v22
    s_lshl_b32 s{sT0}, s{sWR}, 13
    v_add_u32 v{vXB}, s{sT0}, v22
    v_xor_b32 v{vXB+1}, 32, v{vXB}
    v_xor_b32 v{vXB+2}, 64, v{vXB}
    v_xor_b32 v{vXB+3}, 96, v{vXB}
    v_add_u32 v{vXB+4}, {2*STAGE}, v{vXB}
    v_add_u32 v{vXB+5}, {2*STAGE}, v{vXB+1}
    v_add_u32 v{vXB+6}, {2*STAGE}, v{vXB+2}
    v_add_u32 v{vXB+7}, {2*STAGE}, v{vXB+3}
    v_bfe_u32 v23, v0, 2, 2
    v_lshl_add_u32 v24, v25, 3, v23
    v_lshlrev_b32 v24, 8, v24
    v_xor_b32 v23, s{sWC}, v23
    v_lshl_add_u32 v24, v23, 6, v24
    v_bfe_u32 v23, v0, 4, 1
    v_lshl_add_u32 v24, v23, 5, v24
    v_and_b32 v23, 3, v0
    v_lshl_add_u32 v24, v23, 3, v24
    v_add_u32 v{vWB}, 16384, v24
    v_add_u32 v{vWB+1}, {STAGE+16384}, v24
    v_add_u32 v{vWB+2}, {2*STAGE+16384}, v24
    """)
    if "cs16" in opt:
        a(f"""
        v_lshrrev_b32 v23, 2, v0
        v_xor_b32 v23, v23, v21
        v_and_b32 v23, 1, v23
        v_add_u32 v23, -1, v23
        """)
        for d in range(4): a(f"v_and_b32 v{CS1+d}, 0x3f803f80, v23")
    else:
        for d in range(4): a(f"v_mov_b32 v{CS1+d}, 0x3f803f80")
    if "csb" in opt: a(f"s_cmp_lg_u32 s{sCSM}, 0\ns_cselect_b64 vcc, -1, 0")
    stamp("K0")
    a(sc_init)
    if "dmaonly" in opt:
        DD = oi("dd", 2)
        if C1E < 6: a(chunk_dma(1)[0][:4]); a(chunk_dma(1)[C1E:])
        for c in range(2, DD): a(chunk_dma(c))
        for c in range(8):
            a(I(wvm=f"c{c}"))
            if "dnb" not in opt: a("s_barrier")
            stamp(f"B{c}")
            if c + DD < 8: a(chunk_dma(c + DD))
        a("s_branch L_prof")
        opt = [o for o in opt if not o.startswith("st=")] + ["st=end"]

    def F(s): return FR + 16 * (s & 1)
    def reads(s):
        c, j = divmod(s, 4)
        st = c % 3
        xb = vXB + j + (4 if st == 2 else 0); im = STAGE if st == 1 else 0
        wb = vWB + st; wo = 4096 * j
        f = F(s); t = f"r{s}"
        return [I(f"ds_read_b64_tr_b16 {vr(f,2)}, v{wb} offset:{wo}", lg=t),
                I(f"ds_read_b64_tr_b16 {vr(f+2,2)}, v{wb} offset:{wo+1024}", lg=t),
                I(f"ds_read_b128 {vr(f+8,4)}, v{xb} offset:{im}", lg=t),
                I(f"ds_read_b64_tr_b16 {vr(f+4,2)}, v{wb} offset:{wo+16384}", lg=t),
                I(f"ds_read_b64_tr_b16 {vr(f+6,2)}, v{wb} offset:{wo+17408}", lg=t),
                I(f"ds_read_b128 {vr(f+12,4)}, v{xb} offset:{im+4096}", lg=t)]
    def mfmas(A, B, first=False, par=0):
        out = []
        for nt in range(2):
            for m in range(2):
                d = ACC + 32 * m + 16 * nt
                if "m16x" in opt:
                    for h in range(2):
                        e = d + 8 * (par & 1) + 4 * h
                        out.append(f"v_mfma_f32_16x16x32_bf16 {vr(e,4)}, {vr(A[m ^ h],4)}, {vr(B[nt],4)}, {'0' if par < 2 else vr(e,4)}")
                    continue
                out.append(f"v_mfma_f32_32x32x16_bf16 {vr(d,16)}, {vr(A[m],4)}, {vr(B[nt],4)}, {'0' if first else vr(d,16)}")
        if "snk" in opt: out = [out[0], out[1], out[3], out[2]]
        if "snb" in opt: out = [out[0], out[2], out[3], out[1]]
        if "sna" in opt: out = [out[0], out[2], out[1], out[3]]
        return out
    def cs_mfma(p):
        o = []
        sh, n = ("16x16x32", 4) if "cs16" in opt else ("32x32x16", 16)
        mm = [f"v_mfma_f32_{sh}_bf16 {vr(CSA,n)}, {vr(CS1,4)}, {vr(F(p)+4*m,4)}, {'0' if p == 0 else vr(CSA,n)}" for m in range(2)]
        if "csb" in opt:
            return [f"s_cbranch_vccz L_cs{p}_1", f"s_bitcmp1_b32 s{sCSM}, 0", f"s_cbranch_scc0 L_cs{p}_0", mm[0], f"s_branch L_cs{p}_1",
                    f"L_cs{p}_0:", mm[1], f"L_cs{p}_1:"]
        if "cs16" in opt:
            for m in range(2): o += [f"s_bitcmp1_b32 s{sCSM}, {m}", f"s_cbranch_scc0 L_cs{p}_{m}", mm[m], f"L_cs{p}_{m}:"]
            return o
        for m in range(2):
            o += [f"s_bitcmp1_b32 s{sCSM}, {m}", f"s_cbranch_scc0 L_cs{p}_{m}",
                  f"v_mfma_f32_32x32x16_bf16 {vr(CSA,16)}, {vr(CS1,4)}, {vr(F(p)+4*m,4)}, {'0' if p == 0 else vr(CSA,16)}",
                  f"L_cs{p}_{m}:"]
        return o
    sCSB = SSH + 2
    cs_store = [L(f"""
        s_lshl_b32 s{sCSB}, s{sCB}, 2
        s_add_u32 s{sCSB}, s{sCSB}, s{sWC}
        s_lshl_b32 s{sCSB}, s{sCSB}, 10
        s_add_u32 s{sCSB}, s{sCSB}, {WS_CS}
        s_cmp_eq_u32 s{sCSM}, {'s%d' % sCSM if "nocs" in opt else 0}
        s_cbranch_scc1 L_nocs
        v_cvt_pk_bf16_f32 v{CSA+1}, v{CSA}, v{CSA}
        s_mul_i32 s{sT2}, s{sWR}, 57344
        v_lshlrev_b32 v{CSA+1}, 16, v{CSA+1}
        s_lshr_b32 s{sT3}, s{sKEY}, 1
        v_sub_f32 v{CSA+1}, v{CSA}, v{CSA+1}
        s_lshl_b32 s{sT3}, s{sT3}, 3
        v_cvt_pk_bf16_f32 v{CSA}, v{CSA}, v{CSA+1}
        s_add_u32 s{sT2}, s{sT2}, s{sT3}
        v_mov_b32 v{CSA+1}, v{vTAG}
        s_add_u32 s{sT2}, s{sT2}, s{sCSB}
        v_lshlrev_b32 v{CSA+2}, 5, v0
        s_mov_b32 exec_hi, 0
        buffer_store_dwordx2 {vr(CSA,2)}, v{CSA+2}, {sr(SWS,4)}, s{sT2} offen sc1
        s_mov_b32 exec_hi, -1
        L_nocs:
        """)]
    EG, EU, ER, EB0, EB1 = 128, 132, 20, 136, 140
    ex_addr = L(f"""
        v_and_b32 v24, 31, v0
        v_lshrrev_b32 v25, 5, v0
        v_lshlrev_b32 v25, 4, v25
        v_lshl_add_u32 v{vX0}, v24, 5, v25
        v_and_b32 v24, 15, v0
        v_lshrrev_b32 v25, 4, v0
        v_lshlrev_b32 v25, 3, v25
        v_lshl_add_u32 v{vX1}, v24, 5, v25
        s_lshl_b32 s{sKEY}, s{sRB}, 1
        s_add_u32 s{sKEY}, s{sKEY}, s{sWR}
        s_lshl_b32 s{sWB}, s{sKEY}, 9
        s_add_u32 s{sWB}, s{sWB}, {WS_RS}
        s_add_u32 s{sXB}, s{sCSB}, 57344
        """)
    ex_ld = [f"buffer_load_dwordx4 {vr(EG,4)}, v{vX0}, {sr(SWS,4)}, s{sCSB} offen sc1",
             f"buffer_load_dwordx4 {vr(EU,4)}, v{vX0}, {sr(SWS,4)}, s{sXB} offen sc1",
             f"buffer_load_dwordx2 {vr(ER,2)}, v{vX1}, {sr(SWS,4)}, s{sWB} offen sc1"]
    ex_check = L(f"""
        v_min3_u32 v24, v{EG+1}, v{EG+3}, v{ER+1}
        v_max3_u32 v25, v{EG+1}, v{EG+3}, v{ER+1}
        v_min3_u32 v24, v24, v{EU+1}, v{EU+3}
        v_max3_u32 v25, v25, v{EU+1}, v{EU+3}
        v_cmp_ne_u32 vcc, s{sTAG}, v24
        v_cmp_ne_u32 s[{sT0}:{sT1}], s{sTAG}, v25
        s_or_b64 vcc, vcc, s[{sT0}:{sT1}]
        """)
    AP, BP, SS, vHO, TM = 22, 24, 26, 28, FR
    RM = row_math()
    def part(lst, i, n): return lst[len(lst) * i // n:len(lst) * (i + 1) // n]
    def os_(k, d=""): return ([o[len(k):] for o in opt if o.startswith(k)] + [d])[0]
    W = [0]
    def cum(t): return [sum(int(x) for x in t[:i]) for i in range(5)]
    def step(s, role):
        wi = W[0]
        c, j = divmod(s, 4)
        fill = []; pre = []; post = []
        if j == 0 and s < 32:
            a(I(wvm=f"c{c}", wlg="*"))
            a("s_barrier")
            stamp(f"B{c}")
            PR_ = os_(f"Rq{role}=")
            if PR_ and (c == 0 or PR_[c] != PR_[c - 1]): a(f"s_setprio {PR_[c]}")
            if "g1only" in opt and s == 20: a("s_waitcnt vmcnt(0)\ns_branch L_prof")
        DR = os_("drop=")
        if s == SWL: pre += [wp_load]
        if s == SPW: pre += [ap(wf_ld, 28, "apw", "fw")]
        if s == SKF: pre += [ap(kf_ld, 32, "apk", "kf")]
        if s == XE: pre += [I(x, vm="ex") for x in ex_ld]
        if s == 0:
            assert C1E in (0, 2, 4, 6)
            if 0 < C1E < 6: fill += [chunk_dma(1)[0][:4]]
            fill += chunk_dma(1)[C1E:]
            if "rowl" in opt: fill += row_load()
            if SHL == -5: fill += h_load(27)
        if c <= 5:
            cu = cum(os_(f"Re{role}=", "0222") if c == 0 and C1E < 6 else os_(f"Rd{role}{c}=", os_(f"Rd{role}=", "2121")))
            assert cu[4] == 6
            g = chunk_dma(c + 2)[cu[j]:cu[j + 1]]
            pm = os_(f"Rm{role}{c}=", os_(f"Rm{role}=", "0000"))[j]
            hp = os_(f"Rp{role}=", "0")
            if hp[0] != "0" and g:
                if pm == "0" and s: g = [[f"s_setprio {hp[0]}", x, "s_setprio 0"] for x in g]
                else: g = [f"s_setprio {hp[0]}"] + g + ["s_setprio 0"]
            if s == 0 or pm == "0": fill += g
            elif pm == "1": pre += g
            else: post += g
        if PF == str(s): fill += [prefetch(4)]
        IL = os_("il=", "")
        RD = reads(s) if s < 32 else []
        if IL:
            for x, t in zip(RD, "aaabbc"): x.lg += t
        if not IL or s == 0: a(RD)
        wp_rd = [I(f"ds_read_b64_tr_b16 {vr(WP,2)}, v{vWPA}", lg="wp", wvm="wpl"),
                 I(f"ds_read_b64_tr_b16 {vr(WP+2,2)}, v{vWPA} offset:512", lg="wp")]
        wp_st = I(f"buffer_store_dwordx4 {vr(WP,4)}, v{vWPS}, {sr(SWS,4)}, s{sWPS} offen sc1", vm="wps", wlg="wp")
        if s == 0:
            a(pre + fill + (wp_rd if SWR == 0 else [])); return
        p = s - 1
        v = []
        if s in (SHL, SHL + oi("hd", 2))[:1 if H1 else 2] and "h" not in DR:
            g = h_load(31)[(s - SHL) // oi("hd", 2)]
            if "hx" in opt: g[-1].text = g[-1].text.replace(sr(SH, 4), sr(SX, 4))
            if not (("1" in DR and s == SHL) or ("2" in DR and s != SHL)): fill += [g]
        if s == oi("tg", 4) and "t" not in DR: v += [I(tag_math[0], wvm="ep")] + tag_math[1:]
        if s == SWR and "w" not in DR: fill += wp_rd
        if s == SWR + 1 and "w" not in DR: fill = [wp_st] + fill if SWR == 0 else fill + [wp_st]
        RM0, RMN = oi("rm", 5), oi("rn", 5)
        if s == SRL:
            x = row_load()[1][4:]; x[-1].vm = "xr"; fill += [x]
        if SRL >= 0 and s == RM0: v += [I(f"s_mov_b32 s{sB}, 0x3f803f80", wvm="xr")]
        if SRL >= 0 and s == oi("wf", 11):
            fill += [[f"s_lshl_b32 s{sT2}, s{sA}, 3", f"s_add_u32 s{sT2}, s{sT2}, {WS_RS + 16384}"] +
                     one(f"buffer_store_dword v{vTAG}, off, {sr(SWS,4)}, s{sT2} offset:4 sc1", vm="wf", wvm="wps")]
        if RM0 <= s < RM0 + RMN and "t" not in DR: v += part(RM[:-1], s - RM0, RMN)
        if s == SRS and "r" not in DR: fill = [RM[-1]] + fill if "rsf" in opt else fill + [RM[-1]]
        if s == oi("cst", 10) and "c" not in DR: v += cs_store
        if s == 11 and "a" not in DR: v += [wf_addr]
        HM, HW = oi("hm", 21), oi("hw", 24)
        if HM <= s <= HM + 2: v += part(h_math, s - HM, 3)
        if s == SPW + oi("pd", 3): pre += [[I(wvm="fw")] + ne(vFL) + ["s_cbranch_scc0 L_fw_ok"] + spin("fw", ap(wf_ld, 28, "apw"), ne(vFL))]
        if s == 19: v += kf_addr
        if HW <= s <= HW + 2: v += [h_write[s - HW]]
        if s == XE - 1: v += ex_addr
        if s == SRD: fill = [[I(wvm="kf")] + ne(vKL) + [f"s_cselect_b32 s{sOK}, 0, 1"] +
                             ([f"s_cselect_b64 vcc, 0, -1"] + r_dma(24)[:-1] + ["s_mov_b64 exec, vcc", r_dma(24)[-1], "s_mov_b64 exec, -1"] if "mskr" in opt else r_dma(oi("rt", 24)))] + fill
        if s == 30: v += [f"v_mov_b32 v{r}, 0" for r in (EB0 + 1, EB0 + 3, EB1 + 1, EB1 + 3)] + [f"s_mov_b32 s{sB}, 0x03020302"]
        n = wsched.get(s, 0); fill += WL[wi:wi + n]; W[0] += n
        if s == 32:
            a(I(wvm="ex"))
            a(ex_check + ["s_cbranch_scc0 L_ex_ok"] + spin("ex", ex_ld, ex_check))
            v += L(f"""
            v_mov_b32 v{ER+1}, v{ER}
            v_permlane32_swap_b32 v{ER}, v{ER+1}
            v_perm_b32 v{EB0}, v{ER}, v{ER}, s{sB}
            v_perm_b32 v{EB0+2}, v{ER}, v{ER}, s{sB}
            v_perm_b32 v{EB1}, v{ER+1}, v{ER+1}, s{sB}
            v_perm_b32 v{EB1+2}, v{ER+1}, v{ER+1}, s{sB}
            v_lshlrev_b32 v{ER}, 16, v{ER}
            v_lshlrev_b32 v{ER+1}, 16, v{ER+1}
            """)
        hd = []
        if c <= 5 and os_(f"Rm{role}{c}=", os_(f"Rm{role}=", "0000"))[j] == "1": hd, pre = pre, []
        fill = pre + (mix(v, fill) if len(v) >= len(fill) else mix(fill, v)) if (v and fill) else pre + v + fill
        a(hd)
        f = F(p)
        MM = mfmas((f, f + 4), (f + 8, f + 12), p == 0, p)
        if IL:
            nm = len(MM)
            cu2 = lambda t: [sum(int(x) for x in t[:i]) for i in range(nm + 1)]
            rc = cu2(IL[:nm]); fc = cu2(IL[nm:2 * nm])
            assert rc[nm] == 6
            for i in range(nm):
                a(I(MM[i], wlg=f"r{p}" + ("abcc" if nm == 4 else "abbbcccc")[i]))
                a(RD[rc[i]:rc[i + 1]])
                a(fill[(len(fill) * fc[i] + fc[nm] // 2) // fc[nm]:(len(fill) * fc[i + 1] + fc[nm] // 2) // fc[nm]])
        else:
            a(I(wlg=f"r{p}"))
            a(mix(MM, fill))
        if p < 8 and "nocs" not in opt and "c" not in DR: a(cs_mfma(p))
        a(post)
        stamp(f"s{s}")
    if "split" in opt:
        a(f"s_cmp_lt_u32 s{sW}, 4\ns_cbranch_scc0 L_g1y")
        sv = (list(a.vq), list(a.lq), W[0])
        for s in range(24): step(s, "o")
        a(I(wvm="c6", wlg="*"))
        a("s_branch L_g1m")
        vo = list(a.vq)
        a("L_g1y:")
        a.vq, a.lq, W[0] = sv
        i0 = len(a.lines)
        for s in range(24): step(s, "y")
        a(I(wvm="c6", wlg="*"))
        defs = [x[:-1] for x in a.lines[i0:] if x.endswith(":")]
        for i in range(i0, len(a.lines)):
            for d in defs: a.lines[i] = re.sub(rf"\b{d}\b", d + "_y", a.lines[i])
        a("L_g1m:")
        a.vq = [tuple(set(vo + a.vq))]
        for s in range(24, 33): step(s, "o")
    else:
        for s in range(33): step(s, "o")
    wi = W[0]
    fill = []
    EO = oi("eo", 2)
    cA, cB, cS = ([lambda nt, b=b: b + nt for b in (AP, BP, SS)] if EO == 0 else
                  [lambda nt, b=b: FR + 16 + 6 * nt + b for b in (0, 2, 4)])
    for nt in range(2):
        if BI:
            fill += [f"v_rcp_f32 v{TM+nt}, v{ER+nt}"] + [f"v_mov_b32 v{cS(nt)+i}, {fx((-float(ESH), 2.0 ** -ESH)[nt])}" for i in range(2)]
            continue
        fill += [f"v_rcp_f32 v{TM+nt}, v{ER+nt}", f"v_mul_f32 v{cS(nt)}, v{ER+nt}, v{ER+nt}"]
        if EO == 2: fill += [f"v_mul_f32 v{cS(nt)+1}, v{ER+nt}, v{ER+nt}"]
    for nt in range(2):
        fill += [f"v_mul_f32 v{cA(nt)}, {fx(-KC)}, v{TM+nt}"]
        if EO == 2: fill += [f"v_mul_f32 v{cA(nt)+1}, {fx(-KC)}, v{TM+nt}"]
        fill += [f"v_mul_f32 v{TM+nt}, v{TM+nt}, v{TM+nt}",
                 f"v_mul_f32 v{TM+nt}, {fx(0.044715)}, v{TM+nt}", f"v_mul_f32 v{cB(nt)}, v{cA(nt)}, v{TM+nt}"]
        if EO == 2: fill += [f"v_mul_f32 v{cB(nt)+1}, v{cA(nt)}, v{TM+nt}"]
    sHF = SK
    fill += L(f"""
    v_bfe_u32 v{TM+8}, v0, 4, 1
    v_mul_u32_u24 v{TM+8}, 57344, v{TM+8}
    v_and_b32 v{TM+9}, 15, v0
    v_lshl_add_u32 v{TM+8}, v{TM+9}, 4, v{TM+8}
    v_lshrrev_b32 v{TM+9}, 5, v0
    v_lshl_add_u32 v{vHO}, v{TM+9}, 8, v{TM+8}
    s_mul_i32 s{sXB}, s{sKEY}, {4*56*1024}
    s_add_u32 s{sXB}, s{sXB}, s{sCSB}
    s_add_u32 s{sXB}, s{sXB}, {WS_H - WS_CS}
    s_add_u32 s{sWB}, s{sXB}, {2*56*1024}
    s_sub_u32 s{sHF}, s{sCSB}, {WS_CS}
    s_lshr_b32 s{sHF}, s{sHF}, {10 - FS}
    s_mul_i32 s{sT0}, s{sKEY}, {56 << FS}
    s_add_u32 s{sHF}, s{sHF}, s{sT0}
    s_add_u32 s{sHF}, s{sHF}, {WS_FH}
    """)
    a(mix(mfmas((EG, EU), (EB0, EB1), False, 2), fill))
    stamp("B8")
    if oi("pe", 0): a(f"s_setprio {oi('pe', 0)}")
    def epi(G, U, nt, rr, pk, plain=False):
        o = []
        t = {r: TM + 2 * i for i, r in enumerate(rr)}
        P = lambda x: vr(x, 2)
        s2 = (f"op_sel:[0,{nt},{nt}] op_sel_hi:[1,{nt},{nt}]", "op_sel_hi:[1,0,0]", "")[EO]
        AP, BP, SS = [f(nt) & ~1 for f in (cA, cB, cS)]
        if plain:
            e = [(t[r] + i, G + r + i, U + r + i) for r in rr for i in range(2)]
            o += [f"v_mul_f32 v{x}, v{g}, v{g}" for x, g, u in e]
            o += [f"v_fma_f32 v{x}, v{x}, v{BP}, v{AP}" for x, g, u in e]
            o += [f"v_mul_f32 v{x}, v{x}, v{g}" for x, g, u in e]
            o += mix([f"v_exp_f32 v{x}, v{x}" for x, g, u in e], [f"v_mul_f32 v{u}, v{u}, v{g}" for x, g, u in e])
            o += [f"v_fma_f32 v{x}, v{x}, v{SS}, v{SS}" for x, g, u in e]
            o += [f"v_rcp_f32 v{x}, v{x}" for x, g, u in e]
            o += [f"v_mul_f32 v{u}, v{u}, v{x}" for x, g, u in e]
            o += [f"v_cvt_pk_bf16_f32 v{pk+i}, v{U+r}, v{U+r+1}" for i, r in enumerate(rr)]
            return o
        o += [f"v_pk_mul_f32 {P(t[r])}, {P(G+r)}, {P(G+r)}" for r in rr]
        o += [f"v_pk_fma_f32 {P(t[r])}, {P(t[r])}, {P(BP)}, {P(AP)} {s2}" for r in rr]
        if BI:
            rr = list(rr); bt = [(rr[0], rr[1]), (rr[2], rr[3])]
            o += [f"v_pk_fma_f32 {P(t[r])}, {P(t[r])}, {P(G+r)}, {P(cS(0))}" for r in rr]
            ex = [f"v_exp_f32 v{t[r]+i}, v{t[r]+i} clamp" for r in rr for i in range(2)]
            ug = [f"v_pk_mul_f32 {P(U+r)}, {P(U+r)}, {P(G+r)}" for r in rr]
            ad = [f"v_pk_add_f32 {P(t[r])}, {P(t[r])}, {P(cS(1))}" for r in rr]
            M = [f"v_pk_mul_f32 {P(G+q)}, {P(t[p])}, {P(t[q])}" for p, q in bt]
            m = [f"v_mul_f32 v{G+p}, v{G+q}, v{G+q+1}" for p, q in bt]
            rc = [f"v_rcp_f32 v{G+p}, v{G+p}" for p, q in bt]
            cr = [f"v_pk_mul_f32 {P(U+x)}, {P(U+x)}, {P(t[y])}" for p, q in bt for x, y in ((p, q), (q, p))]
            N = [f"v_pk_mul_f32 {P(G+q)}, {P(G+q)}, {P(G+p)} op_sel:[1,0] op_sel_hi:[0,0]" for p, q in bt]
            fi = [f"v_pk_mul_f32 {P(U+x)}, {P(U+x)}, {P(G+q)}" for p, q in bt for x in (p, q)]
            cv = [f"v_cvt_pk_bf16_f32 v{pk+i}, v{U+r}, v{U+r+1}" for i, r in enumerate(rr)]
            o += [ex[0], ug[0], ex[1], ug[1], ex[2], ug[2], ex[3], ad[0], ex[4], ad[1], ug[3], ex[5], M[0], ex[6], m[0], ad[2],
                  ex[7], cr[0], rc[0], ad[3], cr[1], M[1], N[0], m[1], cr[2], rc[1], fi[0], fi[1], cr[3], N[1], cv[0], cv[1],
                  fi[2], fi[3], cv[2], cv[3]]
            return o
        o += [f"v_pk_mul_f32 {P(t[r])}, {P(t[r])}, {P(G+r)}" for r in rr]
        o += mix([f"v_exp_f32 v{t[r]+i}, v{t[r]+i}" for r in rr for i in range(2)],
                 [f"v_pk_mul_f32 {P(U+r)}, {P(U+r)}, {P(G+r)}" for r in rr])
        o += [f"v_pk_fma_f32 {P(t[r])}, {P(t[r])}, {P(SS)}, {P(SS)} {s2}" for r in rr]
        o += [f"v_rcp_f32 v{t[r]+i}, v{t[r]+i}" for r in rr for i in range(2)]
        o += [f"v_pk_mul_f32 {P(U+r)}, {P(U+r)}, {P(t[r])}" for r in rr]
        o += [f"v_cvt_pk_bf16_f32 v{pk+i}, v{U+r}, v{U+r+1}" for i, r in enumerate(rr)]
        return o
    HSP = ("sc1", "sc0 sc1", "sc1 nt", "sc0 sc1 nt", "", "nt")[oi("hsp", 0)]
    for nt in range(2):
        G = ACC + 16 * nt; U = ACC + 32 + 16 * nt
        for h in range(2):
            pk = TM + 8 + 4 * h
            seq = epi(G, U, nt, range(8 * h, 8 * h + 8, 2), pk, 2 * nt + h < oi('npl', 0))
            n = wepi[2 * nt + h]
            ex = WL[wi:wi + n]; wi += n
            q = 33 + 2 * nt + h
            if oi("hm", 21) == q: ex = ex + h_math
            if oi("hw", 24) == q: ex = ex + h_write
            if SRD == q: ex = ex + [[I(wvm="kf")] + ne(vKL) + [f"s_cselect_b32 s{sOK}, 0, 1"] + r_dma(24)]
            if SRD == q + 10: ex = [[I(wvm="kf")] + ne(vKL) + [f"s_cselect_b32 s{sOK}, 0, 1"] + r_dma(24)] + ex
            a(mix(seq, ex))
            so = sXB if nt == 0 else sWB
            a(I(f"buffer_store_dwordx4 {vr(pk,4)}, v{vHO}, {sr(SWS,4)}, s{so} offen offset:{512*h} {HSP}", vm="hs"))
            stamp(f"e{2*nt+h}")
    assert wi == NPRE
    a(f"s_branch {JOIN}")
    vq_join = list(a.vq)

    a(f"{AUX}:")
    if "noaux" in opt: a(f"s_branch {END}")
    a.vq, a.lq = list(vq_pro), []
    vKa, vKb, TP, vT, vKS, KR, KT = 1, 2, 32, 6, 10, 48, 96
    sKO, sKL = sXB, sWB
    a(row_load())
    AXL = oi("axl", 0)
    a(["s_nop 7"] * (len(SCN) > 0) + sc_init)
    if AXL & 2: a(h_load(27))
    if AXL & 1: a(I(wvm="ep")); a(tag_math); a(row_math())
    if AXL & 4: a(I(wvm="*"))
    if oi("asl", 0): a(f"s_sleep {oi('asl', 0)}")
    a(f"""
    s_xor_b32 s{sCB}, s{sXCD}, s{sW}
    v_and_b32 v23, 1, v21
    v_lshlrev_b32 v23, 1, v23
    v_xor_b32 v23, v22, v23
    v_lshlrev_b32 v23, 4, v23
    v_lshl_add_u32 v{vKa}, v20, 10, v23
    {f"v_lshlrev_b32 v{vKa}, 4, v0" if "kvlin" in opt else ""}
    v_xor_b32 v{vKb}, 64, v{vKa}
    s_lshl_b32 s{sKO}, s{sRBL}, 3
    s_add_u32 s{sKO}, s{sKO}, s{sW}
    s_mov_b32 s{sKEY}, s{sKO}
    s_lshl_b32 s{sKO}, s{sKO}, 16
    s_lshl_b32 s{sT0}, s{sCB}, {13 if "kvlin" in opt else 7}
    s_add_u32 s{sKO}, s{sKO}, s{sT0}
    s_mul_i32 s{sKL}, s{sW}, 17408
    s_mov_b32 m0, s{sKL}
    s_cmp_eq_u32 s{sKEY}, 0
    s_cbranch_scc1 L_halo0
    s_sub_u32 s{sT0}, s{sKO}, 8192
    buffer_load_dwordx4 v{vKa}, {sr(SK,4)}, s{sT0} offen lds
    s_branch L_halo1
    L_halo0:
    v_mov_b32 v40, 0
    v_mov_b32 v41, 0
    v_mov_b32 v42, 0
    v_mov_b32 v43, 0
    ds_write_b128 v{vL16}, v[40:43]
    L_halo1:
    """)
    def kv_ld(m, b, tag):
        lb = (1 + b) if m == 0 else (9 + b)
        par = (lb & 1) if m == 0 else (b & 1)
        return [f"s_add_u32 m0, s{sKL}, {1024*lb}", f"s_add_u32 s{sT0}, s{sKO}, {(1024 if 'kvlin' in opt else 8192)*b}",
                I(f"buffer_load_dwordx4 v{vKb if par else vKa}, {sr(SV if m else SK,4)}, s{sT0} offen{NTK} lds", vm=tag)]
    for b in range(4): a(kv_ld(0, b, "k0")); a(kv_ld(1, b, "k0"))
    a(f"""
    v_and_b32 v23, 15, v0
    v_lshlrev_b32 v26, 3, v23
    s_lshl_b32 s{sT1}, s{sCB}, 9
    """)
    for cg in range(4):
        a(I(f"buffer_load_dwordx2 {vr(TP+2*cg,2)}, v26, {sr(SSH,4)}, s{sT1} offen offset:{128*cg}", vm="k0"))
    for b in range(4, 8): a(kv_ld(0, b, "k1")); a(kv_ld(1, b, "k1"))
    if not AXL & 2: a(h_load(27))
    stamp("iss", 4)
    a(f"""
    v_lshlrev_b32 v26, 7, v24
    v_lshl_add_u32 v26, v21, 10, v26
    v_lshl_add_u32 v26, v25, 3, v26
    v_lshrrev_b32 v27, 1, v24
    v_lshl_add_u32 v26, v27, 5, v26
    v_and_b32 v27, 1, v21
    v_lshl_add_u32 v26, v27, 6, v26
    v_add_u32 v{vT}, s{sKL}, v26
    v_xor_b32 v{vT+1}, 32, v{vT}
    v_xor_b32 v{vT+2}, 64, v{vT}
    v_xor_b32 v{vT+3}, 96, v{vT}
    v_lshrrev_b32 v26, 1, v23
    v_lshlrev_b32 v26, 13, v26
    v_and_b32 v27, 1, v0
    v_lshl_add_u32 v26, v27, 4, v26
    v_sub_u32 v27, 3, v21
    v_lshl_add_u32 v{vKS}, v27, 5, v26
    s_lshl_b32 s{sKO}, s{sCB}, 18
    s_lshl_b32 s{sT0}, s{sKEY}, 8
    s_sub_u32 s{sKO}, s{sKO}, s{sT0}
    s_add_u32 s{sKO}, s{sKO}, {WS_KV + 8192 - 256}
    """)
    if not AXL & 1: a(I(wvm="ep")); a(tag_math); a(row_math())
    stamp("rs", 1)
    def kv_read(hh, cg):
        r = KR + 10 * cg; t = f"kr{cg}"
        return [I(f"ds_read_b64_tr_b16 {vr(r,2)}, v{vT+cg} offset:{4096*hh+512}", lg=t),
                I(f"ds_read_b64_tr_b16 {vr(r+2,2)}, v{vT+(cg^2)} offset:{4096*hh+1024}", lg=t),
                I(f"ds_read_b64_tr_b16 {vr(r+4,2)}, v{vT+(cg^2)} offset:{4096*hh+1536}", lg=t),
                I(f"ds_read_b64_tr_b16 {vr(r+6,2)}, v{vT+cg} offset:{4096*hh+9216}", lg=t),
                I(f"ds_read_b64_tr_b16 {vr(r+8,2)}, v{vT+cg} offset:{4096*hh+9728}", lg=t)]
    def kv_math(hh, cg):
        r = KR + 10 * cg; q, u, w, pk = KT, KT + 8, KT + 16, KT + 24 + 4 * (cg & 1)
        o = [I(wlg=f"kr{cg}")]
        o += [f"v_alignbit_b32 v{q+i}, v{r+i}, v{r+i-1}, 16" for i in range(1, 6)]
        src = lambda t, back: (r if t & 1 else q) + 2 + t // 2 - back
        for t in (1, 3, 5, 7, 0, 2, 4, 6): o += [f"v_dot2_f32_bf16 v{u+t}, v{src(t,0)}, v{TP+2*cg}, 0"]
        for t in (1, 3, 5, 7, 0, 2, 4, 6): o += [f"v_dot2_f32_bf16 v{u+t}, v{src(t,1)}, v{TP+2*cg+1}, v{u+t}"]
        o += [f"v_and_b32 v{w+t}, 0xffff0000, v{r+6+t//2}" if t & 1 else f"v_lshlrev_b32 v{w+t}, 16, v{r+6+t//2}" for t in range(8)]
        o += [f"v_mul_f32 v{u+t}, v{u+t}, v{w+t}" for t in range(8)]
        o += [f"v_cvt_pk_bf16_f32 v{pk+e}, v{u+7-2*e}, v{u+6-2*e}" for e in range(4)]
        o += [f"s_add_u32 s{sT0}, s{sKO}, {65536*cg}",
              I(f"buffer_store_dwordx4 {vr(pk,4)}, v{vKS}, {sr(SWS,4)}, s{sT0} offen offset:{128*(1-hh)} sc1", vm="ks")]
        return o
    for hh in range(2):
        a(I(wvm=f"k{hh}", wlg="*"))
        stamp("kin", 5 + 2 * hh)
        for cg in range(4): a(kv_read(hh, cg))
        if hh == 0:
            for d in range(8): a(f"v_alignbit_b32 v{TP+d}, v{TP+d}, v{TP+d}, 16")
        for cg in range(4): a(kv_math(hh, cg))
        stamp("km", 6 + 2 * hh)
    a(h_math); a(wf_addr)
    vKA2, vKL2 = 27, 28
    ld2 = f"buffer_load_dword v{vKL2}, v{vKA2}, {sr(SWS,4)}, s{sA} offen sc1"
    a(f"""
    s_lshl_b32 s{sT0}, s{sCB}, 5
    s_add_u32 s{sT0}, s{sT0}, s{sKEY}
    s_lshl_b32 s{sT0}, s{sT0}, 2
    s_add_u32 s{sT0}, s{sT0}, {WS_FKV}
    v_lshlrev_b32 v26, 10, v0
    v_lshlrev_b32 v{vKA2}, 3, v0
    s_lshl_b32 s{sA}, s{sRT2}, 9
    s_add_u32 s{sA}, s{sA}, {WS_RS + 4}
    """)
    a([I("s_mov_b64 exec, 3", wvm="*"), f"buffer_store_dword v{vTAG}, v26, {sr(SWS,4)}, s{sT0} offen sc1", "s_mov_b64 exec, -1"])
    stamp("kvf", 2)
    if "dmaonly" in opt or "g1only" in opt: a("s_branch L_prof")
    ck2 = [f"v_xor_b32 v{vFL}, s{sTAG}, v{vFL}", f"v_xor_b32 v{vKL2}, s{sTAG}, v{vKL2}", f"v_or_b32 v{vFL}, v{vFL}, v{vKL2}",
           f"v_cmp_ne_u32 vcc, 0, v{vFL}", "s_cmp_lg_u64 vcc, 0"]
    a("s_barrier")
    a(h_write)
    a(kf_addr); a(f"s_add_u32 s{sC}, s{sC}, 1024")
    stamp("wd", 3)
    a(spin("fwa", ap(wf_ld, 28, "apx") + ap(ld2, 64, "apx"), ck2))
    a(f"""
    s_cmp_lg_u32 s2, 0
    s_cbranch_scc1 L_ep_ok
    s_add_u32 s{sT0}, s{sM0X}, {WS_RS}
    """)
    a(spin("ep", [f"buffer_load_dwordx4 v[32:35], v{vL16}, {sr(SWS,4)}, s{sT0} offen sc1",
                  f"buffer_load_dwordx4 v[36:39], v{vL16}, {sr(SWS,4)}, s{sT0} offen offset:1024 sc1"],
           [f"v_xor_b32 v{r}, s{sTAG}, v{r}" for r in (33, 35, 37, 39)] +
           ["v_or3_b32 v33, v33, v35, v37", "v_or_b32 v33, v33, v39", "v_cmp_ne_u32 vcc, 0, v33", "s_cmp_lg_u64 vcc, 0"]))
    NA = oi("na", 8)
    a(WL[:NA])
    a(spin("kva", ap(kf_ld, 32, "apx"), ne(vKL)))
    a.vq = []
    a(r_dma(24)); a(WL[NA:NPRE]); a(I(wvm="R"))
    a(f"s_branch L_kvok")

    a(f"{JOIN}:")
    a.vq, a.lq = list(vq_join), []
    stamp("join")
    if oi("pe", 0): a("s_setprio 0")
    okv = ("s%d" % sOK) if "nocv" in opt else "1"
    a(f"s_cmp_eq_u32 s{sOK}, {okv}\ns_cbranch_scc1 L_kvok")
    a(spin("kv", ap(kf_ld, 32, "apk"), ne(vKL)))
    sv = list(a.vq); a(r_dma(24)); a(I(wvm="*")); a.vq = sv
    a("L_kvok:")
    CA, AF, BF = 32, 64, 128
    vRU, vRH, vPW, vPR, vZW, vZR, vYA, vYR, vOO = 2, 3, 4, 10, 11, 12, 13, 14, 30
    vXF, XN, vRC = 20, 22, 6
    vXF = 1
    sCH, sWQ, sCVB, sRHO = SV, SV + 1, SV + 2, SV + 3
    sOQ = SSH
    a(f"""
    s_lshr_b32 s{sCH}, s{sW}, 2
    s_and_b32 s{sWQ}, s{sW}, 3
    s_mul_i32 s{sCVB}, s{sCH}, {CVCH}
    s_add_u32 s{sCVB}, s{sCVB}, {L_CV}
    s_lshl_b32 s{sT0}, s{sWQ}, 7
    s_add_u32 s{sT0}, s{sT0}, s{sCVB}
    s_add_u32 s{sT1}, s{sT0}, 480
    v_and_b32 v15, 15, v0
    v_and_b32 v16, 48, v0
    v_lshlrev_b32 v31, 5, v15
    v_sub_u32 v31, v16, v31
    v_add_u32 v{vRU}, s{sT1}, v31
    s_add_u32 s{sT1}, s{sT0}, {4608 - 28 + 4160 + 3072}
    v_and_b32 v31, 1, v0
    v_mul_u32_u24 v31, 4160, v31
    v_sub_u32 v31, v16, v31
    v_bfe_u32 v{vRH}, v0, 1, 3
    v_lshl_add_u32 v31, v{vRH}, 2, v31
    v_add_u32 v{vRH}, s{sT1}, v31
    """)
    KHF = oi("hf", 5)
    hf_st = [f"s_cmp_eq_u32 s{sISG}, 0", "s_cbranch_scc1 L_nohf", I(wvm="hs"),
             line(sHF), "L_nohf:"]
    HP = oi("hp", 0)
    if HP:
        pre = [f"s_xor_b32 s{sT0}, s{sXCD}, s{sWR}", f"s_bitcmp1_b32 s{sT0}, 0", "s_cbranch_scc1 L_nohf"]
        if HP == 1:
            pre += ["v_lshrrev_b32 v13, 4, v0", "v_mul_u32_u24 v13, 57344, v13", "v_lshl_add_u32 v13, v15, 6, v13",
                    f"buffer_load_dword v14, v13, {sr(SWS,4)}, s{sXB} offen sc1"]
        if HP == 2:
            pre += ["v_lshrrev_b32 v13, 3, v0", "v_mul_u32_u24 v13, 57344, v13", "v_and_b32 v14, 7, v0", "v_lshl_add_u32 v13, v14, 7, v13",
                    "s_mov_b32 exec_hi, 0", f"buffer_load_dword v14, v13, {sr(SWS,4)}, s{sXB} offen sc1", "s_mov_b32 exec_hi, -1"]
        hf_st = hf_st[:-1] + pre + hf_st[-1:]
    if KHF < 0: a(hf_st); stamp("hflag")
    AM = oi("am", 0)
    a(f"s_cmp_eq_u32 s{sISG}, 0")
    if AM: a(f"s_cselect_b32 s{sOK}, 0, 0xff")
    a("s_cbranch_scc1 L_nowr")
    a(I(wvm="R"))
    a("L_nowr:")
    a(I(wlg="*"))
    if "noc1" not in opt: a("s_barrier")
    stamp("c1")
    a(f"s_or_b32 s{sT0}, s2, s{sW}\ns_cbranch_scc1 L_noep")
    a(one(f"buffer_store_dword v{vTAG}, off, {sr(SWS,4)}, 0 offset:{WS_EPOCH} sc1"))
    a("L_noep:")
    order = [(0, p) for p in range(7, -1, -1)] + [(1, p) for p in range(8)]
    def uread(rr, d): return I(f"ds_read_b128 {vr(AF+32*rr+4*d,4)}, v{vRU} offset:{512*(7-d)+64*rr}", lg=f"a{rr}{d}")
    def hread(k):
        rr, p = order[k]; o = 128 * (p & 1) + 16 * rr; b = BF + 4 * (k % 4)
        g = []
        if rr == 0 and p in (5, 3, 1): g += [f"v_subrev_u32 v{vRH}, 1024, v{vRH}"]
        if rr == 1 and p in (2, 4, 6): g += [f"v_add_u32 v{vRH}, 1024, v{vRH}"]
        return g + [I(f"ds_read2_b32 {vr(b,2)}, v{vRH} offset0:{o} offset1:{o+1}", lg=f"b{k}"),
                    I(f"ds_read2_b32 {vr(b+2,2)}, v{vRH} offset0:{o+2} offset1:{o+3}", lg=f"b{k}")]
    PC, PG = os_("pc="), os_("pg=")
    if PC: a(f"s_setprio {PC[0]}")
    for k in range(3): a(hread(k)); a(uread(0, k))
    for d in range(3, 8): a(uread(0, d))
    XV = 6
    fin_addr = L(f"""
        s_and_b32 s{sRHO}, s{sCT2}, 3
        s_lshl_b32 s{sT0}, s{sRT2}, 3
        s_add_u32 s{sT0}, s{sT0}, s{sW}
        s_lshl_b32 s{sOQ}, s{sT0}, 13
        s_lshl_b32 s{sT1}, s{sCT2}, 7
        s_add_u32 s{sOQ}, s{sOQ}, s{sT1}
        s_lshl_b32 s{sT0}, s{sT0}, 6
        s_add_u32 s{sOQ+1}, s{sT0}, {WS_RS}
        v_and_b32 v31, 3, v0
        v_lshrrev_b32 v1, 5, v0
        v_lshl_add_u32 v31, v1, 2, v31
        v_and_b32 v{vOO}, 28, v0
        v_lshlrev_b32 v{vOO}, 2, v{vOO}
        v_lshl_add_u32 v{vOO}, v31, 10, v{vOO}
        v_lshlrev_b32 v1, 3, v31
        """)
    fin_ld = [I(f"buffer_load_dwordx4 {vr(XV,4)}, v{vOO}, {sr(SX,4)}, s{sOQ} offen", vm="xt"),
              I(f"buffer_load_dword v{XN+7}, v1, {sr(SWS,4)}, s{sOQ+1} offen sc1", vm="xt")]
    if "to" in opt: fin_ld = [I(f"buffer_load_dword v{XN+6}, off, {sr(SOUT,4)}, s{sOQ}", vm="xt")] + fin_ld
    vZS = 2
    def zsc(r):
        if not BI: return []
        return [f"v_mul_f32 v{vZS}, {fx(2.0 ** -ESH)}, v{r}", f"v_mul_f32 v{vZS}, v{vZS}, v{r}", f"v_mul_f32 v{r}, v{vZS}, v{r}",
                f"v_mul_f32 v{vZS}, {fx(-1.4426950408889634)}, v{vZS}"]
    def unpack(d, x): return [f"v_and_b32 v{d+e}, 0xffff0000, v{x+e//2}" if e & 1 else f"v_lshlrev_b32 v{d+e}, 16, v{x+e//2}" for e in range(8)]
    xn_math = ([I(f"v_lshlrev_b32 v20, 16, v{XN+7}", wvm="xt"), f"v_and_b32 v21, 0xffff0000, v{XN+7}", "v_rcp_f32 v20, v20"] +
               unpack(XN, XV) + [f"v_add_f32 v{XN+e}, v{XN+e}, v21" for e in range(8)] + zsc(20) +
               [f"v_mul_f32 v{XN+e}, v{XN+e}, v20" for e in range(8)])
    p_addr = L(f"""
        v_bfe_u32 v20, v0, 1, 2
        v_bfe_u32 v21, v0, 3, 1
        v_xor_b32 v20, v20, v21
        v_lshlrev_b32 v20, 4, v20
        v_xor_b32 v20, v20, v16
        v_lshl_add_u32 v20, v15, 6, v20
        s_lshl_b32 s{sT0}, s{sW}, 13
        v_add_u32 v{vPW}, s{sT0}, v20
        v_bfe_u32 v20, v0, 2, 2
        v_bfe_u32 v21, v0, 4, 1
        v_xor_b32 v20, v20, v21
        v_lshlrev_b32 v20, 4, v20
        v_lshlrev_b32 v21, 5, v0
        v_xor_b32 v20, v20, v21
        s_lshl_b32 s{sT0}, s{sCH}, 15
        s_lshl_b32 s{sT1}, s{sWQ}, 11
        s_add_u32 s{sT0}, s{sT0}, s{sT1}
        v_add_u32 v{vPR}, s{sT0}, v20
        """)
    HB, ZA, NS = 64, 32, 16
    sH1, sH2, sHQ = sXB, sWB, sKEY
    def HR(n): return HB + 4 * (n % NS if n % NS < 8 else 23 - n % NS)
    sMK = sA
    def hload(n, mask=False):
        qd, ks = divmod(n, 7)
        g = []
        if ks == 0:
            g += [f"s_xor_b32 s{sT3}, s{sRHO}, {qd}", f"s_mul_i32 s{sT3}, s{sT3}, 57344", f"s_add_u32 s{sH1}, s{sHQ}, s{sT3}",
                  f"s_sub_u32 s{sH2}, s{sH1}, s{sRB}"]
        t = I(f"buffer_load_dwordx4 {vr(HR(n),4)}, v{vL16}, {sr(SWS,4)}, s{sH1 if ks < 4 else sH2} offen offset:{(ks&3)*1024} sc1", vm=f"h{n}")
        if "hx2" in opt: return g + [f"s_mov_b64 exec, {sr(sMK,2)}" if mask else "s_nop 0", "s_mov_b32 exec_hi, 0", t, "s_mov_b64 exec, -1"]
        if "hx1" in opt: t = I(t.text.replace("dwordx4 " + vr(HR(n),4), "dword " + vr(HR(n),1)).replace(f"v{vL16},", "v15,"), vm=f"h{n}")
        return g + ([f"s_mov_b64 exec, {sr(sMK,2)}", t, "s_mov_b64 exec, -1"] if mask and "nomask" not in opt else [t])
    def again(n1):
        sv = list(a.vq)
        for n in range(n1): a(hload(n))
        a.vq = sv
    h_addr = L(f"""
        s_mul_i32 s{sHQ}, s{sRT2}, {4*56*1024}
        s_mul_i32 s{sT1}, s{sW}, 7168
        s_add_u32 s{sHQ}, s{sHQ}, s{sT1}
        s_mul_i32 s{sT1}, s{sHI}, 3072
        s_add_u32 s{sHQ}, s{sHQ}, s{sT1}
        s_add_u32 s{sHQ}, s{sHQ}, {WS_H}
        s_mul_i32 s{sRB}, s{sHI}, 7168
        s_sub_u32 s{sRB}, s{sRB}, 4096
        s_lshl_b32 s{sE}, s{sRT2}, 3
        s_add_u32 s{sE}, s{sE}, s{sW}
        s_mul_i32 s{sE}, s{sE}, {7 << FS}
        s_add_u32 s{sE}, s{sE}, {WS_FH + 4}
        v_min_u32 v{vFA}, 6, v0
        v_lshlrev_b32 v{vFA}, {FS}, v{vFA}
        """)
    KH, KR_, KA, KB = oi("kh", 8), oi("kq", 3), oi("ka", 6), oi("kb", 11)
    assert 8 <= KH <= 15 and KA < KH <= KB and KHF < KH
    PM = [o[3:].replace("_", " ") for o in opt if o.startswith("pm=")]
    def poll(at, vm=None, am=False):
        if not at:
            t = wf_ld.replace("sc1", PM[0]) if PM else wf_ld
            return [I(t, vm=vm)]
        return [f"v_mov_b32 v{vFL}, 0"] + ([f"s_mov_b32 exec_lo, s{sOK}", "s_mov_b32 exec_hi, 0"] if am else ["s_mov_b64 exec, 0xff"]) + [
                I(f"buffer_atomic_or v{vFL}, v{vFA}, {sr(SWS,4)}, s{sE} offen sc0 sc1", vm=vm), "s_mov_b64 exec, -1"]
    def ne8(at): return [f"v_cmp_ne_u32 vcc, s{sTAG}, v{vFL}", "s_and_b32 vcc_lo, vcc_lo, 0xff"] if at else ne(vFL)
    AH, AY = "aph" in opt or "apa" in opt, "apy" in opt or "apa" in opt
    hf_ld = poll(AH)
    hn = 0
    NB = oi("nb", NS); YL = [int(x) for x in os_("yl=", "0000")]; NY = NB + sum(YL); GQ = oi("gq", 2)
    assert NY <= NS
    def yl(i):
        for n in range(NB + sum(YL[:i]), NB + sum(YL[:i + 1])): a(hload(n, True))
    def pwrite(j): return I(f"ds_write_b128 v{vPW}, {vr(CA+4*j,4)} offset:{1024*j}", lg="pw")
    sYS = sCB
    if "nocv" in opt:
        a(fin_addr); a(h_addr)
        if "wtf" in opt: a(WL[NPRE:]); a(fin_ld)
        a(hf_st)
        if "bar2" in opt: a("s_barrier")
        if "wtf" not in opt: a(WL[NPRE:]); a(fin_ld)
        stamp("k1")
        a(xn_math)
        if "blind" not in opt: a(spin("hf0", [f"s_sleep {oi('sl', 0)}", hf_ld], ne8(AH)))
        stamp("k11")
        a.vq = []
        for n in range(NS): a(hload(n))
        a(f"s_mov_b32 s{sMK}, -1")
        a(I(wlg="*"))
        stamp("c3")
    else:
        for k, (rr, p) in enumerate(order):
            seq = []
            for j in range(p, 8):
                c = "0" if (rr == 0 and j == p) else vr(CA + 4 * j, 4)
                seq.append(I(f"v_mfma_f32_16x16x32_bf16 {vr(CA+4*j,4)}, {vr(BF+4*(k%4),4)}, {vr(AF+32*rr+4*(j-p),4)}, {c}",
                             wlg=[f"a{rr}{j-p}", f"b{k}"]))
            fill = []
            if k == 1: fill += [fin_addr]
            WK = os_("wk=")
            if WK:
                assert sum(int(x) for x in WK) == 28 - NPRE
                w0 = NPRE + sum(int(x) for x in WK[:k]); fill += WL[w0:w0 + int((WK + "0" * 16)[k])]
            elif 1 <= k <= 6: fill += part(WL[NPRE:], k - 1, 6)
            if k == oi("kx", 3): fill += fin_ld
            if 4 <= k <= 7: fill += [uread(1, 2 * (k - 4)), uread(1, 2 * (k - 4) + 1)]
            if k in (6, 7): fill += part(p_addr, k - 6, 2)
            if 8 <= k <= 11 and "xg" not in opt: fill += part(xn_math, k - 8, 4)
            if k >= 9: fill = fill[:2] + [pwrite(p - 1)] + fill[2:]
            if k == 2: fill += [h_addr]
            if k == KHF and "hb" not in opt: fill += [hf_st]
            if k == KA and "hb" not in opt: fill += [poll(AH, "hf", AM & 1)]
            if k == KH and "hb" in opt: a(f"s_mov_b64 {sr(sMK,2)}, -1")
            elif k == KH: a([I(wvm="hf")] + ne8(AH) + [f"s_cselect_b64 {sr(sMK,2)}, 0, -1"])
            if k == KB: fill += [[f"s_cmp_lg_u32 s{sMK}, 0", "s_cbranch_scc1 L_nof2", poll(AH, None, AM & 2), "L_nof2:"]]
            if k >= KH:
                e = min(hn + KR_, k, NB); hl = [hload(n, True) for n in range(hn, e)]; hn = max(hn, e)
                fill = mix(fill, hl) if len(fill) >= len(hl) else mix(hl, fill)
            a(mix(seq, fill))
            if k + 3 < 16: a(hread(k + 3))
            if PC and PC[k + 1] != PC[k]: a(f"s_setprio {PC[k + 1]}")
            stamp(f"k{k}")
        a(f"""
        s_lshl_b32 s{sT1}, s{sWQ}, 10
        s_sub_u32 s{sT1}, s{sCVB}, s{sT1}
        s_add_u32 s{sT1}, s{sT1}, 4080
        v_sub_u32 v20, s{sT1}, v{vL16}
        v_xor_b32 v21, 16, v{vPR}
        """)
        a(pwrite(7))
        for n in range(hn, NB): a(hload(n, True))
        a([f"s_cmp_lg_u32 s{sMK}, 0", "s_cbranch_scc1 L_hlate", "s_waitcnt vmcnt(0)"] + ne8(AH) +
          [f"s_cselect_b64 {sr(sMK,2)}, 0, -1", "s_cbranch_scc1 L_hlate"])
        again(NB)
        a("L_hlate:")
        sYS = sCB
        a(I(wlg="*"))
        a("s_barrier")
        stamp("c3")
        if "py" in opt: a("s_setprio 3")
        PR, vU, YA = 32, 128, 132
        a(I(f"ds_read_b128 {vr(vU,4)}, v20", lg="su"))
        for k in range(4):
            a(I(f"ds_read_b128 {vr(PR+8*k,4)}, v{vPR} offset:{8192*k}", lg=f"p{k}"))
            a(I(f"ds_read_b128 {vr(PR+8*k+4,4)}, v21 offset:{8192*k}", lg=f"p{k}"))
        a(f"""
        s_lshl_b32 s{sT1}, s{sCH}, 4
        s_lshr_b32 s{sD}, s{sD}, s{sT1}
        s_lshl_b32 s{sD}, s{sD}, 16
        s_lshl_b32 s{sT1}, s{sCP}, 13
        s_lshl_b32 s{sT3}, s{sW}, 10
        s_add_u32 s{sT1}, s{sT1}, s{sT3}
        s_add_u32 s{sT1}, s{sT1}, {WS_YT}
        s_lshl_b32 s{sYS}, s{sWQ}, 9
        s_lshl_b32 s{sT3}, s{sCP}, 1
        s_add_u32 s{sYS}, s{sYS}, s{sT3}
        s_add_u32 s{sYS}, s{sYS}, s{sCH}
        s_lshl_b32 s{sT3}, s{sYS}, 7
        s_and_b32 s{sT3}, s{sT3}, 0x380
        v_xor_b32 v31, s{sT3}, v{vL16}
        s_lshl_b32 s{sYS}, s{sYS}, {FS}
        s_add_u32 s{sYS}, s{sYS}, {WS_FY}
        """)
        yl(0)
        stamp("y0")
        a(I(wlg="su"))
        stamp("y1")
        for e in range(4):
            a(f"v_and_b32 v{YA+6-2*e}, 0xffff0000, v{vU+e}\nv_lshlrev_b32 v{YA+7-2*e}, 16, v{vU+e}")
        yl(1)
        a(I(wlg="p0"))
        for e in range(8): a(f"v_fma_f32 v{YA+e}, v{YA+e}, s{sD}, v{PR+e}")
        yl(2)
        a(I(wlg="p2"))
        def add8(d, x):
            if "ynp" in opt:
                for e in range(8): a(f"v_add_f32 v{d+e}, v{d+e}, v{x+e}")
            else:
                for e in range(0, 8, 2): a(f"v_pk_add_f32 {vr(d+e,2)}, {vr(d+e,2)}, {vr(x+e,2)}")
        add8(PR + 8, PR + 16)
        yl(3)
        a(I(wlg="p3"))
        stamp("y2")
        a(f"s_lshl_b32 s{sT3}, s{sW}, 2\ns_add_u32 s{sT3}, s{sT3}, {L_CNT}\nv_mov_b32 v20, s{sT3}")
        a(I(f"ds_write_b32 v20, v{vTAG}", lg="cw"))
        add8(YA, PR + 24)
        add8(YA, PR + 8)
        for e in range(4): a(f"v_cvt_pk_bf16_f32 v{vU+e}, v{YA+2*e}, v{YA+2*e+1}")
        stamp("y3")
        a(I(f"buffer_store_dwordx4 {vr(vU,4)}, v31, {sr(SWS,4)}, s{sT1} offen sc1", vm="ys"))
    stamp("ys")
    if PG or "py" in opt: a(f"s_setprio {PG[0] if PG else 0}")
    a(f"s_cmp_lg_u32 s{sMK}, 0\ns_cbranch_scc1 L_hgo")
    a(spin("hf", [hf_ld], ne8(AH)))
    stamp("hsp")
    again(NY)
    hn = NY
    a(line(sYS))
    a("L_hgo:")
    stamp("hok")
    sYA, sYF, sSEL = sMO, sE, SK
    YO = "yo" in opt
    sYW = sMO + 1 if YO else sW
    g2_addr = L(f"""
    v_lshrrev_b32 v20, 4, v0
    s_lshl_b32 s{sT1}, s{sRBL}, 2
    v_xor_b32 v21, v20, v15
    v_xor_b32 v21, s{sT1}, v21
    v_lshlrev_b32 v21, 4, v21
    v_lshl_add_u32 v21, v15, 8, v21
    s_lshl_b32 s{sT1}, s{sW}, 12
    v_add_u32 v{vZW}, s{sT1}, v21
    s_lshl_b32 s{sT1}, s{sW}, 1
    v_lshrrev_b32 v1, 5, v0
    v_add_u32 v21, s{sT1}, v1
    v_and_b32 v20, 3, v0
    v_xor_b32 v31, s{sRHO}, v20
    v_lshrrev_b32 v{vZR}, 1, v0
    v_and_b32 v{vZR}, 14, v{vZR}
    v_xor_b32 v{vZR}, v{vZR}, v21
    v_xor_b32 v{vZR}, v{vZR}, v31
    v_lshlrev_b32 v{vZR}, 4, v{vZR}
    v_lshl_add_u32 v{vZR}, v21, 8, v{vZR}
    s_mov_b32 s{sT1}, {sum((L_Z[q] >> 15) << (8 * q) for q in range(4))}
    v_lshlrev_b32 v31, 3, v31
    v_bfe_u32 v31, s{sT1}, v31, 8
    v_lshl_add_u32 v{vZR}, v31, 15, v{vZR}
    v_bfe_u32 v31, v0, 4, 1
    v_lshl_add_u32 v20, v31, 2, v20
    v_xor_b32 v21, s{sW}, v20
    v_lshlrev_b32 v21, 4, v21
    v_lshl_add_u32 v21, v1, 3, v21
    v_lshl_add_u32 v21, v20, 10, v21
    v_bfe_u32 v31, v0, 2, 2
    v_lshl_add_u32 v21, v31, 7, v21
    v_add_u32 v{vYR}, {L_Y}, v21
    v_and_b32 v21, 7, v0
    {f"s_lshl_b32 s{sYW}, s{sW}, 1" if YO else ""}
    v_xor_b32 v20, s{sYW}, v21
    v_lshlrev_b32 v20, 4, v20
    v_lshrrev_b32 v31, 3, v0
    v_lshl_add_u32 v20, v31, 12, v20
    s_and_b32 s{sT1}, s{sRT2}, 7
    v_xor_b32 v31, s{sT1}, v31
    v_lshl_add_u32 v{vYA}, v31, 7, v20
    v_lshlrev_b32 v{vFA}, {FS}, v{15 if YO else 21}
    v_lshlrev_b32 v1, 2, v21
    v_add_u32 v1, {L_CNT}, v1
    s_lshl_b32 s{sT1}, s{sCT2}, 3
    s_add_u32 s{sT1}, s{sT1}, s{sYW}
    s_lshl_b32 s{sYA}, s{sT1}, 15
    s_and_b32 s{sT0}, s{sRT2}, 24
    s_lshl_b32 s{sT0}, s{sT0}, 7
    s_add_u32 s{sYA}, s{sYA}, s{sT0}
    s_add_u32 s{sYA}, s{sYA}, {WS_YT}
    s_lshl_b32 s{sYF}, s{sT1}, {FS + 3}
    s_lshr_b32 s{sT0}, s{sRT2}, 3
    s_lshl_b32 s{sT0}, s{sT0}, {FS + 9}
    s_add_u32 s{sYF}, s{sYF}, s{sT0}
    s_add_u32 s{sYF}, s{sYF}, {WS_FY + 4}
    s_mov_b32 s{sSEL}, {fx(-1.4426950408889634)}
    s_mov_b32 s{sSEL+1}, s{sSEL}
    s_mov_b32 s{sSEL+2}, 1.0
    s_mov_b32 s{sSEL+3}, 1.0
    s_lshl_b32 s{sT0}, s{sYW}, 10
    s_add_u32 m0, s{sT0}, {L_Y}
    """)
    ZT, XF, YR, YF = 64, 128, 136, 32
    def zwrite(qd):
        hi, lo = L_Z[qd] & ~0xffff, L_Z[qd] & 0xffff
        return [[f"v_xor_b32 v20, {hi + 64*mt + 16*qd}, v{vZW}",
                 I(f"ds_write_b128 v20, {vr(ZA+16*(qd&1)+4*mt,4)} offset:{lo}", lg="zw")] for mt in range(4)]
    xn_g = ([f"v_lshlrev_b32 v16, 16, v{XN+7}", f"v_and_b32 v4, 0xffff0000, v{XN+7}", "v_rcp_f32 v16, v16"] +
            [f"v_add_f32 v{XN+e}, v{XF+e}, v4" for e in range(8)] + zsc(16) + [f"v_mul_f32 v{XN+e}, v{XN+e}, v16" for e in range(8)])
    NYF, NYP, NYC = oi("nyf", 8), oi("nyp", 16), oi("nyc", 21)
    NG, ZS = oi("ng", 6), oi("zs", 1)
    y_ld = f"buffer_load_dwordx4 v{vYA}, {sr(SWS,4)}, s{sYA} offen sc1 lds"
    if YO:
        y_ld = [y_ld, f"v_xor_b32 v{vFL}, 16, v{vYA}", "s_add_u32 m0, m0, 1024", f"s_add_u32 s{sYA}, s{sYA}, 32768",
                y_ld.replace(f"v{vYA},", f"v{vFL},")]
    def wide(x): return [[y.replace("0xff", "0xffff") if isinstance(y, str) else y for y in x]] if YO else x
    cn_ld = "ds_read_b32 v31, v1"
    cn_ck = ["v_cmp_eq_u32 vcc, 0, v31", "s_cmp_lg_u64 vcc, 0", "s_cbranch_scc0 L_cn_ok"]
    for n in range(28):
        qd, ks = divmod(n, 7)
        a(I(wvm=[f"h{n}", f"wd{ks}"]))
        if n == NYF: a(line(sYS, wvm="ys", vm="yf"))
        if n == 22:
            a([I(wlg="cn")] + cn_ck + [f"s_mov_b32 s{sCNT}, {SPIN}", "L_cn_loop:", cn_ld, "s_waitcnt lgkmcnt(0)"] + cn_ck +
              [f"s_sub_u32 s{sCNT}, s{sCNT}, 1", "s_cbranch_scc0 L_cn_loop", "L_cn_ok:"])
        if ks == 0 and qd >= 2: a(I(wlg="zw"))
        seq = []
        for mt in range(4):
            d = ZA + 16 * (qd & 1) + 4 * mt
            c = "0" if ks == 0 else vr(d, 4)
            seq.append(f"v_mfma_f32_16x16x32_bf16 {vr(d,4)}, {vr(WDF(4*ks+mt),4)}, {vr(HR(n),4)}, {c}")
        fill = []
        if qd >= 1 and 1 <= ks <= ZS: fill = part(zwrite(qd - 1), ks - 1, ZS)
        if n < NG: fill = part(g2_addr, n, NG)
        if n == 20: fill += [I(cn_ld, lg="cn")]
        if n in (12, 13): fill += part(unpack(XF, XV), n - 12, 2)
        if "xg" in opt and n in (17, 18, 19, 24, 25, 26): fill += part(xn_g, (17, 18, 19, 24, 25, 26).index(n), 6)
        if n == 27: fill += [f"v_xor_b32 v21, 16, v{vZR}"]
        if n == NYC and "yb" in opt: fill = [[f"s_mov_b32 s{sMK}, -1", I(y_ld, vm="yl")]] + fill
        elif n == NYC and YO:
            fill = [[f"s_cmp_ge_u32 s{sW}, 4", f"s_cselect_b32 s{sMK}, -1, 0", "s_cbranch_scc1 L_ylate", "s_waitcnt vmcnt(0)"] + wide(ne8(AY)) +
                    [f"s_cselect_b32 s{sMK}, 0, -1", "s_cbranch_scc1 L_ylate", y_ld, "L_ylate:"]] + fill
        elif n == NYC:
            fill = [[I(wvm="yp")] + ne8(AY) + [f"s_cselect_b32 s{sMK}, 0, -1", "s_cbranch_scc1 L_ylate", y_ld, "L_ylate:"]] + fill
        a(mix(seq, fill))
        GS = os_("gs=")
        e = min(28, n + 1 + NS, hn + (int(GS[n % len(GS)]) if GS else GQ))
        for m in range(hn, e): a(hload(m))
        hn = e
        assert hn > min(n + 1, 27) or n == 27
        if n == NYP and YO: a([I(wvm="*"), f"s_cmp_ge_u32 s{sW}, 4", "s_cbranch_scc1 L_nyp", wide(poll(AY)), "L_nyp:"])
        elif n == NYP and "yb" not in opt: a(poll(AY, "yp"))
        if PG and PG[n + 1] != PG[n]: a(f"s_setprio {PG[n + 1]}")
        stamp(f"n{n}")
    a(zwrite(3))
    stamp("g2")
    a(f"s_cmp_lg_u32 s{sMK}, 0\ns_cbranch_scc1 L_ygo")
    a(spin("yf", wide(poll(AY)), wide(ne8(AY))) + [y_ld, "L_ygo:"])
    stamp("yok")
    a(I(wvm="*", wlg="*"))
    a("s_barrier")
    stamp("bf")
    P2 = lambda x: vr(x, 2)
    a(I(f"ds_read_b64_tr_b16 {P2(YR)}, v{vYR}", lg="yr"))
    a(I(f"ds_read_b64_tr_b16 {P2(YR+2)}, v{vYR} offset:512", lg="yr"))
    def zread(k): return [I(f"ds_read_b128 {vr(ZT+8*k+4*h,4)}, v{21 if h else vZR} offset:{4096*k}", lg=f"z{k}") for h in range(2)]
    for k in range(6): a(zread(k))
    a(I(wlg="yr")); a(unpack(YF, YR))
    a(zread(6)); a(zread(7))
    for e in range(0, 8, 2): a(f"v_pk_mul_f32 {P2(XN+e)}, {P2(XN+e)}, {P2(YF+e)}")
    stamp("f0")
    for k in range(1, 8):
        a(I(wlg=f"z{k}"))
        for e in range(0, 8, 2): a(f"v_pk_add_f32 {P2(ZT+e)}, {P2(ZT+e)}, {P2(ZT+8*k+e)}")
    stamp("f1")
    for e in range(0, 8, 2): a(f"v_pk_mul_f32 {P2(YF+e)}, {P2(ZT+e)}, " + (f"{P2(vZS)} op_sel_hi:[1,0]" if BI else sr(sSEL,2)))
    a(mix([f"v_exp_f32 v{YF+e}, v{YF+e}" for e in range(8)],
          [f"v_pk_mul_f32 {P2(XN+e)}, {P2(XN+e)}, {P2(ZT+e)}" for e in range(0, 8, 2)]))
    for e in range(0, 8, 2): a(f"v_pk_add_f32 {P2(YF+e)}, {P2(YF+e)}, {sr(sSEL+2,2)}")
    for e in range(8): a(f"v_rcp_f32 v{YF+e}, v{YF+e}")
    for e in range(0, 8, 2): a(f"v_pk_fma_f32 {P2(XF+e)}, {P2(XN+e)}, {P2(YF+e)}, {P2(XF+e)}")
    for e in range(4): a(f"v_cvt_pk_bf16_f32 v{YR+e}, v{XF+2*e}, v{XF+2*e+1}")
    stamp("f2")
    a(f"buffer_store_dwordx4 {vr(YR,4)}, v{vOO}, {sr(SOUT,4)}, s{sOQ} offen sc0 sc1")
    if prof:
        stamp("st")
        if "endw" in opt: a("s_waitcnt vmcnt(0)")
        a("L_prof:")
        stamp("end")
        a(f"""
        s_waitcnt lgkmcnt(0)
        s_lshl_b32 s{sT0}, s2, 3
        s_add_u32 s{sT0}, s{sT0}, s{sW}
        s_lshl_b32 s{sT0}, s{sT0}, 6
        s_add_u32 s{sT0}, s{sT0}, {WS_PROF}
        """)
        if "dbg" in opt:
            n = len(stamps)
            a(f"s_load_dwordx2 {sr(SX,2)}, s[0:1], 88\ns_mov_b32 s{SX+2}, 256\ns_waitcnt lgkmcnt(0)\ns_mov_b64 exec, 1")
            a(f"s_not_b32 s{sT1}, s{PROFS[0]}\nv_mov_b32 v1, s{sT1}\nbuffer_atomic_umax v1, off, {sr(SX,4)}, 0")
            a(f"v_mov_b32 v2, s{PROFS[n-1]}\nbuffer_atomic_umax v2, off, {sr(SX,4)}, 0 offset:60")
            a(f"s_cmp_lt_u32 s2, 32\ns_cbranch_scc1 {END}")
            for i in range(n):
                if "avg" in opt:
                    a(f"s_sub_u32 s{sT1}, s{PROFS[i]}, s{PROFS[0]}\nv_mov_b32 v{3+i}, s{sT1}\nbuffer_atomic_add v{3+i}, off, {sr(SX,4)}, 0 offset:{4+4*i}")
                else:
                    a(f"v_mov_b32 v{3+i}, s{PROFS[i]}\nbuffer_atomic_umax v{3+i}, off, {sr(SX,4)}, 0 offset:{4+4*i}")
            a(f"s_branch {END}")
        for i in range(len(stamps)):
            a(f"v_mov_b32 v1, s{PROFS[i]}")
            a(f"buffer_store_dword v1, off, {sr(SWS,4)}, s{sT0} offset:{4*i}")
    a(f"{END}:\ns_endpgm")
    def post(b):
        import al
        if oi("al", -1) >= 0:
            b, st = al.align(b, oi("al", 0)); print(st)
        if "sh4" in opt: b = ["    s_nop 0"] + b
        print("misplaced", al.stat(b))
        return b
    txt = a.text(256, 512, 163840, post=post)
    return txt, stamps, a.nops

if __name__ == "__main__":
    txt, st, nops = gen(prof="prof" in sys.argv, opt=sys.argv[2:])
    open(sys.argv[1], "w").write(txt)
    print("lines", txt.count("\n"), "nops", nops, st)
    if st: open(sys.argv[1] + ".stamps", "w").write(" ".join(st))
```

```python
import sys, struct, re
from em import *

WS_EPOCH, WS_FKV, WS_RS, WS_CS, WS_FH, WS_FY = 0, 4096, 32768, 65536, 262144, 524288
WS_KV, WS_WT, WS_YT, WS_H, WS_PROF = 1 << 20, 3 << 20, 5 << 20, 8 << 20, 16 << 20
SX, SWG, SWU, SWD, SWS, SOUT, SH, SK, SV, SSH = 8, 12, 16, 20, 24, 28, 32, 36, 40, 44
sW, sXB, sWB, sT0, sT1 = 3, 4, 5, 6, 7
(sRT2, sCT2, sKEY, sWR, sWC, sTAG, sM0X, sOK, sISG, sCNT, sT2, sT3, sCSM, sCP, sRBL, sXCD, sCB, sD,
 sMO, _m1, _m2, _m3, sHI, sRB) = range(48, 72)
sA, sB, sC, sE = 98, 99, 100, 101
PROFS = list(range(72, 98, 2))
STAGE = 49152
L_WP = 147456
L_CV, CVCH = 98304, 12864
L_Z = (65536, 131072, 0, 32768)
L_Y, L_CNT = L_CV + 4608, L_CV + 4096
ACC, FR = 32, 96
def WDF(i): return 144 + 4 * i
vX0, vX1, vW0, vW1, vL16 = 1, 2, 3, 4, 5
vXB, vWB, vTAG = 6, 14, 17
SPIN = 0x4000
ESH = 24
KC = 2 * 0.7978845608028654 * 1.4426950408889634
def fx(f): return "0x%08x" % struct.unpack("<I", struct.pack("<f", f))[0]
def L(s): return [x.strip() for x in s.strip().split("\n") if x.strip()]

def gen(prof=False, opt=()):
    a = Em()
    def oi(k, d): return int(([o[len(k):] for o in opt if re.fullmatch(k + r"-?\d+", o)] + [d])[0])
    stamps = []
    def oi(k, d): return int(([o[len(k):] for o in opt if re.fullmatch(k + r"-?\d+", o)] + [d])[0])
    def stamp(name, slot=None):
        sel = [o[3:].split(",") for o in opt if o.startswith("st=")]
        dflt = "start,B0,B4,B8,join,c1,c3,hok,g2,bf,end".split(",")
        if not prof or (slot is None and name not in (sel[0] if sel else dflt)): return
        own = slot is None
        if ("both" in opt or "noas" in opt) and not own: return
        if slot is None:
            if name not in stamps: stamps.append(name)
            slot = stamps.index(name)
        a(f"{'s_memtime' if 'cyc' in opt else 's_memrealtime'} {sr(PROFS[slot], 2)}")
        if "both" in opt and own:
            stamps.append(name + "c"); a(f"s_memtime {sr(PROFS[slot + 1], 2)}")
    def spin(name, load, check):
        if "nochk" in opt: return [f"L_{name}_ok:"]
        cn = [f"s_add_u32 s{PROFS[stamps.index('n_' + name)]}, s{PROFS[stamps.index('n_' + name)]}, 1"] if "n_" + name in stamps else []
        return ([f"s_mov_b32 s{sCNT}, {SPIN}", f"L_{name}_loop:"] + cn + load + ["s_waitcnt vmcnt(0)"] + check +
                [f"s_cbranch_scc0 L_{name}_ok", f"s_sub_u32 s{sCNT}, s{sCNT}, 1", f"s_cbranch_scc0 L_{name}_loop",
                 f"L_{name}_ok:"])
    def one(txt, vm=None, wvm=None):
        if "all" in opt: return [I(txt, vm=vm, wvm=wvm)]
        return [I("s_mov_b64 exec, 1", wvm=wvm), I(txt, vm=vm), "s_mov_b64 exec, -1"]
    FS = oi("fs", 7)
    def line(so, vm=None, wvm=None):
        if "fp" in opt: return one(f"buffer_store_dword v{vTAG}, off, {sr(SWS,4)}, s{so} offset:4 sc1", vm=vm, wvm=wvm)
        return [I(f"s_mov_b64 exec, {(1 << (1 << (FS - 4))) - 1}", wvm=wvm),
                I(f"buffer_store_dwordx4 {vr(vTAG-1,4)}, v{vL16}, {sr(SWS,4)}, s{so} offen sc1", vm=vm), "s_mov_b64 exec, -1"]
    def ne(v): return [f"v_cmp_ne_u32 vcc, s{sTAG}, v{v}", "s_cmp_lg_u64 vcc, 0"]
    def ap(txt, nl, key, vm=None):
        if key not in opt and "apa" not in opt: return [I(txt, vm=vm)]
        d = txt.split()[1].rstrip(",")
        t = I(txt.replace("buffer_load_dword", "buffer_atomic_or").replace("sc1", "sc0 sc1"), vm=vm)
        if nl == 64: return [f"v_mov_b32 {d}, 0", t]
        m = [f"s_mov_b32 exec_hi, 0"] if nl == 32 else [f"s_mov_b64 exec, {(1 << nl) - 1}"]
        return [f"v_mov_b32 {d}, s{sTAG}"] + m + [f"v_mov_b32 {d}, 0", t, "s_mov_b64 exec, -1"]
    END, AUX, JOIN = "L_end", "L_aux", "L_join"
    vHE, vHP, vHO_ = (228, 232, 234) if "hr" in opt else (128, 132, 134)
    KM = oi("km", 3)
    a(f"""
    s_cmp_ge_u32 s2, 256
    s_cbranch_scc1 {END}
    s_load_dwordx16 s[72:87], s[0:1], 0
    s_load_dwordx8 s[88:95], s[0:1], 64
    s_load_dwordx2 s[96:97], s[0:1], 96
    v_lshrrev_b32 v1, 6, v0
    v_and_b32 v0, 63, v0
    v_readfirstlane_b32 s{sW}, v1
    s_and_b32 s{sXCD}, s2, 7
    s_lshr_b32 s{sCP}, s2, 3
    s_and_b32 s{sE}, s{sXCD}, 1
    s_lshr_b32 s{sA}, s{sXCD}, 1
    s_and_b32 s{sRBL}, s{sCP}, 3
    s_lshr_b32 s{sISG}, s{sCP}, 2
    s_lshl_b32 s{sRB}, s{sA}, 2
    s_add_u32 s{sRB}, s{sRB}, s{sRBL}
    s_lshl_b32 s{sRT2}, s{sRB}, 1
    s_add_u32 s{sRT2}, s{sRT2}, s{sE}
    s_add_u32 s{sCT2}, s{sISG}, 7
    s_and_b32 s{sCT2}, s{sCT2}, 7
    s_mul_i32 s{sCB}, s{sE}, 7
    s_add_u32 s{sCB}, s{sCB}, s{sCT2}
    s_xor_b32 s{sKEY}, s{sRBL}, s{sISG}
    s_and_b32 s{sKEY}, s{sKEY}, {KM}
    s_lshl_b32 s{sB}, s{sA}, {2 if KM == 3 else 1}
    s_and_b32 s{sB}, s{sB}, {4 if KM == 3 else 6}
    s_or_b32 s{sKEY}, s{sKEY}, s{sB}
    s_lshl_b32 s{sB}, s{sXCD}, 5
    s_add_u32 s{sCP}, s{sCP}, s{sB}
    s_and_b32 s{sWR}, s{sW}, 1
    s_lshr_b32 s{sWC}, s{sW}, 1
    s_lshr_b32 s{sB}, s{sW}, 2
    s_and_b32 s{sC}, s{sW}, 3
    s_lshl_b32 s{sXB}, s{sRB}, 17
    s_lshl_b32 s{sT0}, s{sB}, 16
    s_add_u32 s{sXB}, s{sXB}, s{sT0}
    s_lshl_b32 s{sT0}, s{sC}, 10
    s_add_u32 s{sXB}, s{sXB}, s{sT0}
    s_mul_i32 s{sWB}, s{sW}, 28672
    s_lshl_b32 s{sT0}, s{sCB}, 8
    s_add_u32 s{sWB}, s{sWB}, s{sT0}
    s_lshl_b32 s{sM0X}, s{sW}, 11
    s_and_b32 s{sT0}, s{sKEY}, 1
    s_and_b32 s{sT1}, s{sA}, 2
    s_or_b32 s{sT0}, s{sT0}, s{sT1}
    {f"s_mov_b32 s{sT0}, s{sRBL}" if KM != 3 else ""}
    s_add_u32 s{sCSM}, s{sWR}, 1
    s_cmp_eq_u32 s{sT0}, s{sWC}
    s_cselect_b32 s{sCSM}, s{sCSM}, 0
    s_lshr_b32 s{sHI}, s{sCT2}, 2
    s_mov_b32 s{sOK}, 0
    """)
    for s, n in ((SX, 1 << 21), (SWG, 1835008), (SWU, 1835008), (SWD, 1835008), (SWS, 1 << 25), (SOUT, 1 << 21),
                 (SH, 4096), (SK, 1 << 21), (SV, 1 << 21), (SSH, 4096)):
        a(f"s_mov_b32 s{s+2}, {n}")
        a(f"s_mov_b32 s{s+3}, 0x20000")
    a(f"""
    v_lshrrev_b32 v20, 3, v0
    v_lshrrev_b32 v21, 4, v0
    v_and_b32 v22, 7, v0
    v_xor_b32 v23, v22, v21
    v_lshlrev_b32 v23, 4, v23
    v_lshl_add_u32 v{vX0}, v20, 12, v23
    v_xor_b32 v{vX1}, 64, v{vX0}
    v_add_u32 v{vX1}, 31744, v{vX1}
    v_bfe_u32 v24, v0, 2, 2
    v_and_b32 v25, 3, v0
    v_xor_b32 v23, v24, v21
    v_lshlrev_b32 v23, 6, v23
    v_lshl_add_u32 v23, v25, 4, v23
    v_mul_u32_u24 v{vW0}, 3584, v21
    v_add_u32 v{vW0}, v{vW0}, v23
    v_add_u32 v{vW1}, 13312, v{vW0}
    v_lshlrev_b32 v{vL16}, 4, v0
    s_lshl_b32 s{sT2}, s{sCP}, 1
    s_add_u32 s{sT2}, s{sT2}, s{sB}
    s_lshl_b32 s{sT2}, s{sT2}, 12
    s_lshl_b32 s{sT3}, s{sCP}, 2
    s_waitcnt lgkmcnt(0)
    s_mov_b64 {sr(SX,2)}, s[72:73]
    s_mov_b64 {sr(SWG,2)}, s[86:87]
    s_mov_b64 {sr(SWU,2)}, s[88:89]
    s_mov_b64 {sr(SK,2)}, s[74:75]
    s_mov_b64 {sr(SV,2)}, s[76:77]
    {f"s_add_u32 s{SWS}, s96, {oi('wso', 0) << 20}" if oi('wso', 0) else f"s_mov_b64 {sr(SWS,2)}, s[96:97]"}
    {f"s_addc_u32 s{SWS+1}, s97, 0" if oi('wso', 0) else ""}
    s_mov_b64 {sr(SSH,2)}, s[78:79]
    s_mov_b64 {sr(SWD,2)}, s[90:91]
    s_mov_b64 {sr(SOUT,2)}, s[92:93]
    s_add_u32 s{SH}, s80, s{sT2}
    s_addc_u32 s{SH+1}, s81, 0
    s_load_dword s{sD}, s[82:83], s{sT3}
    """)
    H1 = "h1" in opt
    if H1: a(f"""
    s_lshl_b32 s{sT3}, s{sC}, 10
    s_max_u32 s{sT3}, s{sT3}, 4
    s_add_u32 s{sT2}, s{sT2}, s{sT3}
    s_sub_u32 s{sT2}, s{sT2}, 4
    s_load_dword s{sOK}, s[80:81], s{sT2}
    """)
    if prof: a("s_nop 4")
    stamp("start")
    SCN = ([o[3:].split(",") for o in opt if o.startswith("sc=")] + [[]])[0] if prof else []
    stamps += ["n_" + x for x in SCN]
    sc_init = [f"s_mov_b32 s{PROFS[1 + i]}, 0" for i in range(len(SCN))]

    NTX = " nt" if "ntx" in opt else ""
    NTW = " nt" if "ntw" in opt else ""
    NTK = " nt" if "ntk" in opt else ""
    NTH = " nt" if "nth" in opt else ""
    NTE = " nt" if "nte" in opt else ""
    NTF = " nt" if "ntf" in opt else ""
    for o in opt:
        if o.startswith("cp="): NTX = NTW = " " + o[3:].replace("_", " ")
        if o.startswith("ck="): NTK = " " + o[3:].replace("_", " ")
    NTX0, NTW0 = NTX, NTW
    def chunk_dma(c):
        st = (c % 3) * STAGE
        NTX = [" " + o.split("=")[0][2:].replace("_", " ") for o in opt if re.match(r"Nx\w+=", o) and str(c) in o.split("=")[1]] + [NTX0]
        NTW = [" " + o.split("=")[0][2:].replace("_", " ") for o in opt if re.match(r"Nw\w+=", o) and str(c) in o.split("=")[1]] + [NTW0]
        NTX, NTW = NTX[0], NTW[0]
        return [
            [f"s_xor_b32 s{sT0}, s{sKEY}, {c}",
             f"s_mul_i32 s{sT1}, s{sT0}, 229376", f"s_add_u32 s{sT1}, s{sT1}, s{sWB}",
             f"s_lshl_b32 s{sT0}, s{sT0}, 7", f"s_add_u32 m0, s{sM0X}, {st}", f"s_add_u32 s{sT0}, s{sT0}, s{sXB}",
             I(f"buffer_load_dwordx4 v{vX0}, {sr(SX,4)}, s{sT0} offen{NTX} lds", vm=f"c{c}")],
            I(f"buffer_load_dwordx4 v{vX1}, {sr(SX,4)}, s{sT0} offen offset:1024{NTX} lds", vm=f"c{c}"),
            [f"s_add_u32 m0, s{sM0X}, {st + 16384}",
             I(f"buffer_load_dwordx4 v{vW0}, {sr(SWG,4)}, s{sT1} offen{NTW} lds", vm=f"c{c}")],
            I(f"buffer_load_dwordx4 v{vW1}, {sr(SWG,4)}, s{sT1} offen offset:1024{NTW} lds", vm=f"c{c}"),
            [f"s_add_u32 m0, s{sM0X}, {st + 32768}",
             I(f"buffer_load_dwordx4 v{vW0}, {sr(SWU,4)}, s{sT1} offen{NTW} lds", vm=f"c{c}")],
            I(f"buffer_load_dwordx4 v{vW1}, {sr(SWU,4)}, s{sT1} offen offset:1024{NTW} lds", vm=f"c{c}"),
        ]
    def prefetch(c):
        g = oi("pg", 7); sh = 7 - g; t = 150
        o = L(f"""
        v_lshrrev_b32 v{t}, {sh}, v0
        v_lshlrev_b32 v{t}, 12, v{t}
        v_lshrrev_b32 v{t+1}, {sh + 1}, v0
        v_mul_u32_u24 v{t+1}, 3584, v{t+1}
        v_and_b32 v{t+2}, {(2 << sh) - 1}, v0
        v_lshl_add_u32 v{t+1}, v{t+2}, {g}, v{t+1}
        """)
        if sh: o += [f"v_and_b32 v{t+2}, {(1 << sh) - 1}, v0", f"v_lshl_add_u32 v{t}, v{t+2}, {g}, v{t}"]
        o += L(f"""
        s_xor_b32 s{sT2}, s{sKEY}, {c}
        s_mul_i32 s{sT3}, s{sT2}, 229376
        s_add_u32 s{sT3}, s{sT3}, s{sWB}
        s_lshl_b32 s{sT2}, s{sT2}, 7
        s_add_u32 s{sT2}, s{sT2}, s{sXB}
        s_mov_b32 exec_hi, 0
        """)
        if not sh: o += ["s_mov_b32 exec_lo, 0xffff"]
        PW = os0("pv=", "gux")
        if "g" in PW: o += [I(f"buffer_load_dword v{t+2}, v{t+1}, {sr(SWG,4)}, s{sT3} offen", vm="pf")]
        if "u" in PW: o += [I(f"buffer_load_dword v{t+3}, v{t+1}, {sr(SWU,4)}, s{sT3} offen", vm="pf")]
        if "x" in PW: o += [I(f"buffer_load_dword v{t+4}, v{t}, {sr(SX,4)}, s{sT2} offen", vm="pf")]
        return o + ["s_mov_b64 exec, -1"]
    def os0(k, d=""): return ([o[len(k):] for o in opt if o.startswith(k)] + [d])[0]
    PF = os0("pf=")
    XR, S1, S2 = 200, 204, 205
    def row_load():
        return [I(f"buffer_load_dword v{vTAG}, off, {sr(SWS,4)}, 0 offset:{WS_EPOCH} sc1", vm="ep"),
                [f"s_lshl_b32 s{sA}, s{sRT2}, 3", f"s_add_u32 s{sA}, s{sA}, s{sISG}", f"s_lshl_b32 s{sA}, s{sA}, 3",
                 f"s_add_u32 s{sA}, s{sA}, s{sW}", f"s_lshl_b32 s{sT2}, s{sA}, 10",
                 I(f"buffer_load_dwordx4 {vr(XR,4)}, v{vL16}, {sr(SX,4)}, s{sT2} offen" + (" nt" if "ntr" in opt else ""), vm="ep")]]
    tag_math = L(f"""
        v_add_u32 v{vTAG}, 1, v{vTAG}
        v_and_b32 v{vTAG}, 0x0fff3fff, v{vTAG}
        v_or_b32 v{vTAG}, 0x20000000, v{vTAG}
        s_mov_b32 s{sB}, 0x3f803f80
        v_readfirstlane_b32 s{sTAG}, v{vTAG}
        """)
    def row_math():
        o = []
        for d in range(4):
            o += [f"v_dot2_f32_bf16 v{S1}, v{XR+d}, s{sB}, {'0' if d == 0 else f'v{S1}'}",
                  f"v_dot2_f32_bf16 v{S2}, v{XR+d}, v{XR+d}, {'0' if d == 0 else f'v{S2}'}"]
        o += [f"v_mov_b32 v{XR+1}, v{vTAG}", f"v_permlane32_swap_b32 v{S1}, v{S2}", f"v_add_f32 v{S1}, v{S1}, v{S2}"]
        o += [f"v_add_f32_dpp v{S1}, v{S1}, v{S1} {d} row_mask:0xf bank_mask:0xf"
              for d in ("quad_perm:[1,0,3,2]", "quad_perm:[2,3,0,1]", "row_half_mirror", "row_mirror")]
        o += [f"v_add_f32_dpp v{S1}, v{S1}, v{S1} row_bcast:15 row_mask:0xa bank_mask:0xf"]
        o += L(f"""
        v_mul_f32 v{S1}, {fx(1/512)}, v{S1}
        v_readlane_b32 s{sB}, v{S1}, 31
        v_readlane_b32 s{sC}, v{S1}, 63
        v_mul_f32 v{S1}, s{sB}, s{sB}
        v_sub_f32 v{S1}, s{sC}, v{S1}
        v_max_f32 v{S1}, 0, v{S1}
        v_cvt_pk_bf16_f32 v{S1}, v{S1}, v{S1}
        v_lshlrev_b32 v{S1}, 16, v{S1}
        v_add_f32 v{S1}, {fx(1e-5)}, v{S1}
        v_cvt_pk_bf16_f32 v{S1}, v{S1}, v{S1}
        v_lshlrev_b32 v{S1}, 16, v{S1}
        v_sqrt_f32 v{S1}, v{S1}
        s_lshl_b32 s{sA}, s{sA}, 3
        v_cvt_pk_bf16_f32 v{XR}, v{S1}, -s{sB}
        s_add_u32 s{sA}, s{sA}, {WS_RS}
        """)
        if "nors" not in opt: o += [one(f"buffer_store_dwordx2 {vr(XR,2)}, off, {sr(SWS,4)}, s{sA} sc1", vm="rs", wvm="wps")]
        return o
    def h_load(t):
        return [[f"s_and_b32 s{sT2}, s{sW}, 3", f"s_lshl_b32 s{sT2}, s{sT2}, 10",
                 I(f"buffer_load_dwordx4 {vr(vHE,4)}, v{vL16}, {sr(SH,4)}, s{sT2} offen{NTE}", vm="hl")],
                [f"s_and_b32 s{sT2}, s{sW}, 3", f"s_lshl_b32 s{sT2}, s{sT2}, 10",
                 f"s_sub_u32 s{sT2}, s{sT2}, 4", f"v_add_u32 v{t}, s{sT2}, v{vL16}",
                 I(f"buffer_load_dword v{vHP}, v{t}, {sr(SH,4)}, 0 offen{NTF}", vm="hl")]][:1 if H1 else 2]
    vZ4 = vHE + 12
    h_al = [f"v_alignbit_b32 v{vHO_+d}, v{vHE+d}, v{vHE+d-1 if d else vHP}, 16" for d in range(4)]
    h_z = [f"v_mov_b32 v{vZ4+d}, 0" for d in range(4)]
    h_math = (([[f"s_and_b32 s{sT2}, s{sW}, 3", f"s_cselect_b32 s{sT2}, s{sOK}, 0", f"v_mov_b32 v{vHP}, s{sT2}"], I(h_al[1], wvm="hl")] + h_al[2:] +
               [f"v_mov_b32_dpp v{vHP}, v{vHE+3} wave_shr:1 row_mask:0xf bank_mask:0xf"] + h_z + h_al[:1]
               if H1 else [I(h_al[0], wvm="hl")] + h_al[1:] + h_z) + [L(f"""
        s_lshr_b32 s{sT2}, s{sW}, 2
        s_mul_i32 s{sT2}, s{sT2}, {CVCH}
        s_add_u32 s{sT2}, s{sT2}, {L_CV}
        v_min_u32 v{vHP+1}, 35, v0
        v_lshlrev_b32 v{vHP+1}, 4, v{vHP+1}
        v_lshrrev_b32 v{vHP}, 5, v0
        v_lshl_add_u32 v{vHP+1}, v{vHP}, 12, v{vHP+1}
        v_add_u32 v{vHP+1}, s{sT2}, v{vHP+1}
        s_and_b32 s{sT3}, s{sW}, 3
        s_lshl_b32 s{sT3}, s{sT3}, 10
        s_add_u32 s{sT2}, s{sT2}, s{sT3}
        v_add_u32 v{vHP}, s{sT2}, v{vL16}
        """)])
    h_write = [I(f"ds_write_b128 v{vHP}, {vr(vHE,4)} offset:4608", lg="hw"),
               I(f"ds_write_b128 v{vHP}, {vr(vHO_,4)} offset:{4608+4160}", lg="hw"),
               I(f"ds_write_b128 v{vHP+1}, {vr(vZ4,4)} offset:4096", lg="hw")]
    vFL, vFA = 18, 19
    def wf_addr_(sE, vFA, vFL): return L(f"""
        s_lshl_b32 s{sT2}, s{sCT2}, 3
        s_add_u32 s{sT2}, s{sT2}, s{sW}
        s_and_b32 s{sE}, s{sCT2}, 6
        s_lshl_b32 s{sE}, s{sE}, 1
        s_add_u32 s{sE}, s{sE}, s{sWC}
        s_lshl_b32 s{sE}, s{sE}, 1
        s_and_b32 s{sT3}, s{sCT2}, 1
        s_add_u32 s{sE}, s{sE}, s{sT3}
        s_lshl_b32 s{sE}, s{sE}, 4
        s_add_u32 s{sE}, s{sE}, s{sWR}
        s_lshl_b32 s{sE}, s{sE}, 5
        s_add_u32 s{sE}, s{sE}, {WS_RS + 64 + 4 + (16384 if oi("rl", -1) >= 0 else 0)}
        s_mul_i32 s{sT2}, s{sT2}, 28672
        s_mul_i32 s{sT3}, s{sHI}, 12288
        s_add_u32 s{sT2}, s{sT2}, s{sT3}
        s_add_u32 s{sT2}, s{sT2}, {WS_WT}
        s_lshl_b32 s{sT3}, s{sRBL}, 10
        s_add_u32 s{sMO}, s{sT2}, s{sT3}
        s_xor_b32 s{sMO+1}, s{sMO}, 1024
        s_xor_b32 s{sMO+2}, s{sMO}, 2048
        s_xor_b32 s{sMO+3}, s{sMO}, 3072
        v_min_u32 v{vFA}, 27, v0
        v_and_b32 v{vFL}, 28, v{vFA}
        v_add_u32 v{vFA}, v{vFA}, v{vFL}
        v_lshlrev_b32 v{vFA}, 3, v{vFA}
        """)
    wf_addr = wf_addr_(sE, vFA, vFL)
    wf_ld = f"buffer_load_dword v{vFL}, v{vFA}, {sr(SWS,4)}, s{sE} offen sc1"
    def wd_loads():
        o = []
        for i in range(28):
            ks, mt = divmod(i, 4)
            g = []
            if i == 16:
                g += [f"s_mul_i32 s{sT3}, s{sHI}, 28672"] + [f"s_sub_u32 s{sMO+m}, s{sMO+m}, s{sT3}" for m in range(4)]
            g += [f"s_add_u32 s{sT3}, s{sMO+mt}, {4096*ks}",
                  I(f"buffer_load_dwordx4 {vr(WDF(i),4)}, v{vL16}, {sr(SWS,4)}, s{sT3} offen sc1" if i < oi("wx", 99) else
                    f"buffer_load_dword {vr(WDF(i),1)}, off, {sr(SWS,4)}, s{sT3} sc1", vm=f"wd{ks}")]
            o.append(g)
        return o
    vKA, vKL = 29, 30
    kf_addr = [f"v_and_b32 v{vKA}, 31, v0", f"v_lshlrev_b32 v{vKA}, 2, v{vKA}", f"s_lshl_b32 s{sC}, s{sXCD}, 7",
               f"s_add_u32 s{sC}, s{sC}, {WS_FKV}"]
    kf_ld = f"buffer_load_dword v{vKL}, v{vKA}, {sr(SWS,4)}, s{sC} offen sc1"
    def r_dma(t):
        return L(f"""
        s_lshr_b32 s{sT2}, s{sW}, 2
        s_mul_i32 s{sT3}, s{sT2}, {CVCH - 4096}
        s_lshl_b32 s{sT2}, s{sT2}, 4
        v_lshl_add_u32 v{t}, v0, 5, s{sT2}
        s_lshl_b32 s{sT2}, s{sW}, 10
        s_add_u32 s{sT3}, s{sT3}, s{sT2}
        s_add_u32 m0, s{sT3}, {L_CV}
        s_and_b32 s{sT2}, s{sM0X}, 0x1800
        s_lshl_b32 s{sT3}, s{sCP}, 13
        s_add_u32 s{sT2}, s{sT2}, s{sT3}
        s_add_u32 s{sT2}, s{sT2}, {WS_KV}
        """) + [I(f"buffer_load_dwordx4 v{t}, {sr(SWS,4)}, s{sT2} offen sc1 lds", vm="R")]

    WL = wd_loads()
    wsched = {17: 1, 18: 1, 19: 1, 21: 1, 22: 1, 23: 1, 24: 1, 25: 2, 26: 2, 27: 2, 29: 1, 30: 2, 31: 2}
    wsched = {k: n for k, n in wsched.items() if k >= oi("pw", 20) + 3}
    for o in opt:
        if o.startswith("ws="): wsched = {32 - len(o[3:]) + i: int(ch) for i, ch in enumerate(o[3:])}
    assert min(k for k, n in wsched.items() if n) >= oi("pw", 20) + oi("pd", 3)
    wepi = [int(x) for x in str(oi("we", 3320)).zfill(4)]
    NPRE = sum(wsched.values()) + sum(wepi)
    vq_pro = list(a.vq)
    a(f"s_cmp_eq_u32 s{sISG}, 0\ns_cbranch_scc1 {AUX}")
    if "nogemm" in opt: a(f"s_branch {END}")
    SP, SPS = oi("sp", 0), oi("ss", 64)
    h_pre = [f"s_and_b32 s{sT2}, s{sW}, 3", f"s_lshl_b32 s{sT2}, s{sT2}, 10"] + [
        f"s_buffer_load_dword s{sCNT}, {sr(SH,4)}, s{sT2} offset:{o}" for o in range(0, 1024, SPS)]
    if SP == 1: a(h_pre)
    TF = os0("tf=")
    def touch():
        o = ["s_mov_b64 exec, 1"]
        if "d" in TF: o += [f"s_mul_i32 s{sT2}, s{sCB}, 131072", I(f"buffer_load_dword v160, off, {sr(SWD,4)}, s{sT2}", vm="tf")]
        if "h" in TF: o += [I(f"buffer_load_dword v161, off, {sr(SH,4)}, 0", vm="tf")]
        if "e" in TF: o += [I(f"buffer_load_dword v162, off, {sr(SWS,4)}, 0 offset:128 sc1", vm="tf")]
        if "w" in TF: o += [f"s_mov_b32 s{sT2}, {WS_WT - 128}", I(f"buffer_load_dword v163, off, {sr(SWS,4)}, s{sT2} sc1", vm="tf"),
                            f"s_mov_b32 s{sT2}, {WS_YT - 128}", I(f"buffer_load_dword v164, off, {sr(SWS,4)}, s{sT2} sc1", vm="tf")]
        o += ["s_mov_b64 exec, -1"]
        if "0" in TF: return [f"s_cmp_lg_u32 s{sW}, 0", "s_cbranch_scc1 L_notf"] + [x.text if isinstance(x, I) else x for x in o] + ["L_notf:"]
        return o
    if "B" in TF: a(touch())
    a(chunk_dma(0))
    stamp("K2")
    WU, WQ = oi("wu", -1), oi("wq", 0)
    W8 = "w8" in opt or "wm" in opt
    def warm():
        if "wo4" in opt: a(f"s_cmp_ge_u32 s{sW}, 4\ns_cbranch_scc1 L_wux")
        if "wy4" in opt: a(f"s_cmp_lt_u32 s{sW}, 4\ns_cbranch_scc1 L_wux")
        if "wz" in opt:
            for i in range(16): a(f"v_mov_b32 v{FR+16+i}, 0")
        elif "wa" in opt:
            for i in range(8 if "w8" in opt else 16): a(f"v_xor_b32 v{FR+16+i}, {0x3f5a3e97 + 0x00130029 * i}, v{(vX0, vX1, vW0, vW1)[i & 3]}")
        elif "wm" in opt:
            a(f"v_mul_u32_u24 v{FR+16}, 0x9e3779, v0\nv_and_b32 v{FR+16}, 0x807f807f, v{FR+16}\nv_or_b32 v{FR+16}, 0x3f003f00, v{FR+16}")
            for i in range(1, 8): a(f"v_xor_b32 v{FR+16+i}, {hex((0x9e3779b1 * (i + 3) >> 3) & 0x807f807f)}, v{FR+16+i-1}")
        else:
            a(f"s_mov_b32 s{sT2}, 0x807f807f\ns_mov_b32 s{sT3}, 0x3f003f00\nv_mov_b32 v180, 0x9e3779b1\nv_add_u32 v181, 0x1234567, v{vW0}")
            for i in range(16):
                a(f"v_mul_lo_u32 v181, v181, v180\nv_alignbit_b32 v181, v181, v181, 13\nv_and_b32 v{FR+16+i}, s{sT2}, v181\nv_or_b32 v{FR+16+i}, s{sT3}, v{FR+16+i}")
        wm = lambda z: [f"v_mfma_f32_32x32x16_bf16 {vr(ACC+16*i,16)}, {vr(FR+16+4*(i&1),4)}, {vr(FR+(16 if W8 else 24)+4*(i>>1),4)}, {'0' if z or 'w0c' in opt else vr(ACC+16*i,16)}" for i in range(4)]
        if "wv" not in opt and "w0c" not in opt: a(wm(True)[:oi("wn", 4)])
        if WU:
            a(f"s_mov_b32 s{sT2}, {WU}\nL_wu:")
            if "wv" in opt:
                for i in range(64): a(f"v_fma_f32 v{ACC+i}, v{FR+16+(i&15)}, v{FR+16+((i*7+3)&15)}, v{ACC+i}")
            else:
                for m_ in wm(False)[:oi('wn', 4)]: a([m_] + ([f"s_nop {oi('wg', 0)}"] if oi("wg", 0) else []))
            if oi("wad", 0): a(f"s_getreg_b32 s{sT3}, hwreg(HW_REG_IB_STS, 0, 4)\ns_cmp_lt_u32 s{sT3}, {oi('wad', 0)}\ns_cbranch_scc1 L_wux")
            a(f"s_sub_u32 s{sT2}, s{sT2}, 1\ns_cmp_lg_u32 s{sT2}, 0\ns_cbranch_scc1 L_wu")
        a("L_wux:")
        stamp("K3")
    if WU >= 0 and WQ == 0: warm()
    if "A" in TF: a(touch())
    if PF == "a": a(prefetch(4))
    if SP == 2: a(h_pre)
    WP, vWPA, vWPS, vWPL, CSA, CS1 = 208, 212, 213, 214, 240, 236
    sWPS, sWPF, sWPM = SSH, SSH + 1, SSH + 3
    a(f"""
    v_and_b32 v23, 3, v20
    v_lshrrev_b32 v26, 5, v0
    v_lshl_add_u32 v23, v26, 3, v23
    v_lshlrev_b32 v26, 4, v22
    v_lshl_add_u32 v{vWPL}, v23, 10, v26
    s_mov_b32 s{sE}, s{sXCD}
    s_lshl_b32 s{sT2}, s{sRBL}, 1
    s_add_u32 s{sT2}, s{sT2}, s{sB}
    s_mul_i32 s{sT3}, s{sT2}, 7
    s_add_u32 s{sT3}, s{sT3}, s{sCT2}
    s_mul_i32 s{sWPS}, s{sE}, 56
    s_add_u32 s{sWPS}, s{sWPS}, s{sT3}
    s_lshl_b32 s{sWPS}, s{sWPS}, 12
    s_lshl_b32 s{sT1}, s{sC}, 8
    s_add_u32 s{sWPS}, s{sWPS}, s{sT1}
    s_add_u32 s{sWPS}, s{sWPS}, {WS_WT}
    s_lshl_b32 s{sT3}, s{sT3}, 15
    s_lshl_b32 s{sT1}, s{sWR}, 12
    s_add_u32 s{sT3}, s{sT3}, s{sT1}
    s_lshl_b32 s{sT1}, s{sWC}, 14
    s_and_b32 s{sT1}, s{sT1}, 0x4000
    s_add_u32 s{sT3}, s{sT3}, s{sT1}
    s_lshl_b32 s{sT1}, s{sE}, 7
    s_add_u32 s{sWPF}, s{sT3}, s{sT1}
    s_lshl_b32 s{sT2}, s{sW}, 10
    s_add_u32 s{sWPM}, s{sT2}, {L_WP}
    s_barrier
    """)
    wp_load = [f"s_mov_b32 m0, s{sWPM}", I(f"buffer_load_dwordx4 v{vWPL}, {sr(SWD,4)}, s{sWPF} offen{NTH} lds", vm="wpl")]
    SWL, SWR, SRS, SPW, SHL, SPF, SRL = oi("wl", -1), oi("wr", 4), oi("rs", 11), oi("pw", 20), oi("hl", 9), oi("pf", 0), oi("rl", -1)
    SKF, SRD = oi("kf", 28), oi("rd", 32)
    XE = oi("xe", 28)
    assert XE >= 27 or ("hr" in opt and XE >= 22)
    BI = "bi" in opt
    if WU >= 0 and WQ == 1: warm()
    if SWL < 0: a(wp_load)
    a(f"""
    v_lshlrev_b32 v23, 7, v24
    v_lshl_add_u32 v23, v21, 5, v23
    v_lshl_add_u32 v23, v25, 3, v23
    v_add_u32 v{vWPA}, s{sWPM}, v23
    """)
    C1E = oi("c1e", 2)
    if SRL >= 0: a(row_load()[0]); a(row_load()[1][:4])
    elif "rowl" not in opt: a(row_load())
    if SHL == -3: a(h_load(27))
    if PF == "b": a(prefetch(4))
    a(chunk_dma(1)[:C1E])
    if PF == "c": a(prefetch(4))
    if SHL == -4: a(h_load(27))
    if "th" in opt: a(I(f"buffer_load_dword v{vHP}, off, {sr(SH,4)}, 0", vm="th"))
    a(f"""
    v_and_b32 v23, 15, v0
    v_lshlrev_b32 v23, 4, v23
    v_lshl_add_u32 v{vWPS}, v21, 10, v23
    v_and_b32 v24, 31, v0
    v_lshrrev_b32 v25, 5, v0
    v_bfe_u32 v22, v0, 1, 3
    v_xor_b32 v22, v22, v25
    v_lshlrev_b32 v22, 4, v22
    v_lshl_add_u32 v22, v24, 7, v22
    s_lshl_b32 s{sT0}, s{sWR}, 13
    v_add_u32 v{vXB}, s{sT0}, v22
    v_xor_b32 v{vXB+1}, 32, v{vXB}
    v_xor_b32 v{vXB+2}, 64, v{vXB}
    v_xor_b32 v{vXB+3}, 96, v{vXB}
    v_add_u32 v{vXB+4}, {2*STAGE}, v{vXB}
    v_add_u32 v{vXB+5}, {2*STAGE}, v{vXB+1}
    v_add_u32 v{vXB+6}, {2*STAGE}, v{vXB+2}
    v_add_u32 v{vXB+7}, {2*STAGE}, v{vXB+3}
    v_bfe_u32 v23, v0, 2, 2
    v_lshl_add_u32 v24, v25, 3, v23
    v_lshlrev_b32 v24, 8, v24
    v_xor_b32 v23, s{sWC}, v23
    v_lshl_add_u32 v24, v23, 6, v24
    v_bfe_u32 v23, v0, 4, 1
    v_lshl_add_u32 v24, v23, 5, v24
    v_and_b32 v23, 3, v0
    v_lshl_add_u32 v24, v23, 3, v24
    v_add_u32 v{vWB}, 16384, v24
    v_add_u32 v{vWB+1}, {STAGE+16384}, v24
    v_add_u32 v{vWB+2}, {2*STAGE+16384}, v24
    """)
    if "cs16" in opt:
        a(f"""
        v_lshrrev_b32 v23, 2, v0
        v_xor_b32 v23, v23, v21
        v_and_b32 v23, 1, v23
        v_add_u32 v23, -1, v23
        """)
        for d in range(4): a(f"v_and_b32 v{CS1+d}, 0x3f803f80, v23")
    else:
        for d in range(4): a(f"v_mov_b32 v{CS1+d}, 0x3f803f80")
    if "csb" in opt: a(f"s_cmp_lg_u32 s{sCSM}, 0\ns_cselect_b64 vcc, -1, 0")
    if prof and oi("mz", 0): a([f"v_mov_b32 v{180+i}, 0" for i in range(4)])
    stamp("K1")
    stamp("K0")
    a(sc_init)
    if "dmaonly" in opt:
        DD = oi("dd", 2)
        if C1E < 6: a(chunk_dma(1)[0][:4]); a(chunk_dma(1)[C1E:])
        for c in range(2, DD): a(chunk_dma(c))
        for c in range(8):
            a(I(wvm=f"c{c}"))
            if "dnb" not in opt: a("s_barrier")
            stamp(f"B{c}")
            if c + DD < 8: a(chunk_dma(c + DD))
        a("s_branch L_prof")
        opt = [o for o in opt if not o.startswith("st=")] + ["st=end"]

    def F(s): return FR + 16 * (s & 1)
    def reads(s):
        c, j = divmod(s, 4)
        st = c % 3
        xb = vXB + j + (4 if st == 2 else 0); im = STAGE if st == 1 else 0
        wb = vWB + st; wo = 4096 * j
        f = F(s); t = f"r{s}"
        return [I(f"ds_read_b64_tr_b16 {vr(f,2)}, v{wb} offset:{wo}", lg=t),
                I(f"ds_read_b64_tr_b16 {vr(f+2,2)}, v{wb} offset:{wo+1024}", lg=t),
                I(f"ds_read_b128 {vr(f+8,4)}, v{xb} offset:{im}", lg=t),
                I(f"ds_read_b64_tr_b16 {vr(f+4,2)}, v{wb} offset:{wo+16384}", lg=t),
                I(f"ds_read_b64_tr_b16 {vr(f+6,2)}, v{wb} offset:{wo+17408}", lg=t),
                I(f"ds_read_b128 {vr(f+12,4)}, v{xb} offset:{im+4096}", lg=t)]
    def mfmas(A, B, first=False, par=0):
        out = []
        for nt in range(2):
            for m in range(2):
                d = ACC + 32 * m + 16 * nt
                if "m16x" in opt:
                    for h in range(2):
                        e = d + 8 * (par & 1) + 4 * h
                        out.append(f"v_mfma_f32_16x16x32_bf16 {vr(e,4)}, {vr(A[m ^ h],4)}, {vr(B[nt],4)}, {'0' if par < 2 else vr(e,4)}")
                    continue
                out.append(f"v_mfma_f32_32x32x16_bf16 {vr(d,16)}, {vr(A[m],4)}, {vr(B[nt],4)}, {'0' if first else vr(d,16)}")
        if "snk" in opt: out = [out[0], out[1], out[3], out[2]]
        if "snb" in opt: out = [out[0], out[2], out[3], out[1]]
        if "sna" in opt: out = [out[0], out[2], out[1], out[3]]
        return out
    def cs_mfma(p):
        o = []
        sh, n = ("16x16x32", 4) if "cs16" in opt else ("32x32x16", 16)
        mm = [f"v_mfma_f32_{sh}_bf16 {vr(CSA,n)}, {vr(CS1,4)}, {vr(F(p)+4*m,4)}, {'0' if p == 0 else vr(CSA,n)}" for m in range(2)]
        if "csb" in opt:
            return [f"s_cbranch_vccz L_cs{p}_1", f"s_bitcmp1_b32 s{sCSM}, 0", f"s_cbranch_scc0 L_cs{p}_0", mm[0], f"s_branch L_cs{p}_1",
                    f"L_cs{p}_0:", mm[1], f"L_cs{p}_1:"]
        if "cs16" in opt:
            for m in range(2): o += [f"s_bitcmp1_b32 s{sCSM}, {m}", f"s_cbranch_scc0 L_cs{p}_{m}", mm[m], f"L_cs{p}_{m}:"]
            return o
        for m in range(2):
            o += [f"s_bitcmp1_b32 s{sCSM}, {m}", f"s_cbranch_scc0 L_cs{p}_{m}",
                  f"v_mfma_f32_32x32x16_bf16 {vr(CSA,16)}, {vr(CS1,4)}, {vr(F(p)+4*m,4)}, {'0' if p == 0 else vr(CSA,16)}",
                  f"L_cs{p}_{m}:"]
        return o
    sCSB = SSH + 2
    cs_store = [L(f"""
        s_lshl_b32 s{sCSB}, s{sCB}, 2
        s_add_u32 s{sCSB}, s{sCSB}, s{sWC}
        s_lshl_b32 s{sCSB}, s{sCSB}, 10
        s_add_u32 s{sCSB}, s{sCSB}, {WS_CS}
        s_cmp_eq_u32 s{sCSM}, {'s%d' % sCSM if "nocs" in opt else 0}
        s_cbranch_scc1 L_nocs
        v_cvt_pk_bf16_f32 v{CSA+1}, v{CSA}, v{CSA}
        s_mul_i32 s{sT2}, s{sWR}, 57344
        v_lshlrev_b32 v{CSA+1}, 16, v{CSA+1}
        s_lshr_b32 s{sT3}, s{sKEY}, 1
        v_sub_f32 v{CSA+1}, v{CSA}, v{CSA+1}
        s_lshl_b32 s{sT3}, s{sT3}, 3
        v_cvt_pk_bf16_f32 v{CSA}, v{CSA}, v{CSA+1}
        s_add_u32 s{sT2}, s{sT2}, s{sT3}
        v_mov_b32 v{CSA+1}, v{vTAG}
        s_add_u32 s{sT2}, s{sT2}, s{sCSB}
        v_lshlrev_b32 v{CSA+2}, 5, v0
        s_mov_b32 exec_hi, 0
        buffer_store_dwordx2 {vr(CSA,2)}, v{CSA+2}, {sr(SWS,4)}, s{sT2} offen sc1
        s_mov_b32 exec_hi, -1
        L_nocs:
        """)]
    EG, EU, ER, EB0, EB1 = 128, 132, 20, 136, 140
    ex_addr = L(f"""
        v_and_b32 v24, 31, v0
        v_lshrrev_b32 v25, 5, v0
        v_lshlrev_b32 v25, 4, v25
        v_lshl_add_u32 v{vX0}, v24, 5, v25
        v_and_b32 v24, 15, v0
        v_lshrrev_b32 v25, 4, v0
        v_lshlrev_b32 v25, 3, v25
        v_lshl_add_u32 v{vX1}, v24, 5, v25
        s_lshl_b32 s{sKEY}, s{sRB}, 1
        s_add_u32 s{sKEY}, s{sKEY}, s{sWR}
        s_lshl_b32 s{sWB}, s{sKEY}, 9
        s_add_u32 s{sWB}, s{sWB}, {WS_RS}
        s_add_u32 s{sXB}, s{sCSB}, 57344
        """)
    ex_ld = [f"buffer_load_dwordx4 {vr(EG,4)}, v{vX0}, {sr(SWS,4)}, s{sCSB} offen sc1",
             f"buffer_load_dwordx4 {vr(EU,4)}, v{vX0}, {sr(SWS,4)}, s{sXB} offen sc1",
             f"buffer_load_dwordx2 {vr(ER,2)}, v{vX1}, {sr(SWS,4)}, s{sWB} offen sc1"]
    ex_check = L(f"""
        v_min3_u32 v24, v{EG+1}, v{EG+3}, v{ER+1}
        v_max3_u32 v25, v{EG+1}, v{EG+3}, v{ER+1}
        v_min3_u32 v24, v24, v{EU+1}, v{EU+3}
        v_max3_u32 v25, v25, v{EU+1}, v{EU+3}
        v_cmp_ne_u32 vcc, s{sTAG}, v24
        v_cmp_ne_u32 s[{sT0}:{sT1}], s{sTAG}, v25
        s_or_b64 vcc, vcc, s[{sT0}:{sT1}]
        """)
    AP, BP, SS, vHO, TM = 22, 24, 26, 28, FR
    RM = row_math()
    def part(lst, i, n): return lst[len(lst) * i // n:len(lst) * (i + 1) // n]
    def os_(k, d=""): return ([o[len(k):] for o in opt if o.startswith(k)] + [d])[0]
    W = [0]
    def cum(t): return [sum(int(x) for x in t[:i]) for i in range(5)]
    def step(s, role):
        wi = W[0]
        c, j = divmod(s, 4)
        fill = []; pre = []; post = []
        if j == 0 and s < 32:
            a(I(wvm=f"c{c}", wlg="*"))
            a("s_barrier")
            stamp(f"B{c}")
            PR_ = os_(f"Rq{role}=")
            if PR_ and (c == 0 or PR_[c] != PR_[c - 1]): a(f"s_setprio {PR_[c]}")
            if "g1only" in opt and s == 20: a("s_waitcnt vmcnt(0)\ns_branch L_prof")
        if prof and os_(f"zz{s}="): a(f"s_sleep {os_(f'zz{s}=')}")
        if prof and os_(f"zy{s}="): a(f"s_cmp_lt_u32 s{sW}, 4\ns_cbranch_scc1 L_zy{s}\ns_sleep {os_(f'zy{s}=')}\nL_zy{s}:")
        DR = os_("drop=")
        if s == SWL: pre += [wp_load]
        if s == SPW: pre += [ap(wf_ld, 28, "apw", "fw")]
        if s == SKF: pre += [ap(kf_ld, 32, "apk", "kf")]
        if s == XE: pre += [I(x, vm="ex") for x in ex_ld]
        if s == 0:
            assert C1E in (0, 2, 4, 6)
            if 0 < C1E < 6: fill += [chunk_dma(1)[0][:4]]
            fill += chunk_dma(1)[C1E:]
            if "rowl" in opt: fill += row_load()
            if SHL == -5: fill += h_load(27)
        if c <= 5:
            cu = cum(os_(f"Re{role}=", "0222") if c == 0 and C1E < 6 else os_(f"Rd{role}{c}=", os_(f"Rd{role}=", "2121")))
            assert cu[4] == 6
            g = chunk_dma(c + 2)[cu[j]:cu[j + 1]]
            pm = os_(f"Rm{role}{c}=", os_(f"Rm{role}=", "0000"))[j]
            hp = os_(f"Rp{role}=", "0")
            if hp[0] != "0" and g:
                if pm == "0" and s: g = [[f"s_setprio {hp[0]}", x, "s_setprio 0"] for x in g]
                else: g = [f"s_setprio {hp[0]}"] + g + ["s_setprio 0"]
            if s == 0 or pm == "0": fill += g
            elif pm == "1": pre += g
            else: post += g
        if PF == str(s): fill += [prefetch(4)]
        IL = os_("il=", "")
        RD = reads(s) if s < 32 else []
        if IL:
            for x, t in zip(RD, "aaabbc"): x.lg += t
        if not IL or s == 0: a(RD)
        wp_rd = [I(f"ds_read_b64_tr_b16 {vr(WP,2)}, v{vWPA}", lg="wp", wvm="wpl"),
                 I(f"ds_read_b64_tr_b16 {vr(WP+2,2)}, v{vWPA} offset:512", lg="wp")]
        wp_st = I(f"buffer_store_dwordx4 {vr(WP,4)}, v{vWPS}, {sr(SWS,4)}, s{sWPS} offen sc1", vm="wps", wlg="wp")
        if s == 0:
            a(pre + fill + (wp_rd if SWR == 0 else [])); return
        p = s - 1
        v = []
        if s in (SHL, SHL + oi("hd", 2))[:1 if H1 else 2] and "h" not in DR:
            g = h_load(31)[(s - SHL) // oi("hd", 2)]
            if "hx" in opt: g[-1].text = g[-1].text.replace(sr(SH, 4), sr(SX, 4))
            if not (("1" in DR and s == SHL) or ("2" in DR and s != SHL)): fill += [g]
        if s == oi("tg", 4) and "t" not in DR: v += [I(tag_math[0], wvm="ep")] + tag_math[1:]
        if s == SWR and "w" not in DR: fill += wp_rd
        if s == SWR + 1 and "w" not in DR: fill = [wp_st] + fill if SWR == 0 else fill + [wp_st]
        RM0, RMN = oi("rm", 5), oi("rn", 5)
        if s == SRL:
            x = row_load()[1][4:]; x[-1].vm = "xr"; fill += [x]
        if SRL >= 0 and s == RM0: v += [I(f"s_mov_b32 s{sB}, 0x3f803f80", wvm="xr")]
        if SRL >= 0 and s == oi("wf", 11):
            fill += [[f"s_lshl_b32 s{sT2}, s{sA}, 3", f"s_add_u32 s{sT2}, s{sT2}, {WS_RS + 16384}"] +
                     one(f"buffer_store_dword v{vTAG}, off, {sr(SWS,4)}, s{sT2} offset:4 sc1", vm="wf", wvm="wps")]
        if RM0 <= s < RM0 + RMN and "t" not in DR: v += part(RM[:-1], s - RM0, RMN)
        if s == SRS and "r" not in DR: fill = [RM[-1]] + fill if "rsf" in opt else fill + [RM[-1]]
        if s == oi("cst", 10) and "c" not in DR: v += cs_store
        if s == 11 and "a" not in DR: v += [wf_addr]
        HM, HW = oi("hm", 21), oi("hw", 24)
        if HM <= s <= HM + 2: v += part(h_math, s - HM, 3)
        if s == SPW + oi("pd", 3): pre += [[I(wvm="fw")] + ne(vFL) + ["s_cbranch_scc0 L_fw_ok"] + spin("fw", ap(wf_ld, 28, "apw"), ne(vFL))]
        if s == 19: v += kf_addr
        if HW <= s <= HW + 2: v += [h_write[s - HW]]
        if s == XE - 1: v += ex_addr
        if s == SRD: fill = [[I(wvm="kf")] + ne(vKL) + [f"s_cselect_b32 s{sOK}, 0, 1"] +
                             ([f"s_cselect_b64 vcc, 0, -1"] + r_dma(24)[:-1] + ["s_mov_b64 exec, vcc", r_dma(24)[-1], "s_mov_b64 exec, -1"] if "mskr" in opt else r_dma(oi("rt", 24)))] + fill
        if s == 30: v += [f"v_mov_b32 v{r}, 0" for r in (EB0 + 1, EB0 + 3, EB1 + 1, EB1 + 3)] + [f"s_mov_b32 s{sB}, 0x03020302"]
        n = wsched.get(s, 0); fill += WL[wi:wi + n]; W[0] += n
        if s == 32:
            a(I(wvm="ex"))
            a(ex_check + ["s_cbranch_scc0 L_ex_ok"] + spin("ex", ex_ld, ex_check))
            v += L(f"""
            v_mov_b32 v{ER+1}, v{ER}
            v_permlane32_swap_b32 v{ER}, v{ER+1}
            v_perm_b32 v{EB0}, v{ER}, v{ER}, s{sB}
            v_perm_b32 v{EB0+2}, v{ER}, v{ER}, s{sB}
            v_perm_b32 v{EB1}, v{ER+1}, v{ER+1}, s{sB}
            v_perm_b32 v{EB1+2}, v{ER+1}, v{ER+1}, s{sB}
            v_lshlrev_b32 v{ER}, 16, v{ER}
            v_lshlrev_b32 v{ER+1}, 16, v{ER+1}
            """)
        hd = []
        if c <= 5 and os_(f"Rm{role}{c}=", os_(f"Rm{role}=", "0000"))[j] == "1": hd, pre = pre, []
        fill = pre + (mix(v, fill) if len(v) >= len(fill) else mix(fill, v)) if (v and fill) else pre + v + fill
        a(hd)
        f = F(p)
        MM = mfmas((f, f + 4), (f + 8, f + 12), p == 0, p)
        if prof and oi("my", 0) <= p < oi("mz", 0): MM = mfmas((180, 180), (180, 180) if "mzb" in opt else (f + 8, f + 12), p == 0, p)
        if IL:
            nm = len(MM)
            cu2 = lambda t: [sum(int(x) for x in t[:i]) for i in range(nm + 1)]
            rc = cu2(IL[:nm]); fc = cu2(IL[nm:2 * nm])
            assert rc[nm] == 6
            for i in range(nm):
                a(I(MM[i], wlg=f"r{p}" + ("abcc" if nm == 4 else "abbbcccc")[i]))
                a(RD[rc[i]:rc[i + 1]])
                a(fill[(len(fill) * fc[i] + fc[nm] // 2) // fc[nm]:(len(fill) * fc[i + 1] + fc[nm] // 2) // fc[nm]])
        else:
            a(I(wlg=f"r{p}"))
            NP_ = os_("np=")
            if prof and NP_ and p < len(NP_) and NP_[p] != "0": MM = [[m_] + ["s_nop 15"] * int(NP_[p]) for m_ in MM]
            a(mix(MM, fill))
        if p < 8 and "nocs" not in opt and "c" not in DR: a(cs_mfma(p))
        a(post)
        stamp(f"s{s}")
    if "split" in opt:
        a(f"s_cmp_lt_u32 s{sW}, 4\ns_cbranch_scc0 L_g1y")
        sv = (list(a.vq), list(a.lq), W[0])
        for s in range(24): step(s, "o")
        a(I(wvm="c6", wlg="*"))
        a("s_branch L_g1m")
        vo = list(a.vq)
        a("L_g1y:")
        a.vq, a.lq, W[0] = sv
        i0 = len(a.lines)
        for s in range(24): step(s, "y")
        a(I(wvm="c6", wlg="*"))
        defs = [x[:-1] for x in a.lines[i0:] if x.endswith(":")]
        for i in range(i0, len(a.lines)):
            for d in defs: a.lines[i] = re.sub(rf"\b{d}\b", d + "_y", a.lines[i])
        a("L_g1m:")
        a.vq = [tuple(set(vo + a.vq))]
        for s in range(24, 33): step(s, "o")
    else:
        for s in range(33): step(s, "o")
    wi = W[0]
    fill = []
    EO = oi("eo", 2)
    cA, cB, cS = ([lambda nt, b=b: b + nt for b in (AP, BP, SS)] if EO == 0 else
                  [lambda nt, b=b: FR + 16 + 6 * nt + b for b in (0, 2, 4)])
    for nt in range(2):
        if BI:
            fill += [f"v_rcp_f32 v{TM+nt}, v{ER+nt}"] + [f"v_mov_b32 v{cS(nt)+i}, {fx((-float(ESH), 2.0 ** -ESH)[nt])}" for i in range(2)]
            continue
        fill += [f"v_rcp_f32 v{TM+nt}, v{ER+nt}", f"v_mul_f32 v{cS(nt)}, v{ER+nt}, v{ER+nt}"]
        if EO == 2: fill += [f"v_mul_f32 v{cS(nt)+1}, v{ER+nt}, v{ER+nt}"]
    for nt in range(2):
        fill += [f"v_mul_f32 v{cA(nt)}, {fx(-KC)}, v{TM+nt}"]
        if EO == 2: fill += [f"v_mul_f32 v{cA(nt)+1}, {fx(-KC)}, v{TM+nt}"]
        fill += [f"v_mul_f32 v{TM+nt}, v{TM+nt}, v{TM+nt}",
                 f"v_mul_f32 v{TM+nt}, {fx(0.044715)}, v{TM+nt}", f"v_mul_f32 v{cB(nt)}, v{cA(nt)}, v{TM+nt}"]
        if EO == 2: fill += [f"v_mul_f32 v{cB(nt)+1}, v{cA(nt)}, v{TM+nt}"]
    sHF = SK
    fill += L(f"""
    v_bfe_u32 v{TM+8}, v0, 4, 1
    v_mul_u32_u24 v{TM+8}, 57344, v{TM+8}
    v_and_b32 v{TM+9}, 15, v0
    v_lshl_add_u32 v{TM+8}, v{TM+9}, 4, v{TM+8}
    v_lshrrev_b32 v{TM+9}, 5, v0
    v_lshl_add_u32 v{vHO}, v{TM+9}, 8, v{TM+8}
    s_mul_i32 s{sXB}, s{sKEY}, {4*56*1024}
    s_add_u32 s{sXB}, s{sXB}, s{sCSB}
    s_add_u32 s{sXB}, s{sXB}, {WS_H - WS_CS}
    s_add_u32 s{sWB}, s{sXB}, {2*56*1024}
    s_sub_u32 s{sHF}, s{sCSB}, {WS_CS}
    s_lshr_b32 s{sHF}, s{sHF}, {10 - FS}
    s_mul_i32 s{sT0}, s{sKEY}, {56 << FS}
    s_add_u32 s{sHF}, s{sHF}, s{sT0}
    s_add_u32 s{sHF}, s{sHF}, {WS_FH}
    """)
    a(mix(mfmas((EG, EU), (EB0, EB1), False, 2), fill))
    stamp("B8")
    if oi("pe", 0): a(f"s_setprio {oi('pe', 0)}")
    def epi(G, U, nt, rr, pk, plain=False):
        o = []
        t = {r: TM + 2 * i for i, r in enumerate(rr)}
        P = lambda x: vr(x, 2)
        s2 = (f"op_sel:[0,{nt},{nt}] op_sel_hi:[1,{nt},{nt}]", "op_sel_hi:[1,0,0]", "")[EO]
        AP, BP, SS = [f(nt) & ~1 for f in (cA, cB, cS)]
        if plain:
            e = [(t[r] + i, G + r + i, U + r + i) for r in rr for i in range(2)]
            o += [f"v_mul_f32 v{x}, v{g}, v{g}" for x, g, u in e]
            o += [f"v_fma_f32 v{x}, v{x}, v{BP}, v{AP}" for x, g, u in e]
            o += [f"v_mul_f32 v{x}, v{x}, v{g}" for x, g, u in e]
            o += mix([f"v_exp_f32 v{x}, v{x}" for x, g, u in e], [f"v_mul_f32 v{u}, v{u}, v{g}" for x, g, u in e])
            o += [f"v_fma_f32 v{x}, v{x}, v{SS}, v{SS}" for x, g, u in e]
            o += [f"v_rcp_f32 v{x}, v{x}" for x, g, u in e]
            o += [f"v_mul_f32 v{u}, v{u}, v{x}" for x, g, u in e]
            o += [f"v_cvt_pk_bf16_f32 v{pk+i}, v{U+r}, v{U+r+1}" for i, r in enumerate(rr)]
            return o
        o += [f"v_pk_mul_f32 {P(t[r])}, {P(G+r)}, {P(G+r)}" for r in rr]
        o += [f"v_pk_fma_f32 {P(t[r])}, {P(t[r])}, {P(BP)}, {P(AP)} {s2}" for r in rr]
        if BI:
            rr = list(rr); bt = [(rr[0], rr[1]), (rr[2], rr[3])]
            o += [f"v_pk_fma_f32 {P(t[r])}, {P(t[r])}, {P(G+r)}, {P(cS(0))}" for r in rr]
            ex = [f"v_exp_f32 v{t[r]+i}, v{t[r]+i} clamp" for r in rr for i in range(2)]
            ug = [f"v_pk_mul_f32 {P(U+r)}, {P(U+r)}, {P(G+r)}" for r in rr]
            ad = [f"v_pk_add_f32 {P(t[r])}, {P(t[r])}, {P(cS(1))}" for r in rr]
            M = [f"v_pk_mul_f32 {P(G+q)}, {P(t[p])}, {P(t[q])}" for p, q in bt]
            m = [f"v_mul_f32 v{G+p}, v{G+q}, v{G+q+1}" for p, q in bt]
            rc = [f"v_rcp_f32 v{G+p}, v{G+p}" for p, q in bt]
            cr = [f"v_pk_mul_f32 {P(U+x)}, {P(U+x)}, {P(t[y])}" for p, q in bt for x, y in ((p, q), (q, p))]
            N = [f"v_pk_mul_f32 {P(G+q)}, {P(G+q)}, {P(G+p)} op_sel:[1,0] op_sel_hi:[0,0]" for p, q in bt]
            fi = [f"v_pk_mul_f32 {P(U+x)}, {P(U+x)}, {P(G+q)}" for p, q in bt for x in (p, q)]
            cv = [f"v_cvt_pk_bf16_f32 v{pk+i}, v{U+r}, v{U+r+1}" for i, r in enumerate(rr)]
            o += [ex[0], ug[0], ex[1], ug[1], ex[2], ug[2], ex[3], ad[0], ex[4], ad[1], ug[3], ex[5], M[0], ex[6], m[0], ad[2],
                  ex[7], cr[0], rc[0], ad[3], cr[1], M[1], N[0], m[1], cr[2], rc[1], fi[0], fi[1], cr[3], N[1], cv[0], cv[1],
                  fi[2], fi[3], cv[2], cv[3]]
            return o
        o += [f"v_pk_mul_f32 {P(t[r])}, {P(t[r])}, {P(G+r)}" for r in rr]
        o += mix([f"v_exp_f32 v{t[r]+i}, v{t[r]+i}" for r in rr for i in range(2)],
                 [f"v_pk_mul_f32 {P(U+r)}, {P(U+r)}, {P(G+r)}" for r in rr])
        o += [f"v_pk_fma_f32 {P(t[r])}, {P(t[r])}, {P(SS)}, {P(SS)} {s2}" for r in rr]
        o += [f"v_rcp_f32 v{t[r]+i}, v{t[r]+i}" for r in rr for i in range(2)]
        o += [f"v_pk_mul_f32 {P(U+r)}, {P(U+r)}, {P(t[r])}" for r in rr]
        o += [f"v_cvt_pk_bf16_f32 v{pk+i}, v{U+r}, v{U+r+1}" for i, r in enumerate(rr)]
        return o
    HSP = ("sc1", "sc0 sc1", "sc1 nt", "sc0 sc1 nt", "", "nt")[oi("hsp", 0)]
    for nt in range(2):
        G = ACC + 16 * nt; U = ACC + 32 + 16 * nt
        for h in range(2):
            pk = TM + 8 + 4 * h
            seq = epi(G, U, nt, range(8 * h, 8 * h + 8, 2), pk, 2 * nt + h < oi('npl', 0))
            n = wepi[2 * nt + h]
            ex = WL[wi:wi + n]; wi += n
            q = 33 + 2 * nt + h
            if oi("hm", 21) == q: ex = ex + h_math
            if oi("hw", 24) == q: ex = ex + h_write
            if SRD == q: ex = ex + [[I(wvm="kf")] + ne(vKL) + [f"s_cselect_b32 s{sOK}, 0, 1"] + r_dma(24)]
            if SRD == q + 10: ex = [[I(wvm="kf")] + ne(vKL) + [f"s_cselect_b32 s{sOK}, 0, 1"] + r_dma(24)] + ex
            a(mix(seq, ex))
            so = sXB if nt == 0 else sWB
            a(I(f"buffer_store_dwordx4 {vr(pk,4)}, v{vHO}, {sr(SWS,4)}, s{so} offen offset:{512*h} {HSP}", vm="hs"))
            stamp(f"e{2*nt+h}")
    assert wi == NPRE
    a(f"s_branch {JOIN}")
    vq_join = list(a.vq)

    a(f"{AUX}:")
    if "noaux" in opt: a(f"s_branch {END}")
    a.vq, a.lq = list(vq_pro), []
    vKa, vKb, TP, vT, vKS, KR, KT = 1, 2, 32, 6, 10, 48, 96
    sKO, sKL = sXB, sWB
    a(row_load())
    AXL = oi("axl", 0)
    a(["s_nop 7"] * (len(SCN) > 0) + sc_init)
    if AXL & 2: a(h_load(27))
    if AXL & 1: a(I(wvm="ep")); a(tag_math); a(row_math())
    if AXL & 4: a(I(wvm="*"))
    if oi("asl", 0): a(f"s_sleep {oi('asl', 0)}")
    a(f"""
    s_xor_b32 s{sCB}, s{sXCD}, s{sW}
    v_and_b32 v23, 1, v21
    v_lshlrev_b32 v23, 1, v23
    v_xor_b32 v23, v22, v23
    v_lshlrev_b32 v23, 4, v23
    v_lshl_add_u32 v{vKa}, v20, 10, v23
    {f"v_lshlrev_b32 v{vKa}, 4, v0" if "kvlin" in opt else ""}
    v_xor_b32 v{vKb}, 64, v{vKa}
    s_lshl_b32 s{sKO}, s{sRBL}, 3
    s_add_u32 s{sKO}, s{sKO}, s{sW}
    s_mov_b32 s{sKEY}, s{sKO}
    s_lshl_b32 s{sKO}, s{sKO}, 16
    s_lshl_b32 s{sT0}, s{sCB}, {13 if "kvlin" in opt else 7}
    s_add_u32 s{sKO}, s{sKO}, s{sT0}
    s_mul_i32 s{sKL}, s{sW}, 17408
    s_mov_b32 m0, s{sKL}
    s_cmp_eq_u32 s{sKEY}, 0
    s_cbranch_scc1 L_halo0
    s_sub_u32 s{sT0}, s{sKO}, 8192
    buffer_load_dwordx4 v{vKa}, {sr(SK,4)}, s{sT0} offen lds
    s_branch L_halo1
    L_halo0:
    v_mov_b32 v40, 0
    v_mov_b32 v41, 0
    v_mov_b32 v42, 0
    v_mov_b32 v43, 0
    ds_write_b128 v{vL16}, v[40:43]
    L_halo1:
    """)
    def kv_ld(m, b, tag):
        lb = (1 + b) if m == 0 else (9 + b)
        par = (lb & 1) if m == 0 else (b & 1)
        return [f"s_add_u32 m0, s{sKL}, {1024*lb}", f"s_add_u32 s{sT0}, s{sKO}, {(1024 if 'kvlin' in opt else 8192)*b}",
                I(f"buffer_load_dwordx4 v{vKb if par else vKa}, {sr(SV if m else SK,4)}, s{sT0} offen{NTK} lds", vm=tag)]
    for b in range(4): a(kv_ld(0, b, "k0")); a(kv_ld(1, b, "k0"))
    a(f"""
    v_and_b32 v23, 15, v0
    v_lshlrev_b32 v26, 3, v23
    s_lshl_b32 s{sT1}, s{sCB}, 9
    """)
    for cg in range(4):
        a(I(f"buffer_load_dwordx2 {vr(TP+2*cg,2)}, v26, {sr(SSH,4)}, s{sT1} offen offset:{128*cg}", vm="k0"))
    for b in range(4, 8): a(kv_ld(0, b, "k1")); a(kv_ld(1, b, "k1"))
    if not AXL & 2: a(h_load(27))
    stamp("iss", 4)
    a(f"""
    v_lshlrev_b32 v26, 7, v24
    v_lshl_add_u32 v26, v21, 10, v26
    v_lshl_add_u32 v26, v25, 3, v26
    v_lshrrev_b32 v27, 1, v24
    v_lshl_add_u32 v26, v27, 5, v26
    v_and_b32 v27, 1, v21
    v_lshl_add_u32 v26, v27, 6, v26
    v_add_u32 v{vT}, s{sKL}, v26
    v_xor_b32 v{vT+1}, 32, v{vT}
    v_xor_b32 v{vT+2}, 64, v{vT}
    v_xor_b32 v{vT+3}, 96, v{vT}
    v_lshrrev_b32 v26, 1, v23
    v_lshlrev_b32 v26, 13, v26
    v_and_b32 v27, 1, v0
    v_lshl_add_u32 v26, v27, 4, v26
    v_sub_u32 v27, 3, v21
    v_lshl_add_u32 v{vKS}, v27, 5, v26
    s_lshl_b32 s{sKO}, s{sCB}, 18
    s_lshl_b32 s{sT0}, s{sKEY}, 8
    s_sub_u32 s{sKO}, s{sKO}, s{sT0}
    s_add_u32 s{sKO}, s{sKO}, {WS_KV + 8192 - 256}
    """)
    if not AXL & 1: a(I(wvm="ep")); a(tag_math); a(row_math())
    stamp("rs", 1)
    def kv_read(hh, cg):
        r = KR + 10 * cg; t = f"kr{cg}"
        return [I(f"ds_read_b64_tr_b16 {vr(r,2)}, v{vT+cg} offset:{4096*hh+512}", lg=t),
                I(f"ds_read_b64_tr_b16 {vr(r+2,2)}, v{vT+(cg^2)} offset:{4096*hh+1024}", lg=t),
                I(f"ds_read_b64_tr_b16 {vr(r+4,2)}, v{vT+(cg^2)} offset:{4096*hh+1536}", lg=t),
                I(f"ds_read_b64_tr_b16 {vr(r+6,2)}, v{vT+cg} offset:{4096*hh+9216}", lg=t),
                I(f"ds_read_b64_tr_b16 {vr(r+8,2)}, v{vT+cg} offset:{4096*hh+9728}", lg=t)]
    def kv_math(hh, cg):
        r = KR + 10 * cg; q, u, w, pk = KT, KT + 8, KT + 16, KT + 24 + 4 * (cg & 1)
        o = [I(wlg=f"kr{cg}")]
        o += [f"v_alignbit_b32 v{q+i}, v{r+i}, v{r+i-1}, 16" for i in range(1, 6)]
        src = lambda t, back: (r if t & 1 else q) + 2 + t // 2 - back
        for t in (1, 3, 5, 7, 0, 2, 4, 6): o += [f"v_dot2_f32_bf16 v{u+t}, v{src(t,0)}, v{TP+2*cg}, 0"]
        for t in (1, 3, 5, 7, 0, 2, 4, 6): o += [f"v_dot2_f32_bf16 v{u+t}, v{src(t,1)}, v{TP+2*cg+1}, v{u+t}"]
        o += [f"v_and_b32 v{w+t}, 0xffff0000, v{r+6+t//2}" if t & 1 else f"v_lshlrev_b32 v{w+t}, 16, v{r+6+t//2}" for t in range(8)]
        o += [f"v_mul_f32 v{u+t}, v{u+t}, v{w+t}" for t in range(8)]
        o += [f"v_cvt_pk_bf16_f32 v{pk+e}, v{u+7-2*e}, v{u+6-2*e}" for e in range(4)]
        o += [f"s_add_u32 s{sT0}, s{sKO}, {65536*cg}",
              I(f"buffer_store_dwordx4 {vr(pk,4)}, v{vKS}, {sr(SWS,4)}, s{sT0} offen offset:{128*(1-hh)} sc1", vm="ks")]
        return o
    for hh in range(2):
        a(I(wvm=f"k{hh}", wlg="*"))
        stamp("kin", 5 + 2 * hh)
        for cg in range(4): a(kv_read(hh, cg))
        if hh == 0:
            for d in range(8): a(f"v_alignbit_b32 v{TP+d}, v{TP+d}, v{TP+d}, 16")
        for cg in range(4): a(kv_math(hh, cg))
        stamp("km", 6 + 2 * hh)
    a(h_math); a(wf_addr)
    vKA2, vKL2 = 27, 28
    ld2 = f"buffer_load_dword v{vKL2}, v{vKA2}, {sr(SWS,4)}, s{sA} offen sc1"
    a(f"""
    s_lshl_b32 s{sT0}, s{sCB}, 5
    s_add_u32 s{sT0}, s{sT0}, s{sKEY}
    s_lshl_b32 s{sT0}, s{sT0}, 2
    s_add_u32 s{sT0}, s{sT0}, {WS_FKV}
    v_lshlrev_b32 v26, 10, v0
    v_lshlrev_b32 v{vKA2}, 3, v0
    s_lshl_b32 s{sA}, s{sRT2}, 9
    s_add_u32 s{sA}, s{sA}, {WS_RS + 4}
    """)
    a([I("s_mov_b64 exec, 3", wvm="*"), f"buffer_store_dword v{vTAG}, v26, {sr(SWS,4)}, s{sT0} offen sc1", "s_mov_b64 exec, -1"])
    stamp("kvf", 2)
    if "dmaonly" in opt or "g1only" in opt: a("s_branch L_prof")
    ck2 = [f"v_xor_b32 v{vFL}, s{sTAG}, v{vFL}", f"v_xor_b32 v{vKL2}, s{sTAG}, v{vKL2}", f"v_or_b32 v{vFL}, v{vFL}, v{vKL2}",
           f"v_cmp_ne_u32 vcc, 0, v{vFL}", "s_cmp_lg_u64 vcc, 0"]
    a("s_barrier")
    a(h_write)
    a(kf_addr); a(f"s_add_u32 s{sC}, s{sC}, 1024")
    stamp("wd", 3)
    a(spin("fwa", ap(wf_ld, 28, "apx") + ap(ld2, 64, "apx"), ck2))
    a(f"""
    s_cmp_lg_u32 s2, 0
    s_cbranch_scc1 L_ep_ok
    s_add_u32 s{sT0}, s{sM0X}, {WS_RS}
    """)
    a(spin("ep", [f"buffer_load_dwordx4 v[32:35], v{vL16}, {sr(SWS,4)}, s{sT0} offen sc1",
                  f"buffer_load_dwordx4 v[36:39], v{vL16}, {sr(SWS,4)}, s{sT0} offen offset:1024 sc1"],
           [f"v_xor_b32 v{r}, s{sTAG}, v{r}" for r in (33, 35, 37, 39)] +
           ["v_or3_b32 v33, v33, v35, v37", "v_or_b32 v33, v33, v39", "v_cmp_ne_u32 vcc, 0, v33", "s_cmp_lg_u64 vcc, 0"]))
    NA = oi("na", 8)
    a(WL[:NA])
    a(spin("kva", ap(kf_ld, 32, "apx"), ne(vKL)))
    a.vq = []
    a(r_dma(24)); a(WL[NA:NPRE]); a(I(wvm="R"))
    a(f"s_branch L_kvok")

    a(f"{JOIN}:")
    a.vq, a.lq = list(vq_join), []
    stamp("join")
    if oi("pe", 0): a("s_setprio 0")
    okv = ("s%d" % sOK) if "nocv" in opt else "1"
    a(f"s_cmp_eq_u32 s{sOK}, {okv}\ns_cbranch_scc1 L_kvok")
    a(spin("kv", ap(kf_ld, 32, "apk"), ne(vKL)))
    sv = list(a.vq); a(r_dma(24)); a(I(wvm="*")); a.vq = sv
    a("L_kvok:")
    CA, AF, BF = 32, 64, 128
    vRU, vRH, vPW, vPR, vZW, vZR, vYA, vYR, vOO = 2, 3, 4, 10, 11, 12, 13, 14, 30
    vXF, XN, vRC = 20, 22, 6
    vXF = 1
    sCH, sWQ, sCVB, sRHO = SV, SV + 1, SV + 2, SV + 3
    sOQ = SSH
    a(f"""
    s_lshr_b32 s{sCH}, s{sW}, 2
    s_and_b32 s{sWQ}, s{sW}, 3
    s_mul_i32 s{sCVB}, s{sCH}, {CVCH}
    s_add_u32 s{sCVB}, s{sCVB}, {L_CV}
    s_lshl_b32 s{sT0}, s{sWQ}, 7
    s_add_u32 s{sT0}, s{sT0}, s{sCVB}
    s_add_u32 s{sT1}, s{sT0}, 480
    v_and_b32 v15, 15, v0
    v_and_b32 v16, 48, v0
    v_lshlrev_b32 v31, 5, v15
    v_sub_u32 v31, v16, v31
    v_add_u32 v{vRU}, s{sT1}, v31
    s_add_u32 s{sT1}, s{sT0}, {4608 - 28 + 4160 + 3072}
    v_and_b32 v31, 1, v0
    v_mul_u32_u24 v31, 4160, v31
    v_sub_u32 v31, v16, v31
    v_bfe_u32 v{vRH}, v0, 1, 3
    v_lshl_add_u32 v31, v{vRH}, 2, v31
    v_add_u32 v{vRH}, s{sT1}, v31
    """)
    KHF = oi("hf", 5)
    hf_st = [f"s_cmp_eq_u32 s{sISG}, 0", "s_cbranch_scc1 L_nohf", I(wvm="hs"),
             line(sHF), "L_nohf:"]
    HP = oi("hp", 0)
    if HP:
        pre = [f"s_xor_b32 s{sT0}, s{sXCD}, s{sWR}", f"s_bitcmp1_b32 s{sT0}, 0", "s_cbranch_scc1 L_nohf"]
        if HP == 1:
            pre += ["v_lshrrev_b32 v13, 4, v0", "v_mul_u32_u24 v13, 57344, v13", "v_lshl_add_u32 v13, v15, 6, v13",
                    f"buffer_load_dword v14, v13, {sr(SWS,4)}, s{sXB} offen sc1"]
        if HP == 2:
            pre += ["v_lshrrev_b32 v13, 3, v0", "v_mul_u32_u24 v13, 57344, v13", "v_and_b32 v14, 7, v0", "v_lshl_add_u32 v13, v14, 7, v13",
                    "s_mov_b32 exec_hi, 0", f"buffer_load_dword v14, v13, {sr(SWS,4)}, s{sXB} offen sc1", "s_mov_b32 exec_hi, -1"]
        hf_st = hf_st[:-1] + pre + hf_st[-1:]
    if KHF < 0: a(hf_st); stamp("hflag")
    AM = oi("am", 0)
    a(f"s_cmp_eq_u32 s{sISG}, 0")
    if AM: a(f"s_cselect_b32 s{sOK}, 0, 0xff")
    a("s_cbranch_scc1 L_nowr")
    a(I(wvm="R"))
    a("L_nowr:")
    a(I(wlg="*"))
    if "noc1" not in opt: a("s_barrier")
    stamp("c1")
    a(f"s_or_b32 s{sT0}, s2, s{sW}\ns_cbranch_scc1 L_noep")
    a(one(f"buffer_store_dword v{vTAG}, off, {sr(SWS,4)}, 0 offset:{WS_EPOCH} sc1"))
    a("L_noep:")
    order = [(0, p) for p in range(7, -1, -1)] + [(1, p) for p in range(8)]
    def uread(rr, d): return I(f"ds_read_b128 {vr(AF+32*rr+4*d,4)}, v{vRU} offset:{512*(7-d)+64*rr}", lg=f"a{rr}{d}")
    def hread(k):
        rr, p = order[k]; o = 128 * (p & 1) + 16 * rr; b = BF + 4 * (k % 4)
        g = []
        if rr == 0 and p in (5, 3, 1): g += [f"v_subrev_u32 v{vRH}, 1024, v{vRH}"]
        if rr == 1 and p in (2, 4, 6): g += [f"v_add_u32 v{vRH}, 1024, v{vRH}"]
        return g + [I(f"ds_read2_b32 {vr(b,2)}, v{vRH} offset0:{o} offset1:{o+1}", lg=f"b{k}"),
                    I(f"ds_read2_b32 {vr(b+2,2)}, v{vRH} offset0:{o+2} offset1:{o+3}", lg=f"b{k}")]
    PC, PG = os_("pc="), os_("pg=")
    if PC: a(f"s_setprio {PC[0]}")
    for k in range(3): a(hread(k)); a(uread(0, k))
    for d in range(3, 8): a(uread(0, d))
    XV = 6
    fin_addr = L(f"""
        s_and_b32 s{sRHO}, s{sCT2}, 3
        s_lshl_b32 s{sT0}, s{sRT2}, 3
        s_add_u32 s{sT0}, s{sT0}, s{sW}
        s_lshl_b32 s{sOQ}, s{sT0}, 13
        s_lshl_b32 s{sT1}, s{sCT2}, 7
        s_add_u32 s{sOQ}, s{sOQ}, s{sT1}
        s_lshl_b32 s{sT0}, s{sT0}, 6
        s_add_u32 s{sOQ+1}, s{sT0}, {WS_RS}
        v_and_b32 v31, 3, v0
        v_lshrrev_b32 v1, 5, v0
        v_lshl_add_u32 v31, v1, 2, v31
        v_and_b32 v{vOO}, 28, v0
        v_lshlrev_b32 v{vOO}, 2, v{vOO}
        v_lshl_add_u32 v{vOO}, v31, 10, v{vOO}
        v_lshlrev_b32 v1, 3, v31
        """)
    fin_ld = [I(f"buffer_load_dwordx4 {vr(XV,4)}, v{vOO}, {sr(SX,4)}, s{sOQ} offen", vm="xt"),
              I(f"buffer_load_dword v{XN+7}, v1, {sr(SWS,4)}, s{sOQ+1} offen sc1", vm="xt")]
    if "to" in opt: fin_ld = [I(f"buffer_load_dword v{XN+6}, off, {sr(SOUT,4)}, s{sOQ}", vm="xt")] + fin_ld
    vZS = 2
    def zsc(r):
        if not BI: return []
        return [f"v_mul_f32 v{vZS}, {fx(2.0 ** -ESH)}, v{r}", f"v_mul_f32 v{vZS}, v{vZS}, v{r}", f"v_mul_f32 v{r}, v{vZS}, v{r}",
                f"v_mul_f32 v{vZS}, {fx(-1.4426950408889634)}, v{vZS}"]
    def unpack(d, x): return [f"v_and_b32 v{d+e}, 0xffff0000, v{x+e//2}" if e & 1 else f"v_lshlrev_b32 v{d+e}, 16, v{x+e//2}" for e in range(8)]
    xn_math = ([I(f"v_lshlrev_b32 v20, 16, v{XN+7}", wvm="xt"), f"v_and_b32 v21, 0xffff0000, v{XN+7}", "v_rcp_f32 v20, v20"] +
               unpack(XN, XV) + [f"v_add_f32 v{XN+e}, v{XN+e}, v21" for e in range(8)] + zsc(20) +
               [f"v_mul_f32 v{XN+e}, v{XN+e}, v20" for e in range(8)])
    p_addr = L(f"""
        v_bfe_u32 v20, v0, 1, 2
        v_bfe_u32 v21, v0, 3, 1
        v_xor_b32 v20, v20, v21
        v_lshlrev_b32 v20, 4, v20
        v_xor_b32 v20, v20, v16
        v_lshl_add_u32 v20, v15, 6, v20
        s_lshl_b32 s{sT0}, s{sW}, 13
        v_add_u32 v{vPW}, s{sT0}, v20
        v_bfe_u32 v20, v0, 2, 2
        v_bfe_u32 v21, v0, 4, 1
        v_xor_b32 v20, v20, v21
        v_lshlrev_b32 v20, 4, v20
        v_lshlrev_b32 v21, 5, v0
        v_xor_b32 v20, v20, v21
        s_lshl_b32 s{sT0}, s{sCH}, 15
        s_lshl_b32 s{sT1}, s{sWQ}, 11
        s_add_u32 s{sT0}, s{sT0}, s{sT1}
        v_add_u32 v{vPR}, s{sT0}, v20
        """)
    HB, ZA, NS = 64, 32, 16
    sH1, sH2, sHQ = sXB, sWB, sKEY
    def HR(n): return HB + 4 * (n % NS if n % NS < 8 else 23 - n % NS)
    sMK = sA
    def hload(n, mask=False):
        qd, ks = divmod(n, 7)
        g = []
        if ks == 0:
            g += [f"s_xor_b32 s{sT3}, s{sRHO}, {qd}", f"s_mul_i32 s{sT3}, s{sT3}, 57344", f"s_add_u32 s{sH1}, s{sHQ}, s{sT3}",
                  f"s_sub_u32 s{sH2}, s{sH1}, s{sRB}"]
        t = I(f"buffer_load_dwordx4 {vr(HR(n),4)}, v{vL16}, {sr(SWS,4)}, s{sH1 if ks < 4 else sH2} offen offset:{(ks&3)*1024} sc1", vm=f"h{n}")
        if "hx2" in opt: return g + [f"s_mov_b64 exec, {sr(sMK,2)}" if mask else "s_nop 0", "s_mov_b32 exec_hi, 0", t, "s_mov_b64 exec, -1"]
        if "hx1" in opt: t = I(t.text.replace("dwordx4 " + vr(HR(n),4), "dword " + vr(HR(n),1)).replace(f"v{vL16},", "v15,"), vm=f"h{n}")
        return g + ([f"s_mov_b64 exec, {sr(sMK,2)}", t, "s_mov_b64 exec, -1"] if mask and "nomask" not in opt else [t])
    def again(n1):
        sv = list(a.vq)
        for n in range(n1): a(hload(n))
        a.vq = sv
    h_addr = L(f"""
        s_mul_i32 s{sHQ}, s{sRT2}, {4*56*1024}
        s_mul_i32 s{sT1}, s{sW}, 7168
        s_add_u32 s{sHQ}, s{sHQ}, s{sT1}
        s_mul_i32 s{sT1}, s{sHI}, 3072
        s_add_u32 s{sHQ}, s{sHQ}, s{sT1}
        s_add_u32 s{sHQ}, s{sHQ}, {WS_H}
        s_mul_i32 s{sRB}, s{sHI}, 7168
        s_sub_u32 s{sRB}, s{sRB}, 4096
        s_lshl_b32 s{sE}, s{sRT2}, 3
        s_add_u32 s{sE}, s{sE}, s{sW}
        s_mul_i32 s{sE}, s{sE}, {7 << FS}
        s_add_u32 s{sE}, s{sE}, {WS_FH + 4}
        v_min_u32 v{vFA}, 6, v0
        v_lshlrev_b32 v{vFA}, {FS}, v{vFA}
        """)
    KH, KR_, KA, KB = oi("kh", 8), oi("kq", 3), oi("ka", 6), oi("kb", 11)
    assert 8 <= KH <= 15 and KA < KH <= KB and KHF < KH
    PM = [o[3:].replace("_", " ") for o in opt if o.startswith("pm=")]
    def poll(at, vm=None, am=False):
        if not at:
            t = wf_ld.replace("sc1", PM[0]) if PM else wf_ld
            return [I(t, vm=vm)]
        return [f"v_mov_b32 v{vFL}, 0"] + ([f"s_mov_b32 exec_lo, s{sOK}", "s_mov_b32 exec_hi, 0"] if am else ["s_mov_b64 exec, 0xff"]) + [
                I(f"buffer_atomic_or v{vFL}, v{vFA}, {sr(SWS,4)}, s{sE} offen sc0 sc1", vm=vm), "s_mov_b64 exec, -1"]
    def ne8(at): return [f"v_cmp_ne_u32 vcc, s{sTAG}, v{vFL}", "s_and_b32 vcc_lo, vcc_lo, 0xff"] if at else ne(vFL)
    AH, AY = "aph" in opt or "apa" in opt, "apy" in opt or "apa" in opt
    hf_ld = poll(AH)
    hn = 0
    NB = oi("nb", NS); YL = [int(x) for x in os_("yl=", "0000")]; NY = NB + sum(YL); GQ = oi("gq", 2)
    assert NY <= NS
    def yl(i):
        for n in range(NB + sum(YL[:i]), NB + sum(YL[:i + 1])): a(hload(n, True))
    def pwrite(j): return I(f"ds_write_b128 v{vPW}, {vr(CA+4*j,4)} offset:{1024*j}", lg="pw")
    sYS = sCB
    if "nocv" in opt:
        a(fin_addr); a(h_addr)
        if "wtf" in opt: a(WL[NPRE:]); a(fin_ld)
        a(hf_st)
        if "bar2" in opt: a("s_barrier")
        if "wtf" not in opt: a(WL[NPRE:]); a(fin_ld)
        stamp("k1")
        a(xn_math)
        if "blind" not in opt: a(spin("hf0", [f"s_sleep {oi('sl', 0)}", hf_ld], ne8(AH)))
        stamp("k11")
        a.vq = []
        for n in range(NS): a(hload(n))
        a(f"s_mov_b32 s{sMK}, -1")
        a(I(wlg="*"))
        stamp("c3")
    else:
        for k, (rr, p) in enumerate(order):
            seq = []
            for j in range(p, 8):
                c = "0" if (rr == 0 and j == p) else vr(CA + 4 * j, 4)
                seq.append(I(f"v_mfma_f32_16x16x32_bf16 {vr(CA+4*j,4)}, {vr(BF+4*(k%4),4)}, {vr(AF+32*rr+4*(j-p),4)}, {c}",
                             wlg=[f"a{rr}{j-p}", f"b{k}"]))
            fill = []
            if k == 1: fill += [fin_addr]
            WK = os_("wk=")
            if WK:
                assert sum(int(x) for x in WK) == 28 - NPRE
                w0 = NPRE + sum(int(x) for x in WK[:k]); fill += WL[w0:w0 + int((WK + "0" * 16)[k])]
            elif 1 <= k <= 6: fill += part(WL[NPRE:], k - 1, 6)
            if k == oi("kx", 3): fill += fin_ld
            if 4 <= k <= 7: fill += [uread(1, 2 * (k - 4)), uread(1, 2 * (k - 4) + 1)]
            if k in (6, 7): fill += part(p_addr, k - 6, 2)
            if 8 <= k <= 11 and "xg" not in opt: fill += part(xn_math, k - 8, 4)
            if k >= 9: fill = fill[:2] + [pwrite(p - 1)] + fill[2:]
            if k == 2: fill += [h_addr]
            if k == KHF and "hb" not in opt: fill += [hf_st]
            if k == KA and "hb" not in opt: fill += [poll(AH, "hf", AM & 1)]
            if k == KH and "hb" in opt: a(f"s_mov_b64 {sr(sMK,2)}, -1")
            elif k == KH: a([I(wvm="hf")] + ne8(AH) + [f"s_cselect_b64 {sr(sMK,2)}, 0, -1"])
            if k == KB: fill += [[f"s_cmp_lg_u32 s{sMK}, 0", "s_cbranch_scc1 L_nof2", poll(AH, None, AM & 2), "L_nof2:"]]
            if k >= KH:
                e = min(hn + KR_, k, NB); hl = [hload(n, True) for n in range(hn, e)]; hn = max(hn, e)
                fill = mix(fill, hl) if len(fill) >= len(hl) else mix(hl, fill)
            a(mix(seq, fill))
            if k + 3 < 16: a(hread(k + 3))
            if PC and PC[k + 1] != PC[k]: a(f"s_setprio {PC[k + 1]}")
            stamp(f"k{k}")
        a(f"""
        s_lshl_b32 s{sT1}, s{sWQ}, 10
        s_sub_u32 s{sT1}, s{sCVB}, s{sT1}
        s_add_u32 s{sT1}, s{sT1}, 4080
        v_sub_u32 v20, s{sT1}, v{vL16}
        v_xor_b32 v21, 16, v{vPR}
        """)
        a(pwrite(7))
        for n in range(hn, NB): a(hload(n, True))
        a([f"s_cmp_lg_u32 s{sMK}, 0", "s_cbranch_scc1 L_hlate", "s_waitcnt vmcnt(0)"] + ne8(AH) +
          [f"s_cselect_b64 {sr(sMK,2)}, 0, -1", "s_cbranch_scc1 L_hlate"])
        again(NB)
        a("L_hlate:")
        sYS = sCB
        a(I(wlg="*"))
        a("s_barrier")
        stamp("c3")
        if "py" in opt: a("s_setprio 3")
        PR, vU, YA = 32, 128, 132
        a(I(f"ds_read_b128 {vr(vU,4)}, v20", lg="su"))
        for k in range(4):
            a(I(f"ds_read_b128 {vr(PR+8*k,4)}, v{vPR} offset:{8192*k}", lg=f"p{k}"))
            a(I(f"ds_read_b128 {vr(PR+8*k+4,4)}, v21 offset:{8192*k}", lg=f"p{k}"))
        a(f"""
        s_lshl_b32 s{sT1}, s{sCH}, 4
        s_lshr_b32 s{sD}, s{sD}, s{sT1}
        s_lshl_b32 s{sD}, s{sD}, 16
        s_lshl_b32 s{sT1}, s{sCP}, 13
        s_lshl_b32 s{sT3}, s{sW}, 10
        s_add_u32 s{sT1}, s{sT1}, s{sT3}
        s_add_u32 s{sT1}, s{sT1}, {WS_YT}
        s_lshl_b32 s{sYS}, s{sWQ}, 9
        s_lshl_b32 s{sT3}, s{sCP}, 1
        s_add_u32 s{sYS}, s{sYS}, s{sT3}
        s_add_u32 s{sYS}, s{sYS}, s{sCH}
        s_lshl_b32 s{sT3}, s{sYS}, 7
        s_and_b32 s{sT3}, s{sT3}, 0x380
        v_xor_b32 v31, s{sT3}, v{vL16}
        s_lshl_b32 s{sYS}, s{sYS}, {FS}
        s_add_u32 s{sYS}, s{sYS}, {WS_FY}
        """)
        yl(0)
        stamp("y0")
        a(I(wlg="su"))
        stamp("y1")
        for e in range(4):
            a(f"v_and_b32 v{YA+6-2*e}, 0xffff0000, v{vU+e}\nv_lshlrev_b32 v{YA+7-2*e}, 16, v{vU+e}")
        yl(1)
        a(I(wlg="p0"))
        for e in range(8): a(f"v_fma_f32 v{YA+e}, v{YA+e}, s{sD}, v{PR+e}")
        yl(2)
        a(I(wlg="p2"))
        def add8(d, x):
            if "ynp" in opt:
                for e in range(8): a(f"v_add_f32 v{d+e}, v{d+e}, v{x+e}")
            else:
                for e in range(0, 8, 2): a(f"v_pk_add_f32 {vr(d+e,2)}, {vr(d+e,2)}, {vr(x+e,2)}")
        add8(PR + 8, PR + 16)
        yl(3)
        a(I(wlg="p3"))
        stamp("y2")
        a(f"s_lshl_b32 s{sT3}, s{sW}, 2\ns_add_u32 s{sT3}, s{sT3}, {L_CNT}\nv_mov_b32 v20, s{sT3}")
        a(I(f"ds_write_b32 v20, v{vTAG}", lg="cw"))
        add8(YA, PR + 24)
        add8(YA, PR + 8)
        for e in range(4): a(f"v_cvt_pk_bf16_f32 v{vU+e}, v{YA+2*e}, v{YA+2*e+1}")
        stamp("y3")
        a(I(f"buffer_store_dwordx4 {vr(vU,4)}, v31, {sr(SWS,4)}, s{sT1} offen sc1", vm="ys"))
    stamp("ys")
    if PG or "py" in opt: a(f"s_setprio {PG[0] if PG else 0}")
    a(f"s_cmp_lg_u32 s{sMK}, 0\ns_cbranch_scc1 L_hgo")
    a(spin("hf", [hf_ld], ne8(AH)))
    stamp("hsp")
    again(NY)
    hn = NY
    a(line(sYS))
    a("L_hgo:")
    stamp("hok")
    sYA, sYF, sSEL = sMO, sE, SK
    YO = "yo" in opt
    sYW = sMO + 1 if YO else sW
    g2_addr = L(f"""
    v_lshrrev_b32 v20, 4, v0
    s_lshl_b32 s{sT1}, s{sRBL}, 2
    v_xor_b32 v21, v20, v15
    v_xor_b32 v21, s{sT1}, v21
    v_lshlrev_b32 v21, 4, v21
    v_lshl_add_u32 v21, v15, 8, v21
    s_lshl_b32 s{sT1}, s{sW}, 12
    v_add_u32 v{vZW}, s{sT1}, v21
    s_lshl_b32 s{sT1}, s{sW}, 1
    v_lshrrev_b32 v1, 5, v0
    v_add_u32 v21, s{sT1}, v1
    v_and_b32 v20, 3, v0
    v_xor_b32 v31, s{sRHO}, v20
    v_lshrrev_b32 v{vZR}, 1, v0
    v_and_b32 v{vZR}, 14, v{vZR}
    v_xor_b32 v{vZR}, v{vZR}, v21
    v_xor_b32 v{vZR}, v{vZR}, v31
    v_lshlrev_b32 v{vZR}, 4, v{vZR}
    v_lshl_add_u32 v{vZR}, v21, 8, v{vZR}
    s_mov_b32 s{sT1}, {sum((L_Z[q] >> 15) << (8 * q) for q in range(4))}
    v_lshlrev_b32 v31, 3, v31
    v_bfe_u32 v31, s{sT1}, v31, 8
    v_lshl_add_u32 v{vZR}, v31, 15, v{vZR}
    v_bfe_u32 v31, v0, 4, 1
    v_lshl_add_u32 v20, v31, 2, v20
    v_xor_b32 v21, s{sW}, v20
    v_lshlrev_b32 v21, 4, v21
    v_lshl_add_u32 v21, v1, 3, v21
    v_lshl_add_u32 v21, v20, 10, v21
    v_bfe_u32 v31, v0, 2, 2
    v_lshl_add_u32 v21, v31, 7, v21
    v_add_u32 v{vYR}, {L_Y}, v21
    v_and_b32 v21, 7, v0
    {f"s_lshl_b32 s{sYW}, s{sW}, 1" if YO else ""}
    v_xor_b32 v20, s{sYW}, v21
    v_lshlrev_b32 v20, 4, v20
    v_lshrrev_b32 v31, 3, v0
    v_lshl_add_u32 v20, v31, 12, v20
    s_and_b32 s{sT1}, s{sRT2}, 7
    v_xor_b32 v31, s{sT1}, v31
    v_lshl_add_u32 v{vYA}, v31, 7, v20
    v_lshlrev_b32 v{vFA}, {FS}, v{15 if YO else 21}
    v_lshlrev_b32 v1, 2, v21
    v_add_u32 v1, {L_CNT}, v1
    s_lshl_b32 s{sT1}, s{sCT2}, 3
    s_add_u32 s{sT1}, s{sT1}, s{sYW}
    s_lshl_b32 s{sYA}, s{sT1}, 15
    s_and_b32 s{sT0}, s{sRT2}, 24
    s_lshl_b32 s{sT0}, s{sT0}, 7
    s_add_u32 s{sYA}, s{sYA}, s{sT0}
    s_add_u32 s{sYA}, s{sYA}, {WS_YT}
    s_lshl_b32 s{sYF}, s{sT1}, {FS + 3}
    s_lshr_b32 s{sT0}, s{sRT2}, 3
    s_lshl_b32 s{sT0}, s{sT0}, {FS + 9}
    s_add_u32 s{sYF}, s{sYF}, s{sT0}
    s_add_u32 s{sYF}, s{sYF}, {WS_FY + 4}
    s_mov_b32 s{sSEL}, {fx(-1.4426950408889634)}
    s_mov_b32 s{sSEL+1}, s{sSEL}
    s_mov_b32 s{sSEL+2}, 1.0
    s_mov_b32 s{sSEL+3}, 1.0
    s_lshl_b32 s{sT0}, s{sYW}, 10
    s_add_u32 m0, s{sT0}, {L_Y}
    """)
    ZT, XF, YR, YF = 64, 128, 136, 32
    def zwrite(qd):
        hi, lo = L_Z[qd] & ~0xffff, L_Z[qd] & 0xffff
        return [[f"v_xor_b32 v20, {hi + 64*mt + 16*qd}, v{vZW}",
                 I(f"ds_write_b128 v20, {vr(ZA+16*(qd&1)+4*mt,4)} offset:{lo}", lg="zw")] for mt in range(4)]
    xn_g = ([f"v_lshlrev_b32 v16, 16, v{XN+7}", f"v_and_b32 v4, 0xffff0000, v{XN+7}", "v_rcp_f32 v16, v16"] +
            [f"v_add_f32 v{XN+e}, v{XF+e}, v4" for e in range(8)] + zsc(16) + [f"v_mul_f32 v{XN+e}, v{XN+e}, v16" for e in range(8)])
    NYF, NYP, NYC = oi("nyf", 8), oi("nyp", 16), oi("nyc", 21)
    NG, ZS = oi("ng", 6), oi("zs", 1)
    y_ld = f"buffer_load_dwordx4 v{vYA}, {sr(SWS,4)}, s{sYA} offen sc1 lds"
    if YO:
        y_ld = [y_ld, f"v_xor_b32 v{vFL}, 16, v{vYA}", "s_add_u32 m0, m0, 1024", f"s_add_u32 s{sYA}, s{sYA}, 32768",
                y_ld.replace(f"v{vYA},", f"v{vFL},")]
    def wide(x): return [[y.replace("0xff", "0xffff") if isinstance(y, str) else y for y in x]] if YO else x
    cn_ld = "ds_read_b32 v31, v1"
    cn_ck = ["v_cmp_eq_u32 vcc, 0, v31", "s_cmp_lg_u64 vcc, 0", "s_cbranch_scc0 L_cn_ok"]
    for n in range(28):
        qd, ks = divmod(n, 7)
        a(I(wvm=[f"h{n}", f"wd{ks}"]))
        if n == NYF: a(line(sYS, wvm="ys", vm="yf"))
        if n == 22:
            a([I(wlg="cn")] + cn_ck + [f"s_mov_b32 s{sCNT}, {SPIN}", "L_cn_loop:", cn_ld, "s_waitcnt lgkmcnt(0)"] + cn_ck +
              [f"s_sub_u32 s{sCNT}, s{sCNT}, 1", "s_cbranch_scc0 L_cn_loop", "L_cn_ok:"])
        if ks == 0 and qd >= 2: a(I(wlg="zw"))
        seq = []
        for mt in range(4):
            d = ZA + 16 * (qd & 1) + 4 * mt
            c = "0" if ks == 0 else vr(d, 4)
            seq.append(f"v_mfma_f32_16x16x32_bf16 {vr(d,4)}, {vr(WDF(4*ks+mt),4)}, {vr(HR(n),4)}, {c}")
        fill = []
        if qd >= 1 and 1 <= ks <= ZS: fill = part(zwrite(qd - 1), ks - 1, ZS)
        if n < NG: fill = part(g2_addr, n, NG)
        if n == 20: fill += [I(cn_ld, lg="cn")]
        if n in (12, 13): fill += part(unpack(XF, XV), n - 12, 2)
        if "xg" in opt and n in (17, 18, 19, 24, 25, 26): fill += part(xn_g, (17, 18, 19, 24, 25, 26).index(n), 6)
        if n == 27: fill += [f"v_xor_b32 v21, 16, v{vZR}"]
        if n == NYC and "yb" in opt: fill = [[f"s_mov_b32 s{sMK}, -1", I(y_ld, vm="yl")]] + fill
        elif n == NYC and YO:
            fill = [[f"s_cmp_ge_u32 s{sW}, 4", f"s_cselect_b32 s{sMK}, -1, 0", "s_cbranch_scc1 L_ylate", "s_waitcnt vmcnt(0)"] + wide(ne8(AY)) +
                    [f"s_cselect_b32 s{sMK}, 0, -1", "s_cbranch_scc1 L_ylate", y_ld, "L_ylate:"]] + fill
        elif n == NYC:
            fill = [[I(wvm="yp")] + ne8(AY) + [f"s_cselect_b32 s{sMK}, 0, -1", "s_cbranch_scc1 L_ylate", y_ld, "L_ylate:"]] + fill
        a(mix(seq, fill))
        GS = os_("gs=")
        e = min(28, n + 1 + NS, hn + (int(GS[n % len(GS)]) if GS else GQ))
        for m in range(hn, e): a(hload(m))
        hn = e
        assert hn > min(n + 1, 27) or n == 27
        if n == NYP and YO: a([I(wvm="*"), f"s_cmp_ge_u32 s{sW}, 4", "s_cbranch_scc1 L_nyp", wide(poll(AY)), "L_nyp:"])
        elif n == NYP and "yb" not in opt: a(poll(AY, "yp"))
        if PG and PG[n + 1] != PG[n]: a(f"s_setprio {PG[n + 1]}")
        stamp(f"n{n}")
    a(zwrite(3))
    stamp("g2")
    a(f"s_cmp_lg_u32 s{sMK}, 0\ns_cbranch_scc1 L_ygo")
    a(spin("yf", wide(poll(AY)), wide(ne8(AY))) + [y_ld, "L_ygo:"])
    stamp("yok")
    a(I(wvm="*", wlg="*"))
    a("s_barrier")
    stamp("bf")
    P2 = lambda x: vr(x, 2)
    a(I(f"ds_read_b64_tr_b16 {P2(YR)}, v{vYR}", lg="yr"))
    a(I(f"ds_read_b64_tr_b16 {P2(YR+2)}, v{vYR} offset:512", lg="yr"))
    def zread(k): return [I(f"ds_read_b128 {vr(ZT+8*k+4*h,4)}, v{21 if h else vZR} offset:{4096*k}", lg=f"z{k}") for h in range(2)]
    for k in range(6): a(zread(k))
    a(I(wlg="yr")); a(unpack(YF, YR))
    a(zread(6)); a(zread(7))
    for e in range(0, 8, 2): a(f"v_pk_mul_f32 {P2(XN+e)}, {P2(XN+e)}, {P2(YF+e)}")
    stamp("f0")
    for k in range(1, 8):
        a(I(wlg=f"z{k}"))
        for e in range(0, 8, 2): a(f"v_pk_add_f32 {P2(ZT+e)}, {P2(ZT+e)}, {P2(ZT+8*k+e)}")
    stamp("f1")
    for e in range(0, 8, 2): a(f"v_pk_mul_f32 {P2(YF+e)}, {P2(ZT+e)}, " + (f"{P2(vZS)} op_sel_hi:[1,0]" if BI else sr(sSEL,2)))
    a(mix([f"v_exp_f32 v{YF+e}, v{YF+e}" for e in range(8)],
          [f"v_pk_mul_f32 {P2(XN+e)}, {P2(XN+e)}, {P2(ZT+e)}" for e in range(0, 8, 2)]))
    for e in range(0, 8, 2): a(f"v_pk_add_f32 {P2(YF+e)}, {P2(YF+e)}, {sr(sSEL+2,2)}")
    for e in range(8): a(f"v_rcp_f32 v{YF+e}, v{YF+e}")
    for e in range(0, 8, 2): a(f"v_pk_fma_f32 {P2(XF+e)}, {P2(XN+e)}, {P2(YF+e)}, {P2(XF+e)}")
    for e in range(4): a(f"v_cvt_pk_bf16_f32 v{YR+e}, v{XF+2*e}, v{XF+2*e+1}")
    stamp("f2")
    a(f"buffer_store_dwordx4 {vr(YR,4)}, v{vOO}, {sr(SOUT,4)}, s{sOQ} offen sc0 sc1")
    if prof:
        stamp("st")
        if "endw" in opt: a("s_waitcnt vmcnt(0)")
        a("L_prof:")
        stamp("end")
        a(f"""
        s_waitcnt lgkmcnt(0)
        s_lshl_b32 s{sT0}, s2, 3
        s_add_u32 s{sT0}, s{sT0}, s{sW}
        s_lshl_b32 s{sT0}, s{sT0}, 6
        s_add_u32 s{sT0}, s{sT0}, {WS_PROF}
        """)
        if "dbg" in opt:
            n = len(stamps)
            a(f"s_load_dwordx2 {sr(SX,2)}, s[0:1], 88\ns_mov_b32 s{SX+2}, 256\ns_waitcnt lgkmcnt(0)\ns_mov_b64 exec, 1")
            a(f"s_not_b32 s{sT1}, s{PROFS[0]}\nv_mov_b32 v1, s{sT1}\nbuffer_atomic_umax v1, off, {sr(SX,4)}, 0")
            a(f"v_mov_b32 v2, s{PROFS[n-1]}\nbuffer_atomic_umax v2, off, {sr(SX,4)}, 0 offset:60")
            a(f"s_cmp_lt_u32 s2, 32\ns_cbranch_scc1 {END}")
            for i in range(n):
                if "avg" in opt:
                    a(f"s_sub_u32 s{sT1}, s{PROFS[i]}, s{PROFS[0]}\nv_mov_b32 v{3+i}, s{sT1}\nbuffer_atomic_add v{3+i}, off, {sr(SX,4)}, 0 offset:{4+4*i}")
                else:
                    a(f"v_mov_b32 v{3+i}, s{PROFS[i]}\nbuffer_atomic_umax v{3+i}, off, {sr(SX,4)}, 0 offset:{4+4*i}")
            a(f"s_branch {END}")
        for i in range(len(stamps)):
            a(f"v_mov_b32 v1, s{PROFS[i]}")
            a(f"buffer_store_dword v1, off, {sr(SWS,4)}, s{sT0} offset:{4*i}")
    a(f"{END}:\ns_endpgm")
    def post(b):
        import al
        if oi("al", -1) >= 0:
            b, st = al.align(b, oi("al", 0)); print(st)
        if "sh4" in opt: b = ["    s_nop 0"] + b
        print("misplaced", al.stat(b))
        return b
    txt = a.text(256, 512, 163840, post=post)
    return txt, stamps, a.nops

if __name__ == "__main__":
    txt, st, nops = gen(prof="prof" in sys.argv, opt=sys.argv[2:])
    open(sys.argv[1], "w").write(txt)
    print("lines", txt.count("\n"), "nops", nops, st)
    if st: open(sys.argv[1] + ".stamps", "w").write(" ".join(st))
```

```python
import sys, struct, re
from em import *

WS_EPOCH, WS_FKV, WS_RS, WS_CS, WS_FH, WS_FY = 0, 4096, 32768, 65536, 262144, 524288
WS_KV, WS_WT, WS_YT, WS_H, WS_PROF = 1 << 20, 3 << 20, 5 << 20, 8 << 20, 16 << 20
SX, SWG, SWU, SWD, SWS, SOUT, SH, SK, SV, SSH = 8, 12, 16, 20, 24, 28, 32, 36, 40, 44
sW, sXB, sWB, sT0, sT1 = 3, 4, 5, 6, 7
(sRT2, sCT2, sKEY, sWR, sWC, sTAG, sM0X, sOK, sISG, sCNT, sT2, sT3, sCSM, sCP, sRBL, sXCD, sCB, sD,
 sMO, _m1, _m2, _m3, sHI, sRB) = range(48, 72)
sA, sB, sC, sE = 98, 99, 100, 101
PROFS = list(range(72, 98, 2))
STAGE = 49152
L_WP = 147456
L_CV, CVCH = 98304, 12864
L_Z = (65536, 131072, 0, 32768)
L_Y, L_CNT = L_CV + 4608, L_CV + 4096
ACC, FR = 32, 96
def WDF(i): return 144 + 4 * i
vX0, vX1, vW0, vW1, vL16 = 1, 2, 3, 4, 5
vXB, vWB, vTAG = 6, 14, 17
SPIN = 0x4000
ESH = 24
KC = 2 * 0.7978845608028654 * 1.4426950408889634
def fx(f): return "0x%08x" % struct.unpack("<I", struct.pack("<f", f))[0]
def L(s): return [x.strip() for x in s.strip().split("\n") if x.strip()]

def gen(prof=False, opt=()):
    a = Em()
    def oi(k, d): return int(([o[len(k):] for o in opt if re.fullmatch(k + r"-?\d+", o)] + [d])[0])
    stamps = []
    def oi(k, d): return int(([o[len(k):] for o in opt if re.fullmatch(k + r"-?\d+", o)] + [d])[0])
    def stamp(name, slot=None):
        sel = [o[3:].split(",") for o in opt if o.startswith("st=")]
        dflt = "start,B0,B4,B8,join,c1,c3,hok,g2,bf,end".split(",")
        if not prof or (slot is None and name not in (sel[0] if sel else dflt)): return
        own = slot is None
        if ("both" in opt or "noas" in opt) and not own: return
        if slot is None:
            if name not in stamps: stamps.append(name)
            slot = stamps.index(name)
        a(f"{'s_memtime' if 'cyc' in opt else 's_memrealtime'} {sr(PROFS[slot], 2)}")
        if "both" in opt and own:
            stamps.append(name + "c"); a(f"s_memtime {sr(PROFS[slot + 1], 2)}")
    def spin(name, load, check):
        if "nochk" in opt: return [f"L_{name}_ok:"]
        cn = [f"s_add_u32 s{PROFS[stamps.index('n_' + name)]}, s{PROFS[stamps.index('n_' + name)]}, 1"] if "n_" + name in stamps else []
        return ([f"s_mov_b32 s{sCNT}, {SPIN}", f"L_{name}_loop:"] + cn + load + ["s_waitcnt vmcnt(0)"] + check +
                [f"s_cbranch_scc0 L_{name}_ok", f"s_sub_u32 s{sCNT}, s{sCNT}, 1", f"s_cbranch_scc0 L_{name}_loop",
                 f"L_{name}_ok:"])
    def one(txt, vm=None, wvm=None):
        if "all" in opt: return [I(txt, vm=vm, wvm=wvm)]
        return [I("s_mov_b64 exec, 1", wvm=wvm), I(txt, vm=vm), "s_mov_b64 exec, -1"]
    FS = oi("fs", 7)
    def line(so, vm=None, wvm=None):
        if "fp" in opt: return one(f"buffer_store_dword v{vTAG}, off, {sr(SWS,4)}, s{so} offset:4 sc1", vm=vm, wvm=wvm)
        return [I(f"s_mov_b64 exec, {(1 << (1 << (FS - 4))) - 1}", wvm=wvm),
                I(f"buffer_store_dwordx4 {vr(vTAG-1,4)}, v{vL16}, {sr(SWS,4)}, s{so} offen sc1", vm=vm), "s_mov_b64 exec, -1"]
    def ne(v): return [f"v_cmp_ne_u32 vcc, s{sTAG}, v{v}", "s_cmp_lg_u64 vcc, 0"]
    def ap(txt, nl, key, vm=None):
        if key not in opt and "apa" not in opt: return [I(txt, vm=vm)]
        d = txt.split()[1].rstrip(",")
        t = I(txt.replace("buffer_load_dword", "buffer_atomic_or").replace("sc1", "sc0 sc1"), vm=vm)
        if nl == 64: return [f"v_mov_b32 {d}, 0", t]
        m = [f"s_mov_b32 exec_hi, 0"] if nl == 32 else [f"s_mov_b64 exec, {(1 << nl) - 1}"]
        return [f"v_mov_b32 {d}, s{sTAG}"] + m + [f"v_mov_b32 {d}, 0", t, "s_mov_b64 exec, -1"]
    END, AUX, JOIN = "L_end", "L_aux", "L_join"
    vHE, vHP, vHO_ = (228, 232, 234) if "hr" in opt else (128, 132, 134)
    KM = oi("km", 3)
    a(f"""
    s_cmp_ge_u32 s2, 256
    s_cbranch_scc1 {END}
    s_load_dwordx16 s[72:87], s[0:1], 0
    s_load_dwordx8 s[88:95], s[0:1], 64
    s_load_dwordx2 s[96:97], s[0:1], 96
    v_lshrrev_b32 v1, 6, v0
    v_and_b32 v0, 63, v0
    v_readfirstlane_b32 s{sW}, v1
    s_and_b32 s{sXCD}, s2, 7
    s_lshr_b32 s{sCP}, s2, 3
    s_and_b32 s{sE}, s{sXCD}, 1
    s_lshr_b32 s{sA}, s{sXCD}, 1
    s_and_b32 s{sRBL}, s{sCP}, 3
    s_lshr_b32 s{sISG}, s{sCP}, 2
    s_lshl_b32 s{sRB}, s{sA}, 2
    s_add_u32 s{sRB}, s{sRB}, s{sRBL}
    s_lshl_b32 s{sRT2}, s{sRB}, 1
    s_add_u32 s{sRT2}, s{sRT2}, s{sE}
    s_add_u32 s{sCT2}, s{sISG}, 7
    s_and_b32 s{sCT2}, s{sCT2}, 7
    s_mul_i32 s{sCB}, s{sE}, 7
    s_add_u32 s{sCB}, s{sCB}, s{sCT2}
    s_xor_b32 s{sKEY}, s{sRBL}, s{sISG}
    s_and_b32 s{sKEY}, s{sKEY}, {KM}
    s_lshl_b32 s{sB}, s{sA}, {2 if KM == 3 else 1}
    s_and_b32 s{sB}, s{sB}, {4 if KM == 3 else 6}
    s_or_b32 s{sKEY}, s{sKEY}, s{sB}
    s_lshl_b32 s{sB}, s{sXCD}, 5
    s_add_u32 s{sCP}, s{sCP}, s{sB}
    s_and_b32 s{sWR}, s{sW}, 1
    s_lshr_b32 s{sWC}, s{sW}, 1
    s_lshr_b32 s{sB}, s{sW}, 2
    s_and_b32 s{sC}, s{sW}, 3
    s_lshl_b32 s{sXB}, s{sRB}, 17
    s_lshl_b32 s{sT0}, s{sB}, 16
    s_add_u32 s{sXB}, s{sXB}, s{sT0}
    s_lshl_b32 s{sT0}, s{sC}, 10
    s_add_u32 s{sXB}, s{sXB}, s{sT0}
    s_mul_i32 s{sWB}, s{sW}, 28672
    s_lshl_b32 s{sT0}, s{sCB}, 8
    s_add_u32 s{sWB}, s{sWB}, s{sT0}
    s_lshl_b32 s{sM0X}, s{sW}, 11
    s_and_b32 s{sT0}, s{sKEY}, 1
    s_and_b32 s{sT1}, s{sA}, 2
    s_or_b32 s{sT0}, s{sT0}, s{sT1}
    {f"s_mov_b32 s{sT0}, s{sRBL}" if KM != 3 else ""}
    s_add_u32 s{sCSM}, s{sWR}, 1
    s_cmp_eq_u32 s{sT0}, s{sWC}
    s_cselect_b32 s{sCSM}, s{sCSM}, 0
    s_lshr_b32 s{sHI}, s{sCT2}, 2
    s_mov_b32 s{sOK}, 0
    """)
    for s, n in ((SX, 1 << 21), (SWG, 1835008), (SWU, 1835008), (SWD, 1835008), (SWS, 1 << 25), (SOUT, 1 << 21),
                 (SH, 4096), (SK, 1 << 21), (SV, 1 << 21), (SSH, 4096)):
        a(f"s_mov_b32 s{s+2}, {n}")
        a(f"s_mov_b32 s{s+3}, 0x20000")
    a(f"""
    v_lshrrev_b32 v20, 3, v0
    v_lshrrev_b32 v21, 4, v0
    v_and_b32 v22, 7, v0
    v_xor_b32 v23, v22, v21
    v_lshlrev_b32 v23, 4, v23
    v_lshl_add_u32 v{vX0}, v20, 12, v23
    v_xor_b32 v{vX1}, 64, v{vX0}
    v_add_u32 v{vX1}, 31744, v{vX1}
    v_bfe_u32 v24, v0, 2, 2
    v_and_b32 v25, 3, v0
    v_xor_b32 v23, v24, v21
    v_lshlrev_b32 v23, 6, v23
    v_lshl_add_u32 v23, v25, 4, v23
    v_mul_u32_u24 v{vW0}, 3584, v21
    v_add_u32 v{vW0}, v{vW0}, v23
    v_add_u32 v{vW1}, 13312, v{vW0}
    v_lshlrev_b32 v{vL16}, 4, v0
    s_lshl_b32 s{sT2}, s{sCP}, 1
    s_add_u32 s{sT2}, s{sT2}, s{sB}
    s_lshl_b32 s{sT2}, s{sT2}, 12
    s_lshl_b32 s{sT3}, s{sCP}, 2
    """)
    UE = oi("ue", 0)
    w_init = ([f"v_mul_u32_u24 v{FR+16}, 0x9e3779, v0", f"v_and_b32 v{FR+16}, 0x807f807f, v{FR+16}", f"v_or_b32 v{FR+16}, 0x3f003f00, v{FR+16}"] +
              [f"v_xor_b32 v{FR+16+i}, {hex((0x9e3779b1 * (i + 3) >> 3) & 0x807f807f)}, v{FR+16+i-1}" for i in range(1, 8)])
    if UE:
        a([f"s_cmp_ge_u32 s{sW}, 4", "s_cbranch_scc1 L_uex"] + w_init + [f"s_mov_b32 s{sCNT}, {UE}", "L_ue:"] +
          [f"v_mfma_f32_32x32x16_bf16 {vr(ACC+16*i,16)}, {vr(FR+16+4*(i&1),4)}, {vr(FR+16+4*(i>>1),4)}, 0" for i in range(1, 3)] +
          [f"s_sub_u32 s{sCNT}, s{sCNT}, 1", f"s_cmp_lg_u32 s{sCNT}, 0", "s_cbranch_scc1 L_ue", "L_uex:"])
    a(f"""
    s_waitcnt lgkmcnt(0)
    s_mov_b64 {sr(SX,2)}, s[72:73]
    s_mov_b64 {sr(SWG,2)}, s[86:87]
    s_mov_b64 {sr(SWU,2)}, s[88:89]
    s_mov_b64 {sr(SK,2)}, s[74:75]
    s_mov_b64 {sr(SV,2)}, s[76:77]
    {f"s_add_u32 s{SWS}, s96, {oi('wso', 0) << 20}" if oi('wso', 0) else f"s_mov_b64 {sr(SWS,2)}, s[96:97]"}
    {f"s_addc_u32 s{SWS+1}, s97, 0" if oi('wso', 0) else ""}
    s_mov_b64 {sr(SSH,2)}, s[78:79]
    s_mov_b64 {sr(SWD,2)}, s[90:91]
    s_mov_b64 {sr(SOUT,2)}, s[92:93]
    s_add_u32 s{SH}, s80, s{sT2}
    s_addc_u32 s{SH+1}, s81, 0
    s_load_dword s{sD}, s[82:83], s{sT3}
    """)
    H1 = "h1" in opt
    if H1: a(f"""
    s_lshl_b32 s{sT3}, s{sC}, 10
    s_max_u32 s{sT3}, s{sT3}, 4
    s_add_u32 s{sT2}, s{sT2}, s{sT3}
    s_sub_u32 s{sT2}, s{sT2}, 4
    s_load_dword s{sOK}, s[80:81], s{sT2}
    """)
    if prof: a("s_nop 4")
    stamp("start")
    SCN = ([o[3:].split(",") for o in opt if o.startswith("sc=")] + [[]])[0] if prof else []
    stamps += ["n_" + x for x in SCN]
    sc_init = [f"s_mov_b32 s{PROFS[1 + i]}, 0" for i in range(len(SCN))]

    NTX = " nt" if "ntx" in opt else ""
    NTW = " nt" if "ntw" in opt else ""
    NTK = " nt" if "ntk" in opt else ""
    NTH = " nt" if "nth" in opt else ""
    NTE = " nt" if "nte" in opt else ""
    NTF = " nt" if "ntf" in opt else ""
    for o in opt:
        if o.startswith("cp="): NTX = NTW = " " + o[3:].replace("_", " ")
        if o.startswith("ck="): NTK = " " + o[3:].replace("_", " ")
    NTX0, NTW0 = NTX, NTW
    def chunk_dma(c):
        st = (c % 3) * STAGE
        NTX = [" " + o.split("=")[0][2:].replace("_", " ") for o in opt if re.match(r"Nx\w+=", o) and str(c) in o.split("=")[1]] + [NTX0]
        NTW = [" " + o.split("=")[0][2:].replace("_", " ") for o in opt if re.match(r"Nw\w+=", o) and str(c) in o.split("=")[1]] + [NTW0]
        NTX, NTW = NTX[0], NTW[0]
        return [
            [f"s_xor_b32 s{sT0}, s{sKEY}, {c}",
             f"s_mul_i32 s{sT1}, s{sT0}, 229376", f"s_add_u32 s{sT1}, s{sT1}, s{sWB}",
             f"s_lshl_b32 s{sT0}, s{sT0}, 7", f"s_add_u32 m0, s{sM0X}, {st}", f"s_add_u32 s{sT0}, s{sT0}, s{sXB}",
             I(f"buffer_load_dwordx4 v{vX0}, {sr(SX,4)}, s{sT0} offen{NTX} lds", vm=f"c{c}")],
            I(f"buffer_load_dwordx4 v{vX1}, {sr(SX,4)}, s{sT0} offen offset:1024{NTX} lds", vm=f"c{c}"),
            [f"s_add_u32 m0, s{sM0X}, {st + 16384}",
             I(f"buffer_load_dwordx4 v{vW0}, {sr(SWG,4)}, s{sT1} offen{NTW} lds", vm=f"c{c}")],
            I(f"buffer_load_dwordx4 v{vW1}, {sr(SWG,4)}, s{sT1} offen offset:1024{NTW} lds", vm=f"c{c}"),
            [f"s_add_u32 m0, s{sM0X}, {st + 32768}",
             I(f"buffer_load_dwordx4 v{vW0}, {sr(SWU,4)}, s{sT1} offen{NTW} lds", vm=f"c{c}")],
            I(f"buffer_load_dwordx4 v{vW1}, {sr(SWU,4)}, s{sT1} offen offset:1024{NTW} lds", vm=f"c{c}"),
        ]
    def prefetch(c):
        g = oi("pg", 7); sh = 7 - g; t = 150
        o = L(f"""
        v_lshrrev_b32 v{t}, {sh}, v0
        v_lshlrev_b32 v{t}, 12, v{t}
        v_lshrrev_b32 v{t+1}, {sh + 1}, v0
        v_mul_u32_u24 v{t+1}, 3584, v{t+1}
        v_and_b32 v{t+2}, {(2 << sh) - 1}, v0
        v_lshl_add_u32 v{t+1}, v{t+2}, {g}, v{t+1}
        """)
        if sh: o += [f"v_and_b32 v{t+2}, {(1 << sh) - 1}, v0", f"v_lshl_add_u32 v{t}, v{t+2}, {g}, v{t}"]
        o += L(f"""
        s_xor_b32 s{sT2}, s{sKEY}, {c}
        s_mul_i32 s{sT3}, s{sT2}, 229376
        s_add_u32 s{sT3}, s{sT3}, s{sWB}
        s_lshl_b32 s{sT2}, s{sT2}, 7
        s_add_u32 s{sT2}, s{sT2}, s{sXB}
        s_mov_b32 exec_hi, 0
        """)
        if not sh: o += ["s_mov_b32 exec_lo, 0xffff"]
        PW = os0("pv=", "gux")
        if "g" in PW: o += [I(f"buffer_load_dword v{t+2}, v{t+1}, {sr(SWG,4)}, s{sT3} offen", vm="pf")]
        if "u" in PW: o += [I(f"buffer_load_dword v{t+3}, v{t+1}, {sr(SWU,4)}, s{sT3} offen", vm="pf")]
        if "x" in PW: o += [I(f"buffer_load_dword v{t+4}, v{t}, {sr(SX,4)}, s{sT2} offen", vm="pf")]
        return o + ["s_mov_b64 exec, -1"]
    def os0(k, d=""): return ([o[len(k):] for o in opt if o.startswith(k)] + [d])[0]
    PF = os0("pf=")
    XR, S1, S2 = 200, 204, 205
    def row_load():
        return [I(f"buffer_load_dword v{vTAG}, off, {sr(SWS,4)}, 0 offset:{WS_EPOCH} sc1", vm="ep"),
                [f"s_lshl_b32 s{sA}, s{sRT2}, 3", f"s_add_u32 s{sA}, s{sA}, s{sISG}", f"s_lshl_b32 s{sA}, s{sA}, 3",
                 f"s_add_u32 s{sA}, s{sA}, s{sW}", f"s_lshl_b32 s{sT2}, s{sA}, 10",
                 I(f"buffer_load_dwordx4 {vr(XR,4)}, v{vL16}, {sr(SX,4)}, s{sT2} offen" + (" nt" if "ntr" in opt else ""), vm="ep")]]
    tag_math = L(f"""
        v_add_u32 v{vTAG}, 1, v{vTAG}
        v_and_b32 v{vTAG}, 0x0fff3fff, v{vTAG}
        v_or_b32 v{vTAG}, 0x20000000, v{vTAG}
        s_mov_b32 s{sB}, 0x3f803f80
        v_readfirstlane_b32 s{sTAG}, v{vTAG}
        """)
    def row_math():
        o = []
        for d in range(4):
            o += [f"v_dot2_f32_bf16 v{S1}, v{XR+d}, s{sB}, {'0' if d == 0 else f'v{S1}'}",
                  f"v_dot2_f32_bf16 v{S2}, v{XR+d}, v{XR+d}, {'0' if d == 0 else f'v{S2}'}"]
        o += [f"v_mov_b32 v{XR+1}, v{vTAG}", f"v_permlane32_swap_b32 v{S1}, v{S2}", f"v_add_f32 v{S1}, v{S1}, v{S2}"]
        o += [f"v_add_f32_dpp v{S1}, v{S1}, v{S1} {d} row_mask:0xf bank_mask:0xf"
              for d in ("quad_perm:[1,0,3,2]", "quad_perm:[2,3,0,1]", "row_half_mirror", "row_mirror")]
        o += [f"v_add_f32_dpp v{S1}, v{S1}, v{S1} row_bcast:15 row_mask:0xa bank_mask:0xf"]
        o += L(f"""
        v_mul_f32 v{S1}, {fx(1/512)}, v{S1}
        v_readlane_b32 s{sB}, v{S1}, 31
        v_readlane_b32 s{sC}, v{S1}, 63
        v_mul_f32 v{S1}, s{sB}, s{sB}
        v_sub_f32 v{S1}, s{sC}, v{S1}
        v_max_f32 v{S1}, 0, v{S1}
        v_cvt_pk_bf16_f32 v{S1}, v{S1}, v{S1}
        v_lshlrev_b32 v{S1}, 16, v{S1}
        v_add_f32 v{S1}, {fx(1e-5)}, v{S1}
        v_cvt_pk_bf16_f32 v{S1}, v{S1}, v{S1}
        v_lshlrev_b32 v{S1}, 16, v{S1}
        v_sqrt_f32 v{S1}, v{S1}
        s_lshl_b32 s{sA}, s{sA}, 3
        v_cvt_pk_bf16_f32 v{XR}, v{S1}, -s{sB}
        s_add_u32 s{sA}, s{sA}, {WS_RS}
        """)
        if "nors" not in opt: o += [one(f"buffer_store_dwordx2 {vr(XR,2)}, off, {sr(SWS,4)}, s{sA} sc1", vm="rs", wvm="wps")]
        return o
    def h_load(t):
        return [[f"s_and_b32 s{sT2}, s{sW}, 3", f"s_lshl_b32 s{sT2}, s{sT2}, 10",
                 I(f"buffer_load_dwordx4 {vr(vHE,4)}, v{vL16}, {sr(SH,4)}, s{sT2} offen{NTE}", vm="hl")],
                [f"s_and_b32 s{sT2}, s{sW}, 3", f"s_lshl_b32 s{sT2}, s{sT2}, 10",
                 f"s_sub_u32 s{sT2}, s{sT2}, 4", f"v_add_u32 v{t}, s{sT2}, v{vL16}",
                 I(f"buffer_load_dword v{vHP}, v{t}, {sr(SH,4)}, 0 offen{NTF}", vm="hl")]][:1 if H1 else 2]
    vZ4 = vHE + 12
    h_al = [f"v_alignbit_b32 v{vHO_+d}, v{vHE+d}, v{vHE+d-1 if d else vHP}, 16" for d in range(4)]
    h_z = [f"v_mov_b32 v{vZ4+d}, 0" for d in range(4)]
    h_math = (([[f"s_and_b32 s{sT2}, s{sW}, 3", f"s_cselect_b32 s{sT2}, s{sOK}, 0", f"v_mov_b32 v{vHP}, s{sT2}"], I(h_al[1], wvm="hl")] + h_al[2:] +
               [f"v_mov_b32_dpp v{vHP}, v{vHE+3} wave_shr:1 row_mask:0xf bank_mask:0xf"] + h_z + h_al[:1]
               if H1 else [I(h_al[0], wvm="hl")] + h_al[1:] + h_z) + [L(f"""
        s_lshr_b32 s{sT2}, s{sW}, 2
        s_mul_i32 s{sT2}, s{sT2}, {CVCH}
        s_add_u32 s{sT2}, s{sT2}, {L_CV}
        v_min_u32 v{vHP+1}, 35, v0
        v_lshlrev_b32 v{vHP+1}, 4, v{vHP+1}
        v_lshrrev_b32 v{vHP}, 5, v0
        v_lshl_add_u32 v{vHP+1}, v{vHP}, 12, v{vHP+1}
        v_add_u32 v{vHP+1}, s{sT2}, v{vHP+1}
        s_and_b32 s{sT3}, s{sW}, 3
        s_lshl_b32 s{sT3}, s{sT3}, 10
        s_add_u32 s{sT2}, s{sT2}, s{sT3}
        v_add_u32 v{vHP}, s{sT2}, v{vL16}
        """)])
    h_write = [I(f"ds_write_b128 v{vHP}, {vr(vHE,4)} offset:4608", lg="hw"),
               I(f"ds_write_b128 v{vHP}, {vr(vHO_,4)} offset:{4608+4160}", lg="hw"),
               I(f"ds_write_b128 v{vHP+1}, {vr(vZ4,4)} offset:4096", lg="hw")]
    vFL, vFA = 18, 19
    def wf_addr_(sE, vFA, vFL): return L(f"""
        s_lshl_b32 s{sT2}, s{sCT2}, 3
        s_add_u32 s{sT2}, s{sT2}, s{sW}
        s_and_b32 s{sE}, s{sCT2}, 6
        s_lshl_b32 s{sE}, s{sE}, 1
        s_add_u32 s{sE}, s{sE}, s{sWC}
        s_lshl_b32 s{sE}, s{sE}, 1
        s_and_b32 s{sT3}, s{sCT2}, 1
        s_add_u32 s{sE}, s{sE}, s{sT3}
        s_lshl_b32 s{sE}, s{sE}, 4
        s_add_u32 s{sE}, s{sE}, s{sWR}
        s_lshl_b32 s{sE}, s{sE}, 5
        s_add_u32 s{sE}, s{sE}, {WS_RS + 64 + 4 + (16384 if oi("rl", -1) >= 0 else 0)}
        s_mul_i32 s{sT2}, s{sT2}, 28672
        s_mul_i32 s{sT3}, s{sHI}, 12288
        s_add_u32 s{sT2}, s{sT2}, s{sT3}
        s_add_u32 s{sT2}, s{sT2}, {WS_WT}
        s_lshl_b32 s{sT3}, s{sRBL}, 10
        s_add_u32 s{sMO}, s{sT2}, s{sT3}
        s_xor_b32 s{sMO+1}, s{sMO}, 1024
        s_xor_b32 s{sMO+2}, s{sMO}, 2048
        s_xor_b32 s{sMO+3}, s{sMO}, 3072
        v_min_u32 v{vFA}, 27, v0
        v_and_b32 v{vFL}, 28, v{vFA}
        v_add_u32 v{vFA}, v{vFA}, v{vFL}
        v_lshlrev_b32 v{vFA}, 3, v{vFA}
        """)
    wf_addr = wf_addr_(sE, vFA, vFL)
    wf_ld = f"buffer_load_dword v{vFL}, v{vFA}, {sr(SWS,4)}, s{sE} offen sc1"
    def wd_loads():
        o = []
        for i in range(28):
            ks, mt = divmod(i, 4)
            g = []
            if i == 16:
                g += [f"s_mul_i32 s{sT3}, s{sHI}, 28672"] + [f"s_sub_u32 s{sMO+m}, s{sMO+m}, s{sT3}" for m in range(4)]
            g += [f"s_add_u32 s{sT3}, s{sMO+mt}, {4096*ks}",
                  I(f"buffer_load_dwordx4 {vr(WDF(i),4)}, v{vL16}, {sr(SWS,4)}, s{sT3} offen sc1" if i < oi("wx", 99) else
                    f"buffer_load_dword {vr(WDF(i),1)}, off, {sr(SWS,4)}, s{sT3} sc1", vm=f"wd{ks}")]
            o.append(g)
        return o
    vKA, vKL = 29, 30
    kf_addr = [f"v_and_b32 v{vKA}, 31, v0", f"v_lshlrev_b32 v{vKA}, 2, v{vKA}", f"s_lshl_b32 s{sC}, s{sXCD}, 7",
               f"s_add_u32 s{sC}, s{sC}, {WS_FKV}"]
    kf_ld = f"buffer_load_dword v{vKL}, v{vKA}, {sr(SWS,4)}, s{sC} offen sc1"
    def r_dma(t):
        return L(f"""
        s_lshr_b32 s{sT2}, s{sW}, 2
        s_mul_i32 s{sT3}, s{sT2}, {CVCH - 4096}
        s_lshl_b32 s{sT2}, s{sT2}, 4
        v_lshl_add_u32 v{t}, v0, 5, s{sT2}
        s_lshl_b32 s{sT2}, s{sW}, 10
        s_add_u32 s{sT3}, s{sT3}, s{sT2}
        s_add_u32 m0, s{sT3}, {L_CV}
        s_and_b32 s{sT2}, s{sM0X}, 0x1800
        s_lshl_b32 s{sT3}, s{sCP}, 13
        s_add_u32 s{sT2}, s{sT2}, s{sT3}
        s_add_u32 s{sT2}, s{sT2}, {WS_KV}
        """) + [I(f"buffer_load_dwordx4 v{t}, {sr(SWS,4)}, s{sT2} offen sc1 lds", vm="R")]

    WL = wd_loads()
    wsched = {17: 1, 18: 1, 19: 1, 21: 1, 22: 1, 23: 1, 24: 1, 25: 2, 26: 2, 27: 2, 29: 1, 30: 2, 31: 2}
    wsched = {k: n for k, n in wsched.items() if k >= oi("pw", 20) + 3}
    for o in opt:
        if o.startswith("ws="): wsched = {32 - len(o[3:]) + i: int(ch) for i, ch in enumerate(o[3:])}
    assert min(k for k, n in wsched.items() if n) >= oi("pw", 20) + oi("pd", 3)
    wepi = [int(x) for x in str(oi("we", 3320)).zfill(4)]
    NPRE = sum(wsched.values()) + sum(wepi)
    vq_pro = list(a.vq)
    a(f"s_cmp_eq_u32 s{sISG}, 0\ns_cbranch_scc1 {AUX}")
    if "nogemm" in opt: a(f"s_branch {END}")
    SP, SPS = oi("sp", 0), oi("ss", 64)
    h_pre = [f"s_and_b32 s{sT2}, s{sW}, 3", f"s_lshl_b32 s{sT2}, s{sT2}, 10"] + [
        f"s_buffer_load_dword s{sCNT}, {sr(SH,4)}, s{sT2} offset:{o}" for o in range(0, 1024, SPS)]
    if SP == 1: a(h_pre)
    TF = os0("tf=")
    def touch():
        o = ["s_mov_b64 exec, 1"]
        if "d" in TF: o += [f"s_mul_i32 s{sT2}, s{sCB}, 131072", I(f"buffer_load_dword v160, off, {sr(SWD,4)}, s{sT2}", vm="tf")]
        if "h" in TF: o += [I(f"buffer_load_dword v161, off, {sr(SH,4)}, 0", vm="tf")]
        if "e" in TF: o += [I(f"buffer_load_dword v162, off, {sr(SWS,4)}, 0 offset:128 sc1", vm="tf")]
        if "w" in TF: o += [f"s_mov_b32 s{sT2}, {WS_WT - 128}", I(f"buffer_load_dword v163, off, {sr(SWS,4)}, s{sT2} sc1", vm="tf"),
                            f"s_mov_b32 s{sT2}, {WS_YT - 128}", I(f"buffer_load_dword v164, off, {sr(SWS,4)}, s{sT2} sc1", vm="tf")]
        o += ["s_mov_b64 exec, -1"]
        if "0" in TF: return [f"s_cmp_lg_u32 s{sW}, 0", "s_cbranch_scc1 L_notf"] + [x.text if isinstance(x, I) else x for x in o] + ["L_notf:"]
        return o
    if "B" in TF: a(touch())
    a(chunk_dma(0))
    stamp("K2")
    WU, WQ = oi("wu", -1), oi("wq", 0)
    W8 = "w8" in opt or "wm" in opt
    def warm():
        if "wo4" in opt: a(f"s_cmp_ge_u32 s{sW}, 4\ns_cbranch_scc1 L_wux")
        if "wy4" in opt: a(f"s_cmp_lt_u32 s{sW}, 4\ns_cbranch_scc1 L_wux")
        if "wz" in opt:
            for i in range(16): a(f"v_mov_b32 v{FR+16+i}, 0")
        elif "wa" in opt:
            for i in range(8 if "w8" in opt else 16): a(f"v_xor_b32 v{FR+16+i}, {0x3f5a3e97 + 0x00130029 * i}, v{(vX0, vX1, vW0, vW1)[i & 3]}")
        elif "wm" in opt:
            if not UE: a(w_init)
        else:
            a(f"s_mov_b32 s{sT2}, 0x807f807f\ns_mov_b32 s{sT3}, 0x3f003f00\nv_mov_b32 v180, 0x9e3779b1\nv_add_u32 v181, 0x1234567, v{vW0}")
            for i in range(16):
                a(f"v_mul_lo_u32 v181, v181, v180\nv_alignbit_b32 v181, v181, v181, 13\nv_and_b32 v{FR+16+i}, s{sT2}, v181\nv_or_b32 v{FR+16+i}, s{sT3}, v{FR+16+i}")
        wm = lambda z: [f"v_mfma_f32_32x32x16_bf16 {vr(ACC+16*i,16)}, {vr(FR+16+4*(i&1),4)}, {vr(FR+(16 if W8 else 24)+4*(i>>1),4)}, {'0' if z or 'w0c' in opt else vr(ACC+16*i,16)}" for i in range(4)]
        if "wv" not in opt and "w0c" not in opt: a(wm(True)[:oi("wn", 4)])
        if WU:
            a(f"s_mov_b32 s{sT2}, {WU}\nL_wu:")
            if "wv" in opt:
                for i in range(64): a(f"v_fma_f32 v{ACC+i}, v{FR+16+(i&15)}, v{FR+16+((i*7+3)&15)}, v{ACC+i}")
            else:
                for q_, m_ in enumerate(wm(False)[:oi('wn', 4)]):
                    UV = oi("uv", 0)
                    xv = [f"v_pk_fma_f32 {vr(150+2*(UV*q_+z),2)}, {vr(FR+16+2*((q_+z)&3),2)}, {vr(FR+16+2*((q_+2*z+1)&3),2)}, {vr(FR+16+2*((z+2)&3),2)}" for z in range(UV)]
                    a([m_] + xv + ([f"s_nop {oi('wg', 0)}"] if oi("wg", 0) else []))
            if oi("wad", 0): a(f"s_getreg_b32 s{sT3}, hwreg(HW_REG_IB_STS, 0, 4)\ns_cmp_lt_u32 s{sT3}, {oi('wad', 0)}\ns_cbranch_scc1 L_wux")
            a(f"s_sub_u32 s{sT2}, s{sT2}, 1\ns_cmp_lg_u32 s{sT2}, 0\ns_cbranch_scc1 L_wu")
        a("L_wux:")
        stamp("K3")
    if WU >= 0 and WQ == 0: warm()
    if "A" in TF: a(touch())
    if PF == "a": a(prefetch(4))
    if SP == 2: a(h_pre)
    WP, vWPA, vWPS, vWPL, CSA, CS1 = 208, 212, 213, 214, 240, 236
    sWPS, sWPF, sWPM = SSH, SSH + 1, SSH + 3
    a(f"""
    v_and_b32 v23, 3, v20
    v_lshrrev_b32 v26, 5, v0
    v_lshl_add_u32 v23, v26, 3, v23
    v_lshlrev_b32 v26, 4, v22
    v_lshl_add_u32 v{vWPL}, v23, 10, v26
    s_mov_b32 s{sE}, s{sXCD}
    s_lshl_b32 s{sT2}, s{sRBL}, 1
    s_add_u32 s{sT2}, s{sT2}, s{sB}
    s_mul_i32 s{sT3}, s{sT2}, 7
    s_add_u32 s{sT3}, s{sT3}, s{sCT2}
    s_mul_i32 s{sWPS}, s{sE}, 56
    s_add_u32 s{sWPS}, s{sWPS}, s{sT3}
    s_lshl_b32 s{sWPS}, s{sWPS}, 12
    s_lshl_b32 s{sT1}, s{sC}, 8
    s_add_u32 s{sWPS}, s{sWPS}, s{sT1}
    s_add_u32 s{sWPS}, s{sWPS}, {WS_WT}
    s_lshl_b32 s{sT3}, s{sT3}, 15
    s_lshl_b32 s{sT1}, s{sWR}, 12
    s_add_u32 s{sT3}, s{sT3}, s{sT1}
    s_lshl_b32 s{sT1}, s{sWC}, 14
    s_and_b32 s{sT1}, s{sT1}, 0x4000
    s_add_u32 s{sT3}, s{sT3}, s{sT1}
    s_lshl_b32 s{sT1}, s{sE}, 7
    s_add_u32 s{sWPF}, s{sT3}, s{sT1}
    s_lshl_b32 s{sT2}, s{sW}, 10
    s_add_u32 s{sWPM}, s{sT2}, {L_WP}
    {"" if "nob" in opt else "s_barrier"}
    """)
    wp_load = [f"s_mov_b32 m0, s{sWPM}", I(f"buffer_load_dwordx4 v{vWPL}, {sr(SWD,4)}, s{sWPF} offen{NTH} lds", vm="wpl")]
    SWL, SWR, SRS, SPW, SHL, SPF, SRL = oi("wl", -1), oi("wr", 4), oi("rs", 11), oi("pw", 20), oi("hl", 9), oi("pf", 0), oi("rl", -1)
    SKF, SRD = oi("kf", 28), oi("rd", 32)
    XE = oi("xe", 28)
    assert XE >= 27 or ("hr" in opt and XE >= 22)
    BI = "bi" in opt
    if WU >= 0 and WQ == 1: warm()
    if SWL < 0: a(wp_load)
    a(f"""
    v_lshlrev_b32 v23, 7, v24
    v_lshl_add_u32 v23, v21, 5, v23
    v_lshl_add_u32 v23, v25, 3, v23
    v_add_u32 v{vWPA}, s{sWPM}, v23
    """)
    C1E = oi("c1e", 2)
    if SRL >= 0: a(row_load()[0]); a(row_load()[1][:4])
    elif "rowl" not in opt: a(row_load())
    if SHL == -3: a(h_load(27))
    if PF == "b": a(prefetch(4))
    a(chunk_dma(1)[:C1E])
    if PF == "c": a(prefetch(4))
    if SHL == -4: a(h_load(27))
    if "th" in opt: a(I(f"buffer_load_dword v{vHP}, off, {sr(SH,4)}, 0", vm="th"))
    a(f"""
    v_and_b32 v23, 15, v0
    v_lshlrev_b32 v23, 4, v23
    v_lshl_add_u32 v{vWPS}, v21, 10, v23
    v_and_b32 v24, 31, v0
    v_lshrrev_b32 v25, 5, v0
    v_bfe_u32 v22, v0, 1, 3
    v_xor_b32 v22, v22, v25
    v_lshlrev_b32 v22, 4, v22
    v_lshl_add_u32 v22, v24, 7, v22
    s_lshl_b32 s{sT0}, s{sWR}, 13
    v_add_u32 v{vXB}, s{sT0}, v22
    v_xor_b32 v{vXB+1}, 32, v{vXB}
    v_xor_b32 v{vXB+2}, 64, v{vXB}
    v_xor_b32 v{vXB+3}, 96, v{vXB}
    v_add_u32 v{vXB+4}, {2*STAGE}, v{vXB}
    v_add_u32 v{vXB+5}, {2*STAGE}, v{vXB+1}
    v_add_u32 v{vXB+6}, {2*STAGE}, v{vXB+2}
    v_add_u32 v{vXB+7}, {2*STAGE}, v{vXB+3}
    v_bfe_u32 v23, v0, 2, 2
    v_lshl_add_u32 v24, v25, 3, v23
    v_lshlrev_b32 v24, 8, v24
    v_xor_b32 v23, s{sWC}, v23
    v_lshl_add_u32 v24, v23, 6, v24
    v_bfe_u32 v23, v0, 4, 1
    v_lshl_add_u32 v24, v23, 5, v24
    v_and_b32 v23, 3, v0
    v_lshl_add_u32 v24, v23, 3, v24
    v_add_u32 v{vWB}, 16384, v24
    v_add_u32 v{vWB+1}, {STAGE+16384}, v24
    v_add_u32 v{vWB+2}, {2*STAGE+16384}, v24
    """)
    if "cs16" in opt:
        a(f"""
        v_lshrrev_b32 v23, 2, v0
        v_xor_b32 v23, v23, v21
        v_and_b32 v23, 1, v23
        v_add_u32 v23, -1, v23
        """)
        for d in range(4): a(f"v_and_b32 v{CS1+d}, 0x3f803f80, v23")
    else:
        for d in range(4): a(f"v_mov_b32 v{CS1+d}, 0x3f803f80")
    if "csb" in opt: a(f"s_cmp_lg_u32 s{sCSM}, 0\ns_cselect_b64 vcc, -1, 0")
    if prof and oi("mz", 0): a([f"v_mov_b32 v{180+i}, 0" for i in range(4)])
    stamp("K1")
    stamp("K0")
    a(sc_init)
    if "dmaonly" in opt:
        DD = oi("dd", 2)
        if C1E < 6: a(chunk_dma(1)[0][:4]); a(chunk_dma(1)[C1E:])
        for c in range(2, DD): a(chunk_dma(c))
        for c in range(8):
            a(I(wvm=f"c{c}"))
            if "dnb" not in opt: a("s_barrier")
            stamp(f"B{c}")
            if c + DD < 8: a(chunk_dma(c + DD))
        a("s_branch L_prof")
        opt = [o for o in opt if not o.startswith("st=")] + ["st=end"]

    def F(s): return FR + 16 * (s & 1)
    def reads(s):
        c, j = divmod(s, 4)
        st = c % 3
        xb = vXB + j + (4 if st == 2 else 0); im = STAGE if st == 1 else 0
        wb = vWB + st; wo = 4096 * j
        f = F(s); t = f"r{s}"
        return [I(f"ds_read_b64_tr_b16 {vr(f,2)}, v{wb} offset:{wo}", lg=t),
                I(f"ds_read_b64_tr_b16 {vr(f+2,2)}, v{wb} offset:{wo+1024}", lg=t),
                I(f"ds_read_b128 {vr(f+8,4)}, v{xb} offset:{im}", lg=t),
                I(f"ds_read_b64_tr_b16 {vr(f+4,2)}, v{wb} offset:{wo+16384}", lg=t),
                I(f"ds_read_b64_tr_b16 {vr(f+6,2)}, v{wb} offset:{wo+17408}", lg=t),
                I(f"ds_read_b128 {vr(f+12,4)}, v{xb} offset:{im+4096}", lg=t)]
    def mfmas(A, B, first=False, par=0):
        out = []
        for nt in range(2):
            for m in range(2):
                d = ACC + 32 * m + 16 * nt
                if "m16x" in opt:
                    for h in range(2):
                        e = d + 8 * (par & 1) + 4 * h
                        out.append(f"v_mfma_f32_16x16x32_bf16 {vr(e,4)}, {vr(A[m ^ h],4)}, {vr(B[nt],4)}, {'0' if par < 2 else vr(e,4)}")
                    continue
                out.append(f"v_mfma_f32_32x32x16_bf16 {vr(d,16)}, {vr(A[m],4)}, {vr(B[nt],4)}, {'0' if first else vr(d,16)}")
        if "snk" in opt: out = [out[0], out[1], out[3], out[2]]
        if "snb" in opt: out = [out[0], out[2], out[3], out[1]]
        if "sna" in opt: out = [out[0], out[2], out[1], out[3]]
        return out
    def cs_mfma(p):
        o = []
        sh, n = ("16x16x32", 4) if "cs16" in opt else ("32x32x16", 16)
        mm = [f"v_mfma_f32_{sh}_bf16 {vr(CSA,n)}, {vr(CS1,4)}, {vr(F(p)+4*m,4)}, {'0' if p == 0 else vr(CSA,n)}" for m in range(2)]
        if "csb" in opt:
            return [f"s_cbranch_vccz L_cs{p}_1", f"s_bitcmp1_b32 s{sCSM}, 0", f"s_cbranch_scc0 L_cs{p}_0", mm[0], f"s_branch L_cs{p}_1",
                    f"L_cs{p}_0:", mm[1], f"L_cs{p}_1:"]
        if "cs16" in opt:
            for m in range(2): o += [f"s_bitcmp1_b32 s{sCSM}, {m}", f"s_cbranch_scc0 L_cs{p}_{m}", mm[m], f"L_cs{p}_{m}:"]
            return o
        for m in range(2):
            o += [f"s_bitcmp1_b32 s{sCSM}, {m}", f"s_cbranch_scc0 L_cs{p}_{m}",
                  f"v_mfma_f32_32x32x16_bf16 {vr(CSA,16)}, {vr(CS1,4)}, {vr(F(p)+4*m,4)}, {'0' if p == 0 else vr(CSA,16)}",
                  f"L_cs{p}_{m}:"]
        return o
    sCSB = SSH + 2
    cs_store = [L(f"""
        s_lshl_b32 s{sCSB}, s{sCB}, 2
        s_add_u32 s{sCSB}, s{sCSB}, s{sWC}
        s_lshl_b32 s{sCSB}, s{sCSB}, 10
        s_add_u32 s{sCSB}, s{sCSB}, {WS_CS}
        s_cmp_eq_u32 s{sCSM}, {'s%d' % sCSM if "nocs" in opt else 0}
        s_cbranch_scc1 L_nocs
        v_cvt_pk_bf16_f32 v{CSA+1}, v{CSA}, v{CSA}
        s_mul_i32 s{sT2}, s{sWR}, 57344
        v_lshlrev_b32 v{CSA+1}, 16, v{CSA+1}
        s_lshr_b32 s{sT3}, s{sKEY}, 1
        v_sub_f32 v{CSA+1}, v{CSA}, v{CSA+1}
        s_lshl_b32 s{sT3}, s{sT3}, 3
        v_cvt_pk_bf16_f32 v{CSA}, v{CSA}, v{CSA+1}
        s_add_u32 s{sT2}, s{sT2}, s{sT3}
        v_mov_b32 v{CSA+1}, v{vTAG}
        s_add_u32 s{sT2}, s{sT2}, s{sCSB}
        v_lshlrev_b32 v{CSA+2}, 5, v0
        s_mov_b32 exec_hi, 0
        buffer_store_dwordx2 {vr(CSA,2)}, v{CSA+2}, {sr(SWS,4)}, s{sT2} offen sc1
        s_mov_b32 exec_hi, -1
        L_nocs:
        """)]
    EG, EU, ER, EB0, EB1 = 128, 132, 20, 136, 140
    ex_addr = L(f"""
        v_and_b32 v24, 31, v0
        v_lshrrev_b32 v25, 5, v0
        v_lshlrev_b32 v25, 4, v25
        v_lshl_add_u32 v{vX0}, v24, 5, v25
        v_and_b32 v24, 15, v0
        v_lshrrev_b32 v25, 4, v0
        v_lshlrev_b32 v25, 3, v25
        v_lshl_add_u32 v{vX1}, v24, 5, v25
        s_lshl_b32 s{sKEY}, s{sRB}, 1
        s_add_u32 s{sKEY}, s{sKEY}, s{sWR}
        s_lshl_b32 s{sWB}, s{sKEY}, 9
        s_add_u32 s{sWB}, s{sWB}, {WS_RS}
        s_add_u32 s{sXB}, s{sCSB}, 57344
        """)
    ex_ld = [f"buffer_load_dwordx4 {vr(EG,4)}, v{vX0}, {sr(SWS,4)}, s{sCSB} offen sc1",
             f"buffer_load_dwordx4 {vr(EU,4)}, v{vX0}, {sr(SWS,4)}, s{sXB} offen sc1",
             f"buffer_load_dwordx2 {vr(ER,2)}, v{vX1}, {sr(SWS,4)}, s{sWB} offen sc1"]
    ex_check = L(f"""
        v_min3_u32 v24, v{EG+1}, v{EG+3}, v{ER+1}
        v_max3_u32 v25, v{EG+1}, v{EG+3}, v{ER+1}
        v_min3_u32 v24, v24, v{EU+1}, v{EU+3}
        v_max3_u32 v25, v25, v{EU+1}, v{EU+3}
        v_cmp_ne_u32 vcc, s{sTAG}, v24
        v_cmp_ne_u32 s[{sT0}:{sT1}], s{sTAG}, v25
        s_or_b64 vcc, vcc, s[{sT0}:{sT1}]
        """)
    AP, BP, SS, vHO, TM = 22, 24, 26, 28, FR
    RM = row_math()
    def part(lst, i, n): return lst[len(lst) * i // n:len(lst) * (i + 1) // n]
    def os_(k, d=""): return ([o[len(k):] for o in opt if o.startswith(k)] + [d])[0]
    W = [0]
    def cum(t): return [sum(int(x) for x in t[:i]) for i in range(5)]
    def step(s, role):
        wi = W[0]
        c, j = divmod(s, 4)
        fill = []; pre = []; post = []
        if j == 0 and s < 32:
            a(I(wvm=f"c{c}", wlg="*"))
            a("s_barrier")
            stamp(f"B{c}")
            PR_ = os_(f"Rq{role}=")
            if PR_ and (c == 0 or PR_[c] != PR_[c - 1]): a(f"s_setprio {PR_[c]}")
            if "g1only" in opt and s == 20: a("s_waitcnt vmcnt(0)\ns_branch L_prof")
        if prof and os_(f"zz{s}="): a(f"s_sleep {os_(f'zz{s}=')}")
        if prof and os_(f"zy{s}="): a(f"s_cmp_lt_u32 s{sW}, 4\ns_cbranch_scc1 L_zy{s}\ns_sleep {os_(f'zy{s}=')}\nL_zy{s}:")
        DR = os_("drop=")
        if s == SWL: pre += [wp_load]
        if s == SPW: pre += [ap(wf_ld, 28, "apw", "fw")]
        if s == SKF: pre += [ap(kf_ld, 32, "apk", "kf")]
        if s == XE: pre += [I(x, vm="ex") for x in ex_ld]
        if s == 0:
            assert C1E in (0, 2, 4, 6)
            if 0 < C1E < 6: fill += [chunk_dma(1)[0][:4]]
            fill += chunk_dma(1)[C1E:]
            if "rowl" in opt: fill += row_load()
            if SHL == -5: fill += h_load(27)
        if c <= 5:
            cu = cum(os_(f"Re{role}=", "0222") if c == 0 and C1E < 6 else os_(f"Rd{role}{c}=", os_(f"Rd{role}=", "2121")))
            assert cu[4] == 6
            g = chunk_dma(c + 2)[cu[j]:cu[j + 1]]
            pm = os_(f"Rm{role}{c}=", os_(f"Rm{role}=", "0000"))[j]
            hp = os_(f"Rp{role}=", "0")
            if hp[0] != "0" and g:
                if pm == "0" and s: g = [[f"s_setprio {hp[0]}", x, "s_setprio 0"] for x in g]
                else: g = [f"s_setprio {hp[0]}"] + g + ["s_setprio 0"]
            if s == 0 or pm == "0": fill += g
            elif pm == "1": pre += g
            else: post += g
        if PF == str(s): fill += [prefetch(4)]
        IL = os_("il=", "")
        RD = reads(s) if s < 32 else []
        if IL:
            for x, t in zip(RD, "aaabbc"): x.lg += t
        if not IL or s == 0: a(RD)
        wp_rd = [I(f"ds_read_b64_tr_b16 {vr(WP,2)}, v{vWPA}", lg="wp", wvm="wpl"),
                 I(f"ds_read_b64_tr_b16 {vr(WP+2,2)}, v{vWPA} offset:512", lg="wp")]
        wp_st = I(f"buffer_store_dwordx4 {vr(WP,4)}, v{vWPS}, {sr(SWS,4)}, s{sWPS} offen sc1", vm="wps", wlg="wp")
        if s == 0:
            a(pre + fill + (wp_rd if SWR == 0 else [])); return
        p = s - 1
        v = []
        if s in (SHL, SHL + oi("hd", 2))[:1 if H1 else 2] and "h" not in DR:
            g = h_load(31)[(s - SHL) // oi("hd", 2)]
            if "hx" in opt: g[-1].text = g[-1].text.replace(sr(SH, 4), sr(SX, 4))
            if not (("1" in DR and s == SHL) or ("2" in DR and s != SHL)): fill += [g]
        if s == oi("tg", 4) and "t" not in DR: v += [I(tag_math[0], wvm="ep")] + tag_math[1:]
        if s == SWR and "w" not in DR: fill += wp_rd
        if s == SWR + 1 and "w" not in DR: fill = [wp_st] + fill if SWR == 0 else fill + [wp_st]
        RM0, RMN = oi("rm", 5), oi("rn", 5)
        if s == SRL:
            x = row_load()[1][4:]; x[-1].vm = "xr"; fill += [x]
        if SRL >= 0 and s == RM0: v += [I(f"s_mov_b32 s{sB}, 0x3f803f80", wvm="xr")]
        if SRL >= 0 and s == oi("wf", 11):
            fill += [[f"s_lshl_b32 s{sT2}, s{sA}, 3", f"s_add_u32 s{sT2}, s{sT2}, {WS_RS + 16384}"] +
                     one(f"buffer_store_dword v{vTAG}, off, {sr(SWS,4)}, s{sT2} offset:4 sc1", vm="wf", wvm="wps")]
        if RM0 <= s < RM0 + RMN and "t" not in DR: v += part(RM[:-1], s - RM0, RMN)
        if s == SRS and "r" not in DR: fill = [RM[-1]] + fill if "rsf" in opt else fill + [RM[-1]]
        if s == oi("cst", 10) and "c" not in DR: v += cs_store
        if s == 11 and "a" not in DR: v += [wf_addr]
        HM, HW = oi("hm", 21), oi("hw", 24)
        if HM <= s <= HM + 2: v += part(h_math, s - HM, 3)
        if s == SPW + oi("pd", 3): pre += [[I(wvm="fw")] + ne(vFL) + ["s_cbranch_scc0 L_fw_ok"] + spin("fw", ap(wf_ld, 28, "apw"), ne(vFL))]
        if s == 19: v += kf_addr
        if HW <= s <= HW + 2: v += [h_write[s - HW]]
        if s == XE - 1: v += ex_addr
        if s == SRD: fill = [[I(wvm="kf")] + ne(vKL) + [f"s_cselect_b32 s{sOK}, 0, 1"] +
                             ([f"s_cselect_b64 vcc, 0, -1"] + r_dma(24)[:-1] + ["s_mov_b64 exec, vcc", r_dma(24)[-1], "s_mov_b64 exec, -1"] if "mskr" in opt else r_dma(oi("rt", 24)))] + fill
        if s == 30: v += [f"v_mov_b32 v{r}, 0" for r in (EB0 + 1, EB0 + 3, EB1 + 1, EB1 + 3)] + [f"s_mov_b32 s{sB}, 0x03020302"]
        n = wsched.get(s, 0); fill += WL[wi:wi + n]; W[0] += n
        if s == 32:
            a(I(wvm="ex"))
            a(ex_check + ["s_cbranch_scc0 L_ex_ok"] + spin("ex", ex_ld, ex_check))
            v += L(f"""
            v_mov_b32 v{ER+1}, v{ER}
            v_permlane32_swap_b32 v{ER}, v{ER+1}
            v_perm_b32 v{EB0}, v{ER}, v{ER}, s{sB}
            v_perm_b32 v{EB0+2}, v{ER}, v{ER}, s{sB}
            v_perm_b32 v{EB1}, v{ER+1}, v{ER+1}, s{sB}
            v_perm_b32 v{EB1+2}, v{ER+1}, v{ER+1}, s{sB}
            v_lshlrev_b32 v{ER}, 16, v{ER}
            v_lshlrev_b32 v{ER+1}, 16, v{ER+1}
            """)
        hd = []
        if c <= 5 and os_(f"Rm{role}{c}=", os_(f"Rm{role}=", "0000"))[j] == "1": hd, pre = pre, []
        fill = pre + (mix(v, fill) if len(v) >= len(fill) else mix(fill, v)) if (v and fill) else pre + v + fill
        a(hd)
        f = F(p)
        MM = mfmas((f, f + 4), (f + 8, f + 12), p == 0, p)
        if prof and oi("my", 0) <= p < oi("mz", 0): MM = mfmas((180, 180), (180, 180) if "mzb" in opt else (f + 8, f + 12), p == 0, p)
        if IL:
            nm = len(MM)
            cu2 = lambda t: [sum(int(x) for x in t[:i]) for i in range(nm + 1)]
            rc = cu2(IL[:nm]); fc = cu2(IL[nm:2 * nm])
            assert rc[nm] == 6
            for i in range(nm):
                a(I(MM[i], wlg=f"r{p}" + ("abcc" if nm == 4 else "abbbcccc")[i]))
                a(RD[rc[i]:rc[i + 1]])
                a(fill[(len(fill) * fc[i] + fc[nm] // 2) // fc[nm]:(len(fill) * fc[i + 1] + fc[nm] // 2) // fc[nm]])
        else:
            a(I(wlg=f"r{p}"))
            NP_ = os_("np=")
            if prof and NP_ and p < len(NP_) and NP_[p] != "0": MM = [[m_] + ["s_nop 15"] * int(NP_[p]) for m_ in MM]
            a(mix(MM, fill))
        if p < 8 and "nocs" not in opt and "c" not in DR: a(cs_mfma(p))
        a(post)
        stamp(f"s{s}")
    if "split" in opt:
        a(f"s_cmp_lt_u32 s{sW}, 4\ns_cbranch_scc0 L_g1y")
        sv = (list(a.vq), list(a.lq), W[0])
        for s in range(24): step(s, "o")
        a(I(wvm="c6", wlg="*"))
        a("s_branch L_g1m")
        vo = list(a.vq)
        a("L_g1y:")
        a.vq, a.lq, W[0] = sv
        i0 = len(a.lines)
        for s in range(24): step(s, "y")
        a(I(wvm="c6", wlg="*"))
        defs = [x[:-1] for x in a.lines[i0:] if x.endswith(":")]
        for i in range(i0, len(a.lines)):
            for d in defs: a.lines[i] = re.sub(rf"\b{d}\b", d + "_y", a.lines[i])
        a("L_g1m:")
        a.vq = [tuple(set(vo + a.vq))]
        for s in range(24, 33): step(s, "o")
    else:
        for s in range(33): step(s, "o")
    wi = W[0]
    fill = []
    EO = oi("eo", 2)
    cA, cB, cS = ([lambda nt, b=b: b + nt for b in (AP, BP, SS)] if EO == 0 else
                  [lambda nt, b=b: FR + 16 + 6 * nt + b for b in (0, 2, 4)])
    for nt in range(2):
        if BI:
            fill += [f"v_rcp_f32 v{TM+nt}, v{ER+nt}"] + [f"v_mov_b32 v{cS(nt)+i}, {fx((-float(ESH), 2.0 ** -ESH)[nt])}" for i in range(2)]
            continue
        fill += [f"v_rcp_f32 v{TM+nt}, v{ER+nt}", f"v_mul_f32 v{cS(nt)}, v{ER+nt}, v{ER+nt}"]
        if EO == 2: fill += [f"v_mul_f32 v{cS(nt)+1}, v{ER+nt}, v{ER+nt}"]
    for nt in range(2):
        fill += [f"v_mul_f32 v{cA(nt)}, {fx(-KC)}, v{TM+nt}"]
        if EO == 2: fill += [f"v_mul_f32 v{cA(nt)+1}, {fx(-KC)}, v{TM+nt}"]
        fill += [f"v_mul_f32 v{TM+nt}, v{TM+nt}, v{TM+nt}",
                 f"v_mul_f32 v{TM+nt}, {fx(0.044715)}, v{TM+nt}", f"v_mul_f32 v{cB(nt)}, v{cA(nt)}, v{TM+nt}"]
        if EO == 2: fill += [f"v_mul_f32 v{cB(nt)+1}, v{cA(nt)}, v{TM+nt}"]
    sHF = SK
    fill += L(f"""
    v_bfe_u32 v{TM+8}, v0, 4, 1
    v_mul_u32_u24 v{TM+8}, 57344, v{TM+8}
    v_and_b32 v{TM+9}, 15, v0
    v_lshl_add_u32 v{TM+8}, v{TM+9}, 4, v{TM+8}
    v_lshrrev_b32 v{TM+9}, 5, v0
    v_lshl_add_u32 v{vHO}, v{TM+9}, 8, v{TM+8}
    s_mul_i32 s{sXB}, s{sKEY}, {4*56*1024}
    s_add_u32 s{sXB}, s{sXB}, s{sCSB}
    s_add_u32 s{sXB}, s{sXB}, {WS_H - WS_CS}
    s_add_u32 s{sWB}, s{sXB}, {2*56*1024}
    s_sub_u32 s{sHF}, s{sCSB}, {WS_CS}
    s_lshr_b32 s{sHF}, s{sHF}, {10 - FS}
    s_mul_i32 s{sT0}, s{sKEY}, {56 << FS}
    s_add_u32 s{sHF}, s{sHF}, s{sT0}
    s_add_u32 s{sHF}, s{sHF}, {WS_FH}
    """)
    a(mix(mfmas((EG, EU), (EB0, EB1), False, 2), fill))
    stamp("B8")
    if oi("pe", 0): a(f"s_setprio {oi('pe', 0)}")
    def epi(G, U, nt, rr, pk, plain=False):
        o = []
        t = {r: TM + 2 * i for i, r in enumerate(rr)}
        P = lambda x: vr(x, 2)
        s2 = (f"op_sel:[0,{nt},{nt}] op_sel_hi:[1,{nt},{nt}]", "op_sel_hi:[1,0,0]", "")[EO]
        AP, BP, SS = [f(nt) & ~1 for f in (cA, cB, cS)]
        if plain:
            e = [(t[r] + i, G + r + i, U + r + i) for r in rr for i in range(2)]
            o += [f"v_mul_f32 v{x}, v{g}, v{g}" for x, g, u in e]
            o += [f"v_fma_f32 v{x}, v{x}, v{BP}, v{AP}" for x, g, u in e]
            o += [f"v_mul_f32 v{x}, v{x}, v{g}" for x, g, u in e]
            o += mix([f"v_exp_f32 v{x}, v{x}" for x, g, u in e], [f"v_mul_f32 v{u}, v{u}, v{g}" for x, g, u in e])
            o += [f"v_fma_f32 v{x}, v{x}, v{SS}, v{SS}" for x, g, u in e]
            o += [f"v_rcp_f32 v{x}, v{x}" for x, g, u in e]
            o += [f"v_mul_f32 v{u}, v{u}, v{x}" for x, g, u in e]
            o += [f"v_cvt_pk_bf16_f32 v{pk+i}, v{U+r}, v{U+r+1}" for i, r in enumerate(rr)]
            return o
        o += [f"v_pk_mul_f32 {P(t[r])}, {P(G+r)}, {P(G+r)}" for r in rr]
        o += [f"v_pk_fma_f32 {P(t[r])}, {P(t[r])}, {P(BP)}, {P(AP)} {s2}" for r in rr]
        if BI:
            rr = list(rr); bt = [(rr[0], rr[1]), (rr[2], rr[3])]
            o += [f"v_pk_fma_f32 {P(t[r])}, {P(t[r])}, {P(G+r)}, {P(cS(0))}" for r in rr]
            ex = [f"v_exp_f32 v{t[r]+i}, v{t[r]+i} clamp" for r in rr for i in range(2)]
            ug = [f"v_pk_mul_f32 {P(U+r)}, {P(U+r)}, {P(G+r)}" for r in rr]
            ad = [f"v_pk_add_f32 {P(t[r])}, {P(t[r])}, {P(cS(1))}" for r in rr]
            M = [f"v_pk_mul_f32 {P(G+q)}, {P(t[p])}, {P(t[q])}" for p, q in bt]
            m = [f"v_mul_f32 v{G+p}, v{G+q}, v{G+q+1}" for p, q in bt]
            rc = [f"v_rcp_f32 v{G+p}, v{G+p}" for p, q in bt]
            cr = [f"v_pk_mul_f32 {P(U+x)}, {P(U+x)}, {P(t[y])}" for p, q in bt for x, y in ((p, q), (q, p))]
            N = [f"v_pk_mul_f32 {P(G+q)}, {P(G+q)}, {P(G+p)} op_sel:[1,0] op_sel_hi:[0,0]" for p, q in bt]
            fi = [f"v_pk_mul_f32 {P(U+x)}, {P(U+x)}, {P(G+q)}" for p, q in bt for x in (p, q)]
            cv = [f"v_cvt_pk_bf16_f32 v{pk+i}, v{U+r}, v{U+r+1}" for i, r in enumerate(rr)]
            o += [ex[0], ug[0], ex[1], ug[1], ex[2], ug[2], ex[3], ad[0], ex[4], ad[1], ug[3], ex[5], M[0], ex[6], m[0], ad[2],
                  ex[7], cr[0], rc[0], ad[3], cr[1], M[1], N[0], m[1], cr[2], rc[1], fi[0], fi[1], cr[3], N[1], cv[0], cv[1],
                  fi[2], fi[3], cv[2], cv[3]]
            return o
        o += [f"v_pk_mul_f32 {P(t[r])}, {P(t[r])}, {P(G+r)}" for r in rr]
        o += mix([f"v_exp_f32 v{t[r]+i}, v{t[r]+i}" for r in rr for i in range(2)],
                 [f"v_pk_mul_f32 {P(U+r)}, {P(U+r)}, {P(G+r)}" for r in rr])
        o += [f"v_pk_fma_f32 {P(t[r])}, {P(t[r])}, {P(SS)}, {P(SS)} {s2}" for r in rr]
        o += [f"v_rcp_f32 v{t[r]+i}, v{t[r]+i}" for r in rr for i in range(2)]
        o += [f"v_pk_mul_f32 {P(U+r)}, {P(U+r)}, {P(t[r])}" for r in rr]
        o += [f"v_cvt_pk_bf16_f32 v{pk+i}, v{U+r}, v{U+r+1}" for i, r in enumerate(rr)]
        return o
    HSP = ("sc1", "sc0 sc1", "sc1 nt", "sc0 sc1 nt", "", "nt")[oi("hsp", 0)]
    for nt in range(2):
        G = ACC + 16 * nt; U = ACC + 32 + 16 * nt
        for h in range(2):
            pk = TM + 8 + 4 * h
            seq = epi(G, U, nt, range(8 * h, 8 * h + 8, 2), pk, 2 * nt + h < oi('npl', 0))
            n = wepi[2 * nt + h]
            ex = WL[wi:wi + n]; wi += n
            q = 33 + 2 * nt + h
            if oi("hm", 21) == q: ex = ex + h_math
            if oi("hw", 24) == q: ex = ex + h_write
            if SRD == q: ex = ex + [[I(wvm="kf")] + ne(vKL) + [f"s_cselect_b32 s{sOK}, 0, 1"] + r_dma(24)]
            if SRD == q + 10: ex = [[I(wvm="kf")] + ne(vKL) + [f"s_cselect_b32 s{sOK}, 0, 1"] + r_dma(24)] + ex
            a(mix(seq, ex))
            so = sXB if nt == 0 else sWB
            a(I(f"buffer_store_dwordx4 {vr(pk,4)}, v{vHO}, {sr(SWS,4)}, s{so} offen offset:{512*h} {HSP}", vm="hs"))
            stamp(f"e{2*nt+h}")
    assert wi == NPRE
    a(f"s_branch {JOIN}")
    vq_join = list(a.vq)

    a(f"{AUX}:")
    if "noaux" in opt: a(f"s_branch {END}")
    a.vq, a.lq = list(vq_pro), []
    vKa, vKb, TP, vT, vKS, KR, KT = 1, 2, 32, 6, 10, 48, 96
    sKO, sKL = sXB, sWB
    a(row_load())
    AXL = oi("axl", 0)
    a(["s_nop 7"] * (len(SCN) > 0) + sc_init)
    if AXL & 2: a(h_load(27))
    if AXL & 1: a(I(wvm="ep")); a(tag_math); a(row_math())
    if AXL & 4: a(I(wvm="*"))
    if oi("asl", 0): a(f"s_sleep {oi('asl', 0)}")
    a(f"""
    s_xor_b32 s{sCB}, s{sXCD}, s{sW}
    v_and_b32 v23, 1, v21
    v_lshlrev_b32 v23, 1, v23
    v_xor_b32 v23, v22, v23
    v_lshlrev_b32 v23, 4, v23
    v_lshl_add_u32 v{vKa}, v20, 10, v23
    {f"v_lshlrev_b32 v{vKa}, 4, v0" if "kvlin" in opt else ""}
    v_xor_b32 v{vKb}, 64, v{vKa}
    s_lshl_b32 s{sKO}, s{sRBL}, 3
    s_add_u32 s{sKO}, s{sKO}, s{sW}
    s_mov_b32 s{sKEY}, s{sKO}
    s_lshl_b32 s{sKO}, s{sKO}, 16
    s_lshl_b32 s{sT0}, s{sCB}, {13 if "kvlin" in opt else 7}
    s_add_u32 s{sKO}, s{sKO}, s{sT0}
    s_mul_i32 s{sKL}, s{sW}, 17408
    s_mov_b32 m0, s{sKL}
    s_cmp_eq_u32 s{sKEY}, 0
    s_cbranch_scc1 L_halo0
    s_sub_u32 s{sT0}, s{sKO}, 8192
    buffer_load_dwordx4 v{vKa}, {sr(SK,4)}, s{sT0} offen lds
    s_branch L_halo1
    L_halo0:
    v_mov_b32 v40, 0
    v_mov_b32 v41, 0
    v_mov_b32 v42, 0
    v_mov_b32 v43, 0
    ds_write_b128 v{vL16}, v[40:43]
    L_halo1:
    """)
    def kv_ld(m, b, tag):
        lb = (1 + b) if m == 0 else (9 + b)
        par = (lb & 1) if m == 0 else (b & 1)
        return [f"s_add_u32 m0, s{sKL}, {1024*lb}", f"s_add_u32 s{sT0}, s{sKO}, {(1024 if 'kvlin' in opt else 8192)*b}",
                I(f"buffer_load_dwordx4 v{vKb if par else vKa}, {sr(SV if m else SK,4)}, s{sT0} offen{NTK} lds", vm=tag)]
    for b in range(4): a(kv_ld(0, b, "k0")); a(kv_ld(1, b, "k0"))
    a(f"""
    v_and_b32 v23, 15, v0
    v_lshlrev_b32 v26, 3, v23
    s_lshl_b32 s{sT1}, s{sCB}, 9
    """)
    for cg in range(4):
        a(I(f"buffer_load_dwordx2 {vr(TP+2*cg,2)}, v26, {sr(SSH,4)}, s{sT1} offen offset:{128*cg}", vm="k0"))
    for b in range(4, 8): a(kv_ld(0, b, "k1")); a(kv_ld(1, b, "k1"))
    if not AXL & 2: a(h_load(27))
    stamp("iss", 4)
    a(f"""
    v_lshlrev_b32 v26, 7, v24
    v_lshl_add_u32 v26, v21, 10, v26
    v_lshl_add_u32 v26, v25, 3, v26
    v_lshrrev_b32 v27, 1, v24
    v_lshl_add_u32 v26, v27, 5, v26
    v_and_b32 v27, 1, v21
    v_lshl_add_u32 v26, v27, 6, v26
    v_add_u32 v{vT}, s{sKL}, v26
    v_xor_b32 v{vT+1}, 32, v{vT}
    v_xor_b32 v{vT+2}, 64, v{vT}
    v_xor_b32 v{vT+3}, 96, v{vT}
    v_lshrrev_b32 v26, 1, v23
    v_lshlrev_b32 v26, 13, v26
    v_and_b32 v27, 1, v0
    v_lshl_add_u32 v26, v27, 4, v26
    v_sub_u32 v27, 3, v21
    v_lshl_add_u32 v{vKS}, v27, 5, v26
    s_lshl_b32 s{sKO}, s{sCB}, 18
    s_lshl_b32 s{sT0}, s{sKEY}, 8
    s_sub_u32 s{sKO}, s{sKO}, s{sT0}
    s_add_u32 s{sKO}, s{sKO}, {WS_KV + 8192 - 256}
    """)
    if not AXL & 1: a(I(wvm="ep")); a(tag_math); a(row_math())
    stamp("rs", 1)
    def kv_read(hh, cg):
        r = KR + 10 * cg; t = f"kr{cg}"
        return [I(f"ds_read_b64_tr_b16 {vr(r,2)}, v{vT+cg} offset:{4096*hh+512}", lg=t),
                I(f"ds_read_b64_tr_b16 {vr(r+2,2)}, v{vT+(cg^2)} offset:{4096*hh+1024}", lg=t),
                I(f"ds_read_b64_tr_b16 {vr(r+4,2)}, v{vT+(cg^2)} offset:{4096*hh+1536}", lg=t),
                I(f"ds_read_b64_tr_b16 {vr(r+6,2)}, v{vT+cg} offset:{4096*hh+9216}", lg=t),
                I(f"ds_read_b64_tr_b16 {vr(r+8,2)}, v{vT+cg} offset:{4096*hh+9728}", lg=t)]
    def kv_math(hh, cg):
        r = KR + 10 * cg; q, u, w, pk = KT, KT + 8, KT + 16, KT + 24 + 4 * (cg & 1)
        o = [I(wlg=f"kr{cg}")]
        o += [f"v_alignbit_b32 v{q+i}, v{r+i}, v{r+i-1}, 16" for i in range(1, 6)]
        src = lambda t, back: (r if t & 1 else q) + 2 + t // 2 - back
        for t in (1, 3, 5, 7, 0, 2, 4, 6): o += [f"v_dot2_f32_bf16 v{u+t}, v{src(t,0)}, v{TP+2*cg}, 0"]
        for t in (1, 3, 5, 7, 0, 2, 4, 6): o += [f"v_dot2_f32_bf16 v{u+t}, v{src(t,1)}, v{TP+2*cg+1}, v{u+t}"]
        o += [f"v_and_b32 v{w+t}, 0xffff0000, v{r+6+t//2}" if t & 1 else f"v_lshlrev_b32 v{w+t}, 16, v{r+6+t//2}" for t in range(8)]
        o += [f"v_mul_f32 v{u+t}, v{u+t}, v{w+t}" for t in range(8)]
        o += [f"v_cvt_pk_bf16_f32 v{pk+e}, v{u+7-2*e}, v{u+6-2*e}" for e in range(4)]
        o += [f"s_add_u32 s{sT0}, s{sKO}, {65536*cg}",
              I(f"buffer_store_dwordx4 {vr(pk,4)}, v{vKS}, {sr(SWS,4)}, s{sT0} offen offset:{128*(1-hh)} sc1", vm="ks")]
        return o
    for hh in range(2):
        a(I(wvm=f"k{hh}", wlg="*"))
        stamp("kin", 5 + 2 * hh)
        for cg in range(4): a(kv_read(hh, cg))
        if hh == 0:
            for d in range(8): a(f"v_alignbit_b32 v{TP+d}, v{TP+d}, v{TP+d}, 16")
        for cg in range(4): a(kv_math(hh, cg))
        stamp("km", 6 + 2 * hh)
    a(h_math); a(wf_addr)
    vKA2, vKL2 = 27, 28
    ld2 = f"buffer_load_dword v{vKL2}, v{vKA2}, {sr(SWS,4)}, s{sA} offen sc1"
    a(f"""
    s_lshl_b32 s{sT0}, s{sCB}, 5
    s_add_u32 s{sT0}, s{sT0}, s{sKEY}
    s_lshl_b32 s{sT0}, s{sT0}, 2
    s_add_u32 s{sT0}, s{sT0}, {WS_FKV}
    v_lshlrev_b32 v26, 10, v0
    v_lshlrev_b32 v{vKA2}, 3, v0
    s_lshl_b32 s{sA}, s{sRT2}, 9
    s_add_u32 s{sA}, s{sA}, {WS_RS + 4}
    """)
    a([I("s_mov_b64 exec, 3", wvm="*"), f"buffer_store_dword v{vTAG}, v26, {sr(SWS,4)}, s{sT0} offen sc1", "s_mov_b64 exec, -1"])
    stamp("kvf", 2)
    if "dmaonly" in opt or "g1only" in opt: a("s_branch L_prof")
    ck2 = [f"v_xor_b32 v{vFL}, s{sTAG}, v{vFL}", f"v_xor_b32 v{vKL2}, s{sTAG}, v{vKL2}", f"v_or_b32 v{vFL}, v{vFL}, v{vKL2}",
           f"v_cmp_ne_u32 vcc, 0, v{vFL}", "s_cmp_lg_u64 vcc, 0"]
    a("s_barrier")
    a(h_write)
    a(kf_addr); a(f"s_add_u32 s{sC}, s{sC}, 1024")
    stamp("wd", 3)
    a(spin("fwa", ap(wf_ld, 28, "apx") + ap(ld2, 64, "apx"), ck2))
    a(f"""
    s_cmp_lg_u32 s2, 0
    s_cbranch_scc1 L_ep_ok
    s_add_u32 s{sT0}, s{sM0X}, {WS_RS}
    """)
    a(spin("ep", [f"buffer_load_dwordx4 v[32:35], v{vL16}, {sr(SWS,4)}, s{sT0} offen sc1",
                  f"buffer_load_dwordx4 v[36:39], v{vL16}, {sr(SWS,4)}, s{sT0} offen offset:1024 sc1"],
           [f"v_xor_b32 v{r}, s{sTAG}, v{r}" for r in (33, 35, 37, 39)] +
           ["v_or3_b32 v33, v33, v35, v37", "v_or_b32 v33, v33, v39", "v_cmp_ne_u32 vcc, 0, v33", "s_cmp_lg_u64 vcc, 0"]))
    NA = oi("na", 8)
    a(WL[:NA])
    a(spin("kva", ap(kf_ld, 32, "apx"), ne(vKL)))
    a.vq = []
    a(r_dma(24)); a(WL[NA:NPRE]); a(I(wvm="R"))
    a(f"s_branch L_kvok")

    a(f"{JOIN}:")
    a.vq, a.lq = list(vq_join), []
    stamp("join")
    if oi("pe", 0): a("s_setprio 0")
    okv = ("s%d" % sOK) if "nocv" in opt else "1"
    a(f"s_cmp_eq_u32 s{sOK}, {okv}\ns_cbranch_scc1 L_kvok")
    a(spin("kv", ap(kf_ld, 32, "apk"), ne(vKL)))
    sv = list(a.vq); a(r_dma(24)); a(I(wvm="*")); a.vq = sv
    a("L_kvok:")
    CA, AF, BF = 32, 64, 128
    vRU, vRH, vPW, vPR, vZW, vZR, vYA, vYR, vOO = 2, 3, 4, 10, 11, 12, 13, 14, 30
    vXF, XN, vRC = 20, 22, 6
    vXF = 1
    sCH, sWQ, sCVB, sRHO = SV, SV + 1, SV + 2, SV + 3
    sOQ = SSH
    a(f"""
    s_lshr_b32 s{sCH}, s{sW}, 2
    s_and_b32 s{sWQ}, s{sW}, 3
    s_mul_i32 s{sCVB}, s{sCH}, {CVCH}
    s_add_u32 s{sCVB}, s{sCVB}, {L_CV}
    s_lshl_b32 s{sT0}, s{sWQ}, 7
    s_add_u32 s{sT0}, s{sT0}, s{sCVB}
    s_add_u32 s{sT1}, s{sT0}, 480
    v_and_b32 v15, 15, v0
    v_and_b32 v16, 48, v0
    v_lshlrev_b32 v31, 5, v15
    v_sub_u32 v31, v16, v31
    v_add_u32 v{vRU}, s{sT1}, v31
    s_add_u32 s{sT1}, s{sT0}, {4608 - 28 + 4160 + 3072}
    v_and_b32 v31, 1, v0
    v_mul_u32_u24 v31, 4160, v31
    v_sub_u32 v31, v16, v31
    v_bfe_u32 v{vRH}, v0, 1, 3
    v_lshl_add_u32 v31, v{vRH}, 2, v31
    v_add_u32 v{vRH}, s{sT1}, v31
    """)
    KHF = oi("hf", 5)
    hf_st = [f"s_cmp_eq_u32 s{sISG}, 0", "s_cbranch_scc1 L_nohf", I(wvm="hs"),
             line(sHF), "L_nohf:"]
    HP = oi("hp", 0)
    if HP:
        pre = [f"s_xor_b32 s{sT0}, s{sXCD}, s{sWR}", f"s_bitcmp1_b32 s{sT0}, 0", "s_cbranch_scc1 L_nohf"]
        if HP == 1:
            pre += ["v_lshrrev_b32 v13, 4, v0", "v_mul_u32_u24 v13, 57344, v13", "v_lshl_add_u32 v13, v15, 6, v13",
                    f"buffer_load_dword v14, v13, {sr(SWS,4)}, s{sXB} offen sc1"]
        if HP == 2:
            pre += ["v_lshrrev_b32 v13, 3, v0", "v_mul_u32_u24 v13, 57344, v13", "v_and_b32 v14, 7, v0", "v_lshl_add_u32 v13, v14, 7, v13",
                    "s_mov_b32 exec_hi, 0", f"buffer_load_dword v14, v13, {sr(SWS,4)}, s{sXB} offen sc1", "s_mov_b32 exec_hi, -1"]
        hf_st = hf_st[:-1] + pre + hf_st[-1:]
    if KHF < 0: a(hf_st); stamp("hflag")
    AM = oi("am", 0)
    a(f"s_cmp_eq_u32 s{sISG}, 0")
    if AM: a(f"s_cselect_b32 s{sOK}, 0, 0xff")
    a("s_cbranch_scc1 L_nowr")
    a(I(wvm="R"))
    a("L_nowr:")
    a(I(wlg="*"))
    if "noc1" not in opt: a("s_barrier")
    stamp("c1")
    a(f"s_or_b32 s{sT0}, s2, s{sW}\ns_cbranch_scc1 L_noep")
    a(one(f"buffer_store_dword v{vTAG}, off, {sr(SWS,4)}, 0 offset:{WS_EPOCH} sc1"))
    a("L_noep:")
    order = [(0, p) for p in range(7, -1, -1)] + [(1, p) for p in range(8)]
    def uread(rr, d): return I(f"ds_read_b128 {vr(AF+32*rr+4*d,4)}, v{vRU} offset:{512*(7-d)+64*rr}", lg=f"a{rr}{d}")
    def hread(k):
        rr, p = order[k]; o = 128 * (p & 1) + 16 * rr; b = BF + 4 * (k % 4)
        g = []
        if rr == 0 and p in (5, 3, 1): g += [f"v_subrev_u32 v{vRH}, 1024, v{vRH}"]
        if rr == 1 and p in (2, 4, 6): g += [f"v_add_u32 v{vRH}, 1024, v{vRH}"]
        return g + [I(f"ds_read2_b32 {vr(b,2)}, v{vRH} offset0:{o} offset1:{o+1}", lg=f"b{k}"),
                    I(f"ds_read2_b32 {vr(b+2,2)}, v{vRH} offset0:{o+2} offset1:{o+3}", lg=f"b{k}")]
    PC, PG = os_("pc="), os_("pg=")
    if PC: a(f"s_setprio {PC[0]}")
    for k in range(3): a(hread(k)); a(uread(0, k))
    for d in range(3, 8): a(uread(0, d))
    XV = 6
    fin_addr = L(f"""
        s_and_b32 s{sRHO}, s{sCT2}, 3
        s_lshl_b32 s{sT0}, s{sRT2}, 3
        s_add_u32 s{sT0}, s{sT0}, s{sW}
        s_lshl_b32 s{sOQ}, s{sT0}, 13
        s_lshl_b32 s{sT1}, s{sCT2}, 7
        s_add_u32 s{sOQ}, s{sOQ}, s{sT1}
        s_lshl_b32 s{sT0}, s{sT0}, 6
        s_add_u32 s{sOQ+1}, s{sT0}, {WS_RS}
        v_and_b32 v31, 3, v0
        v_lshrrev_b32 v1, 5, v0
        v_lshl_add_u32 v31, v1, 2, v31
        v_and_b32 v{vOO}, 28, v0
        v_lshlrev_b32 v{vOO}, 2, v{vOO}
        v_lshl_add_u32 v{vOO}, v31, 10, v{vOO}
        v_lshlrev_b32 v1, 3, v31
        """)
    fin_ld = [I(f"buffer_load_dwordx4 {vr(XV,4)}, v{vOO}, {sr(SX,4)}, s{sOQ} offen", vm="xt"),
              I(f"buffer_load_dword v{XN+7}, v1, {sr(SWS,4)}, s{sOQ+1} offen sc1", vm="xt")]
    if "to" in opt: fin_ld = [I(f"buffer_load_dword v{XN+6}, off, {sr(SOUT,4)}, s{sOQ}", vm="xt")] + fin_ld
    vZS = 2
    def zsc(r):
        if not BI: return []
        return [f"v_mul_f32 v{vZS}, {fx(2.0 ** -ESH)}, v{r}", f"v_mul_f32 v{vZS}, v{vZS}, v{r}", f"v_mul_f32 v{r}, v{vZS}, v{r}",
                f"v_mul_f32 v{vZS}, {fx(-1.4426950408889634)}, v{vZS}"]
    def unpack(d, x): return [f"v_and_b32 v{d+e}, 0xffff0000, v{x+e//2}" if e & 1 else f"v_lshlrev_b32 v{d+e}, 16, v{x+e//2}" for e in range(8)]
    xn_math = ([I(f"v_lshlrev_b32 v20, 16, v{XN+7}", wvm="xt"), f"v_and_b32 v21, 0xffff0000, v{XN+7}", "v_rcp_f32 v20, v20"] +
               unpack(XN, XV) + [f"v_add_f32 v{XN+e}, v{XN+e}, v21" for e in range(8)] + zsc(20) +
               [f"v_mul_f32 v{XN+e}, v{XN+e}, v20" for e in range(8)])
    p_addr = L(f"""
        v_bfe_u32 v20, v0, 1, 2
        v_bfe_u32 v21, v0, 3, 1
        v_xor_b32 v20, v20, v21
        v_lshlrev_b32 v20, 4, v20
        v_xor_b32 v20, v20, v16
        v_lshl_add_u32 v20, v15, 6, v20
        s_lshl_b32 s{sT0}, s{sW}, 13
        v_add_u32 v{vPW}, s{sT0}, v20
        v_bfe_u32 v20, v0, 2, 2
        v_bfe_u32 v21, v0, 4, 1
        v_xor_b32 v20, v20, v21
        v_lshlrev_b32 v20, 4, v20
        v_lshlrev_b32 v21, 5, v0
        v_xor_b32 v20, v20, v21
        s_lshl_b32 s{sT0}, s{sCH}, 15
        s_lshl_b32 s{sT1}, s{sWQ}, 11
        s_add_u32 s{sT0}, s{sT0}, s{sT1}
        v_add_u32 v{vPR}, s{sT0}, v20
        """)
    HB, ZA, NS = 64, 32, 16
    sH1, sH2, sHQ = sXB, sWB, sKEY
    def HR(n): return HB + 4 * (n % NS if n % NS < 8 else 23 - n % NS)
    sMK = sA
    def hload(n, mask=False):
        qd, ks = divmod(n, 7)
        g = []
        if ks == 0:
            g += [f"s_xor_b32 s{sT3}, s{sRHO}, {qd}", f"s_mul_i32 s{sT3}, s{sT3}, 57344", f"s_add_u32 s{sH1}, s{sHQ}, s{sT3}",
                  f"s_sub_u32 s{sH2}, s{sH1}, s{sRB}"]
        t = I(f"buffer_load_dwordx4 {vr(HR(n),4)}, v{vL16}, {sr(SWS,4)}, s{sH1 if ks < 4 else sH2} offen offset:{(ks&3)*1024} sc1", vm=f"h{n}")
        if "hx2" in opt: return g + [f"s_mov_b64 exec, {sr(sMK,2)}" if mask else "s_nop 0", "s_mov_b32 exec_hi, 0", t, "s_mov_b64 exec, -1"]
        if "hx1" in opt: t = I(t.text.replace("dwordx4 " + vr(HR(n),4), "dword " + vr(HR(n),1)).replace(f"v{vL16},", "v15,"), vm=f"h{n}")
        return g + ([f"s_mov_b64 exec, {sr(sMK,2)}", t, "s_mov_b64 exec, -1"] if mask and "nomask" not in opt else [t])
    def again(n1):
        sv = list(a.vq)
        for n in range(n1): a(hload(n))
        a.vq = sv
    h_addr = L(f"""
        s_mul_i32 s{sHQ}, s{sRT2}, {4*56*1024}
        s_mul_i32 s{sT1}, s{sW}, 7168
        s_add_u32 s{sHQ}, s{sHQ}, s{sT1}
        s_mul_i32 s{sT1}, s{sHI}, 3072
        s_add_u32 s{sHQ}, s{sHQ}, s{sT1}
        s_add_u32 s{sHQ}, s{sHQ}, {WS_H}
        s_mul_i32 s{sRB}, s{sHI}, 7168
        s_sub_u32 s{sRB}, s{sRB}, 4096
        s_lshl_b32 s{sE}, s{sRT2}, 3
        s_add_u32 s{sE}, s{sE}, s{sW}
        s_mul_i32 s{sE}, s{sE}, {7 << FS}
        s_add_u32 s{sE}, s{sE}, {WS_FH + 4}
        v_min_u32 v{vFA}, 6, v0
        v_lshlrev_b32 v{vFA}, {FS}, v{vFA}
        """)
    KH, KR_, KA, KB = oi("kh", 8), oi("kq", 3), oi("ka", 6), oi("kb", 11)
    assert 8 <= KH <= 15 and KA < KH <= KB and KHF < KH
    PM = [o[3:].replace("_", " ") for o in opt if o.startswith("pm=")]
    def poll(at, vm=None, am=False):
        if not at:
            t = wf_ld.replace("sc1", PM[0]) if PM else wf_ld
            return [I(t, vm=vm)]
        return [f"v_mov_b32 v{vFL}, 0"] + ([f"s_mov_b32 exec_lo, s{sOK}", "s_mov_b32 exec_hi, 0"] if am else ["s_mov_b64 exec, 0xff"]) + [
                I(f"buffer_atomic_or v{vFL}, v{vFA}, {sr(SWS,4)}, s{sE} offen sc0 sc1", vm=vm), "s_mov_b64 exec, -1"]
    def ne8(at): return [f"v_cmp_ne_u32 vcc, s{sTAG}, v{vFL}", "s_and_b32 vcc_lo, vcc_lo, 0xff"] if at else ne(vFL)
    AH, AY = "aph" in opt or "apa" in opt, "apy" in opt or "apa" in opt
    hf_ld = poll(AH)
    hn = 0
    NB = oi("nb", NS); YL = [int(x) for x in os_("yl=", "0000")]; NY = NB + sum(YL); GQ = oi("gq", 2)
    assert NY <= NS
    def yl(i):
        for n in range(NB + sum(YL[:i]), NB + sum(YL[:i + 1])): a(hload(n, True))
    def pwrite(j): return I(f"ds_write_b128 v{vPW}, {vr(CA+4*j,4)} offset:{1024*j}", lg="pw")
    sYS = sCB
    if "nocv" in opt:
        a(fin_addr); a(h_addr)
        if "wtf" in opt: a(WL[NPRE:]); a(fin_ld)
        a(hf_st)
        if "bar2" in opt: a("s_barrier")
        if "wtf" not in opt: a(WL[NPRE:]); a(fin_ld)
        stamp("k1")
        a(xn_math)
        if "blind" not in opt: a(spin("hf0", [f"s_sleep {oi('sl', 0)}", hf_ld], ne8(AH)))
        stamp("k11")
        a.vq = []
        for n in range(NS): a(hload(n))
        a(f"s_mov_b32 s{sMK}, -1")
        a(I(wlg="*"))
        stamp("c3")
    else:
        for k, (rr, p) in enumerate(order):
            seq = []
            for j in range(p, 8):
                c = "0" if (rr == 0 and j == p) else vr(CA + 4 * j, 4)
                seq.append(I(f"v_mfma_f32_16x16x32_bf16 {vr(CA+4*j,4)}, {vr(BF+4*(k%4),4)}, {vr(AF+32*rr+4*(j-p),4)}, {c}",
                             wlg=[f"a{rr}{j-p}", f"b{k}"]))
            fill = []
            if k == 1: fill += [fin_addr]
            WK = os_("wk=")
            if WK:
                assert sum(int(x) for x in WK) == 28 - NPRE
                w0 = NPRE + sum(int(x) for x in WK[:k]); fill += WL[w0:w0 + int((WK + "0" * 16)[k])]
            elif 1 <= k <= 6: fill += part(WL[NPRE:], k - 1, 6)
            if k == oi("kx", 3): fill += fin_ld
            if 4 <= k <= 7: fill += [uread(1, 2 * (k - 4)), uread(1, 2 * (k - 4) + 1)]
            if k in (6, 7): fill += part(p_addr, k - 6, 2)
            if 8 <= k <= 11 and "xg" not in opt: fill += part(xn_math, k - 8, 4)
            if k >= 9: fill = fill[:2] + [pwrite(p - 1)] + fill[2:]
            if k == 2: fill += [h_addr]
            if k == KHF and "hb" not in opt: fill += [hf_st]
            if k == KA and "hb" not in opt: fill += [poll(AH, "hf", AM & 1)]
            if k == KH and "hb" in opt: a(f"s_mov_b64 {sr(sMK,2)}, -1")
            elif k == KH: a([I(wvm="hf")] + ne8(AH) + [f"s_cselect_b64 {sr(sMK,2)}, 0, -1"])
            if k == KB: fill += [[f"s_cmp_lg_u32 s{sMK}, 0", "s_cbranch_scc1 L_nof2", poll(AH, None, AM & 2), "L_nof2:"]]
            if k >= KH:
                e = min(hn + KR_, k, NB); hl = [hload(n, True) for n in range(hn, e)]; hn = max(hn, e)
                fill = mix(fill, hl) if len(fill) >= len(hl) else mix(hl, fill)
            a(mix(seq, fill))
            if k + 3 < 16: a(hread(k + 3))
            if PC and PC[k + 1] != PC[k]: a(f"s_setprio {PC[k + 1]}")
            stamp(f"k{k}")
        a(f"""
        s_lshl_b32 s{sT1}, s{sWQ}, 10
        s_sub_u32 s{sT1}, s{sCVB}, s{sT1}
        s_add_u32 s{sT1}, s{sT1}, 4080
        v_sub_u32 v20, s{sT1}, v{vL16}
        v_xor_b32 v21, 16, v{vPR}
        """)
        a(pwrite(7))
        for n in range(hn, NB): a(hload(n, True))
        a([f"s_cmp_lg_u32 s{sMK}, 0", "s_cbranch_scc1 L_hlate", "s_waitcnt vmcnt(0)"] + ne8(AH) +
          [f"s_cselect_b64 {sr(sMK,2)}, 0, -1", "s_cbranch_scc1 L_hlate"])
        again(NB)
        a("L_hlate:")
        sYS = sCB
        a(I(wlg="*"))
        a("s_barrier")
        stamp("c3")
        if "py" in opt: a("s_setprio 3")
        PR, vU, YA = 32, 128, 132
        a(I(f"ds_read_b128 {vr(vU,4)}, v20", lg="su"))
        for k in range(4):
            a(I(f"ds_read_b128 {vr(PR+8*k,4)}, v{vPR} offset:{8192*k}", lg=f"p{k}"))
            a(I(f"ds_read_b128 {vr(PR+8*k+4,4)}, v21 offset:{8192*k}", lg=f"p{k}"))
        a(f"""
        s_lshl_b32 s{sT1}, s{sCH}, 4
        s_lshr_b32 s{sD}, s{sD}, s{sT1}
        s_lshl_b32 s{sD}, s{sD}, 16
        s_lshl_b32 s{sT1}, s{sCP}, 13
        s_lshl_b32 s{sT3}, s{sW}, 10
        s_add_u32 s{sT1}, s{sT1}, s{sT3}
        s_add_u32 s{sT1}, s{sT1}, {WS_YT}
        s_lshl_b32 s{sYS}, s{sWQ}, 9
        s_lshl_b32 s{sT3}, s{sCP}, 1
        s_add_u32 s{sYS}, s{sYS}, s{sT3}
        s_add_u32 s{sYS}, s{sYS}, s{sCH}
        s_lshl_b32 s{sT3}, s{sYS}, 7
        s_and_b32 s{sT3}, s{sT3}, 0x380
        v_xor_b32 v31, s{sT3}, v{vL16}
        s_lshl_b32 s{sYS}, s{sYS}, {FS}
        s_add_u32 s{sYS}, s{sYS}, {WS_FY}
        """)
        yl(0)
        stamp("y0")
        a(I(wlg="su"))
        stamp("y1")
        for e in range(4):
            a(f"v_and_b32 v{YA+6-2*e}, 0xffff0000, v{vU+e}\nv_lshlrev_b32 v{YA+7-2*e}, 16, v{vU+e}")
        yl(1)
        a(I(wlg="p0"))
        for e in range(8): a(f"v_fma_f32 v{YA+e}, v{YA+e}, s{sD}, v{PR+e}")
        yl(2)
        a(I(wlg="p2"))
        def add8(d, x):
            if "ynp" in opt:
                for e in range(8): a(f"v_add_f32 v{d+e}, v{d+e}, v{x+e}")
            else:
                for e in range(0, 8, 2): a(f"v_pk_add_f32 {vr(d+e,2)}, {vr(d+e,2)}, {vr(x+e,2)}")
        add8(PR + 8, PR + 16)
        yl(3)
        a(I(wlg="p3"))
        stamp("y2")
        a(f"s_lshl_b32 s{sT3}, s{sW}, 2\ns_add_u32 s{sT3}, s{sT3}, {L_CNT}\nv_mov_b32 v20, s{sT3}")
        a(I(f"ds_write_b32 v20, v{vTAG}", lg="cw"))
        add8(YA, PR + 24)
        add8(YA, PR + 8)
        for e in range(4): a(f"v_cvt_pk_bf16_f32 v{vU+e}, v{YA+2*e}, v{YA+2*e+1}")
        stamp("y3")
        a(I(f"buffer_store_dwordx4 {vr(vU,4)}, v31, {sr(SWS,4)}, s{sT1} offen sc1", vm="ys"))
    stamp("ys")
    if PG or "py" in opt: a(f"s_setprio {PG[0] if PG else 0}")
    a(f"s_cmp_lg_u32 s{sMK}, 0\ns_cbranch_scc1 L_hgo")
    a(spin("hf", [hf_ld], ne8(AH)))
    stamp("hsp")
    again(NY)
    hn = NY
    a(line(sYS))
    a("L_hgo:")
    stamp("hok")
    sYA, sYF, sSEL = sMO, sE, SK
    YO = "yo" in opt
    sYW = sMO + 1 if YO else sW
    g2_addr = L(f"""
    v_lshrrev_b32 v20, 4, v0
    s_lshl_b32 s{sT1}, s{sRBL}, 2
    v_xor_b32 v21, v20, v15
    v_xor_b32 v21, s{sT1}, v21
    v_lshlrev_b32 v21, 4, v21
    v_lshl_add_u32 v21, v15, 8, v21
    s_lshl_b32 s{sT1}, s{sW}, 12
    v_add_u32 v{vZW}, s{sT1}, v21
    s_lshl_b32 s{sT1}, s{sW}, 1
    v_lshrrev_b32 v1, 5, v0
    v_add_u32 v21, s{sT1}, v1
    v_and_b32 v20, 3, v0
    v_xor_b32 v31, s{sRHO}, v20
    v_lshrrev_b32 v{vZR}, 1, v0
    v_and_b32 v{vZR}, 14, v{vZR}
    v_xor_b32 v{vZR}, v{vZR}, v21
    v_xor_b32 v{vZR}, v{vZR}, v31
    v_lshlrev_b32 v{vZR}, 4, v{vZR}
    v_lshl_add_u32 v{vZR}, v21, 8, v{vZR}
    s_mov_b32 s{sT1}, {sum((L_Z[q] >> 15) << (8 * q) for q in range(4))}
    v_lshlrev_b32 v31, 3, v31
    v_bfe_u32 v31, s{sT1}, v31, 8
    v_lshl_add_u32 v{vZR}, v31, 15, v{vZR}
    v_bfe_u32 v31, v0, 4, 1
    v_lshl_add_u32 v20, v31, 2, v20
    v_xor_b32 v21, s{sW}, v20
    v_lshlrev_b32 v21, 4, v21
    v_lshl_add_u32 v21, v1, 3, v21
    v_lshl_add_u32 v21, v20, 10, v21
    v_bfe_u32 v31, v0, 2, 2
    v_lshl_add_u32 v21, v31, 7, v21
    v_add_u32 v{vYR}, {L_Y}, v21
    v_and_b32 v21, 7, v0
    {f"s_lshl_b32 s{sYW}, s{sW}, 1" if YO else ""}
    v_xor_b32 v20, s{sYW}, v21
    v_lshlrev_b32 v20, 4, v20
    v_lshrrev_b32 v31, 3, v0
    v_lshl_add_u32 v20, v31, 12, v20
    s_and_b32 s{sT1}, s{sRT2}, 7
    v_xor_b32 v31, s{sT1}, v31
    v_lshl_add_u32 v{vYA}, v31, 7, v20
    v_lshlrev_b32 v{vFA}, {FS}, v{15 if YO else 21}
    v_lshlrev_b32 v1, 2, v21
    v_add_u32 v1, {L_CNT}, v1
    s_lshl_b32 s{sT1}, s{sCT2}, 3
    s_add_u32 s{sT1}, s{sT1}, s{sYW}
    s_lshl_b32 s{sYA}, s{sT1}, 15
    s_and_b32 s{sT0}, s{sRT2}, 24
    s_lshl_b32 s{sT0}, s{sT0}, 7
    s_add_u32 s{sYA}, s{sYA}, s{sT0}
    s_add_u32 s{sYA}, s{sYA}, {WS_YT}
    s_lshl_b32 s{sYF}, s{sT1}, {FS + 3}
    s_lshr_b32 s{sT0}, s{sRT2}, 3
    s_lshl_b32 s{sT0}, s{sT0}, {FS + 9}
    s_add_u32 s{sYF}, s{sYF}, s{sT0}
    s_add_u32 s{sYF}, s{sYF}, {WS_FY + 4}
    s_mov_b32 s{sSEL}, {fx(-1.4426950408889634)}
    s_mov_b32 s{sSEL+1}, s{sSEL}
    s_mov_b32 s{sSEL+2}, 1.0
    s_mov_b32 s{sSEL+3}, 1.0
    s_lshl_b32 s{sT0}, s{sYW}, 10
    s_add_u32 m0, s{sT0}, {L_Y}
    """)
    ZT, XF, YR, YF = 64, 128, 136, 32
    def zwrite(qd):
        hi, lo = L_Z[qd] & ~0xffff, L_Z[qd] & 0xffff
        return [[f"v_xor_b32 v20, {hi + 64*mt + 16*qd}, v{vZW}",
                 I(f"ds_write_b128 v20, {vr(ZA+16*(qd&1)+4*mt,4)} offset:{lo}", lg="zw")] for mt in range(4)]
    xn_g = ([f"v_lshlrev_b32 v16, 16, v{XN+7}", f"v_and_b32 v4, 0xffff0000, v{XN+7}", "v_rcp_f32 v16, v16"] +
            [f"v_add_f32 v{XN+e}, v{XF+e}, v4" for e in range(8)] + zsc(16) + [f"v_mul_f32 v{XN+e}, v{XN+e}, v16" for e in range(8)])
    NYF, NYP, NYC = oi("nyf", 8), oi("nyp", 16), oi("nyc", 21)
    NG, ZS = oi("ng", 6), oi("zs", 1)
    y_ld = f"buffer_load_dwordx4 v{vYA}, {sr(SWS,4)}, s{sYA} offen sc1 lds"
    if YO:
        y_ld = [y_ld, f"v_xor_b32 v{vFL}, 16, v{vYA}", "s_add_u32 m0, m0, 1024", f"s_add_u32 s{sYA}, s{sYA}, 32768",
                y_ld.replace(f"v{vYA},", f"v{vFL},")]
    def wide(x): return [[y.replace("0xff", "0xffff") if isinstance(y, str) else y for y in x]] if YO else x
    cn_ld = "ds_read_b32 v31, v1"
    cn_ck = ["v_cmp_eq_u32 vcc, 0, v31", "s_cmp_lg_u64 vcc, 0", "s_cbranch_scc0 L_cn_ok"]
    for n in range(28):
        qd, ks = divmod(n, 7)
        a(I(wvm=[f"h{n}", f"wd{ks}"]))
        if n == NYF: a(line(sYS, wvm="ys", vm="yf"))
        if n == 22:
            a([I(wlg="cn")] + cn_ck + [f"s_mov_b32 s{sCNT}, {SPIN}", "L_cn_loop:", cn_ld, "s_waitcnt lgkmcnt(0)"] + cn_ck +
              [f"s_sub_u32 s{sCNT}, s{sCNT}, 1", "s_cbranch_scc0 L_cn_loop", "L_cn_ok:"])
        if ks == 0 and qd >= 2: a(I(wlg="zw"))
        seq = []
        for mt in range(4):
            d = ZA + 16 * (qd & 1) + 4 * mt
            c = "0" if ks == 0 else vr(d, 4)
            seq.append(f"v_mfma_f32_16x16x32_bf16 {vr(d,4)}, {vr(WDF(4*ks+mt),4)}, {vr(HR(n),4)}, {c}")
        fill = []
        if qd >= 1 and 1 <= ks <= ZS: fill = part(zwrite(qd - 1), ks - 1, ZS)
        if n < NG: fill = part(g2_addr, n, NG)
        if n == 20: fill += [I(cn_ld, lg="cn")]
        if n in (12, 13): fill += part(unpack(XF, XV), n - 12, 2)
        if "xg" in opt and n in (17, 18, 19, 24, 25, 26): fill += part(xn_g, (17, 18, 19, 24, 25, 26).index(n), 6)
        if n == 27: fill += [f"v_xor_b32 v21, 16, v{vZR}"]
        if n == NYC and "yb" in opt: fill = [[f"s_mov_b32 s{sMK}, -1", I(y_ld, vm="yl")]] + fill
        elif n == NYC and YO:
            fill = [[f"s_cmp_ge_u32 s{sW}, 4", f"s_cselect_b32 s{sMK}, -1, 0", "s_cbranch_scc1 L_ylate", "s_waitcnt vmcnt(0)"] + wide(ne8(AY)) +
                    [f"s_cselect_b32 s{sMK}, 0, -1", "s_cbranch_scc1 L_ylate", y_ld, "L_ylate:"]] + fill
        elif n == NYC:
            fill = [[I(wvm="yp")] + ne8(AY) + [f"s_cselect_b32 s{sMK}, 0, -1", "s_cbranch_scc1 L_ylate", y_ld, "L_ylate:"]] + fill
        a(mix(seq, fill))
        GS = os_("gs=")
        e = min(28, n + 1 + NS, hn + (int(GS[n % len(GS)]) if GS else GQ))
        for m in range(hn, e): a(hload(m))
        hn = e
        assert hn > min(n + 1, 27) or n == 27
        if n == NYP and YO: a([I(wvm="*"), f"s_cmp_ge_u32 s{sW}, 4", "s_cbranch_scc1 L_nyp", wide(poll(AY)), "L_nyp:"])
        elif n == NYP and "yb" not in opt: a(poll(AY, "yp"))
        if PG and PG[n + 1] != PG[n]: a(f"s_setprio {PG[n + 1]}")
        stamp(f"n{n}")
    a(zwrite(3))
    stamp("g2")
    a(f"s_cmp_lg_u32 s{sMK}, 0\ns_cbranch_scc1 L_ygo")
    a(spin("yf", wide(poll(AY)), wide(ne8(AY))) + [y_ld, "L_ygo:"])
    stamp("yok")
    a(I(wvm="*", wlg="*"))
    a("s_barrier")
    stamp("bf")
    P2 = lambda x: vr(x, 2)
    a(I(f"ds_read_b64_tr_b16 {P2(YR)}, v{vYR}", lg="yr"))
    a(I(f"ds_read_b64_tr_b16 {P2(YR+2)}, v{vYR} offset:512", lg="yr"))
    def zread(k): return [I(f"ds_read_b128 {vr(ZT+8*k+4*h,4)}, v{21 if h else vZR} offset:{4096*k}", lg=f"z{k}") for h in range(2)]
    for k in range(6): a(zread(k))
    a(I(wlg="yr")); a(unpack(YF, YR))
    a(zread(6)); a(zread(7))
    for e in range(0, 8, 2): a(f"v_pk_mul_f32 {P2(XN+e)}, {P2(XN+e)}, {P2(YF+e)}")
    stamp("f0")
    for k in range(1, 8):
        a(I(wlg=f"z{k}"))
        for e in range(0, 8, 2): a(f"v_pk_add_f32 {P2(ZT+e)}, {P2(ZT+e)}, {P2(ZT+8*k+e)}")
    stamp("f1")
    for e in range(0, 8, 2): a(f"v_pk_mul_f32 {P2(YF+e)}, {P2(ZT+e)}, " + (f"{P2(vZS)} op_sel_hi:[1,0]" if BI else sr(sSEL,2)))
    a(mix([f"v_exp_f32 v{YF+e}, v{YF+e}" for e in range(8)],
          [f"v_pk_mul_f32 {P2(XN+e)}, {P2(XN+e)}, {P2(ZT+e)}" for e in range(0, 8, 2)]))
    for e in range(0, 8, 2): a(f"v_pk_add_f32 {P2(YF+e)}, {P2(YF+e)}, {sr(sSEL+2,2)}")
    for e in range(8): a(f"v_rcp_f32 v{YF+e}, v{YF+e}")
    for e in range(0, 8, 2): a(f"v_pk_fma_f32 {P2(XF+e)}, {P2(XN+e)}, {P2(YF+e)}, {P2(XF+e)}")
    for e in range(4): a(f"v_cvt_pk_bf16_f32 v{YR+e}, v{XF+2*e}, v{XF+2*e+1}")
    stamp("f2")
    a(f"buffer_store_dwordx4 {vr(YR,4)}, v{vOO}, {sr(SOUT,4)}, s{sOQ} offen sc0 sc1")
    if prof:
        stamp("st")
        if "endw" in opt: a("s_waitcnt vmcnt(0)")
        a("L_prof:")
        stamp("end")
        a(f"""
        s_waitcnt lgkmcnt(0)
        s_lshl_b32 s{sT0}, s2, 3
        s_add_u32 s{sT0}, s{sT0}, s{sW}
        s_lshl_b32 s{sT0}, s{sT0}, 6
        s_add_u32 s{sT0}, s{sT0}, {WS_PROF}
        """)
        if "dbg" in opt:
            n = len(stamps)
            a(f"s_load_dwordx2 {sr(SX,2)}, s[0:1], 88\ns_mov_b32 s{SX+2}, 256\ns_waitcnt lgkmcnt(0)\ns_mov_b64 exec, 1")
            a(f"s_not_b32 s{sT1}, s{PROFS[0]}\nv_mov_b32 v1, s{sT1}\nbuffer_atomic_umax v1, off, {sr(SX,4)}, 0")
            a(f"v_mov_b32 v2, s{PROFS[n-1]}\nbuffer_atomic_umax v2, off, {sr(SX,4)}, 0 offset:60")
            a(f"s_cmp_lt_u32 s2, 32\ns_cbranch_scc1 {END}")
            for i in range(n):
                if "avg" in opt:
                    a(f"s_sub_u32 s{sT1}, s{PROFS[i]}, s{PROFS[0]}\nv_mov_b32 v{3+i}, s{sT1}\nbuffer_atomic_add v{3+i}, off, {sr(SX,4)}, 0 offset:{4+4*i}")
                else:
                    a(f"v_mov_b32 v{3+i}, s{PROFS[i]}\nbuffer_atomic_umax v{3+i}, off, {sr(SX,4)}, 0 offset:{4+4*i}")
            a(f"s_branch {END}")
        for i in range(len(stamps)):
            a(f"v_mov_b32 v1, s{PROFS[i]}")
            a(f"buffer_store_dword v1, off, {sr(SWS,4)}, s{sT0} offset:{4*i}")
    a(f"{END}:\ns_endpgm")
    def post(b):
        import al
        if oi("al", -1) >= 0:
            b, st = al.align(b, oi("al", 0)); print(st)
        if "sh4" in opt: b = ["    s_nop 0"] + b
        print("misplaced", al.stat(b))
        return b
    txt = a.text(256, 512, 163840, post=post)
    return txt, stamps, a.nops

if __name__ == "__main__":
    txt, st, nops = gen(prof="prof" in sys.argv, opt=sys.argv[2:])
    open(sys.argv[1], "w").write(txt)
    print("lines", txt.count("\n"), "nops", nops, st)
    if st: open(sys.argv[1] + ".stamps", "w").write(" ".join(st))
```

```python
import sys
sys.path.insert(0, "dev")
from em import *
def gen(pat):
    a = Em()
    a(f"""
    s_cmp_ge_u32 s2, 256
    s_cbranch_scc1 L_end
    s_load_dwordx2 s[24:25], s[0:1], 96
    v_lshrrev_b32 v1, 6, v0
    v_and_b32 v0, 63, v0
    v_readfirstlane_b32 s3, v1
    s_mov_b32 s26, {1 << 28}
    s_mov_b32 s27, 0x20000
    s_lshl_b32 s4, s2, 2
    s_add_u32 s4, s4, s3
    v_mov_b32 v4, 0x9e3779b1
    v_add_u32 v5, 0x1234567, v0
    s_mov_b32 s8, 0x807f807f
    s_mov_b32 s9, 0x3f003f00
    """)
    for i in range(32):
        a(f"v_mul_lo_u32 v5, v5, v4\nv_alignbit_b32 v5, v5, v5, 13\nv_and_b32 v{96+i}, s8, v5\nv_or_b32 v{96+i}, s9, v{96+i}")
    for i in range(64): a(f"v_mov_b32 v{32+i}, 0")
    a("s_lshl_b32 s5, s3, 14\nv_lshl_add_u32 v6, v0, 4, s5\nv_lshl_add_u32 v7, v0, 3, s5")
    for i in range(16):
        a(f"v_mul_lo_u32 v5, v5, v4\nv_alignbit_b32 v5, v5, v5, 13")
        for d in range(4): a(f"v_xor_b32 v{8+d}, v5, v{96+(4*i+d)%32}\nv_and_b32 v{8+d}, s8, v{8+d}\nv_or_b32 v{8+d}, s9, v{8+d}")
        a(f"ds_write_b128 v6, v[8:11] offset:{1024*i}")
    a("s_waitcnt lgkmcnt(0)\ns_sleep 40")
    def rec(k): a(f"s_memrealtime s[10:11]\ns_memtime s[12:13]\ns_waitcnt lgkmcnt(0)\nv_writelane_b32 v2, s10, {k}\nv_writelane_b32 v3, s12, {k}")
    rec(0)
    for k, ch in enumerate(pat):
        n = {"F": 4, "T": 3, "H": 2, "Q": 1, ".": 0}.get(ch, 4)
        a(f"s_mov_b32 s14, 4\nL_s{k}:")
        for h in range(2):
            o = 96 + 16 * (1 - h)
            tr = lambda d, off: f"ds_read_b64_tr_b16 {vr(d,2)}, v7 offset:{off}"
            rd = {"L": [tr(o, 0), tr(o+2, 512), f"ds_read_b128 {vr(o+8,4)}, v6 offset:2048", tr(o+4, 1024), tr(o+6, 1536), f"ds_read_b128 {vr(o+12,4)}, v6 offset:3072"],
                  "B": [f"ds_read_b128 {vr(o+4*i,4)}, v6 offset:{1024*i}" for i in range(4)],
                  "R": [tr(o+2*i, 512*i) for i in range(8)]}
            rd["M"] = rd["L"]; rd["l"] = rd["L"]
            if ch in rd:
                a("s_waitcnt lgkmcnt(0)"); a(rd[ch]); a(f"v_xor_b32 v6, {4096 << h}, v6\nv_xor_b32 v7, {4096 << h}, v7")
            if ch == "l":
                a("s_nop 15\ns_nop 9"); continue
            if ch in "GM":
                for i in range(8):
                    a(f"v_mfma_f32_16x16x32_bf16 {vr(32+32*h+4*i,4)}, {vr(96+16*h+4*(i&1),4)}, {vr(104+16*h+4*((i>>1)&1),4)}, {vr(32+32*h+4*i,4)}")
                continue
            if ch == "Z":
                for i in range(4): a(f"v_mfma_f32_32x32x16_bf16 {vr(32+16*i,16)}, {vr(96+16*h+4*(i&1),4)}, {vr(104+16*h+4*(i>>1),4)}, 0")
                continue
            if ch == "S":
                for i in (0, 1, 3, 2): a(f"v_mfma_f32_32x32x16_bf16 {vr(32+16*i,16)}, {vr(96+16*h+4*(i&1),4)}, {vr(104+16*h+4*(i>>1),4)}, {vr(32+16*i,16)}")
                continue
            if ch == "D":
                for i in range(4): a(f"v_mfma_f32_32x32x16_bf16 {vr(32+16*(i>>1)+32*h,16)}, {vr(96+16*(i&1)+4*(i>>1),4)}, {vr(104+16*(i&1)+4*h,4)}, {vr(32+16*(i>>1)+32*h,16)}")
                continue
            for i in range(n):
                a(f"v_mfma_f32_32x32x16_bf16 {vr(32+16*i,16)}, {vr(96+16*h+4*(i&1),4)}, {vr(104+16*h+4*(i>>1),4)}, {vr(32+16*i,16)}")
            if n < 4: a(f"s_nop {min(15, 8 * (4 - n) + (7 if n else -1))}")
            if n < 3: a(f"s_nop {min(15, 8 * (4 - n) + (7 if n else -1) - 16)}")
        a(f"s_sub_u32 s14, s14, 1\ns_cmp_lg_u32 s14, 0\ns_cbranch_scc1 L_s{k}")
        rec(k + 1)
    a(f"s_lshl_b32 s4, s4, 9\ns_add_u32 s4, s4, {16 << 20}\nv_lshlrev_b32 v1, 2, v0")
    a("buffer_store_dword v2, v1, s[24:27], s4 offen\nbuffer_store_dword v3, v1, s[24:27], s4 offen offset:256")
    a("L_end:\ns_endpgm")
    return a.text(256, 256, 163840)
if "gen" in sys.argv:
    open("mbp.s", "w").write(gen(sys.argv[1])); sys.exit()
from harness import *
for pat in sys.argv[1:]:
    open("mbp.s", "w").write(gen(pat))
    r = Runner("mbp.s"); acc = []
    for it in range(12):
        r.run()
        P = r.get_ws(16 << 20, np.uint32, (1024, 2, 64))[:, :, :len(pat) + 1].astype(np.int64)
        if it >= 2: acc.append(P)
    P = np.stack(acc)
    dR = np.diff(P[:, :, 0], axis=-1).mean(axis=(0, 1)) * 10; dC = (np.diff(P[:, :, 1], axis=-1) % (1 << 32)).mean(axis=(0, 1))
    print(pat)
    print(" t  ", " ".join(f"{x/1000:5.1f}" for x in np.cumsum(dR)))
    print(" cyc", " ".join(f"{int(x):5d}" for x in dC))
    print(" GHz", " ".join(f"{y/x:5.2f}" for x, y in zip(dR, dC)))
```

```python
import sys, struct, re
from em import *

WS_EPOCH, WS_FKV, WS_RS, WS_CS, WS_FH, WS_FY = 0, 4096, 32768, 65536, 262144, 524288
WS_KV, WS_WT, WS_YT, WS_H, WS_PROF = 1 << 20, 3 << 20, 5 << 20, 8 << 20, 16 << 20
SX, SWG, SWU, SWD, SWS, SOUT, SH, SK, SV, SSH = 8, 12, 16, 20, 24, 28, 32, 36, 40, 44
sW, sXB, sWB, sT0, sT1 = 3, 4, 5, 6, 7
(sRT2, sCT2, sKEY, sWR, sWC, sTAG, sM0X, sOK, sISG, sCNT, sT2, sT3, sCSM, sCP, sRBL, sXCD, sCB, sD,
 sMO, _m1, _m2, _m3, sHI, sRB) = range(48, 72)
sA, sB, sC, sE = 98, 99, 100, 101
PROFS = list(range(72, 98, 2))
STAGE = 49152
L_WP = 147456
L_CV, CVCH = 98304, 12864
L_Z = (65536, 131072, 0, 32768)
L_Y, L_CNT = L_CV + 4608, L_CV + 4096
ACC, FR = 32, 96
def WDF(i): return 144 + 4 * i
vX0, vX1, vW0, vW1, vL16 = 1, 2, 3, 4, 5
vXB, vWB, vTAG = 6, 14, 17
SPIN = 0x4000
ESH = 24
KC = 2 * 0.7978845608028654 * 1.4426950408889634
def fx(f): return "0x%08x" % struct.unpack("<I", struct.pack("<f", f))[0]
def L(s): return [x.strip() for x in s.strip().split("\n") if x.strip()]

def gen(prof=False, opt=()):
    a = Em()
    def oi(k, d): return int(([o[len(k):] for o in opt if re.fullmatch(k + r"-?\d+", o)] + [d])[0])
    stamps = []
    def oi(k, d): return int(([o[len(k):] for o in opt if re.fullmatch(k + r"-?\d+", o)] + [d])[0])
    def stamp(name, slot=None):
        sel = [o[3:].split(",") for o in opt if o.startswith("st=")]
        dflt = "start,B0,B4,B8,join,c1,c3,hok,g2,bf,end".split(",")
        if not prof or (slot is None and name not in (sel[0] if sel else dflt)): return
        own = slot is None
        if ("both" in opt or "noas" in opt) and not own: return
        if slot is None:
            if name not in stamps: stamps.append(name)
            slot = stamps.index(name)
        a(f"{'s_memtime' if 'cyc' in opt else 's_memrealtime'} {sr(PROFS[slot], 2)}")
        if "both" in opt and own:
            stamps.append(name + "c"); a(f"s_memtime {sr(PROFS[slot + 1], 2)}")
    def spin(name, load, check):
        if "nochk" in opt: return [f"L_{name}_ok:"]
        cn = [f"s_add_u32 s{PROFS[stamps.index('n_' + name)]}, s{PROFS[stamps.index('n_' + name)]}, 1"] if "n_" + name in stamps else []
        return ([f"s_mov_b32 s{sCNT}, {SPIN}", f"L_{name}_loop:"] + cn + load + ["s_waitcnt vmcnt(0)"] + check +
                [f"s_cbranch_scc0 L_{name}_ok", f"s_sub_u32 s{sCNT}, s{sCNT}, 1", f"s_cbranch_scc0 L_{name}_loop",
                 f"L_{name}_ok:"])
    def one(txt, vm=None, wvm=None):
        if "all" in opt: return [I(txt, vm=vm, wvm=wvm)]
        return [I("s_mov_b64 exec, 1", wvm=wvm), I(txt, vm=vm), "s_mov_b64 exec, -1"]
    FS = oi("fs", 7)
    def line(so, vm=None, wvm=None):
        if "fp" in opt: return one(f"buffer_store_dword v{vTAG}, off, {sr(SWS,4)}, s{so} offset:4 sc1", vm=vm, wvm=wvm)
        return [I(f"s_mov_b64 exec, {(1 << (1 << (FS - 4))) - 1}", wvm=wvm),
                I(f"buffer_store_dwordx4 {vr(vTAG-1,4)}, v{vL16}, {sr(SWS,4)}, s{so} offen sc1", vm=vm), "s_mov_b64 exec, -1"]
    def ne(v): return [f"v_cmp_ne_u32 vcc, s{sTAG}, v{v}", "s_cmp_lg_u64 vcc, 0"]
    def ap(txt, nl, key, vm=None):
        if key not in opt and "apa" not in opt: return [I(txt, vm=vm)]
        d = txt.split()[1].rstrip(",")
        t = I(txt.replace("buffer_load_dword", "buffer_atomic_or").replace("sc1", "sc0 sc1"), vm=vm)
        if nl == 64: return [f"v_mov_b32 {d}, 0", t]
        m = [f"s_mov_b32 exec_hi, 0"] if nl == 32 else [f"s_mov_b64 exec, {(1 << nl) - 1}"]
        return [f"v_mov_b32 {d}, s{sTAG}"] + m + [f"v_mov_b32 {d}, 0", t, "s_mov_b64 exec, -1"]
    END, AUX, JOIN = "L_end", "L_aux", "L_join"
    vHE, vHP, vHO_ = (228, 232, 234) if "hr" in opt else (128, 132, 134)
    KM = oi("km", 3)
    a(f"""
    s_cmp_ge_u32 s2, 256
    s_cbranch_scc1 {END}
    {f"s_add_u32 s2, s2, {oi('rot', 0)}" if oi('rot', 0) else ""}
    {"s_and_b32 s2, s2, 255" if oi('rot', 0) else ""}
    s_load_dwordx16 s[72:87], s[0:1], 0
    s_load_dwordx8 s[88:95], s[0:1], 64
    s_load_dwordx2 s[96:97], s[0:1], 96
    v_lshrrev_b32 v1, 6, v0
    v_and_b32 v0, 63, v0
    v_readfirstlane_b32 s{sW}, v1
    s_and_b32 s{sXCD}, s2, 7
    s_lshr_b32 s{sCP}, s2, 3
    s_and_b32 s{sE}, s{sXCD}, 1
    s_lshr_b32 s{sA}, s{sXCD}, 1
    s_and_b32 s{sRBL}, s{sCP}, 3
    s_lshr_b32 s{sISG}, s{sCP}, 2
    s_lshl_b32 s{sRB}, s{sA}, 2
    s_add_u32 s{sRB}, s{sRB}, s{sRBL}
    s_lshl_b32 s{sRT2}, s{sRB}, 1
    s_add_u32 s{sRT2}, s{sRT2}, s{sE}
    s_add_u32 s{sCT2}, s{sISG}, 7
    s_and_b32 s{sCT2}, s{sCT2}, 7
    s_mul_i32 s{sCB}, s{sE}, 7
    s_add_u32 s{sCB}, s{sCB}, s{sCT2}
    {f"s_xor_b32 s{sCT2}, s{sCT2}, 4" if "ct3" in opt else ""}
    s_xor_b32 s{sKEY}, s{sRBL}, s{sISG}
    s_and_b32 s{sKEY}, s{sKEY}, {KM}
    s_lshl_b32 s{sB}, s{sA}, {2 if KM == 3 else 1}
    s_and_b32 s{sB}, s{sB}, {4 if KM == 3 else 6}
    s_or_b32 s{sKEY}, s{sKEY}, s{sB}
    s_lshl_b32 s{sB}, s{sXCD}, 5
    s_add_u32 s{sCP}, s{sCP}, s{sB}
    s_and_b32 s{sWR}, s{sW}, 1
    s_lshr_b32 s{sWC}, s{sW}, 1
    s_lshr_b32 s{sB}, s{sW}, 2
    s_and_b32 s{sC}, s{sW}, 3
    s_lshl_b32 s{sXB}, s{sRB}, 17
    s_lshl_b32 s{sT0}, s{sB}, 16
    s_add_u32 s{sXB}, s{sXB}, s{sT0}
    s_lshl_b32 s{sT0}, s{sC}, 10
    s_add_u32 s{sXB}, s{sXB}, s{sT0}
    s_mul_i32 s{sWB}, s{sW}, 28672
    s_lshl_b32 s{sT0}, s{sCB}, 8
    s_add_u32 s{sWB}, s{sWB}, s{sT0}
    s_lshl_b32 s{sM0X}, s{sW}, 11
    s_and_b32 s{sT0}, s{sKEY}, 1
    s_and_b32 s{sT1}, s{sA}, 2
    s_or_b32 s{sT0}, s{sT0}, s{sT1}
    {f"s_mov_b32 s{sT0}, s{sRBL}" if KM != 3 else ""}
    s_add_u32 s{sCSM}, s{sWR}, 1
    s_cmp_eq_u32 s{sT0}, s{sWC}
    s_cselect_b32 s{sCSM}, s{sCSM}, 0
    s_lshr_b32 s{sHI}, s{sCT2}, 2
    s_mov_b32 s{sOK}, 0
    """)
    for s, n in ((SX, 1 << 21), (SWG, 1835008), (SWU, 1835008), (SWD, 1835008), (SWS, 1 << 25), (SOUT, 1 << 21),
                 (SH, 36864 if oi('hpt', 0) else 4096), (SK, 1 << 21), (SV, 1 << 21), (SSH, 4096)):
        a(f"s_mov_b32 s{s+2}, {n}")
        a(f"s_mov_b32 s{s+3}, 0x20000")
    a(f"""
    v_lshrrev_b32 v20, 3, v0
    v_lshrrev_b32 v21, 4, v0
    v_and_b32 v22, 7, v0
    v_xor_b32 v23, v22, v21
    v_lshlrev_b32 v23, 4, v23
    v_lshl_add_u32 v{vX0}, v20, 12, v23
    v_xor_b32 v{vX1}, 64, v{vX0}
    v_add_u32 v{vX1}, 31744, v{vX1}
    v_bfe_u32 v24, v0, 2, 2
    v_and_b32 v25, 3, v0
    v_xor_b32 v23, v24, v21
    v_lshlrev_b32 v23, 6, v23
    v_lshl_add_u32 v23, v25, 4, v23
    v_mul_u32_u24 v{vW0}, 3584, v21
    v_add_u32 v{vW0}, v{vW0}, v23
    v_add_u32 v{vW1}, 13312, v{vW0}
    v_lshlrev_b32 v{vL16}, 4, v0
    s_lshl_b32 s{sT2}, s{sCP}, 1
    s_add_u32 s{sT2}, s{sT2}, s{sB}
    s_lshl_b32 s{sT2}, s{sT2}, 12
    s_lshl_b32 s{sT3}, s{sCP}, 2
    """)
    UE = oi("ue", 0)
    w_init = ([f"v_mul_u32_u24 v{FR+16}, 0x9e3779, v0", f"v_and_b32 v{FR+16}, 0x807f807f, v{FR+16}", f"v_or_b32 v{FR+16}, 0x3f003f00, v{FR+16}"] +
              [f"v_xor_b32 v{FR+16+i}, {hex((0x9e3779b1 * (i + 3) >> 3) & 0x807f807f)}, v{FR+16+i-1}" for i in range(1, 8)])
    if UE:
        a([f"s_cmp_ge_u32 s{sW}, 4", "s_cbranch_scc1 L_uex"] + w_init + [f"s_mov_b32 s{sCNT}, {UE}", "L_ue:"] +
          [f"v_mfma_f32_32x32x16_bf16 {vr(ACC+16*i,16)}, {vr(FR+16+4*(i&1),4)}, {vr(FR+16+4*(i>>1),4)}, 0" for i in range(1, 3)] +
          [f"s_sub_u32 s{sCNT}, s{sCNT}, 1", f"s_cmp_lg_u32 s{sCNT}, 0", "s_cbranch_scc1 L_ue", "L_uex:"])
    a(f"""
    s_waitcnt lgkmcnt(0)
    s_mov_b64 {sr(SX,2)}, s[72:73]
    s_mov_b64 {sr(SWG,2)}, s[86:87]
    s_mov_b64 {sr(SWU,2)}, s[88:89]
    s_mov_b64 {sr(SK,2)}, s[74:75]
    s_mov_b64 {sr(SV,2)}, s[76:77]
    {f"s_add_u32 s{SWS}, s96, {oi('wso', 0) << 20}" if oi('wso', 0) else f"s_mov_b64 {sr(SWS,2)}, s[96:97]"}
    {f"s_addc_u32 s{SWS+1}, s97, 0" if oi('wso', 0) else ""}
    s_mov_b64 {sr(SSH,2)}, s[78:79]
    s_mov_b64 {sr(SWD,2)}, s[90:91]
    s_mov_b64 {sr(SOUT,2)}, s[92:93]
    s_add_u32 s{SH}, s80, s{sT2}
    s_addc_u32 s{SH+1}, s81, 0
    s_load_dword s{sD}, s[82:83], s{sT3}
    """)
    H1 = "h1" in opt
    if H1: a(f"""
    s_lshl_b32 s{sT3}, s{sC}, 10
    s_max_u32 s{sT3}, s{sT3}, 4
    s_add_u32 s{sT2}, s{sT2}, s{sT3}
    s_sub_u32 s{sT2}, s{sT2}, 4
    s_load_dword s{sOK}, s[80:81], s{sT2}
    """)
    if prof: a("s_nop 4")
    stamp("start")
    SCN = ([o[3:].split(",") for o in opt if o.startswith("sc=")] + [[]])[0] if prof else []
    stamps += ["n_" + x for x in SCN]
    sc_init = [f"s_mov_b32 s{PROFS[1 + i]}, 0" for i in range(len(SCN))]

    NTX = " nt" if "ntx" in opt else ""
    NTW = " nt" if "ntw" in opt else ""
    NTK = " nt" if "ntk" in opt else ""
    NTH = " nt" if "nth" in opt else ""
    NTE = " nt" if "nte" in opt else ""
    NTF = " nt" if "ntf" in opt else ""
    for o in opt:
        if o.startswith("cp="): NTX = NTW = " " + o[3:].replace("_", " ")
        if o.startswith("ck="): NTK = " " + o[3:].replace("_", " ")
    NTX0, NTW0 = NTX, NTW
    def chunk_dma(c):
        st = (c % 3) * STAGE
        NTX = [" " + o.split("=")[0][2:].replace("_", " ") for o in opt if re.match(r"Nx\w+=", o) and str(c) in o.split("=")[1]] + [NTX0]
        NTW = [" " + o.split("=")[0][2:].replace("_", " ") for o in opt if re.match(r"Nw\w+=", o) and str(c) in o.split("=")[1]] + [NTW0]
        NTX, NTW = NTX[0], NTW[0]
        return [
            [f"s_xor_b32 s{sT0}, s{sKEY}, {c}",
             f"s_mul_i32 s{sT1}, s{sT0}, 229376", f"s_add_u32 s{sT1}, s{sT1}, s{sWB}",
             f"s_lshl_b32 s{sT0}, s{sT0}, 7", f"s_add_u32 m0, s{sM0X}, {st}", f"s_add_u32 s{sT0}, s{sT0}, s{sXB}",
             I(f"buffer_load_dwordx4 v{vX0}, {sr(SX,4)}, s{sT0} offen{NTX} lds", vm=f"c{c}")],
            I(f"buffer_load_dwordx4 v{vX1}, {sr(SX,4)}, s{sT0} offen offset:1024{NTX} lds", vm=f"c{c}"),
            [f"s_add_u32 m0, s{sM0X}, {st + 16384}",
             I(f"buffer_load_dwordx4 v{vW0}, {sr(SWG,4)}, s{sT1} offen{NTW} lds", vm=f"c{c}")],
            I(f"buffer_load_dwordx4 v{vW1}, {sr(SWG,4)}, s{sT1} offen offset:1024{NTW} lds", vm=f"c{c}"),
            [f"s_add_u32 m0, s{sM0X}, {st + 32768}",
             I(f"buffer_load_dwordx4 v{vW0}, {sr(SWU,4)}, s{sT1} offen{NTW} lds", vm=f"c{c}")],
            I(f"buffer_load_dwordx4 v{vW1}, {sr(SWU,4)}, s{sT1} offen offset:1024{NTW} lds", vm=f"c{c}"),
        ]
    def prefetch(c):
        g = oi("pg", 7); sh = 7 - g; t = 150
        o = L(f"""
        v_lshrrev_b32 v{t}, {sh}, v0
        v_lshlrev_b32 v{t}, 12, v{t}
        v_lshrrev_b32 v{t+1}, {sh + 1}, v0
        v_mul_u32_u24 v{t+1}, 3584, v{t+1}
        v_and_b32 v{t+2}, {(2 << sh) - 1}, v0
        v_lshl_add_u32 v{t+1}, v{t+2}, {g}, v{t+1}
        """)
        if sh: o += [f"v_and_b32 v{t+2}, {(1 << sh) - 1}, v0", f"v_lshl_add_u32 v{t}, v{t+2}, {g}, v{t}"]
        o += L(f"""
        s_xor_b32 s{sT2}, s{sKEY}, {c}
        s_mul_i32 s{sT3}, s{sT2}, 229376
        s_add_u32 s{sT3}, s{sT3}, s{sWB}
        s_lshl_b32 s{sT2}, s{sT2}, 7
        s_add_u32 s{sT2}, s{sT2}, s{sXB}
        s_mov_b32 exec_hi, 0
        """)
        if not sh: o += ["s_mov_b32 exec_lo, 0xffff"]
        PW = os0("pv=", "gux")
        if "g" in PW: o += [I(f"buffer_load_dword v{t+2}, v{t+1}, {sr(SWG,4)}, s{sT3} offen", vm="pf")]
        if "u" in PW: o += [I(f"buffer_load_dword v{t+3}, v{t+1}, {sr(SWU,4)}, s{sT3} offen", vm="pf")]
        if "x" in PW: o += [I(f"buffer_load_dword v{t+4}, v{t}, {sr(SX,4)}, s{sT2} offen", vm="pf")]
        return o + ["s_mov_b64 exec, -1"]
    def os0(k, d=""): return ([o[len(k):] for o in opt if o.startswith(k)] + [d])[0]
    def c3p(role, c, tag):
        t = 150; W_ = oi("c3w", 0); PW = os0("c3v=", "wx"); o = []
        if "w" in PW: o += L(f"""
        s_bitcmp1_b32 {hex(0x1515 if "c3e" in opt else 0x2aaa)}, s{sCB}
        s_cselect_b32 s{sT2}, s{sW}, 99
        s_cmp_lg_u32 s{sT2}, {W_}
        s_cbranch_scc1 L_c3w{tag}{role}
        s_xor_b32 s{sT2}, s{sKEY}, {c}
        s_mul_i32 s{sT3}, s{sT2}, 229376
        {f"s_cmp_lt_u32 s{sCB}, 7" if "c3e" in opt else ""}
        {f"s_cselect_b32 s{sT2}, 1, {oi('c3d', 0) * 2 - 1}" if "c3e" in opt else f"s_mov_b32 s{sT2}, 0"}
        s_add_u32 s{sT2}, s{sT2}, s{sCB}
        s_lshl_b32 s{sT2}, s{sT2}, 8
        s_add_u32 s{sT3}, s{sT3}, s{sT2}
        s_bitcmp1_b32 s{sT2}, 9
        s_cselect_b32 s{sT2}, 3584, 0
        s_add_u32 s{sT3}, s{sT3}, s{sT2}
        v_mul_u32_u24 v{t}, 7168, v0
        s_mov_b32 exec_hi, 0
        buffer_load_dword v{t+1}, v{t}, {sr(SWG,4)}, s{sT3} offen offset:128
        buffer_load_dword v{t+2}, v{t}, {sr(SWU,4)}, s{sT3} offen offset:128
        s_mov_b32 exec_hi, -1
        L_c3w{tag}{role}:
        """)
        if "x" in PW: o += L(f"""
        s_xor_b32 s{sT2}, s{sW}, {W_ ^ 2}
        s_lshr_b32 s{sT2}, s{sT2}, 1
        s_xor_b32 s{sT3}, s{sKEY}, {c ^ 3}
        s_or_b32 s{sT2}, s{sT2}, s{sT3}
        s_cbranch_scc1 L_c3x{tag}{role}
        s_lshl_b32 s{sT2}, s{sRB}, 1
        s_add_u32 s{sT2}, s{sT2}, s{sWR}
        s_lshl_b32 s{sT2}, s{sT2}, 16
        v_lshlrev_b32 v{t+3}, 10, v0
        buffer_load_dword v{t+4}, v{t+3}, {sr(SX,4)}, s{sT2} offen offset:384
        L_c3x{tag}{role}:
        """)
        return o
    PF = os0("pf=")
    XR, S1, S2 = 200, 204, 205
    def row_load():
        return [I(f"buffer_load_dword v{vTAG}, off, {sr(SWS,4)}, 0 offset:{WS_EPOCH} sc1", vm="ep"),
                [f"s_lshl_b32 s{sA}, s{sRT2}, 3", f"s_add_u32 s{sA}, s{sA}, s{sISG}", f"s_lshl_b32 s{sA}, s{sA}, 3",
                 f"s_add_u32 s{sA}, s{sA}, s{sW}", f"s_lshl_b32 s{sT2}, s{sA}, 10",
                 I(f"buffer_load_dwordx4 {vr(XR,4)}, v{vL16}, {sr(SX,4)}, s{sT2} offen" + (" nt" if "ntr" in opt else ""), vm="ep")]]
    tag_math = L(f"""
        v_add_u32 v{vTAG}, 1, v{vTAG}
        v_and_b32 v{vTAG}, 0x0fff3fff, v{vTAG}
        v_or_b32 v{vTAG}, 0x20000000, v{vTAG}
        s_mov_b32 s{sB}, 0x3f803f80
        v_readfirstlane_b32 s{sTAG}, v{vTAG}
        """)
    def row_math():
        o = []
        for d in range(4):
            o += [f"v_dot2_f32_bf16 v{S1}, v{XR+d}, s{sB}, {'0' if d == 0 else f'v{S1}'}",
                  f"v_dot2_f32_bf16 v{S2}, v{XR+d}, v{XR+d}, {'0' if d == 0 else f'v{S2}'}"]
        o += [f"v_mov_b32 v{XR+1}, v{vTAG}", f"v_permlane32_swap_b32 v{S1}, v{S2}", f"v_add_f32 v{S1}, v{S1}, v{S2}"]
        o += [f"v_add_f32_dpp v{S1}, v{S1}, v{S1} {d} row_mask:0xf bank_mask:0xf"
              for d in ("quad_perm:[1,0,3,2]", "quad_perm:[2,3,0,1]", "row_half_mirror", "row_mirror")]
        o += [f"v_add_f32_dpp v{S1}, v{S1}, v{S1} row_bcast:15 row_mask:0xa bank_mask:0xf"]
        o += L(f"""
        v_mul_f32 v{S1}, {fx(1/512)}, v{S1}
        v_readlane_b32 s{sB}, v{S1}, 31
        v_readlane_b32 s{sC}, v{S1}, 63
        v_mul_f32 v{S1}, s{sB}, s{sB}
        v_sub_f32 v{S1}, s{sC}, v{S1}
        v_max_f32 v{S1}, 0, v{S1}
        v_cvt_pk_bf16_f32 v{S1}, v{S1}, v{S1}
        v_lshlrev_b32 v{S1}, 16, v{S1}
        v_add_f32 v{S1}, {fx(1e-5)}, v{S1}
        v_cvt_pk_bf16_f32 v{S1}, v{S1}, v{S1}
        v_lshlrev_b32 v{S1}, 16, v{S1}
        v_sqrt_f32 v{S1}, v{S1}
        s_lshl_b32 s{sA}, s{sA}, 3
        v_cvt_pk_bf16_f32 v{XR}, v{S1}, -s{sB}
        s_add_u32 s{sA}, s{sA}, {WS_RS}
        """)
        if "nors" not in opt: o += [one(f"buffer_store_dwordx2 {vr(XR,2)}, off, {sr(SWS,4)}, s{sA} sc1", vm="rs", wvm="wps")]
        return o
    def h_load(t):
        return [[f"s_and_b32 s{sT2}, s{sW}, 3", f"s_lshl_b32 s{sT2}, s{sT2}, 10",
                 I(f"buffer_load_dwordx4 {vr(vHE,4)}, v{vL16}, {sr(SH,4)}, s{sT2} offen{NTE}", vm="hl")],
                [f"s_and_b32 s{sT2}, s{sW}, 3", f"s_lshl_b32 s{sT2}, s{sT2}, 10",
                 f"s_sub_u32 s{sT2}, s{sT2}, 4", f"v_add_u32 v{t}, s{sT2}, v{vL16}",
                 I(f"buffer_load_dword v{vHP}, v{t}, {sr(SH,4)}, 0 offen{NTF}", vm="hl")]][:1 if H1 else 2]
    vZ4 = vHE + 12
    h_al = [f"v_alignbit_b32 v{vHO_+d}, v{vHE+d}, v{vHE+d-1 if d else vHP}, 16" for d in range(4)]
    h_z = [f"v_mov_b32 v{vZ4+d}, 0" for d in range(4)]
    h_math = (([[f"s_and_b32 s{sT2}, s{sW}, 3", f"s_cselect_b32 s{sT2}, s{sOK}, 0", f"v_mov_b32 v{vHP}, s{sT2}"], I(h_al[1], wvm="hl")] + h_al[2:] +
               [f"v_mov_b32_dpp v{vHP}, v{vHE+3} wave_shr:1 row_mask:0xf bank_mask:0xf"] + h_z + h_al[:1]
               if H1 else [I(h_al[0], wvm="hl")] + h_al[1:] + h_z) + [L(f"""
        s_lshr_b32 s{sT2}, s{sW}, 2
        s_mul_i32 s{sT2}, s{sT2}, {CVCH}
        s_add_u32 s{sT2}, s{sT2}, {L_CV}
        v_min_u32 v{vHP+1}, 35, v0
        v_lshlrev_b32 v{vHP+1}, 4, v{vHP+1}
        v_lshrrev_b32 v{vHP}, 5, v0
        v_lshl_add_u32 v{vHP+1}, v{vHP}, 12, v{vHP+1}
        v_add_u32 v{vHP+1}, s{sT2}, v{vHP+1}
        s_and_b32 s{sT3}, s{sW}, 3
        s_lshl_b32 s{sT3}, s{sT3}, 10
        s_add_u32 s{sT2}, s{sT2}, s{sT3}
        v_add_u32 v{vHP}, s{sT2}, v{vL16}
        """)])
    h_write = [I(f"ds_write_b128 v{vHP}, {vr(vHE,4)} offset:4608", lg="hw"),
               I(f"ds_write_b128 v{vHP}, {vr(vHO_,4)} offset:{4608+4160}", lg="hw"),
               I(f"ds_write_b128 v{vHP+1}, {vr(vZ4,4)} offset:4096", lg="hw")]
    vFL, vFA = 18, 19
    def wf_addr_(sE, vFA, vFL): return L(f"""
        s_lshl_b32 s{sT2}, s{sCT2}, 3
        s_add_u32 s{sT2}, s{sT2}, s{sW}
        {f"s_xor_b32 s{sT3}, s{sCT2}, s{sW}" if "wdx" in opt else ""}
        s_and_b32 s{sE}, s{sT3 if "wdx" in opt else sCT2}, 6
        s_lshl_b32 s{sE}, s{sE}, 1
        s_add_u32 s{sE}, s{sE}, s{sWC}
        s_lshl_b32 s{sE}, s{sE}, 1
        s_and_b32 s{sT3}, s{sT3 if "wdx" in opt else sCT2}, 1
        s_add_u32 s{sE}, s{sE}, s{sT3}
        s_lshl_b32 s{sE}, s{sE}, 4
        s_add_u32 s{sE}, s{sE}, s{sWR}
        s_lshl_b32 s{sE}, s{sE}, 5
        s_add_u32 s{sE}, s{sE}, {WS_RS + 64 + 4 + (16384 if oi("rl", -1) >= 0 else 0)}
        s_mul_i32 s{sT2}, s{sT2}, 28672
        s_mul_i32 s{sT3}, s{sHI}, 12288
        s_add_u32 s{sT2}, s{sT2}, s{sT3}
        s_add_u32 s{sT2}, s{sT2}, {WS_WT}
        s_lshl_b32 s{sT3}, s{sRBL}, 10
        s_add_u32 s{sMO}, s{sT2}, s{sT3}
        s_xor_b32 s{sMO+1}, s{sMO}, 1024
        s_xor_b32 s{sMO+2}, s{sMO}, 2048
        s_xor_b32 s{sMO+3}, s{sMO}, 3072
        v_min_u32 v{vFA}, 27, v0
        v_and_b32 v{vFL}, 28, v{vFA}
        v_add_u32 v{vFA}, v{vFA}, v{vFL}
        v_lshlrev_b32 v{vFA}, 3, v{vFA}
        """)
    wf_addr = wf_addr_(sE, vFA, vFL)
    wf_ld = f"buffer_load_dword v{vFL}, v{vFA}, {sr(SWS,4)}, s{sE} offen sc1"
    def wd_loads():
        o = []
        for i in range(28):
            ks, mt = divmod(i, 4)
            g = []
            if i == 16:
                g += [f"s_mul_i32 s{sT3}, s{sHI}, 28672"] + [f"s_sub_u32 s{sMO+m}, s{sMO+m}, s{sT3}" for m in range(4)]
            g += [f"s_add_u32 s{sT3}, s{sMO+mt}, {4096*ks}",
                  I(f"buffer_load_dwordx4 {vr(WDF(i),4)}, v{vL16}, {sr(SWS,4)}, s{sT3} offen sc1" if i < oi("wx", 99) else
                    f"buffer_load_dword {vr(WDF(i),1)}, off, {sr(SWS,4)}, s{sT3} sc1", vm=f"wd{ks}")]
            o.append(g)
        return o
    vKA, vKL = 29, 30
    kf_addr = [f"v_and_b32 v{vKA}, 31, v0", f"v_lshlrev_b32 v{vKA}, 2, v{vKA}", f"s_lshl_b32 s{sC}, s{sXCD}, 7",
               f"s_add_u32 s{sC}, s{sC}, {WS_FKV}"]
    kf_ld = f"buffer_load_dword v{vKL}, v{vKA}, {sr(SWS,4)}, s{sC} offen sc1"
    def r_dma(t):
        return L(f"""
        s_lshr_b32 s{sT2}, s{sW}, 2
        s_mul_i32 s{sT3}, s{sT2}, {CVCH - 4096}
        s_lshl_b32 s{sT2}, s{sT2}, 4
        v_lshl_add_u32 v{t}, v0, 5, s{sT2}
        s_lshl_b32 s{sT2}, s{sW}, 10
        s_add_u32 s{sT3}, s{sT3}, s{sT2}
        s_add_u32 m0, s{sT3}, {L_CV}
        s_and_b32 s{sT2}, s{sM0X}, 0x1800
        s_lshl_b32 s{sT3}, s{sCP}, 13
        s_add_u32 s{sT2}, s{sT2}, s{sT3}
        s_add_u32 s{sT2}, s{sT2}, {WS_KV}
        """) + [I(f"buffer_load_dwordx4 v{t}, {sr(SWS,4)}, s{sT2} offen sc1 lds", vm="R")]

    WL = wd_loads()
    wsched = {17: 1, 18: 1, 19: 1, 21: 1, 22: 1, 23: 1, 24: 1, 25: 2, 26: 2, 27: 2, 29: 1, 30: 2, 31: 2}
    wsched = {k: n for k, n in wsched.items() if k >= oi("pw", 20) + 3}
    for o in opt:
        if o.startswith("ws="): wsched = {32 - len(o[3:]) + i: int(ch) for i, ch in enumerate(o[3:])}
    assert min(k for k, n in wsched.items() if n) >= oi("pw", 20) + oi("pd", 3)
    wepi = [int(x) for x in str(oi("we", 3320)).zfill(4)]
    NPRE = sum(wsched.values()) + sum(wepi)
    vq_pro = list(a.vq)
    a(f"s_cmp_eq_u32 s{sISG}, 0\ns_cbranch_scc1 {AUX}")
    if "nogemm" in opt: a(f"s_branch {END}")
    SP, SPS = oi("sp", 0), oi("ss", 64)
    h_pre = [f"s_and_b32 s{sT2}, s{sW}, 3", f"s_lshl_b32 s{sT2}, s{sT2}, 10"] + [
        f"s_buffer_load_dword s{sCNT}, {sr(SH,4)}, s{sT2} offset:{o}" for o in range(0, 1024, SPS)]
    if SP == 1: a(h_pre)
    TF = os0("tf=")
    def touch():
        o = ["s_mov_b64 exec, 1"]
        if "d" in TF: o += [f"s_mul_i32 s{sT2}, s{sCB}, 131072", I(f"buffer_load_dword v160, off, {sr(SWD,4)}, s{sT2}", vm="tf")]
        if "h" in TF: o += [I(f"buffer_load_dword v161, off, {sr(SH,4)}, 0", vm="tf")]
        if "e" in TF: o += [I(f"buffer_load_dword v162, off, {sr(SWS,4)}, 0 offset:128 sc1", vm="tf")]
        if "w" in TF: o += [f"s_mov_b32 s{sT2}, {WS_WT - 128}", I(f"buffer_load_dword v163, off, {sr(SWS,4)}, s{sT2} sc1", vm="tf"),
                            f"s_mov_b32 s{sT2}, {WS_YT - 128}", I(f"buffer_load_dword v164, off, {sr(SWS,4)}, s{sT2} sc1", vm="tf")]
        o += ["s_mov_b64 exec, -1"]
        if "0" in TF: return [f"s_cmp_lg_u32 s{sW}, 0", "s_cbranch_scc1 L_notf"] + [x.text if isinstance(x, I) else x for x in o] + ["L_notf:"]
        return o
    if "B" in TF: a(touch())
    a(chunk_dma(0))
    stamp("K2")
    WU, WQ = oi("wu", -1), oi("wq", 0)
    W8 = "w8" in opt or "wm" in opt
    def warm():
        if "wo4" in opt: a(f"s_cmp_ge_u32 s{sW}, 4\ns_cbranch_scc1 L_wux")
        if "wy4" in opt: a(f"s_cmp_lt_u32 s{sW}, 4\ns_cbranch_scc1 L_wux")
        if "wz" in opt:
            for i in range(16): a(f"v_mov_b32 v{FR+16+i}, 0")
        elif "wa" in opt:
            for i in range(8 if "w8" in opt else 16): a(f"v_xor_b32 v{FR+16+i}, {0x3f5a3e97 + 0x00130029 * i}, v{(vX0, vX1, vW0, vW1)[i & 3]}")
        elif "wm" in opt:
            if not UE: a(w_init)
        else:
            a(f"s_mov_b32 s{sT2}, 0x807f807f\ns_mov_b32 s{sT3}, 0x3f003f00\nv_mov_b32 v180, 0x9e3779b1\nv_add_u32 v181, 0x1234567, v{vW0}")
            for i in range(16):
                a(f"v_mul_lo_u32 v181, v181, v180\nv_alignbit_b32 v181, v181, v181, 13\nv_and_b32 v{FR+16+i}, s{sT2}, v181\nv_or_b32 v{FR+16+i}, s{sT3}, v{FR+16+i}")
        wm = lambda z: [f"v_mfma_f32_32x32x16_bf16 {vr(ACC+16*i,16)}, {vr(FR+16+4*(i&1),4)}, {vr(FR+(16 if W8 else 24)+4*(i>>1),4)}, {'0' if z or 'w0c' in opt else vr(ACC+16*i,16)}" for i in range(4)]
        if "wv" not in opt and "w0c" not in opt: a(wm(True)[:oi("wn", 4)])
        if WU:
            a(f"s_mov_b32 s{sT2}, {WU}\nL_wu:")
            if "wv" in opt:
                for i in range(64): a(f"v_fma_f32 v{ACC+i}, v{FR+16+(i&15)}, v{FR+16+((i*7+3)&15)}, v{ACC+i}")
            else:
                for q_, m_ in enumerate(wm(False)[:oi('wn', 4)]):
                    UV = oi("uv", 0)
                    xv = [f"v_pk_fma_f32 {vr(150+2*(UV*q_+z),2)}, {vr(FR+16+2*((q_+z)&3),2)}, {vr(FR+16+2*((q_+2*z+1)&3),2)}, {vr(FR+16+2*((z+2)&3),2)}" for z in range(UV)]
                    a([m_] + xv + ([f"s_nop {oi('wg', 0)}"] if oi("wg", 0) else []))
            if oi("wad", 0): a(f"s_getreg_b32 s{sT3}, hwreg(HW_REG_IB_STS, 0, 4)\ns_cmp_lt_u32 s{sT3}, {oi('wad', 0)}\ns_cbranch_scc1 L_wux")
            a(f"s_sub_u32 s{sT2}, s{sT2}, 1\ns_cmp_lg_u32 s{sT2}, 0\ns_cbranch_scc1 L_wu")
        if oi("iw", 0) and "iwy" in opt:
            W_ = oi("iwn", 4)
            a("s_branch L_wuy\nL_wux:")
            a([f"s_and_b32 s{sCNT}, s{sW}, {W_ - 1}", "s_mov_b64 exec, 0"] + [x for i in range(W_ - 1) for x in (f"s_cmp_eq_u32 s{sCNT}, {i}", f"s_cbranch_scc1 L_iw{i}_0")] +
              [f"s_branch L_iw{W_ - 1}_0", "L_iwr_g:", "s_mov_b64 exec, -1", "L_wuy:"])
        else: a("L_wux:")
        stamp("K3")
    if WU >= 0 and WQ == 0: warm()
    if "A" in TF: a(touch())
    if PF == "a": a(prefetch(4))
    if SP == 2: a(h_pre)
    WP, vWPA, vWPS, vWPL, CSA, CS1 = 208, 212, 213, 214, 240, 236
    sWPS, sWPF, sWPM = SSH, SSH + 1, SSH + 3
    a(f"""
    v_and_b32 v23, 3, v20
    v_lshrrev_b32 v26, 5, v0
    v_lshl_add_u32 v23, v26, 3, v23
    v_lshlrev_b32 v26, 4, v22
    v_lshl_add_u32 v{vWPL}, v23, 10, v26
    {"" if "wdx" in opt else f"s_mov_b32 s{sE}, s{sXCD}"}
    s_lshl_b32 s{sT2}, s{sRBL}, 1
    s_add_u32 s{sT2}, s{sT2}, s{sB}
    {f"s_xor_b32 s{sE}, s{sXCD}, s{sT2}" if "wdx" in opt else ""}
    s_mul_i32 s{sT3}, s{sT2}, 7
    {f"s_xor_b32 s{sT1}, s{sCT2}, 4" if "ct3" in opt else ""}
    s_add_u32 s{sT3}, s{sT3}, s{sT1 if "ct3" in opt else sCT2}
    s_mul_i32 s{sWPS}, s{sE}, 56
    s_add_u32 s{sWPS}, s{sWPS}, s{sT3}
    s_lshl_b32 s{sWPS}, s{sWPS}, 12
    s_lshl_b32 s{sT1}, s{sC}, 8
    s_add_u32 s{sWPS}, s{sWPS}, s{sT1}
    s_add_u32 s{sWPS}, s{sWPS}, {WS_WT}
    s_lshl_b32 s{sT3}, s{sT3}, 15
    s_lshl_b32 s{sT1}, s{sWR}, 12
    s_add_u32 s{sT3}, s{sT3}, s{sT1}
    s_lshl_b32 s{sT1}, s{sWC}, 14
    s_and_b32 s{sT1}, s{sT1}, 0x4000
    s_add_u32 s{sT3}, s{sT3}, s{sT1}
    s_lshl_b32 s{sT1}, s{sE}, 7
    s_add_u32 s{sWPF}, s{sT3}, s{sT1}
    s_lshl_b32 s{sT2}, s{sW}, 10
    s_add_u32 s{sWPM}, s{sT2}, {L_WP}
    {"" if "nob" in opt else "s_barrier"}
    """)
    wp_load = [f"s_mov_b32 m0, s{sWPM}", I(f"buffer_load_dwordx4 v{vWPL}, {sr(SWD,4)}, s{sWPF} offen{NTH} lds", vm="wpl")]
    SWL, SWR, SRS, SPW, SHL, SPF, SRL = oi("wl", -1), oi("wr", 4), oi("rs", 11), oi("pw", 20), oi("hl", 9), oi("pf", 0), oi("rl", -1)
    SKF, SRD = oi("kf", 28), oi("rd", 32)
    XE = oi("xe", 28)
    assert XE >= 27 or ("hr" in opt and XE >= 22)
    BI = "bi" in opt
    if WU >= 0 and WQ == 1: warm()
    if SWL < 0: a(wp_load)
    a(f"""
    v_lshlrev_b32 v23, 7, v24
    v_lshl_add_u32 v23, v21, 5, v23
    v_lshl_add_u32 v23, v25, 3, v23
    v_add_u32 v{vWPA}, s{sWPM}, v23
    """)
    C1E = oi("c1e", 2)
    if SRL >= 0: a(row_load()[0]); a(row_load()[1][:4])
    elif "rowl" not in opt: a(row_load())
    if SHL == -3: a(h_load(27))
    if PF == "b": a(prefetch(4))
    a(chunk_dma(1)[:C1E])
    if PF == "c": a(prefetch(4))
    if SHL == -4: a(h_load(27))
    if "th" in opt: a(I(f"buffer_load_dword v{vHP}, off, {sr(SH,4)}, 0", vm="th"))
    a(f"""
    v_and_b32 v23, 15, v0
    v_lshlrev_b32 v23, 4, v23
    v_lshl_add_u32 v{vWPS}, v21, 10, v23
    v_and_b32 v24, 31, v0
    v_lshrrev_b32 v25, 5, v0
    v_bfe_u32 v22, v0, 1, 3
    v_xor_b32 v22, v22, v25
    v_lshlrev_b32 v22, 4, v22
    v_lshl_add_u32 v22, v24, 7, v22
    s_lshl_b32 s{sT0}, s{sWR}, 13
    v_add_u32 v{vXB}, s{sT0}, v22
    v_xor_b32 v{vXB+1}, 32, v{vXB}
    v_xor_b32 v{vXB+2}, 64, v{vXB}
    v_xor_b32 v{vXB+3}, 96, v{vXB}
    v_add_u32 v{vXB+4}, {2*STAGE}, v{vXB}
    v_add_u32 v{vXB+5}, {2*STAGE}, v{vXB+1}
    v_add_u32 v{vXB+6}, {2*STAGE}, v{vXB+2}
    v_add_u32 v{vXB+7}, {2*STAGE}, v{vXB+3}
    v_bfe_u32 v23, v0, 2, 2
    v_lshl_add_u32 v24, v25, 3, v23
    v_lshlrev_b32 v24, 8, v24
    v_xor_b32 v23, s{sWC}, v23
    v_lshl_add_u32 v24, v23, 6, v24
    v_bfe_u32 v23, v0, 4, 1
    v_lshl_add_u32 v24, v23, 5, v24
    v_and_b32 v23, 3, v0
    v_lshl_add_u32 v24, v23, 3, v24
    v_add_u32 v{vWB}, 16384, v24
    v_add_u32 v{vWB+1}, {STAGE+16384}, v24
    v_add_u32 v{vWB+2}, {2*STAGE+16384}, v24
    """)
    if "cs16" in opt:
        a(f"""
        v_lshrrev_b32 v23, 2, v0
        v_xor_b32 v23, v23, v21
        v_and_b32 v23, 1, v23
        v_add_u32 v23, -1, v23
        """)
        for d in range(4): a(f"v_and_b32 v{CS1+d}, 0x3f803f80, v23")
    else:
        for d in range(4): a(f"v_mov_b32 v{CS1+d}, 0x3f803f80")
    if "csb" in opt: a(f"s_cmp_lg_u32 s{sCSM}, 0\ns_cselect_b64 vcc, -1, 0")
    if prof and oi("mz", 0): a([f"v_mov_b32 v{180+i}, 0" for i in range(4)])
    stamp("K1")
    stamp("K0")
    a(sc_init)
    if "dmaonly" in opt:
        DD = oi("dd", 2)
        if C1E < 6: a(chunk_dma(1)[0][:4]); a(chunk_dma(1)[C1E:])
        for c in range(2, DD): a(chunk_dma(c))
        for c in range(8):
            a(I(wvm=f"c{c}"))
            if "dnb" not in opt: a("s_barrier")
            stamp(f"B{c}")
            if c + DD < 8: a(chunk_dma(c + DD))
        a("s_branch L_prof")
        opt = [o for o in opt if not o.startswith("st=")] + ["st=end"]

    IW, IWN = oi("iw", 0), oi("iwn", 4)
    def walk(tag, first=0):
        o = [f"s_and_b32 s{sCNT}, s{sW}, {IWN - 1}", "s_mov_b64 exec, 0"]
        for i in range(IWN - 1): o += [f"s_cmp_eq_u32 s{sCNT}, {i}", f"s_cbranch_scc1 L_iw{i}_{first}"]
        return o + [f"s_branch L_iw{IWN - 1}_{first}", f"L_iwr_{tag}:", "s_mov_b64 exec, -1"]
    def F(s): return FR + 16 * (s & 1)
    def reads(s):
        c, j = divmod(s, 4)
        st = c % 3
        xb = vXB + j + (4 if st == 2 else 0); im = STAGE if st == 1 else 0
        wb = vWB + st; wo = 4096 * j
        f = F(s); t = f"r{s}"
        return [I(f"ds_read_b64_tr_b16 {vr(f,2)}, v{wb} offset:{wo}", lg=t),
                I(f"ds_read_b64_tr_b16 {vr(f+2,2)}, v{wb} offset:{wo+1024}", lg=t),
                I(f"ds_read_b128 {vr(f+8,4)}, v{xb} offset:{im}", lg=t),
                I(f"ds_read_b64_tr_b16 {vr(f+4,2)}, v{wb} offset:{wo+16384}", lg=t),
                I(f"ds_read_b64_tr_b16 {vr(f+6,2)}, v{wb} offset:{wo+17408}", lg=t),
                I(f"ds_read_b128 {vr(f+12,4)}, v{xb} offset:{im+4096}", lg=t)]
    def mfmas(A, B, first=False, par=0):
        out = []
        for nt in range(2):
            for m in range(2):
                d = ACC + 32 * m + 16 * nt
                if "m16x" in opt:
                    for h in range(2):
                        e = d + 8 * (par & 1) + 4 * h
                        out.append(f"v_mfma_f32_16x16x32_bf16 {vr(e,4)}, {vr(A[m ^ h],4)}, {vr(B[nt],4)}, {'0' if par < 2 else vr(e,4)}")
                    continue
                out.append(f"v_mfma_f32_32x32x16_bf16 {vr(d,16)}, {vr(A[m],4)}, {vr(B[nt],4)}, {'0' if first else vr(d,16)}")
        if "snk" in opt: out = [out[0], out[1], out[3], out[2]]
        if "snb" in opt: out = [out[0], out[2], out[3], out[1]]
        if "sna" in opt: out = [out[0], out[2], out[1], out[3]]
        return out
    def cs_mfma(p):
        o = []
        sh, n = ("16x16x32", 4) if "cs16" in opt else ("32x32x16", 16)
        mm = [f"v_mfma_f32_{sh}_bf16 {vr(CSA,n)}, {vr(CS1,4)}, {vr(F(p)+4*m,4)}, {'0' if p == 0 else vr(CSA,n)}" for m in range(2)]
        if "csb" in opt:
            return [f"s_cbranch_vccz L_cs{p}_1", f"s_bitcmp1_b32 s{sCSM}, 0", f"s_cbranch_scc0 L_cs{p}_0", mm[0], f"s_branch L_cs{p}_1",
                    f"L_cs{p}_0:", mm[1], f"L_cs{p}_1:"]
        if "cs16" in opt:
            for m in range(2): o += [f"s_bitcmp1_b32 s{sCSM}, {m}", f"s_cbranch_scc0 L_cs{p}_{m}", mm[m], f"L_cs{p}_{m}:"]
            return o
        for m in range(2):
            o += [f"s_bitcmp1_b32 s{sCSM}, {m}", f"s_cbranch_scc0 L_cs{p}_{m}",
                  f"v_mfma_f32_32x32x16_bf16 {vr(CSA,16)}, {vr(CS1,4)}, {vr(F(p)+4*m,4)}, {'0' if p == 0 else vr(CSA,16)}",
                  f"L_cs{p}_{m}:"]
        return o
    sCSB = SSH + 2
    cs_store = [L(f"""
        s_lshl_b32 s{sCSB}, s{sCB}, 2
        s_add_u32 s{sCSB}, s{sCSB}, s{sWC}
        s_lshl_b32 s{sCSB}, s{sCSB}, 10
        s_add_u32 s{sCSB}, s{sCSB}, {WS_CS}
        s_cmp_eq_u32 s{sCSM}, {'s%d' % sCSM if "nocs" in opt else 0}
        s_cbranch_scc1 L_nocs
        v_cvt_pk_bf16_f32 v{CSA+1}, v{CSA}, v{CSA}
        s_mul_i32 s{sT2}, s{sWR}, 57344
        v_lshlrev_b32 v{CSA+1}, 16, v{CSA+1}
        s_lshr_b32 s{sT3}, s{sKEY}, 1
        v_sub_f32 v{CSA+1}, v{CSA}, v{CSA+1}
        s_lshl_b32 s{sT3}, s{sT3}, 3
        v_cvt_pk_bf16_f32 v{CSA}, v{CSA}, v{CSA+1}
        s_add_u32 s{sT2}, s{sT2}, s{sT3}
        v_mov_b32 v{CSA+1}, v{vTAG}
        s_add_u32 s{sT2}, s{sT2}, s{sCSB}
        v_lshlrev_b32 v{CSA+2}, 5, v0
        s_mov_b32 exec_hi, 0
        buffer_store_dwordx2 {vr(CSA,2)}, v{CSA+2}, {sr(SWS,4)}, s{sT2} offen sc1
        s_mov_b32 exec_hi, -1
        L_nocs:
        """)]
    EG, EU, ER, EB0, EB1 = 128, 132, 20, 136, 140
    ex_addr = L(f"""
        v_and_b32 v24, 31, v0
        v_lshrrev_b32 v25, 5, v0
        v_lshlrev_b32 v25, 4, v25
        v_lshl_add_u32 v{vX0}, v24, 5, v25
        v_and_b32 v24, 15, v0
        v_lshrrev_b32 v25, 4, v0
        v_lshlrev_b32 v25, 3, v25
        v_lshl_add_u32 v{vX1}, v24, 5, v25
        s_lshl_b32 s{sKEY}, s{sRB}, 1
        s_add_u32 s{sKEY}, s{sKEY}, s{sWR}
        s_lshl_b32 s{sWB}, s{sKEY}, 9
        s_add_u32 s{sWB}, s{sWB}, {WS_RS}
        s_add_u32 s{sXB}, s{sCSB}, 57344
        """)
    ex_ld = [f"buffer_load_dwordx4 {vr(EG,4)}, v{vX0}, {sr(SWS,4)}, s{sCSB} offen sc1",
             f"buffer_load_dwordx4 {vr(EU,4)}, v{vX0}, {sr(SWS,4)}, s{sXB} offen sc1",
             f"buffer_load_dwordx2 {vr(ER,2)}, v{vX1}, {sr(SWS,4)}, s{sWB} offen sc1"]
    ex_check = L(f"""
        v_min3_u32 v24, v{EG+1}, v{EG+3}, v{ER+1}
        v_max3_u32 v25, v{EG+1}, v{EG+3}, v{ER+1}
        v_min3_u32 v24, v24, v{EU+1}, v{EU+3}
        v_max3_u32 v25, v25, v{EU+1}, v{EU+3}
        v_cmp_ne_u32 vcc, s{sTAG}, v24
        v_cmp_ne_u32 s[{sT0}:{sT1}], s{sTAG}, v25
        s_or_b64 vcc, vcc, s[{sT0}:{sT1}]
        """)
    AP, BP, SS, vHO, TM = 22, 24, 26, 28, FR
    RM = row_math()
    def part(lst, i, n): return lst[len(lst) * i // n:len(lst) * (i + 1) // n]
    def os_(k, d=""): return ([o[len(k):] for o in opt if o.startswith(k)] + [d])[0]
    W = [0]
    def cum(t): return [sum(int(x) for x in t[:i]) for i in range(5)]
    def step(s, role):
        wi = W[0]
        c, j = divmod(s, 4)
        fill = []; pre = []; post = []
        NB7, PO = "nb7" in opt, os_("po=")
        if IW and s == oi("iwg", -1): a([f"s_cmp_ge_u32 s{sW}, 4", "s_cbranch_scc1 L_iwx"] + walk("g") + ["L_iwx:"])
        if IW and s == oi("iwf", 32): a("L_iwa:")
        if j == 0 and s < 32:
            if not (NB7 and c == 7):
                a(I(wvm=["c6", "c7"] if NB7 and c == 6 else f"c{c}", wlg="*"))
                a("s_barrier")
            stamp(f"B{c}")
            if PO and c == int(PO[0]):
                a(f"s_setprio {PO[2]}\ns_cmp_lt_u32 s{sW}, 4\ns_cbranch_scc0 L_po\ns_setprio {PO[1]}\nL_po:")
            PR_ = os_(f"Rq{role}=")
            if PR_ and (c == 0 or PR_[c] != PR_[c - 1]): a(f"s_setprio {PR_[c]}")
            if "g1only" in opt and s == 20: a("s_waitcnt vmcnt(0)\ns_branch L_prof")
        if prof and os_(f"zz{s}="): a(f"s_sleep {os_(f'zz{s}=')}")
        if prof and os_(f"zy{s}="): a(f"s_cmp_lt_u32 s{sW}, 4\ns_cbranch_scc1 L_zy{s}\ns_sleep {os_(f'zy{s}=')}\nL_zy{s}:")
        DR = os_("drop=")
        if s == SWL: pre += [wp_load]
        if s == SPW: pre += [ap(wf_ld, 28, "apw", "fw")]
        if s == SKF: pre += [ap(kf_ld, 32, "apk", "kf")]
        if s == XE: pre += [I(x, vm="ex") for x in ex_ld]
        if s == 0:
            assert C1E in (0, 2, 4, 6)
            if 0 < C1E < 6: fill += [chunk_dma(1)[0][:4]]
            fill += chunk_dma(1)[C1E:]
            if "rowl" in opt: fill += row_load()
            if SHL == -5: fill += h_load(27)
        if c <= 5:
            cu = cum(os_(f"Re{role}=", "0222") if c == 0 and C1E < 6 else os_(f"Rd{role}{c}=", os_(f"Rd{role}=", "2121")))
            assert cu[4] == 6
            g = chunk_dma(c + 2)[cu[j]:cu[j + 1]]
            pm = os_(f"Rm{role}{c}=", os_(f"Rm{role}=", "0000"))[j]
            hp = os_(f"Rp{role}=", "0")
            if hp[0] != "0" and g:
                if pm == "0" and s: g = [[f"s_setprio {hp[0]}", x, "s_setprio 0"] for x in g]
                else: g = [f"s_setprio {hp[0]}"] + g + ["s_setprio 0"]
            if s == 0 or pm == "0": fill += g
            elif pm == "1": pre += g
            else: post += g
        if PF == str(s): fill += [prefetch(4)]
        if s == oi("c3p", -1): fill += [c3p(role, 4, "a")]
        IL = os_("il=", "")
        RD = reads(s) if s < 32 else []
        if IL:
            for x, t in zip(RD, "aaabbc"): x.lg += t
        if not IL or s == 0: a(RD)
        wp_rd = [I(f"ds_read_b64_tr_b16 {vr(WP,2)}, v{vWPA}", lg="wp", wvm="wpl"),
                 I(f"ds_read_b64_tr_b16 {vr(WP+2,2)}, v{vWPA} offset:512", lg="wp")]
        wp_st = I(f"buffer_store_dwordx4 {vr(WP,4)}, v{vWPS}, {sr(SWS,4)}, s{sWPS} offen sc1", vm="wps", wlg="wp")
        if s == 0:
            a(pre + fill + (wp_rd if SWR == 0 else [])); return
        p = s - 1
        v = []
        if s in (SHL, SHL + oi("hd", 2))[:1 if H1 else 2] and "h" not in DR:
            g = h_load(31)[(s - SHL) // oi("hd", 2)]
            if "hx" in opt: g[-1].text = g[-1].text.replace(sr(SH, 4), sr(SX, 4))
            if oi("hpt", 0):
                g = ([f"v_and_b32 v156, 7, v0", f"v_lshlrev_b32 v156, 7, v156"] + g[:-1] +
                     [f"s_bitcmp1_b32 0x2a2a, s{sCB}", "s_cselect_b64 exec, 0, -1", g[-1],
                      f"s_bitcmp1_b32 0x1515, s{sCB}", "s_cselect_b64 exec, 0xff, 0", f"s_cselect_b32 s{sT3}, 0x8000, 0", f"s_add_u32 s{sT2}, s{sT2}, s{sT3}",
                      I(f"buffer_load_dword v157, v156, {sr(SH,4)}, s{sT2} offen", vm="hl"), "s_mov_b64 exec, -1"])
            if not (("1" in DR and s == SHL) or ("2" in DR and s != SHL)): fill += [g]
        if s == oi("hpt", 0):
            g = h_load(31)[0]
            fill += [g[:-1] + [f"s_bitcmp1_b32 0x2a2a, s{sCB}", "s_cselect_b64 exec, -1, 0", g[-1], "s_mov_b64 exec, -1"]]
        if s == oi("tg", 4) and "t" not in DR: v += [I(tag_math[0], wvm="ep")] + tag_math[1:]
        if s == SWR and "w" not in DR: fill += wp_rd
        if s == SWR + 1 and "w" not in DR: fill = [wp_st] + fill if SWR == 0 else fill + [wp_st]
        RM0, RMN = oi("rm", 5), oi("rn", 5)
        if s == SRL:
            x = row_load()[1][4:]; x[-1].vm = "xr"; fill += [x]
        if SRL >= 0 and s == RM0: v += [I(f"s_mov_b32 s{sB}, 0x3f803f80", wvm="xr")]
        if SRL >= 0 and s == oi("wf", 11):
            fill += [[f"s_lshl_b32 s{sT2}, s{sA}, 3", f"s_add_u32 s{sT2}, s{sT2}, {WS_RS + 16384}"] +
                     one(f"buffer_store_dword v{vTAG}, off, {sr(SWS,4)}, s{sT2} offset:4 sc1", vm="wf", wvm="wps")]
        if RM0 <= s < RM0 + RMN and "t" not in DR: v += part(RM[:-1], s - RM0, RMN)
        if s == SRS and "r" not in DR: fill = [RM[-1]] + fill if "rsf" in opt else fill + [RM[-1]]
        if s == oi("cst", 10) and "c" not in DR: v += cs_store
        if s == 11 and "a" not in DR: v += [wf_addr]
        HM, HW = oi("hm", 21), oi("hw", 24)
        if HM <= s <= HM + 2: v += part(h_math, s - HM, 3)
        if s == SPW + oi("pd", 3): pre += [[I(wvm="fw")] + ne(vFL) + ["s_cbranch_scc0 L_fw_ok"] + spin("fw", ap(wf_ld, 28, "apw"), ne(vFL))]
        if s == 19: v += kf_addr
        if HW <= s <= HW + 2: v += [h_write[s - HW]]
        if s == XE - 1: v += ex_addr
        if s == SRD: fill = [[I(wvm="kf")] + ne(vKL) + [f"s_cselect_b32 s{sOK}, 0, 1"] +
                             ([f"s_cselect_b64 vcc, 0, -1"] + r_dma(24)[:-1] + ["s_mov_b64 exec, vcc", r_dma(24)[-1], "s_mov_b64 exec, -1"] if "mskr" in opt else r_dma(oi("rt", 24)))] + fill
        if s == 30: v += [f"v_mov_b32 v{r}, 0" for r in (EB0 + 1, EB0 + 3, EB1 + 1, EB1 + 3)] + [f"s_mov_b32 s{sB}, 0x03020302"]
        n = wsched.get(s, 0); fill += WL[wi:wi + n]; W[0] += n
        if s == 32:
            a(I(wvm="ex"))
            a(ex_check + ["s_cbranch_scc0 L_ex_ok"] + spin("ex", ex_ld, ex_check))
            v += L(f"""
            v_mov_b32 v{ER+1}, v{ER}
            v_permlane32_swap_b32 v{ER}, v{ER+1}
            v_perm_b32 v{EB0}, v{ER}, v{ER}, s{sB}
            v_perm_b32 v{EB0+2}, v{ER}, v{ER}, s{sB}
            v_perm_b32 v{EB1}, v{ER+1}, v{ER+1}, s{sB}
            v_perm_b32 v{EB1+2}, v{ER+1}, v{ER+1}, s{sB}
            v_lshlrev_b32 v{ER}, 16, v{ER}
            v_lshlrev_b32 v{ER+1}, 16, v{ER+1}
            """)
        hd = []
        if c <= 5 and os_(f"Rm{role}{c}=", os_(f"Rm{role}=", "0000"))[j] == "1": hd, pre = pre, []
        fill = pre + (mix(v, fill) if len(v) >= len(fill) else mix(fill, v)) if (v and fill) else pre + v + fill
        a(hd)
        f = F(p)
        MM = mfmas((f, f + 4), (f + 8, f + 12), p == 0, p)
        if prof and oi("my", 0) <= p < oi("mz", 0): MM = mfmas((180, 180), (180, 180) if "mzb" in opt else (f + 8, f + 12), p == 0, p)
        if IL:
            nm = len(MM)
            cu2 = lambda t: [sum(int(x) for x in t[:i]) for i in range(nm + 1)]
            rc = cu2(IL[:nm]); fc = cu2(IL[nm:2 * nm])
            assert rc[nm] == 6
            for i in range(nm):
                a(I(MM[i], wlg=f"r{p}" + ("abcc" if nm == 4 else "abbbcccc")[i]))
                a(RD[rc[i]:rc[i + 1]])
                a(fill[(len(fill) * fc[i] + fc[nm] // 2) // fc[nm]:(len(fill) * fc[i + 1] + fc[nm] // 2) // fc[nm]])
        else:
            a(I(wlg=f"r{p}"))
            NP_ = os_("np=")
            if prof and NP_ and p < len(NP_) and NP_[p] != "0": MM = [[m_] + ["s_nop 15"] * int(NP_[p]) for m_ in MM]
            a(mix(MM, fill))
        if p < 8 and "nocs" not in opt and "c" not in DR: a(cs_mfma(p))
        a(post)
        stamp(f"s{s}")
    if "split" in opt:
        a(f"s_cmp_lt_u32 s{sW}, 4\ns_cbranch_scc0 L_g1y")
        sv = (list(a.vq), list(a.lq), W[0])
        for s in range(24): step(s, "o")
        a(I(wvm="c6", wlg="*"))
        a("s_branch L_g1m")
        vo = list(a.vq)
        a("L_g1y:")
        a.vq, a.lq, W[0] = sv
        i0 = len(a.lines)
        for s in range(24): step(s, "y")
        a(I(wvm="c6", wlg="*"))
        defs = [x[:-1] for x in a.lines[i0:] if x.endswith(":")]
        for i in range(i0, len(a.lines)):
            for d in defs: a.lines[i] = re.sub(rf"\b{d}\b", d + "_y", a.lines[i])
        a("L_g1m:")
        a.vq = [tuple(set(vo + a.vq))]
        for s in range(24, 33): step(s, "o")
    else:
        for s in range(33): step(s, "o")
    wi = W[0]
    fill = []
    EO = oi("eo", 2)
    cA, cB, cS = ([lambda nt, b=b: b + nt for b in (AP, BP, SS)] if EO == 0 else
                  [lambda nt, b=b: FR + 16 + 6 * nt + b for b in (0, 2, 4)])
    for nt in range(2):
        if BI:
            fill += [f"v_rcp_f32 v{TM+nt}, v{ER+nt}"] + [f"v_mov_b32 v{cS(nt)+i}, {fx((-float(ESH), 2.0 ** -ESH)[nt])}" for i in range(2)]
            continue
        fill += [f"v_rcp_f32 v{TM+nt}, v{ER+nt}", f"v_mul_f32 v{cS(nt)}, v{ER+nt}, v{ER+nt}"]
        if EO == 2: fill += [f"v_mul_f32 v{cS(nt)+1}, v{ER+nt}, v{ER+nt}"]
    for nt in range(2):
        fill += [f"v_mul_f32 v{cA(nt)}, {fx(-KC)}, v{TM+nt}"]
        if EO == 2: fill += [f"v_mul_f32 v{cA(nt)+1}, {fx(-KC)}, v{TM+nt}"]
        fill += [f"v_mul_f32 v{TM+nt}, v{TM+nt}, v{TM+nt}",
                 f"v_mul_f32 v{TM+nt}, {fx(0.044715)}, v{TM+nt}", f"v_mul_f32 v{cB(nt)}, v{cA(nt)}, v{TM+nt}"]
        if EO == 2: fill += [f"v_mul_f32 v{cB(nt)+1}, v{cA(nt)}, v{TM+nt}"]
    sHF = SK
    fill += L(f"""
    v_bfe_u32 v{TM+8}, v0, 4, 1
    v_mul_u32_u24 v{TM+8}, 57344, v{TM+8}
    v_and_b32 v{TM+9}, 15, v0
    v_lshl_add_u32 v{TM+8}, v{TM+9}, 4, v{TM+8}
    v_lshrrev_b32 v{TM+9}, 5, v0
    v_lshl_add_u32 v{vHO}, v{TM+9}, 8, v{TM+8}
    s_mul_i32 s{sXB}, s{sKEY}, {4*56*1024}
    s_add_u32 s{sXB}, s{sXB}, s{sCSB}
    s_add_u32 s{sXB}, s{sXB}, {WS_H - WS_CS}
    s_add_u32 s{sWB}, s{sXB}, {2*56*1024}
    s_sub_u32 s{sHF}, s{sCSB}, {WS_CS}
    s_lshr_b32 s{sHF}, s{sHF}, {10 - FS}
    s_mul_i32 s{sT0}, s{sKEY}, {56 << FS}
    s_add_u32 s{sHF}, s{sHF}, s{sT0}
    s_add_u32 s{sHF}, s{sHF}, {WS_FH}
    """)
    a(mix(mfmas((EG, EU), (EB0, EB1), False, 2), fill))
    stamp("B8")
    if os_("po="): a(f"s_setprio {os_('po=')[3]}")
    if oi("pe", 0): a(f"s_setprio {oi('pe', 0)}")
    def epi(G, U, nt, rr, pk, plain=False):
        o = []
        t = {r: TM + 2 * i for i, r in enumerate(rr)}
        P = lambda x: vr(x, 2)
        s2 = (f"op_sel:[0,{nt},{nt}] op_sel_hi:[1,{nt},{nt}]", "op_sel_hi:[1,0,0]", "")[EO]
        AP, BP, SS = [f(nt) & ~1 for f in (cA, cB, cS)]
        if plain:
            e = [(t[r] + i, G + r + i, U + r + i) for r in rr for i in range(2)]
            o += [f"v_mul_f32 v{x}, v{g}, v{g}" for x, g, u in e]
            o += [f"v_fma_f32 v{x}, v{x}, v{BP}, v{AP}" for x, g, u in e]
            o += [f"v_mul_f32 v{x}, v{x}, v{g}" for x, g, u in e]
            o += mix([f"v_exp_f32 v{x}, v{x}" for x, g, u in e], [f"v_mul_f32 v{u}, v{u}, v{g}" for x, g, u in e])
            o += [f"v_fma_f32 v{x}, v{x}, v{SS}, v{SS}" for x, g, u in e]
            o += [f"v_rcp_f32 v{x}, v{x}" for x, g, u in e]
            o += [f"v_mul_f32 v{u}, v{u}, v{x}" for x, g, u in e]
            o += [f"v_cvt_pk_bf16_f32 v{pk+i}, v{U+r}, v{U+r+1}" for i, r in enumerate(rr)]
            return o
        o += [f"v_pk_mul_f32 {P(t[r])}, {P(G+r)}, {P(G+r)}" for r in rr]
        o += [f"v_pk_fma_f32 {P(t[r])}, {P(t[r])}, {P(BP)}, {P(AP)} {s2}" for r in rr]
        if BI:
            rr = list(rr); bt = [(rr[0], rr[1]), (rr[2], rr[3])]
            o += [f"v_pk_fma_f32 {P(t[r])}, {P(t[r])}, {P(G+r)}, {P(cS(0))}" for r in rr]
            ex = [f"v_exp_f32 v{t[r]+i}, v{t[r]+i} clamp" for r in rr for i in range(2)]
            ug = [f"v_pk_mul_f32 {P(U+r)}, {P(U+r)}, {P(G+r)}" for r in rr]
            ad = [f"v_pk_add_f32 {P(t[r])}, {P(t[r])}, {P(cS(1))}" for r in rr]
            M = [f"v_pk_mul_f32 {P(G+q)}, {P(t[p])}, {P(t[q])}" for p, q in bt]
            m = [f"v_mul_f32 v{G+p}, v{G+q}, v{G+q+1}" for p, q in bt]
            rc = [f"v_rcp_f32 v{G+p}, v{G+p}" for p, q in bt]
            cr = [f"v_pk_mul_f32 {P(U+x)}, {P(U+x)}, {P(t[y])}" for p, q in bt for x, y in ((p, q), (q, p))]
            N = [f"v_pk_mul_f32 {P(G+q)}, {P(G+q)}, {P(G+p)} op_sel:[1,0] op_sel_hi:[0,0]" for p, q in bt]
            fi = [f"v_pk_mul_f32 {P(U+x)}, {P(U+x)}, {P(G+q)}" for p, q in bt for x in (p, q)]
            cv = [f"v_cvt_pk_bf16_f32 v{pk+i}, v{U+r}, v{U+r+1}" for i, r in enumerate(rr)]
            o += [ex[0], ug[0], ex[1], ug[1], ex[2], ug[2], ex[3], ad[0], ex[4], ad[1], ug[3], ex[5], M[0], ex[6], m[0], ad[2],
                  ex[7], cr[0], rc[0], ad[3], cr[1], M[1], N[0], m[1], cr[2], rc[1], fi[0], fi[1], cr[3], N[1], cv[0], cv[1],
                  fi[2], fi[3], cv[2], cv[3]]
            return o
        o += [f"v_pk_mul_f32 {P(t[r])}, {P(t[r])}, {P(G+r)}" for r in rr]
        o += mix([f"v_exp_f32 v{t[r]+i}, v{t[r]+i}" for r in rr for i in range(2)],
                 [f"v_pk_mul_f32 {P(U+r)}, {P(U+r)}, {P(G+r)}" for r in rr])
        o += [f"v_pk_fma_f32 {P(t[r])}, {P(t[r])}, {P(SS)}, {P(SS)} {s2}" for r in rr]
        o += [f"v_rcp_f32 v{t[r]+i}, v{t[r]+i}" for r in rr for i in range(2)]
        o += [f"v_pk_mul_f32 {P(U+r)}, {P(U+r)}, {P(t[r])}" for r in rr]
        o += [f"v_cvt_pk_bf16_f32 v{pk+i}, v{U+r}, v{U+r+1}" for i, r in enumerate(rr)]
        return o
    HSP = ("sc1", "sc0 sc1", "sc1 nt", "sc0 sc1 nt", "", "nt")[oi("hsp", 0)]
    for nt in range(2):
        G = ACC + 16 * nt; U = ACC + 32 + 16 * nt
        for h in range(2):
            pk = TM + 8 + 4 * h
            seq = epi(G, U, nt, range(8 * h, 8 * h + 8, 2), pk, 2 * nt + h < oi('npl', 0))
            n = wepi[2 * nt + h]
            ex = WL[wi:wi + n]; wi += n
            q = 33 + 2 * nt + h
            if oi("hm", 21) == q: ex = ex + h_math
            if oi("hw", 24) == q: ex = ex + h_write
            if SRD == q: ex = ex + [[I(wvm="kf")] + ne(vKL) + [f"s_cselect_b32 s{sOK}, 0, 1"] + r_dma(24)]
            if SRD == q + 10: ex = [[I(wvm="kf")] + ne(vKL) + [f"s_cselect_b32 s{sOK}, 0, 1"] + r_dma(24)] + ex
            a(mix(seq, ex))
            so = sXB if nt == 0 else sWB
            a(I(f"buffer_store_dwordx4 {vr(pk,4)}, v{vHO}, {sr(SWS,4)}, s{so} offen offset:{512*h} {HSP}", vm="hs"))
            stamp(f"e{2*nt+h}")
    assert wi == NPRE
    a(f"s_branch {JOIN}")
    if IW:
        a("L_iwb:\nL_iwret:")
        if oi("iwg", -1) >= 0 or "iwy" in opt: a(f"s_cmp_lg_u32 s{sISG}, 0\ns_cbranch_scc1 L_iwr_g")
        if "iwna" not in opt: a("s_branch L_iwr_a")
    vq_join = list(a.vq)

    a(["s_nop 0"] * oi("pad", 0))
    a(f"{AUX}:")
    if "noaux" in opt: a(f"s_branch {END}")
    a.vq, a.lq = list(vq_pro), []
    vKa, vKb, TP, vT, vKS, KR, KT = 1, 2, 32, 6, 10, 48, 96
    sKO, sKL = sXB, sWB
    a(row_load())
    AXL = oi("axl", 0)
    a(["s_nop 7"] * (len(SCN) > 0) + sc_init)
    if AXL & 2: a(h_load(27))
    if AXL & 1: a(I(wvm="ep")); a(tag_math); a(row_math())
    if AXL & 4: a(I(wvm="*"))
    if oi("asl", 0): a(f"s_sleep {oi('asl', 0)}")
    a(f"""
    s_xor_b32 s{sCB}, s{sXCD}, s{sW}
    v_and_b32 v23, 1, v21
    v_lshlrev_b32 v23, 1, v23
    v_xor_b32 v23, v22, v23
    v_lshlrev_b32 v23, 4, v23
    v_lshl_add_u32 v{vKa}, v20, 10, v23
    {f"v_lshlrev_b32 v{vKa}, 4, v0" if "kvlin" in opt else ""}
    v_xor_b32 v{vKb}, 64, v{vKa}
    s_lshl_b32 s{sKO}, s{sRBL}, 3
    s_add_u32 s{sKO}, s{sKO}, s{sW}
    s_mov_b32 s{sKEY}, s{sKO}
    s_lshl_b32 s{sKO}, s{sKO}, 16
    s_lshl_b32 s{sT0}, s{sCB}, {13 if "kvlin" in opt else 7}
    s_add_u32 s{sKO}, s{sKO}, s{sT0}
    s_mul_i32 s{sKL}, s{sW}, 17408
    {f"s_cmp_eq_u32 s{sCB}, 3" if oi("k3f", 0) else ""}
    {"s_cbranch_scc1 L_k3a" if oi("k3f", 0) else ""}
    {"s_barrier" if oi("k3f", 0) else ""}
    {"L_k3a:" if oi("k3f", 0) else ""}
    s_mov_b32 m0, s{sKL}
    s_cmp_eq_u32 s{sKEY}, 0
    s_cbranch_scc1 L_halo0
    s_sub_u32 s{sT0}, s{sKO}, 8192
    buffer_load_dwordx4 v{vKa}, {sr(SK,4)}, s{sT0} offen lds
    s_branch L_halo1
    L_halo0:
    v_mov_b32 v40, 0
    v_mov_b32 v41, 0
    v_mov_b32 v42, 0
    v_mov_b32 v43, 0
    ds_write_b128 v{vL16}, v[40:43]
    L_halo1:
    """)
    def c3a():
        t = 150; PW = os0("c3v=", "wx"); o = []
        if "w" in PW: o += L(f"""
        s_and_b32 s{sT2}, s{sXCD}, 1
        s_mul_i32 s{sT2}, s{sT2}, 3
        s_add_u32 s{sT2}, s{sT2}, s{sRBL}
        s_and_b32 s{sT3}, s{sXCD}, 1
        s_lshl_b32 s{sT3}, s{sT3}, 2
        s_or_b32 s{sT3}, s{sT3}, s{sRBL}
        s_cmp_eq_u32 s{sT3}, 3
        s_cselect_b32 s{sT3}, 9, s{sW}
        s_cmp_gt_u32 s{sT3}, 3
        s_cbranch_scc1 L_c3a1
        s_and_b32 s{sT3}, s{sT2}, 1
        s_mul_i32 s{sT3}, s{sT3}, 3584
        s_lshl_b32 s{sT2}, s{sT2}, 9
        s_add_u32 s{sT2}, s{sT2}, s{sT3}
        s_andn2_b32 s{sT3}, 2, s{sXCD}
        s_add_u32 s{sT3}, s{sT3}, s{sWC}
        s_mul_i32 s{sT3}, s{sT3}, {128 * 3584}
        s_add_u32 s{sT2}, s{sT2}, s{sT3}
        v_mul_u32_u24 v{t}, 7168, v0
        s_bitcmp1_b32 s{sW}, 0
        s_cbranch_scc1 L_c3a0
        buffer_load_dword v{t+1}, v{t}, {sr(SWG,4)}, s{sT2} offen offset:384
        s_branch L_c3a1
        L_c3a0:
        buffer_load_dword v{t+1}, v{t}, {sr(SWU,4)}, s{sT2} offen offset:384
        L_c3a1:
        """)
        if "x" in PW: o += L(f"""
        s_andn2_b32 s{sT3}, 2, s{sXCD}
        s_xor_b32 s{sT2}, s{sWC}, 2
        s_or_b32 s{sT2}, s{sT2}, s{sT3}
        s_cbranch_scc1 L_c3a2
        s_lshl_b32 s{sT2}, s{sRB}, 1
        s_add_u32 s{sT2}, s{sT2}, s{sWR}
        s_lshl_b32 s{sT2}, s{sT2}, 16
        v_lshlrev_b32 v{t+3}, 10, v0
        buffer_load_dword v{t+4}, v{t+3}, {sr(SX,4)}, s{sT2} offen offset:384
        L_c3a2:
        """)
        return o
    C3A = oi("c3a", -1)
    k3b = [f"s_cmp_eq_u32 s{sCB}, 3", "s_cbranch_scc0 L_k3b", "s_barrier", "L_k3b:"]
    def kv_ld(m, b, tag):
        lb = (1 + b) if m == 0 else (9 + b)
        par = (lb & 1) if m == 0 else (b & 1)
        return [f"s_add_u32 m0, s{sKL}, {1024*lb}", f"s_add_u32 s{sT0}, s{sKO}, {(1024 if 'kvlin' in opt else 8192)*b}",
                I(f"buffer_load_dwordx4 v{vKb if par else vKa}, {sr(SV if m else SK,4)}, s{sT0} offen{NTK} lds", vm=tag)]
    for b in range(4):
        if C3A == b: a(c3a())
        a(kv_ld(0, b, "k0")); a(kv_ld(1, b, "k0"))
        if oi("k3f", 0) == b + 1: a(k3b)
    a(f"""
    v_and_b32 v23, 15, v0
    v_lshlrev_b32 v26, 3, v23
    s_lshl_b32 s{sT1}, s{sCB}, 9
    """)
    for cg in range(4):
        a(I(f"buffer_load_dwordx2 {vr(TP+2*cg,2)}, v26, {sr(SSH,4)}, s{sT1} offen offset:{128*cg}", vm="k0"))
    for b in range(4, 8):
        if C3A == b: a(c3a())
        a(kv_ld(0, b, "k1")); a(kv_ld(1, b, "k1"))
        if oi("k3f", 0) == b + 1: a(k3b)
    if C3A == 8: a(c3a())
    if not AXL & 2: a(h_load(27))
    stamp("iss", 4)
    IWP = oi("iwp", 0) if IW and "iwna" not in opt else -1
    if IWP == 0: a(walk("a"))
    a(f"""
    v_lshlrev_b32 v26, 7, v24
    v_lshl_add_u32 v26, v21, 10, v26
    v_lshl_add_u32 v26, v25, 3, v26
    v_lshrrev_b32 v27, 1, v24
    v_lshl_add_u32 v26, v27, 5, v26
    v_and_b32 v27, 1, v21
    v_lshl_add_u32 v26, v27, 6, v26
    v_add_u32 v{vT}, s{sKL}, v26
    v_xor_b32 v{vT+1}, 32, v{vT}
    v_xor_b32 v{vT+2}, 64, v{vT}
    v_xor_b32 v{vT+3}, 96, v{vT}
    v_lshrrev_b32 v26, 1, v23
    v_lshlrev_b32 v26, 13, v26
    v_and_b32 v27, 1, v0
    v_lshl_add_u32 v26, v27, 4, v26
    v_sub_u32 v27, 3, v21
    v_lshl_add_u32 v{vKS}, v27, 5, v26
    s_lshl_b32 s{sKO}, s{sCB}, 18
    s_lshl_b32 s{sT0}, s{sKEY}, 8
    s_sub_u32 s{sKO}, s{sKO}, s{sT0}
    s_add_u32 s{sKO}, s{sKO}, {WS_KV + 8192 - 256}
    """)
    if not AXL & 1: a(I(wvm="ep")); a(tag_math); a(row_math())
    stamp("rs", 1)
    if IWP == 3: a(walk("a"))
    def kv_read(hh, cg):
        r = KR + 10 * cg; t = f"kr{cg}"
        return [I(f"ds_read_b64_tr_b16 {vr(r,2)}, v{vT+cg} offset:{4096*hh+512}", lg=t),
                I(f"ds_read_b64_tr_b16 {vr(r+2,2)}, v{vT+(cg^2)} offset:{4096*hh+1024}", lg=t),
                I(f"ds_read_b64_tr_b16 {vr(r+4,2)}, v{vT+(cg^2)} offset:{4096*hh+1536}", lg=t),
                I(f"ds_read_b64_tr_b16 {vr(r+6,2)}, v{vT+cg} offset:{4096*hh+9216}", lg=t),
                I(f"ds_read_b64_tr_b16 {vr(r+8,2)}, v{vT+cg} offset:{4096*hh+9728}", lg=t)]
    def kv_math(hh, cg):
        r = KR + 10 * cg; q, u, w, pk = KT, KT + 8, KT + 16, KT + 24 + 4 * (cg & 1)
        o = [I(wlg=f"kr{cg}")]
        o += [f"v_alignbit_b32 v{q+i}, v{r+i}, v{r+i-1}, 16" for i in range(1, 6)]
        src = lambda t, back: (r if t & 1 else q) + 2 + t // 2 - back
        for t in (1, 3, 5, 7, 0, 2, 4, 6): o += [f"v_dot2_f32_bf16 v{u+t}, v{src(t,0)}, v{TP+2*cg}, 0"]
        for t in (1, 3, 5, 7, 0, 2, 4, 6): o += [f"v_dot2_f32_bf16 v{u+t}, v{src(t,1)}, v{TP+2*cg+1}, v{u+t}"]
        o += [f"v_and_b32 v{w+t}, 0xffff0000, v{r+6+t//2}" if t & 1 else f"v_lshlrev_b32 v{w+t}, 16, v{r+6+t//2}" for t in range(8)]
        o += [f"v_mul_f32 v{u+t}, v{u+t}, v{w+t}" for t in range(8)]
        o += [f"v_cvt_pk_bf16_f32 v{pk+e}, v{u+7-2*e}, v{u+6-2*e}" for e in range(4)]
        o += [f"s_add_u32 s{sT0}, s{sKO}, {65536*cg}",
              I(f"buffer_store_dwordx4 {vr(pk,4)}, v{vKS}, {sr(SWS,4)}, s{sT0} offen offset:{128*(1-hh)} sc1", vm="ks")]
        return o
    for hh in range(2):
        a(I(wvm=f"k{hh}", wlg="*"))
        stamp("kin", 5 + 2 * hh)
        for cg in range(4): a(kv_read(hh, cg))
        if hh == 0:
            for d in range(8): a(f"v_alignbit_b32 v{TP+d}, v{TP+d}, v{TP+d}, 16")
        for cg in range(4): a(kv_math(hh, cg))
        stamp("km", 6 + 2 * hh)
        if IWP == 1 and hh == 0: a(walk("a"))
    a(h_math); a(wf_addr)
    vKA2, vKL2 = 27, 28
    ld2 = f"buffer_load_dword v{vKL2}, v{vKA2}, {sr(SWS,4)}, s{sA} offen sc1"
    a(f"""
    s_lshl_b32 s{sT0}, s{sCB}, 5
    s_add_u32 s{sT0}, s{sT0}, s{sKEY}
    s_lshl_b32 s{sT0}, s{sT0}, 2
    s_add_u32 s{sT0}, s{sT0}, {WS_FKV}
    v_lshlrev_b32 v26, 10, v0
    v_lshlrev_b32 v{vKA2}, 3, v0
    s_lshl_b32 s{sA}, s{sRT2}, 9
    s_add_u32 s{sA}, s{sA}, {WS_RS + 4}
    """)
    a([I("s_mov_b64 exec, 3", wvm="*"), f"buffer_store_dword v{vTAG}, v26, {sr(SWS,4)}, s{sT0} offen sc1", "s_mov_b64 exec, -1"])
    stamp("kvf", 2)
    if IWP == 2: a(walk("a"))
    if "dmaonly" in opt or "g1only" in opt: a("s_branch L_prof")
    ck2 = [f"v_xor_b32 v{vFL}, s{sTAG}, v{vFL}", f"v_xor_b32 v{vKL2}, s{sTAG}, v{vKL2}", f"v_or_b32 v{vFL}, v{vFL}, v{vKL2}",
           f"v_cmp_ne_u32 vcc, 0, v{vFL}", "s_cmp_lg_u64 vcc, 0"]
    a("s_barrier")
    a(h_write)
    a(kf_addr); a(f"s_add_u32 s{sC}, s{sC}, 1024")
    stamp("wd", 3)
    a(spin("fwa", ap(wf_ld, 28, "apx") + ap(ld2, 64, "apx"), ck2))
    a(f"""
    s_cmp_lg_u32 s2, 0
    s_cbranch_scc1 L_ep_ok
    s_add_u32 s{sT0}, s{sM0X}, {WS_RS}
    """)
    a(spin("ep", [f"buffer_load_dwordx4 v[32:35], v{vL16}, {sr(SWS,4)}, s{sT0} offen sc1",
                  f"buffer_load_dwordx4 v[36:39], v{vL16}, {sr(SWS,4)}, s{sT0} offen offset:1024 sc1"],
           [f"v_xor_b32 v{r}, s{sTAG}, v{r}" for r in (33, 35, 37, 39)] +
           ["v_or3_b32 v33, v33, v35, v37", "v_or_b32 v33, v33, v39", "v_cmp_ne_u32 vcc, 0, v33", "s_cmp_lg_u64 vcc, 0"]))
    NA = oi("na", 8)
    a(WL[:NA])
    a(spin("kva", ap(kf_ld, 32, "apx"), ne(vKL)))
    a.vq = []
    a(r_dma(24)); a(WL[NA:NPRE]); a(I(wvm="R"))
    a(f"s_branch L_kvok")

    a(f"{JOIN}:")
    a.vq, a.lq = list(vq_join), []
    stamp("join")
    if oi("pe", 0) or (os_("po=") and os_("po=")[3] != "0"): a("s_setprio 0")
    okv = ("s%d" % sOK) if "nocv" in opt else "1"
    a(f"s_cmp_eq_u32 s{sOK}, {okv}\ns_cbranch_scc1 L_kvok")
    a(spin("kv", ap(kf_ld, 32, "apk"), ne(vKL)))
    sv = list(a.vq); a(r_dma(24)); a(I(wvm="*")); a.vq = sv
    a("L_kvok:")
    CA, AF, BF = 32, 64, 128
    vRU, vRH, vPW, vPR, vZW, vZR, vYA, vYR, vOO = 2, 3, 4, 10, 11, 12, 13, 14, 30
    vXF, XN, vRC = 20, 22, 6
    vXF = 1
    sCH, sWQ, sCVB, sRHO = SV, SV + 1, SV + 2, SV + 3
    sOQ = SSH
    a(f"""
    s_lshr_b32 s{sCH}, s{sW}, 2
    s_and_b32 s{sWQ}, s{sW}, 3
    s_mul_i32 s{sCVB}, s{sCH}, {CVCH}
    s_add_u32 s{sCVB}, s{sCVB}, {L_CV}
    s_lshl_b32 s{sT0}, s{sWQ}, 7
    s_add_u32 s{sT0}, s{sT0}, s{sCVB}
    s_add_u32 s{sT1}, s{sT0}, 480
    v_and_b32 v15, 15, v0
    v_and_b32 v16, 48, v0
    v_lshlrev_b32 v31, 5, v15
    v_sub_u32 v31, v16, v31
    v_add_u32 v{vRU}, s{sT1}, v31
    s_add_u32 s{sT1}, s{sT0}, {4608 - 28 + 4160 + 3072}
    v_and_b32 v31, 1, v0
    v_mul_u32_u24 v31, 4160, v31
    v_sub_u32 v31, v16, v31
    v_bfe_u32 v{vRH}, v0, 1, 3
    v_lshl_add_u32 v31, v{vRH}, 2, v31
    v_add_u32 v{vRH}, s{sT1}, v31
    """)
    KHF = oi("hf", 5)
    hf_st = [f"s_cmp_eq_u32 s{sISG}, 0", "s_cbranch_scc1 L_nohf", I(wvm="hs"),
             line(sHF), "L_nohf:"]
    HP = oi("hp", 0)
    if HP:
        pre = [f"s_xor_b32 s{sT0}, s{sXCD}, s{sWR}", f"s_bitcmp1_b32 s{sT0}, 0", "s_cbranch_scc1 L_nohf"]
        if HP == 1:
            pre += ["v_lshrrev_b32 v13, 4, v0", "v_mul_u32_u24 v13, 57344, v13", "v_lshl_add_u32 v13, v15, 6, v13",
                    f"buffer_load_dword v14, v13, {sr(SWS,4)}, s{sXB} offen sc1"]
        if HP == 2:
            pre += ["v_lshrrev_b32 v13, 3, v0", "v_mul_u32_u24 v13, 57344, v13", "v_and_b32 v14, 7, v0", "v_lshl_add_u32 v13, v14, 7, v13",
                    "s_mov_b32 exec_hi, 0", f"buffer_load_dword v14, v13, {sr(SWS,4)}, s{sXB} offen sc1", "s_mov_b32 exec_hi, -1"]
        hf_st = hf_st[:-1] + pre + hf_st[-1:]
    if KHF < 0: a(hf_st); stamp("hflag")
    AM = oi("am", 0)
    a(f"s_cmp_eq_u32 s{sISG}, 0")
    if AM: a(f"s_cselect_b32 s{sOK}, 0, 0xff")
    a("s_cbranch_scc1 L_nowr")
    a(I(wvm="R"))
    a("L_nowr:")
    a(I(wlg="*"))
    if "noc1" not in opt: a("s_barrier")
    stamp("c1")
    a(f"s_or_b32 s{sT0}, s2, s{sW}\ns_cbranch_scc1 L_noep")
    a(one(f"buffer_store_dword v{vTAG}, off, {sr(SWS,4)}, 0 offset:{WS_EPOCH} sc1"))
    a("L_noep:")
    order = [(0, p) for p in range(7, -1, -1)] + [(1, p) for p in range(8)]
    def uread(rr, d): return I(f"ds_read_b128 {vr(AF+32*rr+4*d,4)}, v{vRU} offset:{512*(7-d)+64*rr}", lg=f"a{rr}{d}")
    def hread(k):
        rr, p = order[k]; o = 128 * (p & 1) + 16 * rr; b = BF + 4 * (k % 4)
        g = []
        if rr == 0 and p in (5, 3, 1): g += [f"v_subrev_u32 v{vRH}, 1024, v{vRH}"]
        if rr == 1 and p in (2, 4, 6): g += [f"v_add_u32 v{vRH}, 1024, v{vRH}"]
        return g + [I(f"ds_read2_b32 {vr(b,2)}, v{vRH} offset0:{o} offset1:{o+1}", lg=f"b{k}"),
                    I(f"ds_read2_b32 {vr(b+2,2)}, v{vRH} offset0:{o+2} offset1:{o+3}", lg=f"b{k}")]
    PC, PG = os_("pc="), os_("pg=")
    if PC: a(f"s_setprio {PC[0]}")
    for k in range(3): a(hread(k)); a(uread(0, k))
    for d in range(3, 8): a(uread(0, d))
    XV = 6
    fin_addr = L(f"""
        s_and_b32 s{sRHO}, s{sCT2}, 3
        s_lshl_b32 s{sT0}, s{sRT2}, 3
        s_add_u32 s{sT0}, s{sT0}, s{sW}
        s_lshl_b32 s{sOQ}, s{sT0}, 13
        s_lshl_b32 s{sT1}, s{sCT2}, 7
        s_add_u32 s{sOQ}, s{sOQ}, s{sT1}
        s_lshl_b32 s{sT0}, s{sT0}, 6
        s_add_u32 s{sOQ+1}, s{sT0}, {WS_RS}
        v_and_b32 v31, 3, v0
        v_lshrrev_b32 v1, 5, v0
        v_lshl_add_u32 v31, v1, 2, v31
        v_and_b32 v{vOO}, 28, v0
        v_lshlrev_b32 v{vOO}, 2, v{vOO}
        v_lshl_add_u32 v{vOO}, v31, 10, v{vOO}
        v_lshlrev_b32 v1, 3, v31
        """)
    fin_ld = [I(f"buffer_load_dwordx4 {vr(XV,4)}, v{vOO}, {sr(SX,4)}, s{sOQ} offen", vm="xt"),
              I(f"buffer_load_dword v{XN+7}, v1, {sr(SWS,4)}, s{sOQ+1} offen sc1", vm="xt")]
    if prof and "nofr" in opt: fin_ld = fin_ld[:1]
    if prof and "nofx" in opt: fin_ld = fin_ld[1:]
    if "frp" in opt: fin_ld[-1].text = fin_ld[-1].text.replace(" sc1", "")
    if "to" in opt: fin_ld = [I(f"buffer_load_dword v{XN+6}, off, {sr(SOUT,4)}, s{sOQ}", vm="xt")] + fin_ld
    vZS = 2
    def zsc(r):
        if not BI: return []
        return [f"v_mul_f32 v{vZS}, {fx(2.0 ** -ESH)}, v{r}", f"v_mul_f32 v{vZS}, v{vZS}, v{r}", f"v_mul_f32 v{r}, v{vZS}, v{r}",
                f"v_mul_f32 v{vZS}, {fx(-1.4426950408889634)}, v{vZS}"]
    def unpack(d, x): return [f"v_and_b32 v{d+e}, 0xffff0000, v{x+e//2}" if e & 1 else f"v_lshlrev_b32 v{d+e}, 16, v{x+e//2}" for e in range(8)]
    xn_math = ([I(f"v_lshlrev_b32 v20, 16, v{XN+7}", wvm="xt"), f"v_and_b32 v21, 0xffff0000, v{XN+7}", "v_rcp_f32 v20, v20"] +
               unpack(XN, XV) + [f"v_add_f32 v{XN+e}, v{XN+e}, v21" for e in range(8)] + zsc(20) +
               [f"v_mul_f32 v{XN+e}, v{XN+e}, v20" for e in range(8)])
    p_addr = L(f"""
        v_bfe_u32 v20, v0, 1, 2
        v_bfe_u32 v21, v0, 3, 1
        v_xor_b32 v20, v20, v21
        v_lshlrev_b32 v20, 4, v20
        v_xor_b32 v20, v20, v16
        v_lshl_add_u32 v20, v15, 6, v20
        s_lshl_b32 s{sT0}, s{sW}, 13
        v_add_u32 v{vPW}, s{sT0}, v20
        v_bfe_u32 v20, v0, 2, 2
        v_bfe_u32 v21, v0, 4, 1
        v_xor_b32 v20, v20, v21
        v_lshlrev_b32 v20, 4, v20
        v_lshlrev_b32 v21, 5, v0
        v_xor_b32 v20, v20, v21
        s_lshl_b32 s{sT0}, s{sCH}, 15
        s_lshl_b32 s{sT1}, s{sWQ}, 11
        s_add_u32 s{sT0}, s{sT0}, s{sT1}
        v_add_u32 v{vPR}, s{sT0}, v20
        """)
    HB, ZA, NS = 64, 32, 16
    sH1, sH2, sHQ = sXB, sWB, sKEY
    def HR(n): return HB + 4 * (n % NS if n % NS < 8 else 23 - n % NS)
    sMK = sA
    def hload(n, mask=False):
        qd, ks = divmod(n, 7)
        g = []
        if ks == 0:
            g += [f"s_xor_b32 s{sT3}, s{sRHO}, {qd}", f"s_mul_i32 s{sT3}, s{sT3}, 57344", f"s_add_u32 s{sH1}, s{sHQ}, s{sT3}",
                  f"s_sub_u32 s{sH2}, s{sH1}, s{sRB}"]
        t = I(f"buffer_load_dwordx4 {vr(HR(n),4)}, v{vL16}, {sr(SWS,4)}, s{sH1 if ks < 4 else sH2} offen offset:{(ks&3)*1024} sc1", vm=f"h{n}")
        if "hx2" in opt: return g + [f"s_mov_b64 exec, {sr(sMK,2)}" if mask else "s_nop 0", "s_mov_b32 exec_hi, 0", t, "s_mov_b64 exec, -1"]
        if "hx1" in opt: t = I(t.text.replace("dwordx4 " + vr(HR(n),4), "dword " + vr(HR(n),1)).replace(f"v{vL16},", "v15,"), vm=f"h{n}")
        return g + ([f"s_mov_b64 exec, {sr(sMK,2)}", t, "s_mov_b64 exec, -1"] if mask and "nomask" not in opt else [t])
    def again(n1):
        sv = list(a.vq)
        for n in range(n1): a(hload(n))
        a.vq = sv
    h_addr = L(f"""
        s_mul_i32 s{sHQ}, s{sRT2}, {4*56*1024}
        s_mul_i32 s{sT1}, s{sW}, 7168
        s_add_u32 s{sHQ}, s{sHQ}, s{sT1}
        s_mul_i32 s{sT1}, s{sHI}, 3072
        s_add_u32 s{sHQ}, s{sHQ}, s{sT1}
        s_add_u32 s{sHQ}, s{sHQ}, {WS_H}
        s_mul_i32 s{sRB}, s{sHI}, 7168
        s_sub_u32 s{sRB}, s{sRB}, 4096
        s_lshl_b32 s{sE}, s{sRT2}, 3
        s_add_u32 s{sE}, s{sE}, s{sW}
        s_mul_i32 s{sE}, s{sE}, {7 << FS}
        s_add_u32 s{sE}, s{sE}, {WS_FH + 4}
        v_min_u32 v{vFA}, 6, v0
        v_lshlrev_b32 v{vFA}, {FS}, v{vFA}
        """)
    KH, KR_, KA, KB = oi("kh", 8), oi("kq", 3), oi("ka", 6), oi("kb", 11)
    KHY = oi("khy", -1)
    if KHY >= 0: KH = KB = 99
    assert KHY >= 0 or (8 <= KH <= 15 and KA < KH <= KB and KHF < KH)
    PM = [o[3:].replace("_", " ") for o in opt if o.startswith("pm=")]
    def poll(at, vm=None, am=False):
        if not at:
            t = wf_ld.replace("sc1", PM[0]) if PM else wf_ld
            return [I(t, vm=vm)]
        return [f"v_mov_b32 v{vFL}, 0"] + ([f"s_mov_b32 exec_lo, s{sOK}", "s_mov_b32 exec_hi, 0"] if am else ["s_mov_b64 exec, 0xff"]) + [
                I(f"buffer_atomic_or v{vFL}, v{vFA}, {sr(SWS,4)}, s{sE} offen sc0 sc1", vm=vm), "s_mov_b64 exec, -1"]
    def ne8(at): return [f"v_cmp_ne_u32 vcc, s{sTAG}, v{vFL}", "s_and_b32 vcc_lo, vcc_lo, 0xff"] if at else ne(vFL)
    AH, AY = "aph" in opt or "apa" in opt, "apy" in opt or "apa" in opt
    hf_ld = poll(AH)
    hn = 0
    NB = oi("nb", NS); YL = [int(x, 36) for x in os_("yl=", "0000").ljust(6, "0")]; NY = NB + sum(YL); GQ = oi("gq", 2)
    assert NY <= NS
    assert KHY < 0 or (NB == 0 and sum(YL[:KHY]) == 0)
    def yl(i):
        if KA == 17 + i: a(poll(AH, "hf"))
        if i == KHY: a([I(wvm="hf")] + ne8(AH) + [f"s_cselect_b64 {sr(sMK,2)}, 0, -1"])
        for n in range(NB + sum(YL[:i]), NB + sum(YL[:i + 1])): a(hload(n, True))
    def pwrite(j): return I(f"ds_write_b128 v{vPW}, {vr(CA+4*j,4)} offset:{1024*j}", lg="pw")
    sYS = sCB
    if "nocv" in opt:
        a(fin_addr); a(h_addr)
        if "wtf" in opt: a(WL[NPRE:]); a(fin_ld)
        a(hf_st)
        if "bar2" in opt: a("s_barrier")
        if "wtf" not in opt: a(WL[NPRE:]); a(fin_ld)
        stamp("k1")
        a(xn_math)
        if "blind" not in opt: a(spin("hf0", [f"s_sleep {oi('sl', 0)}", hf_ld], ne8(AH)))
        stamp("k11")
        a.vq = []
        for n in range(NS): a(hload(n))
        a(f"s_mov_b32 s{sMK}, -1")
        a(I(wlg="*"))
        stamp("c3")
    else:
        for k, (rr, p) in enumerate(order):
            seq = []
            for j in range(p, 8):
                c = "0" if (rr == 0 and j == p) else vr(CA + 4 * j, 4)
                seq.append(I(f"v_mfma_f32_16x16x32_bf16 {vr(CA+4*j,4)}, {vr(BF+4*(k%4),4)}, {vr(AF+32*rr+4*(j-p),4)}, {c}",
                             wlg=[f"a{rr}{j-p}", f"b{k}"]))
            fill = []
            if k == 1: fill += [fin_addr]
            WK = os_("wk=")
            if WK:
                assert sum(int(x) for x in WK) == 28 - NPRE
                w0 = NPRE + sum(int(x) for x in WK[:k]); fill += WL[w0:w0 + int((WK + "0" * 16)[k])]
            elif 1 <= k <= 6: fill += part(WL[NPRE:], k - 1, 6)
            if k == oi("kx", 3): fill += fin_ld
            if 4 <= k <= 7: fill += [uread(1, 2 * (k - 4)), uread(1, 2 * (k - 4) + 1)]
            if k in (6, 7): fill += part(p_addr, k - 6, 2)
            if 8 <= k <= 11 and "xg" not in opt: fill += part(xn_math, k - 8, 4)
            if k >= 9: fill = fill[:2] + [pwrite(p - 1)] + fill[2:]
            if k == 2: fill += [h_addr]
            if k == KHF and "hb" not in opt: fill += [hf_st]
            if k == KA and "hb" not in opt: fill += [poll(AH, "hf", AM & 1)]
            if k == KH and "hb" in opt: a(f"s_mov_b64 {sr(sMK,2)}, -1")
            elif k == KH: a([I(wvm="hf")] + ne8(AH) + [f"s_cselect_b64 {sr(sMK,2)}, 0, -1"])
            if k == KB: fill += [[f"s_cmp_lg_u32 s{sMK}, 0", "s_cbranch_scc1 L_nof2", poll(AH, None, AM & 2), "L_nof2:"]]
            if k >= KH:
                e = min(hn + KR_, k, NB); hl = [hload(n, True) for n in range(hn, e)]; hn = max(hn, e)
                fill = mix(fill, hl) if len(fill) >= len(hl) else mix(hl, fill)
            a(mix(seq, fill))
            if k + 3 < 16: a(hread(k + 3))
            if PC and PC[k + 1] != PC[k]: a(f"s_setprio {PC[k + 1]}")
            stamp(f"k{k}")
        a(f"""
        s_lshl_b32 s{sT1}, s{sWQ}, 10
        s_sub_u32 s{sT1}, s{sCVB}, s{sT1}
        s_add_u32 s{sT1}, s{sT1}, 4080
        v_sub_u32 v20, s{sT1}, v{vL16}
        v_xor_b32 v21, 16, v{vPR}
        """)
        a(pwrite(7))
        for n in range(hn, NB): a(hload(n, True))
        if KHY < 0:
            a([f"s_cmp_lg_u32 s{sMK}, 0", "s_cbranch_scc1 L_hlate", "s_waitcnt vmcnt(0)"] + ne8(AH) +
              [f"s_cselect_b64 {sr(sMK,2)}, 0, -1", "s_cbranch_scc1 L_hlate"])
            again(NB)
            a("L_hlate:")
        sYS = sCB
        a(I(wlg="*"))
        a("s_barrier")
        stamp("c3")
        if KA == 16: a(poll(AH, "hf"))
        if "py" in opt: a("s_setprio 3")
        PR, vU, YA = 32, 128, 132
        a(I(f"ds_read_b128 {vr(vU,4)}, v20", lg="su"))
        for k in range(4):
            a(I(f"ds_read_b128 {vr(PR+8*k,4)}, v{vPR} offset:{8192*k}", lg=f"p{k}"))
            a(I(f"ds_read_b128 {vr(PR+8*k+4,4)}, v21 offset:{8192*k}", lg=f"p{k}"))
        a(f"""
        s_lshl_b32 s{sT1}, s{sCH}, 4
        s_lshr_b32 s{sD}, s{sD}, s{sT1}
        s_lshl_b32 s{sD}, s{sD}, 16
        s_lshl_b32 s{sT1}, s{sCP}, 13
        s_lshl_b32 s{sT3}, s{sW}, 10
        s_add_u32 s{sT1}, s{sT1}, s{sT3}
        s_add_u32 s{sT1}, s{sT1}, {WS_YT}
        s_lshl_b32 s{sYS}, s{sWQ}, 9
        s_lshl_b32 s{sT3}, s{sCP}, 1
        s_add_u32 s{sYS}, s{sYS}, s{sT3}
        s_add_u32 s{sYS}, s{sYS}, s{sCH}
        s_lshl_b32 s{sT3}, s{sYS}, 7
        s_and_b32 s{sT3}, s{sT3}, 0x380
        v_xor_b32 v31, s{sT3}, v{vL16}
        s_lshl_b32 s{sYS}, s{sYS}, {FS}
        s_add_u32 s{sYS}, s{sYS}, {WS_FY}
        """)
        yl(0)
        stamp("y0")
        a(I(wlg="su"))
        stamp("y1")
        for e in range(4):
            a(f"v_and_b32 v{YA+6-2*e}, 0xffff0000, v{vU+e}\nv_lshlrev_b32 v{YA+7-2*e}, 16, v{vU+e}")
        yl(1)
        a(I(wlg="p0"))
        for e in range(8): a(f"v_fma_f32 v{YA+e}, v{YA+e}, s{sD}, v{PR+e}")
        yl(2)
        a(I(wlg="p2"))
        def add8(d, x):
            if "ynp" in opt:
                for e in range(8): a(f"v_add_f32 v{d+e}, v{d+e}, v{x+e}")
            else:
                for e in range(0, 8, 2): a(f"v_pk_add_f32 {vr(d+e,2)}, {vr(d+e,2)}, {vr(x+e,2)}")
        add8(PR + 8, PR + 16)
        yl(3)
        a(I(wlg="p3"))
        stamp("y2")
        a(f"s_lshl_b32 s{sT3}, s{sW}, 2\ns_add_u32 s{sT3}, s{sT3}, {L_CNT}\nv_mov_b32 v20, s{sT3}")
        a(I(f"ds_write_b32 v20, v{vTAG}", lg="cw"))
        add8(YA, PR + 24)
        add8(YA, PR + 8)
        for e in range(4): a(f"v_cvt_pk_bf16_f32 v{vU+e}, v{YA+2*e}, v{YA+2*e+1}")
        stamp("y3")
        yl(4)
        a(I(f"buffer_store_dwordx4 {vr(vU,4)}, v31, {sr(SWS,4)}, s{sT1} offen sc1", vm="ys"))
        yl(5)
    stamp("ys")
    if PG or "py" in opt: a(f"s_setprio {PG[0] if PG else 0}")
    a(f"s_cmp_lg_u32 s{sMK}, 0\ns_cbranch_scc1 L_hgo")
    a(spin("hf", [hf_ld], ne8(AH)))
    stamp("hsp")
    again(NY)
    hn = NY
    a(line(sYS))
    a("L_hgo:")
    stamp("hok")
    sYA, sYF, sSEL = sMO, sE, SK
    YO = "yo" in opt
    sYW = sMO + 1 if YO else sW
    g2_addr = L(f"""
    v_lshrrev_b32 v20, 4, v0
    s_lshl_b32 s{sT1}, s{sRBL}, 2
    v_xor_b32 v21, v20, v15
    v_xor_b32 v21, s{sT1}, v21
    v_lshlrev_b32 v21, 4, v21
    v_lshl_add_u32 v21, v15, 8, v21
    s_lshl_b32 s{sT1}, s{sW}, 12
    v_add_u32 v{vZW}, s{sT1}, v21
    s_lshl_b32 s{sT1}, s{sW}, 1
    v_lshrrev_b32 v1, 5, v0
    v_add_u32 v21, s{sT1}, v1
    v_and_b32 v20, 3, v0
    v_xor_b32 v31, s{sRHO}, v20
    v_lshrrev_b32 v{vZR}, 1, v0
    v_and_b32 v{vZR}, 14, v{vZR}
    v_xor_b32 v{vZR}, v{vZR}, v21
    v_xor_b32 v{vZR}, v{vZR}, v31
    v_lshlrev_b32 v{vZR}, 4, v{vZR}
    v_lshl_add_u32 v{vZR}, v21, 8, v{vZR}
    s_mov_b32 s{sT1}, {sum((L_Z[q] >> 15) << (8 * q) for q in range(4))}
    v_lshlrev_b32 v31, 3, v31
    v_bfe_u32 v31, s{sT1}, v31, 8
    v_lshl_add_u32 v{vZR}, v31, 15, v{vZR}
    v_bfe_u32 v31, v0, 4, 1
    v_lshl_add_u32 v20, v31, 2, v20
    v_xor_b32 v21, s{sW}, v20
    v_lshlrev_b32 v21, 4, v21
    v_lshl_add_u32 v21, v1, 3, v21
    v_lshl_add_u32 v21, v20, 10, v21
    v_bfe_u32 v31, v0, 2, 2
    v_lshl_add_u32 v21, v31, 7, v21
    v_add_u32 v{vYR}, {L_Y}, v21
    v_and_b32 v21, 7, v0
    {f"s_lshl_b32 s{sYW}, s{sW}, 1" if YO else ""}
    v_xor_b32 v20, s{sYW}, v21
    v_lshlrev_b32 v20, 4, v20
    v_lshrrev_b32 v31, 3, v0
    v_lshl_add_u32 v20, v31, 12, v20
    s_and_b32 s{sT1}, s{sRT2}, 7
    v_xor_b32 v31, s{sT1}, v31
    v_lshl_add_u32 v{vYA}, v31, 7, v20
    v_lshlrev_b32 v{vFA}, {FS}, v{15 if YO else 21}
    v_lshlrev_b32 v1, 2, v21
    v_add_u32 v1, {L_CNT}, v1
    s_lshl_b32 s{sT1}, s{sCT2}, 3
    s_add_u32 s{sT1}, s{sT1}, s{sYW}
    s_lshl_b32 s{sYA}, s{sT1}, 15
    s_and_b32 s{sT0}, s{sRT2}, 24
    s_lshl_b32 s{sT0}, s{sT0}, 7
    s_add_u32 s{sYA}, s{sYA}, s{sT0}
    s_add_u32 s{sYA}, s{sYA}, {WS_YT}
    s_lshl_b32 s{sYF}, s{sT1}, {FS + 3}
    s_lshr_b32 s{sT0}, s{sRT2}, 3
    s_lshl_b32 s{sT0}, s{sT0}, {FS + 9}
    s_add_u32 s{sYF}, s{sYF}, s{sT0}
    s_add_u32 s{sYF}, s{sYF}, {WS_FY + 4}
    s_mov_b32 s{sSEL}, {fx(-1.4426950408889634)}
    s_mov_b32 s{sSEL+1}, s{sSEL}
    s_mov_b32 s{sSEL+2}, 1.0
    s_mov_b32 s{sSEL+3}, 1.0
    s_lshl_b32 s{sT0}, s{sYW}, 10
    s_add_u32 m0, s{sT0}, {L_Y}
    """)
    ZT, XF, YR, YF = 64, 128, 136, 32
    def zwrite(qd):
        hi, lo = L_Z[qd] & ~0xffff, L_Z[qd] & 0xffff
        return [[f"v_xor_b32 v20, {hi + 64*mt + 16*qd}, v{vZW}",
                 I(f"ds_write_b128 v20, {vr(ZA+16*(qd&1)+4*mt,4)} offset:{lo}", lg="zw")] for mt in range(4)]
    xn_g = ([f"v_lshlrev_b32 v16, 16, v{XN+7}", f"v_and_b32 v4, 0xffff0000, v{XN+7}", "v_rcp_f32 v16, v16"] +
            [f"v_add_f32 v{XN+e}, v{XF+e}, v4" for e in range(8)] + zsc(16) + [f"v_mul_f32 v{XN+e}, v{XN+e}, v16" for e in range(8)])
    NYF, NYP, NYC = oi("nyf", 8), oi("nyp", 16), oi("nyc", 21)
    NG, ZS = oi("ng", 6), oi("zs", 1)
    y_ld = f"buffer_load_dwordx4 v{vYA}, {sr(SWS,4)}, s{sYA} offen sc1 lds"
    if YO:
        y_ld = [y_ld, f"v_xor_b32 v{vFL}, 16, v{vYA}", "s_add_u32 m0, m0, 1024", f"s_add_u32 s{sYA}, s{sYA}, 32768",
                y_ld.replace(f"v{vYA},", f"v{vFL},")]
    def wide(x): return [[y.replace("0xff", "0xffff") if isinstance(y, str) else y for y in x]] if YO else x
    cn_ld = "ds_read_b32 v31, v1"
    cn_ck = ["v_cmp_eq_u32 vcc, 0, v31", "s_cmp_lg_u64 vcc, 0", "s_cbranch_scc0 L_cn_ok"]
    for n in range(28):
        qd, ks = divmod(n, 7)
        a(I(wvm=[f"h{n}", f"wd{ks}"]))
        if n == NYF: a(line(sYS, wvm="ys", vm="yf"))
        if n == 22:
            a([I(wlg="cn")] + cn_ck + [f"s_mov_b32 s{sCNT}, {SPIN}", "L_cn_loop:", cn_ld, "s_waitcnt lgkmcnt(0)"] + cn_ck +
              [f"s_sub_u32 s{sCNT}, s{sCNT}, 1", "s_cbranch_scc0 L_cn_loop", "L_cn_ok:"])
        if ks == 0 and qd >= 2: a(I(wlg="zw"))
        seq = []
        for mt in range(4):
            d = ZA + 16 * (qd & 1) + 4 * mt
            c = "0" if ks == 0 else vr(d, 4)
            seq.append(f"v_mfma_f32_16x16x32_bf16 {vr(d,4)}, {vr(WDF(4*ks+mt),4)}, {vr(HR(n),4)}, {c}")
        fill = []
        if qd >= 1 and 1 <= ks <= ZS: fill = part(zwrite(qd - 1), ks - 1, ZS)
        if n < NG: fill = part(g2_addr, n, NG)
        if n == 20: fill += [I(cn_ld, lg="cn")]
        if n in (12, 13): fill += part(unpack(XF, XV), n - 12, 2)
        if "xg" in opt and n in (17, 18, 19, 24, 25, 26): fill += part(xn_g, (17, 18, 19, 24, 25, 26).index(n), 6)
        if n == 27: fill += [f"v_xor_b32 v21, 16, v{vZR}"]
        if n == NYC and "yb" in opt: fill = [[f"s_mov_b32 s{sMK}, -1", I(y_ld, vm="yl")]] + fill
        elif n == NYC and YO:
            fill = [[f"s_cmp_ge_u32 s{sW}, 4", f"s_cselect_b32 s{sMK}, -1, 0", "s_cbranch_scc1 L_ylate", "s_waitcnt vmcnt(0)"] + wide(ne8(AY)) +
                    [f"s_cselect_b32 s{sMK}, 0, -1", "s_cbranch_scc1 L_ylate", y_ld, "L_ylate:"]] + fill
        elif n == NYC:
            fill = [[I(wvm="yp")] + ne8(AY) + [f"s_cselect_b32 s{sMK}, 0, -1", "s_cbranch_scc1 L_ylate", y_ld, "L_ylate:"]] + fill
        a(mix(seq, fill))
        GS = os_("gs=")
        e = min(28, n + 1 + NS, hn + (int(GS[n % len(GS)]) if GS else GQ))
        for m in range(hn, e): a(hload(m))
        hn = e
        assert hn > min(n + 1, 27) or n == 27
        if n == NYP and YO: a([I(wvm="*"), f"s_cmp_ge_u32 s{sW}, 4", "s_cbranch_scc1 L_nyp", wide(poll(AY)), "L_nyp:"])
        elif n == NYP and "yb" not in opt: a(poll(AY, "yp"))
        if PG and PG[n + 1] != PG[n]: a(f"s_setprio {PG[n + 1]}")
        stamp(f"n{n}")
    a(zwrite(3))
    stamp("g2")
    a(f"s_cmp_lg_u32 s{sMK}, 0\ns_cbranch_scc1 L_ygo")
    a(spin("yf", wide(poll(AY)), wide(ne8(AY))) + [y_ld, "L_ygo:"])
    stamp("yok")
    a(I(wvm="*", wlg="*"))
    a("s_barrier")
    stamp("bf")
    P2 = lambda x: vr(x, 2)
    a(I(f"ds_read_b64_tr_b16 {P2(YR)}, v{vYR}", lg="yr"))
    a(I(f"ds_read_b64_tr_b16 {P2(YR+2)}, v{vYR} offset:512", lg="yr"))
    def zread(k): return [I(f"ds_read_b128 {vr(ZT+8*k+4*h,4)}, v{21 if h else vZR} offset:{4096*k}", lg=f"z{k}") for h in range(2)]
    for k in range(6): a(zread(k))
    a(I(wlg="yr")); a(unpack(YF, YR))
    a(zread(6)); a(zread(7))
    for e in range(0, 8, 2): a(f"v_pk_mul_f32 {P2(XN+e)}, {P2(XN+e)}, {P2(YF+e)}")
    stamp("f0")
    for k in range(1, 8):
        a(I(wlg=f"z{k}"))
        for e in range(0, 8, 2): a(f"v_pk_add_f32 {P2(ZT+e)}, {P2(ZT+e)}, {P2(ZT+8*k+e)}")
    stamp("f1")
    for e in range(0, 8, 2): a(f"v_pk_mul_f32 {P2(YF+e)}, {P2(ZT+e)}, " + (f"{P2(vZS)} op_sel_hi:[1,0]" if BI else sr(sSEL,2)))
    a(mix([f"v_exp_f32 v{YF+e}, v{YF+e}" for e in range(8)],
          [f"v_pk_mul_f32 {P2(XN+e)}, {P2(XN+e)}, {P2(ZT+e)}" for e in range(0, 8, 2)]))
    for e in range(0, 8, 2): a(f"v_pk_add_f32 {P2(YF+e)}, {P2(YF+e)}, {sr(sSEL+2,2)}")
    for e in range(8): a(f"v_rcp_f32 v{YF+e}, v{YF+e}")
    for e in range(0, 8, 2): a(f"v_pk_fma_f32 {P2(XF+e)}, {P2(XN+e)}, {P2(YF+e)}, {P2(XF+e)}")
    for e in range(4): a(f"v_cvt_pk_bf16_f32 v{YR+e}, v{XF+2*e}, v{XF+2*e+1}")
    stamp("f2")
    a(f"buffer_store_dwordx4 {vr(YR,4)}, v{vOO}, {sr(SOUT,4)}, s{sOQ} offen sc0 sc1")
    if prof:
        stamp("st")
        if "endw" in opt: a("s_waitcnt vmcnt(0)")
        a("L_prof:")
        stamp("end")
        a(f"""
        s_waitcnt lgkmcnt(0)
        s_lshl_b32 s{sT0}, s2, 3
        s_add_u32 s{sT0}, s{sT0}, s{sW}
        s_lshl_b32 s{sT0}, s{sT0}, 6
        s_add_u32 s{sT0}, s{sT0}, {WS_PROF}
        """)
        if "dbg" in opt:
            n = len(stamps)
            a(f"s_load_dwordx2 {sr(SX,2)}, s[0:1], 88\ns_mov_b32 s{SX+2}, 256\ns_waitcnt lgkmcnt(0)\ns_mov_b64 exec, 1")
            a(f"s_not_b32 s{sT1}, s{PROFS[0]}\nv_mov_b32 v1, s{sT1}\nbuffer_atomic_umax v1, off, {sr(SX,4)}, 0")
            a(f"v_mov_b32 v2, s{PROFS[n-1]}\nbuffer_atomic_umax v2, off, {sr(SX,4)}, 0 offset:60")
            a(f"s_cmp_lt_u32 s2, 32\ns_cbranch_scc1 {END}")
            for i in range(n):
                if "avg" in opt:
                    a(f"s_sub_u32 s{sT1}, s{PROFS[i]}, s{PROFS[0]}\nv_mov_b32 v{3+i}, s{sT1}\nbuffer_atomic_add v{3+i}, off, {sr(SX,4)}, 0 offset:{4+4*i}")
                else:
                    a(f"v_mov_b32 v{3+i}, s{PROFS[i]}\nbuffer_atomic_umax v{3+i}, off, {sr(SX,4)}, 0 offset:{4+4*i}")
            a(f"s_branch {END}")
        for i in range(len(stamps)):
            a(f"v_mov_b32 v1, s{PROFS[i]}")
            a(f"buffer_store_dword v1, off, {sr(SWS,4)}, s{sT0} offset:{4*i}")
    a(f"{END}:\ns_endpgm")
    def post(b):
        import al
        if oi("al", -1) >= 0:
            b, st = al.align(b, oi("al", 0)); print(st)
        if "sh4" in opt: b = ["    s_nop 0"] + b
        if IW:
            sz = al.sizes(b); pos = []; off = 0; on = False; safe = True; nxt = 0
            for i, l in enumerate(b):
                t = l.strip()
                if t in ("L_iwa:", JOIN + ":"): on = True; nxt = off
                if t in ("L_iwb:", END + ":", "L_prof:"): on = False
                if on and safe and off >= nxt and sz[i] and not b[i - 1].strip().startswith("s_nop"):
                    pos.append(i); off += 4; nxt = (off // IW + 1) * IW
                if re.match(r"s_\w+ exec", t): safe = t.endswith(", -1")
                off += sz[i]
            n = len(pos); ins = {}
            for c in range(IWN):
                seg = pos[n * c // IWN:n * (c + 1) // IWN]
                for q, i in enumerate(seg):
                    ins[i] = [f"L_iw{c}_{q}:", "    s_cbranch_execz " + (f"L_iw{c}_{q+1}" if q + 1 < len(seg) else "L_iwret")]
            b = [x for i, l in enumerate(b) for x in ins.get(i, []) + [l]]
            print("pads", n, "bytes", off)
        print("misplaced", al.stat(b))
        if "L_wu:" in b:
            k = b.index("L_wu:")
            b = b[:k] + ["; the matrix pipe runs on scratch operands while the first tiles are in flight, so the supply",
                         "; current rises in two steps and the clock sags less during the first GEMM"] + b[k:]
        return b
    txt = a.text(256, 512, 163840, post=post)
    return txt, stamps, a.nops

if __name__ == "__main__":
    txt, st, nops = gen(prof="prof" in sys.argv, opt=sys.argv[2:])
    open(sys.argv[1], "w").write(txt)
    print("lines", txt.count("\n"), "nops", nops, st)
    if st: open(sys.argv[1] + ".stamps", "w").write(" ".join(st))
```

```python
import sys, struct, re
from em import *

WS_EPOCH, WS_FKV, WS_RS, WS_CS, WS_FH, WS_FY = 0, 4096, 32768, 65536, 262144, 524288
WS_KV, WS_WT, WS_YT, WS_H, WS_PROF = 1 << 20, 3 << 20, 5 << 20, 8 << 20, 16 << 20
SX, SWG, SWU, SWD, SWS, SOUT, SH, SK, SV, SSH = 8, 12, 16, 20, 24, 28, 32, 36, 40, 44
sW, sXB, sWB, sT0, sT1 = 3, 4, 5, 6, 7
(sRT2, sCT2, sKEY, sWR, sWC, sTAG, sM0X, sOK, sISG, sCNT, sT2, sT3, sCSM, sCP, sRBL, sXCD, sCB, sD,
 sMO, _m1, _m2, _m3, sHI, sRB) = range(48, 72)
sA, sB, sC, sE = 98, 99, 100, 101
PROFS = list(range(72, 98, 2))
STAGE = 49152
L_WP = 147456
L_CV, CVCH = 98304, 12864
L_Z = (65536, 131072, 0, 32768)
L_Y, L_CNT = L_CV + 4608, L_CV + 4096
ACC, FR = 32, 96
def WDF(i): return 144 + 4 * i
vX0, vX1, vW0, vW1, vL16 = 1, 2, 3, 4, 5
vXB, vWB, vTAG = 6, 14, 17
SPIN = 0x4000
ESH = 24
KC = 2 * 0.7978845608028654 * 1.4426950408889634
def fx(f): return "0x%08x" % struct.unpack("<I", struct.pack("<f", f))[0]
def L(s): return [x.strip() for x in s.strip().split("\n") if x.strip()]

def gen(prof=False, opt=()):
    a = Em()
    def oi(k, d): return int(([o[len(k):] for o in opt if re.fullmatch(k + r"-?\d+", o)] + [d])[0])
    stamps = []
    def oi(k, d): return int(([o[len(k):] for o in opt if re.fullmatch(k + r"-?\d+", o)] + [d])[0])
    def stamp(name, slot=None):
        sel = [o[3:].split(",") for o in opt if o.startswith("st=")]
        dflt = "start,B0,B4,B8,join,c1,c3,hok,g2,bf,end".split(",")
        if not prof or (slot is None and name not in (sel[0] if sel else dflt)): return
        own = slot is None
        if ("both" in opt or "noas" in opt) and not own: return
        if slot is None:
            if name not in stamps: stamps.append(name)
            slot = stamps.index(name)
        a(f"{'s_memtime' if 'cyc' in opt else 's_memrealtime'} {sr(PROFS[slot], 2)}")
        if "both" in opt and own:
            stamps.append(name + "c"); a(f"s_memtime {sr(PROFS[slot + 1], 2)}")
    def spin(name, load, check):
        if "nochk" in opt: return [f"L_{name}_ok:"]
        cn = [f"s_add_u32 s{PROFS[stamps.index('n_' + name)]}, s{PROFS[stamps.index('n_' + name)]}, 1"] if "n_" + name in stamps else []
        return ([f"s_mov_b32 s{sCNT}, {SPIN}", f"L_{name}_loop:"] + cn + load + ["s_waitcnt vmcnt(0)"] + check +
                [f"s_cbranch_scc0 L_{name}_ok", f"s_sub_u32 s{sCNT}, s{sCNT}, 1", f"s_cbranch_scc0 L_{name}_loop",
                 f"L_{name}_ok:"])
    def one(txt, vm=None, wvm=None):
        if "all" in opt: return [I(txt, vm=vm, wvm=wvm)]
        return [I("s_mov_b64 exec, 1", wvm=wvm), I(txt, vm=vm), "s_mov_b64 exec, -1"]
    FS = oi("fs", 7)
    def line(so, vm=None, wvm=None):
        if "fp" in opt: return one(f"buffer_store_dword v{vTAG}, off, {sr(SWS,4)}, s{so} offset:4 sc1", vm=vm, wvm=wvm)
        return [I(f"s_mov_b64 exec, {(1 << (1 << (FS - 4))) - 1}", wvm=wvm),
                I(f"buffer_store_dwordx4 {vr(vTAG-1,4)}, v{vL16}, {sr(SWS,4)}, s{so} offen sc1", vm=vm), "s_mov_b64 exec, -1"]
    def ne(v): return [f"v_cmp_ne_u32 vcc, s{sTAG}, v{v}", "s_cmp_lg_u64 vcc, 0"]
    def ap(txt, nl, key, vm=None):
        if key not in opt and "apa" not in opt: return [I(txt, vm=vm)]
        d = txt.split()[1].rstrip(",")
        t = I(txt.replace("buffer_load_dword", "buffer_atomic_or").replace("sc1", "sc0 sc1"), vm=vm)
        if nl == 64: return [f"v_mov_b32 {d}, 0", t]
        m = [f"s_mov_b32 exec_hi, 0"] if nl == 32 else [f"s_mov_b64 exec, {(1 << nl) - 1}"]
        return [f"v_mov_b32 {d}, s{sTAG}"] + m + [f"v_mov_b32 {d}, 0", t, "s_mov_b64 exec, -1"]
    END, AUX, JOIN = "L_end", "L_aux", "L_join"
    vHE, vHP, vHO_ = (228, 232, 234) if "hr" in opt else (128, 132, 134)
    KM = oi("km", 3)
    a(f"""
    s_cmp_ge_u32 s2, 256
    s_cbranch_scc1 {END}
    {f"s_add_u32 s2, s2, {oi('rot', 0)}" if oi('rot', 0) else ""}
    {"s_and_b32 s2, s2, 255" if oi('rot', 0) else ""}
    s_load_dwordx16 s[72:87], s[0:1], 0
    s_load_dwordx8 s[88:95], s[0:1], 64
    s_load_dwordx2 s[96:97], s[0:1], 96
    v_lshrrev_b32 v1, 6, v0
    v_and_b32 v0, 63, v0
    v_readfirstlane_b32 s{sW}, v1
    s_and_b32 s{sXCD}, s2, 7
    s_lshr_b32 s{sCP}, s2, 3
    s_and_b32 s{sE}, s{sXCD}, 1
    s_lshr_b32 s{sA}, s{sXCD}, 1
    s_and_b32 s{sRBL}, s{sCP}, 3
    s_lshr_b32 s{sISG}, s{sCP}, 2
    s_lshl_b32 s{sRB}, s{sA}, 2
    s_add_u32 s{sRB}, s{sRB}, s{sRBL}
    s_lshl_b32 s{sRT2}, s{sRB}, 1
    s_add_u32 s{sRT2}, s{sRT2}, s{sE}
    s_add_u32 s{sCT2}, s{sISG}, 7
    s_and_b32 s{sCT2}, s{sCT2}, 7
    s_mul_i32 s{sCB}, s{sE}, 7
    s_add_u32 s{sCB}, s{sCB}, s{sCT2}
    {f"s_xor_b32 s{sCT2}, s{sCT2}, 4" if "ct3" in opt else ""}
    s_xor_b32 s{sKEY}, s{sRBL}, s{sISG}
    s_and_b32 s{sKEY}, s{sKEY}, {KM}
    s_lshl_b32 s{sB}, s{sA}, {2 if KM == 3 else 1}
    s_and_b32 s{sB}, s{sB}, {4 if KM == 3 else 6}
    s_or_b32 s{sKEY}, s{sKEY}, s{sB}
    s_lshl_b32 s{sB}, s{sXCD}, 5
    s_add_u32 s{sCP}, s{sCP}, s{sB}
    s_and_b32 s{sWR}, s{sW}, 1
    s_lshr_b32 s{sWC}, s{sW}, 1
    s_lshr_b32 s{sB}, s{sW}, 2
    s_and_b32 s{sC}, s{sW}, 3
    s_lshl_b32 s{sXB}, s{sRB}, 17
    s_lshl_b32 s{sT0}, s{sB}, 16
    s_add_u32 s{sXB}, s{sXB}, s{sT0}
    s_lshl_b32 s{sT0}, s{sC}, 10
    s_add_u32 s{sXB}, s{sXB}, s{sT0}
    s_mul_i32 s{sWB}, s{sW}, 28672
    s_lshl_b32 s{sT0}, s{sCB}, 8
    s_add_u32 s{sWB}, s{sWB}, s{sT0}
    s_lshl_b32 s{sM0X}, s{sW}, 11
    s_and_b32 s{sT0}, s{sKEY}, 1
    s_and_b32 s{sT1}, s{sA}, 2
    s_or_b32 s{sT0}, s{sT0}, s{sT1}
    {f"s_mov_b32 s{sT0}, s{sRBL}" if KM != 3 else ""}
    s_add_u32 s{sCSM}, s{sWR}, 1
    s_cmp_eq_u32 s{sT0}, s{sWC}
    s_cselect_b32 s{sCSM}, s{sCSM}, 0
    s_lshr_b32 s{sHI}, s{sCT2}, 2
    s_mov_b32 s{sOK}, 0
    """)
    for s, n in ((SX, 1 << 21), (SWG, 1835008), (SWU, 1835008), (SWD, 1835008), (SWS, 1 << 25), (SOUT, 1 << 21),
                 (SH, 36864 if oi('hpt', 0) else 4096), (SK, 1 << 21), (SV, 1 << 21), (SSH, 4096)):
        a(f"s_mov_b32 s{s+2}, {n}")
        a(f"s_mov_b32 s{s+3}, 0x20000")
    a(f"""
    v_lshrrev_b32 v20, 3, v0
    v_lshrrev_b32 v21, 4, v0
    v_and_b32 v22, 7, v0
    v_xor_b32 v23, v22, v21
    v_lshlrev_b32 v23, 4, v23
    v_lshl_add_u32 v{vX0}, v20, 12, v23
    v_xor_b32 v{vX1}, 64, v{vX0}
    v_add_u32 v{vX1}, 31744, v{vX1}
    v_bfe_u32 v24, v0, 2, 2
    v_and_b32 v25, 3, v0
    v_xor_b32 v23, v24, v21
    v_lshlrev_b32 v23, 6, v23
    v_lshl_add_u32 v23, v25, 4, v23
    v_mul_u32_u24 v{vW0}, 3584, v21
    v_add_u32 v{vW0}, v{vW0}, v23
    v_add_u32 v{vW1}, 13312, v{vW0}
    v_lshlrev_b32 v{vL16}, 4, v0
    s_lshl_b32 s{sT2}, s{sCP}, 1
    s_add_u32 s{sT2}, s{sT2}, s{sB}
    s_lshl_b32 s{sT2}, s{sT2}, 12
    s_lshl_b32 s{sT3}, s{sCP}, 2
    """)
    UE = oi("ue", 0)
    w_init = ([f"v_mul_u32_u24 v{FR+16}, 0x9e3779, v0", f"v_and_b32 v{FR+16}, 0x807f807f, v{FR+16}", f"v_or_b32 v{FR+16}, 0x3f003f00, v{FR+16}"] +
              [f"v_xor_b32 v{FR+16+i}, {hex((0x9e3779b1 * (i + 3) >> 3) & 0x807f807f)}, v{FR+16+i-1}" for i in range(1, 8)])
    if UE:
        a([f"s_cmp_ge_u32 s{sW}, 4", "s_cbranch_scc1 L_uex"] + w_init + [f"s_mov_b32 s{sCNT}, {UE}", "L_ue:"] +
          [f"v_mfma_f32_32x32x16_bf16 {vr(ACC+16*i,16)}, {vr(FR+16+4*(i&1),4)}, {vr(FR+16+4*(i>>1),4)}, 0" for i in range(1, 3)] +
          [f"s_sub_u32 s{sCNT}, s{sCNT}, 1", f"s_cmp_lg_u32 s{sCNT}, 0", "s_cbranch_scc1 L_ue", "L_uex:"])
    a(f"""
    s_waitcnt lgkmcnt(0)
    s_mov_b64 {sr(SX,2)}, s[72:73]
    s_mov_b64 {sr(SWG,2)}, s[86:87]
    s_mov_b64 {sr(SWU,2)}, s[88:89]
    s_mov_b64 {sr(SK,2)}, s[74:75]
    s_mov_b64 {sr(SV,2)}, s[76:77]
    {f"s_add_u32 s{SWS}, s96, {oi('wso', 0) << 20}" if oi('wso', 0) else f"s_mov_b64 {sr(SWS,2)}, s[96:97]"}
    {f"s_addc_u32 s{SWS+1}, s97, 0" if oi('wso', 0) else ""}
    s_mov_b64 {sr(SSH,2)}, s[78:79]
    s_mov_b64 {sr(SWD,2)}, s[90:91]
    s_mov_b64 {sr(SOUT,2)}, s[92:93]
    s_add_u32 s{SH}, s80, s{sT2}
    s_addc_u32 s{SH+1}, s81, 0
    s_load_dword s{sD}, s[82:83], s{sT3}
    """)
    H1 = "h1" in opt
    if H1: a(f"""
    s_lshl_b32 s{sT3}, s{sC}, 10
    s_max_u32 s{sT3}, s{sT3}, 4
    s_add_u32 s{sT2}, s{sT2}, s{sT3}
    s_sub_u32 s{sT2}, s{sT2}, 4
    s_load_dword s{sOK}, s[80:81], s{sT2}
    """)
    if prof: a("s_nop 4")
    stamp("start")
    SCN = ([o[3:].split(",") for o in opt if o.startswith("sc=")] + [[]])[0] if prof else []
    stamps += ["n_" + x for x in SCN]
    sc_init = [f"s_mov_b32 s{PROFS[1 + i]}, 0" for i in range(len(SCN))]

    NTX = " nt" if "ntx" in opt else ""
    NTW = " nt" if "ntw" in opt else ""
    NTK = " nt" if "ntk" in opt else ""
    NTH = " nt" if "nth" in opt else ""
    NTE = " nt" if "nte" in opt else ""
    NTF = " nt" if "ntf" in opt else ""
    for o in opt:
        if o.startswith("cp="): NTX = NTW = " " + o[3:].replace("_", " ")
        if o.startswith("ck="): NTK = " " + o[3:].replace("_", " ")
    NTX0, NTW0 = NTX, NTW
    def chunk_dma(c):
        st = (c % 3) * STAGE
        NTX = [" " + o.split("=")[0][2:].replace("_", " ") for o in opt if re.match(r"Nx\w+=", o) and str(c) in o.split("=")[1]] + [NTX0]
        NTW = [" " + o.split("=")[0][2:].replace("_", " ") for o in opt if re.match(r"Nw\w+=", o) and str(c) in o.split("=")[1]] + [NTW0]
        NTX, NTW = NTX[0], NTW[0]
        return [
            [f"s_xor_b32 s{sT0}, s{sKEY}, {c}",
             f"s_mul_i32 s{sT1}, s{sT0}, 229376", f"s_add_u32 s{sT1}, s{sT1}, s{sWB}",
             f"s_lshl_b32 s{sT0}, s{sT0}, 7", f"s_add_u32 m0, s{sM0X}, {st}", f"s_add_u32 s{sT0}, s{sT0}, s{sXB}",
             I(f"buffer_load_dwordx4 v{vX0}, {sr(SX,4)}, s{sT0} offen{NTX} lds", vm=f"c{c}")],
            I(f"buffer_load_dwordx4 v{vX1}, {sr(SX,4)}, s{sT0} offen offset:1024{NTX} lds", vm=f"c{c}"),
            [f"s_add_u32 m0, s{sM0X}, {st + 16384}",
             I(f"buffer_load_dwordx4 v{vW0}, {sr(SWG,4)}, s{sT1} offen{NTW} lds", vm=f"c{c}")],
            I(f"buffer_load_dwordx4 v{vW1}, {sr(SWG,4)}, s{sT1} offen offset:1024{NTW} lds", vm=f"c{c}"),
            [f"s_add_u32 m0, s{sM0X}, {st + 32768}",
             I(f"buffer_load_dwordx4 v{vW0}, {sr(SWU,4)}, s{sT1} offen{NTW} lds", vm=f"c{c}")],
            I(f"buffer_load_dwordx4 v{vW1}, {sr(SWU,4)}, s{sT1} offen offset:1024{NTW} lds", vm=f"c{c}"),
        ]
    def prefetch(c):
        g = oi("pg", 7); sh = 7 - g; t = 150
        o = L(f"""
        v_lshrrev_b32 v{t}, {sh}, v0
        v_lshlrev_b32 v{t}, 12, v{t}
        v_lshrrev_b32 v{t+1}, {sh + 1}, v0
        v_mul_u32_u24 v{t+1}, 3584, v{t+1}
        v_and_b32 v{t+2}, {(2 << sh) - 1}, v0
        v_lshl_add_u32 v{t+1}, v{t+2}, {g}, v{t+1}
        """)
        if sh: o += [f"v_and_b32 v{t+2}, {(1 << sh) - 1}, v0", f"v_lshl_add_u32 v{t}, v{t+2}, {g}, v{t}"]
        o += L(f"""
        s_xor_b32 s{sT2}, s{sKEY}, {c}
        s_mul_i32 s{sT3}, s{sT2}, 229376
        s_add_u32 s{sT3}, s{sT3}, s{sWB}
        s_lshl_b32 s{sT2}, s{sT2}, 7
        s_add_u32 s{sT2}, s{sT2}, s{sXB}
        s_mov_b32 exec_hi, 0
        """)
        if not sh: o += ["s_mov_b32 exec_lo, 0xffff"]
        PW = os0("pv=", "gux")
        if "g" in PW: o += [I(f"buffer_load_dword v{t+2}, v{t+1}, {sr(SWG,4)}, s{sT3} offen", vm="pf")]
        if "u" in PW: o += [I(f"buffer_load_dword v{t+3}, v{t+1}, {sr(SWU,4)}, s{sT3} offen", vm="pf")]
        if "x" in PW: o += [I(f"buffer_load_dword v{t+4}, v{t}, {sr(SX,4)}, s{sT2} offen", vm="pf")]
        return o + ["s_mov_b64 exec, -1"]
    def os0(k, d=""): return ([o[len(k):] for o in opt if o.startswith(k)] + [d])[0]
    def c3p(role, c, tag):
        t = 150; W_ = oi("c3w", 0); PW = os0("c3v=", "wx"); o = []
        if "w" in PW: o += L(f"""
        s_bitcmp1_b32 {hex(0x1515 if "c3e" in opt else 0x2aaa)}, s{sCB}
        s_cselect_b32 s{sT2}, s{sW}, 99
        s_cmp_lg_u32 s{sT2}, {W_}
        s_cbranch_scc1 L_c3w{tag}{role}
        s_xor_b32 s{sT2}, s{sKEY}, {c}
        s_mul_i32 s{sT3}, s{sT2}, 229376
        {f"s_cmp_lt_u32 s{sCB}, 7" if "c3e" in opt else ""}
        {f"s_cselect_b32 s{sT2}, 1, {oi('c3d', 0) * 2 - 1}" if "c3e" in opt else f"s_mov_b32 s{sT2}, 0"}
        s_add_u32 s{sT2}, s{sT2}, s{sCB}
        s_lshl_b32 s{sT2}, s{sT2}, 8
        s_add_u32 s{sT3}, s{sT3}, s{sT2}
        s_bitcmp1_b32 s{sT2}, 9
        s_cselect_b32 s{sT2}, 3584, 0
        s_add_u32 s{sT3}, s{sT3}, s{sT2}
        v_mul_u32_u24 v{t}, 7168, v0
        s_mov_b32 exec_hi, 0
        buffer_load_dword v{t+1}, v{t}, {sr(SWG,4)}, s{sT3} offen offset:128
        buffer_load_dword v{t+2}, v{t}, {sr(SWU,4)}, s{sT3} offen offset:128
        s_mov_b32 exec_hi, -1
        L_c3w{tag}{role}:
        """)
        if "x" in PW: o += L(f"""
        s_xor_b32 s{sT2}, s{sW}, {W_ ^ 2}
        s_lshr_b32 s{sT2}, s{sT2}, 1
        s_xor_b32 s{sT3}, s{sKEY}, {c ^ 3}
        s_or_b32 s{sT2}, s{sT2}, s{sT3}
        s_cbranch_scc1 L_c3x{tag}{role}
        s_lshl_b32 s{sT2}, s{sRB}, 1
        s_add_u32 s{sT2}, s{sT2}, s{sWR}
        s_lshl_b32 s{sT2}, s{sT2}, 16
        v_lshlrev_b32 v{t+3}, 10, v0
        buffer_load_dword v{t+4}, v{t+3}, {sr(SX,4)}, s{sT2} offen offset:384
        L_c3x{tag}{role}:
        """)
        return o
    PF = os0("pf=")
    XR, S1, S2 = 200, 204, 205
    def row_load():
        return [I(f"buffer_load_dword v{vTAG}, off, {sr(SWS,4)}, 0 offset:{WS_EPOCH} sc1", vm="ep"),
                [f"s_lshl_b32 s{sA}, s{sRT2}, 3", f"s_add_u32 s{sA}, s{sA}, s{sISG}", f"s_lshl_b32 s{sA}, s{sA}, 3",
                 f"s_add_u32 s{sA}, s{sA}, s{sW}", f"s_lshl_b32 s{sT2}, s{sA}, 10",
                 I(f"buffer_load_dwordx4 {vr(XR,4)}, v{vL16}, {sr(SX,4)}, s{sT2} offen" + (" nt" if "ntr" in opt else ""), vm="ep")]]
    tag_math = L(f"""
        v_add_u32 v{vTAG}, 1, v{vTAG}
        v_and_b32 v{vTAG}, 0x0fff3fff, v{vTAG}
        v_or_b32 v{vTAG}, 0x20000000, v{vTAG}
        s_mov_b32 s{sB}, 0x3f803f80
        v_readfirstlane_b32 s{sTAG}, v{vTAG}
        """)
    def row_math():
        o = []
        for d in range(4):
            o += [f"v_dot2_f32_bf16 v{S1}, v{XR+d}, s{sB}, {'0' if d == 0 else f'v{S1}'}",
                  f"v_dot2_f32_bf16 v{S2}, v{XR+d}, v{XR+d}, {'0' if d == 0 else f'v{S2}'}"]
        o += [f"v_mov_b32 v{XR+1}, v{vTAG}", f"v_permlane32_swap_b32 v{S1}, v{S2}", f"v_add_f32 v{S1}, v{S1}, v{S2}"]
        o += [f"v_add_f32_dpp v{S1}, v{S1}, v{S1} {d} row_mask:0xf bank_mask:0xf"
              for d in ("quad_perm:[1,0,3,2]", "quad_perm:[2,3,0,1]", "row_half_mirror", "row_mirror")]
        o += [f"v_add_f32_dpp v{S1}, v{S1}, v{S1} row_bcast:15 row_mask:0xa bank_mask:0xf"]
        o += L(f"""
        v_mul_f32 v{S1}, {fx(1/512)}, v{S1}
        v_readlane_b32 s{sB}, v{S1}, 31
        v_readlane_b32 s{sC}, v{S1}, 63
        v_mul_f32 v{S1}, s{sB}, s{sB}
        v_sub_f32 v{S1}, s{sC}, v{S1}
        v_max_f32 v{S1}, 0, v{S1}
        v_cvt_pk_bf16_f32 v{S1}, v{S1}, v{S1}
        v_lshlrev_b32 v{S1}, 16, v{S1}
        v_add_f32 v{S1}, {fx(1e-5)}, v{S1}
        v_cvt_pk_bf16_f32 v{S1}, v{S1}, v{S1}
        v_lshlrev_b32 v{S1}, 16, v{S1}
        v_sqrt_f32 v{S1}, v{S1}
        s_lshl_b32 s{sA}, s{sA}, 3
        v_cvt_pk_bf16_f32 v{XR}, v{S1}, -s{sB}
        s_add_u32 s{sA}, s{sA}, {WS_RS}
        """)
        if "nors" not in opt: o += [one(f"buffer_store_dwordx2 {vr(XR,2)}, off, {sr(SWS,4)}, s{sA} sc1", vm="rs", wvm="wps")]
        return o
    def h_load(t):
        return [[f"s_and_b32 s{sT2}, s{sW}, 3", f"s_lshl_b32 s{sT2}, s{sT2}, 10",
                 I(f"buffer_load_dwordx4 {vr(vHE,4)}, v{vL16}, {sr(SH,4)}, s{sT2} offen{NTE}", vm="hl")],
                [f"s_and_b32 s{sT2}, s{sW}, 3", f"s_lshl_b32 s{sT2}, s{sT2}, 10",
                 f"s_sub_u32 s{sT2}, s{sT2}, 4", f"v_add_u32 v{t}, s{sT2}, v{vL16}",
                 I(f"buffer_load_dword v{vHP}, v{t}, {sr(SH,4)}, 0 offen{NTF}", vm="hl")]][:1 if H1 else 2]
    vZ4 = vHE + 12
    h_al = [f"v_alignbit_b32 v{vHO_+d}, v{vHE+d}, v{vHE+d-1 if d else vHP}, 16" for d in range(4)]
    h_z = [f"v_mov_b32 v{vZ4+d}, 0" for d in range(4)]
    h_math = (([[f"s_and_b32 s{sT2}, s{sW}, 3", f"s_cselect_b32 s{sT2}, s{sOK}, 0", f"v_mov_b32 v{vHP}, s{sT2}"], I(h_al[1], wvm="hl")] + h_al[2:] +
               [f"v_mov_b32_dpp v{vHP}, v{vHE+3} wave_shr:1 row_mask:0xf bank_mask:0xf"] + h_z + h_al[:1]
               if H1 else [I(h_al[0], wvm="hl")] + h_al[1:] + h_z) + [L(f"""
        s_lshr_b32 s{sT2}, s{sW}, 2
        s_mul_i32 s{sT2}, s{sT2}, {CVCH}
        s_add_u32 s{sT2}, s{sT2}, {L_CV}
        v_min_u32 v{vHP+1}, 35, v0
        v_lshlrev_b32 v{vHP+1}, 4, v{vHP+1}
        v_lshrrev_b32 v{vHP}, 5, v0
        v_lshl_add_u32 v{vHP+1}, v{vHP}, 12, v{vHP+1}
        v_add_u32 v{vHP+1}, s{sT2}, v{vHP+1}
        s_and_b32 s{sT3}, s{sW}, 3
        s_lshl_b32 s{sT3}, s{sT3}, 10
        s_add_u32 s{sT2}, s{sT2}, s{sT3}
        v_add_u32 v{vHP}, s{sT2}, v{vL16}
        """)])
    h_write = [I(f"ds_write_b128 v{vHP}, {vr(vHE,4)} offset:4608", lg="hw"),
               I(f"ds_write_b128 v{vHP}, {vr(vHO_,4)} offset:{4608+4160}", lg="hw"),
               I(f"ds_write_b128 v{vHP+1}, {vr(vZ4,4)} offset:4096", lg="hw")]
    vFL, vFA = 18, 19
    def wf_addr_(sE, vFA, vFL): return L(f"""
        s_lshl_b32 s{sT2}, s{sCT2}, 3
        s_add_u32 s{sT2}, s{sT2}, s{sW}
        {f"s_xor_b32 s{sT3}, s{sCT2}, s{sW}" if "wdx" in opt else ""}
        s_and_b32 s{sE}, s{sT3 if "wdx" in opt else sCT2}, 6
        s_lshl_b32 s{sE}, s{sE}, 1
        s_add_u32 s{sE}, s{sE}, s{sWC}
        s_lshl_b32 s{sE}, s{sE}, 1
        s_and_b32 s{sT3}, s{sT3 if "wdx" in opt else sCT2}, 1
        s_add_u32 s{sE}, s{sE}, s{sT3}
        s_lshl_b32 s{sE}, s{sE}, 4
        s_add_u32 s{sE}, s{sE}, s{sWR}
        s_lshl_b32 s{sE}, s{sE}, 5
        s_add_u32 s{sE}, s{sE}, {WS_RS + 64 + 4 + (16384 if oi("rl", -1) >= 0 else 0)}
        s_mul_i32 s{sT2}, s{sT2}, 28672
        s_mul_i32 s{sT3}, s{sHI}, 12288
        s_add_u32 s{sT2}, s{sT2}, s{sT3}
        s_add_u32 s{sT2}, s{sT2}, {WS_WT}
        s_lshl_b32 s{sT3}, s{sRBL}, 10
        s_add_u32 s{sMO}, s{sT2}, s{sT3}
        s_xor_b32 s{sMO+1}, s{sMO}, 1024
        s_xor_b32 s{sMO+2}, s{sMO}, 2048
        s_xor_b32 s{sMO+3}, s{sMO}, 3072
        v_min_u32 v{vFA}, 27, v0
        v_and_b32 v{vFL}, 28, v{vFA}
        v_add_u32 v{vFA}, v{vFA}, v{vFL}
        v_lshlrev_b32 v{vFA}, 3, v{vFA}
        """)
    wf_addr = wf_addr_(sE, vFA, vFL)
    wf_ld = f"buffer_load_dword v{vFL}, v{vFA}, {sr(SWS,4)}, s{sE} offen sc1"
    def wd_loads():
        o = []
        for i in range(28):
            ks, mt = divmod(i, 4)
            g = []
            if i == 16:
                g += [f"s_mul_i32 s{sT3}, s{sHI}, 28672"] + [f"s_sub_u32 s{sMO+m}, s{sMO+m}, s{sT3}" for m in range(4)]
            g += [f"s_add_u32 s{sT3}, s{sMO+mt}, {4096*ks}",
                  I(f"buffer_load_dwordx4 {vr(WDF(i),4)}, v{vL16}, {sr(SWS,4)}, s{sT3} offen sc1" if i < oi("wx", 99) else
                    f"buffer_load_dword {vr(WDF(i),1)}, off, {sr(SWS,4)}, s{sT3} sc1", vm=f"wd{ks}")]
            o.append(g)
        return o
    vKA, vKL = 29, 30
    kf_addr = [f"v_and_b32 v{vKA}, 31, v0", f"v_lshlrev_b32 v{vKA}, 2, v{vKA}", f"s_lshl_b32 s{sC}, s{sXCD}, 7",
               f"s_add_u32 s{sC}, s{sC}, {WS_FKV}"]
    kf_ld = f"buffer_load_dword v{vKL}, v{vKA}, {sr(SWS,4)}, s{sC} offen sc1"
    def r_dma(t):
        return L(f"""
        s_lshr_b32 s{sT2}, s{sW}, 2
        s_mul_i32 s{sT3}, s{sT2}, {CVCH - 4096}
        s_lshl_b32 s{sT2}, s{sT2}, 4
        v_lshl_add_u32 v{t}, v0, 5, s{sT2}
        s_lshl_b32 s{sT2}, s{sW}, 10
        s_add_u32 s{sT3}, s{sT3}, s{sT2}
        s_add_u32 m0, s{sT3}, {L_CV}
        s_and_b32 s{sT2}, s{sM0X}, 0x1800
        s_lshl_b32 s{sT3}, s{sCP}, 13
        s_add_u32 s{sT2}, s{sT2}, s{sT3}
        s_add_u32 s{sT2}, s{sT2}, {WS_KV}
        """) + [I(f"buffer_load_dwordx4 v{t}, {sr(SWS,4)}, s{sT2} offen sc1 lds", vm="R")]

    WL = wd_loads()
    wsched = {17: 1, 18: 1, 19: 1, 21: 1, 22: 1, 23: 1, 24: 1, 25: 2, 26: 2, 27: 2, 29: 1, 30: 2, 31: 2}
    wsched = {k: n for k, n in wsched.items() if k >= oi("pw", 20) + 3}
    for o in opt:
        if o.startswith("ws="): wsched = {32 - len(o[3:]) + i: int(ch) for i, ch in enumerate(o[3:])}
    assert min(k for k, n in wsched.items() if n) >= oi("pw", 20) + oi("pd", 3)
    wepi = [int(x) for x in str(oi("we", 3320)).zfill(4)]
    NPRE = sum(wsched.values()) + sum(wepi)
    vq_pro = list(a.vq)
    a(f"s_cmp_eq_u32 s{sISG}, 0\ns_cbranch_scc1 {AUX}")
    if "nogemm" in opt: a(f"s_branch {END}")
    SP, SPS = oi("sp", 0), oi("ss", 64)
    h_pre = [f"s_and_b32 s{sT2}, s{sW}, 3", f"s_lshl_b32 s{sT2}, s{sT2}, 10"] + [
        f"s_buffer_load_dword s{sCNT}, {sr(SH,4)}, s{sT2} offset:{o}" for o in range(0, 1024, SPS)]
    if SP == 1: a(h_pre)
    TF = os0("tf=")
    def touch():
        o = ["s_mov_b64 exec, 1"]
        if "d" in TF: o += [f"s_mul_i32 s{sT2}, s{sCB}, 131072", I(f"buffer_load_dword v160, off, {sr(SWD,4)}, s{sT2}", vm="tf")]
        if "h" in TF: o += [I(f"buffer_load_dword v161, off, {sr(SH,4)}, 0", vm="tf")]
        if "e" in TF: o += [I(f"buffer_load_dword v162, off, {sr(SWS,4)}, 0 offset:128 sc1", vm="tf")]
        if "w" in TF: o += [f"s_mov_b32 s{sT2}, {WS_WT - 128}", I(f"buffer_load_dword v163, off, {sr(SWS,4)}, s{sT2} sc1", vm="tf"),
                            f"s_mov_b32 s{sT2}, {WS_YT - 128}", I(f"buffer_load_dword v164, off, {sr(SWS,4)}, s{sT2} sc1", vm="tf")]
        o += ["s_mov_b64 exec, -1"]
        if "0" in TF: return [f"s_cmp_lg_u32 s{sW}, 0", "s_cbranch_scc1 L_notf"] + [x.text if isinstance(x, I) else x for x in o] + ["L_notf:"]
        return o
    if "B" in TF: a(touch())
    a(chunk_dma(0))
    stamp("K2")
    WU, WQ = oi("wu", -1), oi("wq", 0)
    W8 = "w8" in opt or "wm" in opt
    def warm():
        if "wo4" in opt: a(f"s_cmp_ge_u32 s{sW}, 4\ns_cbranch_scc1 L_wux")
        if "wy4" in opt: a(f"s_cmp_lt_u32 s{sW}, 4\ns_cbranch_scc1 L_wux")
        if "wz" in opt:
            for i in range(16): a(f"v_mov_b32 v{FR+16+i}, 0")
        elif "wa" in opt:
            for i in range(8 if "w8" in opt else 16): a(f"v_xor_b32 v{FR+16+i}, {0x3f5a3e97 + 0x00130029 * i}, v{(vX0, vX1, vW0, vW1)[i & 3]}")
        elif "wm" in opt:
            if not UE: a(w_init)
        else:
            a(f"s_mov_b32 s{sT2}, 0x807f807f\ns_mov_b32 s{sT3}, 0x3f003f00\nv_mov_b32 v180, 0x9e3779b1\nv_add_u32 v181, 0x1234567, v{vW0}")
            for i in range(16):
                a(f"v_mul_lo_u32 v181, v181, v180\nv_alignbit_b32 v181, v181, v181, 13\nv_and_b32 v{FR+16+i}, s{sT2}, v181\nv_or_b32 v{FR+16+i}, s{sT3}, v{FR+16+i}")
        wm = lambda z: [f"v_mfma_f32_32x32x16_bf16 {vr(ACC+16*i,16)}, {vr(FR+16+4*(i&1),4)}, {vr(FR+(16 if W8 else 24)+4*(i>>1),4)}, {'0' if z or 'w0c' in opt else vr(ACC+16*i,16)}" for i in range(4)]
        if "wv" not in opt and "w0c" not in opt: a(wm(True)[:oi("wn", 4)])
        if WU:
            a(f"s_mov_b32 s{sT2}, {WU}\nL_wu:")
            if "wv" in opt:
                for i in range(64): a(f"v_fma_f32 v{ACC+i}, v{FR+16+(i&15)}, v{FR+16+((i*7+3)&15)}, v{ACC+i}")
            else:
                for q_, m_ in enumerate(wm(False)[:oi('wn', 4)]):
                    UV = oi("uv", 0)
                    xv = [f"v_pk_fma_f32 {vr(150+2*(UV*q_+z),2)}, {vr(FR+16+2*((q_+z)&3),2)}, {vr(FR+16+2*((q_+2*z+1)&3),2)}, {vr(FR+16+2*((z+2)&3),2)}" for z in range(UV)]
                    a([m_] + xv + ([f"s_nop {oi('wg', 0)}"] if oi("wg", 0) else []))
            if oi("wad", 0): a(f"s_getreg_b32 s{sT3}, hwreg(HW_REG_IB_STS, 0, 4)\ns_cmp_lt_u32 s{sT3}, {oi('wad', 0)}\ns_cbranch_scc1 L_wux")
            a(f"s_sub_u32 s{sT2}, s{sT2}, 1\ns_cmp_lg_u32 s{sT2}, 0\ns_cbranch_scc1 L_wu")
        if oi("iw", 0) and "iwy" in opt:
            W_ = oi("iwn", 4)
            a("s_branch L_wuy\nL_wux:")
            a([f"s_and_b32 s{sCNT}, s{sW}, {W_ - 1}", "s_mov_b64 exec, 0"] + [x for i in range(W_ - 1) for x in (f"s_cmp_eq_u32 s{sCNT}, {i}", f"s_cbranch_scc1 L_iw{i}_0")] +
              [f"s_branch L_iw{W_ - 1}_0", "L_iwr_g:", "s_mov_b64 exec, -1", "L_wuy:"])
        elif oi("iy", 0): a("s_branch L_wuy\nL_wux:\nL_iyd:\nL_iyr:\ns_mov_b64 exec, -1\nL_wuy:")
        else: a("L_wux:")
        stamp("K3")
    if WU >= 0 and WQ == 0: warm()
    if "A" in TF: a(touch())
    if PF == "a": a(prefetch(4))
    if SP == 2: a(h_pre)
    WP, vWPA, vWPS, vWPL, CSA, CS1 = 208, 212, 213, 214, 240, 236
    sWPS, sWPF, sWPM = SSH, SSH + 1, SSH + 3
    a(f"""
    v_and_b32 v23, 3, v20
    v_lshrrev_b32 v26, 5, v0
    v_lshl_add_u32 v23, v26, 3, v23
    v_lshlrev_b32 v26, 4, v22
    v_lshl_add_u32 v{vWPL}, v23, 10, v26
    {"" if "wdx" in opt else f"s_mov_b32 s{sE}, s{sXCD}"}
    s_lshl_b32 s{sT2}, s{sRBL}, 1
    s_add_u32 s{sT2}, s{sT2}, s{sB}
    {f"s_xor_b32 s{sE}, s{sXCD}, s{sT2}" if "wdx" in opt else ""}
    s_mul_i32 s{sT3}, s{sT2}, 7
    {f"s_xor_b32 s{sT1}, s{sCT2}, 4" if "ct3" in opt else ""}
    s_add_u32 s{sT3}, s{sT3}, s{sT1 if "ct3" in opt else sCT2}
    s_mul_i32 s{sWPS}, s{sE}, 56
    s_add_u32 s{sWPS}, s{sWPS}, s{sT3}
    s_lshl_b32 s{sWPS}, s{sWPS}, 12
    s_lshl_b32 s{sT1}, s{sC}, 8
    s_add_u32 s{sWPS}, s{sWPS}, s{sT1}
    s_add_u32 s{sWPS}, s{sWPS}, {WS_WT}
    s_lshl_b32 s{sT3}, s{sT3}, 15
    s_lshl_b32 s{sT1}, s{sWR}, 12
    s_add_u32 s{sT3}, s{sT3}, s{sT1}
    s_lshl_b32 s{sT1}, s{sWC}, 14
    s_and_b32 s{sT1}, s{sT1}, 0x4000
    s_add_u32 s{sT3}, s{sT3}, s{sT1}
    s_lshl_b32 s{sT1}, s{sE}, 7
    s_add_u32 s{sWPF}, s{sT3}, s{sT1}
    s_lshl_b32 s{sT2}, s{sW}, 10
    s_add_u32 s{sWPM}, s{sT2}, {L_WP}
    {"" if "nob" in opt else "s_barrier"}
    """)
    wp_load = [f"s_mov_b32 m0, s{sWPM}", I(f"buffer_load_dwordx4 v{vWPL}, {sr(SWD,4)}, s{sWPF} offen{NTH} lds", vm="wpl")]
    SWL, SWR, SRS, SPW, SHL, SPF, SRL = oi("wl", -1), oi("wr", 4), oi("rs", 11), oi("pw", 20), oi("hl", 9), oi("pf", 0), oi("rl", -1)
    SKF, SRD = oi("kf", 28), oi("rd", 32)
    XE = oi("xe", 28)
    assert XE >= 27 or ("hr" in opt and XE >= 22)
    BI = "bi" in opt
    if WU >= 0 and WQ == 1: warm()
    if SWL < 0: a(wp_load)
    a(f"""
    v_lshlrev_b32 v23, 7, v24
    v_lshl_add_u32 v23, v21, 5, v23
    v_lshl_add_u32 v23, v25, 3, v23
    v_add_u32 v{vWPA}, s{sWPM}, v23
    """)
    C1E = oi("c1e", 2)
    if SRL >= 0: a(row_load()[0]); a(row_load()[1][:4])
    elif "rowl" not in opt: a(row_load())
    if SHL == -3: a(h_load(27))
    if PF == "b": a(prefetch(4))
    a(chunk_dma(1)[:C1E])
    if PF == "c": a(prefetch(4))
    if SHL == -4: a(h_load(27))
    if "th" in opt: a(I(f"buffer_load_dword v{vHP}, off, {sr(SH,4)}, 0", vm="th"))
    a(f"""
    v_and_b32 v23, 15, v0
    v_lshlrev_b32 v23, 4, v23
    v_lshl_add_u32 v{vWPS}, v21, 10, v23
    v_and_b32 v24, 31, v0
    v_lshrrev_b32 v25, 5, v0
    v_bfe_u32 v22, v0, 1, 3
    v_xor_b32 v22, v22, v25
    v_lshlrev_b32 v22, 4, v22
    v_lshl_add_u32 v22, v24, 7, v22
    s_lshl_b32 s{sT0}, s{sWR}, 13
    v_add_u32 v{vXB}, s{sT0}, v22
    v_xor_b32 v{vXB+1}, 32, v{vXB}
    v_xor_b32 v{vXB+2}, 64, v{vXB}
    v_xor_b32 v{vXB+3}, 96, v{vXB}
    v_add_u32 v{vXB+4}, {2*STAGE}, v{vXB}
    v_add_u32 v{vXB+5}, {2*STAGE}, v{vXB+1}
    v_add_u32 v{vXB+6}, {2*STAGE}, v{vXB+2}
    v_add_u32 v{vXB+7}, {2*STAGE}, v{vXB+3}
    v_bfe_u32 v23, v0, 2, 2
    v_lshl_add_u32 v24, v25, 3, v23
    v_lshlrev_b32 v24, 8, v24
    v_xor_b32 v23, s{sWC}, v23
    v_lshl_add_u32 v24, v23, 6, v24
    v_bfe_u32 v23, v0, 4, 1
    v_lshl_add_u32 v24, v23, 5, v24
    v_and_b32 v23, 3, v0
    v_lshl_add_u32 v24, v23, 3, v24
    v_add_u32 v{vWB}, 16384, v24
    v_add_u32 v{vWB+1}, {STAGE+16384}, v24
    v_add_u32 v{vWB+2}, {2*STAGE+16384}, v24
    """)
    if "cs16" in opt:
        a(f"""
        v_lshrrev_b32 v23, 2, v0
        v_xor_b32 v23, v23, v21
        v_and_b32 v23, 1, v23
        v_add_u32 v23, -1, v23
        """)
        for d in range(4): a(f"v_and_b32 v{CS1+d}, 0x3f803f80, v23")
    else:
        for d in range(4): a(f"v_mov_b32 v{CS1+d}, 0x3f803f80")
    if "csb" in opt: a(f"s_cmp_lg_u32 s{sCSM}, 0\ns_cselect_b64 vcc, -1, 0")
    if prof and oi("mz", 0): a([f"v_mov_b32 v{180+i}, 0" for i in range(4)])
    stamp("K1")
    stamp("K0")
    a(sc_init)
    if "dmaonly" in opt:
        DD = oi("dd", 2)
        if C1E < 6: a(chunk_dma(1)[0][:4]); a(chunk_dma(1)[C1E:])
        for c in range(2, DD): a(chunk_dma(c))
        for c in range(8):
            a(I(wvm=f"c{c}"))
            if "dnb" not in opt: a("s_barrier")
            stamp(f"B{c}")
            if c + DD < 8: a(chunk_dma(c + DD))
        a("s_branch L_prof")
        opt = [o for o in opt if not o.startswith("st=")] + ["st=end"]

    IW, IWN = oi("iw", 0), oi("iwn", 4)
    def walk(tag, first=0):
        o = [f"s_and_b32 s{sCNT}, s{sW}, {IWN - 1}", "s_mov_b64 exec, 0"]
        if "iwo" in opt:
            o = [f"s_cmp_ge_u32 s{sW}, 4", f"s_cbranch_scc1 L_iwr_{tag}", f"s_lshl_b32 s{sCNT}, s{sRBL}, 2", f"s_add_u32 s{sCNT}, s{sCNT}, s{sW}", "s_mov_b64 exec, 0"]
        if "iwa" in opt:
            o = [f"s_lshl_b32 s{sCNT}, s{sW}, 2", f"s_add_u32 s{sCNT}, s{sCNT}, s{sRBL}", f"s_cmp_ge_u32 s{sCNT}, {IWN}", f"s_cbranch_scc1 L_iwr_{tag}", "s_mov_b64 exec, 0"]
        for i in range(IWN - 1): o += [f"s_cmp_eq_u32 s{sCNT}, {i}", f"s_cbranch_scc1 L_iw{i}_{first}"]
        return o + [f"s_branch L_iw{IWN - 1}_{first}", f"L_iwr_{tag}:", "s_mov_b64 exec, -1"]
    def F(s): return FR + 16 * (s & 1)
    def reads(s):
        c, j = divmod(s, 4)
        st = c % 3
        xb = vXB + j + (4 if st == 2 else 0); im = STAGE if st == 1 else 0
        wb = vWB + st; wo = 4096 * j
        f = F(s); t = f"r{s}"
        return [I(f"ds_read_b64_tr_b16 {vr(f,2)}, v{wb} offset:{wo}", lg=t),
                I(f"ds_read_b64_tr_b16 {vr(f+2,2)}, v{wb} offset:{wo+1024}", lg=t),
                I(f"ds_read_b128 {vr(f+8,4)}, v{xb} offset:{im}", lg=t),
                I(f"ds_read_b64_tr_b16 {vr(f+4,2)}, v{wb} offset:{wo+16384}", lg=t),
                I(f"ds_read_b64_tr_b16 {vr(f+6,2)}, v{wb} offset:{wo+17408}", lg=t),
                I(f"ds_read_b128 {vr(f+12,4)}, v{xb} offset:{im+4096}", lg=t)]
    def mfmas(A, B, first=False, par=0):
        out = []
        for nt in range(2):
            for m in range(2):
                d = ACC + 32 * m + 16 * nt
                if "m16x" in opt:
                    for h in range(2):
                        e = d + 8 * (par & 1) + 4 * h
                        out.append(f"v_mfma_f32_16x16x32_bf16 {vr(e,4)}, {vr(A[m ^ h],4)}, {vr(B[nt],4)}, {'0' if par < 2 else vr(e,4)}")
                    continue
                out.append(f"v_mfma_f32_32x32x16_bf16 {vr(d,16)}, {vr(A[m],4)}, {vr(B[nt],4)}, {'0' if first else vr(d,16)}")
        if "snk" in opt: out = [out[0], out[1], out[3], out[2]]
        if "snb" in opt: out = [out[0], out[2], out[3], out[1]]
        if "sna" in opt: out = [out[0], out[2], out[1], out[3]]
        return out
    def cs_mfma(p):
        o = []
        sh, n = ("16x16x32", 4) if "cs16" in opt else ("32x32x16", 16)
        mm = [f"v_mfma_f32_{sh}_bf16 {vr(CSA,n)}, {vr(CS1,4)}, {vr(F(p)+4*m,4)}, {'0' if p == 0 else vr(CSA,n)}" for m in range(2)]
        if "csv" in opt:
            for m in range(2):
                o += [f"s_bitcmp1_b32 s{sCSM}, {m}", f"s_cbranch_scc0 L_cs{p}_{m}"]
                o += [f"v_dot2_f32_bf16 v{CSA+4+(d&1)}, v{F(p)+4*m+d}, v{CS1}, {'0' if p == 0 and d < 2 else 'v%d' % (CSA+4+(d&1))}" for d in range(4)]
                o += [f"L_cs{p}_{m}:"]
            return o
        if "csb" in opt:
            return [f"s_cbranch_vccz L_cs{p}_1", f"s_bitcmp1_b32 s{sCSM}, 0", f"s_cbranch_scc0 L_cs{p}_0", mm[0], f"s_branch L_cs{p}_1",
                    f"L_cs{p}_0:", mm[1], f"L_cs{p}_1:"]
        if "cs16" in opt:
            for m in range(2): o += [f"s_bitcmp1_b32 s{sCSM}, {m}", f"s_cbranch_scc0 L_cs{p}_{m}", mm[m], f"L_cs{p}_{m}:"]
            return o
        for m in range(2):
            o += [f"s_bitcmp1_b32 s{sCSM}, {m}", f"s_cbranch_scc0 L_cs{p}_{m}",
                  f"v_mfma_f32_32x32x16_bf16 {vr(CSA,16)}, {vr(CS1,4)}, {vr(F(p)+4*m,4)}, {'0' if p == 0 else vr(CSA,16)}",
                  f"L_cs{p}_{m}:"]
        return o
    sCSB = SSH + 2
    cs_store = [L(f"""
        s_lshl_b32 s{sCSB}, s{sCB}, 2
        s_add_u32 s{sCSB}, s{sCSB}, s{sWC}
        s_lshl_b32 s{sCSB}, s{sCSB}, 10
        s_add_u32 s{sCSB}, s{sCSB}, {WS_CS}
        s_cmp_eq_u32 s{sCSM}, {'s%d' % sCSM if "nocs" in opt else 0}
        s_cbranch_scc1 L_nocs
        {f"v_add_f32 v{CSA}, v{CSA+4}, v{CSA+5}" if "csv" in opt else ""}
        {f"v_mov_b32 v{CSA+4}, v{CSA}" if "csv" in opt else ""}
        {f"s_nop 1" if "csv" in opt else ""}
        {f"v_permlane32_swap_b32 v{CSA+4}, v{CSA}" if "csv" in opt else ""}
        {f"s_nop 1" if "csv" in opt else ""}
        {f"v_add_f32 v{CSA}, v{CSA+4}, v{CSA}" if "csv" in opt else ""}
        v_cvt_pk_bf16_f32 v{CSA+1}, v{CSA}, v{CSA}
        s_mul_i32 s{sT2}, s{sWR}, 57344
        v_lshlrev_b32 v{CSA+1}, 16, v{CSA+1}
        s_lshr_b32 s{sT3}, s{sKEY}, 1
        v_sub_f32 v{CSA+1}, v{CSA}, v{CSA+1}
        s_lshl_b32 s{sT3}, s{sT3}, 3
        v_cvt_pk_bf16_f32 v{CSA}, v{CSA}, v{CSA+1}
        s_add_u32 s{sT2}, s{sT2}, s{sT3}
        v_mov_b32 v{CSA+1}, v{vTAG}
        s_add_u32 s{sT2}, s{sT2}, s{sCSB}
        v_lshlrev_b32 v{CSA+2}, 5, v0
        s_mov_b32 exec_hi, 0
        buffer_store_dwordx2 {vr(CSA,2)}, v{CSA+2}, {sr(SWS,4)}, s{sT2} offen sc1
        s_mov_b32 exec_hi, -1
        L_nocs:
        """)]
    EG, EU, ER, EB0, EB1 = 128, 132, 20, 136, 140
    ex_addr = L(f"""
        v_and_b32 v24, 31, v0
        v_lshrrev_b32 v25, 5, v0
        v_lshlrev_b32 v25, 4, v25
        v_lshl_add_u32 v{vX0}, v24, 5, v25
        v_and_b32 v24, 15, v0
        v_lshrrev_b32 v25, 4, v0
        v_lshlrev_b32 v25, 3, v25
        v_lshl_add_u32 v{vX1}, v24, 5, v25
        s_lshl_b32 s{sKEY}, s{sRB}, 1
        s_add_u32 s{sKEY}, s{sKEY}, s{sWR}
        s_lshl_b32 s{sWB}, s{sKEY}, 9
        s_add_u32 s{sWB}, s{sWB}, {WS_RS}
        s_add_u32 s{sXB}, s{sCSB}, 57344
        """)
    ex_ld = [f"buffer_load_dwordx4 {vr(EG,4)}, v{vX0}, {sr(SWS,4)}, s{sCSB} offen sc1",
             f"buffer_load_dwordx4 {vr(EU,4)}, v{vX0}, {sr(SWS,4)}, s{sXB} offen sc1",
             f"buffer_load_dwordx2 {vr(ER,2)}, v{vX1}, {sr(SWS,4)}, s{sWB} offen sc1"]
    ex_check = L(f"""
        v_min3_u32 v24, v{EG+1}, v{EG+3}, v{ER+1}
        v_max3_u32 v25, v{EG+1}, v{EG+3}, v{ER+1}
        v_min3_u32 v24, v24, v{EU+1}, v{EU+3}
        v_max3_u32 v25, v25, v{EU+1}, v{EU+3}
        v_cmp_ne_u32 vcc, s{sTAG}, v24
        v_cmp_ne_u32 s[{sT0}:{sT1}], s{sTAG}, v25
        s_or_b64 vcc, vcc, s[{sT0}:{sT1}]
        """)
    AP, BP, SS, vHO, TM = 22, 24, 26, 28, FR
    RM = row_math()
    def part(lst, i, n): return lst[len(lst) * i // n:len(lst) * (i + 1) // n]
    def os_(k, d=""): return ([o[len(k):] for o in opt if o.startswith(k)] + [d])[0]
    W = [0]
    def cum(t): return [sum(int(x) for x in t[:i]) for i in range(5)]
    def step(s, role):
        wi = W[0]
        c, j = divmod(s, 4)
        fill = []; pre = []; post = []
        NB7, PO = "nb7" in opt, os_("po=")
        if IW and s == oi("iwg", -1): a([f"s_cmp_ge_u32 s{sW}, 4", "s_cbranch_scc1 L_iwx"] + walk("g") + ["L_iwx:"])
        if IW and s == oi("iwf", 32): a("L_iwa:")
        if oi("iy", 0) and s == oi("iyf", 1): a("L_iya:")
        if oi("iy", 0) and s == oi("iyl", 32): a("L_iyb:")
        if j == 0 and s < 32:
            if not (NB7 and c == 7):
                a(I(wvm=["c6", "c7"] if NB7 and c == 6 else f"c{c}", wlg="*"))
                a("s_barrier")
            stamp(f"B{c}")
            if PO and c == int(PO[0]):
                a(f"s_setprio {PO[2]}\ns_cmp_lt_u32 s{sW}, 4\ns_cbranch_scc0 L_po\ns_setprio {PO[1]}\nL_po:")
            PR_ = os_(f"Rq{role}=")
            if PR_ and (c == 0 or PR_[c] != PR_[c - 1]): a(f"s_setprio {PR_[c]}")
            if "g1only" in opt and s == 20: a("s_waitcnt vmcnt(0)\ns_branch L_prof")
        if prof and os_(f"zz{s}="): a(f"s_sleep {os_(f'zz{s}=')}")
        if prof and os_(f"zy{s}="): a(f"s_cmp_lt_u32 s{sW}, 4\ns_cbranch_scc1 L_zy{s}\ns_sleep {os_(f'zy{s}=')}\nL_zy{s}:")
        DR = os_("drop=")
        if s == SWL: pre += [wp_load]
        if s == SPW: pre += [ap(wf_ld, 28, "apw", "fw")]
        if s == SKF: pre += [ap(kf_ld, 32, "apk", "kf")]
        if s == XE: pre += [I(x, vm="ex") for x in ex_ld]
        if s == 0:
            assert C1E in (0, 2, 4, 6)
            if 0 < C1E < 6: fill += [chunk_dma(1)[0][:4]]
            fill += chunk_dma(1)[C1E:]
            if "rowl" in opt: fill += row_load()
            if SHL == -5: fill += h_load(27)
        if c <= 5:
            cu = cum(os_(f"Re{role}=", "0222") if c == 0 and C1E < 6 else os_(f"Rd{role}{c}=", os_(f"Rd{role}=", "2121")))
            assert cu[4] == 6
            g = chunk_dma(c + 2)[cu[j]:cu[j + 1]]
            pm = os_(f"Rm{role}{c}=", os_(f"Rm{role}=", "0000"))[j]
            hp = os_(f"Rp{role}=", "0")
            if hp[0] != "0" and g:
                if pm == "0" and s: g = [[f"s_setprio {hp[0]}", x, "s_setprio 0"] for x in g]
                else: g = [f"s_setprio {hp[0]}"] + g + ["s_setprio 0"]
            if s == 0 or pm == "0": fill += g
            elif pm == "1": pre += g
            else: post += g
        if PF == str(s): fill += [prefetch(4)]
        if s == oi("c3p", -1): fill += [c3p(role, 4, "a")]
        IL = os_("il=", "")
        RD = reads(s) if s < 32 else []
        if IL:
            for x, t in zip(RD, "aaabbc"): x.lg += t
        if not IL or s == 0: a(RD)
        wp_rd = [I(f"ds_read_b64_tr_b16 {vr(WP,2)}, v{vWPA}", lg="wp", wvm="wpl"),
                 I(f"ds_read_b64_tr_b16 {vr(WP+2,2)}, v{vWPA} offset:512", lg="wp")]
        wp_st = I(f"buffer_store_dwordx4 {vr(WP,4)}, v{vWPS}, {sr(SWS,4)}, s{sWPS} offen sc1", vm="wps", wlg="wp")
        if s == 0:
            a(pre + fill + (wp_rd if SWR == 0 else [])); return
        p = s - 1
        v = []
        if s in (SHL, SHL + oi("hd", 2))[:1 if H1 else 2] and "h" not in DR:
            g = h_load(31)[(s - SHL) // oi("hd", 2)]
            if "hx" in opt: g[-1].text = g[-1].text.replace(sr(SH, 4), sr(SX, 4))
            if oi("hpt", 0):
                g = ([f"v_and_b32 v156, 7, v0", f"v_lshlrev_b32 v156, 7, v156"] + g[:-1] +
                     [f"s_bitcmp1_b32 0x2a2a, s{sCB}", "s_cselect_b64 exec, 0, -1", g[-1],
                      f"s_bitcmp1_b32 0x1515, s{sCB}", "s_cselect_b64 exec, 0xff, 0", f"s_cselect_b32 s{sT3}, 0x8000, 0", f"s_add_u32 s{sT2}, s{sT2}, s{sT3}",
                      I(f"buffer_load_dword v157, v156, {sr(SH,4)}, s{sT2} offen", vm="hl"), "s_mov_b64 exec, -1"])
            if not (("1" in DR and s == SHL) or ("2" in DR and s != SHL)): fill += [g]
        if s == oi("hpt", 0):
            g = h_load(31)[0]
            fill += [g[:-1] + [f"s_bitcmp1_b32 0x2a2a, s{sCB}", "s_cselect_b64 exec, -1, 0", g[-1], "s_mov_b64 exec, -1"]]
        if s == oi("tg", 4) and "t" not in DR: v += [I(tag_math[0], wvm="ep")] + tag_math[1:]
        if s == SWR and "w" not in DR: fill += wp_rd
        if s == SWR + 1 and "w" not in DR: fill = [wp_st] + fill if SWR == 0 else fill + [wp_st]
        RM0, RMN = oi("rm", 5), oi("rn", 5)
        if s == SRL:
            x = row_load()[1][4:]; x[-1].vm = "xr"; fill += [x]
        if SRL >= 0 and s == RM0: v += [I(f"s_mov_b32 s{sB}, 0x3f803f80", wvm="xr")]
        if SRL >= 0 and s == oi("wf", 11):
            fill += [[f"s_lshl_b32 s{sT2}, s{sA}, 3", f"s_add_u32 s{sT2}, s{sT2}, {WS_RS + 16384}"] +
                     one(f"buffer_store_dword v{vTAG}, off, {sr(SWS,4)}, s{sT2} offset:4 sc1", vm="wf", wvm="wps")]
        if RM0 <= s < RM0 + RMN and "t" not in DR: v += part(RM[:-1], s - RM0, RMN)
        if s == SRS and "r" not in DR: fill = [RM[-1]] + fill if "rsf" in opt else fill + [RM[-1]]
        if s == oi("cst", 10) and "c" not in DR and "S" not in DR: v += cs_store
        if s == 11 and "a" not in DR: v += [wf_addr]
        HM, HW = oi("hm", 21), oi("hw", 24)
        if HM <= s <= HM + 2: v += part(h_math, s - HM, 3)
        if s == SPW + oi("pd", 3): pre += [[I(wvm="fw")] + ne(vFL) + ["s_cbranch_scc0 L_fw_ok"] + spin("fw", ap(wf_ld, 28, "apw"), ne(vFL))]
        if s == 19: v += kf_addr
        if HW <= s <= HW + 2: v += [h_write[s - HW]]
        if s == XE - 1: v += ex_addr
        if s == SRD: fill = [[I(wvm="kf")] + ne(vKL) + [f"s_cselect_b32 s{sOK}, 0, 1"] +
                             ([f"s_cselect_b64 vcc, 0, -1"] + r_dma(24)[:-1] + ["s_mov_b64 exec, vcc", r_dma(24)[-1], "s_mov_b64 exec, -1"] if "mskr" in opt else r_dma(oi("rt", 24)))] + fill
        if s == 30: v += [f"v_mov_b32 v{r}, 0" for r in (EB0 + 1, EB0 + 3, EB1 + 1, EB1 + 3)] + [f"s_mov_b32 s{sB}, 0x03020302"]
        n = wsched.get(s, 0); fill += WL[wi:wi + n]; W[0] += n
        if s == 32:
            a(I(wvm="ex"))
            a(ex_check + ["s_cbranch_scc0 L_ex_ok"] + spin("ex", ex_ld, ex_check))
            v += L(f"""
            v_mov_b32 v{ER+1}, v{ER}
            v_permlane32_swap_b32 v{ER}, v{ER+1}
            v_perm_b32 v{EB0}, v{ER}, v{ER}, s{sB}
            v_perm_b32 v{EB0+2}, v{ER}, v{ER}, s{sB}
            v_perm_b32 v{EB1}, v{ER+1}, v{ER+1}, s{sB}
            v_perm_b32 v{EB1+2}, v{ER+1}, v{ER+1}, s{sB}
            v_lshlrev_b32 v{ER}, 16, v{ER}
            v_lshlrev_b32 v{ER+1}, 16, v{ER+1}
            """)
        hd = []
        if c <= 5 and os_(f"Rm{role}{c}=", os_(f"Rm{role}=", "0000"))[j] == "1": hd, pre = pre, []
        fill = pre + (mix(v, fill) if len(v) >= len(fill) else mix(fill, v)) if (v and fill) else pre + v + fill
        a(hd)
        f = F(p)
        MM = mfmas((f, f + 4), (f + 8, f + 12), p == 0, p)
        if prof and oi("my", 0) <= p < oi("mz", 0): MM = mfmas((180, 180), (180, 180) if "mzb" in opt else (f + 8, f + 12), p == 0, p)
        if IL:
            nm = len(MM)
            cu2 = lambda t: [sum(int(x) for x in t[:i]) for i in range(nm + 1)]
            rc = cu2(IL[:nm]); fc = cu2(IL[nm:2 * nm])
            assert rc[nm] == 6
            for i in range(nm):
                a(I(MM[i], wlg=f"r{p}" + ("abcc" if nm == 4 else "abbbcccc")[i]))
                a(RD[rc[i]:rc[i + 1]])
                a(fill[(len(fill) * fc[i] + fc[nm] // 2) // fc[nm]:(len(fill) * fc[i + 1] + fc[nm] // 2) // fc[nm]])
        else:
            a(I(wlg=f"r{p}"))
            NP_ = os_("np=")
            if prof and NP_ and p < len(NP_) and NP_[p] != "0": MM = [[m_] + ["s_nop 15"] * int(NP_[p]) for m_ in MM]
            a(mix(MM, fill))
        if p < 8 and "nocs" not in opt and "c" not in DR and "C" not in DR: a(cs_mfma(p))
        a(post)
        stamp(f"s{s}")
    if "split" in opt:
        a(f"s_cmp_lt_u32 s{sW}, 4\ns_cbranch_scc0 L_g1y")
        sv = (list(a.vq), list(a.lq), W[0])
        for s in range(24): step(s, "o")
        a(I(wvm="c6", wlg="*"))
        a("s_branch L_g1m")
        vo = list(a.vq)
        a("L_g1y:")
        a.vq, a.lq, W[0] = sv
        i0 = len(a.lines)
        for s in range(24): step(s, "y")
        a(I(wvm="c6", wlg="*"))
        defs = [x[:-1] for x in a.lines[i0:] if x.endswith(":")]
        for i in range(i0, len(a.lines)):
            for d in defs: a.lines[i] = re.sub(rf"\b{d}\b", d + "_y", a.lines[i])
        a("L_g1m:")
        a.vq = [tuple(set(vo + a.vq))]
        for s in range(24, 33): step(s, "o")
    else:
        for s in range(33): step(s, "o")
    wi = W[0]
    fill = []
    EO = oi("eo", 2)
    cA, cB, cS = ([lambda nt, b=b: b + nt for b in (AP, BP, SS)] if EO == 0 else
                  [lambda nt, b=b: FR + 16 + 6 * nt + b for b in (0, 2, 4)])
    for nt in range(2):
        if BI:
            fill += [f"v_rcp_f32 v{TM+nt}, v{ER+nt}"] + [f"v_mov_b32 v{cS(nt)+i}, {fx((-float(ESH), 2.0 ** -ESH)[nt])}" for i in range(2)]
            continue
        fill += [f"v_rcp_f32 v{TM+nt}, v{ER+nt}", f"v_mul_f32 v{cS(nt)}, v{ER+nt}, v{ER+nt}"]
        if EO == 2: fill += [f"v_mul_f32 v{cS(nt)+1}, v{ER+nt}, v{ER+nt}"]
    for nt in range(2):
        fill += [f"v_mul_f32 v{cA(nt)}, {fx(-KC)}, v{TM+nt}"]
        if EO == 2: fill += [f"v_mul_f32 v{cA(nt)+1}, {fx(-KC)}, v{TM+nt}"]
        fill += [f"v_mul_f32 v{TM+nt}, v{TM+nt}, v{TM+nt}",
                 f"v_mul_f32 v{TM+nt}, {fx(0.044715)}, v{TM+nt}", f"v_mul_f32 v{cB(nt)}, v{cA(nt)}, v{TM+nt}"]
        if EO == 2: fill += [f"v_mul_f32 v{cB(nt)+1}, v{cA(nt)}, v{TM+nt}"]
    sHF = SK
    fill += L(f"""
    v_bfe_u32 v{TM+8}, v0, 4, 1
    v_mul_u32_u24 v{TM+8}, 57344, v{TM+8}
    v_and_b32 v{TM+9}, 15, v0
    v_lshl_add_u32 v{TM+8}, v{TM+9}, 4, v{TM+8}
    v_lshrrev_b32 v{TM+9}, 5, v0
    v_lshl_add_u32 v{vHO}, v{TM+9}, 8, v{TM+8}
    s_mul_i32 s{sXB}, s{sKEY}, {4*56*1024}
    s_add_u32 s{sXB}, s{sXB}, s{sCSB}
    s_add_u32 s{sXB}, s{sXB}, {WS_H - WS_CS}
    s_add_u32 s{sWB}, s{sXB}, {2*56*1024}
    s_sub_u32 s{sHF}, s{sCSB}, {WS_CS}
    s_lshr_b32 s{sHF}, s{sHF}, {10 - FS}
    s_mul_i32 s{sT0}, s{sKEY}, {56 << FS}
    s_add_u32 s{sHF}, s{sHF}, s{sT0}
    s_add_u32 s{sHF}, s{sHF}, {WS_FH}
    """)
    a(mix(mfmas((EG, EU), (EB0, EB1), False, 2), fill))
    stamp("B8")
    if os_("po="): a(f"s_setprio {os_('po=')[3]}")
    if oi("pe", 0): a(f"s_setprio {oi('pe', 0)}")
    def epi(G, U, nt, rr, pk, plain=False):
        o = []
        t = {r: TM + 2 * i for i, r in enumerate(rr)}
        P = lambda x: vr(x, 2)
        s2 = (f"op_sel:[0,{nt},{nt}] op_sel_hi:[1,{nt},{nt}]", "op_sel_hi:[1,0,0]", "")[EO]
        AP, BP, SS = [f(nt) & ~1 for f in (cA, cB, cS)]
        if plain:
            e = [(t[r] + i, G + r + i, U + r + i) for r in rr for i in range(2)]
            o += [f"v_mul_f32 v{x}, v{g}, v{g}" for x, g, u in e]
            o += [f"v_fma_f32 v{x}, v{x}, v{BP}, v{AP}" for x, g, u in e]
            o += [f"v_mul_f32 v{x}, v{x}, v{g}" for x, g, u in e]
            o += mix([f"v_exp_f32 v{x}, v{x}" for x, g, u in e], [f"v_mul_f32 v{u}, v{u}, v{g}" for x, g, u in e])
            o += [f"v_fma_f32 v{x}, v{x}, v{SS}, v{SS}" for x, g, u in e]
            o += [f"v_rcp_f32 v{x}, v{x}" for x, g, u in e]
            o += [f"v_mul_f32 v{u}, v{u}, v{x}" for x, g, u in e]
            o += [f"v_cvt_pk_bf16_f32 v{pk+i}, v{U+r}, v{U+r+1}" for i, r in enumerate(rr)]
            return o
        o += [f"v_pk_mul_f32 {P(t[r])}, {P(G+r)}, {P(G+r)}" for r in rr]
        o += [f"v_pk_fma_f32 {P(t[r])}, {P(t[r])}, {P(BP)}, {P(AP)} {s2}" for r in rr]
        if BI:
            rr = list(rr); bt = [(rr[0], rr[1]), (rr[2], rr[3])]
            o += [f"v_pk_fma_f32 {P(t[r])}, {P(t[r])}, {P(G+r)}, {P(cS(0))}" for r in rr]
            ex = [f"v_exp_f32 v{t[r]+i}, v{t[r]+i} clamp" for r in rr for i in range(2)]
            ug = [f"v_pk_mul_f32 {P(U+r)}, {P(U+r)}, {P(G+r)}" for r in rr]
            ad = [f"v_pk_add_f32 {P(t[r])}, {P(t[r])}, {P(cS(1))}" for r in rr]
            M = [f"v_pk_mul_f32 {P(G+q)}, {P(t[p])}, {P(t[q])}" for p, q in bt]
            m = [f"v_mul_f32 v{G+p}, v{G+q}, v{G+q+1}" for p, q in bt]
            rc = [f"v_rcp_f32 v{G+p}, v{G+p}" for p, q in bt]
            cr = [f"v_pk_mul_f32 {P(U+x)}, {P(U+x)}, {P(t[y])}" for p, q in bt for x, y in ((p, q), (q, p))]
            N = [f"v_pk_mul_f32 {P(G+q)}, {P(G+q)}, {P(G+p)} op_sel:[1,0] op_sel_hi:[0,0]" for p, q in bt]
            fi = [f"v_pk_mul_f32 {P(U+x)}, {P(U+x)}, {P(G+q)}" for p, q in bt for x in (p, q)]
            cv = [f"v_cvt_pk_bf16_f32 v{pk+i}, v{U+r}, v{U+r+1}" for i, r in enumerate(rr)]
            o += [ex[0], ug[0], ex[1], ug[1], ex[2], ug[2], ex[3], ad[0], ex[4], ad[1], ug[3], ex[5], M[0], ex[6], m[0], ad[2],
                  ex[7], cr[0], rc[0], ad[3], cr[1], M[1], N[0], m[1], cr[2], rc[1], fi[0], fi[1], cr[3], N[1], cv[0], cv[1],
                  fi[2], fi[3], cv[2], cv[3]]
            return o
        o += [f"v_pk_mul_f32 {P(t[r])}, {P(t[r])}, {P(G+r)}" for r in rr]
        o += mix([f"v_exp_f32 v{t[r]+i}, v{t[r]+i}" for r in rr for i in range(2)],
                 [f"v_pk_mul_f32 {P(U+r)}, {P(U+r)}, {P(G+r)}" for r in rr])
        o += [f"v_pk_fma_f32 {P(t[r])}, {P(t[r])}, {P(SS)}, {P(SS)} {s2}" for r in rr]
        o += [f"v_rcp_f32 v{t[r]+i}, v{t[r]+i}" for r in rr for i in range(2)]
        o += [f"v_pk_mul_f32 {P(U+r)}, {P(U+r)}, {P(t[r])}" for r in rr]
        o += [f"v_cvt_pk_bf16_f32 v{pk+i}, v{U+r}, v{U+r+1}" for i, r in enumerate(rr)]
        return o
    HSP = ("sc1", "sc0 sc1", "sc1 nt", "sc0 sc1 nt", "", "nt")[oi("hsp", 0)]
    for nt in range(2):
        G = ACC + 16 * nt; U = ACC + 32 + 16 * nt
        for h in range(2):
            pk = TM + 8 + 4 * h
            seq = epi(G, U, nt, range(8 * h, 8 * h + 8, 2), pk, 2 * nt + h < oi('npl', 0))
            n = wepi[2 * nt + h]
            ex = WL[wi:wi + n]; wi += n
            q = 33 + 2 * nt + h
            if oi("hm", 21) == q: ex = ex + h_math
            if oi("hw", 24) == q: ex = ex + h_write
            if SRD == q: ex = ex + [[I(wvm="kf")] + ne(vKL) + [f"s_cselect_b32 s{sOK}, 0, 1"] + r_dma(24)]
            if SRD == q + 10: ex = [[I(wvm="kf")] + ne(vKL) + [f"s_cselect_b32 s{sOK}, 0, 1"] + r_dma(24)] + ex
            a(mix(seq, ex))
            so = sXB if nt == 0 else sWB
            a(I(f"buffer_store_dwordx4 {vr(pk,4)}, v{vHO}, {sr(SWS,4)}, s{so} offen offset:{512*h} {HSP}", vm="hs"))
            stamp(f"e{2*nt+h}")
    assert wi == NPRE
    a(f"s_branch {JOIN}")
    if IW:
        a("L_iwb:\nL_iwret:")
        if oi("iwg", -1) >= 0 or "iwy" in opt: a(f"s_cmp_lg_u32 s{sISG}, 0\ns_cbranch_scc1 L_iwr_g")
        if "iwna" not in opt: a("s_branch L_iwr_a")
    vq_join = list(a.vq)

    a(["s_nop 0"] * oi("pad", 0))
    a(f"{AUX}:")
    if "noaux" in opt: a(f"s_branch {END}")
    a.vq, a.lq = list(vq_pro), []
    vKa, vKb, TP, vT, vKS, KR, KT = 1, 2, 32, 6, 10, 48, 96
    sKO, sKL = sXB, sWB
    a(row_load())
    AXL = oi("axl", 0)
    a(["s_nop 7"] * (len(SCN) > 0) + sc_init)
    if AXL & 2: a(h_load(27))
    if AXL & 1: a(I(wvm="ep")); a(tag_math); a(row_math())
    if AXL & 4: a(I(wvm="*"))
    if oi("asl", 0): a(f"s_sleep {oi('asl', 0)}")
    a(f"""
    s_xor_b32 s{sCB}, s{sXCD}, s{sW}
    v_and_b32 v23, 1, v21
    v_lshlrev_b32 v23, 1, v23
    v_xor_b32 v23, v22, v23
    v_lshlrev_b32 v23, 4, v23
    v_lshl_add_u32 v{vKa}, v20, 10, v23
    {f"v_lshlrev_b32 v{vKa}, 4, v0" if "kvlin" in opt else ""}
    v_xor_b32 v{vKb}, 64, v{vKa}
    s_lshl_b32 s{sKO}, s{sRBL}, 3
    s_add_u32 s{sKO}, s{sKO}, s{sW}
    s_mov_b32 s{sKEY}, s{sKO}
    s_lshl_b32 s{sKO}, s{sKO}, 16
    s_lshl_b32 s{sT0}, s{sCB}, {13 if "kvlin" in opt else 7}
    s_add_u32 s{sKO}, s{sKO}, s{sT0}
    s_mul_i32 s{sKL}, s{sW}, 17408
    {f"s_cmp_eq_u32 s{sCB}, 3" if oi("k3f", 0) else ""}
    {"s_cbranch_scc1 L_k3a" if oi("k3f", 0) else ""}
    {"s_barrier" if oi("k3f", 0) else ""}
    {"L_k3a:" if oi("k3f", 0) else ""}
    s_mov_b32 m0, s{sKL}
    s_cmp_eq_u32 s{sKEY}, 0
    s_cbranch_scc1 L_halo0
    s_sub_u32 s{sT0}, s{sKO}, 8192
    buffer_load_dwordx4 v{vKa}, {sr(SK,4)}, s{sT0} offen lds
    s_branch L_halo1
    L_halo0:
    v_mov_b32 v40, 0
    v_mov_b32 v41, 0
    v_mov_b32 v42, 0
    v_mov_b32 v43, 0
    ds_write_b128 v{vL16}, v[40:43]
    L_halo1:
    """)
    def c3a():
        t = 150; PW = os0("c3v=", "wx"); o = []
        if "w" in PW: o += L(f"""
        s_and_b32 s{sT2}, s{sXCD}, 1
        s_mul_i32 s{sT2}, s{sT2}, 3
        s_add_u32 s{sT2}, s{sT2}, s{sRBL}
        s_and_b32 s{sT3}, s{sXCD}, 1
        s_lshl_b32 s{sT3}, s{sT3}, 2
        s_or_b32 s{sT3}, s{sT3}, s{sRBL}
        s_cmp_eq_u32 s{sT3}, 3
        s_cselect_b32 s{sT3}, 9, s{sW}
        s_cmp_gt_u32 s{sT3}, 3
        s_cbranch_scc1 L_c3a1
        s_and_b32 s{sT3}, s{sT2}, 1
        s_mul_i32 s{sT3}, s{sT3}, 3584
        s_lshl_b32 s{sT2}, s{sT2}, 9
        s_add_u32 s{sT2}, s{sT2}, s{sT3}
        s_andn2_b32 s{sT3}, 2, s{sXCD}
        s_add_u32 s{sT3}, s{sT3}, s{sWC}
        s_mul_i32 s{sT3}, s{sT3}, {128 * 3584}
        s_add_u32 s{sT2}, s{sT2}, s{sT3}
        v_mul_u32_u24 v{t}, 7168, v0
        s_bitcmp1_b32 s{sW}, 0
        s_cbranch_scc1 L_c3a0
        buffer_load_dword v{t+1}, v{t}, {sr(SWG,4)}, s{sT2} offen offset:384
        s_branch L_c3a1
        L_c3a0:
        buffer_load_dword v{t+1}, v{t}, {sr(SWU,4)}, s{sT2} offen offset:384
        L_c3a1:
        """)
        if "x" in PW: o += L(f"""
        s_andn2_b32 s{sT3}, 2, s{sXCD}
        s_xor_b32 s{sT2}, s{sWC}, 2
        s_or_b32 s{sT2}, s{sT2}, s{sT3}
        s_cbranch_scc1 L_c3a2
        s_lshl_b32 s{sT2}, s{sRB}, 1
        s_add_u32 s{sT2}, s{sT2}, s{sWR}
        s_lshl_b32 s{sT2}, s{sT2}, 16
        v_lshlrev_b32 v{t+3}, 10, v0
        buffer_load_dword v{t+4}, v{t+3}, {sr(SX,4)}, s{sT2} offen offset:384
        L_c3a2:
        """)
        return o
    C3A = oi("c3a", -1)
    k3b = [f"s_cmp_eq_u32 s{sCB}, 3", "s_cbranch_scc0 L_k3b", "s_barrier", "L_k3b:"]
    def kv_ld(m, b, tag):
        lb = (1 + b) if m == 0 else (9 + b)
        par = (lb & 1) if m == 0 else (b & 1)
        return [f"s_add_u32 m0, s{sKL}, {1024*lb}", f"s_add_u32 s{sT0}, s{sKO}, {(1024 if 'kvlin' in opt else 8192)*b}",
                I(f"buffer_load_dwordx4 v{vKb if par else vKa}, {sr(SV if m else SK,4)}, s{sT0} offen{NTK} lds", vm=tag)]
    for b in range(4):
        if C3A == b: a(c3a())
        a(kv_ld(0, b, "k0")); a(kv_ld(1, b, "k0"))
        if oi("k3f", 0) == b + 1: a(k3b)
    a(f"""
    v_and_b32 v23, 15, v0
    v_lshlrev_b32 v26, 3, v23
    s_lshl_b32 s{sT1}, s{sCB}, 9
    """)
    for cg in range(4):
        a(I(f"buffer_load_dwordx2 {vr(TP+2*cg,2)}, v26, {sr(SSH,4)}, s{sT1} offen offset:{128*cg}", vm="k0"))
    for b in range(4, 8):
        if C3A == b: a(c3a())
        a(kv_ld(0, b, "k1")); a(kv_ld(1, b, "k1"))
        if oi("k3f", 0) == b + 1: a(k3b)
    if C3A == 8: a(c3a())
    if not AXL & 2: a(h_load(27))
    stamp("iss", 4)
    IWP = oi("iwp", 0) if IW and "iwna" not in opt else -1
    if IWP == 0: a(walk("a"))
    a(f"""
    v_lshlrev_b32 v26, 7, v24
    v_lshl_add_u32 v26, v21, 10, v26
    v_lshl_add_u32 v26, v25, 3, v26
    v_lshrrev_b32 v27, 1, v24
    v_lshl_add_u32 v26, v27, 5, v26
    v_and_b32 v27, 1, v21
    v_lshl_add_u32 v26, v27, 6, v26
    v_add_u32 v{vT}, s{sKL}, v26
    v_xor_b32 v{vT+1}, 32, v{vT}
    v_xor_b32 v{vT+2}, 64, v{vT}
    v_xor_b32 v{vT+3}, 96, v{vT}
    v_lshrrev_b32 v26, 1, v23
    v_lshlrev_b32 v26, 13, v26
    v_and_b32 v27, 1, v0
    v_lshl_add_u32 v26, v27, 4, v26
    v_sub_u32 v27, 3, v21
    v_lshl_add_u32 v{vKS}, v27, 5, v26
    s_lshl_b32 s{sKO}, s{sCB}, 18
    s_lshl_b32 s{sT0}, s{sKEY}, 8
    s_sub_u32 s{sKO}, s{sKO}, s{sT0}
    s_add_u32 s{sKO}, s{sKO}, {WS_KV + 8192 - 256}
    """)
    if not AXL & 1: a(I(wvm="ep")); a(tag_math); a(row_math())
    stamp("rs", 1)
    if IWP == 3: a(walk("a"))
    def kv_read(hh, cg):
        r = KR + 10 * cg; t = f"kr{cg}"
        return [I(f"ds_read_b64_tr_b16 {vr(r,2)}, v{vT+cg} offset:{4096*hh+512}", lg=t),
                I(f"ds_read_b64_tr_b16 {vr(r+2,2)}, v{vT+(cg^2)} offset:{4096*hh+1024}", lg=t),
                I(f"ds_read_b64_tr_b16 {vr(r+4,2)}, v{vT+(cg^2)} offset:{4096*hh+1536}", lg=t),
                I(f"ds_read_b64_tr_b16 {vr(r+6,2)}, v{vT+cg} offset:{4096*hh+9216}", lg=t),
                I(f"ds_read_b64_tr_b16 {vr(r+8,2)}, v{vT+cg} offset:{4096*hh+9728}", lg=t)]
    def kv_math(hh, cg):
        r = KR + 10 * cg; q, u, w, pk = KT, KT + 8, KT + 16, KT + 24 + 4 * (cg & 1)
        o = [I(wlg=f"kr{cg}")]
        o += [f"v_alignbit_b32 v{q+i}, v{r+i}, v{r+i-1}, 16" for i in range(1, 6)]
        src = lambda t, back: (r if t & 1 else q) + 2 + t // 2 - back
        for t in (1, 3, 5, 7, 0, 2, 4, 6): o += [f"v_dot2_f32_bf16 v{u+t}, v{src(t,0)}, v{TP+2*cg}, 0"]
        for t in (1, 3, 5, 7, 0, 2, 4, 6): o += [f"v_dot2_f32_bf16 v{u+t}, v{src(t,1)}, v{TP+2*cg+1}, v{u+t}"]
        o += [f"v_and_b32 v{w+t}, 0xffff0000, v{r+6+t//2}" if t & 1 else f"v_lshlrev_b32 v{w+t}, 16, v{r+6+t//2}" for t in range(8)]
        o += [f"v_mul_f32 v{u+t}, v{u+t}, v{w+t}" for t in range(8)]
        o += [f"v_cvt_pk_bf16_f32 v{pk+e}, v{u+7-2*e}, v{u+6-2*e}" for e in range(4)]
        o += [f"s_add_u32 s{sT0}, s{sKO}, {65536*cg}",
              I(f"buffer_store_dwordx4 {vr(pk,4)}, v{vKS}, {sr(SWS,4)}, s{sT0} offen offset:{128*(1-hh)} sc1", vm="ks")]
        return o
    for hh in range(2):
        a(I(wvm=f"k{hh}", wlg="*"))
        stamp("kin", 5 + 2 * hh)
        for cg in range(4): a(kv_read(hh, cg))
        if hh == 0:
            for d in range(8): a(f"v_alignbit_b32 v{TP+d}, v{TP+d}, v{TP+d}, 16")
        for cg in range(4): a(kv_math(hh, cg))
        stamp("km", 6 + 2 * hh)
        if IWP == 1 and hh == 0: a(walk("a"))
    a(h_math); a(wf_addr)
    vKA2, vKL2 = 27, 28
    ld2 = f"buffer_load_dword v{vKL2}, v{vKA2}, {sr(SWS,4)}, s{sA} offen sc1"
    a(f"""
    s_lshl_b32 s{sT0}, s{sCB}, 5
    s_add_u32 s{sT0}, s{sT0}, s{sKEY}
    s_lshl_b32 s{sT0}, s{sT0}, 2
    s_add_u32 s{sT0}, s{sT0}, {WS_FKV}
    v_lshlrev_b32 v26, 10, v0
    v_lshlrev_b32 v{vKA2}, 3, v0
    s_lshl_b32 s{sA}, s{sRT2}, 9
    s_add_u32 s{sA}, s{sA}, {WS_RS + 4}
    """)
    a([I("s_mov_b64 exec, 3", wvm="*"), f"buffer_store_dword v{vTAG}, v26, {sr(SWS,4)}, s{sT0} offen sc1", "s_mov_b64 exec, -1"])
    stamp("kvf", 2)
    if IWP == 2: a(walk("a"))
    if "dmaonly" in opt or "g1only" in opt: a("s_branch L_prof")
    ck2 = [f"v_xor_b32 v{vFL}, s{sTAG}, v{vFL}", f"v_xor_b32 v{vKL2}, s{sTAG}, v{vKL2}", f"v_or_b32 v{vFL}, v{vFL}, v{vKL2}",
           f"v_cmp_ne_u32 vcc, 0, v{vFL}", "s_cmp_lg_u64 vcc, 0"]
    a("s_barrier")
    a(h_write)
    a(kf_addr); a(f"s_add_u32 s{sC}, s{sC}, 1024")
    stamp("wd", 3)
    a(spin("fwa", ap(wf_ld, 28, "apx") + ap(ld2, 64, "apx"), ck2))
    a(f"""
    s_cmp_lg_u32 s2, 0
    s_cbranch_scc1 L_ep_ok
    s_add_u32 s{sT0}, s{sM0X}, {WS_RS}
    """)
    a(spin("ep", [f"buffer_load_dwordx4 v[32:35], v{vL16}, {sr(SWS,4)}, s{sT0} offen sc1",
                  f"buffer_load_dwordx4 v[36:39], v{vL16}, {sr(SWS,4)}, s{sT0} offen offset:1024 sc1"],
           [f"v_xor_b32 v{r}, s{sTAG}, v{r}" for r in (33, 35, 37, 39)] +
           ["v_or3_b32 v33, v33, v35, v37", "v_or_b32 v33, v33, v39", "v_cmp_ne_u32 vcc, 0, v33", "s_cmp_lg_u64 vcc, 0"]))
    NA = oi("na", 8)
    a(WL[:NA])
    a(spin("kva", ap(kf_ld, 32, "apx"), ne(vKL)))
    a.vq = []
    a(r_dma(24)); a(WL[NA:NPRE]); a(I(wvm="R"))
    a(f"s_branch L_kvok")

    a(f"{JOIN}:")
    a.vq, a.lq = list(vq_join), []
    stamp("join")
    if oi("pe", 0) or (os_("po=") and os_("po=")[3] != "0"): a("s_setprio 0")
    okv = ("s%d" % sOK) if "nocv" in opt else "1"
    a(f"s_cmp_eq_u32 s{sOK}, {okv}\ns_cbranch_scc1 L_kvok")
    a(spin("kv", ap(kf_ld, 32, "apk"), ne(vKL)))
    sv = list(a.vq); a(r_dma(24)); a(I(wvm="*")); a.vq = sv
    a("L_kvok:")
    CA, AF, BF = 32, 64, 128
    vRU, vRH, vPW, vPR, vZW, vZR, vYA, vYR, vOO = 2, 3, 4, 10, 11, 12, 13, 14, 30
    vXF, XN, vRC = 20, 22, 6
    vXF = 1
    sCH, sWQ, sCVB, sRHO = SV, SV + 1, SV + 2, SV + 3
    sOQ = SSH
    a(f"""
    s_lshr_b32 s{sCH}, s{sW}, 2
    s_and_b32 s{sWQ}, s{sW}, 3
    s_mul_i32 s{sCVB}, s{sCH}, {CVCH}
    s_add_u32 s{sCVB}, s{sCVB}, {L_CV}
    s_lshl_b32 s{sT0}, s{sWQ}, 7
    s_add_u32 s{sT0}, s{sT0}, s{sCVB}
    s_add_u32 s{sT1}, s{sT0}, 480
    v_and_b32 v15, 15, v0
    v_and_b32 v16, 48, v0
    v_lshlrev_b32 v31, 5, v15
    v_sub_u32 v31, v16, v31
    v_add_u32 v{vRU}, s{sT1}, v31
    s_add_u32 s{sT1}, s{sT0}, {4608 - 28 + 4160 + 3072}
    v_and_b32 v31, 1, v0
    v_mul_u32_u24 v31, 4160, v31
    v_sub_u32 v31, v16, v31
    v_bfe_u32 v{vRH}, v0, 1, 3
    v_lshl_add_u32 v31, v{vRH}, 2, v31
    v_add_u32 v{vRH}, s{sT1}, v31
    """)
    KHF = oi("hf", 5)
    hf_st = [f"s_cmp_eq_u32 s{sISG}, 0", "s_cbranch_scc1 L_nohf", I(wvm="hs"),
             line(sHF), "L_nohf:"]
    HP = oi("hp", 0)
    if HP:
        pre = [f"s_xor_b32 s{sT0}, s{sXCD}, s{sWR}", f"s_bitcmp1_b32 s{sT0}, 0", "s_cbranch_scc1 L_nohf"]
        if HP == 1:
            pre += ["v_lshrrev_b32 v13, 4, v0", "v_mul_u32_u24 v13, 57344, v13", "v_lshl_add_u32 v13, v15, 6, v13",
                    f"buffer_load_dword v14, v13, {sr(SWS,4)}, s{sXB} offen sc1"]
        if HP == 2:
            pre += ["v_lshrrev_b32 v13, 3, v0", "v_mul_u32_u24 v13, 57344, v13", "v_and_b32 v14, 7, v0", "v_lshl_add_u32 v13, v14, 7, v13",
                    "s_mov_b32 exec_hi, 0", f"buffer_load_dword v14, v13, {sr(SWS,4)}, s{sXB} offen sc1", "s_mov_b32 exec_hi, -1"]
        hf_st = hf_st[:-1] + pre + hf_st[-1:]
    if KHF < 0: a(hf_st); stamp("hflag")
    AM = oi("am", 0)
    a(f"s_cmp_eq_u32 s{sISG}, 0")
    if AM: a(f"s_cselect_b32 s{sOK}, 0, 0xff")
    a("s_cbranch_scc1 L_nowr")
    a(I(wvm="R"))
    a("L_nowr:")
    a(I(wlg="*"))
    if "noc1" not in opt: a("s_barrier")
    stamp("c1")
    a(f"s_or_b32 s{sT0}, s2, s{sW}\ns_cbranch_scc1 L_noep")
    a(one(f"buffer_store_dword v{vTAG}, off, {sr(SWS,4)}, 0 offset:{WS_EPOCH} sc1"))
    a("L_noep:")
    order = [(0, p) for p in range(7, -1, -1)] + [(1, p) for p in range(8)]
    def uread(rr, d): return I(f"ds_read_b128 {vr(AF+32*rr+4*d,4)}, v{vRU} offset:{512*(7-d)+64*rr}", lg=f"a{rr}{d}")
    def hread(k):
        rr, p = order[k]; o = 128 * (p & 1) + 16 * rr; b = BF + 4 * (k % 4)
        g = []
        if rr == 0 and p in (5, 3, 1): g += [f"v_subrev_u32 v{vRH}, 1024, v{vRH}"]
        if rr == 1 and p in (2, 4, 6): g += [f"v_add_u32 v{vRH}, 1024, v{vRH}"]
        return g + [I(f"ds_read2_b32 {vr(b,2)}, v{vRH} offset0:{o} offset1:{o+1}", lg=f"b{k}"),
                    I(f"ds_read2_b32 {vr(b+2,2)}, v{vRH} offset0:{o+2} offset1:{o+3}", lg=f"b{k}")]
    PC, PG = os_("pc="), os_("pg=")
    if PC: a(f"s_setprio {PC[0]}")
    for k in range(3): a(hread(k)); a(uread(0, k))
    for d in range(3, 8): a(uread(0, d))
    XV = 6
    fin_addr = L(f"""
        s_and_b32 s{sRHO}, s{sCT2}, 3
        s_lshl_b32 s{sT0}, s{sRT2}, 3
        s_add_u32 s{sT0}, s{sT0}, s{sW}
        s_lshl_b32 s{sOQ}, s{sT0}, 13
        s_lshl_b32 s{sT1}, s{sCT2}, 7
        s_add_u32 s{sOQ}, s{sOQ}, s{sT1}
        s_lshl_b32 s{sT0}, s{sT0}, 6
        s_add_u32 s{sOQ+1}, s{sT0}, {WS_RS}
        v_and_b32 v31, 3, v0
        v_lshrrev_b32 v1, 5, v0
        v_lshl_add_u32 v31, v1, 2, v31
        v_and_b32 v{vOO}, 28, v0
        v_lshlrev_b32 v{vOO}, 2, v{vOO}
        v_lshl_add_u32 v{vOO}, v31, 10, v{vOO}
        v_lshlrev_b32 v1, 3, v31
        """)
    fin_ld = [I(f"buffer_load_dwordx4 {vr(XV,4)}, v{vOO}, {sr(SX,4)}, s{sOQ} offen", vm="xt"),
              I(f"buffer_load_dword v{XN+7}, v1, {sr(SWS,4)}, s{sOQ+1} offen sc1", vm="xt")]
    if prof and "nofr" in opt: fin_ld = fin_ld[:1]
    if prof and "nofx" in opt: fin_ld = fin_ld[1:]
    if "frp" in opt: fin_ld[-1].text = fin_ld[-1].text.replace(" sc1", "")
    if "to" in opt: fin_ld = [I(f"buffer_load_dword v{XN+6}, off, {sr(SOUT,4)}, s{sOQ}", vm="xt")] + fin_ld
    vZS = 2
    def zsc(r):
        if not BI: return []
        return [f"v_mul_f32 v{vZS}, {fx(2.0 ** -ESH)}, v{r}", f"v_mul_f32 v{vZS}, v{vZS}, v{r}", f"v_mul_f32 v{r}, v{vZS}, v{r}",
                f"v_mul_f32 v{vZS}, {fx(-1.4426950408889634)}, v{vZS}"]
    def unpack(d, x): return [f"v_and_b32 v{d+e}, 0xffff0000, v{x+e//2}" if e & 1 else f"v_lshlrev_b32 v{d+e}, 16, v{x+e//2}" for e in range(8)]
    xn_math = ([I(f"v_lshlrev_b32 v20, 16, v{XN+7}", wvm="xt"), f"v_and_b32 v21, 0xffff0000, v{XN+7}", "v_rcp_f32 v20, v20"] +
               unpack(XN, XV) + [f"v_add_f32 v{XN+e}, v{XN+e}, v21" for e in range(8)] + zsc(20) +
               [f"v_mul_f32 v{XN+e}, v{XN+e}, v20" for e in range(8)])
    p_addr = L(f"""
        v_bfe_u32 v20, v0, 1, 2
        v_bfe_u32 v21, v0, 3, 1
        v_xor_b32 v20, v20, v21
        v_lshlrev_b32 v20, 4, v20
        v_xor_b32 v20, v20, v16
        v_lshl_add_u32 v20, v15, 6, v20
        s_lshl_b32 s{sT0}, s{sW}, 13
        v_add_u32 v{vPW}, s{sT0}, v20
        v_bfe_u32 v20, v0, 2, 2
        v_bfe_u32 v21, v0, 4, 1
        v_xor_b32 v20, v20, v21
        v_lshlrev_b32 v20, 4, v20
        v_lshlrev_b32 v21, 5, v0
        v_xor_b32 v20, v20, v21
        s_lshl_b32 s{sT0}, s{sCH}, 15
        s_lshl_b32 s{sT1}, s{sWQ}, 11
        s_add_u32 s{sT0}, s{sT0}, s{sT1}
        v_add_u32 v{vPR}, s{sT0}, v20
        """)
    HB, ZA, NS = 64, 32, 16
    sH1, sH2, sHQ = sXB, sWB, sKEY
    def HR(n): return HB + 4 * (n % NS if n % NS < 8 else 23 - n % NS)
    sMK = sA
    def hload(n, mask=False):
        qd, ks = divmod(n, 7)
        g = []
        if ks == 0:
            g += [f"s_xor_b32 s{sT3}, s{sRHO}, {qd}", f"s_mul_i32 s{sT3}, s{sT3}, 57344", f"s_add_u32 s{sH1}, s{sHQ}, s{sT3}",
                  f"s_sub_u32 s{sH2}, s{sH1}, s{sRB}"]
        t = I(f"buffer_load_dwordx4 {vr(HR(n),4)}, v{vL16}, {sr(SWS,4)}, s{sH1 if ks < 4 else sH2} offen offset:{(ks&3)*1024} sc1", vm=f"h{n}")
        if "hx2" in opt: return g + [f"s_mov_b64 exec, {sr(sMK,2)}" if mask else "s_nop 0", "s_mov_b32 exec_hi, 0", t, "s_mov_b64 exec, -1"]
        if "hx1" in opt: t = I(t.text.replace("dwordx4 " + vr(HR(n),4), "dword " + vr(HR(n),1)).replace(f"v{vL16},", "v15,"), vm=f"h{n}")
        return g + ([f"s_mov_b64 exec, {sr(sMK,2)}", t, "s_mov_b64 exec, -1"] if mask and "nomask" not in opt else [t])
    def again(n1):
        sv = list(a.vq)
        for n in range(n1): a(hload(n))
        a.vq = sv
    h_addr = L(f"""
        s_mul_i32 s{sHQ}, s{sRT2}, {4*56*1024}
        s_mul_i32 s{sT1}, s{sW}, 7168
        s_add_u32 s{sHQ}, s{sHQ}, s{sT1}
        s_mul_i32 s{sT1}, s{sHI}, 3072
        s_add_u32 s{sHQ}, s{sHQ}, s{sT1}
        s_add_u32 s{sHQ}, s{sHQ}, {WS_H}
        s_mul_i32 s{sRB}, s{sHI}, 7168
        s_sub_u32 s{sRB}, s{sRB}, 4096
        s_lshl_b32 s{sE}, s{sRT2}, 3
        s_add_u32 s{sE}, s{sE}, s{sW}
        s_mul_i32 s{sE}, s{sE}, {7 << FS}
        s_add_u32 s{sE}, s{sE}, {WS_FH + 4}
        v_min_u32 v{vFA}, 6, v0
        v_lshlrev_b32 v{vFA}, {FS}, v{vFA}
        """)
    KH, KR_, KA, KB = oi("kh", 8), oi("kq", 3), oi("ka", 6), oi("kb", 11)
    KHY = oi("khy", -1)
    if KHY >= 0: KH = KB = 99
    assert KHY >= 0 or (8 <= KH <= 15 and KA < KH <= KB and KHF < KH)
    PM = [o[3:].replace("_", " ") for o in opt if o.startswith("pm=")]
    def poll(at, vm=None, am=False):
        if not at:
            t = wf_ld.replace("sc1", PM[0]) if PM else wf_ld
            return [I(t, vm=vm)]
        return [f"v_mov_b32 v{vFL}, 0"] + ([f"s_mov_b32 exec_lo, s{sOK}", "s_mov_b32 exec_hi, 0"] if am else ["s_mov_b64 exec, 0xff"]) + [
                I(f"buffer_atomic_or v{vFL}, v{vFA}, {sr(SWS,4)}, s{sE} offen sc0 sc1", vm=vm), "s_mov_b64 exec, -1"]
    def ne8(at): return [f"v_cmp_ne_u32 vcc, s{sTAG}, v{vFL}", "s_and_b32 vcc_lo, vcc_lo, 0xff"] if at else ne(vFL)
    AH, AY = "aph" in opt or "apa" in opt, "apy" in opt or "apa" in opt
    hf_ld = poll(AH)
    hn = 0
    NB = oi("nb", NS); YL = [int(x, 36) for x in os_("yl=", "0000").ljust(6, "0")]; NY = NB + sum(YL); GQ = oi("gq", 2)
    assert NY <= NS
    assert KHY < 0 or (NB == 0 and sum(YL[:KHY]) == 0)
    def yl(i):
        if KA == 17 + i: a(poll(AH, "hf"))
        if i == KHY: a([I(wvm="hf")] + ne8(AH) + [f"s_cselect_b64 {sr(sMK,2)}, 0, -1"])
        for n in range(NB + sum(YL[:i]), NB + sum(YL[:i + 1])): a(hload(n, True))
    def pwrite(j): return I(f"ds_write_b128 v{vPW}, {vr(CA+4*j,4)} offset:{1024*j}", lg="pw")
    sYS = sCB
    if "nocv" in opt:
        a(fin_addr); a(h_addr)
        if "wtf" in opt: a(WL[NPRE:]); a(fin_ld)
        a(hf_st)
        if "bar2" in opt: a("s_barrier")
        if "wtf" not in opt: a(WL[NPRE:]); a(fin_ld)
        stamp("k1")
        a(xn_math)
        if "blind" not in opt: a(spin("hf0", [f"s_sleep {oi('sl', 0)}", hf_ld], ne8(AH)))
        stamp("k11")
        a.vq = []
        for n in range(NS): a(hload(n))
        a(f"s_mov_b32 s{sMK}, -1")
        a(I(wlg="*"))
        stamp("c3")
    else:
        for k, (rr, p) in enumerate(order):
            seq = []
            for j in range(p, 8):
                c = "0" if (rr == 0 and j == p) else vr(CA + 4 * j, 4)
                seq.append(I(f"v_mfma_f32_16x16x32_bf16 {vr(CA+4*j,4)}, {vr(BF+4*(k%4),4)}, {vr(AF+32*rr+4*(j-p),4)}, {c}",
                             wlg=[f"a{rr}{j-p}", f"b{k}"]))
            fill = []
            if k == 1: fill += [fin_addr]
            WK = os_("wk=")
            if WK:
                assert sum(int(x) for x in WK) == 28 - NPRE
                w0 = NPRE + sum(int(x) for x in WK[:k]); fill += WL[w0:w0 + int((WK + "0" * 16)[k])]
            elif 1 <= k <= 6: fill += part(WL[NPRE:], k - 1, 6)
            if k == oi("kx", 3): fill += fin_ld
            if 4 <= k <= 7: fill += [uread(1, 2 * (k - 4)), uread(1, 2 * (k - 4) + 1)]
            if k in (6, 7): fill += part(p_addr, k - 6, 2)
            if 8 <= k <= 11 and "xg" not in opt: fill += part(xn_math, k - 8, 4)
            if k >= 9: fill = fill[:2] + [pwrite(p - 1)] + fill[2:]
            if k == 2: fill += [h_addr]
            if k == KHF and "hb" not in opt: fill += [hf_st]
            if k == KA and "hb" not in opt: fill += [poll(AH, "hf", AM & 1)]
            if k == KH and "hb" in opt: a(f"s_mov_b64 {sr(sMK,2)}, -1")
            elif k == KH: a([I(wvm="hf")] + ne8(AH) + [f"s_cselect_b64 {sr(sMK,2)}, 0, -1"])
            if k == KB: fill += [[f"s_cmp_lg_u32 s{sMK}, 0", "s_cbranch_scc1 L_nof2", poll(AH, None, AM & 2), "L_nof2:"]]
            if k >= KH:
                e = min(hn + KR_, k, NB); hl = [hload(n, True) for n in range(hn, e)]; hn = max(hn, e)
                fill = mix(fill, hl) if len(fill) >= len(hl) else mix(hl, fill)
            a(mix(seq, fill))
            if k + 3 < 16: a(hread(k + 3))
            if PC and PC[k + 1] != PC[k]: a(f"s_setprio {PC[k + 1]}")
            stamp(f"k{k}")
        a(f"""
        s_lshl_b32 s{sT1}, s{sWQ}, 10
        s_sub_u32 s{sT1}, s{sCVB}, s{sT1}
        s_add_u32 s{sT1}, s{sT1}, 4080
        v_sub_u32 v20, s{sT1}, v{vL16}
        v_xor_b32 v21, 16, v{vPR}
        """)
        a(pwrite(7))
        for n in range(hn, NB): a(hload(n, True))
        if KHY < 0:
            a([f"s_cmp_lg_u32 s{sMK}, 0", "s_cbranch_scc1 L_hlate", "s_waitcnt vmcnt(0)"] + ne8(AH) +
              [f"s_cselect_b64 {sr(sMK,2)}, 0, -1", "s_cbranch_scc1 L_hlate"])
            again(NB)
            a("L_hlate:")
        sYS = sCB
        a(I(wlg="*"))
        a("s_barrier")
        stamp("c3")
        if KA == 16: a(poll(AH, "hf"))
        if "py" in opt: a("s_setprio 3")
        PR, vU, YA = 32, 128, 132
        a(I(f"ds_read_b128 {vr(vU,4)}, v20", lg="su"))
        for k in range(4):
            a(I(f"ds_read_b128 {vr(PR+8*k,4)}, v{vPR} offset:{8192*k}", lg=f"p{k}"))
            a(I(f"ds_read_b128 {vr(PR+8*k+4,4)}, v21 offset:{8192*k}", lg=f"p{k}"))
        a(f"""
        s_lshl_b32 s{sT1}, s{sCH}, 4
        s_lshr_b32 s{sD}, s{sD}, s{sT1}
        s_lshl_b32 s{sD}, s{sD}, 16
        s_lshl_b32 s{sT1}, s{sCP}, 13
        s_lshl_b32 s{sT3}, s{sW}, 10
        s_add_u32 s{sT1}, s{sT1}, s{sT3}
        s_add_u32 s{sT1}, s{sT1}, {WS_YT}
        s_lshl_b32 s{sYS}, s{sWQ}, 9
        s_lshl_b32 s{sT3}, s{sCP}, 1
        s_add_u32 s{sYS}, s{sYS}, s{sT3}
        s_add_u32 s{sYS}, s{sYS}, s{sCH}
        s_lshl_b32 s{sT3}, s{sYS}, 7
        s_and_b32 s{sT3}, s{sT3}, 0x380
        v_xor_b32 v31, s{sT3}, v{vL16}
        s_lshl_b32 s{sYS}, s{sYS}, {FS}
        s_add_u32 s{sYS}, s{sYS}, {WS_FY}
        """)
        yl(0)
        stamp("y0")
        a(I(wlg="su"))
        stamp("y1")
        for e in range(4):
            a(f"v_and_b32 v{YA+6-2*e}, 0xffff0000, v{vU+e}\nv_lshlrev_b32 v{YA+7-2*e}, 16, v{vU+e}")
        yl(1)
        a(I(wlg="p0"))
        for e in range(8): a(f"v_fma_f32 v{YA+e}, v{YA+e}, s{sD}, v{PR+e}")
        yl(2)
        a(I(wlg="p2"))
        def add8(d, x):
            if "ynp" in opt:
                for e in range(8): a(f"v_add_f32 v{d+e}, v{d+e}, v{x+e}")
            else:
                for e in range(0, 8, 2): a(f"v_pk_add_f32 {vr(d+e,2)}, {vr(d+e,2)}, {vr(x+e,2)}")
        add8(PR + 8, PR + 16)
        yl(3)
        a(I(wlg="p3"))
        stamp("y2")
        a(f"s_lshl_b32 s{sT3}, s{sW}, 2\ns_add_u32 s{sT3}, s{sT3}, {L_CNT}\nv_mov_b32 v20, s{sT3}")
        a(I(f"ds_write_b32 v20, v{vTAG}", lg="cw"))
        add8(YA, PR + 24)
        add8(YA, PR + 8)
        for e in range(4): a(f"v_cvt_pk_bf16_f32 v{vU+e}, v{YA+2*e}, v{YA+2*e+1}")
        stamp("y3")
        yl(4)
        a(I(f"buffer_store_dwordx4 {vr(vU,4)}, v31, {sr(SWS,4)}, s{sT1} offen sc1", vm="ys"))
        yl(5)
    stamp("ys")
    if PG or "py" in opt: a(f"s_setprio {PG[0] if PG else 0}")
    a(f"s_cmp_lg_u32 s{sMK}, 0\ns_cbranch_scc1 L_hgo")
    a(spin("hf", [hf_ld], ne8(AH)))
    stamp("hsp")
    again(NY)
    hn = NY
    a(line(sYS))
    a("L_hgo:")
    stamp("hok")
    sYA, sYF, sSEL = sMO, sE, SK
    YO = "yo" in opt
    sYW = sMO + 1 if YO else sW
    g2_addr = L(f"""
    v_lshrrev_b32 v20, 4, v0
    s_lshl_b32 s{sT1}, s{sRBL}, 2
    v_xor_b32 v21, v20, v15
    v_xor_b32 v21, s{sT1}, v21
    v_lshlrev_b32 v21, 4, v21
    v_lshl_add_u32 v21, v15, 8, v21
    s_lshl_b32 s{sT1}, s{sW}, 12
    v_add_u32 v{vZW}, s{sT1}, v21
    s_lshl_b32 s{sT1}, s{sW}, 1
    v_lshrrev_b32 v1, 5, v0
    v_add_u32 v21, s{sT1}, v1
    v_and_b32 v20, 3, v0
    v_xor_b32 v31, s{sRHO}, v20
    v_lshrrev_b32 v{vZR}, 1, v0
    v_and_b32 v{vZR}, 14, v{vZR}
    v_xor_b32 v{vZR}, v{vZR}, v21
    v_xor_b32 v{vZR}, v{vZR}, v31
    v_lshlrev_b32 v{vZR}, 4, v{vZR}
    v_lshl_add_u32 v{vZR}, v21, 8, v{vZR}
    s_mov_b32 s{sT1}, {sum((L_Z[q] >> 15) << (8 * q) for q in range(4))}
    v_lshlrev_b32 v31, 3, v31
    v_bfe_u32 v31, s{sT1}, v31, 8
    v_lshl_add_u32 v{vZR}, v31, 15, v{vZR}
    v_bfe_u32 v31, v0, 4, 1
    v_lshl_add_u32 v20, v31, 2, v20
    v_xor_b32 v21, s{sW}, v20
    v_lshlrev_b32 v21, 4, v21
    v_lshl_add_u32 v21, v1, 3, v21
    v_lshl_add_u32 v21, v20, 10, v21
    v_bfe_u32 v31, v0, 2, 2
    v_lshl_add_u32 v21, v31, 7, v21
    v_add_u32 v{vYR}, {L_Y}, v21
    v_and_b32 v21, 7, v0
    {f"s_lshl_b32 s{sYW}, s{sW}, 1" if YO else ""}
    v_xor_b32 v20, s{sYW}, v21
    v_lshlrev_b32 v20, 4, v20
    v_lshrrev_b32 v31, 3, v0
    v_lshl_add_u32 v20, v31, 12, v20
    s_and_b32 s{sT1}, s{sRT2}, 7
    v_xor_b32 v31, s{sT1}, v31
    v_lshl_add_u32 v{vYA}, v31, 7, v20
    v_lshlrev_b32 v{vFA}, {FS}, v{15 if YO else 21}
    v_lshlrev_b32 v1, 2, v21
    v_add_u32 v1, {L_CNT}, v1
    s_lshl_b32 s{sT1}, s{sCT2}, 3
    s_add_u32 s{sT1}, s{sT1}, s{sYW}
    s_lshl_b32 s{sYA}, s{sT1}, 15
    s_and_b32 s{sT0}, s{sRT2}, 24
    s_lshl_b32 s{sT0}, s{sT0}, 7
    s_add_u32 s{sYA}, s{sYA}, s{sT0}
    s_add_u32 s{sYA}, s{sYA}, {WS_YT}
    s_lshl_b32 s{sYF}, s{sT1}, {FS + 3}
    s_lshr_b32 s{sT0}, s{sRT2}, 3
    s_lshl_b32 s{sT0}, s{sT0}, {FS + 9}
    s_add_u32 s{sYF}, s{sYF}, s{sT0}
    s_add_u32 s{sYF}, s{sYF}, {WS_FY + 4}
    s_mov_b32 s{sSEL}, {fx(-1.4426950408889634)}
    s_mov_b32 s{sSEL+1}, s{sSEL}
    s_mov_b32 s{sSEL+2}, 1.0
    s_mov_b32 s{sSEL+3}, 1.0
    s_lshl_b32 s{sT0}, s{sYW}, 10
    s_add_u32 m0, s{sT0}, {L_Y}
    """)
    ZT, XF, YR, YF = 64, 128, 136, 32
    def zwrite(qd):
        hi, lo = L_Z[qd] & ~0xffff, L_Z[qd] & 0xffff
        return [[f"v_xor_b32 v20, {hi + 64*mt + 16*qd}, v{vZW}",
                 I(f"ds_write_b128 v20, {vr(ZA+16*(qd&1)+4*mt,4)} offset:{lo}", lg="zw")] for mt in range(4)]
    xn_g = ([f"v_lshlrev_b32 v16, 16, v{XN+7}", f"v_and_b32 v4, 0xffff0000, v{XN+7}", "v_rcp_f32 v16, v16"] +
            [f"v_add_f32 v{XN+e}, v{XF+e}, v4" for e in range(8)] + zsc(16) + [f"v_mul_f32 v{XN+e}, v{XN+e}, v16" for e in range(8)])
    NYF, NYP, NYC = oi("nyf", 8), oi("nyp", 16), oi("nyc", 21)
    NG, ZS = oi("ng", 6), oi("zs", 1)
    y_ld = f"buffer_load_dwordx4 v{vYA}, {sr(SWS,4)}, s{sYA} offen sc1 lds"
    if YO:
        y_ld = [y_ld, f"v_xor_b32 v{vFL}, 16, v{vYA}", "s_add_u32 m0, m0, 1024", f"s_add_u32 s{sYA}, s{sYA}, 32768",
                y_ld.replace(f"v{vYA},", f"v{vFL},")]
    def wide(x): return [[y.replace("0xff", "0xffff") if isinstance(y, str) else y for y in x]] if YO else x
    cn_ld = "ds_read_b32 v31, v1"
    cn_ck = ["v_cmp_eq_u32 vcc, 0, v31", "s_cmp_lg_u64 vcc, 0", "s_cbranch_scc0 L_cn_ok"]
    for n in range(28):
        qd, ks = divmod(n, 7)
        a(I(wvm=[f"h{n}", f"wd{ks}"]))
        if n == NYF: a(line(sYS, wvm="ys", vm="yf"))
        if n == 22:
            a([I(wlg="cn")] + cn_ck + [f"s_mov_b32 s{sCNT}, {SPIN}", "L_cn_loop:", cn_ld, "s_waitcnt lgkmcnt(0)"] + cn_ck +
              [f"s_sub_u32 s{sCNT}, s{sCNT}, 1", "s_cbranch_scc0 L_cn_loop", "L_cn_ok:"])
        if ks == 0 and qd >= 2: a(I(wlg="zw"))
        seq = []
        for mt in range(4):
            d = ZA + 16 * (qd & 1) + 4 * mt
            c = "0" if ks == 0 else vr(d, 4)
            seq.append(f"v_mfma_f32_16x16x32_bf16 {vr(d,4)}, {vr(WDF(4*ks+mt),4)}, {vr(HR(n),4)}, {c}")
        fill = []
        if qd >= 1 and 1 <= ks <= ZS: fill = part(zwrite(qd - 1), ks - 1, ZS)
        if n < NG: fill = part(g2_addr, n, NG)
        if n == 20: fill += [I(cn_ld, lg="cn")]
        if n in (12, 13): fill += part(unpack(XF, XV), n - 12, 2)
        if "xg" in opt and n in (17, 18, 19, 24, 25, 26): fill += part(xn_g, (17, 18, 19, 24, 25, 26).index(n), 6)
        if n == 27: fill += [f"v_xor_b32 v21, 16, v{vZR}"]
        if n == NYC and "yb" in opt: fill = [[f"s_mov_b32 s{sMK}, -1", I(y_ld, vm="yl")]] + fill
        elif n == NYC and YO:
            fill = [[f"s_cmp_ge_u32 s{sW}, 4", f"s_cselect_b32 s{sMK}, -1, 0", "s_cbranch_scc1 L_ylate", "s_waitcnt vmcnt(0)"] + wide(ne8(AY)) +
                    [f"s_cselect_b32 s{sMK}, 0, -1", "s_cbranch_scc1 L_ylate", y_ld, "L_ylate:"]] + fill
        elif n == NYC:
            fill = [[I(wvm="yp")] + ne8(AY) + [f"s_cselect_b32 s{sMK}, 0, -1", "s_cbranch_scc1 L_ylate", y_ld, "L_ylate:"]] + fill
        a(mix(seq, fill))
        GS = os_("gs=")
        e = min(28, n + 1 + NS, hn + (int(GS[n % len(GS)]) if GS else GQ))
        for m in range(hn, e): a(hload(m))
        hn = e
        assert hn > min(n + 1, 27) or n == 27
        if n == NYP and YO: a([I(wvm="*"), f"s_cmp_ge_u32 s{sW}, 4", "s_cbranch_scc1 L_nyp", wide(poll(AY)), "L_nyp:"])
        elif n == NYP and "yb" not in opt: a(poll(AY, "yp"))
        if PG and PG[n + 1] != PG[n]: a(f"s_setprio {PG[n + 1]}")
        stamp(f"n{n}")
    a(zwrite(3))
    stamp("g2")
    a(f"s_cmp_lg_u32 s{sMK}, 0\ns_cbranch_scc1 L_ygo")
    a(spin("yf", wide(poll(AY)), wide(ne8(AY))) + [y_ld, "L_ygo:"])
    stamp("yok")
    a(I(wvm="*", wlg="*"))
    a("s_barrier")
    stamp("bf")
    P2 = lambda x: vr(x, 2)
    a(I(f"ds_read_b64_tr_b16 {P2(YR)}, v{vYR}", lg="yr"))
    a(I(f"ds_read_b64_tr_b16 {P2(YR+2)}, v{vYR} offset:512", lg="yr"))
    def zread(k): return [I(f"ds_read_b128 {vr(ZT+8*k+4*h,4)}, v{21 if h else vZR} offset:{4096*k}", lg=f"z{k}") for h in range(2)]
    for k in range(6): a(zread(k))
    a(I(wlg="yr")); a(unpack(YF, YR))
    a(zread(6)); a(zread(7))
    for e in range(0, 8, 2): a(f"v_pk_mul_f32 {P2(XN+e)}, {P2(XN+e)}, {P2(YF+e)}")
    stamp("f0")
    for k in range(1, 8):
        a(I(wlg=f"z{k}"))
        for e in range(0, 8, 2): a(f"v_pk_add_f32 {P2(ZT+e)}, {P2(ZT+e)}, {P2(ZT+8*k+e)}")
    stamp("f1")
    for e in range(0, 8, 2): a(f"v_pk_mul_f32 {P2(YF+e)}, {P2(ZT+e)}, " + (f"{P2(vZS)} op_sel_hi:[1,0]" if BI else sr(sSEL,2)))
    a(mix([f"v_exp_f32 v{YF+e}, v{YF+e}" for e in range(8)],
          [f"v_pk_mul_f32 {P2(XN+e)}, {P2(XN+e)}, {P2(ZT+e)}" for e in range(0, 8, 2)]))
    for e in range(0, 8, 2): a(f"v_pk_add_f32 {P2(YF+e)}, {P2(YF+e)}, {sr(sSEL+2,2)}")
    for e in range(8): a(f"v_rcp_f32 v{YF+e}, v{YF+e}")
    for e in range(0, 8, 2): a(f"v_pk_fma_f32 {P2(XF+e)}, {P2(XN+e)}, {P2(YF+e)}, {P2(XF+e)}")
    for e in range(4): a(f"v_cvt_pk_bf16_f32 v{YR+e}, v{XF+2*e}, v{XF+2*e+1}")
    stamp("f2")
    a(f"buffer_store_dwordx4 {vr(YR,4)}, v{vOO}, {sr(SOUT,4)}, s{sOQ} offen sc0 sc1")
    if prof:
        stamp("st")
        if "endw" in opt: a("s_waitcnt vmcnt(0)")
        a("L_prof:")
        stamp("end")
        a(f"""
        s_waitcnt lgkmcnt(0)
        s_lshl_b32 s{sT0}, s2, 3
        s_add_u32 s{sT0}, s{sT0}, s{sW}
        s_lshl_b32 s{sT0}, s{sT0}, 6
        s_add_u32 s{sT0}, s{sT0}, {WS_PROF}
        """)
        if "dbg" in opt:
            n = len(stamps)
            a(f"s_load_dwordx2 {sr(SX,2)}, s[0:1], 88\ns_mov_b32 s{SX+2}, 256\ns_waitcnt lgkmcnt(0)\ns_mov_b64 exec, 1")
            a(f"s_not_b32 s{sT1}, s{PROFS[0]}\nv_mov_b32 v1, s{sT1}\nbuffer_atomic_umax v1, off, {sr(SX,4)}, 0")
            a(f"v_mov_b32 v2, s{PROFS[n-1]}\nbuffer_atomic_umax v2, off, {sr(SX,4)}, 0 offset:60")
            a(f"s_cmp_lt_u32 s2, 32\ns_cbranch_scc1 {END}")
            for i in range(n):
                if "avg" in opt:
                    a(f"s_sub_u32 s{sT1}, s{PROFS[i]}, s{PROFS[0]}\nv_mov_b32 v{3+i}, s{sT1}\nbuffer_atomic_add v{3+i}, off, {sr(SX,4)}, 0 offset:{4+4*i}")
                else:
                    a(f"v_mov_b32 v{3+i}, s{PROFS[i]}\nbuffer_atomic_umax v{3+i}, off, {sr(SX,4)}, 0 offset:{4+4*i}")
            a(f"s_branch {END}")
        for i in range(len(stamps)):
            a(f"v_mov_b32 v1, s{PROFS[i]}")
            a(f"buffer_store_dword v1, off, {sr(SWS,4)}, s{sT0} offset:{4*i}")
    a(f"{END}:\ns_endpgm")
    def post(b):
        import al
        if oi("al", -1) >= 0:
            b, st = al.align(b, oi("al", 0)); print(st)
        if "sh4" in opt: b = ["    s_nop 0"] + b
        if "mva" in opt:
            i0 = b.index("    s_branch " + JOIN); i1 = b.index(JOIN + ":")
            assert b[i1 - 1].strip() == "s_branch L_kvok" and b[-1].strip() == "s_endpgm"
            b = b[:i0] + b[i1:] + b[i0 + 1:i1] + ["    s_endpgm"]
        if IW:
            sz = al.sizes(b); pos = []; off = 0; on = False; safe = True; nxt = 0
            for i, l in enumerate(b):
                t = l.strip()
                if t in ("L_iwa:", os0("iws=", JOIN) + ":"): on = True; nxt = off
                if t in ("L_iwb:", END + ":", "L_prof:"): on = False
                if on and safe and off >= nxt and sz[i] and not b[i - 1].strip().startswith("s_nop"):
                    pos.append(i); off += 4; nxt = (off // IW + 1) * IW
                if re.match(r"s_\w+ exec", t): safe = t.endswith(", -1")
                off += sz[i]
            n = len(pos); ins = {}
            for c in range(IWN):
                seg = pos[n * c // IWN:n * (c + 1) // IWN]
                for q, i in enumerate(seg):
                    ins[i] = [f"L_iw{c}_{q}:", "    s_cbranch_execz " + (f"L_iw{c}_{q+1}" if q + 1 < len(seg) else "L_iwret")]
            b = [x for i, l in enumerate(b) for x in ins.get(i, []) + [l]]
            print("pads", n, "bytes", off)
        if oi("iy", 0):
            IY = oi("iy", 0); NH = oi("iyh", 1)
            sz = al.sizes(b); pos = []; off = 0; on = False; safe = True; nxt = 0
            for i, l in enumerate(b):
                t = l.strip()
                if t == (JOIN + ":" if "iyj" in opt else "L_iya:"): on = True; nxt = off
                if t in ("L_iyb:", "L_iwb:", AUX + ":", END + ":", "L_prof:"): on = False
                if on and safe and off >= nxt and sz[i] and not b[i - 1].strip().startswith("s_nop"):
                    pos.append(i); off += 4; nxt = off + IY - 12
                if re.match(r"s_\w+ exec", t): safe = t.endswith(", -1") and t.startswith("s_mov")
                off += sz[i]
            ins = {i: [f"L_iy{q}:", "    s_cbranch_execz " + (f"L_iy{q+1}" if (q + 1) % NH and q + 1 < len(pos) else "L_iyr")] for q, i in enumerate(pos)}
            ns = (len(pos) + NH - 1) // NH
            assert ns <= 28, ns
            d = [f"    s_lshl_b32 s{sCNT}, s{sISG}, 2", f"    s_add_u32 s{sCNT}, s{sCNT}, s{sW}", "    s_mov_b64 exec, 0"]
            for q in range(ns): d += [f"    s_cmp_eq_u32 s{sCNT}, {q + 8}", f"    s_cbranch_scc1 L_iy{q * NH}"]
            ins[b.index("L_iyr:")] = d
            b = [x for i, l in enumerate(b) for x in ins.get(i, []) + [l] if x not in ("L_iyd:", "L_iya:", "L_iyb:")]
            print("iy pads", len(pos))
        print("misplaced", al.stat(b))
        if "L_wu:" in b:
            k = b.index("L_wu:")
            b = b[:k] + ["; the matrix pipe runs on scratch operands while the first tiles are in flight, so the supply",
                         "; current rises in two steps and the clock sags less during the first GEMM"] + b[k:]
        return b
    txt = a.text(256, 512, 163840, post=post)
    if oi("kp", 0): txt = txt.replace(".p2align 8\n", ".p2align 8\n" + "    s_endpgm\n" * (64 * oi("kp", 0)), 1)
    return txt, stamps, a.nops

if __name__ == "__main__":
    txt, st, nops = gen(prof="prof" in sys.argv, opt=sys.argv[2:])
    open(sys.argv[1], "w").write(txt)
    print("lines", txt.count("\n"), "nops", nops, st)
    if st: open(sys.argv[1] + ".stamps", "w").write(" ".join(st))
```

```python
import sys, struct, re
from em import *

WS_EPOCH, WS_FKV, WS_RS, WS_CS, WS_FH, WS_FY = 0, 4096, 32768, 65536, 262144, 524288
WS_KV, WS_WT, WS_YT, WS_H, WS_PROF = 1 << 20, 3 << 20, 5 << 20, 8 << 20, 16 << 20
SX, SWG, SWU, SWD, SWS, SOUT, SH, SK, SV, SSH = 8, 12, 16, 20, 24, 28, 32, 36, 40, 44
sW, sXB, sWB, sT0, sT1 = 3, 4, 5, 6, 7
(sRT2, sCT2, sKEY, sWR, sWC, sTAG, sM0X, sOK, sISG, sCNT, sT2, sT3, sCSM, sCP, sRBL, sXCD, sCB, sD,
 sMO, _m1, _m2, _m3, sHI, sRB) = range(48, 72)
sA, sB, sC, sE = 98, 99, 100, 101
PROFS = list(range(72, 98, 2))
STAGE = 49152
L_WP = 147456
L_CV, CVCH = 98304, 12864
L_Z = (65536, 131072, 0, 32768)
L_Y, L_CNT = L_CV + 4608, L_CV + 4096
ACC, FR = 32, 96
def WDF(i): return 144 + 4 * i
vX0, vX1, vW0, vW1, vL16 = 1, 2, 3, 4, 5
vXB, vWB, vTAG = 6, 14, 17
SPIN = 0x4000
ESH = 24
KC = 2 * 0.7978845608028654 * 1.4426950408889634
def fx(f): return "0x%08x" % struct.unpack("<I", struct.pack("<f", f))[0]
def L(s): return [x.strip() for x in s.strip().split("\n") if x.strip()]

def gen(prof=False, opt=()):
    a = Em()
    def oi(k, d): return int(([o[len(k):] for o in opt if re.fullmatch(k + r"-?\d+", o)] + [d])[0])
    stamps = []
    def oi(k, d): return int(([o[len(k):] for o in opt if re.fullmatch(k + r"-?\d+", o)] + [d])[0])
    def stamp(name, slot=None):
        sel = [o[3:].split(",") for o in opt if o.startswith("st=")]
        dflt = "start,B0,B4,B8,join,c1,c3,hok,g2,bf,end".split(",")
        if not prof or (slot is None and name not in (sel[0] if sel else dflt)): return
        own = slot is None
        if ("both" in opt or "noas" in opt) and not own: return
        if slot is None:
            if name not in stamps: stamps.append(name)
            slot = stamps.index(name)
        a(f"{'s_memtime' if 'cyc' in opt else 's_memrealtime'} {sr(PROFS[slot], 2)}")
        if "both" in opt and own:
            stamps.append(name + "c"); a(f"s_memtime {sr(PROFS[slot + 1], 2)}")
    def spin(name, load, check):
        if "nochk" in opt: return [f"L_{name}_ok:"]
        cn = [f"s_add_u32 s{PROFS[stamps.index('n_' + name)]}, s{PROFS[stamps.index('n_' + name)]}, 1"] if "n_" + name in stamps else []
        return ([f"s_mov_b32 s{sCNT}, {SPIN}", f"L_{name}_loop:"] + cn + load + ["s_waitcnt vmcnt(0)"] + check +
                [f"s_cbranch_scc0 L_{name}_ok", f"s_sub_u32 s{sCNT}, s{sCNT}, 1", f"s_cbranch_scc0 L_{name}_loop",
                 f"L_{name}_ok:"])
    def one(txt, vm=None, wvm=None):
        if "all" in opt: return [I(txt, vm=vm, wvm=wvm)]
        return [I("s_mov_b64 exec, 1", wvm=wvm), I(txt, vm=vm), "s_mov_b64 exec, -1"]
    FS = oi("fs", 7)
    def line(so, vm=None, wvm=None):
        if "fp" in opt: return one(f"buffer_store_dword v{vTAG}, off, {sr(SWS,4)}, s{so} offset:4 sc1", vm=vm, wvm=wvm)
        return [I(f"s_mov_b64 exec, {(1 << (1 << (FS - 4))) - 1}", wvm=wvm),
                I(f"buffer_store_dwordx4 {vr(vTAG-1,4)}, v{vL16}, {sr(SWS,4)}, s{so} offen sc1", vm=vm), "s_mov_b64 exec, -1"]
    def ne(v): return [f"v_cmp_ne_u32 vcc, s{sTAG}, v{v}", "s_cmp_lg_u64 vcc, 0"]
    def ap(txt, nl, key, vm=None):
        if key not in opt and "apa" not in opt: return [I(txt, vm=vm)]
        d = txt.split()[1].rstrip(",")
        t = I(txt.replace("buffer_load_dword", "buffer_atomic_or").replace("sc1", "sc0 sc1"), vm=vm)
        if nl == 64: return [f"v_mov_b32 {d}, 0", t]
        m = [f"s_mov_b32 exec_hi, 0"] if nl == 32 else [f"s_mov_b64 exec, {(1 << nl) - 1}"]
        return [f"v_mov_b32 {d}, s{sTAG}"] + m + [f"v_mov_b32 {d}, 0", t, "s_mov_b64 exec, -1"]
    END, AUX, JOIN = "L_end", "L_aux", "L_join"
    vHE, vHP, vHO_ = (228, 232, 234) if "hr" in opt else (128, 132, 134)
    KM = oi("km", 3)
    a(f"""
    s_cmp_ge_u32 s2, 256
    s_cbranch_scc1 {END}
    {f"s_add_u32 s2, s2, {oi('rot', 0)}" if oi('rot', 0) else ""}
    {"s_and_b32 s2, s2, 255" if oi('rot', 0) else ""}
    s_load_dwordx16 s[72:87], s[0:1], 0
    s_load_dwordx8 s[88:95], s[0:1], 64
    s_load_dwordx2 s[96:97], s[0:1], 96
    v_lshrrev_b32 v1, 6, v0
    v_and_b32 v0, 63, v0
    v_readfirstlane_b32 s{sW}, v1
    s_and_b32 s{sXCD}, s2, 7
    s_lshr_b32 s{sCP}, s2, 3
    s_and_b32 s{sE}, s{sXCD}, 1
    s_lshr_b32 s{sA}, s{sXCD}, 1
    s_and_b32 s{sRBL}, s{sCP}, 3
    s_lshr_b32 s{sISG}, s{sCP}, 2
    s_lshl_b32 s{sRB}, s{sA}, 2
    s_add_u32 s{sRB}, s{sRB}, s{sRBL}
    s_lshl_b32 s{sRT2}, s{sRB}, 1
    s_add_u32 s{sRT2}, s{sRT2}, s{sE}
    s_add_u32 s{sCT2}, s{sISG}, 7
    s_and_b32 s{sCT2}, s{sCT2}, 7
    s_mul_i32 s{sCB}, s{sE}, 7
    s_add_u32 s{sCB}, s{sCB}, s{sCT2}
    {f"s_xor_b32 s{sCT2}, s{sCT2}, 4" if "ct3" in opt else ""}
    s_xor_b32 s{sKEY}, s{sRBL}, s{sISG}
    s_and_b32 s{sKEY}, s{sKEY}, {KM}
    s_lshl_b32 s{sB}, s{sA}, {2 if KM == 3 else 1}
    s_and_b32 s{sB}, s{sB}, {4 if KM == 3 else 6}
    s_or_b32 s{sKEY}, s{sKEY}, s{sB}
    s_lshl_b32 s{sB}, s{sXCD}, 5
    s_add_u32 s{sCP}, s{sCP}, s{sB}
    s_and_b32 s{sWR}, s{sW}, 1
    s_lshr_b32 s{sWC}, s{sW}, 1
    s_lshr_b32 s{sB}, s{sW}, 2
    s_and_b32 s{sC}, s{sW}, 3
    s_lshl_b32 s{sXB}, s{sRB}, 17
    s_lshl_b32 s{sT0}, s{sB}, 16
    s_add_u32 s{sXB}, s{sXB}, s{sT0}
    s_lshl_b32 s{sT0}, s{sC}, 10
    s_add_u32 s{sXB}, s{sXB}, s{sT0}
    s_mul_i32 s{sWB}, s{sW}, 28672
    s_lshl_b32 s{sT0}, s{sCB}, 8
    s_add_u32 s{sWB}, s{sWB}, s{sT0}
    s_lshl_b32 s{sM0X}, s{sW}, 11
    s_and_b32 s{sT0}, s{sKEY}, 1
    s_and_b32 s{sT1}, s{sA}, 2
    s_or_b32 s{sT0}, s{sT0}, s{sT1}
    {f"s_mov_b32 s{sT0}, s{sRBL}" if KM != 3 else ""}
    s_add_u32 s{sCSM}, s{sWR}, 1
    s_cmp_eq_u32 s{sT0}, s{sWC}
    s_cselect_b32 s{sCSM}, s{sCSM}, 0
    s_lshr_b32 s{sHI}, s{sCT2}, 2
    s_mov_b32 s{sOK}, 0
    """)
    for s, n in ((SX, 1 << 21), (SWG, 1835008), (SWU, 1835008), (SWD, 1835008), (SWS, 1 << 25), (SOUT, 1 << 21),
                 (SH, 36864 if oi('hpt', 0) else 4096), (SK, 1 << 21), (SV, 1 << 21), (SSH, 4096)):
        a(f"s_mov_b32 s{s+2}, {n}")
        a(f"s_mov_b32 s{s+3}, 0x20000")
    a(f"""
    v_lshrrev_b32 v20, 3, v0
    v_lshrrev_b32 v21, 4, v0
    v_and_b32 v22, 7, v0
    v_xor_b32 v23, v22, v21
    v_lshlrev_b32 v23, 4, v23
    v_lshl_add_u32 v{vX0}, v20, 12, v23
    v_xor_b32 v{vX1}, 64, v{vX0}
    v_add_u32 v{vX1}, 31744, v{vX1}
    v_bfe_u32 v24, v0, 2, 2
    v_and_b32 v25, 3, v0
    v_xor_b32 v23, v24, v21
    v_lshlrev_b32 v23, 6, v23
    v_lshl_add_u32 v23, v25, 4, v23
    v_mul_u32_u24 v{vW0}, 3584, v21
    v_add_u32 v{vW0}, v{vW0}, v23
    v_add_u32 v{vW1}, 13312, v{vW0}
    v_lshlrev_b32 v{vL16}, 4, v0
    s_lshl_b32 s{sT2}, s{sCP}, 1
    s_add_u32 s{sT2}, s{sT2}, s{sB}
    s_lshl_b32 s{sT2}, s{sT2}, 12
    s_lshl_b32 s{sT3}, s{sCP}, 2
    """)
    UE = oi("ue", 0)
    w_init = ([f"v_mul_u32_u24 v{FR+16}, 0x9e3779, v0", f"v_and_b32 v{FR+16}, 0x807f807f, v{FR+16}", f"v_or_b32 v{FR+16}, 0x3f003f00, v{FR+16}"] +
              [f"v_xor_b32 v{FR+16+i}, {hex((0x9e3779b1 * (i + 3) >> 3) & 0x807f807f)}, v{FR+16+i-1}" for i in range(1, 8)])
    if UE:
        a([f"s_cmp_ge_u32 s{sW}, 4", "s_cbranch_scc1 L_uex"] + w_init + [f"s_mov_b32 s{sCNT}, {UE}", "L_ue:"] +
          [f"v_mfma_f32_32x32x16_bf16 {vr(ACC+16*i,16)}, {vr(FR+16+4*(i&1),4)}, {vr(FR+16+4*(i>>1),4)}, 0" for i in range(1, 3)] +
          [f"s_sub_u32 s{sCNT}, s{sCNT}, 1", f"s_cmp_lg_u32 s{sCNT}, 0", "s_cbranch_scc1 L_ue", "L_uex:"])
    a(f"""
    s_waitcnt lgkmcnt(0)
    s_mov_b64 {sr(SX,2)}, s[72:73]
    s_mov_b64 {sr(SWG,2)}, s[86:87]
    s_mov_b64 {sr(SWU,2)}, s[88:89]
    s_mov_b64 {sr(SK,2)}, s[74:75]
    s_mov_b64 {sr(SV,2)}, s[76:77]
    {f"s_add_u32 s{SWS}, s96, {oi('wso', 0) << 20}" if oi('wso', 0) else f"s_mov_b64 {sr(SWS,2)}, s[96:97]"}
    {f"s_addc_u32 s{SWS+1}, s97, 0" if oi('wso', 0) else ""}
    s_mov_b64 {sr(SSH,2)}, s[78:79]
    s_mov_b64 {sr(SWD,2)}, s[90:91]
    s_mov_b64 {sr(SOUT,2)}, s[92:93]
    s_add_u32 s{SH}, s80, s{sT2}
    s_addc_u32 s{SH+1}, s81, 0
    s_load_dword s{sD}, s[82:83], s{sT3}
    """)
    H1 = "h1" in opt
    if H1: a(f"""
    s_lshl_b32 s{sT3}, s{sC}, 10
    s_max_u32 s{sT3}, s{sT3}, 4
    s_add_u32 s{sT2}, s{sT2}, s{sT3}
    s_sub_u32 s{sT2}, s{sT2}, 4
    s_load_dword s{sOK}, s[80:81], s{sT2}
    """)
    if prof: a("s_nop 4")
    stamp("start")
    SCN = ([o[3:].split(",") for o in opt if o.startswith("sc=")] + [[]])[0] if prof else []
    stamps += ["n_" + x for x in SCN]
    sc_init = [f"s_mov_b32 s{PROFS[1 + i]}, 0" for i in range(len(SCN))]

    NTX = " nt" if "ntx" in opt else ""
    NTW = " nt" if "ntw" in opt else ""
    NTK = " nt" if "ntk" in opt else ""
    NTH = " nt" if "nth" in opt else ""
    NTE = " nt" if "nte" in opt else ""
    NTF = " nt" if "ntf" in opt else ""
    for o in opt:
        if o.startswith("cp="): NTX = NTW = " " + o[3:].replace("_", " ")
        if o.startswith("ck="): NTK = " " + o[3:].replace("_", " ")
    NTX0, NTW0 = NTX, NTW
    def chunk_dma(c):
        st = (c % 3) * STAGE
        NTX = [" " + o.split("=")[0][2:].replace("_", " ") for o in opt if re.match(r"Nx\w+=", o) and str(c) in o.split("=")[1]] + [NTX0]
        NTW = [" " + o.split("=")[0][2:].replace("_", " ") for o in opt if re.match(r"Nw\w+=", o) and str(c) in o.split("=")[1]] + [NTW0]
        NTX, NTW = NTX[0], NTW[0]
        return [
            [f"s_xor_b32 s{sT0}, s{sKEY}, {c}",
             f"s_mul_i32 s{sT1}, s{sT0}, 229376", f"s_add_u32 s{sT1}, s{sT1}, s{sWB}",
             f"s_lshl_b32 s{sT0}, s{sT0}, 7", f"s_add_u32 m0, s{sM0X}, {st}", f"s_add_u32 s{sT0}, s{sT0}, s{sXB}",
             I(f"buffer_load_dwordx4 v{vX0}, {sr(SX,4)}, s{sT0} offen{NTX} lds", vm=f"c{c}")],
            I(f"buffer_load_dwordx4 v{vX1}, {sr(SX,4)}, s{sT0} offen offset:1024{NTX} lds", vm=f"c{c}"),
            [f"s_add_u32 m0, s{sM0X}, {st + 16384}",
             I(f"buffer_load_dwordx4 v{vW0}, {sr(SWG,4)}, s{sT1} offen{NTW} lds", vm=f"c{c}")],
            I(f"buffer_load_dwordx4 v{vW1}, {sr(SWG,4)}, s{sT1} offen offset:1024{NTW} lds", vm=f"c{c}"),
            [f"s_add_u32 m0, s{sM0X}, {st + 32768}",
             I(f"buffer_load_dwordx4 v{vW0}, {sr(SWU,4)}, s{sT1} offen{NTW} lds", vm=f"c{c}")],
            I(f"buffer_load_dwordx4 v{vW1}, {sr(SWU,4)}, s{sT1} offen offset:1024{NTW} lds", vm=f"c{c}"),
        ]
    def prefetch(c):
        g = oi("pg", 7); sh = 7 - g; t = 150
        o = L(f"""
        v_lshrrev_b32 v{t}, {sh}, v0
        v_lshlrev_b32 v{t}, 12, v{t}
        v_lshrrev_b32 v{t+1}, {sh + 1}, v0
        v_mul_u32_u24 v{t+1}, 3584, v{t+1}
        v_and_b32 v{t+2}, {(2 << sh) - 1}, v0
        v_lshl_add_u32 v{t+1}, v{t+2}, {g}, v{t+1}
        """)
        if sh: o += [f"v_and_b32 v{t+2}, {(1 << sh) - 1}, v0", f"v_lshl_add_u32 v{t}, v{t+2}, {g}, v{t}"]
        o += L(f"""
        s_xor_b32 s{sT2}, s{sKEY}, {c}
        s_mul_i32 s{sT3}, s{sT2}, 229376
        s_add_u32 s{sT3}, s{sT3}, s{sWB}
        s_lshl_b32 s{sT2}, s{sT2}, 7
        s_add_u32 s{sT2}, s{sT2}, s{sXB}
        s_mov_b32 exec_hi, 0
        """)
        if not sh: o += ["s_mov_b32 exec_lo, 0xffff"]
        PW = os0("pv=", "gux")
        if "g" in PW: o += [I(f"buffer_load_dword v{t+2}, v{t+1}, {sr(SWG,4)}, s{sT3} offen", vm="pf")]
        if "u" in PW: o += [I(f"buffer_load_dword v{t+3}, v{t+1}, {sr(SWU,4)}, s{sT3} offen", vm="pf")]
        if "x" in PW: o += [I(f"buffer_load_dword v{t+4}, v{t}, {sr(SX,4)}, s{sT2} offen", vm="pf")]
        return o + ["s_mov_b64 exec, -1"]
    def os0(k, d=""): return ([o[len(k):] for o in opt if o.startswith(k)] + [d])[0]
    def c3p(role, c, tag):
        t = 150; W_ = oi("c3w", 0); PW = os0("c3v=", "wx"); o = []
        if "w" in PW: o += L(f"""
        s_bitcmp1_b32 {hex(0x1515 if "c3e" in opt else 0x2aaa)}, s{sCB}
        s_cselect_b32 s{sT2}, s{sW}, 99
        s_cmp_lg_u32 s{sT2}, {W_}
        s_cbranch_scc1 L_c3w{tag}{role}
        s_xor_b32 s{sT2}, s{sKEY}, {c}
        s_mul_i32 s{sT3}, s{sT2}, 229376
        {f"s_cmp_lt_u32 s{sCB}, 7" if "c3e" in opt else ""}
        {f"s_cselect_b32 s{sT2}, 1, {oi('c3d', 0) * 2 - 1}" if "c3e" in opt else f"s_mov_b32 s{sT2}, 0"}
        s_add_u32 s{sT2}, s{sT2}, s{sCB}
        s_lshl_b32 s{sT2}, s{sT2}, 8
        s_add_u32 s{sT3}, s{sT3}, s{sT2}
        s_bitcmp1_b32 s{sT2}, 9
        s_cselect_b32 s{sT2}, 3584, 0
        s_add_u32 s{sT3}, s{sT3}, s{sT2}
        v_mul_u32_u24 v{t}, 7168, v0
        s_mov_b32 exec_hi, 0
        buffer_load_dword v{t+1}, v{t}, {sr(SWG,4)}, s{sT3} offen offset:128
        buffer_load_dword v{t+2}, v{t}, {sr(SWU,4)}, s{sT3} offen offset:128
        s_mov_b32 exec_hi, -1
        L_c3w{tag}{role}:
        """)
        if "x" in PW: o += L(f"""
        s_xor_b32 s{sT2}, s{sW}, {W_ ^ 2}
        s_lshr_b32 s{sT2}, s{sT2}, 1
        s_xor_b32 s{sT3}, s{sKEY}, {c ^ 3}
        s_or_b32 s{sT2}, s{sT2}, s{sT3}
        s_cbranch_scc1 L_c3x{tag}{role}
        s_lshl_b32 s{sT2}, s{sRB}, 1
        s_add_u32 s{sT2}, s{sT2}, s{sWR}
        s_lshl_b32 s{sT2}, s{sT2}, 16
        v_lshlrev_b32 v{t+3}, 10, v0
        buffer_load_dword v{t+4}, v{t+3}, {sr(SX,4)}, s{sT2} offen offset:384
        L_c3x{tag}{role}:
        """)
        return o
    PF = os0("pf=")
    XR, S1, S2 = 200, 204, 205
    def row_load():
        return [I(f"buffer_load_dword v{vTAG}, off, {sr(SWS,4)}, 0 offset:{WS_EPOCH} sc1", vm="ep"),
                [f"s_lshl_b32 s{sA}, s{sRT2}, 3", f"s_add_u32 s{sA}, s{sA}, s{sISG}", f"s_lshl_b32 s{sA}, s{sA}, 3",
                 f"s_add_u32 s{sA}, s{sA}, s{sW}", f"s_lshl_b32 s{sT2}, s{sA}, 10",
                 I(f"buffer_load_dwordx4 {vr(XR,4)}, v{vL16}, {sr(SX,4)}, s{sT2} offen" + (" nt" if "ntr" in opt else ""), vm="ep")]]
    tag_math = L(f"""
        v_add_u32 v{vTAG}, 1, v{vTAG}
        v_and_b32 v{vTAG}, 0x0fff3fff, v{vTAG}
        v_or_b32 v{vTAG}, 0x20000000, v{vTAG}
        s_mov_b32 s{sB}, 0x3f803f80
        v_readfirstlane_b32 s{sTAG}, v{vTAG}
        """)
    def row_math():
        o = []
        for d in range(4):
            o += [f"v_dot2_f32_bf16 v{S1}, v{XR+d}, s{sB}, {'0' if d == 0 else f'v{S1}'}",
                  f"v_dot2_f32_bf16 v{S2}, v{XR+d}, v{XR+d}, {'0' if d == 0 else f'v{S2}'}"]
        o += [f"v_mov_b32 v{XR+1}, v{vTAG}", f"v_permlane32_swap_b32 v{S1}, v{S2}", f"v_add_f32 v{S1}, v{S1}, v{S2}"]
        o += [f"v_add_f32_dpp v{S1}, v{S1}, v{S1} {d} row_mask:0xf bank_mask:0xf"
              for d in ("quad_perm:[1,0,3,2]", "quad_perm:[2,3,0,1]", "row_half_mirror", "row_mirror")]
        o += [f"v_add_f32_dpp v{S1}, v{S1}, v{S1} row_bcast:15 row_mask:0xa bank_mask:0xf"]
        o += L(f"""
        v_mul_f32 v{S1}, {fx(1/512)}, v{S1}
        v_readlane_b32 s{sB}, v{S1}, 31
        v_readlane_b32 s{sC}, v{S1}, 63
        v_mul_f32 v{S1}, s{sB}, s{sB}
        v_sub_f32 v{S1}, s{sC}, v{S1}
        v_max_f32 v{S1}, 0, v{S1}
        v_cvt_pk_bf16_f32 v{S1}, v{S1}, v{S1}
        v_lshlrev_b32 v{S1}, 16, v{S1}
        v_add_f32 v{S1}, {fx(1e-5)}, v{S1}
        v_cvt_pk_bf16_f32 v{S1}, v{S1}, v{S1}
        v_lshlrev_b32 v{S1}, 16, v{S1}
        v_sqrt_f32 v{S1}, v{S1}
        s_lshl_b32 s{sA}, s{sA}, 3
        v_cvt_pk_bf16_f32 v{XR}, v{S1}, -s{sB}
        s_add_u32 s{sA}, s{sA}, {WS_RS}
        """)
        if "nors" not in opt: o += [one(f"buffer_store_dwordx2 {vr(XR,2)}, off, {sr(SWS,4)}, s{sA} sc1", vm="rs", wvm="wps")]
        return o
    def h_load(t):
        return [[f"s_and_b32 s{sT2}, s{sW}, 3", f"s_lshl_b32 s{sT2}, s{sT2}, 10",
                 I(f"buffer_load_dwordx4 {vr(vHE,4)}, v{vL16}, {sr(SH,4)}, s{sT2} offen{NTE}", vm="hl")],
                [f"s_and_b32 s{sT2}, s{sW}, 3", f"s_lshl_b32 s{sT2}, s{sT2}, 10",
                 f"s_sub_u32 s{sT2}, s{sT2}, 4", f"v_add_u32 v{t}, s{sT2}, v{vL16}",
                 I(f"buffer_load_dword v{vHP}, v{t}, {sr(SH,4)}, 0 offen{NTF}", vm="hl")]][:1 if H1 else 2]
    vZ4 = vHE + 12
    h_al = [f"v_alignbit_b32 v{vHO_+d}, v{vHE+d}, v{vHE+d-1 if d else vHP}, 16" for d in range(4)]
    h_z = [f"v_mov_b32 v{vZ4+d}, 0" for d in range(4)]
    h_math = (([[f"s_and_b32 s{sT2}, s{sW}, 3", f"s_cselect_b32 s{sT2}, s{sOK}, 0", f"v_mov_b32 v{vHP}, s{sT2}"], I(h_al[1], wvm="hl")] + h_al[2:] +
               [f"v_mov_b32_dpp v{vHP}, v{vHE+3} wave_shr:1 row_mask:0xf bank_mask:0xf"] + h_z + h_al[:1]
               if H1 else [I(h_al[0], wvm="hl")] + h_al[1:] + h_z) + [L(f"""
        s_lshr_b32 s{sT2}, s{sW}, 2
        s_mul_i32 s{sT2}, s{sT2}, {CVCH}
        s_add_u32 s{sT2}, s{sT2}, {L_CV}
        v_min_u32 v{vHP+1}, 35, v0
        v_lshlrev_b32 v{vHP+1}, 4, v{vHP+1}
        v_lshrrev_b32 v{vHP}, 5, v0
        v_lshl_add_u32 v{vHP+1}, v{vHP}, 12, v{vHP+1}
        v_add_u32 v{vHP+1}, s{sT2}, v{vHP+1}
        s_and_b32 s{sT3}, s{sW}, 3
        s_lshl_b32 s{sT3}, s{sT3}, 10
        s_add_u32 s{sT2}, s{sT2}, s{sT3}
        v_add_u32 v{vHP}, s{sT2}, v{vL16}
        """)])
    h_write = [I(f"ds_write_b128 v{vHP}, {vr(vHE,4)} offset:4608", lg="hw"),
               I(f"ds_write_b128 v{vHP}, {vr(vHO_,4)} offset:{4608+4160}", lg="hw"),
               I(f"ds_write_b128 v{vHP+1}, {vr(vZ4,4)} offset:4096", lg="hw")]
    vFL, vFA = 18, 19
    def wf_addr_(sE, vFA, vFL): return L(f"""
        s_lshl_b32 s{sT2}, s{sCT2}, 3
        s_add_u32 s{sT2}, s{sT2}, s{sW}
        {f"s_xor_b32 s{sT3}, s{sCT2}, s{sW}" if "wdx" in opt else ""}
        s_and_b32 s{sE}, s{sT3 if "wdx" in opt else sCT2}, 6
        s_lshl_b32 s{sE}, s{sE}, 1
        s_add_u32 s{sE}, s{sE}, s{sWC}
        s_lshl_b32 s{sE}, s{sE}, 1
        s_and_b32 s{sT3}, s{sT3 if "wdx" in opt else sCT2}, 1
        s_add_u32 s{sE}, s{sE}, s{sT3}
        s_lshl_b32 s{sE}, s{sE}, 4
        s_add_u32 s{sE}, s{sE}, s{sWR}
        s_lshl_b32 s{sE}, s{sE}, 5
        s_add_u32 s{sE}, s{sE}, {WS_RS + 64 + 4 + (16384 if oi("rl", -1) >= 0 else 0)}
        s_mul_i32 s{sT2}, s{sT2}, 28672
        s_mul_i32 s{sT3}, s{sHI}, 12288
        s_add_u32 s{sT2}, s{sT2}, s{sT3}
        s_add_u32 s{sT2}, s{sT2}, {WS_WT}
        s_lshl_b32 s{sT3}, s{sRBL}, 10
        s_add_u32 s{sMO}, s{sT2}, s{sT3}
        s_xor_b32 s{sMO+1}, s{sMO}, 1024
        s_xor_b32 s{sMO+2}, s{sMO}, 2048
        s_xor_b32 s{sMO+3}, s{sMO}, 3072
        v_min_u32 v{vFA}, 27, v0
        v_and_b32 v{vFL}, 28, v{vFA}
        v_add_u32 v{vFA}, v{vFA}, v{vFL}
        v_lshlrev_b32 v{vFA}, 3, v{vFA}
        """)
    wf_addr = wf_addr_(sE, vFA, vFL)
    wf_ld = f"buffer_load_dword v{vFL}, v{vFA}, {sr(SWS,4)}, s{sE} offen sc1"
    def wd_loads():
        o = []
        for i in range(28):
            ks, mt = divmod(i, 4)
            g = []
            if i == 16:
                g += [f"s_mul_i32 s{sT3}, s{sHI}, 28672"] + [f"s_sub_u32 s{sMO+m}, s{sMO+m}, s{sT3}" for m in range(4)]
            g += [f"s_add_u32 s{sT3}, s{sMO+mt}, {4096*ks}",
                  I(f"buffer_load_dwordx4 {vr(WDF(i),4)}, v{vL16}, {sr(SWS,4)}, s{sT3} offen sc1" if i < oi("wx", 99) else
                    f"buffer_load_dword {vr(WDF(i),1)}, off, {sr(SWS,4)}, s{sT3} sc1", vm=f"wd{ks}")]
            o.append(g)
        return o
    vKA, vKL = 29, 30
    kf_addr = [f"v_and_b32 v{vKA}, 31, v0", f"v_lshlrev_b32 v{vKA}, 2, v{vKA}", f"s_lshl_b32 s{sC}, s{sXCD}, 7",
               f"s_add_u32 s{sC}, s{sC}, {WS_FKV}"]
    kf_ld = f"buffer_load_dword v{vKL}, v{vKA}, {sr(SWS,4)}, s{sC} offen sc1"
    def r_dma(t):
        return L(f"""
        s_lshr_b32 s{sT2}, s{sW}, 2
        s_mul_i32 s{sT3}, s{sT2}, {CVCH - 4096}
        s_lshl_b32 s{sT2}, s{sT2}, 4
        v_lshl_add_u32 v{t}, v0, 5, s{sT2}
        s_lshl_b32 s{sT2}, s{sW}, 10
        s_add_u32 s{sT3}, s{sT3}, s{sT2}
        s_add_u32 m0, s{sT3}, {L_CV}
        s_and_b32 s{sT2}, s{sM0X}, 0x1800
        s_lshl_b32 s{sT3}, s{sCP}, 13
        s_add_u32 s{sT2}, s{sT2}, s{sT3}
        s_add_u32 s{sT2}, s{sT2}, {WS_KV}
        """) + [I(f"buffer_load_dwordx4 v{t}, {sr(SWS,4)}, s{sT2} offen sc1 lds", vm="R")]

    WL = wd_loads()
    wsched = {17: 1, 18: 1, 19: 1, 21: 1, 22: 1, 23: 1, 24: 1, 25: 2, 26: 2, 27: 2, 29: 1, 30: 2, 31: 2}
    wsched = {k: n for k, n in wsched.items() if k >= oi("pw", 20) + 3}
    for o in opt:
        if o.startswith("ws="): wsched = {32 - len(o[3:]) + i: int(ch) for i, ch in enumerate(o[3:])}
    assert min(k for k, n in wsched.items() if n) >= oi("pw", 20) + oi("pd", 3)
    wepi = [int(x) for x in str(oi("we", 3320)).zfill(4)]
    NPRE = sum(wsched.values()) + sum(wepi)
    vq_pro = list(a.vq)
    a(f"s_cmp_eq_u32 s{sISG}, 0\ns_cbranch_scc1 {AUX}")
    if "nogemm" in opt: a(f"s_branch {END}")
    SP, SPS = oi("sp", 0), oi("ss", 64)
    h_pre = [f"s_and_b32 s{sT2}, s{sW}, 3", f"s_lshl_b32 s{sT2}, s{sT2}, 10"] + [
        f"s_buffer_load_dword s{sCNT}, {sr(SH,4)}, s{sT2} offset:{o}" for o in range(0, 1024, SPS)]
    if SP == 1: a(h_pre)
    TF = os0("tf=")
    def touch():
        o = ["s_mov_b64 exec, 1"]
        if "d" in TF: o += [f"s_mul_i32 s{sT2}, s{sCB}, 131072", I(f"buffer_load_dword v160, off, {sr(SWD,4)}, s{sT2}", vm="tf")]
        if "h" in TF: o += [I(f"buffer_load_dword v161, off, {sr(SH,4)}, 0", vm="tf")]
        if "e" in TF: o += [I(f"buffer_load_dword v162, off, {sr(SWS,4)}, 0 offset:128 sc1", vm="tf")]
        if "w" in TF: o += [f"s_mov_b32 s{sT2}, {WS_WT - 128}", I(f"buffer_load_dword v163, off, {sr(SWS,4)}, s{sT2} sc1", vm="tf"),
                            f"s_mov_b32 s{sT2}, {WS_YT - 128}", I(f"buffer_load_dword v164, off, {sr(SWS,4)}, s{sT2} sc1", vm="tf")]
        o += ["s_mov_b64 exec, -1"]
        if "0" in TF: return [f"s_cmp_lg_u32 s{sW}, 0", "s_cbranch_scc1 L_notf"] + [x.text if isinstance(x, I) else x for x in o] + ["L_notf:"]
        return o
    if "B" in TF: a(touch())
    a(chunk_dma(0))
    stamp("K2")
    WU, WQ = oi("wu", -1), oi("wq", 0)
    W8 = "w8" in opt or "wm" in opt
    def warm():
        if "wo4" in opt: a(f"s_cmp_ge_u32 s{sW}, 4\ns_cbranch_scc1 L_wux")
        if "wy4" in opt: a(f"s_cmp_lt_u32 s{sW}, 4\ns_cbranch_scc1 L_wux")
        if "wz" in opt:
            for i in range(16): a(f"v_mov_b32 v{FR+16+i}, 0")
        elif "wa" in opt:
            for i in range(8 if "w8" in opt else 16): a(f"v_xor_b32 v{FR+16+i}, {0x3f5a3e97 + 0x00130029 * i}, v{(vX0, vX1, vW0, vW1)[i & 3]}")
        elif "wm" in opt:
            if not UE: a(w_init)
        else:
            a(f"s_mov_b32 s{sT2}, 0x807f807f\ns_mov_b32 s{sT3}, 0x3f003f00\nv_mov_b32 v180, 0x9e3779b1\nv_add_u32 v181, 0x1234567, v{vW0}")
            for i in range(16):
                a(f"v_mul_lo_u32 v181, v181, v180\nv_alignbit_b32 v181, v181, v181, 13\nv_and_b32 v{FR+16+i}, s{sT2}, v181\nv_or_b32 v{FR+16+i}, s{sT3}, v{FR+16+i}")
        wm = lambda z: [f"v_mfma_f32_32x32x16_bf16 {vr(ACC+16*i,16)}, {vr(FR+16+4*(i&1),4)}, {vr(FR+(16 if W8 else 24)+4*(i>>1),4)}, {'0' if z or 'w0c' in opt else vr(ACC+16*i,16)}" for i in range(4)]
        if "wv" not in opt and "w0c" not in opt: a(wm(True)[:oi("wn", 4)])
        if WU:
            a(f"s_mov_b32 s{sT2}, {WU}\nL_wu:")
            if "wv" in opt:
                for i in range(64): a(f"v_fma_f32 v{ACC+i}, v{FR+16+(i&15)}, v{FR+16+((i*7+3)&15)}, v{ACC+i}")
            else:
                for q_, m_ in enumerate(wm(False)[:oi('wn', 4)]):
                    UV = oi("uv", 0)
                    xv = [f"v_pk_fma_f32 {vr(150+2*(UV*q_+z),2)}, {vr(FR+16+2*((q_+z)&3),2)}, {vr(FR+16+2*((q_+2*z+1)&3),2)}, {vr(FR+16+2*((z+2)&3),2)}" for z in range(UV)]
                    a([m_] + xv + ([f"s_nop {oi('wg', 0)}"] if oi("wg", 0) else []))
            if oi("wad", 0): a(f"s_getreg_b32 s{sT3}, hwreg(HW_REG_IB_STS, 0, 4)\ns_cmp_lt_u32 s{sT3}, {oi('wad', 0)}\ns_cbranch_scc1 L_wux")
            a(f"s_sub_u32 s{sT2}, s{sT2}, 1\ns_cmp_lg_u32 s{sT2}, 0\ns_cbranch_scc1 L_wu")
        if oi("iw", 0) and "iwy" in opt:
            W_ = oi("iwn", 4)
            a("s_branch L_wuy\nL_wux:")
            a([f"s_and_b32 s{sCNT}, s{sW}, {W_ - 1}", "s_mov_b64 exec, 0"] + [x for i in range(W_ - 1) for x in (f"s_cmp_eq_u32 s{sCNT}, {i}", f"s_cbranch_scc1 L_iw{i}_0")] +
              [f"s_branch L_iw{W_ - 1}_0", "L_iwr_g:", "s_mov_b64 exec, -1", "L_wuy:"])
        elif oi("iy", 0): a("s_branch L_wuy\nL_wux:\nL_iyd:\nL_iyr:\ns_mov_b64 exec, -1\nL_wuy:")
        else: a("L_wux:")
        stamp("K3")
    if WU >= 0 and WQ == 0: warm()
    if "A" in TF: a(touch())
    if PF == "a": a(prefetch(4))
    if SP == 2: a(h_pre)
    WP, vWPA, vWPS, vWPL, CSA, CS1 = 208, 212, 213, 214, 240, 236
    sWPS, sWPF, sWPM = SSH, SSH + 1, SSH + 3
    a(f"""
    v_and_b32 v23, 3, v20
    v_lshrrev_b32 v26, 5, v0
    v_lshl_add_u32 v23, v26, 3, v23
    v_lshlrev_b32 v26, 4, v22
    v_lshl_add_u32 v{vWPL}, v23, 10, v26
    {"" if "wdx" in opt else f"s_mov_b32 s{sE}, s{sXCD}"}
    s_lshl_b32 s{sT2}, s{sRBL}, 1
    s_add_u32 s{sT2}, s{sT2}, s{sB}
    {f"s_xor_b32 s{sE}, s{sXCD}, s{sT2}" if "wdx" in opt else ""}
    s_mul_i32 s{sT3}, s{sT2}, 7
    {f"s_xor_b32 s{sT1}, s{sCT2}, 4" if "ct3" in opt else ""}
    s_add_u32 s{sT3}, s{sT3}, s{sT1 if "ct3" in opt else sCT2}
    s_mul_i32 s{sWPS}, s{sE}, 56
    s_add_u32 s{sWPS}, s{sWPS}, s{sT3}
    s_lshl_b32 s{sWPS}, s{sWPS}, 12
    s_lshl_b32 s{sT1}, s{sC}, 8
    s_add_u32 s{sWPS}, s{sWPS}, s{sT1}
    s_add_u32 s{sWPS}, s{sWPS}, {WS_WT}
    s_lshl_b32 s{sT3}, s{sT3}, 15
    s_lshl_b32 s{sT1}, s{sWR}, 12
    s_add_u32 s{sT3}, s{sT3}, s{sT1}
    s_lshl_b32 s{sT1}, s{sWC}, 14
    s_and_b32 s{sT1}, s{sT1}, 0x4000
    s_add_u32 s{sT3}, s{sT3}, s{sT1}
    s_lshl_b32 s{sT1}, s{sE}, 7
    s_add_u32 s{sWPF}, s{sT3}, s{sT1}
    s_lshl_b32 s{sT2}, s{sW}, 10
    s_add_u32 s{sWPM}, s{sT2}, {L_WP}
    {"" if "nob" in opt else "s_barrier"}
    """)
    wp_load = [f"s_mov_b32 m0, s{sWPM}", I(f"buffer_load_dwordx4 v{vWPL}, {sr(SWD,4)}, s{sWPF} offen{NTH} lds", vm="wpl")]
    SWL, SWR, SRS, SPW, SHL, SPF, SRL = oi("wl", -1), oi("wr", 4), oi("rs", 11), oi("pw", 20), oi("hl", 9), oi("pf", 0), oi("rl", -1)
    SKF, SRD = oi("kf", 28), oi("rd", 32)
    XE = oi("xe", 28)
    assert XE >= 27 or ("hr" in opt and XE >= 22)
    BI = "bi" in opt
    if WU >= 0 and WQ == 1: warm()
    if SWL < 0: a(wp_load)
    a(f"""
    v_lshlrev_b32 v23, 7, v24
    v_lshl_add_u32 v23, v21, 5, v23
    v_lshl_add_u32 v23, v25, 3, v23
    v_add_u32 v{vWPA}, s{sWPM}, v23
    """)
    C1E = oi("c1e", 2)
    if SRL >= 0: a(row_load()[0]); a(row_load()[1][:4])
    elif "rowl" not in opt: a(row_load())
    if SHL == -3: a(h_load(27))
    if PF == "b": a(prefetch(4))
    a(chunk_dma(1)[:C1E])
    if PF == "c": a(prefetch(4))
    if SHL == -4: a(h_load(27))
    if "th" in opt: a(I(f"buffer_load_dword v{vHP}, off, {sr(SH,4)}, 0", vm="th"))
    a(f"""
    v_and_b32 v23, 15, v0
    v_lshlrev_b32 v23, 4, v23
    v_lshl_add_u32 v{vWPS}, v21, 10, v23
    v_and_b32 v24, 31, v0
    v_lshrrev_b32 v25, 5, v0
    v_bfe_u32 v22, v0, 1, 3
    v_xor_b32 v22, v22, v25
    v_lshlrev_b32 v22, 4, v22
    v_lshl_add_u32 v22, v24, 7, v22
    s_lshl_b32 s{sT0}, s{sWR}, 13
    v_add_u32 v{vXB}, s{sT0}, v22
    v_xor_b32 v{vXB+1}, 32, v{vXB}
    v_xor_b32 v{vXB+2}, 64, v{vXB}
    v_xor_b32 v{vXB+3}, 96, v{vXB}
    v_add_u32 v{vXB+4}, {2*STAGE}, v{vXB}
    v_add_u32 v{vXB+5}, {2*STAGE}, v{vXB+1}
    v_add_u32 v{vXB+6}, {2*STAGE}, v{vXB+2}
    v_add_u32 v{vXB+7}, {2*STAGE}, v{vXB+3}
    v_bfe_u32 v23, v0, 2, 2
    v_lshl_add_u32 v24, v25, 3, v23
    v_lshlrev_b32 v24, 8, v24
    v_xor_b32 v23, s{sWC}, v23
    v_lshl_add_u32 v24, v23, 6, v24
    v_bfe_u32 v23, v0, 4, 1
    v_lshl_add_u32 v24, v23, 5, v24
    v_and_b32 v23, 3, v0
    v_lshl_add_u32 v24, v23, 3, v24
    v_add_u32 v{vWB}, 16384, v24
    v_add_u32 v{vWB+1}, {STAGE+16384}, v24
    v_add_u32 v{vWB+2}, {2*STAGE+16384}, v24
    """)
    if "cs16" in opt:
        a(f"""
        v_lshrrev_b32 v23, 2, v0
        v_xor_b32 v23, v23, v21
        v_and_b32 v23, 1, v23
        v_add_u32 v23, -1, v23
        """)
        for d in range(4): a(f"v_and_b32 v{CS1+d}, 0x3f803f80, v23")
    else:
        for d in range(4): a(f"v_mov_b32 v{CS1+d}, 0x3f803f80")
    if "csb" in opt: a(f"s_cmp_lg_u32 s{sCSM}, 0\ns_cselect_b64 vcc, -1, 0")
    if prof and oi("mz", 0): a([f"v_mov_b32 v{180+i}, 0" for i in range(4)])
    stamp("K1")
    stamp("K0")
    a(sc_init)
    if "dmaonly" in opt:
        DD = oi("dd", 2)
        if C1E < 6: a(chunk_dma(1)[0][:4]); a(chunk_dma(1)[C1E:])
        for c in range(2, DD): a(chunk_dma(c))
        for c in range(8):
            a(I(wvm=f"c{c}"))
            if "dnb" not in opt: a("s_barrier")
            stamp(f"B{c}")
            if c + DD < 8: a(chunk_dma(c + DD))
        a("s_branch L_prof")
        opt = [o for o in opt if not o.startswith("st=")] + ["st=end"]

    IW, IWN = oi("iw", 0), oi("iwn", 4)
    def walk(tag, first=0):
        o = [f"s_and_b32 s{sCNT}, s{sW}, {IWN - 1}", "s_mov_b64 exec, 0"]
        if "iwo" in opt:
            o = [f"s_cmp_ge_u32 s{sW}, 4", f"s_cbranch_scc1 L_iwr_{tag}", f"s_lshl_b32 s{sCNT}, s{sRBL}, 2", f"s_add_u32 s{sCNT}, s{sCNT}, s{sW}", "s_mov_b64 exec, 0"]
        if "iwa" in opt:
            o = [f"s_lshl_b32 s{sCNT}, s{sW}, 2", f"s_add_u32 s{sCNT}, s{sCNT}, s{sRBL}", f"s_cmp_ge_u32 s{sCNT}, {IWN}", f"s_cbranch_scc1 L_iwr_{tag}", "s_mov_b64 exec, 0"]
        for i in range(IWN - 1): o += [f"s_cmp_eq_u32 s{sCNT}, {i}", f"s_cbranch_scc1 L_iw{i}_{first}"]
        return o + [f"s_branch L_iw{IWN - 1}_{first}", f"L_iwr_{tag}:", "s_mov_b64 exec, -1"]
    def F(s): return FR + 16 * (s & 1)
    def reads(s):
        c, j = divmod(s, 4)
        st = c % 3
        xb = vXB + j + (4 if st == 2 else 0); im = STAGE if st == 1 else 0
        wb = vWB + st; wo = 4096 * j
        f = F(s); t = f"r{s}"
        return [I(f"ds_read_b64_tr_b16 {vr(f,2)}, v{wb} offset:{wo}", lg=t),
                I(f"ds_read_b64_tr_b16 {vr(f+2,2)}, v{wb} offset:{wo+1024}", lg=t),
                I(f"ds_read_b128 {vr(f+8,4)}, v{xb} offset:{im}", lg=t),
                I(f"ds_read_b64_tr_b16 {vr(f+4,2)}, v{wb} offset:{wo+16384}", lg=t),
                I(f"ds_read_b64_tr_b16 {vr(f+6,2)}, v{wb} offset:{wo+17408}", lg=t),
                I(f"ds_read_b128 {vr(f+12,4)}, v{xb} offset:{im+4096}", lg=t)]
    def mfmas(A, B, first=False, par=0):
        out = []
        for nt in range(2):
            for m in range(2):
                d = ACC + 32 * m + 16 * nt
                if "m16x" in opt:
                    for h in range(2):
                        e = d + 8 * (par & 1) + 4 * h
                        out.append(f"v_mfma_f32_16x16x32_bf16 {vr(e,4)}, {vr(A[m ^ h],4)}, {vr(B[nt],4)}, {'0' if par < 2 else vr(e,4)}")
                    continue
                out.append(f"v_mfma_f32_32x32x16_bf16 {vr(d,16)}, {vr(A[m],4)}, {vr(B[nt],4)}, {'0' if first else vr(d,16)}")
        if "snk" in opt: out = [out[0], out[1], out[3], out[2]]
        if "snb" in opt: out = [out[0], out[2], out[3], out[1]]
        if "sna" in opt: out = [out[0], out[2], out[1], out[3]]
        return out
    def cs_mfma(p):
        o = []
        sh, n = ("16x16x32", 4) if "cs16" in opt else ("32x32x16", 16)
        mm = [f"v_mfma_f32_{sh}_bf16 {vr(CSA,n)}, {vr(CS1,4)}, {vr(F(p)+4*m,4)}, {'0' if p == 0 else vr(CSA,n)}" for m in range(2)]
        if "csv" in opt:
            for m in range(2):
                o += [f"s_bitcmp1_b32 s{sCSM}, {m}", f"s_cbranch_scc0 L_cs{p}_{m}"]
                o += [f"v_dot2_f32_bf16 v{CSA+4+(d&1)}, v{F(p)+4*m+d}, v{CS1}, {'0' if p == 0 and d < 2 else 'v%d' % (CSA+4+(d&1))}" for d in range(4)]
                o += [f"L_cs{p}_{m}:"]
            return o
        if "csb" in opt:
            return [f"s_cbranch_vccz L_cs{p}_1", f"s_bitcmp1_b32 s{sCSM}, 0", f"s_cbranch_scc0 L_cs{p}_0", mm[0], f"s_branch L_cs{p}_1",
                    f"L_cs{p}_0:", mm[1], f"L_cs{p}_1:"]
        if "cs16" in opt:
            for m in range(2): o += [f"s_bitcmp1_b32 s{sCSM}, {m}", f"s_cbranch_scc0 L_cs{p}_{m}", mm[m], f"L_cs{p}_{m}:"]
            return o
        for m in range(2):
            o += [f"s_bitcmp1_b32 s{sCSM}, {m}", f"s_cbranch_scc0 L_cs{p}_{m}",
                  f"v_mfma_f32_32x32x16_bf16 {vr(CSA,16)}, {vr(CS1,4)}, {vr(F(p)+4*m,4)}, {'0' if p == 0 else vr(CSA,16)}",
                  f"L_cs{p}_{m}:"]
        return o
    sCSB = SSH + 2
    cs_store = [L(f"""
        s_lshl_b32 s{sCSB}, s{sCB}, 2
        s_add_u32 s{sCSB}, s{sCSB}, s{sWC}
        s_lshl_b32 s{sCSB}, s{sCSB}, 10
        s_add_u32 s{sCSB}, s{sCSB}, {WS_CS}
        s_cmp_eq_u32 s{sCSM}, {'s%d' % sCSM if "nocs" in opt else 0}
        s_cbranch_scc1 L_nocs
        {f"v_add_f32 v{CSA}, v{CSA+4}, v{CSA+5}" if "csv" in opt else ""}
        {f"v_mov_b32 v{CSA+4}, v{CSA}" if "csv" in opt else ""}
        {f"s_nop 1" if "csv" in opt else ""}
        {f"v_permlane32_swap_b32 v{CSA+4}, v{CSA}" if "csv" in opt else ""}
        {f"s_nop 1" if "csv" in opt else ""}
        {f"v_add_f32 v{CSA}, v{CSA+4}, v{CSA}" if "csv" in opt else ""}
        v_cvt_pk_bf16_f32 v{CSA+1}, v{CSA}, v{CSA}
        s_mul_i32 s{sT2}, s{sWR}, 57344
        v_lshlrev_b32 v{CSA+1}, 16, v{CSA+1}
        s_lshr_b32 s{sT3}, s{sKEY}, 1
        v_sub_f32 v{CSA+1}, v{CSA}, v{CSA+1}
        s_lshl_b32 s{sT3}, s{sT3}, 3
        v_cvt_pk_bf16_f32 v{CSA}, v{CSA}, v{CSA+1}
        s_add_u32 s{sT2}, s{sT2}, s{sT3}
        v_mov_b32 v{CSA+1}, v{vTAG}
        s_add_u32 s{sT2}, s{sT2}, s{sCSB}
        v_lshlrev_b32 v{CSA+2}, 5, v0
        s_mov_b32 exec_hi, 0
        buffer_store_dwordx2 {vr(CSA,2)}, v{CSA+2}, {sr(SWS,4)}, s{sT2} offen sc1
        s_mov_b32 exec_hi, -1
        L_nocs:
        """)]
    EG, EU, ER, EB0, EB1 = 128, 132, 20, 136, 140
    ex_addr = L(f"""
        v_and_b32 v24, 31, v0
        v_lshrrev_b32 v25, 5, v0
        v_lshlrev_b32 v25, 4, v25
        v_lshl_add_u32 v{vX0}, v24, 5, v25
        v_and_b32 v24, 15, v0
        v_lshrrev_b32 v25, 4, v0
        v_lshlrev_b32 v25, 3, v25
        v_lshl_add_u32 v{vX1}, v24, 5, v25
        s_lshl_b32 s{sKEY}, s{sRB}, 1
        s_add_u32 s{sKEY}, s{sKEY}, s{sWR}
        s_lshl_b32 s{sWB}, s{sKEY}, 9
        s_add_u32 s{sWB}, s{sWB}, {WS_RS}
        s_add_u32 s{sXB}, s{sCSB}, 57344
        """)
    ex_ld = [f"buffer_load_dwordx4 {vr(EG,4)}, v{vX0}, {sr(SWS,4)}, s{sCSB} offen sc1",
             f"buffer_load_dwordx4 {vr(EU,4)}, v{vX0}, {sr(SWS,4)}, s{sXB} offen sc1",
             f"buffer_load_dwordx2 {vr(ER,2)}, v{vX1}, {sr(SWS,4)}, s{sWB} offen sc1"]
    ex_check = L(f"""
        v_min3_u32 v24, v{EG+1}, v{EG+3}, v{ER+1}
        v_max3_u32 v25, v{EG+1}, v{EG+3}, v{ER+1}
        v_min3_u32 v24, v24, v{EU+1}, v{EU+3}
        v_max3_u32 v25, v25, v{EU+1}, v{EU+3}
        v_cmp_ne_u32 vcc, s{sTAG}, v24
        v_cmp_ne_u32 s[{sT0}:{sT1}], s{sTAG}, v25
        s_or_b64 vcc, vcc, s[{sT0}:{sT1}]
        """)
    AP, BP, SS, vHO, TM = 22, 24, 26, 28, FR
    RM = row_math()
    def part(lst, i, n): return lst[len(lst) * i // n:len(lst) * (i + 1) // n]
    def os_(k, d=""): return ([o[len(k):] for o in opt if o.startswith(k)] + [d])[0]
    W = [0]
    def cum(t): return [sum(int(x) for x in t[:i]) for i in range(5)]
    def step(s, role):
        wi = W[0]
        c, j = divmod(s, 4)
        fill = []; pre = []; post = []
        NB7, PO = "nb7" in opt, os_("po=")
        if IW and s == oi("iwg", -1): a([f"s_cmp_ge_u32 s{sW}, 4", "s_cbranch_scc1 L_iwx"] + walk("g") + ["L_iwx:"])
        if IW and s == oi("iwf", 32): a("L_iwa:")
        if oi("iy", 0) and s == oi("iyf", 1): a("L_iya:")
        if oi("iy", 0) and s == oi("iyl", 32): a("L_iyb:")
        if j == 0 and s < 32:
            if not (NB7 and c == 7):
                a(I(wvm=["c6", "c7"] if NB7 and c == 6 else f"c{c}", wlg="*"))
                a("s_barrier")
            stamp(f"B{c}")
            if PO and c == int(PO[0]):
                a(f"s_setprio {PO[2]}\ns_cmp_lt_u32 s{sW}, 4\ns_cbranch_scc0 L_po\ns_setprio {PO[1]}\nL_po:")
            PR_ = os_(f"Rq{role}=")
            if PR_ and (c == 0 or PR_[c] != PR_[c - 1]): a(f"s_setprio {PR_[c]}")
            if "g1only" in opt and s == 20: a("s_waitcnt vmcnt(0)\ns_branch L_prof")
        if prof and os_(f"zz{s}="): a(f"s_sleep {os_(f'zz{s}=')}")
        if prof and os_(f"zy{s}="): a(f"s_cmp_lt_u32 s{sW}, 4\ns_cbranch_scc1 L_zy{s}\ns_sleep {os_(f'zy{s}=')}\nL_zy{s}:")
        DR = os_("drop=")
        if s == SWL: pre += [wp_load]
        if s == SPW: pre += [ap(wf_ld, 28, "apw", "fw")]
        if s == SKF: pre += [ap(kf_ld, 32, "apk", "kf")]
        if s == XE: pre += [I(x, vm="ex") for x in ex_ld]
        if s == 0:
            assert C1E in (0, 2, 4, 6)
            if 0 < C1E < 6: fill += [chunk_dma(1)[0][:4]]
            fill += chunk_dma(1)[C1E:]
            if "rowl" in opt: fill += row_load()
            if SHL == -5: fill += h_load(27)
        if c <= 5:
            cu = cum(os_(f"Re{role}=", "0222") if c == 0 and C1E < 6 else os_(f"Rd{role}{c}=", os_(f"Rd{role}=", "2121")))
            assert cu[4] == 6
            g = chunk_dma(c + 2)[cu[j]:cu[j + 1]]
            pm = os_(f"Rm{role}{c}=", os_(f"Rm{role}=", "0000"))[j]
            hp = os_(f"Rp{role}=", "0")
            if hp[0] != "0" and g:
                if pm == "0" and s: g = [[f"s_setprio {hp[0]}", x, "s_setprio 0"] for x in g]
                else: g = [f"s_setprio {hp[0]}"] + g + ["s_setprio 0"]
            if s == 0 or pm == "0": fill += g
            elif pm == "1": pre += g
            else: post += g
        if PF == str(s): fill += [prefetch(4)]
        if s == oi("c3p", -1): fill += [c3p(role, 4, "a")]
        IL = os_("il=", "")
        RD = reads(s) if s < 32 else []
        if IL:
            for x, t in zip(RD, "aaabbc"): x.lg += t
        if not IL or s == 0: a(RD)
        wp_rd = [I(f"ds_read_b64_tr_b16 {vr(WP,2)}, v{vWPA}", lg="wp", wvm="wpl"),
                 I(f"ds_read_b64_tr_b16 {vr(WP+2,2)}, v{vWPA} offset:512", lg="wp")]
        wp_st = I(f"buffer_store_dwordx4 {vr(WP,4)}, v{vWPS}, {sr(SWS,4)}, s{sWPS} offen sc1", vm="wps", wlg="wp")
        if s == 0:
            a(pre + fill + (wp_rd if SWR == 0 else [])); return
        p = s - 1
        v = []
        if s in (SHL, SHL + oi("hd", 2))[:1 if H1 else 2] and "h" not in DR:
            g = h_load(31)[(s - SHL) // oi("hd", 2)]
            if "hx" in opt: g[-1].text = g[-1].text.replace(sr(SH, 4), sr(SX, 4))
            if oi("hpt", 0):
                g = ([f"v_and_b32 v156, 7, v0", f"v_lshlrev_b32 v156, 7, v156"] + g[:-1] +
                     [f"s_bitcmp1_b32 0x2a2a, s{sCB}", "s_cselect_b64 exec, 0, -1", g[-1],
                      f"s_bitcmp1_b32 0x1515, s{sCB}", "s_cselect_b64 exec, 0xff, 0", f"s_cselect_b32 s{sT3}, 0x8000, 0", f"s_add_u32 s{sT2}, s{sT2}, s{sT3}",
                      I(f"buffer_load_dword v157, v156, {sr(SH,4)}, s{sT2} offen", vm="hl"), "s_mov_b64 exec, -1"])
            if not (("1" in DR and s == SHL) or ("2" in DR and s != SHL)): fill += [g]
        if s == oi("hpt", 0):
            g = h_load(31)[0]
            fill += [g[:-1] + [f"s_bitcmp1_b32 0x2a2a, s{sCB}", "s_cselect_b64 exec, -1, 0", g[-1], "s_mov_b64 exec, -1"]]
        if s == oi("tg", 4) and "t" not in DR: v += [I(tag_math[0], wvm="ep")] + tag_math[1:]
        if s == SWR and "w" not in DR: fill += wp_rd
        if s == SWR + 1 and "w" not in DR: fill = [wp_st] + fill if SWR == 0 else fill + [wp_st]
        RM0, RMN = oi("rm", 5), oi("rn", 5)
        if s == SRL:
            x = row_load()[1][4:]; x[-1].vm = "xr"; fill += [x]
        if SRL >= 0 and s == RM0: v += [I(f"s_mov_b32 s{sB}, 0x3f803f80", wvm="xr")]
        if SRL >= 0 and s == oi("wf", 11):
            fill += [[f"s_lshl_b32 s{sT2}, s{sA}, 3", f"s_add_u32 s{sT2}, s{sT2}, {WS_RS + 16384}"] +
                     one(f"buffer_store_dword v{vTAG}, off, {sr(SWS,4)}, s{sT2} offset:4 sc1", vm="wf", wvm="wps")]
        if RM0 <= s < RM0 + RMN and "t" not in DR: v += part(RM[:-1], s - RM0, RMN)
        if s == SRS and "r" not in DR: fill = [RM[-1]] + fill if "rsf" in opt else fill + [RM[-1]]
        if s == oi("cst", 10) and "c" not in DR and "S" not in DR: v += cs_store
        if s == 11 and "a" not in DR: v += [wf_addr]
        HM, HW = oi("hm", 21), oi("hw", 24)
        if HM <= s <= HM + 2: v += part(h_math, s - HM, 3)
        if s == SPW + oi("pd", 3): pre += [[I(wvm="fw")] + ne(vFL) + ["s_cbranch_scc0 L_fw_ok"] + spin("fw", ap(wf_ld, 28, "apw"), ne(vFL))]
        if s == 19: v += kf_addr
        if HW <= s <= HW + 2: v += [h_write[s - HW]]
        if s == XE - 1: v += ex_addr
        if s == SRD: fill = [[I(wvm="kf")] + ne(vKL) + [f"s_cselect_b32 s{sOK}, 0, 1"] +
                             ([f"s_cselect_b64 vcc, 0, -1"] + r_dma(24)[:-1] + ["s_mov_b64 exec, vcc", r_dma(24)[-1], "s_mov_b64 exec, -1"] if "mskr" in opt else r_dma(oi("rt", 24)))] + fill
        if s == 30: v += [f"v_mov_b32 v{r}, 0" for r in (EB0 + 1, EB0 + 3, EB1 + 1, EB1 + 3)] + [f"s_mov_b32 s{sB}, 0x03020302"]
        n = wsched.get(s, 0); fill += WL[wi:wi + n]; W[0] += n
        if s == 32:
            a(I(wvm="ex"))
            a(ex_check + ["s_cbranch_scc0 L_ex_ok"] + spin("ex", ex_ld, ex_check))
            v += L(f"""
            v_mov_b32 v{ER+1}, v{ER}
            v_permlane32_swap_b32 v{ER}, v{ER+1}
            v_perm_b32 v{EB0}, v{ER}, v{ER}, s{sB}
            v_perm_b32 v{EB0+2}, v{ER}, v{ER}, s{sB}
            v_perm_b32 v{EB1}, v{ER+1}, v{ER+1}, s{sB}
            v_perm_b32 v{EB1+2}, v{ER+1}, v{ER+1}, s{sB}
            v_lshlrev_b32 v{ER}, 16, v{ER}
            v_lshlrev_b32 v{ER+1}, 16, v{ER+1}
            """)
        hd = []
        if c <= 5 and os_(f"Rm{role}{c}=", os_(f"Rm{role}=", "0000"))[j] == "1": hd, pre = pre, []
        fill = pre + (mix(v, fill) if len(v) >= len(fill) else mix(fill, v)) if (v and fill) else pre + v + fill
        a(hd)
        f = F(p)
        MM = mfmas((f, f + 4), (f + 8, f + 12), p == 0, p)
        if prof and oi("my", 0) <= p < oi("mz", 0): MM = mfmas((180, 180), (180, 180) if "mzb" in opt else (f + 8, f + 12), p == 0, p)
        if IL:
            nm = len(MM)
            cu2 = lambda t: [sum(int(x) for x in t[:i]) for i in range(nm + 1)]
            rc = cu2(IL[:nm]); fc = cu2(IL[nm:2 * nm])
            assert rc[nm] == 6
            for i in range(nm):
                a(I(MM[i], wlg=f"r{p}" + ("abcc" if nm == 4 else "abbbcccc")[i]))
                a(RD[rc[i]:rc[i + 1]])
                a(fill[(len(fill) * fc[i] + fc[nm] // 2) // fc[nm]:(len(fill) * fc[i + 1] + fc[nm] // 2) // fc[nm]])
        else:
            a(I(wlg=f"r{p}"))
            NP_ = os_("np=")
            if prof and NP_ and p < len(NP_) and NP_[p] != "0": MM = [[m_] + ["s_nop 15"] * int(NP_[p]) for m_ in MM]
            a(mix(MM, fill))
        if p < 8 and "nocs" not in opt and "c" not in DR and "C" not in DR: a(cs_mfma(p))
        a(post)
        stamp(f"s{s}")
    if "split" in opt:
        a(f"s_cmp_lt_u32 s{sW}, 4\ns_cbranch_scc0 L_g1y")
        sv = (list(a.vq), list(a.lq), W[0])
        for s in range(24): step(s, "o")
        a(I(wvm="c6", wlg="*"))
        a("s_branch L_g1m")
        vo = list(a.vq)
        a("L_g1y:")
        a.vq, a.lq, W[0] = sv
        i0 = len(a.lines)
        for s in range(24): step(s, "y")
        a(I(wvm="c6", wlg="*"))
        defs = [x[:-1] for x in a.lines[i0:] if x.endswith(":")]
        for i in range(i0, len(a.lines)):
            for d in defs: a.lines[i] = re.sub(rf"\b{d}\b", d + "_y", a.lines[i])
        a("L_g1m:")
        a.vq = [tuple(set(vo + a.vq))]
        for s in range(24, 33): step(s, "o")
    else:
        for s in range(33): step(s, "o")
    wi = W[0]
    fill = []
    EO = oi("eo", 2)
    cA, cB, cS = ([lambda nt, b=b: b + nt for b in (AP, BP, SS)] if EO == 0 else
                  [lambda nt, b=b: FR + 16 + 6 * nt + b for b in (0, 2, 4)])
    for nt in range(2):
        if BI:
            fill += [f"v_rcp_f32 v{TM+nt}, v{ER+nt}"] + [f"v_mov_b32 v{cS(nt)+i}, {fx((-float(ESH), 2.0 ** -ESH)[nt])}" for i in range(2)]
            continue
        fill += [f"v_rcp_f32 v{TM+nt}, v{ER+nt}", f"v_mul_f32 v{cS(nt)}, v{ER+nt}, v{ER+nt}"]
        if EO == 2: fill += [f"v_mul_f32 v{cS(nt)+1}, v{ER+nt}, v{ER+nt}"]
    for nt in range(2):
        fill += [f"v_mul_f32 v{cA(nt)}, {fx(-KC)}, v{TM+nt}"]
        if EO == 2: fill += [f"v_mul_f32 v{cA(nt)+1}, {fx(-KC)}, v{TM+nt}"]
        fill += [f"v_mul_f32 v{TM+nt}, v{TM+nt}, v{TM+nt}",
                 f"v_mul_f32 v{TM+nt}, {fx(0.044715)}, v{TM+nt}", f"v_mul_f32 v{cB(nt)}, v{cA(nt)}, v{TM+nt}"]
        if EO == 2: fill += [f"v_mul_f32 v{cB(nt)+1}, v{cA(nt)}, v{TM+nt}"]
    sHF = SK
    fill += L(f"""
    v_bfe_u32 v{TM+8}, v0, 4, 1
    v_mul_u32_u24 v{TM+8}, 57344, v{TM+8}
    v_and_b32 v{TM+9}, 15, v0
    v_lshl_add_u32 v{TM+8}, v{TM+9}, 4, v{TM+8}
    v_lshrrev_b32 v{TM+9}, 5, v0
    v_lshl_add_u32 v{vHO}, v{TM+9}, 8, v{TM+8}
    s_mul_i32 s{sXB}, s{sKEY}, {4*56*1024}
    s_add_u32 s{sXB}, s{sXB}, s{sCSB}
    s_add_u32 s{sXB}, s{sXB}, {WS_H - WS_CS}
    s_add_u32 s{sWB}, s{sXB}, {2*56*1024}
    s_sub_u32 s{sHF}, s{sCSB}, {WS_CS}
    s_lshr_b32 s{sHF}, s{sHF}, {10 - FS}
    s_mul_i32 s{sT0}, s{sKEY}, {56 << FS}
    s_add_u32 s{sHF}, s{sHF}, s{sT0}
    s_add_u32 s{sHF}, s{sHF}, {WS_FH}
    """)
    a(mix(mfmas((EG, EU), (EB0, EB1), False, 2), fill))
    stamp("B8")
    if os_("po="): a(f"s_setprio {os_('po=')[3]}")
    if oi("pe", 0): a(f"s_setprio {oi('pe', 0)}")
    def epi(G, U, nt, rr, pk, plain=False):
        o = []
        t = {r: TM + 2 * i for i, r in enumerate(rr)}
        P = lambda x: vr(x, 2)
        s2 = (f"op_sel:[0,{nt},{nt}] op_sel_hi:[1,{nt},{nt}]", "op_sel_hi:[1,0,0]", "")[EO]
        AP, BP, SS = [f(nt) & ~1 for f in (cA, cB, cS)]
        if plain:
            e = [(t[r] + i, G + r + i, U + r + i) for r in rr for i in range(2)]
            o += [f"v_mul_f32 v{x}, v{g}, v{g}" for x, g, u in e]
            o += [f"v_fma_f32 v{x}, v{x}, v{BP}, v{AP}" for x, g, u in e]
            o += [f"v_mul_f32 v{x}, v{x}, v{g}" for x, g, u in e]
            o += mix([f"v_exp_f32 v{x}, v{x}" for x, g, u in e], [f"v_mul_f32 v{u}, v{u}, v{g}" for x, g, u in e])
            o += [f"v_fma_f32 v{x}, v{x}, v{SS}, v{SS}" for x, g, u in e]
            o += [f"v_rcp_f32 v{x}, v{x}" for x, g, u in e]
            o += [f"v_mul_f32 v{u}, v{u}, v{x}" for x, g, u in e]
            o += [f"v_cvt_pk_bf16_f32 v{pk+i}, v{U+r}, v{U+r+1}" for i, r in enumerate(rr)]
            return o
        o += [f"v_pk_mul_f32 {P(t[r])}, {P(G+r)}, {P(G+r)}" for r in rr]
        o += [f"v_pk_fma_f32 {P(t[r])}, {P(t[r])}, {P(BP)}, {P(AP)} {s2}" for r in rr]
        if BI:
            rr = list(rr); bt = [(rr[0], rr[1]), (rr[2], rr[3])]
            o += [f"v_pk_fma_f32 {P(t[r])}, {P(t[r])}, {P(G+r)}, {P(cS(0))}" for r in rr]
            ex = [f"v_exp_f32 v{t[r]+i}, v{t[r]+i} clamp" for r in rr for i in range(2)]
            ug = [f"v_pk_mul_f32 {P(U+r)}, {P(U+r)}, {P(G+r)}" for r in rr]
            ad = [f"v_pk_add_f32 {P(t[r])}, {P(t[r])}, {P(cS(1))}" for r in rr]
            M = [f"v_pk_mul_f32 {P(G+q)}, {P(t[p])}, {P(t[q])}" for p, q in bt]
            m = [f"v_mul_f32 v{G+p}, v{G+q}, v{G+q+1}" for p, q in bt]
            rc = [f"v_rcp_f32 v{G+p}, v{G+p}" for p, q in bt]
            cr = [f"v_pk_mul_f32 {P(U+x)}, {P(U+x)}, {P(t[y])}" for p, q in bt for x, y in ((p, q), (q, p))]
            N = [f"v_pk_mul_f32 {P(G+q)}, {P(G+q)}, {P(G+p)} op_sel:[1,0] op_sel_hi:[0,0]" for p, q in bt]
            fi = [f"v_pk_mul_f32 {P(U+x)}, {P(U+x)}, {P(G+q)}" for p, q in bt for x in (p, q)]
            cv = [f"v_cvt_pk_bf16_f32 v{pk+i}, v{U+r}, v{U+r+1}" for i, r in enumerate(rr)]
            o += [ex[0], ug[0], ex[1], ug[1], ex[2], ug[2], ex[3], ad[0], ex[4], ad[1], ug[3], ex[5], M[0], ex[6], m[0], ad[2],
                  ex[7], cr[0], rc[0], ad[3], cr[1], M[1], N[0], m[1], cr[2], rc[1], fi[0], fi[1], cr[3], N[1], cv[0], cv[1],
                  fi[2], fi[3], cv[2], cv[3]]
            return o
        o += [f"v_pk_mul_f32 {P(t[r])}, {P(t[r])}, {P(G+r)}" for r in rr]
        o += mix([f"v_exp_f32 v{t[r]+i}, v{t[r]+i}" for r in rr for i in range(2)],
                 [f"v_pk_mul_f32 {P(U+r)}, {P(U+r)}, {P(G+r)}" for r in rr])
        o += [f"v_pk_fma_f32 {P(t[r])}, {P(t[r])}, {P(SS)}, {P(SS)} {s2}" for r in rr]
        o += [f"v_rcp_f32 v{t[r]+i}, v{t[r]+i}" for r in rr for i in range(2)]
        o += [f"v_pk_mul_f32 {P(U+r)}, {P(U+r)}, {P(t[r])}" for r in rr]
        o += [f"v_cvt_pk_bf16_f32 v{pk+i}, v{U+r}, v{U+r+1}" for i, r in enumerate(rr)]
        return o
    HSP = ("sc1", "sc0 sc1", "sc1 nt", "sc0 sc1 nt", "", "nt")[oi("hsp", 0)]
    for nt in range(2):
        G = ACC + 16 * nt; U = ACC + 32 + 16 * nt
        for h in range(2):
            pk = TM + 8 + 4 * h
            seq = epi(G, U, nt, range(8 * h, 8 * h + 8, 2), pk, 2 * nt + h < oi('npl', 0))
            n = wepi[2 * nt + h]
            ex = WL[wi:wi + n]; wi += n
            q = 33 + 2 * nt + h
            if oi("hm", 21) == q: ex = ex + h_math
            if oi("hw", 24) == q: ex = ex + h_write
            if SRD == q: ex = ex + [[I(wvm="kf")] + ne(vKL) + [f"s_cselect_b32 s{sOK}, 0, 1"] + r_dma(24)]
            if SRD == q + 10: ex = [[I(wvm="kf")] + ne(vKL) + [f"s_cselect_b32 s{sOK}, 0, 1"] + r_dma(24)] + ex
            a(mix(seq, ex))
            so = sXB if nt == 0 else sWB
            a(I(f"buffer_store_dwordx4 {vr(pk,4)}, v{vHO}, {sr(SWS,4)}, s{so} offen offset:{512*h} {HSP}", vm="hs"))
            stamp(f"e{2*nt+h}")
    assert wi == NPRE
    a(f"s_branch {JOIN}")
    if IW:
        a("L_iwb:\nL_iwret:")
        if oi("iwg", -1) >= 0 or "iwy" in opt: a(f"s_cmp_lg_u32 s{sISG}, 0\ns_cbranch_scc1 L_iwr_g")
        if "iwna" not in opt: a("s_branch L_iwr_a")
    vq_join = list(a.vq)

    a(["s_nop 0"] * oi("pad", 0))
    a(f"{AUX}:")
    if "noaux" in opt: a(f"s_branch {END}")
    a.vq, a.lq = list(vq_pro), []
    vKa, vKb, TP, vT, vKS, KR, KT = 1, 2, 32, 6, 10, 48, 96
    sKO, sKL = sXB, sWB
    a(row_load())
    AXL = oi("axl", 0)
    a(["s_nop 7"] * (len(SCN) > 0) + sc_init)
    if AXL & 2: a(h_load(27))
    if AXL & 1: a(I(wvm="ep")); a(tag_math); a(row_math())
    if AXL & 4: a(I(wvm="*"))
    if oi("asl", 0): a(f"s_sleep {oi('asl', 0)}")
    a(f"""
    s_xor_b32 s{sCB}, s{sXCD}, s{sW}
    v_and_b32 v23, 1, v21
    v_lshlrev_b32 v23, 1, v23
    v_xor_b32 v23, v22, v23
    v_lshlrev_b32 v23, 4, v23
    v_lshl_add_u32 v{vKa}, v20, 10, v23
    {f"v_lshlrev_b32 v{vKa}, 4, v0" if "kvlin" in opt else ""}
    v_xor_b32 v{vKb}, 64, v{vKa}
    s_lshl_b32 s{sKO}, s{sRBL}, 3
    s_add_u32 s{sKO}, s{sKO}, s{sW}
    s_mov_b32 s{sKEY}, s{sKO}
    s_lshl_b32 s{sKO}, s{sKO}, 16
    s_lshl_b32 s{sT0}, s{sCB}, {13 if "kvlin" in opt else 7}
    s_add_u32 s{sKO}, s{sKO}, s{sT0}
    s_mul_i32 s{sKL}, s{sW}, 17408
    {f"s_cmp_eq_u32 s{sCB}, 3" if oi("k3f", 0) else ""}
    {"s_cbranch_scc1 L_k3a" if oi("k3f", 0) else ""}
    {"s_barrier" if oi("k3f", 0) else ""}
    {"L_k3a:" if oi("k3f", 0) else ""}
    s_mov_b32 m0, s{sKL}
    s_cmp_eq_u32 s{sKEY}, 0
    s_cbranch_scc1 L_halo0
    s_sub_u32 s{sT0}, s{sKO}, 8192
    buffer_load_dwordx4 v{vKa}, {sr(SK,4)}, s{sT0} offen lds
    s_branch L_halo1
    L_halo0:
    v_mov_b32 v40, 0
    v_mov_b32 v41, 0
    v_mov_b32 v42, 0
    v_mov_b32 v43, 0
    ds_write_b128 v{vL16}, v[40:43]
    L_halo1:
    """)
    def c3a():
        t = 150; PW = os0("c3v=", "wx"); o = []
        if "w" in PW: o += L(f"""
        s_and_b32 s{sT2}, s{sXCD}, 1
        s_mul_i32 s{sT2}, s{sT2}, 3
        s_add_u32 s{sT2}, s{sT2}, s{sRBL}
        s_and_b32 s{sT3}, s{sXCD}, 1
        s_lshl_b32 s{sT3}, s{sT3}, 2
        s_or_b32 s{sT3}, s{sT3}, s{sRBL}
        s_cmp_eq_u32 s{sT3}, 3
        s_cselect_b32 s{sT3}, 9, s{sW}
        s_cmp_gt_u32 s{sT3}, 3
        s_cbranch_scc1 L_c3a1
        s_and_b32 s{sT3}, s{sT2}, 1
        s_mul_i32 s{sT3}, s{sT3}, 3584
        s_lshl_b32 s{sT2}, s{sT2}, 9
        s_add_u32 s{sT2}, s{sT2}, s{sT3}
        s_andn2_b32 s{sT3}, 2, s{sXCD}
        s_add_u32 s{sT3}, s{sT3}, s{sWC}
        s_mul_i32 s{sT3}, s{sT3}, {128 * 3584}
        s_add_u32 s{sT2}, s{sT2}, s{sT3}
        v_mul_u32_u24 v{t}, 7168, v0
        s_bitcmp1_b32 s{sW}, 0
        s_cbranch_scc1 L_c3a0
        buffer_load_dword v{t+1}, v{t}, {sr(SWG,4)}, s{sT2} offen offset:384
        s_branch L_c3a1
        L_c3a0:
        buffer_load_dword v{t+1}, v{t}, {sr(SWU,4)}, s{sT2} offen offset:384
        L_c3a1:
        """)
        if "x" in PW: o += L(f"""
        s_andn2_b32 s{sT3}, 2, s{sXCD}
        s_xor_b32 s{sT2}, s{sWC}, 2
        s_or_b32 s{sT2}, s{sT2}, s{sT3}
        s_cbranch_scc1 L_c3a2
        s_lshl_b32 s{sT2}, s{sRB}, 1
        s_add_u32 s{sT2}, s{sT2}, s{sWR}
        s_lshl_b32 s{sT2}, s{sT2}, 16
        v_lshlrev_b32 v{t+3}, 10, v0
        buffer_load_dword v{t+4}, v{t+3}, {sr(SX,4)}, s{sT2} offen offset:384
        L_c3a2:
        """)
        return o
    C3A = oi("c3a", -1)
    k3b = [f"s_cmp_eq_u32 s{sCB}, 3", "s_cbranch_scc0 L_k3b", "s_barrier", "L_k3b:"]
    def kv_ld(m, b, tag):
        lb = (1 + b) if m == 0 else (9 + b)
        par = (lb & 1) if m == 0 else (b & 1)
        return [f"s_add_u32 m0, s{sKL}, {1024*lb}", f"s_add_u32 s{sT0}, s{sKO}, {(1024 if 'kvlin' in opt else 8192)*b}",
                I(f"buffer_load_dwordx4 v{vKb if par else vKa}, {sr(SV if m else SK,4)}, s{sT0} offen{NTK} lds", vm=tag)]
    for b in range(4):
        if C3A == b: a(c3a())
        a(kv_ld(0, b, "k0")); a(kv_ld(1, b, "k0"))
        if oi("k3f", 0) == b + 1: a(k3b)
    a(f"""
    v_and_b32 v23, 15, v0
    v_lshlrev_b32 v26, 3, v23
    s_lshl_b32 s{sT1}, s{sCB}, 9
    """)
    for cg in range(4):
        a(I(f"buffer_load_dwordx2 {vr(TP+2*cg,2)}, v26, {sr(SSH,4)}, s{sT1} offen offset:{128*cg}", vm="k0"))
    for b in range(4, 8):
        if C3A == b: a(c3a())
        a(kv_ld(0, b, "k1")); a(kv_ld(1, b, "k1"))
        if oi("k3f", 0) == b + 1: a(k3b)
    if C3A == 8: a(c3a())
    if not AXL & 2: a(h_load(27))
    stamp("iss", 4)
    IWP = oi("iwp", 0) if IW and "iwna" not in opt else -1
    if IWP == 0: a(walk("a"))
    a(f"""
    v_lshlrev_b32 v26, 7, v24
    v_lshl_add_u32 v26, v21, 10, v26
    v_lshl_add_u32 v26, v25, 3, v26
    v_lshrrev_b32 v27, 1, v24
    v_lshl_add_u32 v26, v27, 5, v26
    v_and_b32 v27, 1, v21
    v_lshl_add_u32 v26, v27, 6, v26
    v_add_u32 v{vT}, s{sKL}, v26
    v_xor_b32 v{vT+1}, 32, v{vT}
    v_xor_b32 v{vT+2}, 64, v{vT}
    v_xor_b32 v{vT+3}, 96, v{vT}
    v_lshrrev_b32 v26, 1, v23
    v_lshlrev_b32 v26, 13, v26
    v_and_b32 v27, 1, v0
    v_lshl_add_u32 v26, v27, 4, v26
    v_sub_u32 v27, 3, v21
    v_lshl_add_u32 v{vKS}, v27, 5, v26
    s_lshl_b32 s{sKO}, s{sCB}, 18
    s_lshl_b32 s{sT0}, s{sKEY}, 8
    s_sub_u32 s{sKO}, s{sKO}, s{sT0}
    s_add_u32 s{sKO}, s{sKO}, {WS_KV + 8192 - 256}
    """)
    if not AXL & 1: a(I(wvm="ep")); a(tag_math); a(row_math())
    stamp("rs", 1)
    if IWP == 3: a(walk("a"))
    def kv_read(hh, cg):
        r = KR + 10 * cg; t = f"kr{cg}"
        return [I(f"ds_read_b64_tr_b16 {vr(r,2)}, v{vT+cg} offset:{4096*hh+512}", lg=t),
                I(f"ds_read_b64_tr_b16 {vr(r+2,2)}, v{vT+(cg^2)} offset:{4096*hh+1024}", lg=t),
                I(f"ds_read_b64_tr_b16 {vr(r+4,2)}, v{vT+(cg^2)} offset:{4096*hh+1536}", lg=t),
                I(f"ds_read_b64_tr_b16 {vr(r+6,2)}, v{vT+cg} offset:{4096*hh+9216}", lg=t),
                I(f"ds_read_b64_tr_b16 {vr(r+8,2)}, v{vT+cg} offset:{4096*hh+9728}", lg=t)]
    def kv_math(hh, cg):
        r = KR + 10 * cg; q, u, w, pk = KT, KT + 8, KT + 16, KT + 24 + 4 * (cg & 1)
        o = [I(wlg=f"kr{cg}")]
        o += [f"v_alignbit_b32 v{q+i}, v{r+i}, v{r+i-1}, 16" for i in range(1, 6)]
        src = lambda t, back: (r if t & 1 else q) + 2 + t // 2 - back
        for t in (1, 3, 5, 7, 0, 2, 4, 6): o += [f"v_dot2_f32_bf16 v{u+t}, v{src(t,0)}, v{TP+2*cg}, 0"]
        for t in (1, 3, 5, 7, 0, 2, 4, 6): o += [f"v_dot2_f32_bf16 v{u+t}, v{src(t,1)}, v{TP+2*cg+1}, v{u+t}"]
        o += [f"v_and_b32 v{w+t}, 0xffff0000, v{r+6+t//2}" if t & 1 else f"v_lshlrev_b32 v{w+t}, 16, v{r+6+t//2}" for t in range(8)]
        o += [f"v_mul_f32 v{u+t}, v{u+t}, v{w+t}" for t in range(8)]
        o += [f"v_cvt_pk_bf16_f32 v{pk+e}, v{u+7-2*e}, v{u+6-2*e}" for e in range(4)]
        o += [f"s_add_u32 s{sT0}, s{sKO}, {65536*cg}",
              I(f"buffer_store_dwordx4 {vr(pk,4)}, v{vKS}, {sr(SWS,4)}, s{sT0} offen offset:{128*(1-hh)} sc1", vm="ks")]
        return o
    for hh in range(2):
        a(I(wvm=f"k{hh}", wlg="*"))
        stamp("kin", 5 + 2 * hh)
        for cg in range(4): a(kv_read(hh, cg))
        if hh == 0:
            for d in range(8): a(f"v_alignbit_b32 v{TP+d}, v{TP+d}, v{TP+d}, 16")
        for cg in range(4): a(kv_math(hh, cg))
        stamp("km", 6 + 2 * hh)
        if IWP == 1 and hh == 0: a(walk("a"))
    a(h_math); a(wf_addr)
    vKA2, vKL2 = 27, 28
    ld2 = f"buffer_load_dword v{vKL2}, v{vKA2}, {sr(SWS,4)}, s{sA} offen sc1"
    a(f"""
    s_lshl_b32 s{sT0}, s{sCB}, 5
    s_add_u32 s{sT0}, s{sT0}, s{sKEY}
    s_lshl_b32 s{sT0}, s{sT0}, 2
    s_add_u32 s{sT0}, s{sT0}, {WS_FKV}
    v_lshlrev_b32 v26, 10, v0
    v_lshlrev_b32 v{vKA2}, 3, v0
    s_lshl_b32 s{sA}, s{sRT2}, 9
    s_add_u32 s{sA}, s{sA}, {WS_RS + 4}
    """)
    a([I("s_mov_b64 exec, 3", wvm="*"), f"buffer_store_dword v{vTAG}, v26, {sr(SWS,4)}, s{sT0} offen sc1", "s_mov_b64 exec, -1"])
    stamp("kvf", 2)
    if IWP == 2: a(walk("a"))
    if "dmaonly" in opt or "g1only" in opt: a("s_branch L_prof")
    ck2 = [f"v_xor_b32 v{vFL}, s{sTAG}, v{vFL}", f"v_xor_b32 v{vKL2}, s{sTAG}, v{vKL2}", f"v_or_b32 v{vFL}, v{vFL}, v{vKL2}",
           f"v_cmp_ne_u32 vcc, 0, v{vFL}", "s_cmp_lg_u64 vcc, 0"]
    a("s_barrier")
    a(h_write)
    a(kf_addr); a(f"s_add_u32 s{sC}, s{sC}, 1024")
    stamp("wd", 3)
    a(spin("fwa", ap(wf_ld, 28, "apx") + ap(ld2, 64, "apx"), ck2))
    a(f"""
    s_cmp_lg_u32 s2, 0
    s_cbranch_scc1 L_ep_ok
    s_add_u32 s{sT0}, s{sM0X}, {WS_RS}
    """)
    a(spin("ep", [f"buffer_load_dwordx4 v[32:35], v{vL16}, {sr(SWS,4)}, s{sT0} offen sc1",
                  f"buffer_load_dwordx4 v[36:39], v{vL16}, {sr(SWS,4)}, s{sT0} offen offset:1024 sc1"],
           [f"v_xor_b32 v{r}, s{sTAG}, v{r}" for r in (33, 35, 37, 39)] +
           ["v_or3_b32 v33, v33, v35, v37", "v_or_b32 v33, v33, v39", "v_cmp_ne_u32 vcc, 0, v33", "s_cmp_lg_u64 vcc, 0"]))
    NA = oi("na", 8)
    a(WL[:NA])
    a(spin("kva", ap(kf_ld, 32, "apx"), ne(vKL)))
    a.vq = []
    a(r_dma(24)); a(WL[NA:NPRE]); a(I(wvm="R"))
    a(f"s_branch L_kvok")

    a(f"{JOIN}:")
    a.vq, a.lq = list(vq_join), []
    stamp("join")
    if oi("pe", 0) or (os_("po=") and os_("po=")[3] != "0"): a("s_setprio 0")
    okv = ("s%d" % sOK) if "nocv" in opt else "1"
    a(f"s_cmp_eq_u32 s{sOK}, {okv}\ns_cbranch_scc1 L_kvok")
    a(spin("kv", ap(kf_ld, 32, "apk"), ne(vKL)))
    sv = list(a.vq); a(r_dma(24)); a(I(wvm="*")); a.vq = sv
    a("L_kvok:")
    CA, AF, BF = 32, 64, 128
    vRU, vRH, vPW, vPR, vZW, vZR, vYA, vYR, vOO = 2, 3, 4, 10, 11, 12, 13, 14, 30
    vXF, XN, vRC = 20, 22, 6
    vXF = 1
    sCH, sWQ, sCVB, sRHO = SV, SV + 1, SV + 2, SV + 3
    sOQ = SSH
    a(f"""
    s_lshr_b32 s{sCH}, s{sW}, 2
    s_and_b32 s{sWQ}, s{sW}, 3
    s_mul_i32 s{sCVB}, s{sCH}, {CVCH}
    s_add_u32 s{sCVB}, s{sCVB}, {L_CV}
    s_lshl_b32 s{sT0}, s{sWQ}, 7
    s_add_u32 s{sT0}, s{sT0}, s{sCVB}
    s_add_u32 s{sT1}, s{sT0}, 480
    v_and_b32 v15, 15, v0
    v_and_b32 v16, 48, v0
    v_lshlrev_b32 v31, 5, v15
    v_sub_u32 v31, v16, v31
    v_add_u32 v{vRU}, s{sT1}, v31
    s_add_u32 s{sT1}, s{sT0}, {4608 - 28 + 4160 + 3072}
    v_and_b32 v31, 1, v0
    v_mul_u32_u24 v31, 4160, v31
    v_sub_u32 v31, v16, v31
    v_bfe_u32 v{vRH}, v0, 1, 3
    v_lshl_add_u32 v31, v{vRH}, 2, v31
    v_add_u32 v{vRH}, s{sT1}, v31
    """)
    KHF = oi("hf", 5)
    hf_st = [f"s_cmp_eq_u32 s{sISG}, 0", "s_cbranch_scc1 L_nohf", I(wvm="hs"),
             line(sHF), "L_nohf:"]
    HP = oi("hp", 0)
    if HP:
        pre = [f"s_xor_b32 s{sT0}, s{sXCD}, s{sWR}", f"s_bitcmp1_b32 s{sT0}, 0", "s_cbranch_scc1 L_nohf"]
        if HP == 1:
            pre += ["v_lshrrev_b32 v13, 4, v0", "v_mul_u32_u24 v13, 57344, v13", "v_lshl_add_u32 v13, v15, 6, v13",
                    f"buffer_load_dword v14, v13, {sr(SWS,4)}, s{sXB} offen sc1"]
        if HP == 2:
            pre += ["v_lshrrev_b32 v13, 3, v0", "v_mul_u32_u24 v13, 57344, v13", "v_and_b32 v14, 7, v0", "v_lshl_add_u32 v13, v14, 7, v13",
                    "s_mov_b32 exec_hi, 0", f"buffer_load_dword v14, v13, {sr(SWS,4)}, s{sXB} offen sc1", "s_mov_b32 exec_hi, -1"]
        hf_st = hf_st[:-1] + pre + hf_st[-1:]
    if KHF < 0: a(hf_st); stamp("hflag")
    AM = oi("am", 0)
    a(f"s_cmp_eq_u32 s{sISG}, 0")
    if AM: a(f"s_cselect_b32 s{sOK}, 0, 0xff")
    a("s_cbranch_scc1 L_nowr")
    a(I(wvm="R"))
    a("L_nowr:")
    a(I(wlg="*"))
    if "noc1" not in opt: a("s_barrier")
    stamp("c1")
    a(f"s_or_b32 s{sT0}, s2, s{sW}\ns_cbranch_scc1 L_noep")
    a(one(f"buffer_store_dword v{vTAG}, off, {sr(SWS,4)}, 0 offset:{WS_EPOCH} sc1"))
    a("L_noep:")
    order = [(0, p) for p in range(7, -1, -1)] + [(1, p) for p in range(8)]
    def uread(rr, d): return I(f"ds_read_b128 {vr(AF+32*rr+4*d,4)}, v{vRU} offset:{512*(7-d)+64*rr}", lg=f"a{rr}{d}")
    def hread(k):
        rr, p = order[k]; o = 128 * (p & 1) + 16 * rr; b = BF + 4 * (k % 4)
        g = []
        if rr == 0 and p in (5, 3, 1): g += [f"v_subrev_u32 v{vRH}, 1024, v{vRH}"]
        if rr == 1 and p in (2, 4, 6): g += [f"v_add_u32 v{vRH}, 1024, v{vRH}"]
        return g + [I(f"ds_read2_b32 {vr(b,2)}, v{vRH} offset0:{o} offset1:{o+1}", lg=f"b{k}"),
                    I(f"ds_read2_b32 {vr(b+2,2)}, v{vRH} offset0:{o+2} offset1:{o+3}", lg=f"b{k}")]
    PC, PG = os_("pc="), os_("pg=")
    if PC: a(f"s_setprio {PC[0]}")
    for k in range(3): a(hread(k)); a(uread(0, k))
    for d in range(3, 8): a(uread(0, d))
    XV = 6
    fin_addr = L(f"""
        s_and_b32 s{sRHO}, s{sCT2}, 3
        s_lshl_b32 s{sT0}, s{sRT2}, 3
        s_add_u32 s{sT0}, s{sT0}, s{sW}
        s_lshl_b32 s{sOQ}, s{sT0}, 13
        s_lshl_b32 s{sT1}, s{sCT2}, 7
        s_add_u32 s{sOQ}, s{sOQ}, s{sT1}
        s_lshl_b32 s{sT0}, s{sT0}, 6
        s_add_u32 s{sOQ+1}, s{sT0}, {WS_RS}
        v_and_b32 v31, 3, v0
        v_lshrrev_b32 v1, 5, v0
        v_lshl_add_u32 v31, v1, 2, v31
        v_and_b32 v{vOO}, 28, v0
        v_lshlrev_b32 v{vOO}, 2, v{vOO}
        v_lshl_add_u32 v{vOO}, v31, 10, v{vOO}
        v_lshlrev_b32 v1, 3, v31
        """)
    fin_ld = [I(f"buffer_load_dwordx4 {vr(XV,4)}, v{vOO}, {sr(SX,4)}, s{sOQ} offen", vm="xt"),
              I(f"buffer_load_dword v{XN+7}, v1, {sr(SWS,4)}, s{sOQ+1} offen sc1", vm="xt")]
    if prof and "nofr" in opt: fin_ld = fin_ld[:1]
    if prof and "nofx" in opt: fin_ld = fin_ld[1:]
    if "frp" in opt: fin_ld[-1].text = fin_ld[-1].text.replace(" sc1", "")
    if "to" in opt: fin_ld = [I(f"buffer_load_dword v{XN+6}, off, {sr(SOUT,4)}, s{sOQ}", vm="xt")] + fin_ld
    vZS = 2
    def zsc(r):
        if not BI: return []
        return [f"v_mul_f32 v{vZS}, {fx(2.0 ** -ESH)}, v{r}", f"v_mul_f32 v{vZS}, v{vZS}, v{r}", f"v_mul_f32 v{r}, v{vZS}, v{r}",
                f"v_mul_f32 v{vZS}, {fx(-1.4426950408889634)}, v{vZS}"]
    def unpack(d, x): return [f"v_and_b32 v{d+e}, 0xffff0000, v{x+e//2}" if e & 1 else f"v_lshlrev_b32 v{d+e}, 16, v{x+e//2}" for e in range(8)]
    xn_math = ([I(f"v_lshlrev_b32 v20, 16, v{XN+7}", wvm="xt"), f"v_and_b32 v21, 0xffff0000, v{XN+7}", "v_rcp_f32 v20, v20"] +
               unpack(XN, XV) + [f"v_add_f32 v{XN+e}, v{XN+e}, v21" for e in range(8)] + zsc(20) +
               [f"v_mul_f32 v{XN+e}, v{XN+e}, v20" for e in range(8)])
    p_addr = L(f"""
        v_bfe_u32 v20, v0, 1, 2
        v_bfe_u32 v21, v0, 3, 1
        v_xor_b32 v20, v20, v21
        v_lshlrev_b32 v20, 4, v20
        v_xor_b32 v20, v20, v16
        v_lshl_add_u32 v20, v15, 6, v20
        s_lshl_b32 s{sT0}, s{sW}, 13
        v_add_u32 v{vPW}, s{sT0}, v20
        v_bfe_u32 v20, v0, 2, 2
        v_bfe_u32 v21, v0, 4, 1
        v_xor_b32 v20, v20, v21
        v_lshlrev_b32 v20, 4, v20
        v_lshlrev_b32 v21, 5, v0
        v_xor_b32 v20, v20, v21
        s_lshl_b32 s{sT0}, s{sCH}, 15
        s_lshl_b32 s{sT1}, s{sWQ}, 11
        s_add_u32 s{sT0}, s{sT0}, s{sT1}
        v_add_u32 v{vPR}, s{sT0}, v20
        """)
    HB, ZA, NS = 64, 32, 16
    sH1, sH2, sHQ = sXB, sWB, sKEY
    def HR(n): return HB + 4 * (n % NS if n % NS < 8 else 23 - n % NS)
    sMK = sA
    def hload(n, mask=False):
        qd, ks = divmod(n, 7)
        g = []
        if ks == 0:
            g += [f"s_xor_b32 s{sT3}, s{sRHO}, {qd}", f"s_mul_i32 s{sT3}, s{sT3}, 57344", f"s_add_u32 s{sH1}, s{sHQ}, s{sT3}",
                  f"s_sub_u32 s{sH2}, s{sH1}, s{sRB}"]
        t = I(f"buffer_load_dwordx4 {vr(HR(n),4)}, v{vL16}, {sr(SWS,4)}, s{sH1 if ks < 4 else sH2} offen offset:{(ks&3)*1024} sc1", vm=f"h{n}")
        if "hx2" in opt: return g + [f"s_mov_b64 exec, {sr(sMK,2)}" if mask else "s_nop 0", "s_mov_b32 exec_hi, 0", t, "s_mov_b64 exec, -1"]
        if "hx1" in opt: t = I(t.text.replace("dwordx4 " + vr(HR(n),4), "dword " + vr(HR(n),1)).replace(f"v{vL16},", "v15,"), vm=f"h{n}")
        return g + ([f"s_mov_b64 exec, {sr(sMK,2)}", t, "s_mov_b64 exec, -1"] if mask and "nomask" not in opt else [t])
    def again(n1):
        sv = list(a.vq)
        for n in range(n1): a(hload(n))
        a.vq = sv
    h_addr = L(f"""
        s_mul_i32 s{sHQ}, s{sRT2}, {4*56*1024}
        s_mul_i32 s{sT1}, s{sW}, 7168
        s_add_u32 s{sHQ}, s{sHQ}, s{sT1}
        s_mul_i32 s{sT1}, s{sHI}, 3072
        s_add_u32 s{sHQ}, s{sHQ}, s{sT1}
        s_add_u32 s{sHQ}, s{sHQ}, {WS_H}
        s_mul_i32 s{sRB}, s{sHI}, 7168
        s_sub_u32 s{sRB}, s{sRB}, 4096
        s_lshl_b32 s{sE}, s{sRT2}, 3
        s_add_u32 s{sE}, s{sE}, s{sW}
        s_mul_i32 s{sE}, s{sE}, {7 << FS}
        s_add_u32 s{sE}, s{sE}, {WS_FH + 4}
        v_min_u32 v{vFA}, 6, v0
        v_lshlrev_b32 v{vFA}, {FS}, v{vFA}
        """)
    KH, KR_, KA, KB = oi("kh", 8), oi("kq", 3), oi("ka", 6), oi("kb", 11)
    KHY = oi("khy", -1)
    if KHY >= 0: KH = KB = 99
    assert KHY >= 0 or (8 <= KH <= 15 and KA < KH <= KB and KHF < KH)
    PM = [o[3:].replace("_", " ") for o in opt if o.startswith("pm=")]
    def poll(at, vm=None, am=False):
        if not at:
            t = wf_ld.replace("sc1", PM[0]) if PM else wf_ld
            return [I(t, vm=vm)]
        return [f"v_mov_b32 v{vFL}, 0"] + ([f"s_mov_b32 exec_lo, s{sOK}", "s_mov_b32 exec_hi, 0"] if am else ["s_mov_b64 exec, 0xff"]) + [
                I(f"buffer_atomic_or v{vFL}, v{vFA}, {sr(SWS,4)}, s{sE} offen sc0 sc1", vm=vm), "s_mov_b64 exec, -1"]
    def ne8(at): return [f"v_cmp_ne_u32 vcc, s{sTAG}, v{vFL}", "s_and_b32 vcc_lo, vcc_lo, 0xff"] if at else ne(vFL)
    AH, AY = "aph" in opt or "apa" in opt, "apy" in opt or "apa" in opt
    hf_ld = poll(AH)
    hn = 0
    NB = oi("nb", NS); YL = [int(x, 36) for x in os_("yl=", "0000").ljust(6, "0")]; NY = NB + sum(YL); GQ = oi("gq", 2)
    assert NY <= NS
    assert KHY < 0 or (NB == 0 and sum(YL[:KHY]) == 0)
    def yl(i):
        if KA == 17 + i: a(poll(AH, "hf"))
        if i == KHY: a([I(wvm="hf")] + ne8(AH) + [f"s_cselect_b64 {sr(sMK,2)}, 0, -1"])
        for n in range(NB + sum(YL[:i]), NB + sum(YL[:i + 1])): a(hload(n, True))
    def pwrite(j): return I(f"ds_write_b128 v{vPW}, {vr(CA+4*j,4)} offset:{1024*j}", lg="pw")
    sYS = sCB
    if "nocv" in opt:
        a(fin_addr); a(h_addr)
        if "wtf" in opt: a(WL[NPRE:]); a(fin_ld)
        a(hf_st)
        if "bar2" in opt: a("s_barrier")
        if "wtf" not in opt: a(WL[NPRE:]); a(fin_ld)
        stamp("k1")
        a(xn_math)
        if "blind" not in opt: a(spin("hf0", [f"s_sleep {oi('sl', 0)}", hf_ld], ne8(AH)))
        stamp("k11")
        a.vq = []
        for n in range(NS): a(hload(n))
        a(f"s_mov_b32 s{sMK}, -1")
        a(I(wlg="*"))
        stamp("c3")
    else:
        for k, (rr, p) in enumerate(order):
            seq = []
            for j in range(p, 8):
                c = "0" if (rr == 0 and j == p) else vr(CA + 4 * j, 4)
                seq.append(I(f"v_mfma_f32_16x16x32_bf16 {vr(CA+4*j,4)}, {vr(BF+4*(k%4),4)}, {vr(AF+32*rr+4*(j-p),4)}, {c}",
                             wlg=[f"a{rr}{j-p}", f"b{k}"]))
            fill = []
            if k == 1: fill += [fin_addr]
            WK = os_("wk=")
            if WK:
                assert sum(int(x) for x in WK) == 28 - NPRE
                w0 = NPRE + sum(int(x) for x in WK[:k]); fill += WL[w0:w0 + int((WK + "0" * 16)[k])]
            elif 1 <= k <= 6: fill += part(WL[NPRE:], k - 1, 6)
            if k == oi("kx", 3): fill += fin_ld
            if 4 <= k <= 7: fill += [uread(1, 2 * (k - 4)), uread(1, 2 * (k - 4) + 1)]
            if k in (6, 7): fill += part(p_addr, k - 6, 2)
            if 8 <= k <= 11 and "xg" not in opt: fill += part(xn_math, k - 8, 4)
            if k >= 9: fill = fill[:2] + [pwrite(p - 1)] + fill[2:]
            if k == 2: fill += [h_addr]
            if k == KHF and "hb" not in opt: fill += [hf_st]
            if k == KA and "hb" not in opt: fill += [poll(AH, "hf", AM & 1)]
            if k == KH and "hb" in opt: a(f"s_mov_b64 {sr(sMK,2)}, -1")
            elif k == KH: a([I(wvm="hf")] + ne8(AH) + [f"s_cselect_b64 {sr(sMK,2)}, 0, -1"])
            if k == KB: fill += [[f"s_cmp_lg_u32 s{sMK}, 0", "s_cbranch_scc1 L_nof2", poll(AH, None, AM & 2), "L_nof2:"]]
            if k >= KH:
                e = min(hn + KR_, k, NB); hl = [hload(n, True) for n in range(hn, e)]; hn = max(hn, e)
                fill = mix(fill, hl) if len(fill) >= len(hl) else mix(hl, fill)
            a(mix(seq, fill))
            if k + 3 < 16: a(hread(k + 3))
            if PC and PC[k + 1] != PC[k]: a(f"s_setprio {PC[k + 1]}")
            stamp(f"k{k}")
        a(f"""
        s_lshl_b32 s{sT1}, s{sWQ}, 10
        s_sub_u32 s{sT1}, s{sCVB}, s{sT1}
        s_add_u32 s{sT1}, s{sT1}, 4080
        v_sub_u32 v20, s{sT1}, v{vL16}
        v_xor_b32 v21, 16, v{vPR}
        """)
        a(pwrite(7))
        for n in range(hn, NB): a(hload(n, True))
        if KHY < 0:
            a([f"s_cmp_lg_u32 s{sMK}, 0", "s_cbranch_scc1 L_hlate", "s_waitcnt vmcnt(0)"] + ne8(AH) +
              [f"s_cselect_b64 {sr(sMK,2)}, 0, -1", "s_cbranch_scc1 L_hlate"])
            again(NB)
            a("L_hlate:")
        sYS = sCB
        a(I(wlg="*"))
        a("s_barrier")
        stamp("c3")
        if KA == 16: a(poll(AH, "hf"))
        if "py" in opt: a("s_setprio 3")
        PR, vU, YA = 32, 128, 132
        a(I(f"ds_read_b128 {vr(vU,4)}, v20", lg="su"))
        for k in range(4):
            a(I(f"ds_read_b128 {vr(PR+8*k,4)}, v{vPR} offset:{8192*k}", lg=f"p{k}"))
            a(I(f"ds_read_b128 {vr(PR+8*k+4,4)}, v21 offset:{8192*k}", lg=f"p{k}"))
        a(f"""
        s_lshl_b32 s{sT1}, s{sCH}, 4
        s_lshr_b32 s{sD}, s{sD}, s{sT1}
        s_lshl_b32 s{sD}, s{sD}, 16
        s_lshl_b32 s{sT1}, s{sCP}, 13
        s_lshl_b32 s{sT3}, s{sW}, 10
        s_add_u32 s{sT1}, s{sT1}, s{sT3}
        s_add_u32 s{sT1}, s{sT1}, {WS_YT}
        s_lshl_b32 s{sYS}, s{sWQ}, 9
        s_lshl_b32 s{sT3}, s{sCP}, 1
        s_add_u32 s{sYS}, s{sYS}, s{sT3}
        s_add_u32 s{sYS}, s{sYS}, s{sCH}
        s_lshl_b32 s{sT3}, s{sYS}, 7
        s_and_b32 s{sT3}, s{sT3}, 0x380
        v_xor_b32 v31, s{sT3}, v{vL16}
        s_lshl_b32 s{sYS}, s{sYS}, {FS}
        s_add_u32 s{sYS}, s{sYS}, {WS_FY}
        """)
        yl(0)
        stamp("y0")
        a(I(wlg="su"))
        stamp("y1")
        for e in range(4):
            a(f"v_and_b32 v{YA+6-2*e}, 0xffff0000, v{vU+e}\nv_lshlrev_b32 v{YA+7-2*e}, 16, v{vU+e}")
        yl(1)
        a(I(wlg="p0"))
        for e in range(8): a(f"v_fma_f32 v{YA+e}, v{YA+e}, s{sD}, v{PR+e}")
        yl(2)
        a(I(wlg="p2"))
        def add8(d, x):
            if "ynp" in opt:
                for e in range(8): a(f"v_add_f32 v{d+e}, v{d+e}, v{x+e}")
            else:
                for e in range(0, 8, 2): a(f"v_pk_add_f32 {vr(d+e,2)}, {vr(d+e,2)}, {vr(x+e,2)}")
        add8(PR + 8, PR + 16)
        yl(3)
        a(I(wlg="p3"))
        stamp("y2")
        a(f"s_lshl_b32 s{sT3}, s{sW}, 2\ns_add_u32 s{sT3}, s{sT3}, {L_CNT}\nv_mov_b32 v20, s{sT3}")
        a(I(f"ds_write_b32 v20, v{vTAG}", lg="cw"))
        add8(YA, PR + 24)
        add8(YA, PR + 8)
        for e in range(4): a(f"v_cvt_pk_bf16_f32 v{vU+e}, v{YA+2*e}, v{YA+2*e+1}")
        stamp("y3")
        yl(4)
        a(I(f"buffer_store_dwordx4 {vr(vU,4)}, v31, {sr(SWS,4)}, s{sT1} offen sc1", vm="ys"))
        yl(5)
    stamp("ys")
    if PG or "py" in opt: a(f"s_setprio {PG[0] if PG else 0}")
    a(f"s_cmp_lg_u32 s{sMK}, 0\ns_cbranch_scc1 L_hgo")
    a(spin("hf", [hf_ld], ne8(AH)))
    stamp("hsp")
    again(NY)
    hn = NY
    a(line(sYS))
    a("L_hgo:")
    stamp("hok")
    sYA, sYF, sSEL = sMO, sE, SK
    YO = "yo" in opt
    sYW = sMO + 1 if YO else sW
    g2_addr = L(f"""
    v_lshrrev_b32 v20, 4, v0
    s_lshl_b32 s{sT1}, s{sRBL}, 2
    v_xor_b32 v21, v20, v15
    v_xor_b32 v21, s{sT1}, v21
    v_lshlrev_b32 v21, 4, v21
    v_lshl_add_u32 v21, v15, 8, v21
    s_lshl_b32 s{sT1}, s{sW}, 12
    v_add_u32 v{vZW}, s{sT1}, v21
    s_lshl_b32 s{sT1}, s{sW}, 1
    v_lshrrev_b32 v1, 5, v0
    v_add_u32 v21, s{sT1}, v1
    v_and_b32 v20, 3, v0
    v_xor_b32 v31, s{sRHO}, v20
    v_lshrrev_b32 v{vZR}, 1, v0
    v_and_b32 v{vZR}, 14, v{vZR}
    v_xor_b32 v{vZR}, v{vZR}, v21
    v_xor_b32 v{vZR}, v{vZR}, v31
    v_lshlrev_b32 v{vZR}, 4, v{vZR}
    v_lshl_add_u32 v{vZR}, v21, 8, v{vZR}
    s_mov_b32 s{sT1}, {sum((L_Z[q] >> 15) << (8 * q) for q in range(4))}
    v_lshlrev_b32 v31, 3, v31
    v_bfe_u32 v31, s{sT1}, v31, 8
    v_lshl_add_u32 v{vZR}, v31, 15, v{vZR}
    v_bfe_u32 v31, v0, 4, 1
    v_lshl_add_u32 v20, v31, 2, v20
    v_xor_b32 v21, s{sW}, v20
    v_lshlrev_b32 v21, 4, v21
    v_lshl_add_u32 v21, v1, 3, v21
    v_lshl_add_u32 v21, v20, 10, v21
    v_bfe_u32 v31, v0, 2, 2
    v_lshl_add_u32 v21, v31, 7, v21
    v_add_u32 v{vYR}, {L_Y}, v21
    v_and_b32 v21, 7, v0
    {f"s_lshl_b32 s{sYW}, s{sW}, 1" if YO else ""}
    v_xor_b32 v20, s{sYW}, v21
    v_lshlrev_b32 v20, 4, v20
    v_lshrrev_b32 v31, 3, v0
    v_lshl_add_u32 v20, v31, 12, v20
    s_and_b32 s{sT1}, s{sRT2}, 7
    v_xor_b32 v31, s{sT1}, v31
    v_lshl_add_u32 v{vYA}, v31, 7, v20
    v_lshlrev_b32 v{vFA}, {FS}, v{15 if YO else 21}
    v_lshlrev_b32 v1, 2, v21
    v_add_u32 v1, {L_CNT}, v1
    s_lshl_b32 s{sT1}, s{sCT2}, 3
    s_add_u32 s{sT1}, s{sT1}, s{sYW}
    s_lshl_b32 s{sYA}, s{sT1}, 15
    s_and_b32 s{sT0}, s{sRT2}, 24
    s_lshl_b32 s{sT0}, s{sT0}, 7
    s_add_u32 s{sYA}, s{sYA}, s{sT0}
    s_add_u32 s{sYA}, s{sYA}, {WS_YT}
    s_lshl_b32 s{sYF}, s{sT1}, {FS + 3}
    s_lshr_b32 s{sT0}, s{sRT2}, 3
    s_lshl_b32 s{sT0}, s{sT0}, {FS + 9}
    s_add_u32 s{sYF}, s{sYF}, s{sT0}
    s_add_u32 s{sYF}, s{sYF}, {WS_FY + 4}
    s_mov_b32 s{sSEL}, {fx(-1.4426950408889634)}
    s_mov_b32 s{sSEL+1}, s{sSEL}
    s_mov_b32 s{sSEL+2}, 1.0
    s_mov_b32 s{sSEL+3}, 1.0
    s_lshl_b32 s{sT0}, s{sYW}, 10
    s_add_u32 m0, s{sT0}, {L_Y}
    """)
    ZT, XF, YR, YF = 64, 128, 136, 32
    def zwrite(qd):
        hi, lo = L_Z[qd] & ~0xffff, L_Z[qd] & 0xffff
        return [[f"v_xor_b32 v20, {hi + 64*mt + 16*qd}, v{vZW}",
                 I(f"ds_write_b128 v20, {vr(ZA+16*(qd&1)+4*mt,4)} offset:{lo}", lg="zw")] for mt in range(4)]
    xn_g = ([f"v_lshlrev_b32 v16, 16, v{XN+7}", f"v_and_b32 v4, 0xffff0000, v{XN+7}", "v_rcp_f32 v16, v16"] +
            [f"v_add_f32 v{XN+e}, v{XF+e}, v4" for e in range(8)] + zsc(16) + [f"v_mul_f32 v{XN+e}, v{XN+e}, v16" for e in range(8)])
    NYF, NYP, NYC = oi("nyf", 8), oi("nyp", 16), oi("nyc", 21)
    NG, ZS = oi("ng", 6), oi("zs", 1)
    y_ld = f"buffer_load_dwordx4 v{vYA}, {sr(SWS,4)}, s{sYA} offen sc1 lds"
    if YO:
        y_ld = [y_ld, f"v_xor_b32 v{vFL}, 16, v{vYA}", "s_add_u32 m0, m0, 1024", f"s_add_u32 s{sYA}, s{sYA}, 32768",
                y_ld.replace(f"v{vYA},", f"v{vFL},")]
    def wide(x): return [[y.replace("0xff", "0xffff") if isinstance(y, str) else y for y in x]] if YO else x
    cn_ld = "ds_read_b32 v31, v1"
    cn_ck = ["v_cmp_eq_u32 vcc, 0, v31", "s_cmp_lg_u64 vcc, 0", "s_cbranch_scc0 L_cn_ok"]
    for n in range(28):
        qd, ks = divmod(n, 7)
        a(I(wvm=[f"h{n}", f"wd{ks}"]))
        if n == NYF: a(line(sYS, wvm="ys", vm="yf"))
        if n == 22:
            a([I(wlg="cn")] + cn_ck + [f"s_mov_b32 s{sCNT}, {SPIN}", "L_cn_loop:", cn_ld, "s_waitcnt lgkmcnt(0)"] + cn_ck +
              [f"s_sub_u32 s{sCNT}, s{sCNT}, 1", "s_cbranch_scc0 L_cn_loop", "L_cn_ok:"])
        if ks == 0 and qd >= 2: a(I(wlg="zw"))
        seq = []
        for mt in range(4):
            d = ZA + 16 * (qd & 1) + 4 * mt
            c = "0" if ks == 0 else vr(d, 4)
            seq.append(f"v_mfma_f32_16x16x32_bf16 {vr(d,4)}, {vr(WDF(4*ks+mt),4)}, {vr(HR(n),4)}, {c}")
        fill = []
        if qd >= 1 and 1 <= ks <= ZS: fill = part(zwrite(qd - 1), ks - 1, ZS)
        if n < NG: fill = part(g2_addr, n, NG)
        if n == 20: fill += [I(cn_ld, lg="cn")]
        if n in (12, 13): fill += part(unpack(XF, XV), n - 12, 2)
        if "xg" in opt and n in (17, 18, 19, 24, 25, 26): fill += part(xn_g, (17, 18, 19, 24, 25, 26).index(n), 6)
        if n == 27: fill += [f"v_xor_b32 v21, 16, v{vZR}"]
        if n == NYC and "yb" in opt: fill = [[f"s_mov_b32 s{sMK}, -1", I(y_ld, vm="yl")]] + fill
        elif n == NYC and YO:
            fill = [[f"s_cmp_ge_u32 s{sW}, 4", f"s_cselect_b32 s{sMK}, -1, 0", "s_cbranch_scc1 L_ylate", "s_waitcnt vmcnt(0)"] + wide(ne8(AY)) +
                    [f"s_cselect_b32 s{sMK}, 0, -1", "s_cbranch_scc1 L_ylate", y_ld, "L_ylate:"]] + fill
        elif n == NYC:
            fill = [[I(wvm="yp")] + ne8(AY) + [f"s_cselect_b32 s{sMK}, 0, -1", "s_cbranch_scc1 L_ylate", y_ld, "L_ylate:"]] + fill
        a(mix(seq, fill))
        GS = os_("gs=")
        e = min(28, n + 1 + NS, hn + (int(GS[n % len(GS)]) if GS else GQ))
        for m in range(hn, e): a(hload(m))
        hn = e
        assert hn > min(n + 1, 27) or n == 27
        if n == NYP and YO: a([I(wvm="*"), f"s_cmp_ge_u32 s{sW}, 4", "s_cbranch_scc1 L_nyp", wide(poll(AY)), "L_nyp:"])
        elif n == NYP and "yb" not in opt: a(poll(AY, "yp"))
        if PG and PG[n + 1] != PG[n]: a(f"s_setprio {PG[n + 1]}")
        stamp(f"n{n}")
    a(zwrite(3))
    stamp("g2")
    a(f"s_cmp_lg_u32 s{sMK}, 0\ns_cbranch_scc1 L_ygo")
    a(spin("yf", wide(poll(AY)), wide(ne8(AY))) + [y_ld, "L_ygo:"])
    stamp("yok")
    a(I(wvm="*", wlg="*"))
    a("s_barrier")
    stamp("bf")
    P2 = lambda x: vr(x, 2)
    a(I(f"ds_read_b64_tr_b16 {P2(YR)}, v{vYR}", lg="yr"))
    a(I(f"ds_read_b64_tr_b16 {P2(YR+2)}, v{vYR} offset:512", lg="yr"))
    def zread(k): return [I(f"ds_read_b128 {vr(ZT+8*k+4*h,4)}, v{21 if h else vZR} offset:{4096*k}", lg=f"z{k}") for h in range(2)]
    for k in range(6): a(zread(k))
    a(I(wlg="yr")); a(unpack(YF, YR))
    a(zread(6)); a(zread(7))
    for e in range(0, 8, 2): a(f"v_pk_mul_f32 {P2(XN+e)}, {P2(XN+e)}, {P2(YF+e)}")
    stamp("f0")
    for k in range(1, 8):
        a(I(wlg=f"z{k}"))
        for e in range(0, 8, 2): a(f"v_pk_add_f32 {P2(ZT+e)}, {P2(ZT+e)}, {P2(ZT+8*k+e)}")
    stamp("f1")
    for e in range(0, 8, 2): a(f"v_pk_mul_f32 {P2(YF+e)}, {P2(ZT+e)}, " + (f"{P2(vZS)} op_sel_hi:[1,0]" if BI else sr(sSEL,2)))
    a(mix([f"v_exp_f32 v{YF+e}, v{YF+e}" for e in range(8)],
          [f"v_pk_mul_f32 {P2(XN+e)}, {P2(XN+e)}, {P2(ZT+e)}" for e in range(0, 8, 2)]))
    for e in range(0, 8, 2): a(f"v_pk_add_f32 {P2(YF+e)}, {P2(YF+e)}, {sr(sSEL+2,2)}")
    for e in range(8): a(f"v_rcp_f32 v{YF+e}, v{YF+e}")
    for e in range(0, 8, 2): a(f"v_pk_fma_f32 {P2(XF+e)}, {P2(XN+e)}, {P2(YF+e)}, {P2(XF+e)}")
    for e in range(4): a(f"v_cvt_pk_bf16_f32 v{YR+e}, v{XF+2*e}, v{XF+2*e+1}")
    stamp("f2")
    a(f"buffer_store_dwordx4 {vr(YR,4)}, v{vOO}, {sr(SOUT,4)}, s{sOQ} offen sc0 sc1")
    if prof:
        stamp("st")
        if "endw" in opt: a("s_waitcnt vmcnt(0)")
        a("L_prof:")
        stamp("end")
        a(f"""
        s_waitcnt lgkmcnt(0)
        s_lshl_b32 s{sT0}, s2, 3
        s_add_u32 s{sT0}, s{sT0}, s{sW}
        s_lshl_b32 s{sT0}, s{sT0}, 6
        s_add_u32 s{sT0}, s{sT0}, {WS_PROF}
        """)
        if "dbg" in opt:
            n = len(stamps)
            a(f"s_load_dwordx2 {sr(SX,2)}, s[0:1], 88\ns_mov_b32 s{SX+2}, 256\ns_waitcnt lgkmcnt(0)\ns_mov_b64 exec, 1")
            a(f"s_not_b32 s{sT1}, s{PROFS[0]}\nv_mov_b32 v1, s{sT1}\nbuffer_atomic_umax v1, off, {sr(SX,4)}, 0")
            a(f"v_mov_b32 v2, s{PROFS[n-1]}\nbuffer_atomic_umax v2, off, {sr(SX,4)}, 0 offset:60")
            a(f"s_cmp_lt_u32 s2, 32\ns_cbranch_scc1 {END}")
            for i in range(n):
                if "avg" in opt:
                    a(f"s_sub_u32 s{sT1}, s{PROFS[i]}, s{PROFS[0]}\nv_mov_b32 v{3+i}, s{sT1}\nbuffer_atomic_add v{3+i}, off, {sr(SX,4)}, 0 offset:{4+4*i}")
                else:
                    a(f"v_mov_b32 v{3+i}, s{PROFS[i]}\nbuffer_atomic_umax v{3+i}, off, {sr(SX,4)}, 0 offset:{4+4*i}")
            a(f"s_branch {END}")
        for i in range(len(stamps)):
            a(f"v_mov_b32 v1, s{PROFS[i]}")
            a(f"buffer_store_dword v1, off, {sr(SWS,4)}, s{sT0} offset:{4*i}")
    a(f"{END}:\ns_endpgm")
    def post(b):
        import al
        if oi("al", -1) >= 0:
            b, st = al.align(b, oi("al", 0)); print(st)
        if "sh4" in opt: b = ["    s_nop 0"] + b
        if "mva" in opt:
            i0 = b.index("    s_branch " + JOIN); i1 = b.index(JOIN + ":")
            assert b[i1 - 1].strip() == "s_branch L_kvok" and b[-1].strip() == "s_endpgm"
            b = b[:i0] + b[i1:] + b[i0 + 1:i1] + ["    s_endpgm"]
        if os0("hp="):
            HP = [x.split(":") for x in os0("hp=").split(",")]
            k = b.index(f"    s_lshr_b32 s{sCP}, s2, 3") + 1
            d = ["    s_mov_b64 exec, 0"]
            for q, (w_, _) in enumerate(HP): d += [f"    s_cmp_eq_u32 s{sW}, {w_}", f"    s_cbranch_scc1 L_hp{q}"]
            b = b[:k] + d + ["L_hpr:", "    s_mov_b64 exec, -1"] + b[k:]
            for q, (_, tg) in enumerate(HP):
                sz = al.sizes([x for x in b] + [f"L_hp{z}:" for z in range(q, len(HP))])
                off = 0; safe = True; want = int(tg.lstrip("a")) if tg[0] != "a" else None
                for i, l in enumerate(b):
                    t = l.strip()
                    if want is None and t == AUX + ":": want = off if tg == "a0" else (off // 256) * 256 + int(tg[1:])
                    if want is not None and off >= want and safe and sz[i] and not b[i - 1].strip().startswith("s_nop"): break
                    if re.match(r"s_\w+ exec", t): safe = t.endswith(", -1") and t.startswith("s_mov")
                    off += sz[i]
                b = b[:i] + [f"L_hp{q}:", "    s_cbranch_execz L_hpr"] + b[i:]
                print("hp", q, off)
        if IW:
            sz = al.sizes(b); pos = []; off = 0; on = False; safe = True; nxt = 0
            for i, l in enumerate(b):
                t = l.strip()
                if t in ("L_iwa:", os0("iws=", JOIN) + ":"): on = True; nxt = off
                if t in ("L_iwb:", END + ":", "L_prof:"): on = False
                if on and safe and off >= nxt and sz[i] and not b[i - 1].strip().startswith("s_nop"):
                    pos.append(i); off += 4; nxt = (off // IW + 1) * IW
                if re.match(r"s_\w+ exec", t): safe = t.endswith(", -1")
                off += sz[i]
            n = len(pos); ins = {}
            for c in range(IWN):
                seg = pos[n * c // IWN:n * (c + 1) // IWN]
                for q, i in enumerate(seg):
                    ins[i] = [f"L_iw{c}_{q}:", "    s_cbranch_execz " + (f"L_iw{c}_{q+1}" if q + 1 < len(seg) else "L_iwret")]
            b = [x for i, l in enumerate(b) for x in ins.get(i, []) + [l]]
            print("pads", n, "bytes", off)
        if oi("iy", 0):
            IY = oi("iy", 0); NH = oi("iyh", 1)
            sz = al.sizes(b); pos = []; off = 0; on = False; safe = True; nxt = 0
            for i, l in enumerate(b):
                t = l.strip()
                if t == (JOIN + ":" if "iyj" in opt else "L_iya:"): on = True; nxt = off
                if t in ("L_iyb:", "L_iwb:", AUX + ":", END + ":", "L_prof:"): on = False
                if on and safe and off >= nxt and sz[i] and not b[i - 1].strip().startswith("s_nop"):
                    pos.append(i); off += 4; nxt = off + IY - 12
                if re.match(r"s_\w+ exec", t): safe = t.endswith(", -1") and t.startswith("s_mov")
                off += sz[i]
            ins = {i: [f"L_iy{q}:", "    s_cbranch_execz " + (f"L_iy{q+1}" if (q + 1) % NH and q + 1 < len(pos) else "L_iyr")] for q, i in enumerate(pos)}
            ns = (len(pos) + NH - 1) // NH
            assert ns <= 28, ns
            d = [f"    s_lshl_b32 s{sCNT}, s{sISG}, 2", f"    s_add_u32 s{sCNT}, s{sCNT}, s{sW}", "    s_mov_b64 exec, 0"]
            for q in range(ns): d += [f"    s_cmp_eq_u32 s{sCNT}, {q + 8}", f"    s_cbranch_scc1 L_iy{q * NH}"]
            ins[b.index("L_iyr:")] = d
            b = [x for i, l in enumerate(b) for x in ins.get(i, []) + [l] if x not in ("L_iyd:", "L_iya:", "L_iyb:")]
            print("iy pads", len(pos))
        print("misplaced", al.stat(b))
        if "L_iw0_0:" in b:
            k = b.index("L_iw0_0:")
            b = b[:k] + ["; each L_iw pad is entered once with EXEC = 0 by a wave of the k*v workgroups and left at once:",
                         "; the fetch brings that stretch of code into L2 before the other workgroups reach it"] + b[k:]
        if "L_wu:" in b:
            k = b.index("L_wu:")
            b = b[:k] + ["; the matrix pipe runs on scratch operands while the first tiles are in flight, so the supply",
                         "; current rises in two steps and the clock sags less during the first GEMM"] + b[k:]
        return b
    txt = a.text(256, 512, 163840, post=post)
    if oi("kp", 0): txt = txt.replace(".p2align 8\n", ".p2align 8\n" + "    s_endpgm\n" * (64 * oi("kp", 0)), 1)
    return txt, stamps, a.nops

if __name__ == "__main__":
    txt, st, nops = gen(prof="prof" in sys.argv, opt=sys.argv[2:])
    open(sys.argv[1], "w").write(txt)
    print("lines", txt.count("\n"), "nops", nops, st)
    if st: open(sys.argv[1] + ".stamps", "w").write(" ".join(st))
```

```python
import sys, struct, re
from em import *

WS_EPOCH, WS_FKV, WS_RS, WS_CS, WS_FH, WS_FY = 0, 4096, 32768, 65536, 262144, 524288
WS_KV, WS_WT, WS_YT, WS_H, WS_PROF = 1 << 20, 3 << 20, 5 << 20, 8 << 20, 16 << 20
SX, SWG, SWU, SWD, SWS, SOUT, SH, SK, SV, SSH = 8, 12, 16, 20, 24, 28, 32, 36, 40, 44
sW, sXB, sWB, sT0, sT1 = 3, 4, 5, 6, 7
(sRT2, sCT2, sKEY, sWR, sWC, sTAG, sM0X, sOK, sISG, sCNT, sT2, sT3, sCSM, sCP, sRBL, sXCD, sCB, sD,
 sMO, _m1, _m2, _m3, sHI, sRB) = range(48, 72)
sA, sB, sC, sE = 98, 99, 100, 101
PROFS = list(range(72, 98, 2))
STAGE = 49152
L_WP = 147456
L_CV, CVCH = 98304, 12864
L_Z = (65536, 131072, 0, 32768)
L_Y, L_CNT = L_CV + 4608, L_CV + 4096
ACC, FR = 32, 96
def WDF(i): return 144 + 4 * i
vX0, vX1, vW0, vW1, vL16 = 1, 2, 3, 4, 5
vXB, vWB, vTAG = 6, 14, 17
SPIN = 0x4000
ESH = 24
KC = 2 * 0.7978845608028654 * 1.4426950408889634
def fx(f): return "0x%08x" % struct.unpack("<I", struct.pack("<f", f))[0]
def L(s): return [x.strip() for x in s.strip().split("\n") if x.strip()]

def gen(prof=False, opt=()):
    a = Em()
    def oi(k, d): return int(([o[len(k):] for o in opt if re.fullmatch(k + r"-?\d+", o)] + [d])[0])
    stamps = []
    def oi(k, d): return int(([o[len(k):] for o in opt if re.fullmatch(k + r"-?\d+", o)] + [d])[0])
    def stamp(name, slot=None):
        sel = [o[3:].split(",") for o in opt if o.startswith("st=")]
        dflt = "start,B0,B4,B8,join,c1,c3,hok,g2,bf,end".split(",")
        if not prof or (slot is None and name not in (sel[0] if sel else dflt)): return
        own = slot is None
        if ("both" in opt or "noas" in opt) and not own: return
        if slot is None:
            if name not in stamps: stamps.append(name)
            slot = stamps.index(name)
        a(f"{'s_memtime' if 'cyc' in opt else 's_memrealtime'} {sr(PROFS[slot], 2)}")
        if "both" in opt and own:
            stamps.append(name + "c"); a(f"s_memtime {sr(PROFS[slot + 1], 2)}")
    def spin(name, load, check):
        if "nochk" in opt: return [f"L_{name}_ok:"]
        cn = [f"s_add_u32 s{PROFS[stamps.index('n_' + name)]}, s{PROFS[stamps.index('n_' + name)]}, 1"] if "n_" + name in stamps else []
        return ([f"s_mov_b32 s{sCNT}, {SPIN}", f"L_{name}_loop:"] + cn + load + ["s_waitcnt vmcnt(0)"] + check +
                [f"s_cbranch_scc0 L_{name}_ok", f"s_sub_u32 s{sCNT}, s{sCNT}, 1", f"s_cbranch_scc0 L_{name}_loop",
                 f"L_{name}_ok:"])
    def one(txt, vm=None, wvm=None):
        if "all" in opt: return [I(txt, vm=vm, wvm=wvm)]
        return [I("s_mov_b64 exec, 1", wvm=wvm), I(txt, vm=vm), "s_mov_b64 exec, -1"]
    FS = oi("fs", 7)
    def line(so, vm=None, wvm=None):
        if "fp" in opt: return one(f"buffer_store_dword v{vTAG}, off, {sr(SWS,4)}, s{so} offset:4 sc1", vm=vm, wvm=wvm)
        return [I(f"s_mov_b64 exec, {(1 << (1 << (FS - 4))) - 1}", wvm=wvm),
                I(f"buffer_store_dwordx4 {vr(vTAG-1,4)}, v{vL16}, {sr(SWS,4)}, s{so} offen sc1", vm=vm), "s_mov_b64 exec, -1"]
    def ne(v): return [f"v_cmp_ne_u32 vcc, s{sTAG}, v{v}", "s_cmp_lg_u64 vcc, 0"]
    def ap(txt, nl, key, vm=None):
        if key not in opt and "apa" not in opt: return [I(txt, vm=vm)]
        d = txt.split()[1].rstrip(",")
        t = I(txt.replace("buffer_load_dword", "buffer_atomic_or").replace("sc1", "sc0 sc1"), vm=vm)
        if nl == 64: return [f"v_mov_b32 {d}, 0", t]
        m = [f"s_mov_b32 exec_hi, 0"] if nl == 32 else [f"s_mov_b64 exec, {(1 << nl) - 1}"]
        return [f"v_mov_b32 {d}, s{sTAG}"] + m + [f"v_mov_b32 {d}, 0", t, "s_mov_b64 exec, -1"]
    END, AUX, JOIN = "L_end", "L_aux", "L_join"
    vHE, vHP, vHO_ = (228, 232, 234) if "hr" in opt else (128, 132, 134)
    KM = oi("km", 3)
    a(f"""
    s_cmp_ge_u32 s2, 256
    s_cbranch_scc1 {END}
    {f"s_add_u32 s2, s2, {oi('rot', 0)}" if oi('rot', 0) else ""}
    {"s_and_b32 s2, s2, 255" if oi('rot', 0) else ""}
    s_load_dwordx16 s[72:87], s[0:1], 0
    s_load_dwordx8 s[88:95], s[0:1], 64
    s_load_dwordx2 s[96:97], s[0:1], 96
    v_lshrrev_b32 v1, 6, v0
    v_and_b32 v0, 63, v0
    v_readfirstlane_b32 s{sW}, v1
    s_and_b32 s{sXCD}, s2, 7
    s_lshr_b32 s{sCP}, s2, 3
    s_and_b32 s{sE}, s{sXCD}, 1
    s_lshr_b32 s{sA}, s{sXCD}, 1
    s_and_b32 s{sRBL}, s{sCP}, 3
    s_lshr_b32 s{sISG}, s{sCP}, 2
    s_lshl_b32 s{sRB}, s{sA}, 2
    s_add_u32 s{sRB}, s{sRB}, s{sRBL}
    s_lshl_b32 s{sRT2}, s{sRB}, 1
    s_add_u32 s{sRT2}, s{sRT2}, s{sE}
    s_add_u32 s{sCT2}, s{sISG}, 7
    s_and_b32 s{sCT2}, s{sCT2}, 7
    s_mul_i32 s{sCB}, s{sE}, 7
    s_add_u32 s{sCB}, s{sCB}, s{sCT2}
    {f"s_xor_b32 s{sCT2}, s{sCT2}, 4" if "ct3" in opt else ""}
    s_xor_b32 s{sKEY}, s{sRBL}, s{sISG}
    s_and_b32 s{sKEY}, s{sKEY}, {KM}
    s_lshl_b32 s{sB}, s{sA}, {2 if KM == 3 else 1}
    s_and_b32 s{sB}, s{sB}, {4 if KM == 3 else 6}
    s_or_b32 s{sKEY}, s{sKEY}, s{sB}
    s_lshl_b32 s{sB}, s{sXCD}, 5
    s_add_u32 s{sCP}, s{sCP}, s{sB}
    s_and_b32 s{sWR}, s{sW}, 1
    s_lshr_b32 s{sWC}, s{sW}, 1
    s_lshr_b32 s{sB}, s{sW}, 2
    s_and_b32 s{sC}, s{sW}, 3
    s_lshl_b32 s{sXB}, s{sRB}, 17
    s_lshl_b32 s{sT0}, s{sB}, 16
    s_add_u32 s{sXB}, s{sXB}, s{sT0}
    s_lshl_b32 s{sT0}, s{sC}, 10
    s_add_u32 s{sXB}, s{sXB}, s{sT0}
    s_mul_i32 s{sWB}, s{sW}, 28672
    s_lshl_b32 s{sT0}, s{sCB}, 8
    s_add_u32 s{sWB}, s{sWB}, s{sT0}
    s_lshl_b32 s{sM0X}, s{sW}, 11
    s_and_b32 s{sT0}, s{sKEY}, 1
    s_and_b32 s{sT1}, s{sA}, 2
    s_or_b32 s{sT0}, s{sT0}, s{sT1}
    {f"s_mov_b32 s{sT0}, s{sRBL}" if KM != 3 else ""}
    s_add_u32 s{sCSM}, s{sWR}, 1
    s_cmp_eq_u32 s{sT0}, s{sWC}
    s_cselect_b32 s{sCSM}, s{sCSM}, 0
    s_lshr_b32 s{sHI}, s{sCT2}, 2
    s_mov_b32 s{sOK}, 0
    """)
    for s, n in ((SX, 1 << 21), (SWG, 1835008), (SWU, 1835008), (SWD, 1835008), (SWS, 1 << 25), (SOUT, 1 << 21),
                 (SH, 36864 if oi('hpt', 0) else 4096), (SK, 1 << 21), (SV, 1 << 21), (SSH, 4096)):
        a(f"s_mov_b32 s{s+2}, {n}")
        a(f"s_mov_b32 s{s+3}, 0x20000")
    a(f"""
    v_lshrrev_b32 v20, 3, v0
    v_lshrrev_b32 v21, 4, v0
    v_and_b32 v22, 7, v0
    v_xor_b32 v23, v22, v21
    v_lshlrev_b32 v23, 4, v23
    v_lshl_add_u32 v{vX0}, v20, 12, v23
    v_xor_b32 v{vX1}, 64, v{vX0}
    v_add_u32 v{vX1}, 31744, v{vX1}
    v_bfe_u32 v24, v0, 2, 2
    v_and_b32 v25, 3, v0
    v_xor_b32 v23, v24, v21
    v_lshlrev_b32 v23, 6, v23
    v_lshl_add_u32 v23, v25, 4, v23
    v_mul_u32_u24 v{vW0}, 3584, v21
    v_add_u32 v{vW0}, v{vW0}, v23
    v_add_u32 v{vW1}, 13312, v{vW0}
    v_lshlrev_b32 v{vL16}, 4, v0
    s_lshl_b32 s{sT2}, s{sCP}, 1
    s_add_u32 s{sT2}, s{sT2}, s{sB}
    s_lshl_b32 s{sT2}, s{sT2}, 12
    s_lshl_b32 s{sT3}, s{sCP}, 2
    """)
    UE = oi("ue", 0)
    w_init = ([f"v_mul_u32_u24 v{FR+16}, 0x9e3779, v0", f"v_and_b32 v{FR+16}, 0x807f807f, v{FR+16}", f"v_or_b32 v{FR+16}, 0x3f003f00, v{FR+16}"] +
              [f"v_xor_b32 v{FR+16+i}, {hex((0x9e3779b1 * (i + 3) >> 3) & 0x807f807f)}, v{FR+16+i-1}" for i in range(1, 8)])
    if UE:
        a([f"s_cmp_ge_u32 s{sW}, 4", "s_cbranch_scc1 L_uex"] + w_init + [f"s_mov_b32 s{sCNT}, {UE}", "L_ue:"] +
          [f"v_mfma_f32_32x32x16_bf16 {vr(ACC+16*i,16)}, {vr(FR+16+4*(i&1),4)}, {vr(FR+16+4*(i>>1),4)}, 0" for i in range(1, 3)] +
          [f"s_sub_u32 s{sCNT}, s{sCNT}, 1", f"s_cmp_lg_u32 s{sCNT}, 0", "s_cbranch_scc1 L_ue", "L_uex:"])
    a(f"""
    s_waitcnt lgkmcnt(0)
    s_mov_b64 {sr(SX,2)}, s[72:73]
    s_mov_b64 {sr(SWG,2)}, s[86:87]
    s_mov_b64 {sr(SWU,2)}, s[88:89]
    s_mov_b64 {sr(SK,2)}, s[74:75]
    s_mov_b64 {sr(SV,2)}, s[76:77]
    {f"s_add_u32 s{SWS}, s96, {oi('wso', 0) << 20}" if oi('wso', 0) else f"s_mov_b64 {sr(SWS,2)}, s[96:97]"}
    {f"s_addc_u32 s{SWS+1}, s97, 0" if oi('wso', 0) else ""}
    s_mov_b64 {sr(SSH,2)}, s[78:79]
    s_mov_b64 {sr(SWD,2)}, s[90:91]
    s_mov_b64 {sr(SOUT,2)}, s[92:93]
    s_add_u32 s{SH}, s80, s{sT2}
    s_addc_u32 s{SH+1}, s81, 0
    s_load_dword s{sD}, s[82:83], s{sT3}
    """)
    H1 = "h1" in opt
    if H1: a(f"""
    s_lshl_b32 s{sT3}, s{sC}, 10
    s_max_u32 s{sT3}, s{sT3}, 4
    s_add_u32 s{sT2}, s{sT2}, s{sT3}
    s_sub_u32 s{sT2}, s{sT2}, 4
    s_load_dword s{sOK}, s[80:81], s{sT2}
    """)
    if prof: a("s_nop 4")
    stamp("start")
    SCN = ([o[3:].split(",") for o in opt if o.startswith("sc=")] + [[]])[0] if prof else []
    stamps += ["n_" + x for x in SCN]
    sc_init = [f"s_mov_b32 s{PROFS[1 + i]}, 0" for i in range(len(SCN))]

    NTX = " nt" if "ntx" in opt else ""
    NTW = " nt" if "ntw" in opt else ""
    NTK = " nt" if "ntk" in opt else ""
    NTH = " nt" if "nth" in opt else ""
    NTE = " nt" if "nte" in opt else ""
    NTF = " nt" if "ntf" in opt else ""
    for o in opt:
        if o.startswith("cp="): NTX = NTW = " " + o[3:].replace("_", " ")
        if o.startswith("ck="): NTK = " " + o[3:].replace("_", " ")
    NTX0, NTW0 = NTX, NTW
    def chunk_dma(c):
        st = (c % 3) * STAGE
        NTX = [" " + o.split("=")[0][2:].replace("_", " ") for o in opt if re.match(r"Nx\w+=", o) and str(c) in o.split("=")[1]] + [NTX0]
        NTW = [" " + o.split("=")[0][2:].replace("_", " ") for o in opt if re.match(r"Nw\w+=", o) and str(c) in o.split("=")[1]] + [NTW0]
        NTX, NTW = NTX[0], NTW[0]
        return [
            [f"s_xor_b32 s{sT0}, s{sKEY}, {c}",
             f"s_mul_i32 s{sT1}, s{sT0}, 229376", f"s_add_u32 s{sT1}, s{sT1}, s{sWB}",
             f"s_lshl_b32 s{sT0}, s{sT0}, 7", f"s_add_u32 m0, s{sM0X}, {st}", f"s_add_u32 s{sT0}, s{sT0}, s{sXB}",
             I(f"buffer_load_dwordx4 v{vX0}, {sr(SX,4)}, s{sT0} offen{NTX} lds", vm=f"c{c}")],
            I(f"buffer_load_dwordx4 v{vX1}, {sr(SX,4)}, s{sT0} offen offset:1024{NTX} lds", vm=f"c{c}"),
            [f"s_add_u32 m0, s{sM0X}, {st + 16384}",
             I(f"buffer_load_dwordx4 v{vW0}, {sr(SWG,4)}, s{sT1} offen{NTW} lds", vm=f"c{c}")],
            I(f"buffer_load_dwordx4 v{vW1}, {sr(SWG,4)}, s{sT1} offen offset:1024{NTW} lds", vm=f"c{c}"),
            [f"s_add_u32 m0, s{sM0X}, {st + 32768}",
             I(f"buffer_load_dwordx4 v{vW0}, {sr(SWU,4)}, s{sT1} offen{NTW} lds", vm=f"c{c}")],
            I(f"buffer_load_dwordx4 v{vW1}, {sr(SWU,4)}, s{sT1} offen offset:1024{NTW} lds", vm=f"c{c}"),
        ]
    def prefetch(c):
        g = oi("pg", 7); sh = 7 - g; t = 150
        o = L(f"""
        v_lshrrev_b32 v{t}, {sh}, v0
        v_lshlrev_b32 v{t}, 12, v{t}
        v_lshrrev_b32 v{t+1}, {sh + 1}, v0
        v_mul_u32_u24 v{t+1}, 3584, v{t+1}
        v_and_b32 v{t+2}, {(2 << sh) - 1}, v0
        v_lshl_add_u32 v{t+1}, v{t+2}, {g}, v{t+1}
        """)
        if sh: o += [f"v_and_b32 v{t+2}, {(1 << sh) - 1}, v0", f"v_lshl_add_u32 v{t}, v{t+2}, {g}, v{t}"]
        o += L(f"""
        s_xor_b32 s{sT2}, s{sKEY}, {c}
        s_mul_i32 s{sT3}, s{sT2}, 229376
        s_add_u32 s{sT3}, s{sT3}, s{sWB}
        s_lshl_b32 s{sT2}, s{sT2}, 7
        s_add_u32 s{sT2}, s{sT2}, s{sXB}
        s_mov_b32 exec_hi, 0
        """)
        if not sh: o += ["s_mov_b32 exec_lo, 0xffff"]
        PW = os0("pv=", "gux")
        if "g" in PW: o += [I(f"buffer_load_dword v{t+2}, v{t+1}, {sr(SWG,4)}, s{sT3} offen", vm="pf")]
        if "u" in PW: o += [I(f"buffer_load_dword v{t+3}, v{t+1}, {sr(SWU,4)}, s{sT3} offen", vm="pf")]
        if "x" in PW: o += [I(f"buffer_load_dword v{t+4}, v{t}, {sr(SX,4)}, s{sT2} offen", vm="pf")]
        return o + ["s_mov_b64 exec, -1"]
    def os0(k, d=""): return ([o[len(k):] for o in opt if o.startswith(k)] + [d])[0]
    def c3p(role, c, tag):
        t = 150; W_ = oi("c3w", 0); PW = os0("c3v=", "wx"); o = []
        if "w" in PW: o += L(f"""
        s_bitcmp1_b32 {hex(0x1515 if "c3e" in opt else 0x2aaa)}, s{sCB}
        s_cselect_b32 s{sT2}, s{sW}, 99
        s_cmp_lg_u32 s{sT2}, {W_}
        s_cbranch_scc1 L_c3w{tag}{role}
        s_xor_b32 s{sT2}, s{sKEY}, {c}
        s_mul_i32 s{sT3}, s{sT2}, 229376
        {f"s_cmp_lt_u32 s{sCB}, 7" if "c3e" in opt else ""}
        {f"s_cselect_b32 s{sT2}, 1, {oi('c3d', 0) * 2 - 1}" if "c3e" in opt else f"s_mov_b32 s{sT2}, 0"}
        s_add_u32 s{sT2}, s{sT2}, s{sCB}
        s_lshl_b32 s{sT2}, s{sT2}, 8
        s_add_u32 s{sT3}, s{sT3}, s{sT2}
        s_bitcmp1_b32 s{sT2}, 9
        s_cselect_b32 s{sT2}, 3584, 0
        s_add_u32 s{sT3}, s{sT3}, s{sT2}
        v_mul_u32_u24 v{t}, 7168, v0
        s_mov_b32 exec_hi, 0
        buffer_load_dword v{t+1}, v{t}, {sr(SWG,4)}, s{sT3} offen offset:128
        buffer_load_dword v{t+2}, v{t}, {sr(SWU,4)}, s{sT3} offen offset:128
        s_mov_b32 exec_hi, -1
        L_c3w{tag}{role}:
        """)
        if "x" in PW: o += L(f"""
        s_xor_b32 s{sT2}, s{sW}, {W_ ^ 2}
        s_lshr_b32 s{sT2}, s{sT2}, 1
        s_xor_b32 s{sT3}, s{sKEY}, {c ^ 3}
        s_or_b32 s{sT2}, s{sT2}, s{sT3}
        s_cbranch_scc1 L_c3x{tag}{role}
        s_lshl_b32 s{sT2}, s{sRB}, 1
        s_add_u32 s{sT2}, s{sT2}, s{sWR}
        s_lshl_b32 s{sT2}, s{sT2}, 16
        v_lshlrev_b32 v{t+3}, 10, v0
        buffer_load_dword v{t+4}, v{t+3}, {sr(SX,4)}, s{sT2} offen offset:384
        L_c3x{tag}{role}:
        """)
        return o
    PF = os0("pf=")
    XR, S1, S2 = 200, 204, 205
    def row_load():
        return [I(f"buffer_load_dword v{vTAG}, off, {sr(SWS,4)}, 0 offset:{WS_EPOCH} sc1", vm="ep"),
                [f"s_lshl_b32 s{sA}, s{sRT2}, 3", f"s_add_u32 s{sA}, s{sA}, s{sISG}", f"s_lshl_b32 s{sA}, s{sA}, 3",
                 f"s_add_u32 s{sA}, s{sA}, s{sW}", f"s_lshl_b32 s{sT2}, s{sA}, 10",
                 I(f"buffer_load_dwordx4 {vr(XR,4)}, v{vL16}, {sr(SX,4)}, s{sT2} offen" + (" nt" if "ntr" in opt else ""), vm="ep")]]
    tag_math = L(f"""
        v_add_u32 v{vTAG}, 1, v{vTAG}
        v_and_b32 v{vTAG}, 0x0fff3fff, v{vTAG}
        v_or_b32 v{vTAG}, 0x20000000, v{vTAG}
        s_mov_b32 s{sB}, 0x3f803f80
        v_readfirstlane_b32 s{sTAG}, v{vTAG}
        """)
    def row_math():
        o = []
        for d in range(4):
            o += [f"v_dot2_f32_bf16 v{S1}, v{XR+d}, s{sB}, {'0' if d == 0 else f'v{S1}'}",
                  f"v_dot2_f32_bf16 v{S2}, v{XR+d}, v{XR+d}, {'0' if d == 0 else f'v{S2}'}"]
        o += [f"v_mov_b32 v{XR+1}, v{vTAG}", f"v_permlane32_swap_b32 v{S1}, v{S2}", f"v_add_f32 v{S1}, v{S1}, v{S2}"]
        o += [f"v_add_f32_dpp v{S1}, v{S1}, v{S1} {d} row_mask:0xf bank_mask:0xf"
              for d in ("quad_perm:[1,0,3,2]", "quad_perm:[2,3,0,1]", "row_half_mirror", "row_mirror")]
        o += [f"v_add_f32_dpp v{S1}, v{S1}, v{S1} row_bcast:15 row_mask:0xa bank_mask:0xf"]
        o += L(f"""
        v_mul_f32 v{S1}, {fx(1/512)}, v{S1}
        v_readlane_b32 s{sB}, v{S1}, 31
        v_readlane_b32 s{sC}, v{S1}, 63
        v_mul_f32 v{S1}, s{sB}, s{sB}
        v_sub_f32 v{S1}, s{sC}, v{S1}
        v_max_f32 v{S1}, 0, v{S1}
        v_cvt_pk_bf16_f32 v{S1}, v{S1}, v{S1}
        v_lshlrev_b32 v{S1}, 16, v{S1}
        v_add_f32 v{S1}, {fx(1e-5)}, v{S1}
        v_cvt_pk_bf16_f32 v{S1}, v{S1}, v{S1}
        v_lshlrev_b32 v{S1}, 16, v{S1}
        v_sqrt_f32 v{S1}, v{S1}
        s_lshl_b32 s{sA}, s{sA}, 3
        v_cvt_pk_bf16_f32 v{XR}, v{S1}, -s{sB}
        s_add_u32 s{sA}, s{sA}, {WS_RS}
        """)
        if "nors" not in opt: o += [one(f"buffer_store_dwordx2 {vr(XR,2)}, off, {sr(SWS,4)}, s{sA} sc1", vm="rs", wvm="wps")]
        return o
    def h_load(t):
        return [[f"s_and_b32 s{sT2}, s{sW}, 3", f"s_lshl_b32 s{sT2}, s{sT2}, 10",
                 I(f"buffer_load_dwordx4 {vr(vHE,4)}, v{vL16}, {sr(SH,4)}, s{sT2} offen{NTE}", vm="hl")],
                [f"s_and_b32 s{sT2}, s{sW}, 3", f"s_lshl_b32 s{sT2}, s{sT2}, 10",
                 f"s_sub_u32 s{sT2}, s{sT2}, 4", f"v_add_u32 v{t}, s{sT2}, v{vL16}",
                 I(f"buffer_load_dword v{vHP}, v{t}, {sr(SH,4)}, 0 offen{NTF}", vm="hl")]][:1 if H1 else 2]
    vZ4 = vHE + 12
    h_al = [f"v_alignbit_b32 v{vHO_+d}, v{vHE+d}, v{vHE+d-1 if d else vHP}, 16" for d in range(4)]
    h_z = [f"v_mov_b32 v{vZ4+d}, 0" for d in range(4)]
    h_math = (([[f"s_and_b32 s{sT2}, s{sW}, 3", f"s_cselect_b32 s{sT2}, s{sOK}, 0", f"v_mov_b32 v{vHP}, s{sT2}"], I(h_al[1], wvm="hl")] + h_al[2:] +
               [f"v_mov_b32_dpp v{vHP}, v{vHE+3} wave_shr:1 row_mask:0xf bank_mask:0xf"] + h_z + h_al[:1]
               if H1 else [I(h_al[0], wvm="hl")] + h_al[1:] + h_z) + [L(f"""
        s_lshr_b32 s{sT2}, s{sW}, 2
        s_mul_i32 s{sT2}, s{sT2}, {CVCH}
        s_add_u32 s{sT2}, s{sT2}, {L_CV}
        v_min_u32 v{vHP+1}, 35, v0
        v_lshlrev_b32 v{vHP+1}, 4, v{vHP+1}
        v_lshrrev_b32 v{vHP}, 5, v0
        v_lshl_add_u32 v{vHP+1}, v{vHP}, 12, v{vHP+1}
        v_add_u32 v{vHP+1}, s{sT2}, v{vHP+1}
        s_and_b32 s{sT3}, s{sW}, 3
        s_lshl_b32 s{sT3}, s{sT3}, 10
        s_add_u32 s{sT2}, s{sT2}, s{sT3}
        v_add_u32 v{vHP}, s{sT2}, v{vL16}
        """)])
    h_write = [I(f"ds_write_b128 v{vHP}, {vr(vHE,4)} offset:4608", lg="hw"),
               I(f"ds_write_b128 v{vHP}, {vr(vHO_,4)} offset:{4608+4160}", lg="hw"),
               I(f"ds_write_b128 v{vHP+1}, {vr(vZ4,4)} offset:4096", lg="hw")]
    vFL, vFA = 18, 19
    def wf_addr_(sE, vFA, vFL): return L(f"""
        s_lshl_b32 s{sT2}, s{sCT2}, 3
        s_add_u32 s{sT2}, s{sT2}, s{sW}
        {f"s_xor_b32 s{sT3}, s{sCT2}, s{sW}" if "wdx" in opt else ""}
        s_and_b32 s{sE}, s{sT3 if "wdx" in opt else sCT2}, 6
        s_lshl_b32 s{sE}, s{sE}, 1
        s_add_u32 s{sE}, s{sE}, s{sWC}
        s_lshl_b32 s{sE}, s{sE}, 1
        s_and_b32 s{sT3}, s{sT3 if "wdx" in opt else sCT2}, 1
        s_add_u32 s{sE}, s{sE}, s{sT3}
        s_lshl_b32 s{sE}, s{sE}, 4
        s_add_u32 s{sE}, s{sE}, s{sWR}
        s_lshl_b32 s{sE}, s{sE}, 5
        s_add_u32 s{sE}, s{sE}, {WS_RS + 64 + 4 + (16384 if oi("rl", -1) >= 0 else 0)}
        s_mul_i32 s{sT2}, s{sT2}, 28672
        s_mul_i32 s{sT3}, s{sHI}, 12288
        s_add_u32 s{sT2}, s{sT2}, s{sT3}
        s_add_u32 s{sT2}, s{sT2}, {WS_WT}
        s_lshl_b32 s{sT3}, s{sRBL}, 10
        s_add_u32 s{sMO}, s{sT2}, s{sT3}
        s_xor_b32 s{sMO+1}, s{sMO}, 1024
        s_xor_b32 s{sMO+2}, s{sMO}, 2048
        s_xor_b32 s{sMO+3}, s{sMO}, 3072
        v_min_u32 v{vFA}, 27, v0
        v_and_b32 v{vFL}, 28, v{vFA}
        v_add_u32 v{vFA}, v{vFA}, v{vFL}
        v_lshlrev_b32 v{vFA}, 3, v{vFA}
        """)
    wf_addr = wf_addr_(sE, vFA, vFL)
    wf_ld = f"buffer_load_dword v{vFL}, v{vFA}, {sr(SWS,4)}, s{sE} offen sc1"
    def wd_loads():
        o = []
        for i in range(28):
            ks, mt = divmod(i, 4)
            g = []
            if i == 16:
                g += [f"s_mul_i32 s{sT3}, s{sHI}, 28672"] + [f"s_sub_u32 s{sMO+m}, s{sMO+m}, s{sT3}" for m in range(4)]
            g += [f"s_add_u32 s{sT3}, s{sMO+mt}, {4096*ks}",
                  I(f"buffer_load_dwordx4 {vr(WDF(i),4)}, v{vL16}, {sr(SWS,4)}, s{sT3} offen sc1" if i < oi("wx", 99) else
                    f"buffer_load_dword {vr(WDF(i),1)}, off, {sr(SWS,4)}, s{sT3} sc1", vm=f"wd{ks}")]
            o.append(g)
        return o
    vKA, vKL = 29, 30
    kf_addr = [f"v_and_b32 v{vKA}, 31, v0", f"v_lshlrev_b32 v{vKA}, 2, v{vKA}", f"s_lshl_b32 s{sC}, s{sXCD}, 7",
               f"s_add_u32 s{sC}, s{sC}, {WS_FKV}"]
    kf_ld = f"buffer_load_dword v{vKL}, v{vKA}, {sr(SWS,4)}, s{sC} offen sc1"
    def r_dma(t):
        return L(f"""
        s_lshr_b32 s{sT2}, s{sW}, 2
        s_mul_i32 s{sT3}, s{sT2}, {CVCH - 4096}
        s_lshl_b32 s{sT2}, s{sT2}, 4
        v_lshl_add_u32 v{t}, v0, 5, s{sT2}
        s_lshl_b32 s{sT2}, s{sW}, 10
        s_add_u32 s{sT3}, s{sT3}, s{sT2}
        s_add_u32 m0, s{sT3}, {L_CV}
        s_and_b32 s{sT2}, s{sM0X}, 0x1800
        s_lshl_b32 s{sT3}, s{sCP}, 13
        s_add_u32 s{sT2}, s{sT2}, s{sT3}
        s_add_u32 s{sT2}, s{sT2}, {WS_KV}
        """) + [I(f"buffer_load_dwordx4 v{t}, {sr(SWS,4)}, s{sT2} offen sc1 lds", vm="R")]

    WL = wd_loads()
    wsched = {17: 1, 18: 1, 19: 1, 21: 1, 22: 1, 23: 1, 24: 1, 25: 2, 26: 2, 27: 2, 29: 1, 30: 2, 31: 2}
    wsched = {k: n for k, n in wsched.items() if k >= oi("pw", 20) + 3}
    for o in opt:
        if o.startswith("ws="): wsched = {32 - len(o[3:]) + i: int(ch) for i, ch in enumerate(o[3:])}
    assert min(k for k, n in wsched.items() if n) >= oi("pw", 20) + oi("pd", 3)
    wepi = [int(x) for x in str(oi("we", 3320)).zfill(4)]
    NPRE = sum(wsched.values()) + sum(wepi)
    vq_pro = list(a.vq)
    a(f"s_cmp_eq_u32 s{sISG}, 0\ns_cbranch_scc1 {AUX}")
    if "nogemm" in opt: a(f"s_branch {END}")
    SP, SPS = oi("sp", 0), oi("ss", 64)
    h_pre = [f"s_and_b32 s{sT2}, s{sW}, 3", f"s_lshl_b32 s{sT2}, s{sT2}, 10"] + [
        f"s_buffer_load_dword s{sCNT}, {sr(SH,4)}, s{sT2} offset:{o}" for o in range(0, 1024, SPS)]
    if SP == 1: a(h_pre)
    TF = os0("tf=")
    def touch():
        o = ["s_mov_b64 exec, 1"]
        if "d" in TF: o += [f"s_mul_i32 s{sT2}, s{sCB}, 131072", I(f"buffer_load_dword v160, off, {sr(SWD,4)}, s{sT2}", vm="tf")]
        if "h" in TF: o += [I(f"buffer_load_dword v161, off, {sr(SH,4)}, 0", vm="tf")]
        if "e" in TF: o += [I(f"buffer_load_dword v162, off, {sr(SWS,4)}, 0 offset:128 sc1", vm="tf")]
        if "w" in TF: o += [f"s_mov_b32 s{sT2}, {WS_WT - 128}", I(f"buffer_load_dword v163, off, {sr(SWS,4)}, s{sT2} sc1", vm="tf"),
                            f"s_mov_b32 s{sT2}, {WS_YT - 128}", I(f"buffer_load_dword v164, off, {sr(SWS,4)}, s{sT2} sc1", vm="tf")]
        o += ["s_mov_b64 exec, -1"]
        if "0" in TF: return [f"s_cmp_lg_u32 s{sW}, 0", "s_cbranch_scc1 L_notf"] + [x.text if isinstance(x, I) else x for x in o] + ["L_notf:"]
        return o
    if "B" in TF: a(touch())
    a(chunk_dma(0))
    stamp("K2")
    WU, WQ = oi("wu", -1), oi("wq", 0)
    W8 = "w8" in opt or "wm" in opt
    def warm():
        if "wo4" in opt: a(f"s_cmp_ge_u32 s{sW}, 4\ns_cbranch_scc1 L_wux")
        if "wy4" in opt: a(f"s_cmp_lt_u32 s{sW}, 4\ns_cbranch_scc1 L_wux")
        if "wz" in opt:
            for i in range(16): a(f"v_mov_b32 v{FR+16+i}, 0")
        elif "wa" in opt:
            for i in range(8 if "w8" in opt else 16): a(f"v_xor_b32 v{FR+16+i}, {0x3f5a3e97 + 0x00130029 * i}, v{(vX0, vX1, vW0, vW1)[i & 3]}")
        elif "wm" in opt:
            if not UE: a(w_init)
        else:
            a(f"s_mov_b32 s{sT2}, 0x807f807f\ns_mov_b32 s{sT3}, 0x3f003f00\nv_mov_b32 v180, 0x9e3779b1\nv_add_u32 v181, 0x1234567, v{vW0}")
            for i in range(16):
                a(f"v_mul_lo_u32 v181, v181, v180\nv_alignbit_b32 v181, v181, v181, 13\nv_and_b32 v{FR+16+i}, s{sT2}, v181\nv_or_b32 v{FR+16+i}, s{sT3}, v{FR+16+i}")
        wm = lambda z: [f"v_mfma_f32_32x32x16_bf16 {vr(ACC+16*i,16)}, {vr(FR+16+4*(i&1),4)}, {vr(FR+(16 if W8 else 24)+4*(i>>1),4)}, {'0' if z or 'w0c' in opt else vr(ACC+16*i,16)}" for i in range(4)]
        if "wv" not in opt and "w0c" not in opt: a(wm(True)[:oi("wn", 4)])
        if WU:
            a(f"s_mov_b32 s{sT2}, {WU}\nL_wu:")
            if "wv" in opt:
                for i in range(64): a(f"v_fma_f32 v{ACC+i}, v{FR+16+(i&15)}, v{FR+16+((i*7+3)&15)}, v{ACC+i}")
            else:
                for q_, m_ in enumerate(wm(False)[:oi('wn', 4)]):
                    UV = oi("uv", 0)
                    xv = [f"v_pk_fma_f32 {vr(150+2*(UV*q_+z),2)}, {vr(FR+16+2*((q_+z)&3),2)}, {vr(FR+16+2*((q_+2*z+1)&3),2)}, {vr(FR+16+2*((z+2)&3),2)}" for z in range(UV)]
                    a([m_] + xv + ([f"s_nop {oi('wg', 0)}"] if oi("wg", 0) else []))
            if oi("wad", 0): a(f"s_getreg_b32 s{sT3}, hwreg(HW_REG_IB_STS, 0, 4)\ns_cmp_lt_u32 s{sT3}, {oi('wad', 0)}\ns_cbranch_scc1 L_wux")
            a(f"s_sub_u32 s{sT2}, s{sT2}, 1\ns_cmp_lg_u32 s{sT2}, 0\ns_cbranch_scc1 L_wu")
        if oi("iw", 0) and "iwy" in opt:
            W_ = oi("iwn", 4)
            a("s_branch L_wuy\nL_wux:")
            a([f"s_and_b32 s{sCNT}, s{sW}, {W_ - 1}", "s_mov_b64 exec, 0"] + [x for i in range(W_ - 1) for x in (f"s_cmp_eq_u32 s{sCNT}, {i}", f"s_cbranch_scc1 L_iw{i}_0")] +
              [f"s_branch L_iw{W_ - 1}_0", "L_iwr_g:", "s_mov_b64 exec, -1", "L_wuy:"])
        elif oi("iy", 0): a("s_branch L_wuy\nL_wux:\nL_iyd:\nL_iyr:\ns_mov_b64 exec, -1\nL_wuy:")
        else: a("L_wux:")
        stamp("K3")
    if WU >= 0 and WQ == 0: warm()
    if "A" in TF: a(touch())
    if PF == "a": a(prefetch(4))
    if SP == 2: a(h_pre)
    WP, vWPA, vWPS, vWPL, CSA, CS1 = 208, 212, 213, 214, 240, 236
    sWPS, sWPF, sWPM = SSH, SSH + 1, SSH + 3
    a(f"""
    v_and_b32 v23, 3, v20
    v_lshrrev_b32 v26, 5, v0
    v_lshl_add_u32 v23, v26, 3, v23
    v_lshlrev_b32 v26, 4, v22
    v_lshl_add_u32 v{vWPL}, v23, 10, v26
    {"" if "wdx" in opt else f"s_mov_b32 s{sE}, s{sXCD}"}
    s_lshl_b32 s{sT2}, s{sRBL}, 1
    s_add_u32 s{sT2}, s{sT2}, s{sB}
    {f"s_xor_b32 s{sE}, s{sXCD}, s{sT2}" if "wdx" in opt else ""}
    s_mul_i32 s{sT3}, s{sT2}, 7
    {f"s_xor_b32 s{sT1}, s{sCT2}, 4" if "ct3" in opt else ""}
    s_add_u32 s{sT3}, s{sT3}, s{sT1 if "ct3" in opt else sCT2}
    s_mul_i32 s{sWPS}, s{sE}, 56
    s_add_u32 s{sWPS}, s{sWPS}, s{sT3}
    s_lshl_b32 s{sWPS}, s{sWPS}, 12
    s_lshl_b32 s{sT1}, s{sC}, 8
    s_add_u32 s{sWPS}, s{sWPS}, s{sT1}
    s_add_u32 s{sWPS}, s{sWPS}, {WS_WT}
    s_lshl_b32 s{sT3}, s{sT3}, 15
    s_lshl_b32 s{sT1}, s{sWR}, 12
    s_add_u32 s{sT3}, s{sT3}, s{sT1}
    s_lshl_b32 s{sT1}, s{sWC}, 14
    s_and_b32 s{sT1}, s{sT1}, 0x4000
    s_add_u32 s{sT3}, s{sT3}, s{sT1}
    s_lshl_b32 s{sT1}, s{sE}, 7
    s_add_u32 s{sWPF}, s{sT3}, s{sT1}
    s_lshl_b32 s{sT2}, s{sW}, 10
    s_add_u32 s{sWPM}, s{sT2}, {L_WP}
    {"" if "nob" in opt else "s_barrier"}
    """)
    wp_load = [f"s_mov_b32 m0, s{sWPM}", I(f"buffer_load_dwordx4 v{vWPL}, {sr(SWD,4)}, s{sWPF} offen{NTH} lds", vm="wpl")]
    SWL, SWR, SRS, SPW, SHL, SPF, SRL = oi("wl", -1), oi("wr", 4), oi("rs", 11), oi("pw", 20), oi("hl", 9), oi("pf", 0), oi("rl", -1)
    SKF, SRD = oi("kf", 28), oi("rd", 32)
    XE = oi("xe", 28)
    assert XE >= 27 or ("hr" in opt and XE >= 22)
    BI = "bi" in opt
    if WU >= 0 and WQ == 1: warm()
    if SWL < 0: a(wp_load)
    a(f"""
    v_lshlrev_b32 v23, 7, v24
    v_lshl_add_u32 v23, v21, 5, v23
    v_lshl_add_u32 v23, v25, 3, v23
    v_add_u32 v{vWPA}, s{sWPM}, v23
    """)
    C1E = oi("c1e", 2)
    if SRL >= 0: a(row_load()[0]); a(row_load()[1][:4])
    elif "rowl" not in opt: a(row_load())
    if SHL == -3: a(h_load(27))
    if PF == "b": a(prefetch(4))
    a(chunk_dma(1)[:C1E])
    if PF == "c": a(prefetch(4))
    if SHL == -4: a(h_load(27))
    if "th" in opt: a(I(f"buffer_load_dword v{vHP}, off, {sr(SH,4)}, 0", vm="th"))
    a(f"""
    v_and_b32 v23, 15, v0
    v_lshlrev_b32 v23, 4, v23
    v_lshl_add_u32 v{vWPS}, v21, 10, v23
    v_and_b32 v24, 31, v0
    v_lshrrev_b32 v25, 5, v0
    v_bfe_u32 v22, v0, 1, 3
    v_xor_b32 v22, v22, v25
    v_lshlrev_b32 v22, 4, v22
    v_lshl_add_u32 v22, v24, 7, v22
    s_lshl_b32 s{sT0}, s{sWR}, 13
    v_add_u32 v{vXB}, s{sT0}, v22
    v_xor_b32 v{vXB+1}, 32, v{vXB}
    v_xor_b32 v{vXB+2}, 64, v{vXB}
    v_xor_b32 v{vXB+3}, 96, v{vXB}
    v_add_u32 v{vXB+4}, {2*STAGE}, v{vXB}
    v_add_u32 v{vXB+5}, {2*STAGE}, v{vXB+1}
    v_add_u32 v{vXB+6}, {2*STAGE}, v{vXB+2}
    v_add_u32 v{vXB+7}, {2*STAGE}, v{vXB+3}
    v_bfe_u32 v23, v0, 2, 2
    v_lshl_add_u32 v24, v25, 3, v23
    v_lshlrev_b32 v24, 8, v24
    v_xor_b32 v23, s{sWC}, v23
    v_lshl_add_u32 v24, v23, 6, v24
    v_bfe_u32 v23, v0, 4, 1
    v_lshl_add_u32 v24, v23, 5, v24
    v_and_b32 v23, 3, v0
    v_lshl_add_u32 v24, v23, 3, v24
    v_add_u32 v{vWB}, 16384, v24
    v_add_u32 v{vWB+1}, {STAGE+16384}, v24
    v_add_u32 v{vWB+2}, {2*STAGE+16384}, v24
    """)
    if "cs16" in opt:
        a(f"""
        v_lshrrev_b32 v23, 2, v0
        v_xor_b32 v23, v23, v21
        v_and_b32 v23, 1, v23
        v_add_u32 v23, -1, v23
        """)
        for d in range(4): a(f"v_and_b32 v{CS1+d}, 0x3f803f80, v23")
    else:
        for d in range(4): a(f"v_mov_b32 v{CS1+d}, 0x3f803f80")
    if "csb" in opt: a(f"s_cmp_lg_u32 s{sCSM}, 0\ns_cselect_b64 vcc, -1, 0")
    if prof and oi("mz", 0): a([f"v_mov_b32 v{180+i}, 0" for i in range(4)])
    stamp("K1")
    stamp("K0")
    a(sc_init)
    if "dmaonly" in opt:
        DD = oi("dd", 2)
        if C1E < 6: a(chunk_dma(1)[0][:4]); a(chunk_dma(1)[C1E:])
        for c in range(2, DD): a(chunk_dma(c))
        for c in range(8):
            a(I(wvm=f"c{c}"))
            if "dnb" not in opt: a("s_barrier")
            stamp(f"B{c}")
            if c + DD < 8: a(chunk_dma(c + DD))
        a("s_branch L_prof")
        opt = [o for o in opt if not o.startswith("st=")] + ["st=end"]

    IW, IWN = oi("iw", 0), oi("iwn", 4)
    def walk(tag, first=0):
        o = [f"s_and_b32 s{sCNT}, s{sW}, {IWN - 1}", "s_mov_b64 exec, 0"]
        if "iwo" in opt:
            o = [f"s_cmp_ge_u32 s{sW}, 4", f"s_cbranch_scc1 L_iwr_{tag}", f"s_lshl_b32 s{sCNT}, s{sRBL}, 2", f"s_add_u32 s{sCNT}, s{sCNT}, s{sW}", "s_mov_b64 exec, 0"]
        if "iwa" in opt:
            o = [f"s_lshl_b32 s{sCNT}, s{sW}, 2", f"s_add_u32 s{sCNT}, s{sCNT}, s{sRBL}", f"s_cmp_ge_u32 s{sCNT}, {IWN}", f"s_cbranch_scc1 L_iwr_{tag}", "s_mov_b64 exec, 0"]
        for i in range(IWN - 1): o += [f"s_cmp_eq_u32 s{sCNT}, {i}", f"s_cbranch_scc1 L_iw{i}_{first}"]
        return o + [f"s_branch L_iw{IWN - 1}_{first}", f"L_iwr_{tag}:", "s_mov_b64 exec, -1"]
    def F(s): return FR + 16 * (s & 1)
    def reads(s):
        c, j = divmod(s, 4)
        st = c % 3
        xb = vXB + j + (4 if st == 2 else 0); im = STAGE if st == 1 else 0
        wb = vWB + st; wo = 4096 * j
        f = F(s); t = f"r{s}"
        return [I(f"ds_read_b64_tr_b16 {vr(f,2)}, v{wb} offset:{wo}", lg=t),
                I(f"ds_read_b64_tr_b16 {vr(f+2,2)}, v{wb} offset:{wo+1024}", lg=t),
                I(f"ds_read_b128 {vr(f+8,4)}, v{xb} offset:{im}", lg=t),
                I(f"ds_read_b64_tr_b16 {vr(f+4,2)}, v{wb} offset:{wo+16384}", lg=t),
                I(f"ds_read_b64_tr_b16 {vr(f+6,2)}, v{wb} offset:{wo+17408}", lg=t),
                I(f"ds_read_b128 {vr(f+12,4)}, v{xb} offset:{im+4096}", lg=t)]
    def mfmas(A, B, first=False, par=0):
        out = []
        for nt in range(2):
            for m in range(2):
                d = ACC + 32 * m + 16 * nt
                if "m16x" in opt:
                    for h in range(2):
                        e = d + 8 * (par & 1) + 4 * h
                        out.append(f"v_mfma_f32_16x16x32_bf16 {vr(e,4)}, {vr(A[m ^ h],4)}, {vr(B[nt],4)}, {'0' if par < 2 else vr(e,4)}")
                    continue
                out.append(f"v_mfma_f32_32x32x16_bf16 {vr(d,16)}, {vr(A[m],4)}, {vr(B[nt],4)}, {'0' if first else vr(d,16)}")
        if "snk" in opt: out = [out[0], out[1], out[3], out[2]]
        if "snb" in opt: out = [out[0], out[2], out[3], out[1]]
        if "sna" in opt: out = [out[0], out[2], out[1], out[3]]
        return out
    def cs_mfma(p):
        o = []
        sh, n = ("16x16x32", 4) if "cs16" in opt else ("32x32x16", 16)
        mm = [f"v_mfma_f32_{sh}_bf16 {vr(CSA,n)}, {vr(CS1,4)}, {vr(F(p)+4*m,4)}, {'0' if p == 0 else vr(CSA,n)}" for m in range(2)]
        if "csv" in opt:
            for m in range(2):
                o += [f"s_bitcmp1_b32 s{sCSM}, {m}", f"s_cbranch_scc0 L_cs{p}_{m}"]
                o += [f"v_dot2_f32_bf16 v{CSA+4+(d&1)}, v{F(p)+4*m+d}, v{CS1}, {'0' if p == 0 and d < 2 else 'v%d' % (CSA+4+(d&1))}" for d in range(4)]
                o += [f"L_cs{p}_{m}:"]
            return o
        if "csb" in opt:
            return [f"s_cbranch_vccz L_cs{p}_1", f"s_bitcmp1_b32 s{sCSM}, 0", f"s_cbranch_scc0 L_cs{p}_0", mm[0], f"s_branch L_cs{p}_1",
                    f"L_cs{p}_0:", mm[1], f"L_cs{p}_1:"]
        if "cs16" in opt:
            for m in range(2): o += [f"s_bitcmp1_b32 s{sCSM}, {m}", f"s_cbranch_scc0 L_cs{p}_{m}", mm[m], f"L_cs{p}_{m}:"]
            return o
        for m in range(2):
            o += [f"s_bitcmp1_b32 s{sCSM}, {m}", f"s_cbranch_scc0 L_cs{p}_{m}",
                  f"v_mfma_f32_32x32x16_bf16 {vr(CSA,16)}, {vr(CS1,4)}, {vr(F(p)+4*m,4)}, {'0' if p == 0 else vr(CSA,16)}",
                  f"L_cs{p}_{m}:"]
        return o
    sCSB = SSH + 2
    cs_store = [L(f"""
        s_lshl_b32 s{sCSB}, s{sCB}, 2
        s_add_u32 s{sCSB}, s{sCSB}, s{sWC}
        s_lshl_b32 s{sCSB}, s{sCSB}, 10
        s_add_u32 s{sCSB}, s{sCSB}, {WS_CS}
        s_cmp_eq_u32 s{sCSM}, {'s%d' % sCSM if "nocs" in opt else 0}
        s_cbranch_scc1 L_nocs
        {f"v_add_f32 v{CSA}, v{CSA+4}, v{CSA+5}" if "csv" in opt else ""}
        {f"v_mov_b32 v{CSA+4}, v{CSA}" if "csv" in opt else ""}
        {f"s_nop 1" if "csv" in opt else ""}
        {f"v_permlane32_swap_b32 v{CSA+4}, v{CSA}" if "csv" in opt else ""}
        {f"s_nop 1" if "csv" in opt else ""}
        {f"v_add_f32 v{CSA}, v{CSA+4}, v{CSA}" if "csv" in opt else ""}
        v_cvt_pk_bf16_f32 v{CSA+1}, v{CSA}, v{CSA}
        s_mul_i32 s{sT2}, s{sWR}, 57344
        v_lshlrev_b32 v{CSA+1}, 16, v{CSA+1}
        s_lshr_b32 s{sT3}, s{sKEY}, 1
        v_sub_f32 v{CSA+1}, v{CSA}, v{CSA+1}
        s_lshl_b32 s{sT3}, s{sT3}, 3
        v_cvt_pk_bf16_f32 v{CSA}, v{CSA}, v{CSA+1}
        s_add_u32 s{sT2}, s{sT2}, s{sT3}
        v_mov_b32 v{CSA+1}, v{vTAG}
        s_add_u32 s{sT2}, s{sT2}, s{sCSB}
        v_lshlrev_b32 v{CSA+2}, 5, v0
        s_mov_b32 exec_hi, 0
        buffer_store_dwordx2 {vr(CSA,2)}, v{CSA+2}, {sr(SWS,4)}, s{sT2} offen sc1
        s_mov_b32 exec_hi, -1
        L_nocs:
        """)]
    EG, EU, ER, EB0, EB1 = 128, 132, 20, 136, 140
    ex_addr = L(f"""
        v_and_b32 v24, 31, v0
        v_lshrrev_b32 v25, 5, v0
        v_lshlrev_b32 v25, 4, v25
        v_lshl_add_u32 v{vX0}, v24, 5, v25
        v_and_b32 v24, 15, v0
        v_lshrrev_b32 v25, 4, v0
        v_lshlrev_b32 v25, 3, v25
        v_lshl_add_u32 v{vX1}, v24, 5, v25
        s_lshl_b32 s{sKEY}, s{sRB}, 1
        s_add_u32 s{sKEY}, s{sKEY}, s{sWR}
        s_lshl_b32 s{sWB}, s{sKEY}, 9
        s_add_u32 s{sWB}, s{sWB}, {WS_RS}
        s_add_u32 s{sXB}, s{sCSB}, 57344
        """)
    ex_ld = [f"buffer_load_dwordx4 {vr(EG,4)}, v{vX0}, {sr(SWS,4)}, s{sCSB} offen sc1",
             f"buffer_load_dwordx4 {vr(EU,4)}, v{vX0}, {sr(SWS,4)}, s{sXB} offen sc1",
             f"buffer_load_dwordx2 {vr(ER,2)}, v{vX1}, {sr(SWS,4)}, s{sWB} offen sc1"]
    ex_check = L(f"""
        v_min3_u32 v24, v{EG+1}, v{EG+3}, v{ER+1}
        v_max3_u32 v25, v{EG+1}, v{EG+3}, v{ER+1}
        v_min3_u32 v24, v24, v{EU+1}, v{EU+3}
        v_max3_u32 v25, v25, v{EU+1}, v{EU+3}
        v_cmp_ne_u32 vcc, s{sTAG}, v24
        v_cmp_ne_u32 s[{sT0}:{sT1}], s{sTAG}, v25
        s_or_b64 vcc, vcc, s[{sT0}:{sT1}]
        """)
    AP, BP, SS, vHO, TM = 22, 24, 26, 28, FR
    RM = row_math()
    def part(lst, i, n): return lst[len(lst) * i // n:len(lst) * (i + 1) // n]
    def os_(k, d=""): return ([o[len(k):] for o in opt if o.startswith(k)] + [d])[0]
    W = [0]
    def cum(t): return [sum(int(x) for x in t[:i]) for i in range(5)]
    def step(s, role):
        wi = W[0]
        c, j = divmod(s, 4)
        fill = []; pre = []; post = []
        NB7, PO = "nb7" in opt, os_("po=")
        if IW and s == oi("iwg", -1): a([f"s_cmp_ge_u32 s{sW}, 4", "s_cbranch_scc1 L_iwx"] + walk("g") + ["L_iwx:"])
        if IW and s == oi("iwf", 32): a("L_iwa:")
        if oi("iy", 0) and s == oi("iyf", 1): a("L_iya:")
        if oi("iy", 0) and s == oi("iyl", 32): a("L_iyb:")
        if j == 0 and s < 32:
            if not (NB7 and c == 7):
                a(I(wvm=["c6", "c7"] if NB7 and c == 6 else f"c{c}", wlg="*"))
                a("s_barrier")
            stamp(f"B{c}")
            if PO and c == int(PO[0]):
                a(f"s_setprio {PO[2]}\ns_cmp_lt_u32 s{sW}, 4\ns_cbranch_scc0 L_po\ns_setprio {PO[1]}\nL_po:")
            PR_ = os_(f"Rq{role}=")
            if PR_ and (c == 0 or PR_[c] != PR_[c - 1]): a(f"s_setprio {PR_[c]}")
            if "g1only" in opt and s == 20: a("s_waitcnt vmcnt(0)\ns_branch L_prof")
        if prof and os_(f"zz{s}="): a(f"s_sleep {os_(f'zz{s}=')}")
        if prof and os_(f"zy{s}="): a(f"s_cmp_lt_u32 s{sW}, 4\ns_cbranch_scc1 L_zy{s}\ns_sleep {os_(f'zy{s}=')}\nL_zy{s}:")
        DR = os_("drop=")
        if s == SWL: pre += [wp_load]
        if s == SPW: pre += [ap(wf_ld, 28, "apw", "fw")]
        if s == SKF: pre += [ap(kf_ld, 32, "apk", "kf")]
        if s == XE: pre += [I(x, vm="ex") for x in ex_ld]
        if s == 0:
            assert C1E in (0, 2, 4, 6)
            if 0 < C1E < 6: fill += [chunk_dma(1)[0][:4]]
            fill += chunk_dma(1)[C1E:]
            if "rowl" in opt: fill += row_load()
            if SHL == -5: fill += h_load(27)
        if c <= 5:
            cu = cum(os_(f"Re{role}=", "0222") if c == 0 and C1E < 6 else os_(f"Rd{role}{c}=", os_(f"Rd{role}=", "2121")))
            assert cu[4] == 6
            g = chunk_dma(c + 2)[cu[j]:cu[j + 1]]
            pm = os_(f"Rm{role}{c}=", os_(f"Rm{role}=", "0000"))[j]
            hp = os_(f"Rp{role}=", "0")
            if hp[0] != "0" and g:
                if pm == "0" and s: g = [[f"s_setprio {hp[0]}", x, "s_setprio 0"] for x in g]
                else: g = [f"s_setprio {hp[0]}"] + g + ["s_setprio 0"]
            if s == 0 or pm == "0": fill += g
            elif pm == "1": pre += g
            else: post += g
        if PF == str(s): fill += [prefetch(4)]
        if s == oi("c3p", -1): fill += [c3p(role, 4, "a")]
        IL = os_("il=", "")
        RD = reads(s) if s < 32 else []
        if IL:
            for x, t in zip(RD, "aaabbc"): x.lg += t
        if not IL or s == 0: a(RD)
        wp_rd = [I(f"ds_read_b64_tr_b16 {vr(WP,2)}, v{vWPA}", lg="wp", wvm="wpl"),
                 I(f"ds_read_b64_tr_b16 {vr(WP+2,2)}, v{vWPA} offset:512", lg="wp")]
        wp_st = I(f"buffer_store_dwordx4 {vr(WP,4)}, v{vWPS}, {sr(SWS,4)}, s{sWPS} offen sc1", vm="wps", wlg="wp")
        if s == 0:
            a(pre + fill + (wp_rd if SWR == 0 else [])); return
        p = s - 1
        v = []
        if s in (SHL, SHL + oi("hd", 2))[:1 if H1 else 2] and "h" not in DR:
            g = h_load(31)[(s - SHL) // oi("hd", 2)]
            if "hx" in opt: g[-1].text = g[-1].text.replace(sr(SH, 4), sr(SX, 4))
            if oi("hpt", 0):
                g = ([f"v_and_b32 v156, 7, v0", f"v_lshlrev_b32 v156, 7, v156"] + g[:-1] +
                     [f"s_bitcmp1_b32 0x2a2a, s{sCB}", "s_cselect_b64 exec, 0, -1", g[-1],
                      f"s_bitcmp1_b32 0x1515, s{sCB}", "s_cselect_b64 exec, 0xff, 0", f"s_cselect_b32 s{sT3}, 0x8000, 0", f"s_add_u32 s{sT2}, s{sT2}, s{sT3}",
                      I(f"buffer_load_dword v157, v156, {sr(SH,4)}, s{sT2} offen", vm="hl"), "s_mov_b64 exec, -1"])
            if not (("1" in DR and s == SHL) or ("2" in DR and s != SHL)): fill += [g]
        if s == oi("hpt", 0):
            g = h_load(31)[0]
            fill += [g[:-1] + [f"s_bitcmp1_b32 0x2a2a, s{sCB}", "s_cselect_b64 exec, -1, 0", g[-1], "s_mov_b64 exec, -1"]]
        if s == oi("tg", 4) and "t" not in DR: v += [I(tag_math[0], wvm="ep")] + tag_math[1:]
        if s == SWR and "w" not in DR: fill += wp_rd
        if s == SWR + 1 and "w" not in DR: fill = [wp_st] + fill if SWR == 0 else fill + [wp_st]
        RM0, RMN = oi("rm", 5), oi("rn", 5)
        if s == SRL:
            x = row_load()[1][4:]; x[-1].vm = "xr"; fill += [x]
        if SRL >= 0 and s == RM0: v += [I(f"s_mov_b32 s{sB}, 0x3f803f80", wvm="xr")]
        if SRL >= 0 and s == oi("wf", 11):
            fill += [[f"s_lshl_b32 s{sT2}, s{sA}, 3", f"s_add_u32 s{sT2}, s{sT2}, {WS_RS + 16384}"] +
                     one(f"buffer_store_dword v{vTAG}, off, {sr(SWS,4)}, s{sT2} offset:4 sc1", vm="wf", wvm="wps")]
        if RM0 <= s < RM0 + RMN and "t" not in DR: v += part(RM[:-1], s - RM0, RMN)
        if s == SRS and "r" not in DR: fill = [RM[-1]] + fill if "rsf" in opt else fill + [RM[-1]]
        if s == oi("cst", 10) and "c" not in DR and "S" not in DR: v += cs_store
        if s == 11 and "a" not in DR: v += [wf_addr]
        HM, HW = oi("hm", 21), oi("hw", 24)
        if HM <= s <= HM + 2: v += part(h_math, s - HM, 3)
        if s == SPW + oi("pd", 3): pre += [[I(wvm="fw")] + ne(vFL) + ["s_cbranch_scc0 L_fw_ok"] + spin("fw", ap(wf_ld, 28, "apw"), ne(vFL))]
        if s == 19: v += kf_addr
        if HW <= s <= HW + 2: v += [h_write[s - HW]]
        if s == XE - 1: v += ex_addr
        if s == SRD: fill = [[I(wvm="kf")] + ne(vKL) + [f"s_cselect_b32 s{sOK}, 0, 1"] +
                             ([f"s_cselect_b64 vcc, 0, -1"] + r_dma(24)[:-1] + ["s_mov_b64 exec, vcc", r_dma(24)[-1], "s_mov_b64 exec, -1"] if "mskr" in opt else r_dma(oi("rt", 24)))] + fill
        if s == 30: v += [f"v_mov_b32 v{r}, 0" for r in (EB0 + 1, EB0 + 3, EB1 + 1, EB1 + 3)] + [f"s_mov_b32 s{sB}, 0x03020302"]
        n = wsched.get(s, 0); fill += WL[wi:wi + n]; W[0] += n
        if s == 32:
            a(I(wvm="ex"))
            a(ex_check + ["s_cbranch_scc0 L_ex_ok"] + spin("ex", ex_ld, ex_check))
            v += L(f"""
            v_mov_b32 v{ER+1}, v{ER}
            v_permlane32_swap_b32 v{ER}, v{ER+1}
            v_perm_b32 v{EB0}, v{ER}, v{ER}, s{sB}
            v_perm_b32 v{EB0+2}, v{ER}, v{ER}, s{sB}
            v_perm_b32 v{EB1}, v{ER+1}, v{ER+1}, s{sB}
            v_perm_b32 v{EB1+2}, v{ER+1}, v{ER+1}, s{sB}
            v_lshlrev_b32 v{ER}, 16, v{ER}
            v_lshlrev_b32 v{ER+1}, 16, v{ER+1}
            """)
        hd = []
        if c <= 5 and os_(f"Rm{role}{c}=", os_(f"Rm{role}=", "0000"))[j] == "1": hd, pre = pre, []
        fill = pre + (mix(v, fill) if len(v) >= len(fill) else mix(fill, v)) if (v and fill) else pre + v + fill
        a(hd)
        f = F(p)
        MM = mfmas((f, f + 4), (f + 8, f + 12), p == 0, p)
        if prof and oi("my", 0) <= p < oi("mz", 0): MM = mfmas((180, 180), (180, 180) if "mzb" in opt else (f + 8, f + 12), p == 0, p)
        if IL:
            nm = len(MM)
            cu2 = lambda t: [sum(int(x) for x in t[:i]) for i in range(nm + 1)]
            rc = cu2(IL[:nm]); fc = cu2(IL[nm:2 * nm])
            assert rc[nm] == 6
            for i in range(nm):
                a(I(MM[i], wlg=f"r{p}" + ("abcc" if nm == 4 else "abbbcccc")[i]))
                a(RD[rc[i]:rc[i + 1]])
                a(fill[(len(fill) * fc[i] + fc[nm] // 2) // fc[nm]:(len(fill) * fc[i + 1] + fc[nm] // 2) // fc[nm]])
        else:
            a(I(wlg=f"r{p}"))
            NP_ = os_("np=")
            if prof and NP_ and p < len(NP_) and NP_[p] != "0": MM = [[m_] + ["s_nop 15"] * int(NP_[p]) for m_ in MM]
            a(mix(MM, fill))
        if p < 8 and "nocs" not in opt and "c" not in DR and "C" not in DR: a(cs_mfma(p))
        a(post)
        stamp(f"s{s}")
    if "split" in opt:
        a(f"s_cmp_lt_u32 s{sW}, 4\ns_cbranch_scc0 L_g1y")
        sv = (list(a.vq), list(a.lq), W[0])
        for s in range(24): step(s, "o")
        a(I(wvm="c6", wlg="*"))
        a("s_branch L_g1m")
        vo = list(a.vq)
        a("L_g1y:")
        a.vq, a.lq, W[0] = sv
        i0 = len(a.lines)
        for s in range(24): step(s, "y")
        a(I(wvm="c6", wlg="*"))
        defs = [x[:-1] for x in a.lines[i0:] if x.endswith(":")]
        for i in range(i0, len(a.lines)):
            for d in defs: a.lines[i] = re.sub(rf"\b{d}\b", d + "_y", a.lines[i])
        a("L_g1m:")
        a.vq = [tuple(set(vo + a.vq))]
        for s in range(24, 33): step(s, "o")
    else:
        for s in range(33): step(s, "o")
    wi = W[0]
    fill = []
    EO = oi("eo", 2)
    cA, cB, cS = ([lambda nt, b=b: b + nt for b in (AP, BP, SS)] if EO == 0 else
                  [lambda nt, b=b: FR + 16 + 6 * nt + b for b in (0, 2, 4)])
    for nt in range(2):
        if BI:
            fill += [f"v_rcp_f32 v{TM+nt}, v{ER+nt}"] + [f"v_mov_b32 v{cS(nt)+i}, {fx((-float(ESH), 2.0 ** -ESH)[nt])}" for i in range(2)]
            continue
        fill += [f"v_rcp_f32 v{TM+nt}, v{ER+nt}", f"v_mul_f32 v{cS(nt)}, v{ER+nt}, v{ER+nt}"]
        if EO == 2: fill += [f"v_mul_f32 v{cS(nt)+1}, v{ER+nt}, v{ER+nt}"]
    for nt in range(2):
        fill += [f"v_mul_f32 v{cA(nt)}, {fx(-KC)}, v{TM+nt}"]
        if EO == 2: fill += [f"v_mul_f32 v{cA(nt)+1}, {fx(-KC)}, v{TM+nt}"]
        fill += [f"v_mul_f32 v{TM+nt}, v{TM+nt}, v{TM+nt}",
                 f"v_mul_f32 v{TM+nt}, {fx(0.044715)}, v{TM+nt}", f"v_mul_f32 v{cB(nt)}, v{cA(nt)}, v{TM+nt}"]
        if EO == 2: fill += [f"v_mul_f32 v{cB(nt)+1}, v{cA(nt)}, v{TM+nt}"]
    sHF = SK
    fill += L(f"""
    v_bfe_u32 v{TM+8}, v0, 4, 1
    v_mul_u32_u24 v{TM+8}, 57344, v{TM+8}
    v_and_b32 v{TM+9}, 15, v0
    v_lshl_add_u32 v{TM+8}, v{TM+9}, 4, v{TM+8}
    v_lshrrev_b32 v{TM+9}, 5, v0
    v_lshl_add_u32 v{vHO}, v{TM+9}, 8, v{TM+8}
    s_mul_i32 s{sXB}, s{sKEY}, {4*56*1024}
    s_add_u32 s{sXB}, s{sXB}, s{sCSB}
    s_add_u32 s{sXB}, s{sXB}, {WS_H - WS_CS}
    s_add_u32 s{sWB}, s{sXB}, {2*56*1024}
    s_sub_u32 s{sHF}, s{sCSB}, {WS_CS}
    s_lshr_b32 s{sHF}, s{sHF}, {10 - FS}
    s_mul_i32 s{sT0}, s{sKEY}, {56 << FS}
    s_add_u32 s{sHF}, s{sHF}, s{sT0}
    s_add_u32 s{sHF}, s{sHF}, {WS_FH}
    """)
    a(mix(mfmas((EG, EU), (EB0, EB1), False, 2), fill))
    stamp("B8")
    if os_("po="): a(f"s_setprio {os_('po=')[3]}")
    if oi("pe", 0): a(f"s_setprio {oi('pe', 0)}")
    def epi(G, U, nt, rr, pk, plain=False):
        o = []
        t = {r: TM + 2 * i for i, r in enumerate(rr)}
        P = lambda x: vr(x, 2)
        s2 = (f"op_sel:[0,{nt},{nt}] op_sel_hi:[1,{nt},{nt}]", "op_sel_hi:[1,0,0]", "")[EO]
        AP, BP, SS = [f(nt) & ~1 for f in (cA, cB, cS)]
        if plain:
            e = [(t[r] + i, G + r + i, U + r + i) for r in rr for i in range(2)]
            o += [f"v_mul_f32 v{x}, v{g}, v{g}" for x, g, u in e]
            o += [f"v_fma_f32 v{x}, v{x}, v{BP}, v{AP}" for x, g, u in e]
            o += [f"v_mul_f32 v{x}, v{x}, v{g}" for x, g, u in e]
            o += mix([f"v_exp_f32 v{x}, v{x}" for x, g, u in e], [f"v_mul_f32 v{u}, v{u}, v{g}" for x, g, u in e])
            o += [f"v_fma_f32 v{x}, v{x}, v{SS}, v{SS}" for x, g, u in e]
            o += [f"v_rcp_f32 v{x}, v{x}" for x, g, u in e]
            o += [f"v_mul_f32 v{u}, v{u}, v{x}" for x, g, u in e]
            o += [f"v_cvt_pk_bf16_f32 v{pk+i}, v{U+r}, v{U+r+1}" for i, r in enumerate(rr)]
            return o
        o += [f"v_pk_mul_f32 {P(t[r])}, {P(G+r)}, {P(G+r)}" for r in rr]
        o += [f"v_pk_fma_f32 {P(t[r])}, {P(t[r])}, {P(BP)}, {P(AP)} {s2}" for r in rr]
        if BI:
            rr = list(rr); bt = [(rr[0], rr[1]), (rr[2], rr[3])]
            o += [f"v_pk_fma_f32 {P(t[r])}, {P(t[r])}, {P(G+r)}, {P(cS(0))}" for r in rr]
            ex = [f"v_exp_f32 v{t[r]+i}, v{t[r]+i} clamp" for r in rr for i in range(2)]
            ug = [f"v_pk_mul_f32 {P(U+r)}, {P(U+r)}, {P(G+r)}" for r in rr]
            ad = [f"v_pk_add_f32 {P(t[r])}, {P(t[r])}, {P(cS(1))}" for r in rr]
            M = [f"v_pk_mul_f32 {P(G+q)}, {P(t[p])}, {P(t[q])}" for p, q in bt]
            m = [f"v_mul_f32 v{G+p}, v{G+q}, v{G+q+1}" for p, q in bt]
            rc = [f"v_rcp_f32 v{G+p}, v{G+p}" for p, q in bt]
            cr = [f"v_pk_mul_f32 {P(U+x)}, {P(U+x)}, {P(t[y])}" for p, q in bt for x, y in ((p, q), (q, p))]
            N = [f"v_pk_mul_f32 {P(G+q)}, {P(G+q)}, {P(G+p)} op_sel:[1,0] op_sel_hi:[0,0]" for p, q in bt]
            fi = [f"v_pk_mul_f32 {P(U+x)}, {P(U+x)}, {P(G+q)}" for p, q in bt for x in (p, q)]
            cv = [f"v_cvt_pk_bf16_f32 v{pk+i}, v{U+r}, v{U+r+1}" for i, r in enumerate(rr)]
            o += [ex[0], ug[0], ex[1], ug[1], ex[2], ug[2], ex[3], ad[0], ex[4], ad[1], ug[3], ex[5], M[0], ex[6], m[0], ad[2],
                  ex[7], cr[0], rc[0], ad[3], cr[1], M[1], N[0], m[1], cr[2], rc[1], fi[0], fi[1], cr[3], N[1], cv[0], cv[1],
                  fi[2], fi[3], cv[2], cv[3]]
            return o
        o += [f"v_pk_mul_f32 {P(t[r])}, {P(t[r])}, {P(G+r)}" for r in rr]
        o += mix([f"v_exp_f32 v{t[r]+i}, v{t[r]+i}" for r in rr for i in range(2)],
                 [f"v_pk_mul_f32 {P(U+r)}, {P(U+r)}, {P(G+r)}" for r in rr])
        o += [f"v_pk_fma_f32 {P(t[r])}, {P(t[r])}, {P(SS)}, {P(SS)} {s2}" for r in rr]
        o += [f"v_rcp_f32 v{t[r]+i}, v{t[r]+i}" for r in rr for i in range(2)]
        o += [f"v_pk_mul_f32 {P(U+r)}, {P(U+r)}, {P(t[r])}" for r in rr]
        o += [f"v_cvt_pk_bf16_f32 v{pk+i}, v{U+r}, v{U+r+1}" for i, r in enumerate(rr)]
        return o
    HSP = ("sc1", "sc0 sc1", "sc1 nt", "sc0 sc1 nt", "", "nt")[oi("hsp", 0)]
    for nt in range(2):
        G = ACC + 16 * nt; U = ACC + 32 + 16 * nt
        for h in range(2):
            pk = TM + 8 + 4 * h
            seq = epi(G, U, nt, range(8 * h, 8 * h + 8, 2), pk, 2 * nt + h < oi('npl', 0))
            n = wepi[2 * nt + h]
            ex = WL[wi:wi + n]; wi += n
            q = 33 + 2 * nt + h
            if oi("hm", 21) == q: ex = ex + h_math
            if oi("hw", 24) == q: ex = ex + h_write
            if SRD == q: ex = ex + [[I(wvm="kf")] + ne(vKL) + [f"s_cselect_b32 s{sOK}, 0, 1"] + r_dma(24)]
            if SRD == q + 10: ex = [[I(wvm="kf")] + ne(vKL) + [f"s_cselect_b32 s{sOK}, 0, 1"] + r_dma(24)] + ex
            a(mix(seq, ex))
            so = sXB if nt == 0 else sWB
            a(I(f"buffer_store_dwordx4 {vr(pk,4)}, v{vHO}, {sr(SWS,4)}, s{so} offen offset:{512*h} {HSP}", vm="hs"))
            stamp(f"e{2*nt+h}")
    assert wi == NPRE
    a(f"s_branch {JOIN}")
    if IW:
        a("L_iwb:\nL_iwret:")
        if oi("iwg", -1) >= 0 or "iwy" in opt: a(f"s_cmp_lg_u32 s{sISG}, 0\ns_cbranch_scc1 L_iwr_g")
        if "iwna" not in opt: a("s_branch L_iwr_a")
    vq_join = list(a.vq)

    a(["s_nop 0"] * oi("pad", 0))
    a(f"{AUX}:")
    if "noaux" in opt: a(f"s_branch {END}")
    a.vq, a.lq = list(vq_pro), []
    vKa, vKb, TP, vT, vKS, KR, KT = 1, 2, 32, 6, 10, 48, 96
    sKO, sKL = sXB, sWB
    a(row_load())
    AXL = oi("axl", 0)
    a(["s_nop 7"] * (len(SCN) > 0) + sc_init)
    if AXL & 2: a(h_load(27))
    if AXL & 1: a(I(wvm="ep")); a(tag_math); a(row_math())
    if AXL & 4: a(I(wvm="*"))
    if oi("asl", 0): a(f"s_sleep {oi('asl', 0)}")
    a(f"""
    s_xor_b32 s{sCB}, s{sXCD}, s{sW}
    v_and_b32 v23, 1, v21
    v_lshlrev_b32 v23, 1, v23
    v_xor_b32 v23, v22, v23
    v_lshlrev_b32 v23, 4, v23
    v_lshl_add_u32 v{vKa}, v20, 10, v23
    {f"v_lshlrev_b32 v{vKa}, 4, v0" if "kvlin" in opt else ""}
    v_xor_b32 v{vKb}, 64, v{vKa}
    s_lshl_b32 s{sKO}, s{sRBL}, 3
    s_add_u32 s{sKO}, s{sKO}, s{sW}
    s_mov_b32 s{sKEY}, s{sKO}
    s_lshl_b32 s{sKO}, s{sKO}, 16
    s_lshl_b32 s{sT0}, s{sCB}, {13 if "kvlin" in opt else 7}
    s_add_u32 s{sKO}, s{sKO}, s{sT0}
    s_mul_i32 s{sKL}, s{sW}, 17408
    {f"s_cmp_eq_u32 s{sCB}, 3" if oi("k3f", 0) else ""}
    {"s_cbranch_scc1 L_k3a" if oi("k3f", 0) else ""}
    {"s_barrier" if oi("k3f", 0) else ""}
    {"L_k3a:" if oi("k3f", 0) else ""}
    s_mov_b32 m0, s{sKL}
    s_cmp_eq_u32 s{sKEY}, 0
    s_cbranch_scc1 L_halo0
    s_sub_u32 s{sT0}, s{sKO}, 8192
    buffer_load_dwordx4 v{vKa}, {sr(SK,4)}, s{sT0} offen lds
    s_branch L_halo1
    L_halo0:
    v_mov_b32 v40, 0
    v_mov_b32 v41, 0
    v_mov_b32 v42, 0
    v_mov_b32 v43, 0
    ds_write_b128 v{vL16}, v[40:43]
    L_halo1:
    """)
    def c3a():
        t = 150; PW = os0("c3v=", "wx"); o = []
        if "w" in PW: o += L(f"""
        s_and_b32 s{sT2}, s{sXCD}, 1
        s_mul_i32 s{sT2}, s{sT2}, 3
        s_add_u32 s{sT2}, s{sT2}, s{sRBL}
        s_and_b32 s{sT3}, s{sXCD}, 1
        s_lshl_b32 s{sT3}, s{sT3}, 2
        s_or_b32 s{sT3}, s{sT3}, s{sRBL}
        s_cmp_eq_u32 s{sT3}, 3
        s_cselect_b32 s{sT3}, 9, s{sW}
        s_cmp_gt_u32 s{sT3}, 3
        s_cbranch_scc1 L_c3a1
        s_and_b32 s{sT3}, s{sT2}, 1
        s_mul_i32 s{sT3}, s{sT3}, 3584
        s_lshl_b32 s{sT2}, s{sT2}, 9
        s_add_u32 s{sT2}, s{sT2}, s{sT3}
        s_andn2_b32 s{sT3}, 2, s{sXCD}
        s_add_u32 s{sT3}, s{sT3}, s{sWC}
        s_mul_i32 s{sT3}, s{sT3}, {128 * 3584}
        s_add_u32 s{sT2}, s{sT2}, s{sT3}
        v_mul_u32_u24 v{t}, 7168, v0
        s_bitcmp1_b32 s{sW}, 0
        s_cbranch_scc1 L_c3a0
        buffer_load_dword v{t+1}, v{t}, {sr(SWG,4)}, s{sT2} offen offset:384
        s_branch L_c3a1
        L_c3a0:
        buffer_load_dword v{t+1}, v{t}, {sr(SWU,4)}, s{sT2} offen offset:384
        L_c3a1:
        """)
        if "x" in PW: o += L(f"""
        s_andn2_b32 s{sT3}, 2, s{sXCD}
        s_xor_b32 s{sT2}, s{sWC}, 2
        s_or_b32 s{sT2}, s{sT2}, s{sT3}
        s_cbranch_scc1 L_c3a2
        s_lshl_b32 s{sT2}, s{sRB}, 1
        s_add_u32 s{sT2}, s{sT2}, s{sWR}
        s_lshl_b32 s{sT2}, s{sT2}, 16
        v_lshlrev_b32 v{t+3}, 10, v0
        buffer_load_dword v{t+4}, v{t+3}, {sr(SX,4)}, s{sT2} offen offset:384
        L_c3a2:
        """)
        return o
    C3A = oi("c3a", -1)
    k3b = [f"s_cmp_eq_u32 s{sCB}, 3", "s_cbranch_scc0 L_k3b", "s_barrier", "L_k3b:"]
    def kv_ld(m, b, tag):
        lb = (1 + b) if m == 0 else (9 + b)
        par = (lb & 1) if m == 0 else (b & 1)
        return [f"s_add_u32 m0, s{sKL}, {1024*lb}", f"s_add_u32 s{sT0}, s{sKO}, {(1024 if 'kvlin' in opt else 8192)*b}",
                I(f"buffer_load_dwordx4 v{vKb if par else vKa}, {sr(SV if m else SK,4)}, s{sT0} offen{NTK} lds", vm=tag)]
    for b in range(4):
        if C3A == b: a(c3a())
        a(kv_ld(0, b, "k0")); a(kv_ld(1, b, "k0"))
        if oi("k3f", 0) == b + 1: a(k3b)
    a(f"""
    v_and_b32 v23, 15, v0
    v_lshlrev_b32 v26, 3, v23
    s_lshl_b32 s{sT1}, s{sCB}, 9
    """)
    for cg in range(4):
        a(I(f"buffer_load_dwordx2 {vr(TP+2*cg,2)}, v26, {sr(SSH,4)}, s{sT1} offen offset:{128*cg}", vm="k0"))
    for b in range(4, 8):
        if C3A == b: a(c3a())
        a(kv_ld(0, b, "k1")); a(kv_ld(1, b, "k1"))
        if oi("k3f", 0) == b + 1: a(k3b)
    if C3A == 8: a(c3a())
    if not AXL & 2: a(h_load(27))
    stamp("iss", 4)
    IWP = oi("iwp", 0) if IW and "iwna" not in opt else -1
    if IWP == 0: a(walk("a"))
    a(f"""
    v_lshlrev_b32 v26, 7, v24
    v_lshl_add_u32 v26, v21, 10, v26
    v_lshl_add_u32 v26, v25, 3, v26
    v_lshrrev_b32 v27, 1, v24
    v_lshl_add_u32 v26, v27, 5, v26
    v_and_b32 v27, 1, v21
    v_lshl_add_u32 v26, v27, 6, v26
    v_add_u32 v{vT}, s{sKL}, v26
    v_xor_b32 v{vT+1}, 32, v{vT}
    v_xor_b32 v{vT+2}, 64, v{vT}
    v_xor_b32 v{vT+3}, 96, v{vT}
    v_lshrrev_b32 v26, 1, v23
    v_lshlrev_b32 v26, 13, v26
    v_and_b32 v27, 1, v0
    v_lshl_add_u32 v26, v27, 4, v26
    v_sub_u32 v27, 3, v21
    v_lshl_add_u32 v{vKS}, v27, 5, v26
    s_lshl_b32 s{sKO}, s{sCB}, 18
    s_lshl_b32 s{sT0}, s{sKEY}, 8
    s_sub_u32 s{sKO}, s{sKO}, s{sT0}
    s_add_u32 s{sKO}, s{sKO}, {WS_KV + 8192 - 256}
    """)
    if not AXL & 1: a(I(wvm="ep")); a(tag_math); a(row_math())
    stamp("rs", 1)
    if IWP == 3: a(walk("a"))
    def kv_read(hh, cg):
        r = KR + 10 * cg; t = f"kr{cg}"
        return [I(f"ds_read_b64_tr_b16 {vr(r,2)}, v{vT+cg} offset:{4096*hh+512}", lg=t),
                I(f"ds_read_b64_tr_b16 {vr(r+2,2)}, v{vT+(cg^2)} offset:{4096*hh+1024}", lg=t),
                I(f"ds_read_b64_tr_b16 {vr(r+4,2)}, v{vT+(cg^2)} offset:{4096*hh+1536}", lg=t),
                I(f"ds_read_b64_tr_b16 {vr(r+6,2)}, v{vT+cg} offset:{4096*hh+9216}", lg=t),
                I(f"ds_read_b64_tr_b16 {vr(r+8,2)}, v{vT+cg} offset:{4096*hh+9728}", lg=t)]
    def kv_math(hh, cg):
        r = KR + 10 * cg; q, u, w, pk = KT, KT + 8, KT + 16, KT + 24 + 4 * (cg & 1)
        o = [I(wlg=f"kr{cg}")]
        o += [f"v_alignbit_b32 v{q+i}, v{r+i}, v{r+i-1}, 16" for i in range(1, 6)]
        src = lambda t, back: (r if t & 1 else q) + 2 + t // 2 - back
        for t in (1, 3, 5, 7, 0, 2, 4, 6): o += [f"v_dot2_f32_bf16 v{u+t}, v{src(t,0)}, v{TP+2*cg}, 0"]
        for t in (1, 3, 5, 7, 0, 2, 4, 6): o += [f"v_dot2_f32_bf16 v{u+t}, v{src(t,1)}, v{TP+2*cg+1}, v{u+t}"]
        o += [f"v_and_b32 v{w+t}, 0xffff0000, v{r+6+t//2}" if t & 1 else f"v_lshlrev_b32 v{w+t}, 16, v{r+6+t//2}" for t in range(8)]
        o += [f"v_mul_f32 v{u+t}, v{u+t}, v{w+t}" for t in range(8)]
        o += [f"v_cvt_pk_bf16_f32 v{pk+e}, v{u+7-2*e}, v{u+6-2*e}" for e in range(4)]
        o += [f"s_add_u32 s{sT0}, s{sKO}, {65536*cg}",
              I(f"buffer_store_dwordx4 {vr(pk,4)}, v{vKS}, {sr(SWS,4)}, s{sT0} offen offset:{128*(1-hh)} sc1", vm="ks")]
        return o
    for hh in range(2):
        a(I(wvm=f"k{hh}", wlg="*"))
        stamp("kin", 5 + 2 * hh)
        for cg in range(4): a(kv_read(hh, cg))
        if hh == 0:
            for d in range(8): a(f"v_alignbit_b32 v{TP+d}, v{TP+d}, v{TP+d}, 16")
        for cg in range(4): a(kv_math(hh, cg))
        stamp("km", 6 + 2 * hh)
        if IWP == 1 and hh == 0: a(walk("a"))
    a(h_math); a(wf_addr)
    vKA2, vKL2 = 27, 28
    ld2 = f"buffer_load_dword v{vKL2}, v{vKA2}, {sr(SWS,4)}, s{sA} offen sc1"
    a(f"""
    s_lshl_b32 s{sT0}, s{sCB}, 5
    s_add_u32 s{sT0}, s{sT0}, s{sKEY}
    s_lshl_b32 s{sT0}, s{sT0}, 2
    s_add_u32 s{sT0}, s{sT0}, {WS_FKV}
    v_lshlrev_b32 v26, 10, v0
    v_lshlrev_b32 v{vKA2}, 3, v0
    s_lshl_b32 s{sA}, s{sRT2}, 9
    s_add_u32 s{sA}, s{sA}, {WS_RS + 4}
    """)
    a([I("s_mov_b64 exec, 3", wvm="*"), f"buffer_store_dword v{vTAG}, v26, {sr(SWS,4)}, s{sT0} offen sc1", "s_mov_b64 exec, -1"])
    stamp("kvf", 2)
    if IWP == 2: a(walk("a"))
    if "dmaonly" in opt or "g1only" in opt: a("s_branch L_prof")
    ck2 = [f"v_xor_b32 v{vFL}, s{sTAG}, v{vFL}", f"v_xor_b32 v{vKL2}, s{sTAG}, v{vKL2}", f"v_or_b32 v{vFL}, v{vFL}, v{vKL2}",
           f"v_cmp_ne_u32 vcc, 0, v{vFL}", "s_cmp_lg_u64 vcc, 0"]
    a("s_barrier")
    a(h_write)
    a(kf_addr); a(f"s_add_u32 s{sC}, s{sC}, 1024")
    stamp("wd", 3)
    a(spin("fwa", ap(wf_ld, 28, "apx") + ap(ld2, 64, "apx"), ck2))
    a(f"""
    s_cmp_lg_u32 s2, 0
    s_cbranch_scc1 L_ep_ok
    s_add_u32 s{sT0}, s{sM0X}, {WS_RS}
    """)
    a(spin("ep", [f"buffer_load_dwordx4 v[32:35], v{vL16}, {sr(SWS,4)}, s{sT0} offen sc1",
                  f"buffer_load_dwordx4 v[36:39], v{vL16}, {sr(SWS,4)}, s{sT0} offen offset:1024 sc1"],
           [f"v_xor_b32 v{r}, s{sTAG}, v{r}" for r in (33, 35, 37, 39)] +
           ["v_or3_b32 v33, v33, v35, v37", "v_or_b32 v33, v33, v39", "v_cmp_ne_u32 vcc, 0, v33", "s_cmp_lg_u64 vcc, 0"]))
    NA = oi("na", 8)
    a(WL[:NA])
    a(spin("kva", ap(kf_ld, 32, "apx"), ne(vKL)))
    a.vq = []
    a(r_dma(24)); a(WL[NA:NPRE]); a(I(wvm="R"))
    a(f"s_branch L_kvok")

    a(f"{JOIN}:")
    a.vq, a.lq = list(vq_join), []
    stamp("join")
    if oi("pe", 0) or (os_("po=") and os_("po=")[3] != "0"): a("s_setprio 0")
    okv = ("s%d" % sOK) if "nocv" in opt else "1"
    a(f"s_cmp_eq_u32 s{sOK}, {okv}\ns_cbranch_scc1 L_kvok")
    a(spin("kv", ap(kf_ld, 32, "apk"), ne(vKL)))
    sv = list(a.vq); a(r_dma(24)); a(I(wvm="*")); a.vq = sv
    a("L_kvok:")
    CA, AF, BF = 32, 64, 128
    vRU, vRH, vPW, vPR, vZW, vZR, vYA, vYR, vOO = 2, 3, 4, 10, 11, 12, 13, 14, 30
    vXF, XN, vRC = 20, 22, 6
    vXF = 1
    sCH, sWQ, sCVB, sRHO = SV, SV + 1, SV + 2, SV + 3
    sOQ = SSH
    a(f"""
    s_lshr_b32 s{sCH}, s{sW}, 2
    s_and_b32 s{sWQ}, s{sW}, 3
    s_mul_i32 s{sCVB}, s{sCH}, {CVCH}
    s_add_u32 s{sCVB}, s{sCVB}, {L_CV}
    s_lshl_b32 s{sT0}, s{sWQ}, 7
    s_add_u32 s{sT0}, s{sT0}, s{sCVB}
    s_add_u32 s{sT1}, s{sT0}, 480
    v_and_b32 v15, 15, v0
    v_and_b32 v16, 48, v0
    v_lshlrev_b32 v31, 5, v15
    v_sub_u32 v31, v16, v31
    v_add_u32 v{vRU}, s{sT1}, v31
    s_add_u32 s{sT1}, s{sT0}, {4608 - 28 + 4160 + 3072}
    v_and_b32 v31, 1, v0
    v_mul_u32_u24 v31, 4160, v31
    v_sub_u32 v31, v16, v31
    v_bfe_u32 v{vRH}, v0, 1, 3
    v_lshl_add_u32 v31, v{vRH}, 2, v31
    v_add_u32 v{vRH}, s{sT1}, v31
    """)
    KHF = oi("hf", 5)
    hf_st = [f"s_cmp_eq_u32 s{sISG}, 0", "s_cbranch_scc1 L_nohf", I(wvm="hs"),
             line(sHF), "L_nohf:"]
    HP = oi("hp", 0)
    if HP:
        pre = [f"s_xor_b32 s{sT0}, s{sXCD}, s{sWR}", f"s_bitcmp1_b32 s{sT0}, 0", "s_cbranch_scc1 L_nohf"]
        if HP == 1:
            pre += ["v_lshrrev_b32 v13, 4, v0", "v_mul_u32_u24 v13, 57344, v13", "v_lshl_add_u32 v13, v15, 6, v13",
                    f"buffer_load_dword v14, v13, {sr(SWS,4)}, s{sXB} offen sc1"]
        if HP == 2:
            pre += ["v_lshrrev_b32 v13, 3, v0", "v_mul_u32_u24 v13, 57344, v13", "v_and_b32 v14, 7, v0", "v_lshl_add_u32 v13, v14, 7, v13",
                    "s_mov_b32 exec_hi, 0", f"buffer_load_dword v14, v13, {sr(SWS,4)}, s{sXB} offen sc1", "s_mov_b32 exec_hi, -1"]
        hf_st = hf_st[:-1] + pre + hf_st[-1:]
    if KHF < 0: a(hf_st); stamp("hflag")
    AM = oi("am", 0)
    a(f"s_cmp_eq_u32 s{sISG}, 0")
    if AM: a(f"s_cselect_b32 s{sOK}, 0, 0xff")
    a("s_cbranch_scc1 L_nowr")
    a(I(wvm="R"))
    a("L_nowr:")
    a(I(wlg="*"))
    if "noc1" not in opt: a("s_barrier")
    stamp("c1")
    a(f"s_or_b32 s{sT0}, s2, s{sW}\ns_cbranch_scc1 L_noep")
    a(one(f"buffer_store_dword v{vTAG}, off, {sr(SWS,4)}, 0 offset:{WS_EPOCH} sc1"))
    a("L_noep:")
    order = [(0, p) for p in range(7, -1, -1)] + [(1, p) for p in range(8)]
    def uread(rr, d): return I(f"ds_read_b128 {vr(AF+32*rr+4*d,4)}, v{vRU} offset:{512*(7-d)+64*rr}", lg=f"a{rr}{d}")
    def hread(k):
        rr, p = order[k]; o = 128 * (p & 1) + 16 * rr; b = BF + 4 * (k % 4)
        g = []
        if rr == 0 and p in (5, 3, 1): g += [f"v_subrev_u32 v{vRH}, 1024, v{vRH}"]
        if rr == 1 and p in (2, 4, 6): g += [f"v_add_u32 v{vRH}, 1024, v{vRH}"]
        return g + [I(f"ds_read2_b32 {vr(b,2)}, v{vRH} offset0:{o} offset1:{o+1}", lg=f"b{k}"),
                    I(f"ds_read2_b32 {vr(b+2,2)}, v{vRH} offset0:{o+2} offset1:{o+3}", lg=f"b{k}")]
    PC, PG = os_("pc="), os_("pg=")
    if PC: a(f"s_setprio {PC[0]}")
    for k in range(3): a(hread(k)); a(uread(0, k))
    for d in range(3, 8): a(uread(0, d))
    XV = 6
    fin_addr = L(f"""
        s_and_b32 s{sRHO}, s{sCT2}, 3
        s_lshl_b32 s{sT0}, s{sRT2}, 3
        s_add_u32 s{sT0}, s{sT0}, s{sW}
        s_lshl_b32 s{sOQ}, s{sT0}, 13
        s_lshl_b32 s{sT1}, s{sCT2}, 7
        s_add_u32 s{sOQ}, s{sOQ}, s{sT1}
        s_lshl_b32 s{sT0}, s{sT0}, 6
        s_add_u32 s{sOQ+1}, s{sT0}, {WS_RS}
        v_and_b32 v31, 3, v0
        v_lshrrev_b32 v1, 5, v0
        v_lshl_add_u32 v31, v1, 2, v31
        v_and_b32 v{vOO}, 28, v0
        v_lshlrev_b32 v{vOO}, 2, v{vOO}
        v_lshl_add_u32 v{vOO}, v31, 10, v{vOO}
        v_lshlrev_b32 v1, 3, v31
        """)
    fin_ld = [I(f"buffer_load_dwordx4 {vr(XV,4)}, v{vOO}, {sr(SX,4)}, s{sOQ} offen", vm="xt"),
              I(f"buffer_load_dword v{XN+7}, v1, {sr(SWS,4)}, s{sOQ+1} offen sc1", vm="xt")]
    if prof and "nofr" in opt: fin_ld = fin_ld[:1]
    if prof and "nofx" in opt: fin_ld = fin_ld[1:]
    if "frp" in opt: fin_ld[-1].text = fin_ld[-1].text.replace(" sc1", "")
    if "to" in opt: fin_ld = [I(f"buffer_load_dword v{XN+6}, off, {sr(SOUT,4)}, s{sOQ}", vm="xt")] + fin_ld
    vZS = 2
    def zsc(r):
        if not BI: return []
        return [f"v_mul_f32 v{vZS}, {fx(2.0 ** -ESH)}, v{r}", f"v_mul_f32 v{vZS}, v{vZS}, v{r}", f"v_mul_f32 v{r}, v{vZS}, v{r}",
                f"v_mul_f32 v{vZS}, {fx(-1.4426950408889634)}, v{vZS}"]
    def unpack(d, x): return [f"v_and_b32 v{d+e}, 0xffff0000, v{x+e//2}" if e & 1 else f"v_lshlrev_b32 v{d+e}, 16, v{x+e//2}" for e in range(8)]
    xn_math = ([I(f"v_lshlrev_b32 v20, 16, v{XN+7}", wvm="xt"), f"v_and_b32 v21, 0xffff0000, v{XN+7}", "v_rcp_f32 v20, v20"] +
               unpack(XN, XV) + [f"v_add_f32 v{XN+e}, v{XN+e}, v21" for e in range(8)] + zsc(20) +
               [f"v_mul_f32 v{XN+e}, v{XN+e}, v20" for e in range(8)])
    p_addr = L(f"""
        v_bfe_u32 v20, v0, 1, 2
        v_bfe_u32 v21, v0, 3, 1
        v_xor_b32 v20, v20, v21
        v_lshlrev_b32 v20, 4, v20
        v_xor_b32 v20, v20, v16
        v_lshl_add_u32 v20, v15, 6, v20
        s_lshl_b32 s{sT0}, s{sW}, 13
        v_add_u32 v{vPW}, s{sT0}, v20
        v_bfe_u32 v20, v0, 2, 2
        v_bfe_u32 v21, v0, 4, 1
        v_xor_b32 v20, v20, v21
        v_lshlrev_b32 v20, 4, v20
        v_lshlrev_b32 v21, 5, v0
        v_xor_b32 v20, v20, v21
        s_lshl_b32 s{sT0}, s{sCH}, 15
        s_lshl_b32 s{sT1}, s{sWQ}, 11
        s_add_u32 s{sT0}, s{sT0}, s{sT1}
        v_add_u32 v{vPR}, s{sT0}, v20
        """)
    HB, ZA, NS = 64, 32, 16
    sH1, sH2, sHQ = sXB, sWB, sKEY
    def HR(n): return HB + 4 * (n % NS if n % NS < 8 else 23 - n % NS)
    sMK = sA
    def hload(n, mask=False):
        qd, ks = divmod(n, 7)
        g = []
        if ks == 0:
            g += [f"s_xor_b32 s{sT3}, s{sRHO}, {qd}", f"s_mul_i32 s{sT3}, s{sT3}, 57344", f"s_add_u32 s{sH1}, s{sHQ}, s{sT3}",
                  f"s_sub_u32 s{sH2}, s{sH1}, s{sRB}"]
        t = I(f"buffer_load_dwordx4 {vr(HR(n),4)}, v{vL16}, {sr(SWS,4)}, s{sH1 if ks < 4 else sH2} offen offset:{(ks&3)*1024} sc1", vm=f"h{n}")
        if "hx2" in opt: return g + [f"s_mov_b64 exec, {sr(sMK,2)}" if mask else "s_nop 0", "s_mov_b32 exec_hi, 0", t, "s_mov_b64 exec, -1"]
        if "hx1" in opt: t = I(t.text.replace("dwordx4 " + vr(HR(n),4), "dword " + vr(HR(n),1)).replace(f"v{vL16},", "v15,"), vm=f"h{n}")
        return g + ([f"s_mov_b64 exec, {sr(sMK,2)}", t, "s_mov_b64 exec, -1"] if mask and "nomask" not in opt else [t])
    def again(n1):
        sv = list(a.vq)
        for n in range(n1): a(hload(n))
        a.vq = sv
    h_addr = L(f"""
        s_mul_i32 s{sHQ}, s{sRT2}, {4*56*1024}
        s_mul_i32 s{sT1}, s{sW}, 7168
        s_add_u32 s{sHQ}, s{sHQ}, s{sT1}
        s_mul_i32 s{sT1}, s{sHI}, 3072
        s_add_u32 s{sHQ}, s{sHQ}, s{sT1}
        s_add_u32 s{sHQ}, s{sHQ}, {WS_H}
        s_mul_i32 s{sRB}, s{sHI}, 7168
        s_sub_u32 s{sRB}, s{sRB}, 4096
        s_lshl_b32 s{sE}, s{sRT2}, 3
        s_add_u32 s{sE}, s{sE}, s{sW}
        s_mul_i32 s{sE}, s{sE}, {7 << FS}
        s_add_u32 s{sE}, s{sE}, {WS_FH + 4}
        v_min_u32 v{vFA}, 6, v0
        v_lshlrev_b32 v{vFA}, {FS}, v{vFA}
        """)
    KH, KR_, KA, KB = oi("kh", 8), oi("kq", 3), oi("ka", 6), oi("kb", 11)
    KHY = oi("khy", -1)
    if KHY >= 0: KH = KB = 99
    assert KHY >= 0 or (8 <= KH <= 15 and KA < KH <= KB and KHF < KH)
    PM = [o[3:].replace("_", " ") for o in opt if o.startswith("pm=")]
    def poll(at, vm=None, am=False):
        if not at:
            t = wf_ld.replace("sc1", PM[0]) if PM else wf_ld
            return [I(t, vm=vm)]
        return [f"v_mov_b32 v{vFL}, 0"] + ([f"s_mov_b32 exec_lo, s{sOK}", "s_mov_b32 exec_hi, 0"] if am else ["s_mov_b64 exec, 0xff"]) + [
                I(f"buffer_atomic_or v{vFL}, v{vFA}, {sr(SWS,4)}, s{sE} offen sc0 sc1", vm=vm), "s_mov_b64 exec, -1"]
    def ne8(at): return [f"v_cmp_ne_u32 vcc, s{sTAG}, v{vFL}", "s_and_b32 vcc_lo, vcc_lo, 0xff"] if at else ne(vFL)
    AH, AY = "aph" in opt or "apa" in opt, "apy" in opt or "apa" in opt
    hf_ld = poll(AH)
    hn = 0
    NB = oi("nb", NS); YL = [int(x, 36) for x in os_("yl=", "0000").ljust(6, "0")]; NY = NB + sum(YL); GQ = oi("gq", 2)
    assert NY <= NS
    assert KHY < 0 or (NB == 0 and sum(YL[:KHY]) == 0)
    def yl(i):
        if KA == 17 + i: a(poll(AH, "hf"))
        if i == KHY: a([I(wvm="hf")] + ne8(AH) + [f"s_cselect_b64 {sr(sMK,2)}, 0, -1"])
        for n in range(NB + sum(YL[:i]), NB + sum(YL[:i + 1])): a(hload(n, True))
    def pwrite(j): return I(f"ds_write_b128 v{vPW}, {vr(CA+4*j,4)} offset:{1024*j}", lg="pw")
    sYS = sCB
    if "nocv" in opt:
        a(fin_addr); a(h_addr)
        if "wtf" in opt: a(WL[NPRE:]); a(fin_ld)
        a(hf_st)
        if "bar2" in opt: a("s_barrier")
        if "wtf" not in opt: a(WL[NPRE:]); a(fin_ld)
        stamp("k1")
        a(xn_math)
        if "blind" not in opt: a(spin("hf0", [f"s_sleep {oi('sl', 0)}", hf_ld], ne8(AH)))
        stamp("k11")
        a.vq = []
        for n in range(NS): a(hload(n))
        a(f"s_mov_b32 s{sMK}, -1")
        a(I(wlg="*"))
        stamp("c3")
    else:
        for k, (rr, p) in enumerate(order):
            seq = []
            for j in range(p, 8):
                c = "0" if (rr == 0 and j == p) else vr(CA + 4 * j, 4)
                seq.append(I(f"v_mfma_f32_16x16x32_bf16 {vr(CA+4*j,4)}, {vr(BF+4*(k%4),4)}, {vr(AF+32*rr+4*(j-p),4)}, {c}",
                             wlg=[f"a{rr}{j-p}", f"b{k}"]))
            fill = []
            if k == 1: fill += [fin_addr]
            WK = os_("wk=")
            if WK:
                assert sum(int(x) for x in WK) == 28 - NPRE
                w0 = NPRE + sum(int(x) for x in WK[:k]); fill += WL[w0:w0 + int((WK + "0" * 16)[k])]
            elif 1 <= k <= 6: fill += part(WL[NPRE:], k - 1, 6)
            if k == oi("kx", 3): fill += fin_ld
            if 4 <= k <= 7: fill += [uread(1, 2 * (k - 4)), uread(1, 2 * (k - 4) + 1)]
            if k in (6, 7): fill += part(p_addr, k - 6, 2)
            if 8 <= k <= 11 and "xg" not in opt: fill += part(xn_math, k - 8, 4)
            if k >= 9: fill = fill[:2] + [pwrite(p - 1)] + fill[2:]
            if k == 2: fill += [h_addr]
            if k == KHF and "hb" not in opt: fill += [hf_st]
            if k == KA and "hb" not in opt: fill += [poll(AH, "hf", AM & 1)]
            if k == KH and "hb" in opt: a(f"s_mov_b64 {sr(sMK,2)}, -1")
            elif k == KH: a([I(wvm="hf")] + ne8(AH) + [f"s_cselect_b64 {sr(sMK,2)}, 0, -1"])
            if k == KB: fill += [[f"s_cmp_lg_u32 s{sMK}, 0", "s_cbranch_scc1 L_nof2", poll(AH, None, AM & 2), "L_nof2:"]]
            if k >= KH:
                e = min(hn + KR_, k, NB); hl = [hload(n, True) for n in range(hn, e)]; hn = max(hn, e)
                fill = mix(fill, hl) if len(fill) >= len(hl) else mix(hl, fill)
            a(mix(seq, fill))
            if k + 3 < 16: a(hread(k + 3))
            if PC and PC[k + 1] != PC[k]: a(f"s_setprio {PC[k + 1]}")
            stamp(f"k{k}")
        a(f"""
        s_lshl_b32 s{sT1}, s{sWQ}, 10
        s_sub_u32 s{sT1}, s{sCVB}, s{sT1}
        s_add_u32 s{sT1}, s{sT1}, 4080
        v_sub_u32 v20, s{sT1}, v{vL16}
        v_xor_b32 v21, 16, v{vPR}
        """)
        a(pwrite(7))
        for n in range(hn, NB): a(hload(n, True))
        if KHY < 0:
            a([f"s_cmp_lg_u32 s{sMK}, 0", "s_cbranch_scc1 L_hlate", "s_waitcnt vmcnt(0)"] + ne8(AH) +
              [f"s_cselect_b64 {sr(sMK,2)}, 0, -1", "s_cbranch_scc1 L_hlate"])
            again(NB)
            a("L_hlate:")
        sYS = sCB
        a(I(wlg="*"))
        a("s_barrier")
        stamp("c3")
        if KA == 16: a(poll(AH, "hf"))
        if "py" in opt: a("s_setprio 3")
        PR, vU, YA = 32, 128, 132
        a(I(f"ds_read_b128 {vr(vU,4)}, v20", lg="su"))
        for k in range(4):
            a(I(f"ds_read_b128 {vr(PR+8*k,4)}, v{vPR} offset:{8192*k}", lg=f"p{k}"))
            a(I(f"ds_read_b128 {vr(PR+8*k+4,4)}, v21 offset:{8192*k}", lg=f"p{k}"))
        a(f"""
        s_lshl_b32 s{sT1}, s{sCH}, 4
        s_lshr_b32 s{sD}, s{sD}, s{sT1}
        s_lshl_b32 s{sD}, s{sD}, 16
        s_lshl_b32 s{sT1}, s{sCP}, 13
        s_lshl_b32 s{sT3}, s{sW}, 10
        s_add_u32 s{sT1}, s{sT1}, s{sT3}
        s_add_u32 s{sT1}, s{sT1}, {WS_YT}
        s_lshl_b32 s{sYS}, s{sWQ}, 9
        s_lshl_b32 s{sT3}, s{sCP}, 1
        s_add_u32 s{sYS}, s{sYS}, s{sT3}
        s_add_u32 s{sYS}, s{sYS}, s{sCH}
        s_lshl_b32 s{sT3}, s{sYS}, 7
        s_and_b32 s{sT3}, s{sT3}, 0x380
        v_xor_b32 v31, s{sT3}, v{vL16}
        s_lshl_b32 s{sYS}, s{sYS}, {FS}
        s_add_u32 s{sYS}, s{sYS}, {WS_FY}
        """)
        yl(0)
        stamp("y0")
        a(I(wlg="su"))
        stamp("y1")
        for e in range(4):
            a(f"v_and_b32 v{YA+6-2*e}, 0xffff0000, v{vU+e}\nv_lshlrev_b32 v{YA+7-2*e}, 16, v{vU+e}")
        yl(1)
        a(I(wlg="p0"))
        for e in range(8): a(f"v_fma_f32 v{YA+e}, v{YA+e}, s{sD}, v{PR+e}")
        yl(2)
        a(I(wlg="p2"))
        def add8(d, x):
            if "ynp" in opt:
                for e in range(8): a(f"v_add_f32 v{d+e}, v{d+e}, v{x+e}")
            else:
                for e in range(0, 8, 2): a(f"v_pk_add_f32 {vr(d+e,2)}, {vr(d+e,2)}, {vr(x+e,2)}")
        add8(PR + 8, PR + 16)
        yl(3)
        a(I(wlg="p3"))
        stamp("y2")
        a(f"s_lshl_b32 s{sT3}, s{sW}, 2\ns_add_u32 s{sT3}, s{sT3}, {L_CNT}\nv_mov_b32 v20, s{sT3}")
        a(I(f"ds_write_b32 v20, v{vTAG}", lg="cw"))
        add8(YA, PR + 24)
        add8(YA, PR + 8)
        for e in range(4): a(f"v_cvt_pk_bf16_f32 v{vU+e}, v{YA+2*e}, v{YA+2*e+1}")
        stamp("y3")
        yl(4)
        a(I(f"buffer_store_dwordx4 {vr(vU,4)}, v31, {sr(SWS,4)}, s{sT1} offen sc1", vm="ys"))
        yl(5)
    stamp("ys")
    if PG or "py" in opt: a(f"s_setprio {PG[0] if PG else 0}")
    a(f"s_cmp_lg_u32 s{sMK}, 0\ns_cbranch_scc1 L_hgo")
    a(spin("hf", [hf_ld], ne8(AH)))
    stamp("hsp")
    again(NY)
    hn = NY
    a(line(sYS))
    a("L_hgo:")
    stamp("hok")
    sYA, sYF, sSEL = sMO, sE, SK
    YO = "yo" in opt
    sYW = sMO + 1 if YO else sW
    g2_addr = L(f"""
    v_lshrrev_b32 v20, 4, v0
    s_lshl_b32 s{sT1}, s{sRBL}, 2
    v_xor_b32 v21, v20, v15
    v_xor_b32 v21, s{sT1}, v21
    v_lshlrev_b32 v21, 4, v21
    v_lshl_add_u32 v21, v15, 8, v21
    s_lshl_b32 s{sT1}, s{sW}, 12
    v_add_u32 v{vZW}, s{sT1}, v21
    s_lshl_b32 s{sT1}, s{sW}, 1
    v_lshrrev_b32 v1, 5, v0
    v_add_u32 v21, s{sT1}, v1
    v_and_b32 v20, 3, v0
    v_xor_b32 v31, s{sRHO}, v20
    v_lshrrev_b32 v{vZR}, 1, v0
    v_and_b32 v{vZR}, 14, v{vZR}
    v_xor_b32 v{vZR}, v{vZR}, v21
    v_xor_b32 v{vZR}, v{vZR}, v31
    v_lshlrev_b32 v{vZR}, 4, v{vZR}
    v_lshl_add_u32 v{vZR}, v21, 8, v{vZR}
    s_mov_b32 s{sT1}, {sum((L_Z[q] >> 15) << (8 * q) for q in range(4))}
    v_lshlrev_b32 v31, 3, v31
    v_bfe_u32 v31, s{sT1}, v31, 8
    v_lshl_add_u32 v{vZR}, v31, 15, v{vZR}
    v_bfe_u32 v31, v0, 4, 1
    v_lshl_add_u32 v20, v31, 2, v20
    v_xor_b32 v21, s{sW}, v20
    v_lshlrev_b32 v21, 4, v21
    v_lshl_add_u32 v21, v1, 3, v21
    v_lshl_add_u32 v21, v20, 10, v21
    v_bfe_u32 v31, v0, 2, 2
    v_lshl_add_u32 v21, v31, 7, v21
    v_add_u32 v{vYR}, {L_Y}, v21
    v_and_b32 v21, 7, v0
    {f"s_lshl_b32 s{sYW}, s{sW}, 1" if YO else ""}
    v_xor_b32 v20, s{sYW}, v21
    v_lshlrev_b32 v20, 4, v20
    v_lshrrev_b32 v31, 3, v0
    v_lshl_add_u32 v20, v31, 12, v20
    s_and_b32 s{sT1}, s{sRT2}, 7
    v_xor_b32 v31, s{sT1}, v31
    v_lshl_add_u32 v{vYA}, v31, 7, v20
    v_lshlrev_b32 v{vFA}, {FS}, v{15 if YO else 21}
    v_lshlrev_b32 v1, 2, v21
    v_add_u32 v1, {L_CNT}, v1
    s_lshl_b32 s{sT1}, s{sCT2}, 3
    s_add_u32 s{sT1}, s{sT1}, s{sYW}
    s_lshl_b32 s{sYA}, s{sT1}, 15
    s_and_b32 s{sT0}, s{sRT2}, 24
    s_lshl_b32 s{sT0}, s{sT0}, 7
    s_add_u32 s{sYA}, s{sYA}, s{sT0}
    s_add_u32 s{sYA}, s{sYA}, {WS_YT}
    s_lshl_b32 s{sYF}, s{sT1}, {FS + 3}
    s_lshr_b32 s{sT0}, s{sRT2}, 3
    s_lshl_b32 s{sT0}, s{sT0}, {FS + 9}
    s_add_u32 s{sYF}, s{sYF}, s{sT0}
    s_add_u32 s{sYF}, s{sYF}, {WS_FY + 4}
    s_mov_b32 s{sSEL}, {fx(-1.4426950408889634)}
    s_mov_b32 s{sSEL+1}, s{sSEL}
    s_mov_b32 s{sSEL+2}, 1.0
    s_mov_b32 s{sSEL+3}, 1.0
    s_lshl_b32 s{sT0}, s{sYW}, 10
    s_add_u32 m0, s{sT0}, {L_Y}
    """)
    ZT, XF, YR, YF = 64, 128, 136, 32
    def zwrite(qd):
        hi, lo = L_Z[qd] & ~0xffff, L_Z[qd] & 0xffff
        return [[f"v_xor_b32 v20, {hi + 64*mt + 16*qd}, v{vZW}",
                 I(f"ds_write_b128 v20, {vr(ZA+16*(qd&1)+4*mt,4)} offset:{lo}", lg="zw")] for mt in range(4)]
    xn_g = ([f"v_lshlrev_b32 v16, 16, v{XN+7}", f"v_and_b32 v4, 0xffff0000, v{XN+7}", "v_rcp_f32 v16, v16"] +
            [f"v_add_f32 v{XN+e}, v{XF+e}, v4" for e in range(8)] + zsc(16) + [f"v_mul_f32 v{XN+e}, v{XN+e}, v16" for e in range(8)])
    NYF, NYP, NYC = oi("nyf", 8), oi("nyp", 16), oi("nyc", 21)
    NG, ZS = oi("ng", 6), oi("zs", 1)
    y_ld = f"buffer_load_dwordx4 v{vYA}, {sr(SWS,4)}, s{sYA} offen sc1 lds"
    if YO:
        y_ld = [y_ld, f"v_xor_b32 v{vFL}, 16, v{vYA}", "s_add_u32 m0, m0, 1024", f"s_add_u32 s{sYA}, s{sYA}, 32768",
                y_ld.replace(f"v{vYA},", f"v{vFL},")]
    def wide(x): return [[y.replace("0xff", "0xffff") if isinstance(y, str) else y for y in x]] if YO else x
    cn_ld = "ds_read_b32 v31, v1"
    cn_ck = ["v_cmp_eq_u32 vcc, 0, v31", "s_cmp_lg_u64 vcc, 0", "s_cbranch_scc0 L_cn_ok"]
    for n in range(28):
        qd, ks = divmod(n, 7)
        a(I(wvm=[f"h{n}", f"wd{ks}"]))
        if n == NYF: a(line(sYS, wvm="ys", vm="yf"))
        if n == 22:
            a([I(wlg="cn")] + cn_ck + [f"s_mov_b32 s{sCNT}, {SPIN}", "L_cn_loop:", cn_ld, "s_waitcnt lgkmcnt(0)"] + cn_ck +
              [f"s_sub_u32 s{sCNT}, s{sCNT}, 1", "s_cbranch_scc0 L_cn_loop", "L_cn_ok:"])
        if ks == 0 and qd >= 2: a(I(wlg="zw"))
        seq = []
        for mt in range(4):
            d = ZA + 16 * (qd & 1) + 4 * mt
            c = "0" if ks == 0 else vr(d, 4)
            seq.append(f"v_mfma_f32_16x16x32_bf16 {vr(d,4)}, {vr(WDF(4*ks+mt),4)}, {vr(HR(n),4)}, {c}")
        fill = []
        if qd >= 1 and 1 <= ks <= ZS: fill = part(zwrite(qd - 1), ks - 1, ZS)
        if n < NG: fill = part(g2_addr, n, NG)
        if n == 20: fill += [I(cn_ld, lg="cn")]
        if n in (12, 13): fill += part(unpack(XF, XV), n - 12, 2)
        if "xg" in opt and n in (17, 18, 19, 24, 25, 26): fill += part(xn_g, (17, 18, 19, 24, 25, 26).index(n), 6)
        if n == 27: fill += [f"v_xor_b32 v21, 16, v{vZR}"]
        if n == NYC and "yb" in opt: fill = [[f"s_mov_b32 s{sMK}, -1", I(y_ld, vm="yl")]] + fill
        elif n == NYC and YO:
            fill = [[f"s_cmp_ge_u32 s{sW}, 4", f"s_cselect_b32 s{sMK}, -1, 0", "s_cbranch_scc1 L_ylate", "s_waitcnt vmcnt(0)"] + wide(ne8(AY)) +
                    [f"s_cselect_b32 s{sMK}, 0, -1", "s_cbranch_scc1 L_ylate", y_ld, "L_ylate:"]] + fill
        elif n == NYC:
            fill = [[I(wvm="yp")] + ne8(AY) + [f"s_cselect_b32 s{sMK}, 0, -1", "s_cbranch_scc1 L_ylate", y_ld, "L_ylate:"]] + fill
        a(mix(seq, fill))
        GS = os_("gs=")
        e = min(28, n + 1 + NS, hn + (int(GS[n % len(GS)]) if GS else GQ))
        for m in range(hn, e): a(hload(m))
        hn = e
        assert hn > min(n + 1, 27) or n == 27
        if n == NYP and YO: a([I(wvm="*"), f"s_cmp_ge_u32 s{sW}, 4", "s_cbranch_scc1 L_nyp", wide(poll(AY)), "L_nyp:"])
        elif n == NYP and "yb" not in opt: a(poll(AY, "yp"))
        if PG and PG[n + 1] != PG[n]: a(f"s_setprio {PG[n + 1]}")
        stamp(f"n{n}")
    a(zwrite(3))
    stamp("g2")
    a(f"s_cmp_lg_u32 s{sMK}, 0\ns_cbranch_scc1 L_ygo")
    a(spin("yf", wide(poll(AY)), wide(ne8(AY))) + [y_ld, "L_ygo:"])
    stamp("yok")
    a(I(wvm="*", wlg="*"))
    a("s_barrier")
    stamp("bf")
    P2 = lambda x: vr(x, 2)
    a(I(f"ds_read_b64_tr_b16 {P2(YR)}, v{vYR}", lg="yr"))
    a(I(f"ds_read_b64_tr_b16 {P2(YR+2)}, v{vYR} offset:512", lg="yr"))
    def zread(k): return [I(f"ds_read_b128 {vr(ZT+8*k+4*h,4)}, v{21 if h else vZR} offset:{4096*k}", lg=f"z{k}") for h in range(2)]
    for k in range(6): a(zread(k))
    a(I(wlg="yr")); a(unpack(YF, YR))
    a(zread(6)); a(zread(7))
    for e in range(0, 8, 2): a(f"v_pk_mul_f32 {P2(XN+e)}, {P2(XN+e)}, {P2(YF+e)}")
    stamp("f0")
    for k in range(1, 8):
        a(I(wlg=f"z{k}"))
        for e in range(0, 8, 2): a(f"v_pk_add_f32 {P2(ZT+e)}, {P2(ZT+e)}, {P2(ZT+8*k+e)}")
    stamp("f1")
    for e in range(0, 8, 2): a(f"v_pk_mul_f32 {P2(YF+e)}, {P2(ZT+e)}, " + (f"{P2(vZS)} op_sel_hi:[1,0]" if BI else sr(sSEL,2)))
    a(mix([f"v_exp_f32 v{YF+e}, v{YF+e}" for e in range(8)],
          [f"v_pk_mul_f32 {P2(XN+e)}, {P2(XN+e)}, {P2(ZT+e)}" for e in range(0, 8, 2)]))
    for e in range(0, 8, 2): a(f"v_pk_add_f32 {P2(YF+e)}, {P2(YF+e)}, {sr(sSEL+2,2)}")
    for e in range(8): a(f"v_rcp_f32 v{YF+e}, v{YF+e}")
    for e in range(0, 8, 2): a(f"v_pk_fma_f32 {P2(XF+e)}, {P2(XN+e)}, {P2(YF+e)}, {P2(XF+e)}")
    for e in range(4): a(f"v_cvt_pk_bf16_f32 v{YR+e}, v{XF+2*e}, v{XF+2*e+1}")
    stamp("f2")
    a(f"buffer_store_dwordx4 {vr(YR,4)}, v{vOO}, {sr(SOUT,4)}, s{sOQ} offen sc0 sc1")
    if prof:
        stamp("st")
        if "endw" in opt: a("s_waitcnt vmcnt(0)")
        a("L_prof:")
        stamp("end")
        a(f"""
        s_waitcnt lgkmcnt(0)
        s_lshl_b32 s{sT0}, s2, 3
        s_add_u32 s{sT0}, s{sT0}, s{sW}
        s_lshl_b32 s{sT0}, s{sT0}, 6
        s_add_u32 s{sT0}, s{sT0}, {WS_PROF}
        """)
        if "dbg" in opt:
            n = len(stamps)
            a(f"s_load_dwordx2 {sr(SX,2)}, s[0:1], 88\ns_mov_b32 s{SX+2}, 256\ns_waitcnt lgkmcnt(0)\ns_mov_b64 exec, 1")
            a(f"s_not_b32 s{sT1}, s{PROFS[0]}\nv_mov_b32 v1, s{sT1}\nbuffer_atomic_umax v1, off, {sr(SX,4)}, 0")
            a(f"v_mov_b32 v2, s{PROFS[n-1]}\nbuffer_atomic_umax v2, off, {sr(SX,4)}, 0 offset:60")
            a(f"s_cmp_lt_u32 s2, 32\ns_cbranch_scc1 {END}")
            for i in range(n):
                if "avg" in opt:
                    a(f"s_sub_u32 s{sT1}, s{PROFS[i]}, s{PROFS[0]}\nv_mov_b32 v{3+i}, s{sT1}\nbuffer_atomic_add v{3+i}, off, {sr(SX,4)}, 0 offset:{4+4*i}")
                else:
                    a(f"v_mov_b32 v{3+i}, s{PROFS[i]}\nbuffer_atomic_umax v{3+i}, off, {sr(SX,4)}, 0 offset:{4+4*i}")
            a(f"s_branch {END}")
        for i in range(len(stamps)):
            a(f"v_mov_b32 v1, s{PROFS[i]}")
            a(f"buffer_store_dword v1, off, {sr(SWS,4)}, s{sT0} offset:{4*i}")
    a(f"{END}:\ns_endpgm")
    def post(b):
        import al
        if oi("al", -1) >= 0:
            b, st = al.align(b, oi("al", 0)); print(st)
        if "sh4" in opt: b = ["    s_nop 0"] + b
        if "mva" in opt:
            i0 = b.index("    s_branch " + JOIN); i1 = b.index(JOIN + ":")
            assert b[i1 - 1].strip() == "s_branch L_kvok" and b[-1].strip() == "s_endpgm"
            b = b[:i0] + b[i1:] + b[i0 + 1:i1] + ["    s_endpgm"]
        if IW:
            sz = al.sizes(b); pos = []; off = 0; on = False; safe = True; nxt = 0
            for i, l in enumerate(b):
                t = l.strip()
                if t in ("L_iwa:", os0("iws=", JOIN) + ":"): on = True; nxt = off
                if t in ("L_iwb:", END + ":", "L_prof:"): on = False
                if on and safe and off >= nxt and sz[i] and not b[i - 1].strip().startswith("s_nop"):
                    pos.append(i); off += 4; nxt = (off // IW + 1) * IW
                if re.match(r"s_\w+ exec", t): safe = t.endswith(", -1")
                off += sz[i]
            n = len(pos); ins = {}
            for c in range(IWN):
                seg = pos[n * c // IWN:n * (c + 1) // IWN]
                for q, i in enumerate(seg):
                    ins[i] = [f"L_iw{c}_{q}:", "    s_cbranch_execz " + (f"L_iw{c}_{q+1}" if q + 1 < len(seg) else "L_iwret")]
            b = [x for i, l in enumerate(b) for x in ins.get(i, []) + [l]]
            print("pads", n, "bytes", off)
        if oi("iy", 0):
            IY = oi("iy", 0); NH = oi("iyh", 1)
            sz = al.sizes(b); pos = []; off = 0; on = False; safe = True; nxt = 0
            for i, l in enumerate(b):
                t = l.strip()
                if t == (JOIN + ":" if "iyj" in opt else "L_iya:"): on = True; nxt = off
                if t in ("L_iyb:", "L_iwb:", AUX + ":", END + ":", "L_prof:"): on = False
                if on and safe and off >= nxt and sz[i] and not b[i - 1].strip().startswith("s_nop"):
                    pos.append(i); off += 4; nxt = off + IY - 12
                if re.match(r"s_\w+ exec", t): safe = t.endswith(", -1") and t.startswith("s_mov")
                off += sz[i]
            ins = {i: [f"L_iy{q}:", "    s_cbranch_execz " + (f"L_iy{q+1}" if (q + 1) % NH and q + 1 < len(pos) else "L_iyr")] for q, i in enumerate(pos)}
            ns = (len(pos) + NH - 1) // NH
            assert ns <= 28, ns
            d = [f"    s_lshl_b32 s{sCNT}, s{sISG}, 2", f"    s_add_u32 s{sCNT}, s{sCNT}, s{sW}", "    s_mov_b64 exec, 0"]
            for q in range(ns): d += [f"    s_cmp_eq_u32 s{sCNT}, {q + 8}", f"    s_cbranch_scc1 L_iy{q * NH}"]
            ins[b.index("L_iyr:")] = d
            b = [x for i, l in enumerate(b) for x in ins.get(i, []) + [l] if x not in ("L_iyd:", "L_iya:", "L_iyb:")]
            print("iy pads", len(pos))
        print("misplaced", al.stat(b))
        if "L_iw0_0:" in b:
            k = b.index("L_iw0_0:")
            b = b[:k] + ["; each L_iw pad is entered once with EXEC = 0 by a wave of the k*v workgroups and left at once:",
                         "; the fetch brings that stretch of code into L2 before the other workgroups reach it"] + b[k:]
        if "L_wu:" in b:
            k = b.index("L_wu:")
            b = b[:k] + ["; the matrix pipe runs on scratch operands while the first tiles are in flight, so the supply",
                         "; current rises in two steps and the clock sags less during the first GEMM"] + b[k:]
        return b
    txt = a.text(256, 512, 163840, post=post)
    if oi("kp", 0): txt = txt.replace(".p2align 8\n", ".p2align 8\n" + "    s_endpgm\n" * (64 * oi("kp", 0)), 1)
    return txt, stamps, a.nops

if __name__ == "__main__":
    txt, st, nops = gen(prof="prof" in sys.argv, opt=sys.argv[2:])
    open(sys.argv[1], "w").write(txt)
    print("lines", txt.count("\n"), "nops", nops, st)
    if st: open(sys.argv[1] + ".stamps", "w").write(" ".join(st))
```
